```python
import torch

def _softmax(x, axis=-1):
    return torch.softmax(x, dim=axis)

def _gelu(x):
    return torch.nn.functional.gelu(x, approximate='tanh')

def _silu(x):
    return torch.nn.functional.silu(x)

def _sigmoid(x):
    return torch.sigmoid(x)

def _layernorm(x, axis=-1, eps=1e-05):
    m = x.mean(dim=axis, keepdim=True)
    v = x.var(dim=axis, keepdim=True, unbiased=False)
    return (x - m) / torch.sqrt(v + eps)

def _scatter_add(tgt, idx, src, axis=0):
    return tgt.clone().index_add_(axis, idx, src)

def _segment_sum(src, seg, n):
    out = torch.zeros((n,) + src.shape[1:], dtype=src.dtype)
    return out.index_add_(0, seg, src)

def _pad(x, pw):
    flat = tuple((v for pair in reversed(pw) for v in pair))
    return torch.nn.functional.pad(x, flat)
kernel_name = 'adaLN_cond__memory_aug_recurrent_mem_tr__glu_gated_swiglu__prompt'

def setup_inputs():

    _w = lambda a: (lambda t: t.to(torch.bfloat16) if t.is_floating_point() else t)(torch.as_tensor(a))

    def _A_setup():
        B, S, Dm = (1, 2048, 640)
        H, Dh = (32, 128)
        M, seg = (8, 32)
        seg = min(seg, S)
        S = S // seg * seg
        return {'x': _w((lambda *s: torch.randn(*s, dtype=torch.bfloat16) * 0.05)(B, S, Dm)), 'mem0': _w((lambda *s: torch.randn(*s, dtype=torch.bfloat16) * 0.8)(B, M, Dm)), 'Wq': _w((lambda *s: torch.randn(*s, dtype=torch.bfloat16) * 0.8)(Dm, H, Dh) * Dm ** (-0.5)), 'Wk': _w((lambda *s: torch.randn(*s, dtype=torch.bfloat16) * 0.8)(Dm, H, Dh) * Dm ** (-0.5)), 'Wv': _w((lambda *s: torch.randn(*s, dtype=torch.bfloat16) * 0.8)(Dm, H, Dh) * Dm ** (-0.5)), 'Wo': _w((lambda *s: torch.randn(*s, dtype=torch.bfloat16) * 0.8)(H, Dh, Dm) * (H * Dh) ** (-0.5)), 'seg_len': seg}
    _A_in = _A_setup()

    def _B_setup():
        B, S, D, F = (1, 2048, 640, 1728)
        return {'x': _w((lambda *s: torch.randn(*s, dtype=torch.bfloat16) * 0.05)(B, S, D)), 'w1': _w((lambda *s: torch.randn(*s, dtype=torch.bfloat16) * 0.4)(D, F) * (2.0 / D) ** 0.5), 'w3': _w((lambda *s: torch.randn(*s, dtype=torch.bfloat16) * 0.4)(D, F) * (2.0 / D) ** 0.5), 'w2': _w((lambda *s: torch.randn(*s, dtype=torch.bfloat16) * 0.4)(F, D) * (2.0 / F) ** 0.5)}
    _B_in = _B_setup()
    return {'A_x': _A_in['x'], 'A_mem0': _A_in['mem0'], 'A_Wq': _A_in['Wq'], 'A_Wk': _A_in['Wk'], 'A_Wv': _A_in['Wv'], 'A_Wo': _A_in['Wo'], 'A_seg_len': _A_in['seg_len'], 'B_x': _B_in['x'], 'B_w1': _B_in['w1'], 'B_w3': _B_in['w3'], 'B_w2': _B_in['w2'], 'c': _w((lambda *s: torch.randn(*s, dtype=torch.bfloat16) * 0.1)(1, 640) * 8.0), 'w_mod': _w((lambda *s: torch.randn(*s, dtype=torch.bfloat16) * 0.1)(640, 6 * 640) * 640 ** (-0.5) * 8.0)}

def reference(A_x, A_mem0, A_Wq, A_Wk, A_Wv, A_Wo, A_seg_len, B_x, B_w1, B_w3, B_w2, c, w_mod):

    def _A_ref(x, mem0, Wq, Wk, Wv, Wo, seg_len):
        B, S, Dm = x.shape
        H, Dh = (Wq.shape[1], Wq.shape[2])
        M = mem0.shape[1]
        scale = Dh ** (-0.5)
        n_seg = S // seg_len
        L = M + seg_len
        idx = torch.arange(L)
        mask = (idx[:, None] < M) | (idx[:, None] >= idx[None, :])
        mem = mem0
        outs = []
        for s in range(n_seg):
            xs = x[:, s * seg_len:(s + 1) * seg_len, :].clone()
            h = torch.concatenate([mem, xs], axis=1)
            q = torch.einsum('btd,dhe->bhte', h, Wq)
            k = torch.einsum('btd,dhe->bhte', h, Wk)
            v = torch.einsum('btd,dhe->bhte', h, Wv)
            scores = torch.einsum('bhqe,bhke->bhqk', q, k) * scale
            scores = torch.where(mask[None, None], scores, -1000000000.0)
            p = _softmax(scores, axis=-1)
            o = torch.einsum('bhqk,bhke->bhqe', p, v)
            o = torch.einsum('bhte,hed->btd', o, Wo)
            mem = o[:, :M, :].clone()
            outs.append(o[:, M:, :])
        return torch.concatenate(outs, axis=1)

    def _B_ref(x, w1, w3, w2):
        gate = torch.einsum('bsd,df->bsf', x, w1)
        up = torch.einsum('bsd,df->bsf', x, w3)
        h = _silu(gate) * up
        out = torch.einsum('bsf,fd->bsd', h, w2)
        return out
    x = A_x
    mod = (_silu(c) @ w_mod).reshape(c.shape[0], 6, 1, -1)
    sa, ca, ga, sb, cb, gb = (mod[:, 0].clone(), mod[:, 1].clone(), mod[:, 2].clone(), mod[:, 3].clone(), mod[:, 4].clone(), mod[:, 5].clone())
    h = _layernorm(x, axis=-1) * (1 + ca) + sa
    x = x + ga * _A_ref(h, A_mem0, A_Wq, A_Wk, A_Wv, A_Wo, A_seg_len)
    h = _layernorm(x, axis=-1) * (1 + cb) + sb
    x = x + gb * _B_ref(h, B_w1, B_w3, B_w2)
    return x
```

```python
import re

_REG = re.compile(r'^(-|abs\()?([vas])(\d+)\)?$')
_RNG = re.compile(r'^(-|abs\()?([vas])\[(\d+):(\d+)\]\)?$')


def regs_of(tok):
    tok = tok.strip()
    m = _REG.match(tok)
    if m:
        return [(m.group(2), int(m.group(3)))]
    m = _RNG.match(tok)
    if m:
        return [(m.group(2), i) for i in range(int(m.group(3)), int(m.group(4)) + 1)]
    if tok == 'vcc':
        return [('s', 106), ('s', 107)]
    if tok == 'vcc_lo':
        return [('s', 106)]
    if tok == 'exec':
        return [('s', 126), ('s', 127)]
    if tok == 'm0':
        return [('s', 124)]
    return []


def R(kind, lo, n=1):
    if n == 1:
        return f'{kind}{lo}'
    return f'{kind}[{lo}:{lo + n - 1}]'


def v(lo, n=1):
    return R('v', lo, n)


def a(lo, n=1):
    return R('a', lo, n)


def s(lo, n=1):
    return R('s', lo, n)


def u(idx, n=1):
    if idx < 256:
        assert idx + n <= 256, (idx, n)
        return v(idx, n)
    return a(idx - 256, n)


TRANS = ('v_exp_f32', 'v_log_f32', 'v_rcp_f32', 'v_rsq_f32', 'v_sqrt_f32', 'v_sin_f32', 'v_cos_f32')


def mfma_passes(op):
    if '32x32' in op:
        return 8
    if '16x16' in op:
        return 4
    if '4x4' in op:
        return 2
    raise ValueError(op)


class Ins:
    __slots__ = ('op', 'kind', 'w', 'r', 'rc', 'passes', 'pos', 'text', 'wide_store', 'dst_tuple')


class Em:
    def __init__(self):
        self.lines = []
        self.hist = []
        self.pos = 0
        self.vm = []
        self.lg = []
        self.ninst = 0

    def raw(self, text):
        self.lines.append(text)

    def comment(self, text):
        self.lines.append('    ; ' + text)

    def label(self, name):
        self.lines.append(name + ':')

    def nop(self, n):
        while n > 0:
            k = min(n, 16)
            self.lines.append(f'    s_nop {k - 1}')
            self.pos += k
            n -= k
            self.ninst += 1

    def flush_hazards(self, n=20):
        self.nop(n)
        self.hist = []

    def _classify(self, op, ops, full):
        I = Ins()
        I.op = op
        I.w, I.r, I.rc = [], [], []
        I.passes = 0
        I.wide_store = False
        I.dst_tuple = None
        if op.startswith('v_mfma') or op.startswith('v_smfmac'):
            I.kind = 'mfma'
            I.passes = mfma_passes(op)
            I.w = regs_of(ops[0])
            I.dst_tuple = (I.w[0], len(I.w))
            I.r = regs_of(ops[1]) + regs_of(ops[2])
            if op.startswith('v_smfmac'):
                I.r += regs_of(ops[3])
                I.rc = list(I.w)
            else:
                I.rc = regs_of(ops[3])
        elif op.startswith('v_'):
            I.kind = 'valu'
            if op.startswith('v_permlane') and 'swap' in op:
                I.w = regs_of(ops[0]) + regs_of(ops[1])
                I.r = list(I.w)
            elif op.startswith('v_cmp'):
                I.w = regs_of(ops[0])
                for o in ops[1:]:
                    I.r += regs_of(o)
            elif op.startswith('v_add_co') or op.startswith('v_sub_co') or op.startswith('v_addc_co'):
                I.w = regs_of(ops[0]) + regs_of(ops[1])
                for o in ops[2:]:
                    I.r += regs_of(o)
            else:
                I.w = regs_of(ops[0])
                for o in ops[1:]:
                    I.r += regs_of(o)
                if op.startswith('v_fmac') or op.startswith('v_pk_fmac') or op.startswith('v_dot2c') or op.startswith('v_writelane'):
                    I.r += I.w
                if op.startswith('v_cndmask') and len(ops) == 3:
                    I.r += regs_of('vcc')
        elif op.startswith('ds_'):
            I.kind = 'ds'
            if op.startswith('ds_read') or op.startswith('ds_bpermute') or op.startswith('ds_permute') or op.startswith('ds_swizzle'):
                I.w = regs_of(ops[0])
                for o in ops[1:]:
                    I.r += regs_of(o)
            else:
                for o in ops:
                    I.r += regs_of(o)
        elif op.startswith('buffer_') or op.startswith('global_'):
            I.kind = 'vmem'
            islds = bool(re.search(r'\blds\b', full)) or 'load_lds' in op
            if op.startswith('buffer_inv') or op.startswith('buffer_wbl2'):
                pass
            elif 'load' in op and not islds:
                I.w = regs_of(ops[0])
                for o in ops[1:]:
                    I.r += regs_of(o.split()[0])
            elif 'atomic' in op:
                for o in ops:
                    I.r += regs_of(o.split()[0])
                if re.search(r'\bsc0\b', full):
                    I.w = regs_of(ops[0])[:1] if 'cmpswap' in op else regs_of(ops[0])
            else:
                for o in ops:
                    I.r += regs_of(o.split()[0])
                if islds:
                    I.r += regs_of('m0')
                if 'store' in op and ('x4' in op or 'x3' in op):
                    I.wide_store = True
        elif op.startswith('s_'):
            I.kind = 'salu'
            if op.startswith('s_load') or op.startswith('s_memtime') or op.startswith('s_memrealtime') or op.startswith('s_getreg'):
                I.w = regs_of(ops[0])
                for o in ops[1:]:
                    I.r += regs_of(o)
            elif op.startswith('s_cmp') or op.startswith('s_cbranch') or op.startswith('s_branch') or op in (
                    's_waitcnt', 's_barrier', 's_nop', 's_sleep', 's_endpgm', 's_setprio'):
                for o in ops:
                    I.r += regs_of(o)
            else:
                I.w = regs_of(ops[0])
                for o in ops[1:]:
                    I.r += regs_of(o)
        else:
            raise ValueError('unknown op ' + op)
        return I

    def _need(self, I, full):
        need = self.pos
        rset = set(I.r)
        rcset = set(I.rc)
        wset = set(I.w)
        isdpp = ('dpp' in I.op) or ('row_' in full) or ('quad_perm' in full)
        for P in self.hist:
            pw = set(P.w)
            d = 0
            if P.kind == 'valu':
                pv = {x for x in pw if x[0] in 'va'}
                ps = {x for x in pw if x[0] == 's'}
                if I.kind == 'mfma' and (pv & (rset | rcset)):
                    d = max(d, 2)
                if I.kind == 'valu':
                    if (I.op.startswith('v_permlane') or isdpp) and (pv & rset):
                        d = max(d, 2)
                    if (I.op.startswith('v_readfirstlane') or I.op.startswith('v_readlane')) and (pv & rset):
                        d = max(d, 1)
                    if P.op in TRANS and I.op not in TRANS and (pv & rset):
                        d = max(d, 1)
                    if ps & rset:
                        d = max(d, 4 if I.op.startswith(('v_readlane', 'v_writelane')) else 2)
                if I.kind == 'vmem' and (ps & rset):
                    d = max(d, 5)
                if I.kind == 'salu' and (ps & rset):
                    d = max(d, 1)
            elif P.kind == 'mfma':
                p = P.passes
                big = {2: 5, 4: 8, 8: 12, 16: 20}[p]
                ovl = {2: 4, 4: 6, 8: 10, 16: 18}[p]
                war = {2: 1, 4: 3, 8: 7, 16: 15}[p]
                if I.kind == 'mfma':
                    if pw & rset:
                        d = max(d, big)
                    if pw & rcset:
                        same = (I.rc and (I.rc[0], len(I.rc)) == P.dst_tuple and I.op == P.op)
                        d = max(d, (2 if p == 2 else 0) if same else ovl)
                    elif pw & wset:
                        d = max(d, big)
                else:
                    if pw & (rset | wset):
                        d = max(d, big)
                    if I.kind == 'valu' and (set(P.rc) & wset):
                        d = max(d, war)
            elif P.kind == 'salu':
                if ('s', 124) in pw and I.kind == 'vmem' and ('s', 124) in rset:
                    d = max(d, 1)
            elif P.kind == 'vmem':
                if P.wide_store and (set(P.r) & wset) and I.kind in ('valu', 'ds', 'vmem', 'mfma'):
                    d = max(d, 2)
            if d:
                need = max(need, P.pos + 1 + d)
        return need

    def __call__(self, text, tag=None):
        text = text.strip()
        parts = text.split(None, 1)
        op = parts[0]
        rest = parts[1] if len(parts) > 1 else ''
        ops = [o.strip() for o in rest.split(',')] if rest else []
        ops2 = []
        for o in ops:
            ops2.append(o.split()[0] if o else o)
        I = self._classify(op, ops2, text)
        need = self._need(I, text)
        if need > self.pos:
            self.nop(need - self.pos)
        I.pos = self.pos
        I.text = text
        self.lines.append('    ' + text)
        self.pos += 1
        self.ninst += 1
        self.hist.append(I)
        if len(self.hist) > 40:
            self.hist.pop(0)
        if I.kind == 'vmem':
            self.vm.append(tag)
        elif I.kind == 'ds':
            self.lg.append(tag)
        return I

    def cond_begin(self):
        self._cond = (self.pos, len(self.vm), len(self.lg))

    def cond_end(self):
        pos, nv, nl = self._cond
        self.pos = pos
        del self.vm[nv:]
        del self.lg[nl:]

    def wait_vm(self, tag=None):
        if tag is None:
            if True:
                self('s_waitcnt vmcnt(0)')
            self.vm = []
            return
        idx = [i for i, t in enumerate(self.vm) if t == tag]
        if not idx:
            return
        last = idx[-1]
        n = len(self.vm) - 1 - last
        n = min(n, 63)
        self(f's_waitcnt vmcnt({n})')
        self.vm = self.vm[len(self.vm) - n:] if n else []

    def wait_lg(self, tag=None):
        if tag is None:
            self('s_waitcnt lgkmcnt(0)')
            self.lg = []
            return
        idx = [i for i, t in enumerate(self.lg) if t == tag]
        if not idx:
            return
        last = idx[-1]
        n = len(self.lg) - 1 - last
        n = min(n, 15)
        self(f's_waitcnt lgkmcnt({n})')
        self.lg = self.lg[len(self.lg) - n:] if n else []

    def text(self):
        return '\n'.join(self.lines) + '\n'
```

```python
from emit import *
from layout import *
import struct


def f32bits(x):
    return struct.unpack('<I', struct.pack('<f', x))[0]


class Pool:
    def __init__(self, lo, hi):
        self.free_ = set(range(lo, hi))
        self.lo, self.hi = lo, hi
        self.peak = 0

    def alloc(self, n, align=None, top=False, reserve=0):
        align = align or (4 if n >= 4 else (2 if n == 2 else 1))
        if len(self.free_) - n < reserve:
            return None
        rng = range(self.lo, self.hi - n + 1)
        if top:
            rng = reversed(rng)
        for b in rng:
            if b % align:
                continue
            if all((b + i) in self.free_ for i in range(n)):
                for i in range(n):
                    self.free_.remove(b + i)
                self.peak = max(self.peak, (self.hi - self.lo) - len(self.free_))
                return b
        return None

    def must(self, n, align=None):
        b = self.alloc(n, align)
        assert b is not None, f'pool exhausted for {n}'
        return b

    def free(self, b, n):
        for i in range(n):
            assert (b + i) not in self.free_
            self.free_.add(b + i)


S_WS = 4
S_DBG = 8
S_WQ = 12
S_WK = 16
S_WV = 20
S_WO = 24
S_H = 28
S_W = 29
S_STEP = 30
S_T0 = 31
S_T1 = 32
S_T2 = 33
S_T3 = 34
S_MODE = 35
S_UNIT = 36
S_PBST = 37
S_STRB = 38
S_SH = 39
S_XCC = 40
S_C1 = 41
S_MASKLO = 42
S_TS = 44
S_LDSW = 46

V_LANE16 = 1
V_IDX = 2
V_AF = 3
V_QKW = 4
V_QKR = 5
V_OW = 6
V_OR = 7
V_PBST = 8
V_MBST = 9
V_KXG = 10
V_LDSW = 11
NPERS = 12


def gen_chain(em, name='chain_kernel', n_lds=17, pool_end=128, nsteps=64, stamps=False, la_lds=6, max_str=4):
    WL = n_lds * 2048
    L_MMEM = 0
    L_MQ = L_MMEM + 10240
    L_MK = L_MQ + 2048
    L_O = L_MK + 2048
    L_KX = L_O + 2048
    L_WB = L_KX + 8192
    L_END = L_WB + 4 * WL
    assert L_END <= 163840, L_END
    NRING = WL // 4096

    units = [(m, t) for m in 'qkv' for t in range(10)] + [('o', t, p) for p in range(5) for t in range(2)]
    order = []
    for t in range(10):
        for m in 'qk':
            for tau in range(2):
                order.append(((m, t), tau))
    for t in range(10):
        for tau in range(2):
            order.append((('v', t), tau))
    for p in range(5):
        for t in range(2):
            for tau in range(2):
                order.append((('o', t, p), tau))
    n_reg = (512 - pool_end) // 8
    n_str = 80 - n_reg - n_lds
    assert n_str >= 0
    full_lds_units = n_lds // 2
    lds_units = []
    cand = [('q', 2), ('k', 4), ('q', 6), ('k', 8), ('v', 2), ('v', 6), ('o', 0, 1), ('o', 1, 3), ('o', 0, 4), ('v', 4)]
    lds_units = cand[:full_lds_units]
    place = {}
    for j, un in enumerate(lds_units):
        for tau in range(2):
            place[(un, tau)] = ('lds', j * 4096 + tau * 2048)
    if n_lds % 2:
        place[(('o', 1, 0), 1)] = ('lds', full_lds_units * 4096)
    rest = [sl for sl in order if sl not in place]
    qkv_rest = [sl for sl in rest if sl[0][0] != 'o']
    cand_str = [sl for sl in qkv_rest if order.index(sl) >= 14]
    stepk = len(cand_str) / max(n_str, 1)
    str_slots = [cand_str[int(i * stepk)] for i in range(n_str)]
    for i, sl in enumerate(str_slots):
        place[sl] = ('str', i * 2048)
    r = pool_end
    for sl in order:
        if sl not in place:
            place[sl] = ('reg', r)
            r += 8
    assert r == pool_end + n_reg * 8, (r, pool_end, n_reg)

    pool = Pool(NPERS, pool_end)

    em.raw('.p2align 8')
    em.raw(f'.type {name},@function')
    em.label(name)
    e = em
    e('s_cmp_ge_u32 s2, 256')
    e(f's_cbranch_scc1 {name}_exit')
    e('s_load_dwordx4 s[48:51], s[0:1], 16')
    e('s_load_dwordx4 s[52:55], s[0:1], 32')
    e('s_load_dwordx4 s[56:59], s[0:1], 112')
    e(f's_getreg_b32 {s(S_XCC)}, hwreg(HW_REG_XCC_ID)')
    e(f's_and_b32 {s(S_XCC)}, {s(S_XCC)}, 15')
    e('v_lshrrev_b32 v12, 6, v0')
    e('v_and_b32 v0, 63, v0')
    e(f'v_readfirstlane_b32 {s(S_W)}, v12')
    e('s_waitcnt lgkmcnt(0)')

    def srd(d, src, size):
        e(f's_mov_b32 {s(d)}, {s(src)}')
        e(f's_and_b32 {s(d + 1)}, {s(src + 1)}, 0xffff')
        e(f's_mov_b32 {s(d + 2)}, {size}')
        e(f's_mov_b32 {s(d + 3)}, 0x20000')
    srd(S_WQ, 48, 5242880)
    srd(S_WK, 50, 5242880)
    srd(S_WV, 52, 5242880)
    srd(S_WO, 54, 5242880)
    srd(S_DBG, 56, 256)
    srd(S_WS, 58, WS_SIZE)

    e(f's_cmp_lg_u32 {s(S_W)}, 0')
    e(f's_cbranch_scc1 {name}_elected')
    e('v_mov_b32 v12, 1')
    e('v_mov_b32 v13, 1')
    e(f's_lshl_b32 {s(S_T0)}, {s(S_XCC)}, 2')
    e(f'v_mov_b32 v14, {s(S_T0)}')
    e('v_mov_b32 v15, 64')
    e('s_mov_b64 exec, 1')
    e(f'buffer_atomic_add v12, v14, {s(S_DBG, 4)}, 0 offen sc0')
    e(f'buffer_atomic_add v13, v15, {s(S_DBG, 4)}, 0 offen sc0')
    e.wait_vm()
    e(f'v_readfirstlane_b32 {s(S_T0)}, v12')
    e(f'v_readfirstlane_b32 {s(S_T1)}, v13')
    e('v_mov_b32 v15, 68')
    e(f's_cmp_eq_u32 {s(S_T0)}, 31')
    e(f's_cbranch_scc0 {name}_el1')
    e(f's_add_u32 {s(S_T2)}, {s(S_XCC)}, 1')
    e(f'v_mov_b32 v12, {s(S_T2)}')
    e('v_mov_b32 v13, 0')
    e(f'buffer_atomic_cmpswap v[12:13], v15, {s(S_DBG, 4)}, 0 offen')
    e.label(f'{name}_el1')
    e(f's_cmp_eq_u32 {s(S_T1)}, 255')
    e(f's_cbranch_scc0 {name}_el2')
    e('v_mov_b32 v12, 0xff')
    e('v_mov_b32 v13, 0')
    e(f'buffer_atomic_cmpswap v[12:13], v15, {s(S_DBG, 4)}, 0 offen')
    e.label(f'{name}_el2')
    e.label(f'{name}_el3')
    e(f'buffer_load_dword v12, v15, {s(S_DBG, 4)}, 0 offen sc1')
    e.wait_vm()
    e(f'v_readfirstlane_b32 {s(S_T2)}, v12')
    e(f's_cmp_eq_u32 {s(S_T2)}, 0')
    e(f's_cbranch_scc1 {name}_el3')
    e(f's_mov_b32 {s(S_H)}, 0xffff')
    e(f's_add_u32 {s(S_T3)}, {s(S_XCC)}, 1')
    e(f's_cmp_eq_u32 {s(S_T2)}, {s(S_T3)}')
    e(f's_cselect_b32 {s(S_H)}, {s(S_T0)}, {s(S_H)}')
    e(f's_cmp_eq_u32 {s(S_T2)}, 0xff')
    e(f's_cselect_b32 {s(S_H)}, {s(S_T1)}, {s(S_H)}')
    e(f's_cselect_b32 {s(S_MODE)}, 1, 0')
    e(f's_lshl_b32 {s(S_T0)}, {s(S_MODE)}, 16')
    e(f's_or_b32 {s(S_T0)}, {s(S_T0)}, {s(S_H)}')
    e(f'v_mov_b32 v12, {s(S_T0)}')
    e('v_mov_b32 v13, 0')
    e('ds_write_b32 v13, v12')
    e('s_mov_b64 exec, -1')
    e.wait_lg()
    e.label(f'{name}_elected')
    e('s_barrier')
    e('v_mov_b32 v13, 0')
    e('ds_read_b32 v12, v13')
    e.wait_lg()
    e(f'v_readfirstlane_b32 {s(S_T0)}, v12')
    e(f's_and_b32 {s(S_H)}, {s(S_T0)}, 0xffff')
    e(f's_lshr_b32 {s(S_MODE)}, {s(S_T0)}, 16')
    e('s_barrier')
    e(f's_cmp_ge_u32 {s(S_H)}, 32')
    e(f's_cbranch_scc1 {name}_exit')

    T = 12
    g, c, rp, cp = T, T + 1, T + 2, T + 3
    e(f'v_lshrrev_b32 {v(g)}, 4, v0')
    e(f'v_and_b32 {v(c)}, 15, v0')
    e(f'v_lshrrev_b32 {v(rp)}, 2, {v(c)}')
    e(f'v_and_b32 {v(cp)}, 3, v0')
    e(f'v_lshlrev_b32 {v(V_LANE16)}, 4, v0')
    e(f'v_and_b32 {v(T + 4)}, 8, v0')
    e(f'v_cmp_ne_u32 vcc, 0, {v(T + 4)}')
    e(f'v_mov_b32 {v(T + 5)}, 0x4444')
    e(f'v_mov_b32 {v(T + 6)}, 0xeeee')
    e(f'v_cndmask_b32 {v(V_IDX)}, {v(T + 5)}, {v(T + 6)}, vcc')
    e(f'v_lshrrev_b32 {v(T + 4)}, 1, {v(cp)}')
    e(f'v_lshlrev_b32 {v(T + 4)}, 2, {v(T + 4)}')
    e(f'v_lshl_add_u32 {v(T + 4)}, {v(g)}, 3, {v(T + 4)}')
    e(f'v_add_u32 {v(T + 4)}, {v(T + 4)}, {v(rp)}')
    e(f'v_and_b32 {v(T + 5)}, 1, {v(cp)}')
    e(f'v_lshlrev_b32 {v(T + 5)}, 3, {v(T + 5)}')
    e(f'v_lshl_add_u32 {v(V_AF)}, {v(T + 4)}, 4, {v(T + 5)}')
    e(f'v_add_u32 {v(V_AF)}, {L_MMEM}, {v(V_AF)}')
    e(f'v_lshl_add_u32 {v(T + 4)}, {v(g)}, 2, {v(rp)}')
    e(f'v_lshl_add_u32 {v(V_QKR)}, {v(T + 4)}, 4, {v(T + 5)}')
    e(f'v_add_u32 {v(V_QKR)}, {L_MQ}, {v(V_QKR)}')
    e(f'v_lshrrev_b32 {v(T + 4)}, 5, v0')
    e(f'v_lshl_add_u32 {v(T + 4)}, {v(T + 4)}, 4, {v(c)}')
    e(f's_lshl_b32 {s(S_T0)}, {s(S_W)}, 5')
    e(f'v_add_u32 {v(T + 4)}, {s(S_T0)}, {v(T + 4)}')
    e(f'v_and_b32 {v(T + 6)}, 1, {v(g)}')
    e(f'v_lshlrev_b32 {v(T + 6)}, 3, {v(T + 6)}')
    e(f'v_lshl_add_u32 {v(V_QKW)}, {v(T + 4)}, 4, {v(T + 6)}')
    e(f'v_add_u32 {v(V_QKW)}, {L_MQ}, {v(V_QKW)}')
    e(f's_lshl_b32 {s(S_T0)}, {s(S_W)}, 2')
    e(f'v_add_u32 {v(T + 4)}, {s(S_T0)}, {v(g)}')
    e(f'v_and_b32 {v(T + 7)}, 7, v0')
    e(f'v_lshl_add_u32 {v(T + 4)}, {v(T + 4)}, 3, {v(T + 7)}')
    e(f'v_lshlrev_b32 {v(V_OW)}, 4, {v(T + 4)}')
    e(f'v_add_u32 {v(V_OW)}, {L_O}, {v(V_OW)}')
    e(f'v_lshrrev_b32 {v(T + 4)}, 3, {v(c)}')
    e(f'v_lshlrev_b32 {v(T + 4)}, 5, {v(T + 4)}')
    e(f'v_lshl_add_u32 {v(T + 4)}, {v(g)}, 3, {v(T + 4)}')
    e(f'v_add_u32 {v(T + 4)}, {v(T + 4)}, {v(T + 7)}')
    e(f'v_lshlrev_b32 {v(V_OR)}, 4, {v(T + 4)}')
    e(f'v_add_u32 {v(V_OR)}, {L_O}, {v(V_OR)}')
    e(f'v_lshrrev_b32 {v(T + 4)}, 5, v0')
    e(f'v_lshrrev_b32 {v(T + 8)}, 3, {v(c)}')
    e(f'v_lshl_add_u32 {v(T + 4)}, {v(T + 4)}, 1, {v(T + 8)}')
    e(f'v_lshlrev_b32 {v(T + 4)}, 12, {v(T + 4)}')
    e(f'v_lshl_add_u32 {v(T + 4)}, {v(T + 7)}, 4, {v(T + 4)}')
    e(f'v_add_u32 {v(V_PBST)}, {v(T + 4)}, {v(T + 6)}')
    e(f'v_lshlrev_b32 {v(T + 4)}, 2, {v(g)}')
    e(f'v_lshl_add_u32 {v(V_MBST)}, {v(T + 7)}, 4, {v(T + 4)}')
    e(f'v_lshlrev_b32 {v(T + 4)}, 4, {v(g)}')
    e(f'v_lshl_add_u32 {v(V_KXG)}, {v(c)}, 8, {v(T + 4)}')
    e(f's_mul_i32 {s(S_LDSW)}, {s(S_W)}, {WL}')
    e(f's_add_u32 {s(S_LDSW)}, {s(S_LDSW)}, {L_WB}')
    e(f'v_add_u32 {v(V_LDSW)}, {s(S_LDSW)}, {v(V_LANE16)}')
    e(f's_mov_b32 {s(S_C1)}, {f32bits((128 ** -0.5) * 1.4426950408889634):#x}')
    e(f's_mov_b32 {s(S_MASKLO)}, -1')
    e(f's_mov_b32 {s(S_MASKLO + 1)}, 0')
    e(f's_lshl_b32 {s(S_UNIT)}, {s(S_W)}, 5')
    e(f's_add_u32 {s(S_UNIT)}, {s(S_UNIT)}, {s(S_H)}')
    e(f's_mul_i32 {s(S_PBST)}, {s(S_W)}, {20 * 4096}')
    e(f's_lshl_b32 {s(S_T0)}, {s(S_H)}, 7')
    e(f's_add_u32 {s(S_PBST)}, {s(S_PBST)}, {s(S_T0)}')
    e(f's_add_u32 {s(S_PBST)}, {s(S_PBST)}, {WS_PB}')
    e(f's_mul_i32 {s(S_STRB)}, {s(S_H)}, {STR_HSTRIDE}')
    e(f's_mul_i32 {s(S_T0)}, {s(S_W)}, {STR_WSTRIDE}')
    e(f's_add_u32 {s(S_STRB)}, {s(S_STRB)}, {s(S_T0)}')
    e(f's_add_u32 {s(S_STRB)}, {s(S_STRB)}, {WS_STR}')

    VG_QKV, VG_O, VT_QKV, VT_O = T + 10, T + 11, T + 12, T + 13
    e(f'v_lshrrev_b32 {v(T + 4)}, 2, v0')
    e(f'v_lshlrev_b32 {v(T + 5)}, 4, {v(cp)}')
    e(f'v_lshl_add_u32 {v(VG_QKV)}, {v(T + 4)}, 13, {v(T + 5)}')
    e(f'v_mul_u32_u24 {v(T + 4)}, 1280, {v(T + 4)}')
    e(f'v_add_u32 {v(VG_O)}, {v(T + 4)}, {v(T + 5)}')
    e(f'v_and_b32 {v(T + 4)}, 1, {v(g)}')
    e(f'v_lshrrev_b32 {v(T + 5)}, 1, {v(g)}')
    e(f'v_lshrrev_b32 {v(T + 6)}, 1, {v(rp)}')
    e(f'v_and_b32 {v(T + 7)}, 1, {v(rp)}')
    e(f'v_lshlrev_b32 {v(T + 8)}, 5, {v(T + 4)}')
    e(f'v_lshl_add_u32 {v(T + 8)}, {v(T + 5)}, 3, {v(T + 8)}')
    e(f'v_lshl_add_u32 {v(T + 8)}, {v(T + 6)}, 2, {v(T + 8)}')
    e(f'v_add_u32 {v(T + 8)}, {v(T + 8)}, {v(T + 7)}')
    e(f'v_lshlrev_b32 {v(T + 9)}, 3, {v(cp)}')
    e(f'v_lshl_add_u32 {v(VT_QKV)}, {v(T + 8)}, 6, {v(T + 9)}')
    e(f'v_add_u32 {v(VT_QKV)}, {s(S_LDSW)}, {v(VT_QKV)}')
    e(f'v_lshlrev_b32 {v(T + 8)}, 5, {v(T + 6)}')
    e(f'v_lshl_add_u32 {v(T + 8)}, {v(T + 4)}, 4, {v(T + 8)}')
    e(f'v_lshl_add_u32 {v(T + 8)}, {v(T + 5)}, 2, {v(T + 8)}')
    e(f'v_add_u32 {v(T + 8)}, {v(T + 8)}, {v(T + 7)}')
    e(f'v_lshl_add_u32 {v(VT_O)}, {v(T + 8)}, 6, {v(T + 9)}')
    e(f'v_add_u32 {v(VT_O)}, {s(S_LDSW)}, {v(VT_O)}')
    e(f's_lshl_b32 {s(S_T2)}, {s(S_H)}, 8')
    e(f's_lshl_b32 {s(S_T0)}, {s(S_W)}, 6')
    e(f's_add_u32 {s(S_T2)}, {s(S_T2)}, {s(S_T0)}')
    e(f's_mul_i32 {s(S_T3)}, {s(S_H)}, {128 * 1280}')
    e(f's_mul_i32 {s(S_T0)}, {s(S_W)}, 320')
    e(f's_add_u32 {s(S_T3)}, {s(S_T3)}, {s(S_T0)}')

    ulist = [un for un in units if un not in lds_units] + lds_units
    assert len(ulist) == 40
    nnon = 40 - len(lds_units)

    def ringpos(i):
        if i < nnon:
            return (i - nnon) % NRING
        return i - nnon

    TMPW = T + 16

    def issue_dma(i):
        un = ulist[i]
        pos = ringpos(i)
        for q in range(4):
            if un[0] == 'o':
                _, t, p = un
                off = (64 * t + 16 * q) * 1280 + 64 * p
                e(f's_add_u32 {s(S_T0)}, {s(S_T3)}, {off}')
                srdn, vg = S_WO, VG_O
            else:
                m, t = un
                off = (64 * t + 16 * q) * 8192
                e(f's_add_u32 {s(S_T0)}, {s(S_T2)}, {off}')
                srdn, vg = {'q': S_WQ, 'k': S_WK, 'v': S_WV}[m], VG_QKV
            e(f's_add_u32 m0, {s(S_LDSW)}, {pos * 4096 + q * 1024}')
            e(f'buffer_load_dwordx4 {v(vg)}, {s(srdn, 4)}, {s(S_T0)} offen lds', tag=('dma', i))

    def process(i):
        un = ulist[i]
        pos = ringpos(i)
        e.wait_vm(('dma', i))
        vt = VT_O if un[0] == 'o' else VT_QKV
        for tau in range(2):
            kind, loc = place[(un, tau)]
            dst = loc if kind == 'reg' else TMPW + 8 * tau
            for n in range(4):
                if un[0] == 'o':
                    off = (8 * (n >> 1) + 2 * (n & 1)) * 64 + 32 * tau
                else:
                    off = (16 * (n >> 1) + 2 * (n & 1)) * 64 + 32 * tau
                e(f'ds_read_b64_tr_b16 {u(dst + 2 * n, 2)}, {v(vt)} offset:{pos * 4096 + off}')
        e.wait_lg()
        for tau in range(2):
            kind, loc = place[(un, tau)]
            src = TMPW + 8 * tau
            if kind == 'lds':
                e(f'ds_write_b128 {v(V_LDSW)}, {v(src, 4)} offset:{loc}')
                e(f'ds_write_b128 {v(V_LDSW)}, {v(src + 4, 4)} offset:{loc + 1024}')
            elif kind == 'str':
                e(f's_add_u32 {s(S_T0)}, {s(S_STRB)}, {loc}')
                e(f'buffer_store_dwordx4 {v(src, 4)}, {v(V_LANE16)}, {s(S_WS, 4)}, {s(S_T0)} offen', tag='st')
                e(f'buffer_store_dwordx4 {v(src + 4, 4)}, {v(V_LANE16)}, {s(S_WS, 4)}, {s(S_T0)} offen offset:1024', tag='st')
        if any(place[(un, tau)][0] != 'reg' for tau in range(2)):
            e.wait_lg()
            if any(place[(un, tau)][0] == 'str' for tau in range(2)):
                e.wait_vm('st')

    for i in range(NRING):
        issue_dma(i)
    for i in range(40):
        process(i)
        if i + NRING < 40:
            issue_dma(i + NRING)
    e.wait_vm()
    e.wait_lg()

    e(f's_mov_b32 {s(S_STEP)}, 0')

    def kx_dma(sh_sreg):
        e(f's_lshl_b32 {s(S_T0)}, {s(sh_sreg)}, 13')
        e(f's_lshr_b32 {s(S_T1)}, {s(S_W)}, 1')
        e(f's_lshl_b32 {s(S_T1)}, {s(S_T1)}, 12')
        e(f's_add_u32 {s(S_T0)}, {s(S_T0)}, {s(S_T1)}')
        e(f's_and_b32 {s(S_T1)}, {s(S_W)}, 1')
        e(f's_lshl_b32 {s(S_T1)}, {s(S_T1)}, 7')
        e(f's_add_u32 {s(S_T0)}, {s(S_T0)}, {s(S_T1)}')
        e(f's_add_u32 {s(S_T0)}, {s(S_T0)}, {WS_KX}')
        e(f's_lshl_b32 {s(S_T1)}, {s(S_W)}, 11')
        e(f's_add_u32 m0, {s(S_T1)}, {L_KX}')
        e(f'buffer_load_dwordx4 {v(V_KXG)}, {s(S_WS, 4)}, {s(S_T0)} offen lds', tag='kx')
        e(f's_add_u32 {s(S_T0)}, {s(S_T0)}, 64')
        e(f's_add_u32 m0, {s(S_T1)}, {L_KX + 1024}')
        e(f'buffer_load_dwordx4 {v(V_KXG)}, {s(S_WS, 4)}, {s(S_T0)} offen lds', tag='kx')

    e(f's_mov_b32 {s(S_SH)}, {s(S_H)}')
    kx_dma(S_SH)

    def store(text_fn):
        pass

    lblc = [0]

    def mbox_store(op, data, voff, soff, extra=''):
        lblc[0] += 1
        k = lblc[0]
        e(f's_cmp_eq_u32 {s(S_MODE)}, 0')
        e(f's_cbranch_scc0 {name}_ms{k}')
        e(f'{op} {data}, {voff}, {s(S_WS, 4)}, {soff} offen {extra}', tag='mst')
        e(f's_branch {name}_me{k}')
        e.label(f'{name}_ms{k}')
        e.vm.pop()
        e(f'{op} {data}, {voff}, {s(S_WS, 4)}, {soff} offen {extra} sc1', tag='mst')
        e.label(f'{name}_me{k}')

    stamp_i = [0]

    def stamp():
        if not stamps:
            return
        i = stamp_i[0]
        stamp_i[0] += 1
        e(f's_memtime {s(60 + 2 * i, 2)}')

    e.label(f'{name}_step')
    e.hist = []
    stamp()
    e(f's_and_b32 {s(S_T0)}, {s(S_STEP)}, 1')
    e(f's_mul_i32 {s(S_T0)}, {s(S_T0)}, {MB_STRIDE}')
    e(f's_lshl_b32 {s(S_T1)}, {s(S_W)}, 10')
    e(f's_add_u32 {s(S_T0)}, {s(S_T0)}, {s(S_T1)}')
    e(f's_add_u32 {s(S_T0)}, {s(S_T0)}, {WS_MB}')
    e(f's_add_u32 {s(S_T2)}, {s(S_T0)}, 4096')
    e(f's_and_b32 {s(S_T3)}, {s(S_W)}, 1')
    e(f's_sub_u32 {s(S_T3)}, {s(S_T3)}, {s(S_W)}')
    e(f's_lshl_b32 {s(S_T3)}, {s(S_T3)}, 10')
    e(f's_add_u32 {s(S_T3)}, {s(S_T3)}, {s(S_T0)}')
    e(f's_add_u32 {s(S_T3)}, {s(S_T3)}, 8192')
    A0 = pool.must(12)
    TM = pool.must(1)
    e.label(f'{name}_pollA')
    e(f'buffer_load_dwordx4 {v(A0, 4)}, {v(V_LANE16)}, {s(S_WS, 4)}, {s(S_T0)} offen sc1')
    e(f'buffer_load_dwordx4 {v(A0 + 4, 4)}, {v(V_LANE16)}, {s(S_WS, 4)}, {s(S_T2)} offen sc1')
    e(f'buffer_load_dwordx4 {v(A0 + 8, 4)}, {v(V_LANE16)}, {s(S_WS, 4)}, {s(S_T3)} offen sc1')
    e.wait_vm()
    e(f'v_max3_u32 {v(TM)}, {v(A0)}, {v(A0 + 1)}, {v(A0 + 2)}')
    for j in range(3, 11, 2):
        e(f'v_max3_u32 {v(TM)}, {v(TM)}, {v(A0 + j)}, {v(A0 + j + 1)}')
    e(f'v_max_u32 {v(TM)}, {v(TM)}, {v(A0 + 11)}')
    e(f'v_cmp_eq_u32 vcc, -1, {v(TM)}')
    e(f's_cbranch_vccnz {name}_pollA')
    stamp()
    e(f's_lshl_b32 {s(S_T1)}, {s(S_W)}, 10')
    e(f'v_add_u32 {v(TM)}, {s(S_T1)}, {v(V_LANE16)}')
    e(f'ds_write_b128 {v(TM)}, {v(A0, 4)} offset:{L_MMEM}')
    e(f'ds_write_b128 {v(TM)}, {v(A0 + 4, 4)} offset:{L_MMEM + 4096}')
    e(f's_and_b32 {s(S_T1)}, {s(S_W)}, 1')
    e(f's_lshl_b32 {s(S_T1)}, {s(S_T1)}, 10')
    TM2 = pool.must(1)
    e(f'v_add_u32 {v(TM2)}, {s(S_T1)}, {v(V_LANE16)}')
    e(f'ds_write_b128 {v(TM2)}, {v(A0 + 8, 4)} offset:{L_MMEM + 8192}')
    VX = pool.must(8)
    e(f's_lshl_b32 {s(S_T0)}, {s(S_SH)}, 13')
    e(f's_lshl_b32 {s(S_T1)}, {s(S_W)}, 11')
    e(f's_add_u32 {s(S_T0)}, {s(S_T0)}, {s(S_T1)}')
    e(f's_add_u32 {s(S_T0)}, {s(S_T0)}, {WS_VXT}')
    e(f'buffer_load_dwordx4 {v(VX, 4)}, {v(V_LANE16)}, {s(S_WS, 4)}, {s(S_T0)} offen', tag='vx')
    e(f'buffer_load_dwordx4 {v(VX + 4, 4)}, {v(V_LANE16)}, {s(S_WS, 4)}, {s(S_T0)} offen offset:1024', tag='vx')
    e.wait_lg()
    e('s_barrier')
    pool.free(A0, 12)
    pool.free(TM, 1)
    pool.free(TM2, 1)

    loaded = {}
    str_queue = [sl for sl in order if place[sl][0] == 'str']
    lds_pending = [sl for sl in order if place[sl][0] == 'lds']
    inflight_str = []

    def pump_str():
        while str_queue and len(inflight_str) < max_str:
            b = pool.alloc(8)
            if b is None:
                return
            sl = str_queue.pop(0)
            loc = place[sl][1]
            e(f's_add_u32 {s(S_T0)}, {s(S_STRB)}, {loc}')
            e(f'buffer_load_dwordx4 {v(b, 4)}, {v(V_LANE16)}, {s(S_WS, 4)}, {s(S_T0)} offen', tag=('str', sl))
            e(f'buffer_load_dwordx4 {v(b + 4, 4)}, {v(V_LANE16)}, {s(S_WS, 4)}, {s(S_T0)} offen offset:1024', tag=('str', sl))
            loaded[sl] = b
            inflight_str.append(sl)

    def pump_lds(cur_idx):
        while lds_pending and order.index(lds_pending[0]) <= cur_idx + la_lds:
            b = pool.alloc(8)
            if b is None:
                return
            sl = lds_pending.pop(0)
            loc = place[sl][1]
            e(f'ds_read_b128 {v(b, 4)}, {v(V_LDSW)} offset:{loc}', tag=('lw', sl))
            e(f'ds_read_b128 {v(b + 4, 4)}, {v(V_LDSW)} offset:{loc + 1024}', tag=('lw', sl))
            loaded[sl] = b

    def smf(acc, af, sl):
        idx = order.index(sl)
        pump_lds(idx)
        kind, loc = place[sl]
        if kind == 'reg':
            b = loc
        else:
            assert sl in loaded, ('not loaded', sl)
            b = loaded[sl]
            if kind == 'lds':
                e.wait_lg(('lw', sl))
            else:
                e.wait_vm(('str', sl))
        e(f'v_smfmac_f32_16x16x64_bf16 {v(acc, 4)}, {v(af, 4)}, {u(b, 8)}, {v(V_IDX)}')
        if kind != 'reg':
            pool.free(b, 8)
            if kind == 'str':
                inflight_str.remove(sl)
                pump_str()

    NAF = 3
    AF = [pool.must(4) for _ in range(NAF)]

    def af_read(t):
        b = AF[t % NAF]
        e(f'ds_read_b64_tr_b16 {v(b, 2)}, {v(V_AF)} offset:{1024 * t}', tag=('af', t))
        e(f'ds_read_b64_tr_b16 {v(b + 2, 2)}, {v(V_AF)} offset:{1024 * t + 512}', tag=('af', t))

    ACC = pool.must(16)
    for t in range(NAF - 1):
        af_read(t)
    for j in range(16):
        e(f'v_mov_b32 {v(ACC + j)}, 0')
    pump_str()
    for t in range(10):
        if t + NAF - 1 < 10:
            af_read(t + NAF - 1)
        e.wait_lg(('af', t))
        for mi, m in enumerate('qk'):
            for tau in range(2):
                smf(ACC + 8 * mi + 4 * tau, AF[t % NAF], ((m, t), tau))
    stamp()
    for t in range(NAF - 1):
        af_read(t)

    def fold_pack(x, y, dst):
        for j in range(4):
            e(f'v_permlane32_swap_b32 {v(x + j)}, {v(y + j)}')
        for j in range(4):
            e(f'v_add_f32 {v(x + j)}, {v(x + j)}, {v(y + j)}')
        e(f'v_cvt_pk_bf16_f32 {v(dst)}, {v(x)}, {v(x + 1)}')
        e(f'v_cvt_pk_bf16_f32 {v(dst + 1)}, {v(x + 2)}, {v(x + 3)}')

    ZQ = pool.must(4)
    fold_pack(ACC, ACC + 4, ZQ)
    fold_pack(ACC + 8, ACC + 12, ZQ + 2)
    e(f'ds_write_b64 {v(V_QKW)}, {v(ZQ, 2)}', tag='qw')
    e(f'ds_write_b64 {v(V_QKW)}, {v(ZQ + 2, 2)} offset:2048', tag='qw')
    pool.free(ACC + 8, 8)
    VACC = ACC
    for j in range(8):
        e(f'v_mov_b32 {v(VACC + j)}, 0')
    for t in range(10):
        if t + NAF - 1 < 10:
            af_read(t + NAF - 1)
        e.wait_lg(('af', t))
        for tau in range(2):
            smf(VACC + 4 * tau, AF[t % NAF], (('v', t), tau))
    for b in AF:
        pool.free(b, 4)
    pool.free(ZQ, 4)
    e.wait_lg()
    e('s_barrier')
    stamp()
    ZV = pool.must(2)
    fold_pack(VACC, VACC + 4, ZV)
    pool.free(VACC, 8)
    e(f's_lshl_b32 {s(S_T0)}, {s(S_SH)}, 11')
    e(f's_lshl_b32 {s(S_T1)}, {s(S_W)}, 9')
    e(f's_add_u32 {s(S_T0)}, {s(S_T0)}, {s(S_T1)}')
    e(f's_add_u32 {s(S_T0)}, {s(S_T0)}, {WS_VMT}')
    TA = pool.must(1)
    e(f'v_lshrrev_b32 {v(TA)}, 1, {v(V_LANE16)}')
    e(f'buffer_store_dwordx2 {v(ZV, 2)}, {v(TA)}, {s(S_WS, 4)}, {s(S_T0)} offen', tag='out')
    pool.free(TA, 1)

    SACC = pool.must(12)
    for j in range(12):
        e(f'v_mov_b32 {v(SACC + j)}, 0')
    SI = [pool.must(16) for _ in range(2)]

    def s_read(uu):
        b = SI[uu & 1]
        for m in range(2):
            e(f'ds_read_b64_tr_b16 {v(b + 2 * m, 2)}, {v(V_QKR)} offset:{uu * 512 + m * 256}', tag=('si', uu))
        for m in range(2):
            e(f'ds_read_b64_tr_b16 {v(b + 4 + 2 * m, 2)}, {v(V_QKR)} offset:{2048 + uu * 512 + m * 256}', tag=('si', uu))
        for tau in range(2):
            e(f'ds_read_b128 {v(b + 8 + 4 * tau, 4)}, {v(V_LANE16)} offset:{L_KX + (tau * 4 + uu) * 1024}', tag=('si', uu))

    s_read(0)
    e(f's_lshl_b32 {s(S_T2)}, {s(S_SH)}, 12')
    e(f's_add_u32 {s(S_T2)}, {s(S_T2)}, {WS_KM}')
    for uu in range(4):
        if uu + 1 < 4:
            s_read(uu + 1)
        e.wait_lg(('si', uu))
        b = SI[uu & 1]
        e(f'v_mfma_f32_16x16x32_bf16 {v(SACC, 4)}, {v(b + 8, 4)}, {v(b, 4)}, {v(SACC, 4)}')
        e(f'v_mfma_f32_16x16x32_bf16 {v(SACC + 4, 4)}, {v(b + 12, 4)}, {v(b, 4)}, {v(SACC + 4, 4)}')
        e(f'v_mfma_f32_16x16x32_bf16 {v(SACC + 8, 4)}, {v(b + 4, 4)}, {v(b, 4)}, {v(SACC + 8, 4)}')
        e(f's_cmp_lg_u32 {s(S_W)}, {uu}')
        e(f's_cbranch_scc1 {name}_nokm{uu}')
        e(f'buffer_store_dwordx4 {v(b + 4, 4)}, {v(V_KXG)}, {s(S_WS, 4)}, {s(S_T2)} offen offset:{uu * 64}', tag='out')
        if uu + 2 < 4:
            e.wait_vm('out')
        e.label(f'{name}_nokm{uu}')
    e(f's_cmp_eq_u32 {s(S_STEP)}, {nsteps - 1}')
    e(f's_cbranch_scc1 {name}_exit')
    stamp()
    M = pool.must(2)
    e(f'v_max3_f32 {v(M)}, {v(SACC)}, {v(SACC + 1)}, {v(SACC + 2)}')
    for j in range(3, 11, 2):
        e(f'v_max3_f32 {v(M)}, {v(M)}, {v(SACC + j)}, {v(SACC + j + 1)}')
    e(f'v_max_f32 {v(M)}, {v(M)}, {v(SACC + 11)}')

    def xreduce(x, tmp, op):
        e(f'v_mov_b32 {v(tmp)}, {v(x)}')
        e(f'v_permlane32_swap_b32 {v(x)}, {v(tmp)}')
        e(f'{op} {v(x)}, {v(x)}, {v(tmp)}')
        e(f'v_mov_b32 {v(tmp)}, {v(x)}')
        e(f'v_permlane16_swap_b32 {v(x)}, {v(tmp)}')
        e(f'{op} {v(x)}, {v(x)}, {v(tmp)}')
    xreduce(M, M + 1, 'v_max_f32')
    e(f'v_mul_f32 {v(M)}, {s(S_C1)}, {v(M)}')
    for j in range(12):
        e(f'v_fma_f32 {v(SACC + j)}, {v(SACC + j)}, {s(S_C1)}, -{v(M)}')
    for j in range(12):
        e(f'v_exp_f32 {v(SACC + j)}, {v(SACC + j)}')
    P = pool.must(8)
    for j in range(4):
        e(f'v_cvt_pk_bf16_f32 {v(P + j)}, {v(SACC + 2 * j)}, {v(SACC + 2 * j + 1)}')
    PC = pool.must(2)
    for j in range(2):
        e(f'v_cvt_pk_bf16_f32 {v(PC + j)}, {v(SACC + 8 + 2 * j)}, {v(SACC + 9 + 2 * j)}')
    for j in range(2):
        e(f'v_cndmask_b32 {v(P + 4 + j)}, 0, {v(PC + j)}, {s(S_MASKLO, 2)}')
        e(f'v_cndmask_b32 {v(P + 6 + j)}, {v(PC + j)}, 0, {s(S_MASKLO, 2)}')
    OA = pool.must(8)
    e.wait_vm('vx')
    e(f'v_mfma_f32_16x16x32_bf16 {v(OA, 4)}, {v(VX, 4)}, {v(P, 4)}, 0')
    e(f'v_mfma_f32_16x16x32_bf16 {v(OA + 4, 4)}, {v(VX + 4, 4)}, {v(P, 4)}, 0')
    e(f'v_mfma_f32_16x16x16_bf16 {v(OA, 4)}, {v(ZV, 2)}, {v(P + 4, 2)}, {v(OA, 4)}')
    e(f'v_mfma_f32_16x16x16_bf16 {v(OA + 4, 4)}, {v(ZV, 2)}, {v(P + 6, 2)}, {v(OA + 4, 4)}')
    L = M
    e(f'v_add_f32 {v(PC)}, {v(SACC + 8)}, {v(SACC + 9)}')
    e(f'v_add_f32 {v(PC + 1)}, {v(SACC + 10)}, {v(SACC + 11)}')
    e(f'v_add_f32 {v(PC)}, {v(PC)}, {v(PC + 1)}')
    e(f'v_add_f32 {v(L)}, {v(SACC)}, {v(SACC + 1)}')
    for j in range(2, 8):
        e(f'v_add_f32 {v(L)}, {v(L)}, {v(SACC + j)}')
    e(f'v_fma_f32 {v(L)}, {v(PC)}, 0.5, {v(L)}')
    xreduce(L, L + 1, 'v_add_f32')
    e(f'v_rcp_f32 {v(L)}, {v(L)}')
    for j in range(8):
        e(f'v_mul_f32 {v(OA + j)}, {v(OA + j)}, {v(L)}')
    for j in range(4):
        e(f'v_cvt_pk_bf16_f32 {v(P + j)}, {v(OA + 2 * j)}, {v(OA + 2 * j + 1)}')
    e(f'ds_write_b128 {v(V_OW)}, {v(P, 4)}')
    e.wait_lg()
    e('s_barrier')
    for b in SI:
        pool.free(b, 16)
    pool.free(SACC, 12)
    pool.free(M, 2)
    pool.free(P, 8)
    pool.free(PC, 2)
    pool.free(OA, 8)
    pool.free(VX, 8)
    pool.free(ZV, 2)
    OF = pool.must(8)
    e(f'ds_read_b128 {v(OF, 4)}, {v(V_OR)}', tag='of')
    e(f'ds_read_b128 {v(OF + 4, 4)}, {v(V_OR)} offset:1024', tag='of')
    stamp()
    e(f's_add_u32 {s(S_SH)}, {s(S_SH)}, 32')
    kx_dma(S_SH)
    e(f's_and_b32 {s(S_T2)}, {s(S_STEP)}, 1')
    e(f's_mul_i32 {s(S_T2)}, {s(S_T2)}, {PB_STRIDE}')
    e(f's_add_u32 {s(S_T2)}, {s(S_T2)}, {s(S_PBST)}')
    OACC = [pool.must(8) for _ in range(2)]
    ZO = [pool.must(2) for _ in range(2)]
    e.wait_lg('of')

    def finish_pair(p):
        ac = OACC[p & 1]
        z = ZO[p & 1]
        fold_pack(ac, ac + 4, z)
        e(f'v_min_u32 {v(z)}, 0xfffffffe, {v(z)}')
        e(f'v_min_u32 {v(z + 1)}, 0xfffffffe, {v(z + 1)}')
        e(f's_add_u32 {s(S_T3)}, {s(S_T2)}, {p * 16384}')
        mbox_store('buffer_store_dwordx2', v(z, 2), v(V_PBST), s(S_T3))

    for p in range(5):
        ac = OACC[p & 1]
        for j in range(8):
            e(f'v_mov_b32 {v(ac + j)}, 0')
        for t in range(2):
            for tau in range(2):
                smf(ac + 4 * tau, OF + 4 * t, (('o', t, p), tau))
        if p >= 1:
            finish_pair(p - 1)
    finish_pair(4)
    for b in OACC:
        pool.free(b, 8)
    for b in ZO:
        pool.free(b, 2)
    pool.free(OF, 8)
    assert not str_queue and not lds_pending and not inflight_str
    stamp()
    e(f's_cmp_ge_u32 {s(S_UNIT)}, 80')
    e(f's_cbranch_scc1 {name}_nored')
    e(f's_and_b32 {s(S_T0)}, {s(S_STEP)}, 1')
    e(f's_mul_i32 {s(S_T1)}, {s(S_T0)}, {PB_STRIDE}')
    e(f's_lshl_b32 {s(S_T2)}, {s(S_UNIT)}, 12')
    e(f's_add_u32 {s(S_T1)}, {s(S_T1)}, {s(S_T2)}')
    e(f's_add_u32 {s(S_T1)}, {s(S_T1)}, {WS_PB}')
    e(f's_lshl_b32 {s(S_T2)}, {s(S_UNIT)}, 7')
    e(f's_add_u32 {s(S_T2)}, {s(S_T2)}, {WS_MB}')
    e(f's_mul_i32 {s(S_T0)}, {s(S_T0)}, {MB_STRIDE}')
    e(f's_add_u32 {s(S_T3)}, {s(S_T2)}, {s(S_T0)}')
    e(f's_xor_b32 {s(S_T0)}, {s(S_T0)}, {MB_STRIDE}')
    e(f's_add_u32 {s(S_T2)}, {s(S_T2)}, {s(S_T0)}')
    RB = pool.must(16)
    RA = pool.must(8)
    TM = pool.must(4)
    e.label(f'{name}_pollK')
    for i in range(4):
        e(f'buffer_load_dwordx4 {v(RB + 4 * i, 4)}, {v(V_LANE16)}, {s(S_WS, 4)}, {s(S_T1)} offen offset:{1024 * i} sc1')
    e.wait_vm()
    e(f'v_max3_u32 {v(TM)}, {v(RB)}, {v(RB + 1)}, {v(RB + 2)}')
    for j in range(3, 15, 2):
        e(f'v_max3_u32 {v(TM)}, {v(TM)}, {v(RB + j)}, {v(RB + j + 1)}')
    e(f'v_max_u32 {v(TM)}, {v(TM)}, {v(RB + 15)}')
    e(f'v_cmp_eq_u32 vcc, -1, {v(TM)}')
    e(f's_cbranch_vccnz {name}_pollK')
    stamp()
    for j in range(4):
        e(f'v_mov_b32 {v(TM + j)}, -1')
    for i in range(4):
        mbox_store('buffer_store_dwordx4', v(TM, 4), v(V_LANE16), s(S_T1), f'offset:{1024 * i}')
    mbox_store('buffer_store_dword', v(TM), v(V_MBST), s(S_T3))
    for d in range(4):
        e(f'v_lshlrev_b32 {v(RA + 2 * d)}, 16, {v(RB + d)}')
        e(f'v_and_b32 {v(RA + 2 * d + 1)}, 0xffff0000, {v(RB + d)}')
    for i in range(1, 4):
        for d in range(4):
            x = RB + 4 * i + d
            e(f'v_lshlrev_b32 {v(RB + d)}, 16, {v(x)}')
            e(f'v_and_b32 {v(x)}, 0xffff0000, {v(x)}')
            e(f'v_add_f32 {v(RA + 2 * d)}, {v(RA + 2 * d)}, {v(RB + d)}')
            e(f'v_add_f32 {v(RA + 2 * d + 1)}, {v(RA + 2 * d + 1)}, {v(x)}')
    for j in range(4):
        e(f'v_permlane32_swap_b32 {v(RA + j)}, {v(RA + 4 + j)}')
    for j in range(4):
        e(f'v_add_f32 {v(RA + j)}, {v(RA + j)}, {v(RA + 4 + j)}')
    for j in range(2):
        e(f'v_permlane16_swap_b32 {v(RA + j)}, {v(RA + 2 + j)}')
    for j in range(2):
        e(f'v_add_f32 {v(RA + j)}, {v(RA + j)}, {v(RA + 2 + j)}')
    for j in range(2):
        e(f'v_add_f32_dpp {v(RA + 2 + j)}, {v(RA + j)}, {v(RA + j)} row_ror:8 row_mask:0xf bank_mask:0xf')
    e(f'v_cvt_pk_bf16_f32 {v(RA)}, {v(RA + 2)}, {v(RA + 3)}')
    e(f'v_min_u32 {v(RA)}, 0xfffffffe, {v(RA)}')
    e.wait_vm()
    mbox_store('buffer_store_dword', v(RA), v(V_MBST), s(S_T2))
    pool.free(RB, 16)
    pool.free(RA, 8)
    pool.free(TM, 4)
    e.label(f'{name}_nored')
    if stamps:
        stamp()
        e('s_waitcnt lgkmcnt(0)')
        e(f's_lshl_b32 {s(S_T0)}, {s(S_H)}, 2')
        e(f's_add_u32 {s(S_T0)}, {s(S_T0)}, {s(S_W)}')
        e(f's_lshl_b32 {s(S_T0)}, {s(S_T0)}, 6')
        e(f's_add_u32 {s(S_T0)}, {s(S_T0)}, {s(S_STEP)}')
        e(f's_lshl_b32 {s(S_T0)}, {s(S_T0)}, 6')
        e(f's_add_u32 {s(S_T0)}, {s(S_T0)}, 0x0F000000')
        TS = pool.must(2)
        e(f'v_mov_b32 {v(TS + 1)}, 0')
        for i in range(stamp_i[0]):
            e(f'v_mov_b32 {v(TS)}, {s(60 + 2 * i)}')
            e(f'buffer_store_dword {v(TS)}, {v(TS + 1)}, {s(S_WS, 4)}, {s(S_T0)} offen offset:{4 * i}')
        pool.free(TS, 2)
    e(f's_add_u32 {s(S_STEP)}, {s(S_STEP)}, 1')
    e(f's_branch {name}_step')
    e.label(f'{name}_exit')
    e('s_endpgm')
    print(f'; chain: n_reg={n_reg} n_lds={n_lds} n_str={n_str} pool peak={pool.peak} of {pool_end - NPERS}')
    return dict(vgpr=512, accum=256, sgpr=102, lds=163840)


def kd(name, vgpr, accum, sgpr=102):
    return f'''.section .rodata,"a"
.p2align 6
.amdhsa_kernel {name}
  .amdhsa_next_free_vgpr {vgpr}
  .amdhsa_next_free_sgpr {sgpr}
  .amdhsa_accum_offset {accum}
  .amdhsa_group_segment_fixed_size 0
  .amdhsa_kernarg_size 128
  .amdhsa_user_sgpr_count 2
  .amdhsa_user_sgpr_kernarg_segment_ptr 1
  .amdhsa_system_sgpr_workgroup_id_x 1
.end_amdhsa_kernel
.text
'''


if __name__ == '__main__':
    import sys
    import argparse
    ap = argparse.ArgumentParser()
    ap.add_argument('--out', default='chain_test.s')
    ap.add_argument('--stamps', action='store_true')
    ap.add_argument('--pool', type=int, default=128)
    ap.add_argument('--nlds', type=int, default=17)
    ap.add_argument('--maxstr', type=int, default=4)
    args = ap.parse_args()
    em = Em()
    info = gen_chain(em, stamps=args.stamps, pool_end=args.pool, n_lds=args.nlds, max_str=args.maxstr)
    hdr = '; @launch kernel=chain_kernel grid=(256,1,1) block=(256,1,1) lds=163840\n'
    hdr += '.amdgcn_target "amdgcn-amd-amdhsa--gfx950"\n.text\n.globl chain_kernel\n'
    open(args.out, 'w').write(hdr + em.text() + kd('chain_kernel', 512, 256))
```

```python
from emit import *
from layout import *
from gen_chain import Pool, f32bits, kd
import struct

S_WS = 4
S_DBG = 8
S_WQ = 12
S_WK = 16
S_WV = 20
S_WO = 24
S_H = 28
S_W = 29
S_STEP = 30
S_T0 = 31
S_T1 = 32
S_T2 = 33
S_T3 = 34
S_MODE = 35
S_UNIT = 36
S_XCC = 37
S_C1 = 38
S_MASKLO = 40
S_LDSW = 42
S_SH13 = 43
S_MBP = 44
S_MBB = 47
S_PBST = 50
S_MSL = 55
S_MBL = 56
S_PBLD = 60
S_MBC = 62
S_MBN = 63
S_STR = 64
S_KXO = 72
S_VXO = 73
S_KMO = 74
S_VMO = 75
S_KXM0 = 76
S_WARM = 77
S_STAMP = 78

V_LANE16 = 0
V_IDX = 1
V_AF = 2
V_QKW = 3
V_QKR = 4
V_OW = 5
V_OR = 6
V_PBST = 7
V_MBST = 8
V_KXG = 9
V_LDSW = 10
V_MW = 11
V_SEL = 12
NPERS = 16


def gen_chain(em, name='chain_kernel', n_lds=17, pool_end=96, nsteps=64, stamps=False, la_lds=5, max_str=3,
              naf=3, nv1=12, slow=True,
              lds_cand=(('q', 1), ('k', 2), ('q', 4), ('o', 0, 1), ('o', 1, 2), ('o', 0, 3), ('k', 5), ('q', 7), ('v', 1), ('v', 4)),
              str_want=(14, 21, 29, 37, 44, 79, 77, 75, 25, 33, 41, 17, 73), str_flags=(), nsb=6, noa=2, dbg='', ldfl='', ostfl=''):
    WL = n_lds * 2048
    L_MMEM = 0
    L_MQ = L_MMEM + 10240
    L_MK = L_MQ + 2048
    L_O = L_MK + 2048
    L_KX = L_O + 2048
    L_WB = L_KX + 8192
    L_END = L_WB + 4 * WL
    assert L_END <= 163840, L_END
    NRING = WL // 4096

    units = [(m, t) for m in 'qkv' for t in range(10)] + [('o', t, p) for p in range(5) for t in range(2)]
    order = []
    for t in range(8):
        for m in 'qk':
            for tau in range(2):
                order.append(((m, t), tau))
    for m in 'qk':
        for t in (8, 9):
            for tau in range(2):
                order.append(((m, t), tau))
    for t in range(10):
        for tau in range(2):
            order.append((('v', t), tau))
    for p in range(5):
        for t in range(2):
            for tau in range(2):
                order.append((('o', t, p), tau))
    n_reg = (512 - pool_end) // 8
    n_str = 80 - n_reg - n_lds
    assert 0 <= n_str <= 16
    full_lds_units = n_lds // 2
    lds_units = list(lds_cand[:full_lds_units])
    place = {}
    for j, un in enumerate(lds_units):
        for tau in range(2):
            place[(un, tau)] = ('lds', j * 4096 + tau * 2048)
    if n_lds % 2:
        place[(('o', 1, 0), 1)] = ('lds', full_lds_units * 4096)
    rest = [sl for sl in order if sl not in place]
    str_slots = []
    want = str_want[:n_str]
    assert len(want) == n_str, (n_str, str_want)
    for wi in want:
        best = min((sl for sl in rest if sl not in str_slots), key=lambda sl: abs(order.index(sl) - wi))
        str_slots.append(best)
    str_flag = {sl: str_flags[i] if i < len(str_flags) else '' for i, sl in enumerate(str_slots)}
    str_slots.sort(key=order.index)
    for i, sl in enumerate(str_slots):
        place[sl] = ('str', i * 2048)
    r = pool_end
    for sl in order:
        if sl not in place:
            place[sl] = ('reg', r)
            r += 8
    assert r == pool_end + n_reg * 8

    pool = Pool(NPERS, pool_end)
    e = em
    em.raw('.p2align 8')
    em.raw(f'.type {name},@function')
    em.label(name)
    e('s_cmp_ge_u32 s2, 256')
    e(f's_cbranch_scc1 {name}_exit')
    e('s_load_dwordx4 s[48:51], s[0:1], 16')
    e('s_load_dwordx4 s[52:55], s[0:1], 32')
    e('s_load_dwordx4 s[56:59], s[0:1], 112')
    e(f's_getreg_b32 {s(S_XCC)}, hwreg(HW_REG_XCC_ID)')
    e(f's_and_b32 {s(S_XCC)}, {s(S_XCC)}, 15')
    e('v_lshrrev_b32 v20, 6, v0')
    e('v_and_b32 v16, 63, v0')
    e(f'v_readfirstlane_b32 {s(S_W)}, v20')
    e('s_waitcnt lgkmcnt(0)')
    LN = 16

    def srd(d, src, size):
        e(f's_mov_b32 {s(d)}, {s(src)}')
        e(f's_and_b32 {s(d + 1)}, {s(src + 1)}, 0xffff')
        e(f's_mov_b32 {s(d + 2)}, {size}')
        e(f's_mov_b32 {s(d + 3)}, 0x20000')
    srd(S_WQ, 48, 5242880)
    srd(S_WK, 50, 5242880)
    srd(S_WV, 52, 5242880)
    srd(S_WO, 54, 5242880)
    srd(S_DBG, 56, 256)
    srd(S_WS, 58, WS_SIZE)

    e(f's_cmp_lg_u32 {s(S_W)}, 0')
    e(f's_cbranch_scc1 {name}_elected')
    e('v_mov_b32 v20, 1')
    e('v_mov_b32 v21, 1')
    e(f's_lshl_b32 {s(S_T0)}, {s(S_XCC)}, 2')
    e(f'v_mov_b32 v22, {s(S_T0)}')
    e('v_mov_b32 v23, 64')
    e('s_mov_b64 exec, 1')
    e(f'buffer_atomic_add v20, v22, {s(S_DBG, 4)}, 0 offen sc0')
    e(f'buffer_atomic_add v21, v23, {s(S_DBG, 4)}, 0 offen sc0')
    e.wait_vm()
    e(f'v_readfirstlane_b32 {s(S_T0)}, v20')
    e(f'v_readfirstlane_b32 {s(S_T1)}, v21')
    e('v_mov_b32 v23, 68')
    e(f's_cmp_eq_u32 {s(S_T0)}, 31')
    e(f's_cbranch_scc0 {name}_el1')
    e(f's_add_u32 {s(S_T2)}, {s(S_XCC)}, 1')
    e(f'v_mov_b32 v20, {s(S_T2)}')
    e('v_mov_b32 v21, 0')
    e(f'buffer_atomic_cmpswap v[20:21], v23, {s(S_DBG, 4)}, 0 offen')
    e.label(f'{name}_el1')
    e(f's_cmp_eq_u32 {s(S_T1)}, 255')
    e(f's_cbranch_scc0 {name}_el2')
    e('v_mov_b32 v20, 0xff')
    e('v_mov_b32 v21, 0')
    e(f'buffer_atomic_cmpswap v[20:21], v23, {s(S_DBG, 4)}, 0 offen')
    e.label(f'{name}_el2')
    e.label(f'{name}_el3')
    e(f'buffer_load_dword v20, v23, {s(S_DBG, 4)}, 0 offen sc1')
    e.wait_vm()
    e(f'v_readfirstlane_b32 {s(S_T2)}, v20')
    e(f's_cmp_eq_u32 {s(S_T2)}, 0')
    e(f's_cbranch_scc1 {name}_el3')
    e(f's_mov_b32 {s(S_H)}, 0xffff')
    e(f's_add_u32 {s(S_T3)}, {s(S_XCC)}, 1')
    e(f's_cmp_eq_u32 {s(S_T2)}, {s(S_T3)}')
    e(f's_cselect_b32 {s(S_H)}, {s(S_T0)}, {s(S_H)}')
    e(f's_cmp_eq_u32 {s(S_T2)}, 0xff')
    e(f's_cselect_b32 {s(S_H)}, {s(S_T1)}, {s(S_H)}')
    e(f's_cselect_b32 {s(S_MODE)}, 1, 0')
    e(f's_lshl_b32 {s(S_T0)}, {s(S_MODE)}, 16')
    e(f's_or_b32 {s(S_T0)}, {s(S_T0)}, {s(S_H)}')
    e(f'v_mov_b32 v20, {s(S_T0)}')
    e('v_mov_b32 v21, 0')
    e('ds_write_b32 v21, v20')
    e('s_mov_b64 exec, -1')
    e.wait_lg()
    e.label(f'{name}_elected')
    e('s_barrier')
    e('v_mov_b32 v21, 0')
    e('ds_read_b32 v20, v21')
    e.wait_lg()
    e(f'v_readfirstlane_b32 {s(S_T0)}, v20')
    e(f's_and_b32 {s(S_H)}, {s(S_T0)}, 0xffff')
    e(f's_lshr_b32 {s(S_MODE)}, {s(S_T0)}, 16')
    e('s_barrier')
    e(f's_cmp_ge_u32 {s(S_H)}, 32')
    e(f's_cbranch_scc1 {name}_exit')

    g, c, rp, cp, g1, g2, sw = 17, 18, 19, 20, 21, 22, 23
    T = 24
    e(f'v_lshrrev_b32 {v(g)}, 4, {v(LN)}')
    e(f'v_and_b32 {v(c)}, 15, {v(LN)}')
    e(f'v_lshrrev_b32 {v(rp)}, 2, {v(c)}')
    e(f'v_and_b32 {v(cp)}, 3, {v(LN)}')
    e(f'v_and_b32 {v(g1)}, 1, {v(g)}')
    e(f'v_lshrrev_b32 {v(g2)}, 1, {v(g)}')
    e(f'v_lshl_add_u32 {v(sw)}, {v(g1)}, 1, {v(g2)}')
    e(f'v_lshlrev_b32 {v(V_LANE16)}, 4, {v(LN)}')
    e(f'v_and_b32 {v(T)}, 2, {v(LN)}')
    e(f'v_cmp_ne_u32 vcc, 0, {v(T)}')
    e(f'v_mov_b32 {v(T + 1)}, 0x4444')
    e(f'v_mov_b32 {v(T + 2)}, 0xeeee')
    e(f'v_cndmask_b32 {v(V_IDX)}, {v(T + 1)}, {v(T + 2)}, vcc')
    e(f'v_lshl_add_u32 {v(T)}, {v(g)}, 2, {v(rp)}')
    e(f'v_lshlrev_b32 {v(T + 1)}, 3, {v(cp)}')
    e(f'v_lshl_add_u32 {v(V_AF)}, {v(T)}, 5, {v(T + 1)}')
    if L_MMEM:
        e(f'v_add_u32 {v(V_AF)}, {L_MMEM}, {v(V_AF)}')
    e(f'v_and_b32 {v(T + 2)}, 1, {v(cp)}')
    e(f'v_lshlrev_b32 {v(T + 2)}, 3, {v(T + 2)}')
    e(f'v_lshl_add_u32 {v(V_QKR)}, {v(T)}, 4, {v(T + 2)}')
    e(f'v_add_u32 {v(V_QKR)}, {L_MQ}, {v(V_QKR)}')
    e(f's_lshl_b32 {s(S_T0)}, {s(S_W)}, 5')
    e(f'v_add_u32 {v(T)}, {s(S_T0)}, {v(c)}')
    e(f'v_lshlrev_b32 {v(T + 2)}, 2, {v(sw)}')
    e(f'v_lshl_add_u32 {v(V_QKW)}, {v(T)}, 4, {v(T + 2)}')
    e(f'v_add_u32 {v(V_QKW)}, {L_MQ}, {v(V_QKW)}')
    e(f's_lshl_b32 {s(S_T0)}, {s(S_W)}, 2')
    e(f'v_add_u32 {v(T)}, {s(S_T0)}, {v(g)}')
    e(f'v_and_b32 {v(T + 3)}, 7, {v(LN)}')
    e(f'v_lshl_add_u32 {v(T)}, {v(T)}, 3, {v(T + 3)}')
    e(f'v_lshlrev_b32 {v(V_OW)}, 4, {v(T)}')
    e(f'v_add_u32 {v(V_OW)}, {L_O}, {v(V_OW)}')
    e(f'v_and_b32 {v(T)}, 1, {v(rp)}')
    e(f'v_lshrrev_b32 {v(T + 2)}, 1, {v(rp)}')
    e(f'v_lshl_add_u32 {v(T)}, {v(T)}, 1, {v(T + 2)}')
    e(f'v_and_b32 {v(T + 2)}, 1, {v(LN)}')
    e(f'v_lshl_add_u32 {v(T)}, {v(T)}, 1, {v(T + 2)}')
    e(f'v_lshl_add_u32 {v(T)}, {v(g)}, 3, {v(T)}')
    e(f'v_lshrrev_b32 {v(T + 2)}, 1, {v(cp)}')
    e(f'v_lshl_add_u32 {v(T)}, {v(T + 2)}, 5, {v(T)}')
    e(f'v_lshlrev_b32 {v(V_OR)}, 4, {v(T)}')
    e(f'v_add_u32 {v(V_OR)}, {L_O}, {v(V_OR)}')
    e(f'v_lshlrev_b32 {v(T)}, 12, {v(rp)}')
    e(f'v_lshl_add_u32 {v(T)}, {v(cp)}, 5, {v(T)}')
    e(f'v_lshl_add_u32 {v(V_PBST)}, {v(g)}, 3, {v(T)}')
    e(f'v_lshrrev_b32 {v(T)}, 1, {v(T + 3)}')
    e(f'v_and_b32 {v(T + 2)}, 1, {v(LN)}')
    e(f'v_lshl_add_u32 {v(T + 2)}, {v(T + 2)}, 1, {v(g1)}')
    e(f'v_lshlrev_b32 {v(T + 2)}, 3, {v(T + 2)}')
    e(f'v_lshl_add_u32 {v(V_MBST)}, {v(T)}, 5, {v(T + 2)}')
    e(f'v_lshlrev_b32 {v(T)}, 4, {v(g)}')
    e(f'v_lshl_add_u32 {v(V_KXG)}, {v(c)}, 8, {v(T)}')
    e(f's_mul_i32 {s(S_LDSW)}, {s(S_W)}, {WL}')
    e(f's_add_u32 {s(S_LDSW)}, {s(S_LDSW)}, {L_WB}')
    e(f'v_add_u32 {v(V_LDSW)}, {s(S_LDSW)}, {v(V_LANE16)}')
    e(f's_lshl_b32 {s(S_T0)}, {s(S_W)}, 10')
    e(f'v_add_u32 {v(V_MW)}, {s(S_T0)}, {v(V_LANE16)}')
    e(f'v_and_b32 {v(T + 2)}, 1, {v(LN)}')
    e(f'v_lshlrev_b32 {v(T + 2)}, 4, {v(T + 2)}')
    e(f'v_mov_b32 {v(T + 4)}, 0x3f80')
    e(f'v_lshlrev_b32 {v(T + 4)}, {v(T + 2)}, {v(T + 4)}')
    e(f'v_lshrrev_b32 {v(T)}, 1, {v(T + 3)}')
    for rr in range(4):
        e(f'v_cmp_eq_u32 vcc, {rr}, {v(T)}')
        e(f'v_cndmask_b32 {v(V_SEL + rr)}, 0, {v(T + 4)}, vcc')
    cc = f32bits((128 ** -0.5) * 1.4426950408889634)
    e(f's_mov_b32 {s(S_C1)}, {cc:#x}')
    e(f's_mov_b32 {s(S_C1 + 1)}, {cc:#x}')
    e(f's_mov_b32 {s(S_MASKLO)}, -1')
    e(f's_mov_b32 {s(S_MASKLO + 1)}, 0')
    e(f's_lshl_b32 {s(S_UNIT)}, {s(S_W)}, 5')
    e(f's_add_u32 {s(S_UNIT)}, {s(S_UNIT)}, {s(S_H)}')

    VG_QKV, VG_O, VT_QKV, VT_O = T + 6, T + 7, T + 8, T + 9
    e(f'v_lshrrev_b32 {v(T)}, 2, {v(LN)}')
    e(f'v_lshlrev_b32 {v(T + 1)}, 4, {v(cp)}')
    e(f'v_lshl_add_u32 {v(VG_QKV)}, {v(T)}, 13, {v(T + 1)}')
    e(f'v_mul_u32_u24 {v(T)}, 1280, {v(T)}')
    e(f'v_add_u32 {v(VG_O)}, {v(T)}, {v(T + 1)}')
    e(f'v_lshrrev_b32 {v(T + 2)}, 1, {v(rp)}')
    e(f'v_and_b32 {v(T + 3)}, 1, {v(rp)}')
    e(f'v_lshlrev_b32 {v(T + 5)}, 3, {v(cp)}')
    e(f'v_lshlrev_b32 {v(T + 4)}, 5, {v(g1)}')
    e(f'v_lshl_add_u32 {v(T + 4)}, {v(T + 2)}, 4, {v(T + 4)}')
    e(f'v_lshl_add_u32 {v(T + 4)}, {v(g2)}, 2, {v(T + 4)}')
    e(f'v_add_u32 {v(T + 4)}, {v(T + 4)}, {v(T + 3)}')
    e(f'v_lshl_add_u32 {v(VT_QKV)}, {v(T + 4)}, 6, {v(T + 5)}')
    e(f'v_add_u32 {v(VT_QKV)}, {s(S_LDSW)}, {v(VT_QKV)}')
    e(f'v_lshlrev_b32 {v(T + 4)}, 5, {v(T + 2)}')
    e(f'v_lshl_add_u32 {v(T + 4)}, {v(g1)}, 4, {v(T + 4)}')
    e(f'v_lshl_add_u32 {v(T + 4)}, {v(g2)}, 2, {v(T + 4)}')
    e(f'v_add_u32 {v(T + 4)}, {v(T + 4)}, {v(T + 3)}')
    e(f'v_lshl_add_u32 {v(VT_O)}, {v(T + 4)}, 6, {v(T + 5)}')
    e(f'v_add_u32 {v(VT_O)}, {s(S_LDSW)}, {v(VT_O)}')
    e(f's_lshl_b32 {s(S_T2)}, {s(S_H)}, 8')
    e(f's_lshl_b32 {s(S_T0)}, {s(S_W)}, 6')
    e(f's_add_u32 {s(S_T2)}, {s(S_T2)}, {s(S_T0)}')
    e(f's_mul_i32 {s(S_T3)}, {s(S_H)}, {128 * 1280}')
    e(f's_mul_i32 {s(S_T0)}, {s(S_W)}, 320')
    e(f's_add_u32 {s(S_T3)}, {s(S_T3)}, {s(S_T0)}')
    e(f's_mul_i32 {s(S_STR)}, {s(S_H)}, {STR_HSTRIDE}')
    e(f's_mul_i32 {s(S_T0)}, {s(S_W)}, {STR_WSTRIDE}')
    e(f's_add_u32 {s(S_STR)}, {s(S_STR)}, {s(S_T0)}')
    e(f's_add_u32 {s(S_STR)}, {s(S_STR)}, {WS_STR}')
    for i in range(1, 8):
        e(f's_add_u32 {s(S_STR + i)}, {s(S_STR)}, {4096 * i}')

    ulist = [un for un in units if un not in lds_units] + lds_units
    nnon = 40 - len(lds_units)

    def ringpos(i):
        return (i - nnon) % NRING if i < nnon else i - nnon

    TMPW = 36

    def issue_dma(i):
        un = ulist[i]
        pos = ringpos(i)
        for q in range(4):
            if un[0] == 'o':
                _, t, p = un
                off = (64 * t + 16 * q) * 1280 + 64 * p
                e(f's_add_u32 {s(S_T0)}, {s(S_T3)}, {off}')
                srdn, vg = S_WO, VG_O
            else:
                m, t = un
                off = (64 * t + 16 * q) * 8192
                e(f's_add_u32 {s(S_T0)}, {s(S_T2)}, {off}')
                srdn, vg = {'q': S_WQ, 'k': S_WK, 'v': S_WV}[m], VG_QKV
            e(f's_add_u32 m0, {s(S_LDSW)}, {pos * 4096 + q * 1024}')
            e(f'buffer_load_dwordx4 {v(vg)}, {s(srdn, 4)}, {s(S_T0)} offen lds', tag=('dma', i))

    def process(i):
        un = ulist[i]
        pos = ringpos(i)
        e.wait_vm(('dma', i))
        vt = VT_O if un[0] == 'o' else VT_QKV
        for tau in range(2):
            kind, loc = place[(un, tau)]
            dst = loc if kind == 'reg' else TMPW + 8 * tau
            for n in range(4):
                off = (8 * (n >> 1) + 2 * (n & 1)) * 64 + 32 * tau
                e(f'ds_read_b64_tr_b16 {u(dst + 2 * n, 2)}, {v(vt)} offset:{pos * 4096 + off}')
        e.wait_lg()
        for tau in range(2):
            kind, loc = place[(un, tau)]
            src = TMPW + 8 * tau
            if kind == 'lds':
                e(f'ds_write_b128 {v(V_LDSW)}, {v(src, 4)} offset:{loc}')
                e(f'ds_write_b128 {v(V_LDSW)}, {v(src + 4, 4)} offset:{loc + 1024}')
            elif kind == 'str':
                sb = S_STR + loc // 4096
                o = loc % 4096
                e(f'buffer_store_dwordx4 {v(src, 4)}, {v(V_LANE16)}, {s(S_WS, 4)}, {s(sb)} offen offset:{o}', tag='st')
                e(f'buffer_store_dwordx4 {v(src + 4, 4)}, {v(V_LANE16)}, {s(S_WS, 4)}, {s(sb)} offen offset:{o + 1024}', tag='st')
        if any(place[(un, tau)][0] != 'reg' for tau in range(2)):
            e.wait_lg()
            if any(place[(un, tau)][0] == 'str' for tau in range(2)):
                e.wait_vm('st')

    for i in range(NRING):
        issue_dma(i)
    for i in range(40):
        process(i)
        if i + NRING < 40:
            issue_dma(i + NRING)
    e.wait_vm()
    e.wait_lg()

    e(f's_lshl_b32 {s(S_T0)}, {s(S_W)}, 10')
    e(f's_add_u32 {s(S_MBB)}, {s(S_T0)}, {WS_MB}')
    e(f's_add_u32 {s(S_MBB + 1)}, {s(S_MBB)}, 6144')
    e(f's_mov_b32 {s(S_MBB + 2)}, {WS_MB + 9216}')
    for i in range(3):
        e(f's_mov_b32 {s(S_MBP + i)}, {s(S_MBB + i)}')
    e(f's_mov_b32 {s(S_MSL)}, 0')
    e(f's_mul_i32 {s(S_PBST)}, {s(S_W)}, {20 * 4096}')
    e(f's_lshl_b32 {s(S_T0)}, {s(S_H)}, 7')
    e(f's_add_u32 {s(S_PBST)}, {s(S_PBST)}, {s(S_T0)}')
    e(f's_add_u32 {s(S_PBST)}, {s(S_PBST)}, {WS_PB}')
    for p in range(1, 5):
        e(f's_add_u32 {s(S_PBST + p)}, {s(S_PBST)}, {p * 16384}')
    e(f's_lshl_b32 {s(S_PBLD)}, {s(S_UNIT)}, 12')
    e(f's_add_u32 {s(S_PBLD)}, {s(S_PBLD)}, {WS_PB}')
    e(f's_lshl_b32 {s(S_MBL)}, {s(S_UNIT)}, 7')
    e(f's_add_u32 {s(S_MBL)}, {s(S_MBL)}, {WS_MB}')
    e(f's_mov_b32 {s(S_MBC)}, {s(S_MBL)}')
    e(f's_add_u32 {s(S_MBN)}, {s(S_MBL)}, {MB_STRIDE}')
    e(f's_lshr_b32 {s(S_T0)}, {s(S_W)}, 1')
    e(f's_lshl_b32 {s(S_T0)}, {s(S_T0)}, 12')
    e(f's_and_b32 {s(S_T1)}, {s(S_W)}, 1')
    e(f's_lshl_b32 {s(S_T1)}, {s(S_T1)}, 7')
    e(f's_add_u32 {s(S_KXO)}, {s(S_T0)}, {s(S_T1)}')
    e(f's_add_u32 {s(S_KXO)}, {s(S_KXO)}, {WS_KX}')
    e(f's_lshl_b32 {s(S_T0)}, {s(S_W)}, 11')
    e(f's_add_u32 {s(S_VXO)}, {s(S_T0)}, {WS_VXT}')
    e(f's_add_u32 {s(S_KXM0)}, {s(S_T0)}, {L_KX}')
    e(f's_lshl_b32 {s(S_T0)}, {s(S_W)}, 6')
    e(f's_add_u32 {s(S_KMO)}, {s(S_T0)}, {WS_KM}')
    e(f's_lshl_b32 {s(S_T0)}, {s(S_W)}, 9')
    e(f's_add_u32 {s(S_VMO)}, {s(S_T0)}, {WS_VMT}')
    e(f's_mov_b32 {s(S_WARM)}, {WS_VXT + 2 * 32 * 8192}')
    e(f's_cmp_eq_u32 {s(S_W)}, 2')
    e(f's_cselect_b32 {s(S_WARM)}, {WS_KX + 2 * 32 * 8192}, {s(S_WARM)}')
    e(f's_lshl_b32 {s(S_SH13)}, {s(S_H)}, 13')
    e(f's_mov_b32 {s(S_STEP)}, 0')

    def kx_dma(adv, ta):
        e(f's_add_u32 {s(S_T0)}, {s(S_SH13)}, {WS_KX + adv * 32 * 8192}')
        for f in range(8):
            tau, uu = f >> 2, f & 3
            if f:
                e(f's_add_u32 {s(S_T1)}, {s(S_T0)}, {tau * 4096 + uu * 64}')
            e(f's_mov_b32 m0, {L_KX + f * 1024}')
            e(f'buffer_load_dwordx4 {v(V_KXG)}, {s(S_WS, 4)}, {s(S_T1 if f else S_T0)} offen {ldfl} lds', tag='kx')
        e(f's_add_u32 {s(S_T0)}, {s(S_SH13)}, {WS_VXT + adv * 32 * 8192}')
        e(f'v_lshlrev_b32 {v(ta)}, 3, {v(V_LANE16)}')
        e(f'buffer_load_dword {v(ta)}, {v(ta)}, {s(S_WS, 4)}, {s(S_T0)} offen', tag='warm')

    V_TA = pool.must(1)
    e(f's_cmp_lg_u32 {s(S_W)}, 3')
    e(f's_cbranch_scc1 {name}_nokx0')
    kx_dma(0, V_TA)
    e.label(f'{name}_nokx0')

    ACC = pool.must(16)
    for j in range(0, 16, 2):
        e(f'v_mov_b64 {v(ACC + j, 2)}, 0')

    if slow:
        e(f's_cmp_lg_u32 {s(S_MODE)}, 0')
        e(f's_cbranch_scc1 {name}_slow_0')

    def body(par, sc, pre):
        stamp_i = [0]

        def stamp():
            if stamps:
                e(f's_memtime {s(S_STAMP + 2 * stamp_i[0], 2)}')
                stamp_i[0] += 1

        e.label(f'{pre}_{par}')
        e.hist = []
        e.vm = ['x']
        e.lg = []
        stamp()
        AF = [pool.must(4) for _ in range(naf)]
        ZQ = pool.must(4)
        A0 = pool.must(16)
        TM = pool.must(1)
        e(f's_cmp_eq_u32 {s(S_W)}, 3')
        e(f's_cbranch_scc1 {pre}_{par}_skipA')
        e.cond_begin()
        e.label(f'{pre}_{par}_pollA')
        e(f'buffer_load_dwordx4 {v(A0, 4)}, {v(V_LANE16)}, {s(S_WS, 4)}, {s(S_MBP)} offen sc1')
        e(f'buffer_load_dwordx4 {v(A0 + 4, 4)}, {v(V_LANE16)}, {s(S_WS, 4)}, {s(S_MBP)} offen offset:3072 sc1')
        e(f'buffer_load_dwordx4 {v(A0 + 8, 4)}, {v(V_LANE16)}, {s(S_WS, 4)}, {s(S_MBP + 1)} offen sc1')
        e(f'buffer_load_dwordx4 {v(A0 + 12, 4)}, {v(V_LANE16)}, {s(S_WS, 4)}, {s(S_MBP + 2)} offen sc1')
        e('s_waitcnt vmcnt(0)')
        e(f'v_max3_u32 {v(TM)}, {v(A0)}, {v(A0 + 1)}, {v(A0 + 2)}')
        for j in range(3, 15, 2):
            e(f'v_max3_u32 {v(TM)}, {v(TM)}, {v(A0 + j)}, {v(A0 + j + 1)}')
        e(f'v_max_u32 {v(TM)}, {v(TM)}, {v(A0 + 15)}')
        e(f'v_cmp_eq_u32 vcc, -1, {v(TM)}')
        e(f's_cbranch_vccnz {pre}_{par}_pollA')
        e(f'ds_write_b128 {v(V_MW)}, {v(A0, 4)} offset:{L_MMEM}')
        e(f'ds_write_b128 {v(V_MW)}, {v(A0 + 4, 4)} offset:{L_MMEM + 3072}')
        e(f'ds_write_b128 {v(V_MW)}, {v(A0 + 8, 4)} offset:{L_MMEM + 6144}')
        e(f'ds_write_b128 {v(V_LANE16)}, {v(A0 + 12, 4)} offset:{L_MMEM + 9216}')
        e.cond_end()
        e.label(f'{pre}_{par}_skipA')
        stamp()

        loaded = {}
        str_queue = [sl for sl in order if place[sl][0] == 'str']
        lds_pending = [sl for sl in order if place[sl][0] == 'lds']
        inflight_str = []
        st = dict(reserve=0, str_limit=60, maxs=max_str)

        def pump_str(force=False):
            while str_queue and (force or (len(inflight_str) < st['maxs'] and order.index(str_queue[0]) < st['str_limit'])):
                b = pool.alloc(8, 8, top=True, reserve=0 if force else st['reserve'])
                if b is None:
                    return
                force = False
                sl = str_queue.pop(0)
                loc = place[sl][1]
                sb, o = S_STR + loc // 4096, loc % 4096
                fl = str_flag[sl]
                if 'nostr' not in dbg:
                    e(f'buffer_load_dwordx4 {v(b, 4)}, {v(V_LANE16)}, {s(S_WS, 4)}, {s(sb)} offen offset:{o} {fl}', tag=('str', sl))
                    e(f'buffer_load_dwordx4 {v(b + 4, 4)}, {v(V_LANE16)}, {s(S_WS, 4)}, {s(sb)} offen offset:{o + 1024} {fl}', tag=('str', sl))
                loaded[sl] = b
                inflight_str.append(sl)

        def pump_lds(cur_idx, force=False):
            while lds_pending and order.index(lds_pending[0]) <= cur_idx + la_lds:
                need = force and order.index(lds_pending[0]) <= cur_idx
                b = pool.alloc(8, 8, top=True, reserve=0 if need else st['reserve'])
                if b is None:
                    assert not need, 'no buffer for lds slot'
                    return
                sl = lds_pending.pop(0)
                loc = place[sl][1]
                if 'nolds' not in dbg:
                    e(f'ds_read_b128 {v(b, 4)}, {v(V_LDSW)} offset:{loc}', tag=('lw', sl))
                    e(f'ds_read_b128 {v(b + 4, 4)}, {v(V_LDSW)} offset:{loc + 1024}', tag=('lw', sl))
                loaded[sl] = b

        def smf(acc, af, sl):
            idx = order.index(sl)
            pump_lds(idx, True)
            kind, loc = place[sl]
            if kind == 'reg':
                b = loc
            else:
                if sl not in loaded:
                    print('; WARNING late stream issue', sl)
                    pump_str(True)
                assert sl in loaded, ('not loaded', sl)
                b = loaded[sl]
                if ('nostr' in dbg and kind == 'str') or ('nolds' in dbg and kind == 'lds'):
                    pool.free(b, 8)
                    if kind == 'str':
                        inflight_str.remove(sl)
                    e(f'v_smfmac_f32_16x16x64_bf16 {v(acc, 4)}, {v(af, 4)}, {u(504, 8)}, {v(V_IDX)}')
                    pump_str()
                    return
                if kind == 'lds':
                    e.wait_lg(('lw', sl))
                else:
                    e.wait_vm(('str', sl))
            e(f'v_smfmac_f32_16x16x64_bf16 {v(acc, 4)}, {v(af, 4)}, {u(b, 8)}, {v(V_IDX)}')
            if kind != 'reg':
                pool.free(b, 8)
                if kind == 'str':
                    inflight_str.remove(sl)
                pump_str()

        def run(mf, side, ratio=2):
            side = list(side)
            for f in mf:
                f()
                for _ in range(ratio):
                    if side:
                        side.pop(0)()
            for f in side:
                f()

        pump_str()
        e.wait_lg()
        e('s_barrier')
        pool.free(A0, 16)
        pool.free(TM, 1)
        afseq = list(range(10)) + list(range(10))
        afpos = [0]

        def af_issue():
            k = afpos[0]
            if k >= len(afseq):
                return
            afpos[0] += 1
            t = afseq[k]
            b = AF[k % naf]
            e(f'ds_read_b64_tr_b16 {v(b, 2)}, {v(V_AF)} offset:{1024 * t}', tag=('af', k))
            e(f'ds_read_b64_tr_b16 {v(b + 2, 2)}, {v(V_AF)} offset:{1024 * t + 512}', tag=('af', k))

        for _ in range(naf):
            af_issue()
        pump_str()

        def qk_ops(t, ms, k, last_use):
            ops = []
            first = [True]
            for m in ms:
                for tau in range(2):
                    def f(m=m, tau=tau):
                        if first[0]:
                            e.wait_lg(('af', k))
                            first[0] = False
                        smf(ACC + (0 if m == 'q' else 8) + 4 * tau, AF[k % naf], ((m, t), tau))
                    ops.append(f)
            if last_use:
                lastf = ops[-1]

                def g_():
                    lastf()
                    af_issue()
                ops[-1] = g_
            return ops

        mf = []
        for t in range(8):
            mf += qk_ops(t, 'qk', t, True)
        run(mf[:24], [], 0)
        st['reserve'] = 8
        run(mf[24:], [], 0)
        run(qk_ops(8, 'q', 8, False) + qk_ops(9, 'q', 9, False), [], 0)
        VACC = pool.must(8)
        st['reserve'] = 0
        side = [(lambda j=j: e(f'v_mov_b64 {v(VACC + j, 2)}, 0')) for j in range(0, 8, 2)]

        def fold(acc, dst):
            return [lambda: e(f'v_pk_add_f32 {v(acc, 2)}, {v(acc, 2)}, {v(acc + 2, 2)}'),
                    lambda: e(f'v_cvt_pk_bf16_f32 {v(dst)}, {v(acc)}, {v(acc + 1)}')]
        mf = qk_ops(8, 'k', 8, True) + qk_ops(9, 'k', 9, True)
        side = side + fold(ACC, ZQ) + fold(ACC + 4, ZQ + 1) + [
            lambda: e(f'ds_write2st64_b32 {v(V_QKW)}, {v(ZQ)}, {v(ZQ + 1)} offset0:0 offset1:1', tag='qw')]
        run(mf, side, 3)
        stamp()

        def v_ops(t):
            k = 10 + t
            ops = []
            for tau in range(2):
                def f(tau=tau):
                    if tau == 0:
                        e.wait_lg(('af', k))
                    smf(VACC + 4 * tau, AF[k % naf], (('v', t), tau))
                    if tau == 1:
                        af_issue()
                ops.append(f)
            return ops
        vops = []
        for t in range(10):
            vops += v_ops(t)
        sfr = []
        for uu in range(4):
            sfr += [('q', uu), ('x0', uu), ('x1', uu), ('m', uu)]
        sbuf = {}
        spos = [0]

        def s_issue():
            if spos[0] >= len(sfr):
                return True
            b = pool.alloc(4)
            if b is None:
                return False
            kind, uu = sfr[spos[0]]
            spos[0] += 1
            sbuf[(kind, uu)] = b
            if kind in 'qm':
                base = 0 if kind == 'q' else 2048
                for m in range(2):
                    e(f'ds_read_b64_tr_b16 {v(b + 2 * m, 2)}, {v(V_QKR)} offset:{base + uu * 512 + m * 256}', tag=('si', kind, uu))
            else:
                tau = int(kind[1])
                e(f'ds_read_b128 {v(b, 4)}, {v(V_LANE16)} offset:{L_KX + (tau * 4 + uu) * 1024}', tag=('si', kind, uu))
            return True

        side = fold(ACC + 8, ZQ + 2) + fold(ACC + 12, ZQ + 3) + [
            lambda: e(f'ds_write2st64_b32 {v(V_QKW)}, {v(ZQ + 2)}, {v(ZQ + 3)} offset0:8 offset1:9', tag='kw')]
        n_a = 4
        run(vops[:n_a], side, 2)
        run(vops[n_a:n_a + 3], [], 0)
        e.wait_vm('x')
        e.wait_lg('kw')
        e('s_barrier')
        pool.free(ACC, 16)
        pool.free(ZQ, 4)
        SACC = pool.must(12)
        st['reserve'] = 99
        for _ in range(nsb):
            s_issue()
        run(vops[n_a + 3:nv1], [], 0)
        stamp()
        for uu in range(4):
            for ti, kind in enumerate(('x0', 'x1', 'm')):
                for key in (('q', uu), (kind, uu)):
                    while key not in sbuf:
                        assert s_issue(), 'no S buffer'
                    e.wait_lg(('si',) + key)
                cin = '0' if uu == 0 else v(SACC + 4 * ti, 4)
                e(f'v_mfma_f32_16x16x32_bf16 {v(SACC + 4 * ti, 4)}, {v(sbuf[(kind, uu)], 4)}, {v(sbuf[("q", uu)], 4)}, {cin}')
                pool.free(sbuf[(kind, uu)], 4)
                if kind == 'm':
                    pool.free(sbuf[('q', uu)], 4)
                    s_issue()
                s_issue()
        stamp()
        VX = pool.must(8)
        e(f's_add_u32 {s(S_T0)}, {s(S_SH13)}, {s(S_VXO)}')
        e(f'buffer_load_dwordx4 {v(VX, 4)}, {v(V_LANE16)}, {s(S_WS, 4)}, {s(S_T0)} offen {ldfl}', tag='vx')
        e(f'buffer_load_dwordx4 {v(VX + 4, 4)}, {v(V_LANE16)}, {s(S_WS, 4)}, {s(S_T0)} offen offset:1024 {ldfl}', tag='vx')
        M = pool.must(2)
        ZV = pool.must(2)
        PM = pool.must(4)
        ONES = pool.must(4)
        P = pool.must(4)
        KMT = pool.must(4)
        KMT0 = pool.must(1)
        C0 = SACC + 8
        sm = []
        sm.append(lambda: e(f'v_cndmask_b32 {v(C0)}, {v(C0 + 2)}, {v(C0)}, {s(S_MASKLO, 2)}'))
        sm.append(lambda: e(f'v_cndmask_b32 {v(C0 + 1)}, {v(C0 + 3)}, {v(C0 + 1)}, {s(S_MASKLO, 2)}'))
        sm.append(lambda: e(f'v_max3_f32 {v(M)}, {v(SACC)}, {v(SACC + 1)}, {v(SACC + 2)}'))
        for j in (3, 5, 7):
            sm.append(lambda j=j: e(f'v_max3_f32 {v(M)}, {v(M)}, {v(SACC + j)}, {v(SACC + j + 1)}'))
        sm.append(lambda: e(f'v_max_f32 {v(M)}, {v(M)}, {v(SACC + 9)}'))
        for sw_ in ('v_permlane32_swap_b32', 'v_permlane16_swap_b32'):
            sm.append(lambda: e(f'v_mov_b32 {v(M + 1)}, {v(M)}'))
            sm.append(lambda sw_=sw_: e(f'{sw_} {v(M)}, {v(M + 1)}'))
            sm.append(lambda: e(f'v_max_f32 {v(M)}, {v(M)}, {v(M + 1)}'))
        sm.append(lambda: e(f'v_mul_f32 {v(M)}, {s(S_C1)}, {v(M)}'))
        for j in range(0, 10, 2):
            sm.append(lambda j=j: e(f'v_pk_fma_f32 {v(SACC + j, 2)}, {v(SACC + j, 2)}, {s(S_C1, 2)}, {v(M, 2)} op_sel_hi:[1,1,0] neg_lo:[0,0,1] neg_hi:[0,0,1]'))
        for j in range(10):
            sm.append(lambda j=j: e(f'v_exp_f32 {v(SACC + j)}, {v(SACC + j)}'))
        for j in range(4):
            sm.append(lambda j=j: e(f'v_cvt_pk_bf16_f32 {v(P + j)}, {v(SACC + 2 * j)}, {v(SACC + 2 * j + 1)}'))
        sm.append(lambda: e(f'v_cvt_pk_bf16_f32 {v(PM)}, {v(C0)}, {v(C0 + 1)}'))
        sm.append(lambda: e(f'v_cvt_pk_bf16_f32 {v(PM + 3)}, {v(C0)}, {v(C0 + 1)}'))
        pre_side = [
            lambda: e(f's_lshl_b32 {s(S_T1)}, {s(S_W)}, 9'),
            lambda: e(f'v_add_u32 {v(P)}, {s(S_T1)}, {v(V_QKR)}'),
            lambda: e(f'ds_read_b64_tr_b16 {v(KMT, 2)}, {v(P)} offset:2048', tag='kmt'),
            lambda: e(f'ds_read_b64_tr_b16 {v(KMT + 2, 2)}, {v(P)} offset:2304', tag='kmt'),
            lambda: e(f'v_mov_b32 {v(PM + 1)}, 0'), lambda: e(f'v_mov_b32 {v(PM + 2)}, 0')]
        pre_side += [(lambda j=j: e(f'v_mov_b32 {v(ONES + j)}, 0x3f803f80')) for j in range(4)]
        rest_v = vops[nv1:]
        k0 = min(2, len(rest_v))
        run(rest_v[:k0], pre_side, 5)
        run(rest_v[k0:], sm[:3 * (len(rest_v) - k0)], 3)
        sm = sm[3 * (len(rest_v) - k0):]
        for b in AF:
            pool.free(b, 4)
        for f in sm[:4]:
            f()
        sm = sm[4:]
        for f in fold(VACC, ZV) + fold(VACC + 4, ZV + 1):
            f()
        TA = KMT0
        e(f's_lshr_b32 {s(S_T0)}, {s(S_SH13)}, 2')
        e(f's_add_u32 {s(S_T0)}, {s(S_T0)}, {s(S_VMO)}')
        e(f'v_lshrrev_b32 {v(TA)}, 1, {v(V_LANE16)}')
        e(f'buffer_store_dwordx2 {v(ZV, 2)}, {v(TA)}, {s(S_WS, 4)}, {s(S_T0)} offen {ostfl}', tag='out')
        e(f's_lshr_b32 {s(S_T2)}, {s(S_SH13)}, 1')
        e(f's_add_u32 {s(S_T2)}, {s(S_T2)}, {s(S_KMO)}')
        e.wait_lg('kmt')
        e(f'buffer_store_dwordx4 {v(KMT, 4)}, {v(V_KXG)}, {s(S_WS, 4)}, {s(S_T2)} offen {ostfl}', tag='out')
        e(f's_cmp_eq_u32 {s(S_STEP)}, {nsteps - 1}')
        e(f's_cbranch_scc1 {name}_exit')
        pool.free(VACC, 8)
        OA = pool.must(12)
        st['reserve'] = 0
        st['str_limit'] = 99
        pump_str()
        for f in sm:
            f()
        e.wait_vm('vx')
        e(f'v_mfma_f32_16x16x32_bf16 {v(OA + 8, 4)}, {v(ONES, 4)}, {v(P, 4)}, 0')
        e(f'v_mfma_f32_16x16x32_bf16 {v(OA, 4)}, {v(VX, 4)}, {v(P, 4)}, 0')
        e(f'v_mfma_f32_16x16x32_bf16 {v(OA + 4, 4)}, {v(VX + 4, 4)}, {v(P, 4)}, 0')
        pool.free(SACC, 12)
        pool.free(VX, 8)
        OACC = [pool.must(8) for _ in range(2)]
        for j in range(0, 8, 2):
            e(f'v_mov_b64 {v(OACC[0] + j, 2)}, 0')
        e(f'v_mfma_f32_16x16x16_bf16 {v(OA + 8, 4)}, {v(ONES, 2)}, {v(PM, 2)}, {v(OA + 8, 4)}')
        e(f'v_mfma_f32_16x16x16_bf16 {v(OA, 4)}, {v(ZV, 2)}, {v(PM, 2)}, {v(OA, 4)}')
        e(f'v_mfma_f32_16x16x16_bf16 {v(OA + 4, 4)}, {v(ZV, 2)}, {v(PM + 2, 2)}, {v(OA + 4, 4)}')
        pool.free(ONES, 4)
        pool.free(PM, 4)
        pump_str()
        for j in range(0, 8, 2):
            e(f'v_mov_b64 {v(OACC[1] + j, 2)}, 0')
        e(f'v_rcp_f32 {v(M)}, {v(OA + 8)}')
        for j in range(0, 8, 2):
            e(f'v_pk_mul_f32 {v(OA + j, 2)}, {v(OA + j, 2)}, {v(M, 2)} op_sel_hi:[1,0]')
        for j in range(4):
            e(f'v_cvt_pk_bf16_f32 {v(P + j)}, {v(OA + 2 * j)}, {v(OA + 2 * j + 1)}')
        e(f'ds_write_b128 {v(V_OW)}, {v(P, 4)}', tag='ow')
        pool.free(M, 2)
        pool.free(OA, 12)
        pool.free(ZV, 2)
        pool.free(KMT, 4)
        pool.free(KMT0, 1)
        NOA = noa
        if NOA == 3:
            OACC.append(pool.must(8))
        OF = pool.must(8)
        ZO = [pool.must(2) for _ in range(2)]
        pump_str()
        pump_lds(order.index((('o', 0, 0), 0)))
        e.wait_lg('ow')
        e('s_barrier')
        pool.free(P, 4)
        e(f'ds_read_b128 {v(OF, 4)}, {v(V_OR)}', tag='of0')
        e(f'ds_read_b128 {v(OF + 4, 4)}, {v(V_OR)} offset:1024', tag='of1')
        if NOA == 3:
            for j in range(0, 8, 2):
                e(f'v_mov_b64 {v(OACC[2] + j, 2)}, 0')
        pump_lds(order.index((('o', 0, 0), 0)))
        stamp()

        def finish(p):
            ac = OACC[p % NOA]
            z = ZO[p & 1]
            it = fold(ac, z) + fold(ac + 4, z + 1) + [
                lambda: e(f'buffer_store_dwordx2 {v(z, 2)}, {v(V_PBST)}, {s(S_WS, 4)}, {s(S_PBST + p)} offen {sc}', tag='pst')]
            if p + NOA < 5:
                it += [(lambda j=j: e(f'v_mov_b64 {v(ac + j, 2)}, 0')) for j in range(0, 8, 2)]
            return it

        for p in range(5):
            ac = OACC[p % NOA]
            mf = []
            for t in range(2):
                for tau in range(2):
                    def f(t=t, tau=tau):
                        if p == 0 and tau == 0:
                            e.wait_lg(f'of{t}')
                        smf(ac + 4 * tau, OF + 4 * t, (('o', t, p), tau))
                    mf.append(f)
            side = finish(p - 1) if p >= 1 else []
            run(mf[:2], [], 0)
            run(mf[2:], side, 3)
        for f in finish(4):
            f()
        for b in OACC:
            pool.free(b, 8)
        for b in ZO:
            pool.free(b, 2)
        pool.free(OF, 8)
        assert not str_queue and not lds_pending and not inflight_str
        stamp()
        for i in range(16):
            assert (ACC + i) in pool.free_
            pool.free_.remove(ACC + i)
        lab = f'{pre}_{par}_nowarm'
        e(f's_cmp_lg_u32 {s(S_W)}, 3')
        e(f's_cbranch_scc1 {lab}')
        e.cond_begin()
        kx_dma(1, V_TA)
        e.cond_end()
        e.label(lab)
        for j in range(0, 16, 2):
            e(f'v_mov_b64 {v(ACC + j, 2)}, 0')
        e(f's_add_u32 {s(S_SH13)}, {s(S_SH13)}, {32 * 8192}')
        e(f's_add_u32 {s(S_STEP)}, {s(S_STEP)}, 1')
        nored = f'{pre}_{par}_nored'
        e(f's_cmp_ge_u32 {s(S_UNIT)}, 80')
        e(f's_cbranch_scc1 {nored}')
        RB = pool.must(16)
        RA = pool.must(8)
        TM = pool.must(4)
        for j in range(4):
            e(f'v_mov_b32 {v(TM + j)}, -1')
        e.label(f'{pre}_{par}_pollK')
        for i in range(4):
            e(f'buffer_load_dwordx4 {v(RB + 4 * i, 4)}, {v(V_LANE16)}, {s(S_WS, 4)}, {s(S_PBLD)} offen offset:{1024 * i} sc1', tag=('rb', i))
        for i in range(4):
            e.wait_vm(('rb', i))
            cin = '0' if i == 0 else v(RA, 4)
            e(f'v_mfma_f32_16x16x32_bf16 {v(RA, 4)}, {v(V_SEL, 4)}, {v(RB + 4 * i, 4)}, {cin}')
        for j in range(4):
            e(f'v_add_f32_dpp {v(RA + 4 + j)}, {v(RA + j)}, {v(RA + j)} row_ror:8 row_mask:0xf bank_mask:0xf')
        e(f'v_cmp_u_f32 vcc, {v(RA + 4)}, {v(RA + 4)}')
        e(f'v_cvt_pk_bf16_f32 {v(RA)}, {v(RA + 4)}, {v(RA + 5)}')
        e(f'v_cvt_pk_bf16_f32 {v(RA + 1)}, {v(RA + 6)}, {v(RA + 7)}')
        e(f's_cbranch_vccz {pre}_{par}_okK')
        e(f'v_max3_u32 {v(RA + 2)}, {v(RB)}, {v(RB + 1)}, {v(RB + 2)}')
        for j in range(3, 15, 2):
            e(f'v_max3_u32 {v(RA + 2)}, {v(RA + 2)}, {v(RB + j)}, {v(RB + j + 1)}')
        e(f'v_max_u32 {v(RA + 2)}, {v(RA + 2)}, {v(RB + 15)}')
        e(f'v_cmp_eq_u32 vcc, -1, {v(RA + 2)}')
        e(f's_cbranch_vccnz {pre}_{par}_pollK')
        e.label(f'{pre}_{par}_okK')
        e(f'buffer_store_dwordx2 {v(RA, 2)}, {v(V_MBST)}, {s(S_WS, 4)}, {s(S_MBN)} offen {sc}', tag='mst')
        stamp()
        for i in range(4):
            e(f'buffer_store_dwordx4 {v(TM, 4)}, {v(V_LANE16)}, {s(S_WS, 4)}, {s(S_PBLD)} offen offset:{1024 * i} {sc}', tag='rst')
        e(f'buffer_store_dwordx2 {v(TM, 2)}, {v(V_MBST)}, {s(S_WS, 4)}, {s(S_MBC)} offen {sc}', tag='rst')
        pool.free(RB, 16)
        pool.free(RA, 8)
        pool.free(TM, 4)
        e.label(nored)
        for p in range(5):
            e(f's_xor_b32 {s(S_PBST + p)}, {s(S_PBST + p)}, {PB_STRIDE}')
        e(f's_xor_b32 {s(S_PBLD)}, {s(S_PBLD)}, {PB_STRIDE}')
        e(f's_add_u32 {s(S_MSL)}, {s(S_MSL)}, {MB_STRIDE}')
        e(f's_and_b32 {s(S_MSL)}, {s(S_MSL)}, {3 * MB_STRIDE}')
        for i in range(3):
            e(f's_add_u32 {s(S_MBP + i)}, {s(S_MBB + i)}, {s(S_MSL)}')
        e(f's_mov_b32 {s(S_MBC)}, {s(S_MBN)}')
        e(f's_add_u32 {s(S_T0)}, {s(S_MSL)}, {MB_STRIDE}')
        e(f's_and_b32 {s(S_T0)}, {s(S_T0)}, {3 * MB_STRIDE}')
        e(f's_add_u32 {s(S_MBN)}, {s(S_MBL)}, {s(S_T0)}')
        if stamps:
            stamp()
            e('s_waitcnt lgkmcnt(0)')
            e(f's_lshl_b32 {s(S_T0)}, {s(S_H)}, 2')
            e(f's_add_u32 {s(S_T0)}, {s(S_T0)}, {s(S_W)}')
            e(f's_lshl_b32 {s(S_T0)}, {s(S_T0)}, 6')
            e(f's_add_u32 {s(S_T0)}, {s(S_T0)}, {s(S_STEP)}')
            e(f's_lshl_b32 {s(S_T0)}, {s(S_T0)}, 6')
            e(f's_add_u32 {s(S_T0)}, {s(S_T0)}, {0x0F000000 - 64}')
            TS = pool.must(2)
            e(f'v_mov_b32 {v(TS + 1)}, 0')
            for i in range(stamp_i[0]):
                e(f'v_mov_b32 {v(TS)}, {s(S_STAMP + 2 * i)}')
                e(f'buffer_store_dword {v(TS)}, {v(TS + 1)}, {s(S_WS, 4)}, {s(S_T0)} offen offset:{4 * i}')
            pool.free(TS, 2)


    body(0, '', f'{name}_fast')
    e(f's_branch {name}_fast_0')
    if slow:
        body(0, 'sc1', f'{name}_slow')
        e(f's_branch {name}_slow_0')
    e.label(f'{name}_exit')
    e('s_endpgm')
    print(f'; chain2: n_reg={n_reg} n_lds={n_lds} n_str={n_str} pool peak={pool.peak} of {pool_end - NPERS}')


if __name__ == '__main__':
    import argparse
    ap = argparse.ArgumentParser()
    ap.add_argument('--out', default='chain_test.s')
    ap.add_argument('--stamps', action='store_true')
    ap.add_argument('--pool', type=int, default=96)
    ap.add_argument('--nlds', type=int, default=17)
    ap.add_argument('--maxstr', type=int, default=3)
    ap.add_argument('--naf', type=int, default=3)
    ap.add_argument('--nv1', type=int, default=12)
    ap.add_argument('--lalds', type=int, default=5)
    ap.add_argument('--nsb', type=int, default=6)
    ap.add_argument('--noa', type=int, default=2)
    ap.add_argument('--dbg', default='')
    ap.add_argument('--nsteps', type=int, default=64)
    ap.add_argument('--ldfl', default='')
    ap.add_argument('--ostfl', default='')
    ap.add_argument('--strfl', default='')
    args = ap.parse_args()
    em = Em()
    gen_chain(em, stamps=args.stamps, pool_end=args.pool, n_lds=args.nlds, max_str=args.maxstr, naf=args.naf,
              nv1=args.nv1, la_lds=args.lalds, nsb=args.nsb, noa=args.noa, dbg=args.dbg, nsteps=args.nsteps, ldfl=args.ldfl, ostfl=args.ostfl,
              str_flags=tuple(x if x != '-' else '' for x in args.strfl.split(',')) if args.strfl else ())
    hdr = '; @launch kernel=chain_kernel grid=(256,1,1) block=(256,1,1) lds=163840\n'
    hdr += '.amdgcn_target "amdgcn-amd-amdhsa--gfx950"\n.text\n.globl chain_kernel\n'
    open(args.out, 'w').write(hdr + em.text() + kd('chain_kernel', 512, 256))
```

```python
from emit import *


class Gemm:
    def __init__(self, e, BM, panels, wgm, wgn, KT, xstride, nstage=3, vbase=0, sbase=60, lds_base=0,
                 acc_base=256, ldfl=''):
        self.e = e
        self.BM, self.panels, self.wgm, self.wgn, self.KT = BM, panels, wgm, wgn, KT
        self.xstride = xstride
        self.nstage = nstage
        self.WM = BM // wgm
        self.MT = self.WM // 16
        self.ldfl = ldfl
        self.tiles = []
        for pi, (_, _, pw) in enumerate(panels):
            assert (pw // 16) % wgn == 0
            for a_ in range(pw // 16 // wgn):
                self.tiles.append((pi, a_))
        self.NT = len(self.tiles)
        self.xbytes = BM * 128
        self.poff = []
        o = self.xbytes
        for (_, _, pw) in panels:
            self.poff.append(o)
            o += 64 * pw * 2
        self.stage = o
        self.lds_base = lds_base
        self.lds_bytes = o * nstage
        self.acc = acc_base
        b = vbase
        self.v_xg = b
        self.v_wg = b + 2
        b += 2 + 2 * len(panels)
        self.v_xa = b
        b += 2
        self.v_wa = b
        b += self.NT
        b = (b + 3) // 4 * 4
        self.v_fx = b
        b += 2 * self.MT * 4
        self.v_fw = b
        b += 2 * self.NT * 4
        self.v_end = b
        self.s_x = sbase
        self.s_w = sbase + 1
        self.s_t = sbase + 1 + len(panels)
        self.s_kt = self.s_t + 1
        self.s_wr = self.s_t + 2
        self.s_end = self.s_t + 4

    def accr(self, mi, ni):
        return self.acc + (mi * self.NT + ni) * 4

    def setup(self, v_lane, s_wave, tmp):
        e = self.e
        t0, t1, t2, t3, t4, t5 = [tmp + i for i in range(6)]
        st = self.s_t
        e(f'v_lshrrev_b32 {v(t0)}, 3, {v(v_lane)}')
        e(f's_mov_b32 {s(st)}, {self.xstride}')
        e(f'v_mul_lo_u32 {v(t0)}, {v(t0)}, {s(st)}')
        e(f'v_and_b32 {v(t1)}, 7, {v(v_lane)}')
        e(f'v_lshrrev_b32 {v(t2)}, 4, {v(v_lane)}')
        e(f'v_xor_b32 {v(t3)}, {v(t1)}, {v(t2)}')
        e(f'v_lshl_add_u32 {v(self.v_xg)}, {v(t3)}, 4, {v(t0)}')
        e(f'v_xor_b32 {v(t3)}, 4, {v(t3)}')
        e(f'v_lshl_add_u32 {v(self.v_xg + 1)}, {v(t3)}, 4, {v(t0)}')
        for pi, (_, ws, pw) in enumerate(self.panels):
            vg = self.v_wg + 2 * pi
            e(f's_mov_b32 {s(st)}, {ws}')
            e(f'v_and_b32 {v(t4)}, 1, {v(v_lane)}')
            e(f'v_lshlrev_b32 {v(t4)}, 4, {v(t4)}')
            if pw == 128:
                e(f'v_mul_lo_u32 {v(t0)}, {v(t2)}, {s(st)}')
                e(f'v_add_u32 {v(t0)}, {v(t0)}, {v(t4)}')
                e(f'v_bfe_u32 {v(t3)}, {v(v_lane)}, 1, 3')
                e(f'v_xor_b32 {v(t3)}, {v(t3)}, {v(t2)}')
                e(f'v_lshl_add_u32 {v(vg)}, {v(t3)}, 5, {v(t0)}')
                e(f'v_xor_b32 {v(t3)}, 4, {v(t3)}')
                e(f'v_lshl_add_u32 {v(vg + 1)}, {v(t3)}, 5, {v(t0)}')
            else:
                e(f'v_lshrrev_b32 {v(t0)}, 3, {v(v_lane)}')
                e(f'v_mul_lo_u32 {v(t0)}, {v(t0)}, {s(st)}')
                e(f'v_add_u32 {v(t0)}, {v(t0)}, {v(t4)}')
                e(f'v_bfe_u32 {v(t3)}, {v(v_lane)}, 1, 2')
                e(f'v_xor_b32 {v(t3)}, {v(t3)}, {v(t2)}')
                e(f'v_lshl_add_u32 {v(vg)}, {v(t3)}, 5, {v(t0)}')
                e(f'v_mov_b32 {v(vg + 1)}, {v(vg)}')
        e(f'v_and_b32 {v(t0)}, 15, {v(v_lane)}')
        e(f'v_lshrrev_b32 {v(t1)}, 1, {v(t0)}')
        e(f'v_xor_b32 {v(t1)}, {v(t1)}, {v(t2)}')
        e(f'v_lshlrev_b32 {v(t1)}, 4, {v(t1)}')
        e(f'v_lshl_add_u32 {v(t1)}, {v(t0)}, 7, {v(t1)}')
        lg = {1: 0, 2: 1, 4: 2}[self.wgn]
        e(f's_lshr_b32 {s(st)}, {s(s_wave)}, {lg}')
        e(f's_mul_i32 {s(st)}, {s(st)}, {self.WM * 128}')
        e(f's_add_u32 {s(st)}, {s(st)}, {self.lds_base}')
        e(f'v_add_u32 {v(self.v_xa)}, {s(st)}, {v(t1)}')
        e(f'v_xor_b32 {v(self.v_xa + 1)}, 64, {v(self.v_xa)}')
        e(f'v_bfe_u32 {v(t0)}, {v(v_lane)}, 2, 2')
        e(f'v_lshl_add_u32 {v(t0)}, {v(t2)}, 2, {v(t0)}')
        e(f'v_and_b32 {v(t1)}, 3, {v(v_lane)}')
        e(f'v_lshlrev_b32 {v(t1)}, 3, {v(t1)}')
        for ni, (pi, a_) in enumerate(self.tiles):
            pw = self.panels[pi][2]
            per = pw // 16 // self.wgn
            e(f's_and_b32 {s(st)}, {s(s_wave)}, {self.wgn - 1}')
            e(f's_mul_i32 {s(st)}, {s(st)}, {per}')
            e(f's_add_u32 {s(st)}, {s(st)}, {a_}')
            if pw == 128:
                e(f'v_and_b32 {v(t3)}, 7, {v(t0)}')
                e(f'v_xor_b32 {v(t3)}, {s(st)}, {v(t3)}')
                e(f'v_lshl_add_u32 {v(t3)}, {v(t3)}, 5, {v(t1)}')
                e(f'v_lshl_add_u32 {v(t3)}, {v(t0)}, 8, {v(t3)}')
            else:
                e(f'v_bfe_u32 {v(t3)}, {v(t0)}, 1, 2')
                e(f'v_xor_b32 {v(t3)}, {s(st)}, {v(t3)}')
                e(f'v_lshl_add_u32 {v(t3)}, {v(t3)}, 5, {v(t1)}')
                e(f'v_lshl_add_u32 {v(t3)}, {v(t0)}, 7, {v(t3)}')
            e(f'v_add_u32 {v(self.v_wa + ni)}, {self.lds_base + self.poff[pi]}, {v(t3)}')
        self.s_wave = s_wave

    def dma_items(self, s_xsrd, stage_idx, tag):
        e = self.e
        items = []
        base = self.lds_base + stage_idx * self.stage
        nx = self.BM // 8 // 4
        for i in range(nx):
            def f(i=i):
                e(f's_add_u32 m0, {s(self.s_wr)}, {base + i * 1024}')
                if i:
                    e(f's_add_u32 {s(self.s_t)}, {s(self.s_x)}, {i * 8 * self.xstride}')
                par = i & 1 if nx % 2 == 0 else None
                assert par is not None
                e(f'buffer_load_dwordx4 {v(self.v_xg + par)}, {s(s_xsrd, 4)}, {s(self.s_t if i else self.s_x)} offen {self.ldfl} lds', tag=tag)
            items.append(f)
        items.append(lambda: e(f's_add_u32 {s(self.s_x)}, {s(self.s_x)}, 128'))
        for pi, (srd, ws, pw) in enumerate(self.panels):
            rows = 4 if pw == 128 else 8
            n = 64 // rows // 4
            for i in range(n):
                def f(i=i, pi=pi, srd=srd, ws=ws, rows=rows, n=n):
                    e(f's_add_u32 m0, {s(self.s_wr + 1)}, {base + self.poff[pi] + i * 1024}')
                    if i:
                        e(f's_add_u32 {s(self.s_t)}, {s(self.s_w + pi)}, {i * rows * ws}')
                    e(f'buffer_load_dwordx4 {v(self.v_wg + 2 * pi + (i & 1))}, {s(srd, 4)}, {s(self.s_t if i else self.s_w + pi)} offen {self.ldfl} lds', tag=tag)
                items.append(f)
            items.append(lambda pi=pi, ws=ws: e(f's_add_u32 {s(self.s_w + pi)}, {s(self.s_w + pi)}, {64 * ws}'))
        return items

    def init_offsets(self, s_xrow_off, s_wcol_offs):
        e = self.e
        nx = self.BM // 8 // 4
        e(f's_mul_i32 {s(self.s_t)}, {s(self.s_wave)}, {nx * 8 * self.xstride}')
        e(f's_add_u32 {s(self.s_x)}, {s(s_xrow_off)}, {s(self.s_t)}')
        e(f's_mul_i32 {s(self.s_wr)}, {s(self.s_wave)}, {nx * 1024}')
        ns = set()
        for pi, (srd, ws, pw) in enumerate(self.panels):
            e(f's_mul_i32 {s(self.s_t)}, {s(self.s_wave)}, {16 * ws}')
            e(f's_add_u32 {s(self.s_w + pi)}, {s(s_wcol_offs[pi])}, {s(self.s_t)}')
            ns.add(4 if pw == 128 else 2)
        assert len(ns) == 1
        e(f's_mul_i32 {s(self.s_wr + 1)}, {s(self.s_wave)}, {ns.pop() * 1024}')

    def frag_items(self, ks, buf, tag):
        e = self.e
        items = []
        for mi in range(self.MT):
            items.append(lambda mi=mi: e(
                f'ds_read_b128 {v(self.v_fx + (buf * self.MT + mi) * 4, 4)}, {v(self.v_xa + ks)} offset:{mi * 2048}', tag=tag))
        for ni, (pi, a_) in enumerate(self.tiles):
            rb = self.panels[pi][2] * 2
            for m in range(2):
                items.append(lambda ni=ni, m=m, rb=rb: e(
                    f'ds_read_b64_tr_b16 {v(self.v_fw + (buf * self.NT + ni) * 4 + 2 * m, 2)}, {v(self.v_wa + ni)} offset:{(32 * ks + 16 * m) * rb}', tag=tag))
        return items

    def advance_items(self, delta):
        e = self.e
        it = []
        regs = [self.v_xa, self.v_xa + 1] + [self.v_wa + i for i in range(self.NT)]
        for r in regs:
            if delta >= 0:
                it.append(lambda r=r: e(f'v_add_u32 {v(r)}, {delta}, {v(r)}'))
            else:
                it.append(lambda r=r: e(f'v_subrev_u32 {v(r)}, {-delta}, {v(r)}'))
        return it

    def mfma_items(self, buf, orient, first):
        e = self.e
        it = []
        for mi in range(self.MT):
            for ni in range(self.NT):
                def f(mi=mi, ni=ni):
                    fx = v(self.v_fx + (buf * self.MT + mi) * 4, 4)
                    fw = v(self.v_fw + (buf * self.NT + ni) * 4, 4)
                    ac = u(self.accr(mi, ni), 4)
                    A, B = (fx, fw) if orient[ni] == 'N' else (fw, fx)
                    e(f'v_mfma_f32_16x16x32_bf16 {ac}, {A}, {B}, {"0" if first else ac}')
                it.append(f)
        return it

    def run(self, mf, side, ratio=1):
        side = list(side)
        for f in mf:
            f()
            for _ in range(ratio):
                if side:
                    side.pop(0)()
        for f in side:
            f()

    def mainloop(self, s_xsrd, orient, label):
        e = self.e
        NS, KT = self.nstage, self.KT
        for k in range(min(NS - 1, KT)):
            for f in self.dma_items(s_xsrd, k, ('st', k)):
                f()
        e.wait_vm(('st', 0))
        e('s_barrier')
        for f in self.frag_items(0, 0, 'f0'):
            f()

        def kstep(kt, first, has_next, issue):
            fr = self.frag_items(1, 1, 'f1')
            e.wait_lg('f0')
            self.run(self.mfma_items(0, orient, first), fr, 1)
            side = []
            if has_next:
                e.wait_vm(('st', kt + 1))
                e.wait_lg('f1')
                e('s_barrier')
                d = self.stage if (kt + 1) % NS else -(NS - 1) * self.stage
                side = self.advance_items(d) + self.frag_items(0, 0, 'f0')
                if issue:
                    side = self.dma_items(s_xsrd, (kt + NS - 1) % NS, ('st', kt + NS - 1)) + side
            else:
                e.wait_lg('f1')
            self.run(self.mfma_items(1, orient, False), side, 2)

        kt = 0
        kstep(0, True, KT > 1, NS - 1 < KT)
        kt = 1
        nreg = max(0, (KT - NS + 1) - kt)
        groups = nreg // NS
        if groups >= 2:
            e(f's_mov_b32 {s(self.s_kt)}, {groups}')
            e.label(label + '_loop')
            vm0 = list(e.vm)
            for j in range(NS):
                kstep(kt + j, False, True, True)
            e(f's_sub_u32 {s(self.s_kt)}, {s(self.s_kt)}, 1')
            e(f's_cmp_lg_u32 {s(self.s_kt)}, 0')
            e(f's_cbranch_scc1 {label}_loop')
            sh = (groups - 1) * NS
            e.vm = [(t[0], t[1] + sh) if isinstance(t, tuple) and t[0] == 'st' else t for t in e.vm]
            kt += groups * NS
        while kt < KT:
            kstep(kt, False, kt + 1 < KT, kt + NS - 1 < KT)
            kt += 1
        self.final_stage = (KT - 1) % NS
```

```python
WS_MOD = 0x00000000
WS_MB = 0x00010000
MB_STRIDE = 0x4000
WS_PB = 0x00100000
PB_STRIDE = 0x80000
WS_STR = 0x00400000
STR_HSTRIDE = 0x40000
STR_WSTRIDE = 0x10000
WS_KX = 0x01000000
WS_VXT = 0x02000000
WS_KM = 0x03000000
WS_VMT = 0x03800000
WS_H1 = 0x04000000
WS_O = 0x05000000
WS_X1 = 0x07000000
WS_HM = 0x08000000
WS_SIZE = 0x10000000
SENT = 0xFFFFFFFF
```

```python
from emit import *
from layout import *
from gen_chain import f32bits, kd
from gen_gemm import Gemm
import gen_chain2

WS_QX = 0x09000000
WS_H2 = 0x0A000000

KA = dict(x=0, mem0=8, wq=16, wk=24, wv=32, wo=40, w1=64, w3=72, w2=80, c=88, wmod=96, out=104, dbg=112, ws=120)
SIZES = dict(x=2621440, mem0=10240, wq=5242880, wk=5242880, wv=5242880, wo=5242880, w1=2211840, w3=2211840,
             w2=2211840, c=1280, wmod=4915200, out=2621440, dbg=256, ws=WS_SIZE)


def start(e, name, nwg):
    e.raw('.p2align 8')
    e.raw(f'.globl {name}')
    e.raw(f'.type {name},@function')
    e.label(name)
    e.hist = []
    e.vm = []
    e.lg = []
    e(f's_cmp_ge_u32 s2, {nwg}')
    e(f's_cbranch_scc1 {name}_exit')


def load_srds(e, specs, tmp=80):
    for i, (k, d) in enumerate(specs):
        e(f's_load_dwordx2 {s(tmp + 2 * i, 2)}, s[0:1], {KA[k]}')
    e('s_waitcnt lgkmcnt(0)')
    for i, (k, d) in enumerate(specs):
        e(f's_mov_b32 {s(d)}, {s(tmp + 2 * i)}')
        e(f's_and_b32 {s(d + 1)}, {s(tmp + 2 * i + 1)}, 0xffff')
        e(f's_mov_b32 {s(d + 2)}, {SIZES[k]}')
        e(f's_mov_b32 {s(d + 3)}, 0x20000')


def end(e, name):
    e.label(f'{name}_exit')
    e('s_endpgm')


def lane_wave(e, v_lane, s_wave, tmp):
    e(f'v_lshrrev_b32 {v(tmp)}, 6, v0')
    e(f'v_and_b32 {v(v_lane)}, 63, v0')
    e(f'v_readfirstlane_b32 {s(s_wave)}, {v(tmp)}')


LOG2E = 1.4426950408889634


def silu_inplace(e, x, t, s_nlog2e):
    e(f'v_mul_f32 {v(t)}, {s(s_nlog2e)}, {v(x)}')
    e(f'v_exp_f32 {v(t)}, {v(t)}')
    e(f'v_add_f32 {v(t)}, 1.0, {v(t)}')
    e(f'v_rcp_f32 {v(t)}, {v(t)}')
    e(f'v_mul_f32 {v(x)}, {v(x)}, {v(t)}')


def gen_prep(e, name='prep_kernel'):
    NG = 60
    NI = 68
    start(e, name, NG + NI)
    load_srds(e, [('c', 4), ('wmod', 8), ('ws', 12), ('mem0', 16)])
    e(f's_cmp_ge_u32 s2, {NG}')
    e(f's_cbranch_scc1 {name}_init')
    e('v_lshlrev_b32 v1, 1, v0')
    e('v_lshlrev_b32 v2, 2, v0')
    e(f's_mov_b32 s20, {f32bits(-LOG2E):#x}')
    for i in range(3):
        e(f'buffer_load_ushort {v(4 + i)}, v1, s[4:7], 0 offen offset:{512 * i}')
    e('v_and_b32 v8, 7, v0')
    e('v_lshrrev_b32 v9, 3, v0')
    e('v_mul_u32_u24 v10, 7680, v9')
    e('v_lshl_add_u32 v10, v8, 4, v10')
    e('s_lshl_b32 s21, s2, 7')
    for i in range(20):
        if i:
            e(f's_add_u32 s21, s21, {32 * 7680}')
        e(f'buffer_load_dwordx4 {v(32 + 4 * i, 4)}, v10, s[8:11], s21 offen', tag=('w', i))
    e('s_waitcnt vmcnt(20)')
    for i in range(3):
        e(f'v_lshlrev_b32 {v(4 + i)}, 16, {v(4 + i)}')
        silu_inplace(e, 4 + i, 7, 20)
        e(f'v_cvt_pk_bf16_f32 {v(4 + i)}, {v(4 + i)}, {v(4 + i)}')
        e(f'v_lshlrev_b32 {v(4 + i)}, 16, {v(4 + i)}')
        e(f'ds_write_b32 v2, {v(4 + i)} offset:{1024 * i}')
    e.wait_lg()
    e('s_barrier')
    e('v_lshlrev_b32 v11, 2, v9')
    for i in range(20):
        e(f'ds_read_b32 {v(112 + i)}, v11 offset:{128 * i}')
    for j in range(8):
        e(f'v_mov_b32 {v(16 + j)}, 0')
    e.wait_lg()
    for i in range(20):
        e.wait_vm(('w', i))
        for d in range(4):
            w = 32 + 4 * i + d
            e(f'v_lshlrev_b32 v12, 16, {v(w)}')
            e(f'v_and_b32 v13, 0xffff0000, {v(w)}')
            e(f'v_fmac_f32 {v(16 + 2 * d)}, v12, {v(112 + i)}')
            e(f'v_fmac_f32 {v(17 + 2 * d)}, v13, {v(112 + i)}')
    e('v_lshlrev_b32 v12, 8, v9')
    e('v_lshl_add_u32 v12, v8, 5, v12')
    e('ds_write_b128 v12, v[16:19] offset:4096')
    e('ds_write_b128 v12, v[20:23] offset:4112')
    e.wait_lg()
    e('s_barrier')
    e('v_cmp_gt_u32 vcc, 64, v0')
    e('s_and_saveexec_b64 s[22:23], vcc')
    e(f's_cbranch_execz {name}_exit')
    for i in range(32):
        e(f'ds_read_b32 {v(32 + i)}, v2 offset:{4096 + 256 * i}')
    e.wait_lg()
    for i in range(1, 32):
        e(f'v_add_f32 v32, v32, {v(32 + i)}')
    e('v_cvt_pk_bf16_f32 v32, v32, v32')
    e('v_lshlrev_b32 v32, 16, v32')
    e('s_lshl_b32 s21, s2, 8')
    e(f's_add_u32 s21, s21, {WS_MOD}')
    e('buffer_store_dword v32, v2, s[12:15], s21 offen')
    e(f's_branch {name}_exit')
    e.label(f'{name}_init')
    e(f's_sub_u32 s20, s2, {NG}')
    e('v_lshlrev_b32 v1, 4, v0')
    for j in range(4):
        e(f'v_mov_b32 {v(4 + j)}, -1')
    e('s_cmp_ge_u32 s20, 64')
    e(f's_cbranch_scc1 {name}_mb')
    e('s_lshl_b32 s21, s20, 14')
    e(f's_add_u32 s21, s21, {WS_PB}')
    for i in range(4):
        e(f'buffer_store_dwordx4 v[4:7], v1, s[12:15], s21 offen')
        if i < 3:
            e('s_add_u32 s21, s21, 4096')
    e(f's_branch {name}_exit')
    e.label(f'{name}_mb')
    e('s_sub_u32 s20, s20, 64')
    e('s_cmp_eq_u32 s20, 0')
    e(f's_cbranch_scc1 {name}_m0')
    e('s_lshl_b32 s21, s20, 14')
    e(f's_add_u32 s21, s21, {WS_MB}')
    for i in range(4):
        e(f'buffer_store_dwordx4 v[4:7], v1, s[12:15], s21 offen')
        if i < 3:
            e('s_add_u32 s21, s21, 4096')
    e(f's_branch {name}_exit')
    e.label(f'{name}_m0')
    for i in range(10):
        e(f'v_add_u32 v1, {256 * i}, v0')
        e('v_and_b32 v2, 1, v1')
        e('v_bfe_u32 v3, v1, 1, 2')
        e('v_bfe_u32 v4, v1, 3, 4')
        e('v_lshrrev_b32 v5, 7, v1')
        e('v_lshl_add_u32 v4, v2, 4, v4')
        e('v_lshl_add_u32 v4, v5, 5, v4')
        e('v_mul_u32_u24 v3, 2560, v3')
        e('v_lshl_add_u32 v3, v4, 1, v3')
        e(f'buffer_load_ushort {v(16 + 2 * i)}, v3, s[16:19], 0 offen')
        e(f'buffer_load_ushort {v(17 + 2 * i)}, v3, s[16:19], 0 offen offset:1280')
    e.wait_vm()
    e('v_lshlrev_b32 v1, 2, v0')
    e(f's_mov_b32 s21, {WS_MB}')
    for i in range(10):
        e(f'v_lshl_or_b32 {v(16 + 2 * i)}, {v(17 + 2 * i)}, 16, {v(16 + 2 * i)}')
        e(f'v_min_u32 {v(16 + 2 * i)}, 0xfffffffe, {v(16 + 2 * i)}')
        e(f'buffer_store_dword {v(16 + 2 * i)}, v1, s[12:15], s21 offen')
        e('s_add_u32 s21, s21, 1024')
    end(e, name)
    return dict(name=name, grid=NG + NI, lds=16384, vgpr=136, accum=136)


def wave_sum(e, x, t):
    for d in ('quad_perm:[1,0,3,2]', 'quad_perm:[2,3,0,1]', 'row_half_mirror', 'row_mirror'):
        e(f'v_add_f32_dpp {v(x)}, {v(x)}, {v(x)} {d} row_mask:0xf bank_mask:0xf')
    for sw_ in ('v_permlane16_swap_b32', 'v_permlane32_swap_b32'):
        e(f'v_mov_b32 {v(t)}, {v(x)}')
        e(f'{sw_} {v(x)}, {v(t)}')
        e(f'v_add_f32 {v(x)}, {v(x)}, {v(t)}')


def rnd2(e, a_, b_, t):
    e(f'v_cvt_pk_bf16_f32 {v(t)}, {v(a_)}, {v(b_)}')
    e(f'v_lshlrev_b32 {v(a_)}, 16, {v(t)}')
    e(f'v_and_b32 {v(b_)}, 0xffff0000, {v(t)}')


def gen_ln(e, name, src_is_x, dst_off, shift_idx, scale_idx):
    RPW = 2
    start(e, name, 256)
    load_srds(e, [('x', 4), ('ws', 8)])
    lane_wave(e, 1, 20, 2)
    src = 4 if src_is_x else 8
    soff = 0 if src_is_x else WS_X1
    e('s_lshl_b32 s21, s2, 2')
    e('s_add_u32 s21, s21, s20')
    e(f's_mul_i32 s21, s21, {RPW * 1280}')
    e(f's_add_u32 s22, s21, {soff}')
    e(f's_add_u32 s23, s21, {dst_off}')
    e('v_lshlrev_b32 v2, 2, v1')
    for r in range(RPW):
        for i in range(5):
            e(f'buffer_load_dword {v(16 + 5 * r + i)}, v2, {s(src, 4)}, s22 offen offset:{r * 1280 + 256 * i}', tag=('x', r))
    e('v_lshlrev_b32 v3, 3, v1')
    e(f's_mov_b32 s24, {WS_MOD + shift_idx * 2560}')
    e(f's_mov_b32 s25, {WS_MOD + scale_idx * 2560}')
    for i in range(5):
        e(f'buffer_load_dwordx2 {v(32 + 2 * i, 2)}, v3, s[8:11], s24 offen offset:{512 * i}', tag='m')
        e(f'buffer_load_dwordx2 {v(42 + 2 * i, 2)}, v3, s[8:11], s25 offen offset:{512 * i}', tag='m')
    e('v_bfe_u32 v4, v1, 1, 2')
    e('v_bfe_u32 v5, v1, 3, 1')
    e('v_and_b32 v6, 1, v1')
    e('v_lshl_add_u32 v6, v5, 1, v6')
    e('v_lshl_add_u32 v6, v4, 2, v6')
    e('v_and_b32 v4, 48, v1')
    e('v_add_u32 v6, v6, v4')
    e('v_lshlrev_b32 v6, 2, v6')
    e.wait_vm('m')
    for j in range(10):
        e(f'v_add_f32 {v(42 + j)}, 1.0, {v(42 + j)}')
    for j in range(0, 10, 2):
        rnd2(e, 42 + j, 43 + j, 7)
    e(f's_mov_b32 s26, {f32bits(1.0 / 640):#x}')
    e(f's_mov_b32 s27, {f32bits(1e-5):#x}')
    for r in range(RPW):
        X = 56
        for i in range(5):
            e(f'v_lshlrev_b32 {v(X + 2 * i)}, 16, {v(16 + 5 * r + i)}')
            e(f'v_and_b32 {v(X + 2 * i + 1)}, 0xffff0000, {v(16 + 5 * r + i)}')
        e(f'v_add_f32 v8, {v(X)}, {v(X + 1)}')
        for j in range(2, 10):
            e(f'v_add_f32 v8, v8, {v(X + j)}')
        wave_sum(e, 8, 9)
        e('v_mul_f32 v8, s26, v8')
        e('v_mov_b32 v10, 0')
        for j in range(10):
            e(f'v_sub_f32 v9, {v(X + j)}, v8')
            e('v_fmac_f32 v10, v9, v9')
        wave_sum(e, 10, 9)
        e('v_mul_f32 v10, s26, v10')
        rnd2(e, 8, 10, 7)
        e('v_add_f32 v10, s27, v10')
        rnd2(e, 10, 9, 7)
        e('v_sqrt_f32 v10, v10')
        rnd2(e, 10, 9, 7)
        e('v_rcp_f32 v10, v10')
        for j in range(0, 10, 2):
            a_, b_ = X + j, X + j + 1
            e(f'v_sub_f32 {v(a_)}, {v(a_)}, v8')
            e(f'v_sub_f32 {v(b_)}, {v(b_)}, v8')
            rnd2(e, a_, b_, 7)
            e(f'v_mul_f32 {v(a_)}, {v(a_)}, v10')
            e(f'v_mul_f32 {v(b_)}, {v(b_)}, v10')
            rnd2(e, a_, b_, 7)
            e(f'v_mul_f32 {v(a_)}, {v(a_)}, {v(42 + j)}')
            e(f'v_mul_f32 {v(b_)}, {v(b_)}, {v(43 + j)}')
            rnd2(e, a_, b_, 7)
            e(f'v_add_f32 {v(a_)}, {v(a_)}, {v(32 + j)}')
            e(f'v_add_f32 {v(b_)}, {v(b_)}, {v(33 + j)}')
            e(f'v_cvt_pk_bf16_f32 {v(a_)}, {v(a_)}, {v(b_)}')
            e(f'buffer_store_dword {v(a_)}, v6, s[8:11], s23 offen offset:{r * 1280 + 128 * j}')
    end(e, name)
    return dict(name=name, grid=256, lds=0, vgpr=72, accum=72)


def gen_qkv(e, name='qkv_kernel'):
    start(e, name, 768)
    load_srds(e, [('ws', 4), ('wq', 8), ('wk', 12), ('wv', 16)])
    lane_wave(e, 1, 20, 2)
    e('s_and_b32 s21, s2, 15')
    e('s_lshr_b32 s22, s2, 4')
    e('s_lshr_b32 s23, s22, 4')
    e('s_and_b32 s22, s22, 15')
    e('s_cmp_eq_u32 s23, 1')
    e('s_cselect_b32 s24, s12, s8')
    e('s_cselect_b32 s25, s13, s9')
    e('s_cmp_eq_u32 s23, 2')
    e('s_cselect_b32 s24, s16, s24')
    e('s_cselect_b32 s25, s17, s25')
    e('s_mov_b32 s26, 5242880')
    e('s_mov_b32 s27, 0x20000')
    G = Gemm(e, 128, [(24, 8192, 128), (24, 8192, 128)], 2, 2, 10, 1280, vbase=8, sbase=40)
    G.setup(1, 20, 2)
    e(f's_mul_i32 s28, s21, {128 * 1280}')
    e(f's_add_u32 s28, s28, {WS_H1}')
    e('s_lshl_b32 s29, s22, 9')
    e('s_add_u32 s30, s29, 256')
    G.init_offsets(28, [29, 30])
    e('s_cmp_eq_u32 s23, 2')
    e(f's_cbranch_scc1 {name}_v')
    st0 = (list(e.vm), list(e.lg))
    G.mainloop(4, ['T'] * G.NT, name + '_t')
    e('v_and_b32 v2, 15, v1')
    e('v_lshrrev_b32 v3, 4, v1')
    e('v_lshlrev_b32 v3, 4, v3')
    e('v_lshl_add_u32 v2, v2, 8, v3')
    e('s_lshr_b32 s31, s20, 1')
    e('s_and_b32 s32, s20, 1')
    e('s_lshl_b32 s33, s21, 2')
    e('s_lshl_b32 s31, s31, 1')
    e('s_add_u32 s33, s33, s31')
    e('s_lshl_b32 s33, s33, 5')
    e('s_lshl_b32 s34, s22, 1')
    e('s_add_u32 s33, s33, s34')
    e('s_lshl_b32 s33, s33, 13')
    e('s_lshl_b32 s32, s32, 7')
    e('s_add_u32 s33, s33, s32')
    e(f's_mov_b32 s34, {WS_QX}')
    e('s_cmp_eq_u32 s23, 1')
    e(f's_cselect_b32 s34, {WS_KX}, s34')
    e('s_add_u32 s33, s33, s34')
    T = G.v_fx
    k = 0
    for mi in range(4):
        for p in range(2):
            for ub in range(2):
                t = T + 8 * (k % 4)
                k += 1
                for hf in range(2):
                    ac = G.accr(mi, p * 4 + ub * 2 + hf) - 256
                    for j in range(4):
                        e(f'v_accvgpr_read_b32 {v(t + 4 + j)}, {a(ac + j)}')
                    e(f'v_cvt_pk_bf16_f32 {v(t + 2 * hf)}, {v(t + 4)}, {v(t + 5)}')
                    e(f'v_cvt_pk_bf16_f32 {v(t + 2 * hf + 1)}, {v(t + 6)}, {v(t + 7)}')
                off = (mi >> 1) * 32 * 8192 + p * 8192 + (mi & 1) * 4096 + ub * 64
                e(f's_add_u32 s35, s33, {off}')
                e(f'buffer_store_dwordx4 {v(t, 4)}, v2, s[4:7], s35 offen')
    e(f's_branch {name}_exit')
    e.label(f'{name}_v')
    e.hist = []
    e.vm, e.lg = st0
    G.mainloop(4, ['N'] * G.NT, name + '_n')
    e('v_lshlrev_b32 v2, 4, v1')
    e('s_lshr_b32 s31, s20, 1')
    e('s_and_b32 s32, s20, 1')
    e('s_lshl_b32 s33, s21, 2')
    e('s_lshl_b32 s31, s31, 1')
    e('s_add_u32 s33, s33, s31')
    e('s_lshl_b32 s33, s33, 5')
    e('s_lshl_b32 s34, s22, 1')
    e('s_add_u32 s33, s33, s34')
    e('s_lshl_b32 s33, s33, 13')
    e('s_lshl_b32 s32, s32, 12')
    e('s_add_u32 s33, s33, s32')
    e(f's_add_u32 s33, s33, {WS_VXT}')
    k = 0
    for sg in range(2):
        for p in range(2):
            for a_ in range(4):
                t = T + 8 * (k % 4)
                k += 1
                for hf in range(2):
                    ac = G.accr(sg * 2 + hf, p * 4 + a_) - 256
                    for j in range(4):
                        e(f'v_accvgpr_read_b32 {v(t + 4 + j)}, {a(ac + j)}')
                    e(f'v_cvt_pk_bf16_f32 {v(t + 2 * hf)}, {v(t + 4)}, {v(t + 5)}')
                    e(f'v_cvt_pk_bf16_f32 {v(t + 2 * hf + 1)}, {v(t + 6)}, {v(t + 7)}')
                off = sg * 32 * 8192 + p * 8192 + a_ * 1024
                e(f's_add_u32 s35, s33, {off}')
                e(f'buffer_store_dwordx4 {v(t, 4)}, v2, s[4:7], s35 offen')
    end(e, name)
    nv = (G.v_end + 3) // 4 * 4
    assert nv <= 256
    return dict(name=name, grid=768, lds=G.lds_bytes, vgpr=256 + 128, accum=256)


def gen_attn(e, name='attn_kernel'):
    start(e, name, 512)
    load_srds(e, [('ws', 4)])
    lane_wave(e, 1, 20, 2)
    e('s_lshl_b32 s21, s2, 2')
    e('s_add_u32 s21, s21, s20')
    e('v_and_b32 v2, 15, v1')
    e('v_lshrrev_b32 v3, 4, v1')
    e('v_lshlrev_b32 v4, 4, v3')
    e('v_lshl_add_u32 v4, v2, 8, v4')
    e('v_lshlrev_b32 v5, 4, v1')
    e('v_lshlrev_b32 v6, 3, v1')
    e('s_lshl_b32 s22, s21, 13')
    Q, KX_, KM_, VX_, VM_ = 16, 48, 80, 96, 128
    e(f's_add_u32 s23, s22, {WS_QX}')
    e(f's_add_u32 s24, s23, 4096')
    e(f's_add_u32 s25, s22, {WS_KX}')
    e(f's_add_u32 s26, s25, 4096')
    e('s_lshl_b32 s27, s21, 12')
    e(f's_add_u32 s27, s27, {WS_KM}')
    for uu in range(4):
        e(f'buffer_load_dwordx4 {v(Q + 4 * uu, 4)}, v4, s[4:7], s23 offen offset:{64 * uu}', tag='a')
        e(f'buffer_load_dwordx4 {v(KX_ + 4 * uu, 4)}, v4, s[4:7], s25 offen offset:{64 * uu}', tag='a')
        e(f'buffer_load_dwordx4 {v(KM_ + 4 * uu, 4)}, v4, s[4:7], s27 offen offset:{64 * uu}', tag='a')
    for uu in range(4):
        e(f'buffer_load_dwordx4 {v(Q + 16 + 4 * uu, 4)}, v4, s[4:7], s24 offen offset:{64 * uu}', tag='b')
        e(f'buffer_load_dwordx4 {v(KX_ + 16 + 4 * uu, 4)}, v4, s[4:7], s26 offen offset:{64 * uu}', tag='b')
    e(f's_add_u32 s28, s22, {WS_VXT}')
    e(f's_add_u32 s29, s28, 4096')
    for et in range(8):
        e(f'buffer_load_dwordx4 {v(VX_ + 4 * et, 4)}, v5, s[4:7], {"s28" if et < 4 else "s29"} offen offset:{1024 * (et & 3)}', tag='v')
    e('s_lshl_b32 s30, s21, 11')
    e(f's_add_u32 s30, s30, {WS_VMT}')
    for w in range(4):
        e(f'buffer_load_dwordx2 {v(VM_ + 2 * w, 2)}, v6, s[4:7], s30 offen offset:{512 * w}', tag='v')
    e('v_lshlrev_b32 v7, 2, v3')
    for j in range(4):
        e(f'v_add_u32 v8, {j}, v7')
        e(f'v_cmp_le_u32 {s(32 + 2 * j, 2)}, v8, v2')
    e('s_mov_b32 s40, -1')
    e('s_mov_b32 s41, 0')
    cc = f32bits((128 ** -0.5) * LOG2E)
    e(f's_mov_b32 s42, {cc:#x}')
    e(f's_mov_b32 s43, {cc:#x}')
    ONES, NEG = 136, 140
    for j in range(4):
        e(f'v_mov_b32 {v(ONES + j)}, 0x3f803f80')
    e(f'v_mov_b32 {v(NEG)}, 0xf149f2ca')
    e('v_lshlrev_b32 v9, 4, v3')
    e('v_lshl_add_u32 v9, v2, 13, v9')
    e('s_lshr_b32 s44, s21, 5')
    e('s_and_b32 s45, s21, 31')
    e('s_lshl_b32 s44, s44, 18')
    e('s_lshl_b32 s45, s45, 8')
    e('s_add_u32 s44, s44, s45')
    e(f's_add_u32 s44, s44, {WS_O}')
    S, M, P, PM, OA = 144, 156, 160, 164, 168
    for tq in range(2):
        e.wait_vm('a' if tq == 0 else 'b')
        for uu in range(4):
            q = v(Q + 16 * tq + 4 * uu, 4)
            c0 = (lambda r: '0' if uu == 0 else v(r, 4))
            e(f'v_mfma_f32_16x16x32_bf16 {v(S, 4)}, {v(KX_ + 4 * uu, 4)}, {q}, {c0(S)}')
            if tq == 1:
                e(f'v_mfma_f32_16x16x32_bf16 {v(S + 4, 4)}, {v(KX_ + 16 + 4 * uu, 4)}, {q}, {c0(S + 4)}')
            e(f'v_mfma_f32_16x16x32_bf16 {v(S + 8, 4)}, {v(KM_ + 4 * uu, 4)}, {q}, {c0(S + 8)}')
        dg = S + 4 * tq
        for j in range(4):
            e(f'v_cndmask_b32 {v(dg + j)}, {v(NEG)}, {v(dg + j)}, {s(32 + 2 * j, 2)}')
        C0 = S + 8
        e(f'v_cndmask_b32 {v(C0)}, {v(C0 + 2)}, {v(C0)}, s[40:41]')
        e(f'v_cndmask_b32 {v(C0 + 1)}, {v(C0 + 3)}, {v(C0 + 1)}, s[40:41]')
        vals = [S + j for j in range(4 * (tq + 1))] + [C0, C0 + 1]
        e(f'v_max3_f32 {v(M)}, {v(vals[0])}, {v(vals[1])}, {v(vals[2])}')
        i = 3
        while i + 1 < len(vals):
            e(f'v_max3_f32 {v(M)}, {v(M)}, {v(vals[i])}, {v(vals[i + 1])}')
            i += 2
        if i < len(vals):
            e(f'v_max_f32 {v(M)}, {v(M)}, {v(vals[i])}')
        for sw_ in ('v_permlane32_swap_b32', 'v_permlane16_swap_b32'):
            e(f'v_mov_b32 {v(M + 1)}, {v(M)}')
            e(f'{sw_} {v(M)}, {v(M + 1)}')
            e(f'v_max_f32 {v(M)}, {v(M)}, {v(M + 1)}')
        e(f'v_mul_f32 {v(M)}, s42, {v(M)}')
        for x in vals[::2]:
            e(f'v_pk_fma_f32 {v(x, 2)}, {v(x, 2)}, s[42:43], {v(M, 2)} op_sel_hi:[1,1,0] neg_lo:[0,0,1] neg_hi:[0,0,1]')
        for x in vals:
            e(f'v_exp_f32 {v(x)}, {v(x)}')
        for j in range(2 * (tq + 1)):
            e(f'v_cvt_pk_bf16_f32 {v(P + j)}, {v(S + 2 * j)}, {v(S + 2 * j + 1)}')
        if tq == 0:
            e(f'v_mov_b32 {v(P + 2)}, 0')
            e(f'v_mov_b32 {v(P + 3)}, 0')
            e(f'v_mov_b32 {v(PM + 1)}, 0')
            e(f'v_mov_b32 {v(PM + 2)}, 0')
        e(f'v_cvt_pk_bf16_f32 {v(PM)}, {v(C0)}, {v(C0 + 1)}')
        e(f'v_cvt_pk_bf16_f32 {v(PM + 3)}, {v(C0)}, {v(C0 + 1)}')
        e.wait_vm('v')
        L = OA + 32
        e(f'v_mfma_f32_16x16x32_bf16 {v(L, 4)}, {v(ONES, 4)}, {v(P, 4)}, 0')
        for et in range(8):
            e(f'v_mfma_f32_16x16x32_bf16 {v(OA + 4 * et, 4)}, {v(VX_ + 4 * et, 4)}, {v(P, 4)}, 0')
        e(f'v_mfma_f32_16x16x16_bf16 {v(L, 4)}, {v(ONES, 2)}, {v(PM, 2)}, {v(L, 4)}')
        for et in range(8):
            e(f'v_mfma_f32_16x16x16_bf16 {v(OA + 4 * et, 4)}, {v(VM_ + 2 * (et >> 1), 2)}, {v(PM + 2 * (et & 1), 2)}, {v(OA + 4 * et, 4)}')
        e(f'v_rcp_f32 {v(M)}, {v(L)}')
        if tq:
            e(f's_add_u32 s44, s44, {16 * 8192}')
        for ub in range(4):
            o = OA + 8 * ub
            for j in range(0, 8, 2):
                e(f'v_pk_mul_f32 {v(o + j, 2)}, {v(o + j, 2)}, {v(M, 2)} op_sel_hi:[1,0]')
            for j in range(4):
                e(f'v_cvt_pk_bf16_f32 {v(o + j)}, {v(o + 2 * j)}, {v(o + 2 * j + 1)}')
            e(f'buffer_store_dwordx4 {v(o, 4)}, v9, s[4:7], s44 offen offset:{64 * ub}')
    end(e, name)
    return dict(name=name, grid=512, lds=0, vgpr=208, accum=208)


def gen_proj(e, name, wkey, xoff, xstride, KT, gate_idx, res_is_x, out_is_ws):
    start(e, name, 160)
    load_srds(e, [('ws', 4), (wkey, 8), ('x', 12), ('out', 16)])
    lane_wave(e, 1, 20, 2)
    e('s_and_b32 s21, s2, 31')
    e('s_lshr_b32 s22, s2, 5')
    G = Gemm(e, 64, [(8, 1280, 128)], 2, 2, KT, xstride, nstage=4, vbase=8, sbase=40, acc_base=128)
    G.setup(1, 20, 2)
    e(f's_mul_i32 s28, s21, {64 * xstride}')
    e(f's_add_u32 s28, s28, {xoff}')
    e('s_lshl_b32 s29, s22, 8')
    G.init_offsets(28, [29])
    e('v_and_b32 v2, 15, v1')
    e('v_lshrrev_b32 v3, 4, v1')
    e('v_mul_u32_u24 v4, 1280, v2')
    e('v_lshl_add_u32 v4, v3, 3, v4')
    e('v_lshlrev_b32 v5, 4, v3')
    e('s_lshr_b32 s31, s20, 1')
    e('s_and_b32 s32, s20, 1')
    e('s_lshl_b32 s33, s21, 1')
    e('s_add_u32 s33, s33, s31')
    e(f's_mul_i32 s33, s33, {32 * 1280}')
    e('s_lshl_b32 s34, s32, 7')
    e('s_add_u32 s34, s34, s29')
    e('s_add_u32 s33, s33, s34')
    e('s_lshl_b32 s34, s34, 1')
    e(f's_add_u32 s34, s34, {WS_MOD + gate_idx * 2560}')
    RES, GT = 96, 112
    rs = 12 if res_is_x else 4
    e(f's_add_u32 s35, s33, {0 if res_is_x else WS_X1}')
    e(f's_add_u32 s36, s35, {16 * 1280}')
    for mi in range(2):
        for a_ in range(4):
            e(f'buffer_load_dwordx2 {v(RES + (mi * 4 + a_) * 2, 2)}, v4, {s(rs, 4)}, {"s35" if mi == 0 else "s36"} offen offset:{32 * a_}', tag='r')
    for a_ in range(4):
        e(f'buffer_load_dwordx4 {v(GT + 4 * a_, 4)}, v5, s[4:7], s34 offen offset:{64 * a_}', tag='r')
    assert G.v_end <= RES
    G.mainloop(4, ['T'] * G.NT, name)
    od = 4 if out_is_ws else 16
    e(f's_add_u32 s35, s33, {WS_X1 if out_is_ws else 0}')
    e(f's_add_u32 s36, s35, {16 * 1280}')
    for mi in range(2):
        for a_ in range(4):
            ac = G.accr(mi, a_)
            r = RES + (mi * 4 + a_) * 2
            for h in range(2):
                x0, x1 = ac + 2 * h, ac + 2 * h + 1
                rnd2(e, x0, x1, 6)
                e(f'v_mul_f32 {v(x0)}, {v(x0)}, {v(GT + 4 * a_ + 2 * h)}')
                e(f'v_mul_f32 {v(x1)}, {v(x1)}, {v(GT + 4 * a_ + 2 * h + 1)}')
                rnd2(e, x0, x1, 6)
                e(f'v_lshlrev_b32 v6, 16, {v(r + h)}')
                e(f'v_and_b32 v7, 0xffff0000, {v(r + h)}')
                e(f'v_add_f32 {v(x0)}, {v(x0)}, v6')
                e(f'v_add_f32 {v(x1)}, {v(x1)}, v7')
                e(f'v_cvt_pk_bf16_f32 {v(r + h)}, {v(x0)}, {v(x1)}')
            e(f'buffer_store_dwordx2 {v(r, 2)}, v4, {s(od, 4)}, {"s35" if mi == 0 else "s36"} offen offset:{32 * a_}')
    end(e, name)
    return dict(name=name, grid=160, lds=G.lds_bytes, vgpr=160, accum=160)


def gen_up(e, name='up_kernel'):
    start(e, name, 216)
    load_srds(e, [('ws', 4), ('w1', 8), ('w3', 12)])
    lane_wave(e, 1, 20, 2)
    e('s_and_b32 s21, s2, 7')
    e('s_lshr_b32 s22, s2, 3')
    G = Gemm(e, 256, [(8, 3456, 64), (12, 3456, 64)], 2, 2, 10, 1280, vbase=8, sbase=40)
    G.setup(1, 20, 2)
    e(f's_mul_i32 s28, s21, {256 * 1280}')
    e(f's_add_u32 s28, s28, {WS_H2}')
    e('s_lshl_b32 s29, s22, 7')
    e('s_mov_b32 s30, s29')
    G.init_offsets(28, [29, 30])
    G.mainloop(4, ['T'] * G.NT, name)
    e('v_and_b32 v2, 15, v1')
    e('v_lshrrev_b32 v3, 4, v1')
    e('v_mul_u32_u24 v4, 3456, v2')
    e('v_lshl_add_u32 v4, v3, 4, v4')
    e('s_lshr_b32 s31, s20, 1')
    e('s_and_b32 s32, s20, 1')
    e('s_lshl_b32 s33, s21, 1')
    e('s_add_u32 s33, s33, s31')
    e(f's_mul_i32 s33, s33, {128 * 3456}')
    e('s_lshl_b32 s34, s32, 6')
    e('s_add_u32 s34, s34, s29')
    e('s_add_u32 s33, s33, s34')
    e(f's_add_u32 s33, s33, {WS_HM}')
    e(f's_mov_b32 s37, {f32bits(-LOG2E):#x}')
    T = G.v_fx
    for mi in range(8):
        t = T + 24 * (mi & 1)
        o = t + 16
        for a_ in range(2):
            ag = G.accr(mi, a_) - 256
            au = G.accr(mi, 2 + a_) - 256
            gv, uv = t + 8 * a_, t + 8 * a_ + 4
            for j in range(4):
                e(f'v_accvgpr_read_b32 {v(gv + j)}, {a(ag + j)}')
                e(f'v_accvgpr_read_b32 {v(uv + j)}, {a(au + j)}')
            for h in range(2):
                g0, g1, u0, u1 = gv + 2 * h, gv + 2 * h + 1, uv + 2 * h, uv + 2 * h + 1
                rnd2(e, g0, g1, 6)
                rnd2(e, u0, u1, 6)
                silu_inplace(e, g0, 6, 37)
                silu_inplace(e, g1, 7, 37)
                rnd2(e, g0, g1, 6)
                e(f'v_mul_f32 {v(g0)}, {v(g0)}, {v(u0)}')
                e(f'v_mul_f32 {v(g1)}, {v(g1)}, {v(u1)}')
                e(f'v_cvt_pk_bf16_f32 {v(o + 2 * a_ + h)}, {v(g0)}, {v(g1)}')
        e(f'buffer_store_dwordx4 {v(o, 4)}, v4, s[4:7], s33 offen')
        if mi < 7:
            e(f's_add_u32 s33, s33, {16 * 3456}')
    end(e, name)
    return dict(name=name, grid=216, lds=G.lds_bytes, vgpr=256 + 128, accum=256)


if __name__ == '__main__':
    import argparse
    ap = argparse.ArgumentParser()
    ap.add_argument('--out', default='all.s')
    ap.add_argument('--upto', type=int, default=99)
    args = ap.parse_args()
    e = Em()
    ks = []
    ks.append(gen_prep(e))
    ks.append(gen_ln(e, 'ln1_kernel', True, WS_H1, 0, 1))
    ks.append(gen_qkv(e))
    e.raw('.globl chain_kernel')
    e.hist = []; e.vm = []; e.lg = []
    gen_chain2.gen_chain(e, pool_end=88, ldfl='nt', ostfl='nt', str_flags=('sc1',) * 16)
    ks.append(dict(name='chain_kernel', grid=256, lds=163840, vgpr=512, accum=256))
    ks.append(gen_attn(e))
    ks.append(gen_proj(e, 'wo_kernel', 'wo', WS_O, 8192, 64, 2, True, True))
    ks.append(gen_ln(e, 'ln2_kernel', False, WS_H2, 3, 4))
    ks.append(gen_up(e))
    ks.append(gen_proj(e, 'down_kernel', 'w2', WS_HM, 3456, 27, 5, False, False))
    hdr = ''
    for k in ks[:args.upto]:
        hdr += f"; @launch kernel={k['name']} grid=({k['grid']},1,1) block=(256,1,1) lds={k['lds']}\n"
    hdr += '.amdgcn_target "amdgcn-amd-amdhsa--gfx950"\n.text\n'
    open(args.out, 'w').write(hdr + e.text() + ''.join(kd(k['name'], k['vgpr'], k['accum']) for k in ks))
```

```python
from emit import *
from layout import *
from gen_chain import f32bits, kd
from gen_gemm import Gemm
import gen_chain2


KA = dict(x=0, mem0=8, wq=16, wk=24, wv=32, wo=40, w1=64, w3=72, w2=80, c=88, wmod=96, out=104, dbg=112, ws=120)
SIZES = dict(x=2621440, mem0=10240, wq=5242880, wk=5242880, wv=5242880, wo=5242880, w1=2211840, w3=2211840,
             w2=2211840, c=1280, wmod=4915200, out=2621440, dbg=256, ws=WS_SIZE)


def start(e, name, nwg):
    e.raw('.p2align 8')
    e.raw(f'.globl {name}')
    e.raw(f'.type {name},@function')
    e.label(name)
    e.hist = []
    e.vm = []
    e.lg = []
    e(f's_cmp_ge_u32 s2, {nwg}')
    e(f's_cbranch_scc1 {name}_exit')


def load_srds(e, specs, tmp=80):
    for i, (k, d) in enumerate(specs):
        e(f's_load_dwordx2 {s(tmp + 2 * i, 2)}, s[0:1], {KA[k]}')
    e('s_waitcnt lgkmcnt(0)')
    for i, (k, d) in enumerate(specs):
        e(f's_mov_b32 {s(d)}, {s(tmp + 2 * i)}')
        e(f's_and_b32 {s(d + 1)}, {s(tmp + 2 * i + 1)}, 0xffff')
        e(f's_mov_b32 {s(d + 2)}, {SIZES[k]}')
        e(f's_mov_b32 {s(d + 3)}, 0x20000')


def end(e, name):
    e.label(f'{name}_exit')
    e('s_endpgm')


def lane_wave(e, v_lane, s_wave, tmp):
    e(f'v_lshrrev_b32 {v(tmp)}, 6, v0')
    e(f'v_and_b32 {v(v_lane)}, 63, v0')
    e(f'v_readfirstlane_b32 {s(s_wave)}, {v(tmp)}')


LOG2E = 1.4426950408889634


def silu_inplace(e, x, t, s_nlog2e):
    e(f'v_mul_f32 {v(t)}, {s(s_nlog2e)}, {v(x)}')
    e(f'v_exp_f32 {v(t)}, {v(t)}')
    e(f'v_add_f32 {v(t)}, 1.0, {v(t)}')
    e(f'v_rcp_f32 {v(t)}, {v(t)}')
    e(f'v_mul_f32 {v(x)}, {v(x)}, {v(t)}')


def gen_prep(e, name='prep_kernel', zero_ctr=False):
    NG = 60
    NI = 68
    start(e, name, NG + NI)
    load_srds(e, [('c', 4), ('wmod', 8), ('ws', 12), ('mem0', 16)])
    e(f's_cmp_ge_u32 s2, {NG}')
    e(f's_cbranch_scc1 {name}_init')
    e('v_lshlrev_b32 v1, 1, v0')
    e('v_lshlrev_b32 v2, 2, v0')
    e(f's_mov_b32 s20, {f32bits(-LOG2E):#x}')
    for i in range(3):
        e(f'buffer_load_ushort {v(4 + i)}, v1, s[4:7], 0 offen offset:{512 * i}')
    e('v_and_b32 v8, 7, v0')
    e('v_lshrrev_b32 v9, 3, v0')
    e('v_mul_u32_u24 v10, 7680, v9')
    e('v_lshl_add_u32 v10, v8, 4, v10')
    e('s_lshl_b32 s21, s2, 7')
    for i in range(20):
        if i:
            e(f's_add_u32 s21, s21, {32 * 7680}')
        e(f'buffer_load_dwordx4 {v(32 + 4 * i, 4)}, v10, s[8:11], s21 offen', tag=('w', i))
    e('s_waitcnt vmcnt(20)')
    for i in range(3):
        e(f'v_lshlrev_b32 {v(4 + i)}, 16, {v(4 + i)}')
        silu_inplace(e, 4 + i, 7, 20)
        e(f'v_cvt_pk_bf16_f32 {v(4 + i)}, {v(4 + i)}, {v(4 + i)}')
        e(f'v_lshlrev_b32 {v(4 + i)}, 16, {v(4 + i)}')
        e(f'ds_write_b32 v2, {v(4 + i)} offset:{1024 * i}')
    e.wait_lg()
    e('s_barrier')
    e('v_lshlrev_b32 v11, 2, v9')
    for i in range(20):
        e(f'ds_read_b32 {v(112 + i)}, v11 offset:{128 * i}')
    for j in range(8):
        e(f'v_mov_b32 {v(16 + j)}, 0')
    e.wait_lg()
    for i in range(20):
        e.wait_vm(('w', i))
        for d in range(4):
            w = 32 + 4 * i + d
            e(f'v_lshlrev_b32 v12, 16, {v(w)}')
            e(f'v_and_b32 v13, 0xffff0000, {v(w)}')
            e(f'v_fmac_f32 {v(16 + 2 * d)}, v12, {v(112 + i)}')
            e(f'v_fmac_f32 {v(17 + 2 * d)}, v13, {v(112 + i)}')
    e('v_lshlrev_b32 v12, 8, v9')
    e('v_lshl_add_u32 v12, v8, 5, v12')
    e('ds_write_b128 v12, v[16:19] offset:4096')
    e('ds_write_b128 v12, v[20:23] offset:4112')
    e.wait_lg()
    e('s_barrier')
    e('v_cmp_gt_u32 vcc, 64, v0')
    e('s_and_saveexec_b64 s[22:23], vcc')
    e(f's_cbranch_execz {name}_exit')
    for i in range(32):
        e(f'ds_read_b32 {v(32 + i)}, v2 offset:{4096 + 256 * i}')
    e.wait_lg()
    for i in range(1, 32):
        e(f'v_add_f32 v32, v32, {v(32 + i)}')
    e('v_cvt_pk_bf16_f32 v32, v32, v32')
    e('v_lshlrev_b32 v32, 16, v32')
    e('s_lshl_b32 s21, s2, 8')
    e(f's_add_u32 s21, s21, {WS_MOD}')
    e('buffer_store_dword v32, v2, s[12:15], s21 offen')
    e(f's_branch {name}_exit')
    e.label(f'{name}_init')
    e(f's_sub_u32 s20, s2, {NG}')
    e('v_lshlrev_b32 v1, 4, v0')
    for j in range(4):
        e(f'v_mov_b32 {v(4 + j)}, -1')
    e('s_cmp_ge_u32 s20, 64')
    e(f's_cbranch_scc1 {name}_mb')
    e('s_lshl_b32 s21, s20, 14')
    e(f's_add_u32 s21, s21, {WS_PB}')
    for i in range(4):
        e(f'buffer_store_dwordx4 v[4:7], v1, s[12:15], s21 offen')
        if i < 3:
            e('s_add_u32 s21, s21, 4096')
    e(f's_branch {name}_exit')
    e.label(f'{name}_mb')
    e('s_sub_u32 s20, s20, 64')
    e('s_cmp_eq_u32 s20, 0')
    e(f's_cbranch_scc1 {name}_m0')
    e('s_lshl_b32 s21, s20, 14')
    e(f's_add_u32 s21, s21, {WS_MB}')
    for i in range(4):
        e(f'buffer_store_dwordx4 v[4:7], v1, s[12:15], s21 offen')
        if i < 3:
            e('s_add_u32 s21, s21, 4096')
    e(f's_branch {name}_exit')
    e.label(f'{name}_m0')
    if zero_ctr:
        for j in range(4):
            e(f'v_mov_b32 {v(4 + j)}, 0')
        e(f's_mov_b32 s21, {WS_CTR}')
        for i in range(8):
            e('buffer_store_dwordx4 v[4:7], v1, s[12:15], s21 offen')
            e('s_add_u32 s21, s21, 4096')
    for i in range(10):
        e(f'v_add_u32 v1, {256 * i}, v0')
        e('v_and_b32 v2, 1, v1')
        e('v_bfe_u32 v3, v1, 1, 2')
        e('v_bfe_u32 v4, v1, 3, 4')
        e('v_lshrrev_b32 v5, 7, v1')
        e('v_lshl_add_u32 v4, v2, 4, v4')
        e('v_lshl_add_u32 v4, v5, 5, v4')
        e('v_mul_u32_u24 v3, 2560, v3')
        e('v_lshl_add_u32 v3, v4, 1, v3')
        e(f'buffer_load_ushort {v(16 + 2 * i)}, v3, s[16:19], 0 offen')
        e(f'buffer_load_ushort {v(17 + 2 * i)}, v3, s[16:19], 0 offen offset:1280')
    e.wait_vm()
    e('v_lshlrev_b32 v1, 2, v0')
    e(f's_mov_b32 s21, {WS_MB}')
    for i in range(10):
        e(f'v_lshl_or_b32 {v(16 + 2 * i)}, {v(17 + 2 * i)}, 16, {v(16 + 2 * i)}')
        e(f'v_min_u32 {v(16 + 2 * i)}, 0xfffffffe, {v(16 + 2 * i)}')
        e(f'buffer_store_dword {v(16 + 2 * i)}, v1, s[12:15], s21 offen')
        e('s_add_u32 s21, s21, 1024')
    end(e, name)
    return dict(name=name, grid=NG + NI, lds=16384, vgpr=136, accum=136)


def wave_sum(e, x, t):
    for d in ('quad_perm:[1,0,3,2]', 'quad_perm:[2,3,0,1]', 'row_half_mirror', 'row_mirror'):
        e(f'v_add_f32_dpp {v(x)}, {v(x)}, {v(x)} {d} row_mask:0xf bank_mask:0xf')
    for sw_ in ('v_permlane16_swap_b32', 'v_permlane32_swap_b32'):
        e(f'v_mov_b32 {v(t)}, {v(x)}')
        e(f'{sw_} {v(x)}, {v(t)}')
        e(f'v_add_f32 {v(x)}, {v(x)}, {v(t)}')


def rnd2(e, a_, b_, t):
    e(f'v_cvt_pk_bf16_f32 {v(t)}, {v(a_)}, {v(b_)}')
    e(f'v_lshlrev_b32 {v(a_)}, 16, {v(t)}')
    e(f'v_and_b32 {v(b_)}, 0xffff0000, {v(t)}')


def gen_ln(e, name, src_is_x, dst_off, shift_idx, scale_idx):
    RPW = 2
    start(e, name, 256)
    load_srds(e, [('x', 4), ('ws', 8)])
    lane_wave(e, 1, 20, 2)
    src = 4 if src_is_x else 8
    soff = 0 if src_is_x else WS_X1
    e('s_lshl_b32 s21, s2, 2')
    e('s_add_u32 s21, s21, s20')
    e(f's_mul_i32 s21, s21, {RPW * 1280}')
    e(f's_add_u32 s22, s21, {soff}')
    e(f's_add_u32 s23, s21, {dst_off}')
    e('v_lshlrev_b32 v2, 2, v1')
    for r in range(RPW):
        for i in range(5):
            e(f'buffer_load_dword {v(16 + 5 * r + i)}, v2, {s(src, 4)}, s22 offen offset:{r * 1280 + 256 * i}', tag=('x', r))
    e('v_lshlrev_b32 v3, 3, v1')
    e(f's_mov_b32 s24, {WS_MOD + shift_idx * 2560}')
    e(f's_mov_b32 s25, {WS_MOD + scale_idx * 2560}')
    for i in range(5):
        e(f'buffer_load_dwordx2 {v(32 + 2 * i, 2)}, v3, s[8:11], s24 offen offset:{512 * i}', tag='m')
        e(f'buffer_load_dwordx2 {v(42 + 2 * i, 2)}, v3, s[8:11], s25 offen offset:{512 * i}', tag='m')
    e('v_bfe_u32 v4, v1, 1, 2')
    e('v_bfe_u32 v5, v1, 3, 1')
    e('v_and_b32 v6, 1, v1')
    e('v_lshl_add_u32 v6, v5, 1, v6')
    e('v_lshl_add_u32 v6, v4, 2, v6')
    e('v_and_b32 v4, 48, v1')
    e('v_add_u32 v6, v6, v4')
    e('v_lshlrev_b32 v6, 2, v6')
    e.wait_vm('m')
    for j in range(10):
        e(f'v_add_f32 {v(42 + j)}, 1.0, {v(42 + j)}')
    for j in range(0, 10, 2):
        rnd2(e, 42 + j, 43 + j, 7)
    e(f's_mov_b32 s26, {f32bits(1.0 / 640):#x}')
    e(f's_mov_b32 s27, {f32bits(1e-5):#x}')
    for r in range(RPW):
        X = 56
        for i in range(5):
            e(f'v_lshlrev_b32 {v(X + 2 * i)}, 16, {v(16 + 5 * r + i)}')
            e(f'v_and_b32 {v(X + 2 * i + 1)}, 0xffff0000, {v(16 + 5 * r + i)}')
        e(f'v_add_f32 v8, {v(X)}, {v(X + 1)}')
        for j in range(2, 10):
            e(f'v_add_f32 v8, v8, {v(X + j)}')
        wave_sum(e, 8, 9)
        e('v_mul_f32 v8, s26, v8')
        e('v_mov_b32 v10, 0')
        for j in range(10):
            e(f'v_sub_f32 v9, {v(X + j)}, v8')
            e('v_fmac_f32 v10, v9, v9')
        wave_sum(e, 10, 9)
        e('v_mul_f32 v10, s26, v10')
        rnd2(e, 8, 10, 7)
        e('v_add_f32 v10, s27, v10')
        rnd2(e, 10, 9, 7)
        e('v_sqrt_f32 v10, v10')
        rnd2(e, 10, 9, 7)
        e('v_rcp_f32 v10, v10')
        for j in range(0, 10, 2):
            a_, b_ = X + j, X + j + 1
            e(f'v_sub_f32 {v(a_)}, {v(a_)}, v8')
            e(f'v_sub_f32 {v(b_)}, {v(b_)}, v8')
            rnd2(e, a_, b_, 7)
            e(f'v_mul_f32 {v(a_)}, {v(a_)}, v10')
            e(f'v_mul_f32 {v(b_)}, {v(b_)}, v10')
            rnd2(e, a_, b_, 7)
            e(f'v_mul_f32 {v(a_)}, {v(a_)}, {v(42 + j)}')
            e(f'v_mul_f32 {v(b_)}, {v(b_)}, {v(43 + j)}')
            rnd2(e, a_, b_, 7)
            e(f'v_add_f32 {v(a_)}, {v(a_)}, {v(32 + j)}')
            e(f'v_add_f32 {v(b_)}, {v(b_)}, {v(33 + j)}')
            e(f'v_cvt_pk_bf16_f32 {v(a_)}, {v(a_)}, {v(b_)}')
            e(f'buffer_store_dword {v(a_)}, v6, s[8:11], s23 offen offset:{r * 1280 + 128 * j}')
    end(e, name)
    return dict(name=name, grid=256, lds=0, vgpr=72, accum=72)


def gen_qkv(e, name='qkv_kernel'):
    start(e, name, 768)
    load_srds(e, [('ws', 4), ('wq', 8), ('wk', 12), ('wv', 16)])
    lane_wave(e, 1, 20, 2)
    e('s_and_b32 s21, s2, 15')
    e('s_lshr_b32 s22, s2, 4')
    e('s_lshr_b32 s23, s22, 4')
    e('s_and_b32 s22, s22, 15')
    e('s_cmp_eq_u32 s23, 1')
    e('s_cselect_b32 s24, s12, s8')
    e('s_cselect_b32 s25, s13, s9')
    e('s_cmp_eq_u32 s23, 2')
    e('s_cselect_b32 s24, s16, s24')
    e('s_cselect_b32 s25, s17, s25')
    e('s_mov_b32 s26, 5242880')
    e('s_mov_b32 s27, 0x20000')
    G = Gemm(e, 128, [(24, 8192, 128), (24, 8192, 128)], 2, 2, 10, 1280, vbase=8, sbase=40)
    G.setup(1, 20, 2)
    e(f's_mul_i32 s28, s21, {128 * 1280}')
    e(f's_add_u32 s28, s28, {WS_H1}')
    e('s_lshl_b32 s29, s22, 9')
    e('s_add_u32 s30, s29, 256')
    G.init_offsets(28, [29, 30])
    e('s_cmp_eq_u32 s23, 2')
    e(f's_cbranch_scc1 {name}_v')
    st0 = (list(e.vm), list(e.lg))
    G.mainloop(4, ['T'] * G.NT, name + '_t')
    e('v_and_b32 v2, 15, v1')
    e('v_lshrrev_b32 v3, 4, v1')
    e('v_lshlrev_b32 v3, 4, v3')
    e('v_lshl_add_u32 v2, v2, 8, v3')
    e('s_lshr_b32 s31, s20, 1')
    e('s_and_b32 s32, s20, 1')
    e('s_lshl_b32 s33, s21, 2')
    e('s_lshl_b32 s31, s31, 1')
    e('s_add_u32 s33, s33, s31')
    e('s_lshl_b32 s33, s33, 5')
    e('s_lshl_b32 s34, s22, 1')
    e('s_add_u32 s33, s33, s34')
    e('s_lshl_b32 s33, s33, 13')
    e('s_lshl_b32 s32, s32, 7')
    e('s_add_u32 s33, s33, s32')
    e(f's_mov_b32 s34, {WS_QX}')
    e('s_cmp_eq_u32 s23, 1')
    e(f's_cselect_b32 s34, {WS_KX}, s34')
    e('s_add_u32 s33, s33, s34')
    T = G.v_fx
    k = 0
    for mi in range(4):
        for p in range(2):
            for ub in range(2):
                t = T + 8 * (k % 4)
                k += 1
                for hf in range(2):
                    ac = G.accr(mi, p * 4 + ub * 2 + hf) - 256
                    for j in range(4):
                        e(f'v_accvgpr_read_b32 {v(t + 4 + j)}, {a(ac + j)}')
                    e(f'v_cvt_pk_bf16_f32 {v(t + 2 * hf)}, {v(t + 4)}, {v(t + 5)}')
                    e(f'v_cvt_pk_bf16_f32 {v(t + 2 * hf + 1)}, {v(t + 6)}, {v(t + 7)}')
                off = (mi >> 1) * 32 * 8192 + p * 8192 + (mi & 1) * 4096 + ub * 64
                e(f's_add_u32 s35, s33, {off}')
                e(f'buffer_store_dwordx4 {v(t, 4)}, v2, s[4:7], s35 offen')
    e(f's_branch {name}_exit')
    e.label(f'{name}_v')
    e.hist = []
    e.vm, e.lg = st0
    G.mainloop(4, ['N'] * G.NT, name + '_n')
    e('v_lshlrev_b32 v2, 4, v1')
    e('s_lshr_b32 s31, s20, 1')
    e('s_and_b32 s32, s20, 1')
    e('s_lshl_b32 s33, s21, 2')
    e('s_lshl_b32 s31, s31, 1')
    e('s_add_u32 s33, s33, s31')
    e('s_lshl_b32 s33, s33, 5')
    e('s_lshl_b32 s34, s22, 1')
    e('s_add_u32 s33, s33, s34')
    e('s_lshl_b32 s33, s33, 13')
    e('s_lshl_b32 s32, s32, 12')
    e('s_add_u32 s33, s33, s32')
    e(f's_add_u32 s33, s33, {WS_VXT}')
    k = 0
    for sg in range(2):
        for p in range(2):
            for a_ in range(4):
                t = T + 8 * (k % 4)
                k += 1
                for hf in range(2):
                    ac = G.accr(sg * 2 + hf, p * 4 + a_) - 256
                    for j in range(4):
                        e(f'v_accvgpr_read_b32 {v(t + 4 + j)}, {a(ac + j)}')
                    e(f'v_cvt_pk_bf16_f32 {v(t + 2 * hf)}, {v(t + 4)}, {v(t + 5)}')
                    e(f'v_cvt_pk_bf16_f32 {v(t + 2 * hf + 1)}, {v(t + 6)}, {v(t + 7)}')
                off = sg * 32 * 8192 + p * 8192 + a_ * 1024
                e(f's_add_u32 s35, s33, {off}')
                e(f'buffer_store_dwordx4 {v(t, 4)}, v2, s[4:7], s35 offen')
    end(e, name)
    nv = (G.v_end + 3) // 4 * 4
    assert nv <= 256
    return dict(name=name, grid=768, lds=G.lds_bytes, vgpr=256 + 128, accum=256)


def gen_attn(e, name='attn_kernel'):
    start(e, name, 512)
    load_srds(e, [('ws', 4)])
    lane_wave(e, 1, 20, 2)
    e('s_lshl_b32 s21, s2, 2')
    e('s_add_u32 s21, s21, s20')
    e('v_and_b32 v2, 15, v1')
    e('v_lshrrev_b32 v3, 4, v1')
    e('v_lshlrev_b32 v4, 4, v3')
    e('v_lshl_add_u32 v4, v2, 8, v4')
    e('v_lshlrev_b32 v5, 4, v1')
    e('v_lshlrev_b32 v6, 3, v1')
    e('s_lshl_b32 s22, s21, 13')
    Q, KX_, KM_, VX_, VM_ = 16, 48, 80, 96, 128
    e(f's_add_u32 s23, s22, {WS_QX}')
    e(f's_add_u32 s24, s23, 4096')
    e(f's_add_u32 s25, s22, {WS_KX}')
    e(f's_add_u32 s26, s25, 4096')
    e('s_lshl_b32 s27, s21, 12')
    e(f's_add_u32 s27, s27, {WS_KM}')
    for uu in range(4):
        e(f'buffer_load_dwordx4 {v(Q + 4 * uu, 4)}, v4, s[4:7], s23 offen offset:{64 * uu}', tag='a')
        e(f'buffer_load_dwordx4 {v(KX_ + 4 * uu, 4)}, v4, s[4:7], s25 offen offset:{64 * uu}', tag='a')
        e(f'buffer_load_dwordx4 {v(KM_ + 4 * uu, 4)}, v4, s[4:7], s27 offen offset:{64 * uu}', tag='a')
    for uu in range(4):
        e(f'buffer_load_dwordx4 {v(Q + 16 + 4 * uu, 4)}, v4, s[4:7], s24 offen offset:{64 * uu}', tag='b')
        e(f'buffer_load_dwordx4 {v(KX_ + 16 + 4 * uu, 4)}, v4, s[4:7], s26 offen offset:{64 * uu}', tag='b')
    e(f's_add_u32 s28, s22, {WS_VXT}')
    e(f's_add_u32 s29, s28, 4096')
    for et in range(8):
        e(f'buffer_load_dwordx4 {v(VX_ + 4 * et, 4)}, v5, s[4:7], {"s28" if et < 4 else "s29"} offen offset:{1024 * (et & 3)}', tag='v')
    e('s_lshl_b32 s30, s21, 11')
    e(f's_add_u32 s30, s30, {WS_VMT}')
    for w in range(4):
        e(f'buffer_load_dwordx2 {v(VM_ + 2 * w, 2)}, v6, s[4:7], s30 offen offset:{512 * w}', tag='v')
    e('v_lshlrev_b32 v7, 2, v3')
    for j in range(4):
        e(f'v_add_u32 v8, {j}, v7')
        e(f'v_cmp_le_u32 {s(32 + 2 * j, 2)}, v8, v2')
    e('s_mov_b32 s40, -1')
    e('s_mov_b32 s41, 0')
    cc = f32bits((128 ** -0.5) * LOG2E)
    e(f's_mov_b32 s42, {cc:#x}')
    e(f's_mov_b32 s43, {cc:#x}')
    ONES, NEG = 136, 140
    for j in range(4):
        e(f'v_mov_b32 {v(ONES + j)}, 0x3f803f80')
    e(f'v_mov_b32 {v(NEG)}, 0xf149f2ca')
    e('v_lshlrev_b32 v9, 4, v3')
    e('v_lshl_add_u32 v9, v2, 13, v9')
    e('s_lshr_b32 s44, s21, 5')
    e('s_and_b32 s45, s21, 31')
    e('s_lshl_b32 s44, s44, 18')
    e('s_lshl_b32 s45, s45, 8')
    e('s_add_u32 s44, s44, s45')
    e(f's_add_u32 s44, s44, {WS_O}')
    S, M, P, PM, OA = 144, 156, 160, 164, 168
    for tq in range(2):
        e.wait_vm('a' if tq == 0 else 'b')
        for uu in range(4):
            q = v(Q + 16 * tq + 4 * uu, 4)
            c0 = (lambda r: '0' if uu == 0 else v(r, 4))
            e(f'v_mfma_f32_16x16x32_bf16 {v(S, 4)}, {v(KX_ + 4 * uu, 4)}, {q}, {c0(S)}')
            if tq == 1:
                e(f'v_mfma_f32_16x16x32_bf16 {v(S + 4, 4)}, {v(KX_ + 16 + 4 * uu, 4)}, {q}, {c0(S + 4)}')
            e(f'v_mfma_f32_16x16x32_bf16 {v(S + 8, 4)}, {v(KM_ + 4 * uu, 4)}, {q}, {c0(S + 8)}')
        dg = S + 4 * tq
        for j in range(4):
            e(f'v_cndmask_b32 {v(dg + j)}, {v(NEG)}, {v(dg + j)}, {s(32 + 2 * j, 2)}')
        C0 = S + 8
        e(f'v_cndmask_b32 {v(C0)}, {v(C0 + 2)}, {v(C0)}, s[40:41]')
        e(f'v_cndmask_b32 {v(C0 + 1)}, {v(C0 + 3)}, {v(C0 + 1)}, s[40:41]')
        vals = [S + j for j in range(4 * (tq + 1))] + [C0, C0 + 1]
        e(f'v_max3_f32 {v(M)}, {v(vals[0])}, {v(vals[1])}, {v(vals[2])}')
        i = 3
        while i + 1 < len(vals):
            e(f'v_max3_f32 {v(M)}, {v(M)}, {v(vals[i])}, {v(vals[i + 1])}')
            i += 2
        if i < len(vals):
            e(f'v_max_f32 {v(M)}, {v(M)}, {v(vals[i])}')
        for sw_ in ('v_permlane32_swap_b32', 'v_permlane16_swap_b32'):
            e(f'v_mov_b32 {v(M + 1)}, {v(M)}')
            e(f'{sw_} {v(M)}, {v(M + 1)}')
            e(f'v_max_f32 {v(M)}, {v(M)}, {v(M + 1)}')
        e(f'v_mul_f32 {v(M)}, s42, {v(M)}')
        for x in vals[::2]:
            e(f'v_pk_fma_f32 {v(x, 2)}, {v(x, 2)}, s[42:43], {v(M, 2)} op_sel_hi:[1,1,0] neg_lo:[0,0,1] neg_hi:[0,0,1]')
        for x in vals:
            e(f'v_exp_f32 {v(x)}, {v(x)}')
        for j in range(2 * (tq + 1)):
            e(f'v_cvt_pk_bf16_f32 {v(P + j)}, {v(S + 2 * j)}, {v(S + 2 * j + 1)}')
        if tq == 0:
            e(f'v_mov_b32 {v(P + 2)}, 0')
            e(f'v_mov_b32 {v(P + 3)}, 0')
            e(f'v_mov_b32 {v(PM + 1)}, 0')
            e(f'v_mov_b32 {v(PM + 2)}, 0')
        e(f'v_cvt_pk_bf16_f32 {v(PM)}, {v(C0)}, {v(C0 + 1)}')
        e(f'v_cvt_pk_bf16_f32 {v(PM + 3)}, {v(C0)}, {v(C0 + 1)}')
        e.wait_vm('v')
        L = OA + 32
        e(f'v_mfma_f32_16x16x32_bf16 {v(L, 4)}, {v(ONES, 4)}, {v(P, 4)}, 0')
        for et in range(8):
            e(f'v_mfma_f32_16x16x32_bf16 {v(OA + 4 * et, 4)}, {v(VX_ + 4 * et, 4)}, {v(P, 4)}, 0')
        e(f'v_mfma_f32_16x16x16_bf16 {v(L, 4)}, {v(ONES, 2)}, {v(PM, 2)}, {v(L, 4)}')
        for et in range(8):
            e(f'v_mfma_f32_16x16x16_bf16 {v(OA + 4 * et, 4)}, {v(VM_ + 2 * (et >> 1), 2)}, {v(PM + 2 * (et & 1), 2)}, {v(OA + 4 * et, 4)}')
        e(f'v_rcp_f32 {v(M)}, {v(L)}')
        if tq:
            e(f's_add_u32 s44, s44, {16 * 8192}')
        for ub in range(4):
            o = OA + 8 * ub
            for j in range(0, 8, 2):
                e(f'v_pk_mul_f32 {v(o + j, 2)}, {v(o + j, 2)}, {v(M, 2)} op_sel_hi:[1,0]')
            for j in range(4):
                e(f'v_cvt_pk_bf16_f32 {v(o + j)}, {v(o + 2 * j)}, {v(o + 2 * j + 1)}')
            e(f'buffer_store_dwordx4 {v(o, 4)}, v9, s[4:7], s44 offen offset:{64 * ub}')
    end(e, name)
    return dict(name=name, grid=512, lds=0, vgpr=208, accum=208)


def gen_proj(e, name, wkey, xoff, xstride, KT, gate_idx, res_is_x, out_is_ws):
    start(e, name, 160)
    load_srds(e, [('ws', 4), (wkey, 8), ('x', 12), ('out', 16)])
    lane_wave(e, 1, 20, 2)
    e('s_and_b32 s21, s2, 31')
    e('s_lshr_b32 s22, s2, 5')
    G = Gemm(e, 64, [(8, 1280, 128)], 2, 2, KT, xstride, nstage=4, vbase=8, sbase=40, acc_base=128)
    G.setup(1, 20, 2)
    e(f's_mul_i32 s28, s21, {64 * xstride}')
    e(f's_add_u32 s28, s28, {xoff}')
    e('s_lshl_b32 s29, s22, 8')
    G.init_offsets(28, [29])
    e('v_and_b32 v2, 15, v1')
    e('v_lshrrev_b32 v3, 4, v1')
    e('v_mul_u32_u24 v4, 1280, v2')
    e('v_lshl_add_u32 v4, v3, 3, v4')
    e('v_lshlrev_b32 v5, 4, v3')
    e('s_lshr_b32 s31, s20, 1')
    e('s_and_b32 s32, s20, 1')
    e('s_lshl_b32 s33, s21, 1')
    e('s_add_u32 s33, s33, s31')
    e(f's_mul_i32 s33, s33, {32 * 1280}')
    e('s_lshl_b32 s34, s32, 7')
    e('s_add_u32 s34, s34, s29')
    e('s_add_u32 s33, s33, s34')
    e('s_lshl_b32 s34, s34, 1')
    e(f's_add_u32 s34, s34, {WS_MOD + gate_idx * 2560}')
    RES, GT = 96, 112
    rs = 12 if res_is_x else 4
    e(f's_add_u32 s35, s33, {0 if res_is_x else WS_X1}')
    e(f's_add_u32 s36, s35, {16 * 1280}')
    for mi in range(2):
        for a_ in range(4):
            e(f'buffer_load_dwordx2 {v(RES + (mi * 4 + a_) * 2, 2)}, v4, {s(rs, 4)}, {"s35" if mi == 0 else "s36"} offen offset:{32 * a_}', tag='r')
    for a_ in range(4):
        e(f'buffer_load_dwordx4 {v(GT + 4 * a_, 4)}, v5, s[4:7], s34 offen offset:{64 * a_}', tag='r')
    assert G.v_end <= RES
    G.mainloop(4, ['T'] * G.NT, name)
    od = 4 if out_is_ws else 16
    e(f's_add_u32 s35, s33, {WS_X1 if out_is_ws else 0}')
    e(f's_add_u32 s36, s35, {16 * 1280}')
    for mi in range(2):
        for a_ in range(4):
            ac = G.accr(mi, a_)
            r = RES + (mi * 4 + a_) * 2
            for h in range(2):
                x0, x1 = ac + 2 * h, ac + 2 * h + 1
                rnd2(e, x0, x1, 6)
                e(f'v_mul_f32 {v(x0)}, {v(x0)}, {v(GT + 4 * a_ + 2 * h)}')
                e(f'v_mul_f32 {v(x1)}, {v(x1)}, {v(GT + 4 * a_ + 2 * h + 1)}')
                rnd2(e, x0, x1, 6)
                e(f'v_lshlrev_b32 v6, 16, {v(r + h)}')
                e(f'v_and_b32 v7, 0xffff0000, {v(r + h)}')
                e(f'v_add_f32 {v(x0)}, {v(x0)}, v6')
                e(f'v_add_f32 {v(x1)}, {v(x1)}, v7')
                e(f'v_cvt_pk_bf16_f32 {v(r + h)}, {v(x0)}, {v(x1)}')
            e(f'buffer_store_dwordx2 {v(r, 2)}, v4, {s(od, 4)}, {"s35" if mi == 0 else "s36"} offen offset:{32 * a_}')
    end(e, name)
    return dict(name=name, grid=160, lds=G.lds_bytes, vgpr=160, accum=160)


def gen_up(e, name='up_kernel'):
    start(e, name, 216)
    load_srds(e, [('ws', 4), ('w1', 8), ('w3', 12)])
    lane_wave(e, 1, 20, 2)
    e('s_and_b32 s21, s2, 7')
    e('s_lshr_b32 s22, s2, 3')
    G = Gemm(e, 256, [(8, 3456, 64), (12, 3456, 64)], 2, 2, 10, 1280, vbase=8, sbase=40)
    G.setup(1, 20, 2)
    e(f's_mul_i32 s28, s21, {256 * 1280}')
    e(f's_add_u32 s28, s28, {WS_H2}')
    e('s_lshl_b32 s29, s22, 7')
    e('s_mov_b32 s30, s29')
    G.init_offsets(28, [29, 30])
    G.mainloop(4, ['T'] * G.NT, name)
    e('v_and_b32 v2, 15, v1')
    e('v_lshrrev_b32 v3, 4, v1')
    e('v_mul_u32_u24 v4, 3456, v2')
    e('v_lshl_add_u32 v4, v3, 4, v4')
    e('s_lshr_b32 s31, s20, 1')
    e('s_and_b32 s32, s20, 1')
    e('s_lshl_b32 s33, s21, 1')
    e('s_add_u32 s33, s33, s31')
    e(f's_mul_i32 s33, s33, {128 * 3456}')
    e('s_lshl_b32 s34, s32, 6')
    e('s_add_u32 s34, s34, s29')
    e('s_add_u32 s33, s33, s34')
    e(f's_add_u32 s33, s33, {WS_HM}')
    e(f's_mov_b32 s37, {f32bits(-LOG2E):#x}')
    T = G.v_fx
    for mi in range(8):
        t = T + 24 * (mi & 1)
        o = t + 16
        for a_ in range(2):
            ag = G.accr(mi, a_) - 256
            au = G.accr(mi, 2 + a_) - 256
            gv, uv = t + 8 * a_, t + 8 * a_ + 4
            for j in range(4):
                e(f'v_accvgpr_read_b32 {v(gv + j)}, {a(ag + j)}')
                e(f'v_accvgpr_read_b32 {v(uv + j)}, {a(au + j)}')
            for h in range(2):
                g0, g1, u0, u1 = gv + 2 * h, gv + 2 * h + 1, uv + 2 * h, uv + 2 * h + 1
                rnd2(e, g0, g1, 6)
                rnd2(e, u0, u1, 6)
                silu_inplace(e, g0, 6, 37)
                silu_inplace(e, g1, 7, 37)
                rnd2(e, g0, g1, 6)
                e(f'v_mul_f32 {v(g0)}, {v(g0)}, {v(u0)}')
                e(f'v_mul_f32 {v(g1)}, {v(g1)}, {v(u1)}')
                e(f'v_cvt_pk_bf16_f32 {v(o + 2 * a_ + h)}, {v(g0)}, {v(g1)}')
        e(f'buffer_store_dwordx4 {v(o, 4)}, v4, s[4:7], s33 offen')
        if mi < 7:
            e(f's_add_u32 s33, s33, {16 * 3456}')
    end(e, name)
    return dict(name=name, grid=216, lds=G.lds_bytes, vgpr=256 + 128, accum=256)


if __name__ == '__main__':
    import argparse
    ap = argparse.ArgumentParser()
    ap.add_argument('--out', default='all.s')
    ap.add_argument('--upto', type=int, default=99)
    args = ap.parse_args()
    e = Em()
    ks = []
    ks.append(gen_prep(e))
    ks.append(gen_ln(e, 'ln1_kernel', True, WS_H1, 0, 1))
    ks.append(gen_qkv(e))
    e.raw('.globl chain_kernel')
    e.hist = []; e.vm = []; e.lg = []
    gen_chain2.gen_chain(e, pool_end=88, ldfl='nt', ostfl='nt', str_flags=('sc1',) * 16)
    ks.append(dict(name='chain_kernel', grid=256, lds=163840, vgpr=512, accum=256))
    ks.append(gen_attn(e))
    ks.append(gen_proj(e, 'wo_kernel', 'wo', WS_O, 8192, 64, 2, True, True))
    ks.append(gen_ln(e, 'ln2_kernel', False, WS_H2, 3, 4))
    ks.append(gen_up(e))
    ks.append(gen_proj(e, 'down_kernel', 'w2', WS_HM, 3456, 27, 5, False, False))
    hdr = ''
    for k in ks[:args.upto]:
        hdr += f"; @launch kernel={k['name']} grid=({k['grid']},1,1) block=(256,1,1) lds={k['lds']}\n"
    hdr += '.amdgcn_target "amdgcn-amd-amdhsa--gfx950"\n.text\n'
    open(args.out, 'w').write(hdr + e.text() + ''.join(kd(k['name'], k['vgpr'], k['accum']) for k in ks))
```

```python
from emit import *
from layout import *
from gen_chain import Pool, f32bits, kd
import struct

S_WS = 4
S_DBG = 8
S_WQ = 12
S_WK = 16
S_WV = 20
S_WO = 24
S_H = 28
S_W = 29
S_STEP = 30
S_T0 = 31
S_T1 = 32
S_T2 = 33
S_T3 = 34
S_MODE = 35
S_UNIT = 36
S_XCC = 37
S_C1 = 38
S_MASKLO = 40
S_LDSW = 42
S_SH13 = 43
S_MBP = 44
S_MBB = 47
S_PBST = 50
S_MSL = 55
S_MBL = 56
S_PBLD = 60
S_MBC = 62
S_MBN = 63
S_STR = 64
S_KXO = 72
S_VXO = 73
S_KMO = 74
S_VMO = 75
S_KXM0 = 76
S_WARM = 77
S_STAMP = 78

V_LANE16 = 0
V_IDX = 1
V_AF = 2
V_QKW = 3
V_QKR = 4
V_OW = 5
V_OR = 6
V_PBST = 7
V_MBST = 8
V_KXG = 9
V_LDSW = 10
V_MW = 11
V_SEL = 12
NPERS = 16


def gen_chain(em, name='chain_kernel', n_lds=17, pool_end=96, nsteps=64, stamps=False, la_lds=5, max_str=3,
              naf=3, nv1=12, slow=True,
              lds_cand=(('q', 1), ('k', 2), ('q', 4), ('o', 0, 1), ('o', 1, 2), ('o', 0, 3), ('k', 5), ('q', 7), ('v', 1), ('v', 4)),
              str_want=(14, 21, 29, 37, 44, 79, 77, 75, 25, 33, 41, 17, 73), str_flags=(), nsb=6, noa=2, dbg='', ldfl='', ostfl=''):
    WL = n_lds * 2048
    L_MMEM = 0
    L_MQ = L_MMEM + 10240
    L_MK = L_MQ + 2048
    L_O = L_MK + 2048
    L_KX = L_O + 2048
    L_WB = L_KX + 8192
    L_END = L_WB + 4 * WL
    assert L_END <= 163840, L_END
    NRING = WL // 4096

    units = [(m, t) for m in 'qkv' for t in range(10)] + [('o', t, p) for p in range(5) for t in range(2)]
    order = []
    for t in range(8):
        for m in 'qk':
            for tau in range(2):
                order.append(((m, t), tau))
    for m in 'qk':
        for t in (8, 9):
            for tau in range(2):
                order.append(((m, t), tau))
    for t in range(10):
        for tau in range(2):
            order.append((('v', t), tau))
    for p in range(5):
        for t in range(2):
            for tau in range(2):
                order.append((('o', t, p), tau))
    n_reg = (512 - pool_end) // 8
    n_str = 80 - n_reg - n_lds
    assert 0 <= n_str <= 16
    full_lds_units = n_lds // 2
    lds_units = list(lds_cand[:full_lds_units])
    place = {}
    for j, un in enumerate(lds_units):
        for tau in range(2):
            place[(un, tau)] = ('lds', j * 4096 + tau * 2048)
    if n_lds % 2:
        place[(('o', 1, 0), 1)] = ('lds', full_lds_units * 4096)
    rest = [sl for sl in order if sl not in place]
    str_slots = []
    want = str_want[:n_str]
    assert len(want) == n_str, (n_str, str_want)
    for wi in want:
        best = min((sl for sl in rest if sl not in str_slots), key=lambda sl: abs(order.index(sl) - wi))
        str_slots.append(best)
    str_flag = {sl: str_flags[i] if i < len(str_flags) else '' for i, sl in enumerate(str_slots)}
    str_slots.sort(key=order.index)
    for i, sl in enumerate(str_slots):
        place[sl] = ('str', i * 2048)
    r = pool_end
    for sl in order:
        if sl not in place:
            place[sl] = ('reg', r)
            r += 8
    assert r == pool_end + n_reg * 8

    pool = Pool(NPERS, pool_end)
    e = em
    em.raw('.p2align 8')
    em.raw(f'.type {name},@function')
    em.label(name)
    e('s_cmp_ge_u32 s2, 256')
    e(f's_cbranch_scc1 {name}_exit')
    e('s_load_dwordx4 s[48:51], s[0:1], 16')
    e('s_load_dwordx4 s[52:55], s[0:1], 32')
    e('s_load_dwordx4 s[56:59], s[0:1], 112')
    e(f's_getreg_b32 {s(S_XCC)}, hwreg(HW_REG_XCC_ID)')
    e(f's_and_b32 {s(S_XCC)}, {s(S_XCC)}, 15')
    e('v_lshrrev_b32 v20, 6, v0')
    e('v_and_b32 v16, 63, v0')
    e(f'v_readfirstlane_b32 {s(S_W)}, v20')
    e('s_waitcnt lgkmcnt(0)')
    LN = 16

    def srd(d, src, size):
        e(f's_mov_b32 {s(d)}, {s(src)}')
        e(f's_and_b32 {s(d + 1)}, {s(src + 1)}, 0xffff')
        e(f's_mov_b32 {s(d + 2)}, {size}')
        e(f's_mov_b32 {s(d + 3)}, 0x20000')
    srd(S_WQ, 48, 5242880)
    srd(S_WK, 50, 5242880)
    srd(S_WV, 52, 5242880)
    srd(S_WO, 54, 5242880)
    srd(S_DBG, 56, 256)
    srd(S_WS, 58, WS_SIZE)

    e(f's_cmp_lg_u32 {s(S_W)}, 0')
    e(f's_cbranch_scc1 {name}_elected')
    e('v_mov_b32 v20, 1')
    e('v_mov_b32 v21, 1')
    e(f's_lshl_b32 {s(S_T0)}, {s(S_XCC)}, 2')
    e(f'v_mov_b32 v22, {s(S_T0)}')
    e('v_mov_b32 v23, 64')
    e('s_mov_b64 exec, 1')
    e(f'buffer_atomic_add v20, v22, {s(S_DBG, 4)}, 0 offen sc0')
    e(f'buffer_atomic_add v21, v23, {s(S_DBG, 4)}, 0 offen sc0')
    e.wait_vm()
    e(f'v_readfirstlane_b32 {s(S_T0)}, v20')
    e(f'v_readfirstlane_b32 {s(S_T1)}, v21')
    e('v_mov_b32 v23, 68')
    e(f's_cmp_eq_u32 {s(S_T0)}, 31')
    e(f's_cbranch_scc0 {name}_el1')
    e(f's_add_u32 {s(S_T2)}, {s(S_XCC)}, 1')
    e(f'v_mov_b32 v20, {s(S_T2)}')
    e('v_mov_b32 v21, 0')
    e(f'buffer_atomic_cmpswap v[20:21], v23, {s(S_DBG, 4)}, 0 offen')
    e.label(f'{name}_el1')
    e(f's_cmp_eq_u32 {s(S_T1)}, 255')
    e(f's_cbranch_scc0 {name}_el2')
    e('v_mov_b32 v20, 0xff')
    e('v_mov_b32 v21, 0')
    e(f'buffer_atomic_cmpswap v[20:21], v23, {s(S_DBG, 4)}, 0 offen')
    e.label(f'{name}_el2')
    e.label(f'{name}_el3')
    e(f'buffer_load_dword v20, v23, {s(S_DBG, 4)}, 0 offen sc1')
    e.wait_vm()
    e(f'v_readfirstlane_b32 {s(S_T2)}, v20')
    e(f's_cmp_eq_u32 {s(S_T2)}, 0')
    e(f's_cbranch_scc1 {name}_el3')
    e(f's_mov_b32 {s(S_H)}, 0xffff')
    e(f's_add_u32 {s(S_T3)}, {s(S_XCC)}, 1')
    e(f's_cmp_eq_u32 {s(S_T2)}, {s(S_T3)}')
    e(f's_cselect_b32 {s(S_H)}, {s(S_T0)}, {s(S_H)}')
    e(f's_cmp_eq_u32 {s(S_T2)}, 0xff')
    e(f's_cselect_b32 {s(S_H)}, {s(S_T1)}, {s(S_H)}')
    e(f's_cselect_b32 {s(S_MODE)}, 1, 0')
    e(f's_lshl_b32 {s(S_T0)}, {s(S_MODE)}, 16')
    e(f's_or_b32 {s(S_T0)}, {s(S_T0)}, {s(S_H)}')
    e(f'v_mov_b32 v20, {s(S_T0)}')
    e('v_mov_b32 v21, 0')
    e('ds_write_b32 v21, v20')
    e('s_mov_b64 exec, -1')
    e.wait_lg()
    e.label(f'{name}_elected')
    e('s_barrier')
    e('v_mov_b32 v21, 0')
    e('ds_read_b32 v20, v21')
    e.wait_lg()
    e(f'v_readfirstlane_b32 {s(S_T0)}, v20')
    e(f's_and_b32 {s(S_H)}, {s(S_T0)}, 0xffff')
    e(f's_lshr_b32 {s(S_MODE)}, {s(S_T0)}, 16')
    e('s_barrier')
    e(f's_cmp_ge_u32 {s(S_H)}, 32')
    e(f's_cbranch_scc1 {name}_exit')

    g, c, rp, cp, g1, g2, sw = 17, 18, 19, 20, 21, 22, 23
    T = 24
    e(f'v_lshrrev_b32 {v(g)}, 4, {v(LN)}')
    e(f'v_and_b32 {v(c)}, 15, {v(LN)}')
    e(f'v_lshrrev_b32 {v(rp)}, 2, {v(c)}')
    e(f'v_and_b32 {v(cp)}, 3, {v(LN)}')
    e(f'v_and_b32 {v(g1)}, 1, {v(g)}')
    e(f'v_lshrrev_b32 {v(g2)}, 1, {v(g)}')
    e(f'v_lshl_add_u32 {v(sw)}, {v(g1)}, 1, {v(g2)}')
    e(f'v_lshlrev_b32 {v(V_LANE16)}, 4, {v(LN)}')
    e(f'v_and_b32 {v(T)}, 2, {v(LN)}')
    e(f'v_cmp_ne_u32 vcc, 0, {v(T)}')
    e(f'v_mov_b32 {v(T + 1)}, 0x4444')
    e(f'v_mov_b32 {v(T + 2)}, 0xeeee')
    e(f'v_cndmask_b32 {v(V_IDX)}, {v(T + 1)}, {v(T + 2)}, vcc')
    e(f'v_lshl_add_u32 {v(T)}, {v(g)}, 2, {v(rp)}')
    e(f'v_lshlrev_b32 {v(T + 1)}, 3, {v(cp)}')
    e(f'v_lshl_add_u32 {v(V_AF)}, {v(T)}, 5, {v(T + 1)}')
    if L_MMEM:
        e(f'v_add_u32 {v(V_AF)}, {L_MMEM}, {v(V_AF)}')
    e(f'v_and_b32 {v(T + 2)}, 1, {v(cp)}')
    e(f'v_lshlrev_b32 {v(T + 2)}, 3, {v(T + 2)}')
    e(f'v_lshl_add_u32 {v(V_QKR)}, {v(T)}, 4, {v(T + 2)}')
    e(f'v_add_u32 {v(V_QKR)}, {L_MQ}, {v(V_QKR)}')
    e(f's_lshl_b32 {s(S_T0)}, {s(S_W)}, 5')
    e(f'v_add_u32 {v(T)}, {s(S_T0)}, {v(c)}')
    e(f'v_lshlrev_b32 {v(T + 2)}, 2, {v(sw)}')
    e(f'v_lshl_add_u32 {v(V_QKW)}, {v(T)}, 4, {v(T + 2)}')
    e(f'v_add_u32 {v(V_QKW)}, {L_MQ}, {v(V_QKW)}')
    e(f's_lshl_b32 {s(S_T0)}, {s(S_W)}, 2')
    e(f'v_add_u32 {v(T)}, {s(S_T0)}, {v(g)}')
    e(f'v_and_b32 {v(T + 3)}, 7, {v(LN)}')
    e(f'v_lshl_add_u32 {v(T)}, {v(T)}, 3, {v(T + 3)}')
    e(f'v_lshlrev_b32 {v(V_OW)}, 4, {v(T)}')
    e(f'v_add_u32 {v(V_OW)}, {L_O}, {v(V_OW)}')
    e(f'v_and_b32 {v(T)}, 1, {v(rp)}')
    e(f'v_lshrrev_b32 {v(T + 2)}, 1, {v(rp)}')
    e(f'v_lshl_add_u32 {v(T)}, {v(T)}, 1, {v(T + 2)}')
    e(f'v_and_b32 {v(T + 2)}, 1, {v(LN)}')
    e(f'v_lshl_add_u32 {v(T)}, {v(T)}, 1, {v(T + 2)}')
    e(f'v_lshl_add_u32 {v(T)}, {v(g)}, 3, {v(T)}')
    e(f'v_lshrrev_b32 {v(T + 2)}, 1, {v(cp)}')
    e(f'v_lshl_add_u32 {v(T)}, {v(T + 2)}, 5, {v(T)}')
    e(f'v_lshlrev_b32 {v(V_OR)}, 4, {v(T)}')
    e(f'v_add_u32 {v(V_OR)}, {L_O}, {v(V_OR)}')
    e(f'v_lshlrev_b32 {v(T)}, 12, {v(rp)}')
    e(f'v_lshl_add_u32 {v(T)}, {v(cp)}, 5, {v(T)}')
    e(f'v_lshl_add_u32 {v(V_PBST)}, {v(g)}, 3, {v(T)}')
    e(f'v_lshrrev_b32 {v(T)}, 1, {v(T + 3)}')
    e(f'v_and_b32 {v(T + 2)}, 1, {v(LN)}')
    e(f'v_lshl_add_u32 {v(T + 2)}, {v(T + 2)}, 1, {v(g1)}')
    e(f'v_lshlrev_b32 {v(T + 2)}, 3, {v(T + 2)}')
    e(f'v_lshl_add_u32 {v(V_MBST)}, {v(T)}, 5, {v(T + 2)}')
    e(f'v_lshlrev_b32 {v(T)}, 4, {v(g)}')
    e(f'v_lshl_add_u32 {v(V_KXG)}, {v(c)}, 8, {v(T)}')
    e(f's_mul_i32 {s(S_LDSW)}, {s(S_W)}, {WL}')
    e(f's_add_u32 {s(S_LDSW)}, {s(S_LDSW)}, {L_WB}')
    e(f'v_add_u32 {v(V_LDSW)}, {s(S_LDSW)}, {v(V_LANE16)}')
    e(f's_lshl_b32 {s(S_T0)}, {s(S_W)}, 10')
    e(f'v_add_u32 {v(V_MW)}, {s(S_T0)}, {v(V_LANE16)}')
    e(f'v_and_b32 {v(T + 2)}, 1, {v(LN)}')
    e(f'v_lshlrev_b32 {v(T + 2)}, 4, {v(T + 2)}')
    e(f'v_mov_b32 {v(T + 4)}, 0x3f80')
    e(f'v_lshlrev_b32 {v(T + 4)}, {v(T + 2)}, {v(T + 4)}')
    e(f'v_lshrrev_b32 {v(T)}, 1, {v(T + 3)}')
    for rr in range(4):
        e(f'v_cmp_eq_u32 vcc, {rr}, {v(T)}')
        e(f'v_cndmask_b32 {v(V_SEL + rr)}, 0, {v(T + 4)}, vcc')
    cc = f32bits((128 ** -0.5) * 1.4426950408889634)
    e(f's_mov_b32 {s(S_C1)}, {cc:#x}')
    e(f's_mov_b32 {s(S_C1 + 1)}, {cc:#x}')
    e(f's_mov_b32 {s(S_MASKLO)}, -1')
    e(f's_mov_b32 {s(S_MASKLO + 1)}, 0')
    e(f's_lshl_b32 {s(S_UNIT)}, {s(S_W)}, 5')
    e(f's_add_u32 {s(S_UNIT)}, {s(S_UNIT)}, {s(S_H)}')

    VG_QKV, VG_O, VT_QKV, VT_O = T + 6, T + 7, T + 8, T + 9
    e(f'v_lshrrev_b32 {v(T)}, 2, {v(LN)}')
    e(f'v_lshlrev_b32 {v(T + 1)}, 4, {v(cp)}')
    e(f'v_lshl_add_u32 {v(VG_QKV)}, {v(T)}, 13, {v(T + 1)}')
    e(f'v_mul_u32_u24 {v(T)}, 1280, {v(T)}')
    e(f'v_add_u32 {v(VG_O)}, {v(T)}, {v(T + 1)}')
    e(f'v_lshrrev_b32 {v(T + 2)}, 1, {v(rp)}')
    e(f'v_and_b32 {v(T + 3)}, 1, {v(rp)}')
    e(f'v_lshlrev_b32 {v(T + 5)}, 3, {v(cp)}')
    e(f'v_lshlrev_b32 {v(T + 4)}, 5, {v(g1)}')
    e(f'v_lshl_add_u32 {v(T + 4)}, {v(T + 2)}, 4, {v(T + 4)}')
    e(f'v_lshl_add_u32 {v(T + 4)}, {v(g2)}, 2, {v(T + 4)}')
    e(f'v_add_u32 {v(T + 4)}, {v(T + 4)}, {v(T + 3)}')
    e(f'v_lshl_add_u32 {v(VT_QKV)}, {v(T + 4)}, 6, {v(T + 5)}')
    e(f'v_add_u32 {v(VT_QKV)}, {s(S_LDSW)}, {v(VT_QKV)}')
    e(f'v_lshlrev_b32 {v(T + 4)}, 5, {v(T + 2)}')
    e(f'v_lshl_add_u32 {v(T + 4)}, {v(g1)}, 4, {v(T + 4)}')
    e(f'v_lshl_add_u32 {v(T + 4)}, {v(g2)}, 2, {v(T + 4)}')
    e(f'v_add_u32 {v(T + 4)}, {v(T + 4)}, {v(T + 3)}')
    e(f'v_lshl_add_u32 {v(VT_O)}, {v(T + 4)}, 6, {v(T + 5)}')
    e(f'v_add_u32 {v(VT_O)}, {s(S_LDSW)}, {v(VT_O)}')
    e(f's_lshl_b32 {s(S_T2)}, {s(S_H)}, 8')
    e(f's_lshl_b32 {s(S_T0)}, {s(S_W)}, 6')
    e(f's_add_u32 {s(S_T2)}, {s(S_T2)}, {s(S_T0)}')
    e(f's_mul_i32 {s(S_T3)}, {s(S_H)}, {128 * 1280}')
    e(f's_mul_i32 {s(S_T0)}, {s(S_W)}, 320')
    e(f's_add_u32 {s(S_T3)}, {s(S_T3)}, {s(S_T0)}')
    e(f's_mul_i32 {s(S_STR)}, {s(S_H)}, {STR_HSTRIDE}')
    e(f's_mul_i32 {s(S_T0)}, {s(S_W)}, {STR_WSTRIDE}')
    e(f's_add_u32 {s(S_STR)}, {s(S_STR)}, {s(S_T0)}')
    e(f's_add_u32 {s(S_STR)}, {s(S_STR)}, {WS_STR}')
    for i in range(1, 8):
        e(f's_add_u32 {s(S_STR + i)}, {s(S_STR)}, {4096 * i}')

    ulist = [un for un in units if un not in lds_units] + lds_units
    nnon = 40 - len(lds_units)

    def ringpos(i):
        return (i - nnon) % NRING if i < nnon else i - nnon

    TMPW = 36

    def issue_dma(i):
        un = ulist[i]
        pos = ringpos(i)
        for q in range(4):
            if un[0] == 'o':
                _, t, p = un
                off = (64 * t + 16 * q) * 1280 + 64 * p
                e(f's_add_u32 {s(S_T0)}, {s(S_T3)}, {off}')
                srdn, vg = S_WO, VG_O
            else:
                m, t = un
                off = (64 * t + 16 * q) * 8192
                e(f's_add_u32 {s(S_T0)}, {s(S_T2)}, {off}')
                srdn, vg = {'q': S_WQ, 'k': S_WK, 'v': S_WV}[m], VG_QKV
            e(f's_add_u32 m0, {s(S_LDSW)}, {pos * 4096 + q * 1024}')
            e(f'buffer_load_dwordx4 {v(vg)}, {s(srdn, 4)}, {s(S_T0)} offen lds', tag=('dma', i))

    def process(i):
        un = ulist[i]
        pos = ringpos(i)
        e.wait_vm(('dma', i))
        vt = VT_O if un[0] == 'o' else VT_QKV
        for tau in range(2):
            kind, loc = place[(un, tau)]
            dst = loc if kind == 'reg' else TMPW + 8 * tau
            for n in range(4):
                off = (8 * (n >> 1) + 2 * (n & 1)) * 64 + 32 * tau
                e(f'ds_read_b64_tr_b16 {u(dst + 2 * n, 2)}, {v(vt)} offset:{pos * 4096 + off}')
        e.wait_lg()
        for tau in range(2):
            kind, loc = place[(un, tau)]
            src = TMPW + 8 * tau
            if kind == 'lds':
                e(f'ds_write_b128 {v(V_LDSW)}, {v(src, 4)} offset:{loc}')
                e(f'ds_write_b128 {v(V_LDSW)}, {v(src + 4, 4)} offset:{loc + 1024}')
            elif kind == 'str':
                sb = S_STR + loc // 4096
                o = loc % 4096
                e(f'buffer_store_dwordx4 {v(src, 4)}, {v(V_LANE16)}, {s(S_WS, 4)}, {s(sb)} offen offset:{o}', tag='st')
                e(f'buffer_store_dwordx4 {v(src + 4, 4)}, {v(V_LANE16)}, {s(S_WS, 4)}, {s(sb)} offen offset:{o + 1024}', tag='st')
        if any(place[(un, tau)][0] != 'reg' for tau in range(2)):
            e.wait_lg()
            if any(place[(un, tau)][0] == 'str' for tau in range(2)):
                e.wait_vm('st')

    for i in range(NRING):
        issue_dma(i)
    for i in range(40):
        process(i)
        if i + NRING < 40:
            issue_dma(i + NRING)
    e.wait_vm()
    e.wait_lg()

    e(f's_lshl_b32 {s(S_T0)}, {s(S_W)}, 10')
    e(f's_add_u32 {s(S_MBB)}, {s(S_T0)}, {WS_MB}')
    e(f's_add_u32 {s(S_MBB + 1)}, {s(S_MBB)}, 6144')
    e(f's_mov_b32 {s(S_MBB + 2)}, {WS_MB + 9216}')
    for i in range(3):
        e(f's_mov_b32 {s(S_MBP + i)}, {s(S_MBB + i)}')
    e(f's_mov_b32 {s(S_MSL)}, 0')
    e(f's_mul_i32 {s(S_PBST)}, {s(S_W)}, {20 * 4096}')
    e(f's_lshl_b32 {s(S_T0)}, {s(S_H)}, 7')
    e(f's_add_u32 {s(S_PBST)}, {s(S_PBST)}, {s(S_T0)}')
    e(f's_add_u32 {s(S_PBST)}, {s(S_PBST)}, {WS_PB}')
    for p in range(1, 5):
        e(f's_add_u32 {s(S_PBST + p)}, {s(S_PBST)}, {p * 16384}')
    e(f's_lshl_b32 {s(S_PBLD)}, {s(S_UNIT)}, 12')
    e(f's_add_u32 {s(S_PBLD)}, {s(S_PBLD)}, {WS_PB}')
    e(f's_lshl_b32 {s(S_MBL)}, {s(S_UNIT)}, 7')
    e(f's_add_u32 {s(S_MBL)}, {s(S_MBL)}, {WS_MB}')
    e(f's_mov_b32 {s(S_MBC)}, {s(S_MBL)}')
    e(f's_add_u32 {s(S_MBN)}, {s(S_MBL)}, {MB_STRIDE}')
    e(f's_lshr_b32 {s(S_T0)}, {s(S_W)}, 1')
    e(f's_lshl_b32 {s(S_T0)}, {s(S_T0)}, 12')
    e(f's_and_b32 {s(S_T1)}, {s(S_W)}, 1')
    e(f's_lshl_b32 {s(S_T1)}, {s(S_T1)}, 7')
    e(f's_add_u32 {s(S_KXO)}, {s(S_T0)}, {s(S_T1)}')
    e(f's_add_u32 {s(S_KXO)}, {s(S_KXO)}, {WS_KX}')
    e(f's_lshl_b32 {s(S_T0)}, {s(S_W)}, 11')
    e(f's_add_u32 {s(S_VXO)}, {s(S_T0)}, {WS_VXT}')
    e(f's_add_u32 {s(S_KXM0)}, {s(S_T0)}, {L_KX}')
    e(f's_lshl_b32 {s(S_T0)}, {s(S_W)}, 6')
    e(f's_add_u32 {s(S_KMO)}, {s(S_T0)}, {WS_KM}')
    e(f's_lshl_b32 {s(S_T0)}, {s(S_W)}, 9')
    e(f's_add_u32 {s(S_VMO)}, {s(S_T0)}, {WS_VMT}')
    e(f's_mov_b32 {s(S_WARM)}, {WS_VXT + 2 * 32 * 8192}')
    e(f's_cmp_eq_u32 {s(S_W)}, 2')
    e(f's_cselect_b32 {s(S_WARM)}, {WS_KX + 2 * 32 * 8192}, {s(S_WARM)}')
    e(f's_lshl_b32 {s(S_SH13)}, {s(S_H)}, 13')
    e(f's_mov_b32 {s(S_STEP)}, 0')

    def kx_dma(adv, ta):
        e(f's_add_u32 {s(S_T0)}, {s(S_SH13)}, {WS_KX + adv * 32 * 8192}')
        for f in range(8):
            tau, uu = f >> 2, f & 3
            if f:
                e(f's_add_u32 {s(S_T1)}, {s(S_T0)}, {tau * 4096 + uu * 64}')
            e(f's_mov_b32 m0, {L_KX + f * 1024}')
            e(f'buffer_load_dwordx4 {v(V_KXG)}, {s(S_WS, 4)}, {s(S_T1 if f else S_T0)} offen {ldfl} lds', tag='kx')
        e(f's_add_u32 {s(S_T0)}, {s(S_SH13)}, {WS_VXT + adv * 32 * 8192}')
        e(f'v_lshlrev_b32 {v(ta)}, 3, {v(V_LANE16)}')
        e(f'buffer_load_dword {v(ta)}, {v(ta)}, {s(S_WS, 4)}, {s(S_T0)} offen', tag='warm')

    V_TA = pool.must(1)
    e(f's_cmp_lg_u32 {s(S_W)}, 3')
    e(f's_cbranch_scc1 {name}_nokx0')
    kx_dma(0, V_TA)
    e.label(f'{name}_nokx0')

    ACC = pool.must(16)
    for j in range(0, 16, 2):
        e(f'v_mov_b64 {v(ACC + j, 2)}, 0')

    if 'tot' in dbg:
        e('s_memtime s[94:95]')
        e('s_memrealtime s[96:97]')
        e('s_waitcnt lgkmcnt(0)')
    if slow:
        e(f's_cmp_lg_u32 {s(S_MODE)}, 0')
        e(f's_cbranch_scc1 {name}_slow_0')

    def body(par, sc, pre):
        stamp_i = [0]

        def stamp():
            if stamps:
                e(f's_memtime {s(S_STAMP + 2 * stamp_i[0], 2)}')
                stamp_i[0] += 1

        e.label(f'{pre}_{par}')
        e.hist = []
        e.vm = ['x']
        e.lg = []
        stamp()
        AF = [pool.must(4) for _ in range(naf)]
        ZQ = pool.must(4)
        A0 = pool.must(16)
        TM = pool.must(1)
        e(f's_cmp_eq_u32 {s(S_W)}, 3')
        e(f's_cbranch_scc1 {pre}_{par}_skipA')
        e.cond_begin()
        e.label(f'{pre}_{par}_pollA')
        e(f'buffer_load_dwordx4 {v(A0, 4)}, {v(V_LANE16)}, {s(S_WS, 4)}, {s(S_MBP)} offen sc1')
        e(f'buffer_load_dwordx4 {v(A0 + 4, 4)}, {v(V_LANE16)}, {s(S_WS, 4)}, {s(S_MBP)} offen offset:3072 sc1')
        e(f'buffer_load_dwordx4 {v(A0 + 8, 4)}, {v(V_LANE16)}, {s(S_WS, 4)}, {s(S_MBP + 1)} offen sc1')
        e(f'buffer_load_dwordx4 {v(A0 + 12, 4)}, {v(V_LANE16)}, {s(S_WS, 4)}, {s(S_MBP + 2)} offen sc1')
        e('s_waitcnt vmcnt(0)')
        e(f'v_max3_u32 {v(TM)}, {v(A0)}, {v(A0 + 1)}, {v(A0 + 2)}')
        for j in range(3, 15, 2):
            e(f'v_max3_u32 {v(TM)}, {v(TM)}, {v(A0 + j)}, {v(A0 + j + 1)}')
        e(f'v_max_u32 {v(TM)}, {v(TM)}, {v(A0 + 15)}')
        e(f'v_cmp_eq_u32 vcc, -1, {v(TM)}')
        e(f's_cbranch_vccnz {pre}_{par}_pollA')
        e(f'ds_write_b128 {v(V_MW)}, {v(A0, 4)} offset:{L_MMEM}')
        e(f'ds_write_b128 {v(V_MW)}, {v(A0 + 4, 4)} offset:{L_MMEM + 3072}')
        e(f'ds_write_b128 {v(V_MW)}, {v(A0 + 8, 4)} offset:{L_MMEM + 6144}')
        e(f'ds_write_b128 {v(V_LANE16)}, {v(A0 + 12, 4)} offset:{L_MMEM + 9216}')
        e.cond_end()
        e.label(f'{pre}_{par}_skipA')
        stamp()

        loaded = {}
        str_queue = [sl for sl in order if place[sl][0] == 'str']
        lds_pending = [sl for sl in order if place[sl][0] == 'lds']
        inflight_str = []
        st = dict(reserve=0, str_limit=60, maxs=max_str)

        def pump_str(force=False):
            while str_queue and (force or (len(inflight_str) < st['maxs'] and order.index(str_queue[0]) < st['str_limit'])):
                b = pool.alloc(8, 8, top=True, reserve=0 if force else st['reserve'])
                if b is None:
                    return
                force = False
                sl = str_queue.pop(0)
                loc = place[sl][1]
                sb, o = S_STR + loc // 4096, loc % 4096
                fl = str_flag[sl]
                if 'nostr' not in dbg:
                    e(f'buffer_load_dwordx4 {v(b, 4)}, {v(V_LANE16)}, {s(S_WS, 4)}, {s(sb)} offen offset:{o} {fl}', tag=('str', sl))
                    e(f'buffer_load_dwordx4 {v(b + 4, 4)}, {v(V_LANE16)}, {s(S_WS, 4)}, {s(sb)} offen offset:{o + 1024} {fl}', tag=('str', sl))
                loaded[sl] = b
                inflight_str.append(sl)

        def pump_lds(cur_idx, force=False):
            while lds_pending and order.index(lds_pending[0]) <= cur_idx + la_lds:
                need = force and order.index(lds_pending[0]) <= cur_idx
                b = pool.alloc(8, 8, top=True, reserve=0 if need else st['reserve'])
                if b is None:
                    assert not need, 'no buffer for lds slot'
                    return
                sl = lds_pending.pop(0)
                loc = place[sl][1]
                if 'nolds' not in dbg:
                    e(f'ds_read_b128 {v(b, 4)}, {v(V_LDSW)} offset:{loc}', tag=('lw', sl))
                    e(f'ds_read_b128 {v(b + 4, 4)}, {v(V_LDSW)} offset:{loc + 1024}', tag=('lw', sl))
                loaded[sl] = b

        def smf(acc, af, sl):
            idx = order.index(sl)
            pump_lds(idx, True)
            kind, loc = place[sl]
            if kind == 'reg':
                b = loc
            else:
                if sl not in loaded:
                    print('; WARNING late stream issue', sl)
                    pump_str(True)
                assert sl in loaded, ('not loaded', sl)
                b = loaded[sl]
                if ('nostr' in dbg and kind == 'str') or ('nolds' in dbg and kind == 'lds'):
                    pool.free(b, 8)
                    if kind == 'str':
                        inflight_str.remove(sl)
                    e(f'v_smfmac_f32_16x16x64_bf16 {v(acc, 4)}, {v(af, 4)}, {u(504, 8)}, {v(V_IDX)}')
                    pump_str()
                    return
                if kind == 'lds':
                    e.wait_lg(('lw', sl))
                else:
                    e.wait_vm(('str', sl))
            e(f'v_smfmac_f32_16x16x64_bf16 {v(acc, 4)}, {v(af, 4)}, {u(b, 8)}, {v(V_IDX)}')
            if kind != 'reg':
                pool.free(b, 8)
                if kind == 'str':
                    inflight_str.remove(sl)
                pump_str()

        def run(mf, side, ratio=2):
            side = list(side)
            for f in mf:
                f()
                for _ in range(ratio):
                    if side:
                        side.pop(0)()
            for f in side:
                f()

        pump_str()
        e.wait_lg()
        e('s_barrier')
        pool.free(A0, 16)
        pool.free(TM, 1)
        afseq = list(range(10)) + list(range(10))
        afpos = [0]

        def af_issue():
            k = afpos[0]
            if k >= len(afseq):
                return
            afpos[0] += 1
            t = afseq[k]
            b = AF[k % naf]
            e(f'ds_read_b64_tr_b16 {v(b, 2)}, {v(V_AF)} offset:{1024 * t}', tag=('af', k))
            e(f'ds_read_b64_tr_b16 {v(b + 2, 2)}, {v(V_AF)} offset:{1024 * t + 512}', tag=('af', k))

        for _ in range(naf):
            af_issue()
        pump_str()

        def qk_ops(t, ms, k, last_use):
            ops = []
            first = [True]
            for m in ms:
                for tau in range(2):
                    def f(m=m, tau=tau):
                        if first[0]:
                            e.wait_lg(('af', k))
                            first[0] = False
                        smf(ACC + (0 if m == 'q' else 8) + 4 * tau, AF[k % naf], ((m, t), tau))
                    ops.append(f)
            if last_use:
                lastf = ops[-1]

                def g_():
                    lastf()
                    af_issue()
                ops[-1] = g_
            return ops

        mf = []
        for t in range(8):
            mf += qk_ops(t, 'qk', t, True)
        run(mf[:24], [], 0)
        st['reserve'] = 8
        run(mf[24:], [], 0)
        run(qk_ops(8, 'q', 8, False) + qk_ops(9, 'q', 9, False), [], 0)
        VACC = pool.must(8)
        st['reserve'] = 0
        side = [(lambda j=j: e(f'v_mov_b64 {v(VACC + j, 2)}, 0')) for j in range(0, 8, 2)]

        def fold(acc, dst):
            return [lambda: e(f'v_pk_add_f32 {v(acc, 2)}, {v(acc, 2)}, {v(acc + 2, 2)}'),
                    lambda: e(f'v_cvt_pk_bf16_f32 {v(dst)}, {v(acc)}, {v(acc + 1)}')]
        mf = qk_ops(8, 'k', 8, True) + qk_ops(9, 'k', 9, True)
        side = side + fold(ACC, ZQ) + fold(ACC + 4, ZQ + 1) + [
            lambda: e(f'ds_write2st64_b32 {v(V_QKW)}, {v(ZQ)}, {v(ZQ + 1)} offset0:0 offset1:1', tag='qw')]
        run(mf, side, 3)
        stamp()

        def v_ops(t):
            k = 10 + t
            ops = []
            for tau in range(2):
                def f(tau=tau):
                    if tau == 0:
                        e.wait_lg(('af', k))
                    smf(VACC + 4 * tau, AF[k % naf], (('v', t), tau))
                    if tau == 1:
                        af_issue()
                ops.append(f)
            return ops
        vops = []
        for t in range(10):
            vops += v_ops(t)
        sfr = []
        for uu in range(4):
            sfr += [('q', uu), ('x0', uu), ('x1', uu), ('m', uu)]
        sbuf = {}
        spos = [0]

        def s_issue():
            if spos[0] >= len(sfr):
                return True
            b = pool.alloc(4)
            if b is None:
                return False
            kind, uu = sfr[spos[0]]
            spos[0] += 1
            sbuf[(kind, uu)] = b
            if kind in 'qm':
                base = 0 if kind == 'q' else 2048
                for m in range(2):
                    e(f'ds_read_b64_tr_b16 {v(b + 2 * m, 2)}, {v(V_QKR)} offset:{base + uu * 512 + m * 256}', tag=('si', kind, uu))
            else:
                tau = int(kind[1])
                e(f'ds_read_b128 {v(b, 4)}, {v(V_LANE16)} offset:{L_KX + (tau * 4 + uu) * 1024}', tag=('si', kind, uu))
            return True

        side = fold(ACC + 8, ZQ + 2) + fold(ACC + 12, ZQ + 3) + [
            lambda: e(f'ds_write2st64_b32 {v(V_QKW)}, {v(ZQ + 2)}, {v(ZQ + 3)} offset0:8 offset1:9', tag='kw')]
        n_a = 4
        run(vops[:n_a], side, 2)
        run(vops[n_a:n_a + 3], [], 0)
        e.wait_vm('x')
        e.wait_lg('kw')
        e('s_barrier')
        pool.free(ACC, 16)
        pool.free(ZQ, 4)
        SACC = pool.must(12)
        st['reserve'] = 99
        for _ in range(nsb):
            s_issue()
        run(vops[n_a + 3:nv1], [], 0)
        stamp()
        for uu in range(4):
            for ti, kind in enumerate(('x0', 'x1', 'm')):
                for key in (('q', uu), (kind, uu)):
                    while key not in sbuf:
                        assert s_issue(), 'no S buffer'
                    e.wait_lg(('si',) + key)
                cin = '0' if uu == 0 else v(SACC + 4 * ti, 4)
                e(f'v_mfma_f32_16x16x32_bf16 {v(SACC + 4 * ti, 4)}, {v(sbuf[(kind, uu)], 4)}, {v(sbuf[("q", uu)], 4)}, {cin}')
                pool.free(sbuf[(kind, uu)], 4)
                if kind == 'm':
                    pool.free(sbuf[('q', uu)], 4)
                    s_issue()
                s_issue()
        stamp()
        VX = pool.must(8)
        e(f's_add_u32 {s(S_T0)}, {s(S_SH13)}, {s(S_VXO)}')
        e(f'buffer_load_dwordx4 {v(VX, 4)}, {v(V_LANE16)}, {s(S_WS, 4)}, {s(S_T0)} offen {ldfl}', tag='vx')
        e(f'buffer_load_dwordx4 {v(VX + 4, 4)}, {v(V_LANE16)}, {s(S_WS, 4)}, {s(S_T0)} offen offset:1024 {ldfl}', tag='vx')
        M = pool.must(2)
        ZV = pool.must(2)
        PM = pool.must(4)
        ONES = pool.must(4)
        P = pool.must(4)
        KMT = pool.must(4)
        KMT0 = pool.must(1)
        C0 = SACC + 8
        sm = []
        sm.append(lambda: e(f'v_cndmask_b32 {v(C0)}, {v(C0 + 2)}, {v(C0)}, {s(S_MASKLO, 2)}'))
        sm.append(lambda: e(f'v_cndmask_b32 {v(C0 + 1)}, {v(C0 + 3)}, {v(C0 + 1)}, {s(S_MASKLO, 2)}'))
        sm.append(lambda: e(f'v_max3_f32 {v(M)}, {v(SACC)}, {v(SACC + 1)}, {v(SACC + 2)}'))
        for j in (3, 5, 7):
            sm.append(lambda j=j: e(f'v_max3_f32 {v(M)}, {v(M)}, {v(SACC + j)}, {v(SACC + j + 1)}'))
        sm.append(lambda: e(f'v_max_f32 {v(M)}, {v(M)}, {v(SACC + 9)}'))
        for sw_ in ('v_permlane32_swap_b32', 'v_permlane16_swap_b32'):
            sm.append(lambda: e(f'v_mov_b32 {v(M + 1)}, {v(M)}'))
            sm.append(lambda sw_=sw_: e(f'{sw_} {v(M)}, {v(M + 1)}'))
            sm.append(lambda: e(f'v_max_f32 {v(M)}, {v(M)}, {v(M + 1)}'))
        sm.append(lambda: e(f'v_mul_f32 {v(M)}, {s(S_C1)}, {v(M)}'))
        for j in range(0, 10, 2):
            sm.append(lambda j=j: e(f'v_pk_fma_f32 {v(SACC + j, 2)}, {v(SACC + j, 2)}, {s(S_C1, 2)}, {v(M, 2)} op_sel_hi:[1,1,0] neg_lo:[0,0,1] neg_hi:[0,0,1]'))
        for j in range(10):
            sm.append(lambda j=j: e(f'v_exp_f32 {v(SACC + j)}, {v(SACC + j)}'))
        for j in range(4):
            sm.append(lambda j=j: e(f'v_cvt_pk_bf16_f32 {v(P + j)}, {v(SACC + 2 * j)}, {v(SACC + 2 * j + 1)}'))
        sm.append(lambda: e(f'v_cvt_pk_bf16_f32 {v(PM)}, {v(C0)}, {v(C0 + 1)}'))
        sm.append(lambda: e(f'v_cvt_pk_bf16_f32 {v(PM + 3)}, {v(C0)}, {v(C0 + 1)}'))
        pre_side = [
            lambda: e(f's_lshl_b32 {s(S_T1)}, {s(S_W)}, 9'),
            lambda: e(f'v_add_u32 {v(P)}, {s(S_T1)}, {v(V_QKR)}'),
            lambda: e(f'ds_read_b64_tr_b16 {v(KMT, 2)}, {v(P)} offset:2048', tag='kmt'),
            lambda: e(f'ds_read_b64_tr_b16 {v(KMT + 2, 2)}, {v(P)} offset:2304', tag='kmt'),
            lambda: e(f'v_mov_b32 {v(PM + 1)}, 0'), lambda: e(f'v_mov_b32 {v(PM + 2)}, 0')]
        pre_side += [(lambda j=j: e(f'v_mov_b32 {v(ONES + j)}, 0x3f803f80')) for j in range(4)]
        rest_v = vops[nv1:]
        k0 = min(2, len(rest_v))
        run(rest_v[:k0], pre_side, 5)
        run(rest_v[k0:], sm[:3 * (len(rest_v) - k0)], 3)
        sm = sm[3 * (len(rest_v) - k0):]
        for b in AF:
            pool.free(b, 4)
        for f in sm[:4]:
            f()
        sm = sm[4:]
        for f in fold(VACC, ZV) + fold(VACC + 4, ZV + 1):
            f()
        TA = KMT0
        e(f's_lshr_b32 {s(S_T0)}, {s(S_SH13)}, 2')
        e(f's_add_u32 {s(S_T0)}, {s(S_T0)}, {s(S_VMO)}')
        e(f'v_lshrrev_b32 {v(TA)}, 1, {v(V_LANE16)}')
        e(f'buffer_store_dwordx2 {v(ZV, 2)}, {v(TA)}, {s(S_WS, 4)}, {s(S_T0)} offen {ostfl}', tag='out')
        e(f's_lshr_b32 {s(S_T2)}, {s(S_SH13)}, 1')
        e(f's_add_u32 {s(S_T2)}, {s(S_T2)}, {s(S_KMO)}')
        e.wait_lg('kmt')
        e(f'buffer_store_dwordx4 {v(KMT, 4)}, {v(V_KXG)}, {s(S_WS, 4)}, {s(S_T2)} offen {ostfl}', tag='out')
        e(f's_cmp_eq_u32 {s(S_STEP)}, {nsteps - 1}')
        e(f's_cbranch_scc1 {name}_fin')
        pool.free(VACC, 8)
        OA = pool.must(12)
        st['reserve'] = 0
        st['str_limit'] = 99
        pump_str()
        for f in sm:
            f()
        e.wait_vm('vx')
        e(f'v_mfma_f32_16x16x32_bf16 {v(OA + 8, 4)}, {v(ONES, 4)}, {v(P, 4)}, 0')
        e(f'v_mfma_f32_16x16x32_bf16 {v(OA, 4)}, {v(VX, 4)}, {v(P, 4)}, 0')
        e(f'v_mfma_f32_16x16x32_bf16 {v(OA + 4, 4)}, {v(VX + 4, 4)}, {v(P, 4)}, 0')
        pool.free(SACC, 12)
        pool.free(VX, 8)
        OACC = [pool.must(8) for _ in range(2)]
        for j in range(0, 8, 2):
            e(f'v_mov_b64 {v(OACC[0] + j, 2)}, 0')
        e(f'v_mfma_f32_16x16x16_bf16 {v(OA + 8, 4)}, {v(ONES, 2)}, {v(PM, 2)}, {v(OA + 8, 4)}')
        e(f'v_mfma_f32_16x16x16_bf16 {v(OA, 4)}, {v(ZV, 2)}, {v(PM, 2)}, {v(OA, 4)}')
        e(f'v_mfma_f32_16x16x16_bf16 {v(OA + 4, 4)}, {v(ZV, 2)}, {v(PM + 2, 2)}, {v(OA + 4, 4)}')
        pool.free(ONES, 4)
        pool.free(PM, 4)
        pump_str()
        for j in range(0, 8, 2):
            e(f'v_mov_b64 {v(OACC[1] + j, 2)}, 0')
        e(f'v_rcp_f32 {v(M)}, {v(OA + 8)}')
        for j in range(0, 8, 2):
            e(f'v_pk_mul_f32 {v(OA + j, 2)}, {v(OA + j, 2)}, {v(M, 2)} op_sel_hi:[1,0]')
        for j in range(4):
            e(f'v_cvt_pk_bf16_f32 {v(P + j)}, {v(OA + 2 * j)}, {v(OA + 2 * j + 1)}')
        e(f'ds_write_b128 {v(V_OW)}, {v(P, 4)}', tag='ow')
        pool.free(M, 2)
        pool.free(OA, 12)
        pool.free(ZV, 2)
        pool.free(KMT, 4)
        pool.free(KMT0, 1)
        NOA = noa
        if NOA == 3:
            OACC.append(pool.must(8))
        OF = pool.must(8)
        ZO = [pool.must(2) for _ in range(2)]
        pump_str()
        pump_lds(order.index((('o', 0, 0), 0)))
        e.wait_lg('ow')
        e('s_barrier')
        pool.free(P, 4)
        e(f'ds_read_b128 {v(OF, 4)}, {v(V_OR)}', tag='of0')
        e(f'ds_read_b128 {v(OF + 4, 4)}, {v(V_OR)} offset:1024', tag='of1')
        if NOA == 3:
            for j in range(0, 8, 2):
                e(f'v_mov_b64 {v(OACC[2] + j, 2)}, 0')
        pump_lds(order.index((('o', 0, 0), 0)))
        stamp()

        def finish(p):
            ac = OACC[p % NOA]
            z = ZO[p & 1]
            it = fold(ac, z) + fold(ac + 4, z + 1) + [
                lambda: e(f'buffer_store_dwordx2 {v(z, 2)}, {v(V_PBST)}, {s(S_WS, 4)}, {s(S_PBST + p)} offen {sc}', tag='pst')]
            if p + NOA < 5:
                it += [(lambda j=j: e(f'v_mov_b64 {v(ac + j, 2)}, 0')) for j in range(0, 8, 2)]
            return it

        for p in range(5):
            ac = OACC[p % NOA]
            mf = []
            for t in range(2):
                for tau in range(2):
                    def f(t=t, tau=tau):
                        if p == 0 and tau == 0:
                            e.wait_lg(f'of{t}')
                        smf(ac + 4 * tau, OF + 4 * t, (('o', t, p), tau))
                    mf.append(f)
            side = finish(p - 1) if p >= 1 else []
            run(mf[:2], [], 0)
            run(mf[2:], side, 3)
        for f in finish(4):
            f()
        for b in OACC:
            pool.free(b, 8)
        for b in ZO:
            pool.free(b, 2)
        pool.free(OF, 8)
        assert not str_queue and not lds_pending and not inflight_str
        stamp()
        for i in range(16):
            assert (ACC + i) in pool.free_
            pool.free_.remove(ACC + i)
        lab = f'{pre}_{par}_nowarm'
        e(f's_cmp_lg_u32 {s(S_W)}, 3')
        e(f's_cbranch_scc1 {lab}')
        e.cond_begin()
        kx_dma(1, V_TA)
        e.cond_end()
        e.label(lab)
        for j in range(0, 16, 2):
            e(f'v_mov_b64 {v(ACC + j, 2)}, 0')
        e(f's_add_u32 {s(S_SH13)}, {s(S_SH13)}, {32 * 8192}')
        e(f's_add_u32 {s(S_STEP)}, {s(S_STEP)}, 1')
        nored = f'{pre}_{par}_nored'
        e(f's_cmp_ge_u32 {s(S_UNIT)}, 80')
        e(f's_cbranch_scc1 {nored}')
        RB = pool.must(16)
        RA = pool.must(8)
        TM = pool.must(4)
        for j in range(4):
            e(f'v_mov_b32 {v(TM + j)}, -1')
        e.label(f'{pre}_{par}_pollK')
        for i in range(4):
            e(f'buffer_load_dwordx4 {v(RB + 4 * i, 4)}, {v(V_LANE16)}, {s(S_WS, 4)}, {s(S_PBLD)} offen offset:{1024 * i} sc1', tag=('rb', i))
        for i in range(4):
            e.wait_vm(('rb', i))
            cin = '0' if i == 0 else v(RA, 4)
            e(f'v_mfma_f32_16x16x32_bf16 {v(RA, 4)}, {v(V_SEL, 4)}, {v(RB + 4 * i, 4)}, {cin}')
        for j in range(4):
            e(f'v_add_f32_dpp {v(RA + 4 + j)}, {v(RA + j)}, {v(RA + j)} row_ror:8 row_mask:0xf bank_mask:0xf')
        e(f'v_cmp_u_f32 vcc, {v(RA + 4)}, {v(RA + 4)}')
        e(f'v_cvt_pk_bf16_f32 {v(RA)}, {v(RA + 4)}, {v(RA + 5)}')
        e(f'v_cvt_pk_bf16_f32 {v(RA + 1)}, {v(RA + 6)}, {v(RA + 7)}')
        e(f's_cbranch_vccz {pre}_{par}_okK')
        e(f'v_max3_u32 {v(RA + 2)}, {v(RB)}, {v(RB + 1)}, {v(RB + 2)}')
        for j in range(3, 15, 2):
            e(f'v_max3_u32 {v(RA + 2)}, {v(RA + 2)}, {v(RB + j)}, {v(RB + j + 1)}')
        e(f'v_max_u32 {v(RA + 2)}, {v(RA + 2)}, {v(RB + 15)}')
        e(f'v_cmp_eq_u32 vcc, -1, {v(RA + 2)}')
        e(f's_cbranch_vccnz {pre}_{par}_pollK')
        e.label(f'{pre}_{par}_okK')
        e(f'buffer_store_dwordx2 {v(RA, 2)}, {v(V_MBST)}, {s(S_WS, 4)}, {s(S_MBN)} offen {sc}', tag='mst')
        stamp()
        for i in range(4):
            e(f'buffer_store_dwordx4 {v(TM, 4)}, {v(V_LANE16)}, {s(S_WS, 4)}, {s(S_PBLD)} offen offset:{1024 * i} {sc}', tag='rst')
        e(f'buffer_store_dwordx2 {v(TM, 2)}, {v(V_MBST)}, {s(S_WS, 4)}, {s(S_MBC)} offen {sc}', tag='rst')
        pool.free(RB, 16)
        pool.free(RA, 8)
        pool.free(TM, 4)
        e.label(nored)
        for p in range(5):
            e(f's_xor_b32 {s(S_PBST + p)}, {s(S_PBST + p)}, {PB_STRIDE}')
        e(f's_xor_b32 {s(S_PBLD)}, {s(S_PBLD)}, {PB_STRIDE}')
        e(f's_add_u32 {s(S_MSL)}, {s(S_MSL)}, {MB_STRIDE}')
        e(f's_and_b32 {s(S_MSL)}, {s(S_MSL)}, {3 * MB_STRIDE}')
        for i in range(3):
            e(f's_add_u32 {s(S_MBP + i)}, {s(S_MBB + i)}, {s(S_MSL)}')
        e(f's_mov_b32 {s(S_MBC)}, {s(S_MBN)}')
        e(f's_add_u32 {s(S_T0)}, {s(S_MSL)}, {MB_STRIDE}')
        e(f's_and_b32 {s(S_T0)}, {s(S_T0)}, {3 * MB_STRIDE}')
        e(f's_add_u32 {s(S_MBN)}, {s(S_MBL)}, {s(S_T0)}')
        if stamps:
            stamp()
            e('s_waitcnt lgkmcnt(0)')
            e(f's_lshl_b32 {s(S_T0)}, {s(S_H)}, 2')
            e(f's_add_u32 {s(S_T0)}, {s(S_T0)}, {s(S_W)}')
            e(f's_lshl_b32 {s(S_T0)}, {s(S_T0)}, 6')
            e(f's_add_u32 {s(S_T0)}, {s(S_T0)}, {s(S_STEP)}')
            e(f's_lshl_b32 {s(S_T0)}, {s(S_T0)}, 6')
            e(f's_add_u32 {s(S_T0)}, {s(S_T0)}, {0x0F000000 - 64}')
            TS = pool.must(2)
            e(f'v_mov_b32 {v(TS + 1)}, 0')
            for i in range(stamp_i[0]):
                e(f'v_mov_b32 {v(TS)}, {s(S_STAMP + 2 * i)}')
                e(f'buffer_store_dword {v(TS)}, {v(TS + 1)}, {s(S_WS, 4)}, {s(S_T0)} offen offset:{4 * i}')
            pool.free(TS, 2)


    body(0, '', f'{name}_fast')
    e(f's_branch {name}_fast_0')
    if slow:
        body(0, 'sc1', f'{name}_slow')
        e(f's_branch {name}_slow_0')
    e.label(f'{name}_fin')
    if 'tot' in dbg:
        e('s_memtime s[98:99]')
        e('s_memrealtime s[100:101]')
        e('s_waitcnt lgkmcnt(0)')
        e('s_sub_u32 s98, s98, s94')
        e('s_sub_u32 s100, s100, s96')
        e('v_mov_b32 v16, s98')
        e('v_mov_b32 v17, s100')
        e('v_mov_b32 v18, 0')
        e(f's_lshl_b32 {s(S_T0)}, {s(S_H)}, 6')
        e(f's_add_u32 {s(S_T0)}, {s(S_T0)}, 0x0F800000')
        e(f'buffer_store_dwordx2 v[16:17], v18, {s(S_WS, 4)}, {s(S_T0)} offen')
    e.label(f'{name}_exit')
    e('s_endpgm')
    print(f'; chain2: n_reg={n_reg} n_lds={n_lds} n_str={n_str} pool peak={pool.peak} of {pool_end - NPERS}')


if __name__ == '__main__':
    import argparse
    ap = argparse.ArgumentParser()
    ap.add_argument('--out', default='chain_test.s')
    ap.add_argument('--stamps', action='store_true')
    ap.add_argument('--pool', type=int, default=96)
    ap.add_argument('--nlds', type=int, default=17)
    ap.add_argument('--maxstr', type=int, default=3)
    ap.add_argument('--naf', type=int, default=3)
    ap.add_argument('--nv1', type=int, default=12)
    ap.add_argument('--lalds', type=int, default=5)
    ap.add_argument('--nsb', type=int, default=6)
    ap.add_argument('--noa', type=int, default=2)
    ap.add_argument('--dbg', default='')
    ap.add_argument('--nsteps', type=int, default=64)
    ap.add_argument('--ldfl', default='')
    ap.add_argument('--ostfl', default='')
    ap.add_argument('--strfl', default='')
    args = ap.parse_args()
    em = Em()
    gen_chain(em, stamps=args.stamps, pool_end=args.pool, n_lds=args.nlds, max_str=args.maxstr, naf=args.naf,
              nv1=args.nv1, la_lds=args.lalds, nsb=args.nsb, noa=args.noa, dbg=args.dbg, nsteps=args.nsteps, ldfl=args.ldfl, ostfl=args.ostfl,
              str_flags=tuple(x if x != '-' else '' for x in args.strfl.split(',')) if args.strfl else ())
    hdr = '; @launch kernel=chain_kernel grid=(256,1,1) block=(256,1,1) lds=163840\n'
    hdr += '.amdgcn_target "amdgcn-amd-amdhsa--gfx950"\n.text\n.globl chain_kernel\n'
    open(args.out, 'w').write(hdr + em.text() + kd('chain_kernel', 512, 256))
```

```python
from emit import *
from layout import *
from gen_chain import Pool, f32bits, kd
import struct

S_WS = 4
S_DBG = 8
S_WQ = 12
S_WK = 16
S_WV = 20
S_WO = 24
S_H = 28
S_W = 29
S_STEP = 30
S_T0 = 31
S_T1 = 32
S_T2 = 33
S_T3 = 34
S_MODE = 35
S_UNIT = 36
S_XCC = 37
S_C1 = 38
S_MASKLO = 40
S_LDSW = 42
S_SH13 = 43
S_MBP = 44
S_MBB = 47
S_PBST = 50
S_MSL = 55
S_MBL = 56
S_PBLD = 60
S_MBC = 62
S_MBN = 63
S_STR = 64
S_KMP = 72
S_VXO = 73
S_KMO = 74
S_VMO = 75
S_VMP = 15
S_RSP = 13
S_MRP = 14
S_DUM = 46
S_KVOK = 16
S_RU = 12
S_KXW = 57
S_KXM = 58
S_WRM = 3
S_M9D = 49
S_MDST = 61
WS_DUMMY = 0x0E800000
S_STAMP = 76

V_LANE16 = 0
V_IDX = 1
V_AF = 2
V_QKR = 3
V_LDSW = 4
V_PK1 = 5
V_PK2 = 6
V_WT = 7
V_MBST = 13
NPERS = 8
V_QKW, V_OW, V_OR, V_PBST, V_KXG = 8, 9, 10, 11, 12


_fj = [0]


def far_jump(e, label, sp):
    _fj[0] += 1
    here = f'Lfj{_fj[0]}'
    e(f's_getpc_b64 {s(sp, 2)}')
    e.label(here)
    e.raw(f'    s_add_u32 {s(sp)}, {s(sp)}, {label}-{here}')
    e.raw(f'    s_addc_u32 {s(sp + 1)}, {s(sp + 1)}, 0')
    e(f's_setpc_b64 {s(sp, 2)}')


def gen_chain(em, name='chain_kernel', mega=None, n_lds=17, pool_end=72, nsteps=64, stamps=False, la_lds=5, max_str=4,
              naf=3, vgap=1, wat=13, ackA=True, ackK=True, nv1=12, nva=7, smr=3, slow=True, npre1=2, npre2=2,
              lds_at=(26, 32, 35, 38, 40, 44, 46, 61, 63, 65, 67, 69, 71, 73, 75, 77, 79, 36, 9),
              str_at=(0, 1, 2, 3, 20, 27, 34, 42, 46, 39, 32, 78, 76), strfl='sc1', nsb=6, noa=2, dbg='', ldfl='nt', ostfl='nt'):
    WL = n_lds * 2048
    L_MMEM = 0
    L_MQ = L_MMEM + 10240
    L_MK = L_MQ + 2048
    L_O = L_MK + 2048
    L_KX = L_O + 2048
    L_WB = L_KX + 8192
    L_END = L_WB + 4 * WL
    assert L_END <= 163840, L_END
    NRING = WL // 4096

    units = [(m, t) for m in 'qkv' for t in range(10)] + [('o', t, p) for p in range(5) for t in range(2)]
    order = []
    for t in range(8):
        for m in 'qk':
            for tau in range(2):
                order.append(((m, t), tau))
    for m in 'qk':
        for t in (8, 9):
            for tau in range(2):
                order.append(((m, t), tau))
    for t in range(10):
        for tau in range(2):
            order.append((('v', t), tau))
    for p in range(5):
        for t in range(2):
            for tau in range(2):
                order.append((('o', t, p), tau))
    n_reg = (512 - pool_end) // 8
    n_str = 80 - n_reg - n_lds
    assert 0 <= n_str <= 14
    place = {}
    for i, oi in enumerate(sorted(str_at[:n_str])):
        place[order[oi]] = ('str', i * 2048)
    for i, oi in enumerate(sorted(lds_at[:n_lds])):
        assert order[oi] not in place
        place[order[oi]] = ('lds', i * 2048)
    assert len(place) == n_str + n_lds
    r = pool_end
    for sl in order:
        if sl not in place:
            place[sl] = ('reg', r)
            r += 8
    assert r == pool_end + n_reg * 8
    LDS_G = 28672

    pool = Pool(NPERS, pool_end)
    e = em
    em.raw('.p2align 8')
    em.raw(f'.type {name},@function')
    em.label(name)
    e('s_cmp_lt_u32 s2, 256')
    e(f's_cbranch_scc1 {name}_go')
    e('s_endpgm')
    e.label(f'{name}_go')
    if 'rt' in dbg:
        e('s_memrealtime s[92:93]')
    e('s_load_dwordx4 s[48:51], s[0:1], 16')
    e('s_load_dwordx4 s[52:55], s[0:1], 32')
    e('s_load_dwordx4 s[56:59], s[0:1], 112')
    e(f's_getreg_b32 {s(S_XCC)}, hwreg(HW_REG_XCC_ID)')
    e(f's_and_b32 {s(S_XCC)}, {s(S_XCC)}, 15')
    e('v_lshrrev_b32 v20, 6, v0')
    e('v_and_b32 v16, 63, v0')
    e(f'v_readfirstlane_b32 {s(S_W)}, v20')
    e('s_waitcnt lgkmcnt(0)')
    LN = 16

    def srd(d, src, size):
        e(f's_mov_b32 {s(d)}, {s(src)}')
        e(f's_and_b32 {s(d + 1)}, {s(src + 1)}, 0xffff')
        e(f's_mov_b32 {s(d + 2)}, {size}')
        e(f's_mov_b32 {s(d + 3)}, 0x20000')
    srd(S_WQ, 48, 5242880)
    srd(S_WK, 50, 5242880)
    srd(S_WV, 52, 5242880)
    srd(S_WO, 54, 5242880)
    srd(S_DBG, 56, 256)
    srd(S_WS, 58, WS_SIZE)

    e(f's_cmp_lg_u32 {s(S_W)}, 0')
    e(f's_cbranch_scc1 {name}_elected')
    e('v_mov_b32 v20, 1')
    e('v_mov_b32 v21, 1')
    e(f's_lshl_b32 {s(S_T0)}, {s(S_XCC)}, 2')
    e(f'v_mov_b32 v22, {s(S_T0)}')
    e('v_mov_b32 v23, 64')
    e('s_mov_b64 exec, 1')
    e(f'buffer_atomic_add v20, v22, {s(S_DBG, 4)}, 0 offen sc0')
    e(f'buffer_atomic_add v21, v23, {s(S_DBG, 4)}, 0 offen sc0')
    e.wait_vm()
    e(f'v_readfirstlane_b32 {s(S_T0)}, v20')
    e(f'v_readfirstlane_b32 {s(S_T1)}, v21')
    e('v_mov_b32 v23, 68')
    e(f's_cmp_eq_u32 {s(S_T0)}, 31')
    e(f's_cbranch_scc0 {name}_el1')
    e(f's_add_u32 {s(S_T2)}, {s(S_XCC)}, 1')
    e(f'v_mov_b32 v20, {s(S_T2)}')
    e('v_mov_b32 v21, 0')
    e(f'buffer_atomic_cmpswap v[20:21], v23, {s(S_DBG, 4)}, 0 offen')
    e.label(f'{name}_el1')
    e(f's_cmp_eq_u32 {s(S_T1)}, 255')
    e(f's_cbranch_scc0 {name}_el2')
    e('v_mov_b32 v20, 0xff')
    e('v_mov_b32 v21, 0')
    e(f'buffer_atomic_cmpswap v[20:21], v23, {s(S_DBG, 4)}, 0 offen')
    e.label(f'{name}_el2')
    e.label(f'{name}_el3')
    e(f'buffer_load_dword v20, v23, {s(S_DBG, 4)}, 0 offen sc1')
    e.wait_vm()
    e(f'v_readfirstlane_b32 {s(S_T2)}, v20')
    e(f's_cmp_eq_u32 {s(S_T2)}, 0')
    e(f's_cbranch_scc1 {name}_el3')
    e(f's_mov_b32 {s(S_H)}, 0xffff')
    e(f's_add_u32 {s(S_T3)}, {s(S_XCC)}, 1')
    e(f's_cmp_eq_u32 {s(S_T2)}, {s(S_T3)}')
    e(f's_cselect_b32 {s(S_H)}, {s(S_T0)}, {s(S_H)}')
    e(f's_cmp_eq_u32 {s(S_T2)}, 0xff')
    e(f's_cselect_b32 {s(S_H)}, {s(S_T1)}, {s(S_H)}')
    e(f's_cselect_b32 {s(S_MODE)}, 1, 0')
    e(f's_lshl_b32 {s(S_T0)}, {s(S_MODE)}, 16')
    e(f's_or_b32 {s(S_T0)}, {s(S_T0)}, {s(S_H)}')
    e(f'v_mov_b32 v20, {s(S_T0)}')
    e('v_mov_b32 v21, 0')
    e('ds_write_b32 v21, v20')
    e('s_mov_b64 exec, -1')
    e.wait_lg()
    e.label(f'{name}_elected')
    e('s_barrier')
    e('v_mov_b32 v21, 0')
    e('ds_read_b32 v20, v21')
    e.wait_lg()
    e(f'v_readfirstlane_b32 {s(S_T0)}, v20')
    e(f's_and_b32 {s(S_H)}, {s(S_T0)}, 0xffff')
    e(f's_lshr_b32 {s(S_MODE)}, {s(S_T0)}, 16')
    e('s_barrier')
    e(f's_cmp_ge_u32 {s(S_H)}, 32')
    if mega:
        e(f's_cbranch_scc0 {name}_ischain')
        far_jump(e, mega, 44)
        e.label(f'{name}_ischain')
    else:
        e(f's_cbranch_scc1 {name}_exit')

    g, c, rp, cp, g1, g2, sw = 17, 18, 19, 20, 21, 22, 23
    T = 24
    e(f'v_lshrrev_b32 {v(g)}, 4, {v(LN)}')
    e(f'v_and_b32 {v(c)}, 15, {v(LN)}')
    e(f'v_lshrrev_b32 {v(rp)}, 2, {v(c)}')
    e(f'v_and_b32 {v(cp)}, 3, {v(LN)}')
    e(f'v_and_b32 {v(g1)}, 1, {v(g)}')
    e(f'v_lshrrev_b32 {v(g2)}, 1, {v(g)}')
    e(f'v_lshl_add_u32 {v(sw)}, {v(g1)}, 1, {v(g2)}')
    e(f'v_lshlrev_b32 {v(V_LANE16)}, 4, {v(LN)}')
    e(f'v_and_b32 {v(T)}, 2, {v(LN)}')
    e(f'v_cmp_ne_u32 vcc, 0, {v(T)}')
    e(f'v_mov_b32 {v(T + 1)}, 0x4444')
    e(f'v_mov_b32 {v(T + 2)}, 0xeeee')
    e(f'v_cndmask_b32 {v(V_IDX)}, {v(T + 1)}, {v(T + 2)}, vcc')
    e(f'v_lshl_add_u32 {v(T)}, {v(g)}, 2, {v(rp)}')
    e(f'v_lshlrev_b32 {v(T + 1)}, 3, {v(cp)}')
    e(f'v_lshl_add_u32 {v(V_AF)}, {v(T)}, 5, {v(T + 1)}')
    if L_MMEM:
        e(f'v_add_u32 {v(V_AF)}, {L_MMEM}, {v(V_AF)}')
    e(f'v_and_b32 {v(T + 2)}, 1, {v(cp)}')
    e(f'v_lshlrev_b32 {v(T + 2)}, 3, {v(T + 2)}')
    e(f'v_lshl_add_u32 {v(V_QKR)}, {v(T)}, 4, {v(T + 2)}')
    e(f'v_add_u32 {v(V_QKR)}, {L_MQ}, {v(V_QKR)}')
    e(f's_lshl_b32 {s(S_T0)}, {s(S_W)}, 5')
    e(f'v_add_u32 {v(T)}, {s(S_T0)}, {v(c)}')
    e(f'v_lshlrev_b32 {v(T + 2)}, 2, {v(sw)}')
    e(f'v_lshl_add_u32 {v(V_QKW)}, {v(T)}, 4, {v(T + 2)}')
    e(f'v_add_u32 {v(V_QKW)}, {L_MQ}, {v(V_QKW)}')
    e(f's_lshl_b32 {s(S_T0)}, {s(S_W)}, 2')
    e(f'v_add_u32 {v(T)}, {s(S_T0)}, {v(g)}')
    e(f'v_and_b32 {v(T + 3)}, 7, {v(LN)}')
    e(f'v_lshl_add_u32 {v(T)}, {v(T)}, 3, {v(T + 3)}')
    e(f'v_lshlrev_b32 {v(V_OW)}, 4, {v(T)}')
    e(f'v_add_u32 {v(V_OW)}, {L_O}, {v(V_OW)}')
    e(f'v_and_b32 {v(T)}, 1, {v(rp)}')
    e(f'v_lshrrev_b32 {v(T + 2)}, 1, {v(rp)}')
    e(f'v_lshl_add_u32 {v(T)}, {v(T)}, 1, {v(T + 2)}')
    e(f'v_and_b32 {v(T + 2)}, 1, {v(LN)}')
    e(f'v_lshl_add_u32 {v(T)}, {v(T)}, 1, {v(T + 2)}')
    e(f'v_lshl_add_u32 {v(T)}, {v(g)}, 3, {v(T)}')
    e(f'v_lshrrev_b32 {v(T + 2)}, 1, {v(cp)}')
    e(f'v_lshl_add_u32 {v(T)}, {v(T + 2)}, 5, {v(T)}')
    e(f'v_lshlrev_b32 {v(V_OR)}, 4, {v(T)}')
    e(f'v_add_u32 {v(V_OR)}, {L_O}, {v(V_OR)}')
    e(f'v_lshlrev_b32 {v(T)}, 12, {v(rp)}')
    e(f'v_lshl_add_u32 {v(T)}, {v(cp)}, 5, {v(T)}')
    e(f'v_lshl_add_u32 {v(V_PBST)}, {v(g)}, 3, {v(T)}')
    e(f'v_lshrrev_b32 {v(T)}, 1, {v(T + 3)}')
    e(f'v_and_b32 {v(T + 2)}, 1, {v(LN)}')
    e(f'v_lshl_add_u32 {v(T + 2)}, {v(T + 2)}, 1, {v(g1)}')
    e(f'v_lshlrev_b32 {v(T + 2)}, 3, {v(T + 2)}')
    e(f'v_lshl_add_u32 {v(V_MBST)}, {v(T)}, 5, {v(T + 2)}')
    e(f'v_lshlrev_b32 {v(T)}, 4, {v(g)}')
    e(f'v_lshl_add_u32 {v(V_KXG)}, {v(c)}, 8, {v(T)}')
    e(f's_mul_i32 {s(S_LDSW)}, {s(S_W)}, {WL}')
    e(f's_add_u32 {s(S_LDSW)}, {s(S_LDSW)}, {L_WB}')
    e(f'v_add_u32 {v(V_LDSW)}, {s(S_LDSW)}, {v(V_LANE16)}')
    e(f'v_lshl_or_b32 {v(V_IDX)}, {v(V_KXG)}, 16, {v(V_IDX)}')
    e(f'v_lshl_or_b32 {v(V_PK1)}, {v(V_OR)}, 16, {v(V_OW)}')
    e(f'v_lshl_or_b32 {v(V_PK2)}, {v(V_PBST)}, 16, {v(V_QKW)}')
    e(f'v_lshl_or_b32 {v(V_IDX)}, {v(V_MBST)}, 25, {v(V_IDX)}')
    cc = f32bits((128 ** -0.5) * 1.4426950408889634)
    e(f's_mov_b32 {s(S_C1)}, {cc:#x}')
    e(f's_mov_b32 {s(S_C1 + 1)}, {cc:#x}')
    e(f's_mov_b32 {s(S_MASKLO)}, -1')
    e(f's_mov_b32 {s(S_MASKLO + 1)}, 0')
    e(f's_lshl_b32 {s(S_T0)}, {s(S_H)}, 1')
    e(f's_add_u32 {s(S_T0)}, {s(S_T0)}, {s(S_W)}')
    e(f's_lshr_b32 {s(S_T1)}, {s(S_T0)}, 4')
    e(f's_and_b32 {s(S_T0)}, {s(S_T0)}, 15')
    e(f's_mul_i32 {s(S_T1)}, {s(S_T1)}, 20')
    e(f's_add_u32 {s(S_UNIT)}, {s(S_T0)}, {s(S_T1)}')
    e(f's_add_u32 {s(S_UNIT)}, {s(S_UNIT)}, 4')
    e(f's_lshr_b32 {s(S_T1)}, {s(S_H)}, 2')
    e(f's_mul_i32 {s(S_T1)}, {s(S_T1)}, 20')
    e(f's_and_b32 {s(S_T0)}, {s(S_H)}, 3')
    e(f's_add_u32 {s(S_T0)}, {s(S_T0)}, {s(S_T1)}')
    e(f's_cmp_lt_u32 {s(S_H)}, 16')
    e(f's_cselect_b32 {s(S_T0)}, {s(S_T0)}, 255')
    e(f's_cmp_eq_u32 {s(S_W)}, 2')
    e(f's_cselect_b32 {s(S_UNIT)}, {s(S_T0)}, {s(S_UNIT)}')
    e(f's_cmp_eq_u32 {s(S_W)}, 3')
    e(f's_cselect_b32 {s(S_UNIT)}, 255, {s(S_UNIT)}')

    VG_QKV, VG_O, VT_QKV, VT_O = T + 6, T + 7, T + 8, T + 9
    e(f'v_lshrrev_b32 {v(T)}, 2, {v(LN)}')
    e(f'v_lshlrev_b32 {v(T + 1)}, 4, {v(cp)}')
    e(f'v_lshl_add_u32 {v(VG_QKV)}, {v(T)}, 13, {v(T + 1)}')
    e(f'v_mul_u32_u24 {v(T)}, 1280, {v(T)}')
    e(f'v_add_u32 {v(VG_O)}, {v(T)}, {v(T + 1)}')
    e(f'v_lshrrev_b32 {v(T + 2)}, 1, {v(rp)}')
    e(f'v_and_b32 {v(T + 3)}, 1, {v(rp)}')
    e(f'v_lshlrev_b32 {v(T + 5)}, 3, {v(cp)}')
    e(f'v_lshlrev_b32 {v(T + 4)}, 5, {v(g1)}')
    e(f'v_lshl_add_u32 {v(T + 4)}, {v(T + 2)}, 4, {v(T + 4)}')
    e(f'v_lshl_add_u32 {v(T + 4)}, {v(g2)}, 2, {v(T + 4)}')
    e(f'v_add_u32 {v(T + 4)}, {v(T + 4)}, {v(T + 3)}')
    e(f'v_lshl_add_u32 {v(VT_QKV)}, {v(T + 4)}, 6, {v(T + 5)}')
    e(f'v_add_u32 {v(VT_QKV)}, {s(S_LDSW)}, {v(VT_QKV)}')
    e(f'v_lshlrev_b32 {v(T + 4)}, 5, {v(T + 2)}')
    e(f'v_lshl_add_u32 {v(T + 4)}, {v(g1)}, 4, {v(T + 4)}')
    e(f'v_lshl_add_u32 {v(T + 4)}, {v(g2)}, 2, {v(T + 4)}')
    e(f'v_add_u32 {v(T + 4)}, {v(T + 4)}, {v(T + 3)}')
    e(f'v_lshl_add_u32 {v(VT_O)}, {v(T + 4)}, 6, {v(T + 5)}')
    e(f'v_add_u32 {v(VT_O)}, {s(S_LDSW)}, {v(VT_O)}')
    e(f's_lshl_b32 {s(S_T2)}, {s(S_H)}, 8')
    e(f's_lshl_b32 {s(S_T0)}, {s(S_W)}, 6')
    e(f's_add_u32 {s(S_T2)}, {s(S_T2)}, {s(S_T0)}')
    e(f's_mul_i32 {s(S_T3)}, {s(S_H)}, {128 * 1280}')
    e(f's_mul_i32 {s(S_T0)}, {s(S_W)}, 320')
    e(f's_add_u32 {s(S_T3)}, {s(S_T3)}, {s(S_T0)}')
    e(f's_mul_i32 {s(S_STR)}, {s(S_H)}, {STR_HSTRIDE}')
    e(f's_mul_i32 {s(S_T0)}, {s(S_W)}, {STR_WSTRIDE}')
    e(f's_add_u32 {s(S_STR)}, {s(S_STR)}, {s(S_T0)}')
    e(f's_add_u32 {s(S_STR)}, {s(S_STR)}, {WS_STR}')
    for i in range(1, 8):
        e(f's_add_u32 {s(S_STR + i)}, {s(S_STR)}, {4096 * i}')

    ulist = units
    TMPW = [36 + 8 * i for i in range((pool_end - 36) // 8)]
    tw = [0]

    def issue_dma(i):
        un = ulist[i]
        pos = i % NRING
        for q in range(4):
            if un[0] == 'o':
                _, t, p = un
                off = (64 * t + 16 * q) * 1280 + 64 * p
                e(f's_add_u32 {s(S_T0)}, {s(S_T3)}, {off}')
                srdn, vg = S_WO, VG_O
            else:
                m, t = un
                off = (64 * t + 16 * q) * 8192
                e(f's_add_u32 {s(S_T0)}, {s(S_T2)}, {off}')
                srdn, vg = {'q': S_WQ, 'k': S_WK, 'v': S_WV}[m], VG_QKV
            e(f's_add_u32 m0, {s(S_LDSW)}, {pos * 4096 + q * 1024}')
            e(f'buffer_load_dwordx4 {v(vg)}, {s(srdn, 4)}, {s(S_T0)} offen lds', tag=('dma', i))

    def process(i):
        un = ulist[i]
        pos = i % NRING
        e.wait_vm(('dma', i))
        vt = VT_O if un[0] == 'o' else VT_QKV
        tmp = {}
        for tau in range(2):
            kind, loc = place[(un, tau)]
            if kind == 'reg':
                dst = loc
            else:
                k = tw[0] % len(TMPW)
                tw[0] += 1
                dst = TMPW[k]

                tmp[tau] = (dst, k)
            for n in range(4):
                off = (8 * (n >> 1) + 2 * (n & 1)) * 64 + 32 * tau
                e(f'ds_read_b64_tr_b16 {u(dst + 2 * n, 2)}, {v(vt)} offset:{pos * 4096 + off}')
        e.wait_lg()
        for tau, (src, k) in tmp.items():
            kind, loc = place[(un, tau)]
            if kind == 'lds':
                loc += LDS_G
            e(f's_add_u32 {s(S_T0)}, {s(S_STR)}, {loc}')
            e(f'buffer_store_dwordx4 {v(src, 4)}, {v(V_LANE16)}, {s(S_WS, 4)}, {s(S_T0)} offen', tag=('st', k))
            e(f'buffer_store_dwordx4 {v(src + 4, 4)}, {v(V_LANE16)}, {s(S_WS, 4)}, {s(S_T0)} offen offset:1024', tag=('st', k))

    for i in range(NRING):
        issue_dma(i)
    for i in range(40):
        process(i)
        if i + NRING < 40:
            issue_dma(i + NRING)
    e.wait_vm()
    e.wait_lg()
    for i in range(2 * n_lds):
        e(f's_add_u32 {s(S_T0)}, {s(S_STR)}, {LDS_G + i * 1024}')
        e(f's_add_u32 m0, {s(S_LDSW)}, {i * 1024}')
        e(f'buffer_load_dwordx4 {v(V_LANE16)}, {s(S_WS, 4)}, {s(S_T0)} offen sc1 lds')
    e.wait_vm()

    e(f's_lshl_b32 {s(S_T0)}, {s(S_W)}, 10')
    e(f's_and_b32 {s(S_T0)}, {s(S_W)}, 1')
    e(f's_mul_i32 {s(S_MDST)}, {s(S_T0)}, 5120')
    e(f's_add_u32 {s(S_MBB)}, {s(S_MDST)}, {WS_MB}')
    e(f's_mov_b32 {s(S_MBP)}, {s(S_MBB)}')
    e(f's_add_u32 {s(S_MBP + 1)}, {s(S_MBP)}, 4096')
    e(f's_lshl_b32 {s(S_DUM)}, {s(S_H)}, 2')
    e(f's_add_u32 {s(S_DUM)}, {s(S_DUM)}, {s(S_W)}')
    e(f's_lshl_b32 {s(S_DUM)}, {s(S_DUM)}, 12')
    e(f's_add_u32 {s(S_DUM)}, {s(S_DUM)}, {WS_DUMMY}')
    e(f's_mov_b32 {s(S_MSL)}, 0')
    e(f's_mul_i32 {s(S_PBST)}, {s(S_W)}, {20 * 4096}')
    e(f's_lshl_b32 {s(S_T0)}, {s(S_H)}, 7')
    e(f's_add_u32 {s(S_PBST)}, {s(S_PBST)}, {s(S_T0)}')
    e(f's_add_u32 {s(S_PBST)}, {s(S_PBST)}, {WS_PB}')
    for p in range(1, 5):
        e(f's_add_u32 {s(S_PBST + p)}, {s(S_PBST)}, {p * 16384}')
    e(f's_lshl_b32 {s(S_PBLD)}, {s(S_UNIT)}, 12')
    e(f's_add_u32 {s(S_PBLD)}, {s(S_PBLD)}, {WS_PB}')
    e(f's_lshl_b32 {s(S_MBL)}, {s(S_UNIT)}, 7')
    e(f's_add_u32 {s(S_MBL)}, {s(S_MBL)}, {WS_MB}')
    e(f's_mov_b32 {s(S_MBC)}, {s(S_MBL)}')
    e(f's_add_u32 {s(S_MBN)}, {s(S_MBL)}, {MB_STRIDE}')
    e(f's_lshl_b32 {s(S_T0)}, {s(S_W)}, 11')
    e(f's_lshl_b32 {s(S_T1)}, {s(S_H)}, 13')
    e(f's_add_u32 {s(S_VXO)}, {s(S_T0)}, {s(S_T1)}')
    e(f's_add_u32 {s(S_VXO)}, {s(S_VXO)}, {WS_VXT}')
    e(f's_lshl_b32 {s(S_T0)}, {s(S_W)}, 9')
    e(f's_lshl_b32 {s(S_T1)}, {s(S_H)}, 12')
    e(f's_add_u32 {s(S_KMO)}, {s(S_T0)}, {s(S_T1)}')
    e(f's_add_u32 {s(S_KMO)}, {s(S_KMO)}, {WS_KM}')
    e(f's_lshl_b32 {s(S_SH13)}, {s(S_H)}, 13')
    e(f's_mov_b32 {s(S_STEP)}, 0')

    e(f's_lshr_b32 {s(S_T0)}, {s(S_W)}, 1')
    e(f's_lshl_b32 {s(S_T0)}, {s(S_T0)}, 12')
    e(f's_and_b32 {s(S_T1)}, {s(S_W)}, 1')
    e(f's_lshl_b32 {s(S_T1)}, {s(S_T1)}, 7')
    e(f's_add_u32 {s(S_KXW)}, {s(S_T0)}, {s(S_T1)}')
    e(f's_add_u32 {s(S_KXW)}, {s(S_KXW)}, {s(S_SH13)}')
    e(f's_add_u32 {s(S_KXW)}, {s(S_KXW)}, {WS_KX}')
    e(f's_lshl_b32 {s(S_KXM)}, {s(S_W)}, 11')
    e(f's_add_u32 {s(S_KXM)}, {s(S_KXM)}, {L_KX}')
    e(f's_lshl_b32 {s(S_WRM)}, {s(S_W)}, 11')
    e(f's_add_u32 {s(S_WRM)}, {s(S_WRM)}, {s(S_SH13)}')
    e(f's_add_u32 {s(S_WRM)}, {s(S_WRM)}, {WS_KX + 32 * 8192}')
    e(f's_mov_b32 {s(S_RSP)}, {s(S_DUM)}')
    e(f's_mov_b32 {s(S_MRP)}, {s(S_DUM)}')
    e(f's_mov_b32 {s(S_KMP)}, 0x3f80')
    e(f's_lshl_b32 {s(S_VMP)}, {s(S_W)}, 9')
    assert WS_VXT - WS_KX == 1 << 24

    def kx_items(adv, tmp):
        return [
            lambda: e(f'v_bfe_u32 {v(tmp)}, {v(V_IDX)}, 16, 12'),
            lambda: e(f's_add_u32 {s(S_T0)}, {s(S_KXW)}, {adv * 32 * 8192}'),
            lambda: e(f's_mov_b32 m0, {s(S_KXM)}'),
            lambda: e(f'buffer_load_dwordx4 {v(tmp)}, {s(S_WS, 4)}, {s(S_T0)} offen {ldfl} lds', tag='kx'),
            lambda: e(f's_add_u32 {s(S_T0)}, {s(S_T0)}, 64'),
            lambda: e(f's_add_u32 m0, {s(S_KXM)}, 1024'),
            lambda: e(f'buffer_load_dwordx4 {v(tmp)}, {s(S_WS, 4)}, {s(S_T0)} offen {ldfl} lds', tag='kx'),
        ]

    def kv_wait(lab, t0, t1):
        e(f's_cmp_ge_u32 {s(S_KVOK)}, {s(S_T2)}')
        e(f's_cbranch_scc1 {lab}_ok')
        e.cond_begin()
        e(f'v_and_b32 {v(t0)}, 0xf0, {v(V_LANE16)}')
        e(f'v_lshlrev_b32 {v(t0)}, 3, {v(t0)}')
        e(f's_mov_b32 {s(S_T3)}, {WS_CTR + C_KV * 128}')
        e.label(f'{lab}_spin')
        e(f'buffer_load_dword {v(t1)}, {v(t0)}, {s(S_WS, 4)}, {s(S_T3)} offen sc1')
        e('s_waitcnt vmcnt(0)')
        e(f'v_cmp_le_u32 vcc, 32, {v(t1)}')
        e(f's_and_b32 {s(S_KVOK)}, vcc_lo, 0xffff')
        e(f's_ff0_i32_b32 {s(S_KVOK)}, {s(S_KVOK)}')
        e(f's_cmp_ge_u32 {s(S_KVOK)}, {s(S_T2)}')
        e(f's_cbranch_scc0 {lab}_spin')
        e.cond_end()
        e.label(f'{lab}_ok')

    def signal_block(lab, t0):
        e(f's_lshl_b32 {s(S_T2)}, {s(S_T2)}, 7')
        e(f's_add_u32 {s(S_T2)}, {s(S_T2)}, {WS_CTR + C_CH * 128}')
        e(f'v_mov_b32 {v(t0)}, 1')
        e('s_mov_b64 exec, 1')
        e(f'buffer_atomic_add {v(t0)}, {v(V_LANE16)}, {s(S_WS, 4)}, {s(S_T2)} offen')
        e('s_mov_b64 exec, -1')

    ACC = pool.must(16)
    if mega:
        e(f's_mov_b32 {s(S_KVOK)}, 0')
        e(f's_mov_b32 {s(S_T2)}, 1')
        kv_wait(f'{name}_kv0', ACC, ACC + 1)
    for j in range(0, 16, 2):
        e(f'v_mov_b64 {v(ACC + j, 2)}, 0')
    npre = npre1 + npre2
    pre_slots = [sl for sl in order if place[sl][0] == 'str'][:npre]
    PRE = [pool.alloc(8, 8, top=True) for _ in pre_slots]

    def claim(b, n):
        for i in range(n):
            assert (b + i) in pool.free_, ('claim', b, n)
            pool.free_.remove(b + i)

    def str_items(sl, b, tag):
        loc = place[sl][1]
        sb, o = S_STR + loc // 4096, loc % 4096
        if 'nostr' in dbg:
            return []
        return [lambda: e(f'buffer_load_dwordx4 {v(b, 4)}, {v(V_LANE16)}, {s(S_WS, 4)}, {s(sb)} offen offset:{o} {strfl}', tag=tag),
                lambda: e(f'buffer_load_dwordx4 {v(b + 4, 4)}, {v(V_LANE16)}, {s(S_WS, 4)}, {s(sb)} offen offset:{o + 1024} {strfl}', tag=tag)]

    for sl, b in zip(pre_slots, PRE):
        for f in str_items(sl, b, 'pre'):
            f()
    tt = pool.must(1)
    for it in kx_items(0, tt):
        it()
    pool.free(tt, 1)
    e.wait_vm()
    if 'rt' in dbg:
        e('s_memrealtime s[94:95]')
        e('s_waitcnt lgkmcnt(0)')
    if 'tot' in dbg:
        e('s_memtime s[94:95]')
        e('s_memrealtime s[96:97]')
        e('s_waitcnt lgkmcnt(0)')
    if slow:
        e(f's_cmp_lg_u32 {s(S_MODE)}, 0')
        e(f's_cbranch_scc1 {name}_slow_0')

    def km_items(tmp, ta):
        it = [lambda: e(f'v_lshrrev_b32 {v(ta)}, 1, {v(V_LANE16)}'),
              lambda: e(f'v_add_u32 {v(tmp + 2)}, {s(S_VMP)}, {v(ta)}'),
              lambda: e(f'ds_read_b64 {v(tmp, 2)}, {v(tmp + 2)} offset:{L_MK}', tag='kmt')]
        it2 = []
        if 'noout' not in dbg:
            it2 = [lambda: e.wait_lg('kmt'),
                   lambda: e(f'buffer_store_dwordx2 {v(tmp, 2)}, {v(ta)}, {s(S_WS, 4)}, {s(S_KMO)} offen {ostfl}', tag='out')]
        return it, it2

    nst = [0]
    if stamps:
        for i in range(17, 28):
            e(f's_mov_b32 {s(i)}, 0')
        e('s_memtime s[100:101]')
        e('s_waitcnt lgkmcnt(0)')
        for i in range(12):
            e(f's_mov_b32 {s(S_STAMP + 2 * i)}, s100')

    def body(par, sc, pre):
        stamp_i = [0]
        L = f'{pre}_{par}'

        def stamp():
            if stamps:
                e(f's_memtime {s(S_STAMP + 2 * stamp_i[0], 2)}')
                stamp_i[0] += 1

        e.label(L)
        e.hist = []
        e.vm = []
        e.lg = []
        stamp()
        TM = pool.must(8)
        e(f's_cmp_ge_u32 {s(S_W)}, 2')
        e(f's_cbranch_scc1 {L}_skipA')
        e.cond_begin()

        def dma_set():
            e(f's_add_u32 m0, {s(S_MDST)}, {L_MMEM}')
            for i in range(4):
                e(f'buffer_load_dwordx4 {v(V_LANE16)}, {s(S_WS, 4)}, {s(S_MBP)} offen offset:{1024 * i} sc1 lds')
            e(f's_add_u32 m0, {s(S_MDST)}, {L_MMEM + 4096}')
            e(f'buffer_load_dwordx4 {v(V_LANE16)}, {s(S_WS, 4)}, {s(S_MBP + 1)} offen sc1 lds')
        e(f'v_mov_b32 {v(TM)}, -1')
        e(f'v_mov_b32 {v(TM + 1)}, -1')
        e(f'v_lshlrev_b32 {v(TM + 2)}, 2, {v(V_LANE16)}')
        for j in range(0, 16, 2):
            e(f'v_mov_b64 {v(ACC + j, 2)}, 0')
        e(f'v_and_b32 {v(TM + 3)}, 0xf0, {v(V_LANE16)}')
        e(f'v_lshlrev_b32 {v(TM + 3)}, 2, {v(TM + 3)}')
        e(f'v_add_u32 {v(TM + 3)}, {s(S_MDST)}, {v(TM + 3)}')
        e(f'v_lshrrev_b32 {v(TM + 4)}, 25, {v(V_IDX)}')
        e(f'v_and_b32 {v(TM + 4)}, 0x78, {v(TM + 4)}')
        if ackA:
            e('s_waitcnt vmcnt(0)')
        dma_set()
        e(f'buffer_store_dwordx2 {v(TM, 2)}, {v(TM + 4)}, {s(S_WS, 4)}, {s(S_MRP)} offen {sc}', tag='rst')
        e(f'buffer_store_dword {v(TM)}, {v(TM + 2)}, {s(S_WS, 4)}, {s(S_RSP)} offen {sc}', tag='rst')
        e(f'v_add_u32 {v(TM + 2)}, {s(S_MDST)}, {v(TM + 2)}')
        e('s_waitcnt vmcnt(2)')
        e(f's_branch {L}_pollA1')
        e.label(f'{L}_pollA')
        dma_set()
        e('s_waitcnt vmcnt(0)')
        e.label(f'{L}_pollA1')
        e(f'ds_read_b32 {v(TM)}, {v(TM + 2)} offset:{L_MMEM}')
        e(f'ds_read_b32 {v(TM + 1)}, {v(TM + 3)} offset:{L_MMEM + 4096}')
        e('s_waitcnt lgkmcnt(0)')
        e(f'v_max_u32 {v(TM)}, {v(TM)}, {v(TM + 1)}')
        e(f'v_cmp_eq_u32 vcc, -1, {v(TM)}')
        e(f's_cbranch_vccnz {L}_pollA')
        e.cond_end()
        e(f's_branch {L}_joinA')
        e.label(f'{L}_skipA')
        for j in range(0, 16, 2):
            e(f'v_mov_b64 {v(ACC + j, 2)}, 0')
        e('s_waitcnt vmcnt(0)')
        e.label(f'{L}_joinA')
        e('s_barrier')
        stamp()
        pool.free(TM, 8)

        loaded = {sl: b for sl, b in zip(pre_slots, PRE)}
        str_queue = [sl for sl in order if place[sl][0] == 'str' and sl not in loaded]
        lds_pending = [sl for sl in order if place[sl][0] == 'lds']
        inflight_str = []
        vq = []
        st = dict(reserve=0, str_limit=60, maxs=max_str, gap=0)

        def pump_str(force=False):
            while str_queue and (force or (len(inflight_str) < st['maxs'] and order.index(str_queue[0]) < st['str_limit'])):
                b = pool.alloc(8, 8, top=True, reserve=0 if force else st['reserve'])
                if b is None:
                    return
                force = False
                sl = str_queue.pop(0)
                vq.extend(str_items(sl, b, ('str', sl)))
                loaded[sl] = b
                inflight_str.append(sl)

        def drain_vq(all_=False):
            if all_:
                while vq:
                    vq.pop(0)()
                return
            st['gap'] -= 1
            if vq and st['gap'] <= 0:
                vq.pop(0)()
                st['gap'] = vgap

        def pump_lds(cur_idx, force=False):
            while lds_pending and order.index(lds_pending[0]) <= cur_idx + la_lds:
                need = force and order.index(lds_pending[0]) <= cur_idx
                b = pool.alloc(8, 8, top=True, reserve=0 if need else st['reserve'])
                if b is None:
                    assert not need, 'no buffer for lds slot'
                    return
                lead = order.index(lds_pending[0]) - cur_idx
                if lead < 4:
                    print('; WARNING short lds lead', order.index(lds_pending[0]), lead)
                sl = lds_pending.pop(0)
                loc = place[sl][1]
                if 'nolds' not in dbg:
                    e(f'ds_read_b128 {v(b, 4)}, {v(V_LDSW)} offset:{loc}', tag=('lw', sl))
                    e(f'ds_read_b128 {v(b + 4, 4)}, {v(V_LDSW)} offset:{loc + 1024}', tag=('lw', sl))
                loaded[sl] = b

        def smf(acc, af, sl):
            idx = order.index(sl)
            kind, loc = place[sl]
            if kind == 'reg':
                b = loc
            else:
                if sl not in loaded:
                    if kind == 'lds':
                        pump_lds(idx, True)
                    else:
                        print('; WARNING late stream issue', idx)
                        pump_str(True)
                b = loaded[sl]
                if kind == 'lds':
                    e.wait_lg(('lw', sl))
                else:
                    if sl in inflight_str:
                        drain_vq(True)
                    e.wait_vm(('str', sl))
            e(f'v_smfmac_f32_16x16x64_bf16 {v(acc, 4)}, {v(af, 4)}, {u(b, 8)}, {v(V_IDX)}')
            if kind != 'reg':
                pool.free(b, 8)
                if sl in inflight_str:
                    inflight_str.remove(sl)
            pump_str()
            pump_lds(idx + 1)
            drain_vq()

        def run(mf, side, ratio=2):
            side = list(side)
            for f in mf:
                f()
                for _ in range(ratio):
                    if side:
                        side.pop(0)()
            for f in side:
                f()

        AF = [pool.must(4) for _ in range(naf)]
        ZQ = pool.must(4)
        SM = None
        afseq = list(range(10)) + list(range(10))
        afpos = [0]

        def af_issue():
            k = afpos[0]
            if k >= len(afseq):
                return
            afpos[0] += 1
            t = afseq[k]
            b = AF[k % naf]
            e(f'ds_read_b64_tr_b16 {v(b, 2)}, {v(V_AF)} offset:{1024 * t}', tag=('af', k))
            e(f'ds_read_b64_tr_b16 {v(b + 2, 2)}, {v(V_AF)} offset:{1024 * t + 512}', tag=('af', k))

        for _ in range(naf):
            af_issue()
        if mega:
            e(f's_and_b32 {s(S_T2)}, {s(S_STEP)}, 3')
            e(f's_lshl_b32 {s(S_T2)}, {s(S_T2)}, 2')
            e(f's_add_u32 {s(S_T2)}, {s(S_T2)}, {s(S_W)}')
            e(f's_cmp_lg_u32 {s(S_T2)}, 3')
            e(f's_cbranch_scc1 {L}_nosig')
            e(f's_cmp_eq_u32 {s(S_STEP)}, 0')
            e(f's_cbranch_scc1 {L}_nosig')
            e.cond_begin()
            e(f's_lshr_b32 {s(S_T2)}, {s(S_STEP)}, 2')
            e(f's_sub_u32 {s(S_T2)}, {s(S_T2)}, 1')
            signal_block(L, ZQ)
            e.cond_end()
            e.label(f'{L}_nosig')

        def qk_ops(t, ms, k, last_use):
            ops = []
            first = [True]
            for m in ms:
                for tau in range(2):
                    def f(m=m, tau=tau):
                        if first[0]:
                            e.wait_lg(('af', k))
                            first[0] = False
                        smf(ACC + (0 if m == 'q' else 8) + 4 * tau, AF[k % naf], ((m, t), tau))
                    ops.append(f)
            if last_use:
                lastf = ops[-1]

                def g_():
                    lastf()
                    af_issue()
                ops[-1] = g_
            return ops

        mf = []
        for t in range(8):
            mf += qk_ops(t, 'qk', t, True)
        WT = V_WT
        wside = []
        if 'nocold' not in dbg:
            wside = [lambda: e(f'v_and_b32 {v(ZQ)}, 0xf0, {v(V_LANE16)}'),
                     lambda: e(f'v_and_b32 {v(ZQ + 1)}, 0x100, {v(V_LANE16)}'),
                     lambda: e(f'v_lshlrev_b32 {v(ZQ + 1)}, 16, {v(ZQ + 1)}'),
                     lambda: e(f'v_lshl_add_u32 {v(ZQ)}, {v(ZQ)}, 3, {v(ZQ + 1)}')]
        run(mf[:wat], wside, 1)
        drain_vq(True)
        if mega:
            e(f's_add_u32 {s(S_T2)}, {s(S_STEP)}, 5')
            e(f's_lshr_b32 {s(S_T2)}, {s(S_T2)}, 2')
            e(f's_min_u32 {s(S_T2)}, {s(S_T2)}, 16')
            kv_wait(f'{L}_kv', ZQ + 2, ZQ + 3)
        if 'nocold' not in dbg:
            e(f'buffer_load_dword {v(WT)}, {v(ZQ)}, {s(S_WS, 4)}, {s(S_WRM)} offen', tag='warm')
        run(mf[wat:28], [], 0)
        st['reserve'] = 8
        run(mf[28:], [], 0)
        SM = pool.must(8, 8)
        st['reserve'] = 0
        run(qk_ops(8, 'q', 8, False) + qk_ops(9, 'q', 9, False), [], 0)

        def fold(acc, dst):
            return [lambda: e(f'v_pk_add_f32 {v(acc, 2)}, {v(acc, 2)}, {v(acc + 2, 2)}'),
                    lambda: e(f'v_cvt_pk_bf16_f32 {v(dst)}, {v(acc)}, {v(acc + 1)}')]
        VACC = ACC
        QW = ZQ + 2
        QWA = SM + 7
        mf = qk_ops(8, 'k', 8, True) + qk_ops(9, 'k', 9, True)
        side = [lambda: e(f'v_and_b32 {v(QWA)}, 0xffff, {v(V_PK2)}')]
        side2 = fold(ACC, ZQ) + fold(ACC + 4, ZQ + 1) + [
            lambda: e(f'ds_write2st64_b32 {v(QWA)}, {v(ZQ)}, {v(ZQ + 1)} offset0:0 offset1:1', tag='qw')]
        side2 += [(lambda j=j: e(f'v_mov_b64 {v(VACC + j, 2)}, 0')) for j in range(0, 8, 2)]
        run(mf[:2], side, 1)
        run(mf[2:], side2, 4)
        stamp()

        def v_ops(t):
            k = 10 + t
            ops = []
            for tau in range(2):
                def f(tau=tau):
                    if tau == 0:
                        e.wait_lg(('af', k))
                    smf(VACC + 4 * tau, AF[k % naf], (('v', t), tau))
                    if tau == 1:
                        af_issue()
                ops.append(f)
            return ops
        vops = []
        for t in range(10):
            vops += v_ops(t)
        sfr = []
        for uu in range(4):
            sfr += [('x0', uu), ('x1', uu), ('m', uu), ('q', uu)]
        sbuf = {}
        spos = [0]

        def s_issue():
            if spos[0] >= len(sfr):
                return True
            b = pool.alloc(4)
            if b is None:
                return False
            kind, uu = sfr[spos[0]]
            spos[0] += 1
            sbuf[(kind, uu)] = b
            if kind in 'qm':
                base = 0 if kind == 'q' else 2048
                for m in range(2):
                    e(f'ds_read_b64_tr_b16 {v(b + 2 * m, 2)}, {v(V_QKR)} offset:{base + uu * 512 + m * 256}', tag=('si', uu))
            else:
                tau = int(kind[1])
                e(f'ds_read_b128 {v(b, 4)}, {v(V_LANE16)} offset:{L_KX + (tau * 4 + uu) * 1024}', tag=('si', uu))
            return True

        side = fold(ACC + 8, ZQ + 2) + fold(ACC + 12, ZQ + 3) + [
            lambda: e(f'ds_write2st64_b32 {v(QWA)}, {v(ZQ + 2)}, {v(ZQ + 3)} offset0:8 offset1:9', tag='kw')]
        run(vops[:2], side, 3)
        run(vops[2:nva], [], 0)
        drain_vq(True)
        e.wait_lg('kw')
        e('s_barrier')
        pool.free(ZQ, 4)
        pool.free(ACC + 8, 8)
        st['reserve'] = 99
        SACC = pool.must(12)
        for _ in range(nsb):
            s_issue()
        run(vops[nva:nv1], [], 0)
        stamp()
        for uu in range(4):
            while ('q', uu) not in sbuf:
                assert s_issue(), 'no S buffer'
            e.wait_lg(('si', uu))
            for ti, kind in enumerate(('x0', 'x1', 'm')):
                cin = '0' if uu == 0 else v(SACC + 4 * ti, 4)
                e(f'v_mfma_f32_16x16x32_bf16 {v(SACC + 4 * ti, 4)}, {v(sbuf[(kind, uu)], 4)}, {v(sbuf[("q", uu)], 4)}, {cin}')
                pool.free(sbuf[(kind, uu)], 4)
                if kind == 'm':
                    pool.free(sbuf[('q', uu)], 4)
                    s_issue()
                s_issue()
        stamp()
        VX = pool.must(8)
        e(f'buffer_load_dwordx4 {v(VX, 4)}, {v(V_LANE16)}, {s(S_WS, 4)}, {s(S_VXO)} offen {ldfl}', tag='vx')
        e(f'buffer_load_dwordx4 {v(VX + 4, 4)}, {v(V_LANE16)}, {s(S_WS, 4)}, {s(S_VXO)} offen offset:1024 {ldfl}', tag='vx')
        M = SM
        ZV = SM + 2
        P = pool.must(4)
        ONES = pool.must(4)
        PM = pool.must(4)
        C0 = SACC + 8
        cst = [(lambda j=j: e(f'v_mov_b32 {v(ONES + j)}, 0x3f803f80')) for j in range(4)]
        cst += [lambda: e(f'v_mov_b32 {v(PM + 1)}, 0'), lambda: e(f'v_mov_b32 {v(PM + 2)}, 0')]
        sm = []
        sm.append(lambda: e(f'v_max3_f32 {v(M)}, {v(SACC)}, {v(SACC + 1)}, {v(SACC + 2)}'))
        sm.append(lambda: e(f'v_max3_f32 {v(M + 1)}, {v(SACC + 3)}, {v(SACC + 4)}, {v(SACC + 5)}'))
        sm.append(lambda: e(f'v_cndmask_b32 {v(C0)}, {v(C0 + 2)}, {v(C0)}, {s(S_MASKLO, 2)}'))
        sm.append(lambda: e(f'v_cndmask_b32 {v(C0 + 1)}, {v(C0 + 3)}, {v(C0 + 1)}, {s(S_MASKLO, 2)}'))
        sm.append(lambda: e(f'v_max3_f32 {v(M)}, {v(M)}, {v(SACC + 6)}, {v(SACC + 7)}'))
        sm.append(lambda: e(f'v_max3_f32 {v(M + 1)}, {v(M + 1)}, {v(SACC + 8)}, {v(SACC + 9)}'))
        sm.append(lambda: e(f'v_max_f32 {v(M)}, {v(M)}, {v(M + 1)}'))
        for sw_ in ('v_permlane32_swap_b32', 'v_permlane16_swap_b32'):
            sm.append(lambda: e(f'v_mov_b32 {v(M + 1)}, {v(M)}'))
            sm.append(lambda sw_=sw_: e(f'{sw_} {v(M)}, {v(M + 1)}'))
            sm.append(lambda: e(f'v_max_f32 {v(M)}, {v(M)}, {v(M + 1)}'))
        sm.append(lambda: e(f'v_mul_f32 {v(M)}, {s(S_C1)}, {v(M)}'))
        for j in range(0, 10, 2):
            sm.append(lambda j=j: e(f'v_pk_fma_f32 {v(SACC + j, 2)}, {v(SACC + j, 2)}, {s(S_C1, 2)}, {v(M, 2)} op_sel_hi:[1,1,0] neg_lo:[0,0,1] neg_hi:[0,0,1]'))
        for j in range(10):
            sm.append(lambda j=j: e(f'v_exp_f32 {v(SACC + j)}, {v(SACC + j)}'))
        for j in range(4):
            sm.append(lambda j=j: e(f'v_cvt_pk_bf16_f32 {v(P + j)}, {v(SACC + 2 * j)}, {v(SACC + 2 * j + 1)}'))
        sm.append(lambda: e(f'v_cvt_pk_bf16_f32 {v(PM)}, {v(C0)}, {v(C0 + 1)}'))
        sm.append(lambda: e(f'v_cvt_pk_bf16_f32 {v(PM + 3)}, {v(C0)}, {v(C0 + 1)}'))
        rest_v = vops[nv1:]
        k0 = min(2, len(rest_v))
        KMT = pool.must(4)
        k1, k2 = km_items(KMT, SM + 4)
        run(rest_v[:k0], k1 + cst, 5)
        nn = smr * (len(rest_v) - k0)
        run(rest_v[k0:], sm[:nn], smr)
        sm = sm[nn:]
        for b in AF:
            pool.free(b, 4)
        OA = pool.must(12)
        for f in sm[:5]:
            f()
        sm = sm[5:]
        for f in fold(VACC, ZV) + fold(VACC + 4, ZV + 1):
            f()
        if 'noout' not in dbg:
            e(f'buffer_store_dwordx2 {v(ZV, 2)}, {v(SM + 4)}, {s(S_WS, 4)}, {s(S_KMO)} offen offset:2048 {ostfl}', tag='out')
        for f in k2:
            f()
        e(f's_cmp_eq_u32 {s(S_STEP)}, {nsteps - 1}')
        e(f's_cbranch_scc1 {name}_fin')
        pool.free(VACC, 8)
        pool.free(KMT, 4)
        for f in sm:
            f()
        e.wait_vm('vx')
        e(f'v_mfma_f32_16x16x32_bf16 {v(OA + 8, 4)}, {v(ONES, 4)}, {v(P, 4)}, 0')
        e(f'v_mfma_f32_16x16x32_bf16 {v(OA, 4)}, {v(VX, 4)}, {v(P, 4)}, 0')
        e(f'v_mfma_f32_16x16x32_bf16 {v(OA + 4, 4)}, {v(VX + 4, 4)}, {v(P, 4)}, 0')
        pool.free(SACC, 12)
        pool.free(VX, 8)
        OACC = [pool.must(8) for _ in range(2)]
        for j in range(0, 8, 2):
            e(f'v_mov_b64 {v(OACC[0] + j, 2)}, 0')
        e(f'v_mfma_f32_16x16x16_bf16 {v(OA + 8, 4)}, {v(ONES, 2)}, {v(PM, 2)}, {v(OA + 8, 4)}')
        e(f'v_mfma_f32_16x16x16_bf16 {v(OA, 4)}, {v(ZV, 2)}, {v(PM, 2)}, {v(OA, 4)}')
        e(f'v_mfma_f32_16x16x16_bf16 {v(OA + 4, 4)}, {v(ZV, 2)}, {v(PM + 2, 2)}, {v(OA + 4, 4)}')
        for j in range(0, 8, 2):
            e(f'v_mov_b64 {v(OACC[1] + j, 2)}, 0')
        e(f'v_and_b32 {v(M + 1)}, 0xffff, {v(V_PK1)}')
        e(f'v_rcp_f32 {v(M)}, {v(OA + 8)}')
        for j in range(0, 8, 2):
            e(f'v_pk_mul_f32 {v(OA + j, 2)}, {v(OA + j, 2)}, {v(M, 2)} op_sel_hi:[1,0]')
        for j in range(4):
            e(f'v_cvt_pk_bf16_f32 {v(P + j)}, {v(OA + 2 * j)}, {v(OA + 2 * j + 1)}')
        e(f'ds_write_b128 {v(M + 1)}, {v(P, 4)}', tag='ow')
        pool.free(ONES, 4)
        pool.free(PM, 4)
        pool.free(OA, 12)
        NOA = 2
        OF = pool.must(8)
        ZO = [SM + 2, SM + 6]
        PBA = SM + 4
        e(f'v_lshrrev_b32 {v(M)}, 16, {v(V_PK1)}')
        e(f'v_lshrrev_b32 {v(PBA)}, 16, {v(V_PK2)}')
        st['reserve'] = 0
        st['str_limit'] = 99
        pump_str()
        drain_vq(True)
        pump_lds(60)
        e.wait_lg('ow')
        e('s_barrier')
        pool.free(P, 4)
        e(f'ds_read_b128 {v(OF, 4)}, {v(M)}', tag='of0')
        e(f'ds_read_b128 {v(OF + 4, 4)}, {v(M)} offset:1024', tag='of1')
        pump_lds(60)
        for f in kx_items(1, M + 1):
            f()
        stamp()

        def finish(p):
            ac = OACC[p % NOA]
            z = ZO[p & 1]
            it = fold(ac, z) + fold(ac + 4, z + 1) + [
                lambda: e(f'buffer_store_dwordx2 {v(z, 2)}, {v(PBA)}, {s(S_WS, 4)}, {s(S_PBST + p)} offen {sc}', tag='pst')]
            if p + NOA < 5:
                it += [(lambda j=j: e(f'v_mov_b64 {v(ac + j, 2)}, 0')) for j in range(0, 8, 2)]
            return it

        pre_todo = list(zip(pre_slots, PRE))

        def try_pre(maxn):
            n = 0
            for sl, b in list(pre_todo):
                if n >= maxn:
                    break
                if all((b + i) in pool.free_ for i in range(8)):
                    claim(b, 8)
                    vq.extend(str_items(sl, b, 'pre'))
                    pre_todo.remove((sl, b))
                    n += 1
        sc_items = []
        if 'nocold' not in dbg:
            sc_items += [f's_add_u32 {s(S_VXO)}, {s(S_VXO)}, {32 * 8192}', f's_add_u32 {s(S_KXW)}, {s(S_KXW)}, {32 * 8192}',
                         f's_add_u32 {s(S_WRM)}, {s(S_WRM)}, {32 * 8192}']
        sc_items += [f's_add_u32 {s(S_KMO)}, {s(S_KMO)}, {32 * 4096}',
                     f's_add_u32 {s(S_STEP)}, {s(S_STEP)}, 1',
                     f's_add_u32 {s(S_MSL)}, {s(S_MSL)}, {MB_STRIDE}', f's_and_b32 {s(S_MSL)}, {s(S_MSL)}, {3 * MB_STRIDE}',
                     f's_add_u32 {s(S_MBP)}, {s(S_MBB)}, {s(S_MSL)}', f's_add_u32 {s(S_MBP + 1)}, {s(S_MBP)}, 4096']
        sc_items = [(lambda x=x: e(x)) for x in sc_items]
        try_pre(npre1)
        for p in range(5):
            ac = OACC[p % NOA]
            mf = []
            for t in range(2):
                for tau in range(2):
                    def f(t=t, tau=tau):
                        if p == 0 and tau == 0:
                            e.wait_lg(f'of{t}')
                        smf(ac + 4 * tau, OF + 4 * t, (('o', t, p), tau))
                        if not lds_pending:
                            try_pre(9)
                    mf.append(f)
            side = finish(p - 1) if p >= 1 else sc_items
            run(mf[:2], [], 0)
            run(mf[2:], side, 3 if p else 6)
        for f in finish(4):
            f()
        stamp()
        for b in OACC:
            pool.free(b, 8)
        pool.free(OF, 8)
        pool.free(SM, 8)
        try_pre(9)
        drain_vq(True)
        assert not str_queue and not lds_pending and not inflight_str and not vq and not pre_todo
        claim(ACC, 16)
        for p in range(5):
            e(f's_xor_b32 {s(S_PBST + p)}, {s(S_PBST + p)}, {PB_STRIDE}')
        e(f's_cmp_ge_u32 {s(S_UNIT)}, 80')
        e(f's_cbranch_scc1 {L}_nored')
        e.cond_begin()
        RA = pool.must(8)
        RB2 = pool.must(4)
        TP = pool.must(4)
        SEL = ACC + 12
        rb = [ACC, ACC + 4, ACC + 8, RB2]
        e(f'v_and_b32 {v(RA)}, 16, {v(V_LANE16)}')
        e(f'v_lshlrev_b32 {v(RA)}, {v(RA)}, {s(S_KMP)}')
        e(f'v_bfe_u32 {v(RA + 1)}, {v(V_LANE16)}, 5, 2')
        for rr in range(4):
            e(f'v_cmp_eq_u32 vcc, {rr}, {v(RA + 1)}')
            e(f'v_cndmask_b32 {v(SEL + rr)}, 0, {v(RA)}, vcc')
        e(f'v_mov_b32 {v(TP)}, -1')
        e(f'v_mov_b32 {v(TP + 1)}, -1')
        e(f'v_lshlrev_b32 {v(TP + 2)}, 2, {v(V_LANE16)}')
        e(f'v_lshrrev_b32 {v(TP + 3)}, 25, {v(V_IDX)}')
        e(f'v_and_b32 {v(TP + 3)}, 0x78, {v(TP + 3)}')
        if ackK:
            e('s_waitcnt vmcnt(0)')
        stamp()
        e.label(f'{L}_pollK')
        e.hist = []
        for i in range(4):
            e(f'buffer_load_dwordx4 {v(rb[i], 4)}, {v(V_LANE16)}, {s(S_WS, 4)}, {s(S_PBLD)} offen offset:{1024 * i} sc1')
        for i in range(4):
            e(f's_waitcnt vmcnt({3 - i})')
            cin = '0' if i == 0 else v(RA, 4)
            e(f'v_mfma_f32_16x16x32_bf16 {v(RA, 4)}, {v(SEL, 4)}, {v(rb[i], 4)}, {cin}')
            if i == 2:
                e(f'v_max3_u32 {v(RA + 4)}, {v(rb[0])}, {v(rb[1])}, {v(rb[2])}')
        e(f'v_max_u32 {v(RA + 4)}, {v(RA + 4)}, {v(rb[3])}')
        e(f'v_cmp_eq_u32 vcc, -1, {v(RA + 4)}')
        e(f's_cbranch_vccnz {L}_pollK')
        for j in range(4):
            e(f'v_add_f32_dpp {v(RA + 4 + j)}, {v(RA + j)}, {v(RA + j)} row_ror:8 row_mask:0xf bank_mask:0xf')
        e(f'v_cvt_pk_bf16_f32 {v(RA)}, {v(RA + 4)}, {v(RA + 5)}')
        e(f'v_cvt_pk_bf16_f32 {v(RA + 1)}, {v(RA + 6)}, {v(RA + 7)}')
        e(f'buffer_store_dwordx2 {v(RA, 2)}, {v(TP + 3)}, {s(S_WS, 4)}, {s(S_MBN)} offen {sc}', tag='mst')
        stamp()
        e(f's_cmp_lt_u32 {s(S_W)}, 2')
        e(f's_cbranch_scc1 {L}_nored')
        e(f'buffer_store_dwordx2 {v(TP, 2)}, {v(TP + 3)}, {s(S_WS, 4)}, {s(S_MBC)} offen {sc}', tag='rst')
        e(f'buffer_store_dword {v(TP)}, {v(TP + 2)}, {s(S_WS, 4)}, {s(S_PBLD)} offen {sc}', tag='rst')
        pool.free(RA, 8)
        pool.free(RB2, 4)
        pool.free(TP, 4)
        e.cond_end()
        e.label(f'{L}_nored')
        e.hist = []
        e(f's_mov_b32 {s(S_RSP)}, {s(S_PBLD)}')
        e(f's_mov_b32 {s(S_MRP)}, {s(S_MBC)}')
        e(f's_xor_b32 {s(S_PBLD)}, {s(S_PBLD)}, {PB_STRIDE}')
        e(f's_mov_b32 {s(S_MBC)}, {s(S_MBN)}')
        e(f's_add_u32 {s(S_T0)}, {s(S_MSL)}, {MB_STRIDE}')
        e(f's_and_b32 {s(S_T0)}, {s(S_T0)}, {3 * MB_STRIDE}')
        e(f's_add_u32 {s(S_MBN)}, {s(S_MBL)}, {s(S_T0)}')
        if stamps:
            stamp()
            e('s_waitcnt lgkmcnt(0)')
            n = stamp_i[0]
            nst[0] = n
            assert n <= 10
            e(f's_sub_u32 {s(S_T0)}, {s(S_STAMP)}, s100')
            e(f's_add_u32 s17, s17, {s(S_T0)}')
            for i in range(n - 1):
                e(f's_sub_u32 {s(S_T0)}, {s(S_STAMP + 2 * i + 2)}, {s(S_STAMP + 2 * i)}')
                e(f's_add_u32 {s(18 + i)}, {s(18 + i)}, {s(S_T0)}')
            e(f's_mov_b32 s100, {s(S_STAMP + 2 * (n - 1))}')

    body(0, '', f'{name}_fast')
    e(f's_branch {name}_fast_0')
    if slow:
        body(0, 'sc1', f'{name}_slow')
        e(f's_branch {name}_slow_0')
    e.label(f'{name}_fin')
    e.hist = []
    e.nop(8)
    e('s_waitcnt vmcnt(0) lgkmcnt(0)')
    if stamps:
        e('v_mov_b32 v16, 0')
        for i in range(11):
            e(f'v_writelane_b32 v16, {s(17 + i)}, {i}')
        e(f'v_lshrrev_b32 v17, 2, {v(V_LANE16)}')
        e(f's_lshl_b32 {s(S_T0)}, {s(S_H)}, 2')
        e(f's_add_u32 {s(S_T0)}, {s(S_T0)}, {s(S_W)}')
        e(f's_lshl_b32 {s(S_T0)}, {s(S_T0)}, 8')
        e(f's_add_u32 {s(S_T0)}, {s(S_T0)}, 0x0F000000')
        e(f'buffer_store_dword v16, v17, {s(S_WS, 4)}, {s(S_T0)} offen')
    if mega:
        e('s_barrier')
        e(f's_cmp_lg_u32 {s(S_W)}, 3')
        e(f's_cbranch_scc1 {name}_exit')
        e(f's_mov_b32 {s(S_T2)}, 15')
        signal_block(name, NPERS)
    if 'rt' in dbg:
        e('s_memrealtime s[96:97]')
        e('s_waitcnt lgkmcnt(0)')
        e('v_mov_b32 v16, s92')
        e('v_mov_b32 v17, s94')
        e('v_mov_b32 v18, s96')
        e('v_mov_b32 v19, 0')
        e(f's_lshl_b32 {s(S_T0)}, {s(S_H)}, 6')
        e(f's_add_u32 {s(S_T0)}, {s(S_T0)}, 0x0F800000')
        e(f'buffer_store_dwordx3 v[16:18], v19, {s(S_WS, 4)}, {s(S_T0)} offen')
    if 'tot' in dbg:
        e('s_memtime s[98:99]')
        e('s_memrealtime s[100:101]')
        e('s_waitcnt lgkmcnt(0)')
        e('s_sub_u32 s98, s98, s94')
        e('s_sub_u32 s100, s100, s96')
        e('v_mov_b32 v16, s98')
        e('v_mov_b32 v17, s100')
        e('v_mov_b32 v18, 0')
        e(f's_lshl_b32 {s(S_T0)}, {s(S_H)}, 6')
        e(f's_add_u32 {s(S_T0)}, {s(S_T0)}, 0x0F800000')
        e(f'buffer_store_dwordx2 v[16:17], v18, {s(S_WS, 4)}, {s(S_T0)} offen')
    e.label(f'{name}_exit')
    e('s_endpgm')
    print(f'; chain2: n_reg={n_reg} n_lds={n_lds} n_str={n_str} pool peak={pool.peak} of {pool_end - NPERS}')


if __name__ == '__main__':
    import argparse
    ap = argparse.ArgumentParser()
    ap.add_argument('--out', default='chain_test.s')
    ap.add_argument('--stamps', action='store_true')
    ap.add_argument('--kw', default='')
    args = ap.parse_args()
    em = Em()
    kw = eval('dict(' + args.kw + ')')
    gen_chain(em, stamps=args.stamps, **kw)
    hdr = '; @launch kernel=chain_kernel grid=(256,1,1) block=(256,1,1) lds=163840\n'
    hdr += '.amdgcn_target "amdgcn-amd-amdhsa--gfx950"\n.text\n.globl chain_kernel\n'
    open(args.out, 'w').write(hdr + em.text() + kd('chain_kernel', 512, 256))
```

```python
from emit import *


class Gemm:
    def __init__(self, e, BM, panels, wgm, wgn, KT, xstride, nstage=3, vbase=0, sbase=60, lds_base=0,
                 acc_base=256, ldfl='', xfl=''):
        self.e = e
        self.BM, self.panels, self.wgm, self.wgn, self.KT = BM, panels, wgm, wgn, KT
        self.xstride = xstride
        self.nstage = nstage
        self.WM = BM // wgm
        self.MT = self.WM // 16
        self.ldfl = ldfl
        self.xfl = xfl
        self.tiles = []
        for pi, (_, _, pw) in enumerate(panels):
            assert (pw // 16) % wgn == 0
            for a_ in range(pw // 16 // wgn):
                self.tiles.append((pi, a_))
        self.NT = len(self.tiles)
        self.xbytes = BM * 128
        self.poff = []
        o = self.xbytes
        for (_, _, pw) in panels:
            self.poff.append(o)
            o += 64 * pw * 2
        self.stage = o
        self.lds_base = lds_base
        self.lds_bytes = o * nstage
        self.acc = acc_base
        b = vbase
        self.v_xg = b
        self.v_wg = b + 2
        b += 2 + 2 * len(panels)
        self.v_xa = b
        b += 2
        self.v_wa = b
        b += self.NT
        b = (b + 3) // 4 * 4
        self.v_fx = b
        b += 2 * self.MT * 4
        self.v_fw = b
        b += 2 * self.NT * 4
        self.v_end = b
        self.s_x = sbase
        self.s_w = sbase + 1
        self.s_t = sbase + 1 + len(panels)
        self.s_kt = self.s_t + 1
        self.s_wr = self.s_t + 2
        self.s_end = self.s_t + 4

    def accr(self, mi, ni):
        return self.acc + (mi * self.NT + ni) * 4

    def setup(self, v_lane, s_wave, tmp):
        e = self.e
        t0, t1, t2, t3, t4, t5 = [tmp + i for i in range(6)]
        st = self.s_t
        e(f'v_lshrrev_b32 {v(t0)}, 3, {v(v_lane)}')
        e(f's_mov_b32 {s(st)}, {self.xstride}')
        e(f'v_mul_lo_u32 {v(t0)}, {v(t0)}, {s(st)}')
        e(f'v_and_b32 {v(t1)}, 7, {v(v_lane)}')
        e(f'v_lshrrev_b32 {v(t2)}, 4, {v(v_lane)}')
        e(f'v_xor_b32 {v(t3)}, {v(t1)}, {v(t2)}')
        e(f'v_lshl_add_u32 {v(self.v_xg)}, {v(t3)}, 4, {v(t0)}')
        e(f'v_xor_b32 {v(t3)}, 4, {v(t3)}')
        e(f'v_lshl_add_u32 {v(self.v_xg + 1)}, {v(t3)}, 4, {v(t0)}')
        for pi, (_, ws, pw) in enumerate(self.panels):
            vg = self.v_wg + 2 * pi
            e(f's_mov_b32 {s(st)}, {ws}')
            e(f'v_and_b32 {v(t4)}, 1, {v(v_lane)}')
            e(f'v_lshlrev_b32 {v(t4)}, 4, {v(t4)}')
            if pw == 128:
                e(f'v_mul_lo_u32 {v(t0)}, {v(t2)}, {s(st)}')
                e(f'v_add_u32 {v(t0)}, {v(t0)}, {v(t4)}')
                e(f'v_bfe_u32 {v(t3)}, {v(v_lane)}, 1, 3')
                e(f'v_xor_b32 {v(t3)}, {v(t3)}, {v(t2)}')
                e(f'v_lshl_add_u32 {v(vg)}, {v(t3)}, 5, {v(t0)}')
                e(f'v_xor_b32 {v(t3)}, 4, {v(t3)}')
                e(f'v_lshl_add_u32 {v(vg + 1)}, {v(t3)}, 5, {v(t0)}')
            else:
                e(f'v_lshrrev_b32 {v(t0)}, 3, {v(v_lane)}')
                e(f'v_mul_lo_u32 {v(t0)}, {v(t0)}, {s(st)}')
                e(f'v_add_u32 {v(t0)}, {v(t0)}, {v(t4)}')
                e(f'v_bfe_u32 {v(t3)}, {v(v_lane)}, 1, 2')
                e(f'v_xor_b32 {v(t3)}, {v(t3)}, {v(t2)}')
                e(f'v_lshl_add_u32 {v(vg)}, {v(t3)}, 5, {v(t0)}')
                e(f'v_mov_b32 {v(vg + 1)}, {v(vg)}')
        e(f'v_and_b32 {v(t0)}, 15, {v(v_lane)}')
        e(f'v_lshrrev_b32 {v(t1)}, 1, {v(t0)}')
        e(f'v_xor_b32 {v(t1)}, {v(t1)}, {v(t2)}')
        e(f'v_lshlrev_b32 {v(t1)}, 4, {v(t1)}')
        e(f'v_lshl_add_u32 {v(t1)}, {v(t0)}, 7, {v(t1)}')
        lg = {1: 0, 2: 1, 4: 2}[self.wgn]
        e(f's_lshr_b32 {s(st)}, {s(s_wave)}, {lg}')
        e(f's_mul_i32 {s(st)}, {s(st)}, {self.WM * 128}')
        e(f's_add_u32 {s(st)}, {s(st)}, {self.lds_base}')
        e(f'v_add_u32 {v(self.v_xa)}, {s(st)}, {v(t1)}')
        e(f'v_xor_b32 {v(self.v_xa + 1)}, 64, {v(self.v_xa)}')
        e(f'v_bfe_u32 {v(t0)}, {v(v_lane)}, 2, 2')
        e(f'v_lshl_add_u32 {v(t0)}, {v(t2)}, 2, {v(t0)}')
        e(f'v_and_b32 {v(t1)}, 3, {v(v_lane)}')
        e(f'v_lshlrev_b32 {v(t1)}, 3, {v(t1)}')
        for ni, (pi, a_) in enumerate(self.tiles):
            pw = self.panels[pi][2]
            per = pw // 16 // self.wgn
            e(f's_and_b32 {s(st)}, {s(s_wave)}, {self.wgn - 1}')
            e(f's_mul_i32 {s(st)}, {s(st)}, {per}')
            e(f's_add_u32 {s(st)}, {s(st)}, {a_}')
            if pw == 128:
                e(f'v_and_b32 {v(t3)}, 7, {v(t0)}')
                e(f'v_xor_b32 {v(t3)}, {s(st)}, {v(t3)}')
                e(f'v_lshl_add_u32 {v(t3)}, {v(t3)}, 5, {v(t1)}')
                e(f'v_lshl_add_u32 {v(t3)}, {v(t0)}, 8, {v(t3)}')
            else:
                e(f'v_bfe_u32 {v(t3)}, {v(t0)}, 1, 2')
                e(f'v_xor_b32 {v(t3)}, {s(st)}, {v(t3)}')
                e(f'v_lshl_add_u32 {v(t3)}, {v(t3)}, 5, {v(t1)}')
                e(f'v_lshl_add_u32 {v(t3)}, {v(t0)}, 7, {v(t3)}')
            e(f'v_add_u32 {v(self.v_wa + ni)}, {self.lds_base + self.poff[pi]}, {v(t3)}')
        self.s_wave = s_wave

    def dma_items(self, s_xsrd, stage_idx, tag, part='xw'):
        e = self.e
        items = []
        base = self.lds_base + stage_idx * self.stage
        nx = self.BM // 8 // 4
        for i in range(nx if 'x' in part else 0):
            def f(i=i):
                e(f's_add_u32 m0, {s(self.s_wr)}, {base + i * 1024}')
                if i:
                    e(f's_add_u32 {s(self.s_t)}, {s(self.s_x)}, {i * 8 * self.xstride}')
                par = i & 1 if nx % 2 == 0 else None
                assert par is not None
                e(f'buffer_load_dwordx4 {v(self.v_xg + par)}, {s(s_xsrd, 4)}, {s(self.s_t if i else self.s_x)} offen {self.xfl} lds', tag=tag)
            items.append(f)
        if 'x' in part:
            items.append(lambda: e(f's_add_u32 {s(self.s_x)}, {s(self.s_x)}, 128'))
        for pi, (srd, ws, pw) in enumerate(self.panels if 'w' in part else []):
            rows = 4 if pw == 128 else 8
            n = 64 // rows // 4
            for i in range(n):
                def f(i=i, pi=pi, srd=srd, ws=ws, rows=rows, n=n):
                    e(f's_add_u32 m0, {s(self.s_wr + 1)}, {base + self.poff[pi] + i * 1024}')
                    if i:
                        e(f's_add_u32 {s(self.s_t)}, {s(self.s_w + pi)}, {i * rows * ws}')
                    e(f'buffer_load_dwordx4 {v(self.v_wg + 2 * pi + (i & 1))}, {s(srd, 4)}, {s(self.s_t if i else self.s_w + pi)} offen {self.ldfl} lds', tag=tag)
                items.append(f)
            items.append(lambda pi=pi, ws=ws: e(f's_add_u32 {s(self.s_w + pi)}, {s(self.s_w + pi)}, {64 * ws}'))
        return items

    def init_offsets(self, s_xrow_off, s_wcol_offs):
        e = self.e
        nx = self.BM // 8 // 4
        e(f's_mul_i32 {s(self.s_t)}, {s(self.s_wave)}, {nx * 8 * self.xstride}')
        e(f's_add_u32 {s(self.s_x)}, {s(s_xrow_off)}, {s(self.s_t)}')
        e(f's_mul_i32 {s(self.s_wr)}, {s(self.s_wave)}, {nx * 1024}')
        ns = set()
        for pi, (srd, ws, pw) in enumerate(self.panels):
            e(f's_mul_i32 {s(self.s_t)}, {s(self.s_wave)}, {16 * ws}')
            e(f's_add_u32 {s(self.s_w + pi)}, {s(s_wcol_offs[pi])}, {s(self.s_t)}')
            ns.add(4 if pw == 128 else 2)
        assert len(ns) == 1
        e(f's_mul_i32 {s(self.s_wr + 1)}, {s(self.s_wave)}, {ns.pop() * 1024}')

    def frag_items(self, ks, buf, tag):
        e = self.e
        items = []
        for mi in range(self.MT):
            items.append(lambda mi=mi: e(
                f'ds_read_b128 {v(self.v_fx + (buf * self.MT + mi) * 4, 4)}, {v(self.v_xa + ks)} offset:{mi * 2048}', tag=tag))
        for ni, (pi, a_) in enumerate(self.tiles):
            rb = self.panels[pi][2] * 2
            for m in range(2):
                items.append(lambda ni=ni, m=m, rb=rb: e(
                    f'ds_read_b64_tr_b16 {v(self.v_fw + (buf * self.NT + ni) * 4 + 2 * m, 2)}, {v(self.v_wa + ni)} offset:{(32 * ks + 16 * m) * rb}', tag=tag))
        return items

    def advance_items(self, delta):
        e = self.e
        it = []
        regs = [self.v_xa, self.v_xa + 1] + [self.v_wa + i for i in range(self.NT)]
        for r in regs:
            if delta >= 0:
                it.append(lambda r=r: e(f'v_add_u32 {v(r)}, {delta}, {v(r)}'))
            else:
                it.append(lambda r=r: e(f'v_subrev_u32 {v(r)}, {-delta}, {v(r)}'))
        return it

    def mfma_items(self, buf, orient, first):
        e = self.e
        it = []
        for mi in range(self.MT):
            for ni in range(self.NT):
                def f(mi=mi, ni=ni):
                    fx = v(self.v_fx + (buf * self.MT + mi) * 4, 4)
                    fw = v(self.v_fw + (buf * self.NT + ni) * 4, 4)
                    ac = u(self.accr(mi, ni), 4)
                    A, B = (fx, fw) if orient[ni] == 'N' else (fw, fx)
                    e(f'v_mfma_f32_16x16x32_bf16 {ac}, {A}, {B}, {"0" if first else ac}')
                it.append(f)
        return it

    def run(self, mf, side, ratio=1):
        side = list(side)
        for f in mf:
            f()
            for _ in range(ratio):
                if side:
                    side.pop(0)()
        for f in side:
            f()

    def npro(self):
        return self.KT if self.KT <= self.nstage else self.nstage - 1

    def pre_w(self):
        for k in range(self.npro()):
            for f in self.dma_items(None, k, ('st', -1), 'w'):
                f()

    def mainloop(self, s_xsrd, orient, label, w_done=False):
        e = self.e
        NS, KT = self.nstage, self.KT
        allres = KT <= NS
        for k in range(self.npro()):
            for f in self.dma_items(s_xsrd, k, ('st', k), 'x' if w_done else 'xw'):
                f()
        e.wait_vm(('st', 0))
        e('s_barrier')
        for f in self.frag_items(0, 0, 'f0'):
            f()

        def kstep(kt, first, has_next, issue):
            fr = self.frag_items(1, 1, 'f1')
            e.wait_lg('f0')
            self.run(self.mfma_items(0, orient, first), fr, 1)
            side = []
            if has_next:
                e.wait_vm(('st', kt + 1))
                e.wait_lg('f1')
                e('s_barrier')
                d = self.stage if (kt + 1) % NS else -(NS - 1) * self.stage
                side = self.advance_items(d) + self.frag_items(0, 0, 'f0')
                if issue:
                    side = self.dma_items(s_xsrd, (kt + NS - 1) % NS, ('st', kt + NS - 1)) + side
            else:
                e.wait_lg('f1')
            self.run(self.mfma_items(1, orient, False), side, 2)

        kt = 0
        kstep(0, True, KT > 1, NS - 1 < KT and not allres)
        kt = 1
        nreg = 0 if allres else max(0, (KT - NS + 1) - kt)
        groups = nreg // NS
        if groups >= 2:
            e(f's_mov_b32 {s(self.s_kt)}, {groups}')
            e.label(label + '_loop')
            vm0 = list(e.vm)
            for j in range(NS):
                kstep(kt + j, False, True, True)
            e(f's_sub_u32 {s(self.s_kt)}, {s(self.s_kt)}, 1')
            e(f's_cmp_lg_u32 {s(self.s_kt)}, 0')
            e(f's_cbranch_scc1 {label}_loop')
            sh = (groups - 1) * NS
            e.vm = [(t[0], t[1] + sh) if isinstance(t, tuple) and t[0] == 'st' else t for t in e.vm]
            kt += groups * NS
        while kt < KT:
            kstep(kt, False, kt + 1 < KT, kt + NS - 1 < KT and not allres)
            kt += 1
        self.final_stage = (KT - 1) % NS
```

```python
WS_MOD = 0x00000000
WS_MB = 0x00010000
MB_STRIDE = 0x4000
WS_PB = 0x00100000
PB_STRIDE = 0x80000
WS_STR = 0x00400000
STR_HSTRIDE = 0x40000
STR_WSTRIDE = 0x10000
WS_KX = 0x01000000
WS_VXT = 0x02000000
WS_KM = 0x03000000
WS_VMT = 0x03800000
WS_H1 = 0x03800000
WS_X1 = 0x03B00000
WS_O = 0x04000000
WS_HM = 0x05100000
WS_SIZE = 0x10000000
SENT = 0xFFFFFFFF
WS_QX = 0x05800000
WS_H2 = 0x03D80000
WS_PW = 0x06800000
WS_PD = 0x0B800000
WS_CTR = 0x00008000
C_TASK = 0
C_KV = 1
C_Q = 17
C_CH = 33
C_ATT = 49
C_WO = 65
C_LN2 = 81
C_UP = 97
C_DN = 113
C_LN1 = 129
C_N = 145
```

```python
from emit import *
from layout import *
from gen_chain import f32bits, kd
from gen_gemm import Gemm
import gen_all
from gen_all import start, load_srds, end, lane_wave, silu_inplace, wave_sum, rnd2, LOG2E, KA, SIZES
import gen_chain5
from gen_chain5 import far_jump

LOG = False
SLEEP = 8
SLEEPN = 1
WS_LOG = 0x0F400000
POOLS = [('wk_att', 32), ('wk_wo', 80), ('wk_up', 54), ('wk_dn', 30), ('wk_ln2', 16), ('wk_fin', 8)]
NPOOL = sum(c for _, c in POOLS)
NTASK = 768
S_RANK, S_PB = 60, 30
SW = 29
S_W1, S_W3, S_W2, S_X, S_OUT, S_SEL = 64, 68, 72, 76, 80, 84
VL = 1
_bj = [0]


def back_jump(e, label, sp=44):
    _bj[0] += 1
    here = f'Lbj{_bj[0]}'
    e(f's_getpc_b64 {s(sp, 2)}')
    e.label(here)
    e.raw(f'    s_add_u32 {s(sp)}, {s(sp)}, {label}-{here}')
    e.raw(f'    s_addc_u32 {s(sp + 1)}, {s(sp + 1)}, -1')
    e(f's_setpc_b64 {s(sp, 2)}')


def reset(e):
    e.hist = []
    e.vm = []
    e.lg = []


def dep_wait(e, lab, deps, sb):
    e(f's_cmp_lg_u32 {s(SW)}, 0')
    e(f's_cbranch_scc1 {lab}_dw')
    e(f's_lshl_b32 s38, {s(sb)}, 7')
    e('v_mov_b32 v2, 0')
    for i, (c, tgt) in enumerate(deps):
        e(f's_add_u32 s39, s38, {WS_CTR + c * 128}')
        e.label(f'{lab}_sp{i}')
        e('buffer_load_dword v3, v2, s[4:7], s39 offen sc1')
        e('s_waitcnt vmcnt(0)')
        e('v_readfirstlane_b32 s37, v3')
        e(f's_cmp_ge_u32 s37, {tgt}')
        e(f's_cbranch_scc1 {lab}_ok{i}')
        for _ in range(SLEEPN):
            e(f's_sleep {SLEEP}')
        e(f's_branch {lab}_sp{i}')
        e.label(f'{lab}_ok{i}')
    e.label(f'{lab}_dw')
    e('s_barrier')
    if LOG:
        e('s_memrealtime s[100:101]')
        e('s_waitcnt lgkmcnt(0)')
        e('s_mov_b32 s63, s100')
    reset(e)


def signal(e, lab, c, sb, loop):
    e('s_waitcnt vmcnt(0) lgkmcnt(0)')
    e('s_barrier')
    if LOG:
        e('s_memrealtime s[100:101]')
        e('s_waitcnt lgkmcnt(0)')
        e('v_mov_b32 v4, s63')
        e('v_mov_b32 v5, s100')
        e('v_mov_b32 v6, s61')
        e('v_mov_b32 v7, s28')
        e('v_mov_b32 v2, 0')
        e('s_lshl_b32 s38, s62, 4')
        e(f's_add_u32 s38, s38, {WS_LOG}')
        e('buffer_store_dwordx4 v[4:7], v2, s[4:7], s38 offen')
    if c is not None:
        e(f's_cmp_lg_u32 {s(SW)}, 0')
        e(f's_cbranch_scc1 {lab}_sg')
        if isinstance(c, int):
            e(f's_lshl_b32 s38, {s(sb)}, 7')
            e(f's_add_u32 s38, s38, {WS_CTR + c * 128}')
        else:
            e(f's_add_u32 s38, {s(sb)}, {c}')
            e('s_lshl_b32 s38, s38, 7')
            e(f's_add_u32 s38, s38, {WS_CTR}')
        e('v_mov_b32 v2, 0')
        e('v_mov_b32 v3, 1')
        e('s_mov_b64 exec, 1')
        e('buffer_atomic_add v3, v2, s[4:7], s38 offen')
        e('s_mov_b64 exec, -1')
        e.label(f'{lab}_sg')
    back_jump(e, loop)


def mid(e):
    if LOG:
        e('s_memrealtime s[100:101]')
        e('s_waitcnt lgkmcnt(0)')
        e('s_mov_b32 s61, s100')


def h_qkv(e, loop):
    name = 'wk_qkv'
    e.label(name)
    reset(e)
    e('s_cmp_eq_u32 s23, 1')
    e(f's_cselect_b32 {s(S_SEL)}, s16, s12')
    e(f's_cselect_b32 {s(S_SEL + 1)}, s17, s13')
    e('s_cmp_eq_u32 s23, 2')
    e(f's_cselect_b32 {s(S_SEL)}, s20, {s(S_SEL)}')
    e(f's_cselect_b32 {s(S_SEL + 1)}, s21, {s(S_SEL + 1)}') if False else None
    return


def gen_workers(e, loop='wk_loop'):
    B, P1, P2 = 52, 53, 54
    e.label('wk_entry')
    reset(e)
    e(f'v_mov_b32 {v(VL)}, v16')
    load_srds(e, [('w1', S_W1), ('w3', S_W3), ('w2', S_W2), ('x', S_X), ('out', S_OUT)], tmp=88)
    e(f's_mov_b32 {s(S_SEL + 2)}, 5242880')
    e(f's_mov_b32 {s(S_SEL + 3)}, 0x20000')
    e(f's_mov_b32 {s(S_SEL)}, s12')
    e(f's_mov_b32 {s(S_SEL + 1)}, s13')
    e('s_mov_b32 s48, -1')

    def ticket(ctr, dst, lab):
        e(f's_cmp_lg_u32 {s(SW)}, 0')
        e(f's_cbranch_scc1 {lab}')
        e('v_mov_b32 v2, 0')
        e('v_mov_b32 v3, 1')
        e(f's_mov_b32 s38, {WS_CTR + ctr * 128}')
        e('s_mov_b64 exec, 1')
        e('buffer_atomic_add v3, v2, s[4:7], s38 offen sc0')
        e('s_waitcnt vmcnt(0)')
        e('ds_write_b32 v2, v3')
        e('s_mov_b64 exec, -1')
        e('s_waitcnt lgkmcnt(0)')
        e.label(lab)
        e('s_barrier')
        e('v_mov_b32 v2, 0')
        e('ds_read_b32 v3, v2')
        e('s_waitcnt lgkmcnt(0)')
        e(f'v_readfirstlane_b32 {s(dst)}, v3')
        e('s_barrier')
    e.label(loop)
    reset(e)
    e('s_cmp_lg_u32 s48, -1')
    e('s_cbranch_scc1 wk_pool')
    ticket(C_TASK, 50, 'wk_dq')
    e(f's_cmp_lt_u32 s50, {NTASK}')
    e('s_cbranch_scc1 wk_have')
    e(f's_sub_u32 {s(S_RANK)}, s50, {NTASK}')
    e('s_mov_b32 s48, 0')
    e('s_branch wk_pool')
    e.label('wk_have')
    if LOG:
        e('s_mov_b32 s62, s50')
        e('s_memrealtime s[100:101]')
        e('s_waitcnt lgkmcnt(0)')
        e('s_mov_b32 s63, s100')
        e('s_mov_b32 s28, s100')
        e('s_mov_b32 s61, s100')
    e('s_cmp_ge_u32 s50, 512')
    e('s_cbranch_scc1 wk_isq')
    e(f's_lshr_b32 {s(B)}, s50, 5')
    e(f's_and_b32 {s(P1)}, s50, 15')
    e(f's_bfe_u32 {s(P2)}, s50, 0x10004')
    e(f's_add_u32 {s(P2)}, {s(P2)}, 1')
    far_jump(e, 'wk_qkv', 44)
    e.label('wk_isq')
    e('s_sub_u32 s50, s50, 512')
    e(f's_lshr_b32 {s(B)}, s50, 4')
    e(f's_and_b32 {s(P1)}, s50, 15')
    e(f's_mov_b32 {s(P2)}, 0')
    far_jump(e, 'wk_qkv', 44)
    e.label('wk_pool')
    e('s_cmp_lt_u32 s48, 16')
    e('s_cbranch_scc1 wk_pool2')
    e('s_endpgm')
    e.label('wk_pool2')
    e(f's_mov_b32 {s(B)}, s48')
    e('s_add_u32 s48, s48, 1')
    if LOG:
        e(f's_mul_i32 s62, {s(B)}, 224')
        e(f's_add_u32 s62, s62, {s(S_RANK)}')
        e('s_add_u32 s62, s62, 768')
        e('s_memrealtime s[100:101]')
        e('s_waitcnt lgkmcnt(0)')
        e('s_mov_b32 s63, s100')
        e('s_mov_b32 s28, s100')
        e('s_mov_b32 s61, s100')
    lo = 0
    for lab, cnt in POOLS:
        hi = lo + cnt
        e(f's_cmp_ge_u32 {s(S_RANK)}, {hi}')
        e(f's_cbranch_scc1 wk_n{hi}')
        e(f's_sub_u32 {s(P1)}, {s(S_RANK)}, {lo}')
        far_jump(e, lab, 44)
        e.label(f'wk_n{hi}')
        lo = hi
    e('s_endpgm')

    name = 'wk_qkv'
    e.label(name)
    reset(e)
    e(f's_cmp_eq_u32 {s(P2)}, 1')
    e(f's_cselect_b32 {s(S_SEL)}, s16, s12')
    e(f's_cselect_b32 {s(S_SEL + 1)}, s17, s13')
    e(f's_cmp_eq_u32 {s(P2)}, 2')
    e(f's_cselect_b32 {s(S_SEL)}, s20, {s(S_SEL)}')
    e(f's_cselect_b32 {s(S_SEL + 1)}, s21, {s(S_SEL + 1)}')
    G = Gemm(e, 128, [(S_SEL, 8192, 128), (S_SEL, 8192, 128)], 2, 2, 10, 1280, vbase=8, sbase=40)
    G.setup(VL, SW, 2)
    e(f's_mul_i32 s55, {s(B)}, {128 * 1280}')
    e(f's_add_u32 s55, s55, {WS_H1}')
    e(f's_lshl_b32 s56, {s(P1)}, 9')
    e('s_add_u32 s57, s56, 256')
    G.init_offsets(55, [56, 57])
    e(f's_lshr_b32 s31, {s(SW)}, 1')
    e(f's_and_b32 s32, {s(SW)}, 1')
    e(f's_lshl_b32 s33, {s(B)}, 2')
    e('s_lshl_b32 s31, s31, 1')
    e('s_add_u32 s33, s33, s31')
    e('s_lshl_b32 s33, s33, 5')
    e(f's_lshl_b32 s34, {s(P1)}, 1')
    e('s_add_u32 s33, s33, s34')
    e('s_lshl_b32 s33, s33, 13')
    e(f's_cmp_lg_u32 {s(P2)}, 2')
    e(f's_cbranch_scc1 {name}_t0')
    far_jump(e, f'{name}_v', 98)
    e.label(f'{name}_t0')
    G.mainloop(4, ['T'] * G.NT, name + '_t')
    mid(e)
    e(f'v_and_b32 v2, 15, {v(VL)}')
    e(f'v_lshrrev_b32 v3, 4, {v(VL)}')
    e('v_lshlrev_b32 v3, 4, v3')
    e('v_lshl_add_u32 v2, v2, 8, v3')
    e('s_lshl_b32 s32, s32, 7')
    e('s_add_u32 s33, s33, s32')
    e(f's_mov_b32 s34, {WS_QX}')
    e(f's_mov_b32 s36, {C_Q}')
    e(f's_cmp_eq_u32 {s(P2)}, 1')
    e(f's_cselect_b32 s34, {WS_KX}, s34')
    e(f's_cselect_b32 s36, {C_KV}, s36')
    e('s_add_u32 s33, s33, s34')
    T = G.v_fx
    k = 0
    for mi in range(4):
        for p in range(2):
            for ub in range(2):
                t = T + 8 * (k % 4)
                k += 1
                for hf in range(2):
                    ac = G.accr(mi, p * 4 + ub * 2 + hf) - 256
                    for j in range(4):
                        e(f'v_accvgpr_read_b32 {v(t + 4 + j)}, {a(ac + j)}')
                    e(f'v_cvt_pk_bf16_f32 {v(t + 2 * hf)}, {v(t + 4)}, {v(t + 5)}')
                    e(f'v_cvt_pk_bf16_f32 {v(t + 2 * hf + 1)}, {v(t + 6)}, {v(t + 7)}')
                off = (mi >> 1) * 32 * 8192 + p * 8192 + (mi & 1) * 4096 + ub * 64
                e(f's_add_u32 s35, s33, {off}')
                e(f'buffer_store_dwordx4 {v(t, 4)}, v2, s[4:7], s35 offen sc1')
    signal(e, name + '_t', 's36', B, loop)
    e.label(f'{name}_v')
    reset(e)
    G.mainloop(4, ['N'] * G.NT, name + '_n')
    mid(e)
    e(f'v_lshlrev_b32 v2, 4, {v(VL)}')
    e('s_lshl_b32 s32, s32, 12')
    e('s_add_u32 s33, s33, s32')
    e(f's_add_u32 s33, s33, {WS_VXT}')
    k = 0
    for sg in range(2):
        for p in range(2):
            for a_ in range(4):
                t = T + 8 * (k % 4)
                k += 1
                for hf in range(2):
                    ac = G.accr(sg * 2 + hf, p * 4 + a_) - 256
                    for j in range(4):
                        e(f'v_accvgpr_read_b32 {v(t + 4 + j)}, {a(ac + j)}')
                    e(f'v_cvt_pk_bf16_f32 {v(t + 2 * hf)}, {v(t + 4)}, {v(t + 5)}')
                    e(f'v_cvt_pk_bf16_f32 {v(t + 2 * hf + 1)}, {v(t + 6)}, {v(t + 7)}')
                off = sg * 32 * 8192 + p * 8192 + a_ * 1024
                e(f's_add_u32 s35, s33, {off}')
                e(f'buffer_store_dwordx4 {v(t, 4)}, v2, s[4:7], s35 offen sc1')
    signal(e, name + '_n', C_KV, B, loop)

    name = 'wk_att'
    e.label(name)
    reset(e)
    dep_wait(e, name, [(C_KV, 32), (C_Q, 16)], B)
    e(f's_lshl_b32 s30, {s(B)}, 2')
    e(f's_add_u32 s30, s30, {s(SW)}')
    e('s_lshl_b32 s31, s30, 5')
    e(f's_add_u32 s31, s31, {s(P1)}')
    e(f'v_and_b32 v2, 15, {v(VL)}')
    e(f'v_lshrrev_b32 v3, 4, {v(VL)}')
    e('v_lshlrev_b32 v4, 4, v3')
    e('v_lshl_add_u32 v4, v2, 8, v4')
    e(f'v_lshlrev_b32 v5, 4, {v(VL)}')
    e('s_lshl_b32 s32, s31, 13')
    Q, KX_, KM_, VX_, VM_ = 16, 48, 80, 96, 128
    e(f's_add_u32 s33, s32, {WS_QX}')
    e('s_add_u32 s34, s33, 4096')
    e(f's_add_u32 s35, s32, {WS_KX}')
    e('s_add_u32 s36, s35, 4096')
    e('s_lshl_b32 s37, s31, 12')
    e(f's_add_u32 s37, s37, {WS_KM}')
    e(f'v_lshlrev_b32 v6, 3, {v(VL)}')
    e(f'v_bfe_u32 v10, {v(VL)}, 2, 2')
    e('v_lshl_add_u32 v10, v3, 2, v10')
    e(f'v_and_b32 v11, 1, {v(VL)}')
    e('v_lshlrev_b32 v11, 3, v11')
    e('v_lshl_add_u32 v10, v10, 4, v11')
    e(f's_lshl_b32 s38, {s(SW)}, 11')
    e('v_add_u32 v10, s38, v10')
    for uu in range(4):
        e(f'buffer_load_dwordx4 {v(Q + 4 * uu, 4)}, v4, s[4:7], s33 offen offset:{64 * uu} sc1', tag='a')
        e(f'buffer_load_dwordx4 {v(KX_ + 4 * uu, 4)}, v4, s[4:7], s35 offen offset:{64 * uu} sc1', tag='a')
    for uu in range(4):
        e(f'buffer_load_dwordx4 {v(Q + 16 + 4 * uu, 4)}, v4, s[4:7], s34 offen offset:{64 * uu} sc1', tag='b')
        e(f'buffer_load_dwordx4 {v(KX_ + 16 + 4 * uu, 4)}, v4, s[4:7], s36 offen offset:{64 * uu} sc1', tag='b')
    e(f's_add_u32 s39, s32, {WS_VXT}')
    e('s_add_u32 s40, s39, 4096')
    for et in range(8):
        e(f'buffer_load_dwordx4 {v(VX_ + 4 * et, 4)}, v5, s[4:7], {"s39" if et < 4 else "s40"} offen offset:{1024 * (et & 3)} sc1', tag='v')
    e('s_mov_b32 s43, s37')
    e('s_waitcnt vmcnt(0)')
    e('v_mov_b32 v12, v2')
    e('v_mov_b32 v13, v3')
    dep_wait(e, name + '2', [(C_CH, 32)], B)
    e('v_mov_b32 v2, v12')
    e('v_mov_b32 v3, v13')
    e('s_mov_b32 s37, s43')
    e(f's_lshl_b32 m0, {s(SW)}, 11')
    e('buffer_load_dwordx4 v5, s[4:7], s37 offen sc1 lds', tag='k')
    e('buffer_load_dwordx4 v5, s[4:7], s37 offen offset:1024 sc1 lds', tag='k')
    for w in range(4):
        e(f'buffer_load_dwordx2 {v(VM_ + 2 * w, 2)}, v6, s[4:7], s37 offen offset:{2048 + 512 * w} sc1', tag='v')
    e.wait_vm('k')
    for uu in range(4):
        for m_ in range(2):
            e(f'ds_read_b64_tr_b16 {v(KM_ + 4 * uu + 2 * m_, 2)}, v10 offset:{uu * 512 + m_ * 256}')
    MK = 88
    e('v_lshlrev_b32 v7, 2, v3')
    for j in range(4):
        e(f'v_add_u32 v8, {j}, v7')
        e(f'v_cmp_le_u32 {s(MK + 2 * j, 2)}, v8, v2')
    e('s_mov_b32 s96, -1')
    e('s_mov_b32 s97, 0')
    cc = f32bits((128 ** -0.5) * LOG2E)
    e(f's_mov_b32 s98, {cc:#x}')
    e(f's_mov_b32 s99, {cc:#x}')
    ONES, NEG = 136, 140
    for j in range(4):
        e(f'v_mov_b32 {v(ONES + j)}, 0x3f803f80')
    e(f'v_mov_b32 {v(NEG)}, 0xf149f2ca')
    e('v_lshlrev_b32 v9, 4, v3')
    e('v_lshl_add_u32 v9, v2, 13, v9')
    e('s_lshl_b32 s41, s30, 18')
    e(f's_lshl_b32 s42, {s(P1)}, 8')
    e('s_add_u32 s41, s41, s42')
    e(f's_add_u32 s41, s41, {WS_O}')
    S, M, P, PM, OA = 144, 156, 160, 164, 168
    for tq in range(2):
        e.wait_vm('a' if tq == 0 else 'b')
        if tq == 0:
            e.wait_lg()
        for uu in range(4):
            q = v(Q + 16 * tq + 4 * uu, 4)
            c0 = (lambda r: '0' if uu == 0 else v(r, 4))
            e(f'v_mfma_f32_16x16x32_bf16 {v(S, 4)}, {v(KX_ + 4 * uu, 4)}, {q}, {c0(S)}')
            if tq == 1:
                e(f'v_mfma_f32_16x16x32_bf16 {v(S + 4, 4)}, {v(KX_ + 16 + 4 * uu, 4)}, {q}, {c0(S + 4)}')
            e(f'v_mfma_f32_16x16x32_bf16 {v(S + 8, 4)}, {v(KM_ + 4 * uu, 4)}, {q}, {c0(S + 8)}')
        dg = S + 4 * tq
        for j in range(4):
            e(f'v_cndmask_b32 {v(dg + j)}, {v(NEG)}, {v(dg + j)}, {s(MK + 2 * j, 2)}')
        C0 = S + 8
        e(f'v_cndmask_b32 {v(C0)}, {v(C0 + 2)}, {v(C0)}, s[96:97]')
        e(f'v_cndmask_b32 {v(C0 + 1)}, {v(C0 + 3)}, {v(C0 + 1)}, s[96:97]')
        vals = [S + j for j in range(4 * (tq + 1))] + [C0, C0 + 1]
        e(f'v_max3_f32 {v(M)}, {v(vals[0])}, {v(vals[1])}, {v(vals[2])}')
        i = 3
        while i + 1 < len(vals):
            e(f'v_max3_f32 {v(M)}, {v(M)}, {v(vals[i])}, {v(vals[i + 1])}')
            i += 2
        if i < len(vals):
            e(f'v_max_f32 {v(M)}, {v(M)}, {v(vals[i])}')
        for sw_ in ('v_permlane32_swap_b32', 'v_permlane16_swap_b32'):
            e(f'v_mov_b32 {v(M + 1)}, {v(M)}')
            e(f'{sw_} {v(M)}, {v(M + 1)}')
            e(f'v_max_f32 {v(M)}, {v(M)}, {v(M + 1)}')
        e(f'v_mul_f32 {v(M)}, s98, {v(M)}')
        for x in vals[::2]:
            e(f'v_pk_fma_f32 {v(x, 2)}, {v(x, 2)}, s[98:99], {v(M, 2)} op_sel_hi:[1,1,0] neg_lo:[0,0,1] neg_hi:[0,0,1]')
        for x in vals:
            e(f'v_exp_f32 {v(x)}, {v(x)}')
        for j in range(2 * (tq + 1)):
            e(f'v_cvt_pk_bf16_f32 {v(P + j)}, {v(S + 2 * j)}, {v(S + 2 * j + 1)}')
        if tq == 0:
            e(f'v_mov_b32 {v(P + 2)}, 0')
            e(f'v_mov_b32 {v(P + 3)}, 0')
            e(f'v_mov_b32 {v(PM + 1)}, 0')
            e(f'v_mov_b32 {v(PM + 2)}, 0')
        e(f'v_cvt_pk_bf16_f32 {v(PM)}, {v(C0)}, {v(C0 + 1)}')
        e(f'v_cvt_pk_bf16_f32 {v(PM + 3)}, {v(C0)}, {v(C0 + 1)}')
        e.wait_vm('v')
        if tq == 0:
            mid(e)
        Lr = OA + 32
        e(f'v_mfma_f32_16x16x32_bf16 {v(Lr, 4)}, {v(ONES, 4)}, {v(P, 4)}, 0')
        for et in range(8):
            e(f'v_mfma_f32_16x16x32_bf16 {v(OA + 4 * et, 4)}, {v(VX_ + 4 * et, 4)}, {v(P, 4)}, 0')
        e(f'v_mfma_f32_16x16x16_bf16 {v(Lr, 4)}, {v(ONES, 2)}, {v(PM, 2)}, {v(Lr, 4)}')
        for et in range(8):
            e(f'v_mfma_f32_16x16x16_bf16 {v(OA + 4 * et, 4)}, {v(VM_ + 2 * (et >> 1), 2)}, {v(PM + 2 * (et & 1), 2)}, {v(OA + 4 * et, 4)}')
        e(f'v_rcp_f32 {v(M)}, {v(Lr)}')
        if tq:
            e(f's_add_u32 s41, s41, {16 * 8192}')
        for ub in range(4):
            o = OA + 8 * ub
            for j in range(0, 8, 2):
                e(f'v_pk_mul_f32 {v(o + j, 2)}, {v(o + j, 2)}, {v(M, 2)} op_sel_hi:[1,0]')
            for j in range(4):
                e(f'v_cvt_pk_bf16_f32 {v(o + j)}, {v(o + 2 * j)}, {v(o + 2 * j + 1)}')
            e(f'buffer_store_dwordx4 {v(o, 4)}, v9, s[4:7], s41 offen offset:{64 * ub} sc1')
    signal(e, name, C_ATT, B, loop)

    def proj(name, wsrd, xoff, xstride, KT, nsplit, poff, dep, cdone):
        e.label(name)
        reset(e)
        e(f's_and_b32 s54, {s(P1)}, 1')
        e(f's_lshr_b32 s56, {s(P1)}, 1')
        mg = {8: (8192, 16), 3: (21846, 16)}[nsplit]
        e(f's_mul_i32 s55, s56, {mg[0]}')
        e(f's_lshr_b32 s55, s55, {mg[1]}')
        assert all((x * mg[0]) >> mg[1] == x // nsplit for x in range(5 * nsplit))
        e(f's_mul_i32 s57, s55, {nsplit}')
        e('s_sub_u32 s56, s56, s57')
        G = Gemm(e, 64, [(wsrd, 1280, 128)], 2, 2, KT, xstride, nstage=6, vbase=8, sbase=40, acc_base=128, xfl='sc1')
        G.setup(VL, SW, 2)
        e(f's_lshl_b32 s57, {s(B)}, 1')
        e('s_add_u32 s57, s57, s54')
        e(f's_mul_i32 s57, s57, {64 * xstride}')
        e(f's_mul_i32 s58, s56, {KT * 128}')
        e('s_add_u32 s57, s57, s58')
        e(f's_add_u32 s57, s57, {xoff}')
        e(f's_mul_i32 s58, s56, {KT * 64 * 1280}')
        e('s_lshl_b32 s59, s55, 8')
        e('s_add_u32 s58, s58, s59')
        G.init_offsets(57, [58])
        G.pre_w()
        dep_wait(e, name, [dep], B)
        G.mainloop(4, ['T'] * G.NT, name, w_done=True)
        mid(e)
        e(f'v_and_b32 v2, 15, {v(VL)}')
        e(f'v_lshrrev_b32 v3, 4, {v(VL)}')
        e('v_mul_u32_u24 v4, 2560, v2')
        e('v_lshl_add_u32 v4, v3, 4, v4')
        e(f's_mul_i32 s33, {s(B)}, {nsplit}')
        e('s_add_u32 s33, s33, s56')
        e('s_lshl_b32 s33, s33, 1')
        e('s_add_u32 s33, s33, s54')
        e('s_lshl_b32 s33, s33, 1')
        e(f's_lshr_b32 s31, {s(SW)}, 1')
        e('s_add_u32 s33, s33, s31')
        e(f's_mul_i32 s33, s33, {32 * 2560}')
        e(f's_and_b32 s32, {s(SW)}, 1')
        e('s_lshl_b32 s32, s32, 8')
        e('s_lshl_b32 s34, s55, 9')
        e('s_add_u32 s33, s33, s32')
        e('s_add_u32 s33, s33, s34')
        e(f's_add_u32 s33, s33, {poff}')
        for mi in range(2):
            for a_ in range(4):
                e(f'buffer_store_dwordx4 {v(G.accr(mi, a_), 4)}, v4, s[4:7], s33 offen offset:{64 * a_} sc1')
            if mi < 1:
                e(f's_add_u32 s33, s33, {16 * 2560}')
        signal(e, name, cdone, B, loop)

    proj('wk_wo', 24, WS_O, 8192, 8, 8, WS_PW, (C_ATT, 32), C_WO)
    proj('wk_dn', S_W2, WS_HM, 3456, 9, 3, WS_PD, (C_UP, 54), C_DN)

    def combine(name, nsplit, poff, gate_idx, res_is_x, do_ln, dep, cdone, RPW):
        e.label(name)
        reset(e)
        e(f's_lshl_b32 s30, {s(P1)}, 2')
        e(f's_add_u32 s30, s30, {s(SW)}')
        e(f's_mul_i32 s30, s30, {RPW}')
        e(f's_lshl_b32 s31, {s(B)}, 7')
        e('s_add_u32 s31, s31, s30')
        e('s_mul_i32 s31, s31, 1280')
        e(f'v_lshlrev_b32 v2, 2, {v(VL)}')
        e(f'v_lshlrev_b32 v3, 3, {v(VL)}')
        GT, SH, SC = 16, 26, 36
        e(f's_mov_b32 s32, {WS_MOD + gate_idx * 2560}')
        for i in range(5):
            e(f'buffer_load_dwordx2 {v(GT + 2 * i, 2)}, v3, s[4:7], s32 offen offset:{512 * i}', tag='m')
        if do_ln:
            e(f's_mov_b32 s33, {WS_MOD + 3 * 2560}')
            e(f's_mov_b32 s34, {WS_MOD + 4 * 2560}')
            for i in range(5):
                e(f'buffer_load_dwordx2 {v(SH + 2 * i, 2)}, v3, s[4:7], s33 offen offset:{512 * i}', tag='m')
                e(f'buffer_load_dwordx2 {v(SC + 2 * i, 2)}, v3, s[4:7], s34 offen offset:{512 * i}', tag='m')
            e(f'v_bfe_u32 v4, {v(VL)}, 1, 2')
            e(f'v_bfe_u32 v5, {v(VL)}, 3, 1')
            e(f'v_and_b32 v6, 1, {v(VL)}')
            e('v_lshl_add_u32 v6, v5, 1, v6')
            e('v_lshl_add_u32 v6, v4, 2, v6')
            e(f'v_and_b32 v4, 48, {v(VL)}')
            e('v_add_u32 v6, v6, v4')
            e('v_lshlrev_b32 v12, 2, v6')
        e('s_waitcnt vmcnt(0)')
        dep_wait(e, name, [dep], B)
        e(f'v_lshlrev_b32 v2, 2, {v(VL)}')
        e(f'v_lshlrev_b32 v3, 3, {v(VL)}')
        RS_, PP = 48, 72
        rs = S_X if res_is_x else 4
        e(f's_add_u32 s35, s31, {0 if res_is_x else WS_X1}')
        for r in range(RPW):
            for i in range(5):
                if i == 0 and r == 2:
                    e('s_add_u32 s35, s35, 2560')
                e(f'buffer_load_dword {v(RS_ + 5 * r + i)}, v2, {s(rs, 4)}, s35 offen offset:{1280 * (r & 1) + 256 * i} {"" if res_is_x else "sc1"}', tag='r')
        e(f's_mul_i32 s36, {s(B)}, {nsplit * 128}')
        e('s_add_u32 s36, s36, s30')
        e('s_mul_i32 s36, s36, 2560')
        e(f's_add_u32 s36, s36, {poff}')
        for r in range(RPW):
            for k in range(nsplit):
                e(f's_add_u32 s37, s36, {(k * 128 + r) * 2560}')
                for i in range(5):
                    e(f'buffer_load_dwordx2 {v(PP + ((r * nsplit + k) * 5 + i) * 2, 2)}, v3, s[4:7], s37 offen offset:{512 * i} sc1', tag=('p', r, k))
        if do_ln:
            for j in range(10):
                e(f'v_add_f32 {v(SC + j)}, 1.0, {v(SC + j)}')
            for j in range(0, 10, 2):
                rnd2(e, SC + j, SC + j + 1, 7)
            e(f's_mov_b32 s38, {f32bits(1.0 / 640):#x}')
            e(f's_mov_b32 s39, {f32bits(1e-5):#x}')
            e(f's_add_u32 s40, s31, {WS_X1}')
            e(f's_add_u32 s41, s31, {WS_H2}')
        for r in range(RPW):
            X = PP + r * nsplit * 10
            for k in range(1, nsplit):
                e.wait_vm(('p', r, k))
                for j in range(0, 10, 2):
                    e(f'v_pk_add_f32 {v(X + j, 2)}, {v(X + j, 2)}, {v(X + k * 10 + j, 2)}')
            mid(e)
            for j in range(0, 10, 2):
                a_, b_ = X + j, X + j + 1
                rr = RS_ + 5 * r + j // 2
                rnd2(e, a_, b_, 7)
                e(f'v_mul_f32 {v(a_)}, {v(a_)}, {v(GT + j)}')
                e(f'v_mul_f32 {v(b_)}, {v(b_)}, {v(GT + j + 1)}')
                rnd2(e, a_, b_, 7)
                e(f'v_lshlrev_b32 v8, 16, {v(rr)}')
                e(f'v_and_b32 v9, 0xffff0000, {v(rr)}')
                e(f'v_add_f32 {v(a_)}, {v(a_)}, v8')
                e(f'v_add_f32 {v(b_)}, {v(b_)}, v9')
                e(f'v_cvt_pk_bf16_f32 {v(rr)}, {v(a_)}, {v(b_)}')
                if do_ln:
                    e(f'buffer_store_dword {v(rr)}, v2, s[4:7], s40 offen offset:{1280 * r + 128 * j} sc1')
                    e(f'v_lshlrev_b32 {v(a_)}, 16, {v(rr)}')
                    e(f'v_and_b32 {v(b_)}, 0xffff0000, {v(rr)}')
                else:
                    if j == 0 and r == 2:
                        e('s_add_u32 s31, s31, 2560')
                    e(f'buffer_store_dword {v(rr)}, v2, {s(S_OUT, 4)}, s31 offen offset:{1280 * (r & 1) + 128 * j}')
            if not do_ln:
                continue
            e(f'v_add_f32 v8, {v(X)}, {v(X + 1)}')
            for j in range(2, 10):
                e(f'v_add_f32 v8, v8, {v(X + j)}')
            wave_sum(e, 8, 9)
            e('v_mul_f32 v8, s38, v8')
            e('v_mov_b32 v10, 0')
            for j in range(10):
                e(f'v_sub_f32 v9, {v(X + j)}, v8')
                e('v_fmac_f32 v10, v9, v9')
            wave_sum(e, 10, 9)
            e('v_mul_f32 v10, s38, v10')
            rnd2(e, 8, 10, 7)
            e('v_add_f32 v10, s39, v10')
            rnd2(e, 10, 9, 7)
            e('v_sqrt_f32 v10, v10')
            rnd2(e, 10, 9, 7)
            e('v_rcp_f32 v10, v10')
            for j in range(0, 10, 2):
                a_, b_ = X + j, X + j + 1
                e(f'v_sub_f32 {v(a_)}, {v(a_)}, v8')
                e(f'v_sub_f32 {v(b_)}, {v(b_)}, v8')
                rnd2(e, a_, b_, 7)
                e(f'v_mul_f32 {v(a_)}, {v(a_)}, v10')
                e(f'v_mul_f32 {v(b_)}, {v(b_)}, v10')
                rnd2(e, a_, b_, 7)
                e(f'v_mul_f32 {v(a_)}, {v(a_)}, {v(SC + j)}')
                e(f'v_mul_f32 {v(b_)}, {v(b_)}, {v(SC + j + 1)}')
                rnd2(e, a_, b_, 7)
                e(f'v_add_f32 {v(a_)}, {v(a_)}, {v(SH + j)}')
                e(f'v_add_f32 {v(b_)}, {v(b_)}, {v(SH + j + 1)}')
                e(f'v_cvt_pk_bf16_f32 {v(a_)}, {v(a_)}, {v(b_)}')
                e(f'buffer_store_dword {v(a_)}, v12, s[4:7], s41 offen offset:{1280 * r + 128 * j} sc1')
        signal(e, name, cdone, B, loop)

    combine('wk_ln2', 8, WS_PW, 2, True, True, (C_WO, 80), C_LN2, 2)
    combine('wk_fin', 3, WS_PD, 5, False, False, (C_DN, 30), None, 4)

    name = 'wk_up'
    e.label(name)
    reset(e)
    G = Gemm(e, 64, [(S_W1, 3456, 64), (S_W3, 3456, 64)], 2, 2, 10, 1280, nstage=6, vbase=8, sbase=40, acc_base=128, xfl='sc1')
    G.setup(VL, SW, 2)
    e(f's_and_b32 s54, {s(P1)}, 1')
    e(f's_lshr_b32 s58, {s(P1)}, 1')
    e(f's_lshl_b32 s55, {s(B)}, 1')
    e('s_add_u32 s54, s54, s55')
    e(f's_mul_i32 s55, s54, {64 * 1280}')
    e(f's_add_u32 s55, s55, {WS_H2}')
    e('s_lshl_b32 s56, s58, 7')
    e('s_mov_b32 s57, s56')
    G.init_offsets(55, [56, 57])
    G.pre_w()
    dep_wait(e, name, [(C_LN2, 16)], B)
    G.mainloop(4, ['T'] * G.NT, name, w_done=True)
    mid(e)
    e(f'v_and_b32 v2, 15, {v(VL)}')
    e(f'v_lshrrev_b32 v3, 4, {v(VL)}')
    e('v_mul_u32_u24 v4, 3456, v2')
    e('v_lshl_add_u32 v4, v3, 4, v4')
    e(f's_lshr_b32 s31, {s(SW)}, 1')
    e(f's_and_b32 s32, {s(SW)}, 1')
    e('s_lshl_b32 s33, s54, 1')
    e('s_add_u32 s33, s33, s31')
    e(f's_mul_i32 s33, s33, {32 * 3456}')
    e('s_lshl_b32 s34, s32, 6')
    e('s_add_u32 s34, s34, s56')
    e('s_add_u32 s33, s33, s34')
    e(f's_add_u32 s33, s33, {WS_HM}')
    e(f's_mov_b32 s37, {f32bits(-LOG2E):#x}')
    T = G.v_fx
    for mi in range(2):
        o = T + 4 * (mi & 1)
        for a_ in range(2):
            gv = G.accr(mi, a_)
            uv = G.accr(mi, 2 + a_)
            for h in range(2):
                g0, g1, u0, u1 = gv + 2 * h, gv + 2 * h + 1, uv + 2 * h, uv + 2 * h + 1
                rnd2(e, g0, g1, 6)
                rnd2(e, u0, u1, 6)
                silu_inplace(e, g0, 6, 37)
                silu_inplace(e, g1, 7, 37)
                rnd2(e, g0, g1, 6)
                e(f'v_mul_f32 {v(g0)}, {v(g0)}, {v(u0)}')
                e(f'v_mul_f32 {v(g1)}, {v(g1)}, {v(u1)}')
                e(f'v_cvt_pk_bf16_f32 {v(o + 2 * a_ + h)}, {v(g0)}, {v(g1)}')
        e(f'buffer_store_dwordx4 {v(o, 4)}, v4, s[4:7], s33 offen sc1')
        if mi < 1:
            e(f's_add_u32 s33, s33, {16 * 3456}')
    signal(e, name, C_UP, B, loop)


if __name__ == '__main__':
    import argparse
    ap = argparse.ArgumentParser()
    ap.add_argument('--out', default='mega.s')
    ap.add_argument('--kw', default='')
    ap.add_argument('--log', action='store_true')
    ap.add_argument('--sleep', type=int, default=8)
    ap.add_argument('--sleepn', type=int, default=1)
    ap.add_argument('--ost', default='sc1')
    args = ap.parse_args()
    LOG = args.log
    SLEEP = args.sleep
    SLEEPN = args.sleepn
    e = Em()
    ks = []
    ks.append(gen_all.gen_prep(e, zero_ctr=True))
    ks.append(gen_all.gen_ln(e, 'ln1_kernel', True, WS_H1, 0, 1))
    e.raw('.globl mega_kernel')
    reset(e)
    kw = eval('dict(' + args.kw + ')')
    gen_chain5.gen_chain(e, name='mega_kernel', mega='wk_entry', ostfl=args.ost, **kw)
    gen_workers(e)
    ks.append(dict(name='mega_kernel', grid=256, lds=163840, vgpr=512, accum=256))
    hdr = ''
    for k in ks:
        hdr += f"; @launch kernel={k['name']} grid=({k['grid']},1,1) block=(256,1,1) lds={k['lds']}\n"
    hdr += '.amdgcn_target "amdgcn-amd-amdhsa--gfx950"\n.text\n'
    open(args.out, 'w').write(hdr + e.text() + ''.join(kd(k['name'], k['vgpr'], k['accum']) for k in ks))
```

```python
from emit import *
from layout import *
from gen_chain import Pool, f32bits, kd
import struct

S_WS = 4
S_DBG = 8
S_WQ = 12
S_WK = 16
S_WV = 20
S_WO = 24
S_H = 28
S_W = 29
S_STEP = 30
S_T0 = 31
S_T1 = 32
S_T2 = 33
S_T3 = 34
S_MODE = 35
S_UNIT = 36
S_XCC = 37
S_C1 = 38
S_MASKLO = 40
S_LDSW = 42
S_SH13 = 43
S_MBP = 44
S_MBB = 47
S_PBST = 50
S_MSL = 55
S_MBL = 56
S_PBLD = 60
S_MBC = 62
S_MBN = 63
S_STR = 64
S_KMP = 72
S_VXO = 73
S_KMO = 74
S_VMO = 75
S_VMP = 15
S_RSP = 13
S_MRP = 14
S_DUM = 46
S_KVOK = 16
S_RU = 12
S_KXW = 57
S_KXM = 58
S_WRM = 3
S_M9D = 49
S_MDST = 61
WS_DUMMY = 0x0E800000
S_STAMP = 76

V_LANE16 = 0
V_IDX = 1
V_AF = 2
V_QKR = 3
V_LDSW = 4
V_PK1 = 5
V_PK2 = 6
V_WT = 7
V_MBST = 13
NPERS = 8
V_QKW, V_OW, V_OR, V_PBST, V_KXG = 8, 9, 10, 11, 12


_fj = [0]


def far_jump(e, label, sp):
    _fj[0] += 1
    here = f'Lfj{_fj[0]}'
    e(f's_getpc_b64 {s(sp, 2)}')
    e.label(here)
    e.raw(f'    s_add_u32 {s(sp)}, {s(sp)}, {label}-{here}')
    e.raw(f'    s_addc_u32 {s(sp + 1)}, {s(sp + 1)}, 0')
    e(f's_setpc_b64 {s(sp, 2)}')


def gen_chain(em, name='chain_kernel', mega=None, selfinit=False, nmoda=40, n_lds=17, pool_end=72, nsteps=64, stamps=False, la_lds=5, max_str=4,
              naf=3, vgap=1, wat=26, str_issue=(0, 8, 16, 24), ackA=True, ackK=True, nv1=12, nva=7, smr=3, slow=True, npre1=2, npre2=2,
              lds_at=(8, 12, 16, 20, 28, 34, 43, 62, 64, 66, 68, 70, 72, 74, 76, 78, 79, 36, 9),
              str_at=(0, 1, 2, 3, 23, 31, 39, 46, 45, 39, 32, 78, 76), strfl='sc1', nsb=6, noa=2, dbg='', ldfl='nt', ostfl='nt'):
    WL = n_lds * 2048
    L_MMEM = 0
    L_MQ = L_MMEM + 10240
    L_MK = L_MQ + 2048
    L_O = L_MK + 2048
    L_KX = L_O + 2048
    L_WB = L_KX + 8192
    L_END = L_WB + 4 * WL
    assert L_END <= 163840, L_END
    NRING = WL // 4096

    units = [(m, t) for m in 'qkv' for t in range(10)] + [('o', t, p) for p in range(5) for t in range(2)]
    order = []
    for t in range(8):
        for m in 'qk':
            for tau in range(2):
                order.append(((m, t), tau))
    for m in 'qk':
        for t in (8, 9):
            for tau in range(2):
                order.append(((m, t), tau))
    for t in range(10):
        for tau in range(2):
            order.append((('v', t), tau))
    for p in range(5):
        for t in range(2):
            for tau in range(2):
                order.append((('o', t, p), tau))
    n_reg = (512 - pool_end) // 8
    n_str = 80 - n_reg - n_lds
    assert 0 <= n_str <= 14
    place = {}
    for i, oi in enumerate(sorted(str_at[:n_str])):
        place[order[oi]] = ('str', i * 2048)
    for i, oi in enumerate(sorted(lds_at[:n_lds])):
        assert order[oi] not in place
        place[order[oi]] = ('lds', i * 2048)
    assert len(place) == n_str + n_lds
    r = pool_end
    for sl in order:
        if sl not in place:
            place[sl] = ('reg', r)
            r += 8
    assert r == pool_end + n_reg * 8
    LDS_G = 28672

    pool = Pool(NPERS, pool_end)
    e = em
    em.raw('.p2align 8')
    em.raw(f'.type {name},@function')
    em.label(name)
    e('s_cmp_lt_u32 s2, 256')
    e(f's_cbranch_scc1 {name}_go')
    e('s_endpgm')
    e.label(f'{name}_go')
    if 'rt' in dbg:
        e('s_memrealtime s[92:93]')
    e('s_load_dwordx4 s[48:51], s[0:1], 16')
    e('s_load_dwordx4 s[52:55], s[0:1], 32')
    e('s_load_dwordx4 s[56:59], s[0:1], 112')
    e(f's_getreg_b32 {s(S_XCC)}, hwreg(HW_REG_XCC_ID)')
    e(f's_and_b32 {s(S_XCC)}, {s(S_XCC)}, 15')
    e('v_lshrrev_b32 v20, 6, v0')
    e('v_and_b32 v16, 63, v0')
    e(f'v_readfirstlane_b32 {s(S_W)}, v20')
    e('s_waitcnt lgkmcnt(0)')
    LN = 16

    def srd(d, src, size):
        e(f's_mov_b32 {s(d)}, {s(src)}')
        e(f's_and_b32 {s(d + 1)}, {s(src + 1)}, 0xffff')
        e(f's_mov_b32 {s(d + 2)}, {size}')
        e(f's_mov_b32 {s(d + 3)}, 0x20000')
    srd(S_WQ, 48, 5242880)
    srd(S_WK, 50, 5242880)
    srd(S_WV, 52, 5242880)
    srd(S_WO, 54, 5242880)
    srd(S_DBG, 56, 256)
    srd(S_WS, 58, WS_SIZE)

    if selfinit:
        e(f's_cmp_eq_u32 {s(S_XCC)}, 0')
        e(f's_cbranch_scc1 {name}_take')
        far_jump(e, mega, 44)
        e.label(f'{name}_take')
        e(f's_cmp_lg_u32 {s(S_W)}, 0')
        e(f's_cbranch_scc1 {name}_elected')
        e('v_mov_b32 v20, 1')
        e('v_mov_b32 v21, 0')
        e('s_mov_b64 exec, 1')
        e(f'buffer_atomic_add v20, v21, {s(S_DBG, 4)}, 0 offen sc0')
        e.wait_vm()
        e('ds_write_b32 v21, v20')
        e('s_mov_b64 exec, -1')
        e.wait_lg()
        e.label(f'{name}_elected')
        e('s_barrier')
        e('v_mov_b32 v21, 0')
        e('ds_read_b32 v20, v21')
        e.wait_lg()
        e(f'v_readfirstlane_b32 {s(S_H)}, v20')
        e('s_barrier')
        e(f's_cmp_lt_u32 {s(S_H)}, 32')
        e(f's_cbranch_scc1 {name}_ischain')
        far_jump(e, mega + '2', 44)
        e.label(f'{name}_ischain')
        e(f's_cmp_eq_u32 {s(S_XCC)}, 0')
        e(f's_cbranch_scc1 {name}_native')
        e('v_mov_b32 v20, 1')
        e('v_mov_b32 v21, 136')
        e(f'buffer_store_dword v20, v21, {s(S_DBG, 4)}, 0 offen sc1')
        e.wait_vm()
        e.label(f'{name}_native')
    else:
        e(f's_cmp_lg_u32 {s(S_W)}, 0')
        e(f's_cbranch_scc1 {name}_elected')
        e('v_mov_b32 v20, 1')
        e('v_mov_b32 v21, 1')
        e(f's_lshl_b32 {s(S_T0)}, {s(S_XCC)}, 2')
        e(f'v_mov_b32 v22, {s(S_T0)}')
        e('v_mov_b32 v23, 64')
        e('s_mov_b64 exec, 1')
        e(f'buffer_atomic_add v20, v22, {s(S_DBG, 4)}, 0 offen sc0')
        e(f'buffer_atomic_add v21, v23, {s(S_DBG, 4)}, 0 offen sc0')
        e.wait_vm()
        e(f'v_readfirstlane_b32 {s(S_T0)}, v20')
        e(f'v_readfirstlane_b32 {s(S_T1)}, v21')
        e('v_mov_b32 v23, 68')
        e(f's_cmp_eq_u32 {s(S_T0)}, 31')
        e(f's_cbranch_scc0 {name}_el1')
        e(f's_add_u32 {s(S_T2)}, {s(S_XCC)}, 1')
        e(f'v_mov_b32 v20, {s(S_T2)}')
        e('v_mov_b32 v21, 0')
        e(f'buffer_atomic_cmpswap v[20:21], v23, {s(S_DBG, 4)}, 0 offen')
        e.label(f'{name}_el1')
        e(f's_cmp_eq_u32 {s(S_T1)}, 255')
        e(f's_cbranch_scc0 {name}_el2')
        e('v_mov_b32 v20, 0xff')
        e('v_mov_b32 v21, 0')
        e(f'buffer_atomic_cmpswap v[20:21], v23, {s(S_DBG, 4)}, 0 offen')
        e.label(f'{name}_el2')
        e.label(f'{name}_el3')
        e(f'buffer_load_dword v20, v23, {s(S_DBG, 4)}, 0 offen sc1')
        e.wait_vm()
        e(f'v_readfirstlane_b32 {s(S_T2)}, v20')
        e(f's_cmp_eq_u32 {s(S_T2)}, 0')
        e(f's_cbranch_scc1 {name}_el3')
        e(f's_mov_b32 {s(S_H)}, 0xffff')
        e(f's_add_u32 {s(S_T3)}, {s(S_XCC)}, 1')
        e(f's_cmp_eq_u32 {s(S_T2)}, {s(S_T3)}')
        e(f's_cselect_b32 {s(S_H)}, {s(S_T0)}, {s(S_H)}')
        e(f's_cmp_eq_u32 {s(S_T2)}, 0xff')
        e(f's_cselect_b32 {s(S_H)}, {s(S_T1)}, {s(S_H)}')
        e(f's_cselect_b32 {s(S_MODE)}, 1, 0')
        e(f's_lshl_b32 {s(S_T0)}, {s(S_MODE)}, 16')
        e(f's_or_b32 {s(S_T0)}, {s(S_T0)}, {s(S_H)}')
        e(f'v_mov_b32 v20, {s(S_T0)}')
        e('v_mov_b32 v21, 0')
        e('ds_write_b32 v21, v20')
        e('s_mov_b64 exec, -1')
        e.wait_lg()
        e.label(f'{name}_elected')
        e('s_barrier')
        e('v_mov_b32 v21, 0')
        e('ds_read_b32 v20, v21')
        e.wait_lg()
        e(f'v_readfirstlane_b32 {s(S_T0)}, v20')
        e(f's_and_b32 {s(S_H)}, {s(S_T0)}, 0xffff')
        e(f's_lshr_b32 {s(S_MODE)}, {s(S_T0)}, 16')
        e('s_barrier')
        e(f's_cmp_ge_u32 {s(S_H)}, 32')
        if mega:
            e(f's_cbranch_scc0 {name}_ischain')
            far_jump(e, mega, 44)
            e.label(f'{name}_ischain')
        else:
            e(f's_cbranch_scc1 {name}_exit')


    g, c, rp, cp, g1, g2, sw = 17, 18, 19, 20, 21, 22, 23
    T = 24
    e(f'v_lshrrev_b32 {v(g)}, 4, {v(LN)}')
    e(f'v_and_b32 {v(c)}, 15, {v(LN)}')
    e(f'v_lshrrev_b32 {v(rp)}, 2, {v(c)}')
    e(f'v_and_b32 {v(cp)}, 3, {v(LN)}')
    e(f'v_and_b32 {v(g1)}, 1, {v(g)}')
    e(f'v_lshrrev_b32 {v(g2)}, 1, {v(g)}')
    e(f'v_lshl_add_u32 {v(sw)}, {v(g1)}, 1, {v(g2)}')
    e(f'v_lshlrev_b32 {v(V_LANE16)}, 4, {v(LN)}')
    e(f'v_and_b32 {v(T)}, 2, {v(LN)}')
    e(f'v_cmp_ne_u32 vcc, 0, {v(T)}')
    e(f'v_mov_b32 {v(T + 1)}, 0x4444')
    e(f'v_mov_b32 {v(T + 2)}, 0xeeee')
    e(f'v_cndmask_b32 {v(V_IDX)}, {v(T + 1)}, {v(T + 2)}, vcc')
    e(f'v_lshl_add_u32 {v(T)}, {v(g)}, 2, {v(rp)}')
    e(f'v_lshlrev_b32 {v(T + 1)}, 3, {v(cp)}')
    e(f'v_lshl_add_u32 {v(V_AF)}, {v(T)}, 5, {v(T + 1)}')
    if L_MMEM:
        e(f'v_add_u32 {v(V_AF)}, {L_MMEM}, {v(V_AF)}')
    e(f'v_and_b32 {v(T + 2)}, 1, {v(cp)}')
    e(f'v_lshlrev_b32 {v(T + 2)}, 3, {v(T + 2)}')
    e(f'v_lshl_add_u32 {v(V_QKR)}, {v(T)}, 4, {v(T + 2)}')
    e(f'v_add_u32 {v(V_QKR)}, {L_MQ}, {v(V_QKR)}')
    e(f's_lshl_b32 {s(S_T0)}, {s(S_W)}, 5')
    e(f'v_add_u32 {v(T)}, {s(S_T0)}, {v(c)}')
    e(f'v_lshlrev_b32 {v(T + 2)}, 2, {v(sw)}')
    e(f'v_lshl_add_u32 {v(V_QKW)}, {v(T)}, 4, {v(T + 2)}')
    e(f'v_add_u32 {v(V_QKW)}, {L_MQ}, {v(V_QKW)}')
    e(f's_lshl_b32 {s(S_T0)}, {s(S_W)}, 2')
    e(f'v_add_u32 {v(T)}, {s(S_T0)}, {v(g)}')
    e(f'v_and_b32 {v(T + 3)}, 7, {v(LN)}')
    e(f'v_lshl_add_u32 {v(T)}, {v(T)}, 3, {v(T + 3)}')
    e(f'v_lshlrev_b32 {v(V_OW)}, 4, {v(T)}')
    e(f'v_add_u32 {v(V_OW)}, {L_O}, {v(V_OW)}')
    e(f'v_and_b32 {v(T)}, 1, {v(rp)}')
    e(f'v_lshrrev_b32 {v(T + 2)}, 1, {v(rp)}')
    e(f'v_lshl_add_u32 {v(T)}, {v(T)}, 1, {v(T + 2)}')
    e(f'v_and_b32 {v(T + 2)}, 1, {v(LN)}')
    e(f'v_lshl_add_u32 {v(T)}, {v(T)}, 1, {v(T + 2)}')
    e(f'v_lshl_add_u32 {v(T)}, {v(g)}, 3, {v(T)}')
    e(f'v_lshrrev_b32 {v(T + 2)}, 1, {v(cp)}')
    e(f'v_lshl_add_u32 {v(T)}, {v(T + 2)}, 5, {v(T)}')
    e(f'v_lshlrev_b32 {v(V_OR)}, 4, {v(T)}')
    e(f'v_add_u32 {v(V_OR)}, {L_O}, {v(V_OR)}')
    e(f'v_lshlrev_b32 {v(T)}, 12, {v(rp)}')
    e(f'v_lshl_add_u32 {v(T)}, {v(cp)}, 5, {v(T)}')
    e(f'v_lshl_add_u32 {v(V_PBST)}, {v(g)}, 3, {v(T)}')
    e(f'v_lshrrev_b32 {v(T)}, 1, {v(T + 3)}')
    e(f'v_and_b32 {v(T + 2)}, 1, {v(LN)}')
    e(f'v_lshl_add_u32 {v(T + 2)}, {v(T + 2)}, 1, {v(g1)}')
    e(f'v_lshlrev_b32 {v(T + 2)}, 3, {v(T + 2)}')
    e(f'v_lshl_add_u32 {v(V_MBST)}, {v(T)}, 5, {v(T + 2)}')
    e(f'v_lshlrev_b32 {v(T)}, 4, {v(g)}')
    e(f'v_lshl_add_u32 {v(V_KXG)}, {v(c)}, 8, {v(T)}')
    e(f's_mul_i32 {s(S_LDSW)}, {s(S_W)}, {WL}')
    e(f's_add_u32 {s(S_LDSW)}, {s(S_LDSW)}, {L_WB}')
    e(f'v_add_u32 {v(V_LDSW)}, {s(S_LDSW)}, {v(V_LANE16)}')
    e(f'v_lshl_or_b32 {v(V_IDX)}, {v(V_KXG)}, 16, {v(V_IDX)}')
    e(f'v_lshl_or_b32 {v(V_PK1)}, {v(V_OR)}, 16, {v(V_OW)}')
    e(f'v_lshl_or_b32 {v(V_PK2)}, {v(V_PBST)}, 16, {v(V_QKW)}')
    e(f'v_lshl_or_b32 {v(V_IDX)}, {v(V_MBST)}, 25, {v(V_IDX)}')
    cc = f32bits((128 ** -0.5) * 1.4426950408889634)
    e(f's_mov_b32 {s(S_C1)}, {cc:#x}')
    e(f's_mov_b32 {s(S_C1 + 1)}, {cc:#x}')
    e(f's_mov_b32 {s(S_MASKLO)}, -1')
    e(f's_mov_b32 {s(S_MASKLO + 1)}, 0')
    e(f's_lshl_b32 {s(S_T0)}, {s(S_H)}, 1')
    e(f's_add_u32 {s(S_T0)}, {s(S_T0)}, {s(S_W)}')
    e(f's_lshr_b32 {s(S_T1)}, {s(S_T0)}, 4')
    e(f's_and_b32 {s(S_T0)}, {s(S_T0)}, 15')
    e(f's_mul_i32 {s(S_T1)}, {s(S_T1)}, 20')
    e(f's_add_u32 {s(S_UNIT)}, {s(S_T0)}, {s(S_T1)}')
    e(f's_add_u32 {s(S_UNIT)}, {s(S_UNIT)}, 4')
    e(f's_lshr_b32 {s(S_T1)}, {s(S_H)}, 2')
    e(f's_mul_i32 {s(S_T1)}, {s(S_T1)}, 20')
    e(f's_and_b32 {s(S_T0)}, {s(S_H)}, 3')
    e(f's_add_u32 {s(S_T0)}, {s(S_T0)}, {s(S_T1)}')
    e(f's_cmp_lt_u32 {s(S_H)}, 16')
    e(f's_cselect_b32 {s(S_T0)}, {s(S_T0)}, 255')
    e(f's_cmp_eq_u32 {s(S_W)}, 2')
    e(f's_cselect_b32 {s(S_UNIT)}, {s(S_T0)}, {s(S_UNIT)}')
    e(f's_cmp_eq_u32 {s(S_W)}, 3')
    e(f's_cselect_b32 {s(S_UNIT)}, 255, {s(S_UNIT)}')

    VG_QKV, VG_O, VT_QKV, VT_O = T + 6, T + 7, T + 8, T + 9
    e(f'v_lshrrev_b32 {v(T)}, 2, {v(LN)}')
    e(f'v_lshlrev_b32 {v(T + 1)}, 4, {v(cp)}')
    e(f'v_lshl_add_u32 {v(VG_QKV)}, {v(T)}, 13, {v(T + 1)}')
    e(f'v_mul_u32_u24 {v(T)}, 1280, {v(T)}')
    e(f'v_add_u32 {v(VG_O)}, {v(T)}, {v(T + 1)}')
    e(f'v_lshrrev_b32 {v(T + 2)}, 1, {v(rp)}')
    e(f'v_and_b32 {v(T + 3)}, 1, {v(rp)}')
    e(f'v_lshlrev_b32 {v(T + 5)}, 3, {v(cp)}')
    e(f'v_lshlrev_b32 {v(T + 4)}, 5, {v(g1)}')
    e(f'v_lshl_add_u32 {v(T + 4)}, {v(T + 2)}, 4, {v(T + 4)}')
    e(f'v_lshl_add_u32 {v(T + 4)}, {v(g2)}, 2, {v(T + 4)}')
    e(f'v_add_u32 {v(T + 4)}, {v(T + 4)}, {v(T + 3)}')
    e(f'v_lshl_add_u32 {v(VT_QKV)}, {v(T + 4)}, 6, {v(T + 5)}')
    e(f'v_add_u32 {v(VT_QKV)}, {s(S_LDSW)}, {v(VT_QKV)}')
    e(f'v_lshlrev_b32 {v(T + 4)}, 5, {v(T + 2)}')
    e(f'v_lshl_add_u32 {v(T + 4)}, {v(g1)}, 4, {v(T + 4)}')
    e(f'v_lshl_add_u32 {v(T + 4)}, {v(g2)}, 2, {v(T + 4)}')
    e(f'v_add_u32 {v(T + 4)}, {v(T + 4)}, {v(T + 3)}')
    e(f'v_lshl_add_u32 {v(VT_O)}, {v(T + 4)}, 6, {v(T + 5)}')
    e(f'v_add_u32 {v(VT_O)}, {s(S_LDSW)}, {v(VT_O)}')
    e(f's_lshl_b32 {s(S_T2)}, {s(S_H)}, 8')
    e(f's_lshl_b32 {s(S_T0)}, {s(S_W)}, 6')
    e(f's_add_u32 {s(S_T2)}, {s(S_T2)}, {s(S_T0)}')
    e(f's_mul_i32 {s(S_T3)}, {s(S_H)}, {128 * 1280}')
    e(f's_mul_i32 {s(S_T0)}, {s(S_W)}, 320')
    e(f's_add_u32 {s(S_T3)}, {s(S_T3)}, {s(S_T0)}')
    e(f's_mul_i32 {s(S_STR)}, {s(S_H)}, {STR_HSTRIDE}')
    e(f's_mul_i32 {s(S_T0)}, {s(S_W)}, {STR_WSTRIDE}')
    e(f's_add_u32 {s(S_STR)}, {s(S_STR)}, {s(S_T0)}')
    e(f's_add_u32 {s(S_STR)}, {s(S_STR)}, {WS_STR}')
    for i in range(1, 8):
        e(f's_add_u32 {s(S_STR + i)}, {s(S_STR)}, {4096 * i}')

    if selfinit:
        e('s_load_dwordx2 s[48:49], s[0:1], 8')
        for j in range(4):
            e(f'v_mov_b32 {v(40 + j)}, -1')
        e(f's_lshl_b32 {s(S_T0)}, {s(S_H)}, 2')
        e(f's_add_u32 {s(S_T0)}, {s(S_T0)}, {s(S_W)}')
        e(f's_mul_i32 {s(S_T1)}, {s(S_T0)}, 2560')
        e(f's_mov_b64 exec, 0xffffffff') if False else None
        for sl_ in range(2):
            e(f's_add_u32 s50, {s(S_T1)}, {WS_PB + sl_ * PB_STRIDE}')
            for i in range(3):
                e(f'buffer_store_dwordx4 v[40:43], {v(V_LANE16)}, {s(S_WS, 4)}, s50 offen offset:{1024 * i} sc1')
        e(f's_cmp_ge_u32 {s(S_T0)}, 48')
        e(f's_cbranch_scc1 {name}_nomb')
        e(f's_lshl_b32 s50, {s(S_T0)}, 10')
        e(f's_add_u32 s50, s50, {WS_MB + MB_STRIDE}')
        e(f'buffer_store_dwordx4 v[40:43], {v(V_LANE16)}, {s(S_WS, 4)}, s50 offen sc1')
        e.label(f'{name}_nomb')
        e('s_waitcnt lgkmcnt(0)')
        e('s_mov_b32 s52, s48')
        e('s_and_b32 s53, s49, 0xffff')
        e('s_mov_b32 s54, 10240')
        e('s_mov_b32 s55, 0x20000')
        e(f's_cmp_ge_u32 {s(S_T0)}, 40')
        e(f's_cbranch_scc1 {name}_nom0')
        e(f's_lshl_b32 s50, {s(S_T0)}, 6')
        e(f'v_add_u32 v44, s50, {v(LN)}')
        e('v_and_b32 v45, 1, v44')
        e('v_bfe_u32 v46, v44, 1, 2')
        e('v_bfe_u32 v47, v44, 3, 4')
        e('v_lshrrev_b32 v48, 7, v44')
        e('v_lshl_add_u32 v47, v45, 4, v47')
        e('v_lshl_add_u32 v47, v48, 5, v47')
        e('v_mul_u32_u24 v46, 2560, v46')
        e('v_lshl_add_u32 v46, v47, 1, v46')
        e('buffer_load_ushort v45, v46, s[52:55], 0 offen')
        e('buffer_load_ushort v47, v46, s[52:55], 0 offen offset:1280')
        e('v_lshlrev_b32 v44, 2, v44')
        e('s_waitcnt vmcnt(0)')
        e('v_lshl_or_b32 v45, v47, 16, v45')
        e('v_min_u32 v45, 0xfffffffe, v45')
        e(f's_mov_b32 s50, {WS_MB}')
        e(f'buffer_store_dword v45, v44, {s(S_WS, 4)}, s50 offen sc1')
        e.label(f'{name}_nom0')
        e('s_waitcnt vmcnt(0)')
        e('s_barrier')
        e(f's_cmp_lg_u32 {s(S_W)}, 0')
        e(f's_cbranch_scc1 {name}_noib')
        e('v_mov_b32 v44, 132')
        e('v_mov_b32 v45, 1')
        e('s_mov_b64 exec, 1')
        e(f'buffer_atomic_add v45, v44, {s(S_DBG, 4)}, 0 offen')
        e('s_mov_b64 exec, -1')
        e.label(f'{name}_noib')
        e.vm = []
        e.hist = []

    ulist = units
    TMPW = [36 + 8 * i for i in range((pool_end - 36) // 8)]
    tw = [0]

    def issue_dma(i):
        un = ulist[i]
        pos = i % NRING
        for q in range(4):
            if un[0] == 'o':
                _, t, p = un
                off = (64 * t + 16 * q) * 1280 + 64 * p
                e(f's_add_u32 {s(S_T0)}, {s(S_T3)}, {off}')
                srdn, vg = S_WO, VG_O
            else:
                m, t = un
                off = (64 * t + 16 * q) * 8192
                e(f's_add_u32 {s(S_T0)}, {s(S_T2)}, {off}')
                srdn, vg = {'q': S_WQ, 'k': S_WK, 'v': S_WV}[m], VG_QKV
            e(f's_add_u32 m0, {s(S_LDSW)}, {pos * 4096 + q * 1024}')
            e(f'buffer_load_dwordx4 {v(vg)}, {s(srdn, 4)}, {s(S_T0)} offen lds', tag=('dma', i))

    def process(i):
        un = ulist[i]
        pos = i % NRING
        e.wait_vm(('dma', i))
        vt = VT_O if un[0] == 'o' else VT_QKV
        tmp = {}
        for tau in range(2):
            kind, loc = place[(un, tau)]
            if kind == 'reg':
                dst = loc
            else:
                k = tw[0] % len(TMPW)
                tw[0] += 1
                dst = TMPW[k]

                tmp[tau] = (dst, k)
            for n in range(4):
                off = (8 * (n >> 1) + 2 * (n & 1)) * 64 + 32 * tau
                e(f'ds_read_b64_tr_b16 {u(dst + 2 * n, 2)}, {v(vt)} offset:{pos * 4096 + off}')
        e.wait_lg()
        for tau, (src, k) in tmp.items():
            kind, loc = place[(un, tau)]
            if kind == 'lds':
                loc += LDS_G
            e(f's_add_u32 {s(S_T0)}, {s(S_STR)}, {loc}')
            e(f'buffer_store_dwordx4 {v(src, 4)}, {v(V_LANE16)}, {s(S_WS, 4)}, {s(S_T0)} offen', tag=('st', k))
            e(f'buffer_store_dwordx4 {v(src + 4, 4)}, {v(V_LANE16)}, {s(S_WS, 4)}, {s(S_T0)} offen offset:1024', tag=('st', k))

    for i in range(NRING):
        issue_dma(i)
    for i in range(40):
        process(i)
        if i + NRING < 40:
            issue_dma(i + NRING)
    e.wait_vm()
    e.wait_lg()
    for i in range(2 * n_lds):
        e(f's_add_u32 {s(S_T0)}, {s(S_STR)}, {LDS_G + i * 1024}')
        e(f's_add_u32 m0, {s(S_LDSW)}, {i * 1024}')
        e(f'buffer_load_dwordx4 {v(V_LANE16)}, {s(S_WS, 4)}, {s(S_T0)} offen sc1 lds')
    e.wait_vm()

    e(f's_lshl_b32 {s(S_T0)}, {s(S_W)}, 10')
    e(f's_and_b32 {s(S_T0)}, {s(S_W)}, 1')
    e(f's_mul_i32 {s(S_MDST)}, {s(S_T0)}, 5120')
    e(f's_add_u32 {s(S_MBB)}, {s(S_MDST)}, {WS_MB}')
    e(f's_mov_b32 {s(S_MBP)}, {s(S_MBB)}')
    e(f's_add_u32 {s(S_MBP + 1)}, {s(S_MBP)}, 4096')
    e(f's_lshl_b32 {s(S_DUM)}, {s(S_H)}, 2')
    e(f's_add_u32 {s(S_DUM)}, {s(S_DUM)}, {s(S_W)}')
    e(f's_lshl_b32 {s(S_DUM)}, {s(S_DUM)}, 12')
    e(f's_add_u32 {s(S_DUM)}, {s(S_DUM)}, {WS_DUMMY}')
    e(f's_mov_b32 {s(S_MSL)}, 0')
    e(f's_mul_i32 {s(S_PBST)}, {s(S_W)}, {20 * 4096}')
    e(f's_lshl_b32 {s(S_T0)}, {s(S_H)}, 7')
    e(f's_add_u32 {s(S_PBST)}, {s(S_PBST)}, {s(S_T0)}')
    e(f's_add_u32 {s(S_PBST)}, {s(S_PBST)}, {WS_PB}')
    for p in range(1, 5):
        e(f's_add_u32 {s(S_PBST + p)}, {s(S_PBST)}, {p * 16384}')
    e(f's_lshl_b32 {s(S_PBLD)}, {s(S_UNIT)}, 12')
    e(f's_add_u32 {s(S_PBLD)}, {s(S_PBLD)}, {WS_PB}')
    e(f's_lshl_b32 {s(S_MBL)}, {s(S_UNIT)}, 7')
    e(f's_add_u32 {s(S_MBL)}, {s(S_MBL)}, {WS_MB}')
    e(f's_mov_b32 {s(S_MBC)}, {s(S_MBL)}')
    e(f's_add_u32 {s(S_MBN)}, {s(S_MBL)}, {MB_STRIDE}')
    e(f's_lshl_b32 {s(S_T0)}, {s(S_W)}, 11')
    e(f's_lshl_b32 {s(S_T1)}, {s(S_H)}, 13')
    e(f's_add_u32 {s(S_VXO)}, {s(S_T0)}, {s(S_T1)}')
    e(f's_add_u32 {s(S_VXO)}, {s(S_VXO)}, {WS_VXT}')
    e(f's_lshl_b32 {s(S_T0)}, {s(S_W)}, 9')
    e(f's_lshl_b32 {s(S_T1)}, {s(S_H)}, 12')
    e(f's_add_u32 {s(S_KMO)}, {s(S_T0)}, {s(S_T1)}')
    e(f's_add_u32 {s(S_KMO)}, {s(S_KMO)}, {WS_KM}')
    e(f's_lshl_b32 {s(S_SH13)}, {s(S_H)}, 13')
    e(f's_mov_b32 {s(S_STEP)}, 0')

    e(f's_lshr_b32 {s(S_T0)}, {s(S_W)}, 1')
    e(f's_lshl_b32 {s(S_T0)}, {s(S_T0)}, 12')
    e(f's_and_b32 {s(S_T1)}, {s(S_W)}, 1')
    e(f's_lshl_b32 {s(S_T1)}, {s(S_T1)}, 7')
    e(f's_add_u32 {s(S_KXW)}, {s(S_T0)}, {s(S_T1)}')
    e(f's_add_u32 {s(S_KXW)}, {s(S_KXW)}, {s(S_SH13)}')
    e(f's_add_u32 {s(S_KXW)}, {s(S_KXW)}, {WS_KX}')
    e(f's_lshl_b32 {s(S_KXM)}, {s(S_W)}, 11')
    e(f's_add_u32 {s(S_KXM)}, {s(S_KXM)}, {L_KX}')
    e(f's_lshl_b32 {s(S_WRM)}, {s(S_W)}, 11')
    e(f's_add_u32 {s(S_WRM)}, {s(S_WRM)}, {s(S_SH13)}')
    e(f's_add_u32 {s(S_WRM)}, {s(S_WRM)}, {WS_KX + 32 * 8192}')
    e(f's_mov_b32 {s(S_RSP)}, {s(S_DUM)}')
    e(f's_mov_b32 {s(S_MRP)}, {s(S_DUM)}')
    e(f's_mov_b32 {s(S_KMP)}, 0x3f80')
    e(f's_lshl_b32 {s(S_VMP)}, {s(S_W)}, 9')
    assert WS_VXT - WS_KX == 1 << 24

    def kx_items(adv, tmp):
        return [
            lambda: e(f'v_bfe_u32 {v(tmp)}, {v(V_IDX)}, 16, 12'),
            lambda: e(f's_add_u32 {s(S_T0)}, {s(S_KXW)}, {adv * 32 * 8192}'),
            lambda: e(f's_mov_b32 m0, {s(S_KXM)}'),
            lambda: e(f'buffer_load_dwordx4 {v(tmp)}, {s(S_WS, 4)}, {s(S_T0)} offen {ldfl} lds', tag='kx'),
            lambda: e(f's_add_u32 {s(S_T0)}, {s(S_T0)}, 64'),
            lambda: e(f's_add_u32 m0, {s(S_KXM)}, 1024'),
            lambda: e(f'buffer_load_dwordx4 {v(tmp)}, {s(S_WS, 4)}, {s(S_T0)} offen {ldfl} lds', tag='kx'),
        ]

    def kv_wait(lab, t0, t1):
        e(f's_cmp_ge_u32 {s(S_KVOK)}, {s(S_T2)}')
        e(f's_cbranch_scc1 {lab}_ok')
        e.cond_begin()
        e(f'v_and_b32 {v(t0)}, 0xf0, {v(V_LANE16)}')
        e(f'v_lshlrev_b32 {v(t0)}, 3, {v(t0)}')
        e(f's_mov_b32 {s(S_T3)}, {WS_CTR + C_KV * 128}')
        e.label(f'{lab}_spin')
        e(f'buffer_load_dword {v(t1)}, {v(t0)}, {s(S_WS, 4)}, {s(S_T3)} offen sc1')
        e('s_waitcnt vmcnt(0)')
        e(f'v_cmp_le_u32 vcc, 32, {v(t1)}')
        e(f's_and_b32 {s(S_KVOK)}, vcc_lo, 0xffff')
        e(f's_ff0_i32_b32 {s(S_KVOK)}, {s(S_KVOK)}')
        e(f's_cmp_ge_u32 {s(S_KVOK)}, {s(S_T2)}')
        e(f's_cbranch_scc0 {lab}_spin')
        e.cond_end()
        e.label(f'{lab}_ok')

    def signal_block(lab, t0):
        e(f's_lshl_b32 {s(S_T2)}, {s(S_T2)}, 7')
        e(f's_add_u32 {s(S_T2)}, {s(S_T2)}, {WS_CTR + C_CH * 128}')
        e(f'v_mov_b32 {v(t0)}, 1')
        e('s_mov_b64 exec, 1')
        e(f'buffer_atomic_add {v(t0)}, {v(V_LANE16)}, {s(S_WS, 4)}, {s(S_T2)} offen')
        e('s_mov_b64 exec, -1')

    ACC = pool.must(16)
    if selfinit:
        e(f'v_mov_b32 {v(ACC + 2)}, 128')
        e.label(f'{name}_ibw')
        e('s_sleep 8')
        e(f'buffer_load_dwordx2 {v(ACC, 2)}, {v(ACC + 2)}, {s(S_DBG, 4)}, 0 offen sc1')
        e('s_waitcnt vmcnt(0)')
        e(f'v_readfirstlane_b32 {s(S_T0)}, {v(ACC)}')
        e(f'v_readfirstlane_b32 {s(S_T1)}, {v(ACC + 1)}')
        e(f's_cmp_lt_u32 {s(S_T0)}, {nmoda}')
        e(f's_cbranch_scc1 {name}_ibw')
        e(f's_cmp_lt_u32 {s(S_T1)}, 32')
        e(f's_cbranch_scc1 {name}_ibw')
        e(f'buffer_load_dword {v(ACC)}, {v(ACC + 2)}, {s(S_DBG, 4)}, 0 offen offset:8 sc1')
        e('s_waitcnt vmcnt(0)')
        e(f'v_readfirstlane_b32 {s(S_MODE)}, {v(ACC)}')
    if mega:
        e(f's_mov_b32 {s(S_KVOK)}, 0')
        e(f's_mov_b32 {s(S_T2)}, 1')
        kv_wait(f'{name}_kv0', ACC, ACC + 1)
    for j in range(0, 16, 2):
        e(f'v_mov_b64 {v(ACC + j, 2)}, 0')
    npre = npre1 + npre2
    pre_slots = [sl for sl in order if place[sl][0] == 'str'][:npre]
    PRE = [pool.alloc(8, 8, top=True) for _ in pre_slots]

    def claim(b, n):
        for i in range(n):
            assert (b + i) in pool.free_, ('claim', b, n)
            pool.free_.remove(b + i)

    def str_items(sl, b, tag):
        loc = place[sl][1]
        sb, o = S_STR + loc // 4096, loc % 4096
        if 'nostr' in dbg:
            return []
        return [lambda: e(f'buffer_load_dwordx4 {v(b, 4)}, {v(V_LANE16)}, {s(S_WS, 4)}, {s(sb)} offen offset:{o} {strfl}', tag=tag),
                lambda: e(f'buffer_load_dwordx4 {v(b + 4, 4)}, {v(V_LANE16)}, {s(S_WS, 4)}, {s(sb)} offen offset:{o + 1024} {strfl}', tag=tag)]

    for sl, b in zip(pre_slots, PRE):
        for f in str_items(sl, b, 'pre'):
            f()
    tt = pool.must(1)
    for it in kx_items(0, tt):
        it()
    pool.free(tt, 1)
    e.wait_vm()
    if 'rt' in dbg:
        e('s_memrealtime s[94:95]')
        e('s_waitcnt lgkmcnt(0)')
    if 'tot' in dbg:
        e('s_memtime s[94:95]')
        e('s_memrealtime s[96:97]')
        e('s_waitcnt lgkmcnt(0)')
    if slow:
        e(f's_cmp_lg_u32 {s(S_MODE)}, 0')
        e(f's_cbranch_scc1 {name}_slow_0')

    def km_items(tmp, ta):
        it = [lambda: e(f'v_lshrrev_b32 {v(ta)}, 1, {v(V_LANE16)}'),
              lambda: e(f'v_add_u32 {v(tmp + 2)}, {s(S_VMP)}, {v(ta)}'),
              lambda: e(f'ds_read_b64 {v(tmp, 2)}, {v(tmp + 2)} offset:{L_MK}', tag='kmt')]
        it2 = []
        if 'noout' not in dbg:
            it2 = [lambda: e.wait_lg('kmt'),
                   lambda: e(f'buffer_store_dwordx2 {v(tmp, 2)}, {v(ta)}, {s(S_WS, 4)}, {s(S_KMO)} offen {ostfl}', tag='out')]
        return it, it2

    nst = [0]
    if stamps:
        for i in range(17, 28):
            e(f's_mov_b32 {s(i)}, 0')
        e('s_memtime s[100:101]')
        e('s_waitcnt lgkmcnt(0)')
        for i in range(12):
            e(f's_mov_b32 {s(S_STAMP + 2 * i)}, s100')

    def body(par, sc, pre):
        stamp_i = [0]
        L = f'{pre}_{par}'

        def stamp():
            if stamps:
                e(f's_memtime {s(S_STAMP + 2 * stamp_i[0], 2)}')
                stamp_i[0] += 1

        e.label(L)
        e.hist = []
        e.vm = []
        e.lg = []
        stamp()
        TM = pool.must(8)
        e(f's_cmp_ge_u32 {s(S_W)}, {0 if "nohop" in dbg else 2}')
        e(f's_cbranch_scc1 {L}_skipA')
        e.cond_begin()

        def dma_set():
            e(f's_add_u32 m0, {s(S_MDST)}, {L_MMEM}')
            for i in range(4):
                e(f'buffer_load_dwordx4 {v(V_LANE16)}, {s(S_WS, 4)}, {s(S_MBP)} offen offset:{1024 * i} sc1 lds')
            e(f's_add_u32 m0, {s(S_MDST)}, {L_MMEM + 4096}')
            e(f'buffer_load_dwordx4 {v(V_LANE16)}, {s(S_WS, 4)}, {s(S_MBP + 1)} offen sc1 lds')
        e(f'v_mov_b32 {v(TM)}, -1')
        e(f'v_mov_b32 {v(TM + 1)}, -1')
        e(f'v_lshlrev_b32 {v(TM + 2)}, 2, {v(V_LANE16)}')
        for j in range(0, 16, 2):
            e(f'v_mov_b64 {v(ACC + j, 2)}, 0')
        e(f'v_and_b32 {v(TM + 3)}, 0xf0, {v(V_LANE16)}')
        e(f'v_lshlrev_b32 {v(TM + 3)}, 2, {v(TM + 3)}')
        e(f'v_add_u32 {v(TM + 3)}, {s(S_MDST)}, {v(TM + 3)}')
        e(f'v_lshrrev_b32 {v(TM + 4)}, 25, {v(V_IDX)}')
        e(f'v_and_b32 {v(TM + 4)}, 0x78, {v(TM + 4)}')
        if ackA:
            e('s_waitcnt vmcnt(0)')
        dma_set()
        e(f'buffer_store_dwordx2 {v(TM, 2)}, {v(TM + 4)}, {s(S_WS, 4)}, {s(S_MRP)} offen {sc}', tag='rst')
        e(f'buffer_store_dword {v(TM)}, {v(TM + 2)}, {s(S_WS, 4)}, {s(S_RSP)} offen {sc}', tag='rst')
        e(f'v_add_u32 {v(TM + 2)}, {s(S_MDST)}, {v(TM + 2)}')
        e('s_waitcnt vmcnt(2)')
        e(f's_branch {L}_pollA1')
        e.label(f'{L}_pollA')
        if stamps:
            e('s_add_u32 s27, s27, 0x10000')
        dma_set()
        e('s_waitcnt vmcnt(0)')
        e.label(f'{L}_pollA1')
        e(f'ds_read_b32 {v(TM)}, {v(TM + 2)} offset:{L_MMEM}')
        e(f'ds_read_b32 {v(TM + 1)}, {v(TM + 3)} offset:{L_MMEM + 4096}')
        e('s_waitcnt lgkmcnt(0)')
        e(f'v_max_u32 {v(TM)}, {v(TM)}, {v(TM + 1)}')
        e(f'v_cmp_eq_u32 vcc, -1, {v(TM)}')
        if 'noretry' not in dbg:
            e(f's_cbranch_vccnz {L}_pollA')
        e.cond_end()
        e(f's_branch {L}_joinA')
        e.label(f'{L}_skipA')
        for j in range(0, 16, 2):
            e(f'v_mov_b64 {v(ACC + j, 2)}, 0')
        e('s_waitcnt vmcnt(0)')
        e.label(f'{L}_joinA')
        e('s_barrier')
        stamp()
        pool.free(TM, 8)

        loaded = {sl: b for sl, b in zip(pre_slots, PRE)}
        str_queue = [sl for sl in order if place[sl][0] == 'str' and sl not in loaded]
        lds_pending = [sl for sl in order if place[sl][0] == 'lds']
        inflight_str = []
        vq = []
        st = dict(reserve=0, str_limit=60, maxs=max_str, gap=0, cur=-1)

        issue_at = list(str_issue)

        def pump_str(force=False):
            while str_queue and (force or (issue_at and st['cur'] >= issue_at[0])):
                b = pool.alloc(8, 8, top=True, reserve=0 if force else st['reserve'])
                if b is None:
                    return
                force = False
                if issue_at:
                    issue_at.pop(0)
                sl = str_queue.pop(0)
                vq.extend(str_items(sl, b, ('str', sl)))
                loaded[sl] = b
                inflight_str.append(sl)

        def drain_vq(all_=False):
            if all_:
                while vq:
                    vq.pop(0)()
                return
            st['gap'] -= 1
            if vq and st['gap'] <= 0:
                vq.pop(0)()
                st['gap'] = vgap

        def pump_lds(cur_idx, force=False):
            while lds_pending and order.index(lds_pending[0]) <= cur_idx + la_lds:
                need = force and order.index(lds_pending[0]) <= cur_idx
                b = pool.alloc(8, 8, top=True, reserve=0 if need else st['reserve'])
                if b is None:
                    assert not need, 'no buffer for lds slot'
                    return
                lead = order.index(lds_pending[0]) - cur_idx
                if lead < 4:
                    print('; WARNING short lds lead', order.index(lds_pending[0]), lead)
                sl = lds_pending.pop(0)
                loc = place[sl][1]
                if 'nolds' not in dbg:
                    e(f'ds_read_b128 {v(b, 4)}, {v(V_LDSW)} offset:{loc}', tag=('lw', sl))
                    e(f'ds_read_b128 {v(b + 4, 4)}, {v(V_LDSW)} offset:{loc + 1024}', tag=('lw', sl))
                loaded[sl] = b

        def smf(acc, af, sl):
            idx = order.index(sl)
            st['cur'] = idx
            kind, loc = place[sl]
            if kind == 'reg':
                b = loc
            else:
                if sl not in loaded:
                    if kind == 'lds':
                        pump_lds(idx, True)
                    else:
                        print('; WARNING late stream issue', idx)
                        pump_str(True)
                b = loaded[sl]
                if kind == 'lds':
                    e.wait_lg(('lw', sl))
                else:
                    if sl in inflight_str:
                        drain_vq(True)
                    e.wait_vm(('str', sl))
            e(f'v_smfmac_f32_16x16x64_bf16 {v(acc, 4)}, {v(af, 4)}, {u(b, 8)}, {v(V_IDX)}')
            if kind != 'reg':
                pool.free(b, 8)
                if sl in inflight_str:
                    inflight_str.remove(sl)
            pump_str()
            pump_lds(idx + 1)
            drain_vq()

        def run(mf, side, ratio=2):
            side = list(side)
            for f in mf:
                f()
                for _ in range(ratio):
                    if side:
                        side.pop(0)()
            for f in side:
                f()

        AF = [pool.must(4) for _ in range(naf)]
        ZQ = pool.must(4)
        SM = None
        afseq = list(range(10)) + list(range(10))
        afpos = [0]

        def af_issue():
            k = afpos[0]
            if k >= len(afseq):
                return
            afpos[0] += 1
            t = afseq[k]
            b = AF[k % naf]
            e(f'ds_read_b64_tr_b16 {v(b, 2)}, {v(V_AF)} offset:{1024 * t}', tag=('af', k))
            e(f'ds_read_b64_tr_b16 {v(b + 2, 2)}, {v(V_AF)} offset:{1024 * t + 512}', tag=('af', k))

        for _ in range(naf):
            af_issue()
        if mega:
            e(f's_and_b32 {s(S_T2)}, {s(S_STEP)}, 3')
            e(f's_lshl_b32 {s(S_T2)}, {s(S_T2)}, 2')
            e(f's_add_u32 {s(S_T2)}, {s(S_T2)}, {s(S_W)}')
            e(f's_cmp_lg_u32 {s(S_T2)}, 3')
            e(f's_cbranch_scc1 {L}_nosig')
            e(f's_cmp_eq_u32 {s(S_STEP)}, 0')
            e(f's_cbranch_scc1 {L}_nosig')
            e.cond_begin()
            e(f's_lshr_b32 {s(S_T2)}, {s(S_STEP)}, 2')
            e(f's_sub_u32 {s(S_T2)}, {s(S_T2)}, 1')
            signal_block(L, ZQ)
            e.cond_end()
            e.label(f'{L}_nosig')

        def qk_ops(t, ms, k, last_use):
            ops = []
            first = [True]
            for m in ms:
                for tau in range(2):
                    def f(m=m, tau=tau):
                        if first[0]:
                            e.wait_lg(('af', k))
                            first[0] = False
                        smf(ACC + (0 if m == 'q' else 8) + 4 * tau, AF[k % naf], ((m, t), tau))
                    ops.append(f)
            if last_use:
                lastf = ops[-1]

                def g_():
                    lastf()
                    af_issue()
                ops[-1] = g_
            return ops

        mf = []
        for t in range(8):
            mf += qk_ops(t, 'qk', t, True)
        WT = V_WT
        wside = []
        if 'nocold' not in dbg:
            wside = [lambda: e(f'v_and_b32 {v(ZQ)}, 0xf0, {v(V_LANE16)}'),
                     lambda: e(f'v_lshlrev_b32 {v(ZQ)}, 3, {v(ZQ)}')]
        run(mf[:wat], wside, 1)
        drain_vq(True)
        if mega:
            e(f's_add_u32 {s(S_T2)}, {s(S_STEP)}, 5')
            e(f's_lshr_b32 {s(S_T2)}, {s(S_T2)}, 2')
            e(f's_min_u32 {s(S_T2)}, {s(S_T2)}, 16')
            kv_wait(f'{L}_kv', ZQ + 2, ZQ + 3)
        if 'nocold' not in dbg:
            e(f'buffer_load_dword {v(WT)}, {v(ZQ)}, {s(S_WS, 4)}, {s(S_WRM)} offen', tag='warm')
        run(mf[wat:28], [], 0)
        st['reserve'] = 8
        run(mf[28:], [], 0)
        SM = pool.must(8, 8)
        st['reserve'] = 0
        run(qk_ops(8, 'q', 8, False) + qk_ops(9, 'q', 9, False), [], 0)

        def fold(acc, dst):
            return [lambda: e(f'v_pk_add_f32 {v(acc, 2)}, {v(acc, 2)}, {v(acc + 2, 2)}'),
                    lambda: e(f'v_cvt_pk_bf16_f32 {v(dst)}, {v(acc)}, {v(acc + 1)}')]
        VACC = ACC
        QW = ZQ + 2
        QWA = SM + 7
        mf = qk_ops(8, 'k', 8, True) + qk_ops(9, 'k', 9, True)
        side = [lambda: e(f'v_and_b32 {v(QWA)}, 0xffff, {v(V_PK2)}')]
        side2 = fold(ACC, ZQ) + fold(ACC + 4, ZQ + 1) + [
            lambda: e(f'ds_write2st64_b32 {v(QWA)}, {v(ZQ)}, {v(ZQ + 1)} offset0:0 offset1:1', tag='qw')]
        side2 += [(lambda j=j: e(f'v_mov_b64 {v(VACC + j, 2)}, 0')) for j in range(0, 8, 2)]
        run(mf[:2], side, 1)
        run(mf[2:], side2, 4)
        stamp()

        def v_ops(t):
            k = 10 + t
            ops = []
            for tau in range(2):
                def f(tau=tau):
                    if tau == 0:
                        e.wait_lg(('af', k))
                    smf(VACC + 4 * tau, AF[k % naf], (('v', t), tau))
                    if tau == 1:
                        af_issue()
                ops.append(f)
            return ops
        vops = []
        for t in range(10):
            vops += v_ops(t)
        sfr = []
        for uu in range(4):
            sfr += [('x0', uu), ('x1', uu), ('m', uu), ('q', uu)]
        sbuf = {}
        spos = [0]

        def s_issue():
            if spos[0] >= len(sfr):
                return True
            b = pool.alloc(4)
            if b is None:
                return False
            kind, uu = sfr[spos[0]]
            spos[0] += 1
            sbuf[(kind, uu)] = b
            if kind in 'qm':
                base = 0 if kind == 'q' else 2048
                for m in range(2):
                    e(f'ds_read_b64_tr_b16 {v(b + 2 * m, 2)}, {v(V_QKR)} offset:{base + uu * 512 + m * 256}', tag=('si', uu))
            else:
                tau = int(kind[1])
                e(f'ds_read_b128 {v(b, 4)}, {v(V_LANE16)} offset:{L_KX + (tau * 4 + uu) * 1024}', tag=('si', uu))
            return True

        side = fold(ACC + 8, ZQ + 2) + fold(ACC + 12, ZQ + 3) + [
            lambda: e(f'ds_write2st64_b32 {v(QWA)}, {v(ZQ + 2)}, {v(ZQ + 3)} offset0:8 offset1:9', tag='kw')]
        run(vops[:2], side, 3)
        run(vops[2:nva], [], 0)
        drain_vq(True)
        e.wait_lg('kw')
        e('s_barrier')
        pool.free(ZQ, 4)
        pool.free(ACC + 8, 8)
        st['reserve'] = 99
        SACC = pool.must(12)
        for _ in range(nsb):
            s_issue()
        run(vops[nva:nv1], [], 0)
        stamp()
        for uu in range(4):
            while ('q', uu) not in sbuf:
                assert s_issue(), 'no S buffer'
            e.wait_lg(('si', uu))
            for ti, kind in enumerate(('x0', 'x1', 'm')):
                cin = '0' if uu == 0 else v(SACC + 4 * ti, 4)
                e(f'v_mfma_f32_16x16x32_bf16 {v(SACC + 4 * ti, 4)}, {v(sbuf[(kind, uu)], 4)}, {v(sbuf[("q", uu)], 4)}, {cin}')
                pool.free(sbuf[(kind, uu)], 4)
                if kind == 'm':
                    pool.free(sbuf[('q', uu)], 4)
                    s_issue()
                s_issue()
        stamp()
        VX = pool.must(8)
        e(f'buffer_load_dwordx4 {v(VX, 4)}, {v(V_LANE16)}, {s(S_WS, 4)}, {s(S_VXO)} offen {ldfl}', tag='vx')
        e(f'buffer_load_dwordx4 {v(VX + 4, 4)}, {v(V_LANE16)}, {s(S_WS, 4)}, {s(S_VXO)} offen offset:1024 {ldfl}', tag='vx')
        M = SM
        ZV = SM + 2
        P = pool.must(4)
        ONES = pool.must(4)
        PM = pool.must(4)
        C0 = SACC + 8
        cst = [(lambda j=j: e(f'v_mov_b32 {v(ONES + j)}, 0x3f803f80')) for j in range(4)]
        cst += [lambda: e(f'v_mov_b32 {v(PM + 1)}, 0'), lambda: e(f'v_mov_b32 {v(PM + 2)}, 0')]
        sm = []
        sm.append(lambda: e(f'v_max3_f32 {v(M)}, {v(SACC)}, {v(SACC + 1)}, {v(SACC + 2)}'))
        sm.append(lambda: e(f'v_max3_f32 {v(M + 1)}, {v(SACC + 3)}, {v(SACC + 4)}, {v(SACC + 5)}'))
        sm.append(lambda: e(f'v_cndmask_b32 {v(C0)}, {v(C0 + 2)}, {v(C0)}, {s(S_MASKLO, 2)}'))
        sm.append(lambda: e(f'v_cndmask_b32 {v(C0 + 1)}, {v(C0 + 3)}, {v(C0 + 1)}, {s(S_MASKLO, 2)}'))
        sm.append(lambda: e(f'v_max3_f32 {v(M)}, {v(M)}, {v(SACC + 6)}, {v(SACC + 7)}'))
        sm.append(lambda: e(f'v_max3_f32 {v(M + 1)}, {v(M + 1)}, {v(SACC + 8)}, {v(SACC + 9)}'))
        sm.append(lambda: e(f'v_max_f32 {v(M)}, {v(M)}, {v(M + 1)}'))
        for sw_ in ('v_permlane32_swap_b32', 'v_permlane16_swap_b32'):
            sm.append(lambda: e(f'v_mov_b32 {v(M + 1)}, {v(M)}'))
            sm.append(lambda sw_=sw_: e(f'{sw_} {v(M)}, {v(M + 1)}'))
            sm.append(lambda: e(f'v_max_f32 {v(M)}, {v(M)}, {v(M + 1)}'))
        sm.append(lambda: e(f'v_mul_f32 {v(M)}, {s(S_C1)}, {v(M)}'))
        for j in range(0, 10, 2):
            sm.append(lambda j=j: e(f'v_pk_fma_f32 {v(SACC + j, 2)}, {v(SACC + j, 2)}, {s(S_C1, 2)}, {v(M, 2)} op_sel_hi:[1,1,0] neg_lo:[0,0,1] neg_hi:[0,0,1]'))
        for j in range(10):
            sm.append(lambda j=j: e(f'v_exp_f32 {v(SACC + j)}, {v(SACC + j)}'))
        for j in range(4):
            sm.append(lambda j=j: e(f'v_cvt_pk_bf16_f32 {v(P + j)}, {v(SACC + 2 * j)}, {v(SACC + 2 * j + 1)}'))
        sm.append(lambda: e(f'v_cvt_pk_bf16_f32 {v(PM)}, {v(C0)}, {v(C0 + 1)}'))
        sm.append(lambda: e(f'v_cvt_pk_bf16_f32 {v(PM + 3)}, {v(C0)}, {v(C0 + 1)}'))
        rest_v = vops[nv1:]
        k0 = min(2, len(rest_v))
        KMT = pool.must(4)
        k1, k2 = km_items(KMT, SM + 4)
        w2 = []
        if 'nocold' not in dbg:
            w2 = [lambda: e(f'v_and_b32 {v(SM + 5)}, 0xf0, {v(V_LANE16)}'),
                  lambda: e(f'v_lshlrev_b32 {v(SM + 5)}, 3, {v(SM + 5)}'),
                  lambda: e(f's_add_u32 {s(S_T0)}, {s(S_WRM)}, {WS_VXT - WS_KX}'),
                  lambda: e(f'buffer_load_dword {v(WT)}, {v(SM + 5)}, {s(S_WS, 4)}, {s(S_T0)} offen', tag='warm')]
        run(rest_v[:k0], k1 + cst + w2, 7)
        nn = smr * (len(rest_v) - k0)
        run(rest_v[k0:], sm[:nn], smr)
        sm = sm[nn:]
        for b in AF:
            pool.free(b, 4)
        OA = pool.must(12)
        for f in sm[:5]:
            f()
        sm = sm[5:]
        for f in fold(VACC, ZV) + fold(VACC + 4, ZV + 1):
            f()
        if 'noout' not in dbg:
            e(f'buffer_store_dwordx2 {v(ZV, 2)}, {v(SM + 4)}, {s(S_WS, 4)}, {s(S_KMO)} offen offset:2048 {ostfl}', tag='out')
        for f in k2:
            f()
        e(f's_cmp_eq_u32 {s(S_STEP)}, {nsteps - 1}')
        e(f's_cbranch_scc1 {name}_fin')
        pool.free(VACC, 8)
        pool.free(KMT, 4)
        for f in sm:
            f()
        e.wait_vm('vx')
        e(f'v_mfma_f32_16x16x32_bf16 {v(OA + 8, 4)}, {v(ONES, 4)}, {v(P, 4)}, 0')
        e(f'v_mfma_f32_16x16x32_bf16 {v(OA, 4)}, {v(VX, 4)}, {v(P, 4)}, 0')
        e(f'v_mfma_f32_16x16x32_bf16 {v(OA + 4, 4)}, {v(VX + 4, 4)}, {v(P, 4)}, 0')
        pool.free(SACC, 12)
        pool.free(VX, 8)
        OACC = [pool.must(8) for _ in range(2)]
        for j in range(0, 8, 2):
            e(f'v_mov_b64 {v(OACC[0] + j, 2)}, 0')
        e(f'v_mfma_f32_16x16x16_bf16 {v(OA + 8, 4)}, {v(ONES, 2)}, {v(PM, 2)}, {v(OA + 8, 4)}')
        e(f'v_mfma_f32_16x16x16_bf16 {v(OA, 4)}, {v(ZV, 2)}, {v(PM, 2)}, {v(OA, 4)}')
        e(f'v_mfma_f32_16x16x16_bf16 {v(OA + 4, 4)}, {v(ZV, 2)}, {v(PM + 2, 2)}, {v(OA + 4, 4)}')
        for j in range(0, 8, 2):
            e(f'v_mov_b64 {v(OACC[1] + j, 2)}, 0')
        e(f'v_and_b32 {v(M + 1)}, 0xffff, {v(V_PK1)}')
        e(f'v_rcp_f32 {v(M)}, {v(OA + 8)}')
        for j in range(0, 8, 2):
            e(f'v_pk_mul_f32 {v(OA + j, 2)}, {v(OA + j, 2)}, {v(M, 2)} op_sel_hi:[1,0]')
        for j in range(4):
            e(f'v_cvt_pk_bf16_f32 {v(P + j)}, {v(OA + 2 * j)}, {v(OA + 2 * j + 1)}')
        e(f'ds_write_b128 {v(M + 1)}, {v(P, 4)}', tag='ow')
        pool.free(ONES, 4)
        pool.free(PM, 4)
        pool.free(OA, 12)
        NOA = 2
        OF = pool.must(8)
        ZO = [SM + 2, SM + 6]
        PBA = SM + 4
        e(f'v_lshrrev_b32 {v(M)}, 16, {v(V_PK1)}')
        e(f'v_lshrrev_b32 {v(PBA)}, 16, {v(V_PK2)}')
        st['reserve'] = 0
        st['str_limit'] = 99
        pump_str()
        drain_vq(True)
        pump_lds(60)
        e.wait_lg('ow')
        e('s_barrier')
        pool.free(P, 4)
        e(f'ds_read_b128 {v(OF, 4)}, {v(M)}', tag='of0')
        e(f'ds_read_b128 {v(OF + 4, 4)}, {v(M)} offset:1024', tag='of1')
        pump_lds(60)
        for f in kx_items(1, M + 1):
            f()
        stamp()

        def finish(p):
            ac = OACC[p % NOA]
            z = ZO[p & 1]
            it = fold(ac, z) + fold(ac + 4, z + 1) + [
                lambda: e(f'buffer_store_dwordx2 {v(z, 2)}, {v(PBA)}, {s(S_WS, 4)}, {s(S_PBST + p)} offen {sc}', tag='pst')]
            if p + NOA < 5:
                it += [(lambda j=j: e(f'v_mov_b64 {v(ac + j, 2)}, 0')) for j in range(0, 8, 2)]
            return it

        pre_todo = list(zip(pre_slots, PRE))

        def try_pre(maxn):
            n = 0
            for sl, b in list(pre_todo):
                if n >= maxn:
                    break
                if all((b + i) in pool.free_ for i in range(8)):
                    claim(b, 8)
                    vq.extend(str_items(sl, b, 'pre'))
                    pre_todo.remove((sl, b))
                    n += 1
        sc_items = []
        if 'nocold' not in dbg:
            sc_items += [f's_add_u32 {s(S_VXO)}, {s(S_VXO)}, {32 * 8192}', f's_add_u32 {s(S_KXW)}, {s(S_KXW)}, {32 * 8192}',
                         f's_add_u32 {s(S_WRM)}, {s(S_WRM)}, {32 * 8192}']
        sc_items += [f's_add_u32 {s(S_KMO)}, {s(S_KMO)}, {32 * 4096}',
                     f's_add_u32 {s(S_STEP)}, {s(S_STEP)}, 1',
                     f's_add_u32 {s(S_MSL)}, {s(S_MSL)}, {MB_STRIDE}', f's_and_b32 {s(S_MSL)}, {s(S_MSL)}, {3 * MB_STRIDE}',
                     f's_add_u32 {s(S_MBP)}, {s(S_MBB)}, {s(S_MSL)}', f's_add_u32 {s(S_MBP + 1)}, {s(S_MBP)}, 4096']
        sc_items = [(lambda x=x: e(x)) for x in sc_items]
        try_pre(npre1)
        for p in range(5):
            ac = OACC[p % NOA]
            mf = []
            for t in range(2):
                for tau in range(2):
                    def f(t=t, tau=tau):
                        if p == 0 and tau == 0:
                            e.wait_lg(f'of{t}')
                        smf(ac + 4 * tau, OF + 4 * t, (('o', t, p), tau))
                    mf.append(f)
            side = finish(p - 1) if p >= 1 else sc_items
            run(mf[:2], [], 0)
            run(mf[2:], side, 3 if p else 6)
        for f in finish(4):
            f()
        stamp()
        for b in OACC:
            pool.free(b, 8)
        pool.free(OF, 8)
        pool.free(SM, 8)
        drain_vq(True)
        try_pre(9)
        late = list(vq)
        vq.clear()
        assert not str_queue and not lds_pending and not inflight_str and not pre_todo
        claim(ACC, 16)
        for p in range(5):
            e(f's_xor_b32 {s(S_PBST + p)}, {s(S_PBST + p)}, {PB_STRIDE}')
        e(f's_cmp_ge_u32 {s(S_UNIT)}, {0 if "nohop" in dbg else 80}')
        e(f's_cbranch_scc1 {L}_nored')
        e.cond_begin()
        RA = pool.must(8)
        RB2 = pool.must(4)
        TP = pool.must(4)
        SEL = ACC + 12
        rb = [ACC, ACC + 4, ACC + 8, RB2]
        e(f'v_and_b32 {v(RA)}, 16, {v(V_LANE16)}')
        e(f'v_lshlrev_b32 {v(RA)}, {v(RA)}, {s(S_KMP)}')
        e(f'v_bfe_u32 {v(RA + 1)}, {v(V_LANE16)}, 5, 2')
        for rr in range(4):
            e(f'v_cmp_eq_u32 vcc, {rr}, {v(RA + 1)}')
            e(f'v_cndmask_b32 {v(SEL + rr)}, 0, {v(RA)}, vcc')
        e(f'v_mov_b32 {v(TP)}, -1')
        e(f'v_mov_b32 {v(TP + 1)}, -1')
        e(f'v_lshlrev_b32 {v(TP + 2)}, 2, {v(V_LANE16)}')
        e(f'v_lshrrev_b32 {v(TP + 3)}, 25, {v(V_IDX)}')
        e(f'v_and_b32 {v(TP + 3)}, 0x78, {v(TP + 3)}')
        if ackK:
            e('s_waitcnt vmcnt(0)')
        stamp()

        def kloads():
            for i in range(4):
                e(f'buffer_load_dwordx4 {v(rb[i], 4)}, {v(V_LANE16)}, {s(S_WS, 4)}, {s(S_PBLD)} offen offset:{1024 * i} sc1')

        def kcons(behind):
            for i in range(4):
                e(f's_waitcnt vmcnt({3 - i + behind})')
                cin = '0' if i == 0 else v(RA, 4)
                e(f'v_mfma_f32_16x16x32_bf16 {v(RA, 4)}, {v(SEL, 4)}, {v(rb[i], 4)}, {cin}')
                if i == 2:
                    e(f'v_max3_u32 {v(RA + 4)}, {v(rb[0])}, {v(rb[1])}, {v(rb[2])}')
            e(f'v_max_u32 {v(RA + 4)}, {v(RA + 4)}, {v(rb[3])}')
            e(f'v_cmp_eq_u32 vcc, -1, {v(RA + 4)}')
        kloads()
        for f in late:
            f()
        kcons(len(late))
        e(f's_cbranch_vccz {L}_okK' if 'noretry' not in dbg else f's_branch {L}_okK')
        e.label(f'{L}_pollK')
        e.hist = []
        if stamps:
            e('s_add_u32 s27, s27, 1')
        kloads()
        kcons(0)
        e(f's_cbranch_vccnz {L}_pollK')
        e.label(f'{L}_okK')
        for j in range(4):
            e(f'v_add_f32_dpp {v(RA + 4 + j)}, {v(RA + j)}, {v(RA + j)} row_ror:8 row_mask:0xf bank_mask:0xf')
        e(f'v_cvt_pk_bf16_f32 {v(RA)}, {v(RA + 4)}, {v(RA + 5)}')
        e(f'v_cvt_pk_bf16_f32 {v(RA + 1)}, {v(RA + 6)}, {v(RA + 7)}')
        e(f'buffer_store_dwordx2 {v(RA, 2)}, {v(TP + 3)}, {s(S_WS, 4)}, {s(S_MBN)} offen {sc}', tag='mst')
        stamp()
        e(f's_cmp_lt_u32 {s(S_W)}, 2')
        e(f's_cbranch_scc1 {L}_red_done')
        e(f'buffer_store_dwordx2 {v(TP, 2)}, {v(TP + 3)}, {s(S_WS, 4)}, {s(S_MBC)} offen {sc}', tag='rst')
        e(f'buffer_store_dword {v(TP)}, {v(TP + 2)}, {s(S_WS, 4)}, {s(S_PBLD)} offen {sc}', tag='rst')
        pool.free(RA, 8)
        pool.free(RB2, 4)
        pool.free(TP, 4)
        e.cond_end()
        e(f's_branch {L}_red_done')
        e.label(f'{L}_nored')
        for f in late:
            f()
        e.label(f'{L}_red_done')
        e.hist = []
        e(f's_mov_b32 {s(S_RSP)}, {s(S_PBLD)}')
        e(f's_mov_b32 {s(S_MRP)}, {s(S_MBC)}')
        e(f's_xor_b32 {s(S_PBLD)}, {s(S_PBLD)}, {PB_STRIDE}')
        e(f's_mov_b32 {s(S_MBC)}, {s(S_MBN)}')
        e(f's_add_u32 {s(S_T0)}, {s(S_MSL)}, {MB_STRIDE}')
        e(f's_and_b32 {s(S_T0)}, {s(S_T0)}, {3 * MB_STRIDE}')
        e(f's_add_u32 {s(S_MBN)}, {s(S_MBL)}, {s(S_T0)}')
        if stamps:
            stamp()
            e('s_waitcnt lgkmcnt(0)')
            n = stamp_i[0]
            nst[0] = n
            assert n <= 10
            e(f's_sub_u32 {s(S_T0)}, {s(S_STAMP)}, s100')
            e(f's_add_u32 s17, s17, {s(S_T0)}')
            for i in range(n - 1):
                e(f's_sub_u32 {s(S_T0)}, {s(S_STAMP + 2 * i + 2)}, {s(S_STAMP + 2 * i)}')
                e(f's_add_u32 {s(18 + i)}, {s(18 + i)}, {s(S_T0)}')
            e(f's_mov_b32 s100, {s(S_STAMP + 2 * (n - 1))}')

    body(0, '', f'{name}_fast')
    e(f's_branch {name}_fast_0')
    if slow:
        body(0, 'sc1', f'{name}_slow')
        e(f's_branch {name}_slow_0')
    e.label(f'{name}_fin')
    e.hist = []
    e.nop(8)
    e('s_waitcnt vmcnt(0) lgkmcnt(0)')
    if stamps:
        e('v_mov_b32 v16, 0')
        for i in range(11):
            e(f'v_writelane_b32 v16, {s(17 + i)}, {i}')
        e(f'v_lshrrev_b32 v17, 2, {v(V_LANE16)}')
        e(f's_lshl_b32 {s(S_T0)}, {s(S_H)}, 2')
        e(f's_add_u32 {s(S_T0)}, {s(S_T0)}, {s(S_W)}')
        e(f's_lshl_b32 {s(S_T0)}, {s(S_T0)}, 8')
        e(f's_add_u32 {s(S_T0)}, {s(S_T0)}, 0x0F000000')
        e(f'buffer_store_dword v16, v17, {s(S_WS, 4)}, {s(S_T0)} offen')
    if mega:
        e('s_barrier')
        e(f's_cmp_lg_u32 {s(S_W)}, 3')
        e(f's_cbranch_scc1 {name}_exit')
        e(f's_mov_b32 {s(S_T2)}, 15')
        signal_block(name, NPERS)
    if 'rt' in dbg:
        e('s_memrealtime s[96:97]')
        e('s_waitcnt lgkmcnt(0)')
        e('v_mov_b32 v16, s92')
        e('v_mov_b32 v17, s94')
        e('v_mov_b32 v18, s96')
        e('v_mov_b32 v19, 0')
        e(f's_lshl_b32 {s(S_T0)}, {s(S_H)}, 6')
        e(f's_add_u32 {s(S_T0)}, {s(S_T0)}, 0x0F800000')
        e(f'buffer_store_dwordx3 v[16:18], v19, {s(S_WS, 4)}, {s(S_T0)} offen')
    if 'tot' in dbg:
        e('s_memtime s[98:99]')
        e('s_memrealtime s[100:101]')
        e('s_waitcnt lgkmcnt(0)')
        e('s_sub_u32 s98, s98, s94')
        e('s_sub_u32 s100, s100, s96')
        e('v_mov_b32 v16, s98')
        e('v_mov_b32 v17, s100')
        e('v_mov_b32 v18, 0')
        e(f's_lshl_b32 {s(S_T0)}, {s(S_H)}, 6')
        e(f's_add_u32 {s(S_T0)}, {s(S_T0)}, 0x0F800000')
        e(f'buffer_store_dwordx2 v[16:17], v18, {s(S_WS, 4)}, {s(S_T0)} offen')
    e.label(f'{name}_exit')
    e('s_endpgm')
    print(f'; chain2: n_reg={n_reg} n_lds={n_lds} n_str={n_str} pool peak={pool.peak} of {pool_end - NPERS}')


if __name__ == '__main__':
    import argparse
    ap = argparse.ArgumentParser()
    ap.add_argument('--out', default='chain_test.s')
    ap.add_argument('--stamps', action='store_true')
    ap.add_argument('--kw', default='')
    args = ap.parse_args()
    em = Em()
    kw = eval('dict(' + args.kw + ')')
    gen_chain(em, stamps=args.stamps, **kw)
    hdr = '; @launch kernel=chain_kernel grid=(256,1,1) block=(256,1,1) lds=163840\n'
    hdr += '.amdgcn_target "amdgcn-amd-amdhsa--gfx950"\n.text\n.globl chain_kernel\n'
    open(args.out, 'w').write(hdr + em.text() + kd('chain_kernel', 512, 256))
```

```python
from emit import *
from layout import *
from gen_chain import f32bits, kd
from gen_gemm import Gemm
import gen_all
from gen_all import start, load_srds, end, lane_wave, silu_inplace, wave_sum, rnd2, LOG2E, KA, SIZES
import gen_chain6
from gen_chain6 import far_jump

LOG = False
SLEEP = 8
SLEEPN = 1
DSLEEP = 24
WS_LOG = 0x0F400000
POOLS = [('wk_att', 32), ('wk_wo', 80), ('wk_up', 54), ('wk_dn', 30), ('wk_ln2', 16), ('wk_fin', 8)]
NPOOL = sum(c for _, c in POOLS)
NMODA, NLN, NMODB = 40, 128, 80
NPRE = NMODA + NLN + NMODB
NTASK = NPRE + 768
D_TASK, D_MOD, D_MODB = 64, 128, 140
S_RANK, S_PB = 60, 30
SW = 29
S_W1, S_W3, S_W2, S_X, S_OUT, S_SEL = 64, 68, 72, 76, 80, 84
VL = 1
_bj = [0]
KNAME = ['']


def back_jump(e, label, sp=44):
    _bj[0] += 1
    here = f'Lbj{_bj[0]}'
    e(f's_getpc_b64 {s(sp, 2)}')
    e.label(here)
    e.raw(f'    s_add_u32 {s(sp)}, {s(sp)}, {label}-{here}')
    e.raw(f'    s_addc_u32 {s(sp + 1)}, {s(sp + 1)}, -1')
    e(f's_setpc_b64 {s(sp, 2)}')


def reset(e):
    e.hist = []
    e.vm = []
    e.lg = []


def dep_wait(e, lab, deps, sb):
    e(f's_cmp_lg_u32 {s(SW)}, 0')
    e(f's_cbranch_scc1 {lab}_dw')
    e(f's_lshl_b32 s38, {s(sb)}, 7')
    e('v_mov_b32 v2, 0')
    for i, (c, tgt) in enumerate(deps):
        e(f's_add_u32 s39, s38, {WS_CTR + c * 128}')
        e.label(f'{lab}_sp{i}')
        e('buffer_load_dword v3, v2, s[4:7], s39 offen sc1')
        e('s_waitcnt vmcnt(0)')
        e('v_readfirstlane_b32 s37, v3')
        e(f's_cmp_ge_u32 s37, {tgt}')
        e(f's_cbranch_scc1 {lab}_ok{i}')
        for _ in range(SLEEPN):
            e(f's_sleep {SLEEP}')
        e(f's_branch {lab}_sp{i}')
        e.label(f'{lab}_ok{i}')
    e.label(f'{lab}_dw')
    e('s_barrier')
    if LOG:
        e('s_memrealtime s[100:101]')
        e('s_waitcnt lgkmcnt(0)')
        e('s_mov_b32 s63, s100')
    reset(e)


def dbg_wait(e, lab, off_sgpr_or_int, tgt):
    e(f's_cmp_lg_u32 {s(SW)}, 0')
    e(f's_cbranch_scc1 {lab}_dw')
    e(f'v_mov_b32 v2, {off_sgpr_or_int}')
    e.label(f'{lab}_sp')
    e('buffer_load_dword v3, v2, s[8:11], 0 offen sc1')
    e('s_waitcnt vmcnt(0)')
    e('v_readfirstlane_b32 s37, v3')
    e(f's_cmp_ge_u32 s37, {tgt}')
    e(f's_cbranch_scc1 {lab}_dw')
    e(f's_sleep {DSLEEP}')
    e(f's_branch {lab}_sp')
    e.label(f'{lab}_dw')
    e('s_barrier')
    if LOG:
        e('s_memrealtime s[100:101]')
        e('s_waitcnt lgkmcnt(0)')
        e('s_mov_b32 s63, s100')
    reset(e)


def signal(e, lab, c, sb, loop, dbg_off=None):
    e('s_waitcnt vmcnt(0) lgkmcnt(0)')
    e('s_barrier')
    if LOG:
        e('s_memrealtime s[100:101]')
        e('s_waitcnt lgkmcnt(0)')
        e('v_mov_b32 v4, s63')
        e('v_mov_b32 v5, s100')
        e('v_mov_b32 v6, s61')
        e('v_mov_b32 v7, s28')
        e('v_mov_b32 v2, 0')
        e('s_lshl_b32 s38, s62, 4')
        e(f's_add_u32 s38, s38, {WS_LOG}')
        e('buffer_store_dwordx4 v[4:7], v2, s[4:7], s38 offen')
    if dbg_off is not None:
        e(f's_cmp_lg_u32 {s(SW)}, 0')
        e(f's_cbranch_scc1 {lab}_sg')
        e(f'v_mov_b32 v2, {dbg_off}')
        e('v_mov_b32 v3, 1')
        e('s_mov_b64 exec, 1')
        e('buffer_atomic_add v3, v2, s[8:11], 0 offen')
        e('s_mov_b64 exec, -1')
        e.label(f'{lab}_sg')
    elif c is not None:
        e(f's_cmp_lg_u32 {s(SW)}, 0')
        e(f's_cbranch_scc1 {lab}_sg')
        if isinstance(c, int):
            e(f's_lshl_b32 s38, {s(sb)}, 7')
            e(f's_add_u32 s38, s38, {WS_CTR + c * 128}')
        else:
            e(f's_add_u32 s38, {s(sb)}, {c}')
            e('s_lshl_b32 s38, s38, 7')
            e(f's_add_u32 s38, s38, {WS_CTR}')
        e('v_mov_b32 v2, 0')
        e('v_mov_b32 v3, 1')
        e('s_mov_b64 exec, 1')
        e('buffer_atomic_add v3, v2, s[4:7], s38 offen')
        e('s_mov_b64 exec, -1')
        e.label(f'{lab}_sg')
    back_jump(e, loop)


def mid(e):
    if LOG:
        e('s_memrealtime s[100:101]')
        e('s_waitcnt lgkmcnt(0)')
        e('s_mov_b32 s61, s100')


def h_qkv(e, loop):
    name = 'wk_qkv'
    e.label(name)
    reset(e)
    e('s_cmp_eq_u32 s23, 1')
    e(f's_cselect_b32 {s(S_SEL)}, s16, s12')
    e(f's_cselect_b32 {s(S_SEL + 1)}, s17, s13')
    e('s_cmp_eq_u32 s23, 2')
    e(f's_cselect_b32 {s(S_SEL)}, s20, {s(S_SEL)}')
    e(f's_cselect_b32 {s(S_SEL + 1)}, s21, {s(S_SEL + 1)}') if False else None
    return


def gen_workers(e, loop='wk_loop'):
    B, P1, P2 = 52, 53, 54
    e.label('wk_entry')
    e('s_mov_b32 s49, 2')
    e('s_branch wk_entry3')
    e.label('wk_entry2')
    e('s_mov_b32 s49, 0')
    e.label('wk_entry3')
    reset(e)
    e(f'v_mov_b32 {v(VL)}, v16')
    load_srds(e, [('w1', S_W1), ('w3', S_W3), ('w2', S_W2), ('x', S_X), ('out', S_OUT)], tmp=88)
    e(f's_mov_b32 {s(S_SEL + 2)}, 5242880')
    e(f's_mov_b32 {s(S_SEL + 3)}, 0x20000')
    e(f's_mov_b32 {s(S_SEL)}, s12')
    e(f's_mov_b32 {s(S_SEL + 1)}, s13')
    e('s_mov_b32 s48, -1')
    e('s_mov_b32 s51, 0')

    def ticket(ctr, dst, lab):
        e(f's_cmp_lg_u32 {s(SW)}, 0')
        e(f's_cbranch_scc1 {lab}')
        e('v_mov_b32 v2, 0')
        e('v_mov_b32 v3, 1')
        e('s_mov_b64 exec, 1')
        e(f'buffer_atomic_add v3, v2, s[8:11], 0 offen offset:{D_TASK} sc0')
        e('s_waitcnt vmcnt(0)')
        e('ds_write_b32 v2, v3')
        e('s_mov_b64 exec, -1')
        e('s_waitcnt lgkmcnt(0)')
        e.label(lab)
        e('s_barrier')
        e('v_mov_b32 v2, 0')
        e('ds_read_b32 v3, v2')
        e('s_waitcnt lgkmcnt(0)')
        e(f'v_readfirstlane_b32 {s(dst)}, v3')
        e('s_barrier')
    e.label(loop)
    reset(e)
    e('s_cmp_lg_u32 s48, -1')
    e('s_cbranch_scc1 wk_pool')
    e('s_cmp_eq_u32 s49, 0')
    e('s_cbranch_scc1 wk_norec')
    e('s_sub_u32 s49, s49, 1')
    e('s_cmp_lg_u32 s49, 0')
    e('s_cbranch_scc1 wk_norec')
    e(f's_cmp_lg_u32 {s(SW)}, 0')
    e('s_cbranch_scc1 wk_rec1')
    e('v_mov_b32 v2, 0')
    e('buffer_load_dword v3, v2, s[8:11], 0 offen sc1')
    e('s_waitcnt vmcnt(0)')
    e('ds_write_b32 v2, v3')
    e('s_waitcnt lgkmcnt(0)')
    e.label('wk_rec1')
    e('s_barrier')
    e('v_mov_b32 v2, 0')
    e('ds_read_b32 v3, v2')
    e('s_waitcnt lgkmcnt(0)')
    e('v_readfirstlane_b32 s50, v3')
    e('s_barrier')
    e('s_cmp_ge_u32 s50, 32')
    e('s_cbranch_scc1 wk_norec')
    e(f'v_mov_b32 v16, {v(VL)}')
    back_jump(e, KNAME[0] + '_take')
    e.label('wk_norec')
    ticket(C_TASK, 50, 'wk_dq')
    e(f's_cmp_lt_u32 s50, {NTASK}')
    e('s_cbranch_scc1 wk_have')
    e(f's_sub_u32 {s(S_RANK)}, s50, {NTASK}')
    e('s_mov_b32 s48, 0')
    dbg_wait(e, 'wk_mb', D_MODB, NMODB)
    e('s_branch wk_pool')
    e.label('wk_have')
    if LOG:
        e('s_add_u32 s62, s50, 4400')
        e('s_memrealtime s[100:101]')
        e('s_waitcnt lgkmcnt(0)')
        e('s_mov_b32 s63, s100')
        e('s_mov_b32 s28, s100')
        e('s_mov_b32 s61, s100')
    e(f's_cmp_ge_u32 s50, {NMODA}')
    e('s_cbranch_scc1 wk_nm')
    e(f's_mov_b32 {s(P1)}, s50')
    far_jump(e, 'wk_mod', 44)
    e.label('wk_nm')
    e(f's_cmp_ge_u32 s50, {NMODA + NLN}')
    e('s_cbranch_scc1 wk_nl0')
    e(f's_sub_u32 {s(P1)}, s50, {NMODA}')
    far_jump(e, 'wk_ln1', 44)
    e.label('wk_nl0')
    e(f's_cmp_ge_u32 s50, {NPRE}')
    e('s_cbranch_scc1 wk_nl')
    e(f's_sub_u32 {s(P1)}, s50, {NLN}')
    far_jump(e, 'wk_mod', 44)
    e.label('wk_nl')
    e(f's_sub_u32 s50, s50, {NPRE}')
    if LOG:
        e('s_mov_b32 s62, s50')
    e('s_cmp_ge_u32 s50, 512')
    e('s_cbranch_scc1 wk_isq')
    e(f's_lshr_b32 {s(B)}, s50, 5')
    e(f's_and_b32 {s(P1)}, s50, 15')
    e(f's_bfe_u32 {s(P2)}, s50, 0x10004')
    e(f's_add_u32 {s(P2)}, {s(P2)}, 1')
    far_jump(e, 'wk_qkv', 44)
    e.label('wk_isq')
    e('s_sub_u32 s50, s50, 512')
    e(f's_lshr_b32 {s(B)}, s50, 4')
    e(f's_and_b32 {s(P1)}, s50, 15')
    e(f's_mov_b32 {s(P2)}, 0')
    far_jump(e, 'wk_qkv', 44)
    e.label('wk_pool')
    e('s_cmp_lt_u32 s48, 16')
    e('s_cbranch_scc1 wk_pool2')
    e('s_endpgm')
    e.label('wk_pool2')
    e(f's_mov_b32 {s(B)}, s48')
    e('s_add_u32 s48, s48, 1')
    if LOG:
        e(f's_mul_i32 s62, {s(B)}, 224')
        e(f's_add_u32 s62, s62, {s(S_RANK)}')
        e('s_add_u32 s62, s62, 768')
        e('s_memrealtime s[100:101]')
        e('s_waitcnt lgkmcnt(0)')
        e('s_mov_b32 s63, s100')
        e('s_mov_b32 s28, s100')
        e('s_mov_b32 s61, s100')
    lo = 0
    for lab, cnt in POOLS:
        hi = lo + cnt
        e(f's_cmp_ge_u32 {s(S_RANK)}, {hi}')
        e(f's_cbranch_scc1 wk_n{hi}')
        e(f's_sub_u32 {s(P1)}, {s(S_RANK)}, {lo}')
        far_jump(e, lab, 44)
        e.label(f'wk_n{hi}')
        lo = hi
    e('s_endpgm')

    name = 'wk_qkv'
    e.label(name)
    reset(e)
    e(f's_cmp_eq_u32 {s(P2)}, 1')
    e(f's_cselect_b32 {s(S_SEL)}, s16, s12')
    e(f's_cselect_b32 {s(S_SEL + 1)}, s17, s13')
    e(f's_cmp_eq_u32 {s(P2)}, 2')
    e(f's_cselect_b32 {s(S_SEL)}, s20, {s(S_SEL)}')
    e(f's_cselect_b32 {s(S_SEL + 1)}, s21, {s(S_SEL + 1)}')
    G = Gemm(e, 128, [(S_SEL, 8192, 128), (S_SEL, 8192, 128)], 2, 2, 10, 1280, vbase=8, sbase=40, xfl='sc1')
    G.setup(VL, SW, 2)
    e(f's_mul_i32 s55, {s(B)}, {128 * 1280}')
    e(f's_add_u32 s55, s55, {WS_H1}')
    e(f's_lshl_b32 s56, {s(P1)}, 9')
    e('s_add_u32 s57, s56, 256')
    G.init_offsets(55, [56, 57])
    G.pre_w()
    e('s_cmp_lg_u32 s51, 0')
    e(f's_cbranch_scc1 {name}_ini')
    dbg_wait(e, name + '_a', D_MOD, NMODA)
    e('s_mov_b32 s51, 1')
    e.label(f'{name}_ini')
    dep_wait(e, name, [(C_LN1, 8)], B)
    e(f's_lshr_b32 s31, {s(SW)}, 1')
    e(f's_and_b32 s32, {s(SW)}, 1')
    e(f's_lshl_b32 s33, {s(B)}, 2')
    e('s_lshl_b32 s31, s31, 1')
    e('s_add_u32 s33, s33, s31')
    e('s_lshl_b32 s33, s33, 5')
    e(f's_lshl_b32 s34, {s(P1)}, 1')
    e('s_add_u32 s33, s33, s34')
    e('s_lshl_b32 s33, s33, 13')
    e(f's_cmp_lg_u32 {s(P2)}, 2')
    e(f's_cbranch_scc1 {name}_t0')
    far_jump(e, f'{name}_v', 98)
    e.label(f'{name}_t0')
    G.mainloop(4, ['T'] * G.NT, name + '_t', w_done=True)
    mid(e)
    e(f'v_and_b32 v2, 15, {v(VL)}')
    e(f'v_lshrrev_b32 v3, 4, {v(VL)}')
    e('v_lshlrev_b32 v3, 4, v3')
    e('v_lshl_add_u32 v2, v2, 8, v3')
    e('s_lshl_b32 s32, s32, 7')
    e('s_add_u32 s33, s33, s32')
    e(f's_mov_b32 s34, {WS_QX}')
    e(f's_mov_b32 s36, {C_Q}')
    e(f's_cmp_eq_u32 {s(P2)}, 1')
    e(f's_cselect_b32 s34, {WS_KX}, s34')
    e(f's_cselect_b32 s36, {C_KV}, s36')
    e('s_add_u32 s33, s33, s34')
    T = G.v_fx
    k = 0
    for mi in range(4):
        for p in range(2):
            for ub in range(2):
                t = T + 8 * (k % 4)
                k += 1
                for hf in range(2):
                    ac = G.accr(mi, p * 4 + ub * 2 + hf) - 256
                    for j in range(4):
                        e(f'v_accvgpr_read_b32 {v(t + 4 + j)}, {a(ac + j)}')
                    e(f'v_cvt_pk_bf16_f32 {v(t + 2 * hf)}, {v(t + 4)}, {v(t + 5)}')
                    e(f'v_cvt_pk_bf16_f32 {v(t + 2 * hf + 1)}, {v(t + 6)}, {v(t + 7)}')
                off = (mi >> 1) * 32 * 8192 + p * 8192 + (mi & 1) * 4096 + ub * 64
                e(f's_add_u32 s35, s33, {off}')
                e(f'buffer_store_dwordx4 {v(t, 4)}, v2, s[4:7], s35 offen sc1')
    signal(e, name + '_t', 's36', B, loop)
    e.label(f'{name}_v')
    reset(e)
    G.mainloop(4, ['N'] * G.NT, name + '_n', w_done=True)
    mid(e)
    e(f'v_lshlrev_b32 v2, 4, {v(VL)}')
    e('s_lshl_b32 s32, s32, 12')
    e('s_add_u32 s33, s33, s32')
    e(f's_add_u32 s33, s33, {WS_VXT}')
    k = 0
    for sg in range(2):
        for p in range(2):
            for a_ in range(4):
                t = T + 8 * (k % 4)
                k += 1
                for hf in range(2):
                    ac = G.accr(sg * 2 + hf, p * 4 + a_) - 256
                    for j in range(4):
                        e(f'v_accvgpr_read_b32 {v(t + 4 + j)}, {a(ac + j)}')
                    e(f'v_cvt_pk_bf16_f32 {v(t + 2 * hf)}, {v(t + 4)}, {v(t + 5)}')
                    e(f'v_cvt_pk_bf16_f32 {v(t + 2 * hf + 1)}, {v(t + 6)}, {v(t + 7)}')
                off = sg * 32 * 8192 + p * 8192 + a_ * 1024
                e(f's_add_u32 s35, s33, {off}')
                e(f'buffer_store_dwordx4 {v(t, 4)}, v2, s[4:7], s35 offen sc1')
    signal(e, name + '_n', C_KV, B, loop)

    name = 'wk_att'
    e.label(name)
    reset(e)
    dep_wait(e, name, [(C_KV, 32), (C_Q, 16)], B)
    e(f's_lshl_b32 s30, {s(B)}, 2')
    e(f's_add_u32 s30, s30, {s(SW)}')
    e('s_lshl_b32 s31, s30, 5')
    e(f's_add_u32 s31, s31, {s(P1)}')
    e(f'v_and_b32 v2, 15, {v(VL)}')
    e(f'v_lshrrev_b32 v3, 4, {v(VL)}')
    e('v_lshlrev_b32 v4, 4, v3')
    e('v_lshl_add_u32 v4, v2, 8, v4')
    e(f'v_lshlrev_b32 v5, 4, {v(VL)}')
    e('s_lshl_b32 s32, s31, 13')
    Q, KX_, KM_, VX_, VM_ = 16, 48, 80, 96, 128
    e(f's_add_u32 s33, s32, {WS_QX}')
    e('s_add_u32 s34, s33, 4096')
    e(f's_add_u32 s35, s32, {WS_KX}')
    e('s_add_u32 s36, s35, 4096')
    e('s_lshl_b32 s37, s31, 12')
    e(f's_add_u32 s37, s37, {WS_KM}')
    e(f'v_lshlrev_b32 v6, 3, {v(VL)}')
    e(f'v_bfe_u32 v10, {v(VL)}, 2, 2')
    e('v_lshl_add_u32 v10, v3, 2, v10')
    e(f'v_and_b32 v11, 1, {v(VL)}')
    e('v_lshlrev_b32 v11, 3, v11')
    e('v_lshl_add_u32 v10, v10, 4, v11')
    e(f's_lshl_b32 s38, {s(SW)}, 11')
    e('v_add_u32 v10, s38, v10')
    for uu in range(4):
        e(f'buffer_load_dwordx4 {v(Q + 4 * uu, 4)}, v4, s[4:7], s33 offen offset:{64 * uu} sc1', tag='a')
        e(f'buffer_load_dwordx4 {v(KX_ + 4 * uu, 4)}, v4, s[4:7], s35 offen offset:{64 * uu} sc1', tag='a')
    for uu in range(4):
        e(f'buffer_load_dwordx4 {v(Q + 16 + 4 * uu, 4)}, v4, s[4:7], s34 offen offset:{64 * uu} sc1', tag='b')
        e(f'buffer_load_dwordx4 {v(KX_ + 16 + 4 * uu, 4)}, v4, s[4:7], s36 offen offset:{64 * uu} sc1', tag='b')
    e(f's_add_u32 s39, s32, {WS_VXT}')
    e('s_add_u32 s40, s39, 4096')
    for et in range(8):
        e(f'buffer_load_dwordx4 {v(VX_ + 4 * et, 4)}, v5, s[4:7], {"s39" if et < 4 else "s40"} offen offset:{1024 * (et & 3)} sc1', tag='v')
    e('s_mov_b32 s43, s37')
    e('s_waitcnt vmcnt(0)')
    e('v_mov_b32 v12, v2')
    e('v_mov_b32 v13, v3')
    dep_wait(e, name + '2', [(C_CH, 32)], B)
    e('v_mov_b32 v2, v12')
    e('v_mov_b32 v3, v13')
    e('s_mov_b32 s37, s43')
    e(f's_lshl_b32 m0, {s(SW)}, 11')
    e('buffer_load_dwordx4 v5, s[4:7], s37 offen sc1 lds', tag='k')
    e('buffer_load_dwordx4 v5, s[4:7], s37 offen offset:1024 sc1 lds', tag='k')
    for w in range(4):
        e(f'buffer_load_dwordx2 {v(VM_ + 2 * w, 2)}, v6, s[4:7], s37 offen offset:{2048 + 512 * w} sc1', tag='v')
    e.wait_vm('k')
    for uu in range(4):
        for m_ in range(2):
            e(f'ds_read_b64_tr_b16 {v(KM_ + 4 * uu + 2 * m_, 2)}, v10 offset:{uu * 512 + m_ * 256}')
    MK = 88
    e('v_lshlrev_b32 v7, 2, v3')
    for j in range(4):
        e(f'v_add_u32 v8, {j}, v7')
        e(f'v_cmp_le_u32 {s(MK + 2 * j, 2)}, v8, v2')
    e('s_mov_b32 s96, -1')
    e('s_mov_b32 s97, 0')
    cc = f32bits((128 ** -0.5) * LOG2E)
    e(f's_mov_b32 s98, {cc:#x}')
    e(f's_mov_b32 s99, {cc:#x}')
    ONES, NEG = 136, 140
    for j in range(4):
        e(f'v_mov_b32 {v(ONES + j)}, 0x3f803f80')
    e(f'v_mov_b32 {v(NEG)}, 0xf149f2ca')
    e('v_lshlrev_b32 v9, 4, v3')
    e('v_lshl_add_u32 v9, v2, 13, v9')
    e('s_lshl_b32 s41, s30, 18')
    e(f's_lshl_b32 s42, {s(P1)}, 8')
    e('s_add_u32 s41, s41, s42')
    e(f's_add_u32 s41, s41, {WS_O}')
    S, M, P, PM, OA = 144, 156, 160, 164, 168
    for tq in range(2):
        e.wait_vm('a' if tq == 0 else 'b')
        if tq == 0:
            e.wait_lg()
        for uu in range(4):
            q = v(Q + 16 * tq + 4 * uu, 4)
            c0 = (lambda r: '0' if uu == 0 else v(r, 4))
            e(f'v_mfma_f32_16x16x32_bf16 {v(S, 4)}, {v(KX_ + 4 * uu, 4)}, {q}, {c0(S)}')
            if tq == 1:
                e(f'v_mfma_f32_16x16x32_bf16 {v(S + 4, 4)}, {v(KX_ + 16 + 4 * uu, 4)}, {q}, {c0(S + 4)}')
            e(f'v_mfma_f32_16x16x32_bf16 {v(S + 8, 4)}, {v(KM_ + 4 * uu, 4)}, {q}, {c0(S + 8)}')
        dg = S + 4 * tq
        for j in range(4):
            e(f'v_cndmask_b32 {v(dg + j)}, {v(NEG)}, {v(dg + j)}, {s(MK + 2 * j, 2)}')
        C0 = S + 8
        e(f'v_cndmask_b32 {v(C0)}, {v(C0 + 2)}, {v(C0)}, s[96:97]')
        e(f'v_cndmask_b32 {v(C0 + 1)}, {v(C0 + 3)}, {v(C0 + 1)}, s[96:97]')
        vals = [S + j for j in range(4 * (tq + 1))] + [C0, C0 + 1]
        e(f'v_max3_f32 {v(M)}, {v(vals[0])}, {v(vals[1])}, {v(vals[2])}')
        i = 3
        while i + 1 < len(vals):
            e(f'v_max3_f32 {v(M)}, {v(M)}, {v(vals[i])}, {v(vals[i + 1])}')
            i += 2
        if i < len(vals):
            e(f'v_max_f32 {v(M)}, {v(M)}, {v(vals[i])}')
        for sw_ in ('v_permlane32_swap_b32', 'v_permlane16_swap_b32'):
            e(f'v_mov_b32 {v(M + 1)}, {v(M)}')
            e(f'{sw_} {v(M)}, {v(M + 1)}')
            e(f'v_max_f32 {v(M)}, {v(M)}, {v(M + 1)}')
        e(f'v_mul_f32 {v(M)}, s98, {v(M)}')
        for x in vals[::2]:
            e(f'v_pk_fma_f32 {v(x, 2)}, {v(x, 2)}, s[98:99], {v(M, 2)} op_sel_hi:[1,1,0] neg_lo:[0,0,1] neg_hi:[0,0,1]')
        for x in vals:
            e(f'v_exp_f32 {v(x)}, {v(x)}')
        for j in range(2 * (tq + 1)):
            e(f'v_cvt_pk_bf16_f32 {v(P + j)}, {v(S + 2 * j)}, {v(S + 2 * j + 1)}')
        if tq == 0:
            e(f'v_mov_b32 {v(P + 2)}, 0')
            e(f'v_mov_b32 {v(P + 3)}, 0')
            e(f'v_mov_b32 {v(PM + 1)}, 0')
            e(f'v_mov_b32 {v(PM + 2)}, 0')
        e(f'v_cvt_pk_bf16_f32 {v(PM)}, {v(C0)}, {v(C0 + 1)}')
        e(f'v_cvt_pk_bf16_f32 {v(PM + 3)}, {v(C0)}, {v(C0 + 1)}')
        e.wait_vm('v')
        if tq == 0:
            mid(e)
        Lr = OA + 32
        e(f'v_mfma_f32_16x16x32_bf16 {v(Lr, 4)}, {v(ONES, 4)}, {v(P, 4)}, 0')
        for et in range(8):
            e(f'v_mfma_f32_16x16x32_bf16 {v(OA + 4 * et, 4)}, {v(VX_ + 4 * et, 4)}, {v(P, 4)}, 0')
        e(f'v_mfma_f32_16x16x16_bf16 {v(Lr, 4)}, {v(ONES, 2)}, {v(PM, 2)}, {v(Lr, 4)}')
        for et in range(8):
            e(f'v_mfma_f32_16x16x16_bf16 {v(OA + 4 * et, 4)}, {v(VM_ + 2 * (et >> 1), 2)}, {v(PM + 2 * (et & 1), 2)}, {v(OA + 4 * et, 4)}')
        e(f'v_rcp_f32 {v(M)}, {v(Lr)}')
        if tq:
            e(f's_add_u32 s41, s41, {16 * 8192}')
        for ub in range(4):
            o = OA + 8 * ub
            for j in range(0, 8, 2):
                e(f'v_pk_mul_f32 {v(o + j, 2)}, {v(o + j, 2)}, {v(M, 2)} op_sel_hi:[1,0]')
            for j in range(4):
                e(f'v_cvt_pk_bf16_f32 {v(o + j)}, {v(o + 2 * j)}, {v(o + 2 * j + 1)}')
            e(f'buffer_store_dwordx4 {v(o, 4)}, v9, s[4:7], s41 offen offset:{64 * ub} sc1')
    signal(e, name, C_ATT, B, loop)

    def proj(name, wsrd, xoff, xstride, KT, nsplit, poff, dep, cdone):
        e.label(name)
        reset(e)
        e(f's_and_b32 s54, {s(P1)}, 1')
        e(f's_lshr_b32 s56, {s(P1)}, 1')
        mg = {8: (8192, 16), 3: (21846, 16)}[nsplit]
        e(f's_mul_i32 s55, s56, {mg[0]}')
        e(f's_lshr_b32 s55, s55, {mg[1]}')
        assert all((x * mg[0]) >> mg[1] == x // nsplit for x in range(5 * nsplit))
        e(f's_mul_i32 s57, s55, {nsplit}')
        e('s_sub_u32 s56, s56, s57')
        G = Gemm(e, 64, [(wsrd, 1280, 128)], 2, 2, KT, xstride, nstage=6, vbase=8, sbase=40, acc_base=128, xfl='sc1')
        G.setup(VL, SW, 2)
        e(f's_lshl_b32 s57, {s(B)}, 1')
        e('s_add_u32 s57, s57, s54')
        e(f's_mul_i32 s57, s57, {64 * xstride}')
        e(f's_mul_i32 s58, s56, {KT * 128}')
        e('s_add_u32 s57, s57, s58')
        e(f's_add_u32 s57, s57, {xoff}')
        e(f's_mul_i32 s58, s56, {KT * 64 * 1280}')
        e('s_lshl_b32 s59, s55, 8')
        e('s_add_u32 s58, s58, s59')
        G.init_offsets(57, [58])
        G.pre_w()
        dep_wait(e, name, [dep], B)
        G.mainloop(4, ['T'] * G.NT, name, w_done=True)
        mid(e)
        e(f'v_and_b32 v2, 15, {v(VL)}')
        e(f'v_lshrrev_b32 v3, 4, {v(VL)}')
        e('v_mul_u32_u24 v4, 2560, v2')
        e('v_lshl_add_u32 v4, v3, 4, v4')
        e(f's_mul_i32 s33, {s(B)}, {nsplit}')
        e('s_add_u32 s33, s33, s56')
        e('s_lshl_b32 s33, s33, 1')
        e('s_add_u32 s33, s33, s54')
        e('s_lshl_b32 s33, s33, 1')
        e(f's_lshr_b32 s31, {s(SW)}, 1')
        e('s_add_u32 s33, s33, s31')
        e(f's_mul_i32 s33, s33, {32 * 2560}')
        e(f's_and_b32 s32, {s(SW)}, 1')
        e('s_lshl_b32 s32, s32, 8')
        e('s_lshl_b32 s34, s55, 9')
        e('s_add_u32 s33, s33, s32')
        e('s_add_u32 s33, s33, s34')
        e(f's_add_u32 s33, s33, {poff}')
        for mi in range(2):
            for a_ in range(4):
                e(f'buffer_store_dwordx4 {v(G.accr(mi, a_), 4)}, v4, s[4:7], s33 offen offset:{64 * a_} sc1')
            if mi < 1:
                e(f's_add_u32 s33, s33, {16 * 2560}')
        signal(e, name, cdone, B, loop)

    proj('wk_wo', 24, WS_O, 8192, 8, 8, WS_PW, (C_ATT, 32), C_WO)
    proj('wk_dn', S_W2, WS_HM, 3456, 9, 3, WS_PD, (C_UP, 54), C_DN)

    def combine(name, nsplit, poff, gate_idx, res_is_x, do_ln, dep, cdone, RPW):
        e.label(name)
        reset(e)
        e(f's_lshl_b32 s30, {s(P1)}, 2')
        e(f's_add_u32 s30, s30, {s(SW)}')
        e(f's_mul_i32 s30, s30, {RPW}')
        e(f's_lshl_b32 s31, {s(B)}, 7')
        e('s_add_u32 s31, s31, s30')
        e('s_mul_i32 s31, s31, 1280')
        e(f'v_lshlrev_b32 v2, 2, {v(VL)}')
        e(f'v_lshlrev_b32 v3, 3, {v(VL)}')
        GT, SH, SC = 16, 26, 36
        e(f's_mov_b32 s32, {WS_MOD + gate_idx * 2560}')
        for i in range(5):
            e(f'buffer_load_dwordx2 {v(GT + 2 * i, 2)}, v3, s[4:7], s32 offen offset:{512 * i} sc1', tag='m')
        if do_ln:
            e(f's_mov_b32 s33, {WS_MOD + 3 * 2560}')
            e(f's_mov_b32 s34, {WS_MOD + 4 * 2560}')
            for i in range(5):
                e(f'buffer_load_dwordx2 {v(SH + 2 * i, 2)}, v3, s[4:7], s33 offen offset:{512 * i} sc1', tag='m')
                e(f'buffer_load_dwordx2 {v(SC + 2 * i, 2)}, v3, s[4:7], s34 offen offset:{512 * i} sc1', tag='m')
            e(f'v_bfe_u32 v4, {v(VL)}, 1, 2')
            e(f'v_bfe_u32 v5, {v(VL)}, 3, 1')
            e(f'v_and_b32 v6, 1, {v(VL)}')
            e('v_lshl_add_u32 v6, v5, 1, v6')
            e('v_lshl_add_u32 v6, v4, 2, v6')
            e(f'v_and_b32 v4, 48, {v(VL)}')
            e('v_add_u32 v6, v6, v4')
            e('v_lshlrev_b32 v12, 2, v6')
        e('s_waitcnt vmcnt(0)')
        dep_wait(e, name, [dep], B)
        e(f'v_lshlrev_b32 v2, 2, {v(VL)}')
        e(f'v_lshlrev_b32 v3, 3, {v(VL)}')
        RS_, PP = 48, 72
        rs = S_X if res_is_x else 4
        e(f's_add_u32 s35, s31, {0 if res_is_x else WS_X1}')
        for r in range(RPW):
            for i in range(5):
                if i == 0 and r == 2:
                    e('s_add_u32 s35, s35, 2560')
                e(f'buffer_load_dword {v(RS_ + 5 * r + i)}, v2, {s(rs, 4)}, s35 offen offset:{1280 * (r & 1) + 256 * i} {"" if res_is_x else "sc1"}', tag='r')
        e(f's_mul_i32 s36, {s(B)}, {nsplit * 128}')
        e('s_add_u32 s36, s36, s30')
        e('s_mul_i32 s36, s36, 2560')
        e(f's_add_u32 s36, s36, {poff}')
        for r in range(RPW):
            for k in range(nsplit):
                e(f's_add_u32 s37, s36, {(k * 128 + r) * 2560}')
                for i in range(5):
                    e(f'buffer_load_dwordx2 {v(PP + ((r * nsplit + k) * 5 + i) * 2, 2)}, v3, s[4:7], s37 offen offset:{512 * i} sc1', tag=('p', r, k))
        if do_ln:
            for j in range(10):
                e(f'v_add_f32 {v(SC + j)}, 1.0, {v(SC + j)}')
            for j in range(0, 10, 2):
                rnd2(e, SC + j, SC + j + 1, 7)
            e(f's_mov_b32 s38, {f32bits(1.0 / 640):#x}')
            e(f's_mov_b32 s39, {f32bits(1e-5):#x}')
            e(f's_add_u32 s40, s31, {WS_X1}')
            e(f's_add_u32 s41, s31, {WS_H2}')
        for r in range(RPW):
            X = PP + r * nsplit * 10
            for k in range(1, nsplit):
                e.wait_vm(('p', r, k))
                for j in range(0, 10, 2):
                    e(f'v_pk_add_f32 {v(X + j, 2)}, {v(X + j, 2)}, {v(X + k * 10 + j, 2)}')
            mid(e)
            for j in range(0, 10, 2):
                a_, b_ = X + j, X + j + 1
                rr = RS_ + 5 * r + j // 2
                rnd2(e, a_, b_, 7)
                e(f'v_mul_f32 {v(a_)}, {v(a_)}, {v(GT + j)}')
                e(f'v_mul_f32 {v(b_)}, {v(b_)}, {v(GT + j + 1)}')
                rnd2(e, a_, b_, 7)
                e(f'v_lshlrev_b32 v8, 16, {v(rr)}')
                e(f'v_and_b32 v9, 0xffff0000, {v(rr)}')
                e(f'v_add_f32 {v(a_)}, {v(a_)}, v8')
                e(f'v_add_f32 {v(b_)}, {v(b_)}, v9')
                e(f'v_cvt_pk_bf16_f32 {v(rr)}, {v(a_)}, {v(b_)}')
                if do_ln:
                    e(f'buffer_store_dword {v(rr)}, v2, s[4:7], s40 offen offset:{1280 * r + 128 * j} sc1')
                    e(f'v_lshlrev_b32 {v(a_)}, 16, {v(rr)}')
                    e(f'v_and_b32 {v(b_)}, 0xffff0000, {v(rr)}')
                else:
                    if j == 0 and r == 2:
                        e('s_add_u32 s31, s31, 2560')
                    e(f'buffer_store_dword {v(rr)}, v2, {s(S_OUT, 4)}, s31 offen offset:{1280 * (r & 1) + 128 * j}')
            if not do_ln:
                continue
            e(f'v_add_f32 v8, {v(X)}, {v(X + 1)}')
            for j in range(2, 10):
                e(f'v_add_f32 v8, v8, {v(X + j)}')
            wave_sum(e, 8, 9)
            e('v_mul_f32 v8, s38, v8')
            e('v_mov_b32 v10, 0')
            for j in range(10):
                e(f'v_sub_f32 v9, {v(X + j)}, v8')
                e('v_fmac_f32 v10, v9, v9')
            wave_sum(e, 10, 9)
            e('v_mul_f32 v10, s38, v10')
            rnd2(e, 8, 10, 7)
            e('v_add_f32 v10, s39, v10')
            rnd2(e, 10, 9, 7)
            e('v_sqrt_f32 v10, v10')
            rnd2(e, 10, 9, 7)
            e('v_rcp_f32 v10, v10')
            for j in range(0, 10, 2):
                a_, b_ = X + j, X + j + 1
                e(f'v_sub_f32 {v(a_)}, {v(a_)}, v8')
                e(f'v_sub_f32 {v(b_)}, {v(b_)}, v8')
                rnd2(e, a_, b_, 7)
                e(f'v_mul_f32 {v(a_)}, {v(a_)}, v10')
                e(f'v_mul_f32 {v(b_)}, {v(b_)}, v10')
                rnd2(e, a_, b_, 7)
                e(f'v_mul_f32 {v(a_)}, {v(a_)}, {v(SC + j)}')
                e(f'v_mul_f32 {v(b_)}, {v(b_)}, {v(SC + j + 1)}')
                rnd2(e, a_, b_, 7)
                e(f'v_add_f32 {v(a_)}, {v(a_)}, {v(SH + j)}')
                e(f'v_add_f32 {v(b_)}, {v(b_)}, {v(SH + j + 1)}')
                e(f'v_cvt_pk_bf16_f32 {v(a_)}, {v(a_)}, {v(b_)}')
                e(f'buffer_store_dword {v(a_)}, v12, s[4:7], s41 offen offset:{1280 * r + 128 * j} sc1')
        signal(e, name, cdone, B, loop)

    combine('wk_ln2', 8, WS_PW, 2, True, True, (C_WO, 80), C_LN2, 2)
    combine('wk_fin', 3, WS_PD, 5, False, False, (C_DN, 30), None, 4)

    name = 'wk_up'
    e.label(name)
    reset(e)
    G = Gemm(e, 64, [(S_W1, 3456, 64), (S_W3, 3456, 64)], 2, 2, 10, 1280, nstage=6, vbase=8, sbase=40, acc_base=128, xfl='sc1')
    G.setup(VL, SW, 2)
    e(f's_and_b32 s54, {s(P1)}, 1')
    e(f's_lshr_b32 s58, {s(P1)}, 1')
    e(f's_lshl_b32 s55, {s(B)}, 1')
    e('s_add_u32 s54, s54, s55')
    e(f's_mul_i32 s55, s54, {64 * 1280}')
    e(f's_add_u32 s55, s55, {WS_H2}')
    e('s_lshl_b32 s56, s58, 7')
    e('s_mov_b32 s57, s56')
    G.init_offsets(55, [56, 57])
    G.pre_w()
    dep_wait(e, name, [(C_LN2, 16)], B)
    G.mainloop(4, ['T'] * G.NT, name, w_done=True)
    mid(e)
    e(f'v_and_b32 v2, 15, {v(VL)}')
    e(f'v_lshrrev_b32 v3, 4, {v(VL)}')
    e('v_mul_u32_u24 v4, 3456, v2')
    e('v_lshl_add_u32 v4, v3, 4, v4')
    e(f's_lshr_b32 s31, {s(SW)}, 1')
    e(f's_and_b32 s32, {s(SW)}, 1')
    e('s_lshl_b32 s33, s54, 1')
    e('s_add_u32 s33, s33, s31')
    e(f's_mul_i32 s33, s33, {32 * 3456}')
    e('s_lshl_b32 s34, s32, 6')
    e('s_add_u32 s34, s34, s56')
    e('s_add_u32 s33, s33, s34')
    e(f's_add_u32 s33, s33, {WS_HM}')
    e(f's_mov_b32 s37, {f32bits(-LOG2E):#x}')
    T = G.v_fx
    for mi in range(2):
        o = T + 4 * (mi & 1)
        for a_ in range(2):
            gv = G.accr(mi, a_)
            uv = G.accr(mi, 2 + a_)
            for h in range(2):
                g0, g1, u0, u1 = gv + 2 * h, gv + 2 * h + 1, uv + 2 * h, uv + 2 * h + 1
                rnd2(e, g0, g1, 6)
                rnd2(e, u0, u1, 6)
                silu_inplace(e, g0, 6, 37)
                silu_inplace(e, g1, 7, 37)
                rnd2(e, g0, g1, 6)
                e(f'v_mul_f32 {v(g0)}, {v(g0)}, {v(u0)}')
                e(f'v_mul_f32 {v(g1)}, {v(g1)}, {v(u1)}')
                e(f'v_cvt_pk_bf16_f32 {v(o + 2 * a_ + h)}, {v(g0)}, {v(g1)}')
        e(f'buffer_store_dwordx4 {v(o, 4)}, v4, s[4:7], s33 offen sc1')
        if mi < 1:
            e(f's_add_u32 s33, s33, {16 * 3456}')
    signal(e, name, C_UP, B, loop)


    name = 'wk_mod'
    e.label(name)
    reset(e)
    load_srds(e, [('c', 88), ('wmod', 92)], tmp=96)
    e(f's_lshl_b32 s30, {s(SW)}, 6')
    e(f'v_add_u32 v0, s30, {v(VL)}')
    e(f's_cmp_lg_u32 {s(P1)}, 0')
    e(f's_cbranch_scc1 {name}_nz')
    for j in range(4):
        e(f'v_mov_b32 {v(4 + j)}, 0')
    e('v_lshlrev_b32 v2, 4, v0')
    e(f's_mov_b32 s31, {WS_CTR}')
    for i in range(5):
        e('buffer_store_dwordx4 v[4:7], v2, s[4:7], s31 offen sc1')
        e('s_add_u32 s31, s31, 4096')
    e.label(f'{name}_nz')
    reset(e)
    e.nop(2)
    e('v_lshlrev_b32 v14, 1, v0')
    e('v_lshlrev_b32 v2, 2, v0')
    e(f's_mov_b32 s30, {f32bits(-LOG2E):#x}')
    for i in range(3):
        e(f'buffer_load_ushort {v(4 + i)}, v14, s[88:91], 0 offen offset:{512 * i}', tag='c')
    e('v_and_b32 v8, 3, v0')
    e('v_lshrrev_b32 v9, 2, v0')
    e('v_mul_u32_u24 v10, 7680, v9')
    e('v_lshl_add_u32 v10, v8, 4, v10')
    e(f's_lshl_b32 s31, {s(P1)}, 6')
    for i in range(10):
        if i:
            e(f's_add_u32 s31, s31, {64 * 7680}')
        e(f'buffer_load_dwordx4 {v(32 + 4 * i, 4)}, v10, s[92:95], s31 offen', tag=('w', i))
    e.wait_vm('c')
    for i in range(3):
        e(f'v_lshlrev_b32 {v(4 + i)}, 16, {v(4 + i)}')
        silu_inplace(e, 4 + i, 7, 30)
        e(f'v_cvt_pk_bf16_f32 {v(4 + i)}, {v(4 + i)}, {v(4 + i)}')
        e(f'v_lshlrev_b32 {v(4 + i)}, 16, {v(4 + i)}')
        e(f'ds_write_b32 v2, {v(4 + i)} offset:{1024 * i}')
    e.wait_lg()
    e('s_barrier')
    e('v_lshlrev_b32 v11, 2, v9')
    for i in range(10):
        e(f'ds_read_b32 {v(112 + i)}, v11 offset:{256 * i}')
    for j in range(8):
        e(f'v_mov_b32 {v(16 + j)}, 0')
    e.wait_lg()
    for i in range(10):
        e.wait_vm(('w', i))
        for d in range(4):
            w = 32 + 4 * i + d
            e(f'v_lshlrev_b32 v12, 16, {v(w)}')
            e(f'v_and_b32 v13, 0xffff0000, {v(w)}')
            e(f'v_fmac_f32 {v(16 + 2 * d)}, v12, {v(112 + i)}')
            e(f'v_fmac_f32 {v(17 + 2 * d)}, v13, {v(112 + i)}')
    e('v_lshlrev_b32 v12, 7, v9')
    e('v_lshl_add_u32 v12, v8, 5, v12')
    e('ds_write_b128 v12, v[16:19] offset:4096')
    e('ds_write_b128 v12, v[20:23] offset:4112')
    e.wait_lg()
    e('s_barrier')
    e(f's_cmp_lg_u32 {s(SW)}, 0')
    e(f's_cbranch_scc1 {name}_done')
    e(f'v_and_b32 v12, 31, {v(VL)}')
    e(f'v_lshrrev_b32 v13, 5, {v(VL)}')
    e('v_lshlrev_b32 v12, 2, v12')
    e('v_lshl_add_u32 v13, v13, 12, v12')
    for i in range(32):
        e(f'ds_read_b32 {v(32 + i)}, v13 offset:{4096 + 128 * i}')
    e.wait_lg()
    for i in range(1, 32):
        e(f'v_add_f32 v32, v32, {v(32 + i)}')
    e('v_mov_b32 v33, v32')
    e('v_permlane32_swap_b32 v32, v33')
    e('v_add_f32 v32, v32, v33')
    e('v_cvt_pk_bf16_f32 v32, v32, v32')
    e('v_lshlrev_b32 v32, 16, v32')
    e(f's_lshl_b32 s31, {s(P1)}, 7')
    e(f's_add_u32 s31, s31, {WS_MOD}')
    e('buffer_store_dword v32, v12, s[4:7], s31 offen sc1')
    e.label(f'{name}_done')
    e(f's_mov_b32 s36, {D_MODB}')
    e(f's_cmp_lt_u32 {s(P1)}, {NMODA}')
    e(f's_cselect_b32 s36, {D_MOD}, s36')
    signal(e, name, None, B, loop, dbg_off='s36')

    name = 'wk_ln1'
    e.label(name)
    reset(e)
    RPW = 4
    e(f's_lshl_b32 s30, {s(P1)}, 2')
    e(f's_add_u32 s30, s30, {s(SW)}')
    e(f's_mul_i32 s30, s30, {RPW * 1280}')
    e(f'v_lshlrev_b32 v4, 2, {v(VL)}')
    e('s_add_u32 s31, s30, 2560')
    for r in range(RPW):
        for i in range(5):
            e(f'buffer_load_dword {v(16 + 5 * r + i)}, v4, {s(S_X, 4)}, {"s30" if r < 2 else "s31"} offen offset:{(r & 1) * 1280 + 256 * i}', tag=('x', r))
    e(f'v_bfe_u32 v5, {v(VL)}, 1, 2')
    e(f'v_bfe_u32 v6, {v(VL)}, 3, 1')
    e(f'v_and_b32 v12, 1, {v(VL)}')
    e('v_lshl_add_u32 v12, v6, 1, v12')
    e('v_lshl_add_u32 v12, v5, 2, v12')
    e(f'v_and_b32 v5, 48, {v(VL)}')
    e('v_add_u32 v12, v12, v5')
    e('v_lshlrev_b32 v12, 2, v12')
    e(f's_mov_b32 s32, {f32bits(1.0 / 640):#x}')
    e(f's_mov_b32 s33, {f32bits(1e-5):#x}')
    for r in range(RPW):
        X = 64 + 10 * r
        e.wait_vm(('x', r))
        for i in range(5):
            e(f'v_lshlrev_b32 {v(X + 2 * i)}, 16, {v(16 + 5 * r + i)}')
            e(f'v_and_b32 {v(X + 2 * i + 1)}, 0xffff0000, {v(16 + 5 * r + i)}')
        e(f'v_add_f32 v8, {v(X)}, {v(X + 1)}')
        for j in range(2, 10):
            e(f'v_add_f32 v8, v8, {v(X + j)}')
        wave_sum(e, 8, 9)
        e('v_mul_f32 v8, s32, v8')
        e('v_mov_b32 v10, 0')
        for j in range(10):
            e(f'v_sub_f32 v9, {v(X + j)}, v8')
            e('v_fmac_f32 v10, v9, v9')
        wave_sum(e, 10, 9)
        e('v_mul_f32 v10, s32, v10')
        rnd2(e, 8, 10, 7)
        e('v_add_f32 v10, s33, v10')
        rnd2(e, 10, 9, 7)
        e('v_sqrt_f32 v10, v10')
        rnd2(e, 10, 9, 7)
        e('v_rcp_f32 v10, v10')
        for j in range(0, 10, 2):
            a_, b_ = X + j, X + j + 1
            e(f'v_sub_f32 {v(a_)}, {v(a_)}, v8')
            e(f'v_sub_f32 {v(b_)}, {v(b_)}, v8')
            rnd2(e, a_, b_, 7)
            e(f'v_mul_f32 {v(a_)}, {v(a_)}, v10')
            e(f'v_mul_f32 {v(b_)}, {v(b_)}, v10')
            rnd2(e, a_, b_, 7)
    dbg_wait(e, name, D_MOD, NMODA)
    e(f'v_lshlrev_b32 v3, 3, {v(VL)}')
    e(f's_mov_b32 s34, {WS_MOD}')
    e(f's_mov_b32 s35, {WS_MOD + 2560}')
    for i in range(5):
        e(f'buffer_load_dwordx2 {v(16 + 2 * i, 2)}, v3, s[4:7], s34 offen offset:{512 * i} sc1')
        e(f'buffer_load_dwordx2 {v(26 + 2 * i, 2)}, v3, s[4:7], s35 offen offset:{512 * i} sc1')
    e(f's_add_u32 s30, s30, {WS_H1}')
    e(f's_mul_i32 s38, {s(SW)}, 5120')
    e('v_add_u32 v12, s38, v12')
    e.wait_vm()
    for j in range(10):
        e(f'v_add_f32 {v(26 + j)}, 1.0, {v(26 + j)}')
    for j in range(0, 10, 2):
        rnd2(e, 26 + j, 27 + j, 7)
    for r in range(RPW):
        X = 64 + 10 * r
        for j in range(0, 10, 2):
            a_, b_ = X + j, X + j + 1
            e(f'v_mul_f32 {v(a_)}, {v(a_)}, {v(26 + j)}')
            e(f'v_mul_f32 {v(b_)}, {v(b_)}, {v(27 + j)}')
            rnd2(e, a_, b_, 7)
            e(f'v_add_f32 {v(a_)}, {v(a_)}, {v(16 + j)}')
            e(f'v_add_f32 {v(b_)}, {v(b_)}, {v(17 + j)}')
            e(f'v_cvt_pk_bf16_f32 {v(a_)}, {v(a_)}, {v(b_)}')
            e(f'ds_write_b32 v12, {v(a_)} offset:{r * 1280 + 128 * j}')
    e(f'v_lshlrev_b32 v13, 4, {v(VL)}')
    e('v_add_u32 v14, s38, v13')
    e.wait_lg()
    for i in range(5):
        e(f'ds_read_b128 {v(16 + 4 * i, 4)}, v14 offset:{1024 * i}')
    e('s_add_u32 s31, s30, 4096')
    e.wait_lg()
    for i in range(5):
        e(f'buffer_store_dwordx4 {v(16 + 4 * i, 4)}, v13, s[4:7], {"s30" if i < 4 else "s31"} offen offset:{1024 * (i & 3)} sc1')
    e(f's_lshr_b32 {s(B)}, {s(P1)}, 3')
    e('s_mov_b32 s51, 1')
    signal(e, name, C_LN1, B, loop)


NAME = 'adaLN_cond__memory_aug_recurrent_mem_tr__glu_gated_swiglu__prompt_kernel'
if __name__ == '__main__':
    import argparse
    ap = argparse.ArgumentParser()
    ap.add_argument('--out', default='mega.s')
    ap.add_argument('--kw', default='')
    ap.add_argument('--log', action='store_true')
    ap.add_argument('--sleep', type=int, default=6)
    ap.add_argument('--list', action='store_true')
    ap.add_argument('--dsleep', type=int, default=24)
    args = ap.parse_args()
    LOG = args.log
    SLEEP = args.sleep
    DSLEEP = args.dsleep
    e = Em()
    nm = 'mega_kernel' if args.list else NAME
    e.raw(f'.globl {nm}')
    KNAME[0] = nm
    reset(e)
    kw = eval('dict(' + args.kw + ')')
    gen_chain6.gen_chain(e, name=nm, mega='wk_entry', selfinit=True, nmoda=NMODA, ostfl='sc1', **kw)
    gen_workers(e)
    if args.list:
        hdr = f"; @launch kernel={nm} grid=(256,1,1) block=(256,1,1) lds=163840\n"
    else:
        hdr = "; @launch grid=(256,1,1) block=(256,1,1) lds=163840\n"
    hdr += '.amdgcn_target "amdgcn-amd-amdhsa--gfx950"\n.text\n'
    open(args.out, 'w').write(hdr + e.text() + kd(nm, 512, 256))
```

```python
import re

_REG = re.compile(r'^(-|abs\()?([vas])(\d+)\)?$')
_RNG = re.compile(r'^(-|abs\()?([vas])\[(\d+):(\d+)\]\)?$')


def regs_of(tok):
    tok = tok.strip()
    m = _REG.match(tok)
    if m:
        return [(m.group(2), int(m.group(3)))]
    m = _RNG.match(tok)
    if m:
        return [(m.group(2), i) for i in range(int(m.group(3)), int(m.group(4)) + 1)]
    if tok == 'vcc':
        return [('s', 106), ('s', 107)]
    if tok == 'exec_lo':
        return [('s', 126)]
    if tok == 'exec_hi':
        return [('s', 127)]
    if tok == 'vcc_lo':
        return [('s', 106)]
    if tok == 'exec':
        return [('s', 126), ('s', 127)]
    if tok == 'm0':
        return [('s', 124)]
    return []


def R(kind, lo, n=1):
    if n == 1:
        return f'{kind}{lo}'
    return f'{kind}[{lo}:{lo + n - 1}]'


def v(lo, n=1):
    return R('v', lo, n)


def a(lo, n=1):
    return R('a', lo, n)


def s(lo, n=1):
    return R('s', lo, n)


def u(idx, n=1):
    if idx < 256:
        assert idx + n <= 256, (idx, n)
        return v(idx, n)
    return a(idx - 256, n)


TRANS = ('v_exp_f32', 'v_log_f32', 'v_rcp_f32', 'v_rsq_f32', 'v_sqrt_f32', 'v_sin_f32', 'v_cos_f32')


def mfma_passes(op):
    if '32x32' in op:
        return 8
    if '16x16' in op:
        return 4
    if '4x4' in op:
        return 2
    raise ValueError(op)


class Ins:
    __slots__ = ('op', 'kind', 'w', 'r', 'rc', 'passes', 'pos', 'text', 'wide_store', 'dst_tuple')


class Em:
    def __init__(self):
        self.lines = []
        self.hist = []
        self.pos = 0
        self.vm = []
        self.lg = []
        self.ninst = 0

    def raw(self, text):
        self.lines.append(text)

    def comment(self, text):
        self.lines.append('    ; ' + text)

    def label(self, name):
        self.lines.append(name + ':')

    def nop(self, n):
        while n > 0:
            k = min(n, 16)
            self.lines.append(f'    s_nop {k - 1}')
            self.pos += k
            n -= k
            self.ninst += 1

    def flush_hazards(self, n=20):
        self.nop(n)
        self.hist = []

    def _classify(self, op, ops, full):
        I = Ins()
        I.op = op
        I.w, I.r, I.rc = [], [], []
        I.passes = 0
        I.wide_store = False
        I.dst_tuple = None
        if op.startswith('v_mfma') or op.startswith('v_smfmac'):
            I.kind = 'mfma'
            I.passes = mfma_passes(op)
            I.w = regs_of(ops[0])
            I.dst_tuple = (I.w[0], len(I.w))
            I.r = regs_of(ops[1]) + regs_of(ops[2])
            if op.startswith('v_smfmac'):
                I.r += regs_of(ops[3])
                I.rc = list(I.w)
            else:
                I.rc = regs_of(ops[3])
        elif op.startswith('v_'):
            I.kind = 'valu'
            if op.startswith('v_permlane') and 'swap' in op:
                I.w = regs_of(ops[0]) + regs_of(ops[1])
                I.r = list(I.w)
            elif op.startswith('v_cmp'):
                I.w = regs_of(ops[0])
                for o in ops[1:]:
                    I.r += regs_of(o)
            elif op.startswith('v_add_co') or op.startswith('v_sub_co') or op.startswith('v_addc_co'):
                I.w = regs_of(ops[0]) + regs_of(ops[1])
                for o in ops[2:]:
                    I.r += regs_of(o)
            else:
                I.w = regs_of(ops[0])
                for o in ops[1:]:
                    I.r += regs_of(o)
                if op.startswith('v_fmac') or op.startswith('v_pk_fmac') or op.startswith('v_dot2c') or op.startswith('v_writelane'):
                    I.r += I.w
                if op.startswith('v_cndmask') and len(ops) == 3:
                    I.r += regs_of('vcc')
        elif op.startswith('ds_'):
            I.kind = 'ds'
            if op.startswith('ds_read') or op.startswith('ds_bpermute') or op.startswith('ds_permute') or op.startswith('ds_swizzle'):
                I.w = regs_of(ops[0])
                for o in ops[1:]:
                    I.r += regs_of(o)
            else:
                for o in ops:
                    I.r += regs_of(o)
        elif op.startswith('buffer_') or op.startswith('global_'):
            I.kind = 'vmem'
            islds = bool(re.search(r'\blds\b', full)) or 'load_lds' in op
            if op.startswith('buffer_inv') or op.startswith('buffer_wbl2'):
                pass
            elif 'load' in op and not islds:
                I.w = regs_of(ops[0])
                for o in ops[1:]:
                    I.r += regs_of(o.split()[0])
            elif 'atomic' in op:
                for o in ops:
                    I.r += regs_of(o.split()[0])
                if re.search(r'\bsc0\b', full):
                    I.w = regs_of(ops[0])[:1] if 'cmpswap' in op else regs_of(ops[0])
            else:
                for o in ops:
                    I.r += regs_of(o.split()[0])
                if islds:
                    I.r += regs_of('m0')
                if 'store' in op and ('x4' in op or 'x3' in op):
                    I.wide_store = True
        elif op.startswith('s_'):
            I.kind = 'salu'
            if op.startswith('s_load') or op.startswith('s_memtime') or op.startswith('s_memrealtime') or op.startswith('s_getreg'):
                I.w = regs_of(ops[0])
                for o in ops[1:]:
                    I.r += regs_of(o)
            elif op.startswith('s_cmp') or op.startswith('s_cbranch') or op.startswith('s_branch') or op in (
                    's_waitcnt', 's_barrier', 's_nop', 's_sleep', 's_endpgm', 's_setprio'):
                for o in ops:
                    I.r += regs_of(o)
            else:
                I.w = regs_of(ops[0])
                for o in ops[1:]:
                    I.r += regs_of(o)
        else:
            raise ValueError('unknown op ' + op)
        return I

    def _need(self, I, full):
        need = self.pos
        rset = set(I.r)
        rcset = set(I.rc)
        wset = set(I.w)
        isdpp = ('dpp' in I.op) or ('row_' in full) or ('quad_perm' in full)
        for P in self.hist:
            pw = set(P.w)
            d = 0
            if P.kind == 'valu':
                pv = {x for x in pw if x[0] in 'va'}
                ps = {x for x in pw if x[0] == 's'}
                if I.kind == 'mfma' and (pv & (rset | rcset)):
                    d = max(d, 2)
                if I.kind == 'valu':
                    if (I.op.startswith('v_permlane') or isdpp) and (pv & rset):
                        d = max(d, 2)
                    if (I.op.startswith('v_readfirstlane') or I.op.startswith('v_readlane')) and (pv & rset):
                        d = max(d, 1)
                    if P.op in TRANS and I.op not in TRANS and (pv & rset):
                        d = max(d, 1)
                    if ps & rset:
                        d = max(d, 4 if I.op.startswith(('v_readlane', 'v_writelane')) else 2)
                if I.kind == 'vmem' and (ps & rset):
                    d = max(d, 5)
                if I.kind == 'salu' and (ps & rset):
                    d = max(d, 1)
            elif P.kind == 'mfma':
                p = P.passes
                big = {2: 5, 4: 8, 8: 12, 16: 20}[p]
                ovl = {2: 4, 4: 6, 8: 10, 16: 18}[p]
                war = {2: 1, 4: 3, 8: 7, 16: 15}[p]
                if I.kind == 'mfma':
                    if pw & rset:
                        d = max(d, big)
                    if pw & rcset:
                        same = (I.rc and (I.rc[0], len(I.rc)) == P.dst_tuple and I.op == P.op)
                        d = max(d, (2 if p == 2 else 0) if same else ovl)
                    elif pw & wset:
                        d = max(d, big)
                else:
                    if pw & (rset | wset):
                        d = max(d, big)
                    if I.kind == 'valu' and (set(P.rc) & wset):
                        d = max(d, war)
            elif P.kind == 'salu':
                if ('s', 124) in pw and I.kind == 'vmem' and ('s', 124) in rset:
                    d = max(d, 1)
            elif P.kind == 'vmem':
                if P.wide_store and (set(P.r) & wset) and I.kind in ('valu', 'ds', 'vmem', 'mfma'):
                    d = max(d, 2)
            if d:
                need = max(need, P.pos + 1 + d)
        return need

    def __call__(self, text, tag=None):
        text = text.strip()
        parts = text.split(None, 1)
        op = parts[0]
        rest = parts[1] if len(parts) > 1 else ''
        ops = [o.strip() for o in rest.split(',')] if rest else []
        ops2 = []
        for o in ops:
            ops2.append(o.split()[0] if o else o)
        I = self._classify(op, ops2, text)
        need = self._need(I, text)
        if need > self.pos:
            self.nop(need - self.pos)
        I.pos = self.pos
        I.text = text
        self.lines.append('    ' + text)
        self.pos += 1
        self.ninst += 1
        self.hist.append(I)
        if len(self.hist) > 40:
            self.hist.pop(0)
        if I.kind == 'vmem':
            self.vm.append(tag)
        elif I.kind == 'ds':
            self.lg.append(tag)
        return I

    def cond_begin(self):
        self._cond = (self.pos, len(self.vm), len(self.lg))

    def cond_end(self):
        pos, nv, nl = self._cond
        self.pos = pos
        del self.vm[nv:]
        del self.lg[nl:]

    def wait_vm(self, tag=None):
        if tag is None:
            if True:
                self('s_waitcnt vmcnt(0)')
            self.vm = []
            return
        idx = [i for i, t in enumerate(self.vm) if t == tag]
        if not idx:
            return
        last = idx[-1]
        n = len(self.vm) - 1 - last
        n = min(n, 63)
        self(f's_waitcnt vmcnt({n})')
        self.vm = self.vm[len(self.vm) - n:] if n else []

    def wait_lg(self, tag=None):
        if tag is None:
            self('s_waitcnt lgkmcnt(0)')
            self.lg = []
            return
        idx = [i for i, t in enumerate(self.lg) if t == tag]
        if not idx:
            return
        last = idx[-1]
        n = len(self.lg) - 1 - last
        n = min(n, 15)
        self(f's_waitcnt lgkmcnt({n})')
        self.lg = self.lg[len(self.lg) - n:] if n else []

    def text(self):
        return '\n'.join(self.lines) + '\n'
```

```python
from emit import *
from layout import *
from gen_chain import Pool, f32bits, kd

S_WS = 4
S_DBG = 8
S_WQ = 12
S_WK = 16
S_WV = 20
S_WO = 24
S_H = 28
S_W = 29
S_STEP = 30
S_T0, S_T1, S_T2, S_T3 = 31, 32, 33, 34
S_MODE = 35
S_UNIT = 36
S_XCC = 37
S_C1 = 38
S_MASKLO = 40
S_LDSW = 42
S_SH13 = 43
S_MBP = 44
S_MBB = 47
S_MSL = 48
S_M9D = 49
S_PBST = 50
S_MBL = 55
S_MBC = 56
S_MBN = 57
S_KXW = 58
S_KXM = 59
S_PBLD = 60
S_MDST = 61
S_VMO = 62
S_NR = 63
S_VB0, S_VB, S_MBL2, S_PING = 66, 67, 68, 69
S_GOF = 64
S_KXM2 = 73
S_MBR2 = 65
S_VXO = 70
S_KMO = 71
S_WRM = 72
S_MBC2 = 74
S_MBN2 = 75
S_STAMP = 76
S_KVOK = 16

V_LANE16, V_IDX, V_AF, V_QKR, V_LDSW, V_QKW, V_OW, V_OR = range(8)
V_PBST, V_KXG, V_MBST, V_L8, V_WA, V_WT, V_M1, V_L64 = range(8, 16)
V_SEL = 16
V_ONES = 20
V_PM = 24
V_M2 = 26
NPERS = 28

NR_PING, NR_CAL, NR_VB = 8 * 16384, 9 * 16384, 16 * 16384
D_NEAR = 144
D_INIT, D_SLOW = 132, 136

_fj = [0]


def far_jump(e, label, sp):
    _fj[0] += 1
    here = f'Lfj{_fj[0]}'
    e(f's_getpc_b64 {s(sp, 2)}')
    e.label(here)
    e.raw(f'    s_add_u32 {s(sp)}, {s(sp)}, {label}-{here}')
    e.raw(f'    s_addc_u32 {s(sp + 1)}, {s(sp + 1)}, 0')
    e(f's_setpc_b64 {s(sp, 2)}')


def gen_chain(em, name='chain_kernel', mega=None, nmoda=0, pool_end=104, nsteps=64, stamps=False, stsel=(0, 1, 2, 3, 4, 5, 6, 7, 8, 9),
              hstamps=False, la_lds=5, afl=7, nkl=5, wat=2, npre=4, noa=2, v_at=3, gdel=0, kdel=0, pmask='lane', gmask='lane', ackA=False, b0=True, adel=3, warm=(('a', 0), ('a2', 1)), wat2=20, hd0=8, hup=0, hdn=1, ncal=6, slow=True,
              lds_at=(0, 1, 2, 3, 42, 46, 50, 54, 58, 44, 48, 20, 24), dbg='', ldfl='nt', ostfl='sc1'):
    L_MMEM = 0
    L_MQ = 10240
    L_MK = L_MQ + 2048
    L_O = L_MK + 2048
    L_KX = L_O + 2048
    L_WB = L_KX + 8192
    NRING = 10
    e = em
    LN = 28

    units = []
    for t in range(10):
        units += [('q', t), ('k', t)]
    ounits = [('o', t, p) for p in range(5) for t in range(2)]
    units += ounits
    order = []
    for t in range(10 - nkl):
        for m in 'qk':
            order += [((m, t), 0), ((m, t), 1)]
    for m in 'qk':
        for t in range(10 - nkl, 10):
            order += [((m, t), 0), ((m, t), 1)]
    NQE = 40 - 2 * nkl
    oorder = [(un, tau) for un in ounits for tau in range(2)]
    order += oorder
    n_reg = (512 - pool_end) // 8
    n_lds = 60 - n_reg
    WL = n_lds * 2048
    assert L_WB + 4 * WL <= 163840
    place = {}
    for i, oi in enumerate(sorted(lds_at[:n_lds])):
        place[order[oi]] = ('lds', i)
    assert len(place) == n_lds
    r = pool_end
    for sl in order:
        if sl not in place:
            place[sl] = ('reg', r)
            r += 8
    assert r == 512

    em.raw('.p2align 8')
    em.raw(f'.type {name},@function')
    em.label(name)
    e('s_cmp_lt_u32 s2, 256')
    e(f's_cbranch_scc1 {name}_go')
    e('s_endpgm')
    e.label(f'{name}_go')
    if 'rt' in dbg:
        e('s_memrealtime s[96:97]')
    e('s_load_dwordx4 s[48:51], s[0:1], 16')
    e('s_load_dwordx4 s[52:55], s[0:1], 32')
    e('s_load_dwordx4 s[56:59], s[0:1], 112')
    e(f's_getreg_b32 {s(S_XCC)}, hwreg(HW_REG_XCC_ID)')
    e(f's_and_b32 {s(S_XCC)}, {s(S_XCC)}, 15')
    e('v_lshrrev_b32 v20, 6, v0')
    e('v_and_b32 v16, 63, v0')
    e(f'v_readfirstlane_b32 {s(S_W)}, v20')
    e('s_waitcnt lgkmcnt(0)')

    def srd(d, src, size):
        e(f's_mov_b32 {s(d)}, {s(src)}')
        e(f's_and_b32 {s(d + 1)}, {s(src + 1)}, 0xffff')
        e(f's_mov_b32 {s(d + 2)}, {size}')
        e(f's_mov_b32 {s(d + 3)}, 0x20000')
    srd(S_WQ, 48, 5242880)
    srd(S_WK, 50, 5242880)
    srd(S_WV, 52, 5242880)
    srd(S_WO, 54, 5242880)
    srd(S_DBG, 56, 256)
    srd(S_WS, 58, WS_SIZE)

    def other(lab):
        if mega:
            far_jump(e, lab, 44)
        else:
            e('s_endpgm')
    e(f's_lshl_b32 {s(S_T3)}, {s(S_XCC)}, 2')
    e(f's_cmp_lt_u32 {s(S_XCC)}, 2')
    e(f's_cbranch_scc1 {name}_take')
    other(mega)
    e.label(f'{name}_take')
    e(f's_getreg_b32 {s(S_XCC)}, hwreg(HW_REG_XCC_ID)')
    e(f's_and_b32 {s(S_XCC)}, {s(S_XCC)}, 15')
    e(f's_cmp_lg_u32 {s(S_W)}, 0')
    e(f's_cbranch_scc1 {name}_elected')
    e('v_mov_b32 v20, 1')
    e('v_mov_b32 v21, 0')
    e('s_mov_b64 exec, 1')
    e(f'buffer_atomic_add v20, v21, {s(S_DBG, 4)}, {s(S_T3)} offen sc0')
    e.wait_vm()
    e('ds_write_b32 v21, v20')
    e('s_mov_b64 exec, -1')
    e.wait_lg()
    e.label(f'{name}_elected')
    e('s_barrier')
    e('v_mov_b32 v21, 0')
    e('ds_read_b32 v20, v21')
    e.wait_lg()
    e(f'v_readfirstlane_b32 {s(S_H)}, v20')
    e('s_barrier')
    e(f's_cmp_lt_u32 {s(S_H)}, 32')
    e(f's_cbranch_scc1 {name}_hasrole')
    other(mega)
    e.label(f'{name}_hasrole')
    e(f's_mov_b32 {s(S_MODE)}, {s(S_T3)}')
    e(f'v_mov_b32 {v(LN)}, v16')
    e(f's_add_u32 {s(S_T0)}, {s(S_XCC)}, 0')
    e(f's_cmp_lg_u32 {s(S_T3)}, 0')
    e(f's_cselect_b32 {s(S_T0)}, 0, {s(S_T0)}')
    e(f's_cmp_eq_u32 {s(S_T0)}, 0')
    e(f's_cbranch_scc1 {name}_native')
    e('v_mov_b32 v20, 1')
    e(f'v_mov_b32 v21, {D_SLOW}')
    e(f'buffer_store_dword v20, v21, {s(S_DBG, 4)}, 0 offen sc1')
    e.wait_vm()
    e.label(f'{name}_native')

    g, c, rp, cp, g1, g2, sw = 16, 17, 18, 19, 20, 21, 22
    T = 23
    e(f'v_lshrrev_b32 {v(g)}, 4, {v(LN)}')
    e(f'v_and_b32 {v(c)}, 15, {v(LN)}')
    e(f'v_lshrrev_b32 {v(rp)}, 2, {v(c)}')
    e(f'v_and_b32 {v(cp)}, 3, {v(LN)}')
    e(f'v_and_b32 {v(g1)}, 1, {v(g)}')
    e(f'v_lshrrev_b32 {v(g2)}, 1, {v(g)}')
    e(f'v_lshl_add_u32 {v(sw)}, {v(g1)}, 1, {v(g2)}')
    e(f'v_lshlrev_b32 {v(V_LANE16)}, 4, {v(LN)}')
    e(f'v_lshlrev_b32 {v(V_L64)}, 6, {v(LN)}')
    e(f'v_lshlrev_b32 {v(V_WA)}, 7, {v(c)}')
    e(f'v_mov_b32 {v(V_M1)}, -1')
    e(f'v_and_b32 {v(T)}, 2, {v(LN)}')
    e(f'v_cmp_ne_u32 vcc, 0, {v(T)}')
    e(f'v_mov_b32 {v(T + 1)}, 0x4444')
    e(f'v_mov_b32 {v(T + 2)}, 0xeeee')
    e(f'v_cndmask_b32 {v(V_IDX)}, {v(T + 1)}, {v(T + 2)}, vcc')
    e(f'v_lshl_add_u32 {v(T)}, {v(g)}, 2, {v(rp)}')
    e(f'v_lshlrev_b32 {v(T + 1)}, 3, {v(cp)}')
    e(f'v_lshl_add_u32 {v(V_AF)}, {v(T)}, 5, {v(T + 1)}')
    e(f'v_and_b32 {v(T + 2)}, 1, {v(cp)}')
    e(f'v_lshlrev_b32 {v(T + 2)}, 3, {v(T + 2)}')
    e(f'v_lshl_add_u32 {v(V_QKR)}, {v(T)}, 4, {v(T + 2)}')
    e(f'v_add_u32 {v(V_QKR)}, {L_MQ}, {v(V_QKR)}')
    e(f's_lshl_b32 {s(S_T0)}, {s(S_W)}, 5')
    e(f'v_add_u32 {v(T)}, {s(S_T0)}, {v(c)}')
    e(f'v_lshlrev_b32 {v(T + 2)}, 2, {v(sw)}')
    e(f'v_lshl_add_u32 {v(V_QKW)}, {v(T)}, 4, {v(T + 2)}')
    e(f'v_add_u32 {v(V_QKW)}, {L_MQ}, {v(V_QKW)}')
    e(f's_lshl_b32 {s(S_T0)}, {s(S_W)}, 2')
    e(f'v_add_u32 {v(T)}, {s(S_T0)}, {v(g)}')
    e(f'v_and_b32 {v(T + 3)}, 7, {v(LN)}')
    e(f'v_lshl_add_u32 {v(T)}, {v(T)}, 3, {v(T + 3)}')
    e(f'v_lshlrev_b32 {v(V_OW)}, 4, {v(T)}')
    e(f'v_add_u32 {v(V_OW)}, {L_O}, {v(V_OW)}')
    e(f'v_and_b32 {v(T)}, 1, {v(rp)}')
    e(f'v_lshrrev_b32 {v(T + 2)}, 1, {v(rp)}')
    e(f'v_lshl_add_u32 {v(T)}, {v(T)}, 1, {v(T + 2)}')
    e(f'v_and_b32 {v(T + 2)}, 1, {v(LN)}')
    e(f'v_lshl_add_u32 {v(T)}, {v(T)}, 1, {v(T + 2)}')
    e(f'v_lshl_add_u32 {v(T)}, {v(g)}, 3, {v(T)}')
    e(f'v_lshrrev_b32 {v(T + 2)}, 1, {v(cp)}')
    e(f'v_lshl_add_u32 {v(T)}, {v(T + 2)}, 5, {v(T)}')
    e(f'v_lshlrev_b32 {v(V_OR)}, 4, {v(T)}')
    e(f'v_add_u32 {v(V_OR)}, {L_O}, {v(V_OR)}')
    e(f'v_lshl_add_u32 {v(T)}, {v(g1)}, 2, {v(cp)}')
    e(f'v_lshlrev_b32 {v(T)}, 4, {v(T)}')
    e(f'v_lshl_add_u32 {v(T)}, {v(g2)}, 3, {v(T)}')
    e(f'v_lshl_add_u32 {v(V_PBST)}, {v(rp)}, 12, {v(T)}')
    e(f'v_and_b32 {v(T)}, 4, {v(LN)}')
    e(f'v_lshl_add_u32 {v(T)}, {v(sw)}, 3, {v(T)}')
    e(f'v_lshl_add_u32 {v(T)}, {v(cp)}, 5, {v(T)}')
    e(f'v_lshlrev_b32 {v(T + 1)}, 27, {v(c)}')
    e(f'v_and_b32 {v(T + 1)}, 0x40000000, {v(T + 1)}')
    e(f'v_or_b32 {v(V_MBST)}, {v(T)}, {v(T + 1)}')
    e(f'v_lshlrev_b32 {v(V_L8)}, 3, {v(LN)}')
    e(f'v_lshlrev_b32 {v(T)}, 4, {v(g)}')
    e(f'v_lshl_add_u32 {v(V_KXG)}, {v(c)}, 8, {v(T)}')
    e(f's_mul_i32 {s(S_LDSW)}, {s(S_W)}, {WL}')
    e(f's_add_u32 {s(S_LDSW)}, {s(S_LDSW)}, {L_WB}')
    e(f'v_add_u32 {v(V_LDSW)}, {s(S_LDSW)}, {v(V_LANE16)}')
    e(f's_mul_i32 {s(S_LDSW)}, {s(S_W)}, {NRING * 4096}')
    VG_QKV, VG_O, VT_QKV, VT_O = 28, 29, 30, 31
    e(f'v_lshrrev_b32 {v(T + 2)}, 1, {v(rp)}')
    e(f'v_and_b32 {v(T + 3)}, 1, {v(rp)}')
    e(f'v_lshlrev_b32 {v(T + 1)}, 3, {v(cp)}')
    e(f'v_lshlrev_b32 {v(T + 4)}, 5, {v(g1)}')
    e(f'v_lshl_add_u32 {v(T + 4)}, {v(T + 2)}, 4, {v(T + 4)}')
    e(f'v_lshl_add_u32 {v(T + 4)}, {v(g2)}, 2, {v(T + 4)}')
    e(f'v_add_u32 {v(T + 4)}, {v(T + 4)}, {v(T + 3)}')
    e(f'v_lshl_add_u32 {v(VT_QKV)}, {v(T + 4)}, 6, {v(T + 1)}')
    e(f'v_add_u32 {v(VT_QKV)}, {s(S_LDSW)}, {v(VT_QKV)}')
    e(f'v_lshlrev_b32 {v(T + 4)}, 5, {v(T + 2)}')
    e(f'v_lshl_add_u32 {v(T + 4)}, {v(g1)}, 4, {v(T + 4)}')
    e(f'v_lshl_add_u32 {v(T + 4)}, {v(g2)}, 2, {v(T + 4)}')
    e(f'v_add_u32 {v(T + 4)}, {v(T + 4)}, {v(T + 3)}')
    e(f'v_lshl_add_u32 {v(VT_O)}, {v(T + 4)}, 6, {v(T + 1)}')
    e(f'v_add_u32 {v(VT_O)}, {s(S_LDSW)}, {v(VT_O)}')
    e(f'v_lshrrev_b32 {v(T)}, 2, {v(LN)}')
    e(f'v_lshlrev_b32 {v(T + 1)}, 4, {v(cp)}')
    e(f'v_mul_u32_u24 {v(VG_O)}, 1280, {v(T)}')
    e(f'v_add_u32 {v(VG_O)}, {v(VG_O)}, {v(T + 1)}')
    e(f'v_lshl_add_u32 {v(VG_QKV)}, {v(T)}, 13, {v(T + 1)}')
    e(f's_lshl_b32 {s(S_T2)}, {s(S_H)}, 8')
    e(f's_lshl_b32 {s(S_T0)}, {s(S_W)}, 6')
    e(f's_add_u32 {s(S_T2)}, {s(S_T2)}, {s(S_T0)}')
    e(f's_mul_i32 {s(S_T3)}, {s(S_H)}, {128 * 1280}')
    e(f's_mul_i32 {s(S_T0)}, {s(S_W)}, 320')
    e(f's_add_u32 {s(S_T3)}, {s(S_T3)}, {s(S_T0)}')
    e(f's_mul_i32 {s(S_PBST)}, {s(S_W)}, {20 * 4096}')
    e(f's_lshl_b32 {s(S_T0)}, {s(S_H)}, 7')
    e(f's_add_u32 {s(S_PBST)}, {s(S_PBST)}, {s(S_T0)}')
    e(f's_mov_b32 {s(S_STEP)}, 0')
    e('s_mov_b32 s3, 0')
    e(f's_mov_b32 {s(S_MSL)}, 0')
    e(f's_lshl_b32 {s(S_T1)}, {s(S_H)}, 12')
    e(f's_add_u32 {s(S_KMO)}, {s(S_T1)}, {WS_KM}')
    e(f's_lshl_b32 {s(S_T0)}, {s(S_W)}, 9')
    e(f's_add_u32 {s(S_VMO)}, {s(S_KMO)}, {s(S_T0)}')
    e(f's_add_u32 {s(S_NR)}, {s(S_WS)}, 0x5fffff')
    e(f's_and_b32 {s(S_NR)}, {s(S_NR)}, 0xffe00000')
    e(f's_sub_u32 {s(S_NR)}, {s(S_NR)}, {s(S_WS)}')
    e(f's_lshr_b32 {s(S_T1)}, {s(S_H)}, 2')
    e(f's_lshl_b32 {s(S_T1)}, {s(S_T1)}, 14')
    e(f's_add_u32 {s(S_VB0)}, {s(S_T0)}, {s(S_T1)}')
    e(f's_and_b32 {s(S_T1)}, {s(S_H)}, 3')
    e(f's_lshl_b32 {s(S_T1)}, {s(S_T1)}, 11')
    e(f's_add_u32 {s(S_VB0)}, {s(S_VB0)}, {s(S_T1)}')
    e(f's_add_u32 {s(S_VB0)}, {s(S_VB0)}, {NR_VB}')

    def load_weights(ulist, place_, vt_o, tmpbase, first):
        def issue(i):
            un = ulist[i]
            pos = i % NRING
            for q in range(4):
                if un[0] == 'o':
                    _, t, p = un
                    e(f's_add_u32 {s(S_T0)}, {s(S_T3)}, {(64 * t + 16 * q) * 1280 + 64 * p}')
                    srdn, vg = S_WO, VG_O
                else:
                    m, t = un
                    e(f's_add_u32 {s(S_T0)}, {s(S_T2)}, {(64 * t + 16 * q) * 8192}')
                    srdn, vg = {'q': S_WQ, 'k': S_WK, 'v': S_WV}[m], VG_QKV
                e(f's_add_u32 m0, {s(S_LDSW)}, {pos * 4096 + q * 1024}')
                e(f'buffer_load_dwordx4 {v(vg)}, {s(srdn, 4)}, {s(S_T0)} offen lds', tag=('dma', i))

        def process(i):
            un = ulist[i]
            pos = i % NRING
            e.wait_vm(('dma', i))
            vt = vt_o if un[0] == 'o' else VT_QKV
            for tau in range(2):
                kind, loc = place_[(un, tau)]
                dst = loc if kind == 'reg' else tmpbase + 8 * loc
                for n in range(4):
                    off = (8 * (n >> 1) + 2 * (n & 1)) * 64 + 32 * tau
                    e(f'ds_read_b64_tr_b16 {u(dst + 2 * n, 2)}, {v(vt)} offset:{pos * 4096 + off}')
            e.wait_lg()
        n = len(ulist)
        first()
        for i in range(NRING):
            issue(i)
        for i in range(n):
            process(i)
            if i + NRING < n:
                issue(i + NRING)

    def init_done(lab, inc='1'):
        e('s_waitcnt vmcnt(0)')
        e('s_barrier')
        e(f's_cmp_lg_u32 {s(S_W)}, 0')
        e(f's_cbranch_scc1 {lab}')
        e(f'v_mov_b32 v44, {D_INIT}')
        e(f'v_mov_b32 v45, {inc}')
        e('s_mov_b64 exec, 1')
        e(f'buffer_atomic_add v45, v44, {s(S_DBG, 4)}, 0 offen')
        e('s_mov_b64 exec, -1')
        e.label(lab)
        e.vm = []
        e.hist = []

    def init_wait(lab, t):
        e(f'v_mov_b32 {v(t + 2)}, 128')
        e.label(lab)
        wd()
        e('s_sleep 8')
        e(f'buffer_load_dwordx2 {v(t, 2)}, {v(t + 2)}, {s(S_DBG, 4)}, 0 offen sc1')
        e('s_waitcnt vmcnt(0)')
        e(f'v_readfirstlane_b32 {s(S_T0)}, {v(t)}')
        e(f'v_readfirstlane_b32 {s(S_T1)}, {v(t + 1)}')
        if nmoda:
            e(f's_cmp_lt_u32 {s(S_T0)}, {nmoda}')
            e(f's_cbranch_scc1 {lab}')
        e(f's_and_b32 {s(S_T0)}, {s(S_T1)}, 0xffff')
        e(f's_cmp_lt_u32 {s(S_T0)}, 64')
        e(f's_cbranch_scc1 {lab}')
        e(f's_lshr_b32 {s(S_T1)}, {s(S_T1)}, 16')
        e(f's_cmp_ge_u32 {s(S_T1)}, 16')
        e(f's_cselect_b32 {s(S_T0)}, 8192, 0')
        if 'far' in dbg:
            e(f's_xor_b32 {s(S_T0)}, {s(S_T0)}, 8192')
        e(f's_add_u32 {s(S_NR)}, {s(S_NR)}, {s(S_T0)}')
        e(f's_add_u32 {s(S_VB0)}, {s(S_VB0)}, {s(S_NR)}')
        e(f's_mov_b32 {s(S_VB)}, {s(S_VB0)}')

    def signal_block(t0):
        e(f's_lshl_b32 {s(S_T2)}, {s(S_T2)}, 7')
        e(f's_add_u32 {s(S_T2)}, {s(S_T2)}, {WS_CTR + C_CH * 128}')
        e(f'v_mov_b32 {v(t0)}, 1')
        e('s_mov_b64 exec, 1')
        e(f'buffer_atomic_add {v(t0)}, {v(V_LANE16)}, {s(S_WS, 4)}, {s(S_T2)} offen')
        e('s_mov_b64 exec, -1')

    def step_signal(L):
        e(f's_and_b32 {s(S_T2)}, {s(S_STEP)}, 3')
        e(f's_lshl_b32 {s(S_T2)}, {s(S_T2)}, 2')
        e(f's_add_u32 {s(S_T2)}, {s(S_T2)}, {s(S_W)}')
        e(f's_cmp_lg_u32 {s(S_T2)}, 3')
        e(f's_cbranch_scc1 {L}_nosig')
        e(f's_cmp_eq_u32 {s(S_STEP)}, 0')
        e(f's_cbranch_scc1 {L}_nosig')
        e.cond_begin()
        e(f's_lshr_b32 {s(S_T2)}, {s(S_STEP)}, 2')
        e(f's_sub_u32 {s(S_T2)}, {s(S_T2)}, 1')
        signal_block(V_WT)
        e.cond_end()
        e.label(f'{L}_nosig')

    def tl(i):
        if 'tl' in dbg:
            e(f's_memrealtime {s(84 + 2 * i, 2)}')

    def tl_out(role, t):
        if 'tl' in dbg:
            e('s_waitcnt lgkmcnt(0)')
            for i in range(4):
                e(f'v_mov_b32 {v(t + i)}, {s(84 + 2 * i)}')
            e(f's_lshl_b32 {s(S_T0)}, {s(S_H)}, 2')
            e(f's_add_u32 {s(S_T0)}, {s(S_T0)}, {s(S_W)}')
            e(f's_lshl_b32 {s(S_T0)}, {s(S_T0)}, 6')
            e(f's_add_u32 {s(S_T0)}, {s(S_T0)}, {s(S_STEP)}')
            e(f's_lshl_b32 {s(S_T0)}, {s(S_T0)}, 4')
            e(f's_add_u32 {s(S_T0)}, {s(S_T0)}, {0x0F100000 + role * 0x40000}')
            e('s_mov_b64 exec, 1')
            e(f'buffer_store_dwordx4 {v(t, 4)}, {v(V_LANE16)}, {s(S_WS, 4)}, {s(S_T0)} offen')
            e('s_mov_b64 exec, -1')
            e.nop(2)

    def wd():
        if 'wd' in dbg:
            e('s_add_u32 s3, s3, 1')
            e('s_cmp_gt_u32 s3, 0x40000')
            _fj[0] += 1
            e(f's_cbranch_scc0 Lwd{_fj[0]}')
            e('s_endpgm')
            e.label(f'Lwd{_fj[0]}')

    def run(mf, side, ratio=2):
        side = list(side)
        for f in mf:
            f()
            for _ in range(ratio):
                if side:
                    side.pop(0)()
        for f in side:
            f()

    def fold(acc, dst):
        return [lambda: e(f'v_pk_add_f32 {v(acc, 2)}, {v(acc, 2)}, {v(acc + 2, 2)}'),
                lambda: e(f'v_cvt_pk_bf16_f32 {v(dst)}, {v(acc)}, {v(acc + 1)}')]

    def stamp_init():
        for i in range(17, 28):
            e(f's_mov_b32 {s(i)}, 0')
        e('s_memtime s[100:101]')
        e('s_waitcnt lgkmcnt(0)')
        for i in range(10):
            e(f's_mov_b32 {s(S_STAMP + 2 * i)}, s100')

    def stamp_acc(n):
        e('s_waitcnt lgkmcnt(0)')
        e(f's_sub_u32 {s(S_T0)}, {s(S_STAMP)}, s100')
        e(f's_add_u32 s17, s17, {s(S_T0)}')
        for i in range(n - 1):
            e(f's_sub_u32 {s(S_T0)}, {s(S_STAMP + 2 * i + 2)}, {s(S_STAMP + 2 * i)}')
            e(f's_add_u32 {s(18 + i)}, {s(18 + i)}, {s(S_T0)}')
        e(f's_mov_b32 s100, {s(S_STAMP + 2 * (n - 1))}')

    def stamp_out():
        e('v_mov_b32 v40, 0')
        for i in range(11):
            e(f'v_writelane_b32 v40, {s(17 + i)}, {i}')
        e(f'v_lshrrev_b32 v41, 2, {v(V_LANE16)}')
        e(f's_lshl_b32 {s(S_T0)}, {s(S_H)}, 2')
        e(f's_add_u32 {s(S_T0)}, {s(S_T0)}, {s(S_W)}')
        e(f's_lshl_b32 {s(S_T0)}, {s(S_T0)}, 8')
        e(f's_add_u32 {s(S_T0)}, {s(S_T0)}, 0x0F000000')
        e(f'buffer_store_dword v40, v41, {s(S_WS, 4)}, {s(S_T0)} offen')

    e(f's_cmp_eq_u32 {s(S_MODE)}, 0')
    e(f's_cbranch_scc1 {name}_chain')
    far_jump(e, f'{name}_helper', 44)
    e.label(f'{name}_chain')

    pool = Pool(NPERS, pool_end)
    cc = f32bits((128 ** -0.5) * 1.4426950408889634)
    e(f's_mov_b32 {s(S_C1)}, {cc:#x}')
    e(f's_mov_b32 {s(S_C1 + 1)}, {cc:#x}')
    e(f's_mov_b32 {s(S_MASKLO)}, -1')
    e(f's_mov_b32 {s(S_MASKLO + 1)}, 0')
    e(f's_lshl_b32 {s(S_T0)}, {s(S_H)}, 1')
    e(f's_add_u32 {s(S_T0)}, {s(S_T0)}, {s(S_W)}')
    e(f's_lshr_b32 {s(S_T1)}, {s(S_T0)}, 4')
    e(f's_and_b32 {s(S_T0)}, {s(S_T0)}, 15')
    e(f's_mul_i32 {s(S_T1)}, {s(S_T1)}, 20')
    e(f's_add_u32 {s(S_UNIT)}, {s(S_T0)}, {s(S_T1)}')
    e(f's_add_u32 {s(S_UNIT)}, {s(S_UNIT)}, 4')
    e(f's_lshr_b32 {s(S_T1)}, {s(S_H)}, 2')
    e(f's_mul_i32 {s(S_T1)}, {s(S_T1)}, 20')
    e(f's_and_b32 {s(S_T0)}, {s(S_H)}, 3')
    e(f's_add_u32 {s(S_T0)}, {s(S_T0)}, {s(S_T1)}')
    e(f's_cmp_lt_u32 {s(S_H)}, 16')
    e(f's_cselect_b32 {s(S_T0)}, {s(S_T0)}, 255')
    e(f's_cmp_eq_u32 {s(S_W)}, 2')
    e(f's_cselect_b32 {s(S_UNIT)}, {s(S_T0)}, {s(S_UNIT)}')
    e(f's_cmp_eq_u32 {s(S_W)}, 3')
    e(f's_cselect_b32 {s(S_UNIT)}, 255, {s(S_UNIT)}')
    e(f's_mul_i32 {s(S_GOF)}, {s(S_W)}, 2560')

    def chain_init():
        e('s_load_dwordx2 s[76:77], s[0:1], 8')
        for j in range(4):
            e(f'v_mov_b32 {v(40 + j)}, -1')
        e(f's_lshl_b32 {s(S_T0)}, {s(S_H)}, 2')
        e(f's_add_u32 {s(S_T0)}, {s(S_T0)}, {s(S_W)}')
        e(f's_mul_i32 {s(S_T1)}, {s(S_T0)}, 2560')
        for sl_ in range(2):
            e(f's_add_u32 s78, {s(S_T1)}, {WS_PB + sl_ * PB_STRIDE}')
            for i in range(3):
                e(f'buffer_store_dwordx4 v[40:43], {v(V_LANE16)}, {s(S_WS, 4)}, s78 offen offset:{1024 * i} sc1')
        e(f's_lshl_b32 s78, {s(S_T0)}, 10')
        e(f's_add_u32 s79, s78, {WS_MB + MB_STRIDE}')
        e(f'buffer_store_dwordx4 v[40:43], {v(V_LANE16)}, {s(S_WS, 4)}, s79 offen sc1')
        e(f's_add_u32 s79, s78, {s(S_NR)}')
        e('s_add_u32 s79, s79, 32768')
        e(f's_cmp_ge_u32 {s(S_T0)}, 96')
        e('s_cselect_b32 s79, 0x40000000, s79')
        e(f'buffer_store_dwordx4 v[40:43], {v(V_LANE16)}, {s(S_WS, 4)}, s79 offen sc1')
        e('v_mov_b32 v44, 0')
        e(f's_lshl_b32 s78, {s(S_H)}, 7')
        e(f's_add_u32 s78, s78, {s(S_NR)}')
        e(f's_add_u32 s78, s78, {NR_PING}')
        e('s_add_u32 s79, s78, 8192')
        e(f'buffer_store_dword v44, {v(V_MBST)}, {s(S_WS, 4)}, s78 offen sc1')
        e(f'buffer_store_dword v44, {v(V_MBST)}, {s(S_WS, 4)}, s79 offen sc1')
        e('s_waitcnt lgkmcnt(0)')
        e('s_mov_b32 s80, s76')
        e('s_and_b32 s81, s77, 0xffff')
        e('s_mov_b32 s82, 10240')
        e('s_mov_b32 s83, 0x20000')
        e(f's_cmp_ge_u32 {s(S_T0)}, 40')
        e(f's_cbranch_scc1 {name}_nom0')
        e(f's_lshl_b32 s78, {s(S_T0)}, 6')
        e(f'v_lshrrev_b32 v44, 4, {v(V_LANE16)}')
        e('v_add_u32 v44, s78, v44')
        e('v_and_b32 v45, 1, v44')
        e('v_bfe_u32 v46, v44, 1, 2')
        e('v_bfe_u32 v47, v44, 3, 4')
        e('v_lshrrev_b32 v48, 7, v44')
        e('v_lshl_add_u32 v47, v45, 4, v47')
        e('v_lshl_add_u32 v47, v48, 5, v47')
        e('v_mul_u32_u24 v46, 2560, v46')
        e('v_lshl_add_u32 v46, v47, 1, v46')
        e('buffer_load_ushort v45, v46, s[80:83], 0 offen')
        e('buffer_load_ushort v47, v46, s[80:83], 0 offen offset:1280')
        e('v_lshlrev_b32 v44, 2, v44')
        e('s_waitcnt vmcnt(0)')
        e('v_lshl_or_b32 v45, v47, 16, v45')
        e('v_min_u32 v45, 0xfffffffe, v45')
        e(f's_mov_b32 s78, {WS_MB}')
        e(f's_cmp_ge_u32 {s(S_T0)}, 32')
        e('s_cselect_b32 s79, 8192, 0')
        e(f's_add_u32 s79, s79, {s(S_NR)}')
        e('s_add_u32 s80, s79, 8192')
        e(f'buffer_store_dword v45, v44, {s(S_WS, 4)}, s78 offen sc1')
        e(f'buffer_store_dword v45, v44, {s(S_WS, 4)}, s79 offen sc1')
        e(f'buffer_store_dword v45, v44, {s(S_WS, 4)}, s80 offen sc1')
        e.label(f'{name}_nom0')
        init_done(f'{name}_noib')

    assert 32 + 8 * n_lds <= pool_end
    load_weights(units, place, VT_O, 32, chain_init)
    e('s_barrier')
    for i in range(n_lds):
        e(f'ds_write_b128 {v(V_LDSW)}, {v(32 + 8 * i, 4)} offset:{2048 * i}')
        e(f'ds_write_b128 {v(V_LDSW)}, {v(36 + 8 * i, 4)} offset:{2048 * i + 1024}')
    e.wait_lg()

    TT = NPERS
    e(f'v_and_b32 {v(TT)}, 16, {v(V_LANE16)}')
    e(f's_mov_b32 {s(S_T0)}, 0x3f80')
    e(f'v_lshlrev_b32 {v(TT)}, {v(TT)}, {s(S_T0)}')
    e(f'v_bfe_u32 {v(TT + 1)}, {v(V_LANE16)}, 5, 2')
    for rr in range(4):
        e(f'v_cmp_eq_u32 vcc, {rr}, {v(TT + 1)}')
        e(f'v_cndmask_b32 {v(V_SEL + rr)}, 0, {v(TT)}, vcc')
        e(f'v_mov_b32 {v(V_ONES + rr)}, 0x3f803f80')
    e(f'v_mov_b32 {v(V_PM + 1)}, 0')
    e(f'v_mov_b32 {v(V_PM + 2)}, 0')
    e(f's_add_u32 {s(S_MBB)}, {s(S_GOF)}, {WS_MB}')
    e(f's_mov_b32 {s(S_MBP)}, {s(S_MBB)}')
    e(f's_add_u32 {s(S_MBP + 1)}, {s(S_MBB)}, 4096')
    e(f's_add_u32 {s(S_PBST)}, {s(S_PBST)}, {WS_PB}')
    for p in range(1, 5):
        e(f's_add_u32 {s(S_PBST + p)}, {s(S_PBST)}, {p * 16384}')
    e(f's_lshl_b32 {s(S_T0)}, {s(S_UNIT)}, 12')
    e(f's_add_u32 {s(S_PBLD)}, {s(S_T0)}, {WS_PB}')
    e(f's_lshl_b32 {s(S_MBL)}, {s(S_UNIT)}, 7')
    e(f's_add_u32 {s(S_MBL)}, {s(S_MBL)}, {WS_MB}')
    e(f's_mov_b32 {s(S_MBC)}, {s(S_MBL)}')
    e(f's_add_u32 {s(S_MBN)}, {s(S_MBL)}, {MB_STRIDE}')
    e(f's_lshl_b32 {s(S_SH13)}, {s(S_H)}, 13')
    e(f's_lshl_b32 {s(S_T0)}, {s(S_W)}, 9')
    e(f's_add_u32 {s(S_KXM2)}, {s(S_T0)}, {L_MK}')
    e(f's_mov_b32 {s(S_MBR2)}, 0x40000000')
    e(f's_lshl_b32 {s(S_T0)}, {s(S_W)}, 11')
    e(f's_add_u32 {s(S_VXO)}, {s(S_T0)}, {s(S_SH13)}')
    e(f's_add_u32 {s(S_WRM)}, {s(S_VXO)}, {WS_KX + 32 * 8192}')
    e(f's_add_u32 {s(S_VXO)}, {s(S_VXO)}, {WS_VXT}')
    e(f's_add_u32 {s(S_KXM)}, {s(S_T0)}, {L_KX}')
    e(f's_lshr_b32 {s(S_T0)}, {s(S_W)}, 1')
    e(f's_lshl_b32 {s(S_T0)}, {s(S_T0)}, 12')
    e(f's_and_b32 {s(S_T1)}, {s(S_W)}, 1')
    e(f's_lshl_b32 {s(S_T1)}, {s(S_T1)}, 7')
    e(f's_add_u32 {s(S_KXW)}, {s(S_T0)}, {s(S_T1)}')
    e(f's_add_u32 {s(S_KXW)}, {s(S_KXW)}, {s(S_SH13)}')
    e(f's_add_u32 {s(S_KXW)}, {s(S_KXW)}, {WS_KX}')

    def kx_items():
        return [
            lambda: e(f's_mov_b32 m0, {s(S_KXM)}'),
            lambda: e(f'buffer_load_dwordx4 {v(V_KXG)}, {s(S_WS, 4)}, {s(S_KXW)} offen {ldfl} lds', tag='kx'),
            lambda: e(f's_add_u32 {s(S_T0)}, {s(S_KXW)}, 64'),
            lambda: e(f's_add_u32 m0, {s(S_KXM)}, 1024'),
            lambda: e(f'buffer_load_dwordx4 {v(V_KXG)}, {s(S_WS, 4)}, {s(S_T0)} offen {ldfl} lds', tag='kx'),
            lambda: e(f's_add_u32 {s(S_KXW)}, {s(S_KXW)}, {32 * 8192}'),
        ]

    def kv_wait(lab, t1):
        e(f's_cmp_ge_u32 {s(S_KVOK)}, {s(S_T2)}')
        e(f's_cbranch_scc1 {lab}_ok')
        e.cond_begin()
        e(f's_mov_b32 {s(S_T3)}, {WS_CTR + C_KV * 128}')
        e.label(f'{lab}_spin')
        e(f'buffer_load_dword {v(t1)}, {v(V_WA)}, {s(S_WS, 4)}, {s(S_T3)} offen sc1')
        e('s_waitcnt vmcnt(0)')
        e(f'v_cmp_le_u32 vcc, 32, {v(t1)}')
        e(f's_and_b32 {s(S_KVOK)}, vcc_lo, 0xffff')
        e(f's_ff0_i32_b32 {s(S_KVOK)}, {s(S_KVOK)}')
        e(f's_cmp_ge_u32 {s(S_KVOK)}, {s(S_T2)}')
        e(f's_cbranch_scc0 {lab}_spin')
        e.cond_end()
        e.label(f'{lab}_ok')

    def claim(b, n):
        for i in range(n):
            assert (b + i) in pool.free_, ('claim', b, n)
            pool.free_.remove(b + i)

    ACC = pool.must(16)
    init_wait(f'{name}_ibw', ACC)
    e(f's_lshl_b32 {s(S_MBL2)}, {s(S_UNIT)}, 7')
    e(f's_cmp_ge_u32 {s(S_UNIT)}, 64')
    e(f's_cselect_b32 {s(S_T0)}, 8192, 0')
    e(f's_add_u32 {s(S_MBL2)}, {s(S_MBL2)}, {s(S_T0)}')
    e(f's_add_u32 {s(S_MBL2)}, {s(S_MBL2)}, {s(S_NR)}')
    e(f's_mov_b32 {s(S_MBC2)}, {s(S_MBL2)}')
    e(f's_add_u32 {s(S_MBN2)}, {s(S_MBL2)}, 32768')
    e(f's_lshl_b32 {s(S_PING)}, {s(S_H)}, 7')
    e(f's_add_u32 {s(S_PING)}, {s(S_PING)}, {s(S_NR)}')
    e(f's_add_u32 {s(S_PING)}, {s(S_PING)}, {NR_PING}')
    e(f's_cmp_eq_u32 {s(S_W)}, 3')
    e(f's_cselect_b32 {s(S_PING)}, {s(S_PING)}, 0x40000000')
    e(f'buffer_load_dword {v(ACC)}, {v(ACC + 2)}, {s(S_DBG, 4)}, 0 offen offset:8 sc1')
    e('s_waitcnt vmcnt(0)')
    e(f'v_readfirstlane_b32 {s(S_MODE)}, {v(ACC)}')
    if mega:
        e(f's_mov_b32 {s(S_KVOK)}, 0')
        e(f's_mov_b32 {s(S_T2)}, 1')
        kv_wait(f'{name}_kv0', ACC)
    for j in range(0, 16, 2):
        e(f'v_mov_b64 {v(ACC + j, 2)}, 0')
    KMT = pool.must(2)
    e(f's_lshl_b32 {s(S_T1)}, {s(S_W)}, 9')
    e(f's_mov_b32 {s(S_VMO)}, 0x40000000')
    pre_slots = [sl for sl in order if place[sl][0] == 'lds'][:npre]
    PRE = [pool.alloc(8, 8, top=True) for _ in pre_slots]

    def pre_load():
        for sl, b in zip(pre_slots, PRE):
            loc = place[sl][1] * 2048
            e(f'ds_read_b128 {v(b, 4)}, {v(V_LDSW)} offset:{loc}')
            e(f'ds_read_b128 {v(b + 4, 4)}, {v(V_LDSW)} offset:{loc + 1024}')
    pre_load()
    for it in kx_items():
        it()
    e('s_waitcnt vmcnt(0) lgkmcnt(0)')
    e.vm = []
    e.lg = []
    if 'rt' in dbg:
        e('s_memrealtime s[98:99]')
        e('s_waitcnt lgkmcnt(0)')
    if 'tot' in dbg:
        e('s_memtime s[96:97]')
        e('s_waitcnt lgkmcnt(0)')
    if stamps:
        stamp_init()
    if slow:
        e(f's_cmp_lg_u32 {s(S_MODE)}, 0')
        e(f's_cbranch_scc1 {name}_slow')

    def k_out(KO):
        e(f'ds_read_b128 {v(KO, 4)}, {v(V_LANE16)} offset:{L_MK}', tag='ko')
        e(f'ds_read_b128 {v(KO + 4, 4)}, {v(V_LANE16)} offset:{L_MK + 1024}', tag='ko')
        e('s_waitcnt lgkmcnt(0)')
        e(f'buffer_store_dwordx4 {v(KO, 4)}, {v(V_LANE16)}, {s(S_WS, 4)}, {s(S_KMO)} offen {ostfl}')
        e(f'buffer_store_dwordx4 {v(KO + 4, 4)}, {v(V_LANE16)}, {s(S_WS, 4)}, {s(S_KMO)} offen offset:1024 {ostfl}')

    def body(sc, L):
        stamp_i = [0]
        call_i = [0]

        def stamp():
            call_i[0] += 1
            if stamps and (call_i[0] - 1) in stsel:
                e(f's_memtime {s(S_STAMP + 2 * stamp_i[0], 2)}')
                stamp_i[0] += 1

        e.label(L)
        e.hist = []
        e.vm = []
        e.lg = []
        stamp()
        G0 = pool.must(20)
        GM = pool.must(2)
        e(f'v_add_u32 {v(GM + 1)}, {s(S_GOF)}, {v(V_LANE16)}')
        if ackA:
            e('s_waitcnt vmcnt(0)')
        if b0:
            e('s_barrier')
        if adel:
            e(f's_sleep {adel}')
        e.label(f'{L}_pollA')
        e.hist = []
        wd()
        if stamps:
            e('s_add_u32 s27, s27, 0x10000')
        for i in range(3):
            e(f'buffer_load_dwordx4 {v(G0 + 4 * i, 4)}, {v(V_LANE16)}, {s(S_WS, 4)}, {s(S_MBP)} offen offset:{(0, 1024, 1536)[i]} sc1')
        for i in range(3):
            e(f's_waitcnt vmcnt({2 - i})')
            e(f'ds_write_b128 {v(GM + 1)}, {v(G0 + 4 * i, 4)} offset:{(0, 1024, 1536)[i]}')
        e(f'v_max3_u32 {v(GM)}, {v(G0)}, {v(G0 + 4)}, {v(G0 + 8)}')
        e(f'v_cmp_eq_u32 vcc, -1, {v(GM)}')
        e('s_mov_b64 exec, vcc')
        e(f's_cbranch_execnz {L}_pollA')
        e('s_mov_b64 exec, -1')
        e('s_waitcnt lgkmcnt(0)')
        e.label(f'{L}_gd')
        e('s_barrier')
        e.vm = []
        e.lg = []
        e.hist = []
        stamp()
        tl(0)
        pool.free(G0, 20)
        pool.free(GM, 2)

        loaded = {sl: b for sl, b in zip(pre_slots, PRE)}
        lds_pending = [sl for sl in order if place[sl][0] == 'lds' and sl not in loaded]
        st = dict(reserve=0)

        def pump_lds(cur_idx, force=False):
            while lds_pending and order.index(lds_pending[0]) <= cur_idx + la_lds:
                need = force and order.index(lds_pending[0]) <= cur_idx
                b = pool.alloc(8, 8, top=True, reserve=0 if need else st['reserve'])
                if b is None:
                    assert not need, 'no buffer for lds slot'
                    return
                lead = order.index(lds_pending[0]) - cur_idx
                if lead < 4 and cur_idx != 40:
                    print('; WARNING short lds lead', order.index(lds_pending[0]), lead)
                sl = lds_pending.pop(0)
                loc = place[sl][1] * 2048
                e(f'ds_read_b128 {v(b, 4)}, {v(V_LDSW)} offset:{loc}', tag=('lw', sl))
                e(f'ds_read_b128 {v(b + 4, 4)}, {v(V_LDSW)} offset:{loc + 1024}', tag=('lw', sl))
                loaded[sl] = b

        def smf(acc, af, sl):
            idx = order.index(sl)
            kind, loc = place[sl]
            if kind == 'reg':
                b = loc
            else:
                if sl not in loaded:
                    pump_lds(idx, True)
                b = loaded[sl]
                e.wait_lg(('lw', sl))
            e(f'v_smfmac_f32_16x16x64_bf16 {v(acc, 4)}, {v(af, 4)}, {u(b, 8)}, {v(V_IDX)}')
            if kind != 'reg':
                pool.free(b, 8)
            pump_lds(idx + 1)

        AF = {}
        afpos = [0]
        first_use = [min(i for i, o in enumerate(order[:40]) if o[0][1] == t) for t in range(10)]

        def af_pump(i):
            while afpos[0] < 10 and first_use[afpos[0]] - i <= afl:
                k = afpos[0]
                afpos[0] += 1
                b = AF[k] = pool.must(4)
                e(f'ds_read_b64_tr_b16 {v(b, 2)}, {v(V_AF)} offset:{1024 * k}', tag=('af', k))
                e(f'ds_read_b64_tr_b16 {v(b + 2, 2)}, {v(V_AF)} offset:{1024 * k + 512}', tag=('af', k))

        af_pump(0)
        accof = {'q': 0, 'k': 8}
        waited = set()

        def mk(i, sl):
            (m, t), tau = sl
            last = not any(o[0][1] == t for o in order[i + 1:40])

            def f():
                if t not in waited:
                    e.wait_lg(('af', t))
                    waited.add(t)
                smf(ACC + accof[m] + 4 * tau, AF[t], sl)
                if last:
                    pool.free(AF[t], 4)
                af_pump(i + 1)
            return f
        mf = [mk(i, sl) for i, sl in enumerate(order[:40])]
        run(mf[:wat], [], 0)
        if mega:
            e(f's_add_u32 {s(S_T2)}, {s(S_STEP)}, 5')
            e(f's_lshr_b32 {s(S_T2)}, {s(S_T2)}, 2')
            e(f's_min_u32 {s(S_T2)}, {s(S_T2)}, 16')
            kv_wait(f'{L}_kv', V_WT)
        VX = pool.must(8)
        e(f'buffer_load_dwordx4 {v(VX, 4)}, {v(V_LANE16)}, {s(S_WS, 4)}, {s(S_VXO)} offen {ldfl}', tag='vx')
        e(f'buffer_load_dwordx4 {v(VX + 4, 4)}, {v(V_LANE16)}, {s(S_WS, 4)}, {s(S_VXO)} offen offset:1024 {ldfl}', tag='vx')

        def warm_at(pos):
            for p_, what in warm:
                if p_ != pos:
                    continue
                isv = what in (1, 20, 21)
                if what >= 10:
                    e(f's_mov_b64 exec, {0xff00 if what & 1 else 0xff}')
                if isv:
                    e(f's_add_u32 {s(S_T0)}, {s(S_WRM)}, {WS_VXT - WS_KX}')
                e(f'buffer_load_dword {v(V_WT)}, {v(V_WA)}, {s(S_WS, 4)}, {s(S_T0 if isv else S_WRM)} offen', tag='warm')
                if what >= 10:
                    e('s_mov_b64 exec, -1')
        warm_at('a')
        e(f'buffer_store_dwordx2 {v(KMT, 2)}, {v(V_L8)}, {s(S_WS, 4)}, {s(S_VMO)} offen {ostfl}')
        if 'nomb2' not in dbg:
            e(f'buffer_store_dword {v(V_M1)}, {v(V_MBST)}, {s(S_WS, 4)}, {s(S_MBR2)} offen sc1')
        pool.free(KMT, 2)
        st['reserve'] = 99
        SM = pool.must(8, 8)
        ZQ = SM
        ZV = SM + 4
        kxb, sbuf = {}, {}

        def kx_read(f_, rsv=0):
            def g_():
                b = pool.alloc(4, reserve=rsv)
                if b is None:
                    return
                kxb[f_] = b
                e(f'ds_read_b128 {v(b, 4)}, {v(V_LANE16)} offset:{L_KX + f_ * 1024}', tag=('kx', f_))
            return g_

        def qm_read(kind, uu):
            def g_():
                b = sbuf[(kind, uu)] = pool.must(4)
                base = 0 if kind == 'q' else 2048
                for m in range(2):
                    e(f'ds_read_b64_tr_b16 {v(b + 2 * m, 2)}, {v(V_QKR)} offset:{base + uu * 512 + m * 256}', tag=('si', kind, uu))
            return g_

        def v_load():
            tl(1)
            e(f'buffer_load_dwordx2 {v(ZV, 2)}, {v(V_L8)}, {s(S_WS, 4)}, {s(S_VB)} offen sc1', tag='vm')
            warm_at('v')
        run(mf[wat:wat2], [], 0)
        warm_at('a2')
        run(mf[wat2:NQE - 4], [], 0)
        run(mf[NQE - 4:NQE], [kx_read(0), kx_read(4), kx_read(1), kx_read(5)], 1)
        late = mf[NQE:40]
        vxl = []
        qf = fold(ACC, ZQ) + fold(ACC + 4, ZQ + 1) + [
            lambda: e(f'ds_write2st64_b32 {v(V_QKW)}, {v(ZQ)}, {v(ZQ + 1)} offset0:0 offset1:1', tag='qw')]
        kf = fold(ACC + 8, ZQ + 2) + fold(ACC + 12, ZQ + 3) + [
            lambda: e(f'ds_write2st64_b32 {v(V_QKW)}, {v(ZQ + 2)}, {v(ZQ + 3)} offset0:8 offset1:9', tag='kw')]
        n1 = min(len(late), 1)
        n2 = min(len(late), 3)
        n3 = min(len(late), 6)
        run(late[:n1], vxl, 2)
        run(late[n1:n2], qf, 3)
        run(late[n2:n3], [], 1)
        stamp()
        e.wait_lg('qw')
        e('s_barrier')
        pool.free(ACC, 8)
        SX = ACC
        claim(SX, 8)
        qm_read('q', 0)()
        run(late[n3:], [qm_read('q', uu) for uu in range(1, 4)], 1)
        stamp()

        def sx(uu, ti):
            def f():
                f_ = uu + 4 * ti
                if f_ not in kxb:
                    kx_read(f_)()
                e.wait_lg(('si', 'q', uu))
                e.wait_lg(('kx', f_))
                cin = '0' if uu == 0 else v(SX + 4 * ti, 4)
                e(f'v_mfma_f32_16x16x32_bf16 {v(SX + 4 * ti, 4)}, {v(kxb[f_], 4)}, {v(sbuf[("q", uu)], 4)}, {cin}')
                pool.free(kxb[f_], 4)
            return f
        sxl = [sx(uu, ti) for uu in range(4) for ti in range(2)]
        run(sxl[:2], [], 0)
        run([], kf, 0)
        for f_ in (2, 6, 3, 7):
            kx_read(f_)()
        run(sxl[2:4], [], 0)
        if v_at == 0:
            v_load()
        e.wait_lg('kw')
        e('s_barrier')
        e(f's_cmp_eq_u32 {s(S_STEP)}, {nsteps - 1}')
        e(f's_cbranch_scc1 {name}_fin')
        pool.free(ACC + 8, 8)
        C0 = ACC + 8
        claim(C0, 4)
        qm_read('m', 0)()
        run(sxl[4:], [qm_read('m', uu) for uu in range(1, 4)], 1)
        if v_at == 1:
            v_load()
        M = SM
        for uu in range(4):
            e.wait_lg(('si', 'm', uu))
            cin = '0' if uu == 0 else v(C0, 4)
            e(f'v_mfma_f32_16x16x32_bf16 {v(C0, 4)}, {v(sbuf[("m", uu)], 4)}, {v(sbuf[("q", uu)], 4)}, {cin}')
            pool.free(sbuf[('m', uu)], 4)
            pool.free(sbuf[('q', uu)], 4)
        P = pool.must(4)
        OA = pool.must(12)
        if v_at == 2:
            v_load()
        e(f'v_max3_f32 {v(M)}, {v(SX)}, {v(SX + 1)}, {v(SX + 2)}')
        e(f'v_max3_f32 {v(M + 1)}, {v(SX + 3)}, {v(SX + 4)}, {v(SX + 5)}')
        e(f'v_max3_f32 {v(M)}, {v(M)}, {v(SX + 6)}, {v(SX + 7)}')
        stamp()
        OACC = [pool.must(8) for _ in range(noa)]
        zl = [(lambda b=b, j=j: e(f'v_mov_b64 {v(b + j, 2)}, 0')) for b in OACC for j in range(0, 8, 2)]

        def z(n=1):
            for _ in range(n):
                if zl:
                    zl.pop(0)()
        z(2)
        e(f'v_cndmask_b32 {v(C0)}, {v(C0 + 2)}, {v(C0)}, {s(S_MASKLO, 2)}')
        e(f'v_cndmask_b32 {v(C0 + 1)}, {v(C0 + 3)}, {v(C0 + 1)}, {s(S_MASKLO, 2)}')
        e(f'v_max3_f32 {v(M + 1)}, {v(M + 1)}, {v(C0)}, {v(C0 + 1)}')
        e(f'v_max_f32 {v(M)}, {v(M)}, {v(M + 1)}')
        e(f'v_max_f32 {v(M + 1)}, {v(M)}, {v(M + 1)}')
        z(2)
        e(f'v_permlane32_swap_b32 {v(M)}, {v(M + 1)}')
        e(f'v_max_f32 {v(M + 2)}, {v(M)}, {v(M + 1)}')
        e(f'v_max_f32 {v(M + 1)}, {v(M)}, {v(M + 1)}')
        z(2)
        e(f'v_permlane16_swap_b32 {v(M + 2)}, {v(M + 1)}')
        e(f'v_max_f32 {v(M)}, {v(M + 2)}, {v(M + 1)}')
        e(f'v_mul_f32 {v(M)}, {s(S_C1)}, {v(M)}')
        if v_at == 3:
            v_load()
        for j in range(0, 10, 2):
            e(f'v_pk_fma_f32 {v(SX + j, 2)}, {v(SX + j, 2)}, {s(S_C1, 2)}, {v(M, 2)} op_sel_hi:[1,1,0] neg_lo:[0,0,1] neg_hi:[0,0,1]')
        for j in range(8):
            e(f'v_exp_f32 {v(SX + j)}, {v(SX + j)}')
        for j in range(4):
            e(f'v_cvt_pk_bf16_f32 {v(P + j)}, {v(SX + 2 * j)}, {v(SX + 2 * j + 1)}')
        e.wait_vm('vx')
        e(f'v_exp_f32 {v(C0)}, {v(C0)}')
        e(f'v_mfma_f32_16x16x32_bf16 {v(OA + 8, 4)}, {v(V_ONES, 4)}, {v(P, 4)}, 0')
        e(f'v_exp_f32 {v(C0 + 1)}, {v(C0 + 1)}')
        e(f'v_mfma_f32_16x16x32_bf16 {v(OA, 4)}, {v(VX, 4)}, {v(P, 4)}, 0')
        e(f'v_cvt_pk_bf16_f32 {v(V_PM)}, {v(C0)}, {v(C0 + 1)}')
        e(f'v_cvt_pk_bf16_f32 {v(V_PM + 3)}, {v(C0)}, {v(C0 + 1)}')
        e(f'v_mfma_f32_16x16x32_bf16 {v(OA + 4, 4)}, {v(VX + 4, 4)}, {v(P, 4)}, 0')
        z(2)
        e(f'v_mfma_f32_16x16x16_bf16 {v(OA + 8, 4)}, {v(V_ONES, 2)}, {v(V_PM, 2)}, {v(OA + 8, 4)}')
        z(99)
        if 'nov' not in dbg:
            e.wait_vm('vm')
            e(f'v_cmp_eq_u32 vcc, -1, {v(ZV)}')
            e(f's_cbranch_vccnz {L}_fixv')
            e.label(f'{L}_pv2')
        e(f'v_mfma_f32_16x16x16_bf16 {v(OA, 4)}, {v(ZV, 2)}, {v(V_PM, 2)}, {v(OA, 4)}')
        e(f'v_mfma_f32_16x16x16_bf16 {v(OA + 4, 4)}, {v(ZV, 2)}, {v(V_PM + 2, 2)}, {v(OA + 4, 4)}')
        if hup:
            e(f'v_add_u32_e64 {v(SX)}, {s(S_STEP)}, 1')
            e(f'buffer_store_dword {v(SX)}, {v(V_MBST)}, {s(S_WS, 4)}, {s(S_PING)} offen sc1')
        pool.free(SX, 8)
        pool.free(VX, 8)
        pool.free(C0, 4)
        OF = pool.must(8)
        warm_at('b')
        st['reserve'] = 0
        pump_lds(40)
        e(f'v_rcp_f32 {v(M)}, {v(OA + 8)}')
        for j in range(0, 8, 2):
            e(f'v_pk_mul_f32 {v(OA + j, 2)}, {v(OA + j, 2)}, {v(M, 2)} op_sel_hi:[1,0]')
        for j in range(4):
            e(f'v_cvt_pk_bf16_f32 {v(P + j)}, {v(OA + 2 * j)}, {v(OA + 2 * j + 1)}')
        e(f'ds_write_b128 {v(V_OW)}, {v(P, 4)}', tag='ow')
        pool.free(OA, 12)
        sc_items = [f's_add_u32 {s(S_VXO)}, {s(S_VXO)}, {32 * 8192}',
                    f's_lshl_b32 {s(S_T0)}, {s(S_W)}, 9', f's_add_u32 {s(S_VMO)}, {s(S_KMO)}, {s(S_T0)}',
                    f's_add_u32 {s(S_MSL)}, {s(S_MSL)}, {MB_STRIDE}', f's_and_b32 {s(S_MSL)}, {s(S_MSL)}, {3 * MB_STRIDE}',
                    f's_add_u32 {s(S_MBP)}, {s(S_MSL)}, {s(S_MBB)}',
                    f's_lshl_b32 {s(S_T0)}, {s(S_MSL)}, 3', f's_add_u32 {s(S_VB)}, {s(S_VB0)}, {s(S_T0)}']
        for x in sc_items:
            e(x)
        e.wait_lg('ow')
        e('s_barrier')
        pool.free(P, 4)
        e(f'ds_read_b128 {v(OF, 4)}, {v(V_OR)}', tag='of0')
        e(f'ds_read_b128 {v(OF + 4, 4)}, {v(V_OR)} offset:1024', tag='of1')
        pump_lds(40)
        for f in kx_items():
            f()
        warm_at('c')
        e(f's_add_u32 {s(S_WRM)}, {s(S_WRM)}, {32 * 8192}')
        stamp()
        ZO = [SM, SM + 2, SM + 4]

        def finish(p):
            ac = OACC[p % noa]
            zz = ZO[p % 3]
            it = fold(ac, zz) + fold(ac + 4, zz + 1)
            if p + noa < 5:
                it += [(lambda j=j: e(f'v_mov_b64 {v(ac + j, 2)}, 0')) for j in range(0, 4, 2)]
            it += [lambda: e(f'v_permlane16_swap_b32 {v(zz)}, {v(zz + 1)}'),
                   lambda: e(f'buffer_store_dwordx2 {v(zz, 2)}, {v(V_PBST)}, {s(S_WS, 4)}, {s(S_PBST + p)} offen {sc}', tag='pst')]
            if p + noa < 5:
                it += [(lambda j=j: e(f'v_mov_b64 {v(ac + j, 2)}, 0')) for j in range(4, 8, 2)]
            else:
                it += [lambda: pool.free(ac, 8)]
            return it
        for p in range(5):
            ac = OACC[p % noa]
            mo = []
            for t in range(2):
                for tau in range(2):
                    def f(t=t, tau=tau):
                        if p == 0 and tau == 0:
                            e.wait_lg(f'of{t}')
                        smf(ac + 4 * tau, OF + 4 * t, (('o', t, p), tau))
                    mo.append(f)
            side = finish(p - 1) if p >= 1 else []
            run(mo[:1], [], 0)
            run(mo[1:], side, 3)
        for f in finish(4):
            f()
        stamp()
        tl(3)
        pool.free(OF, 8)
        pool.free(SM, 8)
        assert not lds_pending
        claim(ACC, 16)
        for b in PRE:
            claim(b, 8)
        claim(KMT, 2)
        e(f'v_add_u32 {v(KMT)}, {s(S_KXM2)}, {v(V_L8)}')
        e(f'ds_read_b64 {v(KMT, 2)}, {v(KMT)}')
        pre_load()
        for j in range(0, 16, 2):
            e(f'v_mov_b64 {v(ACC + j, 2)}, 0')
        for p in range(5):
            e(f's_xor_b32 {s(S_PBST + p)}, {s(S_PBST + p)}, {PB_STRIDE}')
        e(f's_cmp_ge_u32 {s(S_UNIT)}, 80')
        e(f's_cbranch_scc1 {L}_nored')
        RB = pool.must(16)
        RA = pool.must(4)
        TM = pool.must(2)
        if kdel:
            e.nop(kdel)

        def pb_loads():
            for i in range(4):
                e(f'buffer_load_dwordx4 {v(RB + 4 * i, 4)}, {v(V_LANE16)}, {s(S_WS, 4)}, {s(S_PBLD)} offen offset:{1024 * i} sc1', tag=('pb', i))

        MS = [12, 14, 20, 22]
        if pmask == 'load':
            for i in range(4):
                e(f's_mov_b64 {s(MS[i], 2)}, -1')
        e.label(f'{L}_pollK')
        e.hist = []
        wd()
        if stamps:
            e('s_add_u32 s27, s27, 1')
        if pmask == 'lane':
            pb_loads()
            for i in range(4):
                e(f's_waitcnt vmcnt({3 - i})')
                e(f'v_mfma_f32_16x16x32_bf16 {v(RA, 4)}, {v(V_SEL, 4)}, {v(RB + 4 * i, 4)}, {"0" if i == 0 else v(RA, 4)}')
                if i == 2:
                    e(f'v_max3_u32 {v(TM)}, {v(RB)}, {v(RB + 4)}, {v(RB + 8)}')
            e(f'v_max_u32 {v(TM)}, {v(TM)}, {v(RB + 12)}')
            e(f'v_mov_b32_dpp {v(TM + 1)}, {v(TM)} quad_perm:[0,0,0,0] row_mask:0xf bank_mask:0xf')
            e(f'v_cmp_eq_u32 vcc, -1, {v(TM + 1)}')
            e('s_mov_b64 exec, vcc')
            e(f's_cbranch_execnz {L}_pollK')
            e('s_mov_b64 exec, -1')
        else:
            for i in range(4):
                e(f's_mov_b64 exec, {s(MS[i], 2)}')
                e(f'buffer_load_dwordx4 {v(RB + 4 * i, 4)}, {v(V_LANE16)}, {s(S_WS, 4)}, {s(S_PBLD)} offen offset:{1024 * i} sc1')
            e('s_mov_b64 exec, -1')
            for i in range(4):
                e(f's_waitcnt vmcnt({3 - i})')
                e(f'v_mfma_f32_16x16x32_bf16 {v(RA, 4)}, {v(V_SEL, 4)}, {v(RB + 4 * i, 4)}, {"0" if i == 0 else v(RA, 4)}')
                e(f'v_mov_b32_dpp {v(TM + (i & 1))}, {v(RB + 4 * i)} quad_perm:[0,0,0,0] row_mask:0xf bank_mask:0xf')
                e(f'v_cmp_eq_u32 {s(MS[i], 2)}, -1, {v(TM + (i & 1))}')
            e(f's_or_b64 vcc, {s(MS[0], 2)}, {s(MS[1], 2)}')
            e(f's_or_b64 vcc, vcc, {s(MS[2], 2)}')
            e(f's_or_b64 vcc, vcc, {s(MS[3], 2)}')
            e(f's_cbranch_scc1 {L}_pollK')
        e.vm = []
        e(f'v_permlane32_swap_b32 {v(RA)}, {v(RA + 2)}')
        e(f'v_permlane32_swap_b32 {v(RA + 1)}, {v(RA + 3)}')
        e(f'v_add_f32_dpp {v(RA)}, {v(RA + 2)}, {v(RA)} row_ror:8 row_mask:0xf bank_mask:0xf')
        e(f'v_add_f32_dpp {v(RA + 1)}, {v(RA + 3)}, {v(RA + 1)} row_ror:8 row_mask:0xf bank_mask:0xf')
        e(f'v_cvt_pk_bf16_f32 {v(RA)}, {v(RA)}, {v(RA + 1)}')
        e(f'buffer_store_dword {v(RA)}, {v(V_MBST)}, {s(S_WS, 4)}, {s(S_MBN)} offen {sc}')
        if 'nomb2 ' not in dbg:
            e(f'buffer_store_dword {v(RA)}, {v(V_MBST)}, {s(S_WS, 4)}, {s(S_MBN2)} offen sc1')
        stamp()
        tl(2)
        e(f'buffer_store_dword {v(V_M1)}, {v(V_MBST)}, {s(S_WS, 4)}, {s(S_MBC)} offen {sc}')
        e(f'buffer_store_dword {v(V_M1)}, {v(V_L64)}, {s(S_WS, 4)}, {s(S_PBLD)} offen {sc}')
        e(f's_xor_b32 {s(S_PBLD)}, {s(S_PBLD)}, {PB_STRIDE}')
        e(f's_mov_b32 {s(S_MBC)}, {s(S_MBN)}')
        e(f's_mov_b32 {s(S_MBR2)}, {s(S_MBC2)}')
        e(f's_mov_b32 {s(S_MBC2)}, {s(S_MBN2)}')
        e(f's_add_u32 {s(S_T0)}, {s(S_MSL)}, {MB_STRIDE}')
        e(f's_and_b32 {s(S_T0)}, {s(S_T0)}, {3 * MB_STRIDE}')
        e(f's_add_u32 {s(S_MBN)}, {s(S_MBL)}, {s(S_T0)}')
        e(f's_lshl_b32 {s(S_T0)}, {s(S_T0)}, 1')
        e(f's_add_u32 {s(S_MBN2)}, {s(S_MBL2)}, {s(S_T0)}')
        e(f's_branch {L}_end')
        e.label(f'{L}_nored')
        if stamps and call_i[0] - 1 in stsel:
            e(f's_memtime {s(S_STAMP + 2 * (stamp_i[0] - 1), 2)}')
        if mega:
            step_signal(L)
        if gdel:
            e(f's_sleep {gdel}')
        e.label(f'{L}_end')
        e.hist = []
        e(f's_add_u32 {s(S_KMO)}, {s(S_KMO)}, {32 * 4096}')
        e(f's_add_u32 {s(S_STEP)}, {s(S_STEP)}, 1')
        tl_out(0, RB)
        e('s_waitcnt lgkmcnt(0)')
        for b, n in ((RB, 16), (RA, 4), (TM, 2)):
            pool.free(b, n)
        if stamps:
            stamp()
            stamp_acc(stamp_i[0])
        e(f's_branch {L}')
        if 'nov' in dbg:
            return
        e.label(f'{L}_fixv')
        wd()
        if stamps:
            e('s_add_u32 s26, s26, 63')
        e(f'buffer_load_dwordx2 {v(ZV, 2)}, {v(V_L8)}, {s(S_WS, 4)}, {s(S_VB)} offen sc1')
        e('s_waitcnt vmcnt(0)')
        e(f'v_cmp_eq_u32 vcc, -1, {v(ZV)}')
        e(f's_cbranch_vccnz {L}_fixv')
        e(f's_branch {L}_pv2')

    body('', f'{name}_fast')
    if slow:
        body('sc1', f'{name}_slow')
    e.label(f'{name}_fin')
    e.flush_hazards(16)
    e('s_waitcnt vmcnt(0) lgkmcnt(0)')
    if stamps:
        stamp_out()
    e('s_barrier')
    e(f's_cmp_lg_u32 {s(S_W)}, 1')
    e(f's_cbranch_scc1 {name}_exit')
    k_out(32)
    e('s_waitcnt vmcnt(0)')
    if mega:
        e(f's_mov_b32 {s(S_T2)}, 15')
        signal_block(V_WT)
    if 'rt' in dbg:
        e('s_memrealtime s[100:101]')
        e('s_waitcnt lgkmcnt(0)')
        e('v_mov_b32 v40, s96')
        e('v_mov_b32 v41, s98')
        e('v_mov_b32 v42, s100')
        e('v_mov_b32 v43, 0')
        e(f's_lshl_b32 {s(S_T0)}, {s(S_H)}, 6')
        e(f's_add_u32 {s(S_T0)}, {s(S_T0)}, 0x0F800000')
        e(f'buffer_store_dwordx3 v[40:42], v43, {s(S_WS, 4)}, {s(S_T0)} offen')
    if 'tot' in dbg:
        e('s_memtime s[98:99]')
        e('s_waitcnt lgkmcnt(0)')
        e('s_sub_u32 s98, s98, s96')
        e('v_mov_b32 v40, s98')
        e('v_mov_b32 v42, 0')
        e(f's_lshl_b32 {s(S_T0)}, {s(S_H)}, 6')
        e(f's_add_u32 {s(S_T0)}, {s(S_T0)}, 0x0F800000')
        e(f'buffer_store_dword v40, v42, {s(S_WS, 4)}, {s(S_T0)} offen')
    e.label(f'{name}_exit')
    e('s_endpgm')
    print(f'; chain10: n_reg={n_reg} n_lds={n_lds} pool peak={pool.peak} of {pool_end - NPERS}')

    H = f'{name}_helper'
    e.label(H)
    e.hist, e.vm, e.lg = [], [], []
    hunits = [('v', t) for t in range(10)]
    hplace = {}
    r = 96
    for un in hunits:
        for tau in range(2):
            hplace[(un, tau)] = ('reg', r)
            r += 8
    e(f'v_mov_b32 {v(V_M2)}, -1')
    e(f'v_mov_b32 {v(V_M2 + 1)}, -1')

    def helper_init():
        e(f's_cmp_lg_u32 {s(S_W)}, 0')
        e(f's_cbranch_scc1 {H}_nocal')
        e(f's_lshl_b32 {s(S_T0)}, {s(S_H)}, 7')
        e(f's_add_u32 {s(S_T0)}, {s(S_T0)}, {s(S_NR)}')
        e(f's_add_u32 s82, {s(S_T0)}, {NR_CAL}')
        e(f's_add_u32 s83, {s(S_T0)}, {NR_CAL + 8192}')
        e('s_mov_b32 s80, -1')
        e('s_mov_b32 s81, -1')
        e(f's_mov_b32 {s(S_T0)}, {ncal}')
        e.label(f'{H}_cal')
        for hf in range(2):
            e('s_memtime s[76:77]')
            e('s_waitcnt lgkmcnt(0)')
            e(f'buffer_store_dword {v(V_M1)}, {v(V_MBST)}, {s(S_WS, 4)}, {s(82 + hf)} offen sc1')
            e('s_waitcnt vmcnt(0)')
            e('s_memtime s[78:79]')
            e('s_waitcnt lgkmcnt(0)')
            e('s_sub_u32 s78, s78, s76')
            e(f's_min_u32 {s(80 + hf)}, {s(80 + hf)}, s78')
        e(f's_sub_u32 {s(S_T0)}, {s(S_T0)}, 1')
        e(f's_cmp_lg_u32 {s(S_T0)}, 0')
        e(f's_cbranch_scc1 {H}_cal')
        e('s_cmp_lt_u32 s81, s80')
        e('s_cselect_b32 s80, 0x10001, 1')
        e.label(f'{H}_nocal')
        e('s_barrier')
        for sl_ in range(4):
            for hf in range(2):
                e(f's_add_u32 {s(S_T0)}, {s(S_VB0)}, {sl_ * 131072 + hf * 8192}')
                e(f's_add_u32 {s(S_T0)}, {s(S_T0)}, {s(S_NR)}')
                e(f'buffer_store_dwordx2 {v(V_M2, 2)}, {v(V_L8)}, {s(S_WS, 4)}, {s(S_T0)} offen sc1')
        init_done(f'{H}_noib', 's80')
    load_weights(hunits, hplace, VT_QKV, 0, helper_init)
    e('s_barrier')
    init_wait(f'{H}_ibw', 32)
    if 'nohelp' in dbg:
        e('s_endpgm')
    e(f's_lshl_b32 {s(S_MDST)}, {s(S_W)}, 10')
    e(f's_add_u32 {s(S_MBB)}, {s(S_MDST)}, {s(S_NR)}')
    e(f's_mov_b32 {s(S_MBP)}, {s(S_MBB)}')
    e(f's_add_u32 {s(S_MBP + 1)}, {s(S_MBB)}, 4096')
    e(f's_cmp_lt_u32 {s(S_W)}, 2')
    e(f's_cselect_b32 {s(S_M9D)}, 2, 1')
    e(f's_cselect_b32 {s(S_MBL2)}, 4, 1')
    e(f's_lshl_b32 {s(S_M9D)}, {s(S_M9D)}, 12')
    e(f's_lshl_b32 {s(S_MBL2)}, {s(S_MBL2)}, 12')
    e(f's_add_u32 {s(S_MBP + 2)}, {s(S_MBB)}, {s(S_MBL2)}')
    e(f's_add_u32 {s(S_PING)}, {s(S_NR)}, {NR_PING}')
    e(f's_mov_b32 {s(S_MBR2)}, 0x40000000')
    GW, GW2 = V_OR, V_KXG
    e(f'v_add_u32 {v(GW)}, {s(S_MDST)}, {v(V_LANE16)}')
    e(f'v_add_u32 {v(GW2)}, {s(S_M9D)}, {v(GW)}')
    G0, GM, VA, AFH, ZH = 32, 44, 48, 56, 46
    S_HD, S_HP = 64, 60
    V_HF = V_QKW
    e(f's_mov_b32 {s(S_HD)}, {hd0}')
    V_PG = V_QKR
    e(f'v_and_b32 {v(V_PG)}, 0x1f0, {v(V_LANE16)}')
    e(f'v_lshlrev_b32 {v(V_PG)}, 3, {v(V_PG)}')
    e(f's_lshl_b32 {s(S_T0)}, {s(S_W)}, 2')
    e(f's_add_u32 {s(S_T0)}, {s(S_T0)}, {L_MQ}')
    e(f'v_mov_b32 {v(V_HF)}, {s(S_T0)}')
    e(f'v_mov_b32 {v(V_HF + 1)}, {L_MQ}')
    for j in range(0, 8, 2):
        e(f'v_mov_b64 {v(VA + j, 2)}, 0')
    if hstamps:
        stamp_init()
    hs = [0]

    def hstamp():
        if hstamps:
            e(f's_memtime {s(S_STAMP + 2 * hs[0], 2)}')
            hs[0] += 1
    L = f'{H}_loop'
    e.label(L)
    e.hist, e.vm, e.lg = [], [], []
    hstamp()
    if hup:
        e(f's_mov_b32 {s(S_T0)}, {s(S_HD)}')
        e(f's_mov_b32 {s(S_HP)}, 0')
        e.label(f'{L}_dly')
        e(f's_sub_u32 {s(S_T0)}, {s(S_T0)}, 1')
        e(f's_cbranch_scc0 {L}_dly')
    e.label(f'{L}_poll')
    wd()
    e(f's_add_u32 {s(S_HP)}, {s(S_HP)}, 1')
    if hstamps:
        e('s_add_u32 s27, s27, 1')
    for i in range(3):
        e(f'buffer_load_dwordx4 {v(G0 + 4 * i, 4)}, {v(V_LANE16)}, {s(S_WS, 4)}, {s(S_MBP + i)} offen sc1')
    e('s_waitcnt vmcnt(0)')
    e(f'v_max3_u32 {v(GM)}, {v(G0)}, {v(G0 + 4)}, {v(G0 + 8)}')
    e(f'v_cmp_eq_u32 vcc, -1, {v(GM)}')
    e('s_mov_b64 exec, vcc')
    e(f's_cbranch_execnz {L}_poll')
    e('s_mov_b64 exec, -1')
    e(f'ds_write_b128 {v(GW)}, {v(G0, 4)}')
    e(f'ds_write_b128 {v(GW)}, {v(G0 + 4, 4)} offset:4096')
    e(f'ds_write_b128 {v(GW2)}, {v(G0 + 8, 4)}')
    if hup:
        e(f'v_mov_b32 {v(GM)}, {s(S_HP)}')
        e(f'ds_write_b32 {v(V_HF)}, {v(GM)}')
    e('s_waitcnt lgkmcnt(0)')
    e('s_barrier')
    e.vm, e.lg = [], []
    hstamp()
    tl(0)
    for k in range(7):
        e(f'ds_read_b64_tr_b16 {v(AFH + 4 * k, 2)}, {v(V_AF)} offset:{1024 * k}', tag=('af', k))
        e(f'ds_read_b64_tr_b16 {v(AFH + 4 * k + 2, 2)}, {v(V_AF)} offset:{1024 * k + 512}', tag=('af', k))
    for t in range(10):
        e.wait_lg(('af', t))
        for tau in range(2):
            e(f'v_smfmac_f32_16x16x64_bf16 {v(VA + 4 * tau, 4)}, {v(AFH + 4 * t, 4)}, {u(hplace[(("v", t), tau)][1], 8)}, {v(V_IDX)}')
        if t < 3:
            k = t + 7
            e(f'ds_read_b64_tr_b16 {v(AFH + 4 * k, 2)}, {v(V_AF)} offset:{1024 * k}', tag=('af', k))
            e(f'ds_read_b64_tr_b16 {v(AFH + 4 * k + 2, 2)}, {v(V_AF)} offset:{1024 * k + 512}', tag=('af', k))
    for f in fold(VA, ZH) + fold(VA + 4, ZH + 1):
        f()
    e(f'buffer_store_dwordx2 {v(ZH, 2)}, {v(V_L8)}, {s(S_WS, 4)}, {s(S_VB)} offen sc1')
    e(f'buffer_store_dwordx2 {v(ZH, 2)}, {v(V_L8)}, {s(S_WS, 4)}, {s(S_VMO)} offen offset:2048 sc1')
    e(f'buffer_store_dwordx2 {v(V_M2, 2)}, {v(V_L8)}, {s(S_WS, 4)}, {s(S_MBR2)} offen sc1')
    e(f's_mov_b32 {s(S_MBR2)}, {s(S_VB)}')
    hstamp()
    tl(1)
    if hup:
        e(f'ds_read_b128 {v(G0, 4)}, {v(V_HF + 1)}')
        e('s_waitcnt lgkmcnt(0)')
        e(f'v_max3_u32 {v(G0)}, {v(G0)}, {v(G0 + 1)}, {v(G0 + 2)}')
        e(f'v_max_u32 {v(G0)}, {v(G0)}, {v(G0 + 3)}')
        e(f'v_readfirstlane_b32 {s(S_HP)}, {v(G0)}')
        e(f's_sub_u32 {s(S_T0)}, {s(S_HP)}, 1')
        e(f's_min_u32 {s(S_T0)}, {s(S_T0)}, 1')
        e(f's_mul_i32 {s(S_T0)}, {s(S_T0)}, {hup}')
        e(f's_add_u32 {s(S_HD)}, {s(S_HD)}, {s(S_T0)}')
        e(f's_sub_u32 {s(S_T1)}, {s(S_HD)}, {hdn}')
        e(f's_cselect_b32 {s(S_T1)}, {s(S_HD)}, {s(S_T1)}')
        e(f's_cmp_eq_u32 {s(S_HP)}, 1')
        e(f's_cselect_b32 {s(S_HD)}, {s(S_T1)}, {s(S_HD)}')
        e(f's_min_u32 {s(S_HD)}, {s(S_HD)}, 400')
        if hstamps:
            e(f's_mul_i32 s26, {s(S_HD)}, 63')
        if 'tl' in dbg:
            e(f's_lshl_b32 s88, {s(S_HP)}, 16')
            e(f's_or_b32 s88, s88, {s(S_HD)}')
    e('s_barrier')
    if mega:
        step_signal(L)
    e(f's_cmp_eq_u32 {s(S_STEP)}, {nsteps - 1}')
    e(f's_cbranch_scc1 {H}_fin')
    for j in range(0, 8, 2):
        e(f'v_mov_b64 {v(VA + j, 2)}, 0')
    if hup:
        e.label(f'{L}_ping')
        wd()
        e(f'buffer_load_dword {v(GM)}, {v(V_PG)}, {s(S_WS, 4)}, {s(S_PING)} offen sc1')
        e('s_waitcnt vmcnt(0)')
        e(f'v_cmp_ge_u32 vcc, {s(S_STEP)}, {v(GM)}')
        e(f's_cbranch_vccnz {L}_ping')
        tl(3)
    e(f's_add_u32 {s(S_STEP)}, {s(S_STEP)}, 1')
    tl_out(1, G0)
    e(f's_add_u32 {s(S_VMO)}, {s(S_VMO)}, {32 * 4096}')
    e(f's_add_u32 {s(S_MSL)}, {s(S_MSL)}, {MB_STRIDE}')
    e(f's_and_b32 {s(S_MSL)}, {s(S_MSL)}, {3 * MB_STRIDE}')
    e(f's_lshl_b32 {s(S_T0)}, {s(S_MSL)}, 1')
    e(f's_add_u32 {s(S_MBP)}, {s(S_MBB)}, {s(S_T0)}')
    e(f's_add_u32 {s(S_MBP + 1)}, {s(S_MBP)}, 4096')
    e(f's_add_u32 {s(S_MBP + 2)}, {s(S_MBP)}, {s(S_MBL2)}')
    e(f's_lshl_b32 {s(S_T0)}, {s(S_MSL)}, 3')
    e(f's_add_u32 {s(S_VB)}, {s(S_VB0)}, {s(S_T0)}')
    if hstamps:
        hstamp()
        stamp_acc(hs[0])
    e(f's_branch {L}')
    e.label(f'{H}_fin')
    e('s_waitcnt vmcnt(0) lgkmcnt(0)')
    if hstamps:
        stamp_out()
    if mega:
        e('s_barrier')
        e(f's_cmp_lg_u32 {s(S_W)}, 3')
        e(f's_cbranch_scc1 {H}_exit')
        e(f's_mov_b32 {s(S_T2)}, 15')
        signal_block(V_WT)
        e.label(f'{H}_exit')
    e('s_endpgm')


if __name__ == '__main__':
    import argparse
    ap = argparse.ArgumentParser()
    ap.add_argument('--out', default='chain_test.s')
    ap.add_argument('--stamps', action='store_true')
    ap.add_argument('--kw', default='')
    args = ap.parse_args()
    em = Em()
    kw = eval('dict(' + args.kw + ')')
    gen_chain(em, stamps=args.stamps, **kw)
    hdr = '; @launch kernel=chain_kernel grid=(256,1,1) block=(256,1,1) lds=163840\n'
    hdr += '.amdgcn_target "amdgcn-amd-amdhsa--gfx950"\n.text\n.globl chain_kernel\n'
    open(args.out, 'w').write(hdr + em.text() + kd('chain_kernel', 512, 256))
```

```python
from emit import *
from layout import *
from gen_chain import f32bits, kd
from gen_gemm import Gemm
import gen_all
from gen_all import start, load_srds, end, lane_wave, silu_inplace, wave_sum, rnd2, LOG2E, KA, SIZES
import gen_chain10 as gen_chainX
from gen_chain10 import far_jump

LOG = False
SLEEP = 8
SLEEPN = 1
DSLEEP = 24
WS_LOG = 0x0F400000
POOLS = [('wk_att', 32), ('wk_wo', 80), ('wk_up', 27), ('wk_dn', 30), ('wk_ln2', 16), ('wk_fin', 8)]
PRIM = [(0, 32, 'wk_att', 0), (32, 80, 'wk_wo', 0), (112, 27, 'wk_up', 0), (139, 30, 'wk_dn', 0), (169, 16, 'wk_ln2', 0), (185, 7, 'wk_fin', 0)]
SEC = [(0, 1, 'wk_fin', 7, 4)]
LOGBASE = {}
_o = 0
for _n, _c in POOLS:
    LOGBASE[_n] = _o
    _o += _c
NCH = 64
NMODA, NLN, NMODB = 40, 128, 80
NPRE = NMODA + NLN + NMODB
NTASK = NPRE + 768
D_TASK, D_MOD, D_MODB = 64, 128, 140
S_RANK, S_PB = 60, 30
SW = 29
S_W1, S_W3, S_W2, S_X, S_OUT, S_SEL = 64, 68, 72, 76, 80, 84
VL = 1
_bj = [0]
KNAME = ['']


def back_jump(e, label, sp=44):
    _bj[0] += 1
    here = f'Lbj{_bj[0]}'
    e(f's_getpc_b64 {s(sp, 2)}')
    e.label(here)
    e.raw(f'    s_add_u32 {s(sp)}, {s(sp)}, {label}-{here}')
    e.raw(f'    s_addc_u32 {s(sp + 1)}, {s(sp + 1)}, -1')
    e(f's_setpc_b64 {s(sp, 2)}')


def reset(e):
    e.hist = []
    e.vm = []
    e.lg = []


def dep_wait(e, lab, deps, sb):
    e(f's_cmp_lg_u32 {s(SW)}, 0')
    e(f's_cbranch_scc1 {lab}_dw')
    e(f's_lshl_b32 s38, {s(sb)}, 7')
    e('v_mov_b32 v2, 0')
    for i, (c, tgt) in enumerate(deps):
        e(f's_add_u32 s39, s38, {WS_CTR + c * 128}')
        e.label(f'{lab}_sp{i}')
        e('buffer_load_dword v3, v2, s[4:7], s39 offen sc1')
        e('s_waitcnt vmcnt(0)')
        e('v_readfirstlane_b32 s37, v3')
        e(f's_cmp_ge_u32 s37, {tgt}')
        e(f's_cbranch_scc1 {lab}_ok{i}')
        for _ in range(SLEEPN):
            e(f's_sleep {SLEEP}')
        e(f's_branch {lab}_sp{i}')
        e.label(f'{lab}_ok{i}')
    e.label(f'{lab}_dw')
    e('s_barrier')
    if LOG:
        e('s_memrealtime s[100:101]')
        e('s_waitcnt lgkmcnt(0)')
        e('s_mov_b32 s63, s100')
    reset(e)


def dbg_wait(e, lab, off_sgpr_or_int, tgt):
    e(f's_cmp_lg_u32 {s(SW)}, 0')
    e(f's_cbranch_scc1 {lab}_dw')
    e(f'v_mov_b32 v2, {off_sgpr_or_int}')
    e.label(f'{lab}_sp')
    e('buffer_load_dword v3, v2, s[8:11], 0 offen sc1')
    e('s_waitcnt vmcnt(0)')
    e('v_readfirstlane_b32 s37, v3')
    e(f's_cmp_ge_u32 s37, {tgt}')
    e(f's_cbranch_scc1 {lab}_dw')
    e(f's_sleep {DSLEEP}')
    e(f's_branch {lab}_sp')
    e.label(f'{lab}_dw')
    e('s_barrier')
    if LOG:
        e('s_memrealtime s[100:101]')
        e('s_waitcnt lgkmcnt(0)')
        e('s_mov_b32 s63, s100')
    reset(e)


def signal(e, lab, c, sb, loop, dbg_off=None):
    e('s_waitcnt vmcnt(0) lgkmcnt(0)')
    e('s_barrier')
    if LOG:
        e('s_memrealtime s[100:101]')
        e('s_waitcnt lgkmcnt(0)')
        e('v_mov_b32 v4, s63')
        e('v_mov_b32 v5, s100')
        e('v_mov_b32 v6, s61')
        e('v_mov_b32 v7, s28')
        e('v_mov_b32 v2, 0')
        e('s_lshl_b32 s38, s62, 4')
        e(f's_add_u32 s38, s38, {WS_LOG}')
        e('buffer_store_dwordx4 v[4:7], v2, s[4:7], s38 offen')
    if dbg_off is not None:
        e(f's_cmp_lg_u32 {s(SW)}, 0')
        e(f's_cbranch_scc1 {lab}_sg')
        e(f'v_mov_b32 v2, {dbg_off}')
        e('v_mov_b32 v3, 1')
        e('s_mov_b64 exec, 1')
        e('buffer_atomic_add v3, v2, s[8:11], 0 offen')
        e('s_mov_b64 exec, -1')
        e.label(f'{lab}_sg')
    elif c is not None:
        e(f's_cmp_lg_u32 {s(SW)}, 0')
        e(f's_cbranch_scc1 {lab}_sg')
        if isinstance(c, int):
            e(f's_lshl_b32 s38, {s(sb)}, 7')
            e(f's_add_u32 s38, s38, {WS_CTR + c * 128}')
        else:
            e(f's_add_u32 s38, {s(sb)}, {c}')
            e('s_lshl_b32 s38, s38, 7')
            e(f's_add_u32 s38, s38, {WS_CTR}')
        e('v_mov_b32 v2, 0')
        e('v_mov_b32 v3, 1')
        e('s_mov_b64 exec, 1')
        e('buffer_atomic_add v3, v2, s[4:7], s38 offen')
        e('s_mov_b64 exec, -1')
        e.label(f'{lab}_sg')
    back_jump(e, loop)


def mid(e):
    if LOG:
        e('s_memrealtime s[100:101]')
        e('s_waitcnt lgkmcnt(0)')
        e('s_mov_b32 s61, s100')


def h_qkv(e, loop):
    name = 'wk_qkv'
    e.label(name)
    reset(e)
    e('s_cmp_eq_u32 s23, 1')
    e(f's_cselect_b32 {s(S_SEL)}, s16, s12')
    e(f's_cselect_b32 {s(S_SEL + 1)}, s17, s13')
    e('s_cmp_eq_u32 s23, 2')
    e(f's_cselect_b32 {s(S_SEL)}, s20, {s(S_SEL)}')
    e(f's_cselect_b32 {s(S_SEL + 1)}, s21, {s(S_SEL + 1)}') if False else None
    return


def gen_workers(e, loop='wk_loop'):
    B, P1, P2 = 52, 53, 54
    e.label('wk_entry')
    e('s_mov_b32 s49, 2')
    reset(e)
    e(f'v_mov_b32 {v(VL)}, v16')
    load_srds(e, [('w1', S_W1), ('w3', S_W3), ('w2', S_W2), ('x', S_X), ('out', S_OUT)], tmp=88)
    e(f's_mov_b32 {s(S_SEL + 2)}, 5242880')
    e(f's_mov_b32 {s(S_SEL + 3)}, 0x20000')
    e(f's_mov_b32 {s(S_SEL)}, s12')
    e(f's_mov_b32 {s(S_SEL + 1)}, s13')
    e('s_mov_b32 s48, -1')
    e('s_mov_b32 s51, 0')

    def ticket(ctr, dst, lab):
        e(f's_cmp_lg_u32 {s(SW)}, 0')
        e(f's_cbranch_scc1 {lab}')
        e('v_mov_b32 v2, 0')
        e('v_mov_b32 v3, 1')
        e('s_mov_b64 exec, 1')
        e(f'buffer_atomic_add v3, v2, s[8:11], 0 offen offset:{D_TASK} sc0')
        e('s_waitcnt vmcnt(0)')
        e('ds_write_b32 v2, v3')
        e('s_mov_b64 exec, -1')
        e('s_waitcnt lgkmcnt(0)')
        e.label(lab)
        e('s_barrier')
        e('v_mov_b32 v2, 0')
        e('ds_read_b32 v3, v2')
        e('s_waitcnt lgkmcnt(0)')
        e(f'v_readfirstlane_b32 {s(dst)}, v3')
        e('s_barrier')
    e.label(loop)
    reset(e)
    e('s_cmp_lg_u32 s48, -1')
    e('s_cbranch_scc1 wk_pool')
    e('s_cmp_eq_u32 s49, 0')
    e('s_cbranch_scc1 wk_norec')
    e('s_sub_u32 s49, s49, 1')
    e('s_cmp_lg_u32 s49, 0')
    e('s_cbranch_scc1 wk_norec')
    e(f's_cmp_lg_u32 {s(SW)}, 0')
    e('s_cbranch_scc1 wk_rec1')
    e('v_mov_b32 v2, 0')
    e('buffer_load_dwordx2 v[4:5], v2, s[8:11], 0 offen sc1')
    e('s_waitcnt vmcnt(0)')
    e('ds_write_b64 v2, v[4:5]')
    e('s_waitcnt lgkmcnt(0)')
    e.label('wk_rec1')
    e('s_barrier')
    e('v_mov_b32 v2, 0')
    e('ds_read_b64 v[4:5], v2')
    e('s_waitcnt lgkmcnt(0)')
    e('v_readfirstlane_b32 s50, v4')
    e('v_readfirstlane_b32 s34, v5')
    e('s_barrier')
    e('s_min_u32 s34, s34, s50')
    e('s_cmp_ge_u32 s34, 32')
    e('s_cbranch_scc1 wk_norec')
    e('s_cmp_ge_u32 s50, 32')
    e('s_cselect_b32 s34, 4, 0')
    e(f'v_mov_b32 v16, {v(VL)}')
    back_jump(e, KNAME[0] + '_take')
    e.label('wk_norec')
    ticket(C_TASK, 50, 'wk_dq')
    e(f's_cmp_lt_u32 s50, {NTASK}')
    e('s_cbranch_scc1 wk_have')
    e(f's_sub_u32 {s(S_RANK)}, s50, {NTASK}')
    e('s_mov_b32 s48, 0')
    dbg_wait(e, 'wk_mb', D_MODB, NMODB)
    e('s_branch wk_pool')
    e.label('wk_have')
    if LOG:
        e('s_add_u32 s62, s50, 4400')
        e('s_memrealtime s[100:101]')
        e('s_waitcnt lgkmcnt(0)')
        e('s_mov_b32 s63, s100')
        e('s_mov_b32 s28, s100')
        e('s_mov_b32 s61, s100')
    e(f's_cmp_ge_u32 s50, {NMODA}')
    e('s_cbranch_scc1 wk_nm')
    e(f's_mov_b32 {s(P1)}, s50')
    far_jump(e, 'wk_mod', 44)
    e.label('wk_nm')
    e(f's_cmp_ge_u32 s50, {NMODA + NLN}')
    e('s_cbranch_scc1 wk_nl0')
    e(f's_sub_u32 {s(P1)}, s50, {NMODA}')
    far_jump(e, 'wk_ln1', 44)
    e.label('wk_nl0')
    e(f's_cmp_ge_u32 s50, {NPRE}')
    e('s_cbranch_scc1 wk_nl')
    e(f's_sub_u32 {s(P1)}, s50, {NLN}')
    far_jump(e, 'wk_mod', 44)
    e.label('wk_nl')
    e(f's_sub_u32 s50, s50, {NPRE}')
    if LOG:
        e('s_mov_b32 s62, s50')
    e('s_cmp_ge_u32 s50, 512')
    e('s_cbranch_scc1 wk_isq')
    e(f's_lshr_b32 {s(B)}, s50, 5')
    e(f's_and_b32 {s(P1)}, s50, 15')
    e(f's_bfe_u32 {s(P2)}, s50, 0x10004')
    e(f's_add_u32 {s(P2)}, {s(P2)}, 1')
    far_jump(e, 'wk_qkv', 44)
    e.label('wk_isq')
    e('s_sub_u32 s50, s50, 512')
    e(f's_lshr_b32 {s(B)}, s50, 4')
    e(f's_and_b32 {s(P1)}, s50, 15')
    e(f's_mov_b32 {s(P2)}, 0')
    far_jump(e, 'wk_qkv', 44)
    e.label('wk_pool')
    e('s_cmp_lt_u32 s48, 40')
    e('s_cbranch_scc1 wk_pool2')
    e('s_endpgm')
    e.label('wk_pool2')
    e(f's_lshr_b32 {s(B)}, s48, 1')
    e('s_add_u32 s48, s48, 1')
    if LOG:
        e('s_memrealtime s[100:101]')
        e('s_waitcnt lgkmcnt(0)')
        e('s_mov_b32 s63, s100')
        e('s_mov_b32 s28, s100')
        e('s_mov_b32 s61, s100')

    def go(k, lo, cnt, lab, first, lag):
        e(f's_sub_u32 {s(P1)}, {s(S_RANK)}, {lo}')
        e(f's_cmp_ge_u32 {s(P1)}, {cnt}')
        e(f's_cbranch_scc1 wk_g{k}')
        if lag:
            e(f's_sub_u32 {s(B)}, {s(B)}, {lag}')
        e(f's_cmp_ge_u32 {s(B)}, 16')
        e('s_cbranch_scc1 wk_pool')
        if first:
            e(f's_add_u32 {s(P1)}, {s(P1)}, {first}')
        if LOG:
            e(f's_mul_i32 s62, {s(B)}, 224')
            e(f's_add_u32 s62, s62, {s(P1)}')
            e(f's_add_u32 s62, s62, {768 + LOGBASE[lab]}')
        far_jump(e, lab, 44)
        e.label(f'wk_g{k}')
    e('s_bitcmp1_b32 s48, 0')
    e('s_cbranch_scc0 wk_sec')
    for k, (lo, cnt, lab, first) in enumerate(PRIM):
        go(k, lo, cnt, lab, first, 0)
    e('s_endpgm')
    e.label('wk_sec')
    for k, (lo, cnt, lab, first, lag) in enumerate(SEC):
        go(10 + k, lo, cnt, lab, first, lag)
    e('s_branch wk_pool')

    name = 'wk_qkv'
    e.label(name)
    reset(e)
    e(f's_cmp_eq_u32 {s(P2)}, 1')
    e(f's_cselect_b32 {s(S_SEL)}, s16, s12')
    e(f's_cselect_b32 {s(S_SEL + 1)}, s17, s13')
    e(f's_cmp_eq_u32 {s(P2)}, 2')
    e(f's_cselect_b32 {s(S_SEL)}, s20, {s(S_SEL)}')
    e(f's_cselect_b32 {s(S_SEL + 1)}, s21, {s(S_SEL + 1)}')
    G = Gemm(e, 128, [(S_SEL, 8192, 128), (S_SEL, 8192, 128)], 2, 2, 10, 1280, vbase=8, sbase=40, xfl='sc1')
    G.setup(VL, SW, 2)
    e(f's_mul_i32 s55, {s(B)}, {128 * 1280}')
    e(f's_add_u32 s55, s55, {WS_H1}')
    e(f's_lshl_b32 s56, {s(P1)}, 9')
    e('s_add_u32 s57, s56, 256')
    G.init_offsets(55, [56, 57])
    G.pre_w()
    e('s_cmp_lg_u32 s51, 0')
    e(f's_cbranch_scc1 {name}_ini')
    dbg_wait(e, name + '_a', D_MOD, NMODA)
    e('s_mov_b32 s51, 1')
    e.label(f'{name}_ini')
    dep_wait(e, name, [(C_LN1, 8)], B)
    e(f's_lshr_b32 s31, {s(SW)}, 1')
    e(f's_and_b32 s32, {s(SW)}, 1')
    e(f's_lshl_b32 s33, {s(B)}, 2')
    e('s_lshl_b32 s31, s31, 1')
    e('s_add_u32 s33, s33, s31')
    e('s_lshl_b32 s33, s33, 5')
    e(f's_lshl_b32 s34, {s(P1)}, 1')
    e('s_add_u32 s33, s33, s34')
    e('s_lshl_b32 s33, s33, 13')
    e(f's_cmp_lg_u32 {s(P2)}, 2')
    e(f's_cbranch_scc1 {name}_t0')
    far_jump(e, f'{name}_v', 98)
    e.label(f'{name}_t0')
    G.mainloop(4, ['T'] * G.NT, name + '_t', w_done=True)
    mid(e)
    e(f'v_and_b32 v2, 15, {v(VL)}')
    e(f'v_lshrrev_b32 v3, 4, {v(VL)}')
    e('v_lshlrev_b32 v3, 4, v3')
    e('v_lshl_add_u32 v2, v2, 8, v3')
    e('s_lshl_b32 s32, s32, 7')
    e('s_add_u32 s33, s33, s32')
    e(f's_mov_b32 s34, {WS_QX}')
    e(f's_mov_b32 s36, {C_Q}')
    e(f's_cmp_eq_u32 {s(P2)}, 1')
    e(f's_cselect_b32 s34, {WS_KX}, s34')
    e(f's_cselect_b32 s36, {C_KV}, s36')
    e('s_add_u32 s33, s33, s34')
    T = G.v_fx
    k = 0
    for mi in range(4):
        for p in range(2):
            for ub in range(2):
                t = T + 8 * (k % 4)
                k += 1
                for hf in range(2):
                    ac = G.accr(mi, p * 4 + ub * 2 + hf) - 256
                    for j in range(4):
                        e(f'v_accvgpr_read_b32 {v(t + 4 + j)}, {a(ac + j)}')
                    e(f'v_cvt_pk_bf16_f32 {v(t + 2 * hf)}, {v(t + 4)}, {v(t + 5)}')
                    e(f'v_cvt_pk_bf16_f32 {v(t + 2 * hf + 1)}, {v(t + 6)}, {v(t + 7)}')
                off = (mi >> 1) * 32 * 8192 + p * 8192 + (mi & 1) * 4096 + ub * 64
                e(f's_add_u32 s35, s33, {off}')
                e(f'buffer_store_dwordx4 {v(t, 4)}, v2, s[4:7], s35 offen sc1')
    signal(e, name + '_t', 's36', B, loop)
    e.label(f'{name}_v')
    reset(e)
    G.mainloop(4, ['N'] * G.NT, name + '_n', w_done=True)
    mid(e)
    e(f'v_lshlrev_b32 v2, 4, {v(VL)}')
    e('s_lshl_b32 s32, s32, 12')
    e('s_add_u32 s33, s33, s32')
    e(f's_add_u32 s33, s33, {WS_VXT}')
    k = 0
    for sg in range(2):
        for p in range(2):
            for a_ in range(4):
                t = T + 8 * (k % 4)
                k += 1
                for hf in range(2):
                    ac = G.accr(sg * 2 + hf, p * 4 + a_) - 256
                    for j in range(4):
                        e(f'v_accvgpr_read_b32 {v(t + 4 + j)}, {a(ac + j)}')
                    e(f'v_cvt_pk_bf16_f32 {v(t + 2 * hf)}, {v(t + 4)}, {v(t + 5)}')
                    e(f'v_cvt_pk_bf16_f32 {v(t + 2 * hf + 1)}, {v(t + 6)}, {v(t + 7)}')
                off = sg * 32 * 8192 + p * 8192 + a_ * 1024
                e(f's_add_u32 s35, s33, {off}')
                e(f'buffer_store_dwordx4 {v(t, 4)}, v2, s[4:7], s35 offen sc1')
    signal(e, name + '_n', C_KV, B, loop)

    name = 'wk_att'
    e.label(name)
    reset(e)
    dep_wait(e, name, [(C_KV, 32), (C_Q, 16)], B)
    e(f's_lshl_b32 s30, {s(B)}, 2')
    e(f's_add_u32 s30, s30, {s(SW)}')
    e('s_lshl_b32 s31, s30, 5')
    e(f's_add_u32 s31, s31, {s(P1)}')
    e(f'v_and_b32 v2, 15, {v(VL)}')
    e(f'v_lshrrev_b32 v3, 4, {v(VL)}')
    e('v_lshlrev_b32 v4, 4, v3')
    e('v_lshl_add_u32 v4, v2, 8, v4')
    e(f'v_lshlrev_b32 v5, 4, {v(VL)}')
    e('s_lshl_b32 s32, s31, 13')
    Q, KX_, KM_, VX_, VM_ = 16, 48, 80, 96, 128
    e(f's_add_u32 s33, s32, {WS_QX}')
    e('s_add_u32 s34, s33, 4096')
    e(f's_add_u32 s35, s32, {WS_KX}')
    e('s_add_u32 s36, s35, 4096')
    e('s_lshl_b32 s37, s31, 12')
    e(f's_add_u32 s37, s37, {WS_KM}')
    e(f'v_lshlrev_b32 v6, 3, {v(VL)}')
    e(f'v_bfe_u32 v10, {v(VL)}, 2, 2')
    e('v_lshl_add_u32 v10, v3, 2, v10')
    e(f'v_and_b32 v11, 1, {v(VL)}')
    e('v_lshlrev_b32 v11, 3, v11')
    e('v_lshl_add_u32 v10, v10, 4, v11')
    e(f's_lshl_b32 s38, {s(SW)}, 11')
    e('v_add_u32 v10, s38, v10')
    for uu in range(4):
        e(f'buffer_load_dwordx4 {v(Q + 4 * uu, 4)}, v4, s[4:7], s33 offen offset:{64 * uu} sc1', tag='a')
        e(f'buffer_load_dwordx4 {v(KX_ + 4 * uu, 4)}, v4, s[4:7], s35 offen offset:{64 * uu} sc1', tag='a')
    for uu in range(4):
        e(f'buffer_load_dwordx4 {v(Q + 16 + 4 * uu, 4)}, v4, s[4:7], s34 offen offset:{64 * uu} sc1', tag='b')
        e(f'buffer_load_dwordx4 {v(KX_ + 16 + 4 * uu, 4)}, v4, s[4:7], s36 offen offset:{64 * uu} sc1', tag='b')
    e(f's_add_u32 s39, s32, {WS_VXT}')
    e('s_add_u32 s40, s39, 4096')
    for et in range(8):
        e(f'buffer_load_dwordx4 {v(VX_ + 4 * et, 4)}, v5, s[4:7], {"s39" if et < 4 else "s40"} offen offset:{1024 * (et & 3)} sc1', tag='v')
    e('s_mov_b32 s43, s37')
    e('s_waitcnt vmcnt(0)')
    e('v_mov_b32 v12, v2')
    e('v_mov_b32 v13, v3')
    dep_wait(e, name + '2', [(C_CH, NCH)], B)
    e('v_mov_b32 v2, v12')
    e('v_mov_b32 v3, v13')
    e('s_mov_b32 s37, s43')
    e(f's_lshl_b32 m0, {s(SW)}, 11')
    e('buffer_load_dwordx4 v5, s[4:7], s37 offen sc1 lds', tag='k')
    e('buffer_load_dwordx4 v5, s[4:7], s37 offen offset:1024 sc1 lds', tag='k')
    for w in range(4):
        e(f'buffer_load_dwordx2 {v(VM_ + 2 * w, 2)}, v6, s[4:7], s37 offen offset:{2048 + 512 * w} sc1', tag='v')
    e.wait_vm('k')
    for uu in range(4):
        for m_ in range(2):
            e(f'ds_read_b64_tr_b16 {v(KM_ + 4 * uu + 2 * m_, 2)}, v10 offset:{uu * 512 + m_ * 256}')
    MK = 88
    e('v_lshlrev_b32 v7, 2, v3')
    for j in range(4):
        e(f'v_add_u32 v8, {j}, v7')
        e(f'v_cmp_le_u32 {s(MK + 2 * j, 2)}, v8, v2')
    e('s_mov_b32 s96, -1')
    e('s_mov_b32 s97, 0')
    cc = f32bits((128 ** -0.5) * LOG2E)
    e(f's_mov_b32 s98, {cc:#x}')
    e(f's_mov_b32 s99, {cc:#x}')
    ONES, NEG = 136, 140
    for j in range(4):
        e(f'v_mov_b32 {v(ONES + j)}, 0x3f803f80')
    e(f'v_mov_b32 {v(NEG)}, 0xf149f2ca')
    e('v_lshlrev_b32 v9, 4, v3')
    e('v_lshl_add_u32 v9, v2, 13, v9')
    e('s_lshl_b32 s41, s30, 18')
    e(f's_lshl_b32 s42, {s(P1)}, 8')
    e('s_add_u32 s41, s41, s42')
    e(f's_add_u32 s41, s41, {WS_O}')
    S, M, P, PM, OA = 144, 156, 160, 164, 168
    for tq in range(2):
        e.wait_vm('a' if tq == 0 else 'b')
        if tq == 0:
            e.wait_lg()
        for uu in range(4):
            q = v(Q + 16 * tq + 4 * uu, 4)
            c0 = (lambda r: '0' if uu == 0 else v(r, 4))
            e(f'v_mfma_f32_16x16x32_bf16 {v(S, 4)}, {v(KX_ + 4 * uu, 4)}, {q}, {c0(S)}')
            if tq == 1:
                e(f'v_mfma_f32_16x16x32_bf16 {v(S + 4, 4)}, {v(KX_ + 16 + 4 * uu, 4)}, {q}, {c0(S + 4)}')
            e(f'v_mfma_f32_16x16x32_bf16 {v(S + 8, 4)}, {v(KM_ + 4 * uu, 4)}, {q}, {c0(S + 8)}')
        dg = S + 4 * tq
        for j in range(4):
            e(f'v_cndmask_b32 {v(dg + j)}, {v(NEG)}, {v(dg + j)}, {s(MK + 2 * j, 2)}')
        C0 = S + 8
        e(f'v_cndmask_b32 {v(C0)}, {v(C0 + 2)}, {v(C0)}, s[96:97]')
        e(f'v_cndmask_b32 {v(C0 + 1)}, {v(C0 + 3)}, {v(C0 + 1)}, s[96:97]')
        vals = [S + j for j in range(4 * (tq + 1))] + [C0, C0 + 1]
        e(f'v_max3_f32 {v(M)}, {v(vals[0])}, {v(vals[1])}, {v(vals[2])}')
        i = 3
        while i + 1 < len(vals):
            e(f'v_max3_f32 {v(M)}, {v(M)}, {v(vals[i])}, {v(vals[i + 1])}')
            i += 2
        if i < len(vals):
            e(f'v_max_f32 {v(M)}, {v(M)}, {v(vals[i])}')
        for sw_ in ('v_permlane32_swap_b32', 'v_permlane16_swap_b32'):
            e(f'v_mov_b32 {v(M + 1)}, {v(M)}')
            e(f'{sw_} {v(M)}, {v(M + 1)}')
            e(f'v_max_f32 {v(M)}, {v(M)}, {v(M + 1)}')
        e(f'v_mul_f32 {v(M)}, s98, {v(M)}')
        for x in vals[::2]:
            e(f'v_pk_fma_f32 {v(x, 2)}, {v(x, 2)}, s[98:99], {v(M, 2)} op_sel_hi:[1,1,0] neg_lo:[0,0,1] neg_hi:[0,0,1]')
        for x in vals:
            e(f'v_exp_f32 {v(x)}, {v(x)}')
        for j in range(2 * (tq + 1)):
            e(f'v_cvt_pk_bf16_f32 {v(P + j)}, {v(S + 2 * j)}, {v(S + 2 * j + 1)}')
        if tq == 0:
            e(f'v_mov_b32 {v(P + 2)}, 0')
            e(f'v_mov_b32 {v(P + 3)}, 0')
            e(f'v_mov_b32 {v(PM + 1)}, 0')
            e(f'v_mov_b32 {v(PM + 2)}, 0')
        e(f'v_cvt_pk_bf16_f32 {v(PM)}, {v(C0)}, {v(C0 + 1)}')
        e(f'v_cvt_pk_bf16_f32 {v(PM + 3)}, {v(C0)}, {v(C0 + 1)}')
        e.wait_vm('v')
        if tq == 0:
            mid(e)
        Lr = OA + 32
        e(f'v_mfma_f32_16x16x32_bf16 {v(Lr, 4)}, {v(ONES, 4)}, {v(P, 4)}, 0')
        for et in range(8):
            e(f'v_mfma_f32_16x16x32_bf16 {v(OA + 4 * et, 4)}, {v(VX_ + 4 * et, 4)}, {v(P, 4)}, 0')
        e(f'v_mfma_f32_16x16x16_bf16 {v(Lr, 4)}, {v(ONES, 2)}, {v(PM, 2)}, {v(Lr, 4)}')
        for et in range(8):
            e(f'v_mfma_f32_16x16x16_bf16 {v(OA + 4 * et, 4)}, {v(VM_ + 2 * (et >> 1), 2)}, {v(PM + 2 * (et & 1), 2)}, {v(OA + 4 * et, 4)}')
        e(f'v_rcp_f32 {v(M)}, {v(Lr)}')
        if tq:
            e(f's_add_u32 s41, s41, {16 * 8192}')
        for ub in range(4):
            o = OA + 8 * ub
            for j in range(0, 8, 2):
                e(f'v_pk_mul_f32 {v(o + j, 2)}, {v(o + j, 2)}, {v(M, 2)} op_sel_hi:[1,0]')
            for j in range(4):
                e(f'v_cvt_pk_bf16_f32 {v(o + j)}, {v(o + 2 * j)}, {v(o + 2 * j + 1)}')
            e(f'buffer_store_dwordx4 {v(o, 4)}, v9, s[4:7], s41 offen offset:{64 * ub} sc1')
    signal(e, name, C_ATT, B, loop)

    def proj(name, wsrd, xoff, xstride, KT, nsplit, poff, dep, cdone):
        e.label(name)
        reset(e)
        e(f's_and_b32 s54, {s(P1)}, 1')
        e(f's_lshr_b32 s56, {s(P1)}, 1')
        mg = {8: (8192, 16), 3: (21846, 16)}[nsplit]
        e(f's_mul_i32 s55, s56, {mg[0]}')
        e(f's_lshr_b32 s55, s55, {mg[1]}')
        assert all((x * mg[0]) >> mg[1] == x // nsplit for x in range(5 * nsplit))
        e(f's_mul_i32 s57, s55, {nsplit}')
        e('s_sub_u32 s56, s56, s57')
        G = Gemm(e, 64, [(wsrd, 1280, 128)], 2, 2, KT, xstride, nstage=6, vbase=8, sbase=40, acc_base=128, xfl='sc1')
        G.setup(VL, SW, 2)
        e(f's_lshl_b32 s57, {s(B)}, 1')
        e('s_add_u32 s57, s57, s54')
        e(f's_mul_i32 s57, s57, {64 * xstride}')
        e(f's_mul_i32 s58, s56, {KT * 128}')
        e('s_add_u32 s57, s57, s58')
        e(f's_add_u32 s57, s57, {xoff}')
        e(f's_mul_i32 s58, s56, {KT * 64 * 1280}')
        e('s_lshl_b32 s59, s55, 8')
        e('s_add_u32 s58, s58, s59')
        G.init_offsets(57, [58])
        G.pre_w()
        dep_wait(e, name, [dep], B)
        G.mainloop(4, ['T'] * G.NT, name, w_done=True)
        mid(e)
        e(f'v_and_b32 v2, 15, {v(VL)}')
        e(f'v_lshrrev_b32 v3, 4, {v(VL)}')
        e('v_mul_u32_u24 v4, 2560, v2')
        e('v_lshl_add_u32 v4, v3, 4, v4')
        e(f's_mul_i32 s33, {s(B)}, {nsplit}')
        e('s_add_u32 s33, s33, s56')
        e('s_lshl_b32 s33, s33, 1')
        e('s_add_u32 s33, s33, s54')
        e('s_lshl_b32 s33, s33, 1')
        e(f's_lshr_b32 s31, {s(SW)}, 1')
        e('s_add_u32 s33, s33, s31')
        e(f's_mul_i32 s33, s33, {32 * 2560}')
        e(f's_and_b32 s32, {s(SW)}, 1')
        e('s_lshl_b32 s32, s32, 8')
        e('s_lshl_b32 s34, s55, 9')
        e('s_add_u32 s33, s33, s32')
        e('s_add_u32 s33, s33, s34')
        e(f's_add_u32 s33, s33, {poff}')
        for mi in range(2):
            for a_ in range(4):
                e(f'buffer_store_dwordx4 {v(G.accr(mi, a_), 4)}, v4, s[4:7], s33 offen offset:{64 * a_} sc1')
            if mi < 1:
                e(f's_add_u32 s33, s33, {16 * 2560}')
        signal(e, name, cdone, B, loop)

    proj('wk_wo', 24, WS_O, 8192, 8, 8, WS_PW, (C_ATT, 32), C_WO)
    proj('wk_dn', S_W2, WS_HM, 3456, 9, 3, WS_PD, (C_UP, 27), C_DN)

    def combine(name, nsplit, poff, gate_idx, res_is_x, do_ln, dep, cdone, RPW):
        e.label(name)
        reset(e)
        e(f's_lshl_b32 s30, {s(P1)}, 2')
        e(f's_add_u32 s30, s30, {s(SW)}')
        e(f's_mul_i32 s30, s30, {RPW}')
        e(f's_lshl_b32 s31, {s(B)}, 7')
        e('s_add_u32 s31, s31, s30')
        e('s_mul_i32 s31, s31, 1280')
        e(f'v_lshlrev_b32 v2, 2, {v(VL)}')
        e(f'v_lshlrev_b32 v3, 3, {v(VL)}')
        GT, SH, SC = 16, 26, 36
        e(f's_mov_b32 s32, {WS_MOD + gate_idx * 2560}')
        for i in range(5):
            e(f'buffer_load_dwordx2 {v(GT + 2 * i, 2)}, v3, s[4:7], s32 offen offset:{512 * i} sc1', tag='m')
        if do_ln:
            e(f's_mov_b32 s33, {WS_MOD + 3 * 2560}')
            e(f's_mov_b32 s34, {WS_MOD + 4 * 2560}')
            for i in range(5):
                e(f'buffer_load_dwordx2 {v(SH + 2 * i, 2)}, v3, s[4:7], s33 offen offset:{512 * i} sc1', tag='m')
                e(f'buffer_load_dwordx2 {v(SC + 2 * i, 2)}, v3, s[4:7], s34 offen offset:{512 * i} sc1', tag='m')
            e(f'v_bfe_u32 v4, {v(VL)}, 1, 2')
            e(f'v_bfe_u32 v5, {v(VL)}, 3, 1')
            e(f'v_and_b32 v6, 1, {v(VL)}')
            e('v_lshl_add_u32 v6, v5, 1, v6')
            e('v_lshl_add_u32 v6, v4, 2, v6')
            e(f'v_and_b32 v4, 48, {v(VL)}')
            e('v_add_u32 v6, v6, v4')
            e('v_lshlrev_b32 v12, 2, v6')
        e('s_waitcnt vmcnt(0)')
        dep_wait(e, name, [dep], B)
        e(f'v_lshlrev_b32 v2, 2, {v(VL)}')
        e(f'v_lshlrev_b32 v3, 3, {v(VL)}')
        RS_, PP = 48, 72
        rs = S_X if res_is_x else 4
        e(f's_add_u32 s35, s31, {0 if res_is_x else WS_X1}')
        for r in range(RPW):
            for i in range(5):
                if i == 0 and r == 2:
                    e('s_add_u32 s35, s35, 2560')
                e(f'buffer_load_dword {v(RS_ + 5 * r + i)}, v2, {s(rs, 4)}, s35 offen offset:{1280 * (r & 1) + 256 * i} {"" if res_is_x else "sc1"}', tag='r')
        e(f's_mul_i32 s36, {s(B)}, {nsplit * 128}')
        e('s_add_u32 s36, s36, s30')
        e('s_mul_i32 s36, s36, 2560')
        e(f's_add_u32 s36, s36, {poff}')
        for r in range(RPW):
            for k in range(nsplit):
                e(f's_add_u32 s37, s36, {(k * 128 + r) * 2560}')
                for i in range(5):
                    e(f'buffer_load_dwordx2 {v(PP + ((r * nsplit + k) * 5 + i) * 2, 2)}, v3, s[4:7], s37 offen offset:{512 * i} sc1', tag=('p', r, k))
        if do_ln:
            for j in range(10):
                e(f'v_add_f32 {v(SC + j)}, 1.0, {v(SC + j)}')
            for j in range(0, 10, 2):
                rnd2(e, SC + j, SC + j + 1, 7)
            e(f's_mov_b32 s38, {f32bits(1.0 / 640):#x}')
            e(f's_mov_b32 s39, {f32bits(1e-5):#x}')
            e(f's_add_u32 s40, s31, {WS_X1}')
            e(f's_add_u32 s41, s31, {WS_H2}')
        for r in range(RPW):
            X = PP + r * nsplit * 10
            for k in range(1, nsplit):
                e.wait_vm(('p', r, k))
                for j in range(0, 10, 2):
                    e(f'v_pk_add_f32 {v(X + j, 2)}, {v(X + j, 2)}, {v(X + k * 10 + j, 2)}')
            mid(e)
            for j in range(0, 10, 2):
                a_, b_ = X + j, X + j + 1
                rr = RS_ + 5 * r + j // 2
                rnd2(e, a_, b_, 7)
                e(f'v_mul_f32 {v(a_)}, {v(a_)}, {v(GT + j)}')
                e(f'v_mul_f32 {v(b_)}, {v(b_)}, {v(GT + j + 1)}')
                rnd2(e, a_, b_, 7)
                e(f'v_lshlrev_b32 v8, 16, {v(rr)}')
                e(f'v_and_b32 v9, 0xffff0000, {v(rr)}')
                e(f'v_add_f32 {v(a_)}, {v(a_)}, v8')
                e(f'v_add_f32 {v(b_)}, {v(b_)}, v9')
                e(f'v_cvt_pk_bf16_f32 {v(rr)}, {v(a_)}, {v(b_)}')
                if do_ln:
                    e(f'buffer_store_dword {v(rr)}, v2, s[4:7], s40 offen offset:{1280 * r + 128 * j} sc1')
                    e(f'v_lshlrev_b32 {v(a_)}, 16, {v(rr)}')
                    e(f'v_and_b32 {v(b_)}, 0xffff0000, {v(rr)}')
                else:
                    if j == 0 and r == 2:
                        e('s_add_u32 s31, s31, 2560')
                    e(f'buffer_store_dword {v(rr)}, v2, {s(S_OUT, 4)}, s31 offen offset:{1280 * (r & 1) + 128 * j}')
            if not do_ln:
                continue
            e(f'v_add_f32 v8, {v(X)}, {v(X + 1)}')
            for j in range(2, 10):
                e(f'v_add_f32 v8, v8, {v(X + j)}')
            wave_sum(e, 8, 9)
            e('v_mul_f32 v8, s38, v8')
            e('v_mov_b32 v10, 0')
            for j in range(10):
                e(f'v_sub_f32 v9, {v(X + j)}, v8')
                e('v_fmac_f32 v10, v9, v9')
            wave_sum(e, 10, 9)
            e('v_mul_f32 v10, s38, v10')
            rnd2(e, 8, 10, 7)
            e('v_add_f32 v10, s39, v10')
            rnd2(e, 10, 9, 7)
            e('v_sqrt_f32 v10, v10')
            rnd2(e, 10, 9, 7)
            e('v_rcp_f32 v10, v10')
            for j in range(0, 10, 2):
                a_, b_ = X + j, X + j + 1
                e(f'v_sub_f32 {v(a_)}, {v(a_)}, v8')
                e(f'v_sub_f32 {v(b_)}, {v(b_)}, v8')
                rnd2(e, a_, b_, 7)
                e(f'v_mul_f32 {v(a_)}, {v(a_)}, v10')
                e(f'v_mul_f32 {v(b_)}, {v(b_)}, v10')
                rnd2(e, a_, b_, 7)
                e(f'v_mul_f32 {v(a_)}, {v(a_)}, {v(SC + j)}')
                e(f'v_mul_f32 {v(b_)}, {v(b_)}, {v(SC + j + 1)}')
                rnd2(e, a_, b_, 7)
                e(f'v_add_f32 {v(a_)}, {v(a_)}, {v(SH + j)}')
                e(f'v_add_f32 {v(b_)}, {v(b_)}, {v(SH + j + 1)}')
                e(f'v_cvt_pk_bf16_f32 {v(a_)}, {v(a_)}, {v(b_)}')
                e(f'buffer_store_dword {v(a_)}, v12, s[4:7], s41 offen offset:{1280 * r + 128 * j} sc1')
        signal(e, name, cdone, B, loop)

    combine('wk_ln2', 8, WS_PW, 2, True, True, (C_WO, 80), C_LN2, 2)
    combine('wk_fin', 3, WS_PD, 5, False, False, (C_DN, 30), None, 4)

    name = 'wk_up'
    e.label(name)
    reset(e)
    G = Gemm(e, 128, [(S_W1, 3456, 64), (S_W3, 3456, 64)], 2, 2, 10, 1280, nstage=5, vbase=8, sbase=40, acc_base=128, xfl='sc1')
    G.setup(VL, SW, 2)
    e(f's_mul_i32 s55, {s(B)}, {128 * 1280}')
    e(f's_add_u32 s55, s55, {WS_H2}')
    e(f's_lshl_b32 s56, {s(P1)}, 7')
    e('s_mov_b32 s57, s56')
    G.init_offsets(55, [56, 57])
    G.pre_w()
    dep_wait(e, name, [(C_LN2, 16)], B)
    G.mainloop(4, ['T'] * G.NT, name, w_done=True)
    mid(e)
    e(f'v_and_b32 v2, 15, {v(VL)}')
    e(f'v_lshrrev_b32 v3, 4, {v(VL)}')
    e('v_mul_u32_u24 v4, 3456, v2')
    e('v_lshl_add_u32 v4, v3, 4, v4')
    e(f's_lshr_b32 s31, {s(SW)}, 1')
    e(f's_and_b32 s32, {s(SW)}, 1')
    e(f's_lshl_b32 s33, {s(B)}, 1')
    e('s_add_u32 s33, s33, s31')
    e(f's_mul_i32 s33, s33, {64 * 3456}')
    e('s_lshl_b32 s34, s32, 6')
    e('s_add_u32 s34, s34, s56')
    e('s_add_u32 s33, s33, s34')
    e(f's_add_u32 s33, s33, {WS_HM}')
    e(f's_mov_b32 s37, {f32bits(-LOG2E):#x}')
    T = G.v_fx
    for mi in range(4):
        o = T + 4 * mi
        for a_ in range(2):
            gv = G.accr(mi, a_)
            uv = G.accr(mi, 2 + a_)
            for h in range(2):
                g0, g1, u0, u1 = gv + 2 * h, gv + 2 * h + 1, uv + 2 * h, uv + 2 * h + 1
                rnd2(e, g0, g1, 6)
                rnd2(e, u0, u1, 6)
                silu_inplace(e, g0, 6, 37)
                silu_inplace(e, g1, 7, 37)
                rnd2(e, g0, g1, 6)
                e(f'v_mul_f32 {v(g0)}, {v(g0)}, {v(u0)}')
                e(f'v_mul_f32 {v(g1)}, {v(g1)}, {v(u1)}')
                e(f'v_cvt_pk_bf16_f32 {v(o + 2 * a_ + h)}, {v(g0)}, {v(g1)}')
        e(f'buffer_store_dwordx4 {v(o, 4)}, v4, s[4:7], s33 offen sc1')
        if mi < 3:
            e(f's_add_u32 s33, s33, {16 * 3456}')
    signal(e, name, C_UP, B, loop)


    name = 'wk_mod'
    e.label(name)
    reset(e)
    load_srds(e, [('c', 88), ('wmod', 92)], tmp=96)
    e(f's_lshl_b32 s30, {s(SW)}, 6')
    e(f'v_add_u32 v0, s30, {v(VL)}')
    e(f's_cmp_lg_u32 {s(P1)}, 0')
    e(f's_cbranch_scc1 {name}_nz')
    for j in range(4):
        e(f'v_mov_b32 {v(4 + j)}, 0')
    e('v_lshlrev_b32 v2, 4, v0')
    e(f's_mov_b32 s31, {WS_CTR}')
    for i in range(5):
        e('buffer_store_dwordx4 v[4:7], v2, s[4:7], s31 offen sc1')
        e('s_add_u32 s31, s31, 4096')
    e.label(f'{name}_nz')
    reset(e)
    e.nop(2)
    e('v_lshlrev_b32 v14, 1, v0')
    e('v_lshlrev_b32 v2, 2, v0')
    e(f's_mov_b32 s30, {f32bits(-LOG2E):#x}')
    for i in range(3):
        e(f'buffer_load_ushort {v(4 + i)}, v14, s[88:91], 0 offen offset:{512 * i}', tag='c')
    e('v_and_b32 v8, 3, v0')
    e('v_lshrrev_b32 v9, 2, v0')
    e('v_mul_u32_u24 v10, 7680, v9')
    e('v_lshl_add_u32 v10, v8, 4, v10')
    e(f's_lshl_b32 s31, {s(P1)}, 6')
    for i in range(10):
        if i:
            e(f's_add_u32 s31, s31, {64 * 7680}')
        e(f'buffer_load_dwordx4 {v(32 + 4 * i, 4)}, v10, s[92:95], s31 offen', tag=('w', i))
    e.wait_vm('c')
    for i in range(3):
        e(f'v_lshlrev_b32 {v(4 + i)}, 16, {v(4 + i)}')
        silu_inplace(e, 4 + i, 7, 30)
        e(f'v_cvt_pk_bf16_f32 {v(4 + i)}, {v(4 + i)}, {v(4 + i)}')
        e(f'v_lshlrev_b32 {v(4 + i)}, 16, {v(4 + i)}')
        e(f'ds_write_b32 v2, {v(4 + i)} offset:{1024 * i}')
    e.wait_lg()
    e('s_barrier')
    e('v_lshlrev_b32 v11, 2, v9')
    for i in range(10):
        e(f'ds_read_b32 {v(112 + i)}, v11 offset:{256 * i}')
    for j in range(8):
        e(f'v_mov_b32 {v(16 + j)}, 0')
    e.wait_lg()
    for i in range(10):
        e.wait_vm(('w', i))
        for d in range(4):
            w = 32 + 4 * i + d
            e(f'v_lshlrev_b32 v12, 16, {v(w)}')
            e(f'v_and_b32 v13, 0xffff0000, {v(w)}')
            e(f'v_fmac_f32 {v(16 + 2 * d)}, v12, {v(112 + i)}')
            e(f'v_fmac_f32 {v(17 + 2 * d)}, v13, {v(112 + i)}')
    e('v_lshlrev_b32 v12, 7, v9')
    e('v_lshl_add_u32 v12, v8, 5, v12')
    e('ds_write_b128 v12, v[16:19] offset:4096')
    e('ds_write_b128 v12, v[20:23] offset:4112')
    e.wait_lg()
    e('s_barrier')
    e(f's_cmp_lg_u32 {s(SW)}, 0')
    e(f's_cbranch_scc1 {name}_done')
    e(f'v_and_b32 v12, 31, {v(VL)}')
    e(f'v_lshrrev_b32 v13, 5, {v(VL)}')
    e('v_lshlrev_b32 v12, 2, v12')
    e('v_lshl_add_u32 v13, v13, 12, v12')
    for i in range(32):
        e(f'ds_read_b32 {v(32 + i)}, v13 offset:{4096 + 128 * i}')
    e.wait_lg()
    for i in range(1, 32):
        e(f'v_add_f32 v32, v32, {v(32 + i)}')
    e('v_mov_b32 v33, v32')
    e('v_permlane32_swap_b32 v32, v33')
    e('v_add_f32 v32, v32, v33')
    e('v_cvt_pk_bf16_f32 v32, v32, v32')
    e('v_lshlrev_b32 v32, 16, v32')
    e(f's_lshl_b32 s31, {s(P1)}, 7')
    e(f's_add_u32 s31, s31, {WS_MOD}')
    e('buffer_store_dword v32, v12, s[4:7], s31 offen sc1')
    e.label(f'{name}_done')
    e(f's_mov_b32 s36, {D_MODB}')
    e(f's_cmp_lt_u32 {s(P1)}, {NMODA}')
    e(f's_cselect_b32 s36, {D_MOD}, s36')
    signal(e, name, None, B, loop, dbg_off='s36')

    name = 'wk_ln1'
    e.label(name)
    reset(e)
    RPW = 4
    e(f's_lshl_b32 s30, {s(P1)}, 2')
    e(f's_add_u32 s30, s30, {s(SW)}')
    e(f's_mul_i32 s30, s30, {RPW * 1280}')
    e(f'v_lshlrev_b32 v4, 2, {v(VL)}')
    e('s_add_u32 s31, s30, 2560')
    for r in range(RPW):
        for i in range(5):
            e(f'buffer_load_dword {v(16 + 5 * r + i)}, v4, {s(S_X, 4)}, {"s30" if r < 2 else "s31"} offen offset:{(r & 1) * 1280 + 256 * i}', tag=('x', r))
    e(f'v_bfe_u32 v5, {v(VL)}, 1, 2')
    e(f'v_bfe_u32 v6, {v(VL)}, 3, 1')
    e(f'v_and_b32 v12, 1, {v(VL)}')
    e('v_lshl_add_u32 v12, v6, 1, v12')
    e('v_lshl_add_u32 v12, v5, 2, v12')
    e(f'v_and_b32 v5, 48, {v(VL)}')
    e('v_add_u32 v12, v12, v5')
    e('v_lshlrev_b32 v12, 2, v12')
    e(f's_mov_b32 s32, {f32bits(1.0 / 640):#x}')
    e(f's_mov_b32 s33, {f32bits(1e-5):#x}')
    for r in range(RPW):
        X = 64 + 10 * r
        e.wait_vm(('x', r))
        for i in range(5):
            e(f'v_lshlrev_b32 {v(X + 2 * i)}, 16, {v(16 + 5 * r + i)}')
            e(f'v_and_b32 {v(X + 2 * i + 1)}, 0xffff0000, {v(16 + 5 * r + i)}')
        e(f'v_add_f32 v8, {v(X)}, {v(X + 1)}')
        for j in range(2, 10):
            e(f'v_add_f32 v8, v8, {v(X + j)}')
        wave_sum(e, 8, 9)
        e('v_mul_f32 v8, s32, v8')
        e('v_mov_b32 v10, 0')
        for j in range(10):
            e(f'v_sub_f32 v9, {v(X + j)}, v8')
            e('v_fmac_f32 v10, v9, v9')
        wave_sum(e, 10, 9)
        e('v_mul_f32 v10, s32, v10')
        rnd2(e, 8, 10, 7)
        e('v_add_f32 v10, s33, v10')
        rnd2(e, 10, 9, 7)
        e('v_sqrt_f32 v10, v10')
        rnd2(e, 10, 9, 7)
        e('v_rcp_f32 v10, v10')
        for j in range(0, 10, 2):
            a_, b_ = X + j, X + j + 1
            e(f'v_sub_f32 {v(a_)}, {v(a_)}, v8')
            e(f'v_sub_f32 {v(b_)}, {v(b_)}, v8')
            rnd2(e, a_, b_, 7)
            e(f'v_mul_f32 {v(a_)}, {v(a_)}, v10')
            e(f'v_mul_f32 {v(b_)}, {v(b_)}, v10')
            rnd2(e, a_, b_, 7)
    dbg_wait(e, name, D_MOD, NMODA)
    e(f'v_lshlrev_b32 v3, 3, {v(VL)}')
    e(f's_mov_b32 s34, {WS_MOD}')
    e(f's_mov_b32 s35, {WS_MOD + 2560}')
    for i in range(5):
        e(f'buffer_load_dwordx2 {v(16 + 2 * i, 2)}, v3, s[4:7], s34 offen offset:{512 * i} sc1')
        e(f'buffer_load_dwordx2 {v(26 + 2 * i, 2)}, v3, s[4:7], s35 offen offset:{512 * i} sc1')
    e(f's_add_u32 s30, s30, {WS_H1}')
    e(f's_mul_i32 s38, {s(SW)}, 5120')
    e('v_add_u32 v12, s38, v12')
    e.wait_vm()
    for j in range(10):
        e(f'v_add_f32 {v(26 + j)}, 1.0, {v(26 + j)}')
    for j in range(0, 10, 2):
        rnd2(e, 26 + j, 27 + j, 7)
    for r in range(RPW):
        X = 64 + 10 * r
        for j in range(0, 10, 2):
            a_, b_ = X + j, X + j + 1
            e(f'v_mul_f32 {v(a_)}, {v(a_)}, {v(26 + j)}')
            e(f'v_mul_f32 {v(b_)}, {v(b_)}, {v(27 + j)}')
            rnd2(e, a_, b_, 7)
            e(f'v_add_f32 {v(a_)}, {v(a_)}, {v(16 + j)}')
            e(f'v_add_f32 {v(b_)}, {v(b_)}, {v(17 + j)}')
            e(f'v_cvt_pk_bf16_f32 {v(a_)}, {v(a_)}, {v(b_)}')
            e(f'ds_write_b32 v12, {v(a_)} offset:{r * 1280 + 128 * j}')
    e(f'v_lshlrev_b32 v13, 4, {v(VL)}')
    e('v_add_u32 v14, s38, v13')
    e.wait_lg()
    for i in range(5):
        e(f'ds_read_b128 {v(16 + 4 * i, 4)}, v14 offset:{1024 * i}')
    e('s_add_u32 s31, s30, 4096')
    e.wait_lg()
    for i in range(5):
        e(f'buffer_store_dwordx4 {v(16 + 4 * i, 4)}, v13, s[4:7], {"s30" if i < 4 else "s31"} offen offset:{1024 * (i & 3)} sc1')
    e(f's_lshr_b32 {s(B)}, {s(P1)}, 3')
    e('s_mov_b32 s51, 1')
    signal(e, name, C_LN1, B, loop)


NAME = 'adaLN_cond__memory_aug_recurrent_mem_tr__glu_gated_swiglu__prompt_kernel'
if __name__ == '__main__':
    import argparse
    ap = argparse.ArgumentParser()
    ap.add_argument('--out', default='mega.s')
    ap.add_argument('--kw', default='')
    ap.add_argument('--log', action='store_true')
    ap.add_argument('--sleep', type=int, default=6)
    ap.add_argument('--list', action='store_true')
    ap.add_argument('--dsleep', type=int, default=24)
    args = ap.parse_args()
    LOG = args.log
    SLEEP = args.sleep
    DSLEEP = args.dsleep
    e = Em()
    nm = 'mega_kernel' if args.list else NAME
    e.raw(f'.globl {nm}')
    KNAME[0] = nm
    reset(e)
    kw = eval('dict(' + args.kw + ')')
    gen_chainX.gen_chain(e, name=nm, mega='wk_entry', nmoda=NMODA, **kw)
    gen_workers(e)
    if args.list:
        hdr = f"; @launch kernel={nm} grid=(256,1,1) block=(256,1,1) lds=163840\n"
    else:
        hdr = "; @launch grid=(256,1,1) block=(256,1,1) lds=163840\n"
    hdr += '.amdgcn_target "amdgcn-amd-amdhsa--gfx950"\n.text\n'
    open(args.out, 'w').write(hdr + e.text() + kd(nm, 512, 256))
```

```python
from emit import *
from layout import *
from gen_chain import f32bits, kd
from gen_gemm import Gemm
import gen_all
from gen_all import start, load_srds, end, lane_wave, silu_inplace, wave_sum, rnd2, LOG2E, KA, SIZES
import gen_chain10 as gen_chainX
from gen_chain10 import far_jump

LOG = False
SLEEP = 8
SLEEPN = 1
DSLEEP = 24
WS_LOG = 0x0F400000
POOLS = [('wk_att', 32), ('wk_wo', 80), ('wk_up', 27), ('wk_dn', 30), ('wk_ln2', 16), ('wk_fin', 7)]
PRIM = [(0, 32, 'wk_att', 0), (32, 80, 'wk_wo', 0), (112, 27, 'wk_up', 0), (139, 30, 'wk_dn', 0), (169, 16, 'wk_ln2', 0), (185, 7, 'wk_fin', 0)]
SEC = []
LOGBASE = {}
_o = 0
for _n, _c in POOLS:
    LOGBASE[_n] = _o
    _o += _c
NCH = 64
NMODA, NLN, NMODB = 40, 128, 80
NPRE = NMODA + NLN + NMODB
NTASK = NPRE + 768
D_TASK, D_MOD, D_MODB = 64, 128, 140
S_RANK, S_PB = 60, 30
SW = 29
S_W1, S_W3, S_W2, S_X, S_OUT, S_SEL = 64, 68, 72, 76, 80, 84
VL = 1
_bj = [0]
KNAME = ['']


def back_jump(e, label, sp=44):
    _bj[0] += 1
    here = f'Lbj{_bj[0]}'
    e(f's_getpc_b64 {s(sp, 2)}')
    e.label(here)
    e.raw(f'    s_add_u32 {s(sp)}, {s(sp)}, {label}-{here}')
    e.raw(f'    s_addc_u32 {s(sp + 1)}, {s(sp + 1)}, -1')
    e(f's_setpc_b64 {s(sp, 2)}')


def reset(e):
    e.hist = []
    e.vm = []
    e.lg = []


def dep_wait(e, lab, deps, sb):
    e(f's_cmp_lg_u32 {s(SW)}, 0')
    e(f's_cbranch_scc1 {lab}_dw')
    e(f's_lshl_b32 s38, {s(sb)}, 7')
    e('v_mov_b32 v2, 0')
    for i, (c, tgt) in enumerate(deps):
        e(f's_add_u32 s39, s38, {WS_CTR + c * 128}')
        e.label(f'{lab}_sp{i}')
        e('buffer_load_dword v3, v2, s[4:7], s39 offen sc1')
        e('s_waitcnt vmcnt(0)')
        e('v_readfirstlane_b32 s37, v3')
        e(f's_cmp_ge_u32 s37, {tgt}')
        e(f's_cbranch_scc1 {lab}_ok{i}')
        for _ in range(SLEEPN):
            e(f's_sleep {SLEEP}')
        e(f's_branch {lab}_sp{i}')
        e.label(f'{lab}_ok{i}')
    e.label(f'{lab}_dw')
    e('s_barrier')
    if LOG:
        e('s_memrealtime s[100:101]')
        e('s_waitcnt lgkmcnt(0)')
        e('s_mov_b32 s63, s100')
    reset(e)


def dbg_wait(e, lab, off_sgpr_or_int, tgt):
    e(f's_cmp_lg_u32 {s(SW)}, 0')
    e(f's_cbranch_scc1 {lab}_dw')
    e(f'v_mov_b32 v2, {off_sgpr_or_int}')
    e.label(f'{lab}_sp')
    e('buffer_load_dword v3, v2, s[8:11], 0 offen sc1')
    e('s_waitcnt vmcnt(0)')
    e('v_readfirstlane_b32 s37, v3')
    e(f's_cmp_ge_u32 s37, {tgt}')
    e(f's_cbranch_scc1 {lab}_dw')
    e(f's_sleep {DSLEEP}')
    e(f's_branch {lab}_sp')
    e.label(f'{lab}_dw')
    e('s_barrier')
    if LOG:
        e('s_memrealtime s[100:101]')
        e('s_waitcnt lgkmcnt(0)')
        e('s_mov_b32 s63, s100')
    reset(e)


def signal(e, lab, c, sb, loop, dbg_off=None):
    e('s_waitcnt vmcnt(0) lgkmcnt(0)')
    e('s_barrier')
    if LOG:
        e('s_memrealtime s[100:101]')
        e('s_waitcnt lgkmcnt(0)')
        e('v_mov_b32 v4, s63')
        e('v_mov_b32 v5, s100')
        e('v_mov_b32 v6, s61')
        e('v_mov_b32 v7, s28')
        e('v_mov_b32 v2, 0')
        e('s_lshl_b32 s38, s62, 4')
        e(f's_add_u32 s38, s38, {WS_LOG}')
        e('buffer_store_dwordx4 v[4:7], v2, s[4:7], s38 offen')
    if dbg_off is not None:
        e(f's_cmp_lg_u32 {s(SW)}, 0')
        e(f's_cbranch_scc1 {lab}_sg')
        e(f'v_mov_b32 v2, {dbg_off}')
        e('v_mov_b32 v3, 1')
        e('s_mov_b64 exec, 1')
        e('buffer_atomic_add v3, v2, s[8:11], 0 offen')
        e('s_mov_b64 exec, -1')
        e.label(f'{lab}_sg')
    elif c is not None:
        e(f's_cmp_lg_u32 {s(SW)}, 0')
        e(f's_cbranch_scc1 {lab}_sg')
        if isinstance(c, int):
            e(f's_lshl_b32 s38, {s(sb)}, 7')
            e(f's_add_u32 s38, s38, {WS_CTR + c * 128}')
        else:
            e(f's_add_u32 s38, {s(sb)}, {c}')
            e('s_lshl_b32 s38, s38, 7')
            e(f's_add_u32 s38, s38, {WS_CTR}')
        e('v_mov_b32 v2, 0')
        e('v_mov_b32 v3, 1')
        e('s_mov_b64 exec, 1')
        e('buffer_atomic_add v3, v2, s[4:7], s38 offen')
        e('s_mov_b64 exec, -1')
        e.label(f'{lab}_sg')
    back_jump(e, loop)


def mid(e):
    if LOG:
        e('s_memrealtime s[100:101]')
        e('s_waitcnt lgkmcnt(0)')
        e('s_mov_b32 s61, s100')


def h_qkv(e, loop):
    name = 'wk_qkv'
    e.label(name)
    reset(e)
    e('s_cmp_eq_u32 s23, 1')
    e(f's_cselect_b32 {s(S_SEL)}, s16, s12')
    e(f's_cselect_b32 {s(S_SEL + 1)}, s17, s13')
    e('s_cmp_eq_u32 s23, 2')
    e(f's_cselect_b32 {s(S_SEL)}, s20, {s(S_SEL)}')
    e(f's_cselect_b32 {s(S_SEL + 1)}, s21, {s(S_SEL + 1)}') if False else None
    return


def gen_workers(e, loop='wk_loop'):
    B, P1, P2 = 52, 53, 54
    e.label('wk_entry')
    e('s_mov_b32 s49, 2')
    reset(e)
    e(f'v_mov_b32 {v(VL)}, v16')
    load_srds(e, [('w1', S_W1), ('w3', S_W3), ('w2', S_W2), ('x', S_X), ('out', S_OUT)], tmp=88)
    e(f's_mov_b32 {s(S_SEL + 2)}, 5242880')
    e(f's_mov_b32 {s(S_SEL + 3)}, 0x20000')
    e(f's_mov_b32 {s(S_SEL)}, s12')
    e(f's_mov_b32 {s(S_SEL + 1)}, s13')
    e('s_mov_b32 s48, -1')
    e('s_mov_b32 s51, 0')

    def ticket(ctr, dst, lab):
        e(f's_cmp_lg_u32 {s(SW)}, 0')
        e(f's_cbranch_scc1 {lab}')
        e('v_mov_b32 v2, 0')
        e('v_mov_b32 v3, 1')
        e('s_mov_b64 exec, 1')
        e(f'buffer_atomic_add v3, v2, s[8:11], 0 offen offset:{D_TASK} sc0')
        e('s_waitcnt vmcnt(0)')
        e('ds_write_b32 v2, v3')
        e('s_mov_b64 exec, -1')
        e('s_waitcnt lgkmcnt(0)')
        e.label(lab)
        e('s_barrier')
        e('v_mov_b32 v2, 0')
        e('ds_read_b32 v3, v2')
        e('s_waitcnt lgkmcnt(0)')
        e(f'v_readfirstlane_b32 {s(dst)}, v3')
        e('s_barrier')
    e.label(loop)
    reset(e)
    e('s_cmp_lg_u32 s48, -1')
    e('s_cbranch_scc1 wk_pool')
    e('s_cmp_eq_u32 s49, 0')
    e('s_cbranch_scc1 wk_norec')
    e('s_sub_u32 s49, s49, 1')
    e('s_cmp_lg_u32 s49, 0')
    e('s_cbranch_scc1 wk_norec')
    e(f's_cmp_lg_u32 {s(SW)}, 0')
    e('s_cbranch_scc1 wk_rec1')
    e('v_mov_b32 v2, 0')
    e('buffer_load_dwordx2 v[4:5], v2, s[8:11], 0 offen sc1')
    e('s_waitcnt vmcnt(0)')
    e('ds_write_b64 v2, v[4:5]')
    e('s_waitcnt lgkmcnt(0)')
    e.label('wk_rec1')
    e('s_barrier')
    e('v_mov_b32 v2, 0')
    e('ds_read_b64 v[4:5], v2')
    e('s_waitcnt lgkmcnt(0)')
    e('v_readfirstlane_b32 s50, v4')
    e('v_readfirstlane_b32 s34, v5')
    e('s_barrier')
    e('s_min_u32 s34, s34, s50')
    e('s_cmp_ge_u32 s34, 32')
    e('s_cbranch_scc1 wk_norec')
    e('s_cmp_ge_u32 s50, 32')
    e('s_cselect_b32 s34, 4, 0')
    e(f'v_mov_b32 v16, {v(VL)}')
    back_jump(e, KNAME[0] + '_take')
    e.label('wk_norec')
    ticket(C_TASK, 50, 'wk_dq')
    e(f's_cmp_lt_u32 s50, {NTASK}')
    e('s_cbranch_scc1 wk_have')
    e(f's_sub_u32 {s(S_RANK)}, s50, {NTASK}')
    e('s_mov_b32 s48, 0')
    dbg_wait(e, 'wk_mb', D_MODB, NMODB)
    e('s_branch wk_pool')
    e.label('wk_have')
    if LOG:
        e('s_add_u32 s62, s50, 4400')
        e('s_memrealtime s[100:101]')
        e('s_waitcnt lgkmcnt(0)')
        e('s_mov_b32 s63, s100')
        e('s_mov_b32 s28, s100')
        e('s_mov_b32 s61, s100')
    e(f's_cmp_ge_u32 s50, {NMODA}')
    e('s_cbranch_scc1 wk_nm')
    e(f's_mov_b32 {s(P1)}, s50')
    far_jump(e, 'wk_mod', 44)
    e.label('wk_nm')
    e(f's_cmp_ge_u32 s50, {NMODA + NLN}')
    e('s_cbranch_scc1 wk_nl0')
    e(f's_sub_u32 {s(P1)}, s50, {NMODA}')
    far_jump(e, 'wk_ln1', 44)
    e.label('wk_nl0')
    e(f's_cmp_ge_u32 s50, {NPRE}')
    e('s_cbranch_scc1 wk_nl')
    e(f's_sub_u32 {s(P1)}, s50, {NLN}')
    far_jump(e, 'wk_mod', 44)
    e.label('wk_nl')
    e(f's_sub_u32 s50, s50, {NPRE}')
    if LOG:
        e('s_mov_b32 s62, s50')
    e('s_cmp_ge_u32 s50, 512')
    e('s_cbranch_scc1 wk_isq')
    e(f's_lshr_b32 {s(B)}, s50, 5')
    e(f's_and_b32 {s(P1)}, s50, 15')
    e(f's_bfe_u32 {s(P2)}, s50, 0x10004')
    e(f's_add_u32 {s(P2)}, {s(P2)}, 1')
    far_jump(e, 'wk_qkv', 44)
    e.label('wk_isq')
    e('s_sub_u32 s50, s50, 512')
    e(f's_lshr_b32 {s(B)}, s50, 4')
    e(f's_and_b32 {s(P1)}, s50, 15')
    e(f's_mov_b32 {s(P2)}, 0')
    far_jump(e, 'wk_qkv', 44)
    e.label('wk_pool')
    e('s_cmp_lt_u32 s48, 40')
    e('s_cbranch_scc1 wk_pool2')
    e('s_endpgm')
    e.label('wk_pool2')
    e(f's_lshr_b32 {s(B)}, s48, 1')
    e('s_add_u32 s48, s48, 1')
    if LOG:
        e('s_memrealtime s[100:101]')
        e('s_waitcnt lgkmcnt(0)')
        e('s_mov_b32 s63, s100')
        e('s_mov_b32 s28, s100')
        e('s_mov_b32 s61, s100')

    def go(k, lo, cnt, lab, first, lag):
        e(f's_sub_u32 {s(P1)}, {s(S_RANK)}, {lo}')
        e(f's_cmp_ge_u32 {s(P1)}, {cnt}')
        e(f's_cbranch_scc1 wk_g{k}')
        if lag:
            e(f's_sub_u32 {s(B)}, {s(B)}, {lag}')
        e(f's_cmp_ge_u32 {s(B)}, 16')
        e('s_cbranch_scc1 wk_pool')
        if first:
            e(f's_add_u32 {s(P1)}, {s(P1)}, {first}')
        if LOG:
            e(f's_mul_i32 s62, {s(B)}, 224')
            e(f's_add_u32 s62, s62, {s(P1)}')
            e(f's_add_u32 s62, s62, {768 + LOGBASE[lab]}')
        far_jump(e, lab, 44)
        e.label(f'wk_g{k}')
    e('s_bitcmp1_b32 s48, 0')
    e('s_cbranch_scc0 wk_sec')
    for k, (lo, cnt, lab, first) in enumerate(PRIM):
        go(k, lo, cnt, lab, first, 0)
    e('s_endpgm')
    e.label('wk_sec')
    for k, (lo, cnt, lab, first, lag) in enumerate(SEC):
        go(10 + k, lo, cnt, lab, first, lag)
    e('s_branch wk_pool')

    name = 'wk_qkv'
    e.label(name)
    reset(e)
    e(f's_cmp_eq_u32 {s(P2)}, 1')
    e(f's_cselect_b32 {s(S_SEL)}, s16, s12')
    e(f's_cselect_b32 {s(S_SEL + 1)}, s17, s13')
    e(f's_cmp_eq_u32 {s(P2)}, 2')
    e(f's_cselect_b32 {s(S_SEL)}, s20, {s(S_SEL)}')
    e(f's_cselect_b32 {s(S_SEL + 1)}, s21, {s(S_SEL + 1)}')
    G = Gemm(e, 128, [(S_SEL, 8192, 128), (S_SEL, 8192, 128)], 2, 2, 10, 1280, vbase=8, sbase=40, xfl='sc1')
    G.setup(VL, SW, 2)
    e(f's_mul_i32 s55, {s(B)}, {128 * 1280}')
    e(f's_add_u32 s55, s55, {WS_H1}')
    e(f's_lshl_b32 s56, {s(P1)}, 9')
    e('s_add_u32 s57, s56, 256')
    G.init_offsets(55, [56, 57])
    G.pre_w()
    e('s_cmp_lg_u32 s51, 0')
    e(f's_cbranch_scc1 {name}_ini')
    dbg_wait(e, name + '_a', D_MOD, NMODA)
    e('s_mov_b32 s51, 1')
    e.label(f'{name}_ini')
    dep_wait(e, name, [(C_LN1, 8)], B)
    e(f's_lshr_b32 s31, {s(SW)}, 1')
    e(f's_and_b32 s32, {s(SW)}, 1')
    e(f's_lshl_b32 s33, {s(B)}, 2')
    e('s_lshl_b32 s31, s31, 1')
    e('s_add_u32 s33, s33, s31')
    e('s_lshl_b32 s33, s33, 5')
    e(f's_lshl_b32 s34, {s(P1)}, 1')
    e('s_add_u32 s33, s33, s34')
    e('s_lshl_b32 s33, s33, 13')
    e(f's_cmp_lg_u32 {s(P2)}, 2')
    e(f's_cbranch_scc1 {name}_t0')
    far_jump(e, f'{name}_v', 98)
    e.label(f'{name}_t0')
    G.mainloop(4, ['T'] * G.NT, name + '_t', w_done=True)
    mid(e)
    e(f'v_and_b32 v2, 15, {v(VL)}')
    e(f'v_lshrrev_b32 v3, 4, {v(VL)}')
    e('v_lshlrev_b32 v3, 4, v3')
    e('v_lshl_add_u32 v2, v2, 8, v3')
    e('s_lshl_b32 s32, s32, 7')
    e('s_add_u32 s33, s33, s32')
    e(f's_mov_b32 s34, {WS_QX}')
    e(f's_mov_b32 s36, {C_Q}')
    e(f's_cmp_eq_u32 {s(P2)}, 1')
    e(f's_cselect_b32 s34, {WS_KX}, s34')
    e(f's_cselect_b32 s36, {C_KV}, s36')
    e('s_add_u32 s33, s33, s34')
    T = G.v_fx
    k = 0
    for mi in range(4):
        for p in range(2):
            for ub in range(2):
                t = T + 8 * (k % 4)
                k += 1
                for hf in range(2):
                    ac = G.accr(mi, p * 4 + ub * 2 + hf) - 256
                    for j in range(4):
                        e(f'v_accvgpr_read_b32 {v(t + 4 + j)}, {a(ac + j)}')
                    e(f'v_cvt_pk_bf16_f32 {v(t + 2 * hf)}, {v(t + 4)}, {v(t + 5)}')
                    e(f'v_cvt_pk_bf16_f32 {v(t + 2 * hf + 1)}, {v(t + 6)}, {v(t + 7)}')
                off = (mi >> 1) * 32 * 8192 + p * 8192 + (mi & 1) * 4096 + ub * 64
                e(f's_add_u32 s35, s33, {off}')
                e(f'buffer_store_dwordx4 {v(t, 4)}, v2, s[4:7], s35 offen sc1')
    signal(e, name + '_t', 's36', B, loop)
    e.label(f'{name}_v')
    reset(e)
    G.mainloop(4, ['N'] * G.NT, name + '_n', w_done=True)
    mid(e)
    e(f'v_lshlrev_b32 v2, 4, {v(VL)}')
    e('s_lshl_b32 s32, s32, 12')
    e('s_add_u32 s33, s33, s32')
    e(f's_add_u32 s33, s33, {WS_VXT}')
    k = 0
    for sg in range(2):
        for p in range(2):
            for a_ in range(4):
                t = T + 8 * (k % 4)
                k += 1
                for hf in range(2):
                    ac = G.accr(sg * 2 + hf, p * 4 + a_) - 256
                    for j in range(4):
                        e(f'v_accvgpr_read_b32 {v(t + 4 + j)}, {a(ac + j)}')
                    e(f'v_cvt_pk_bf16_f32 {v(t + 2 * hf)}, {v(t + 4)}, {v(t + 5)}')
                    e(f'v_cvt_pk_bf16_f32 {v(t + 2 * hf + 1)}, {v(t + 6)}, {v(t + 7)}')
                off = sg * 32 * 8192 + p * 8192 + a_ * 1024
                e(f's_add_u32 s35, s33, {off}')
                e(f'buffer_store_dwordx4 {v(t, 4)}, v2, s[4:7], s35 offen sc1')
    signal(e, name + '_n', C_KV, B, loop)

    name = 'wk_att'
    e.label(name)
    reset(e)
    dep_wait(e, name, [(C_KV, 32), (C_Q, 16)], B)
    e(f's_lshl_b32 s30, {s(B)}, 2')
    e(f's_add_u32 s30, s30, {s(SW)}')
    e('s_lshl_b32 s31, s30, 5')
    e(f's_add_u32 s31, s31, {s(P1)}')
    e(f'v_and_b32 v2, 15, {v(VL)}')
    e(f'v_lshrrev_b32 v3, 4, {v(VL)}')
    e('v_lshlrev_b32 v4, 4, v3')
    e('v_lshl_add_u32 v4, v2, 8, v4')
    e(f'v_lshlrev_b32 v5, 4, {v(VL)}')
    e('s_lshl_b32 s32, s31, 13')
    Q, KX_, KM_, VX_, VM_ = 16, 48, 80, 96, 128
    e(f's_add_u32 s33, s32, {WS_QX}')
    e('s_add_u32 s34, s33, 4096')
    e(f's_add_u32 s35, s32, {WS_KX}')
    e('s_add_u32 s36, s35, 4096')
    e('s_lshl_b32 s37, s31, 12')
    e(f's_add_u32 s37, s37, {WS_KM}')
    e(f'v_lshlrev_b32 v6, 3, {v(VL)}')
    e(f'v_bfe_u32 v10, {v(VL)}, 2, 2')
    e('v_lshl_add_u32 v10, v3, 2, v10')
    e(f'v_and_b32 v11, 1, {v(VL)}')
    e('v_lshlrev_b32 v11, 3, v11')
    e('v_lshl_add_u32 v10, v10, 4, v11')
    e(f's_lshl_b32 s38, {s(SW)}, 11')
    e('v_add_u32 v10, s38, v10')
    for uu in range(4):
        e(f'buffer_load_dwordx4 {v(Q + 4 * uu, 4)}, v4, s[4:7], s33 offen offset:{64 * uu} sc1', tag='a')
        e(f'buffer_load_dwordx4 {v(KX_ + 4 * uu, 4)}, v4, s[4:7], s35 offen offset:{64 * uu} sc1', tag='a')
    for uu in range(4):
        e(f'buffer_load_dwordx4 {v(Q + 16 + 4 * uu, 4)}, v4, s[4:7], s34 offen offset:{64 * uu} sc1', tag='b')
        e(f'buffer_load_dwordx4 {v(KX_ + 16 + 4 * uu, 4)}, v4, s[4:7], s36 offen offset:{64 * uu} sc1', tag='b')
    e(f's_add_u32 s39, s32, {WS_VXT}')
    e('s_add_u32 s40, s39, 4096')
    for et in range(8):
        e(f'buffer_load_dwordx4 {v(VX_ + 4 * et, 4)}, v5, s[4:7], {"s39" if et < 4 else "s40"} offen offset:{1024 * (et & 3)} sc1', tag='v')
    e('s_mov_b32 s43, s37')
    e('s_waitcnt vmcnt(0)')
    e('v_mov_b32 v12, v2')
    e('v_mov_b32 v13, v3')
    dep_wait(e, name + '2', [(C_CH, NCH)], B)
    e('v_mov_b32 v2, v12')
    e('v_mov_b32 v3, v13')
    e('s_mov_b32 s37, s43')
    e(f's_lshl_b32 m0, {s(SW)}, 11')
    e('buffer_load_dwordx4 v5, s[4:7], s37 offen sc1 lds', tag='k')
    e('buffer_load_dwordx4 v5, s[4:7], s37 offen offset:1024 sc1 lds', tag='k')
    for w in range(4):
        e(f'buffer_load_dwordx2 {v(VM_ + 2 * w, 2)}, v6, s[4:7], s37 offen offset:{2048 + 512 * w} sc1', tag='v')
    e.wait_vm('k')
    for uu in range(4):
        for m_ in range(2):
            e(f'ds_read_b64_tr_b16 {v(KM_ + 4 * uu + 2 * m_, 2)}, v10 offset:{uu * 512 + m_ * 256}')
    MK = 88
    e('v_lshlrev_b32 v7, 2, v3')
    for j in range(4):
        e(f'v_add_u32 v8, {j}, v7')
        e(f'v_cmp_le_u32 {s(MK + 2 * j, 2)}, v8, v2')
    e('s_mov_b32 s96, -1')
    e('s_mov_b32 s97, 0')
    cc = f32bits((128 ** -0.5) * LOG2E)
    e(f's_mov_b32 s98, {cc:#x}')
    e(f's_mov_b32 s99, {cc:#x}')
    ONES, NEG = 136, 140
    for j in range(4):
        e(f'v_mov_b32 {v(ONES + j)}, 0x3f803f80')
    e(f'v_mov_b32 {v(NEG)}, 0xf149f2ca')
    e('v_lshlrev_b32 v9, 4, v3')
    e('v_lshl_add_u32 v9, v2, 13, v9')
    e('s_lshl_b32 s41, s30, 18')
    e(f's_lshl_b32 s42, {s(P1)}, 8')
    e('s_add_u32 s41, s41, s42')
    e(f's_add_u32 s41, s41, {WS_O}')
    S, M, P, PM, OA = 144, 156, 160, 164, 168
    for tq in range(2):
        e.wait_vm('a' if tq == 0 else 'b')
        if tq == 0:
            e.wait_lg()
        for uu in range(4):
            q = v(Q + 16 * tq + 4 * uu, 4)
            c0 = (lambda r: '0' if uu == 0 else v(r, 4))
            e(f'v_mfma_f32_16x16x32_bf16 {v(S, 4)}, {v(KX_ + 4 * uu, 4)}, {q}, {c0(S)}')
            if tq == 1:
                e(f'v_mfma_f32_16x16x32_bf16 {v(S + 4, 4)}, {v(KX_ + 16 + 4 * uu, 4)}, {q}, {c0(S + 4)}')
            e(f'v_mfma_f32_16x16x32_bf16 {v(S + 8, 4)}, {v(KM_ + 4 * uu, 4)}, {q}, {c0(S + 8)}')
        dg = S + 4 * tq
        for j in range(4):
            e(f'v_cndmask_b32 {v(dg + j)}, {v(NEG)}, {v(dg + j)}, {s(MK + 2 * j, 2)}')
        C0 = S + 8
        e(f'v_cndmask_b32 {v(C0)}, {v(C0 + 2)}, {v(C0)}, s[96:97]')
        e(f'v_cndmask_b32 {v(C0 + 1)}, {v(C0 + 3)}, {v(C0 + 1)}, s[96:97]')
        vals = [S + j for j in range(4 * (tq + 1))] + [C0, C0 + 1]
        e(f'v_max3_f32 {v(M)}, {v(vals[0])}, {v(vals[1])}, {v(vals[2])}')
        i = 3
        while i + 1 < len(vals):
            e(f'v_max3_f32 {v(M)}, {v(M)}, {v(vals[i])}, {v(vals[i + 1])}')
            i += 2
        if i < len(vals):
            e(f'v_max_f32 {v(M)}, {v(M)}, {v(vals[i])}')
        for sw_ in ('v_permlane32_swap_b32', 'v_permlane16_swap_b32'):
            e(f'v_mov_b32 {v(M + 1)}, {v(M)}')
            e(f'{sw_} {v(M)}, {v(M + 1)}')
            e(f'v_max_f32 {v(M)}, {v(M)}, {v(M + 1)}')
        e(f'v_mul_f32 {v(M)}, s98, {v(M)}')
        for x in vals[::2]:
            e(f'v_pk_fma_f32 {v(x, 2)}, {v(x, 2)}, s[98:99], {v(M, 2)} op_sel_hi:[1,1,0] neg_lo:[0,0,1] neg_hi:[0,0,1]')
        for x in vals:
            e(f'v_exp_f32 {v(x)}, {v(x)}')
        for j in range(2 * (tq + 1)):
            e(f'v_cvt_pk_bf16_f32 {v(P + j)}, {v(S + 2 * j)}, {v(S + 2 * j + 1)}')
        if tq == 0:
            e(f'v_mov_b32 {v(P + 2)}, 0')
            e(f'v_mov_b32 {v(P + 3)}, 0')
            e(f'v_mov_b32 {v(PM + 1)}, 0')
            e(f'v_mov_b32 {v(PM + 2)}, 0')
        e(f'v_cvt_pk_bf16_f32 {v(PM)}, {v(C0)}, {v(C0 + 1)}')
        e(f'v_cvt_pk_bf16_f32 {v(PM + 3)}, {v(C0)}, {v(C0 + 1)}')
        e.wait_vm('v')
        if tq == 0:
            mid(e)
        Lr = OA + 32
        e(f'v_mfma_f32_16x16x32_bf16 {v(Lr, 4)}, {v(ONES, 4)}, {v(P, 4)}, 0')
        for et in range(8):
            e(f'v_mfma_f32_16x16x32_bf16 {v(OA + 4 * et, 4)}, {v(VX_ + 4 * et, 4)}, {v(P, 4)}, 0')
        e(f'v_mfma_f32_16x16x16_bf16 {v(Lr, 4)}, {v(ONES, 2)}, {v(PM, 2)}, {v(Lr, 4)}')
        for et in range(8):
            e(f'v_mfma_f32_16x16x16_bf16 {v(OA + 4 * et, 4)}, {v(VM_ + 2 * (et >> 1), 2)}, {v(PM + 2 * (et & 1), 2)}, {v(OA + 4 * et, 4)}')
        e(f'v_rcp_f32 {v(M)}, {v(Lr)}')
        if tq:
            e(f's_add_u32 s41, s41, {16 * 8192}')
        for ub in range(4):
            o = OA + 8 * ub
            for j in range(0, 8, 2):
                e(f'v_pk_mul_f32 {v(o + j, 2)}, {v(o + j, 2)}, {v(M, 2)} op_sel_hi:[1,0]')
            for j in range(4):
                e(f'v_cvt_pk_bf16_f32 {v(o + j)}, {v(o + 2 * j)}, {v(o + 2 * j + 1)}')
            e(f'buffer_store_dwordx4 {v(o, 4)}, v9, s[4:7], s41 offen offset:{64 * ub} sc1')
    signal(e, name, C_ATT, B, loop)

    def proj(name, wsrd, xoff, xstride, KT, nsplit, poff, dep, cdone):
        e.label(name)
        reset(e)
        e(f's_and_b32 s54, {s(P1)}, 1')
        e(f's_lshr_b32 s56, {s(P1)}, 1')
        mg = {8: (8192, 16), 3: (21846, 16)}[nsplit]
        e(f's_mul_i32 s55, s56, {mg[0]}')
        e(f's_lshr_b32 s55, s55, {mg[1]}')
        assert all((x * mg[0]) >> mg[1] == x // nsplit for x in range(5 * nsplit))
        e(f's_mul_i32 s57, s55, {nsplit}')
        e('s_sub_u32 s56, s56, s57')
        G = Gemm(e, 64, [(wsrd, 1280, 128)], 2, 2, KT, xstride, nstage=6, vbase=8, sbase=40, acc_base=128, xfl='sc1')
        G.setup(VL, SW, 2)
        e(f's_lshl_b32 s57, {s(B)}, 1')
        e('s_add_u32 s57, s57, s54')
        e(f's_mul_i32 s57, s57, {64 * xstride}')
        e(f's_mul_i32 s58, s56, {KT * 128}')
        e('s_add_u32 s57, s57, s58')
        e(f's_add_u32 s57, s57, {xoff}')
        e(f's_mul_i32 s58, s56, {KT * 64 * 1280}')
        e('s_lshl_b32 s59, s55, 8')
        e('s_add_u32 s58, s58, s59')
        G.init_offsets(57, [58])
        G.pre_w()
        dep_wait(e, name, [dep], B)
        G.mainloop(4, ['T'] * G.NT, name, w_done=True)
        mid(e)
        e(f'v_and_b32 v2, 15, {v(VL)}')
        e(f'v_lshrrev_b32 v3, 4, {v(VL)}')
        e('v_mul_u32_u24 v4, 2560, v2')
        e('v_lshl_add_u32 v4, v3, 4, v4')
        e(f's_mul_i32 s33, {s(B)}, {nsplit}')
        e('s_add_u32 s33, s33, s56')
        e('s_lshl_b32 s33, s33, 1')
        e('s_add_u32 s33, s33, s54')
        e('s_lshl_b32 s33, s33, 1')
        e(f's_lshr_b32 s31, {s(SW)}, 1')
        e('s_add_u32 s33, s33, s31')
        e(f's_mul_i32 s33, s33, {32 * 2560}')
        e(f's_and_b32 s32, {s(SW)}, 1')
        e('s_lshl_b32 s32, s32, 8')
        e('s_lshl_b32 s34, s55, 9')
        e('s_add_u32 s33, s33, s32')
        e('s_add_u32 s33, s33, s34')
        e(f's_add_u32 s33, s33, {poff}')
        for mi in range(2):
            for a_ in range(4):
                e(f'buffer_store_dwordx4 {v(G.accr(mi, a_), 4)}, v4, s[4:7], s33 offen offset:{64 * a_} sc1')
            if mi < 1:
                e(f's_add_u32 s33, s33, {16 * 2560}')
        signal(e, name, cdone, B, loop)

    proj('wk_wo', 24, WS_O, 8192, 8, 8, WS_PW, (C_ATT, 32), C_WO)
    proj('wk_dn', S_W2, WS_HM, 3456, 9, 3, WS_PD, (C_UP, 27), C_DN)

    def combine(name, nsplit, poff, gate_idx, res_is_x, do_ln, dep, cdone, RPW):
        e.label(name)
        reset(e)
        e(f's_lshl_b32 s30, {s(P1)}, 2')
        e(f's_add_u32 s30, s30, {s(SW)}')
        e(f's_mul_i32 s30, s30, {RPW}')
        e(f's_lshl_b32 s31, {s(B)}, 7')
        e('s_add_u32 s31, s31, s30')
        e('s_mul_i32 s31, s31, 1280')
        e(f'v_lshlrev_b32 v2, 2, {v(VL)}')
        e(f'v_lshlrev_b32 v3, 3, {v(VL)}')
        GT, SH, SC = 16, 26, 36
        e(f's_mov_b32 s32, {WS_MOD + gate_idx * 2560}')
        for i in range(5):
            e(f'buffer_load_dwordx2 {v(GT + 2 * i, 2)}, v3, s[4:7], s32 offen offset:{512 * i} sc1', tag='m')
        if do_ln:
            e(f's_mov_b32 s33, {WS_MOD + 3 * 2560}')
            e(f's_mov_b32 s34, {WS_MOD + 4 * 2560}')
            for i in range(5):
                e(f'buffer_load_dwordx2 {v(SH + 2 * i, 2)}, v3, s[4:7], s33 offen offset:{512 * i} sc1', tag='m')
                e(f'buffer_load_dwordx2 {v(SC + 2 * i, 2)}, v3, s[4:7], s34 offen offset:{512 * i} sc1', tag='m')
            e(f'v_bfe_u32 v4, {v(VL)}, 1, 2')
            e(f'v_bfe_u32 v5, {v(VL)}, 3, 1')
            e(f'v_and_b32 v6, 1, {v(VL)}')
            e('v_lshl_add_u32 v6, v5, 1, v6')
            e('v_lshl_add_u32 v6, v4, 2, v6')
            e(f'v_and_b32 v4, 48, {v(VL)}')
            e('v_add_u32 v6, v6, v4')
            e('v_lshlrev_b32 v12, 2, v6')
        e('s_waitcnt vmcnt(0)')
        dep_wait(e, name, [dep], B)
        e(f'v_lshlrev_b32 v2, 2, {v(VL)}')
        e(f'v_lshlrev_b32 v3, 3, {v(VL)}')
        RS_, PP = 46, 72
        rs = S_X if res_is_x else 4
        e(f's_add_u32 s35, s31, {0 if res_is_x else WS_X1}')
        for r in range(RPW):
            for i in range(5):
                if i == 0 and r in (2, 4):
                    e('s_add_u32 s35, s35, 2560')
                e(f'buffer_load_dword {v(RS_ + 5 * r + i)}, v2, {s(rs, 4)}, s35 offen offset:{1280 * (r & 1) + 256 * i} {"" if res_is_x else "sc1"}', tag='r')
        e(f's_mul_i32 s36, {s(B)}, {nsplit * 128}')
        e('s_add_u32 s36, s36, s30')
        e('s_mul_i32 s36, s36, 2560')
        e(f's_add_u32 s36, s36, {poff}')
        for r in range(RPW):
            for k in range(nsplit):
                e(f's_add_u32 s37, s36, {(k * 128 + r) * 2560}')
                for i in range(5):
                    e(f'buffer_load_dwordx2 {v(PP + ((r * nsplit + k) * 5 + i) * 2, 2)}, v3, s[4:7], s37 offen offset:{512 * i} sc1', tag=('p', r, k))
        if do_ln:
            for j in range(10):
                e(f'v_add_f32 {v(SC + j)}, 1.0, {v(SC + j)}')
            for j in range(0, 10, 2):
                rnd2(e, SC + j, SC + j + 1, 7)
            e(f's_mov_b32 s38, {f32bits(1.0 / 640):#x}')
            e(f's_mov_b32 s39, {f32bits(1e-5):#x}')
            e(f's_add_u32 s40, s31, {WS_X1}')
            e(f's_add_u32 s41, s31, {WS_H2}')
        for r in range(RPW):
            X = PP + r * nsplit * 10
            for k in range(1, nsplit):
                e.wait_vm(('p', r, k))
                for j in range(0, 10, 2):
                    e(f'v_pk_add_f32 {v(X + j, 2)}, {v(X + j, 2)}, {v(X + k * 10 + j, 2)}')
            mid(e)
            for j in range(0, 10, 2):
                a_, b_ = X + j, X + j + 1
                rr = RS_ + 5 * r + j // 2
                rnd2(e, a_, b_, 7)
                e(f'v_mul_f32 {v(a_)}, {v(a_)}, {v(GT + j)}')
                e(f'v_mul_f32 {v(b_)}, {v(b_)}, {v(GT + j + 1)}')
                rnd2(e, a_, b_, 7)
                e(f'v_lshlrev_b32 v8, 16, {v(rr)}')
                e(f'v_and_b32 v9, 0xffff0000, {v(rr)}')
                e(f'v_add_f32 {v(a_)}, {v(a_)}, v8')
                e(f'v_add_f32 {v(b_)}, {v(b_)}, v9')
                e(f'v_cvt_pk_bf16_f32 {v(rr)}, {v(a_)}, {v(b_)}')
                if do_ln:
                    e(f'buffer_store_dword {v(rr)}, v2, s[4:7], s40 offen offset:{1280 * r + 128 * j} sc1')
                    e(f'v_lshlrev_b32 {v(a_)}, 16, {v(rr)}')
                    e(f'v_and_b32 {v(b_)}, 0xffff0000, {v(rr)}')
                else:
                    if j == 0 and r in (2, 4):
                        e('s_add_u32 s31, s31, 2560')
                    if j == 0:
                        e(f's_cmp_lt_u32 s30, {128 - r}')
                        e('s_cselect_b32 s31, s31, 0x40000000')
                    e(f'buffer_store_dword {v(rr)}, v2, {s(S_OUT, 4)}, s31 offen offset:{1280 * (r & 1) + 128 * j}')
            if not do_ln:
                continue
            e(f'v_add_f32 v8, {v(X)}, {v(X + 1)}')
            for j in range(2, 10):
                e(f'v_add_f32 v8, v8, {v(X + j)}')
            wave_sum(e, 8, 9)
            e('v_mul_f32 v8, s38, v8')
            e('v_mov_b32 v10, 0')
            for j in range(10):
                e(f'v_sub_f32 v9, {v(X + j)}, v8')
                e('v_fmac_f32 v10, v9, v9')
            wave_sum(e, 10, 9)
            e('v_mul_f32 v10, s38, v10')
            rnd2(e, 8, 10, 7)
            e('v_add_f32 v10, s39, v10')
            rnd2(e, 10, 9, 7)
            e('v_sqrt_f32 v10, v10')
            rnd2(e, 10, 9, 7)
            e('v_rcp_f32 v10, v10')
            for j in range(0, 10, 2):
                a_, b_ = X + j, X + j + 1
                e(f'v_sub_f32 {v(a_)}, {v(a_)}, v8')
                e(f'v_sub_f32 {v(b_)}, {v(b_)}, v8')
                rnd2(e, a_, b_, 7)
                e(f'v_mul_f32 {v(a_)}, {v(a_)}, v10')
                e(f'v_mul_f32 {v(b_)}, {v(b_)}, v10')
                rnd2(e, a_, b_, 7)
                e(f'v_mul_f32 {v(a_)}, {v(a_)}, {v(SC + j)}')
                e(f'v_mul_f32 {v(b_)}, {v(b_)}, {v(SC + j + 1)}')
                rnd2(e, a_, b_, 7)
                e(f'v_add_f32 {v(a_)}, {v(a_)}, {v(SH + j)}')
                e(f'v_add_f32 {v(b_)}, {v(b_)}, {v(SH + j + 1)}')
                e(f'v_cvt_pk_bf16_f32 {v(a_)}, {v(a_)}, {v(b_)}')
                e(f'buffer_store_dword {v(a_)}, v12, s[4:7], s41 offen offset:{1280 * r + 128 * j} sc1')
        signal(e, name, cdone, B, loop)

    combine('wk_ln2', 8, WS_PW, 2, True, True, (C_WO, 80), C_LN2, 2)
    combine('wk_fin', 3, WS_PD, 5, False, False, (C_DN, 30), None, 5)

    name = 'wk_up'
    e.label(name)
    reset(e)
    G = Gemm(e, 128, [(S_W1, 3456, 64), (S_W3, 3456, 64)], 2, 2, 10, 1280, nstage=5, vbase=8, sbase=40, acc_base=128, xfl='sc1')
    G.setup(VL, SW, 2)
    e(f's_mul_i32 s55, {s(B)}, {128 * 1280}')
    e(f's_add_u32 s55, s55, {WS_H2}')
    e(f's_lshl_b32 s56, {s(P1)}, 7')
    e('s_mov_b32 s57, s56')
    G.init_offsets(55, [56, 57])
    G.pre_w()
    dep_wait(e, name, [(C_LN2, 16)], B)
    G.mainloop(4, ['T'] * G.NT, name, w_done=True)
    mid(e)
    e(f'v_and_b32 v2, 15, {v(VL)}')
    e(f'v_lshrrev_b32 v3, 4, {v(VL)}')
    e('v_mul_u32_u24 v4, 3456, v2')
    e('v_lshl_add_u32 v4, v3, 4, v4')
    e(f's_lshr_b32 s31, {s(SW)}, 1')
    e(f's_and_b32 s32, {s(SW)}, 1')
    e(f's_lshl_b32 s33, {s(B)}, 1')
    e('s_add_u32 s33, s33, s31')
    e(f's_mul_i32 s33, s33, {64 * 3456}')
    e('s_lshl_b32 s34, s32, 6')
    e('s_add_u32 s34, s34, s56')
    e('s_add_u32 s33, s33, s34')
    e(f's_add_u32 s33, s33, {WS_HM}')
    e(f's_mov_b32 s37, {f32bits(-LOG2E):#x}')
    T = G.v_fx
    for mi in range(4):
        o = T + 4 * mi
        for a_ in range(2):
            gv = G.accr(mi, a_)
            uv = G.accr(mi, 2 + a_)
            for h in range(2):
                g0, g1, u0, u1 = gv + 2 * h, gv + 2 * h + 1, uv + 2 * h, uv + 2 * h + 1
                rnd2(e, g0, g1, 6)
                rnd2(e, u0, u1, 6)
                silu_inplace(e, g0, 6, 37)
                silu_inplace(e, g1, 7, 37)
                rnd2(e, g0, g1, 6)
                e(f'v_mul_f32 {v(g0)}, {v(g0)}, {v(u0)}')
                e(f'v_mul_f32 {v(g1)}, {v(g1)}, {v(u1)}')
                e(f'v_cvt_pk_bf16_f32 {v(o + 2 * a_ + h)}, {v(g0)}, {v(g1)}')
        e(f'buffer_store_dwordx4 {v(o, 4)}, v4, s[4:7], s33 offen sc1')
        if mi < 3:
            e(f's_add_u32 s33, s33, {16 * 3456}')
    signal(e, name, C_UP, B, loop)


    name = 'wk_mod'
    e.label(name)
    reset(e)
    load_srds(e, [('c', 88), ('wmod', 92)], tmp=96)
    e(f's_lshl_b32 s30, {s(SW)}, 6')
    e(f'v_add_u32 v0, s30, {v(VL)}')
    e(f's_cmp_lg_u32 {s(P1)}, 0')
    e(f's_cbranch_scc1 {name}_nz')
    for j in range(4):
        e(f'v_mov_b32 {v(4 + j)}, 0')
    e('v_lshlrev_b32 v2, 4, v0')
    e(f's_mov_b32 s31, {WS_CTR}')
    for i in range(5):
        e('buffer_store_dwordx4 v[4:7], v2, s[4:7], s31 offen sc1')
        e('s_add_u32 s31, s31, 4096')
    e.label(f'{name}_nz')
    reset(e)
    e.nop(2)
    e('v_lshlrev_b32 v14, 1, v0')
    e('v_lshlrev_b32 v2, 2, v0')
    e(f's_mov_b32 s30, {f32bits(-LOG2E):#x}')
    for i in range(3):
        e(f'buffer_load_ushort {v(4 + i)}, v14, s[88:91], 0 offen offset:{512 * i}', tag='c')
    e('v_and_b32 v8, 3, v0')
    e('v_lshrrev_b32 v9, 2, v0')
    e('v_mul_u32_u24 v10, 7680, v9')
    e('v_lshl_add_u32 v10, v8, 4, v10')
    e(f's_lshl_b32 s31, {s(P1)}, 6')
    for i in range(10):
        if i:
            e(f's_add_u32 s31, s31, {64 * 7680}')
        e(f'buffer_load_dwordx4 {v(32 + 4 * i, 4)}, v10, s[92:95], s31 offen', tag=('w', i))
    e.wait_vm('c')
    for i in range(3):
        e(f'v_lshlrev_b32 {v(4 + i)}, 16, {v(4 + i)}')
        silu_inplace(e, 4 + i, 7, 30)
        e(f'v_cvt_pk_bf16_f32 {v(4 + i)}, {v(4 + i)}, {v(4 + i)}')
        e(f'v_lshlrev_b32 {v(4 + i)}, 16, {v(4 + i)}')
        e(f'ds_write_b32 v2, {v(4 + i)} offset:{1024 * i}')
    e.wait_lg()
    e('s_barrier')
    e('v_lshlrev_b32 v11, 2, v9')
    for i in range(10):
        e(f'ds_read_b32 {v(112 + i)}, v11 offset:{256 * i}')
    for j in range(8):
        e(f'v_mov_b32 {v(16 + j)}, 0')
    e.wait_lg()
    for i in range(10):
        e.wait_vm(('w', i))
        for d in range(4):
            w = 32 + 4 * i + d
            e(f'v_lshlrev_b32 v12, 16, {v(w)}')
            e(f'v_and_b32 v13, 0xffff0000, {v(w)}')
            e(f'v_fmac_f32 {v(16 + 2 * d)}, v12, {v(112 + i)}')
            e(f'v_fmac_f32 {v(17 + 2 * d)}, v13, {v(112 + i)}')
    e('v_lshlrev_b32 v12, 7, v9')
    e('v_lshl_add_u32 v12, v8, 5, v12')
    e('ds_write_b128 v12, v[16:19] offset:4096')
    e('ds_write_b128 v12, v[20:23] offset:4112')
    e.wait_lg()
    e('s_barrier')
    e(f's_cmp_lg_u32 {s(SW)}, 0')
    e(f's_cbranch_scc1 {name}_done')
    e(f'v_and_b32 v12, 31, {v(VL)}')
    e(f'v_lshrrev_b32 v13, 5, {v(VL)}')
    e('v_lshlrev_b32 v12, 2, v12')
    e('v_lshl_add_u32 v13, v13, 12, v12')
    for i in range(32):
        e(f'ds_read_b32 {v(32 + i)}, v13 offset:{4096 + 128 * i}')
    e.wait_lg()
    for i in range(1, 32):
        e(f'v_add_f32 v32, v32, {v(32 + i)}')
    e('v_mov_b32 v33, v32')
    e('v_permlane32_swap_b32 v32, v33')
    e('v_add_f32 v32, v32, v33')
    e('v_cvt_pk_bf16_f32 v32, v32, v32')
    e('v_lshlrev_b32 v32, 16, v32')
    e(f's_lshl_b32 s31, {s(P1)}, 7')
    e(f's_add_u32 s31, s31, {WS_MOD}')
    e('buffer_store_dword v32, v12, s[4:7], s31 offen sc1')
    e.label(f'{name}_done')
    e(f's_mov_b32 s36, {D_MODB}')
    e(f's_cmp_lt_u32 {s(P1)}, {NMODA}')
    e(f's_cselect_b32 s36, {D_MOD}, s36')
    signal(e, name, None, B, loop, dbg_off='s36')

    name = 'wk_ln1'
    e.label(name)
    reset(e)
    RPW = 4
    e(f's_lshl_b32 s30, {s(P1)}, 2')
    e(f's_add_u32 s30, s30, {s(SW)}')
    e(f's_mul_i32 s30, s30, {RPW * 1280}')
    e(f'v_lshlrev_b32 v4, 2, {v(VL)}')
    e('s_add_u32 s31, s30, 2560')
    for r in range(RPW):
        for i in range(5):
            e(f'buffer_load_dword {v(16 + 5 * r + i)}, v4, {s(S_X, 4)}, {"s30" if r < 2 else "s31"} offen offset:{(r & 1) * 1280 + 256 * i}', tag=('x', r))
    e(f'v_bfe_u32 v5, {v(VL)}, 1, 2')
    e(f'v_bfe_u32 v6, {v(VL)}, 3, 1')
    e(f'v_and_b32 v12, 1, {v(VL)}')
    e('v_lshl_add_u32 v12, v6, 1, v12')
    e('v_lshl_add_u32 v12, v5, 2, v12')
    e(f'v_and_b32 v5, 48, {v(VL)}')
    e('v_add_u32 v12, v12, v5')
    e('v_lshlrev_b32 v12, 2, v12')
    e(f's_mov_b32 s32, {f32bits(1.0 / 640):#x}')
    e(f's_mov_b32 s33, {f32bits(1e-5):#x}')
    for r in range(RPW):
        X = 64 + 10 * r
        e.wait_vm(('x', r))
        for i in range(5):
            e(f'v_lshlrev_b32 {v(X + 2 * i)}, 16, {v(16 + 5 * r + i)}')
            e(f'v_and_b32 {v(X + 2 * i + 1)}, 0xffff0000, {v(16 + 5 * r + i)}')
        e(f'v_add_f32 v8, {v(X)}, {v(X + 1)}')
        for j in range(2, 10):
            e(f'v_add_f32 v8, v8, {v(X + j)}')
        wave_sum(e, 8, 9)
        e('v_mul_f32 v8, s32, v8')
        e('v_mov_b32 v10, 0')
        for j in range(10):
            e(f'v_sub_f32 v9, {v(X + j)}, v8')
            e('v_fmac_f32 v10, v9, v9')
        wave_sum(e, 10, 9)
        e('v_mul_f32 v10, s32, v10')
        rnd2(e, 8, 10, 7)
        e('v_add_f32 v10, s33, v10')
        rnd2(e, 10, 9, 7)
        e('v_sqrt_f32 v10, v10')
        rnd2(e, 10, 9, 7)
        e('v_rcp_f32 v10, v10')
        for j in range(0, 10, 2):
            a_, b_ = X + j, X + j + 1
            e(f'v_sub_f32 {v(a_)}, {v(a_)}, v8')
            e(f'v_sub_f32 {v(b_)}, {v(b_)}, v8')
            rnd2(e, a_, b_, 7)
            e(f'v_mul_f32 {v(a_)}, {v(a_)}, v10')
            e(f'v_mul_f32 {v(b_)}, {v(b_)}, v10')
            rnd2(e, a_, b_, 7)
    dbg_wait(e, name, D_MOD, NMODA)
    e(f'v_lshlrev_b32 v3, 3, {v(VL)}')
    e(f's_mov_b32 s34, {WS_MOD}')
    e(f's_mov_b32 s35, {WS_MOD + 2560}')
    for i in range(5):
        e(f'buffer_load_dwordx2 {v(16 + 2 * i, 2)}, v3, s[4:7], s34 offen offset:{512 * i} sc1')
        e(f'buffer_load_dwordx2 {v(26 + 2 * i, 2)}, v3, s[4:7], s35 offen offset:{512 * i} sc1')
    e(f's_add_u32 s30, s30, {WS_H1}')
    e(f's_mul_i32 s38, {s(SW)}, 5120')
    e('v_add_u32 v12, s38, v12')
    e.wait_vm()
    for j in range(10):
        e(f'v_add_f32 {v(26 + j)}, 1.0, {v(26 + j)}')
    for j in range(0, 10, 2):
        rnd2(e, 26 + j, 27 + j, 7)
    for r in range(RPW):
        X = 64 + 10 * r
        for j in range(0, 10, 2):
            a_, b_ = X + j, X + j + 1
            e(f'v_mul_f32 {v(a_)}, {v(a_)}, {v(26 + j)}')
            e(f'v_mul_f32 {v(b_)}, {v(b_)}, {v(27 + j)}')
            rnd2(e, a_, b_, 7)
            e(f'v_add_f32 {v(a_)}, {v(a_)}, {v(16 + j)}')
            e(f'v_add_f32 {v(b_)}, {v(b_)}, {v(17 + j)}')
            e(f'v_cvt_pk_bf16_f32 {v(a_)}, {v(a_)}, {v(b_)}')
            e(f'ds_write_b32 v12, {v(a_)} offset:{r * 1280 + 128 * j}')
    e(f'v_lshlrev_b32 v13, 4, {v(VL)}')
    e('v_add_u32 v14, s38, v13')
    e.wait_lg()
    for i in range(5):
        e(f'ds_read_b128 {v(16 + 4 * i, 4)}, v14 offset:{1024 * i}')
    e('s_add_u32 s31, s30, 4096')
    e.wait_lg()
    for i in range(5):
        e(f'buffer_store_dwordx4 {v(16 + 4 * i, 4)}, v13, s[4:7], {"s30" if i < 4 else "s31"} offen offset:{1024 * (i & 3)} sc1')
    e(f's_lshr_b32 {s(B)}, {s(P1)}, 3')
    e('s_mov_b32 s51, 1')
    signal(e, name, C_LN1, B, loop)


NAME = 'adaLN_cond__memory_aug_recurrent_mem_tr__glu_gated_swiglu__prompt_kernel'
if __name__ == '__main__':
    import argparse
    ap = argparse.ArgumentParser()
    ap.add_argument('--out', default='mega.s')
    ap.add_argument('--kw', default='')
    ap.add_argument('--log', action='store_true')
    ap.add_argument('--sleep', type=int, default=6)
    ap.add_argument('--list', action='store_true')
    ap.add_argument('--dsleep', type=int, default=24)
    args = ap.parse_args()
    LOG = args.log
    SLEEP = args.sleep
    DSLEEP = args.dsleep
    e = Em()
    nm = 'mega_kernel' if args.list else NAME
    e.raw(f'.globl {nm}')
    KNAME[0] = nm
    reset(e)
    kw = eval('dict(' + args.kw + ')')
    gen_chainX.gen_chain(e, name=nm, mega='wk_entry', nmoda=NMODA, **kw)
    gen_workers(e)
    if args.list:
        hdr = f"; @launch kernel={nm} grid=(256,1,1) block=(256,1,1) lds=163840\n"
    else:
        hdr = "; @launch grid=(256,1,1) block=(256,1,1) lds=163840\n"
    hdr += '.amdgcn_target "amdgcn-amd-amdhsa--gfx950"\n.text\n'
    open(args.out, 'w').write(hdr + e.text() + kd(nm, 512, 256))
```

```python
from emit import *
from layout import *
from gen_chain import Pool, f32bits, kd

S_WS = 4
S_DBG = 8
S_WQ = 12
S_WK = 16
S_WV = 20
S_WO = 24
S_H = 28
S_W = 29
S_STEP = 30
S_T0, S_T1, S_T2, S_T3 = 31, 32, 33, 34
S_MODE = 35
S_UNIT = 36
S_XCC = 37
S_C1 = 38
S_MASKLO = 40
S_LDSW = 42
S_SH13 = 43
S_MBP = 44
S_MBB = 47
S_MSL = 48
S_M9D = 49
S_PBST = 50
S_MBL = 55
S_MBC = 56
S_MBN = 57
S_KXW = 58
S_KXM = 59
S_PBLD = 60
S_MDST = 61
S_VMO = 62
S_NR = 63
S_VB0, S_VB, S_MBL2, S_PING = 66, 67, 68, 69
S_GOF = 64
S_KXM2 = 73
S_MBR2 = 65
S_VXO = 70
S_KMO = 71
S_WRM = 72
S_MBC2 = 74
S_MBN2 = 75
S_STAMP = 76
S_SIG = 15
S_KVOK = 16

V_LANE16, V_IDX, V_AF, V_QKR, V_LDSW, V_QKW, V_OW, V_OR = range(8)
V_PBST, V_KXG, V_MBST, V_L8, V_WA, V_WT, V_M1, V_L64 = range(8, 16)
V_SEL = 16
V_ONES = 20
V_PM = 24
V_M2 = 26
NPERS = 28

NR_PING, NR_CAL, NR_VB = 8 * 16384, 9 * 16384, 16 * 16384
D_NEAR = 144
D_INIT, D_SLOW = 132, 136

_fj = [0]


def far_jump(e, label, sp):
    _fj[0] += 1
    here = f'Lfj{_fj[0]}'
    e(f's_getpc_b64 {s(sp, 2)}')
    e.label(here)
    e.raw(f'    s_add_u32 {s(sp)}, {s(sp)}, {label}-{here}')
    e.raw(f'    s_addc_u32 {s(sp + 1)}, {s(sp + 1)}, 0')
    e(f's_setpc_b64 {s(sp, 2)}')


def gen_chain(em, name='chain_kernel', mega=None, nmoda=0, pool_end=104, nsteps=64, stamps=False, stsel=(0, 1, 2, 3, 4, 5, 6, 7, 8, 9),
              hstamps=False, la_lds=5, afl=7, nkl=5, wat=2, npre=4, noa=2, v_at=3, gdel=0, kdel=0, pmask='lane', gmask='lane', ackA=False, b0=True, adel=3, warm=(('a', 0), ('a2', 1)), wat2=20, hd0=8, hup=0, hdn=1, ncal=6, segsig=None, slow=True,
              lds_at=(0, 1, 2, 3, 42, 46, 50, 54, 58, 44, 48, 20, 24), dbg='', ldfl='nt', ostfl='sc1'):
    L_MMEM = 0
    L_MQ = 10240
    L_MK = L_MQ + 2048
    L_O = L_MK + 2048
    L_KX = L_O + 2048
    L_WB = L_KX + 8192
    NRING = 10
    e = em
    LN = 28

    units = []
    for t in range(10):
        units += [('q', t), ('k', t)]
    ounits = [('o', t, p) for p in range(5) for t in range(2)]
    units += ounits
    order = []
    for t in range(10 - nkl):
        for m in 'qk':
            order += [((m, t), 0), ((m, t), 1)]
    for m in 'qk':
        for t in range(10 - nkl, 10):
            order += [((m, t), 0), ((m, t), 1)]
    NQE = 40 - 2 * nkl
    oorder = [(un, tau) for un in ounits for tau in range(2)]
    order += oorder
    n_reg = (512 - pool_end) // 8
    n_lds = 60 - n_reg
    WL = n_lds * 2048
    assert L_WB + 4 * WL <= 163840
    place = {}
    for i, oi in enumerate(sorted(lds_at[:n_lds])):
        place[order[oi]] = ('lds', i)
    assert len(place) == n_lds
    r = pool_end
    for sl in order:
        if sl not in place:
            place[sl] = ('reg', r)
            r += 8
    assert r == 512

    em.raw('.p2align 8')
    em.raw(f'.type {name},@function')
    em.label(name)
    e('s_cmp_lt_u32 s2, 256')
    e(f's_cbranch_scc1 {name}_go')
    e('s_endpgm')
    e.label(f'{name}_go')
    if 'rt' in dbg:
        e('s_memrealtime s[96:97]')
    e('s_load_dwordx4 s[48:51], s[0:1], 16')
    e('s_load_dwordx4 s[52:55], s[0:1], 32')
    e('s_load_dwordx4 s[56:59], s[0:1], 112')
    e(f's_getreg_b32 {s(S_XCC)}, hwreg(HW_REG_XCC_ID)')
    e(f's_and_b32 {s(S_XCC)}, {s(S_XCC)}, 15')
    e('v_lshrrev_b32 v20, 6, v0')
    e('v_and_b32 v16, 63, v0')
    e(f'v_readfirstlane_b32 {s(S_W)}, v20')
    e('s_waitcnt lgkmcnt(0)')

    def srd(d, src, size):
        e(f's_mov_b32 {s(d)}, {s(src)}')
        e(f's_and_b32 {s(d + 1)}, {s(src + 1)}, 0xffff')
        e(f's_mov_b32 {s(d + 2)}, {size}')
        e(f's_mov_b32 {s(d + 3)}, 0x20000')
    srd(S_WQ, 48, 5242880)
    srd(S_WK, 50, 5242880)
    srd(S_WV, 52, 5242880)
    srd(S_WO, 54, 5242880)
    srd(S_DBG, 56, 256)
    srd(S_WS, 58, WS_SIZE)

    def other(lab):
        if mega:
            far_jump(e, lab, 44)
        else:
            e('s_endpgm')
    e(f's_lshl_b32 {s(S_T3)}, {s(S_XCC)}, 2')
    e(f's_cmp_lt_u32 {s(S_XCC)}, 2')
    e(f's_cbranch_scc1 {name}_take')
    other(mega)
    e.label(f'{name}_take')
    e(f's_getreg_b32 {s(S_XCC)}, hwreg(HW_REG_XCC_ID)')
    e(f's_and_b32 {s(S_XCC)}, {s(S_XCC)}, 15')
    e(f's_cmp_lg_u32 {s(S_W)}, 0')
    e(f's_cbranch_scc1 {name}_elected')
    e('v_mov_b32 v20, 1')
    e('v_mov_b32 v21, 0')
    e('s_mov_b64 exec, 1')
    e(f'buffer_atomic_add v20, v21, {s(S_DBG, 4)}, {s(S_T3)} offen sc0')
    e.wait_vm()
    e('ds_write_b32 v21, v20')
    e('s_mov_b64 exec, -1')
    e.wait_lg()
    e.label(f'{name}_elected')
    e('s_barrier')
    e('v_mov_b32 v21, 0')
    e('ds_read_b32 v20, v21')
    e.wait_lg()
    e(f'v_readfirstlane_b32 {s(S_H)}, v20')
    e('s_barrier')
    e(f's_cmp_lt_u32 {s(S_H)}, 32')
    e(f's_cbranch_scc1 {name}_hasrole')
    other(mega)
    e.label(f'{name}_hasrole')
    e(f's_mov_b32 {s(S_MODE)}, {s(S_T3)}')
    e(f'v_mov_b32 {v(LN)}, v16')
    e(f's_add_u32 {s(S_T0)}, {s(S_XCC)}, 0')
    e(f's_cmp_lg_u32 {s(S_T3)}, 0')
    e(f's_cselect_b32 {s(S_T0)}, 0, {s(S_T0)}')
    e(f's_cmp_eq_u32 {s(S_T0)}, 0')
    e(f's_cbranch_scc1 {name}_native')
    e('v_mov_b32 v20, 1')
    e(f'v_mov_b32 v21, {D_SLOW}')
    e(f'buffer_store_dword v20, v21, {s(S_DBG, 4)}, 0 offen sc1')
    e.wait_vm()
    e.label(f'{name}_native')

    g, c, rp, cp, g1, g2, sw = 16, 17, 18, 19, 20, 21, 22
    T = 23
    e(f'v_lshrrev_b32 {v(g)}, 4, {v(LN)}')
    e(f'v_and_b32 {v(c)}, 15, {v(LN)}')
    e(f'v_lshrrev_b32 {v(rp)}, 2, {v(c)}')
    e(f'v_and_b32 {v(cp)}, 3, {v(LN)}')
    e(f'v_and_b32 {v(g1)}, 1, {v(g)}')
    e(f'v_lshrrev_b32 {v(g2)}, 1, {v(g)}')
    e(f'v_lshl_add_u32 {v(sw)}, {v(g1)}, 1, {v(g2)}')
    e(f'v_lshlrev_b32 {v(V_LANE16)}, 4, {v(LN)}')
    e(f'v_lshlrev_b32 {v(V_L64)}, 6, {v(LN)}')
    e(f'v_lshlrev_b32 {v(V_WA)}, 7, {v(c)}')
    e(f'v_mov_b32 {v(V_M1)}, -1')
    e(f'v_and_b32 {v(T)}, 2, {v(LN)}')
    e(f'v_cmp_ne_u32 vcc, 0, {v(T)}')
    e(f'v_mov_b32 {v(T + 1)}, 0x4444')
    e(f'v_mov_b32 {v(T + 2)}, 0xeeee')
    e(f'v_cndmask_b32 {v(V_IDX)}, {v(T + 1)}, {v(T + 2)}, vcc')
    e(f'v_lshl_add_u32 {v(T)}, {v(g)}, 2, {v(rp)}')
    e(f'v_lshlrev_b32 {v(T + 1)}, 3, {v(cp)}')
    e(f'v_lshl_add_u32 {v(V_AF)}, {v(T)}, 5, {v(T + 1)}')
    e(f'v_and_b32 {v(T + 2)}, 1, {v(cp)}')
    e(f'v_lshlrev_b32 {v(T + 2)}, 3, {v(T + 2)}')
    e(f'v_lshl_add_u32 {v(V_QKR)}, {v(T)}, 4, {v(T + 2)}')
    e(f'v_add_u32 {v(V_QKR)}, {L_MQ}, {v(V_QKR)}')
    e(f's_lshl_b32 {s(S_T0)}, {s(S_W)}, 5')
    e(f'v_add_u32 {v(T)}, {s(S_T0)}, {v(c)}')
    e(f'v_lshlrev_b32 {v(T + 2)}, 2, {v(sw)}')
    e(f'v_lshl_add_u32 {v(V_QKW)}, {v(T)}, 4, {v(T + 2)}')
    e(f'v_add_u32 {v(V_QKW)}, {L_MQ}, {v(V_QKW)}')
    e(f's_lshl_b32 {s(S_T0)}, {s(S_W)}, 2')
    e(f'v_add_u32 {v(T)}, {s(S_T0)}, {v(g)}')
    e(f'v_and_b32 {v(T + 3)}, 7, {v(LN)}')
    e(f'v_lshl_add_u32 {v(T)}, {v(T)}, 3, {v(T + 3)}')
    e(f'v_lshlrev_b32 {v(V_OW)}, 4, {v(T)}')
    e(f'v_add_u32 {v(V_OW)}, {L_O}, {v(V_OW)}')
    e(f'v_and_b32 {v(T)}, 1, {v(rp)}')
    e(f'v_lshrrev_b32 {v(T + 2)}, 1, {v(rp)}')
    e(f'v_lshl_add_u32 {v(T)}, {v(T)}, 1, {v(T + 2)}')
    e(f'v_and_b32 {v(T + 2)}, 1, {v(LN)}')
    e(f'v_lshl_add_u32 {v(T)}, {v(T)}, 1, {v(T + 2)}')
    e(f'v_lshl_add_u32 {v(T)}, {v(g)}, 3, {v(T)}')
    e(f'v_lshrrev_b32 {v(T + 2)}, 1, {v(cp)}')
    e(f'v_lshl_add_u32 {v(T)}, {v(T + 2)}, 5, {v(T)}')
    e(f'v_lshlrev_b32 {v(V_OR)}, 4, {v(T)}')
    e(f'v_add_u32 {v(V_OR)}, {L_O}, {v(V_OR)}')
    e(f'v_lshl_add_u32 {v(T)}, {v(g1)}, 2, {v(cp)}')
    e(f'v_lshlrev_b32 {v(T)}, 4, {v(T)}')
    e(f'v_lshl_add_u32 {v(T)}, {v(g2)}, 3, {v(T)}')
    e(f'v_lshl_add_u32 {v(V_PBST)}, {v(rp)}, 12, {v(T)}')
    e(f'v_and_b32 {v(T)}, 4, {v(LN)}')
    e(f'v_lshl_add_u32 {v(T)}, {v(sw)}, 3, {v(T)}')
    e(f'v_lshl_add_u32 {v(T)}, {v(cp)}, 5, {v(T)}')
    e(f'v_lshlrev_b32 {v(T + 1)}, 27, {v(c)}')
    e(f'v_and_b32 {v(T + 1)}, 0x40000000, {v(T + 1)}')
    e(f'v_or_b32 {v(V_MBST)}, {v(T)}, {v(T + 1)}')
    e(f'v_lshlrev_b32 {v(V_L8)}, 3, {v(LN)}')
    e(f'v_lshlrev_b32 {v(T)}, 4, {v(g)}')
    e(f'v_lshl_add_u32 {v(V_KXG)}, {v(c)}, 8, {v(T)}')
    e(f's_mul_i32 {s(S_LDSW)}, {s(S_W)}, {WL}')
    e(f's_add_u32 {s(S_LDSW)}, {s(S_LDSW)}, {L_WB}')
    e(f'v_add_u32 {v(V_LDSW)}, {s(S_LDSW)}, {v(V_LANE16)}')
    e(f's_mul_i32 {s(S_LDSW)}, {s(S_W)}, {NRING * 4096}')
    VG_QKV, VG_O, VT_QKV, VT_O = 28, 29, 30, 31
    e(f'v_lshrrev_b32 {v(T + 2)}, 1, {v(rp)}')
    e(f'v_and_b32 {v(T + 3)}, 1, {v(rp)}')
    e(f'v_lshlrev_b32 {v(T + 1)}, 3, {v(cp)}')
    e(f'v_lshlrev_b32 {v(T + 4)}, 5, {v(g1)}')
    e(f'v_lshl_add_u32 {v(T + 4)}, {v(T + 2)}, 4, {v(T + 4)}')
    e(f'v_lshl_add_u32 {v(T + 4)}, {v(g2)}, 2, {v(T + 4)}')
    e(f'v_add_u32 {v(T + 4)}, {v(T + 4)}, {v(T + 3)}')
    e(f'v_lshl_add_u32 {v(VT_QKV)}, {v(T + 4)}, 6, {v(T + 1)}')
    e(f'v_add_u32 {v(VT_QKV)}, {s(S_LDSW)}, {v(VT_QKV)}')
    e(f'v_lshlrev_b32 {v(T + 4)}, 5, {v(T + 2)}')
    e(f'v_lshl_add_u32 {v(T + 4)}, {v(g1)}, 4, {v(T + 4)}')
    e(f'v_lshl_add_u32 {v(T + 4)}, {v(g2)}, 2, {v(T + 4)}')
    e(f'v_add_u32 {v(T + 4)}, {v(T + 4)}, {v(T + 3)}')
    e(f'v_lshl_add_u32 {v(VT_O)}, {v(T + 4)}, 6, {v(T + 1)}')
    e(f'v_add_u32 {v(VT_O)}, {s(S_LDSW)}, {v(VT_O)}')
    e(f'v_lshrrev_b32 {v(T)}, 2, {v(LN)}')
    e(f'v_lshlrev_b32 {v(T + 1)}, 4, {v(cp)}')
    e(f'v_mul_u32_u24 {v(VG_O)}, 1280, {v(T)}')
    e(f'v_add_u32 {v(VG_O)}, {v(VG_O)}, {v(T + 1)}')
    e(f'v_lshl_add_u32 {v(VG_QKV)}, {v(T)}, 13, {v(T + 1)}')
    e(f's_lshl_b32 {s(S_T2)}, {s(S_H)}, 8')
    e(f's_lshl_b32 {s(S_T0)}, {s(S_W)}, 6')
    e(f's_add_u32 {s(S_T2)}, {s(S_T2)}, {s(S_T0)}')
    e(f's_mul_i32 {s(S_T3)}, {s(S_H)}, {128 * 1280}')
    e(f's_mul_i32 {s(S_T0)}, {s(S_W)}, 320')
    e(f's_add_u32 {s(S_T3)}, {s(S_T3)}, {s(S_T0)}')
    e(f's_mul_i32 {s(S_PBST)}, {s(S_W)}, {20 * 4096}')
    e(f's_lshl_b32 {s(S_T0)}, {s(S_H)}, 7')
    e(f's_add_u32 {s(S_PBST)}, {s(S_PBST)}, {s(S_T0)}')
    e(f's_mov_b32 {s(S_STEP)}, 0')
    e('s_mov_b32 s3, 0')
    e(f's_mov_b32 {s(S_MSL)}, 0')
    e(f's_lshl_b32 {s(S_T1)}, {s(S_H)}, 12')
    e(f's_add_u32 {s(S_KMO)}, {s(S_T1)}, {WS_KM}')
    e(f's_lshl_b32 {s(S_T0)}, {s(S_W)}, 9')
    e(f's_add_u32 {s(S_VMO)}, {s(S_KMO)}, {s(S_T0)}')
    e(f's_add_u32 {s(S_NR)}, {s(S_WS)}, 0x5fffff')
    e(f's_and_b32 {s(S_NR)}, {s(S_NR)}, 0xffe00000')
    e(f's_sub_u32 {s(S_NR)}, {s(S_NR)}, {s(S_WS)}')
    e(f's_lshr_b32 {s(S_T1)}, {s(S_H)}, 2')
    e(f's_lshl_b32 {s(S_T1)}, {s(S_T1)}, 14')
    e(f's_add_u32 {s(S_VB0)}, {s(S_T0)}, {s(S_T1)}')
    e(f's_and_b32 {s(S_T1)}, {s(S_H)}, 3')
    e(f's_lshl_b32 {s(S_T1)}, {s(S_T1)}, 11')
    e(f's_add_u32 {s(S_VB0)}, {s(S_VB0)}, {s(S_T1)}')
    e(f's_add_u32 {s(S_VB0)}, {s(S_VB0)}, {NR_VB}')

    def load_weights(ulist, place_, vt_o, tmpbase, first):
        def issue(i):
            un = ulist[i]
            pos = i % NRING
            for q in range(4):
                if un[0] == 'o':
                    _, t, p = un
                    e(f's_add_u32 {s(S_T0)}, {s(S_T3)}, {(64 * t + 16 * q) * 1280 + 64 * p}')
                    srdn, vg = S_WO, VG_O
                else:
                    m, t = un
                    e(f's_add_u32 {s(S_T0)}, {s(S_T2)}, {(64 * t + 16 * q) * 8192}')
                    srdn, vg = {'q': S_WQ, 'k': S_WK, 'v': S_WV}[m], VG_QKV
                e(f's_add_u32 m0, {s(S_LDSW)}, {pos * 4096 + q * 1024}')
                e(f'buffer_load_dwordx4 {v(vg)}, {s(srdn, 4)}, {s(S_T0)} offen lds', tag=('dma', i))

        def process(i):
            un = ulist[i]
            pos = i % NRING
            e.wait_vm(('dma', i))
            vt = vt_o if un[0] == 'o' else VT_QKV
            for tau in range(2):
                kind, loc = place_[(un, tau)]
                dst = loc if kind == 'reg' else tmpbase + 8 * loc
                for n in range(4):
                    off = (8 * (n >> 1) + 2 * (n & 1)) * 64 + 32 * tau
                    e(f'ds_read_b64_tr_b16 {u(dst + 2 * n, 2)}, {v(vt)} offset:{pos * 4096 + off}')
            e.wait_lg()
        n = len(ulist)
        first()
        for i in range(NRING):
            issue(i)
        for i in range(n):
            process(i)
            if i + NRING < n:
                issue(i + NRING)

    def init_done(lab, inc='1'):
        e('s_waitcnt vmcnt(0)')
        e('s_barrier')
        e(f's_cmp_lg_u32 {s(S_W)}, 0')
        e(f's_cbranch_scc1 {lab}')
        e(f'v_mov_b32 v44, {D_INIT}')
        e(f'v_mov_b32 v45, {inc}')
        e('s_mov_b64 exec, 1')
        e(f'buffer_atomic_add v45, v44, {s(S_DBG, 4)}, 0 offen')
        e('s_mov_b64 exec, -1')
        e.label(lab)
        e.vm = []
        e.hist = []

    def init_wait(lab, t):
        e(f'v_mov_b32 {v(t + 2)}, 128')
        e.label(lab)
        wd()
        e('s_sleep 8')
        e(f'buffer_load_dwordx2 {v(t, 2)}, {v(t + 2)}, {s(S_DBG, 4)}, 0 offen sc1')
        e('s_waitcnt vmcnt(0)')
        e(f'v_readfirstlane_b32 {s(S_T0)}, {v(t)}')
        e(f'v_readfirstlane_b32 {s(S_T1)}, {v(t + 1)}')
        if nmoda:
            e(f's_cmp_lt_u32 {s(S_T0)}, {nmoda}')
            e(f's_cbranch_scc1 {lab}')
        e(f's_and_b32 {s(S_T0)}, {s(S_T1)}, 0xffff')
        e(f's_cmp_lt_u32 {s(S_T0)}, 64')
        e(f's_cbranch_scc1 {lab}')
        e(f's_lshr_b32 {s(S_T1)}, {s(S_T1)}, 16')
        e(f's_cmp_ge_u32 {s(S_T1)}, 16')
        e(f's_cselect_b32 {s(S_T0)}, 8192, 0')
        if 'far' in dbg:
            e(f's_xor_b32 {s(S_T0)}, {s(S_T0)}, 8192')
        e(f's_add_u32 {s(S_NR)}, {s(S_NR)}, {s(S_T0)}')
        e(f's_add_u32 {s(S_VB0)}, {s(S_VB0)}, {s(S_NR)}')
        e(f's_mov_b32 {s(S_VB)}, {s(S_VB0)}')

    def signal_block(t0):
        e(f's_lshl_b32 {s(S_T2)}, {s(S_T2)}, 7')
        e(f's_add_u32 {s(S_T2)}, {s(S_T2)}, {WS_CTR + C_CH * 128}')
        e(f'v_mov_b32 {v(t0)}, 1')
        e('s_mov_b64 exec, 1')
        e(f'buffer_atomic_add {v(t0)}, {v(V_LANE16)}, {s(S_WS, 4)}, {s(S_T2)} offen')
        e('s_mov_b64 exec, -1')

    def seg_signal():
        e('s_mov_b64 exec, 1')
        e(f'buffer_atomic_sub {v(V_M1)}, {v(V_LANE16)}, {s(S_WS, 4)}, {s(S_SIG)} offen')
        e('s_mov_b64 exec, -1')
        e(f's_add_u32 {s(S_SIG)}, {s(S_SIG)}, 128')

    def step_signal(L):
        if segsig is not None:
            return
        e(f's_and_b32 {s(S_T2)}, {s(S_STEP)}, 3')
        e(f's_lshl_b32 {s(S_T2)}, {s(S_T2)}, 2')
        e(f's_add_u32 {s(S_T2)}, {s(S_T2)}, {s(S_W)}')
        e(f's_cmp_lg_u32 {s(S_T2)}, 3')
        e(f's_cbranch_scc1 {L}_nosig')
        e(f's_cmp_eq_u32 {s(S_STEP)}, 0')
        e(f's_cbranch_scc1 {L}_nosig')
        e.cond_begin()
        e(f's_lshr_b32 {s(S_T2)}, {s(S_STEP)}, 2')
        e(f's_sub_u32 {s(S_T2)}, {s(S_T2)}, 1')
        signal_block(V_WT)
        e.cond_end()
        e.label(f'{L}_nosig')

    def tl(i):
        if 'tl' in dbg:
            e(f's_memrealtime {s(84 + 2 * i, 2)}')

    def tl_out(role, t):
        if 'tl' in dbg:
            e('s_waitcnt lgkmcnt(0)')
            for i in range(4):
                e(f'v_mov_b32 {v(t + i)}, {s(84 + 2 * i)}')
            e(f's_lshl_b32 {s(S_T0)}, {s(S_H)}, 2')
            e(f's_add_u32 {s(S_T0)}, {s(S_T0)}, {s(S_W)}')
            e(f's_lshl_b32 {s(S_T0)}, {s(S_T0)}, 6')
            e(f's_add_u32 {s(S_T0)}, {s(S_T0)}, {s(S_STEP)}')
            e(f's_lshl_b32 {s(S_T0)}, {s(S_T0)}, 4')
            e(f's_add_u32 {s(S_T0)}, {s(S_T0)}, {0x0F100000 + role * 0x40000}')
            e('s_mov_b64 exec, 1')
            e(f'buffer_store_dwordx4 {v(t, 4)}, {v(V_LANE16)}, {s(S_WS, 4)}, {s(S_T0)} offen')
            e('s_mov_b64 exec, -1')
            e.nop(2)

    def wd():
        if 'wd' in dbg:
            e('s_add_u32 s3, s3, 1')
            e('s_cmp_gt_u32 s3, 0x40000')
            _fj[0] += 1
            e(f's_cbranch_scc0 Lwd{_fj[0]}')
            e('s_endpgm')
            e.label(f'Lwd{_fj[0]}')

    def run(mf, side, ratio=2):
        side = list(side)
        for f in mf:
            f()
            for _ in range(ratio):
                if side:
                    side.pop(0)()
        for f in side:
            f()

    def fold(acc, dst):
        return [lambda: e(f'v_pk_add_f32 {v(acc, 2)}, {v(acc, 2)}, {v(acc + 2, 2)}'),
                lambda: e(f'v_cvt_pk_bf16_f32 {v(dst)}, {v(acc)}, {v(acc + 1)}')]

    def stamp_init():
        for i in range(17, 28):
            e(f's_mov_b32 {s(i)}, 0')
        e('s_memtime s[100:101]')
        e('s_waitcnt lgkmcnt(0)')
        for i in range(10):
            e(f's_mov_b32 {s(S_STAMP + 2 * i)}, s100')

    def stamp_acc(n):
        e('s_waitcnt lgkmcnt(0)')
        e(f's_sub_u32 {s(S_T0)}, {s(S_STAMP)}, s100')
        e(f's_add_u32 s17, s17, {s(S_T0)}')
        for i in range(n - 1):
            e(f's_sub_u32 {s(S_T0)}, {s(S_STAMP + 2 * i + 2)}, {s(S_STAMP + 2 * i)}')
            e(f's_add_u32 {s(18 + i)}, {s(18 + i)}, {s(S_T0)}')
        e(f's_mov_b32 s100, {s(S_STAMP + 2 * (n - 1))}')

    def stamp_out():
        e('v_mov_b32 v40, 0')
        for i in range(11):
            e(f'v_writelane_b32 v40, {s(17 + i)}, {i}')
        e(f'v_lshrrev_b32 v41, 2, {v(V_LANE16)}')
        e(f's_lshl_b32 {s(S_T0)}, {s(S_H)}, 2')
        e(f's_add_u32 {s(S_T0)}, {s(S_T0)}, {s(S_W)}')
        e(f's_lshl_b32 {s(S_T0)}, {s(S_T0)}, 8')
        e(f's_add_u32 {s(S_T0)}, {s(S_T0)}, 0x0F000000')
        e(f'buffer_store_dword v40, v41, {s(S_WS, 4)}, {s(S_T0)} offen')

    e(f's_cmp_eq_u32 {s(S_MODE)}, 0')
    e(f's_cbranch_scc1 {name}_chain')
    far_jump(e, f'{name}_helper', 44)
    e.label(f'{name}_chain')

    pool = Pool(NPERS, pool_end)
    cc = f32bits((128 ** -0.5) * 1.4426950408889634)
    e(f's_mov_b32 {s(S_C1)}, {cc:#x}')
    e(f's_mov_b32 {s(S_C1 + 1)}, {cc:#x}')
    e(f's_mov_b32 {s(S_MASKLO)}, -1')
    e(f's_mov_b32 {s(S_MASKLO + 1)}, 0')
    e(f's_lshl_b32 {s(S_T0)}, {s(S_H)}, 1')
    e(f's_add_u32 {s(S_T0)}, {s(S_T0)}, {s(S_W)}')
    e(f's_lshr_b32 {s(S_T1)}, {s(S_T0)}, 4')
    e(f's_and_b32 {s(S_T0)}, {s(S_T0)}, 15')
    e(f's_mul_i32 {s(S_T1)}, {s(S_T1)}, 20')
    e(f's_add_u32 {s(S_UNIT)}, {s(S_T0)}, {s(S_T1)}')
    e(f's_add_u32 {s(S_UNIT)}, {s(S_UNIT)}, 4')
    e(f's_lshr_b32 {s(S_T1)}, {s(S_H)}, 2')
    e(f's_mul_i32 {s(S_T1)}, {s(S_T1)}, 20')
    e(f's_and_b32 {s(S_T0)}, {s(S_H)}, 3')
    e(f's_add_u32 {s(S_T0)}, {s(S_T0)}, {s(S_T1)}')
    e(f's_cmp_lt_u32 {s(S_H)}, 16')
    e(f's_cselect_b32 {s(S_T0)}, {s(S_T0)}, 255')
    e(f's_cmp_eq_u32 {s(S_W)}, 2')
    e(f's_cselect_b32 {s(S_UNIT)}, {s(S_T0)}, {s(S_UNIT)}')
    e(f's_cmp_eq_u32 {s(S_W)}, 3')
    e(f's_cselect_b32 {s(S_UNIT)}, 255, {s(S_UNIT)}')
    e(f's_mul_i32 {s(S_GOF)}, {s(S_W)}, 2560')

    def chain_init():
        e('s_load_dwordx2 s[76:77], s[0:1], 8')
        for j in range(4):
            e(f'v_mov_b32 {v(40 + j)}, -1')
        e(f's_lshl_b32 {s(S_T0)}, {s(S_H)}, 2')
        e(f's_add_u32 {s(S_T0)}, {s(S_T0)}, {s(S_W)}')
        e(f's_mul_i32 {s(S_T1)}, {s(S_T0)}, 2560')
        for sl_ in range(2):
            e(f's_add_u32 s78, {s(S_T1)}, {WS_PB + sl_ * PB_STRIDE}')
            for i in range(3):
                e(f'buffer_store_dwordx4 v[40:43], {v(V_LANE16)}, {s(S_WS, 4)}, s78 offen offset:{1024 * i} sc1')
        e(f's_lshl_b32 s78, {s(S_T0)}, 10')
        e(f's_add_u32 s79, s78, {WS_MB + MB_STRIDE}')
        e(f'buffer_store_dwordx4 v[40:43], {v(V_LANE16)}, {s(S_WS, 4)}, s79 offen sc1')
        e(f's_add_u32 s79, s78, {s(S_NR)}')
        e('s_add_u32 s79, s79, 32768')
        e(f's_cmp_ge_u32 {s(S_T0)}, 96')
        e('s_cselect_b32 s79, 0x40000000, s79')
        e(f'buffer_store_dwordx4 v[40:43], {v(V_LANE16)}, {s(S_WS, 4)}, s79 offen sc1')
        e('v_mov_b32 v44, 0')
        e(f's_lshl_b32 s78, {s(S_H)}, 7')
        e(f's_add_u32 s78, s78, {s(S_NR)}')
        e(f's_add_u32 s78, s78, {NR_PING}')
        e('s_add_u32 s79, s78, 8192')
        e(f'buffer_store_dword v44, {v(V_MBST)}, {s(S_WS, 4)}, s78 offen sc1')
        e(f'buffer_store_dword v44, {v(V_MBST)}, {s(S_WS, 4)}, s79 offen sc1')
        e('s_waitcnt lgkmcnt(0)')
        e('s_mov_b32 s80, s76')
        e('s_and_b32 s81, s77, 0xffff')
        e('s_mov_b32 s82, 10240')
        e('s_mov_b32 s83, 0x20000')
        e(f's_cmp_ge_u32 {s(S_T0)}, 40')
        e(f's_cbranch_scc1 {name}_nom0')
        e(f's_lshl_b32 s78, {s(S_T0)}, 6')
        e(f'v_lshrrev_b32 v44, 4, {v(V_LANE16)}')
        e('v_add_u32 v44, s78, v44')
        e('v_and_b32 v45, 1, v44')
        e('v_bfe_u32 v46, v44, 1, 2')
        e('v_bfe_u32 v47, v44, 3, 4')
        e('v_lshrrev_b32 v48, 7, v44')
        e('v_lshl_add_u32 v47, v45, 4, v47')
        e('v_lshl_add_u32 v47, v48, 5, v47')
        e('v_mul_u32_u24 v46, 2560, v46')
        e('v_lshl_add_u32 v46, v47, 1, v46')
        e('buffer_load_ushort v45, v46, s[80:83], 0 offen')
        e('buffer_load_ushort v47, v46, s[80:83], 0 offen offset:1280')
        e('v_lshlrev_b32 v44, 2, v44')
        e('s_waitcnt vmcnt(0)')
        e('v_lshl_or_b32 v45, v47, 16, v45')
        e('v_min_u32 v45, 0xfffffffe, v45')
        e(f's_mov_b32 s78, {WS_MB}')
        e(f's_cmp_ge_u32 {s(S_T0)}, 32')
        e('s_cselect_b32 s79, 8192, 0')
        e(f's_add_u32 s79, s79, {s(S_NR)}')
        e('s_add_u32 s80, s79, 8192')
        e(f'buffer_store_dword v45, v44, {s(S_WS, 4)}, s78 offen sc1')
        e(f'buffer_store_dword v45, v44, {s(S_WS, 4)}, s79 offen sc1')
        e(f'buffer_store_dword v45, v44, {s(S_WS, 4)}, s80 offen sc1')
        e.label(f'{name}_nom0')
        init_done(f'{name}_noib')

    assert 32 + 8 * n_lds <= pool_end
    load_weights(units, place, VT_O, 32, chain_init)
    e('s_barrier')
    for i in range(n_lds):
        e(f'ds_write_b128 {v(V_LDSW)}, {v(32 + 8 * i, 4)} offset:{2048 * i}')
        e(f'ds_write_b128 {v(V_LDSW)}, {v(36 + 8 * i, 4)} offset:{2048 * i + 1024}')
    e.wait_lg()

    TT = NPERS
    e(f'v_and_b32 {v(TT)}, 16, {v(V_LANE16)}')
    e(f's_mov_b32 {s(S_T0)}, 0x3f80')
    e(f'v_lshlrev_b32 {v(TT)}, {v(TT)}, {s(S_T0)}')
    e(f'v_bfe_u32 {v(TT + 1)}, {v(V_LANE16)}, 5, 2')
    for rr in range(4):
        e(f'v_cmp_eq_u32 vcc, {rr}, {v(TT + 1)}')
        e(f'v_cndmask_b32 {v(V_SEL + rr)}, 0, {v(TT)}, vcc')
        e(f'v_mov_b32 {v(V_ONES + rr)}, 0x3f803f80')
    e(f'v_mov_b32 {v(V_PM + 1)}, 0')
    e(f'v_mov_b32 {v(V_PM + 2)}, 0')
    e(f's_add_u32 {s(S_MBB)}, {s(S_GOF)}, {WS_MB}')
    e(f's_mov_b32 {s(S_MBP)}, {s(S_MBB)}')
    e(f's_add_u32 {s(S_MBP + 1)}, {s(S_MBB)}, 4096')
    e(f's_add_u32 {s(S_PBST)}, {s(S_PBST)}, {WS_PB}')
    for p in range(1, 5):
        e(f's_add_u32 {s(S_PBST + p)}, {s(S_PBST)}, {p * 16384}')
    e(f's_lshl_b32 {s(S_T0)}, {s(S_UNIT)}, 12')
    e(f's_add_u32 {s(S_PBLD)}, {s(S_T0)}, {WS_PB}')
    e(f's_lshl_b32 {s(S_MBL)}, {s(S_UNIT)}, 7')
    e(f's_add_u32 {s(S_MBL)}, {s(S_MBL)}, {WS_MB}')
    e(f's_mov_b32 {s(S_MBC)}, {s(S_MBL)}')
    e(f's_add_u32 {s(S_MBN)}, {s(S_MBL)}, {MB_STRIDE}')
    e(f's_lshl_b32 {s(S_SH13)}, {s(S_H)}, 13')
    e(f's_lshl_b32 {s(S_T0)}, {s(S_W)}, 9')
    e(f's_add_u32 {s(S_KXM2)}, {s(S_T0)}, {L_MK}')
    e(f's_mov_b32 {s(S_MBR2)}, 0x40000000')
    e(f's_lshl_b32 {s(S_T0)}, {s(S_W)}, 11')
    e(f's_add_u32 {s(S_VXO)}, {s(S_T0)}, {s(S_SH13)}')
    e(f's_add_u32 {s(S_WRM)}, {s(S_VXO)}, {WS_KX + 32 * 8192}')
    e(f's_add_u32 {s(S_VXO)}, {s(S_VXO)}, {WS_VXT}')
    e(f's_add_u32 {s(S_KXM)}, {s(S_T0)}, {L_KX}')
    e(f's_lshr_b32 {s(S_T0)}, {s(S_W)}, 1')
    e(f's_lshl_b32 {s(S_T0)}, {s(S_T0)}, 12')
    e(f's_and_b32 {s(S_T1)}, {s(S_W)}, 1')
    e(f's_lshl_b32 {s(S_T1)}, {s(S_T1)}, 7')
    e(f's_add_u32 {s(S_KXW)}, {s(S_T0)}, {s(S_T1)}')
    e(f's_add_u32 {s(S_KXW)}, {s(S_KXW)}, {s(S_SH13)}')
    e(f's_add_u32 {s(S_KXW)}, {s(S_KXW)}, {WS_KX}')

    def kx_items():
        return [
            lambda: e(f's_mov_b32 m0, {s(S_KXM)}'),
            lambda: e(f'buffer_load_dwordx4 {v(V_KXG)}, {s(S_WS, 4)}, {s(S_KXW)} offen {ldfl} lds', tag='kx'),
            lambda: e(f's_add_u32 {s(S_T0)}, {s(S_KXW)}, 64'),
            lambda: e(f's_add_u32 m0, {s(S_KXM)}, 1024'),
            lambda: e(f'buffer_load_dwordx4 {v(V_KXG)}, {s(S_WS, 4)}, {s(S_T0)} offen {ldfl} lds', tag='kx'),
            lambda: e(f's_add_u32 {s(S_KXW)}, {s(S_KXW)}, {32 * 8192}'),
        ]

    def kv_wait(lab, t1):
        e(f's_cmp_ge_u32 {s(S_KVOK)}, {s(S_T2)}')
        e(f's_cbranch_scc1 {lab}_ok')
        e.cond_begin()
        e(f's_mov_b32 {s(S_T3)}, {WS_CTR + C_KV * 128}')
        e.label(f'{lab}_spin')
        e(f'buffer_load_dword {v(t1)}, {v(V_WA)}, {s(S_WS, 4)}, {s(S_T3)} offen sc1')
        e('s_waitcnt vmcnt(0)')
        e(f'v_cmp_le_u32 vcc, 32, {v(t1)}')
        e(f's_and_b32 {s(S_KVOK)}, vcc_lo, 0xffff')
        e(f's_ff0_i32_b32 {s(S_KVOK)}, {s(S_KVOK)}')
        e(f's_cmp_ge_u32 {s(S_KVOK)}, {s(S_T2)}')
        e(f's_cbranch_scc0 {lab}_spin')
        e.cond_end()
        e.label(f'{lab}_ok')

    def claim(b, n):
        for i in range(n):
            assert (b + i) in pool.free_, ('claim', b, n)
            pool.free_.remove(b + i)

    ACC = pool.must(16)
    init_wait(f'{name}_ibw', ACC)
    e(f's_lshl_b32 {s(S_MBL2)}, {s(S_UNIT)}, 7')
    e(f's_cmp_ge_u32 {s(S_UNIT)}, 64')
    e(f's_cselect_b32 {s(S_T0)}, 8192, 0')
    e(f's_add_u32 {s(S_MBL2)}, {s(S_MBL2)}, {s(S_T0)}')
    e(f's_add_u32 {s(S_MBL2)}, {s(S_MBL2)}, {s(S_NR)}')
    e(f's_mov_b32 {s(S_MBC2)}, {s(S_MBL2)}')
    e(f's_add_u32 {s(S_MBN2)}, {s(S_MBL2)}, 32768')
    e(f's_lshl_b32 {s(S_PING)}, {s(S_H)}, 7')
    e(f's_add_u32 {s(S_PING)}, {s(S_PING)}, {s(S_NR)}')
    e(f's_add_u32 {s(S_PING)}, {s(S_PING)}, {NR_PING}')
    e(f's_cmp_eq_u32 {s(S_W)}, 3')
    e(f's_cselect_b32 {s(S_PING)}, {s(S_PING)}, 0x40000000')
    e(f'buffer_load_dword {v(ACC)}, {v(ACC + 2)}, {s(S_DBG, 4)}, 0 offen offset:8 sc1')
    e('s_waitcnt vmcnt(0)')
    e(f'v_readfirstlane_b32 {s(S_MODE)}, {v(ACC)}')
    if mega:
        e(f's_mov_b32 {s(S_KVOK)}, 0')
        e(f's_mov_b32 {s(S_T2)}, 1')
        kv_wait(f'{name}_kv0', ACC)
    for j in range(0, 16, 2):
        e(f'v_mov_b64 {v(ACC + j, 2)}, 0')
    KMT = pool.must(2)
    if segsig is not None:
        e(f's_cmp_eq_u32 {s(S_W)}, 1')
        e(f's_mov_b32 {s(S_SIG)}, {segsig - 256}')
        e(f's_cselect_b32 {s(S_SIG)}, {s(S_SIG)}, 0x40000000')
    e(f's_lshl_b32 {s(S_T1)}, {s(S_W)}, 9')
    e(f's_mov_b32 {s(S_VMO)}, 0x40000000')
    pre_slots = [sl for sl in order if place[sl][0] == 'lds'][:npre]
    PRE = [pool.alloc(8, 8, top=True) for _ in pre_slots]

    def pre_load():
        for sl, b in zip(pre_slots, PRE):
            loc = place[sl][1] * 2048
            e(f'ds_read_b128 {v(b, 4)}, {v(V_LDSW)} offset:{loc}')
            e(f'ds_read_b128 {v(b + 4, 4)}, {v(V_LDSW)} offset:{loc + 1024}')
    pre_load()
    for it in kx_items():
        it()
    e('s_waitcnt vmcnt(0) lgkmcnt(0)')
    e.vm = []
    e.lg = []
    if 'rt' in dbg:
        e('s_memrealtime s[98:99]')
        e('s_waitcnt lgkmcnt(0)')
    if 'tot' in dbg:
        e('s_memtime s[96:97]')
        e('s_waitcnt lgkmcnt(0)')
    if stamps:
        stamp_init()
    if slow:
        e(f's_cmp_lg_u32 {s(S_MODE)}, 0')
        e(f's_cbranch_scc1 {name}_slow')

    def k_out(KO):
        e(f'ds_read_b128 {v(KO, 4)}, {v(V_LANE16)} offset:{L_MK}', tag='ko')
        e(f'ds_read_b128 {v(KO + 4, 4)}, {v(V_LANE16)} offset:{L_MK + 1024}', tag='ko')
        e('s_waitcnt lgkmcnt(0)')
        e(f'buffer_store_dwordx4 {v(KO, 4)}, {v(V_LANE16)}, {s(S_WS, 4)}, {s(S_KMO)} offen {ostfl}')
        e(f'buffer_store_dwordx4 {v(KO + 4, 4)}, {v(V_LANE16)}, {s(S_WS, 4)}, {s(S_KMO)} offen offset:1024 {ostfl}')

    def body(sc, L):
        stamp_i = [0]
        call_i = [0]

        def stamp():
            call_i[0] += 1
            if stamps and (call_i[0] - 1) in stsel:
                e(f's_memtime {s(S_STAMP + 2 * stamp_i[0], 2)}')
                stamp_i[0] += 1

        e.label(L)
        e.hist = []
        e.vm = []
        e.lg = []
        stamp()
        G0 = pool.must(20)
        GM = pool.must(2)
        e(f'v_add_u32 {v(GM + 1)}, {s(S_GOF)}, {v(V_LANE16)}')
        if ackA:
            e('s_waitcnt vmcnt(0)')
        if b0:
            e('s_barrier')
        if adel:
            e(f's_sleep {adel}')
        e.label(f'{L}_pollA')
        e.hist = []
        wd()
        if stamps:
            e('s_add_u32 s27, s27, 0x10000')
        for i in range(3):
            e(f'buffer_load_dwordx4 {v(G0 + 4 * i, 4)}, {v(V_LANE16)}, {s(S_WS, 4)}, {s(S_MBP)} offen offset:{(0, 1024, 1536)[i]} sc1')
        for i in range(3):
            e(f's_waitcnt vmcnt({2 - i})')
            e(f'ds_write_b128 {v(GM + 1)}, {v(G0 + 4 * i, 4)} offset:{(0, 1024, 1536)[i]}')
        e(f'v_max3_u32 {v(GM)}, {v(G0)}, {v(G0 + 4)}, {v(G0 + 8)}')
        e(f'v_cmp_eq_u32 vcc, -1, {v(GM)}')
        e('s_mov_b64 exec, vcc')
        e(f's_cbranch_execnz {L}_pollA')
        e('s_mov_b64 exec, -1')
        e('s_waitcnt lgkmcnt(0)')
        e.label(f'{L}_gd')
        e('s_barrier')
        e.vm = []
        e.lg = []
        e.hist = []
        stamp()
        tl(0)
        pool.free(G0, 20)
        pool.free(GM, 2)

        loaded = {sl: b for sl, b in zip(pre_slots, PRE)}
        lds_pending = [sl for sl in order if place[sl][0] == 'lds' and sl not in loaded]
        st = dict(reserve=0)

        def pump_lds(cur_idx, force=False):
            while lds_pending and order.index(lds_pending[0]) <= cur_idx + la_lds:
                need = force and order.index(lds_pending[0]) <= cur_idx
                b = pool.alloc(8, 8, top=True, reserve=0 if need else st['reserve'])
                if b is None:
                    assert not need, 'no buffer for lds slot'
                    return
                lead = order.index(lds_pending[0]) - cur_idx
                if lead < 4 and cur_idx != 40:
                    print('; WARNING short lds lead', order.index(lds_pending[0]), lead)
                sl = lds_pending.pop(0)
                loc = place[sl][1] * 2048
                e(f'ds_read_b128 {v(b, 4)}, {v(V_LDSW)} offset:{loc}', tag=('lw', sl))
                e(f'ds_read_b128 {v(b + 4, 4)}, {v(V_LDSW)} offset:{loc + 1024}', tag=('lw', sl))
                loaded[sl] = b

        def smf(acc, af, sl):
            idx = order.index(sl)
            kind, loc = place[sl]
            if kind == 'reg':
                b = loc
            else:
                if sl not in loaded:
                    pump_lds(idx, True)
                b = loaded[sl]
                e.wait_lg(('lw', sl))
            e(f'v_smfmac_f32_16x16x64_bf16 {v(acc, 4)}, {v(af, 4)}, {u(b, 8)}, {v(V_IDX)}')
            if kind != 'reg':
                pool.free(b, 8)
            pump_lds(idx + 1)

        AF = {}
        afpos = [0]
        first_use = [min(i for i, o in enumerate(order[:40]) if o[0][1] == t) for t in range(10)]

        def af_pump(i):
            while afpos[0] < 10 and first_use[afpos[0]] - i <= afl:
                k = afpos[0]
                afpos[0] += 1
                b = AF[k] = pool.must(4)
                e(f'ds_read_b64_tr_b16 {v(b, 2)}, {v(V_AF)} offset:{1024 * k}', tag=('af', k))
                e(f'ds_read_b64_tr_b16 {v(b + 2, 2)}, {v(V_AF)} offset:{1024 * k + 512}', tag=('af', k))

        af_pump(0)
        accof = {'q': 0, 'k': 8}
        waited = set()

        def mk(i, sl):
            (m, t), tau = sl
            last = not any(o[0][1] == t for o in order[i + 1:40])

            def f():
                if t not in waited:
                    e.wait_lg(('af', t))
                    waited.add(t)
                smf(ACC + accof[m] + 4 * tau, AF[t], sl)
                if last:
                    pool.free(AF[t], 4)
                af_pump(i + 1)
            return f
        mf = [mk(i, sl) for i, sl in enumerate(order[:40])]
        run(mf[:wat], [], 0)
        if mega:
            e(f's_add_u32 {s(S_T2)}, {s(S_STEP)}, 5')
            e(f's_lshr_b32 {s(S_T2)}, {s(S_T2)}, 2')
            e(f's_min_u32 {s(S_T2)}, {s(S_T2)}, 16')
            kv_wait(f'{L}_kv', V_WT)
        VX = pool.must(8)
        e(f'buffer_load_dwordx4 {v(VX, 4)}, {v(V_LANE16)}, {s(S_WS, 4)}, {s(S_VXO)} offen {ldfl}', tag='vx')
        e(f'buffer_load_dwordx4 {v(VX + 4, 4)}, {v(V_LANE16)}, {s(S_WS, 4)}, {s(S_VXO)} offen offset:1024 {ldfl}', tag='vx')

        def warm_at(pos):
            for p_, what in warm:
                if p_ != pos:
                    continue
                isv = what in (1, 20, 21)
                if what >= 10:
                    e(f's_mov_b64 exec, {0xff00 if what & 1 else 0xff}')
                if isv:
                    e(f's_add_u32 {s(S_T0)}, {s(S_WRM)}, {WS_VXT - WS_KX}')
                e(f'buffer_load_dword {v(V_WT)}, {v(V_WA)}, {s(S_WS, 4)}, {s(S_T0 if isv else S_WRM)} offen', tag='warm')
                if what >= 10:
                    e('s_mov_b64 exec, -1')
        warm_at('a')
        e(f'buffer_store_dwordx2 {v(KMT, 2)}, {v(V_L8)}, {s(S_WS, 4)}, {s(S_VMO)} offen {ostfl}')
        if 'nomb2' not in dbg:
            e(f'buffer_store_dword {v(V_M1)}, {v(V_MBST)}, {s(S_WS, 4)}, {s(S_MBR2)} offen sc1')
        if segsig is not None:
            seg_signal()
        pool.free(KMT, 2)
        st['reserve'] = 99
        SM = pool.must(8, 8)
        ZQ = SM
        ZV = SM + 4
        kxb, sbuf = {}, {}

        def kx_read(f_, rsv=0):
            def g_():
                b = pool.alloc(4, reserve=rsv)
                if b is None:
                    return
                kxb[f_] = b
                e(f'ds_read_b128 {v(b, 4)}, {v(V_LANE16)} offset:{L_KX + f_ * 1024}', tag=('kx', f_))
            return g_

        def qm_read(kind, uu):
            def g_():
                b = sbuf[(kind, uu)] = pool.must(4)
                base = 0 if kind == 'q' else 2048
                for m in range(2):
                    e(f'ds_read_b64_tr_b16 {v(b + 2 * m, 2)}, {v(V_QKR)} offset:{base + uu * 512 + m * 256}', tag=('si', kind, uu))
            return g_

        def v_load():
            tl(1)
            e(f'buffer_load_dwordx2 {v(ZV, 2)}, {v(V_L8)}, {s(S_WS, 4)}, {s(S_VB)} offen sc1', tag='vm')
            warm_at('v')
        run(mf[wat:wat2], [], 0)
        warm_at('a2')
        run(mf[wat2:NQE - 4], [], 0)
        run(mf[NQE - 4:NQE], [kx_read(0), kx_read(4), kx_read(1), kx_read(5)], 1)
        late = mf[NQE:40]
        vxl = []
        qf = fold(ACC, ZQ) + fold(ACC + 4, ZQ + 1) + [
            lambda: e(f'ds_write2st64_b32 {v(V_QKW)}, {v(ZQ)}, {v(ZQ + 1)} offset0:0 offset1:1', tag='qw')]
        kf = fold(ACC + 8, ZQ + 2) + fold(ACC + 12, ZQ + 3) + [
            lambda: e(f'ds_write2st64_b32 {v(V_QKW)}, {v(ZQ + 2)}, {v(ZQ + 3)} offset0:8 offset1:9', tag='kw')]
        n1 = min(len(late), 1)
        n2 = min(len(late), 3)
        n3 = min(len(late), 6)
        run(late[:n1], vxl, 2)
        run(late[n1:n2], qf, 3)
        run(late[n2:n3], [], 1)
        stamp()
        e.wait_lg('qw')
        e('s_barrier')
        pool.free(ACC, 8)
        SX = ACC
        claim(SX, 8)
        qm_read('q', 0)()
        run(late[n3:], [qm_read('q', uu) for uu in range(1, 4)], 1)
        stamp()

        def sx(uu, ti):
            def f():
                f_ = uu + 4 * ti
                if f_ not in kxb:
                    kx_read(f_)()
                e.wait_lg(('si', 'q', uu))
                e.wait_lg(('kx', f_))
                cin = '0' if uu == 0 else v(SX + 4 * ti, 4)
                e(f'v_mfma_f32_16x16x32_bf16 {v(SX + 4 * ti, 4)}, {v(kxb[f_], 4)}, {v(sbuf[("q", uu)], 4)}, {cin}')
                pool.free(kxb[f_], 4)
            return f
        sxl = [sx(uu, ti) for uu in range(4) for ti in range(2)]
        run(sxl[:2], [], 0)
        run([], kf, 0)
        for f_ in (2, 6, 3, 7):
            kx_read(f_)()
        run(sxl[2:4], [], 0)
        if v_at == 0:
            v_load()
        e.wait_lg('kw')
        e('s_barrier')
        e(f's_cmp_eq_u32 {s(S_STEP)}, {nsteps - 1}')
        e(f's_cbranch_scc1 {name}_fin')
        pool.free(ACC + 8, 8)
        C0 = ACC + 8
        claim(C0, 4)
        qm_read('m', 0)()
        run(sxl[4:], [qm_read('m', uu) for uu in range(1, 4)], 1)
        if v_at == 1:
            v_load()
        M = SM
        for uu in range(4):
            e.wait_lg(('si', 'm', uu))
            cin = '0' if uu == 0 else v(C0, 4)
            e(f'v_mfma_f32_16x16x32_bf16 {v(C0, 4)}, {v(sbuf[("m", uu)], 4)}, {v(sbuf[("q", uu)], 4)}, {cin}')
            pool.free(sbuf[('m', uu)], 4)
            pool.free(sbuf[('q', uu)], 4)
        P = pool.must(4)
        OA = pool.must(12)
        if v_at == 2:
            v_load()
        e(f'v_max3_f32 {v(M)}, {v(SX)}, {v(SX + 1)}, {v(SX + 2)}')
        e(f'v_max3_f32 {v(M + 1)}, {v(SX + 3)}, {v(SX + 4)}, {v(SX + 5)}')
        e(f'v_max3_f32 {v(M)}, {v(M)}, {v(SX + 6)}, {v(SX + 7)}')
        stamp()
        OACC = [pool.must(8) for _ in range(noa)]
        zl = [(lambda b=b, j=j: e(f'v_mov_b64 {v(b + j, 2)}, 0')) for b in OACC for j in range(0, 8, 2)]

        def z(n=1):
            for _ in range(n):
                if zl:
                    zl.pop(0)()
        z(2)
        e(f'v_cndmask_b32 {v(C0)}, {v(C0 + 2)}, {v(C0)}, {s(S_MASKLO, 2)}')
        e(f'v_cndmask_b32 {v(C0 + 1)}, {v(C0 + 3)}, {v(C0 + 1)}, {s(S_MASKLO, 2)}')
        e(f'v_max3_f32 {v(M + 1)}, {v(M + 1)}, {v(C0)}, {v(C0 + 1)}')
        e(f'v_max_f32 {v(M)}, {v(M)}, {v(M + 1)}')
        e(f'v_max_f32 {v(M + 1)}, {v(M)}, {v(M + 1)}')
        z(2)
        e(f'v_permlane32_swap_b32 {v(M)}, {v(M + 1)}')
        e(f'v_max_f32 {v(M + 2)}, {v(M)}, {v(M + 1)}')
        e(f'v_max_f32 {v(M + 1)}, {v(M)}, {v(M + 1)}')
        z(2)
        e(f'v_permlane16_swap_b32 {v(M + 2)}, {v(M + 1)}')
        e(f'v_max_f32 {v(M)}, {v(M + 2)}, {v(M + 1)}')
        e(f'v_mul_f32 {v(M)}, {s(S_C1)}, {v(M)}')
        if v_at == 3:
            v_load()
        for j in range(0, 10, 2):
            e(f'v_pk_fma_f32 {v(SX + j, 2)}, {v(SX + j, 2)}, {s(S_C1, 2)}, {v(M, 2)} op_sel_hi:[1,1,0] neg_lo:[0,0,1] neg_hi:[0,0,1]')
        for j in range(8):
            e(f'v_exp_f32 {v(SX + j)}, {v(SX + j)}')
        for j in range(4):
            e(f'v_cvt_pk_bf16_f32 {v(P + j)}, {v(SX + 2 * j)}, {v(SX + 2 * j + 1)}')
        e.wait_vm('vx')
        e(f'v_exp_f32 {v(C0)}, {v(C0)}')
        e(f'v_mfma_f32_16x16x32_bf16 {v(OA + 8, 4)}, {v(V_ONES, 4)}, {v(P, 4)}, 0')
        e(f'v_exp_f32 {v(C0 + 1)}, {v(C0 + 1)}')
        e(f'v_mfma_f32_16x16x32_bf16 {v(OA, 4)}, {v(VX, 4)}, {v(P, 4)}, 0')
        e(f'v_cvt_pk_bf16_f32 {v(V_PM)}, {v(C0)}, {v(C0 + 1)}')
        e(f'v_cvt_pk_bf16_f32 {v(V_PM + 3)}, {v(C0)}, {v(C0 + 1)}')
        e(f'v_mfma_f32_16x16x32_bf16 {v(OA + 4, 4)}, {v(VX + 4, 4)}, {v(P, 4)}, 0')
        z(2)
        e(f'v_mfma_f32_16x16x16_bf16 {v(OA + 8, 4)}, {v(V_ONES, 2)}, {v(V_PM, 2)}, {v(OA + 8, 4)}')
        z(99)
        if 'nov' not in dbg:
            e.wait_vm('vm')
            e(f'v_cmp_eq_u32 vcc, -1, {v(ZV)}')
            e(f's_cbranch_vccnz {L}_fixv')
            e.label(f'{L}_pv2')
        e(f'v_mfma_f32_16x16x16_bf16 {v(OA, 4)}, {v(ZV, 2)}, {v(V_PM, 2)}, {v(OA, 4)}')
        e(f'v_mfma_f32_16x16x16_bf16 {v(OA + 4, 4)}, {v(ZV, 2)}, {v(V_PM + 2, 2)}, {v(OA + 4, 4)}')
        if hup:
            e(f'v_add_u32_e64 {v(SX)}, {s(S_STEP)}, 1')
            e(f'buffer_store_dword {v(SX)}, {v(V_MBST)}, {s(S_WS, 4)}, {s(S_PING)} offen sc1')
        pool.free(SX, 8)
        pool.free(VX, 8)
        pool.free(C0, 4)
        OF = pool.must(8)
        warm_at('b')
        st['reserve'] = 0
        pump_lds(40)
        e(f'v_rcp_f32 {v(M)}, {v(OA + 8)}')
        for j in range(0, 8, 2):
            e(f'v_pk_mul_f32 {v(OA + j, 2)}, {v(OA + j, 2)}, {v(M, 2)} op_sel_hi:[1,0]')
        for j in range(4):
            e(f'v_cvt_pk_bf16_f32 {v(P + j)}, {v(OA + 2 * j)}, {v(OA + 2 * j + 1)}')
        e(f'ds_write_b128 {v(V_OW)}, {v(P, 4)}', tag='ow')
        pool.free(OA, 12)
        sc_items = [f's_add_u32 {s(S_VXO)}, {s(S_VXO)}, {32 * 8192}',
                    f's_lshl_b32 {s(S_T0)}, {s(S_W)}, 9', f's_add_u32 {s(S_VMO)}, {s(S_KMO)}, {s(S_T0)}',
                    f's_add_u32 {s(S_MSL)}, {s(S_MSL)}, {MB_STRIDE}', f's_and_b32 {s(S_MSL)}, {s(S_MSL)}, {3 * MB_STRIDE}',
                    f's_add_u32 {s(S_MBP)}, {s(S_MSL)}, {s(S_MBB)}',
                    f's_lshl_b32 {s(S_T0)}, {s(S_MSL)}, 3', f's_add_u32 {s(S_VB)}, {s(S_VB0)}, {s(S_T0)}']
        for x in sc_items:
            e(x)
        e.wait_lg('ow')
        e('s_barrier')
        pool.free(P, 4)
        e(f'ds_read_b128 {v(OF, 4)}, {v(V_OR)}', tag='of0')
        e(f'ds_read_b128 {v(OF + 4, 4)}, {v(V_OR)} offset:1024', tag='of1')
        pump_lds(40)
        for f in kx_items():
            f()
        warm_at('c')
        e(f's_add_u32 {s(S_WRM)}, {s(S_WRM)}, {32 * 8192}')
        stamp()
        ZO = [SM, SM + 2, SM + 4]

        def finish(p):
            ac = OACC[p % noa]
            zz = ZO[p % 3]
            it = fold(ac, zz) + fold(ac + 4, zz + 1)
            if p + noa < 5:
                it += [(lambda j=j: e(f'v_mov_b64 {v(ac + j, 2)}, 0')) for j in range(0, 4, 2)]
            it += [lambda: e(f'v_permlane16_swap_b32 {v(zz)}, {v(zz + 1)}'),
                   lambda: e(f'buffer_store_dwordx2 {v(zz, 2)}, {v(V_PBST)}, {s(S_WS, 4)}, {s(S_PBST + p)} offen {sc}', tag='pst')]
            if p + noa < 5:
                it += [(lambda j=j: e(f'v_mov_b64 {v(ac + j, 2)}, 0')) for j in range(4, 8, 2)]
            else:
                it += [lambda: pool.free(ac, 8)]
            return it
        for p in range(5):
            ac = OACC[p % noa]
            mo = []
            for t in range(2):
                for tau in range(2):
                    def f(t=t, tau=tau):
                        if p == 0 and tau == 0:
                            e.wait_lg(f'of{t}')
                        smf(ac + 4 * tau, OF + 4 * t, (('o', t, p), tau))
                    mo.append(f)
            side = finish(p - 1) if p >= 1 else []
            run(mo[:1], [], 0)
            run(mo[1:], side, 3)
        for f in finish(4):
            f()
        stamp()
        tl(3)
        pool.free(OF, 8)
        pool.free(SM, 8)
        assert not lds_pending
        claim(ACC, 16)
        for b in PRE:
            claim(b, 8)
        claim(KMT, 2)
        e(f'v_add_u32 {v(KMT)}, {s(S_KXM2)}, {v(V_L8)}')
        e(f'ds_read_b64 {v(KMT, 2)}, {v(KMT)}')
        pre_load()
        for j in range(0, 16, 2):
            e(f'v_mov_b64 {v(ACC + j, 2)}, 0')
        for p in range(5):
            e(f's_xor_b32 {s(S_PBST + p)}, {s(S_PBST + p)}, {PB_STRIDE}')
        e(f's_cmp_ge_u32 {s(S_UNIT)}, 80')
        e(f's_cbranch_scc1 {L}_nored')
        RB = pool.must(16)
        RA = pool.must(4)
        TM = pool.must(2)
        if kdel:
            e.nop(kdel)

        def pb_loads():
            for i in range(4):
                e(f'buffer_load_dwordx4 {v(RB + 4 * i, 4)}, {v(V_LANE16)}, {s(S_WS, 4)}, {s(S_PBLD)} offen offset:{1024 * i} sc1', tag=('pb', i))

        MS = [12, 24, 20, 22]
        if pmask == 'load':
            for i in range(4):
                e(f's_mov_b64 {s(MS[i], 2)}, -1')
        e.label(f'{L}_pollK')
        e.hist = []
        wd()
        if stamps:
            e('s_add_u32 s27, s27, 1')
        if pmask == 'lane':
            pb_loads()
            for i in range(4):
                e(f's_waitcnt vmcnt({3 - i})')
                e(f'v_mfma_f32_16x16x32_bf16 {v(RA, 4)}, {v(V_SEL, 4)}, {v(RB + 4 * i, 4)}, {"0" if i == 0 else v(RA, 4)}')
                if i == 2:
                    e(f'v_max3_u32 {v(TM)}, {v(RB)}, {v(RB + 4)}, {v(RB + 8)}')
            e(f'v_max_u32 {v(TM)}, {v(TM)}, {v(RB + 12)}')
            e(f'v_mov_b32_dpp {v(TM + 1)}, {v(TM)} quad_perm:[0,0,0,0] row_mask:0xf bank_mask:0xf')
            e(f'v_cmp_eq_u32 vcc, -1, {v(TM + 1)}')
            e('s_mov_b64 exec, vcc')
            e(f's_cbranch_execnz {L}_pollK')
            e('s_mov_b64 exec, -1')
        else:
            for i in range(4):
                e(f's_mov_b64 exec, {s(MS[i], 2)}')
                e(f'buffer_load_dwordx4 {v(RB + 4 * i, 4)}, {v(V_LANE16)}, {s(S_WS, 4)}, {s(S_PBLD)} offen offset:{1024 * i} sc1')
            e('s_mov_b64 exec, -1')
            for i in range(4):
                e(f's_waitcnt vmcnt({3 - i})')
                e(f'v_mfma_f32_16x16x32_bf16 {v(RA, 4)}, {v(V_SEL, 4)}, {v(RB + 4 * i, 4)}, {"0" if i == 0 else v(RA, 4)}')
                e(f'v_mov_b32_dpp {v(TM + (i & 1))}, {v(RB + 4 * i)} quad_perm:[0,0,0,0] row_mask:0xf bank_mask:0xf')
                e(f'v_cmp_eq_u32 {s(MS[i], 2)}, -1, {v(TM + (i & 1))}')
            e(f's_or_b64 vcc, {s(MS[0], 2)}, {s(MS[1], 2)}')
            e(f's_or_b64 vcc, vcc, {s(MS[2], 2)}')
            e(f's_or_b64 vcc, vcc, {s(MS[3], 2)}')
            e(f's_cbranch_scc1 {L}_pollK')
        e.vm = []
        e(f'v_permlane32_swap_b32 {v(RA)}, {v(RA + 2)}')
        e(f'v_permlane32_swap_b32 {v(RA + 1)}, {v(RA + 3)}')
        e(f'v_add_f32_dpp {v(RA)}, {v(RA + 2)}, {v(RA)} row_ror:8 row_mask:0xf bank_mask:0xf')
        e(f'v_add_f32_dpp {v(RA + 1)}, {v(RA + 3)}, {v(RA + 1)} row_ror:8 row_mask:0xf bank_mask:0xf')
        e(f'v_cvt_pk_bf16_f32 {v(RA)}, {v(RA)}, {v(RA + 1)}')
        e(f'buffer_store_dword {v(RA)}, {v(V_MBST)}, {s(S_WS, 4)}, {s(S_MBN)} offen {sc}')
        if 'nomb2 ' not in dbg:
            e(f'buffer_store_dword {v(RA)}, {v(V_MBST)}, {s(S_WS, 4)}, {s(S_MBN2)} offen sc1')
        stamp()
        tl(2)
        e(f'buffer_store_dword {v(V_M1)}, {v(V_MBST)}, {s(S_WS, 4)}, {s(S_MBC)} offen {sc}')
        e(f'buffer_store_dword {v(V_M1)}, {v(V_L64)}, {s(S_WS, 4)}, {s(S_PBLD)} offen {sc}')
        e(f's_xor_b32 {s(S_PBLD)}, {s(S_PBLD)}, {PB_STRIDE}')
        e(f's_mov_b32 {s(S_MBC)}, {s(S_MBN)}')
        e(f's_mov_b32 {s(S_MBR2)}, {s(S_MBC2)}')
        e(f's_mov_b32 {s(S_MBC2)}, {s(S_MBN2)}')
        e(f's_add_u32 {s(S_T0)}, {s(S_MSL)}, {MB_STRIDE}')
        e(f's_and_b32 {s(S_T0)}, {s(S_T0)}, {3 * MB_STRIDE}')
        e(f's_add_u32 {s(S_MBN)}, {s(S_MBL)}, {s(S_T0)}')
        e(f's_lshl_b32 {s(S_T0)}, {s(S_T0)}, 1')
        e(f's_add_u32 {s(S_MBN2)}, {s(S_MBL2)}, {s(S_T0)}')
        e(f's_branch {L}_end')
        e.label(f'{L}_nored')
        if stamps and call_i[0] - 1 in stsel:
            e(f's_memtime {s(S_STAMP + 2 * (stamp_i[0] - 1), 2)}')
        if mega:
            step_signal(L)
        if gdel:
            e(f's_sleep {gdel}')
        e.label(f'{L}_end')
        e.hist = []
        e(f's_add_u32 {s(S_KMO)}, {s(S_KMO)}, {32 * 4096}')
        e(f's_add_u32 {s(S_STEP)}, {s(S_STEP)}, 1')
        tl_out(0, RB)
        e('s_waitcnt lgkmcnt(0)')
        for b, n in ((RB, 16), (RA, 4), (TM, 2)):
            pool.free(b, n)
        if stamps:
            stamp()
            stamp_acc(stamp_i[0])
        e(f's_branch {L}')
        if 'nov' in dbg:
            return
        e.label(f'{L}_fixv')
        wd()
        if stamps:
            e('s_add_u32 s26, s26, 63')
        e(f'buffer_load_dwordx2 {v(ZV, 2)}, {v(V_L8)}, {s(S_WS, 4)}, {s(S_VB)} offen sc1')
        e('s_waitcnt vmcnt(0)')
        e(f'v_cmp_eq_u32 vcc, -1, {v(ZV)}')
        e(f's_cbranch_vccnz {L}_fixv')
        e(f's_branch {L}_pv2')

    body('', f'{name}_fast')
    if slow:
        body('sc1', f'{name}_slow')
    e.label(f'{name}_fin')
    e.flush_hazards(16)
    e('s_waitcnt vmcnt(0) lgkmcnt(0)')
    if stamps:
        stamp_out()
    e('s_barrier')
    e(f's_cmp_lg_u32 {s(S_W)}, 1')
    e(f's_cbranch_scc1 {name}_exit')
    if segsig is not None:
        seg_signal()
    k_out(32)
    e('s_waitcnt vmcnt(0)')
    if segsig is not None:
        seg_signal()
    elif mega:
        e(f's_mov_b32 {s(S_T2)}, 15')
        signal_block(V_WT)
    if 'rt' in dbg:
        e('s_memrealtime s[100:101]')
        e('s_waitcnt lgkmcnt(0)')
        e('v_mov_b32 v40, s96')
        e('v_mov_b32 v41, s98')
        e('v_mov_b32 v42, s100')
        e('v_mov_b32 v43, 0')
        e(f's_lshl_b32 {s(S_T0)}, {s(S_H)}, 6')
        e(f's_add_u32 {s(S_T0)}, {s(S_T0)}, 0x0F800000')
        e(f'buffer_store_dwordx3 v[40:42], v43, {s(S_WS, 4)}, {s(S_T0)} offen')
    if 'tot' in dbg:
        e('s_memtime s[98:99]')
        e('s_waitcnt lgkmcnt(0)')
        e('s_sub_u32 s98, s98, s96')
        e('v_mov_b32 v40, s98')
        e('v_mov_b32 v42, 0')
        e(f's_lshl_b32 {s(S_T0)}, {s(S_H)}, 6')
        e(f's_add_u32 {s(S_T0)}, {s(S_T0)}, 0x0F800000')
        e(f'buffer_store_dword v40, v42, {s(S_WS, 4)}, {s(S_T0)} offen')
    e.label(f'{name}_exit')
    e('s_endpgm')
    print(f'; chain10: n_reg={n_reg} n_lds={n_lds} pool peak={pool.peak} of {pool_end - NPERS}')

    H = f'{name}_helper'
    e.label(H)
    e.hist, e.vm, e.lg = [], [], []
    hunits = [('v', t) for t in range(10)]
    hplace = {}
    r = 96
    for un in hunits:
        for tau in range(2):
            hplace[(un, tau)] = ('reg', r)
            r += 8
    e(f'v_mov_b32 {v(V_M2)}, -1')
    e(f'v_mov_b32 {v(V_M2 + 1)}, -1')

    def helper_init():
        e(f's_cmp_lg_u32 {s(S_W)}, 0')
        e(f's_cbranch_scc1 {H}_nocal')
        e(f's_lshl_b32 {s(S_T0)}, {s(S_H)}, 7')
        e(f's_add_u32 {s(S_T0)}, {s(S_T0)}, {s(S_NR)}')
        e(f's_add_u32 s82, {s(S_T0)}, {NR_CAL}')
        e(f's_add_u32 s83, {s(S_T0)}, {NR_CAL + 8192}')
        e('s_mov_b32 s80, -1')
        e('s_mov_b32 s81, -1')
        e(f's_mov_b32 {s(S_T0)}, {ncal}')
        e.label(f'{H}_cal')
        for hf in range(2):
            e('s_memtime s[76:77]')
            e('s_waitcnt lgkmcnt(0)')
            e(f'buffer_store_dword {v(V_M1)}, {v(V_MBST)}, {s(S_WS, 4)}, {s(82 + hf)} offen sc1')
            e('s_waitcnt vmcnt(0)')
            e('s_memtime s[78:79]')
            e('s_waitcnt lgkmcnt(0)')
            e('s_sub_u32 s78, s78, s76')
            e(f's_min_u32 {s(80 + hf)}, {s(80 + hf)}, s78')
        e(f's_sub_u32 {s(S_T0)}, {s(S_T0)}, 1')
        e(f's_cmp_lg_u32 {s(S_T0)}, 0')
        e(f's_cbranch_scc1 {H}_cal')
        e('s_cmp_lt_u32 s81, s80')
        e('s_cselect_b32 s80, 0x10001, 1')
        e.label(f'{H}_nocal')
        e('s_barrier')
        for sl_ in range(4):
            for hf in range(2):
                e(f's_add_u32 {s(S_T0)}, {s(S_VB0)}, {sl_ * 131072 + hf * 8192}')
                e(f's_add_u32 {s(S_T0)}, {s(S_T0)}, {s(S_NR)}')
                e(f'buffer_store_dwordx2 {v(V_M2, 2)}, {v(V_L8)}, {s(S_WS, 4)}, {s(S_T0)} offen sc1')
        init_done(f'{H}_noib', 's80')
    load_weights(hunits, hplace, VT_QKV, 0, helper_init)
    e('s_barrier')
    init_wait(f'{H}_ibw', 32)
    if 'nohelp' in dbg:
        e('s_endpgm')
    e(f's_lshl_b32 {s(S_MDST)}, {s(S_W)}, 10')
    e(f's_add_u32 {s(S_MBB)}, {s(S_MDST)}, {s(S_NR)}')
    e(f's_mov_b32 {s(S_MBP)}, {s(S_MBB)}')
    e(f's_add_u32 {s(S_MBP + 1)}, {s(S_MBB)}, 4096')
    e(f's_cmp_lt_u32 {s(S_W)}, 2')
    e(f's_cselect_b32 {s(S_M9D)}, 2, 1')
    e(f's_cselect_b32 {s(S_MBL2)}, 4, 1')
    e(f's_lshl_b32 {s(S_M9D)}, {s(S_M9D)}, 12')
    e(f's_lshl_b32 {s(S_MBL2)}, {s(S_MBL2)}, 12')
    e(f's_add_u32 {s(S_MBP + 2)}, {s(S_MBB)}, {s(S_MBL2)}')
    e(f's_add_u32 {s(S_PING)}, {s(S_NR)}, {NR_PING}')
    e(f's_mov_b32 {s(S_MBR2)}, 0x40000000')
    GW, GW2 = V_OR, V_KXG
    e(f'v_add_u32 {v(GW)}, {s(S_MDST)}, {v(V_LANE16)}')
    e(f'v_add_u32 {v(GW2)}, {s(S_M9D)}, {v(GW)}')
    G0, GM, VA, AFH, ZH = 32, 44, 48, 56, 46
    S_HD, S_HP = 64, 60
    V_HF = V_QKW
    e(f's_mov_b32 {s(S_HD)}, {hd0}')
    if segsig is not None:
        e(f's_cmp_eq_u32 {s(S_W)}, 3')
        e(f's_mov_b32 {s(S_SIG)}, {segsig - 128}')
        e(f's_cselect_b32 {s(S_SIG)}, {s(S_SIG)}, 0x40000000')
    V_PG = V_QKR
    e(f'v_and_b32 {v(V_PG)}, 0x1f0, {v(V_LANE16)}')
    e(f'v_lshlrev_b32 {v(V_PG)}, 3, {v(V_PG)}')
    e(f's_lshl_b32 {s(S_T0)}, {s(S_W)}, 2')
    e(f's_add_u32 {s(S_T0)}, {s(S_T0)}, {L_MQ}')
    e(f'v_mov_b32 {v(V_HF)}, {s(S_T0)}')
    e(f'v_mov_b32 {v(V_HF + 1)}, {L_MQ}')
    for j in range(0, 8, 2):
        e(f'v_mov_b64 {v(VA + j, 2)}, 0')
    if hstamps:
        stamp_init()
    hs = [0]

    def hstamp():
        if hstamps:
            e(f's_memtime {s(S_STAMP + 2 * hs[0], 2)}')
            hs[0] += 1
    L = f'{H}_loop'
    e.label(L)
    e.hist, e.vm, e.lg = [], [], []
    hstamp()
    if hup:
        e(f's_mov_b32 {s(S_T0)}, {s(S_HD)}')
        e(f's_mov_b32 {s(S_HP)}, 0')
        e.label(f'{L}_dly')
        e(f's_sub_u32 {s(S_T0)}, {s(S_T0)}, 1')
        e(f's_cbranch_scc0 {L}_dly')
    e.label(f'{L}_poll')
    wd()
    e(f's_add_u32 {s(S_HP)}, {s(S_HP)}, 1')
    if hstamps:
        e('s_add_u32 s27, s27, 1')
    for i in range(3):
        e(f'buffer_load_dwordx4 {v(G0 + 4 * i, 4)}, {v(V_LANE16)}, {s(S_WS, 4)}, {s(S_MBP + i)} offen sc1')
    e('s_waitcnt vmcnt(0)')
    e(f'v_max3_u32 {v(GM)}, {v(G0)}, {v(G0 + 4)}, {v(G0 + 8)}')
    e(f'v_cmp_eq_u32 vcc, -1, {v(GM)}')
    e('s_mov_b64 exec, vcc')
    e(f's_cbranch_execnz {L}_poll')
    e('s_mov_b64 exec, -1')
    e(f'ds_write_b128 {v(GW)}, {v(G0, 4)}')
    e(f'ds_write_b128 {v(GW)}, {v(G0 + 4, 4)} offset:4096')
    e(f'ds_write_b128 {v(GW2)}, {v(G0 + 8, 4)}')
    if hup:
        e(f'v_mov_b32 {v(GM)}, {s(S_HP)}')
        e(f'ds_write_b32 {v(V_HF)}, {v(GM)}')
    e('s_waitcnt lgkmcnt(0)')
    e('s_barrier')
    e.vm, e.lg = [], []
    hstamp()
    tl(0)
    for k in range(7):
        e(f'ds_read_b64_tr_b16 {v(AFH + 4 * k, 2)}, {v(V_AF)} offset:{1024 * k}', tag=('af', k))
        e(f'ds_read_b64_tr_b16 {v(AFH + 4 * k + 2, 2)}, {v(V_AF)} offset:{1024 * k + 512}', tag=('af', k))
    for t in range(10):
        e.wait_lg(('af', t))
        for tau in range(2):
            e(f'v_smfmac_f32_16x16x64_bf16 {v(VA + 4 * tau, 4)}, {v(AFH + 4 * t, 4)}, {u(hplace[(("v", t), tau)][1], 8)}, {v(V_IDX)}')
        if t < 3:
            k = t + 7
            e(f'ds_read_b64_tr_b16 {v(AFH + 4 * k, 2)}, {v(V_AF)} offset:{1024 * k}', tag=('af', k))
            e(f'ds_read_b64_tr_b16 {v(AFH + 4 * k + 2, 2)}, {v(V_AF)} offset:{1024 * k + 512}', tag=('af', k))
    for f in fold(VA, ZH) + fold(VA + 4, ZH + 1):
        f()
    e(f'buffer_store_dwordx2 {v(ZH, 2)}, {v(V_L8)}, {s(S_WS, 4)}, {s(S_VB)} offen sc1')
    e(f'buffer_store_dwordx2 {v(ZH, 2)}, {v(V_L8)}, {s(S_WS, 4)}, {s(S_VMO)} offen offset:2048 sc1')
    e(f'buffer_store_dwordx2 {v(V_M2, 2)}, {v(V_L8)}, {s(S_WS, 4)}, {s(S_MBR2)} offen sc1')
    e(f's_mov_b32 {s(S_MBR2)}, {s(S_VB)}')
    hstamp()
    tl(1)
    if hup:
        e(f'ds_read_b128 {v(G0, 4)}, {v(V_HF + 1)}')
        e('s_waitcnt lgkmcnt(0)')
        e(f'v_max3_u32 {v(G0)}, {v(G0)}, {v(G0 + 1)}, {v(G0 + 2)}')
        e(f'v_max_u32 {v(G0)}, {v(G0)}, {v(G0 + 3)}')
        e(f'v_readfirstlane_b32 {s(S_HP)}, {v(G0)}')
        e(f's_sub_u32 {s(S_T0)}, {s(S_HP)}, 1')
        e(f's_min_u32 {s(S_T0)}, {s(S_T0)}, 1')
        e(f's_mul_i32 {s(S_T0)}, {s(S_T0)}, {hup}')
        e(f's_add_u32 {s(S_HD)}, {s(S_HD)}, {s(S_T0)}')
        e(f's_sub_u32 {s(S_T1)}, {s(S_HD)}, {hdn}')
        e(f's_cselect_b32 {s(S_T1)}, {s(S_HD)}, {s(S_T1)}')
        e(f's_cmp_eq_u32 {s(S_HP)}, 1')
        e(f's_cselect_b32 {s(S_HD)}, {s(S_T1)}, {s(S_HD)}')
        e(f's_min_u32 {s(S_HD)}, {s(S_HD)}, 400')
        if hstamps:
            e(f's_mul_i32 s26, {s(S_HD)}, 63')
        if 'tl' in dbg:
            e(f's_lshl_b32 s88, {s(S_HP)}, 16')
            e(f's_or_b32 s88, s88, {s(S_HD)}')
    e('s_barrier')
    if mega:
        step_signal(L)
    if segsig is not None:
        seg_signal()
    e(f's_cmp_eq_u32 {s(S_STEP)}, {nsteps - 1}')
    e(f's_cbranch_scc1 {H}_fin')
    for j in range(0, 8, 2):
        e(f'v_mov_b64 {v(VA + j, 2)}, 0')
    if hup:
        e.label(f'{L}_ping')
        wd()
        e(f'buffer_load_dword {v(GM)}, {v(V_PG)}, {s(S_WS, 4)}, {s(S_PING)} offen sc1')
        e('s_waitcnt vmcnt(0)')
        e(f'v_cmp_ge_u32 vcc, {s(S_STEP)}, {v(GM)}')
        e(f's_cbranch_vccnz {L}_ping')
        tl(3)
    e(f's_add_u32 {s(S_STEP)}, {s(S_STEP)}, 1')
    tl_out(1, G0)
    e(f's_add_u32 {s(S_VMO)}, {s(S_VMO)}, {32 * 4096}')
    e(f's_add_u32 {s(S_MSL)}, {s(S_MSL)}, {MB_STRIDE}')
    e(f's_and_b32 {s(S_MSL)}, {s(S_MSL)}, {3 * MB_STRIDE}')
    e(f's_lshl_b32 {s(S_T0)}, {s(S_MSL)}, 1')
    e(f's_add_u32 {s(S_MBP)}, {s(S_MBB)}, {s(S_T0)}')
    e(f's_add_u32 {s(S_MBP + 1)}, {s(S_MBP)}, 4096')
    e(f's_add_u32 {s(S_MBP + 2)}, {s(S_MBP)}, {s(S_MBL2)}')
    e(f's_lshl_b32 {s(S_T0)}, {s(S_MSL)}, 3')
    e(f's_add_u32 {s(S_VB)}, {s(S_VB0)}, {s(S_T0)}')
    if hstamps:
        hstamp()
        stamp_acc(hs[0])
    e(f's_branch {L}')
    e.label(f'{H}_fin')
    e('s_waitcnt vmcnt(0) lgkmcnt(0)')
    if hstamps:
        stamp_out()
    if mega:
        e('s_barrier')
        e(f's_cmp_lg_u32 {s(S_W)}, 3')
        e(f's_cbranch_scc1 {H}_exit')
        if segsig is not None:
            seg_signal()
        else:
            e(f's_mov_b32 {s(S_T2)}, 15')
            signal_block(V_WT)
        e.label(f'{H}_exit')
    e('s_endpgm')


if __name__ == '__main__':
    import argparse
    ap = argparse.ArgumentParser()
    ap.add_argument('--out', default='chain_test.s')
    ap.add_argument('--stamps', action='store_true')
    ap.add_argument('--kw', default='')
    args = ap.parse_args()
    em = Em()
    kw = eval('dict(' + args.kw + ')')
    gen_chain(em, stamps=args.stamps, **kw)
    hdr = '; @launch kernel=chain_kernel grid=(256,1,1) block=(256,1,1) lds=163840\n'
    hdr += '.amdgcn_target "amdgcn-amd-amdhsa--gfx950"\n.text\n.globl chain_kernel\n'
    open(args.out, 'w').write(hdr + em.text() + kd('chain_kernel', 512, 256))
```

```python
from emit import *
from layout import *
from gen_chain import f32bits, kd
from gen_gemm import Gemm
import gen_all
from gen_all import start, load_srds, end, lane_wave, silu_inplace, wave_sum, rnd2, LOG2E, KA, SIZES
import gen_chain10 as gen_chainX
from gen_chain10 import far_jump

LOG = False
SLEEP = 8
SLEEPN = 1
DSLEEP = 24
WS_LOG = 0x0F400000
POOLS = [('wk_att', 8), ('wk_wo', 40), ('wk_ln2', 8), ('wk_up', 27), ('wk_dn', 10)]
GSZ = sum(c for _, c in POOLS)
WS_CT2 = 0x00040000
K_CH, K_ATT, K_WO, K_LN2, K_UP = 0, 64, 128, 192, 256
NCH = 64
NMODA, NLN, NMODB = 40, 128, 80
NPRE = NMODA + NLN + NMODB
NTASK = NPRE + 768
D_TASK, D_MOD, D_MODB = 64, 128, 140
S_RANK, S_PB = 60, 30
SW = 29
S_W1, S_W3, S_W2, S_X, S_OUT, S_SEL = 64, 68, 72, 76, 80, 84
VL = 1
_bj = [0]
KNAME = ['']


def back_jump(e, label, sp=44):
    _bj[0] += 1
    here = f'Lbj{_bj[0]}'
    e(f's_getpc_b64 {s(sp, 2)}')
    e.label(here)
    e.raw(f'    s_add_u32 {s(sp)}, {s(sp)}, {label}-{here}')
    e.raw(f'    s_addc_u32 {s(sp + 1)}, {s(sp + 1)}, -1')
    e(f's_setpc_b64 {s(sp, 2)}')


def reset(e):
    e.hist = []
    e.vm = []
    e.lg = []


def dep_wait(e, lab, deps, sb):
    e(f's_cmp_lg_u32 {s(SW)}, 0')
    e(f's_cbranch_scc1 {lab}_dw')
    e(f's_lshl_b32 s38, {s(sb)}, 7')
    e('v_mov_b32 v2, 0')
    for i, (c, tgt) in enumerate(deps):
        e(f's_add_u32 s39, s38, {WS_CTR + c * 128}')
        e.label(f'{lab}_sp{i}')
        e('buffer_load_dword v3, v2, s[4:7], s39 offen sc1')
        e('s_waitcnt vmcnt(0)')
        e('v_readfirstlane_b32 s37, v3')
        e(f's_cmp_ge_u32 s37, {tgt}')
        e(f's_cbranch_scc1 {lab}_ok{i}')
        for _ in range(SLEEPN):
            e(f's_sleep {SLEEP}')
        e(f's_branch {lab}_sp{i}')
        e.label(f'{lab}_ok{i}')
    e.label(f'{lab}_dw')
    e('s_barrier')
    if LOG:
        e('s_memrealtime s[100:101]')
        e('s_waitcnt lgkmcnt(0)')
        e('s_mov_b32 s63, s100')
    reset(e)


def dbg_wait(e, lab, off_sgpr_or_int, tgt):
    e(f's_cmp_lg_u32 {s(SW)}, 0')
    e(f's_cbranch_scc1 {lab}_dw')
    e(f'v_mov_b32 v2, {off_sgpr_or_int}')
    e.label(f'{lab}_sp')
    e('buffer_load_dword v3, v2, s[8:11], 0 offen sc1')
    e('s_waitcnt vmcnt(0)')
    e('v_readfirstlane_b32 s37, v3')
    e(f's_cmp_ge_u32 s37, {tgt}')
    e(f's_cbranch_scc1 {lab}_dw')
    e(f's_sleep {DSLEEP}')
    e(f's_branch {lab}_sp')
    e.label(f'{lab}_dw')
    e('s_barrier')
    if LOG:
        e('s_memrealtime s[100:101]')
        e('s_waitcnt lgkmcnt(0)')
        e('s_mov_b32 s63, s100')
    reset(e)


def signal(e, lab, c, sb, loop, dbg_off=None):
    e('s_waitcnt vmcnt(0) lgkmcnt(0)')
    e('s_barrier')
    if LOG:
        e('s_memrealtime s[100:101]')
        e('s_waitcnt lgkmcnt(0)')
        e('v_mov_b32 v4, s63')
        e('v_mov_b32 v5, s100')
        e('v_mov_b32 v6, s61')
        e('v_mov_b32 v7, s28')
        e('v_mov_b32 v2, 0')
        e('s_lshl_b32 s38, s62, 4')
        e(f's_add_u32 s38, s38, {WS_LOG}')
        e('buffer_store_dwordx4 v[4:7], v2, s[4:7], s38 offen')
    if dbg_off is not None:
        e(f's_cmp_lg_u32 {s(SW)}, 0')
        e(f's_cbranch_scc1 {lab}_sg')
        e(f'v_mov_b32 v2, {dbg_off}')
        e('v_mov_b32 v3, 1')
        e('s_mov_b64 exec, 1')
        e('buffer_atomic_add v3, v2, s[8:11], 0 offen')
        e('s_mov_b64 exec, -1')
        e.label(f'{lab}_sg')
    elif c is not None:
        e(f's_cmp_lg_u32 {s(SW)}, 0')
        e(f's_cbranch_scc1 {lab}_sg')
        if isinstance(c, int):
            e(f's_lshl_b32 s38, {s(sb)}, 7')
            e(f's_add_u32 s38, s38, {WS_CTR + c * 128}')
        else:
            e(f's_add_u32 s38, {s(sb)}, {c}')
            e('s_lshl_b32 s38, s38, 7')
            e(f's_add_u32 s38, s38, {WS_CTR}')
        e('v_mov_b32 v2, 0')
        e('v_mov_b32 v3, 1')
        e('s_mov_b64 exec, 1')
        e('buffer_atomic_add v3, v2, s[4:7], s38 offen')
        e('s_mov_b64 exec, -1')
        e.label(f'{lab}_sg')
    back_jump(e, loop)


def mid(e):
    if LOG:
        e('s_memrealtime s[100:101]')
        e('s_waitcnt lgkmcnt(0)')
        e('s_mov_b32 s61, s100')


def h_qkv(e, loop):
    name = 'wk_qkv'
    e.label(name)
    reset(e)
    e('s_cmp_eq_u32 s23, 1')
    e(f's_cselect_b32 {s(S_SEL)}, s16, s12')
    e(f's_cselect_b32 {s(S_SEL + 1)}, s17, s13')
    e('s_cmp_eq_u32 s23, 2')
    e(f's_cselect_b32 {s(S_SEL)}, s20, {s(S_SEL)}')
    e(f's_cselect_b32 {s(S_SEL + 1)}, s21, {s(S_SEL + 1)}') if False else None
    return


def gen_workers(e, loop='wk_loop'):
    B, P1, P2 = 52, 53, 54
    e.label('wk_entry')
    e('s_mov_b32 s49, 2')
    reset(e)
    e(f'v_mov_b32 {v(VL)}, v16')
    load_srds(e, [('w1', S_W1), ('w3', S_W3), ('w2', S_W2), ('x', S_X), ('out', S_OUT)], tmp=88)
    e(f's_mov_b32 {s(S_SEL + 2)}, 5242880')
    e(f's_mov_b32 {s(S_SEL + 3)}, 0x20000')
    e(f's_mov_b32 {s(S_SEL)}, s12')
    e(f's_mov_b32 {s(S_SEL + 1)}, s13')
    e('s_mov_b32 s48, -1')
    e('s_mov_b32 s51, 0')

    def ticket(ctr, dst, lab):
        e(f's_cmp_lg_u32 {s(SW)}, 0')
        e(f's_cbranch_scc1 {lab}')
        e('v_mov_b32 v2, 0')
        e('v_mov_b32 v3, 1')
        e('s_mov_b64 exec, 1')
        e(f'buffer_atomic_add v3, v2, s[8:11], 0 offen offset:{D_TASK} sc0')
        e('s_waitcnt vmcnt(0)')
        e('ds_write_b32 v2, v3')
        e('s_mov_b64 exec, -1')
        e('s_waitcnt lgkmcnt(0)')
        e.label(lab)
        e('s_barrier')
        e('v_mov_b32 v2, 0')
        e('ds_read_b32 v3, v2')
        e('s_waitcnt lgkmcnt(0)')
        e(f'v_readfirstlane_b32 {s(dst)}, v3')
        e('s_barrier')
    e.label(loop)
    reset(e)
    e('s_cmp_lg_u32 s48, -1')
    e('s_cbranch_scc1 wk_pool')
    e('s_cmp_eq_u32 s49, 0')
    e('s_cbranch_scc1 wk_norec')
    e('s_sub_u32 s49, s49, 1')
    e('s_cmp_lg_u32 s49, 0')
    e('s_cbranch_scc1 wk_norec')
    e(f's_cmp_lg_u32 {s(SW)}, 0')
    e('s_cbranch_scc1 wk_rec1')
    e('v_mov_b32 v2, 0')
    e('buffer_load_dwordx2 v[4:5], v2, s[8:11], 0 offen sc1')
    e('s_waitcnt vmcnt(0)')
    e('ds_write_b64 v2, v[4:5]')
    e('s_waitcnt lgkmcnt(0)')
    e.label('wk_rec1')
    e('s_barrier')
    e('v_mov_b32 v2, 0')
    e('ds_read_b64 v[4:5], v2')
    e('s_waitcnt lgkmcnt(0)')
    e('v_readfirstlane_b32 s50, v4')
    e('v_readfirstlane_b32 s34, v5')
    e('s_barrier')
    e('s_min_u32 s34, s34, s50')
    e('s_cmp_ge_u32 s34, 32')
    e('s_cbranch_scc1 wk_norec')
    e('s_cmp_ge_u32 s50, 32')
    e('s_cselect_b32 s34, 4, 0')
    e(f'v_mov_b32 v16, {v(VL)}')
    back_jump(e, KNAME[0] + '_take')
    e.label('wk_norec')
    ticket(C_TASK, 50, 'wk_dq')
    e(f's_cmp_lt_u32 s50, {NTASK}')
    e('s_cbranch_scc1 wk_have')
    e(f's_sub_u32 {s(S_RANK)}, s50, {NTASK}')
    e('s_mov_b32 s48, 0')
    dbg_wait(e, 'wk_ma', D_MOD, NMODA)
    dbg_wait(e, 'wk_mb', D_MODB, NMODB)
    e('s_branch wk_pool')
    e.label('wk_have')
    if LOG:
        e('s_add_u32 s62, s50, 8000')
        e('s_memrealtime s[100:101]')
        e('s_waitcnt lgkmcnt(0)')
        e('s_mov_b32 s63, s100')
        e('s_mov_b32 s28, s100')
        e('s_mov_b32 s61, s100')
    e(f's_cmp_ge_u32 s50, {NMODA}')
    e('s_cbranch_scc1 wk_nm')
    e(f's_mov_b32 {s(P1)}, s50')
    far_jump(e, 'wk_mod', 44)
    e.label('wk_nm')
    e(f's_cmp_ge_u32 s50, {NMODA + NLN}')
    e('s_cbranch_scc1 wk_nl0')
    e(f's_sub_u32 {s(P1)}, s50, {NMODA}')
    far_jump(e, 'wk_ln1', 44)
    e.label('wk_nl0')
    e(f's_cmp_ge_u32 s50, {NPRE}')
    e('s_cbranch_scc1 wk_nl')
    e(f's_sub_u32 {s(P1)}, s50, {NLN}')
    far_jump(e, 'wk_mod', 44)
    e.label('wk_nl')
    e(f's_sub_u32 s50, s50, {NPRE}')
    if LOG:
        e('s_mov_b32 s62, s50')
    e('s_cmp_ge_u32 s50, 512')
    e('s_cbranch_scc1 wk_isq')
    e(f's_lshr_b32 {s(B)}, s50, 5')
    e(f's_and_b32 {s(P1)}, s50, 15')
    e(f's_bfe_u32 {s(P2)}, s50, 0x10004')
    e(f's_add_u32 {s(P2)}, {s(P2)}, 1')
    far_jump(e, 'wk_qkv', 44)
    e.label('wk_isq')
    e('s_sub_u32 s50, s50, 512')
    e(f's_lshr_b32 {s(B)}, s50, 4')
    e(f's_and_b32 {s(P1)}, s50, 15')
    e(f's_mov_b32 {s(P2)}, 0')
    far_jump(e, 'wk_qkv', 44)
    e.label('wk_pool')
    e(f's_and_b32 {s(B)}, {s(S_RANK)}, 1')
    e(f's_lshr_b32 {s(S_RANK)}, {s(S_RANK)}, 1')
    if LOG:
        e('s_memrealtime s[100:101]')
        e('s_waitcnt lgkmcnt(0)')
        e('s_mov_b32 s63, s100')
        e('s_mov_b32 s28, s100')
        e('s_mov_b32 s61, s100')
    lo = 0
    for lab, cnt in POOLS:
        hi = lo + cnt
        e(f's_cmp_ge_u32 {s(S_RANK)}, {hi}')
        e(f's_cbranch_scc1 wk_n{hi}')
        e(f's_sub_u32 {s(P1)}, {s(S_RANK)}, {lo}')
        far_jump(e, lab, 44)
        e.label(f'wk_n{hi}')
        lo = hi
    e('s_endpgm')

    name = 'wk_qkv'
    e.label(name)
    reset(e)
    e(f's_cmp_eq_u32 {s(P2)}, 1')
    e(f's_cselect_b32 {s(S_SEL)}, s16, s12')
    e(f's_cselect_b32 {s(S_SEL + 1)}, s17, s13')
    e(f's_cmp_eq_u32 {s(P2)}, 2')
    e(f's_cselect_b32 {s(S_SEL)}, s20, {s(S_SEL)}')
    e(f's_cselect_b32 {s(S_SEL + 1)}, s21, {s(S_SEL + 1)}')
    G = Gemm(e, 128, [(S_SEL, 8192, 128), (S_SEL, 8192, 128)], 2, 2, 10, 1280, vbase=8, sbase=40, xfl='sc1')
    G.setup(VL, SW, 2)
    e(f's_mul_i32 s55, {s(B)}, {128 * 1280}')
    e(f's_add_u32 s55, s55, {WS_H1}')
    e(f's_lshl_b32 s56, {s(P1)}, 9')
    e('s_add_u32 s57, s56, 256')
    G.init_offsets(55, [56, 57])
    G.pre_w()
    e('s_cmp_lg_u32 s51, 0')
    e(f's_cbranch_scc1 {name}_ini')
    dbg_wait(e, name + '_a', D_MOD, NMODA)
    e('s_mov_b32 s51, 1')
    e.label(f'{name}_ini')
    dep_wait(e, name, [(C_LN1, 8)], B)
    e(f's_lshr_b32 s31, {s(SW)}, 1')
    e(f's_and_b32 s32, {s(SW)}, 1')
    e(f's_lshl_b32 s33, {s(B)}, 2')
    e('s_lshl_b32 s31, s31, 1')
    e('s_add_u32 s33, s33, s31')
    e('s_lshl_b32 s33, s33, 5')
    e(f's_lshl_b32 s34, {s(P1)}, 1')
    e('s_add_u32 s33, s33, s34')
    e('s_lshl_b32 s33, s33, 13')
    e(f's_cmp_lg_u32 {s(P2)}, 2')
    e(f's_cbranch_scc1 {name}_t0')
    far_jump(e, f'{name}_v', 98)
    e.label(f'{name}_t0')
    G.mainloop(4, ['T'] * G.NT, name + '_t', w_done=True)
    mid(e)
    e(f'v_and_b32 v2, 15, {v(VL)}')
    e(f'v_lshrrev_b32 v3, 4, {v(VL)}')
    e('v_lshlrev_b32 v3, 4, v3')
    e('v_lshl_add_u32 v2, v2, 8, v3')
    e('s_lshl_b32 s32, s32, 7')
    e('s_add_u32 s33, s33, s32')
    e(f's_mov_b32 s34, {WS_QX}')
    e(f's_mov_b32 s36, {C_Q}')
    e(f's_cmp_eq_u32 {s(P2)}, 1')
    e(f's_cselect_b32 s34, {WS_KX}, s34')
    e(f's_cselect_b32 s36, {C_KV}, s36')
    e('s_add_u32 s33, s33, s34')
    T = G.v_fx
    k = 0
    for mi in range(4):
        for p in range(2):
            for ub in range(2):
                t = T + 8 * (k % 4)
                k += 1
                for hf in range(2):
                    ac = G.accr(mi, p * 4 + ub * 2 + hf) - 256
                    for j in range(4):
                        e(f'v_accvgpr_read_b32 {v(t + 4 + j)}, {a(ac + j)}')
                    e(f'v_cvt_pk_bf16_f32 {v(t + 2 * hf)}, {v(t + 4)}, {v(t + 5)}')
                    e(f'v_cvt_pk_bf16_f32 {v(t + 2 * hf + 1)}, {v(t + 6)}, {v(t + 7)}')
                off = (mi >> 1) * 32 * 8192 + p * 8192 + (mi & 1) * 4096 + ub * 64
                e(f's_add_u32 s35, s33, {off}')
                e(f'buffer_store_dwordx4 {v(t, 4)}, v2, s[4:7], s35 offen sc1')
    signal(e, name + '_t', 's36', B, loop)
    e.label(f'{name}_v')
    reset(e)
    G.mainloop(4, ['N'] * G.NT, name + '_n', w_done=True)
    mid(e)
    e(f'v_lshlrev_b32 v2, 4, {v(VL)}')
    e('s_lshl_b32 s32, s32, 12')
    e('s_add_u32 s33, s33, s32')
    e(f's_add_u32 s33, s33, {WS_VXT}')
    k = 0
    for sg in range(2):
        for p in range(2):
            for a_ in range(4):
                t = T + 8 * (k % 4)
                k += 1
                for hf in range(2):
                    ac = G.accr(sg * 2 + hf, p * 4 + a_) - 256
                    for j in range(4):
                        e(f'v_accvgpr_read_b32 {v(t + 4 + j)}, {a(ac + j)}')
                    e(f'v_cvt_pk_bf16_f32 {v(t + 2 * hf)}, {v(t + 4)}, {v(t + 5)}')
                    e(f'v_cvt_pk_bf16_f32 {v(t + 2 * hf + 1)}, {v(t + 6)}, {v(t + 7)}')
                off = sg * 32 * 8192 + p * 8192 + a_ * 1024
                e(f's_add_u32 s35, s33, {off}')
                e(f'buffer_store_dwordx4 {v(t, 4)}, v2, s[4:7], s35 offen sc1')
    signal(e, name + '_n', C_KV, B, loop)

    SEG = B
    XS, XA2, ACC, XF, ET, WB = 20, 22, 24, 40, 72, 80

    def cwait(lab, cbase, tgt, extra=None):
        e(f's_cmp_lg_u32 {s(SW)}, 0')
        e(f's_cbranch_scc1 {lab}_dw')
        e(f's_lshl_b32 s39, {s(SEG)}, 7')
        e(f's_add_u32 s39, s39, {WS_CT2 + cbase * 128}')
        if extra is not None:
            e(f's_add_u32 s39, s39, {s(extra)}')
        e('v_mov_b32 v2, 0')
        e.label(f'{lab}_sp')
        e('buffer_load_dword v3, v2, s[4:7], s39 offen sc1')
        e('s_waitcnt vmcnt(0)')
        e('v_readfirstlane_b32 s37, v3')
        e(f's_cmp_ge_u32 s37, {tgt}')
        e(f's_cbranch_scc1 {lab}_dw')
        e(f's_sleep {SLEEP}')
        e(f's_branch {lab}_sp')
        e.label(f'{lab}_dw')
        e('s_barrier')
        if LOG:
            e('s_memrealtime s[100:101]')
            e('s_waitcnt lgkmcnt(0)')
            e('s_mov_b32 s63, s100')
        reset(e)

    def cdone(name, cbase, extra=None, nxt=None):
        e('s_waitcnt vmcnt(0) lgkmcnt(0)')
        e('s_barrier')
        if cbase is not None:
            e(f's_cmp_lg_u32 {s(SW)}, 0')
            e(f's_cbranch_scc1 {name}_sg')
            e(f's_lshl_b32 s38, {s(SEG)}, 7')
            e(f's_add_u32 s38, s38, {WS_CT2 + cbase * 128}')
            if extra is not None:
                e(f's_add_u32 s38, s38, {s(extra)}')
            e('v_mov_b32 v2, 0')
            e('v_mov_b32 v3, 1')
            e('s_mov_b64 exec, 1')
            e('buffer_atomic_add v3, v2, s[4:7], s38 offen')
            e('s_mov_b64 exec, -1')
            e.label(f'{name}_sg')
        if LOG:
            e('s_memrealtime s[100:101]')
            e('s_waitcnt lgkmcnt(0)')
            e('v_mov_b32 v64, s63')
            e('v_mov_b32 v65, s100')
            e('v_mov_b32 v66, s61')
            e('v_mov_b32 v67, s28')
            e('v_mov_b32 v2, 0')
            e(f's_mul_i32 s38, {s(SEG)}, {GSZ}')
            e(f's_add_u32 s38, s38, {s(S_RANK)}')
            e('s_lshl_b32 s38, s38, 4')
            e(f's_add_u32 s38, s38, {WS_LOG + 768 * 16}')
            e('buffer_store_dwordx4 v[64:67], v2, s[4:7], s38 offen')
            e.nop(2)
        e(f's_add_u32 {s(SEG)}, {s(SEG)}, 2')
        e(f's_cmp_lt_u32 {s(SEG)}, 64')
        e(f's_cbranch_scc1 {nxt or name + "_loop"}')
        e('s_endpgm')

    class SG:
        def __init__(self, name, panels, KT, coloffs, nacc=1):
            self.name, self.KT, self.nacc = name, KT, nacc
            G = self.G = Gemm(e, 32, panels, 2, 2, KT, 128, nstage=1, vbase=8, sbase=40)
            assert G.v_wa + G.NT <= XS
            self.NT = NT = G.NT
            assert WB + KT * 2 * NT * 4 <= 512
            G.setup(VL, SW, 2)
            e('s_mov_b32 s57, 0')
            G.init_offsets(57, coloffs)
            e(f's_and_b32 s57, {s(SW)}, 1')
            e('s_cmp_eq_u32 s57, 1')
            e('s_cselect_b64 vcc, -1, 0')
            e(f'v_cndmask_b32 {v(XS)}, {v(G.v_xg)}, {v(G.v_xg + 1)}, vcc')
            e(f'v_cndmask_b32 {v(XS + 1)}, {v(G.v_xg + 1)}, {v(G.v_xg)}, vcc')
            e(f'v_add_u32 {v(XA2)}, 0x10000, {v(G.v_xa)}')
            e(f'v_add_u32 {v(XA2 + 1)}, 0x10000, {v(G.v_xa + 1)}')
            NS = min(KT, 163840 // G.stage, 12)
            for k in range(NS):
                for f in G.dma_items(None, k, ('w', k), 'w'):
                    f()
            for k in range(KT):
                e.wait_vm(('w', k))
                e('s_barrier')
                if k >= 1 and k - 1 + NS < KT:
                    for f in G.dma_items(None, (k - 1) % NS, ('w', k - 1 + NS), 'w'):
                        f()
                for ks in range(2):
                    for ni, (pi, a_) in enumerate(G.tiles):
                        rb = panels[pi][2] * 2
                        for m in range(2):
                            e(f'ds_read_b64_tr_b16 {u(self.wr(2 * k + ks, ni) + 2 * m, 2)}, {v(G.v_wa + ni)} offset:{(32 * ks + 16 * m) * rb}')
                d = G.stage if (k + 1) % NS else -(NS - 1) * G.stage
                for ni in range(NT):
                    if d >= 0:
                        e(f'v_add_u32 {v(G.v_wa + ni)}, {d}, {v(G.v_wa + ni)}')
                    else:
                        e(f'v_subrev_u32 {v(G.v_wa + ni)}, {-d}, {v(G.v_wa + ni)}')
                e.wait_lg()
            e('s_barrier')

        def wr(self, ks, ni):
            return WB + (ks * self.NT + ni) * 4

        def acc(self, ni, par=0):
            return ACC + (par * self.NT + ni) * 4

        def main(self, sx, extra_loads=None):
            G, KT, NT = self.G, self.KT, self.NT
            P = 4 * KT
            ng = (P + 15) // 16
            for j in range(ng):
                n = min(16, P - 16 * j) // 4
                e(f's_mul_i32 s57, {s(SW)}, {n * 1024}')
                if j:
                    e(f's_add_u32 s57, s57, {16384 * j}')
                e('s_mov_b32 m0, s57')
                e(f's_add_u32 s57, s57, {s(sx)}')
                for i in range(n):
                    xr = (G.v_xg if n % 2 == 0 else XS) + (i & 1)
                    e(f'buffer_load_dwordx4 {v(xr)}, s[4:7], s57 offen offset:{1024 * i} sc1 lds', tag=('x', j))
            if extra_loads:
                extra_loads()
            nu = (2 * KT + 3) // 4

            def reads(un):
                if un % 2 == 0:
                    e.wait_vm(('x', un // 2))
                    e('s_barrier')
                for q in range(4):
                    ks = 4 * un + q
                    if ks >= 2 * KT:
                        break
                    off = (ks >> 1) * 4096
                    ar = (G.v_xa if off < 65536 else XA2) + (ks & 1)
                    e(f'ds_read_b128 {v(XF + 16 * (un & 1) + 4 * q, 4)}, {v(ar)} offset:{off & 65535}', tag=('xf', ks))
            reads(0)
            for un in range(nu):
                if un + 1 < nu:
                    reads(un + 1)
                for q in range(4):
                    ks = 4 * un + q
                    if ks >= 2 * KT:
                        break
                    e.wait_lg(('xf', ks))
                    par = ks % self.nacc
                    for ni in range(NT):
                        ac = v(self.acc(ni, par), 4)
                        e(f'v_mfma_f32_16x16x32_bf16 {ac}, {u(self.wr(ks, ni), 4)}, {v(XF + 16 * (un & 1) + 4 * q, 4)}, {"0" if ks < self.nacc else ac}')
            if self.nacc == 2:
                for ni in range(NT):
                    for j in range(0, 4, 2):
                        e(f'v_pk_add_f32 {v(self.acc(ni) + j, 2)}, {v(self.acc(ni) + j, 2)}, {v(self.acc(ni, 1) + j, 2)}')

    name = 'wk_att'
    e.label(name)
    reset(e)
    e(f's_lshl_b32 s58, {s(P1)}, 4')
    e(f's_lshl_b32 s30, {s(P1)}, 2')
    e(f's_add_u32 s30, s30, {s(SW)}')
    e(f'v_and_b32 v2, 15, {v(VL)}')
    e(f'v_lshrrev_b32 v3, 4, {v(VL)}')
    e('v_lshlrev_b32 v4, 4, v3')
    e('v_lshl_add_u32 v4, v2, 8, v4')
    e(f'v_lshlrev_b32 v5, 4, {v(VL)}')
    e(f'v_lshlrev_b32 v6, 3, {v(VL)}')
    e(f'v_bfe_u32 v10, {v(VL)}, 2, 2')
    e('v_lshl_add_u32 v10, v3, 2, v10')
    e(f'v_and_b32 v11, 1, {v(VL)}')
    e('v_lshlrev_b32 v11, 3, v11')
    e('v_lshl_add_u32 v10, v10, 4, v11')
    e(f's_lshl_b32 s38, {s(SW)}, 11')
    e('v_add_u32 v10, s38, v10')
    MK = 88
    e('v_lshlrev_b32 v7, 2, v3')
    for j in range(4):
        e(f'v_add_u32 v8, {j}, v7')
        e(f'v_cmp_le_u32 {s(MK + 2 * j, 2)}, v8, v2')
    e('s_mov_b32 s96, -1')
    e('s_mov_b32 s97, 0')
    cc = f32bits((128 ** -0.5) * LOG2E)
    e(f's_mov_b32 s98, {cc:#x}')
    e(f's_mov_b32 s99, {cc:#x}')
    KM_, VM_, ONES, NEG, DO = 16, 32, 40, 44, 72
    S0, S1, M, P, PM, OA = 144, 156, 204, 208, 212, 168
    for j in range(4):
        e(f'v_mov_b32 {v(ONES + j)}, 0x3f803f80')
    e(f'v_mov_b32 {v(NEG)}, 0xf149f2ca')
    e(f'v_mov_b32 {v(PM + 1)}, 0')
    e(f'v_mov_b32 {v(PM + 2)}, 0')
    e('v_lshlrev_b32 v9, 4, v3')
    e('v_lshl_add_u32 v9, v2, 7, v9')
    e('s_mov_b32 s56, -1')

    def att_loads(lab, st, adv):
        Q, KX_, VX_ = 256 + 96 * st, 288 + 96 * st, 320 + 96 * st
        e(f's_add_u32 s55, {s(SEG)}, {adv}')
        e('s_cmp_ge_u32 s55, 64')
        e(f's_cbranch_scc1 {lab}_nl')
        e('s_lshr_b32 s59, s55, 2')
        e('s_cmp_eq_u32 s59, s56')
        e(f's_cbranch_scc1 {lab}_rdy')
        dep_wait(e, lab, [(C_KV, 32), (C_Q, 16)], 59)
        e('s_mov_b32 s56, s59')
        e.label(f'{lab}_rdy')
        e('s_lshl_b32 s31, s55, 5')
        e('s_add_u32 s31, s31, s30')
        e('s_lshl_b32 s32, s31, 13')
        e(f's_add_u32 s33, s32, {WS_QX}')
        e('s_add_u32 s34, s33, 4096')
        e(f's_add_u32 s35, s32, {WS_KX}')
        e('s_add_u32 s36, s35, 4096')
        for uu in range(4):
            e(f'buffer_load_dwordx4 {u(Q + 4 * uu, 4)}, v4, s[4:7], s33 offen offset:{64 * uu} sc1')
            e(f'buffer_load_dwordx4 {u(KX_ + 4 * uu, 4)}, v4, s[4:7], s35 offen offset:{64 * uu} sc1')
        for uu in range(4):
            e(f'buffer_load_dwordx4 {u(Q + 16 + 4 * uu, 4)}, v4, s[4:7], s34 offen offset:{64 * uu} sc1')
            e(f'buffer_load_dwordx4 {u(KX_ + 16 + 4 * uu, 4)}, v4, s[4:7], s36 offen offset:{64 * uu} sc1')
        e(f's_add_u32 s39, s32, {WS_VXT}')
        e('s_add_u32 s40, s39, 4096')
        for et in range(8):
            e(f'buffer_load_dwordx4 {u(VX_ + 4 * et, 4)}, v5, s[4:7], {"s39" if et < 4 else "s40"} offen offset:{1024 * (et & 3)} sc1')
        e.label(f'{lab}_nl')
        reset(e)
    att_loads(name + '_p', 0, 0)
    e('s_waitcnt vmcnt(0)')
    for st in range(2):
        nm = f'{name}{st}'
        Q, KX_, VX_ = 256 + 96 * st, 288 + 96 * st, 320 + 96 * st
        e.label(nm + '_top')
        reset(e)
        for uu in range(4):
            c0 = (lambda r: '0' if uu == 0 else v(r, 4))
            e(f'v_mfma_f32_16x16x32_bf16 {v(S0, 4)}, {u(KX_ + 4 * uu, 4)}, {u(Q + 4 * uu, 4)}, {c0(S0)}')
            e(f'v_mfma_f32_16x16x32_bf16 {v(S1, 4)}, {u(KX_ + 4 * uu, 4)}, {u(Q + 16 + 4 * uu, 4)}, {c0(S1)}')
            e(f'v_mfma_f32_16x16x32_bf16 {v(S1 + 4, 4)}, {u(KX_ + 16 + 4 * uu, 4)}, {u(Q + 16 + 4 * uu, 4)}, {c0(S1 + 4)}')
        e(f'v_mov_b32 {v(P + 2)}, 0')
        e(f'v_mov_b32 {v(P + 3)}, 0')
        for dg in (S0, S1 + 4):
            for j in range(4):
                e(f'v_cndmask_b32 {v(dg + j)}, {v(NEG)}, {v(dg + j)}, {s(MK + 2 * j, 2)}')
        att_loads(nm + '_n', 1 - st, 2)
        e(f's_lshl_b32 s31, {s(SEG)}, 5')
        e('s_add_u32 s31, s31, s30')
        e('s_lshl_b32 s43, s31, 12')
        e(f's_add_u32 s43, s43, {WS_KM}')
        e('s_lshl_b32 s41, s31, 13')
        e(f's_add_u32 s41, s41, {WS_O}')
        e('s_add_u32 s42, s41, 4096')
        cwait(nm + '2', K_CH, NCH)
        e(f's_lshl_b32 m0, {s(SW)}, 11')
        e('buffer_load_dwordx4 v5, s[4:7], s43 offen sc1 lds', tag='k')
        e('buffer_load_dwordx4 v5, s[4:7], s43 offen offset:1024 sc1 lds', tag='k')
        for w in range(4):
            e(f'buffer_load_dwordx2 {v(VM_ + 2 * w, 2)}, v6, s[4:7], s43 offen offset:{2048 + 512 * w} sc1', tag='v')
        e.wait_vm('k')
        for uu in range(4):
            for m_ in range(2):
                e(f'ds_read_b64_tr_b16 {v(KM_ + 4 * uu + 2 * m_, 2)}, v10 offset:{uu * 512 + m_ * 256}')
        e.wait_lg()
        for uu in range(4):
            for tq, S in enumerate((S0, S1)):
                e(f'v_mfma_f32_16x16x32_bf16 {v(S + 8, 4)}, {v(KM_ + 4 * uu, 4)}, {u(Q + 16 * tq + 4 * uu, 4)}, {"0" if uu == 0 else v(S + 8, 4)}')
        for tq, S in enumerate((S0, S1)):
            C0 = S + 8
            e(f'v_cndmask_b32 {v(C0)}, {v(C0 + 2)}, {v(C0)}, s[96:97]')
            e(f'v_cndmask_b32 {v(C0 + 1)}, {v(C0 + 3)}, {v(C0 + 1)}, s[96:97]')
            vals = [S + j for j in range(4 * (tq + 1))] + [C0, C0 + 1]
            e(f'v_max3_f32 {v(M)}, {v(vals[0])}, {v(vals[1])}, {v(vals[2])}')
            i = 3
            while i + 1 < len(vals):
                e(f'v_max3_f32 {v(M)}, {v(M)}, {v(vals[i])}, {v(vals[i + 1])}')
                i += 2
            if i < len(vals):
                e(f'v_max_f32 {v(M)}, {v(M)}, {v(vals[i])}')
            for sw_ in ('v_permlane32_swap_b32', 'v_permlane16_swap_b32'):
                e(f'v_mov_b32 {v(M + 1)}, {v(M)}')
                e(f'{sw_} {v(M)}, {v(M + 1)}')
                e(f'v_max_f32 {v(M)}, {v(M)}, {v(M + 1)}')
            e(f'v_mul_f32 {v(M)}, s98, {v(M)}')
            for x in vals[::2]:
                e(f'v_pk_fma_f32 {v(x, 2)}, {v(x, 2)}, s[98:99], {v(M, 2)} op_sel_hi:[1,1,0] neg_lo:[0,0,1] neg_hi:[0,0,1]')
            for x in vals:
                e(f'v_exp_f32 {v(x)}, {v(x)}')
            for j in range(2 * (tq + 1)):
                e(f'v_cvt_pk_bf16_f32 {v(P + j)}, {v(S + 2 * j)}, {v(S + 2 * j + 1)}')
            e(f'v_cvt_pk_bf16_f32 {v(PM)}, {v(C0)}, {v(C0 + 1)}')
            e(f'v_cvt_pk_bf16_f32 {v(PM + 3)}, {v(C0)}, {v(C0 + 1)}')
            e.wait_vm('v')
            if tq == 0:
                mid(e)
            Lr = OA + 32
            e(f'v_mfma_f32_16x16x32_bf16 {v(Lr, 4)}, {v(ONES, 4)}, {v(P, 4)}, 0')
            for et in range(8):
                e(f'v_mfma_f32_16x16x32_bf16 {v(OA + 4 * et, 4)}, {u(VX_ + 4 * et, 4)}, {v(P, 4)}, 0')
            e(f'v_mfma_f32_16x16x16_bf16 {v(Lr, 4)}, {v(ONES, 2)}, {v(PM, 2)}, {v(Lr, 4)}')
            for et in range(8):
                e(f'v_mfma_f32_16x16x16_bf16 {v(OA + 4 * et, 4)}, {v(VM_ + 2 * (et >> 1), 2)}, {v(PM + 2 * (et & 1), 2)}, {v(OA + 4 * et, 4)}')
            e(f'v_rcp_f32 {v(M)}, {v(Lr)}')
            for ub in range(4):
                o = OA + 8 * ub
                d = DO + 16 * tq + 4 * ub
                for j in range(0, 8, 2):
                    e(f'v_pk_mul_f32 {v(o + j, 2)}, {v(o + j, 2)}, {v(M, 2)} op_sel_hi:[1,0]')
                for j in range(4):
                    e(f'v_cvt_pk_bf16_f32 {v(d + j)}, {v(o + 2 * j)}, {v(o + 2 * j + 1)}')
                e(f'buffer_store_dwordx4 {v(d, 4)}, v9, s[4:7], {"s41" if ub < 2 else "s42"} offen offset:{2048 * tq + 64 * (ub & 1)} sc1')
        cdone(nm, K_ATT, 58, nxt=f'{name}{1 - st}_top')

    name = 'wk_wo'
    e.label(name)
    reset(e)
    e(f's_lshr_b32 s55, {s(P1)}, 3')
    e(f's_and_b32 s56, {s(P1)}, 7')
    e(f's_mul_i32 s58, s56, {512 * 1280}')
    e('s_lshl_b32 s59, s55, 8')
    e('s_add_u32 s58, s58, s59')
    S = SG(name, [(24, 1280, 128)], 8, [58])
    e('s_lshl_b32 s58, s56, 4')
    e(f'v_and_b32 v4, 15, {v(VL)}')
    e(f'v_lshrrev_b32 v5, 4, {v(VL)}')
    e('v_lshlrev_b32 v5, 4, v5')
    e('v_lshl_add_u32 v4, v4, 6, v5')
    e(f's_and_b32 s32, {s(SW)}, 1')
    e('s_lshl_b32 s33, s55, 1')
    e('s_add_u32 s33, s33, s32')
    e('s_lshl_b32 s33, s33, 13')
    e(f's_lshr_b32 s31, {s(SW)}, 1')
    e('s_lshl_b32 s31, s31, 10')
    e('s_add_u32 s33, s33, s31')
    e(f's_mul_i32 s31, s56, {32 * 2560}')
    e('s_add_u32 s33, s33, s31')
    e(f's_add_u32 s59, s33, {WS_PW}')
    e('s_lshl_b32 s56, s56, 15')
    e(f's_add_u32 s56, s56, {WS_O}')
    e.label(name + '_loop')
    reset(e)
    e(f's_lshl_b32 s55, {s(SEG)}, 18')
    e('s_add_u32 s55, s55, s56')
    e(f's_mul_i32 s33, {s(SEG)}, {8 * 32 * 2560}')
    e('s_add_u32 s33, s33, s59')
    e('s_add_u32 s34, s33, 4096')
    cwait(name, K_ATT, 1, 58)
    S.main(55)
    mid(e)
    for ni in range(4):
        e(f'buffer_store_dwordx4 {v(S.acc(ni), 4)}, v4, s[4:7], {"s33" if ni < 2 else "s34"} offen offset:{2048 * (ni & 1)} sc1')
    cdone(name, K_WO)

    name = 'wk_ln2'
    e.label(name)
    reset(e)
    GT, SH, SC, RS_, PP = 16, 28, 40, 52, 64
    e(f'v_lshlrev_b32 v10, 4, {v(VL)}')
    e('v_and_b32 v11, 0x1f0, v10')
    e(f'v_lshrrev_b32 v12, 1, v10')
    e(f'v_lshrrev_b32 v13, 1, v11')
    for base, idx in ((GT, 2), (SH, 3), (SC, 4)):
        e(f's_mov_b32 s32, {WS_MOD + idx * 2560}')
        for i in range(3):
            e(f'buffer_load_dwordx4 {v(base + 4 * i, 4)}, {"v10" if i < 2 else "v11"}, s[4:7], s32 offen offset:{1024 * i} sc1')
    e(f's_lshl_b32 s30, {s(P1)}, 2')
    e(f's_add_u32 s30, s30, {s(SW)}')
    e(f'v_lshrrev_b32 v4, 2, {v(VL)}')
    e(f'v_and_b32 v5, 3, {v(VL)}')
    e('v_lshlrev_b32 v5, 4, v5')
    e('v_lshl_add_u32 v14, v4, 11, v5')
    e('v_and_b32 v4, 7, v4')
    e('v_lshl_add_u32 v15, v4, 11, v5')
    e(f'v_lshrrev_b32 v4, 5, {v(VL)}')
    e(f'v_mul_u32_u24 v4, {32 * 2560}, v4')
    e('v_add_u32 v15, v15, v4')
    e(f'v_lshrrev_b32 v4, 4, {v(VL)}')
    e('v_lshl_add_u32 v8, v4, 12, v5')
    e(f'v_bfe_u32 v4, {v(VL)}, 3, 1')
    e('v_lshl_add_u32 v8, v4, 6, v8')
    e(f'v_bfe_u32 v4, {v(VL)}, 2, 1')
    e('v_lshl_add_u32 v8, v4, 3, v8')
    e('v_and_b32 v9, 0x1fff, v8')
    e('s_lshr_b32 s56, s30, 4')
    e('s_lshl_b32 s56, s56, 10')
    e('s_and_b32 s57, s30, 15')
    e('s_lshl_b32 s57, s57, 6')
    e('s_add_u32 s56, s56, s57')
    e(f's_add_u32 s56, s56, {WS_PW}')
    e('s_lshl_b32 s57, s30, 7')
    e(f's_add_u32 s57, s57, {WS_H2}')
    e('s_mul_i32 s58, s30, 1280')
    e('s_waitcnt vmcnt(0)')
    for j in range(12):
        e(f'v_add_f32 {v(SC + j)}, 1.0, {v(SC + j)}')
    for j in range(0, 12, 2):
        rnd2(e, SC + j, SC + j + 1, 7)
    e('s_mov_b32 s96, -1')
    e('s_mov_b32 s97, 0')
    e(f's_mov_b32 s98, {f32bits(1.0 / 640):#x}')
    e(f's_mov_b32 s99, {f32bits(1e-5):#x}')
    e.label(name + '_loop')
    reset(e)
    e(f's_mul_i32 s31, {s(SEG)}, {32 * 1280}')
    e('s_add_u32 s41, s31, s57')
    e('s_add_u32 s31, s31, s58')
    e(f's_add_u32 s40, s31, {WS_X1}')
    e(f's_mul_i32 s36, {s(SEG)}, {8 * 32 * 2560}')
    e('s_add_u32 s36, s36, s56')
    for i in range(3):
        e(f'buffer_load_dwordx2 {v(RS_ + 2 * i, 2)}, {"v12" if i < 2 else "v13"}, {s(S_X, 4)}, s31 offen offset:{512 * i}')
    e('s_waitcnt vmcnt(0)')
    cwait(name, K_WO, 40)
    for k in range(8):
        e(f's_add_u32 s33, s36, {k * 32 * 2560}')
        e(f's_add_u32 s34, s36, {k * 32 * 2560 + 32768}')
        e(f'buffer_load_dwordx4 {v(PP + 12 * k, 4)}, v14, s[4:7], s33 offen sc1', tag=('p', k))
        e(f'buffer_load_dwordx4 {v(PP + 12 * k + 4, 4)}, v14, s[4:7], s34 offen sc1', tag=('p', k))
        if k % 2 == 0:
            e(f's_add_u32 s35, s36, {k * 32 * 2560 + 65536}')
            e(f'buffer_load_dwordx4 {v(PP + 12 * k + 8, 4)}, v15, s[4:7], s35 offen sc1', tag=('p', k))
    X = PP
    e('s_add_u32 s42, s41, 16384')
    e('s_add_u32 s43, s41, 32768')
    for k in range(1, 8):
        e.wait_vm(('p', k))
        for j in range(0, 12 if k % 2 == 0 else 8, 2):
            e(f'v_pk_add_f32 {v(X + j, 2)}, {v(X + j, 2)}, {v(X + k * 12 + j, 2)}')
    for j in range(8, 12):
        e(f'v_mov_b32 {v(X + 12 + j)}, {v(X + j)}')
    for j in range(8, 12):
        e(f'v_permlane32_swap_b32 {v(X + j)}, {v(X + 12 + j)}')
    for j in range(8, 12, 2):
        e(f'v_pk_add_f32 {v(X + j, 2)}, {v(X + j, 2)}, {v(X + 12 + j, 2)}')
    mid(e)
    for j in range(0, 12, 2):
        a_, b_ = X + j, X + j + 1
        rr = RS_ + j // 2
        rnd2(e, a_, b_, 7)
        e(f'v_pk_mul_f32 {v(a_, 2)}, {v(a_, 2)}, {v(GT + j, 2)}')
        rnd2(e, a_, b_, 7)
        e(f'v_lshlrev_b32 v4, 16, {v(rr)}')
        e(f'v_and_b32 v5, 0xffff0000, {v(rr)}')
        e(f'v_pk_add_f32 {v(a_, 2)}, {v(a_, 2)}, v[4:5]')
        e(f'v_cvt_pk_bf16_f32 {v(rr)}, {v(a_)}, {v(b_)}')
        e(f'v_lshlrev_b32 {v(a_)}, 16, {v(rr)}')
        e(f'v_and_b32 {v(b_)}, 0xffff0000, {v(rr)}')
        if j % 4 == 2:
            i = j // 4
            e(f'buffer_store_dwordx2 {v(RS_ + 2 * i, 2)}, {"v12" if i < 2 else "v13"}, s[4:7], s40 offen offset:{512 * i} sc1')
    e(f'v_pk_add_f32 v[4:5], {v(X + 8, 2)}, {v(X + 10, 2)}')
    e('v_add_f32 v4, v4, v5')
    e('v_cndmask_b32 v6, 0, v4, s[96:97]')
    e(f'v_pk_add_f32 v[4:5], {v(X, 2)}, {v(X + 2, 2)}')
    e(f'v_pk_add_f32 v[4:5], v[4:5], {v(X + 4, 2)}')
    e(f'v_pk_add_f32 v[4:5], v[4:5], {v(X + 6, 2)}')
    e('v_add_f32 v4, v4, v5')
    e('v_add_f32 v6, v6, v4')
    wave_sum(e, 6, 5)
    e('v_mul_f32 v6, s98, v6')
    e('v_mov_b32 v2, 0')
    for j in range(8, 12):
        e(f'v_sub_f32 v5, {v(X + j)}, v6')
        e('v_fmac_f32 v2, v5, v5')
    e('v_cndmask_b32 v2, 0, v2, s[96:97]')
    for j in range(8):
        e(f'v_sub_f32 v5, {v(X + j)}, v6')
        e('v_fmac_f32 v2, v5, v5')
    wave_sum(e, 2, 5)
    e('v_mul_f32 v2, s98, v2')
    rnd2(e, 6, 2, 7)
    e('v_add_f32 v2, s99, v2')
    rnd2(e, 2, 5, 7)
    e('v_sqrt_f32 v2, v2')
    rnd2(e, 2, 5, 7)
    e('v_rcp_f32 v2, v2')
    for j in range(0, 12, 2):
        a_, b_ = X + j, X + j + 1
        e(f'v_sub_f32 {v(a_)}, {v(a_)}, v6')
        e(f'v_sub_f32 {v(b_)}, {v(b_)}, v6')
        rnd2(e, a_, b_, 7)
        e(f'v_mul_f32 {v(a_)}, {v(a_)}, v2')
        e(f'v_mul_f32 {v(b_)}, {v(b_)}, v2')
        rnd2(e, a_, b_, 7)
        e(f'v_pk_mul_f32 {v(a_, 2)}, {v(a_, 2)}, {v(SC + j, 2)}')
        rnd2(e, a_, b_, 7)
        e(f'v_pk_add_f32 {v(a_, 2)}, {v(a_, 2)}, {v(SH + j, 2)}')
        e(f'v_cvt_pk_bf16_f32 {v(X + 12 + j // 2)}, {v(a_)}, {v(b_)}')
        if j % 4 == 2:
            i = j // 4
            e(f'buffer_store_dwordx2 {v(X + 12 + 2 * i, 2)}, {"v8" if i < 2 else "v9"}, s[4:7], {s(41 + i)} offen sc1')
    cdone(name, K_LN2)

    name = 'wk_up'
    e.label(name)
    reset(e)
    e(f's_lshl_b32 s58, {s(P1)}, 7')
    e('s_mov_b32 s59, s58')
    S = SG(name, [(S_W1, 3456, 64), (S_W3, 3456, 64)], 10, [58, 59])
    e(f'v_and_b32 v4, 15, {v(VL)}')
    e(f'v_lshrrev_b32 v5, 4, {v(VL)}')
    e('v_lshlrev_b32 v5, 4, v5')
    e('v_lshl_add_u32 v4, v4, 7, v5')
    e(f's_lshr_b32 s31, {s(SW)}, 1')
    e('s_lshl_b32 s31, s31, 11')
    e(f's_and_b32 s32, {s(SW)}, 1')
    e('s_lshl_b32 s32, s32, 6')
    e('s_add_u32 s31, s31, s32')
    e(f's_lshl_b32 s59, {s(P1)}, 12')
    e('s_add_u32 s59, s59, s31')
    e(f's_add_u32 s59, s59, {WS_HM}')
    e(f's_mov_b32 s36, {f32bits(-LOG2E):#x}')
    e.label(name + '_loop')
    reset(e)
    e(f's_mul_i32 s55, {s(SEG)}, {32 * 1280}')
    e(f's_add_u32 s55, s55, {WS_H2}')
    e(f's_mul_i32 s33, {s(SEG)}, {32 * 3456}')
    e('s_add_u32 s33, s33, s59')
    cwait(name, K_LN2, 8)
    S.main(55)
    mid(e)
    for a_ in range(2):
        gv = S.acc(a_)
        uv = S.acc(2 + a_)
        for h in range(2):
            g0, g1, u0, u1 = gv + 2 * h, gv + 2 * h + 1, uv + 2 * h, uv + 2 * h + 1
            rnd2(e, g0, g1, 6)
            rnd2(e, u0, u1, 6)
            silu_inplace(e, g0, 6, 36)
            silu_inplace(e, g1, 7, 36)
            rnd2(e, g0, g1, 6)
            e(f'v_mul_f32 {v(g0)}, {v(g0)}, {v(u0)}')
            e(f'v_mul_f32 {v(g1)}, {v(g1)}, {v(u1)}')
            e(f'v_cvt_pk_bf16_f32 {v(ET + 2 * a_ + h)}, {v(g0)}, {v(g1)}')
    e(f'buffer_store_dwordx4 {v(ET, 4)}, v4, s[4:7], s33 offen sc1')
    cdone(name, K_UP)

    name = 'wk_dn'
    e.label(name)
    reset(e)
    e(f's_lshl_b32 s58, {s(P1)}, 7')
    S = SG(name, [(S_W2, 1280, 64)], 27, [58], nacc=2)
    GBV = 8
    G = S.G
    assert (G.v_xg, G.v_xa) == (8, 12)
    e(f'v_and_b32 v4, 15, {v(VL)}')
    e(f'v_lshrrev_b32 v5, 4, {v(VL)}')
    e('v_mul_u32_u24 v4, 1280, v4')
    e('v_lshl_add_u32 v4, v5, 3, v4')
    e('v_lshlrev_b32 v5, 4, v5')
    e(f's_and_b32 s32, {s(SW)}, 1')
    e('s_lshl_b32 s32, s32, 6')
    e('s_add_u32 s58, s58, s32')
    e('s_lshl_b32 s33, s58, 1')
    e(f's_add_u32 s33, s33, {WS_MOD + 5 * 2560}')
    e(f'buffer_load_dwordx4 {v(ET, 4)}, v5, s[4:7], s33 offen sc1')
    e(f'buffer_load_dwordx4 {v(ET + 4, 4)}, v5, s[4:7], s33 offen offset:64 sc1')
    e(f's_lshr_b32 s31, {s(SW)}, 1')
    e(f's_mul_i32 s31, s31, {16 * 1280}')
    e('s_add_u32 s59, s58, s31')
    e('s_waitcnt vmcnt(0)')
    e.label(name + '_loop')
    reset(e)
    e(f's_mul_i32 s55, {s(SEG)}, {32 * 3456}')
    e(f's_add_u32 s55, s55, {WS_HM}')
    e(f's_mul_i32 s33, {s(SEG)}, {32 * 1280}')
    e('s_add_u32 s33, s33, s59')
    e(f's_add_u32 s34, s33, {WS_X1}')
    cwait(name, K_UP, 27)

    def x1_loads():
        e('buffer_load_dwordx2 v[16:17], v4, s[4:7], s34 offen sc1', tag='r')
        e('buffer_load_dwordx2 v[18:19], v4, s[4:7], s34 offen offset:32 sc1', tag='r')
    S.main(55, x1_loads)
    mid(e)
    e.wait_vm('r')
    for ni in range(2):
        for h in range(2):
            a_ = S.acc(ni) + 2 * h
            rr = 16 + 2 * ni + h
            rnd2(e, a_, a_ + 1, 7)
            e(f'v_pk_mul_f32 {v(a_, 2)}, {v(a_, 2)}, {v(ET + 4 * ni + 2 * h, 2)}')
            rnd2(e, a_, a_ + 1, 7)
            e(f'v_lshlrev_b32 v6, 16, {v(rr)}')
            e(f'v_and_b32 v7, 0xffff0000, {v(rr)}')
            e(f'v_pk_add_f32 {v(a_, 2)}, {v(a_, 2)}, v[6:7]')
            e(f'v_cvt_pk_bf16_f32 {v(rr)}, {v(a_)}, {v(a_ + 1)}')
        e(f'buffer_store_dwordx2 {v(16 + 2 * ni, 2)}, v4, {s(S_OUT, 4)}, s33 offen offset:{32 * ni}')
    cdone(name, None)

    name = 'wk_mod'
    e.label(name)
    reset(e)
    load_srds(e, [('c', 88), ('wmod', 92)], tmp=96)
    e(f's_lshl_b32 s30, {s(SW)}, 6')
    e(f'v_add_u32 v0, s30, {v(VL)}')
    e(f's_cmp_ge_u32 {s(P1)}, {NMODA}')
    e(f's_cbranch_scc1 {name}_nz')
    e('v_mov_b32 v4, 0')
    e('v_lshlrev_b32 v2, 2, v0')
    e(f's_lshl_b32 s31, {s(P1)}, 10')
    e(f's_add_u32 s31, s31, {WS_CT2}')
    e('buffer_store_dword v4, v2, s[4:7], s31 offen sc1')
    e(f's_cmp_lg_u32 {s(P1)}, 0')
    e(f's_cbranch_scc1 {name}_nz')
    for j in range(4):
        e(f'v_mov_b32 {v(4 + j)}, 0')
    e('v_lshlrev_b32 v2, 4, v0')
    e(f's_mov_b32 s31, {WS_CTR}')
    for i in range(5):
        e('buffer_store_dwordx4 v[4:7], v2, s[4:7], s31 offen sc1')
        e('s_add_u32 s31, s31, 4096')
    e.label(f'{name}_nz')
    reset(e)
    e.nop(2)
    e('v_lshlrev_b32 v14, 1, v0')
    e('v_lshlrev_b32 v2, 2, v0')
    e(f's_mov_b32 s30, {f32bits(-LOG2E):#x}')
    for i in range(3):
        e(f'buffer_load_ushort {v(4 + i)}, v14, s[88:91], 0 offen offset:{512 * i}', tag='c')
    e('v_and_b32 v8, 3, v0')
    e('v_lshrrev_b32 v9, 2, v0')
    e('v_mul_u32_u24 v10, 7680, v9')
    e('v_lshl_add_u32 v10, v8, 4, v10')
    e(f's_lshl_b32 s31, {s(P1)}, 6')
    for i in range(10):
        if i:
            e(f's_add_u32 s31, s31, {64 * 7680}')
        e(f'buffer_load_dwordx4 {v(32 + 4 * i, 4)}, v10, s[92:95], s31 offen', tag=('w', i))
    e.wait_vm('c')
    for i in range(3):
        e(f'v_lshlrev_b32 {v(4 + i)}, 16, {v(4 + i)}')
        silu_inplace(e, 4 + i, 7, 30)
        e(f'v_cvt_pk_bf16_f32 {v(4 + i)}, {v(4 + i)}, {v(4 + i)}')
        e(f'v_lshlrev_b32 {v(4 + i)}, 16, {v(4 + i)}')
        e(f'ds_write_b32 v2, {v(4 + i)} offset:{1024 * i}')
    e.wait_lg()
    e('s_barrier')
    e('v_lshlrev_b32 v11, 2, v9')
    for i in range(10):
        e(f'ds_read_b32 {v(112 + i)}, v11 offset:{256 * i}')
    for j in range(8):
        e(f'v_mov_b32 {v(16 + j)}, 0')
    e.wait_lg()
    for i in range(10):
        e.wait_vm(('w', i))
        for d in range(4):
            w = 32 + 4 * i + d
            e(f'v_lshlrev_b32 v12, 16, {v(w)}')
            e(f'v_and_b32 v13, 0xffff0000, {v(w)}')
            e(f'v_fmac_f32 {v(16 + 2 * d)}, v12, {v(112 + i)}')
            e(f'v_fmac_f32 {v(17 + 2 * d)}, v13, {v(112 + i)}')
    e('v_lshlrev_b32 v12, 7, v9')
    e('v_lshl_add_u32 v12, v8, 5, v12')
    e('ds_write_b128 v12, v[16:19] offset:4096')
    e('ds_write_b128 v12, v[20:23] offset:4112')
    e.wait_lg()
    e('s_barrier')
    e(f's_cmp_lg_u32 {s(SW)}, 0')
    e(f's_cbranch_scc1 {name}_done')
    e(f'v_and_b32 v12, 31, {v(VL)}')
    e(f'v_lshrrev_b32 v13, 5, {v(VL)}')
    e('v_lshlrev_b32 v12, 2, v12')
    e('v_lshl_add_u32 v13, v13, 12, v12')
    for i in range(32):
        e(f'ds_read_b32 {v(32 + i)}, v13 offset:{4096 + 128 * i}')
    e.wait_lg()
    for i in range(1, 32):
        e(f'v_add_f32 v32, v32, {v(32 + i)}')
    e('v_mov_b32 v33, v32')
    e('v_permlane32_swap_b32 v32, v33')
    e('v_add_f32 v32, v32, v33')
    e('v_cvt_pk_bf16_f32 v32, v32, v32')
    e('v_lshlrev_b32 v32, 16, v32')
    e(f's_lshl_b32 s31, {s(P1)}, 7')
    e(f's_add_u32 s31, s31, {WS_MOD}')
    e('buffer_store_dword v32, v12, s[4:7], s31 offen sc1')
    e.label(f'{name}_done')
    e(f's_mov_b32 s36, {D_MODB}')
    e(f's_cmp_lt_u32 {s(P1)}, {NMODA}')
    e(f's_cselect_b32 s36, {D_MOD}, s36')
    signal(e, name, None, B, loop, dbg_off='s36')

    name = 'wk_ln1'
    e.label(name)
    reset(e)
    RPW = 4
    e(f's_lshl_b32 s30, {s(P1)}, 2')
    e(f's_add_u32 s30, s30, {s(SW)}')
    e(f's_mul_i32 s30, s30, {RPW * 1280}')
    e(f'v_lshlrev_b32 v4, 2, {v(VL)}')
    e('s_add_u32 s31, s30, 2560')
    for r in range(RPW):
        for i in range(5):
            e(f'buffer_load_dword {v(16 + 5 * r + i)}, v4, {s(S_X, 4)}, {"s30" if r < 2 else "s31"} offen offset:{(r & 1) * 1280 + 256 * i}', tag=('x', r))
    e(f'v_bfe_u32 v5, {v(VL)}, 1, 2')
    e(f'v_bfe_u32 v6, {v(VL)}, 3, 1')
    e(f'v_and_b32 v12, 1, {v(VL)}')
    e('v_lshl_add_u32 v12, v6, 1, v12')
    e('v_lshl_add_u32 v12, v5, 2, v12')
    e(f'v_and_b32 v5, 48, {v(VL)}')
    e('v_add_u32 v12, v12, v5')
    e('v_lshlrev_b32 v12, 2, v12')
    e(f's_mov_b32 s32, {f32bits(1.0 / 640):#x}')
    e(f's_mov_b32 s33, {f32bits(1e-5):#x}')
    for r in range(RPW):
        X = 64 + 10 * r
        e.wait_vm(('x', r))
        for i in range(5):
            e(f'v_lshlrev_b32 {v(X + 2 * i)}, 16, {v(16 + 5 * r + i)}')
            e(f'v_and_b32 {v(X + 2 * i + 1)}, 0xffff0000, {v(16 + 5 * r + i)}')
        e(f'v_add_f32 v8, {v(X)}, {v(X + 1)}')
        for j in range(2, 10):
            e(f'v_add_f32 v8, v8, {v(X + j)}')
        wave_sum(e, 8, 9)
        e('v_mul_f32 v8, s32, v8')
        e('v_mov_b32 v10, 0')
        for j in range(10):
            e(f'v_sub_f32 v9, {v(X + j)}, v8')
            e('v_fmac_f32 v10, v9, v9')
        wave_sum(e, 10, 9)
        e('v_mul_f32 v10, s32, v10')
        rnd2(e, 8, 10, 7)
        e('v_add_f32 v10, s33, v10')
        rnd2(e, 10, 9, 7)
        e('v_sqrt_f32 v10, v10')
        rnd2(e, 10, 9, 7)
        e('v_rcp_f32 v10, v10')
        for j in range(0, 10, 2):
            a_, b_ = X + j, X + j + 1
            e(f'v_sub_f32 {v(a_)}, {v(a_)}, v8')
            e(f'v_sub_f32 {v(b_)}, {v(b_)}, v8')
            rnd2(e, a_, b_, 7)
            e(f'v_mul_f32 {v(a_)}, {v(a_)}, v10')
            e(f'v_mul_f32 {v(b_)}, {v(b_)}, v10')
            rnd2(e, a_, b_, 7)
    dbg_wait(e, name, D_MOD, NMODA)
    e(f'v_lshlrev_b32 v3, 3, {v(VL)}')
    e(f's_mov_b32 s34, {WS_MOD}')
    e(f's_mov_b32 s35, {WS_MOD + 2560}')
    for i in range(5):
        e(f'buffer_load_dwordx2 {v(16 + 2 * i, 2)}, v3, s[4:7], s34 offen offset:{512 * i} sc1')
        e(f'buffer_load_dwordx2 {v(26 + 2 * i, 2)}, v3, s[4:7], s35 offen offset:{512 * i} sc1')
    e(f's_add_u32 s30, s30, {WS_H1}')
    e(f's_mul_i32 s38, {s(SW)}, 5120')
    e('v_add_u32 v12, s38, v12')
    e.wait_vm()
    for j in range(10):
        e(f'v_add_f32 {v(26 + j)}, 1.0, {v(26 + j)}')
    for j in range(0, 10, 2):
        rnd2(e, 26 + j, 27 + j, 7)
    for r in range(RPW):
        X = 64 + 10 * r
        for j in range(0, 10, 2):
            a_, b_ = X + j, X + j + 1
            e(f'v_mul_f32 {v(a_)}, {v(a_)}, {v(26 + j)}')
            e(f'v_mul_f32 {v(b_)}, {v(b_)}, {v(27 + j)}')
            rnd2(e, a_, b_, 7)
            e(f'v_add_f32 {v(a_)}, {v(a_)}, {v(16 + j)}')
            e(f'v_add_f32 {v(b_)}, {v(b_)}, {v(17 + j)}')
            e(f'v_cvt_pk_bf16_f32 {v(a_)}, {v(a_)}, {v(b_)}')
            e(f'ds_write_b32 v12, {v(a_)} offset:{r * 1280 + 128 * j}')
    e(f'v_lshlrev_b32 v13, 4, {v(VL)}')
    e('v_add_u32 v14, s38, v13')
    e.wait_lg()
    for i in range(5):
        e(f'ds_read_b128 {v(16 + 4 * i, 4)}, v14 offset:{1024 * i}')
    e('s_add_u32 s31, s30, 4096')
    e.wait_lg()
    for i in range(5):
        e(f'buffer_store_dwordx4 {v(16 + 4 * i, 4)}, v13, s[4:7], {"s30" if i < 4 else "s31"} offen offset:{1024 * (i & 3)} sc1')
    e(f's_lshr_b32 {s(B)}, {s(P1)}, 3')
    e('s_mov_b32 s51, 1')
    signal(e, name, C_LN1, B, loop)


NAME = 'adaLN_cond__memory_aug_recurrent_mem_tr__glu_gated_swiglu__prompt_kernel'
if __name__ == '__main__':
    import argparse
    ap = argparse.ArgumentParser()
    ap.add_argument('--out', default='mega.s')
    ap.add_argument('--kw', default='')
    ap.add_argument('--log', action='store_true')
    ap.add_argument('--sleep', type=int, default=6)
    ap.add_argument('--list', action='store_true')
    ap.add_argument('--dsleep', type=int, default=24)
    args = ap.parse_args()
    LOG = args.log
    SLEEP = args.sleep
    DSLEEP = args.dsleep
    e = Em()
    nm = 'mega_kernel' if args.list else NAME
    e.raw(f'.globl {nm}')
    KNAME[0] = nm
    reset(e)
    kw = eval('dict(' + args.kw + ')')
    gen_chainX.gen_chain(e, name=nm, mega='wk_entry', nmoda=NMODA, segsig=WS_CT2 + K_CH * 128, **kw)
    gen_workers(e)
    if args.list:
        hdr = f"; @launch kernel={nm} grid=(256,1,1) block=(256,1,1) lds=163840\n"
    else:
        hdr = "; @launch grid=(256,1,1) block=(256,1,1) lds=163840\n"
    hdr += '.amdgcn_target "amdgcn-amd-amdhsa--gfx950"\n.text\n'
    open(args.out, 'w').write(hdr + e.text() + kd(nm, 512, 256))
```

```python
from emit import *
from layout import *
from gen_chain import f32bits, kd
from gen_gemm import Gemm
import gen_all
from gen_all import start, load_srds, end, lane_wave, silu_inplace, wave_sum, rnd2, LOG2E, KA, SIZES
import gen_chain12 as gen_chainX
from gen_chain12 import far_jump

LOG = False
SLEEP = 8
SLEEPN = 1
DSLEEP = 24
WS_LOG = 0x0F400000
POOLS = [('wk_att', 11), ('wk_wo', 40), ('wk_ln2', 8), ('wk_up', 27), ('wk_dn', 10)]
GSZ = sum(c for _, c in POOLS)
NATT = 22
WS_CT2 = 0x00040000
K_CH, K_ATT, K_WO, K_LN2, K_UP = 0, 64, 128, 192, 256
NCH = 32
NMODA, NLN, NMODB = 40, 128, 80
NPRE = NMODA + NLN + NMODB
NTASK = NPRE + 768
D_TASK, D_MOD, D_MODB = 64, 128, 140
S_RANK, S_PB = 60, 30
SW = 29
S_W1, S_W3, S_W2, S_X, S_OUT, S_SEL = 64, 68, 72, 76, 80, 84
VL = 1
_bj = [0]
KNAME = ['']


def back_jump(e, label, sp=44):
    _bj[0] += 1
    here = f'Lbj{_bj[0]}'
    e(f's_getpc_b64 {s(sp, 2)}')
    e.label(here)
    e.raw(f'    s_add_u32 {s(sp)}, {s(sp)}, {label}-{here}')
    e.raw(f'    s_addc_u32 {s(sp + 1)}, {s(sp + 1)}, -1')
    e(f's_setpc_b64 {s(sp, 2)}')


def reset(e):
    e.hist = []
    e.vm = []
    e.lg = []


def dep_wait(e, lab, deps, sb):
    e(f's_cmp_lg_u32 {s(SW)}, 0')
    e(f's_cbranch_scc1 {lab}_dw')
    e(f's_lshl_b32 s38, {s(sb)}, 7')
    e('v_mov_b32 v2, 0')
    for i, (c, tgt) in enumerate(deps):
        e(f's_add_u32 s39, s38, {WS_CTR + c * 128}')
        e.label(f'{lab}_sp{i}')
        e('buffer_load_dword v3, v2, s[4:7], s39 offen sc1')
        e('s_waitcnt vmcnt(0)')
        e('v_readfirstlane_b32 s37, v3')
        e(f's_cmp_ge_u32 s37, {tgt}')
        e(f's_cbranch_scc1 {lab}_ok{i}')
        for _ in range(SLEEPN):
            e(f's_sleep {SLEEP}')
        e(f's_branch {lab}_sp{i}')
        e.label(f'{lab}_ok{i}')
    e.label(f'{lab}_dw')
    e('s_barrier')
    if LOG:
        e('s_memrealtime s[100:101]')
        e('s_waitcnt lgkmcnt(0)')
        e('s_mov_b32 s63, s100')
    reset(e)


def dbg_wait(e, lab, off_sgpr_or_int, tgt):
    e(f's_cmp_lg_u32 {s(SW)}, 0')
    e(f's_cbranch_scc1 {lab}_dw')
    e(f'v_mov_b32 v2, {off_sgpr_or_int}')
    e.label(f'{lab}_sp')
    e('buffer_load_dword v3, v2, s[8:11], 0 offen sc1')
    e('s_waitcnt vmcnt(0)')
    e('v_readfirstlane_b32 s37, v3')
    e(f's_cmp_ge_u32 s37, {tgt}')
    e(f's_cbranch_scc1 {lab}_dw')
    e(f's_sleep {DSLEEP}')
    e(f's_branch {lab}_sp')
    e.label(f'{lab}_dw')
    e('s_barrier')
    if LOG:
        e('s_memrealtime s[100:101]')
        e('s_waitcnt lgkmcnt(0)')
        e('s_mov_b32 s63, s100')
    reset(e)


def signal(e, lab, c, sb, loop, dbg_off=None):
    e('s_waitcnt vmcnt(0) lgkmcnt(0)')
    e('s_barrier')
    if LOG:
        e('s_memrealtime s[100:101]')
        e('s_waitcnt lgkmcnt(0)')
        e('v_mov_b32 v4, s63')
        e('v_mov_b32 v5, s100')
        e('v_mov_b32 v6, s61')
        e('v_mov_b32 v7, s28')
        e('v_mov_b32 v2, 0')
        e('s_lshl_b32 s38, s62, 4')
        e(f's_add_u32 s38, s38, {WS_LOG}')
        e('buffer_store_dwordx4 v[4:7], v2, s[4:7], s38 offen')
    if dbg_off is not None:
        e(f's_cmp_lg_u32 {s(SW)}, 0')
        e(f's_cbranch_scc1 {lab}_sg')
        e(f'v_mov_b32 v2, {dbg_off}')
        e('v_mov_b32 v3, 1')
        e('s_mov_b64 exec, 1')
        e('buffer_atomic_add v3, v2, s[8:11], 0 offen')
        e('s_mov_b64 exec, -1')
        e.label(f'{lab}_sg')
    elif c is not None:
        e(f's_cmp_lg_u32 {s(SW)}, 0')
        e(f's_cbranch_scc1 {lab}_sg')
        if isinstance(c, int):
            e(f's_lshl_b32 s38, {s(sb)}, 7')
            e(f's_add_u32 s38, s38, {WS_CTR + c * 128}')
        else:
            e(f's_add_u32 s38, {s(sb)}, {c}')
            e('s_lshl_b32 s38, s38, 7')
            e(f's_add_u32 s38, s38, {WS_CTR}')
        e('v_mov_b32 v2, 0')
        e('v_mov_b32 v3, 1')
        e('s_mov_b64 exec, 1')
        e('buffer_atomic_add v3, v2, s[4:7], s38 offen')
        e('s_mov_b64 exec, -1')
        e.label(f'{lab}_sg')
    back_jump(e, loop)


def mid(e):
    if LOG:
        e('s_memrealtime s[100:101]')
        e('s_waitcnt lgkmcnt(0)')
        e('s_mov_b32 s61, s100')


def h_qkv(e, loop):
    name = 'wk_qkv'
    e.label(name)
    reset(e)
    e('s_cmp_eq_u32 s23, 1')
    e(f's_cselect_b32 {s(S_SEL)}, s16, s12')
    e(f's_cselect_b32 {s(S_SEL + 1)}, s17, s13')
    e('s_cmp_eq_u32 s23, 2')
    e(f's_cselect_b32 {s(S_SEL)}, s20, {s(S_SEL)}')
    e(f's_cselect_b32 {s(S_SEL + 1)}, s21, {s(S_SEL + 1)}') if False else None
    return


def gen_workers(e, loop='wk_loop'):
    B, P1, P2 = 52, 53, 54
    e.label('wk_entry')
    e('s_mov_b32 s49, 2')
    reset(e)
    e(f'v_mov_b32 {v(VL)}, v16')
    load_srds(e, [('w1', S_W1), ('w3', S_W3), ('w2', S_W2), ('x', S_X), ('out', S_OUT)], tmp=88)
    e(f's_mov_b32 {s(S_SEL + 2)}, 5242880')
    e(f's_mov_b32 {s(S_SEL + 3)}, 0x20000')
    e(f's_mov_b32 {s(S_SEL)}, s12')
    e(f's_mov_b32 {s(S_SEL + 1)}, s13')
    e('s_mov_b32 s48, -1')
    e('s_mov_b32 s51, 0')

    def ticket(ctr, dst, lab):
        e(f's_cmp_lg_u32 {s(SW)}, 0')
        e(f's_cbranch_scc1 {lab}')
        e('v_mov_b32 v2, 0')
        e('v_mov_b32 v3, 1')
        e('s_mov_b64 exec, 1')
        e(f'buffer_atomic_add v3, v2, s[8:11], 0 offen offset:{D_TASK} sc0')
        e('s_waitcnt vmcnt(0)')
        e('ds_write_b32 v2, v3')
        e('s_mov_b64 exec, -1')
        e('s_waitcnt lgkmcnt(0)')
        e.label(lab)
        e('s_barrier')
        e('v_mov_b32 v2, 0')
        e('ds_read_b32 v3, v2')
        e('s_waitcnt lgkmcnt(0)')
        e(f'v_readfirstlane_b32 {s(dst)}, v3')
        e('s_barrier')
    e.label(loop)
    reset(e)
    e('s_cmp_lg_u32 s48, -1')
    e('s_cbranch_scc1 wk_pool')
    e('s_cmp_eq_u32 s49, 0')
    e('s_cbranch_scc1 wk_norec')
    e('s_sub_u32 s49, s49, 1')
    e('s_cmp_lg_u32 s49, 0')
    e('s_cbranch_scc1 wk_norec')
    e(f's_cmp_lg_u32 {s(SW)}, 0')
    e('s_cbranch_scc1 wk_rec1')
    e('v_mov_b32 v2, 0')
    e('buffer_load_dwordx2 v[4:5], v2, s[8:11], 0 offen sc1')
    e('s_waitcnt vmcnt(0)')
    e('ds_write_b64 v2, v[4:5]')
    e('s_waitcnt lgkmcnt(0)')
    e.label('wk_rec1')
    e('s_barrier')
    e('v_mov_b32 v2, 0')
    e('ds_read_b64 v[4:5], v2')
    e('s_waitcnt lgkmcnt(0)')
    e('v_readfirstlane_b32 s50, v4')
    e('v_readfirstlane_b32 s34, v5')
    e('s_barrier')
    e('s_min_u32 s34, s34, s50')
    e('s_cmp_ge_u32 s34, 32')
    e('s_cbranch_scc1 wk_norec')
    e('s_cmp_ge_u32 s50, 32')
    e('s_cselect_b32 s34, 4, 0')
    e(f'v_mov_b32 v16, {v(VL)}')
    back_jump(e, KNAME[0] + '_take')
    e.label('wk_norec')
    ticket(C_TASK, 50, 'wk_dq')
    e(f's_cmp_lt_u32 s50, {NTASK}')
    e('s_cbranch_scc1 wk_have')
    e(f's_sub_u32 {s(S_RANK)}, s50, {NTASK}')
    e('s_mov_b32 s48, 0')
    dbg_wait(e, 'wk_ma', D_MOD, NMODA)
    dbg_wait(e, 'wk_mb', D_MODB, NMODB)
    e('s_branch wk_pool')
    e.label('wk_have')
    if LOG:
        e('s_add_u32 s62, s50, 8000')
        e('s_memrealtime s[100:101]')
        e('s_waitcnt lgkmcnt(0)')
        e('s_mov_b32 s63, s100')
        e('s_mov_b32 s28, s100')
        e('s_mov_b32 s61, s100')
    e(f's_cmp_ge_u32 s50, {NMODA}')
    e('s_cbranch_scc1 wk_nm')
    e(f's_mov_b32 {s(P1)}, s50')
    far_jump(e, 'wk_mod', 44)
    e.label('wk_nm')
    e(f's_cmp_ge_u32 s50, {NMODA + NLN}')
    e('s_cbranch_scc1 wk_nl0')
    e(f's_sub_u32 {s(P1)}, s50, {NMODA}')
    far_jump(e, 'wk_ln1', 44)
    e.label('wk_nl0')
    e(f's_cmp_ge_u32 s50, {NPRE}')
    e('s_cbranch_scc1 wk_nl')
    e(f's_sub_u32 {s(P1)}, s50, {NLN}')
    far_jump(e, 'wk_mod', 44)
    e.label('wk_nl')
    e(f's_sub_u32 s50, s50, {NPRE}')
    if LOG:
        e('s_mov_b32 s62, s50')
    e('s_cmp_ge_u32 s50, 512')
    e('s_cbranch_scc1 wk_isq')
    e(f's_lshr_b32 {s(B)}, s50, 5')
    e(f's_and_b32 {s(P1)}, s50, 15')
    e(f's_bfe_u32 {s(P2)}, s50, 0x10004')
    e(f's_add_u32 {s(P2)}, {s(P2)}, 1')
    far_jump(e, 'wk_qkv', 44)
    e.label('wk_isq')
    e('s_sub_u32 s50, s50, 512')
    e(f's_lshr_b32 {s(B)}, s50, 4')
    e(f's_and_b32 {s(P1)}, s50, 15')
    e(f's_mov_b32 {s(P2)}, 0')
    far_jump(e, 'wk_qkv', 44)
    e.label('wk_pool')
    e(f's_and_b32 {s(B)}, {s(S_RANK)}, 1')
    e(f's_lshr_b32 {s(S_RANK)}, {s(S_RANK)}, 1')
    if LOG:
        e('s_memrealtime s[100:101]')
        e('s_waitcnt lgkmcnt(0)')
        e('s_mov_b32 s63, s100')
        e('s_mov_b32 s28, s100')
        e('s_mov_b32 s61, s100')
    lo = 0
    for lab, cnt in POOLS:
        hi = lo + cnt
        e(f's_cmp_ge_u32 {s(S_RANK)}, {hi}')
        e(f's_cbranch_scc1 wk_n{hi}')
        e(f's_sub_u32 {s(P1)}, {s(S_RANK)}, {lo}')
        far_jump(e, lab, 44)
        e.label(f'wk_n{hi}')
        lo = hi
    e('s_endpgm')

    name = 'wk_qkv'
    e.label(name)
    reset(e)
    e(f's_cmp_eq_u32 {s(P2)}, 1')
    e(f's_cselect_b32 {s(S_SEL)}, s16, s12')
    e(f's_cselect_b32 {s(S_SEL + 1)}, s17, s13')
    e(f's_cmp_eq_u32 {s(P2)}, 2')
    e(f's_cselect_b32 {s(S_SEL)}, s20, {s(S_SEL)}')
    e(f's_cselect_b32 {s(S_SEL + 1)}, s21, {s(S_SEL + 1)}')
    G = Gemm(e, 128, [(S_SEL, 8192, 128), (S_SEL, 8192, 128)], 2, 2, 10, 1280, vbase=8, sbase=40, xfl='sc1')
    G.setup(VL, SW, 2)
    e(f's_mul_i32 s55, {s(B)}, {128 * 1280}')
    e(f's_add_u32 s55, s55, {WS_H1}')
    e(f's_lshl_b32 s56, {s(P1)}, 9')
    e('s_add_u32 s57, s56, 256')
    G.init_offsets(55, [56, 57])
    G.pre_w()
    e('s_cmp_lg_u32 s51, 0')
    e(f's_cbranch_scc1 {name}_ini')
    dbg_wait(e, name + '_a', D_MOD, NMODA)
    e('s_mov_b32 s51, 1')
    e.label(f'{name}_ini')
    dep_wait(e, name, [(C_LN1, 8)], B)
    e(f's_lshr_b32 s31, {s(SW)}, 1')
    e(f's_and_b32 s32, {s(SW)}, 1')
    e(f's_lshl_b32 s33, {s(B)}, 2')
    e('s_lshl_b32 s31, s31, 1')
    e('s_add_u32 s33, s33, s31')
    e('s_lshl_b32 s33, s33, 5')
    e(f's_lshl_b32 s34, {s(P1)}, 1')
    e('s_add_u32 s33, s33, s34')
    e('s_lshl_b32 s33, s33, 13')
    e(f's_cmp_lg_u32 {s(P2)}, 2')
    e(f's_cbranch_scc1 {name}_t0')
    far_jump(e, f'{name}_v', 98)
    e.label(f'{name}_t0')
    G.mainloop(4, ['T'] * G.NT, name + '_t', w_done=True)
    mid(e)
    e(f'v_and_b32 v2, 15, {v(VL)}')
    e(f'v_lshrrev_b32 v3, 4, {v(VL)}')
    e('v_lshlrev_b32 v3, 4, v3')
    e('v_lshl_add_u32 v2, v2, 8, v3')
    e('s_lshl_b32 s32, s32, 7')
    e('s_add_u32 s33, s33, s32')
    e(f's_mov_b32 s34, {WS_QX}')
    e(f's_mov_b32 s36, {C_Q}')
    e(f's_cmp_eq_u32 {s(P2)}, 1')
    e(f's_cselect_b32 s34, {WS_KX}, s34')
    e(f's_cselect_b32 s36, {C_KV}, s36')
    e('s_add_u32 s33, s33, s34')
    T = G.v_fx
    k = 0
    for mi in range(4):
        for p in range(2):
            for ub in range(2):
                t = T + 8 * (k % 4)
                k += 1
                for hf in range(2):
                    ac = G.accr(mi, p * 4 + ub * 2 + hf) - 256
                    for j in range(4):
                        e(f'v_accvgpr_read_b32 {v(t + 4 + j)}, {a(ac + j)}')
                    e(f'v_cvt_pk_bf16_f32 {v(t + 2 * hf)}, {v(t + 4)}, {v(t + 5)}')
                    e(f'v_cvt_pk_bf16_f32 {v(t + 2 * hf + 1)}, {v(t + 6)}, {v(t + 7)}')
                off = (mi >> 1) * 32 * 8192 + p * 8192 + (mi & 1) * 4096 + ub * 64
                e(f's_add_u32 s35, s33, {off}')
                e(f'buffer_store_dwordx4 {v(t, 4)}, v2, s[4:7], s35 offen sc1')
    signal(e, name + '_t', 's36', B, loop)
    e.label(f'{name}_v')
    reset(e)
    G.mainloop(4, ['N'] * G.NT, name + '_n', w_done=True)
    mid(e)
    e(f'v_lshlrev_b32 v2, 4, {v(VL)}')
    e('s_lshl_b32 s32, s32, 12')
    e('s_add_u32 s33, s33, s32')
    e(f's_add_u32 s33, s33, {WS_VXT}')
    k = 0
    for sg in range(2):
        for p in range(2):
            for a_ in range(4):
                t = T + 8 * (k % 4)
                k += 1
                for hf in range(2):
                    ac = G.accr(sg * 2 + hf, p * 4 + a_) - 256
                    for j in range(4):
                        e(f'v_accvgpr_read_b32 {v(t + 4 + j)}, {a(ac + j)}')
                    e(f'v_cvt_pk_bf16_f32 {v(t + 2 * hf)}, {v(t + 4)}, {v(t + 5)}')
                    e(f'v_cvt_pk_bf16_f32 {v(t + 2 * hf + 1)}, {v(t + 6)}, {v(t + 7)}')
                off = sg * 32 * 8192 + p * 8192 + a_ * 1024
                e(f's_add_u32 s35, s33, {off}')
                e(f'buffer_store_dwordx4 {v(t, 4)}, v2, s[4:7], s35 offen sc1')
    signal(e, name + '_n', C_KV, B, loop)

    SEG = B
    XS, XA2, ACC, XF, ET, WB = 20, 22, 24, 40, 72, 80

    def cwait(lab, cbase, tgt, extra=None):
        e(f's_cmp_lg_u32 {s(SW)}, 0')
        e(f's_cbranch_scc1 {lab}_dw')
        e(f's_lshl_b32 s39, {s(SEG)}, 7')
        e(f's_add_u32 s39, s39, {WS_CT2 + cbase * 128}')
        if extra is not None:
            e(f's_add_u32 s39, s39, {s(extra)}')
        e('v_mov_b32 v2, 0')
        e.label(f'{lab}_sp')
        e('buffer_load_dword v3, v2, s[4:7], s39 offen sc1')
        e('s_waitcnt vmcnt(0)')
        e('v_readfirstlane_b32 s37, v3')
        e(f's_cmp_ge_u32 s37, {tgt}')
        e(f's_cbranch_scc1 {lab}_dw')
        e(f's_sleep {SLEEP}')
        e(f's_branch {lab}_sp')
        e.label(f'{lab}_dw')
        e('s_barrier')
        if LOG:
            e('s_memrealtime s[100:101]')
            e('s_waitcnt lgkmcnt(0)')
            e('s_mov_b32 s63, s100')
        reset(e)

    def cdone(name, cbase, extra=None, nxt=None, tsk=None):
        e('s_waitcnt vmcnt(0) lgkmcnt(0)')
        e('s_barrier')
        if cbase is not None:
            e(f's_cmp_lg_u32 {s(SW)}, 0')
            e(f's_cbranch_scc1 {name}_sg')
            e(f's_lshl_b32 s38, {s(SEG)}, 7')
            e(f's_add_u32 s38, s38, {WS_CT2 + cbase * 128}')
            if extra is not None:
                e(f's_add_u32 s38, s38, {s(extra)}')
            e('v_mov_b32 v2, 0')
            e('v_mov_b32 v3, 1')
            e('s_mov_b64 exec, 1')
            e('buffer_atomic_add v3, v2, s[4:7], s38 offen')
            e('s_mov_b64 exec, -1')
            e.label(f'{name}_sg')
        if LOG:
            e('s_memrealtime s[100:101]')
            e('s_waitcnt lgkmcnt(0)')
            e('v_mov_b32 v64, s63')
            e('v_mov_b32 v65, s100')
            e('v_mov_b32 v66, s61')
            e('v_mov_b32 v67, s28')
            e('v_mov_b32 v2, 0')
            e(f's_mul_i32 s38, {s(SEG)}, {GSZ}')
            e(f's_add_u32 s38, s38, {s(S_RANK)}')
            e('s_lshl_b32 s38, s38, 4')
            e(f's_add_u32 s38, s38, {WS_LOG + 768 * 16}')
            e('buffer_store_dwordx4 v[64:67], v2, s[4:7], s38 offen')
            e.nop(2)
        if tsk:
            e(f's_add_u32 {s(tsk)}, {s(tsk)}, {NATT}')
            e(f's_cmp_lt_u32 {s(tsk)}, 512')
        else:
            e(f's_add_u32 {s(SEG)}, {s(SEG)}, 2')
            e(f's_cmp_lt_u32 {s(SEG)}, 64')
        e(f's_cbranch_scc1 {nxt or name + "_loop"}')
        e('s_endpgm')

    class SG:
        def __init__(self, name, panels, KT, coloffs, nacc=1):
            self.name, self.KT, self.nacc = name, KT, nacc
            G = self.G = Gemm(e, 32, panels, 2, 2, KT, 128, nstage=1, vbase=8, sbase=40)
            assert G.v_wa + G.NT <= XS
            self.NT = NT = G.NT
            assert WB + KT * 2 * NT * 4 <= 512
            G.setup(VL, SW, 2)
            e('s_mov_b32 s57, 0')
            G.init_offsets(57, coloffs)
            e(f's_and_b32 s57, {s(SW)}, 1')
            e('s_cmp_eq_u32 s57, 1')
            e('s_cselect_b64 vcc, -1, 0')
            e(f'v_cndmask_b32 {v(XS)}, {v(G.v_xg)}, {v(G.v_xg + 1)}, vcc')
            e(f'v_cndmask_b32 {v(XS + 1)}, {v(G.v_xg + 1)}, {v(G.v_xg)}, vcc')
            e(f'v_add_u32 {v(XA2)}, 0x10000, {v(G.v_xa)}')
            e(f'v_add_u32 {v(XA2 + 1)}, 0x10000, {v(G.v_xa + 1)}')
            NS = min(KT, 163840 // G.stage, 12)
            for k in range(NS):
                for f in G.dma_items(None, k, ('w', k), 'w'):
                    f()
            for k in range(KT):
                e.wait_vm(('w', k))
                e('s_barrier')
                if k >= 1 and k - 1 + NS < KT:
                    for f in G.dma_items(None, (k - 1) % NS, ('w', k - 1 + NS), 'w'):
                        f()
                for ks in range(2):
                    for ni, (pi, a_) in enumerate(G.tiles):
                        rb = panels[pi][2] * 2
                        for m in range(2):
                            e(f'ds_read_b64_tr_b16 {u(self.wr(2 * k + ks, ni) + 2 * m, 2)}, {v(G.v_wa + ni)} offset:{(32 * ks + 16 * m) * rb}')
                d = G.stage if (k + 1) % NS else -(NS - 1) * G.stage
                for ni in range(NT):
                    if d >= 0:
                        e(f'v_add_u32 {v(G.v_wa + ni)}, {d}, {v(G.v_wa + ni)}')
                    else:
                        e(f'v_subrev_u32 {v(G.v_wa + ni)}, {-d}, {v(G.v_wa + ni)}')
                e.wait_lg()
            e('s_barrier')

        def wr(self, ks, ni):
            return WB + (ks * self.NT + ni) * 4

        def acc(self, ni, par=0):
            return ACC + (par * self.NT + ni) * 4

        def main(self, sx, extra_loads=None):
            G, KT, NT = self.G, self.KT, self.NT
            P = 4 * KT
            ng = (P + 15) // 16
            for j in range(ng):
                n = min(16, P - 16 * j) // 4
                e(f's_mul_i32 s57, {s(SW)}, {n * 1024}')
                if j:
                    e(f's_add_u32 s57, s57, {16384 * j}')
                e('s_mov_b32 m0, s57')
                e(f's_add_u32 s57, s57, {s(sx)}')
                for i in range(n):
                    xr = (G.v_xg if n % 2 == 0 else XS) + (i & 1)
                    e(f'buffer_load_dwordx4 {v(xr)}, s[4:7], s57 offen offset:{1024 * i} sc1 lds', tag=('x', j))
            if extra_loads:
                extra_loads()
            nu = (2 * KT + 3) // 4

            def reads(un):
                if un % 2 == 0:
                    e.wait_vm(('x', un // 2))
                    e('s_barrier')
                for q in range(4):
                    ks = 4 * un + q
                    if ks >= 2 * KT:
                        break
                    off = (ks >> 1) * 4096
                    ar = (G.v_xa if off < 65536 else XA2) + (ks & 1)
                    e(f'ds_read_b128 {v(XF + 16 * (un & 1) + 4 * q, 4)}, {v(ar)} offset:{off & 65535}', tag=('xf', ks))
            reads(0)
            for un in range(nu):
                if un + 1 < nu:
                    reads(un + 1)
                for q in range(4):
                    ks = 4 * un + q
                    if ks >= 2 * KT:
                        break
                    e.wait_lg(('xf', ks))
                    par = ks % self.nacc
                    for ni in range(NT):
                        ac = v(self.acc(ni, par), 4)
                        e(f'v_mfma_f32_16x16x32_bf16 {ac}, {u(self.wr(ks, ni), 4)}, {v(XF + 16 * (un & 1) + 4 * q, 4)}, {"0" if ks < self.nacc else ac}')
            if self.nacc == 2:
                for ni in range(NT):
                    for j in range(0, 4, 2):
                        e(f'v_pk_add_f32 {v(self.acc(ni) + j, 2)}, {v(self.acc(ni) + j, 2)}, {v(self.acc(ni, 1) + j, 2)}')

    name = 'wk_att'
    e.label(name)
    reset(e)
    e(f's_lshl_b32 s54, {s(P1)}, 1')
    e(f's_add_u32 s54, s54, {s(SEG)}')
    e(f'v_and_b32 v2, 15, {v(VL)}')
    e(f'v_lshrrev_b32 v3, 4, {v(VL)}')
    e('v_lshlrev_b32 v4, 4, v3')
    e('v_lshl_add_u32 v4, v2, 8, v4')
    e(f'v_lshlrev_b32 v5, 4, {v(VL)}')
    e(f'v_lshlrev_b32 v6, 3, {v(VL)}')
    e(f'v_bfe_u32 v10, {v(VL)}, 2, 2')
    e('v_lshl_add_u32 v10, v3, 2, v10')
    e(f'v_and_b32 v11, 1, {v(VL)}')
    e('v_lshlrev_b32 v11, 3, v11')
    e('v_lshl_add_u32 v10, v10, 4, v11')
    e(f's_lshl_b32 s38, {s(SW)}, 11')
    e('v_add_u32 v10, s38, v10')
    MK = 88
    e('v_lshlrev_b32 v7, 2, v3')
    for j in range(4):
        e(f'v_add_u32 v8, {j}, v7')
        e(f'v_cmp_le_u32 {s(MK + 2 * j, 2)}, v8, v2')
    e('s_mov_b32 s96, -1')
    e('s_mov_b32 s97, 0')
    cc = f32bits((128 ** -0.5) * LOG2E)
    e(f's_mov_b32 s98, {cc:#x}')
    e(f's_mov_b32 s99, {cc:#x}')
    KM_, VM_, ONES, NEG, DO = 16, 32, 40, 44, 72
    S0, S1, M, P, PM, OA = 144, 156, 204, 208, 212, 168
    for j in range(4):
        e(f'v_mov_b32 {v(ONES + j)}, 0x3f803f80')
    e(f'v_mov_b32 {v(NEG)}, 0xf149f2ca')
    e(f'v_mov_b32 {v(PM + 1)}, 0')
    e(f'v_mov_b32 {v(PM + 2)}, 0')
    e('v_lshlrev_b32 v9, 4, v3')
    e('v_lshl_add_u32 v9, v2, 7, v9')
    e('s_mov_b32 s56, -1')

    def att_loads(lab, st, adv):
        Q, KX_, VX_ = 256 + 96 * st, 288 + 96 * st, 320 + 96 * st
        e(f's_add_u32 s55, s54, {adv}')
        e('s_cmp_ge_u32 s55, 512')
        e(f's_cbranch_scc1 {lab}_nl')
        e('s_lshr_b32 s59, s55, 5')
        e('s_cmp_eq_u32 s59, s56')
        e(f's_cbranch_scc1 {lab}_rdy')
        dep_wait(e, lab, [(C_KV, 32), (C_Q, 16)], 59)
        e('s_mov_b32 s56, s59')
        e.label(f'{lab}_rdy')
        e('s_lshl_b32 s31, s55, 2')
        e(f's_add_u32 s31, s31, {s(SW)}')
        e('s_lshl_b32 s32, s31, 13')
        e(f's_add_u32 s33, s32, {WS_QX}')
        e('s_add_u32 s34, s33, 4096')
        e(f's_add_u32 s35, s32, {WS_KX}')
        e('s_add_u32 s36, s35, 4096')
        for uu in range(4):
            e(f'buffer_load_dwordx4 {u(Q + 4 * uu, 4)}, v4, s[4:7], s33 offen offset:{64 * uu} sc1')
            e(f'buffer_load_dwordx4 {u(KX_ + 4 * uu, 4)}, v4, s[4:7], s35 offen offset:{64 * uu} sc1')
        for uu in range(4):
            e(f'buffer_load_dwordx4 {u(Q + 16 + 4 * uu, 4)}, v4, s[4:7], s34 offen offset:{64 * uu} sc1')
            e(f'buffer_load_dwordx4 {u(KX_ + 16 + 4 * uu, 4)}, v4, s[4:7], s36 offen offset:{64 * uu} sc1')
        e(f's_add_u32 s39, s32, {WS_VXT}')
        e('s_add_u32 s40, s39, 4096')
        for et in range(8):
            e(f'buffer_load_dwordx4 {u(VX_ + 4 * et, 4)}, v5, s[4:7], {"s39" if et < 4 else "s40"} offen offset:{1024 * (et & 3)} sc1')
        e.label(f'{lab}_nl')
        reset(e)
    att_loads(name + '_p', 0, 0)
    e('s_waitcnt vmcnt(0)')
    for st in range(2):
        nm = f'{name}{st}'
        Q, KX_, VX_ = 256 + 96 * st, 288 + 96 * st, 320 + 96 * st
        e.label(nm + '_top')
        reset(e)
        for uu in range(4):
            c0 = (lambda r: '0' if uu == 0 else v(r, 4))
            e(f'v_mfma_f32_16x16x32_bf16 {v(S0, 4)}, {u(KX_ + 4 * uu, 4)}, {u(Q + 4 * uu, 4)}, {c0(S0)}')
            e(f'v_mfma_f32_16x16x32_bf16 {v(S1, 4)}, {u(KX_ + 4 * uu, 4)}, {u(Q + 16 + 4 * uu, 4)}, {c0(S1)}')
            e(f'v_mfma_f32_16x16x32_bf16 {v(S1 + 4, 4)}, {u(KX_ + 16 + 4 * uu, 4)}, {u(Q + 16 + 4 * uu, 4)}, {c0(S1 + 4)}')
        e(f'v_mov_b32 {v(P + 2)}, 0')
        e(f'v_mov_b32 {v(P + 3)}, 0')
        for dg in (S0, S1 + 4):
            for j in range(4):
                e(f'v_cndmask_b32 {v(dg + j)}, {v(NEG)}, {v(dg + j)}, {s(MK + 2 * j, 2)}')
        e(f's_lshr_b32 {s(SEG)}, s54, 3')
        e('s_and_b32 s58, s54, 7')
        if LOG:
            e(f's_mov_b32 {s(S_RANK)}, s58')
        e('s_lshl_b32 s58, s58, 4')
        e(f's_add_u32 s55, s54, {NATT}')
        e('s_min_u32 s55, s55, 511')
        e('s_lshr_b32 s59, s55, 5')
        e('s_cmp_eq_u32 s59, s56')
        e(f's_cbranch_scc1 {nm}_r2')
        dep_wait(e, nm + '_c', [(C_KV, 32), (C_Q, 16)], 59)
        e('s_mov_b32 s56, s59')
        e.label(f'{nm}_r2')
        e('s_lshl_b32 s31, s54, 2')
        e(f's_add_u32 s31, s31, {s(SW)}')
        e('s_lshl_b32 s43, s31, 12')
        e(f's_add_u32 s43, s43, {WS_KM}')
        e('s_lshl_b32 s41, s31, 13')
        e(f's_add_u32 s41, s41, {WS_O}')
        e('s_add_u32 s42, s41, 4096')
        cwait(nm + '2', K_CH, NCH)
        e(f's_lshl_b32 m0, {s(SW)}, 11')
        e('buffer_load_dwordx4 v5, s[4:7], s43 offen sc1 lds', tag='k')
        e('buffer_load_dwordx4 v5, s[4:7], s43 offen offset:1024 sc1 lds', tag='k')
        for w in range(4):
            e(f'buffer_load_dwordx2 {v(VM_ + 2 * w, 2)}, v6, s[4:7], s43 offen offset:{2048 + 512 * w} sc1', tag='v')
        e.wait_vm('k')
        for uu in range(4):
            for m_ in range(2):
                e(f'ds_read_b64_tr_b16 {v(KM_ + 4 * uu + 2 * m_, 2)}, v10 offset:{uu * 512 + m_ * 256}')
        e('s_waitcnt vmcnt(0)')
        att_loads(nm + '_n', 1 - st, NATT)
        e('s_waitcnt lgkmcnt(0)')
        for uu in range(4):
            for tq, S in enumerate((S0, S1)):
                e(f'v_mfma_f32_16x16x32_bf16 {v(S + 8, 4)}, {v(KM_ + 4 * uu, 4)}, {u(Q + 16 * tq + 4 * uu, 4)}, {"0" if uu == 0 else v(S + 8, 4)}')
        for tq, S in enumerate((S0, S1)):
            C0 = S + 8
            e(f'v_cndmask_b32 {v(C0)}, {v(C0 + 2)}, {v(C0)}, s[96:97]')
            e(f'v_cndmask_b32 {v(C0 + 1)}, {v(C0 + 3)}, {v(C0 + 1)}, s[96:97]')
            vals = [S + j for j in range(4 * (tq + 1))] + [C0, C0 + 1]
            e(f'v_max3_f32 {v(M)}, {v(vals[0])}, {v(vals[1])}, {v(vals[2])}')
            i = 3
            while i + 1 < len(vals):
                e(f'v_max3_f32 {v(M)}, {v(M)}, {v(vals[i])}, {v(vals[i + 1])}')
                i += 2
            if i < len(vals):
                e(f'v_max_f32 {v(M)}, {v(M)}, {v(vals[i])}')
            for sw_ in ('v_permlane32_swap_b32', 'v_permlane16_swap_b32'):
                e(f'v_mov_b32 {v(M + 1)}, {v(M)}')
                e(f'{sw_} {v(M)}, {v(M + 1)}')
                e(f'v_max_f32 {v(M)}, {v(M)}, {v(M + 1)}')
            e(f'v_mul_f32 {v(M)}, s98, {v(M)}')
            for x in vals[::2]:
                e(f'v_pk_fma_f32 {v(x, 2)}, {v(x, 2)}, s[98:99], {v(M, 2)} op_sel_hi:[1,1,0] neg_lo:[0,0,1] neg_hi:[0,0,1]')
            for x in vals:
                e(f'v_exp_f32 {v(x)}, {v(x)}')
            for j in range(2 * (tq + 1)):
                e(f'v_cvt_pk_bf16_f32 {v(P + j)}, {v(S + 2 * j)}, {v(S + 2 * j + 1)}')
            e(f'v_cvt_pk_bf16_f32 {v(PM)}, {v(C0)}, {v(C0 + 1)}')
            e(f'v_cvt_pk_bf16_f32 {v(PM + 3)}, {v(C0)}, {v(C0 + 1)}')
            e.wait_vm('v')
            if tq == 0:
                mid(e)
            Lr = OA + 32
            e(f'v_mfma_f32_16x16x32_bf16 {v(Lr, 4)}, {v(ONES, 4)}, {v(P, 4)}, 0')
            for et in range(8):
                e(f'v_mfma_f32_16x16x32_bf16 {v(OA + 4 * et, 4)}, {u(VX_ + 4 * et, 4)}, {v(P, 4)}, 0')
            e(f'v_mfma_f32_16x16x16_bf16 {v(Lr, 4)}, {v(ONES, 2)}, {v(PM, 2)}, {v(Lr, 4)}')
            for et in range(8):
                e(f'v_mfma_f32_16x16x16_bf16 {v(OA + 4 * et, 4)}, {v(VM_ + 2 * (et >> 1), 2)}, {v(PM + 2 * (et & 1), 2)}, {v(OA + 4 * et, 4)}')
            e(f'v_rcp_f32 {v(M)}, {v(Lr)}')
            for ub in range(4):
                o = OA + 8 * ub
                d = DO + 16 * tq + 4 * ub
                for j in range(0, 8, 2):
                    e(f'v_pk_mul_f32 {v(o + j, 2)}, {v(o + j, 2)}, {v(M, 2)} op_sel_hi:[1,0]')
                for j in range(4):
                    e(f'v_cvt_pk_bf16_f32 {v(d + j)}, {v(o + 2 * j)}, {v(o + 2 * j + 1)}')
                e(f'buffer_store_dwordx4 {v(d, 4)}, v9, s[4:7], {"s41" if ub < 2 else "s42"} offen offset:{2048 * tq + 64 * (ub & 1)} sc1')
        cdone(nm, K_ATT, 58, nxt=f'{name}{1 - st}_top', tsk=54)

    name = 'wk_wo'
    e.label(name)
    reset(e)
    e(f's_lshr_b32 s55, {s(P1)}, 3')
    e(f's_and_b32 s56, {s(P1)}, 7')
    e(f's_mul_i32 s58, s56, {512 * 1280}')
    e('s_lshl_b32 s59, s55, 8')
    e('s_add_u32 s58, s58, s59')
    S = SG(name, [(24, 1280, 128)], 8, [58])
    e('s_lshl_b32 s58, s56, 4')
    e(f'v_and_b32 v4, 15, {v(VL)}')
    e(f'v_lshrrev_b32 v5, 4, {v(VL)}')
    e('v_lshlrev_b32 v5, 4, v5')
    e('v_lshl_add_u32 v4, v4, 6, v5')
    e(f's_and_b32 s32, {s(SW)}, 1')
    e('s_lshl_b32 s33, s55, 1')
    e('s_add_u32 s33, s33, s32')
    e('s_lshl_b32 s33, s33, 13')
    e(f's_lshr_b32 s31, {s(SW)}, 1')
    e('s_lshl_b32 s31, s31, 10')
    e('s_add_u32 s33, s33, s31')
    e(f's_mul_i32 s31, s56, {32 * 2560}')
    e('s_add_u32 s33, s33, s31')
    e(f's_add_u32 s59, s33, {WS_PW}')
    e('s_lshl_b32 s56, s56, 15')
    e(f's_add_u32 s56, s56, {WS_O}')
    e.label(name + '_loop')
    reset(e)
    e(f's_lshl_b32 s55, {s(SEG)}, 18')
    e('s_add_u32 s55, s55, s56')
    e(f's_mul_i32 s33, {s(SEG)}, {8 * 32 * 2560}')
    e('s_add_u32 s33, s33, s59')
    e('s_add_u32 s34, s33, 4096')
    cwait(name, K_ATT, 1, 58)
    S.main(55)
    mid(e)
    for ni in range(4):
        e(f'buffer_store_dwordx4 {v(S.acc(ni), 4)}, v4, s[4:7], {"s33" if ni < 2 else "s34"} offen offset:{2048 * (ni & 1)} sc1')
    cdone(name, K_WO)

    name = 'wk_ln2'
    e.label(name)
    reset(e)
    GT, SH, SC, RS_, PP = 16, 28, 40, 52, 64
    e(f'v_lshlrev_b32 v10, 4, {v(VL)}')
    e('v_and_b32 v11, 0x1f0, v10')
    e(f'v_lshrrev_b32 v12, 1, v10')
    e(f'v_lshrrev_b32 v13, 1, v11')
    for base, idx in ((GT, 2), (SH, 3), (SC, 4)):
        e(f's_mov_b32 s32, {WS_MOD + idx * 2560}')
        for i in range(3):
            e(f'buffer_load_dwordx4 {v(base + 4 * i, 4)}, {"v10" if i < 2 else "v11"}, s[4:7], s32 offen offset:{1024 * i} sc1')
    e(f's_lshl_b32 s30, {s(P1)}, 2')
    e(f's_add_u32 s30, s30, {s(SW)}')
    e(f'v_lshrrev_b32 v4, 2, {v(VL)}')
    e(f'v_and_b32 v5, 3, {v(VL)}')
    e('v_lshlrev_b32 v5, 4, v5')
    e('v_lshl_add_u32 v14, v4, 11, v5')
    e('v_and_b32 v4, 7, v4')
    e('v_lshl_add_u32 v15, v4, 11, v5')
    e(f'v_lshrrev_b32 v4, 5, {v(VL)}')
    e(f'v_mul_u32_u24 v4, {32 * 2560}, v4')
    e('v_add_u32 v15, v15, v4')
    e(f'v_lshrrev_b32 v4, 4, {v(VL)}')
    e('v_lshl_add_u32 v8, v4, 12, v5')
    e(f'v_bfe_u32 v4, {v(VL)}, 3, 1')
    e('v_lshl_add_u32 v8, v4, 6, v8')
    e(f'v_bfe_u32 v4, {v(VL)}, 2, 1')
    e('v_lshl_add_u32 v8, v4, 3, v8')
    e('v_and_b32 v9, 0x1fff, v8')
    e('s_lshr_b32 s56, s30, 4')
    e('s_lshl_b32 s56, s56, 10')
    e('s_and_b32 s57, s30, 15')
    e('s_lshl_b32 s57, s57, 6')
    e('s_add_u32 s56, s56, s57')
    e(f's_add_u32 s56, s56, {WS_PW}')
    e('s_lshl_b32 s57, s30, 7')
    e(f's_add_u32 s57, s57, {WS_H2}')
    e('s_mul_i32 s58, s30, 1280')
    e('s_waitcnt vmcnt(0)')
    for j in range(12):
        e(f'v_add_f32 {v(SC + j)}, 1.0, {v(SC + j)}')
    for j in range(0, 12, 2):
        rnd2(e, SC + j, SC + j + 1, 7)
    e('s_mov_b32 s96, -1')
    e('s_mov_b32 s97, 0')
    e(f's_mov_b32 s98, {f32bits(1.0 / 640):#x}')
    e(f's_mov_b32 s99, {f32bits(1e-5):#x}')
    e.label(name + '_loop')
    reset(e)
    e(f's_mul_i32 s31, {s(SEG)}, {32 * 1280}')
    e('s_add_u32 s41, s31, s57')
    e('s_add_u32 s31, s31, s58')
    e(f's_add_u32 s40, s31, {WS_X1}')
    e(f's_mul_i32 s36, {s(SEG)}, {8 * 32 * 2560}')
    e('s_add_u32 s36, s36, s56')
    cwait(name, K_WO, 40)
    for k in range(8):
        e(f's_add_u32 s33, s36, {k * 32 * 2560}')
        e(f's_add_u32 s34, s36, {k * 32 * 2560 + 32768}')
        e(f'buffer_load_dwordx4 {v(PP + 12 * k, 4)}, v14, s[4:7], s33 offen sc1', tag=('p', k))
        e(f'buffer_load_dwordx4 {v(PP + 12 * k + 4, 4)}, v14, s[4:7], s34 offen sc1', tag=('p', k))
        if k % 2 == 0:
            e(f's_add_u32 s35, s36, {k * 32 * 2560 + 65536}')
            e(f'buffer_load_dwordx4 {v(PP + 12 * k + 8, 4)}, v15, s[4:7], s35 offen sc1', tag=('p', k))
    for i in range(3):
        e(f'buffer_load_dwordx2 {v(RS_ + 2 * i, 2)}, {"v12" if i < 2 else "v13"}, {s(S_X, 4)}, s31 offen offset:{512 * i}', tag='r')
    X = PP
    e('s_add_u32 s42, s41, 16384')
    e('s_add_u32 s43, s41, 32768')
    for k in range(1, 8):
        e.wait_vm(('p', k))
        for j in range(0, 12 if k % 2 == 0 else 8, 2):
            e(f'v_pk_add_f32 {v(X + j, 2)}, {v(X + j, 2)}, {v(X + k * 12 + j, 2)}')
    for j in range(8, 12):
        e(f'v_mov_b32 {v(X + 12 + j)}, {v(X + j)}')
    for j in range(8, 12):
        e(f'v_permlane32_swap_b32 {v(X + j)}, {v(X + 12 + j)}')
    for j in range(8, 12, 2):
        e(f'v_pk_add_f32 {v(X + j, 2)}, {v(X + j, 2)}, {v(X + 12 + j, 2)}')
    mid(e)
    e.wait_vm('r')
    for j in range(0, 12, 2):
        a_, b_ = X + j, X + j + 1
        rr = RS_ + j // 2
        rnd2(e, a_, b_, 7)
        e(f'v_pk_mul_f32 {v(a_, 2)}, {v(a_, 2)}, {v(GT + j, 2)}')
        rnd2(e, a_, b_, 7)
        e(f'v_lshlrev_b32 v4, 16, {v(rr)}')
        e(f'v_and_b32 v5, 0xffff0000, {v(rr)}')
        e(f'v_pk_add_f32 {v(a_, 2)}, {v(a_, 2)}, v[4:5]')
        e(f'v_cvt_pk_bf16_f32 {v(rr)}, {v(a_)}, {v(b_)}')
        e(f'v_lshlrev_b32 {v(a_)}, 16, {v(rr)}')
        e(f'v_and_b32 {v(b_)}, 0xffff0000, {v(rr)}')
        if j % 4 == 2:
            i = j // 4
            e(f'buffer_store_dwordx2 {v(RS_ + 2 * i, 2)}, {"v12" if i < 2 else "v13"}, s[4:7], s40 offen offset:{512 * i} sc1')
    e(f'v_pk_add_f32 v[4:5], {v(X + 8, 2)}, {v(X + 10, 2)}')
    e('v_add_f32 v4, v4, v5')
    e('v_cndmask_b32 v6, 0, v4, s[96:97]')
    e(f'v_pk_add_f32 v[4:5], {v(X, 2)}, {v(X + 2, 2)}')
    e(f'v_pk_add_f32 v[4:5], v[4:5], {v(X + 4, 2)}')
    e(f'v_pk_add_f32 v[4:5], v[4:5], {v(X + 6, 2)}')
    e('v_add_f32 v4, v4, v5')
    e('v_add_f32 v6, v6, v4')
    wave_sum(e, 6, 5)
    e('v_mul_f32 v6, s98, v6')
    e('v_mov_b32 v2, 0')
    for j in range(8, 12):
        e(f'v_sub_f32 v5, {v(X + j)}, v6')
        e('v_fmac_f32 v2, v5, v5')
    e('v_cndmask_b32 v2, 0, v2, s[96:97]')
    for j in range(8):
        e(f'v_sub_f32 v5, {v(X + j)}, v6')
        e('v_fmac_f32 v2, v5, v5')
    wave_sum(e, 2, 5)
    e('v_mul_f32 v2, s98, v2')
    rnd2(e, 6, 2, 7)
    e('v_add_f32 v2, s99, v2')
    rnd2(e, 2, 5, 7)
    e('v_sqrt_f32 v2, v2')
    rnd2(e, 2, 5, 7)
    e('v_rcp_f32 v2, v2')
    for j in range(0, 12, 2):
        a_, b_ = X + j, X + j + 1
        e(f'v_sub_f32 {v(a_)}, {v(a_)}, v6')
        e(f'v_sub_f32 {v(b_)}, {v(b_)}, v6')
        rnd2(e, a_, b_, 7)
        e(f'v_mul_f32 {v(a_)}, {v(a_)}, v2')
        e(f'v_mul_f32 {v(b_)}, {v(b_)}, v2')
        rnd2(e, a_, b_, 7)
        e(f'v_pk_mul_f32 {v(a_, 2)}, {v(a_, 2)}, {v(SC + j, 2)}')
        rnd2(e, a_, b_, 7)
        e(f'v_pk_add_f32 {v(a_, 2)}, {v(a_, 2)}, {v(SH + j, 2)}')
        e(f'v_cvt_pk_bf16_f32 {v(X + 12 + j // 2)}, {v(a_)}, {v(b_)}')
        if j % 4 == 2:
            i = j // 4
            e(f'buffer_store_dwordx2 {v(X + 12 + 2 * i, 2)}, {"v8" if i < 2 else "v9"}, s[4:7], {s(41 + i)} offen sc1')
    cdone(name, K_LN2)

    name = 'wk_up'
    e.label(name)
    reset(e)
    e(f's_lshl_b32 s58, {s(P1)}, 7')
    e('s_mov_b32 s59, s58')
    S = SG(name, [(S_W1, 3456, 64), (S_W3, 3456, 64)], 10, [58, 59])
    e(f'v_and_b32 v4, 15, {v(VL)}')
    e(f'v_lshrrev_b32 v5, 4, {v(VL)}')
    e('v_lshlrev_b32 v5, 4, v5')
    e('v_lshl_add_u32 v4, v4, 7, v5')
    e(f's_lshr_b32 s31, {s(SW)}, 1')
    e('s_lshl_b32 s31, s31, 11')
    e(f's_and_b32 s32, {s(SW)}, 1')
    e('s_lshl_b32 s32, s32, 6')
    e('s_add_u32 s31, s31, s32')
    e(f's_lshl_b32 s59, {s(P1)}, 12')
    e('s_add_u32 s59, s59, s31')
    e(f's_add_u32 s59, s59, {WS_HM}')
    e(f's_mov_b32 s36, {f32bits(-LOG2E):#x}')
    e.label(name + '_loop')
    reset(e)
    e(f's_mul_i32 s55, {s(SEG)}, {32 * 1280}')
    e(f's_add_u32 s55, s55, {WS_H2}')
    e(f's_mul_i32 s33, {s(SEG)}, {32 * 3456}')
    e('s_add_u32 s33, s33, s59')
    cwait(name, K_LN2, 8)
    S.main(55)
    mid(e)
    for a_ in range(2):
        gv = S.acc(a_)
        uv = S.acc(2 + a_)
        for h in range(2):
            g0, g1, u0, u1 = gv + 2 * h, gv + 2 * h + 1, uv + 2 * h, uv + 2 * h + 1
            rnd2(e, g0, g1, 6)
            rnd2(e, u0, u1, 6)
            silu_inplace(e, g0, 6, 36)
            silu_inplace(e, g1, 7, 36)
            rnd2(e, g0, g1, 6)
            e(f'v_mul_f32 {v(g0)}, {v(g0)}, {v(u0)}')
            e(f'v_mul_f32 {v(g1)}, {v(g1)}, {v(u1)}')
            e(f'v_cvt_pk_bf16_f32 {v(ET + 2 * a_ + h)}, {v(g0)}, {v(g1)}')
    e(f'buffer_store_dwordx4 {v(ET, 4)}, v4, s[4:7], s33 offen sc1')
    cdone(name, K_UP)

    name = 'wk_dn'
    e.label(name)
    reset(e)
    e(f's_lshl_b32 s58, {s(P1)}, 7')
    S = SG(name, [(S_W2, 1280, 64)], 27, [58], nacc=2)
    GBV = 8
    G = S.G
    assert (G.v_xg, G.v_xa) == (8, 12)
    e(f'v_and_b32 v4, 15, {v(VL)}')
    e(f'v_lshrrev_b32 v5, 4, {v(VL)}')
    e('v_mul_u32_u24 v4, 1280, v4')
    e('v_lshl_add_u32 v4, v5, 3, v4')
    e('v_lshlrev_b32 v5, 4, v5')
    e(f's_and_b32 s32, {s(SW)}, 1')
    e('s_lshl_b32 s32, s32, 6')
    e('s_add_u32 s58, s58, s32')
    e('s_lshl_b32 s33, s58, 1')
    e(f's_add_u32 s33, s33, {WS_MOD + 5 * 2560}')
    e(f'buffer_load_dwordx4 {v(ET, 4)}, v5, s[4:7], s33 offen sc1')
    e(f'buffer_load_dwordx4 {v(ET + 4, 4)}, v5, s[4:7], s33 offen offset:64 sc1')
    e(f's_lshr_b32 s31, {s(SW)}, 1')
    e(f's_mul_i32 s31, s31, {16 * 1280}')
    e('s_add_u32 s59, s58, s31')
    e('s_waitcnt vmcnt(0)')
    e.label(name + '_loop')
    reset(e)
    e(f's_mul_i32 s55, {s(SEG)}, {32 * 3456}')
    e(f's_add_u32 s55, s55, {WS_HM}')
    e(f's_mul_i32 s33, {s(SEG)}, {32 * 1280}')
    e('s_add_u32 s33, s33, s59')
    e(f's_add_u32 s34, s33, {WS_X1}')
    cwait(name, K_UP, 27)

    def x1_loads():
        e('buffer_load_dwordx2 v[16:17], v4, s[4:7], s34 offen sc1', tag='r')
        e('buffer_load_dwordx2 v[18:19], v4, s[4:7], s34 offen offset:32 sc1', tag='r')
    S.main(55, x1_loads)
    mid(e)
    e.wait_vm('r')
    for ni in range(2):
        for h in range(2):
            a_ = S.acc(ni) + 2 * h
            rr = 16 + 2 * ni + h
            rnd2(e, a_, a_ + 1, 7)
            e(f'v_pk_mul_f32 {v(a_, 2)}, {v(a_, 2)}, {v(ET + 4 * ni + 2 * h, 2)}')
            rnd2(e, a_, a_ + 1, 7)
            e(f'v_lshlrev_b32 v6, 16, {v(rr)}')
            e(f'v_and_b32 v7, 0xffff0000, {v(rr)}')
            e(f'v_pk_add_f32 {v(a_, 2)}, {v(a_, 2)}, v[6:7]')
            e(f'v_cvt_pk_bf16_f32 {v(rr)}, {v(a_)}, {v(a_ + 1)}')
        e(f'buffer_store_dwordx2 {v(16 + 2 * ni, 2)}, v4, {s(S_OUT, 4)}, s33 offen offset:{32 * ni}')
    cdone(name, None)

    name = 'wk_mod'
    e.label(name)
    reset(e)
    load_srds(e, [('c', 88), ('wmod', 92)], tmp=96)
    e(f's_lshl_b32 s30, {s(SW)}, 6')
    e(f'v_add_u32 v0, s30, {v(VL)}')
    e(f's_cmp_ge_u32 {s(P1)}, {NMODA}')
    e(f's_cbranch_scc1 {name}_nz')
    e('v_mov_b32 v4, 0')
    e('v_lshlrev_b32 v2, 2, v0')
    e(f's_lshl_b32 s31, {s(P1)}, 10')
    e(f's_add_u32 s31, s31, {WS_CT2}')
    e('buffer_store_dword v4, v2, s[4:7], s31 offen sc1')
    e(f's_cmp_lg_u32 {s(P1)}, 0')
    e(f's_cbranch_scc1 {name}_nz')
    for j in range(4):
        e(f'v_mov_b32 {v(4 + j)}, 0')
    e('v_lshlrev_b32 v2, 4, v0')
    e(f's_mov_b32 s31, {WS_CTR}')
    for i in range(5):
        e('buffer_store_dwordx4 v[4:7], v2, s[4:7], s31 offen sc1')
        e('s_add_u32 s31, s31, 4096')
    e.label(f'{name}_nz')
    reset(e)
    e.nop(2)
    e('v_lshlrev_b32 v14, 1, v0')
    e('v_lshlrev_b32 v2, 2, v0')
    e(f's_mov_b32 s30, {f32bits(-LOG2E):#x}')
    for i in range(3):
        e(f'buffer_load_ushort {v(4 + i)}, v14, s[88:91], 0 offen offset:{512 * i}', tag='c')
    e('v_and_b32 v8, 3, v0')
    e('v_lshrrev_b32 v9, 2, v0')
    e('v_mul_u32_u24 v10, 7680, v9')
    e('v_lshl_add_u32 v10, v8, 4, v10')
    e(f's_lshl_b32 s31, {s(P1)}, 6')
    for i in range(10):
        if i:
            e(f's_add_u32 s31, s31, {64 * 7680}')
        e(f'buffer_load_dwordx4 {v(32 + 4 * i, 4)}, v10, s[92:95], s31 offen', tag=('w', i))
    e.wait_vm('c')
    for i in range(3):
        e(f'v_lshlrev_b32 {v(4 + i)}, 16, {v(4 + i)}')
        silu_inplace(e, 4 + i, 7, 30)
        e(f'v_cvt_pk_bf16_f32 {v(4 + i)}, {v(4 + i)}, {v(4 + i)}')
        e(f'v_lshlrev_b32 {v(4 + i)}, 16, {v(4 + i)}')
        e(f'ds_write_b32 v2, {v(4 + i)} offset:{1024 * i}')
    e.wait_lg()
    e('s_barrier')
    e('v_lshlrev_b32 v11, 2, v9')
    for i in range(10):
        e(f'ds_read_b32 {v(112 + i)}, v11 offset:{256 * i}')
    for j in range(8):
        e(f'v_mov_b32 {v(16 + j)}, 0')
    e.wait_lg()
    for i in range(10):
        e.wait_vm(('w', i))
        for d in range(4):
            w = 32 + 4 * i + d
            e(f'v_lshlrev_b32 v12, 16, {v(w)}')
            e(f'v_and_b32 v13, 0xffff0000, {v(w)}')
            e(f'v_fmac_f32 {v(16 + 2 * d)}, v12, {v(112 + i)}')
            e(f'v_fmac_f32 {v(17 + 2 * d)}, v13, {v(112 + i)}')
    e('v_lshlrev_b32 v12, 7, v9')
    e('v_lshl_add_u32 v12, v8, 5, v12')
    e('ds_write_b128 v12, v[16:19] offset:4096')
    e('ds_write_b128 v12, v[20:23] offset:4112')
    e.wait_lg()
    e('s_barrier')
    e(f's_cmp_lg_u32 {s(SW)}, 0')
    e(f's_cbranch_scc1 {name}_done')
    e(f'v_and_b32 v12, 31, {v(VL)}')
    e(f'v_lshrrev_b32 v13, 5, {v(VL)}')
    e('v_lshlrev_b32 v12, 2, v12')
    e('v_lshl_add_u32 v13, v13, 12, v12')
    for i in range(32):
        e(f'ds_read_b32 {v(32 + i)}, v13 offset:{4096 + 128 * i}')
    e.wait_lg()
    for i in range(1, 32):
        e(f'v_add_f32 v32, v32, {v(32 + i)}')
    e('v_mov_b32 v33, v32')
    e('v_permlane32_swap_b32 v32, v33')
    e('v_add_f32 v32, v32, v33')
    e('v_cvt_pk_bf16_f32 v32, v32, v32')
    e('v_lshlrev_b32 v32, 16, v32')
    e(f's_lshl_b32 s31, {s(P1)}, 7')
    e(f's_add_u32 s31, s31, {WS_MOD}')
    e('buffer_store_dword v32, v12, s[4:7], s31 offen sc1')
    e.label(f'{name}_done')
    e(f's_mov_b32 s36, {D_MODB}')
    e(f's_cmp_lt_u32 {s(P1)}, {NMODA}')
    e(f's_cselect_b32 s36, {D_MOD}, s36')
    signal(e, name, None, B, loop, dbg_off='s36')

    name = 'wk_ln1'
    e.label(name)
    reset(e)
    RPW = 4
    e(f's_lshl_b32 s30, {s(P1)}, 2')
    e(f's_add_u32 s30, s30, {s(SW)}')
    e(f's_mul_i32 s30, s30, {RPW * 1280}')
    e(f'v_lshlrev_b32 v4, 2, {v(VL)}')
    e('s_add_u32 s31, s30, 2560')
    for r in range(RPW):
        for i in range(5):
            e(f'buffer_load_dword {v(16 + 5 * r + i)}, v4, {s(S_X, 4)}, {"s30" if r < 2 else "s31"} offen offset:{(r & 1) * 1280 + 256 * i}', tag=('x', r))
    e(f'v_bfe_u32 v5, {v(VL)}, 1, 2')
    e(f'v_bfe_u32 v6, {v(VL)}, 3, 1')
    e(f'v_and_b32 v12, 1, {v(VL)}')
    e('v_lshl_add_u32 v12, v6, 1, v12')
    e('v_lshl_add_u32 v12, v5, 2, v12')
    e(f'v_and_b32 v5, 48, {v(VL)}')
    e('v_add_u32 v12, v12, v5')
    e('v_lshlrev_b32 v12, 2, v12')
    e(f's_mov_b32 s32, {f32bits(1.0 / 640):#x}')
    e(f's_mov_b32 s33, {f32bits(1e-5):#x}')
    for r in range(RPW):
        X = 64 + 10 * r
        e.wait_vm(('x', r))
        for i in range(5):
            e(f'v_lshlrev_b32 {v(X + 2 * i)}, 16, {v(16 + 5 * r + i)}')
            e(f'v_and_b32 {v(X + 2 * i + 1)}, 0xffff0000, {v(16 + 5 * r + i)}')
        e(f'v_add_f32 v8, {v(X)}, {v(X + 1)}')
        for j in range(2, 10):
            e(f'v_add_f32 v8, v8, {v(X + j)}')
        wave_sum(e, 8, 9)
        e('v_mul_f32 v8, s32, v8')
        e('v_mov_b32 v10, 0')
        for j in range(10):
            e(f'v_sub_f32 v9, {v(X + j)}, v8')
            e('v_fmac_f32 v10, v9, v9')
        wave_sum(e, 10, 9)
        e('v_mul_f32 v10, s32, v10')
        rnd2(e, 8, 10, 7)
        e('v_add_f32 v10, s33, v10')
        rnd2(e, 10, 9, 7)
        e('v_sqrt_f32 v10, v10')
        rnd2(e, 10, 9, 7)
        e('v_rcp_f32 v10, v10')
        for j in range(0, 10, 2):
            a_, b_ = X + j, X + j + 1
            e(f'v_sub_f32 {v(a_)}, {v(a_)}, v8')
            e(f'v_sub_f32 {v(b_)}, {v(b_)}, v8')
            rnd2(e, a_, b_, 7)
            e(f'v_mul_f32 {v(a_)}, {v(a_)}, v10')
            e(f'v_mul_f32 {v(b_)}, {v(b_)}, v10')
            rnd2(e, a_, b_, 7)
    dbg_wait(e, name, D_MOD, NMODA)
    e(f'v_lshlrev_b32 v3, 3, {v(VL)}')
    e(f's_mov_b32 s34, {WS_MOD}')
    e(f's_mov_b32 s35, {WS_MOD + 2560}')
    for i in range(5):
        e(f'buffer_load_dwordx2 {v(16 + 2 * i, 2)}, v3, s[4:7], s34 offen offset:{512 * i} sc1')
        e(f'buffer_load_dwordx2 {v(26 + 2 * i, 2)}, v3, s[4:7], s35 offen offset:{512 * i} sc1')
    e(f's_add_u32 s30, s30, {WS_H1}')
    e(f's_mul_i32 s38, {s(SW)}, 5120')
    e('v_add_u32 v12, s38, v12')
    e.wait_vm()
    for j in range(10):
        e(f'v_add_f32 {v(26 + j)}, 1.0, {v(26 + j)}')
    for j in range(0, 10, 2):
        rnd2(e, 26 + j, 27 + j, 7)
    for r in range(RPW):
        X = 64 + 10 * r
        for j in range(0, 10, 2):
            a_, b_ = X + j, X + j + 1
            e(f'v_mul_f32 {v(a_)}, {v(a_)}, {v(26 + j)}')
            e(f'v_mul_f32 {v(b_)}, {v(b_)}, {v(27 + j)}')
            rnd2(e, a_, b_, 7)
            e(f'v_add_f32 {v(a_)}, {v(a_)}, {v(16 + j)}')
            e(f'v_add_f32 {v(b_)}, {v(b_)}, {v(17 + j)}')
            e(f'v_cvt_pk_bf16_f32 {v(a_)}, {v(a_)}, {v(b_)}')
            e(f'ds_write_b32 v12, {v(a_)} offset:{r * 1280 + 128 * j}')
    e(f'v_lshlrev_b32 v13, 4, {v(VL)}')
    e('v_add_u32 v14, s38, v13')
    e.wait_lg()
    for i in range(5):
        e(f'ds_read_b128 {v(16 + 4 * i, 4)}, v14 offset:{1024 * i}')
    e('s_add_u32 s31, s30, 4096')
    e.wait_lg()
    for i in range(5):
        e(f'buffer_store_dwordx4 {v(16 + 4 * i, 4)}, v13, s[4:7], {"s30" if i < 4 else "s31"} offen offset:{1024 * (i & 3)} sc1')
    e(f's_lshr_b32 {s(B)}, {s(P1)}, 3')
    e('s_mov_b32 s51, 1')
    signal(e, name, C_LN1, B, loop)


NAME = 'adaLN_cond__memory_aug_recurrent_mem_tr__glu_gated_swiglu__prompt_kernel'
if __name__ == '__main__':
    import argparse
    ap = argparse.ArgumentParser()
    ap.add_argument('--out', default='mega.s')
    ap.add_argument('--kw', default='')
    ap.add_argument('--log', action='store_true')
    ap.add_argument('--sleep', type=int, default=6)
    ap.add_argument('--list', action='store_true')
    ap.add_argument('--dsleep', type=int, default=24)
    args = ap.parse_args()
    LOG = args.log
    SLEEP = args.sleep
    DSLEEP = args.dsleep
    e = Em()
    nm = 'mega_kernel' if args.list else NAME
    e.raw(f'.globl {nm}')
    KNAME[0] = nm
    reset(e)
    kw = eval('dict(' + args.kw + ')')
    gen_chainX.gen_chain(e, name=nm, mega='wk_entry', nmoda=NMODA, segsig=WS_CT2 + K_CH * 128, **kw)
    gen_workers(e)
    if args.list:
        hdr = f"; @launch kernel={nm} grid=(256,1,1) block=(256,1,1) lds=163840\n"
    else:
        hdr = "; @launch grid=(256,1,1) block=(256,1,1) lds=163840\n"
    hdr += '.amdgcn_target "amdgcn-amd-amdhsa--gfx950"\n.text\n'
    open(args.out, 'w').write(hdr + e.text() + kd(nm, 512, 256))
```

```python
from emit import *
from layout import *
from gen_chain import Pool, f32bits, kd

S_WS = 4
S_DBG = 8
S_WQ = 12
S_WK = 16
S_WV = 20
S_WO = 24
S_H = 28
S_W = 29
S_STEP = 30
S_T0, S_T1, S_T2, S_T3 = 31, 32, 33, 34
S_MODE = 35
S_UNIT = 36
S_XCC = 37
S_C1 = 38
S_MASKLO = 40
S_LDSW = 42
S_SH13 = 43
S_MBP = 44
S_MBB = 47
S_MSL = 48
S_M9D = 49
S_PBST = 50
S_MBL = 55
S_MBC = 56
S_MBN = 57
S_KXW = 58
S_KXM = 59
S_PBLD = 60
S_MDST = 61
S_VMO = 62
S_NR = 63
S_VB0, S_VB, S_MBL2, S_PING = 66, 67, 68, 69
S_GOF = 64
S_KXM2 = 73
S_MBR2 = 65
S_VXO = 70
S_KMO = 71
S_WRM = 72
S_MBC2 = 74
S_MBN2 = 75
S_STAMP = 76
S_SIG = 15
S_KVOK = 16

V_LANE16, V_IDX, V_AF, V_QKR, V_LDSW, V_QKW, V_OW, V_OR = range(8)
V_PBST, V_KXG, V_MBST, V_L8, V_WA, V_WT, V_M1, V_L64 = range(8, 16)
V_SEL = 16
V_ONES = 20
V_PM = 24
V_M2 = 26
NPERS = 28

NR_PING, NR_CAL, NR_VB = 8 * 16384, 9 * 16384, 16 * 16384
D_NEAR = 144
D_INIT, D_SLOW = 132, 136

_fj = [0]


def far_jump(e, label, sp):
    _fj[0] += 1
    here = f'Lfj{_fj[0]}'
    e(f's_getpc_b64 {s(sp, 2)}')
    e.label(here)
    e.raw(f'    s_add_u32 {s(sp)}, {s(sp)}, {label}-{here}')
    e.raw(f'    s_addc_u32 {s(sp + 1)}, {s(sp + 1)}, 0')
    e(f's_setpc_b64 {s(sp, 2)}')


def gen_chain(em, name='chain_kernel', mega=None, nmoda=0, pool_end=104, nsteps=64, stamps=False, stsel=(0, 1, 2, 3, 4, 5, 6, 7, 8, 9),
              hstamps=False, la_lds=5, afl=7, nkl=5, wat=2, npre=4, noa=2, v_at=3, gdel=0, kdel=0, pmask='lane', gmask='lane', ackA=False, b0=True, adel=3, warm=(('a', 0), ('a2', 1)), wat2=20, hd0=8, hup=0, hdn=1, ncal=6, segsig=None, sigat='c', slow=True,
              lds_at=(0, 1, 2, 3, 42, 46, 50, 54, 58, 44, 48, 20, 24), dbg='', ldfl='nt', ostfl='sc1'):
    L_MMEM = 0
    L_MQ = 10240
    L_MK = L_MQ + 2048
    L_O = L_MK + 2048
    L_KX = L_O + 2048
    L_WB = L_KX + 8192
    NRING = 10
    e = em
    LN = 28

    units = []
    for t in range(10):
        units += [('q', t), ('k', t)]
    ounits = [('o', t, p) for p in range(5) for t in range(2)]
    units += ounits
    order = []
    for t in range(10 - nkl):
        for m in 'qk':
            order += [((m, t), 0), ((m, t), 1)]
    for m in 'qk':
        for t in range(10 - nkl, 10):
            order += [((m, t), 0), ((m, t), 1)]
    NQE = 40 - 2 * nkl
    oorder = [(un, tau) for un in ounits for tau in range(2)]
    order += oorder
    n_reg = (512 - pool_end) // 8
    n_lds = 60 - n_reg
    WL = n_lds * 2048
    assert L_WB + 4 * WL <= 163840
    place = {}
    for i, oi in enumerate(sorted(lds_at[:n_lds])):
        place[order[oi]] = ('lds', i)
    assert len(place) == n_lds
    r = pool_end
    for sl in order:
        if sl not in place:
            place[sl] = ('reg', r)
            r += 8
    assert r == 512

    em.raw('.p2align 8')
    em.raw(f'.type {name},@function')
    em.label(name)
    e('s_cmp_lt_u32 s2, 256')
    e(f's_cbranch_scc1 {name}_go')
    e('s_endpgm')
    e.label(f'{name}_go')
    if 'rt' in dbg:
        e('s_memrealtime s[96:97]')
    e('s_load_dwordx4 s[48:51], s[0:1], 16')
    e('s_load_dwordx4 s[52:55], s[0:1], 32')
    e('s_load_dwordx4 s[56:59], s[0:1], 112')
    e(f's_getreg_b32 {s(S_XCC)}, hwreg(HW_REG_XCC_ID)')
    e(f's_and_b32 {s(S_XCC)}, {s(S_XCC)}, 15')
    e('v_lshrrev_b32 v20, 6, v0')
    e('v_and_b32 v16, 63, v0')
    e(f'v_readfirstlane_b32 {s(S_W)}, v20')
    e('s_waitcnt lgkmcnt(0)')

    def srd(d, src, size):
        e(f's_mov_b32 {s(d)}, {s(src)}')
        e(f's_and_b32 {s(d + 1)}, {s(src + 1)}, 0xffff')
        e(f's_mov_b32 {s(d + 2)}, {size}')
        e(f's_mov_b32 {s(d + 3)}, 0x20000')
    srd(S_WQ, 48, 5242880)
    srd(S_WK, 50, 5242880)
    srd(S_WV, 52, 5242880)
    srd(S_WO, 54, 5242880)
    srd(S_DBG, 56, 256)
    srd(S_WS, 58, WS_SIZE)

    def other(lab):
        if mega:
            far_jump(e, lab, 44)
        else:
            e('s_endpgm')
    e(f's_lshl_b32 {s(S_T3)}, {s(S_XCC)}, 2')
    e(f's_cmp_lt_u32 {s(S_XCC)}, 2')
    e(f's_cbranch_scc1 {name}_take')
    other(mega)
    e.label(f'{name}_take')
    e(f's_getreg_b32 {s(S_XCC)}, hwreg(HW_REG_XCC_ID)')
    e(f's_and_b32 {s(S_XCC)}, {s(S_XCC)}, 15')
    e(f's_cmp_lg_u32 {s(S_W)}, 0')
    e(f's_cbranch_scc1 {name}_elected')
    e('v_mov_b32 v20, 1')
    e('v_mov_b32 v21, 0')
    e('s_mov_b64 exec, 1')
    e(f'buffer_atomic_add v20, v21, {s(S_DBG, 4)}, {s(S_T3)} offen sc0')
    e.wait_vm()
    e('ds_write_b32 v21, v20')
    e('s_mov_b64 exec, -1')
    e.wait_lg()
    e.label(f'{name}_elected')
    e('s_barrier')
    e('v_mov_b32 v21, 0')
    e('ds_read_b32 v20, v21')
    e.wait_lg()
    e(f'v_readfirstlane_b32 {s(S_H)}, v20')
    e('s_barrier')
    e(f's_cmp_lt_u32 {s(S_H)}, 32')
    e(f's_cbranch_scc1 {name}_hasrole')
    other(mega)
    e.label(f'{name}_hasrole')
    e(f's_mov_b32 {s(S_MODE)}, {s(S_T3)}')
    e(f'v_mov_b32 {v(LN)}, v16')
    e(f's_add_u32 {s(S_T0)}, {s(S_XCC)}, 0')
    e(f's_cmp_lg_u32 {s(S_T3)}, 0')
    e(f's_cselect_b32 {s(S_T0)}, 0, {s(S_T0)}')
    e(f's_cmp_eq_u32 {s(S_T0)}, 0')
    e(f's_cbranch_scc1 {name}_native')
    e('v_mov_b32 v20, 1')
    e(f'v_mov_b32 v21, {D_SLOW}')
    e(f'buffer_store_dword v20, v21, {s(S_DBG, 4)}, 0 offen sc1')
    e.wait_vm()
    e.label(f'{name}_native')

    g, c, rp, cp, g1, g2, sw = 16, 17, 18, 19, 20, 21, 22
    T = 23
    e(f'v_lshrrev_b32 {v(g)}, 4, {v(LN)}')
    e(f'v_and_b32 {v(c)}, 15, {v(LN)}')
    e(f'v_lshrrev_b32 {v(rp)}, 2, {v(c)}')
    e(f'v_and_b32 {v(cp)}, 3, {v(LN)}')
    e(f'v_and_b32 {v(g1)}, 1, {v(g)}')
    e(f'v_lshrrev_b32 {v(g2)}, 1, {v(g)}')
    e(f'v_lshl_add_u32 {v(sw)}, {v(g1)}, 1, {v(g2)}')
    e(f'v_lshlrev_b32 {v(V_LANE16)}, 4, {v(LN)}')
    e(f'v_lshlrev_b32 {v(V_L64)}, 6, {v(LN)}')
    e(f'v_lshlrev_b32 {v(V_WA)}, 7, {v(c)}')
    e(f'v_mov_b32 {v(V_M1)}, -1')
    e(f'v_and_b32 {v(T)}, 2, {v(LN)}')
    e(f'v_cmp_ne_u32 vcc, 0, {v(T)}')
    e(f'v_mov_b32 {v(T + 1)}, 0x4444')
    e(f'v_mov_b32 {v(T + 2)}, 0xeeee')
    e(f'v_cndmask_b32 {v(V_IDX)}, {v(T + 1)}, {v(T + 2)}, vcc')
    e(f'v_lshl_add_u32 {v(T)}, {v(g)}, 2, {v(rp)}')
    e(f'v_lshlrev_b32 {v(T + 1)}, 3, {v(cp)}')
    e(f'v_lshl_add_u32 {v(V_AF)}, {v(T)}, 5, {v(T + 1)}')
    e(f'v_and_b32 {v(T + 2)}, 1, {v(cp)}')
    e(f'v_lshlrev_b32 {v(T + 2)}, 3, {v(T + 2)}')
    e(f'v_lshl_add_u32 {v(V_QKR)}, {v(T)}, 4, {v(T + 2)}')
    e(f'v_add_u32 {v(V_QKR)}, {L_MQ}, {v(V_QKR)}')
    e(f's_lshl_b32 {s(S_T0)}, {s(S_W)}, 5')
    e(f'v_add_u32 {v(T)}, {s(S_T0)}, {v(c)}')
    e(f'v_lshlrev_b32 {v(T + 2)}, 2, {v(sw)}')
    e(f'v_lshl_add_u32 {v(V_QKW)}, {v(T)}, 4, {v(T + 2)}')
    e(f'v_add_u32 {v(V_QKW)}, {L_MQ}, {v(V_QKW)}')
    e(f's_lshl_b32 {s(S_T0)}, {s(S_W)}, 2')
    e(f'v_add_u32 {v(T)}, {s(S_T0)}, {v(g)}')
    e(f'v_and_b32 {v(T + 3)}, 7, {v(LN)}')
    e(f'v_lshl_add_u32 {v(T)}, {v(T)}, 3, {v(T + 3)}')
    e(f'v_lshlrev_b32 {v(V_OW)}, 4, {v(T)}')
    e(f'v_add_u32 {v(V_OW)}, {L_O}, {v(V_OW)}')
    e(f'v_and_b32 {v(T)}, 1, {v(rp)}')
    e(f'v_lshrrev_b32 {v(T + 2)}, 1, {v(rp)}')
    e(f'v_lshl_add_u32 {v(T)}, {v(T)}, 1, {v(T + 2)}')
    e(f'v_and_b32 {v(T + 2)}, 1, {v(LN)}')
    e(f'v_lshl_add_u32 {v(T)}, {v(T)}, 1, {v(T + 2)}')
    e(f'v_lshl_add_u32 {v(T)}, {v(g)}, 3, {v(T)}')
    e(f'v_lshrrev_b32 {v(T + 2)}, 1, {v(cp)}')
    e(f'v_lshl_add_u32 {v(T)}, {v(T + 2)}, 5, {v(T)}')
    e(f'v_lshlrev_b32 {v(V_OR)}, 4, {v(T)}')
    e(f'v_add_u32 {v(V_OR)}, {L_O}, {v(V_OR)}')
    e(f'v_lshl_add_u32 {v(T)}, {v(g1)}, 2, {v(cp)}')
    e(f'v_lshlrev_b32 {v(T)}, 4, {v(T)}')
    e(f'v_lshl_add_u32 {v(T)}, {v(g2)}, 3, {v(T)}')
    e(f'v_lshl_add_u32 {v(V_PBST)}, {v(rp)}, 12, {v(T)}')
    e(f'v_and_b32 {v(T)}, 4, {v(LN)}')
    e(f'v_lshl_add_u32 {v(T)}, {v(sw)}, 3, {v(T)}')
    e(f'v_lshl_add_u32 {v(T)}, {v(cp)}, 5, {v(T)}')
    e(f'v_lshlrev_b32 {v(T + 1)}, 27, {v(c)}')
    e(f'v_and_b32 {v(T + 1)}, 0x40000000, {v(T + 1)}')
    e(f'v_or_b32 {v(V_MBST)}, {v(T)}, {v(T + 1)}')
    e(f'v_lshlrev_b32 {v(V_L8)}, 3, {v(LN)}')
    e(f'v_lshlrev_b32 {v(T)}, 4, {v(g)}')
    e(f'v_lshl_add_u32 {v(V_KXG)}, {v(c)}, 8, {v(T)}')
    e(f's_mul_i32 {s(S_LDSW)}, {s(S_W)}, {WL}')
    e(f's_add_u32 {s(S_LDSW)}, {s(S_LDSW)}, {L_WB}')
    e(f'v_add_u32 {v(V_LDSW)}, {s(S_LDSW)}, {v(V_LANE16)}')
    e(f's_mul_i32 {s(S_LDSW)}, {s(S_W)}, {NRING * 4096}')
    VG_QKV, VG_O, VT_QKV, VT_O = 28, 29, 30, 31
    e(f'v_lshrrev_b32 {v(T + 2)}, 1, {v(rp)}')
    e(f'v_and_b32 {v(T + 3)}, 1, {v(rp)}')
    e(f'v_lshlrev_b32 {v(T + 1)}, 3, {v(cp)}')
    e(f'v_lshlrev_b32 {v(T + 4)}, 5, {v(g1)}')
    e(f'v_lshl_add_u32 {v(T + 4)}, {v(T + 2)}, 4, {v(T + 4)}')
    e(f'v_lshl_add_u32 {v(T + 4)}, {v(g2)}, 2, {v(T + 4)}')
    e(f'v_add_u32 {v(T + 4)}, {v(T + 4)}, {v(T + 3)}')
    e(f'v_lshl_add_u32 {v(VT_QKV)}, {v(T + 4)}, 6, {v(T + 1)}')
    e(f'v_add_u32 {v(VT_QKV)}, {s(S_LDSW)}, {v(VT_QKV)}')
    e(f'v_lshlrev_b32 {v(T + 4)}, 5, {v(T + 2)}')
    e(f'v_lshl_add_u32 {v(T + 4)}, {v(g1)}, 4, {v(T + 4)}')
    e(f'v_lshl_add_u32 {v(T + 4)}, {v(g2)}, 2, {v(T + 4)}')
    e(f'v_add_u32 {v(T + 4)}, {v(T + 4)}, {v(T + 3)}')
    e(f'v_lshl_add_u32 {v(VT_O)}, {v(T + 4)}, 6, {v(T + 1)}')
    e(f'v_add_u32 {v(VT_O)}, {s(S_LDSW)}, {v(VT_O)}')
    e(f'v_lshrrev_b32 {v(T)}, 2, {v(LN)}')
    e(f'v_lshlrev_b32 {v(T + 1)}, 4, {v(cp)}')
    e(f'v_mul_u32_u24 {v(VG_O)}, 1280, {v(T)}')
    e(f'v_add_u32 {v(VG_O)}, {v(VG_O)}, {v(T + 1)}')
    e(f'v_lshl_add_u32 {v(VG_QKV)}, {v(T)}, 13, {v(T + 1)}')
    e(f's_lshl_b32 {s(S_T2)}, {s(S_H)}, 8')
    e(f's_lshl_b32 {s(S_T0)}, {s(S_W)}, 6')
    e(f's_add_u32 {s(S_T2)}, {s(S_T2)}, {s(S_T0)}')
    e(f's_mul_i32 {s(S_T3)}, {s(S_H)}, {128 * 1280}')
    e(f's_mul_i32 {s(S_T0)}, {s(S_W)}, 320')
    e(f's_add_u32 {s(S_T3)}, {s(S_T3)}, {s(S_T0)}')
    e(f's_mul_i32 {s(S_PBST)}, {s(S_W)}, {20 * 4096}')
    e(f's_lshl_b32 {s(S_T0)}, {s(S_H)}, 7')
    e(f's_add_u32 {s(S_PBST)}, {s(S_PBST)}, {s(S_T0)}')
    e(f's_mov_b32 {s(S_STEP)}, 0')
    e('s_mov_b32 s3, 0')
    e(f's_mov_b32 {s(S_MSL)}, 0')
    e(f's_lshl_b32 {s(S_T1)}, {s(S_H)}, 12')
    e(f's_add_u32 {s(S_KMO)}, {s(S_T1)}, {WS_KM}')
    e(f's_lshl_b32 {s(S_T0)}, {s(S_W)}, 9')
    e(f's_add_u32 {s(S_VMO)}, {s(S_KMO)}, {s(S_T0)}')
    e(f's_add_u32 {s(S_NR)}, {s(S_WS)}, 0x5fffff')
    e(f's_and_b32 {s(S_NR)}, {s(S_NR)}, 0xffe00000')
    e(f's_sub_u32 {s(S_NR)}, {s(S_NR)}, {s(S_WS)}')
    e(f's_lshr_b32 {s(S_T1)}, {s(S_H)}, 2')
    e(f's_lshl_b32 {s(S_T1)}, {s(S_T1)}, 14')
    e(f's_add_u32 {s(S_VB0)}, {s(S_T0)}, {s(S_T1)}')
    e(f's_and_b32 {s(S_T1)}, {s(S_H)}, 3')
    e(f's_lshl_b32 {s(S_T1)}, {s(S_T1)}, 11')
    e(f's_add_u32 {s(S_VB0)}, {s(S_VB0)}, {s(S_T1)}')
    e(f's_add_u32 {s(S_VB0)}, {s(S_VB0)}, {NR_VB}')

    def load_weights(ulist, place_, vt_o, tmpbase, first):
        def issue(i):
            un = ulist[i]
            pos = i % NRING
            for q in range(4):
                if un[0] == 'o':
                    _, t, p = un
                    e(f's_add_u32 {s(S_T0)}, {s(S_T3)}, {(64 * t + 16 * q) * 1280 + 64 * p}')
                    srdn, vg = S_WO, VG_O
                else:
                    m, t = un
                    e(f's_add_u32 {s(S_T0)}, {s(S_T2)}, {(64 * t + 16 * q) * 8192}')
                    srdn, vg = {'q': S_WQ, 'k': S_WK, 'v': S_WV}[m], VG_QKV
                e(f's_add_u32 m0, {s(S_LDSW)}, {pos * 4096 + q * 1024}')
                e(f'buffer_load_dwordx4 {v(vg)}, {s(srdn, 4)}, {s(S_T0)} offen lds', tag=('dma', i))

        def process(i):
            un = ulist[i]
            pos = i % NRING
            e.wait_vm(('dma', i))
            vt = vt_o if un[0] == 'o' else VT_QKV
            for tau in range(2):
                kind, loc = place_[(un, tau)]
                dst = loc if kind == 'reg' else tmpbase + 8 * loc
                for n in range(4):
                    off = (8 * (n >> 1) + 2 * (n & 1)) * 64 + 32 * tau
                    e(f'ds_read_b64_tr_b16 {u(dst + 2 * n, 2)}, {v(vt)} offset:{pos * 4096 + off}')
            e.wait_lg()
        n = len(ulist)
        first()
        for i in range(NRING):
            issue(i)
        for i in range(n):
            process(i)
            if i + NRING < n:
                issue(i + NRING)

    def init_done(lab, inc='1'):
        e('s_waitcnt vmcnt(0)')
        e('s_barrier')
        e(f's_cmp_lg_u32 {s(S_W)}, 0')
        e(f's_cbranch_scc1 {lab}')
        e(f'v_mov_b32 v44, {D_INIT}')
        e(f'v_mov_b32 v45, {inc}')
        e('s_mov_b64 exec, 1')
        e(f'buffer_atomic_add v45, v44, {s(S_DBG, 4)}, 0 offen')
        e('s_mov_b64 exec, -1')
        e.label(lab)
        e.vm = []
        e.hist = []

    def init_wait(lab, t):
        e(f'v_mov_b32 {v(t + 2)}, 128')
        e.label(lab)
        wd()
        e('s_sleep 8')
        e(f'buffer_load_dwordx2 {v(t, 2)}, {v(t + 2)}, {s(S_DBG, 4)}, 0 offen sc1')
        e('s_waitcnt vmcnt(0)')
        e(f'v_readfirstlane_b32 {s(S_T0)}, {v(t)}')
        e(f'v_readfirstlane_b32 {s(S_T1)}, {v(t + 1)}')
        if nmoda:
            e(f's_cmp_lt_u32 {s(S_T0)}, {nmoda}')
            e(f's_cbranch_scc1 {lab}')
        e(f's_and_b32 {s(S_T0)}, {s(S_T1)}, 0xffff')
        e(f's_cmp_lt_u32 {s(S_T0)}, 64')
        e(f's_cbranch_scc1 {lab}')
        e(f's_lshr_b32 {s(S_T1)}, {s(S_T1)}, 16')
        e(f's_cmp_ge_u32 {s(S_T1)}, 16')
        e(f's_cselect_b32 {s(S_T0)}, 8192, 0')
        if 'far' in dbg:
            e(f's_xor_b32 {s(S_T0)}, {s(S_T0)}, 8192')
        e(f's_add_u32 {s(S_NR)}, {s(S_NR)}, {s(S_T0)}')
        e(f's_add_u32 {s(S_VB0)}, {s(S_VB0)}, {s(S_NR)}')
        e(f's_mov_b32 {s(S_VB)}, {s(S_VB0)}')

    def signal_block(t0):
        e(f's_lshl_b32 {s(S_T2)}, {s(S_T2)}, 7')
        e(f's_add_u32 {s(S_T2)}, {s(S_T2)}, {WS_CTR + C_CH * 128}')
        e(f'v_mov_b32 {v(t0)}, 1')
        e('s_mov_b64 exec, 1')
        e(f'buffer_atomic_add {v(t0)}, {v(V_LANE16)}, {s(S_WS, 4)}, {s(S_T2)} offen')
        e('s_mov_b64 exec, -1')

    def seg_signal():
        e('s_mov_b64 exec, 1')
        e(f'buffer_atomic_sub {v(V_M1)}, {v(V_LANE16)}, {s(S_WS, 4)}, {s(S_SIG)} offen')
        e('s_mov_b64 exec, -1')
        e(f's_add_u32 {s(S_SIG)}, {s(S_SIG)}, 128')

    def step_signal(L):
        if segsig is not None:
            return
        e(f's_and_b32 {s(S_T2)}, {s(S_STEP)}, 3')
        e(f's_lshl_b32 {s(S_T2)}, {s(S_T2)}, 2')
        e(f's_add_u32 {s(S_T2)}, {s(S_T2)}, {s(S_W)}')
        e(f's_cmp_lg_u32 {s(S_T2)}, 3')
        e(f's_cbranch_scc1 {L}_nosig')
        e(f's_cmp_eq_u32 {s(S_STEP)}, 0')
        e(f's_cbranch_scc1 {L}_nosig')
        e.cond_begin()
        e(f's_lshr_b32 {s(S_T2)}, {s(S_STEP)}, 2')
        e(f's_sub_u32 {s(S_T2)}, {s(S_T2)}, 1')
        signal_block(V_WT)
        e.cond_end()
        e.label(f'{L}_nosig')

    def tl(i):
        if 'tl' in dbg:
            e(f's_memrealtime {s(84 + 2 * i, 2)}')

    def tl_out(role, t):
        if 'tl' in dbg:
            e('s_waitcnt lgkmcnt(0)')
            for i in range(4):
                e(f'v_mov_b32 {v(t + i)}, {s(84 + 2 * i)}')
            e(f's_lshl_b32 {s(S_T0)}, {s(S_H)}, 2')
            e(f's_add_u32 {s(S_T0)}, {s(S_T0)}, {s(S_W)}')
            e(f's_lshl_b32 {s(S_T0)}, {s(S_T0)}, 6')
            e(f's_add_u32 {s(S_T0)}, {s(S_T0)}, {s(S_STEP)}')
            e(f's_lshl_b32 {s(S_T0)}, {s(S_T0)}, 4')
            e(f's_add_u32 {s(S_T0)}, {s(S_T0)}, {0x0F100000 + role * 0x40000}')
            e('s_mov_b64 exec, 1')
            e(f'buffer_store_dwordx4 {v(t, 4)}, {v(V_LANE16)}, {s(S_WS, 4)}, {s(S_T0)} offen')
            e('s_mov_b64 exec, -1')
            e.nop(2)

    def wd():
        if 'wd' in dbg:
            e('s_add_u32 s3, s3, 1')
            e('s_cmp_gt_u32 s3, 0x40000')
            _fj[0] += 1
            e(f's_cbranch_scc0 Lwd{_fj[0]}')
            e('s_endpgm')
            e.label(f'Lwd{_fj[0]}')

    def run(mf, side, ratio=2):
        side = list(side)
        for f in mf:
            f()
            for _ in range(ratio):
                if side:
                    side.pop(0)()
        for f in side:
            f()

    def fold(acc, dst):
        return [lambda: e(f'v_pk_add_f32 {v(acc, 2)}, {v(acc, 2)}, {v(acc + 2, 2)}'),
                lambda: e(f'v_cvt_pk_bf16_f32 {v(dst)}, {v(acc)}, {v(acc + 1)}')]

    def stamp_init():
        for i in range(17, 28):
            e(f's_mov_b32 {s(i)}, 0')
        e('s_memtime s[100:101]')
        e('s_waitcnt lgkmcnt(0)')
        for i in range(10):
            e(f's_mov_b32 {s(S_STAMP + 2 * i)}, s100')

    def stamp_acc(n):
        e('s_waitcnt lgkmcnt(0)')
        e(f's_sub_u32 {s(S_T0)}, {s(S_STAMP)}, s100')
        e(f's_add_u32 s17, s17, {s(S_T0)}')
        for i in range(n - 1):
            e(f's_sub_u32 {s(S_T0)}, {s(S_STAMP + 2 * i + 2)}, {s(S_STAMP + 2 * i)}')
            e(f's_add_u32 {s(18 + i)}, {s(18 + i)}, {s(S_T0)}')
        e(f's_mov_b32 s100, {s(S_STAMP + 2 * (n - 1))}')

    def stamp_out():
        e('v_mov_b32 v40, 0')
        for i in range(11):
            e(f'v_writelane_b32 v40, {s(17 + i)}, {i}')
        e(f'v_lshrrev_b32 v41, 2, {v(V_LANE16)}')
        e(f's_lshl_b32 {s(S_T0)}, {s(S_H)}, 2')
        e(f's_add_u32 {s(S_T0)}, {s(S_T0)}, {s(S_W)}')
        e(f's_lshl_b32 {s(S_T0)}, {s(S_T0)}, 8')
        e(f's_add_u32 {s(S_T0)}, {s(S_T0)}, 0x0F000000')
        e(f'buffer_store_dword v40, v41, {s(S_WS, 4)}, {s(S_T0)} offen')

    e(f's_cmp_eq_u32 {s(S_MODE)}, 0')
    e(f's_cbranch_scc1 {name}_chain')
    far_jump(e, f'{name}_helper', 44)
    e.label(f'{name}_chain')

    pool = Pool(NPERS, pool_end)
    cc = f32bits((128 ** -0.5) * 1.4426950408889634)
    e(f's_mov_b32 {s(S_C1)}, {cc:#x}')
    e(f's_mov_b32 {s(S_C1 + 1)}, {cc:#x}')
    e(f's_mov_b32 {s(S_MASKLO)}, -1')
    e(f's_mov_b32 {s(S_MASKLO + 1)}, 0')
    e(f's_lshl_b32 {s(S_T0)}, {s(S_H)}, 1')
    e(f's_add_u32 {s(S_T0)}, {s(S_T0)}, {s(S_W)}')
    e(f's_lshr_b32 {s(S_T1)}, {s(S_T0)}, 4')
    e(f's_and_b32 {s(S_T0)}, {s(S_T0)}, 15')
    e(f's_mul_i32 {s(S_T1)}, {s(S_T1)}, 20')
    e(f's_add_u32 {s(S_UNIT)}, {s(S_T0)}, {s(S_T1)}')
    e(f's_add_u32 {s(S_UNIT)}, {s(S_UNIT)}, 4')
    e(f's_lshr_b32 {s(S_T1)}, {s(S_H)}, 2')
    e(f's_mul_i32 {s(S_T1)}, {s(S_T1)}, 20')
    e(f's_and_b32 {s(S_T0)}, {s(S_H)}, 3')
    e(f's_add_u32 {s(S_T0)}, {s(S_T0)}, {s(S_T1)}')
    e(f's_cmp_lt_u32 {s(S_H)}, 16')
    e(f's_cselect_b32 {s(S_T0)}, {s(S_T0)}, 255')
    e(f's_cmp_eq_u32 {s(S_W)}, 2')
    e(f's_cselect_b32 {s(S_UNIT)}, {s(S_T0)}, {s(S_UNIT)}')
    e(f's_cmp_eq_u32 {s(S_W)}, 3')
    e(f's_cselect_b32 {s(S_UNIT)}, 255, {s(S_UNIT)}')
    e(f's_mul_i32 {s(S_GOF)}, {s(S_W)}, 2560')

    def chain_init():
        e('s_load_dwordx2 s[76:77], s[0:1], 8')
        for j in range(4):
            e(f'v_mov_b32 {v(40 + j)}, -1')
        e(f's_lshl_b32 {s(S_T0)}, {s(S_H)}, 2')
        e(f's_add_u32 {s(S_T0)}, {s(S_T0)}, {s(S_W)}')
        e(f's_mul_i32 {s(S_T1)}, {s(S_T0)}, 2560')
        for sl_ in range(2):
            e(f's_add_u32 s78, {s(S_T1)}, {WS_PB + sl_ * PB_STRIDE}')
            for i in range(3):
                e(f'buffer_store_dwordx4 v[40:43], {v(V_LANE16)}, {s(S_WS, 4)}, s78 offen offset:{1024 * i} sc1')
        e(f's_lshl_b32 s78, {s(S_T0)}, 10')
        e(f's_add_u32 s79, s78, {WS_MB + MB_STRIDE}')
        e(f'buffer_store_dwordx4 v[40:43], {v(V_LANE16)}, {s(S_WS, 4)}, s79 offen sc1')
        e(f's_add_u32 s79, s78, {s(S_NR)}')
        e('s_add_u32 s79, s79, 32768')
        e(f's_cmp_ge_u32 {s(S_T0)}, 96')
        e('s_cselect_b32 s79, 0x40000000, s79')
        e(f'buffer_store_dwordx4 v[40:43], {v(V_LANE16)}, {s(S_WS, 4)}, s79 offen sc1')
        e('v_mov_b32 v44, 0')
        e(f's_lshl_b32 s78, {s(S_H)}, 7')
        e(f's_add_u32 s78, s78, {s(S_NR)}')
        e(f's_add_u32 s78, s78, {NR_PING}')
        e('s_add_u32 s79, s78, 8192')
        e(f'buffer_store_dword v44, {v(V_MBST)}, {s(S_WS, 4)}, s78 offen sc1')
        e(f'buffer_store_dword v44, {v(V_MBST)}, {s(S_WS, 4)}, s79 offen sc1')
        e('s_waitcnt lgkmcnt(0)')
        e('s_mov_b32 s80, s76')
        e('s_and_b32 s81, s77, 0xffff')
        e('s_mov_b32 s82, 10240')
        e('s_mov_b32 s83, 0x20000')
        e(f's_cmp_ge_u32 {s(S_T0)}, 40')
        e(f's_cbranch_scc1 {name}_nom0')
        e(f's_lshl_b32 s78, {s(S_T0)}, 6')
        e(f'v_lshrrev_b32 v44, 4, {v(V_LANE16)}')
        e('v_add_u32 v44, s78, v44')
        e('v_and_b32 v45, 1, v44')
        e('v_bfe_u32 v46, v44, 1, 2')
        e('v_bfe_u32 v47, v44, 3, 4')
        e('v_lshrrev_b32 v48, 7, v44')
        e('v_lshl_add_u32 v47, v45, 4, v47')
        e('v_lshl_add_u32 v47, v48, 5, v47')
        e('v_mul_u32_u24 v46, 2560, v46')
        e('v_lshl_add_u32 v46, v47, 1, v46')
        e('buffer_load_ushort v45, v46, s[80:83], 0 offen')
        e('buffer_load_ushort v47, v46, s[80:83], 0 offen offset:1280')
        e('v_lshlrev_b32 v44, 2, v44')
        e('s_waitcnt vmcnt(0)')
        e('v_lshl_or_b32 v45, v47, 16, v45')
        e('v_min_u32 v45, 0xfffffffe, v45')
        e(f's_mov_b32 s78, {WS_MB}')
        e(f's_cmp_ge_u32 {s(S_T0)}, 32')
        e('s_cselect_b32 s79, 8192, 0')
        e(f's_add_u32 s79, s79, {s(S_NR)}')
        e('s_add_u32 s80, s79, 8192')
        e(f'buffer_store_dword v45, v44, {s(S_WS, 4)}, s78 offen sc1')
        e(f'buffer_store_dword v45, v44, {s(S_WS, 4)}, s79 offen sc1')
        e(f'buffer_store_dword v45, v44, {s(S_WS, 4)}, s80 offen sc1')
        e.label(f'{name}_nom0')
        init_done(f'{name}_noib')

    assert 32 + 8 * n_lds <= pool_end
    load_weights(units, place, VT_O, 32, chain_init)
    e('s_barrier')
    for i in range(n_lds):
        e(f'ds_write_b128 {v(V_LDSW)}, {v(32 + 8 * i, 4)} offset:{2048 * i}')
        e(f'ds_write_b128 {v(V_LDSW)}, {v(36 + 8 * i, 4)} offset:{2048 * i + 1024}')
    e.wait_lg()

    TT = NPERS
    e(f'v_and_b32 {v(TT)}, 16, {v(V_LANE16)}')
    e(f's_mov_b32 {s(S_T0)}, 0x3f80')
    e(f'v_lshlrev_b32 {v(TT)}, {v(TT)}, {s(S_T0)}')
    e(f'v_bfe_u32 {v(TT + 1)}, {v(V_LANE16)}, 5, 2')
    for rr in range(4):
        e(f'v_cmp_eq_u32 vcc, {rr}, {v(TT + 1)}')
        e(f'v_cndmask_b32 {v(V_SEL + rr)}, 0, {v(TT)}, vcc')
        e(f'v_mov_b32 {v(V_ONES + rr)}, 0x3f803f80')
    e(f'v_mov_b32 {v(V_PM + 1)}, 0')
    e(f'v_mov_b32 {v(V_PM + 2)}, 0')
    e(f's_add_u32 {s(S_MBB)}, {s(S_GOF)}, {WS_MB}')
    e(f's_mov_b32 {s(S_MBP)}, {s(S_MBB)}')
    e(f's_add_u32 {s(S_MBP + 1)}, {s(S_MBB)}, 4096')
    e(f's_add_u32 {s(S_PBST)}, {s(S_PBST)}, {WS_PB}')
    for p in range(1, 5):
        e(f's_add_u32 {s(S_PBST + p)}, {s(S_PBST)}, {p * 16384}')
    e(f's_lshl_b32 {s(S_T0)}, {s(S_UNIT)}, 12')
    e(f's_add_u32 {s(S_PBLD)}, {s(S_T0)}, {WS_PB}')
    e(f's_lshl_b32 {s(S_MBL)}, {s(S_UNIT)}, 7')
    e(f's_add_u32 {s(S_MBL)}, {s(S_MBL)}, {WS_MB}')
    e(f's_mov_b32 {s(S_MBC)}, {s(S_MBL)}')
    e(f's_add_u32 {s(S_MBN)}, {s(S_MBL)}, {MB_STRIDE}')
    e(f's_lshl_b32 {s(S_SH13)}, {s(S_H)}, 13')
    e(f's_lshl_b32 {s(S_T0)}, {s(S_W)}, 9')
    e(f's_add_u32 {s(S_KXM2)}, {s(S_T0)}, {L_MK}')
    e(f's_mov_b32 {s(S_MBR2)}, 0x40000000')
    e(f's_lshl_b32 {s(S_T0)}, {s(S_W)}, 11')
    e(f's_add_u32 {s(S_VXO)}, {s(S_T0)}, {s(S_SH13)}')
    e(f's_add_u32 {s(S_WRM)}, {s(S_VXO)}, {WS_KX + 32 * 8192}')
    e(f's_add_u32 {s(S_VXO)}, {s(S_VXO)}, {WS_VXT}')
    e(f's_add_u32 {s(S_KXM)}, {s(S_T0)}, {L_KX}')
    e(f's_lshr_b32 {s(S_T0)}, {s(S_W)}, 1')
    e(f's_lshl_b32 {s(S_T0)}, {s(S_T0)}, 12')
    e(f's_and_b32 {s(S_T1)}, {s(S_W)}, 1')
    e(f's_lshl_b32 {s(S_T1)}, {s(S_T1)}, 7')
    e(f's_add_u32 {s(S_KXW)}, {s(S_T0)}, {s(S_T1)}')
    e(f's_add_u32 {s(S_KXW)}, {s(S_KXW)}, {s(S_SH13)}')
    e(f's_add_u32 {s(S_KXW)}, {s(S_KXW)}, {WS_KX}')

    def kx_items():
        return [
            lambda: e(f's_mov_b32 m0, {s(S_KXM)}'),
            lambda: e(f'buffer_load_dwordx4 {v(V_KXG)}, {s(S_WS, 4)}, {s(S_KXW)} offen {ldfl} lds', tag='kx'),
            lambda: e(f's_add_u32 {s(S_T0)}, {s(S_KXW)}, 64'),
            lambda: e(f's_add_u32 m0, {s(S_KXM)}, 1024'),
            lambda: e(f'buffer_load_dwordx4 {v(V_KXG)}, {s(S_WS, 4)}, {s(S_T0)} offen {ldfl} lds', tag='kx'),
            lambda: e(f's_add_u32 {s(S_KXW)}, {s(S_KXW)}, {32 * 8192}'),
        ]

    def kv_wait(lab, t1):
        e(f's_cmp_ge_u32 {s(S_KVOK)}, {s(S_T2)}')
        e(f's_cbranch_scc1 {lab}_ok')
        e.cond_begin()
        e(f's_mov_b32 {s(S_T3)}, {WS_CTR + C_KV * 128}')
        e.label(f'{lab}_spin')
        e(f'buffer_load_dword {v(t1)}, {v(V_WA)}, {s(S_WS, 4)}, {s(S_T3)} offen sc1')
        e('s_waitcnt vmcnt(0)')
        e(f'v_cmp_le_u32 vcc, 32, {v(t1)}')
        e(f's_and_b32 {s(S_KVOK)}, vcc_lo, 0xffff')
        e(f's_ff0_i32_b32 {s(S_KVOK)}, {s(S_KVOK)}')
        e(f's_cmp_ge_u32 {s(S_KVOK)}, {s(S_T2)}')
        e(f's_cbranch_scc0 {lab}_spin')
        e.cond_end()
        e.label(f'{lab}_ok')

    def claim(b, n):
        for i in range(n):
            assert (b + i) in pool.free_, ('claim', b, n)
            pool.free_.remove(b + i)

    ACC = pool.must(16)
    if 'rt' in dbg:
        e('s_memrealtime s[94:95]')
        e('s_waitcnt lgkmcnt(0)')
    init_wait(f'{name}_ibw', ACC)
    e(f's_lshl_b32 {s(S_MBL2)}, {s(S_UNIT)}, 7')
    e(f's_cmp_ge_u32 {s(S_UNIT)}, 64')
    e(f's_cselect_b32 {s(S_T0)}, 8192, 0')
    e(f's_add_u32 {s(S_MBL2)}, {s(S_MBL2)}, {s(S_T0)}')
    e(f's_add_u32 {s(S_MBL2)}, {s(S_MBL2)}, {s(S_NR)}')
    e(f's_mov_b32 {s(S_MBC2)}, {s(S_MBL2)}')
    e(f's_add_u32 {s(S_MBN2)}, {s(S_MBL2)}, 32768')
    e(f's_lshl_b32 {s(S_PING)}, {s(S_H)}, 7')
    e(f's_add_u32 {s(S_PING)}, {s(S_PING)}, {s(S_NR)}')
    e(f's_add_u32 {s(S_PING)}, {s(S_PING)}, {NR_PING}')
    e(f's_cmp_eq_u32 {s(S_W)}, 3')
    e(f's_cselect_b32 {s(S_PING)}, {s(S_PING)}, 0x40000000')
    e(f'buffer_load_dword {v(ACC)}, {v(ACC + 2)}, {s(S_DBG, 4)}, 0 offen offset:8 sc1')
    e('s_waitcnt vmcnt(0)')
    e(f'v_readfirstlane_b32 {s(S_MODE)}, {v(ACC)}')
    if mega:
        e(f's_mov_b32 {s(S_KVOK)}, 0')
        e(f's_mov_b32 {s(S_T2)}, 1')
        kv_wait(f'{name}_kv0', ACC)
    for j in range(0, 16, 2):
        e(f'v_mov_b64 {v(ACC + j, 2)}, 0')
    KMT = pool.must(2)
    if segsig is not None:
        e(f's_cmp_eq_u32 {s(S_W)}, 1')
        e(f's_mov_b32 {s(S_SIG)}, {segsig - (256 if sigat == "a" else 128)}')
        e(f's_cselect_b32 {s(S_SIG)}, {s(S_SIG)}, 0x40000000')
    e(f's_lshl_b32 {s(S_T1)}, {s(S_W)}, 9')
    e(f's_mov_b32 {s(S_VMO)}, 0x40000000')
    pre_slots = [sl for sl in order if place[sl][0] == 'lds'][:npre]
    PRE = [pool.alloc(8, 8, top=True) for _ in pre_slots]

    def pre_load():
        for sl, b in zip(pre_slots, PRE):
            loc = place[sl][1] * 2048
            e(f'ds_read_b128 {v(b, 4)}, {v(V_LDSW)} offset:{loc}')
            e(f'ds_read_b128 {v(b + 4, 4)}, {v(V_LDSW)} offset:{loc + 1024}')
    pre_load()
    for it in kx_items():
        it()
    e('s_waitcnt vmcnt(0) lgkmcnt(0)')
    e.vm = []
    e.lg = []
    if 'rt' in dbg:
        e('s_memrealtime s[98:99]')
        e('s_waitcnt lgkmcnt(0)')
    if 'tot' in dbg:
        e('s_memtime s[96:97]')
        e('s_waitcnt lgkmcnt(0)')
    if stamps:
        stamp_init()
    if slow:
        e(f's_cmp_lg_u32 {s(S_MODE)}, 0')
        e(f's_cbranch_scc1 {name}_slow')

    def k_out(KO):
        e(f'ds_read_b128 {v(KO, 4)}, {v(V_LANE16)} offset:{L_MK}', tag='ko')
        e(f'ds_read_b128 {v(KO + 4, 4)}, {v(V_LANE16)} offset:{L_MK + 1024}', tag='ko')
        e('s_waitcnt lgkmcnt(0)')
        e(f'buffer_store_dwordx4 {v(KO, 4)}, {v(V_LANE16)}, {s(S_WS, 4)}, {s(S_KMO)} offen {ostfl}')
        e(f'buffer_store_dwordx4 {v(KO + 4, 4)}, {v(V_LANE16)}, {s(S_WS, 4)}, {s(S_KMO)} offen offset:1024 {ostfl}')

    def body(sc, L):
        stamp_i = [0]
        call_i = [0]

        def stamp():
            call_i[0] += 1
            if stamps and (call_i[0] - 1) in stsel:
                e(f's_memtime {s(S_STAMP + 2 * stamp_i[0], 2)}')
                stamp_i[0] += 1

        e.label(L)
        e.hist = []
        e.vm = []
        e.lg = []
        stamp()
        G0 = pool.must(20)
        GM = pool.must(2)
        e(f'v_add_u32 {v(GM + 1)}, {s(S_GOF)}, {v(V_LANE16)}')
        if ackA:
            e('s_waitcnt vmcnt(0)')
        if b0:
            e('s_barrier')
        if adel:
            e(f's_sleep {adel}')
        e.label(f'{L}_pollA')
        e.hist = []
        wd()
        if stamps:
            e('s_add_u32 s27, s27, 0x10000')
        for i in range(3):
            e(f'buffer_load_dwordx4 {v(G0 + 4 * i, 4)}, {v(V_LANE16)}, {s(S_WS, 4)}, {s(S_MBP)} offen offset:{(0, 1024, 1536)[i]} sc1')
        for i in range(3):
            e(f's_waitcnt vmcnt({2 - i})')
            e(f'ds_write_b128 {v(GM + 1)}, {v(G0 + 4 * i, 4)} offset:{(0, 1024, 1536)[i]}')
        e(f'v_max3_u32 {v(GM)}, {v(G0)}, {v(G0 + 4)}, {v(G0 + 8)}')
        e(f'v_cmp_eq_u32 vcc, -1, {v(GM)}')
        e('s_mov_b64 exec, vcc')
        e(f's_cbranch_execnz {L}_pollA')
        e('s_mov_b64 exec, -1')
        e('s_waitcnt lgkmcnt(0)')
        e.label(f'{L}_gd')
        e('s_barrier')
        e.vm = []
        e.lg = []
        e.hist = []
        stamp()
        tl(0)
        pool.free(G0, 20)
        pool.free(GM, 2)

        loaded = {sl: b for sl, b in zip(pre_slots, PRE)}
        lds_pending = [sl for sl in order if place[sl][0] == 'lds' and sl not in loaded]
        st = dict(reserve=0)

        def pump_lds(cur_idx, force=False):
            while lds_pending and order.index(lds_pending[0]) <= cur_idx + la_lds:
                need = force and order.index(lds_pending[0]) <= cur_idx
                b = pool.alloc(8, 8, top=True, reserve=0 if need else st['reserve'])
                if b is None:
                    assert not need, 'no buffer for lds slot'
                    return
                lead = order.index(lds_pending[0]) - cur_idx
                if lead < 4 and cur_idx != 40:
                    print('; WARNING short lds lead', order.index(lds_pending[0]), lead)
                sl = lds_pending.pop(0)
                loc = place[sl][1] * 2048
                e(f'ds_read_b128 {v(b, 4)}, {v(V_LDSW)} offset:{loc}', tag=('lw', sl))
                e(f'ds_read_b128 {v(b + 4, 4)}, {v(V_LDSW)} offset:{loc + 1024}', tag=('lw', sl))
                loaded[sl] = b

        def smf(acc, af, sl):
            idx = order.index(sl)
            kind, loc = place[sl]
            if kind == 'reg':
                b = loc
            else:
                if sl not in loaded:
                    pump_lds(idx, True)
                b = loaded[sl]
                e.wait_lg(('lw', sl))
            e(f'v_smfmac_f32_16x16x64_bf16 {v(acc, 4)}, {v(af, 4)}, {u(b, 8)}, {v(V_IDX)}')
            if kind != 'reg':
                pool.free(b, 8)
            pump_lds(idx + 1)

        AF = {}
        afpos = [0]
        first_use = [min(i for i, o in enumerate(order[:40]) if o[0][1] == t) for t in range(10)]

        def af_pump(i):
            while afpos[0] < 10 and first_use[afpos[0]] - i <= afl:
                k = afpos[0]
                afpos[0] += 1
                b = AF[k] = pool.must(4)
                e(f'ds_read_b64_tr_b16 {v(b, 2)}, {v(V_AF)} offset:{1024 * k}', tag=('af', k))
                e(f'ds_read_b64_tr_b16 {v(b + 2, 2)}, {v(V_AF)} offset:{1024 * k + 512}', tag=('af', k))

        af_pump(0)
        accof = {'q': 0, 'k': 8}
        waited = set()

        def mk(i, sl):
            (m, t), tau = sl
            last = not any(o[0][1] == t for o in order[i + 1:40])

            def f():
                if t not in waited:
                    e.wait_lg(('af', t))
                    waited.add(t)
                smf(ACC + accof[m] + 4 * tau, AF[t], sl)
                if last:
                    pool.free(AF[t], 4)
                af_pump(i + 1)
            return f
        mf = [mk(i, sl) for i, sl in enumerate(order[:40])]
        run(mf[:wat], [], 0)
        if mega:
            e(f's_add_u32 {s(S_T2)}, {s(S_STEP)}, 5')
            e(f's_lshr_b32 {s(S_T2)}, {s(S_T2)}, 2')
            e(f's_min_u32 {s(S_T2)}, {s(S_T2)}, 16')
            kv_wait(f'{L}_kv', V_WT)
        VX = pool.must(8)
        e(f'buffer_load_dwordx4 {v(VX, 4)}, {v(V_LANE16)}, {s(S_WS, 4)}, {s(S_VXO)} offen {ldfl}', tag='vx')
        e(f'buffer_load_dwordx4 {v(VX + 4, 4)}, {v(V_LANE16)}, {s(S_WS, 4)}, {s(S_VXO)} offen offset:1024 {ldfl}', tag='vx')

        def warm_at(pos):
            for p_, what in warm:
                if p_ != pos:
                    continue
                isv = what in (1, 20, 21)
                if what >= 10:
                    e(f's_mov_b64 exec, {0xff00 if what & 1 else 0xff}')
                if isv:
                    e(f's_add_u32 {s(S_T0)}, {s(S_WRM)}, {WS_VXT - WS_KX}')
                e(f'buffer_load_dword {v(V_WT)}, {v(V_WA)}, {s(S_WS, 4)}, {s(S_T0 if isv else S_WRM)} offen', tag='warm')
                if what >= 10:
                    e('s_mov_b64 exec, -1')
        warm_at('a')
        e(f'buffer_store_dwordx2 {v(KMT, 2)}, {v(V_L8)}, {s(S_WS, 4)}, {s(S_VMO)} offen {ostfl}')
        if 'nomb2' not in dbg:
            e(f'buffer_store_dword {v(V_M1)}, {v(V_MBST)}, {s(S_WS, 4)}, {s(S_MBR2)} offen sc1')
        if segsig is not None and sigat == 'a':
            seg_signal()
        pool.free(KMT, 2)
        st['reserve'] = 99
        SM = pool.must(8, 8)
        ZQ = SM
        ZV = SM + 4
        kxb, sbuf = {}, {}

        def kx_read(f_, rsv=0):
            def g_():
                b = pool.alloc(4, reserve=rsv)
                if b is None:
                    return
                kxb[f_] = b
                e(f'ds_read_b128 {v(b, 4)}, {v(V_LANE16)} offset:{L_KX + f_ * 1024}', tag=('kx', f_))
            return g_

        def qm_read(kind, uu):
            def g_():
                b = sbuf[(kind, uu)] = pool.must(4)
                base = 0 if kind == 'q' else 2048
                for m in range(2):
                    e(f'ds_read_b64_tr_b16 {v(b + 2 * m, 2)}, {v(V_QKR)} offset:{base + uu * 512 + m * 256}', tag=('si', kind, uu))
            return g_

        def v_load():
            tl(1)
            e(f'buffer_load_dwordx2 {v(ZV, 2)}, {v(V_L8)}, {s(S_WS, 4)}, {s(S_VB)} offen sc1', tag='vm')
            warm_at('v')
        run(mf[wat:wat2], [], 0)
        warm_at('a2')
        run(mf[wat2:NQE - 4], [], 0)
        run(mf[NQE - 4:NQE], [kx_read(0), kx_read(4), kx_read(1), kx_read(5)], 1)
        late = mf[NQE:40]
        vxl = []
        qf = fold(ACC, ZQ) + fold(ACC + 4, ZQ + 1) + [
            lambda: e(f'ds_write2st64_b32 {v(V_QKW)}, {v(ZQ)}, {v(ZQ + 1)} offset0:0 offset1:1', tag='qw')]
        kf = fold(ACC + 8, ZQ + 2) + fold(ACC + 12, ZQ + 3) + [
            lambda: e(f'ds_write2st64_b32 {v(V_QKW)}, {v(ZQ + 2)}, {v(ZQ + 3)} offset0:8 offset1:9', tag='kw')]
        n1 = min(len(late), 1)
        n2 = min(len(late), 3)
        n3 = min(len(late), 6)
        run(late[:n1], vxl, 2)
        run(late[n1:n2], qf, 3)
        run(late[n2:n3], [], 1)
        stamp()
        e.wait_lg('qw')
        e('s_barrier')
        pool.free(ACC, 8)
        SX = ACC
        claim(SX, 8)
        qm_read('q', 0)()
        run(late[n3:], [qm_read('q', uu) for uu in range(1, 4)], 1)
        stamp()

        def sx(uu, ti):
            def f():
                f_ = uu + 4 * ti
                if f_ not in kxb:
                    kx_read(f_)()
                e.wait_lg(('si', 'q', uu))
                e.wait_lg(('kx', f_))
                cin = '0' if uu == 0 else v(SX + 4 * ti, 4)
                e(f'v_mfma_f32_16x16x32_bf16 {v(SX + 4 * ti, 4)}, {v(kxb[f_], 4)}, {v(sbuf[("q", uu)], 4)}, {cin}')
                pool.free(kxb[f_], 4)
            return f
        sxl = [sx(uu, ti) for uu in range(4) for ti in range(2)]
        run(sxl[:2], [], 0)
        run([], kf, 0)
        for f_ in (2, 6, 3, 7):
            kx_read(f_)()
        run(sxl[2:4], [], 0)
        if v_at == 0:
            v_load()
        e.wait_lg('kw')
        e('s_barrier')
        e(f's_cmp_eq_u32 {s(S_STEP)}, {nsteps - 1}')
        e(f's_cbranch_scc1 {name}_fin')
        pool.free(ACC + 8, 8)
        C0 = ACC + 8
        claim(C0, 4)
        qm_read('m', 0)()
        run(sxl[4:], [qm_read('m', uu) for uu in range(1, 4)], 1)
        if v_at == 1:
            v_load()
        M = SM
        for uu in range(4):
            e.wait_lg(('si', 'm', uu))
            cin = '0' if uu == 0 else v(C0, 4)
            e(f'v_mfma_f32_16x16x32_bf16 {v(C0, 4)}, {v(sbuf[("m", uu)], 4)}, {v(sbuf[("q", uu)], 4)}, {cin}')
            pool.free(sbuf[('m', uu)], 4)
            pool.free(sbuf[('q', uu)], 4)
        P = pool.must(4)
        OA = pool.must(12)
        if v_at == 2:
            v_load()
        e(f'v_max3_f32 {v(M)}, {v(SX)}, {v(SX + 1)}, {v(SX + 2)}')
        e(f'v_max3_f32 {v(M + 1)}, {v(SX + 3)}, {v(SX + 4)}, {v(SX + 5)}')
        e(f'v_max3_f32 {v(M)}, {v(M)}, {v(SX + 6)}, {v(SX + 7)}')
        stamp()
        OACC = [pool.must(8) for _ in range(noa)]
        zl = [(lambda b=b, j=j: e(f'v_mov_b64 {v(b + j, 2)}, 0')) for b in OACC for j in range(0, 8, 2)]

        def z(n=1):
            for _ in range(n):
                if zl:
                    zl.pop(0)()
        z(2)
        e(f'v_cndmask_b32 {v(C0)}, {v(C0 + 2)}, {v(C0)}, {s(S_MASKLO, 2)}')
        e(f'v_cndmask_b32 {v(C0 + 1)}, {v(C0 + 3)}, {v(C0 + 1)}, {s(S_MASKLO, 2)}')
        e(f'v_max3_f32 {v(M + 1)}, {v(M + 1)}, {v(C0)}, {v(C0 + 1)}')
        e(f'v_max_f32 {v(M)}, {v(M)}, {v(M + 1)}')
        e(f'v_max_f32 {v(M + 1)}, {v(M)}, {v(M + 1)}')
        z(2)
        e(f'v_permlane32_swap_b32 {v(M)}, {v(M + 1)}')
        e(f'v_max_f32 {v(M + 2)}, {v(M)}, {v(M + 1)}')
        e(f'v_max_f32 {v(M + 1)}, {v(M)}, {v(M + 1)}')
        z(2)
        e(f'v_permlane16_swap_b32 {v(M + 2)}, {v(M + 1)}')
        e(f'v_max_f32 {v(M)}, {v(M + 2)}, {v(M + 1)}')
        e(f'v_mul_f32 {v(M)}, {s(S_C1)}, {v(M)}')
        if v_at == 3:
            v_load()
        for j in range(0, 10, 2):
            e(f'v_pk_fma_f32 {v(SX + j, 2)}, {v(SX + j, 2)}, {s(S_C1, 2)}, {v(M, 2)} op_sel_hi:[1,1,0] neg_lo:[0,0,1] neg_hi:[0,0,1]')
        for j in range(8):
            e(f'v_exp_f32 {v(SX + j)}, {v(SX + j)}')
        for j in range(4):
            e(f'v_cvt_pk_bf16_f32 {v(P + j)}, {v(SX + 2 * j)}, {v(SX + 2 * j + 1)}')
        e.wait_vm('vx')
        e(f'v_exp_f32 {v(C0)}, {v(C0)}')
        e(f'v_mfma_f32_16x16x32_bf16 {v(OA + 8, 4)}, {v(V_ONES, 4)}, {v(P, 4)}, 0')
        e(f'v_exp_f32 {v(C0 + 1)}, {v(C0 + 1)}')
        e(f'v_mfma_f32_16x16x32_bf16 {v(OA, 4)}, {v(VX, 4)}, {v(P, 4)}, 0')
        e(f'v_cvt_pk_bf16_f32 {v(V_PM)}, {v(C0)}, {v(C0 + 1)}')
        e(f'v_cvt_pk_bf16_f32 {v(V_PM + 3)}, {v(C0)}, {v(C0 + 1)}')
        e(f'v_mfma_f32_16x16x32_bf16 {v(OA + 4, 4)}, {v(VX + 4, 4)}, {v(P, 4)}, 0')
        z(2)
        e(f'v_mfma_f32_16x16x16_bf16 {v(OA + 8, 4)}, {v(V_ONES, 2)}, {v(V_PM, 2)}, {v(OA + 8, 4)}')
        z(99)
        if 'nov' not in dbg:
            e.wait_vm('vm')
            e(f'v_cmp_eq_u32 vcc, -1, {v(ZV)}')
            e(f's_cbranch_vccnz {L}_fixv')
            e.label(f'{L}_pv2')
        e(f'v_mfma_f32_16x16x16_bf16 {v(OA, 4)}, {v(ZV, 2)}, {v(V_PM, 2)}, {v(OA, 4)}')
        e(f'v_mfma_f32_16x16x16_bf16 {v(OA + 4, 4)}, {v(ZV, 2)}, {v(V_PM + 2, 2)}, {v(OA + 4, 4)}')
        if hup:
            e(f'v_add_u32_e64 {v(SX)}, {s(S_STEP)}, 1')
            e(f'buffer_store_dword {v(SX)}, {v(V_MBST)}, {s(S_WS, 4)}, {s(S_PING)} offen sc1')
        pool.free(SX, 8)
        pool.free(VX, 8)
        pool.free(C0, 4)
        OF = pool.must(8)
        warm_at('b')
        st['reserve'] = 0
        pump_lds(40)
        e(f'v_rcp_f32 {v(M)}, {v(OA + 8)}')
        for j in range(0, 8, 2):
            e(f'v_pk_mul_f32 {v(OA + j, 2)}, {v(OA + j, 2)}, {v(M, 2)} op_sel_hi:[1,0]')
        for j in range(4):
            e(f'v_cvt_pk_bf16_f32 {v(P + j)}, {v(OA + 2 * j)}, {v(OA + 2 * j + 1)}')
        e(f'ds_write_b128 {v(V_OW)}, {v(P, 4)}', tag='ow')
        pool.free(OA, 12)
        sc_items = [f's_add_u32 {s(S_VXO)}, {s(S_VXO)}, {32 * 8192}',
                    f's_lshl_b32 {s(S_T0)}, {s(S_W)}, 9', f's_add_u32 {s(S_VMO)}, {s(S_KMO)}, {s(S_T0)}',
                    f's_add_u32 {s(S_MSL)}, {s(S_MSL)}, {MB_STRIDE}', f's_and_b32 {s(S_MSL)}, {s(S_MSL)}, {3 * MB_STRIDE}',
                    f's_add_u32 {s(S_MBP)}, {s(S_MSL)}, {s(S_MBB)}',
                    f's_lshl_b32 {s(S_T0)}, {s(S_MSL)}, 3', f's_add_u32 {s(S_VB)}, {s(S_VB0)}, {s(S_T0)}']
        for x in sc_items:
            e(x)
        e.wait_lg('ow')
        e('s_barrier')
        pool.free(P, 4)
        e(f'ds_read_b128 {v(OF, 4)}, {v(V_OR)}', tag='of0')
        e(f'ds_read_b128 {v(OF + 4, 4)}, {v(V_OR)} offset:1024', tag='of1')
        pump_lds(40)
        for f in kx_items():
            f()
        warm_at('c')
        if segsig is not None and sigat == 'c':
            seg_signal()
        e(f's_add_u32 {s(S_WRM)}, {s(S_WRM)}, {32 * 8192}')
        stamp()
        ZO = [SM, SM + 2, SM + 4]

        def finish(p):
            ac = OACC[p % noa]
            zz = ZO[p % 3]
            it = fold(ac, zz) + fold(ac + 4, zz + 1)
            if p + noa < 5:
                it += [(lambda j=j: e(f'v_mov_b64 {v(ac + j, 2)}, 0')) for j in range(0, 4, 2)]
            it += [lambda: e(f'v_permlane16_swap_b32 {v(zz)}, {v(zz + 1)}'),
                   lambda: e(f'buffer_store_dwordx2 {v(zz, 2)}, {v(V_PBST)}, {s(S_WS, 4)}, {s(S_PBST + p)} offen {sc}', tag='pst')]
            if p + noa < 5:
                it += [(lambda j=j: e(f'v_mov_b64 {v(ac + j, 2)}, 0')) for j in range(4, 8, 2)]
            else:
                it += [lambda: pool.free(ac, 8)]
            return it
        for p in range(5):
            ac = OACC[p % noa]
            mo = []
            for t in range(2):
                for tau in range(2):
                    def f(t=t, tau=tau):
                        if p == 0 and tau == 0:
                            e.wait_lg(f'of{t}')
                        smf(ac + 4 * tau, OF + 4 * t, (('o', t, p), tau))
                    mo.append(f)
            side = finish(p - 1) if p >= 1 else []
            run(mo[:1], [], 0)
            run(mo[1:], side, 3)
        for f in finish(4):
            f()
        stamp()
        tl(3)
        pool.free(OF, 8)
        pool.free(SM, 8)
        assert not lds_pending
        claim(ACC, 16)
        for b in PRE:
            claim(b, 8)
        claim(KMT, 2)
        e(f'v_add_u32 {v(KMT)}, {s(S_KXM2)}, {v(V_L8)}')
        e(f'ds_read_b64 {v(KMT, 2)}, {v(KMT)}')
        pre_load()
        for j in range(0, 16, 2):
            e(f'v_mov_b64 {v(ACC + j, 2)}, 0')
        for p in range(5):
            e(f's_xor_b32 {s(S_PBST + p)}, {s(S_PBST + p)}, {PB_STRIDE}')
        e(f's_cmp_ge_u32 {s(S_UNIT)}, 80')
        e(f's_cbranch_scc1 {L}_nored')
        RB = pool.must(16)
        RA = pool.must(4)
        TM = pool.must(2)
        if kdel:
            e.nop(kdel)

        def pb_loads():
            for i in range(4):
                e(f'buffer_load_dwordx4 {v(RB + 4 * i, 4)}, {v(V_LANE16)}, {s(S_WS, 4)}, {s(S_PBLD)} offen offset:{1024 * i} sc1', tag=('pb', i))

        MS = [12, 24, 20, 22]
        if pmask == 'load':
            for i in range(4):
                e(f's_mov_b64 {s(MS[i], 2)}, -1')
        e.label(f'{L}_pollK')
        e.hist = []
        wd()
        if stamps:
            e('s_add_u32 s27, s27, 1')
        if pmask == 'lane':
            pb_loads()
            for i in range(4):
                e(f's_waitcnt vmcnt({3 - i})')
                e(f'v_mfma_f32_16x16x32_bf16 {v(RA, 4)}, {v(V_SEL, 4)}, {v(RB + 4 * i, 4)}, {"0" if i == 0 else v(RA, 4)}')
                if i == 2:
                    e(f'v_max3_u32 {v(TM)}, {v(RB)}, {v(RB + 4)}, {v(RB + 8)}')
            e(f'v_max_u32 {v(TM)}, {v(TM)}, {v(RB + 12)}')
            e(f'v_mov_b32_dpp {v(TM + 1)}, {v(TM)} quad_perm:[0,0,0,0] row_mask:0xf bank_mask:0xf')
            e(f'v_cmp_eq_u32 vcc, -1, {v(TM + 1)}')
            e('s_mov_b64 exec, vcc')
            e(f's_cbranch_execnz {L}_pollK')
            e('s_mov_b64 exec, -1')
        else:
            for i in range(4):
                e(f's_mov_b64 exec, {s(MS[i], 2)}')
                e(f'buffer_load_dwordx4 {v(RB + 4 * i, 4)}, {v(V_LANE16)}, {s(S_WS, 4)}, {s(S_PBLD)} offen offset:{1024 * i} sc1')
            e('s_mov_b64 exec, -1')
            for i in range(4):
                e(f's_waitcnt vmcnt({3 - i})')
                e(f'v_mfma_f32_16x16x32_bf16 {v(RA, 4)}, {v(V_SEL, 4)}, {v(RB + 4 * i, 4)}, {"0" if i == 0 else v(RA, 4)}')
                e(f'v_mov_b32_dpp {v(TM + (i & 1))}, {v(RB + 4 * i)} quad_perm:[0,0,0,0] row_mask:0xf bank_mask:0xf')
                e(f'v_cmp_eq_u32 {s(MS[i], 2)}, -1, {v(TM + (i & 1))}')
            e(f's_or_b64 vcc, {s(MS[0], 2)}, {s(MS[1], 2)}')
            e(f's_or_b64 vcc, vcc, {s(MS[2], 2)}')
            e(f's_or_b64 vcc, vcc, {s(MS[3], 2)}')
            e(f's_cbranch_scc1 {L}_pollK')
        e.vm = []
        e(f'v_permlane32_swap_b32 {v(RA)}, {v(RA + 2)}')
        e(f'v_permlane32_swap_b32 {v(RA + 1)}, {v(RA + 3)}')
        e(f'v_add_f32_dpp {v(RA)}, {v(RA + 2)}, {v(RA)} row_ror:8 row_mask:0xf bank_mask:0xf')
        e(f'v_add_f32_dpp {v(RA + 1)}, {v(RA + 3)}, {v(RA + 1)} row_ror:8 row_mask:0xf bank_mask:0xf')
        e(f'v_cvt_pk_bf16_f32 {v(RA)}, {v(RA)}, {v(RA + 1)}')
        e(f'buffer_store_dword {v(RA)}, {v(V_MBST)}, {s(S_WS, 4)}, {s(S_MBN)} offen {sc}')
        if 'nomb2 ' not in dbg:
            e(f'buffer_store_dword {v(RA)}, {v(V_MBST)}, {s(S_WS, 4)}, {s(S_MBN2)} offen sc1')
        stamp()
        tl(2)
        e(f'buffer_store_dword {v(V_M1)}, {v(V_MBST)}, {s(S_WS, 4)}, {s(S_MBC)} offen {sc}')
        e(f'buffer_store_dword {v(V_M1)}, {v(V_L64)}, {s(S_WS, 4)}, {s(S_PBLD)} offen {sc}')
        e(f's_xor_b32 {s(S_PBLD)}, {s(S_PBLD)}, {PB_STRIDE}')
        e(f's_mov_b32 {s(S_MBC)}, {s(S_MBN)}')
        e(f's_mov_b32 {s(S_MBR2)}, {s(S_MBC2)}')
        e(f's_mov_b32 {s(S_MBC2)}, {s(S_MBN2)}')
        e(f's_add_u32 {s(S_T0)}, {s(S_MSL)}, {MB_STRIDE}')
        e(f's_and_b32 {s(S_T0)}, {s(S_T0)}, {3 * MB_STRIDE}')
        e(f's_add_u32 {s(S_MBN)}, {s(S_MBL)}, {s(S_T0)}')
        e(f's_lshl_b32 {s(S_T0)}, {s(S_T0)}, 1')
        e(f's_add_u32 {s(S_MBN2)}, {s(S_MBL2)}, {s(S_T0)}')
        e(f's_branch {L}_end')
        e.label(f'{L}_nored')
        if stamps and call_i[0] - 1 in stsel:
            e(f's_memtime {s(S_STAMP + 2 * (stamp_i[0] - 1), 2)}')
        if mega:
            step_signal(L)
        if gdel:
            e(f's_sleep {gdel}')
        e.label(f'{L}_end')
        e.hist = []
        e(f's_add_u32 {s(S_KMO)}, {s(S_KMO)}, {32 * 4096}')
        e(f's_add_u32 {s(S_STEP)}, {s(S_STEP)}, 1')
        tl_out(0, RB)
        e('s_waitcnt lgkmcnt(0)')
        for b, n in ((RB, 16), (RA, 4), (TM, 2)):
            pool.free(b, n)
        if stamps:
            stamp()
            stamp_acc(stamp_i[0])
        e(f's_branch {L}')
        if 'nov' in dbg:
            return
        e.label(f'{L}_fixv')
        wd()
        if stamps:
            e('s_add_u32 s26, s26, 63')
        e(f'buffer_load_dwordx2 {v(ZV, 2)}, {v(V_L8)}, {s(S_WS, 4)}, {s(S_VB)} offen sc1')
        e('s_waitcnt vmcnt(0)')
        e(f'v_cmp_eq_u32 vcc, -1, {v(ZV)}')
        e(f's_cbranch_vccnz {L}_fixv')
        e(f's_branch {L}_pv2')

    body('', f'{name}_fast')
    if slow:
        body('sc1', f'{name}_slow')
    e.label(f'{name}_fin')
    e.flush_hazards(16)
    e('s_waitcnt vmcnt(0) lgkmcnt(0)')
    if stamps:
        stamp_out()
    e('s_barrier')
    e(f's_cmp_lg_u32 {s(S_W)}, 1')
    e(f's_cbranch_scc1 {name}_exit')
    if segsig is not None:
        seg_signal()
    k_out(32)
    e('s_waitcnt vmcnt(0)')
    if segsig is not None:
        seg_signal()
    elif mega:
        e(f's_mov_b32 {s(S_T2)}, 15')
        signal_block(V_WT)
    if 'rt' in dbg:
        e('s_memrealtime s[100:101]')
        e('s_waitcnt lgkmcnt(0)')
        e('v_mov_b32 v40, s96')
        e('v_mov_b32 v41, s98')
        e('v_mov_b32 v42, s100')
        e('v_mov_b32 v43, s94')
        e('v_mov_b32 v44, 0')
        e(f's_lshl_b32 {s(S_T0)}, {s(S_H)}, 6')
        e(f's_add_u32 {s(S_T0)}, {s(S_T0)}, 0x0F800000')
        e(f'buffer_store_dwordx4 v[40:43], v44, {s(S_WS, 4)}, {s(S_T0)} offen')
    if 'tot' in dbg:
        e('s_memtime s[98:99]')
        e('s_waitcnt lgkmcnt(0)')
        e('s_sub_u32 s98, s98, s96')
        e('v_mov_b32 v40, s98')
        e('v_mov_b32 v42, 0')
        e(f's_lshl_b32 {s(S_T0)}, {s(S_H)}, 6')
        e(f's_add_u32 {s(S_T0)}, {s(S_T0)}, 0x0F800000')
        e(f'buffer_store_dword v40, v42, {s(S_WS, 4)}, {s(S_T0)} offen')
    e.label(f'{name}_exit')
    e('s_endpgm')
    print(f'; chain10: n_reg={n_reg} n_lds={n_lds} pool peak={pool.peak} of {pool_end - NPERS}')

    H = f'{name}_helper'
    e.label(H)
    e.hist, e.vm, e.lg = [], [], []
    hunits = [('v', t) for t in range(10)]
    hplace = {}
    r = 96
    for un in hunits:
        for tau in range(2):
            hplace[(un, tau)] = ('reg', r)
            r += 8
    e(f'v_mov_b32 {v(V_M2)}, -1')
    e(f'v_mov_b32 {v(V_M2 + 1)}, -1')

    def helper_init():
        e(f's_cmp_lg_u32 {s(S_W)}, 0')
        e(f's_cbranch_scc1 {H}_nocal')
        e(f's_lshl_b32 {s(S_T0)}, {s(S_H)}, 7')
        e(f's_add_u32 {s(S_T0)}, {s(S_T0)}, {s(S_NR)}')
        e(f's_add_u32 s82, {s(S_T0)}, {NR_CAL}')
        e(f's_add_u32 s83, {s(S_T0)}, {NR_CAL + 8192}')
        e('s_mov_b32 s80, -1')
        e('s_mov_b32 s81, -1')
        e(f's_mov_b32 {s(S_T0)}, {ncal}')
        e.label(f'{H}_cal')
        for hf in range(2):
            e('s_memtime s[76:77]')
            e('s_waitcnt lgkmcnt(0)')
            e(f'buffer_store_dword {v(V_M1)}, {v(V_MBST)}, {s(S_WS, 4)}, {s(82 + hf)} offen sc1')
            e('s_waitcnt vmcnt(0)')
            e('s_memtime s[78:79]')
            e('s_waitcnt lgkmcnt(0)')
            e('s_sub_u32 s78, s78, s76')
            e(f's_min_u32 {s(80 + hf)}, {s(80 + hf)}, s78')
        e(f's_sub_u32 {s(S_T0)}, {s(S_T0)}, 1')
        e(f's_cmp_lg_u32 {s(S_T0)}, 0')
        e(f's_cbranch_scc1 {H}_cal')
        e('s_cmp_lt_u32 s81, s80')
        e('s_cselect_b32 s80, 0x10001, 1')
        e.label(f'{H}_nocal')
        e('s_barrier')
        for sl_ in range(4):
            for hf in range(2):
                e(f's_add_u32 {s(S_T0)}, {s(S_VB0)}, {sl_ * 131072 + hf * 8192}')
                e(f's_add_u32 {s(S_T0)}, {s(S_T0)}, {s(S_NR)}')
                e(f'buffer_store_dwordx2 {v(V_M2, 2)}, {v(V_L8)}, {s(S_WS, 4)}, {s(S_T0)} offen sc1')
        init_done(f'{H}_noib', 's80')
    load_weights(hunits, hplace, VT_QKV, 0, helper_init)
    e('s_barrier')
    init_wait(f'{H}_ibw', 32)
    if 'nohelp' in dbg:
        e('s_endpgm')
    e(f's_lshl_b32 {s(S_MDST)}, {s(S_W)}, 10')
    e(f's_add_u32 {s(S_MBB)}, {s(S_MDST)}, {s(S_NR)}')
    e(f's_mov_b32 {s(S_MBP)}, {s(S_MBB)}')
    e(f's_add_u32 {s(S_MBP + 1)}, {s(S_MBB)}, 4096')
    e(f's_cmp_lt_u32 {s(S_W)}, 2')
    e(f's_cselect_b32 {s(S_M9D)}, 2, 1')
    e(f's_cselect_b32 {s(S_MBL2)}, 4, 1')
    e(f's_lshl_b32 {s(S_M9D)}, {s(S_M9D)}, 12')
    e(f's_lshl_b32 {s(S_MBL2)}, {s(S_MBL2)}, 12')
    e(f's_add_u32 {s(S_MBP + 2)}, {s(S_MBB)}, {s(S_MBL2)}')
    e(f's_add_u32 {s(S_PING)}, {s(S_NR)}, {NR_PING}')
    e(f's_mov_b32 {s(S_MBR2)}, 0x40000000')
    GW, GW2 = V_OR, V_KXG
    e(f'v_add_u32 {v(GW)}, {s(S_MDST)}, {v(V_LANE16)}')
    e(f'v_add_u32 {v(GW2)}, {s(S_M9D)}, {v(GW)}')
    G0, GM, VA, AFH, ZH = 32, 44, 48, 56, 46
    S_HD, S_HP = 64, 60
    V_HF = V_QKW
    e(f's_mov_b32 {s(S_HD)}, {hd0}')
    if segsig is not None:
        e(f's_cmp_eq_u32 {s(S_W)}, 3')
        e(f's_mov_b32 {s(S_SIG)}, {segsig - 128}')
        e(f's_cselect_b32 {s(S_SIG)}, {s(S_SIG)}, 0x40000000')
    V_PG = V_QKR
    e(f'v_and_b32 {v(V_PG)}, 0x1f0, {v(V_LANE16)}')
    e(f'v_lshlrev_b32 {v(V_PG)}, 3, {v(V_PG)}')
    e(f's_lshl_b32 {s(S_T0)}, {s(S_W)}, 2')
    e(f's_add_u32 {s(S_T0)}, {s(S_T0)}, {L_MQ}')
    e(f'v_mov_b32 {v(V_HF)}, {s(S_T0)}')
    e(f'v_mov_b32 {v(V_HF + 1)}, {L_MQ}')
    for j in range(0, 8, 2):
        e(f'v_mov_b64 {v(VA + j, 2)}, 0')
    if hstamps:
        stamp_init()
    hs = [0]

    def hstamp():
        if hstamps:
            e(f's_memtime {s(S_STAMP + 2 * hs[0], 2)}')
            hs[0] += 1
    L = f'{H}_loop'
    e.label(L)
    e.hist, e.vm, e.lg = [], [], []
    hstamp()
    if hup:
        e(f's_mov_b32 {s(S_T0)}, {s(S_HD)}')
        e(f's_mov_b32 {s(S_HP)}, 0')
        e.label(f'{L}_dly')
        e(f's_sub_u32 {s(S_T0)}, {s(S_T0)}, 1')
        e(f's_cbranch_scc0 {L}_dly')
    e.label(f'{L}_poll')
    wd()
    e(f's_add_u32 {s(S_HP)}, {s(S_HP)}, 1')
    if hstamps:
        e('s_add_u32 s27, s27, 1')
    for i in range(3):
        e(f'buffer_load_dwordx4 {v(G0 + 4 * i, 4)}, {v(V_LANE16)}, {s(S_WS, 4)}, {s(S_MBP + i)} offen sc1')
    e('s_waitcnt vmcnt(0)')
    e(f'v_max3_u32 {v(GM)}, {v(G0)}, {v(G0 + 4)}, {v(G0 + 8)}')
    e(f'v_cmp_eq_u32 vcc, -1, {v(GM)}')
    e('s_mov_b64 exec, vcc')
    e(f's_cbranch_execnz {L}_poll')
    e('s_mov_b64 exec, -1')
    e(f'ds_write_b128 {v(GW)}, {v(G0, 4)}')
    e(f'ds_write_b128 {v(GW)}, {v(G0 + 4, 4)} offset:4096')
    e(f'ds_write_b128 {v(GW2)}, {v(G0 + 8, 4)}')
    if hup:
        e(f'v_mov_b32 {v(GM)}, {s(S_HP)}')
        e(f'ds_write_b32 {v(V_HF)}, {v(GM)}')
    e('s_waitcnt lgkmcnt(0)')
    e('s_barrier')
    e.vm, e.lg = [], []
    hstamp()
    tl(0)
    for k in range(7):
        e(f'ds_read_b64_tr_b16 {v(AFH + 4 * k, 2)}, {v(V_AF)} offset:{1024 * k}', tag=('af', k))
        e(f'ds_read_b64_tr_b16 {v(AFH + 4 * k + 2, 2)}, {v(V_AF)} offset:{1024 * k + 512}', tag=('af', k))
    for t in range(10):
        e.wait_lg(('af', t))
        for tau in range(2):
            e(f'v_smfmac_f32_16x16x64_bf16 {v(VA + 4 * tau, 4)}, {v(AFH + 4 * t, 4)}, {u(hplace[(("v", t), tau)][1], 8)}, {v(V_IDX)}')
        if t < 3:
            k = t + 7
            e(f'ds_read_b64_tr_b16 {v(AFH + 4 * k, 2)}, {v(V_AF)} offset:{1024 * k}', tag=('af', k))
            e(f'ds_read_b64_tr_b16 {v(AFH + 4 * k + 2, 2)}, {v(V_AF)} offset:{1024 * k + 512}', tag=('af', k))
    for f in fold(VA, ZH) + fold(VA + 4, ZH + 1):
        f()
    e(f'buffer_store_dwordx2 {v(ZH, 2)}, {v(V_L8)}, {s(S_WS, 4)}, {s(S_VB)} offen sc1')
    e(f'buffer_store_dwordx2 {v(ZH, 2)}, {v(V_L8)}, {s(S_WS, 4)}, {s(S_VMO)} offen offset:2048 sc1')
    e(f'buffer_store_dwordx2 {v(V_M2, 2)}, {v(V_L8)}, {s(S_WS, 4)}, {s(S_MBR2)} offen sc1')
    e(f's_mov_b32 {s(S_MBR2)}, {s(S_VB)}')
    hstamp()
    tl(1)
    if hup:
        e(f'ds_read_b128 {v(G0, 4)}, {v(V_HF + 1)}')
        e('s_waitcnt lgkmcnt(0)')
        e(f'v_max3_u32 {v(G0)}, {v(G0)}, {v(G0 + 1)}, {v(G0 + 2)}')
        e(f'v_max_u32 {v(G0)}, {v(G0)}, {v(G0 + 3)}')
        e(f'v_readfirstlane_b32 {s(S_HP)}, {v(G0)}')
        e(f's_sub_u32 {s(S_T0)}, {s(S_HP)}, 1')
        e(f's_min_u32 {s(S_T0)}, {s(S_T0)}, 1')
        e(f's_mul_i32 {s(S_T0)}, {s(S_T0)}, {hup}')
        e(f's_add_u32 {s(S_HD)}, {s(S_HD)}, {s(S_T0)}')
        e(f's_sub_u32 {s(S_T1)}, {s(S_HD)}, {hdn}')
        e(f's_cselect_b32 {s(S_T1)}, {s(S_HD)}, {s(S_T1)}')
        e(f's_cmp_eq_u32 {s(S_HP)}, 1')
        e(f's_cselect_b32 {s(S_HD)}, {s(S_T1)}, {s(S_HD)}')
        e(f's_min_u32 {s(S_HD)}, {s(S_HD)}, 400')
        if hstamps:
            e(f's_mul_i32 s26, {s(S_HD)}, 63')
        if 'tl' in dbg:
            e(f's_lshl_b32 s88, {s(S_HP)}, 16')
            e(f's_or_b32 s88, s88, {s(S_HD)}')
    e('s_barrier')
    if mega:
        step_signal(L)
    if segsig is not None:
        seg_signal()
    e(f's_cmp_eq_u32 {s(S_STEP)}, {nsteps - 1}')
    e(f's_cbranch_scc1 {H}_fin')
    for j in range(0, 8, 2):
        e(f'v_mov_b64 {v(VA + j, 2)}, 0')
    if hup:
        e.label(f'{L}_ping')
        wd()
        e(f'buffer_load_dword {v(GM)}, {v(V_PG)}, {s(S_WS, 4)}, {s(S_PING)} offen sc1')
        e('s_waitcnt vmcnt(0)')
        e(f'v_cmp_ge_u32 vcc, {s(S_STEP)}, {v(GM)}')
        e(f's_cbranch_vccnz {L}_ping')
        tl(3)
    e(f's_add_u32 {s(S_STEP)}, {s(S_STEP)}, 1')
    tl_out(1, G0)
    e(f's_add_u32 {s(S_VMO)}, {s(S_VMO)}, {32 * 4096}')
    e(f's_add_u32 {s(S_MSL)}, {s(S_MSL)}, {MB_STRIDE}')
    e(f's_and_b32 {s(S_MSL)}, {s(S_MSL)}, {3 * MB_STRIDE}')
    e(f's_lshl_b32 {s(S_T0)}, {s(S_MSL)}, 1')
    e(f's_add_u32 {s(S_MBP)}, {s(S_MBB)}, {s(S_T0)}')
    e(f's_add_u32 {s(S_MBP + 1)}, {s(S_MBP)}, 4096')
    e(f's_add_u32 {s(S_MBP + 2)}, {s(S_MBP)}, {s(S_MBL2)}')
    e(f's_lshl_b32 {s(S_T0)}, {s(S_MSL)}, 3')
    e(f's_add_u32 {s(S_VB)}, {s(S_VB0)}, {s(S_T0)}')
    if hstamps:
        hstamp()
        stamp_acc(hs[0])
    e(f's_branch {L}')
    e.label(f'{H}_fin')
    e('s_waitcnt vmcnt(0) lgkmcnt(0)')
    if hstamps:
        stamp_out()
    if mega:
        e('s_barrier')
        e(f's_cmp_lg_u32 {s(S_W)}, 3')
        e(f's_cbranch_scc1 {H}_exit')
        if segsig is not None:
            seg_signal()
        else:
            e(f's_mov_b32 {s(S_T2)}, 15')
            signal_block(V_WT)
        e.label(f'{H}_exit')
    e('s_endpgm')


if __name__ == '__main__':
    import argparse
    ap = argparse.ArgumentParser()
    ap.add_argument('--out', default='chain_test.s')
    ap.add_argument('--stamps', action='store_true')
    ap.add_argument('--kw', default='')
    args = ap.parse_args()
    em = Em()
    kw = eval('dict(' + args.kw + ')')
    gen_chain(em, stamps=args.stamps, **kw)
    hdr = '; @launch kernel=chain_kernel grid=(256,1,1) block=(256,1,1) lds=163840\n'
    hdr += '.amdgcn_target "amdgcn-amd-amdhsa--gfx950"\n.text\n.globl chain_kernel\n'
    open(args.out, 'w').write(hdr + em.text() + kd('chain_kernel', 512, 256))
```

```python
from emit import *
from layout import *
from gen_chain import Pool, f32bits, kd

S_WS = 4
S_DBG = 8
S_WQ = 12
S_WK = 16
S_WV = 20
S_WO = 24
S_H = 28
S_W = 29
S_STEP = 30
S_T0, S_T1, S_T2, S_T3 = 31, 32, 33, 34
S_MODE = 35
S_UNIT = 36
S_XCC = 37
S_C1 = 38
S_MASKLO = 40
S_LDSW = 42
S_SH13 = 43
S_MBP = 44
S_MSL = 48
S_M9D = 49
S_PBST = 50
S_MBL = 55
S_MBC = 56
S_MBN = 57
S_KXW = 58
S_KXM = 59
S_PBLD = 60
S_MDST = 61
S_VMO = 62
S_NR = 63
S_VB0, S_VB, S_MBL2, S_GOF2 = 66, 67, 68, 69
S_MBE0, S_MBD0, S_MBD2 = 73, 74, 47
S_GOF = 64
S_MBR2 = 65
S_VXO = 70
S_KMO = 71
S_WRM = 72
S_MBN2 = 75
S_STAMP = 76
S_SIG = 15
S_KVOK = 16

V_LANE16, V_IDX, V_AF, V_QKR, V_LDSW, V_QKW, V_OW, V_OR = range(8)
V_PBST, V_KXG, V_MBST, V_L8, V_WA, V_WT, V_M1, V_L64 = range(8, 16)
V_SEL = 16
V_ONES = 20
V_PM = 24
V_M2 = 26
NPERS = 28

NR_PING, NR_CAL, NR_VB = 8 * 16384, 9 * 16384, 16 * 16384
D_NEAR = 144
D_INIT, D_SLOW = 132, 136

_fj = [0]


def far_jump(e, label, sp):
    _fj[0] += 1
    here = f'Lfj{_fj[0]}'
    e(f's_getpc_b64 {s(sp, 2)}')
    e.label(here)
    e.raw(f'    s_add_u32 {s(sp)}, {s(sp)}, {label}-{here}')
    e.raw(f'    s_addc_u32 {s(sp + 1)}, {s(sp + 1)}, 0')
    e(f's_setpc_b64 {s(sp, 2)}')


def gen_chain(em, name='chain_kernel', mega=None, nmoda=0, pool_end=96, nsteps=64, stamps=False, stsel=(0, 1, 2, 3, 4, 5, 6, 7, 8, 9),
              hstamps=False, la_lds=5, afl=7, nvl=2, npre=4, noa=2, v_at=1, gdel=0, kdel=0, adel=3, nkl=4, wat=2, wat2=20, defer=True,
              warm=(('a', 0), ('a2', 1)), ncal=6, segsig=None, slow=True, early_poll=0,
              lds_un=(0, 1, 5, -9, -6, -3), dbg='', ldfl='nt'):
    L_MMEM = 0
    L_MQ = 10240
    L_MK = L_MQ + 2048
    L_O = L_MK + 2048
    L_KX = L_O + 2048
    L_VX = L_KX + 8192
    L_WB = L_VX + 8192
    NRING = 8
    WL = NRING * 4096
    assert L_WB + 4 * WL <= 163840
    e = em
    LN = 28
    NH1 = 10 - nvl

    ounits = [('o', t, p) for p in range(5) for t in range(2)]
    uorder = [(m, t) for t in range(10 - nkl) for m in 'qk'] + [(m, t) for m in 'qk' for t in range(10 - nkl, 10)] + [('v', t) for t in range(NH1, 10)]
    NQE = 40 - 2 * nkl
    NA = 2 * len(uorder)
    uorder += ounits
    order = [(un, tau) for un in uorder for tau in range(2)]
    n_reg = (512 - pool_end) // 8
    n_lds = len(order) - n_reg
    assert n_lds % 2 == 0 and n_lds <= 16, n_lds
    lun = sorted(x % len(uorder) for x in lds_un[:n_lds // 2])
    lun = [uorder[i] for i in lun]
    units = [un for un in uorder if un not in lun] + lun
    place = {}
    r = pool_end
    for i, un in enumerate(units):
        for tau in range(2):
            if un in lun:
                place[(un, tau)] = ('lds', 2 * (i % NRING) + tau)
            else:
                place[(un, tau)] = ('reg', r)
                r += 8
    assert r == 512

    em.raw('.p2align 8')
    em.raw(f'.type {name},@function')
    em.label(name)
    e('s_cmp_lt_u32 s2, 256')
    e(f's_cbranch_scc1 {name}_go')
    e('s_endpgm')
    e.label(f'{name}_go')
    if 'rt' in dbg:
        e('s_memrealtime s[96:97]')
    e('s_load_dwordx4 s[48:51], s[0:1], 16')
    e('s_load_dwordx4 s[52:55], s[0:1], 32')
    e('s_load_dwordx4 s[56:59], s[0:1], 112')
    e(f's_getreg_b32 {s(S_XCC)}, hwreg(HW_REG_XCC_ID)')
    e(f's_and_b32 {s(S_XCC)}, {s(S_XCC)}, 15')
    e('v_lshrrev_b32 v20, 6, v0')
    e('v_and_b32 v16, 63, v0')
    e(f'v_readfirstlane_b32 {s(S_W)}, v20')
    e('s_waitcnt lgkmcnt(0)')

    def srd(d, src, size):
        e(f's_mov_b32 {s(d)}, {s(src)}')
        e(f's_and_b32 {s(d + 1)}, {s(src + 1)}, 0xffff')
        e(f's_mov_b32 {s(d + 2)}, {size}')
        e(f's_mov_b32 {s(d + 3)}, 0x20000')
    srd(S_WQ, 48, 5242880)
    srd(S_WK, 50, 5242880)
    srd(S_WV, 52, 5242880)
    srd(S_WO, 54, 5242880)
    srd(S_DBG, 56, 256)
    srd(S_WS, 58, WS_SIZE)

    def other(lab):
        if mega:
            far_jump(e, lab, 44)
        else:
            e('s_endpgm')
    e(f's_lshl_b32 {s(S_T3)}, {s(S_XCC)}, 2')
    e(f's_cmp_lt_u32 {s(S_XCC)}, 2')
    e(f's_cbranch_scc1 {name}_take')
    other(mega)
    e.label(f'{name}_take')
    e(f's_getreg_b32 {s(S_XCC)}, hwreg(HW_REG_XCC_ID)')
    e(f's_and_b32 {s(S_XCC)}, {s(S_XCC)}, 15')
    e(f's_cmp_lg_u32 {s(S_W)}, 0')
    e(f's_cbranch_scc1 {name}_elected')
    e('v_mov_b32 v20, 1')
    e('v_mov_b32 v21, 0')
    e('s_mov_b64 exec, 1')
    e(f'buffer_atomic_add v20, v21, {s(S_DBG, 4)}, {s(S_T3)} offen sc0')
    e.wait_vm()
    e('ds_write_b32 v21, v20')
    e('s_mov_b64 exec, -1')
    e.wait_lg()
    e.label(f'{name}_elected')
    e('s_barrier')
    e('v_mov_b32 v21, 0')
    e('ds_read_b32 v20, v21')
    e.wait_lg()
    e(f'v_readfirstlane_b32 {s(S_H)}, v20')
    e('s_barrier')
    e(f's_cmp_lt_u32 {s(S_H)}, 32')
    e(f's_cbranch_scc1 {name}_hasrole')
    other(mega)
    e.label(f'{name}_hasrole')
    e(f's_mov_b32 {s(S_MODE)}, {s(S_T3)}')
    e(f'v_mov_b32 {v(LN)}, v16')
    e(f's_add_u32 {s(S_T0)}, {s(S_XCC)}, 0')
    e(f's_cmp_lg_u32 {s(S_T3)}, 0')
    e(f's_cselect_b32 {s(S_T0)}, 0, {s(S_T0)}')
    e(f's_cmp_eq_u32 {s(S_T0)}, 0')
    e(f's_cbranch_scc1 {name}_native')
    e('v_mov_b32 v20, 1')
    e(f'v_mov_b32 v21, {D_SLOW}')
    e(f'buffer_store_dword v20, v21, {s(S_DBG, 4)}, 0 offen sc1')
    e.wait_vm()
    e.label(f'{name}_native')

    g, c, rp, cp, g1, g2, sw = 16, 17, 18, 19, 20, 21, 22
    T = 23
    e(f'v_lshrrev_b32 {v(g)}, 4, {v(LN)}')
    e(f'v_and_b32 {v(c)}, 15, {v(LN)}')
    e(f'v_lshrrev_b32 {v(rp)}, 2, {v(c)}')
    e(f'v_and_b32 {v(cp)}, 3, {v(LN)}')
    e(f'v_and_b32 {v(g1)}, 1, {v(g)}')
    e(f'v_lshrrev_b32 {v(g2)}, 1, {v(g)}')
    e(f'v_lshl_add_u32 {v(sw)}, {v(g1)}, 1, {v(g2)}')
    e(f'v_lshlrev_b32 {v(V_LANE16)}, 4, {v(LN)}')
    e(f'v_lshlrev_b32 {v(V_L64)}, 6, {v(LN)}')
    e(f'v_lshlrev_b32 {v(V_WA)}, 7, {v(c)}')
    e(f'v_mov_b32 {v(V_M1)}, -1')
    e(f'v_and_b32 {v(T)}, 2, {v(LN)}')
    e(f'v_cmp_ne_u32 vcc, 0, {v(T)}')
    e(f'v_mov_b32 {v(T + 1)}, 0x4444')
    e(f'v_mov_b32 {v(T + 2)}, 0xeeee')
    e(f'v_cndmask_b32 {v(V_IDX)}, {v(T + 1)}, {v(T + 2)}, vcc')
    e(f'v_lshl_add_u32 {v(T)}, {v(g)}, 2, {v(rp)}')
    e(f'v_lshlrev_b32 {v(T + 1)}, 3, {v(cp)}')
    e(f'v_lshl_add_u32 {v(V_AF)}, {v(T)}, 5, {v(T + 1)}')
    e(f'v_and_b32 {v(T + 2)}, 1, {v(cp)}')
    e(f'v_lshlrev_b32 {v(T + 2)}, 3, {v(T + 2)}')
    e(f'v_lshl_add_u32 {v(V_QKR)}, {v(T)}, 4, {v(T + 2)}')
    e(f'v_add_u32 {v(V_QKR)}, {L_MQ}, {v(V_QKR)}')
    e(f's_lshl_b32 {s(S_T0)}, {s(S_W)}, 5')
    e(f'v_add_u32 {v(T)}, {s(S_T0)}, {v(c)}')
    e(f'v_lshlrev_b32 {v(T + 2)}, 2, {v(sw)}')
    e(f'v_lshl_add_u32 {v(V_QKW)}, {v(T)}, 4, {v(T + 2)}')
    e(f'v_add_u32 {v(V_QKW)}, {L_MQ}, {v(V_QKW)}')
    e(f's_lshl_b32 {s(S_T0)}, {s(S_W)}, 2')
    e(f'v_add_u32 {v(T)}, {s(S_T0)}, {v(g)}')
    e(f'v_and_b32 {v(T + 3)}, 7, {v(LN)}')
    e(f'v_lshl_add_u32 {v(T)}, {v(T)}, 3, {v(T + 3)}')
    e(f'v_lshlrev_b32 {v(V_OW)}, 4, {v(T)}')
    e(f'v_add_u32 {v(V_OW)}, {L_O}, {v(V_OW)}')
    e(f'v_and_b32 {v(T)}, 1, {v(rp)}')
    e(f'v_lshrrev_b32 {v(T + 2)}, 1, {v(rp)}')
    e(f'v_lshl_add_u32 {v(T)}, {v(T)}, 1, {v(T + 2)}')
    e(f'v_and_b32 {v(T + 2)}, 1, {v(LN)}')
    e(f'v_lshl_add_u32 {v(T)}, {v(T)}, 1, {v(T + 2)}')
    e(f'v_lshl_add_u32 {v(T)}, {v(g)}, 3, {v(T)}')
    e(f'v_lshrrev_b32 {v(T + 2)}, 1, {v(cp)}')
    e(f'v_lshl_add_u32 {v(T)}, {v(T + 2)}, 5, {v(T)}')
    e(f'v_lshlrev_b32 {v(V_OR)}, 4, {v(T)}')
    e(f'v_add_u32 {v(V_OR)}, {L_O}, {v(V_OR)}')
    e(f'v_lshl_add_u32 {v(T)}, {v(g1)}, 2, {v(cp)}')
    e(f'v_lshlrev_b32 {v(T)}, 4, {v(T)}')
    e(f'v_lshl_add_u32 {v(T)}, {v(g2)}, 3, {v(T)}')
    e(f'v_lshl_add_u32 {v(V_PBST)}, {v(rp)}, 12, {v(T)}')
    e(f'v_and_b32 {v(T)}, 4, {v(LN)}')
    e(f'v_lshl_add_u32 {v(T)}, {v(sw)}, 3, {v(T)}')
    e(f'v_lshl_add_u32 {v(T)}, {v(cp)}, 5, {v(T)}')
    e(f'v_lshlrev_b32 {v(T + 1)}, 27, {v(c)}')
    e(f'v_and_b32 {v(T + 1)}, 0x40000000, {v(T + 1)}')
    e(f'v_or_b32 {v(V_MBST)}, {v(T)}, {v(T + 1)}')
    e(f'v_lshlrev_b32 {v(V_L8)}, 3, {v(LN)}')
    e(f'v_lshlrev_b32 {v(T)}, 4, {v(g)}')
    e(f'v_lshl_add_u32 {v(V_KXG)}, {v(c)}, 8, {v(T)}')
    e(f's_mul_i32 {s(S_LDSW)}, {s(S_W)}, {WL}')
    e(f's_add_u32 {s(S_LDSW)}, {s(S_LDSW)}, {L_WB}')
    e(f'v_add_u32 {v(V_LDSW)}, {s(S_LDSW)}, {v(V_LANE16)}')
    VG_QKV, VG_O, VT_QKV, VT_O = 28, 29, 30, 31
    e(f'v_lshrrev_b32 {v(T + 2)}, 1, {v(rp)}')
    e(f'v_and_b32 {v(T + 3)}, 1, {v(rp)}')
    e(f'v_lshlrev_b32 {v(T + 1)}, 3, {v(cp)}')
    e(f'v_lshlrev_b32 {v(T + 4)}, 5, {v(g1)}')
    e(f'v_lshl_add_u32 {v(T + 4)}, {v(T + 2)}, 4, {v(T + 4)}')
    e(f'v_lshl_add_u32 {v(T + 4)}, {v(g2)}, 2, {v(T + 4)}')
    e(f'v_add_u32 {v(T + 4)}, {v(T + 4)}, {v(T + 3)}')
    e(f'v_lshl_add_u32 {v(VT_QKV)}, {v(T + 4)}, 6, {v(T + 1)}')
    e(f'v_add_u32 {v(VT_QKV)}, {s(S_LDSW)}, {v(VT_QKV)}')
    e(f'v_lshlrev_b32 {v(T + 4)}, 5, {v(T + 2)}')
    e(f'v_lshl_add_u32 {v(T + 4)}, {v(g1)}, 4, {v(T + 4)}')
    e(f'v_lshl_add_u32 {v(T + 4)}, {v(g2)}, 2, {v(T + 4)}')
    e(f'v_add_u32 {v(T + 4)}, {v(T + 4)}, {v(T + 3)}')
    e(f'v_lshl_add_u32 {v(VT_O)}, {v(T + 4)}, 6, {v(T + 1)}')
    e(f'v_add_u32 {v(VT_O)}, {s(S_LDSW)}, {v(VT_O)}')
    e(f'v_lshrrev_b32 {v(T)}, 2, {v(LN)}')
    e(f'v_lshlrev_b32 {v(T + 1)}, 4, {v(cp)}')
    e(f'v_mul_u32_u24 {v(VG_O)}, 1280, {v(T)}')
    e(f'v_add_u32 {v(VG_O)}, {v(VG_O)}, {v(T + 1)}')
    e(f'v_lshl_add_u32 {v(VG_QKV)}, {v(T)}, 13, {v(T + 1)}')
    e(f's_lshl_b32 {s(S_T2)}, {s(S_H)}, 8')
    e(f's_lshl_b32 {s(S_T0)}, {s(S_W)}, 6')
    e(f's_add_u32 {s(S_T2)}, {s(S_T2)}, {s(S_T0)}')
    e(f's_mul_i32 {s(S_T3)}, {s(S_H)}, {128 * 1280}')
    e(f's_add_u32 {s(S_T3)}, {s(S_T3)}, {s(S_T0)}')
    e(f's_lshl_b32 {s(S_PBST)}, {s(S_W)}, 14')
    e(f's_lshl_b32 {s(S_T0)}, {s(S_H)}, 7')
    e(f's_add_u32 {s(S_PBST)}, {s(S_PBST)}, {s(S_T0)}')
    e(f's_mov_b32 {s(S_STEP)}, 0')
    e('s_mov_b32 s3, 0')
    e(f's_mov_b32 {s(S_MSL)}, 0')
    e(f's_lshl_b32 {s(S_T1)}, {s(S_H)}, 12')
    e(f's_add_u32 {s(S_KMO)}, {s(S_T1)}, {WS_KM}')
    e(f's_lshl_b32 {s(S_T0)}, {s(S_W)}, 9')
    e(f's_add_u32 {s(S_VMO)}, {s(S_KMO)}, {s(S_T0)}')
    e(f's_add_u32 {s(S_NR)}, {s(S_WS)}, 0x5fffff')
    e(f's_and_b32 {s(S_NR)}, {s(S_NR)}, 0xffe00000')
    e(f's_sub_u32 {s(S_NR)}, {s(S_NR)}, {s(S_WS)}')
    e(f's_lshl_b32 {s(S_T0)}, {s(S_W)}, 10')
    e(f's_lshr_b32 {s(S_T1)}, {s(S_H)}, 1')
    e(f's_lshl_b32 {s(S_T1)}, {s(S_T1)}, 14')
    e(f's_add_u32 {s(S_VB0)}, {s(S_T0)}, {s(S_T1)}')
    e(f's_and_b32 {s(S_T1)}, {s(S_H)}, 1')
    e(f's_lshl_b32 {s(S_T1)}, {s(S_T1)}, 12')
    e(f's_add_u32 {s(S_VB0)}, {s(S_VB0)}, {s(S_T1)}')
    e(f's_add_u32 {s(S_VB0)}, {s(S_VB0)}, {NR_VB}')

    def load_weights(ulist, place_, vt_o, tmpbase, first, pre=False):
        def issue(i):
            un = ulist[i]
            pos = i % NRING
            for q in range(4):
                if un[0] == 'o':
                    _, t, p = un
                    e(f's_add_u32 {s(S_T0)}, {s(S_T3)}, {(64 * t + 16 * q) * 1280 + 256 * p}')
                    srdn, vg = S_WO, VG_O
                else:
                    m, t = un
                    e(f's_add_u32 {s(S_T0)}, {s(S_T2)}, {(64 * t + 16 * q) * 8192}')
                    srdn, vg = {'q': S_WQ, 'k': S_WK, 'v': S_WV}[m], VG_QKV
                e(f's_add_u32 m0, {s(S_LDSW)}, {pos * 4096 + q * 1024}')
                e(f'buffer_load_dwordx4 {v(vg)}, {s(srdn, 4)}, {s(S_T0)} offen lds', tag=('dma', i))

        def process(i):
            un = ulist[i]
            pos = i % NRING
            e.wait_vm(('dma', i))
            vt = vt_o if un[0] == 'o' else VT_QKV
            for tau in range(2):
                kind, loc = place_[(un, tau)]
                dst = loc if kind == 'reg' else tmpbase + 8 * tau
                for n in range(4):
                    off = (8 * (n >> 1) + 2 * (n & 1)) * 64 + 32 * tau
                    e(f'ds_read_b64_tr_b16 {u(dst + 2 * n, 2)}, {v(vt)} offset:{pos * 4096 + off}')
            e.wait_lg()
            if kind == 'lds':
                assert loc == 2 * pos + 1 and i + NRING >= len(ulist)
                for n in range(4):
                    e(f'ds_write_b128 {v(V_LDSW)}, {v(tmpbase + 4 * n, 4)} offset:{pos * 4096 + 1024 * n}')
        n = len(ulist)
        if pre:
            first()
        for i in range(NRING):
            issue(i)
        if not pre:
            first()
        for i in range(n):
            process(i)
            if i + NRING < n:
                issue(i + NRING)

    def init_done(lab, inc='1'):
        e('s_waitcnt vmcnt(0)')
        e('s_barrier')
        e(f's_cmp_lg_u32 {s(S_W)}, 0')
        e(f's_cbranch_scc1 {lab}')
        e(f'v_mov_b32 v44, {D_INIT}')
        e(f'v_mov_b32 v45, {inc}')
        e('s_mov_b64 exec, 1')
        e(f'buffer_atomic_add v45, v44, {s(S_DBG, 4)}, 0 offen')
        e('s_mov_b64 exec, -1')
        e.label(lab)
        e.vm = []
        e.hist = []

    def init_wait(lab, t):
        e(f'v_mov_b32 {v(t + 2)}, 128')
        e.label(lab)
        wd()
        e('s_sleep 8')
        e(f'buffer_load_dwordx2 {v(t, 2)}, {v(t + 2)}, {s(S_DBG, 4)}, 0 offen sc1')
        e('s_waitcnt vmcnt(0)')
        e(f'v_readfirstlane_b32 {s(S_T0)}, {v(t)}')
        e(f'v_readfirstlane_b32 {s(S_T1)}, {v(t + 1)}')
        if nmoda:
            e(f's_cmp_lt_u32 {s(S_T0)}, {nmoda}')
            e(f's_cbranch_scc1 {lab}')
        e(f's_and_b32 {s(S_T0)}, {s(S_T1)}, 0xffff')
        e(f's_cmp_lt_u32 {s(S_T0)}, 64')
        e(f's_cbranch_scc1 {lab}')
        e(f's_lshr_b32 {s(S_T1)}, {s(S_T1)}, 16')
        e(f's_cmp_ge_u32 {s(S_T1)}, 16')
        e(f's_cselect_b32 {s(S_T0)}, 8192, 0')
        if 'far' in dbg:
            e(f's_xor_b32 {s(S_T0)}, {s(S_T0)}, 8192')
        e(f's_add_u32 {s(S_NR)}, {s(S_NR)}, {s(S_T0)}')
        e(f's_add_u32 {s(S_VB0)}, {s(S_VB0)}, {s(S_NR)}')
        e(f's_mov_b32 {s(S_VB)}, {s(S_VB0)}')

    def signal_block(t0):
        e(f's_lshl_b32 {s(S_T2)}, {s(S_T2)}, 7')
        e(f's_add_u32 {s(S_T2)}, {s(S_T2)}, {WS_CTR + C_CH * 128}')
        e(f'v_mov_b32 {v(t0)}, 1')
        e('s_mov_b64 exec, 1')
        e(f'buffer_atomic_add {v(t0)}, {v(V_LANE16)}, {s(S_WS, 4)}, {s(S_T2)} offen')
        e('s_mov_b64 exec, -1')

    def seg_signal():
        e('s_mov_b64 exec, 1')
        e(f'buffer_atomic_sub {v(V_M1)}, {v(V_LANE16)}, {s(S_WS, 4)}, {s(S_SIG)} offen')
        e('s_mov_b64 exec, -1')
        e(f's_add_u32 {s(S_SIG)}, {s(S_SIG)}, 128')

    def step_signal(L):
        if segsig is not None:
            return
        e(f's_and_b32 {s(S_T2)}, {s(S_STEP)}, 3')
        e(f's_lshl_b32 {s(S_T2)}, {s(S_T2)}, 2')
        e(f's_add_u32 {s(S_T2)}, {s(S_T2)}, {s(S_W)}')
        e(f's_cmp_lg_u32 {s(S_T2)}, 3')
        e(f's_cbranch_scc1 {L}_nosig')
        e(f's_cmp_eq_u32 {s(S_STEP)}, 0')
        e(f's_cbranch_scc1 {L}_nosig')
        e.cond_begin()
        e(f's_lshr_b32 {s(S_T2)}, {s(S_STEP)}, 2')
        e(f's_sub_u32 {s(S_T2)}, {s(S_T2)}, 1')
        signal_block(V_WT)
        e.cond_end()
        e.label(f'{L}_nosig')

    def tl(i):
        if 'tl' in dbg:
            e(f's_memrealtime {s(84 + 2 * i, 2)}')

    def tl_out(role, t):
        if 'tl' in dbg:
            e('s_waitcnt lgkmcnt(0)')
            for i in range(4):
                e(f'v_mov_b32 {v(t + i)}, {s(84 + 2 * i)}')
            e(f's_lshl_b32 {s(S_T0)}, {s(S_H)}, 2')
            e(f's_add_u32 {s(S_T0)}, {s(S_T0)}, {s(S_W)}')
            e(f's_lshl_b32 {s(S_T0)}, {s(S_T0)}, 6')
            e(f's_add_u32 {s(S_T0)}, {s(S_T0)}, {s(S_STEP)}')
            e(f's_lshl_b32 {s(S_T0)}, {s(S_T0)}, 4')
            e(f's_add_u32 {s(S_T0)}, {s(S_T0)}, {0x0F100000 + role * 0x40000}')
            e('s_mov_b64 exec, 1')
            e(f'buffer_store_dwordx4 {v(t, 4)}, {v(V_LANE16)}, {s(S_WS, 4)}, {s(S_T0)} offen')
            e('s_mov_b64 exec, -1')
            e.nop(2)

    def wd():
        if 'wd' in dbg:
            e('s_add_u32 s3, s3, 1')
            e('s_cmp_gt_u32 s3, 0x40000')
            _fj[0] += 1
            e(f's_cbranch_scc0 Lwd{_fj[0]}')
            e('s_endpgm')
            e.label(f'Lwd{_fj[0]}')

    def run(mf, side, ratio=2):
        side = list(side)
        for f in mf:
            f()
            for _ in range(ratio):
                if side:
                    side.pop(0)()
        for f in side:
            f()

    def fold(acc, dst):
        return [lambda: e(f'v_pk_add_f32 {v(acc, 2)}, {v(acc, 2)}, {v(acc + 2, 2)}'),
                lambda: e(f'v_cvt_pk_bf16_f32 {v(dst)}, {v(acc)}, {v(acc + 1)}')]

    def stamp_init():
        for i in range(17, 28):
            e(f's_mov_b32 {s(i)}, 0')
        e('s_memtime s[100:101]')
        e('s_waitcnt lgkmcnt(0)')
        for i in range(10):
            e(f's_mov_b32 {s(S_STAMP + 2 * i)}, s100')

    def stamp_acc(n):
        e('s_waitcnt lgkmcnt(0)')
        e(f's_sub_u32 {s(S_T0)}, {s(S_STAMP)}, s100')
        e(f's_add_u32 s17, s17, {s(S_T0)}')
        for i in range(n - 1):
            e(f's_sub_u32 {s(S_T0)}, {s(S_STAMP + 2 * i + 2)}, {s(S_STAMP + 2 * i)}')
            e(f's_add_u32 {s(18 + i)}, {s(18 + i)}, {s(S_T0)}')
        e(f's_mov_b32 s100, {s(S_STAMP + 2 * (n - 1))}')

    def stamp_out():
        e('v_mov_b32 v40, 0')
        for i in range(11):
            e(f'v_writelane_b32 v40, {s(17 + i)}, {i}')
        e(f'v_lshrrev_b32 v41, 2, {v(V_LANE16)}')
        e(f's_lshl_b32 {s(S_T0)}, {s(S_H)}, 2')
        e(f's_add_u32 {s(S_T0)}, {s(S_T0)}, {s(S_W)}')
        e(f's_lshl_b32 {s(S_T0)}, {s(S_T0)}, 8')
        e(f's_add_u32 {s(S_T0)}, {s(S_T0)}, 0x0F000000')
        e(f'buffer_store_dword v40, v41, {s(S_WS, 4)}, {s(S_T0)} offen')

    e(f's_cmp_eq_u32 {s(S_MODE)}, 0')
    e(f's_cbranch_scc1 {name}_chain')
    far_jump(e, f'{name}_helper', 44)
    e.label(f'{name}_chain')

    pool = Pool(NPERS, pool_end)
    cc = f32bits((128 ** -0.5) * 1.4426950408889634)
    e(f's_mov_b32 {s(S_C1)}, {cc:#x}')
    e(f's_mov_b32 {s(S_C1 + 1)}, {cc:#x}')
    e(f's_mov_b32 {s(S_MASKLO)}, -1')
    e(f's_mov_b32 {s(S_MASKLO + 1)}, 0')
    e(f's_lshl_b32 {s(S_T0)}, {s(S_H)}, 1')
    e(f's_add_u32 {s(S_T0)}, {s(S_T0)}, {s(S_W)}')
    e(f's_add_u32 {s(S_UNIT)}, {s(S_T0)}, 16')
    e(f's_cmp_lt_u32 {s(S_H)}, 16')
    e(f's_cselect_b32 {s(S_T0)}, {s(S_H)}, 255')
    e(f's_cmp_eq_u32 {s(S_W)}, 2')
    e(f's_cselect_b32 {s(S_UNIT)}, {s(S_T0)}, {s(S_UNIT)}')
    e(f's_cmp_eq_u32 {s(S_W)}, 3')
    e(f's_cselect_b32 {s(S_UNIT)}, 255, {s(S_UNIT)}')
    e(f's_mul_i32 {s(S_GOF)}, {s(S_W)}, 2560')

    def chain_init():
        e('s_load_dwordx2 s[76:77], s[0:1], 8')
        for j in range(4):
            e(f'v_mov_b32 {v(40 + j)}, -1')
        e(f's_lshl_b32 {s(S_T0)}, {s(S_H)}, 2')
        e(f's_add_u32 {s(S_T0)}, {s(S_T0)}, {s(S_W)}')
        e(f's_mul_i32 {s(S_T1)}, {s(S_T0)}, 2560')
        for sl_ in range(2):
            e(f's_add_u32 s78, {s(S_T1)}, {WS_PB + sl_ * PB_STRIDE}')
            for i in range(3):
                e(f'buffer_store_dwordx4 v[40:43], {v(V_LANE16)}, {s(S_WS, 4)}, s78 offen offset:{1024 * i} sc1')
        e(f's_lshl_b32 s78, {s(S_T0)}, 10')
        e(f's_add_u32 s79, s78, {WS_MB + MB_STRIDE}')
        e(f'buffer_store_dwordx4 v[40:43], {v(V_LANE16)}, {s(S_WS, 4)}, s79 offen sc1')
        e(f's_add_u32 s79, s78, {s(S_NR)}')
        e('s_add_u32 s79, s79, 32768')
        e(f's_cmp_ge_u32 {s(S_T0)}, 96')
        e('s_cselect_b32 s79, 0x40000000, s79')
        e(f'buffer_store_dwordx4 v[40:43], {v(V_LANE16)}, {s(S_WS, 4)}, s79 offen sc1')
        e('s_waitcnt lgkmcnt(0)')
        e('s_mov_b32 s80, s76')
        e('s_and_b32 s81, s77, 0xffff')
        e('s_mov_b32 s82, 10240')
        e('s_mov_b32 s83, 0x20000')
        e(f's_cmp_ge_u32 {s(S_T0)}, 40')
        e(f's_cbranch_scc1 {name}_nom0')
        e(f's_lshl_b32 s78, {s(S_T0)}, 6')
        e(f'v_lshrrev_b32 v44, 4, {v(V_LANE16)}')
        e('v_add_u32 v44, s78, v44')
        e('v_and_b32 v45, 1, v44')
        e('v_bfe_u32 v46, v44, 1, 2')
        e('v_bfe_u32 v47, v44, 3, 4')
        e('v_lshrrev_b32 v48, 7, v44')
        e('v_lshl_add_u32 v47, v45, 4, v47')
        e('v_lshl_add_u32 v47, v48, 5, v47')
        e('v_mul_u32_u24 v46, 2560, v46')
        e('v_lshl_add_u32 v46, v47, 1, v46')
        e('buffer_load_ushort v45, v46, s[80:83], 0 offen')
        e('buffer_load_ushort v47, v46, s[80:83], 0 offen offset:1280')
        e('v_lshlrev_b32 v44, 2, v44')
        e('s_waitcnt vmcnt(0)')
        e('v_lshl_or_b32 v45, v47, 16, v45')
        e('v_min_u32 v45, 0xfffffffe, v45')
        e(f's_mov_b32 s78, {WS_MB}')
        e(f's_cmp_ge_u32 {s(S_T0)}, 32')
        e('s_cselect_b32 s79, 8192, 0')
        e(f's_add_u32 s79, s79, {s(S_NR)}')
        e('s_add_u32 s80, s79, 8192')
        e(f'buffer_store_dword v45, v44, {s(S_WS, 4)}, s78 offen sc1')
        e(f'buffer_store_dword v45, v44, {s(S_WS, 4)}, s79 offen sc1')
        e(f'buffer_store_dword v45, v44, {s(S_WS, 4)}, s80 offen sc1')
        e.label(f'{name}_nom0')
        init_done(f'{name}_noib')

    load_weights(units, place, VT_O, 48, chain_init)
    e.wait_lg()
    e('s_barrier')

    TT = NPERS
    e(f'v_and_b32 {v(TT)}, 16, {v(V_LANE16)}')
    e(f's_mov_b32 {s(S_T0)}, 0x3f80')
    e(f'v_lshlrev_b32 {v(TT)}, {v(TT)}, {s(S_T0)}')
    e(f'v_bfe_u32 {v(TT + 1)}, {v(V_LANE16)}, 5, 2')
    for rr in range(4):
        e(f'v_cmp_eq_u32 vcc, {rr}, {v(TT + 1)}')
        e(f'v_cndmask_b32 {v(V_SEL + rr)}, 0, {v(TT)}, vcc')
        e(f'v_mov_b32 {v(V_ONES + rr)}, 0x3f803f80')
    e(f'v_mov_b32 {v(V_PM + 1)}, 0')
    e(f'v_mov_b32 {v(V_PM + 2)}, 0')
    e(f's_add_u32 {s(S_MBP)}, {s(S_GOF)}, {WS_MB}')
    e(f's_add_u32 {s(S_PBST)}, {s(S_PBST)}, {WS_PB}')
    for p in range(1, 5):
        e(f's_add_u32 {s(S_PBST + p)}, {s(S_PBST)}, {p * 65536}')
    e(f's_lshl_b32 {s(S_T0)}, {s(S_UNIT)}, 12')
    e(f's_add_u32 {s(S_PBLD)}, {s(S_T0)}, {WS_PB}')
    e(f's_lshl_b32 {s(S_MBL)}, {s(S_UNIT)}, 7')
    e(f's_add_u32 {s(S_MBL)}, {s(S_MBL)}, {WS_MB}')
    e(f's_mov_b32 {s(S_MBC)}, {s(S_MBL)}')
    e(f's_add_u32 {s(S_MBN)}, {s(S_MBL)}, {MB_STRIDE}')
    e(f's_lshl_b32 {s(S_SH13)}, {s(S_H)}, 13')
    e(f's_lshl_b32 {s(S_T0)}, {s(S_W)}, 11')
    e(f's_add_u32 {s(S_VXO)}, {s(S_T0)}, {s(S_SH13)}')
    e(f's_add_u32 {s(S_WRM)}, {s(S_VXO)}, {WS_KX + 32 * 8192}')
    e(f's_add_u32 {s(S_VXO)}, {s(S_VXO)}, {WS_VXT}')
    e(f's_add_u32 {s(S_KXM)}, {s(S_T0)}, {L_KX}')
    e(f's_lshr_b32 {s(S_T0)}, {s(S_W)}, 1')
    e(f's_lshl_b32 {s(S_T0)}, {s(S_T0)}, 12')
    e(f's_and_b32 {s(S_T1)}, {s(S_W)}, 1')
    e(f's_lshl_b32 {s(S_T1)}, {s(S_T1)}, 7')
    e(f's_add_u32 {s(S_KXW)}, {s(S_T0)}, {s(S_T1)}')
    e(f's_add_u32 {s(S_KXW)}, {s(S_KXW)}, {s(S_SH13)}')
    e(f's_add_u32 {s(S_KXW)}, {s(S_KXW)}, {WS_KX}')

    def kx_items():
        return [
            lambda: e(f's_mov_b32 m0, {s(S_KXM)}'),
            lambda: e(f's_add_u32 {s(S_T0)}, {s(S_KXW)}, 64'),
            lambda: e(f'buffer_load_dwordx4 {v(V_KXG)}, {s(S_WS, 4)}, {s(S_KXW)} offen {ldfl} lds', tag='kx'),
            lambda: e(f's_add_u32 m0, {s(S_KXM)}, 1024'),
            lambda: e(f's_add_u32 {s(S_KXW)}, {s(S_KXW)}, {32 * 8192}'),
            lambda: e(f'buffer_load_dwordx4 {v(V_KXG)}, {s(S_WS, 4)}, {s(S_T0)} offen {ldfl} lds', tag='kx'),
            lambda: e(f's_add_u32 m0, {s(S_KXM)}, 8192'),
            lambda: e(f's_nop 0'),
            lambda: e(f'buffer_load_dwordx4 {v(V_LANE16)}, {s(S_WS, 4)}, {s(S_VXO)} offen {ldfl} lds', tag='kx'),
            lambda: e(f'buffer_load_dwordx4 {v(V_LANE16)}, {s(S_WS, 4)}, {s(S_VXO)} offen offset:1024 {ldfl} lds', tag='kx'),
            lambda: e(f's_add_u32 {s(S_VXO)}, {s(S_VXO)}, {32 * 8192}'),
        ]

    def kv_wait(lab, t1):
        e(f's_cmp_ge_u32 {s(S_KVOK)}, {s(S_T2)}')
        e(f's_cbranch_scc1 {lab}_ok')
        e.cond_begin()
        e(f's_mov_b32 {s(S_T3)}, {WS_CTR + C_KV * 128}')
        e.label(f'{lab}_spin')
        e(f'buffer_load_dword {v(t1)}, {v(V_WA)}, {s(S_WS, 4)}, {s(S_T3)} offen sc1')
        e('s_waitcnt vmcnt(0)')
        e(f'v_cmp_le_u32 vcc, 32, {v(t1)}')
        e(f's_and_b32 {s(S_KVOK)}, vcc_lo, 0xffff')
        e(f's_ff0_i32_b32 {s(S_KVOK)}, {s(S_KVOK)}')
        e(f's_cmp_ge_u32 {s(S_KVOK)}, {s(S_T2)}')
        e(f's_cbranch_scc0 {lab}_spin')
        e.cond_end()
        e.label(f'{lab}_ok')

    def claim(b, n):
        for i in range(n):
            assert (b + i) in pool.free_, ('claim', b, n)
            pool.free_.remove(b + i)

    ACC = pool.must(24)
    VACC = ACC + 16
    V_EX = V_L8
    if 'rt' in dbg:
        e('s_memrealtime s[94:95]')
        e('s_waitcnt lgkmcnt(0)')
    init_wait(f'{name}_ibw', ACC)
    e(f's_lshl_b32 {s(S_MBL2)}, {s(S_UNIT)}, 7')
    e(f's_cmp_ge_u32 {s(S_UNIT)}, 64')
    e(f's_cselect_b32 {s(S_T0)}, 8192, 0')
    e(f's_add_u32 {s(S_MBL2)}, {s(S_MBL2)}, {s(S_T0)}')
    e(f's_add_u32 {s(S_MBL2)}, {s(S_MBL2)}, {s(S_NR)}')
    e(f's_cmp_ge_u32 {s(S_UNIT)}, 80')
    e(f's_cselect_b32 {s(S_MBL2)}, 0x40000000, {s(S_MBL2)}')
    e(f's_cmp_lt_u32 {s(S_UNIT)}, {8 * NH1 if defer else 80}')
    e(f's_cselect_b32 {s(S_MBE0)}, {s(S_MBL2)}, 0x40000000')
    e(f's_cselect_b32 {s(S_MBD0)}, 0x40000000, {s(S_MBL2)}')
    e(f's_add_u32 {s(S_MBN2)}, {s(S_MBE0)}, 32768')
    e(f's_mov_b32 {s(S_MBD2)}, 0x40000000')
    e(f's_add_u32 {s(S_MBR2)}, {s(S_MBL2)}, 65536')
    e(f'buffer_load_dword {v(ACC)}, {v(ACC + 2)}, {s(S_DBG, 4)}, 0 offen offset:8 sc1')
    e('s_waitcnt vmcnt(0)')
    e(f'v_readfirstlane_b32 {s(S_MODE)}, {v(ACC)}')
    if mega:
        e(f's_mov_b32 {s(S_KVOK)}, 0')
        e(f's_mov_b32 {s(S_T2)}, 1')
        kv_wait(f'{name}_kv0', ACC)
    pre_slots = [sl for sl in order if place[sl][0] == 'lds'][:npre]
    PRE = [pool.alloc(8, 8, top=True) for _ in pre_slots]

    def pre_load():
        for sl, b in zip(pre_slots, PRE):
            loc = place[sl][1] * 2048
            e(f'ds_read_b128 {v(b, 4)}, {v(V_LDSW)} offset:{loc}')
            e(f'ds_read_b128 {v(b + 4, 4)}, {v(V_LDSW)} offset:{loc + 1024}')
    pre_load()
    for it in kx_items():
        it()
    e('s_waitcnt vmcnt(0) lgkmcnt(0)')
    e.vm = []
    e.lg = []
    if 'rt' in dbg:
        e('s_memrealtime s[98:99]')
        e('s_waitcnt lgkmcnt(0)')
    if 'tot' in dbg:
        e('s_memtime s[96:97]')
        e('s_waitcnt lgkmcnt(0)')
    if stamps:
        stamp_init()
    if slow:
        e(f's_cmp_lg_u32 {s(S_MODE)}, 0')
        e(f's_cbranch_scc1 {name}_slow')

    def body(sc, L):
        stamp_i = [0]
        call_i = [0]

        def stamp():
            call_i[0] += 1
            if stamps and (call_i[0] - 1) in stsel:
                e(f's_memtime {s(S_STAMP + 2 * stamp_i[0], 2)}')
                stamp_i[0] += 1

        e.label(L)
        e.hist = []
        e.vm = []
        e.lg = []
        stamp()
        G0, GM = ACC, ACC + 12
        e(f'v_add_u32 {v(GM + 1)}, {s(S_GOF)}, {v(V_LANE16)}')
        e('s_barrier')
        if adel:
            e(f's_sleep {adel}')
        e.label(f'{L}_pollA')
        e.hist = []
        wd()
        if stamps:
            e('s_add_u32 s27, s27, 0x10000')
        for i in range(3):
            e(f'buffer_load_dwordx4 {v(G0 + 4 * i, 4)}, {v(V_LANE16)}, {s(S_WS, 4)}, {s(S_MBP)} offen offset:{(0, 1024, 1536)[i]} sc1')
        for i in range(3):
            e(f's_waitcnt vmcnt({2 - i})')
            e(f'ds_write_b128 {v(GM + 1)}, {v(G0 + 4 * i, 4)} offset:{(0, 1024, 1536)[i]}')
        e(f'v_max3_u32 {v(GM)}, {v(G0)}, {v(G0 + 4)}, {v(G0 + 8)}')
        e(f'v_cmp_eq_u32 vcc, -1, {v(GM)}')
        e('s_mov_b64 exec, vcc')
        e(f's_cbranch_execnz {L}_pollA')
        e('s_mov_b64 exec, -1')
        e('s_waitcnt lgkmcnt(0)')
        e.label(f'{L}_gd')
        e('s_barrier')
        e.vm = []
        e.lg = []
        e.hist = []
        stamp()
        tl(0)
        pool.free(VACC, 8)

        loaded = {sl: b for sl, b in zip(pre_slots, PRE)}
        lds_pending = [sl for sl in order if place[sl][0] == 'lds' and sl not in loaded]
        st = dict(reserve=8, aflim=10)

        def pump_lds(cur_idx, force=False):
            while lds_pending and order.index(lds_pending[0]) <= cur_idx + la_lds:
                need = force and order.index(lds_pending[0]) <= cur_idx
                b = pool.alloc(8, 8, top=True, reserve=0 if need else st['reserve'])
                if b is None:
                    assert not need, 'no buffer for lds slot'
                    return
                lead = order.index(lds_pending[0]) - cur_idx
                if lead < 4 and cur_idx != NA:
                    print('; WARNING short lds lead', order.index(lds_pending[0]), lead)
                sl = lds_pending.pop(0)
                loc = place[sl][1] * 2048
                e(f'ds_read_b128 {v(b, 4)}, {v(V_LDSW)} offset:{loc}', tag=('lw', sl))
                e(f'ds_read_b128 {v(b + 4, 4)}, {v(V_LDSW)} offset:{loc + 1024}', tag=('lw', sl))
                loaded[sl] = b

        def smf(acc, af, sl):
            idx = order.index(sl)
            kind, loc = place[sl]
            if kind == 'reg':
                b = loc
            else:
                if sl not in loaded:
                    pump_lds(idx, True)
                b = loaded[sl]
                e.wait_lg(('lw', sl))
            e(f'v_smfmac_f32_16x16x64_bf16 {v(acc, 4)}, {v(af, 4)}, {u(b, 8)}, {v(V_IDX)}')
            if kind != 'reg':
                pool.free(b, 8)
            pump_lds(idx + 1)

        AF = {}
        afpos = [0]
        first_use = [min(i for i, o in enumerate(order[:40]) if o[0][1] == t) for t in range(10)]

        def af_pump(i, lead=None):
            while afpos[0] < st['aflim'] and first_use[afpos[0]] - i <= (lead or afl):
                k = afpos[0]
                b = pool.alloc(4)
                if b is None:
                    assert first_use[k] - i > 1, 'AF starved'
                    return
                afpos[0] += 1
                AF[k] = b
                e(f'ds_read_b64_tr_b16 {v(b, 2)}, {v(V_AF)} offset:{1024 * k}', tag=('af', k))
                e(f'ds_read_b64_tr_b16 {v(b + 2, 2)}, {v(V_AF)} offset:{1024 * k + 512}', tag=('af', k))

        af_pump(0)
        for j in range(0, 16, 2):
            e(f'v_mov_b64 {v(ACC + j, 2)}, 0')
        accof = {'q': 0, 'k': 8, 'v': 16}
        waited = set()

        def mk(i, sl):
            (m, t), tau = sl
            last = not any(o[0][1] == t for o in order[i + 1:40])

            def f():
                if t not in waited:
                    e.wait_lg(('af', t))
                    waited.add(t)
                smf(ACC + accof[m] + 4 * tau, AF[t], sl)
                if last:
                    pool.free(AF[t], 4)
                af_pump(i + 1)
            return f
        mf = [mk(i, sl) for i, sl in enumerate(order[:40])]
        run(mf[:wat], [], 0)

        def warm_items(pos):
            it = []
            for p_, what in warm:
                if p_ != pos:
                    continue
                if what:
                    it.append(lambda: e(f's_add_u32 {s(S_T0)}, {s(S_WRM)}, {WS_VXT - WS_KX}'))
                it.append(lambda what=what: e(f'buffer_load_dword {v(V_WT)}, {v(V_WA)}, {s(S_WS, 4)}, {s(S_T0 if what else S_WRM)} offen', tag='warm'))
            return it
        cold = [lambda: e(f'buffer_store_dword {v(V_EX)}, {v(V_MBST)}, {s(S_WS, 4)}, {s(S_MBD2)} offen sc1'),
                lambda: e(f'buffer_store_dword {v(V_M1)}, {v(V_MBST)}, {s(S_WS, 4)}, {s(S_MBR2)} offen sc1')]
        if not (defer and nvl):
            cold = cold[1:]
        if mega:
            e(f's_add_u32 {s(S_T2)}, {s(S_STEP)}, 5')
            e(f's_lshr_b32 {s(S_T2)}, {s(S_T2)}, 2')
            e(f's_min_u32 {s(S_T2)}, {s(S_T2)}, 16')
            kv_wait(f'{L}_kv', V_WT)
        run(mf[wat:wat2], warm_items('a') + cold, 2)
        run(mf[wat2:NQE - 4], warm_items('a2'), 2)
        st['reserve'] = 99
        SM = pool.alloc(8, 8, top=True)
        ZQ = SM
        ZVF = SM + 4
        kxb, sbuf = {}, {}

        def kx_read(f_, rsv=0):
            def g_():
                b = pool.alloc(4, reserve=rsv)
                if b is None:
                    return
                kxb[f_] = b
                e(f'ds_read_b128 {v(b, 4)}, {v(V_LANE16)} offset:{L_KX + f_ * 1024}', tag=('kx', f_))
            return g_

        def qm_read(kind, uu):
            def g_():
                b = sbuf[(kind, uu)] = pool.must(4)
                base = 0 if kind == 'q' else 2048
                for m in range(2):
                    e(f'ds_read_b64_tr_b16 {v(b + 2 * m, 2)}, {v(V_QKR)} offset:{base + uu * 512 + m * 256}', tag=('si', kind, uu))
            return g_

        def v_load():
            tl(1)
            e(f'buffer_load_dwordx4 {v(ZVF, 4)}, {v(V_LANE16)}, {s(S_WS, 4)}, {s(S_VB)} offen sc1', tag='vm')
        run(mf[NQE - 4:NQE], [], 1)
        late = mf[NQE:40]
        qf = fold(ACC, ZQ) + fold(ACC + 4, ZQ + 1) + [
            lambda: e(f'ds_write2st64_b32 {v(V_QKW)}, {v(ZQ)}, {v(ZQ + 1)} offset0:0 offset1:1', tag='qw')]
        kf = fold(ACC + 8, ZQ + 2) + fold(ACC + 12, ZQ + 3) + [
            lambda: e(f'ds_write2st64_b32 {v(V_QKW)}, {v(ZQ + 2)}, {v(ZQ + 3)} offset0:8 offset1:9', tag='kw')]
        run(late[:1], [kx_read(0, 4), kx_read(4, 4)], 2)
        run(late[1:3], qf, 3)
        run(late[3:6], [kx_read(1, 16), kx_read(5, 16), kx_read(2, 16)], 1)
        stamp()
        e.wait_lg('qw')
        e('s_barrier')
        pool.free(ACC, 8)
        SX = ACC
        claim(SX, 8)
        todo = []
        for uu in range(4):
            todo += [('q', uu)] + [('x', f_) for f_ in (uu, uu + 4) if f_ not in kxb]

        def try4():
            b = pool.alloc(4)
            if b is None:
                return False
            pool.free(b, 4)
            return True

        def s_fill2(maxn=99):
            n = 0
            while todo and n < maxn and try4():
                kind, x = todo.pop(0)
                if kind == 'x':
                    kx_read(x)()
                else:
                    qm_read(kind, x)()
                n += 1
        s_fill2(1)
        run(late[6:], [lambda: s_fill2(2)] * 4, 1)
        stamp()

        def sx(uu, ti):
            def f():
                f_ = uu + 4 * ti
                assert ('q', uu) in sbuf and f_ in kxb, 'S starved'
                e.wait_lg(('si', 'q', uu))
                e.wait_lg(('kx', f_))
                cin = '0' if uu == 0 else v(SX + 4 * ti, 4)
                e(f'v_mfma_f32_16x16x32_bf16 {v(SX + 4 * ti, 4)}, {v(kxb[f_], 4)}, {v(sbuf[("q", uu)], 4)}, {cin}')
                pool.free(kxb[f_], 4)
                s_fill2()
            return f
        sxl = [sx(uu, ti) for uu in range(4) for ti in range(2)]
        run(sxl[:2], [], 0)
        run([], kf, 0)
        run(sxl[2:4], [], 0)
        if v_at == 0:
            v_load()
        e.wait_lg('kw')
        e('s_barrier')
        pool.free(ACC + 8, 8)
        C0 = ACC + 8
        claim(C0, 4)
        todo_m = [('m', uu) for uu in range(4)]
        todo[:] = todo_m[:1] + todo + todo_m[1:]
        s_fill2()
        run(sxl[4:], [], 0)
        if v_at == 1:
            v_load()
        M = SM
        for uu in range(4):
            s_fill2()
            e.wait_lg(('si', 'm', uu))
            cin = '0' if uu == 0 else v(C0, 4)
            e(f'v_mfma_f32_16x16x32_bf16 {v(C0, 4)}, {v(sbuf[("m", uu)], 4)}, {v(sbuf[("q", uu)], 4)}, {cin}')
            pool.free(sbuf[('m', uu)], 4)
            pool.free(sbuf[('q', uu)], 4)
        assert not todo
        VA_ = pool.must(8)
        OACC = [pool.must(8) for _ in range(noa)]
        AFV = {}
        for t in range(NH1, 10):
            b = AFV[t] = OACC[(t - NH1) >> 1] + 4 * ((t - NH1) & 1)
            e(f'ds_read_b64_tr_b16 {v(b, 2)}, {v(V_AF)} offset:{1024 * t}', tag=('afv', t))
            e(f'ds_read_b64_tr_b16 {v(b + 2, 2)}, {v(V_AF)} offset:{1024 * t + 512}', tag=('afv', t))
        for j in range(0, 8 if nvl else 0, 2):
            e(f'v_mov_b64 {v(VA_ + j, 2)}, 0')

        def mkv(t, tau):
            def f():
                if tau == 0:
                    e.wait_lg(('afv', t))
                smf(VA_ + 4 * tau, AFV[t], (('v', t), tau))
            return f
        vmf = [mkv(t, tau) for t in range(NH1, 10) for tau in range(2)]
        P = pool.must(4)
        OA = pool.must(12)
        VX = pool.must(8)
        e(f'v_add_u32 {v(VX)}, {s(S_KXM)}, {v(V_LANE16)}')
        if v_at == 2:
            v_load()
        stamp()
        sm = []

        def V(x):
            sm.append(lambda: e(x))
        V(f'v_max3_f32 {v(M)}, {v(SX)}, {v(SX + 1)}, {v(SX + 2)}')
        V(f'v_max3_f32 {v(M + 1)}, {v(SX + 3)}, {v(SX + 4)}, {v(SX + 5)}')
        V(f'v_max3_f32 {v(M)}, {v(M)}, {v(SX + 6)}, {v(SX + 7)}')
        V(f'v_cndmask_b32 {v(C0)}, {v(C0 + 2)}, {v(C0)}, {s(S_MASKLO, 2)}')
        V(f'v_cndmask_b32 {v(C0 + 1)}, {v(C0 + 3)}, {v(C0 + 1)}, {s(S_MASKLO, 2)}')
        V(f'v_max3_f32 {v(M + 1)}, {v(M + 1)}, {v(C0)}, {v(C0 + 1)}')
        V(f'v_max_f32 {v(M)}, {v(M)}, {v(M + 1)}')
        V(f'v_max_f32 {v(M + 1)}, {v(M)}, {v(M + 1)}')
        V(f'v_permlane32_swap_b32 {v(M)}, {v(M + 1)}')
        V(f'v_max_f32 {v(M + 2)}, {v(M)}, {v(M + 1)}')
        V(f'v_max_f32 {v(M + 1)}, {v(M)}, {v(M + 1)}')
        V(f'v_permlane16_swap_b32 {v(M + 2)}, {v(M + 1)}')
        V(f'v_max_f32 {v(M)}, {v(M + 2)}, {v(M + 1)}')
        V(f'v_mul_f32 {v(M)}, {s(S_C1)}, {v(M)}')
        bub = {8: 1, 9: 1, 11: 1, 12: 1}
        for i, f in enumerate(sm):
            for _ in range(bub.get(i, 0)):
                if vmf:
                    vmf.pop(0)()
            f()
        if v_at == 3:
            v_load()
        e(f'ds_read_b128 {v(VX + 4, 4)}, {v(VX)} offset:{8192 + 1024}', tag='vx')
        e(f'ds_read_b128 {v(VX, 4)}, {v(VX)} offset:8192', tag='vx')
        for j in range(0, 10, 2):
            e(f'v_pk_fma_f32 {v(SX + j, 2)}, {v(SX + j, 2)}, {s(S_C1, 2)}, {v(M, 2)} op_sel_hi:[1,1,0] neg_lo:[0,0,1] neg_hi:[0,0,1]')
            if vmf:
                vmf.pop(0)()
        while vmf:
            vmf.pop(0)()
        zl = [(lambda b=b, j=j: e(f'v_mov_b64 {v(b + j, 2)}, 0')) for b in OACC for j in range(0, 8, 2)]

        def z(n=1):
            for _ in range(n):
                if zl:
                    zl.pop(0)()
        for j in range(8):
            e(f'v_exp_f32 {v(SX + j)}, {v(SX + j)}')
        for j in range(4):
            e(f'v_cvt_pk_bf16_f32 {v(P + j)}, {v(SX + 2 * j)}, {v(SX + 2 * j + 1)}')
        e.wait_lg('vx')
        e(f'v_exp_f32 {v(C0)}, {v(C0)}')
        e(f'v_mfma_f32_16x16x32_bf16 {v(OA + 8, 4)}, {v(V_ONES, 4)}, {v(P, 4)}, 0')
        e(f'v_exp_f32 {v(C0 + 1)}, {v(C0 + 1)}')
        e(f'v_mfma_f32_16x16x32_bf16 {v(OA, 4)}, {v(VX, 4)}, {v(P, 4)}, 0')
        e(f'v_cvt_pk_bf16_f32 {v(V_PM)}, {v(C0)}, {v(C0 + 1)}')
        e(f'v_cvt_pk_bf16_f32 {v(V_PM + 3)}, {v(C0)}, {v(C0 + 1)}')
        e(f'v_mfma_f32_16x16x32_bf16 {v(OA + 4, 4)}, {v(VX + 4, 4)}, {v(P, 4)}, 0')
        if nvl:
            e(f'v_pk_add_f32 {v(VA_, 2)}, {v(VA_, 2)}, {v(VA_ + 2, 2)}')
            e(f'v_pk_add_f32 {v(VA_ + 4, 2)}, {v(VA_ + 4, 2)}, {v(VA_ + 6, 2)}')
        e(f'v_mfma_f32_16x16x16_bf16 {v(OA + 8, 4)}, {v(V_ONES, 2)}, {v(V_PM, 2)}, {v(OA + 8, 4)}')
        z(4)
        if 'nov' not in dbg:
            e.wait_vm('vm')
            e(f'v_cmp_eq_u32 vcc, -1, {v(ZVF)}')
            e(f's_cbranch_vccnz {L}_fixv')
            e.label(f'{L}_pv2')
        ZV = VA_ + 2
        if nvl:
            e(f'v_pk_add_f32 {v(ZVF, 2)}, {v(ZVF, 2)}, {v(VA_, 2)}')
            e(f'v_pk_add_f32 {v(ZVF + 2, 2)}, {v(ZVF + 2, 2)}, {v(VA_ + 4, 2)}')
        e(f'v_cvt_pk_bf16_f32 {v(ZV)}, {v(ZVF)}, {v(ZVF + 1)}')
        e(f'v_cvt_pk_bf16_f32 {v(ZV + 1)}, {v(ZVF + 2)}, {v(ZVF + 3)}')
        e(f'v_rcp_f32 {v(M)}, {v(OA + 8)}')
        z(1)
        e(f'v_mfma_f32_16x16x16_bf16 {v(OA, 4)}, {v(ZV, 2)}, {v(V_PM, 2)}, {v(OA, 4)}')
        e(f'v_mfma_f32_16x16x16_bf16 {v(OA + 4, 4)}, {v(ZV, 2)}, {v(V_PM + 2, 2)}, {v(OA + 4, 4)}')
        pool.free(SX, 8)
        pool.free(VX, 8)
        pool.free(C0, 4)
        pool.free(VA_, 8)
        OF = pool.must(8)
        z(99)
        st['reserve'] = 0
        pump_lds(NA)
        for j in range(0, 8, 2):
            e(f'v_pk_mul_f32 {v(OA + j, 2)}, {v(OA + j, 2)}, {v(M, 2)} op_sel_hi:[1,0]')
        for j in range(4):
            e(f'v_cvt_pk_bf16_f32 {v(P + j)}, {v(OA + 2 * j)}, {v(OA + 2 * j + 1)}')
        e(f'ds_write_b128 {v(V_OW)}, {v(P, 4)}', tag='ow')
        pool.free(OA, 12)
        for x in [f's_add_u32 {s(S_WRM)}, {s(S_WRM)}, {32 * 8192}',
                  f's_add_u32 {s(S_MSL)}, {s(S_MSL)}, {MB_STRIDE}', f's_and_b32 {s(S_MSL)}, {s(S_MSL)}, {3 * MB_STRIDE}',
                  f's_add_u32 {s(S_T0)}, {s(S_MSL)}, {WS_MB}',
                  f's_add_u32 {s(S_MBP)}, {s(S_T0)}, {s(S_GOF)}',
                  f's_lshl_b32 {s(S_T0)}, {s(S_MSL)}, 4', f's_add_u32 {s(S_VB)}, {s(S_VB0)}, {s(S_T0)}',
                  f's_add_u32 {s(S_STEP)}, {s(S_STEP)}, 1']:
            e(x)
        e.wait_lg('ow')
        e('s_barrier')
        pool.free(P, 4)
        e(f'ds_read_b128 {v(OF, 4)}, {v(V_OR)}', tag='of0')
        e(f'ds_read_b128 {v(OF + 4, 4)}, {v(V_OR)} offset:1024', tag='of1')
        pump_lds(NA)
        kxi = kx_items()
        for f in kxi[:6]:
            f()
        stamp()
        ZO = [SM, SM + 2, SM + 4]

        def finish(p):
            ac = OACC[p % noa]
            zz = ZO[p % 3]
            it = fold(ac, zz) + fold(ac + 4, zz + 1)
            if p + noa < 5:
                it += [(lambda j=j: e(f'v_mov_b64 {v(ac + j, 2)}, 0')) for j in range(0, 4, 2)]
            it += [lambda: e(f'v_permlane16_swap_b32 {v(zz)}, {v(zz + 1)}'),
                   lambda: e(f'buffer_store_dwordx2 {v(zz, 2)}, {v(V_PBST)}, {s(S_WS, 4)}, {s(S_PBST + p)} offen {sc}', tag='pst')]
            if p + noa < 5:
                it += [(lambda j=j: e(f'v_mov_b64 {v(ac + j, 2)}, 0')) for j in range(4, 8, 2)]
            else:
                it += [lambda: pool.free(ac, 8)]
            return it
        sc2 = [f's_lshl_b32 {s(S_T0)}, {s(S_MSL)}, 1',
               f's_add_u32 {s(S_MBN2)}, {s(S_MBE0)}, {s(S_T0)}', f's_add_u32 {s(S_MBD2)}, {s(S_MBD0)}, {s(S_T0)}',
               f's_xor_b32 {s(S_T0)}, {s(S_T0)}, 65536', f's_add_u32 {s(S_MBR2)}, {s(S_MBL2)}, {s(S_T0)}',
               f's_add_u32 {s(S_MBN)}, {s(S_MBL)}, {s(S_MSL)}']
        sc2 = kxi[6:] + [(lambda x=x: e(x)) for x in sc2]
        for p in range(5):
            ac = OACC[p % noa]
            mo = []
            for t in range(2):
                for tau in range(2):
                    def f(t=t, tau=tau):
                        if p == 0 and tau == 0:
                            e.wait_lg(f'of{t}')
                        smf(ac + 4 * tau, OF + 4 * t, (('o', t, p), tau))
                    mo.append(f)
            side = finish(p - 1) if p >= 1 else sc2
            run(mo[:1], [], 0)
            run(mo[1:], side, 3 if p else 4)
        for f in finish(4):
            f()
        stamp()
        tl(3)
        pool.free(OF, 8)
        pool.free(SM, 8)
        assert not lds_pending
        claim(ACC, 24)
        for b in PRE:
            claim(b, 8)
        RB, RA, TM = ACC, VACC, VACC + 4

        def pb_loads():
            for i in range(4):
                e(f'buffer_load_dwordx4 {v(RB + 4 * i, 4)}, {v(V_LANE16)}, {s(S_WS, 4)}, {s(S_PBLD)} offen offset:{1024 * i} sc1', tag=('pb', i))
        if early_poll:
            e(f's_cmp_ge_u32 {s(S_UNIT)}, {early_poll}')
            e(f's_cbranch_scc1 {L}_nep')
            pb_loads()
            pre_load()
            for p in range(5):
                e(f's_xor_b32 {s(S_PBST + p)}, {s(S_PBST + p)}, {PB_STRIDE}')
            e(f's_branch {L}_pk1')
            e.label(f'{L}_nep')
        pre_load()
        for p in range(5):
            e(f's_xor_b32 {s(S_PBST + p)}, {s(S_PBST + p)}, {PB_STRIDE}')
        e(f's_cmp_ge_u32 {s(S_UNIT)}, 80')
        e(f's_cbranch_scc1 {L}_nored')
        if kdel:
            e.nop(kdel)
        e.label(f'{L}_pollK')
        e.hist = []
        wd()
        if stamps:
            e('s_add_u32 s27, s27, 1')
        pb_loads()
        e.label(f'{L}_pk1')
        e.hist = []
        for i in range(4):
            e(f's_waitcnt vmcnt({3 - i})')
            e(f'v_mfma_f32_16x16x32_bf16 {v(RA, 4)}, {v(V_SEL, 4)}, {v(RB + 4 * i, 4)}, {"0" if i == 0 else v(RA, 4)}')
            if i == 2:
                e(f'v_max3_u32 {v(TM)}, {v(RB)}, {v(RB + 4)}, {v(RB + 8)}')
        e(f'v_max_u32 {v(TM)}, {v(TM)}, {v(RB + 12)}')
        e(f'v_mov_b32_dpp {v(TM + 1)}, {v(TM)} quad_perm:[0,0,0,0] row_mask:0xf bank_mask:0xf')
        e(f'v_cmp_eq_u32 vcc, -1, {v(TM + 1)}')
        e('s_mov_b64 exec, vcc')
        e(f's_cbranch_execnz {L}_pollK')
        e('s_mov_b64 exec, -1')
        e.vm = []
        e(f'v_permlane32_swap_b32 {v(RA)}, {v(RA + 2)}')
        e(f'v_permlane32_swap_b32 {v(RA + 1)}, {v(RA + 3)}')
        e(f'v_add_f32_dpp {v(RA)}, {v(RA + 2)}, {v(RA)} row_ror:8 row_mask:0xf bank_mask:0xf')
        e(f'v_add_f32_dpp {v(RA + 1)}, {v(RA + 3)}, {v(RA + 1)} row_ror:8 row_mask:0xf bank_mask:0xf')
        e(f'v_cvt_pk_bf16_f32 {v(V_EX)}, {v(RA)}, {v(RA + 1)}')
        e(f'buffer_store_dword {v(V_EX)}, {v(V_MBST)}, {s(S_WS, 4)}, {s(S_MBN)} offen {sc}')
        e(f'buffer_store_dword {v(V_EX)}, {v(V_MBST)}, {s(S_WS, 4)}, {s(S_MBN2)} offen sc1')
        stamp()
        tl(2)
        e(f'buffer_store_dword {v(V_M1)}, {v(V_MBST)}, {s(S_WS, 4)}, {s(S_MBC)} offen {sc}')
        e(f'buffer_store_dword {v(V_M1)}, {v(V_L64)}, {s(S_WS, 4)}, {s(S_PBLD)} offen {sc}')
        e(f's_xor_b32 {s(S_PBLD)}, {s(S_PBLD)}, {PB_STRIDE}')
        e(f's_mov_b32 {s(S_MBC)}, {s(S_MBN)}')
        e(f's_branch {L}_end')
        e.label(f'{L}_nored')
        if stamps and call_i[0] - 1 in stsel:
            e(f's_memtime {s(S_STAMP + 2 * (stamp_i[0] - 1), 2)}')
        if gdel:
            e(f's_sleep {gdel}')
        e.label(f'{L}_end')
        e.hist = []
        tl_out(0, RB)
        e('s_waitcnt lgkmcnt(0)')
        if stamps:
            stamp()
            stamp_acc(stamp_i[0])
        e(f's_cmp_lg_u32 {s(S_STEP)}, {nsteps - 1}')
        e(f's_cbranch_scc1 {L}')
        e(f's_branch {name}_fin')
        if 'nov' in dbg:
            return
        e.label(f'{L}_fixv')
        wd()
        if stamps:
            e('s_add_u32 s26, s26, 63')
        e(f'buffer_load_dwordx4 {v(ZVF, 4)}, {v(V_LANE16)}, {s(S_WS, 4)}, {s(S_VB)} offen sc1')
        e('s_waitcnt vmcnt(0)')
        e(f'v_cmp_eq_u32 vcc, -1, {v(ZVF)}')
        e(f's_cbranch_vccnz {L}_fixv')
        e(f's_branch {L}_pv2')

    body('', f'{name}_fast')
    if slow:
        body('sc1', f'{name}_slow')
    e.label(f'{name}_fin')
    e.flush_hazards(4)
    e(f'buffer_store_dword {v(V_EX)}, {v(V_MBST)}, {s(S_WS, 4)}, {s(S_MBD2)} offen sc1')
    if stamps:
        stamp_out()
    if 'rt' in dbg or 'tot' in dbg:
        e(f's_cmp_lg_u32 {s(S_W)}, 1')
        e(f's_cbranch_scc1 {name}_exit')
    if 'rt' in dbg:
        e('s_memrealtime s[100:101]')
        e('s_waitcnt lgkmcnt(0)')
        e('v_mov_b32 v40, s96')
        e('v_mov_b32 v41, s98')
        e('v_mov_b32 v42, s100')
        e('v_mov_b32 v43, s94')
        e('v_mov_b32 v44, 0')
        e(f's_lshl_b32 {s(S_T0)}, {s(S_H)}, 6')
        e(f's_add_u32 {s(S_T0)}, {s(S_T0)}, 0x0F800000')
        e(f'buffer_store_dwordx4 v[40:43], v44, {s(S_WS, 4)}, {s(S_T0)} offen')
    if 'tot' in dbg:
        e('s_memtime s[98:99]')
        e('s_waitcnt lgkmcnt(0)')
        e('s_sub_u32 s98, s98, s96')
        e('v_mov_b32 v40, s98')
        e('v_mov_b32 v42, 0')
        e(f's_lshl_b32 {s(S_T0)}, {s(S_H)}, 6')
        e(f's_add_u32 {s(S_T0)}, {s(S_T0)}, 0x0F800000')
        e(f'buffer_store_dword v40, v42, {s(S_WS, 4)}, {s(S_T0)} offen')
    e.label(f'{name}_exit')
    e('s_endpgm')
    print(f'; chain12: n_reg={n_reg} n_lds={n_lds} pool peak={pool.peak} of {pool_end - NPERS}')

    H = f'{name}_helper'
    e.label(H)
    e.hist, e.vm, e.lg = [], [], []
    hunits = [('v', t) for t in range(10)] + [('k', t) for t in range(10)]
    hplace = {}
    r = 128
    for un in hunits:
        for tau in range(2):
            hplace[(un, tau)] = ('reg', r)
            r += 8
    M4 = 24
    for j in range(4):
        e(f'v_mov_b32 {v(M4 + j)}, -1')

    def helper_init():
        e(f's_cmp_lg_u32 {s(S_W)}, 0')
        e(f's_cbranch_scc1 {H}_nocal')
        e(f's_lshl_b32 {s(S_T0)}, {s(S_H)}, 7')
        e(f's_add_u32 {s(S_T0)}, {s(S_T0)}, {s(S_NR)}')
        e(f's_add_u32 s82, {s(S_T0)}, {NR_CAL}')
        e(f's_add_u32 s83, {s(S_T0)}, {NR_CAL + 8192}')
        e('s_mov_b32 s80, -1')
        e('s_mov_b32 s81, -1')
        e(f's_mov_b32 {s(S_T0)}, {ncal}')
        e.label(f'{H}_cal')
        for hf in range(2):
            e('s_memtime s[76:77]')
            e('s_waitcnt lgkmcnt(0)')
            e(f'buffer_store_dword {v(V_M1)}, {v(V_MBST)}, {s(S_WS, 4)}, {s(82 + hf)} offen sc1')
            e('s_waitcnt vmcnt(0)')
            e('s_memtime s[78:79]')
            e('s_waitcnt lgkmcnt(0)')
            e('s_sub_u32 s78, s78, s76')
            e(f's_min_u32 {s(80 + hf)}, {s(80 + hf)}, s78')
        e(f's_sub_u32 {s(S_T0)}, {s(S_T0)}, 1')
        e(f's_cmp_lg_u32 {s(S_T0)}, 0')
        e(f's_cbranch_scc1 {H}_cal')
        e('s_cmp_lt_u32 s81, s80')
        e('s_cselect_b32 s80, 0x10001, 1')
        e.label(f'{H}_nocal')
        e('s_barrier')
        for sl_ in range(4):
            for hf in range(2):
                e(f's_add_u32 {s(S_T0)}, {s(S_VB0)}, {sl_ * 262144 + hf * 8192}')
                e(f's_add_u32 {s(S_T0)}, {s(S_T0)}, {s(S_NR)}')
                e(f'buffer_store_dwordx4 {v(M4, 4)}, {v(V_LANE16)}, {s(S_WS, 4)}, {s(S_T0)} offen sc1')
        init_done(f'{H}_noib', 's80')
    load_weights(hunits, hplace, VT_QKV, 0, helper_init, pre=True)
    e('s_barrier')
    init_wait(f'{H}_ibw', 32)
    if 'nohelp' in dbg:
        e('s_endpgm')
    S_PA, S_PB_, S_PC = 50, 51, 52
    GA, GB, GC, V_KR = V_OR, V_KXG, V_OW, V_QKR
    e(f's_lshl_b32 {s(S_PA)}, {s(S_W)}, 10')
    e(f's_and_b32 {s(S_T0)}, {s(S_W)}, {NH1 - 4 - 1}')
    e(f's_lshl_b32 {s(S_T0)}, {s(S_T0)}, 10')
    e(f's_add_u32 {s(S_PB_)}, {s(S_T0)}, 4096')
    e(f's_and_b32 {s(S_T0)}, {s(S_W)}, {nvl - 1}')
    e(f's_lshl_b32 {s(S_T0)}, {s(S_T0)}, 10')
    e(f's_add_u32 {s(S_PC)}, {s(S_T0)}, {NH1 * 1024}')
    e(f'v_add_u32 {v(GA)}, {s(S_PA)}, {v(V_LANE16)}')
    e(f'v_add_u32 {v(GB)}, {s(S_PB_)}, {v(V_LANE16)}')
    e(f'v_add_u32 {v(GC)}, {s(S_PC)}, {v(V_LANE16)}')
    e(f's_cmp_ge_u32 {s(S_PC)}, 8192')
    e(f's_cselect_b32 {s(S_T0)}, 8192, 0')
    e(f's_add_u32 {s(S_PC)}, {s(S_PC)}, {s(S_T0)}')
    for x in (S_PA, S_PB_, S_PC):
        e(f's_add_u32 {s(x)}, {s(x)}, {s(S_NR)}')
    for i, x in enumerate((S_PA, S_PB_, S_PC)):
        e(f's_mov_b32 {s(S_MBP + i)}, {s(x)}')
    e(f's_lshl_b32 {s(S_T0)}, {s(S_W)}, 9')
    e(f's_add_u32 {s(S_T0)}, {s(S_T0)}, {L_MQ}')
    e(f'v_add_u32 {v(V_KR)}, {s(S_T0)}, {v(V_L8)}')
    e(f's_mov_b32 {s(S_MBR2)}, 0x40000000')
    if segsig is not None:
        e(f's_cmp_eq_u32 {s(S_W)}, 3')
        e(f's_mov_b32 {s(S_SIG)}, {segsig}')
        e(f's_cselect_b32 {s(S_SIG)}, {s(S_SIG)}, 0x40000000')
    G0, GM, ZH, VA, KA, AFH = 32, 40, 44, 48, 56, 64
    if hstamps:
        stamp_init()
    hs = [0]

    def hstamp():
        if hstamps:
            e(f's_memtime {s(S_STAMP + 2 * hs[0], 2)}')
            hs[0] += 1

    def haf(k):
        e(f'ds_read_b64_tr_b16 {v(AFH + 4 * k, 2)}, {v(V_AF)} offset:{1024 * k}', tag=('af', k))
        e(f'ds_read_b64_tr_b16 {v(AFH + 4 * k + 2, 2)}, {v(V_AF)} offset:{1024 * k + 512}', tag=('af', k))

    def hsm(m, t):
        for tau in range(2):
            e(f'v_smfmac_f32_16x16x64_bf16 {v((VA if m == "v" else KA) + 4 * tau, 4)}, {v(AFH + 4 * t, 4)}, {u(hplace[((m, t), tau)][1], 8)}, {v(V_IDX)}')
    L = f'{H}_loop'
    e.label(L)
    e.hist, e.vm, e.lg = [], [], []
    hstamp()
    for j in range(0, 16, 2):
        e(f'v_mov_b64 {v(VA + j, 2)}, 0')
    e.label(f'{L}_poll')
    wd()
    if hstamps:
        e('s_add_u32 s27, s27, 1')
    for i in range(2):
        e(f'buffer_load_dwordx4 {v(G0 + 4 * i, 4)}, {v(V_LANE16)}, {s(S_WS, 4)}, {s(S_MBP + i)} offen sc1')
    e('s_waitcnt vmcnt(0)')
    e(f'v_max_u32 {v(GM)}, {v(G0)}, {v(G0 + 4)}')
    e(f'v_cmp_eq_u32 vcc, -1, {v(GM)}')
    e('s_mov_b64 exec, vcc')
    e(f's_cbranch_execnz {L}_poll')
    e('s_mov_b64 exec, -1')
    e(f'ds_write_b128 {v(GA)}, {v(G0, 4)}')
    e(f'ds_write_b128 {v(GB)}, {v(G0 + 4, 4)}')
    e('s_waitcnt lgkmcnt(0)')
    e('s_barrier')
    e.vm, e.lg = [], []
    hstamp()
    tl(0)
    for k in range(min(NH1, 7)):
        haf(k)
    for t in range(NH1):
        e.wait_lg(('af', t))
        hsm('v', t)
        if t + 7 < NH1:
            haf(t + 7)
    hsm('k', 0)
    e(f'v_pk_add_f32 {v(ZH, 2)}, {v(VA, 2)}, {v(VA + 2, 2)}')
    e(f'v_pk_add_f32 {v(ZH + 2, 2)}, {v(VA + 4, 2)}, {v(VA + 6, 2)}')
    e(f'buffer_store_dwordx4 {v(ZH, 4)}, {v(V_LANE16)}, {s(S_WS, 4)}, {s(S_VB)} offen sc1')
    hstamp()
    tl(1)
    e(f'buffer_store_dwordx4 {v(M4, 4)}, {v(V_LANE16)}, {s(S_WS, 4)}, {s(S_MBR2)} offen sc1')
    e(f's_mov_b32 {s(S_MBR2)}, {s(S_VB)}')
    for t in range(1, NH1):
        hsm('k', t)
    e.label(f'{L}_poll2')
    wd()
    e(f'buffer_load_dwordx4 {v(G0, 4)}, {v(V_LANE16)}, {s(S_WS, 4)}, {s(S_MBP + 2)} offen sc1')
    e('s_waitcnt vmcnt(0)')
    e(f'v_cmp_eq_u32 vcc, -1, {v(G0)}')
    e('s_mov_b64 exec, vcc')
    e(f's_cbranch_execnz {L}_poll2')
    e('s_mov_b64 exec, -1')
    e(f'ds_write_b128 {v(GC)}, {v(G0, 4)}')
    e('s_waitcnt lgkmcnt(0)')
    e('s_barrier')
    e.vm, e.lg = [], []
    tl(2)
    for k in range(NH1, 10):
        haf(k)
    for t in range(NH1, 10):
        e.wait_lg(('af', t))
        hsm('k', t)
    for t in range(NH1, 10):
        hsm('v', t)
    for f in fold(KA, ZH) + fold(KA + 4, ZH + 1):
        f()
    e(f'ds_write2st64_b32 {v(V_QKW)}, {v(ZH)}, {v(ZH + 1)} offset0:0 offset1:1', tag='kw')
    for f in fold(VA, ZH + 2) + fold(VA + 4, ZH + 3):
        f()
    e(f'buffer_store_dwordx2 {v(ZH + 2, 2)}, {v(V_L8)}, {s(S_WS, 4)}, {s(S_VMO)} offen offset:2048 sc1')
    e.wait_lg('kw')
    e('s_barrier')
    e(f'ds_read_b64 {v(ZH, 2)}, {v(V_KR)}')
    e(f's_add_u32 {s(S_STEP)}, {s(S_STEP)}, 1')
    e(f's_add_u32 {s(S_MSL)}, {s(S_MSL)}, {MB_STRIDE}')
    e(f's_and_b32 {s(S_MSL)}, {s(S_MSL)}, {3 * MB_STRIDE}')
    e(f's_lshl_b32 {s(S_T0)}, {s(S_MSL)}, 1')
    for i, x in enumerate((S_PA, S_PB_, S_PC)):
        e(f's_add_u32 {s(S_MBP + i)}, {s(x)}, {s(S_T0)}')
    e(f's_lshl_b32 {s(S_T0)}, {s(S_MSL)}, 4')
    e(f's_add_u32 {s(S_VB)}, {s(S_VB0)}, {s(S_T0)}')
    e('s_waitcnt lgkmcnt(0)')
    e(f'buffer_store_dwordx2 {v(ZH, 2)}, {v(V_L8)}, {s(S_WS, 4)}, {s(S_VMO)} offen sc1')
    e(f's_add_u32 {s(S_VMO)}, {s(S_VMO)}, {32 * 4096}')
    e('s_waitcnt vmcnt(0)')
    e('s_barrier')
    if segsig is not None:
        seg_signal()
    tl(3)
    tl_out(1, G0)
    if hstamps:
        hstamp()
        stamp_acc(hs[0])
    e(f's_cmp_lt_u32 {s(S_STEP)}, {nsteps}')
    e(f's_cbranch_scc1 {L}')
    if hstamps:
        stamp_out()
    e('s_endpgm')


if __name__ == '__main__':
    import argparse
    ap = argparse.ArgumentParser()
    ap.add_argument('--out', default='chain_test.s')
    ap.add_argument('--stamps', action='store_true')
    ap.add_argument('--kw', default='')
    args = ap.parse_args()
    em = Em()
    kw = eval('dict(' + args.kw + ')')
    gen_chain(em, stamps=args.stamps, **kw)
    hdr = '; @launch kernel=chain_kernel grid=(256,1,1) block=(256,1,1) lds=163840\n'
    hdr += '.amdgcn_target "amdgcn-amd-amdhsa--gfx950"\n.text\n.globl chain_kernel\n'
    open(args.out, 'w').write(hdr + em.text() + kd('chain_kernel', 512, 256))
```

```python
from emit import *
from layout import *
from gen_chain import Pool, f32bits, kd

S_WS = 4
S_DBG = 8
S_WQ = 12
S_WK = 16
S_WV = 20
S_WO = 24
S_H = 28
S_W = 29
S_STEP = 30
S_T0, S_T1, S_T2, S_T3 = 31, 32, 33, 34
S_MODE = 35
S_UNIT = 36
S_XCC = 37
S_C1 = 38
S_MASKLO = 40
S_LDSW = 42
S_SH13 = 43
S_MBP = 44
S_MSL = 48
S_M9D = 49
S_PBST = 50
S_MBL = 55
S_MBC = 56
S_MBN = 57
S_KXW = 58
S_KXM = 59
S_PBLD = 60
S_MDST = 61
S_VMO = 62
S_NR = 63
S_VB0, S_VB, S_MBL2, S_GOF2 = 66, 67, 68, 69
S_MBE0, S_MBD0, S_MBD2 = 73, 74, 47
S_GOF = 64
S_MBR2 = 65
S_VXO = 70
S_KMO = 71
S_WRM = 72
S_MBN2 = 75
S_STAMP = 76
S_SIG = 15
S_KVOK = 16

V_LANE16, V_IDX, V_AF, V_QKR, V_LDSW, V_QKW, V_OW, V_OR = range(8)
V_PBST, V_KXG, V_MBST, V_L8, V_WA, V_WT, V_M1, V_L64 = range(8, 16)
V_SEL = 16
V_ONES = 20
V_PM = 24
V_M2 = 26
NPERS = 28

NR_PING, NR_CAL, NR_VB = 8 * 16384, 9 * 16384, 16 * 16384
D_NEAR = 144
D_INIT, D_SLOW = 132, 136

_fj = [0]


def far_jump(e, label, sp):
    _fj[0] += 1
    here = f'Lfj{_fj[0]}'
    e(f's_getpc_b64 {s(sp, 2)}')
    e.label(here)
    e.raw(f'    s_add_u32 {s(sp)}, {s(sp)}, {label}-{here}')
    e.raw(f'    s_addc_u32 {s(sp + 1)}, {s(sp + 1)}, 0')
    e(f's_setpc_b64 {s(sp, 2)}')


def gen_chain(em, name='chain_kernel', mega=None, nmoda=0, pool_end=96, nsteps=64, stamps=False, stsel=(0, 1, 2, 3, 4, 5, 6, 7, 8, 9),
              hstamps=False, la_lds=5, afl=7, nvl=2, npre=4, noa=2, v_at=1, gdel=0, kdel=0, adel=3, nkl=4, wat=2, wat2=20, defer=True,
              warm=(('a', 0), ('a2', 1)), ncal=6, segsig=None, slow=True, early_poll=0, kvt=32,
              lds_un=(0, 1, 5, -9, -6, -3), dbg='', ldfl='nt'):
    L_MMEM = 0
    L_MQ = 10240
    L_MK = L_MQ + 2048
    L_O = L_MK + 2048
    L_KX = L_O + 2048
    L_VX = L_KX + 8192
    L_WB = L_VX + 8192
    NRING = 8
    WL = NRING * 4096
    assert L_WB + 4 * WL <= 163840
    e = em
    LN = 28
    NH1 = 10 - nvl

    ounits = [('o', t, p) for p in range(5) for t in range(2)]
    uorder = [(m, t) for t in range(10 - nkl) for m in 'qk'] + [(m, t) for m in 'qk' for t in range(10 - nkl, 10)] + [('v', t) for t in range(NH1, 10)]
    NQE = 40 - 2 * nkl
    NA = 2 * len(uorder)
    uorder += ounits
    order = [(un, tau) for un in uorder for tau in range(2)]
    n_reg = (512 - pool_end) // 8
    n_lds = len(order) - n_reg
    assert n_lds % 2 == 0 and n_lds <= 16, n_lds
    lun = sorted(x % len(uorder) for x in lds_un[:n_lds // 2])
    lun = [uorder[i] for i in lun]
    units = [un for un in uorder if un not in lun] + lun
    place = {}
    r = pool_end
    for i, un in enumerate(units):
        for tau in range(2):
            if un in lun:
                place[(un, tau)] = ('lds', 2 * (i % NRING) + tau)
            else:
                place[(un, tau)] = ('reg', r)
                r += 8
    assert r == 512

    em.raw('.p2align 8')
    em.raw(f'.type {name},@function')
    em.label(name)
    e('s_cmp_lt_u32 s2, 256')
    e(f's_cbranch_scc1 {name}_go')
    e('s_endpgm')
    e.label(f'{name}_go')
    if 'rt' in dbg:
        e('s_memrealtime s[96:97]')
    e('s_load_dwordx4 s[48:51], s[0:1], 16')
    e('s_load_dwordx4 s[52:55], s[0:1], 32')
    e('s_load_dwordx4 s[56:59], s[0:1], 112')
    e(f's_getreg_b32 {s(S_XCC)}, hwreg(HW_REG_XCC_ID)')
    e(f's_and_b32 {s(S_XCC)}, {s(S_XCC)}, 15')
    e('v_lshrrev_b32 v20, 6, v0')
    e('v_and_b32 v16, 63, v0')
    e(f'v_readfirstlane_b32 {s(S_W)}, v20')
    e('s_waitcnt lgkmcnt(0)')

    def srd(d, src, size):
        e(f's_mov_b32 {s(d)}, {s(src)}')
        e(f's_and_b32 {s(d + 1)}, {s(src + 1)}, 0xffff')
        e(f's_mov_b32 {s(d + 2)}, {size}')
        e(f's_mov_b32 {s(d + 3)}, 0x20000')
    srd(S_WQ, 48, 5242880)
    srd(S_WK, 50, 5242880)
    srd(S_WV, 52, 5242880)
    srd(S_WO, 54, 5242880)
    srd(S_DBG, 56, 256)
    srd(S_WS, 58, WS_SIZE)

    e(f's_and_b32 {s(S_MODE)}, s2, 7')
    e(f's_lshr_b32 {s(S_H)}, s2, 3')
    e(f's_cmp_lt_u32 {s(S_MODE)}, 2')
    e(f's_cbranch_scc1 {name}_hasrole')
    if mega:
        far_jump(e, mega, 44)
    else:
        e('s_endpgm')
    e.label(f'{name}_hasrole')
    e(f'v_mov_b32 {v(LN)}, v16')

    g, c, rp, cp, g1, g2, sw = 16, 17, 18, 19, 20, 21, 22
    T = 23
    e(f'v_lshrrev_b32 {v(g)}, 4, {v(LN)}')
    e(f'v_and_b32 {v(c)}, 15, {v(LN)}')
    e(f'v_lshrrev_b32 {v(rp)}, 2, {v(c)}')
    e(f'v_and_b32 {v(cp)}, 3, {v(LN)}')
    e(f'v_and_b32 {v(g1)}, 1, {v(g)}')
    e(f'v_lshrrev_b32 {v(g2)}, 1, {v(g)}')
    e(f'v_lshl_add_u32 {v(sw)}, {v(g1)}, 1, {v(g2)}')
    e(f'v_lshlrev_b32 {v(V_LANE16)}, 4, {v(LN)}')
    e(f'v_lshlrev_b32 {v(V_L64)}, 6, {v(LN)}')
    e(f'v_lshlrev_b32 {v(V_WA)}, 7, {v(c)}')
    e(f'v_mov_b32 {v(V_M1)}, -1')
    e(f'v_and_b32 {v(T)}, 2, {v(LN)}')
    e(f'v_cmp_ne_u32 vcc, 0, {v(T)}')
    e(f'v_mov_b32 {v(T + 1)}, 0x4444')
    e(f'v_mov_b32 {v(T + 2)}, 0xeeee')
    e(f'v_cndmask_b32 {v(V_IDX)}, {v(T + 1)}, {v(T + 2)}, vcc')
    e(f'v_lshl_add_u32 {v(T)}, {v(g)}, 2, {v(rp)}')
    e(f'v_lshlrev_b32 {v(T + 1)}, 3, {v(cp)}')
    e(f'v_lshl_add_u32 {v(V_AF)}, {v(T)}, 5, {v(T + 1)}')
    e(f'v_and_b32 {v(T + 2)}, 1, {v(cp)}')
    e(f'v_lshlrev_b32 {v(T + 2)}, 3, {v(T + 2)}')
    e(f'v_lshl_add_u32 {v(V_QKR)}, {v(T)}, 4, {v(T + 2)}')
    e(f'v_add_u32 {v(V_QKR)}, {L_MQ}, {v(V_QKR)}')
    e(f's_lshl_b32 {s(S_T0)}, {s(S_W)}, 5')
    e(f'v_add_u32 {v(T)}, {s(S_T0)}, {v(c)}')
    e(f'v_lshlrev_b32 {v(T + 2)}, 2, {v(sw)}')
    e(f'v_lshl_add_u32 {v(V_QKW)}, {v(T)}, 4, {v(T + 2)}')
    e(f'v_add_u32 {v(V_QKW)}, {L_MQ}, {v(V_QKW)}')
    e(f's_lshl_b32 {s(S_T0)}, {s(S_W)}, 2')
    e(f'v_add_u32 {v(T)}, {s(S_T0)}, {v(g)}')
    e(f'v_and_b32 {v(T + 3)}, 7, {v(LN)}')
    e(f'v_lshl_add_u32 {v(T)}, {v(T)}, 3, {v(T + 3)}')
    e(f'v_lshlrev_b32 {v(V_OW)}, 4, {v(T)}')
    e(f'v_add_u32 {v(V_OW)}, {L_O}, {v(V_OW)}')
    e(f'v_and_b32 {v(T)}, 1, {v(rp)}')
    e(f'v_lshrrev_b32 {v(T + 2)}, 1, {v(rp)}')
    e(f'v_lshl_add_u32 {v(T)}, {v(T)}, 1, {v(T + 2)}')
    e(f'v_and_b32 {v(T + 2)}, 1, {v(LN)}')
    e(f'v_lshl_add_u32 {v(T)}, {v(T)}, 1, {v(T + 2)}')
    e(f'v_lshl_add_u32 {v(T)}, {v(g)}, 3, {v(T)}')
    e(f'v_lshrrev_b32 {v(T + 2)}, 1, {v(cp)}')
    e(f'v_lshl_add_u32 {v(T)}, {v(T + 2)}, 5, {v(T)}')
    e(f'v_lshlrev_b32 {v(V_OR)}, 4, {v(T)}')
    e(f'v_add_u32 {v(V_OR)}, {L_O}, {v(V_OR)}')
    e(f'v_lshl_add_u32 {v(T)}, {v(g1)}, 2, {v(cp)}')
    e(f'v_lshlrev_b32 {v(T)}, 4, {v(T)}')
    e(f'v_lshl_add_u32 {v(T)}, {v(g2)}, 3, {v(T)}')
    e(f'v_lshl_add_u32 {v(V_PBST)}, {v(rp)}, 12, {v(T)}')
    e(f'v_and_b32 {v(T)}, 4, {v(LN)}')
    e(f'v_lshl_add_u32 {v(T)}, {v(sw)}, 3, {v(T)}')
    e(f'v_lshl_add_u32 {v(T)}, {v(cp)}, 5, {v(T)}')
    e(f'v_lshlrev_b32 {v(T + 1)}, 27, {v(c)}')
    e(f'v_and_b32 {v(T + 1)}, 0x40000000, {v(T + 1)}')
    e(f'v_or_b32 {v(V_MBST)}, {v(T)}, {v(T + 1)}')
    e(f'v_lshlrev_b32 {v(V_L8)}, 3, {v(LN)}')
    e(f'v_lshlrev_b32 {v(T)}, 4, {v(g)}')
    e(f'v_lshl_add_u32 {v(V_KXG)}, {v(c)}, 8, {v(T)}')
    e(f's_mul_i32 {s(S_LDSW)}, {s(S_W)}, {WL}')
    e(f's_add_u32 {s(S_LDSW)}, {s(S_LDSW)}, {L_WB}')
    e(f'v_add_u32 {v(V_LDSW)}, {s(S_LDSW)}, {v(V_LANE16)}')
    VG_QKV, VG_O, VT_QKV, VT_O = 28, 29, 30, 31
    e(f'v_lshrrev_b32 {v(T + 2)}, 1, {v(rp)}')
    e(f'v_and_b32 {v(T + 3)}, 1, {v(rp)}')
    e(f'v_lshlrev_b32 {v(T + 1)}, 3, {v(cp)}')
    e(f'v_lshlrev_b32 {v(T + 4)}, 5, {v(g1)}')
    e(f'v_lshl_add_u32 {v(T + 4)}, {v(T + 2)}, 4, {v(T + 4)}')
    e(f'v_lshl_add_u32 {v(T + 4)}, {v(g2)}, 2, {v(T + 4)}')
    e(f'v_add_u32 {v(T + 4)}, {v(T + 4)}, {v(T + 3)}')
    e(f'v_lshl_add_u32 {v(VT_QKV)}, {v(T + 4)}, 6, {v(T + 1)}')
    e(f'v_add_u32 {v(VT_QKV)}, {s(S_LDSW)}, {v(VT_QKV)}')
    e(f'v_lshlrev_b32 {v(T + 4)}, 5, {v(T + 2)}')
    e(f'v_lshl_add_u32 {v(T + 4)}, {v(g1)}, 4, {v(T + 4)}')
    e(f'v_lshl_add_u32 {v(T + 4)}, {v(g2)}, 2, {v(T + 4)}')
    e(f'v_add_u32 {v(T + 4)}, {v(T + 4)}, {v(T + 3)}')
    e(f'v_lshl_add_u32 {v(VT_O)}, {v(T + 4)}, 6, {v(T + 1)}')
    e(f'v_add_u32 {v(VT_O)}, {s(S_LDSW)}, {v(VT_O)}')
    e(f'v_lshrrev_b32 {v(T)}, 2, {v(LN)}')
    e(f'v_lshlrev_b32 {v(T + 1)}, 4, {v(cp)}')
    e(f'v_mul_u32_u24 {v(VG_O)}, 1280, {v(T)}')
    e(f'v_add_u32 {v(VG_O)}, {v(VG_O)}, {v(T + 1)}')
    e(f'v_lshl_add_u32 {v(VG_QKV)}, {v(T)}, 13, {v(T + 1)}')
    e(f's_lshl_b32 {s(S_T2)}, {s(S_H)}, 8')
    e(f's_lshl_b32 {s(S_T0)}, {s(S_W)}, 6')
    e(f's_add_u32 {s(S_T2)}, {s(S_T2)}, {s(S_T0)}')
    e(f's_mul_i32 {s(S_T3)}, {s(S_H)}, {128 * 1280}')
    e(f's_add_u32 {s(S_T3)}, {s(S_T3)}, {s(S_T0)}')
    e(f's_lshl_b32 {s(S_PBST)}, {s(S_W)}, 14')
    e(f's_lshl_b32 {s(S_T0)}, {s(S_H)}, 7')
    e(f's_add_u32 {s(S_PBST)}, {s(S_PBST)}, {s(S_T0)}')
    e(f's_mov_b32 {s(S_STEP)}, 0')
    e('s_mov_b32 s3, 0')
    e(f's_mov_b32 {s(S_MSL)}, 0')
    e(f's_lshl_b32 {s(S_T1)}, {s(S_H)}, 12')
    e(f's_add_u32 {s(S_KMO)}, {s(S_T1)}, {WS_KM}')
    e(f's_lshl_b32 {s(S_T0)}, {s(S_W)}, 9')
    e(f's_add_u32 {s(S_VMO)}, {s(S_KMO)}, {s(S_T0)}')
    e(f's_add_u32 {s(S_NR)}, {s(S_WS)}, 0x5fffff')
    e(f's_and_b32 {s(S_NR)}, {s(S_NR)}, 0xffe00000')
    e(f's_sub_u32 {s(S_NR)}, {s(S_NR)}, {s(S_WS)}')
    e(f's_lshl_b32 {s(S_T0)}, {s(S_W)}, 10')
    e(f's_lshr_b32 {s(S_T1)}, {s(S_H)}, 1')
    e(f's_lshl_b32 {s(S_T1)}, {s(S_T1)}, 14')
    e(f's_add_u32 {s(S_VB0)}, {s(S_T0)}, {s(S_T1)}')
    e(f's_and_b32 {s(S_T1)}, {s(S_H)}, 1')
    e(f's_lshl_b32 {s(S_T1)}, {s(S_T1)}, 12')
    e(f's_add_u32 {s(S_VB0)}, {s(S_VB0)}, {s(S_T1)}')
    e(f's_add_u32 {s(S_VB0)}, {s(S_VB0)}, {NR_VB}')

    def load_weights(ulist, place_, vt_o, tmpbase, first, pre=False):
        def issue(i):
            un = ulist[i]
            pos = i % NRING
            for q in range(4):
                if un[0] == 'o':
                    _, t, p = un
                    e(f's_add_u32 {s(S_T0)}, {s(S_T3)}, {(64 * t + 16 * q) * 1280 + 256 * p}')
                    srdn, vg = S_WO, VG_O
                else:
                    m, t = un
                    e(f's_add_u32 {s(S_T0)}, {s(S_T2)}, {(64 * t + 16 * q) * 8192}')
                    srdn, vg = {'q': S_WQ, 'k': S_WK, 'v': S_WV}[m], VG_QKV
                e(f's_add_u32 m0, {s(S_LDSW)}, {pos * 4096 + q * 1024}')
                e(f'buffer_load_dwordx4 {v(vg)}, {s(srdn, 4)}, {s(S_T0)} offen lds', tag=('dma', i))

        def process(i):
            un = ulist[i]
            pos = i % NRING
            e.wait_vm(('dma', i))
            vt = vt_o if un[0] == 'o' else VT_QKV
            for tau in range(2):
                kind, loc = place_[(un, tau)]
                dst = loc if kind == 'reg' else tmpbase + 8 * tau
                for n in range(4):
                    off = (8 * (n >> 1) + 2 * (n & 1)) * 64 + 32 * tau
                    e(f'ds_read_b64_tr_b16 {u(dst + 2 * n, 2)}, {v(vt)} offset:{pos * 4096 + off}')
            e.wait_lg()
            if kind == 'lds':
                assert loc == 2 * pos + 1 and i + NRING >= len(ulist)
                for n in range(4):
                    e(f'ds_write_b128 {v(V_LDSW)}, {v(tmpbase + 4 * n, 4)} offset:{pos * 4096 + 1024 * n}')
        n = len(ulist)
        if pre:
            first()
        for i in range(NRING):
            issue(i)
        if not pre:
            first()
        for i in range(n):
            process(i)
            if i + NRING < n:
                issue(i + NRING)

    def init_done(lab, inc='1'):
        e('s_waitcnt vmcnt(0)')
        e('s_barrier')
        e(f's_cmp_lg_u32 {s(S_W)}, 0')
        e(f's_cbranch_scc1 {lab}')
        e(f'v_mov_b32 v44, {D_INIT}')
        e(f'v_mov_b32 v45, {inc}')
        e('s_mov_b64 exec, 1')
        e(f'buffer_atomic_add v45, v44, {s(S_DBG, 4)}, 0 offen')
        e('s_mov_b64 exec, -1')
        e.label(lab)
        e.vm = []
        e.hist = []

    def init_wait(lab, t):
        e(f'v_mov_b32 {v(t + 2)}, 128')
        e.label(lab)
        wd()
        e('s_sleep 8')
        e(f'buffer_load_dwordx2 {v(t, 2)}, {v(t + 2)}, {s(S_DBG, 4)}, 0 offen sc1')
        e('s_waitcnt vmcnt(0)')
        e(f'v_readfirstlane_b32 {s(S_T0)}, {v(t)}')
        e(f'v_readfirstlane_b32 {s(S_T1)}, {v(t + 1)}')
        if nmoda:
            e(f's_cmp_lt_u32 {s(S_T0)}, {nmoda}')
            e(f's_cbranch_scc1 {lab}')
        e(f's_and_b32 {s(S_T0)}, {s(S_T1)}, 0xffff')
        e(f's_cmp_lt_u32 {s(S_T0)}, 64')
        e(f's_cbranch_scc1 {lab}')
        e(f's_lshr_b32 {s(S_T1)}, {s(S_T1)}, 16')
        e(f's_cmp_ge_u32 {s(S_T1)}, 16')
        e(f's_cselect_b32 {s(S_T0)}, 8192, 0')
        if 'far' in dbg:
            e(f's_xor_b32 {s(S_T0)}, {s(S_T0)}, 8192')
        e(f's_add_u32 {s(S_NR)}, {s(S_NR)}, {s(S_T0)}')
        e(f's_add_u32 {s(S_VB0)}, {s(S_VB0)}, {s(S_NR)}')
        e(f's_mov_b32 {s(S_VB)}, {s(S_VB0)}')

    def signal_block(t0):
        e(f's_lshl_b32 {s(S_T2)}, {s(S_T2)}, 7')
        e(f's_add_u32 {s(S_T2)}, {s(S_T2)}, {WS_CTR + C_CH * 128}')
        e(f'v_mov_b32 {v(t0)}, 1')
        e('s_mov_b64 exec, 1')
        e(f'buffer_atomic_add {v(t0)}, {v(V_LANE16)}, {s(S_WS, 4)}, {s(S_T2)} offen')
        e('s_mov_b64 exec, -1')

    def seg_signal():
        e('s_mov_b64 exec, 1')
        e(f'buffer_atomic_sub {v(V_M1)}, {v(V_LANE16)}, {s(S_WS, 4)}, {s(S_SIG)} offen')
        e('s_mov_b64 exec, -1')
        e(f's_add_u32 {s(S_SIG)}, {s(S_SIG)}, 128')

    def step_signal(L):
        if segsig is not None:
            return
        e(f's_and_b32 {s(S_T2)}, {s(S_STEP)}, 3')
        e(f's_lshl_b32 {s(S_T2)}, {s(S_T2)}, 2')
        e(f's_add_u32 {s(S_T2)}, {s(S_T2)}, {s(S_W)}')
        e(f's_cmp_lg_u32 {s(S_T2)}, 3')
        e(f's_cbranch_scc1 {L}_nosig')
        e(f's_cmp_eq_u32 {s(S_STEP)}, 0')
        e(f's_cbranch_scc1 {L}_nosig')
        e.cond_begin()
        e(f's_lshr_b32 {s(S_T2)}, {s(S_STEP)}, 2')
        e(f's_sub_u32 {s(S_T2)}, {s(S_T2)}, 1')
        signal_block(V_WT)
        e.cond_end()
        e.label(f'{L}_nosig')

    def tl(i):
        if 'tl' in dbg:
            e(f's_memrealtime {s(84 + 2 * i, 2)}')

    def tl_out(role, t):
        if 'tl' in dbg:
            e('s_waitcnt lgkmcnt(0)')
            for i in range(4):
                e(f'v_mov_b32 {v(t + i)}, {s(84 + 2 * i)}')
            e(f's_lshl_b32 {s(S_T0)}, {s(S_H)}, 2')
            e(f's_add_u32 {s(S_T0)}, {s(S_T0)}, {s(S_W)}')
            e(f's_lshl_b32 {s(S_T0)}, {s(S_T0)}, 6')
            e(f's_add_u32 {s(S_T0)}, {s(S_T0)}, {s(S_STEP)}')
            e(f's_lshl_b32 {s(S_T0)}, {s(S_T0)}, 4')
            e(f's_add_u32 {s(S_T0)}, {s(S_T0)}, {0x0F100000 + role * 0x40000}')
            e('s_mov_b64 exec, 1')
            e(f'buffer_store_dwordx4 {v(t, 4)}, {v(V_LANE16)}, {s(S_WS, 4)}, {s(S_T0)} offen')
            e('s_mov_b64 exec, -1')
            e.nop(2)

    def wd():
        if 'wd' in dbg:
            e('s_add_u32 s3, s3, 1')
            e('s_cmp_gt_u32 s3, 0x40000')
            _fj[0] += 1
            e(f's_cbranch_scc0 Lwd{_fj[0]}')
            e('s_endpgm')
            e.label(f'Lwd{_fj[0]}')

    def run(mf, side, ratio=2):
        side = list(side)
        for f in mf:
            f()
            for _ in range(ratio):
                if side:
                    side.pop(0)()
        for f in side:
            f()

    def fold(acc, dst):
        return [lambda: e(f'v_pk_add_f32 {v(acc, 2)}, {v(acc, 2)}, {v(acc + 2, 2)}'),
                lambda: e(f'v_cvt_pk_bf16_f32 {v(dst)}, {v(acc)}, {v(acc + 1)}')]

    def stamp_init():
        for i in range(17, 28):
            e(f's_mov_b32 {s(i)}, 0')
        e('s_memtime s[100:101]')
        e('s_waitcnt lgkmcnt(0)')
        for i in range(10):
            e(f's_mov_b32 {s(S_STAMP + 2 * i)}, s100')

    def stamp_acc(n):
        e('s_waitcnt lgkmcnt(0)')
        e(f's_sub_u32 {s(S_T0)}, {s(S_STAMP)}, s100')
        e(f's_add_u32 s17, s17, {s(S_T0)}')
        for i in range(n - 1):
            e(f's_sub_u32 {s(S_T0)}, {s(S_STAMP + 2 * i + 2)}, {s(S_STAMP + 2 * i)}')
            e(f's_add_u32 {s(18 + i)}, {s(18 + i)}, {s(S_T0)}')
        e(f's_mov_b32 s100, {s(S_STAMP + 2 * (n - 1))}')

    def stamp_out():
        e('v_mov_b32 v40, 0')
        for i in range(11):
            e(f'v_writelane_b32 v40, {s(17 + i)}, {i}')
        e(f'v_lshrrev_b32 v41, 2, {v(V_LANE16)}')
        e(f's_lshl_b32 {s(S_T0)}, {s(S_H)}, 2')
        e(f's_add_u32 {s(S_T0)}, {s(S_T0)}, {s(S_W)}')
        e(f's_lshl_b32 {s(S_T0)}, {s(S_T0)}, 8')
        e(f's_add_u32 {s(S_T0)}, {s(S_T0)}, 0x0F000000')
        e(f'buffer_store_dword v40, v41, {s(S_WS, 4)}, {s(S_T0)} offen')

    e(f's_cmp_eq_u32 {s(S_MODE)}, 0')
    e(f's_cbranch_scc1 {name}_chain')
    far_jump(e, f'{name}_helper', 44)
    e.label(f'{name}_chain')

    pool = Pool(NPERS, pool_end)
    cc = f32bits((128 ** -0.5) * 1.4426950408889634)
    e(f's_mov_b32 {s(S_C1)}, {cc:#x}')
    e(f's_mov_b32 {s(S_C1 + 1)}, {cc:#x}')
    e(f's_mov_b32 {s(S_MASKLO)}, -1')
    e(f's_mov_b32 {s(S_MASKLO + 1)}, 0')
    e(f's_lshl_b32 {s(S_T0)}, {s(S_H)}, 1')
    e(f's_add_u32 {s(S_T0)}, {s(S_T0)}, {s(S_W)}')
    e(f's_add_u32 {s(S_UNIT)}, {s(S_T0)}, 16')
    e(f's_cmp_lt_u32 {s(S_H)}, 16')
    e(f's_cselect_b32 {s(S_T0)}, {s(S_H)}, 255')
    e(f's_cmp_eq_u32 {s(S_W)}, 2')
    e(f's_cselect_b32 {s(S_UNIT)}, {s(S_T0)}, {s(S_UNIT)}')
    e(f's_cmp_eq_u32 {s(S_W)}, 3')
    e(f's_cselect_b32 {s(S_UNIT)}, 255, {s(S_UNIT)}')
    e(f's_mul_i32 {s(S_GOF)}, {s(S_W)}, 2560')

    def chain_init():
        e('s_load_dwordx2 s[76:77], s[0:1], 8')
        for j in range(4):
            e(f'v_mov_b32 {v(40 + j)}, -1')
        e(f's_lshl_b32 {s(S_T0)}, {s(S_H)}, 2')
        e(f's_add_u32 {s(S_T0)}, {s(S_T0)}, {s(S_W)}')
        e(f's_mul_i32 {s(S_T1)}, {s(S_T0)}, 2560')
        for sl_ in range(2):
            e(f's_add_u32 s78, {s(S_T1)}, {WS_PB + sl_ * PB_STRIDE}')
            for i in range(3):
                e(f'buffer_store_dwordx4 v[40:43], {v(V_LANE16)}, {s(S_WS, 4)}, s78 offen offset:{1024 * i} sc1')
        e(f's_lshl_b32 s78, {s(S_T0)}, 10')
        e(f's_add_u32 s79, s78, {WS_MB + MB_STRIDE}')
        e(f'buffer_store_dwordx4 v[40:43], {v(V_LANE16)}, {s(S_WS, 4)}, s79 offen sc1')
        e(f's_add_u32 s79, s78, {s(S_NR)}')
        e('s_add_u32 s79, s79, 32768')
        e(f's_cmp_ge_u32 {s(S_T0)}, 96')
        e('s_cselect_b32 s79, 0x40000000, s79')
        e(f'buffer_store_dwordx4 v[40:43], {v(V_LANE16)}, {s(S_WS, 4)}, s79 offen sc1')
        e('s_waitcnt lgkmcnt(0)')
        e('s_mov_b32 s80, s76')
        e('s_and_b32 s81, s77, 0xffff')
        e('s_mov_b32 s82, 10240')
        e('s_mov_b32 s83, 0x20000')
        e(f's_cmp_ge_u32 {s(S_T0)}, 40')
        e(f's_cbranch_scc1 {name}_nom0')
        e(f's_lshl_b32 s78, {s(S_T0)}, 6')
        e(f'v_lshrrev_b32 v44, 4, {v(V_LANE16)}')
        e('v_add_u32 v44, s78, v44')
        e('v_and_b32 v45, 1, v44')
        e('v_bfe_u32 v46, v44, 1, 2')
        e('v_bfe_u32 v47, v44, 3, 4')
        e('v_lshrrev_b32 v48, 7, v44')
        e('v_lshl_add_u32 v47, v45, 4, v47')
        e('v_lshl_add_u32 v47, v48, 5, v47')
        e('v_mul_u32_u24 v46, 2560, v46')
        e('v_lshl_add_u32 v46, v47, 1, v46')
        e('buffer_load_ushort v45, v46, s[80:83], 0 offen')
        e('buffer_load_ushort v47, v46, s[80:83], 0 offen offset:1280')
        e('v_lshlrev_b32 v44, 2, v44')
        e('s_waitcnt vmcnt(0)')
        e('v_lshl_or_b32 v45, v47, 16, v45')
        e('v_min_u32 v45, 0xfffffffe, v45')
        e(f's_mov_b32 s78, {WS_MB}')
        e(f's_cmp_ge_u32 {s(S_T0)}, 32')
        e('s_cselect_b32 s79, 8192, 0')
        e(f's_add_u32 s79, s79, {s(S_NR)}')
        e('s_add_u32 s80, s79, 8192')
        e(f'buffer_store_dword v45, v44, {s(S_WS, 4)}, s78 offen sc1')
        e(f'buffer_store_dword v45, v44, {s(S_WS, 4)}, s79 offen sc1')
        e(f'buffer_store_dword v45, v44, {s(S_WS, 4)}, s80 offen sc1')
        e.label(f'{name}_nom0')
        e(f's_lshl_b32 {s(S_T0)}, 1, {s(S_XCC)}')
        e(f'v_mov_b32 v44, {D_SLOW}')
        e(f'v_mov_b32 v45, {s(S_T0)}')
        e(f's_cmp_eq_u32 {s(S_W)}, 0')
        e('s_cselect_b64 exec, 1, 0')
        e(f'buffer_atomic_or v45, v44, {s(S_DBG, 4)}, 0 offen')
        e('s_mov_b64 exec, -1')
        init_done(f'{name}_noib')

    load_weights(units, place, VT_O, 48, chain_init)
    e.wait_lg()
    e('s_barrier')

    TT = NPERS
    e(f'v_and_b32 {v(TT)}, 16, {v(V_LANE16)}')
    e(f's_mov_b32 {s(S_T0)}, 0x3f80')
    e(f'v_lshlrev_b32 {v(TT)}, {v(TT)}, {s(S_T0)}')
    e(f'v_bfe_u32 {v(TT + 1)}, {v(V_LANE16)}, 5, 2')
    for rr in range(4):
        e(f'v_cmp_eq_u32 vcc, {rr}, {v(TT + 1)}')
        e(f'v_cndmask_b32 {v(V_SEL + rr)}, 0, {v(TT)}, vcc')
        e(f'v_mov_b32 {v(V_ONES + rr)}, 0x3f803f80')
    e(f'v_mov_b32 {v(V_PM + 1)}, 0')
    e(f'v_mov_b32 {v(V_PM + 2)}, 0')
    e(f's_add_u32 {s(S_MBP)}, {s(S_GOF)}, {WS_MB}')
    e(f's_add_u32 {s(S_PBST)}, {s(S_PBST)}, {WS_PB}')
    for p in range(1, 5):
        e(f's_add_u32 {s(S_PBST + p)}, {s(S_PBST)}, {p * 65536}')
    e(f's_lshl_b32 {s(S_T0)}, {s(S_UNIT)}, 12')
    e(f's_add_u32 {s(S_PBLD)}, {s(S_T0)}, {WS_PB}')
    e(f's_lshl_b32 {s(S_MBL)}, {s(S_UNIT)}, 7')
    e(f's_add_u32 {s(S_MBL)}, {s(S_MBL)}, {WS_MB}')
    e(f's_mov_b32 {s(S_MBC)}, {s(S_MBL)}')
    e(f's_add_u32 {s(S_MBN)}, {s(S_MBL)}, {MB_STRIDE}')
    e(f's_lshl_b32 {s(S_SH13)}, {s(S_H)}, 13')
    e(f's_lshl_b32 {s(S_T0)}, {s(S_W)}, 11')
    e(f's_add_u32 {s(S_VXO)}, {s(S_T0)}, {s(S_SH13)}')
    e(f's_add_u32 {s(S_WRM)}, {s(S_VXO)}, {WS_KX + 32 * 8192}')
    e(f's_add_u32 {s(S_VXO)}, {s(S_VXO)}, {WS_VXT}')
    e(f's_add_u32 {s(S_KXM)}, {s(S_T0)}, {L_KX}')
    e(f's_lshr_b32 {s(S_T0)}, {s(S_W)}, 1')
    e(f's_lshl_b32 {s(S_T0)}, {s(S_T0)}, 12')
    e(f's_and_b32 {s(S_T1)}, {s(S_W)}, 1')
    e(f's_lshl_b32 {s(S_T1)}, {s(S_T1)}, 7')
    e(f's_add_u32 {s(S_KXW)}, {s(S_T0)}, {s(S_T1)}')
    e(f's_add_u32 {s(S_KXW)}, {s(S_KXW)}, {s(S_SH13)}')
    e(f's_add_u32 {s(S_KXW)}, {s(S_KXW)}, {WS_KX}')

    def kx_items():
        return [
            lambda: e(f's_mov_b32 m0, {s(S_KXM)}'),
            lambda: e(f's_add_u32 {s(S_T0)}, {s(S_KXW)}, 64'),
            lambda: e(f'buffer_load_dwordx4 {v(V_KXG)}, {s(S_WS, 4)}, {s(S_KXW)} offen {ldfl} lds', tag='kx'),
            lambda: e(f's_add_u32 m0, {s(S_KXM)}, 1024'),
            lambda: e(f's_add_u32 {s(S_KXW)}, {s(S_KXW)}, {32 * 8192}'),
            lambda: e(f'buffer_load_dwordx4 {v(V_KXG)}, {s(S_WS, 4)}, {s(S_T0)} offen {ldfl} lds', tag='kx'),
            lambda: e(f's_add_u32 m0, {s(S_KXM)}, 8192'),
            lambda: e(f's_nop 0'),
            lambda: e(f'buffer_load_dwordx4 {v(V_LANE16)}, {s(S_WS, 4)}, {s(S_VXO)} offen {ldfl} lds', tag='kx'),
            lambda: e(f'buffer_load_dwordx4 {v(V_LANE16)}, {s(S_WS, 4)}, {s(S_VXO)} offen offset:1024 {ldfl} lds', tag='kx'),
            lambda: e(f's_add_u32 {s(S_VXO)}, {s(S_VXO)}, {32 * 8192}'),
        ]

    def kv_wait(lab, t1):
        e(f's_cmp_ge_u32 {s(S_KVOK)}, {s(S_T2)}')
        e(f's_cbranch_scc1 {lab}_ok')
        e.cond_begin()
        e(f's_mov_b32 {s(S_T3)}, {WS_CTR + C_KV * 128}')
        e.label(f'{lab}_spin')
        e(f'buffer_load_dword {v(t1)}, {v(V_WA)}, {s(S_WS, 4)}, {s(S_T3)} offen sc1')
        e('s_waitcnt vmcnt(0)')
        e(f'v_cmp_le_u32 vcc, {kvt}, {v(t1)}')
        e(f's_and_b32 {s(S_KVOK)}, vcc_lo, 0xffff')
        e(f's_ff0_i32_b32 {s(S_KVOK)}, {s(S_KVOK)}')
        e(f's_cmp_ge_u32 {s(S_KVOK)}, {s(S_T2)}')
        e(f's_cbranch_scc0 {lab}_spin')
        e.cond_end()
        e.label(f'{lab}_ok')

    def claim(b, n):
        for i in range(n):
            assert (b + i) in pool.free_, ('claim', b, n)
            pool.free_.remove(b + i)

    ACC = pool.must(24)
    VACC = ACC + 16
    V_EX = V_L8
    if 'rt' in dbg:
        e('s_memrealtime s[94:95]')
        e('s_waitcnt lgkmcnt(0)')
    init_wait(f'{name}_ibw', ACC)
    e(f's_lshl_b32 {s(S_MBL2)}, {s(S_UNIT)}, 7')
    e(f's_cmp_ge_u32 {s(S_UNIT)}, 64')
    e(f's_cselect_b32 {s(S_T0)}, 8192, 0')
    e(f's_add_u32 {s(S_MBL2)}, {s(S_MBL2)}, {s(S_T0)}')
    e(f's_add_u32 {s(S_MBL2)}, {s(S_MBL2)}, {s(S_NR)}')
    e(f's_cmp_ge_u32 {s(S_UNIT)}, 80')
    e(f's_cselect_b32 {s(S_MBL2)}, 0x40000000, {s(S_MBL2)}')
    e(f's_cmp_lt_u32 {s(S_UNIT)}, {8 * NH1 if defer else 80}')
    e(f's_cselect_b32 {s(S_MBE0)}, {s(S_MBL2)}, 0x40000000')
    e(f's_cselect_b32 {s(S_MBD0)}, 0x40000000, {s(S_MBL2)}')
    e(f's_add_u32 {s(S_MBN2)}, {s(S_MBE0)}, 32768')
    e(f's_mov_b32 {s(S_MBD2)}, 0x40000000')
    e(f's_add_u32 {s(S_MBR2)}, {s(S_MBL2)}, 65536')
    e(f'buffer_load_dword {v(ACC)}, {v(ACC + 2)}, {s(S_DBG, 4)}, 0 offen offset:8 sc1')
    e('s_waitcnt vmcnt(0)')
    e(f'v_readfirstlane_b32 {s(S_MODE)}, {v(ACC)}')
    e(f's_sub_u32 {s(S_T0)}, {s(S_MODE)}, 1')
    e(f's_and_b32 {s(S_MODE)}, {s(S_MODE)}, {s(S_T0)}')
    if 'slow' in dbg:
        e(f's_mov_b32 {s(S_MODE)}, 1')
    if mega:
        e(f's_mov_b32 {s(S_KVOK)}, 0')
        e(f's_mov_b32 {s(S_T2)}, 1')
        kv_wait(f'{name}_kv0', ACC)
    pre_slots = [sl for sl in order if place[sl][0] == 'lds'][:npre]
    PRE = [pool.alloc(8, 8, top=True) for _ in pre_slots]

    def pre_load():
        for sl, b in zip(pre_slots, PRE):
            loc = place[sl][1] * 2048
            e(f'ds_read_b128 {v(b, 4)}, {v(V_LDSW)} offset:{loc}')
            e(f'ds_read_b128 {v(b + 4, 4)}, {v(V_LDSW)} offset:{loc + 1024}')
    pre_load()
    for it in kx_items():
        it()
    e('s_waitcnt vmcnt(0) lgkmcnt(0)')
    e.vm = []
    e.lg = []
    if 'rt' in dbg:
        e('s_memrealtime s[98:99]')
        e('s_waitcnt lgkmcnt(0)')
    if 'tot' in dbg:
        e('s_memtime s[96:97]')
        e('s_waitcnt lgkmcnt(0)')
    if stamps:
        stamp_init()
    if slow:
        e(f's_cmp_lg_u32 {s(S_MODE)}, 0')
        e(f's_cbranch_scc1 {name}_slow')

    def body(sc, L):
        stamp_i = [0]
        call_i = [0]

        def stamp():
            call_i[0] += 1
            if stamps and (call_i[0] - 1) in stsel:
                e(f's_memtime {s(S_STAMP + 2 * stamp_i[0], 2)}')
                stamp_i[0] += 1

        e.label(L)
        e.hist = []
        e.vm = []
        e.lg = []
        stamp()
        G0, GM = ACC, ACC + 12
        e(f'v_add_u32 {v(GM + 1)}, {s(S_GOF)}, {v(V_LANE16)}')
        e('s_barrier')
        if adel:
            e(f's_sleep {adel}')
        e.label(f'{L}_pollA')
        e.hist = []
        wd()
        if stamps:
            e('s_add_u32 s27, s27, 0x10000')
        for i in range(3):
            e(f'buffer_load_dwordx4 {v(G0 + 4 * i, 4)}, {v(V_LANE16)}, {s(S_WS, 4)}, {s(S_MBP)} offen offset:{(0, 1024, 1536)[i]} sc1')
        for i in range(3):
            e(f's_waitcnt vmcnt({2 - i})')
            e(f'ds_write_b128 {v(GM + 1)}, {v(G0 + 4 * i, 4)} offset:{(0, 1024, 1536)[i]}')
        e(f'v_max3_u32 {v(GM)}, {v(G0)}, {v(G0 + 4)}, {v(G0 + 8)}')
        e(f'v_cmp_eq_u32 vcc, -1, {v(GM)}')
        e('s_mov_b64 exec, vcc')
        e(f's_cbranch_execnz {L}_pollA')
        e('s_mov_b64 exec, -1')
        e('s_waitcnt lgkmcnt(0)')
        e.label(f'{L}_gd')
        e('s_barrier')
        e.vm = []
        e.lg = []
        e.hist = []
        stamp()
        tl(0)
        pool.free(VACC, 8)

        loaded = {sl: b for sl, b in zip(pre_slots, PRE)}
        lds_pending = [sl for sl in order if place[sl][0] == 'lds' and sl not in loaded]
        st = dict(reserve=8, aflim=10)

        def pump_lds(cur_idx, force=False):
            while lds_pending and order.index(lds_pending[0]) <= cur_idx + la_lds:
                need = force and order.index(lds_pending[0]) <= cur_idx
                b = pool.alloc(8, 8, top=True, reserve=0 if need else st['reserve'])
                if b is None:
                    assert not need, 'no buffer for lds slot'
                    return
                lead = order.index(lds_pending[0]) - cur_idx
                if lead < 4 and cur_idx != NA:
                    print('; WARNING short lds lead', order.index(lds_pending[0]), lead)
                sl = lds_pending.pop(0)
                loc = place[sl][1] * 2048
                e(f'ds_read_b128 {v(b, 4)}, {v(V_LDSW)} offset:{loc}', tag=('lw', sl))
                e(f'ds_read_b128 {v(b + 4, 4)}, {v(V_LDSW)} offset:{loc + 1024}', tag=('lw', sl))
                loaded[sl] = b

        def smf(acc, af, sl):
            idx = order.index(sl)
            kind, loc = place[sl]
            if kind == 'reg':
                b = loc
            else:
                if sl not in loaded:
                    pump_lds(idx, True)
                b = loaded[sl]
                e.wait_lg(('lw', sl))
            e(f'v_smfmac_f32_16x16x64_bf16 {v(acc, 4)}, {v(af, 4)}, {u(b, 8)}, {v(V_IDX)}')
            if kind != 'reg':
                pool.free(b, 8)
            pump_lds(idx + 1)

        AF = {}
        afpos = [0]
        first_use = [min(i for i, o in enumerate(order[:40]) if o[0][1] == t) for t in range(10)]

        def af_pump(i, lead=None):
            while afpos[0] < st['aflim'] and first_use[afpos[0]] - i <= (lead or afl):
                k = afpos[0]
                b = pool.alloc(4)
                if b is None:
                    assert first_use[k] - i > 1, 'AF starved'
                    return
                afpos[0] += 1
                AF[k] = b
                e(f'ds_read_b64_tr_b16 {v(b, 2)}, {v(V_AF)} offset:{1024 * k}', tag=('af', k))
                e(f'ds_read_b64_tr_b16 {v(b + 2, 2)}, {v(V_AF)} offset:{1024 * k + 512}', tag=('af', k))

        af_pump(0)
        for j in range(0, 16, 2):
            e(f'v_mov_b64 {v(ACC + j, 2)}, 0')
        accof = {'q': 0, 'k': 8, 'v': 16}
        waited = set()

        def mk(i, sl):
            (m, t), tau = sl
            last = not any(o[0][1] == t for o in order[i + 1:40])

            def f():
                if t not in waited:
                    e.wait_lg(('af', t))
                    waited.add(t)
                smf(ACC + accof[m] + 4 * tau, AF[t], sl)
                if last:
                    pool.free(AF[t], 4)
                af_pump(i + 1)
            return f
        mf = [mk(i, sl) for i, sl in enumerate(order[:40])]
        run(mf[:wat], [], 0)

        def warm_items(pos):
            it = []
            for p_, what in warm:
                if p_ != pos:
                    continue
                if what:
                    it.append(lambda: e(f's_add_u32 {s(S_T0)}, {s(S_WRM)}, {WS_VXT - WS_KX}'))
                it.append(lambda what=what: e(f'buffer_load_dword {v(V_WT)}, {v(V_WA)}, {s(S_WS, 4)}, {s(S_T0 if what else S_WRM)} offen', tag='warm'))
            return it
        cold = [lambda: e(f'buffer_store_dword {v(V_EX)}, {v(V_MBST)}, {s(S_WS, 4)}, {s(S_MBD2)} offen sc1'),
                lambda: e(f'buffer_store_dword {v(V_M1)}, {v(V_MBST)}, {s(S_WS, 4)}, {s(S_MBR2)} offen sc1')]
        if not (defer and nvl):
            cold = cold[1:]
        if mega:
            e(f's_add_u32 {s(S_T2)}, {s(S_STEP)}, 5')
            e(f's_lshr_b32 {s(S_T2)}, {s(S_T2)}, 2')
            e(f's_min_u32 {s(S_T2)}, {s(S_T2)}, 16')
            kv_wait(f'{L}_kv', V_WT)
        run(mf[wat:wat2], warm_items('a') + cold, 2)
        run(mf[wat2:NQE - 4], warm_items('a2'), 2)
        st['reserve'] = 99
        SM = pool.alloc(8, 8, top=True)
        ZQ = SM
        ZVF = SM + 4
        kxb, sbuf = {}, {}

        def kx_read(f_, rsv=0):
            def g_():
                b = pool.alloc(4, reserve=rsv)
                if b is None:
                    return
                kxb[f_] = b
                e(f'ds_read_b128 {v(b, 4)}, {v(V_LANE16)} offset:{L_KX + f_ * 1024}', tag=('kx', f_))
            return g_

        def qm_read(kind, uu):
            def g_():
                b = sbuf[(kind, uu)] = pool.must(4)
                base = 0 if kind == 'q' else 2048
                for m in range(2):
                    e(f'ds_read_b64_tr_b16 {v(b + 2 * m, 2)}, {v(V_QKR)} offset:{base + uu * 512 + m * 256}', tag=('si', kind, uu))
            return g_

        def v_load():
            tl(1)
            e(f'buffer_load_dwordx4 {v(ZVF, 4)}, {v(V_LANE16)}, {s(S_WS, 4)}, {s(S_VB)} offen sc1', tag='vm')
        run(mf[NQE - 4:NQE], [], 1)
        late = mf[NQE:40]
        qf = fold(ACC, ZQ) + fold(ACC + 4, ZQ + 1) + [
            lambda: e(f'ds_write2st64_b32 {v(V_QKW)}, {v(ZQ)}, {v(ZQ + 1)} offset0:0 offset1:1', tag='qw')]
        kf = fold(ACC + 8, ZQ + 2) + fold(ACC + 12, ZQ + 3) + [
            lambda: e(f'ds_write2st64_b32 {v(V_QKW)}, {v(ZQ + 2)}, {v(ZQ + 3)} offset0:8 offset1:9', tag='kw')]
        run(late[:1], [kx_read(0, 4), kx_read(4, 4)], 2)
        run(late[1:3], qf, 3)
        run(late[3:6], [kx_read(1, 16), kx_read(5, 16), kx_read(2, 16)], 1)
        stamp()
        e.wait_lg('qw')
        e('s_barrier')
        pool.free(ACC, 8)
        SX = ACC
        claim(SX, 8)
        todo = []
        for uu in range(4):
            todo += [('q', uu)] + [('x', f_) for f_ in (uu, uu + 4) if f_ not in kxb]

        def try4():
            b = pool.alloc(4)
            if b is None:
                return False
            pool.free(b, 4)
            return True

        def s_fill2(maxn=99):
            n = 0
            while todo and n < maxn and try4():
                kind, x = todo.pop(0)
                if kind == 'x':
                    kx_read(x)()
                else:
                    qm_read(kind, x)()
                n += 1
        s_fill2(1)
        run(late[6:], [lambda: s_fill2(2)] * 4, 1)
        stamp()

        def sx(uu, ti):
            def f():
                f_ = uu + 4 * ti
                assert ('q', uu) in sbuf and f_ in kxb, 'S starved'
                e.wait_lg(('si', 'q', uu))
                e.wait_lg(('kx', f_))
                cin = '0' if uu == 0 else v(SX + 4 * ti, 4)
                e(f'v_mfma_f32_16x16x32_bf16 {v(SX + 4 * ti, 4)}, {v(kxb[f_], 4)}, {v(sbuf[("q", uu)], 4)}, {cin}')
                pool.free(kxb[f_], 4)
                s_fill2()
            return f
        sxl = [sx(uu, ti) for uu in range(4) for ti in range(2)]
        run(sxl[:2], [], 0)
        run([], kf, 0)
        run(sxl[2:4], [], 0)
        if v_at == 0:
            v_load()
        e.wait_lg('kw')
        e('s_barrier')
        pool.free(ACC + 8, 8)
        C0 = ACC + 8
        claim(C0, 4)
        todo_m = [('m', uu) for uu in range(4)]
        todo[:] = todo_m[:1] + todo + todo_m[1:]
        s_fill2()
        run(sxl[4:], [], 0)
        if v_at == 1:
            v_load()
        M = SM
        for uu in range(4):
            s_fill2()
            e.wait_lg(('si', 'm', uu))
            cin = '0' if uu == 0 else v(C0, 4)
            e(f'v_mfma_f32_16x16x32_bf16 {v(C0, 4)}, {v(sbuf[("m", uu)], 4)}, {v(sbuf[("q", uu)], 4)}, {cin}')
            pool.free(sbuf[('m', uu)], 4)
            pool.free(sbuf[('q', uu)], 4)
        assert not todo
        VA_ = pool.must(8)
        OACC = [pool.must(8) for _ in range(noa)]
        AFV = {}
        for t in range(NH1, 10):
            b = AFV[t] = OACC[(t - NH1) >> 1] + 4 * ((t - NH1) & 1)
            e(f'ds_read_b64_tr_b16 {v(b, 2)}, {v(V_AF)} offset:{1024 * t}', tag=('afv', t))
            e(f'ds_read_b64_tr_b16 {v(b + 2, 2)}, {v(V_AF)} offset:{1024 * t + 512}', tag=('afv', t))
        for j in range(0, 8 if nvl else 0, 2):
            e(f'v_mov_b64 {v(VA_ + j, 2)}, 0')

        def mkv(t, tau):
            def f():
                if tau == 0:
                    e.wait_lg(('afv', t))
                smf(VA_ + 4 * tau, AFV[t], (('v', t), tau))
            return f
        vmf = [mkv(t, tau) for t in range(NH1, 10) for tau in range(2)]
        P = pool.must(4)
        OA = pool.must(12)
        VX = pool.must(8)
        e(f'v_add_u32 {v(VX)}, {s(S_KXM)}, {v(V_LANE16)}')
        if v_at == 2:
            v_load()
        stamp()
        sm = []

        def V(x):
            sm.append(lambda: e(x))
        V(f'v_max3_f32 {v(M)}, {v(SX)}, {v(SX + 1)}, {v(SX + 2)}')
        V(f'v_max3_f32 {v(M + 1)}, {v(SX + 3)}, {v(SX + 4)}, {v(SX + 5)}')
        V(f'v_max3_f32 {v(M)}, {v(M)}, {v(SX + 6)}, {v(SX + 7)}')
        V(f'v_cndmask_b32 {v(C0)}, {v(C0 + 2)}, {v(C0)}, {s(S_MASKLO, 2)}')
        V(f'v_cndmask_b32 {v(C0 + 1)}, {v(C0 + 3)}, {v(C0 + 1)}, {s(S_MASKLO, 2)}')
        V(f'v_max3_f32 {v(M + 1)}, {v(M + 1)}, {v(C0)}, {v(C0 + 1)}')
        V(f'v_max_f32 {v(M)}, {v(M)}, {v(M + 1)}')
        V(f'v_max_f32 {v(M + 1)}, {v(M)}, {v(M + 1)}')
        V(f'v_permlane32_swap_b32 {v(M)}, {v(M + 1)}')
        V(f'v_max_f32 {v(M + 2)}, {v(M)}, {v(M + 1)}')
        V(f'v_max_f32 {v(M + 1)}, {v(M)}, {v(M + 1)}')
        V(f'v_permlane16_swap_b32 {v(M + 2)}, {v(M + 1)}')
        V(f'v_max_f32 {v(M)}, {v(M + 2)}, {v(M + 1)}')
        V(f'v_mul_f32 {v(M)}, {s(S_C1)}, {v(M)}')
        bub = {8: 1, 9: 1, 11: 1, 12: 1}
        for i, f in enumerate(sm):
            for _ in range(bub.get(i, 0)):
                if vmf:
                    vmf.pop(0)()
            f()
        if v_at == 3:
            v_load()
        e(f'ds_read_b128 {v(VX + 4, 4)}, {v(VX)} offset:{8192 + 1024}', tag='vx')
        e(f'ds_read_b128 {v(VX, 4)}, {v(VX)} offset:8192', tag='vx')
        for j in range(0, 10, 2):
            e(f'v_pk_fma_f32 {v(SX + j, 2)}, {v(SX + j, 2)}, {s(S_C1, 2)}, {v(M, 2)} op_sel_hi:[1,1,0] neg_lo:[0,0,1] neg_hi:[0,0,1]')
            if vmf:
                vmf.pop(0)()
        while vmf:
            vmf.pop(0)()
        zl = [(lambda b=b, j=j: e(f'v_mov_b64 {v(b + j, 2)}, 0')) for b in OACC for j in range(0, 8, 2)]

        def z(n=1):
            for _ in range(n):
                if zl:
                    zl.pop(0)()
        for j in range(8):
            e(f'v_exp_f32 {v(SX + j)}, {v(SX + j)}')
        for j in range(4):
            e(f'v_cvt_pk_bf16_f32 {v(P + j)}, {v(SX + 2 * j)}, {v(SX + 2 * j + 1)}')
        e.wait_lg('vx')
        e(f'v_exp_f32 {v(C0)}, {v(C0)}')
        e(f'v_mfma_f32_16x16x32_bf16 {v(OA + 8, 4)}, {v(V_ONES, 4)}, {v(P, 4)}, 0')
        e(f'v_exp_f32 {v(C0 + 1)}, {v(C0 + 1)}')
        e(f'v_mfma_f32_16x16x32_bf16 {v(OA, 4)}, {v(VX, 4)}, {v(P, 4)}, 0')
        e(f'v_cvt_pk_bf16_f32 {v(V_PM)}, {v(C0)}, {v(C0 + 1)}')
        e(f'v_cvt_pk_bf16_f32 {v(V_PM + 3)}, {v(C0)}, {v(C0 + 1)}')
        e(f'v_mfma_f32_16x16x32_bf16 {v(OA + 4, 4)}, {v(VX + 4, 4)}, {v(P, 4)}, 0')
        if nvl:
            e(f'v_pk_add_f32 {v(VA_, 2)}, {v(VA_, 2)}, {v(VA_ + 2, 2)}')
            e(f'v_pk_add_f32 {v(VA_ + 4, 2)}, {v(VA_ + 4, 2)}, {v(VA_ + 6, 2)}')
        e(f'v_mfma_f32_16x16x16_bf16 {v(OA + 8, 4)}, {v(V_ONES, 2)}, {v(V_PM, 2)}, {v(OA + 8, 4)}')
        z(4)
        if 'nov' not in dbg:
            e.wait_vm('vm')
            e(f'v_cmp_eq_u32 vcc, -1, {v(ZVF)}')
            e(f's_cbranch_vccnz {L}_fixv')
            e.label(f'{L}_pv2')
        ZV = VA_ + 2
        if nvl:
            e(f'v_pk_add_f32 {v(ZVF, 2)}, {v(ZVF, 2)}, {v(VA_, 2)}')
            e(f'v_pk_add_f32 {v(ZVF + 2, 2)}, {v(ZVF + 2, 2)}, {v(VA_ + 4, 2)}')
        e(f'v_cvt_pk_bf16_f32 {v(ZV)}, {v(ZVF)}, {v(ZVF + 1)}')
        e(f'v_cvt_pk_bf16_f32 {v(ZV + 1)}, {v(ZVF + 2)}, {v(ZVF + 3)}')
        e(f'v_rcp_f32 {v(M)}, {v(OA + 8)}')
        z(1)
        e(f'v_mfma_f32_16x16x16_bf16 {v(OA, 4)}, {v(ZV, 2)}, {v(V_PM, 2)}, {v(OA, 4)}')
        e(f'v_mfma_f32_16x16x16_bf16 {v(OA + 4, 4)}, {v(ZV, 2)}, {v(V_PM + 2, 2)}, {v(OA + 4, 4)}')
        pool.free(SX, 8)
        pool.free(VX, 8)
        pool.free(C0, 4)
        pool.free(VA_, 8)
        OF = pool.must(8)
        z(99)
        st['reserve'] = 0
        pump_lds(NA)
        for j in range(0, 8, 2):
            e(f'v_pk_mul_f32 {v(OA + j, 2)}, {v(OA + j, 2)}, {v(M, 2)} op_sel_hi:[1,0]')
        for j in range(4):
            e(f'v_cvt_pk_bf16_f32 {v(P + j)}, {v(OA + 2 * j)}, {v(OA + 2 * j + 1)}')
        e(f'ds_write_b128 {v(V_OW)}, {v(P, 4)}', tag='ow')
        pool.free(OA, 12)
        for x in [f's_add_u32 {s(S_WRM)}, {s(S_WRM)}, {32 * 8192}',
                  f's_add_u32 {s(S_MSL)}, {s(S_MSL)}, {MB_STRIDE}', f's_and_b32 {s(S_MSL)}, {s(S_MSL)}, {3 * MB_STRIDE}',
                  f's_add_u32 {s(S_T0)}, {s(S_MSL)}, {WS_MB}',
                  f's_add_u32 {s(S_MBP)}, {s(S_T0)}, {s(S_GOF)}',
                  f's_lshl_b32 {s(S_T0)}, {s(S_MSL)}, 4', f's_add_u32 {s(S_VB)}, {s(S_VB0)}, {s(S_T0)}',
                  f's_add_u32 {s(S_STEP)}, {s(S_STEP)}, 1']:
            e(x)
        e.wait_lg('ow')
        e('s_barrier')
        pool.free(P, 4)
        e(f'ds_read_b128 {v(OF, 4)}, {v(V_OR)}', tag='of0')
        e(f'ds_read_b128 {v(OF + 4, 4)}, {v(V_OR)} offset:1024', tag='of1')
        pump_lds(NA)
        kxi = kx_items()
        for f in kxi[:6]:
            f()
        stamp()
        ZO = [SM, SM + 2, SM + 4]

        def finish(p):
            ac = OACC[p % noa]
            zz = ZO[p % 3]
            it = fold(ac, zz) + fold(ac + 4, zz + 1)
            if p + noa < 5:
                it += [(lambda j=j: e(f'v_mov_b64 {v(ac + j, 2)}, 0')) for j in range(0, 4, 2)]
            it += [lambda: e(f'v_permlane16_swap_b32 {v(zz)}, {v(zz + 1)}'),
                   lambda: e(f'buffer_store_dwordx2 {v(zz, 2)}, {v(V_PBST)}, {s(S_WS, 4)}, {s(S_PBST + p)} offen {sc}', tag='pst')]
            if p + noa < 5:
                it += [(lambda j=j: e(f'v_mov_b64 {v(ac + j, 2)}, 0')) for j in range(4, 8, 2)]
            else:
                it += [lambda: pool.free(ac, 8)]
            return it
        sc2 = [f's_lshl_b32 {s(S_T0)}, {s(S_MSL)}, 1',
               f's_add_u32 {s(S_MBN2)}, {s(S_MBE0)}, {s(S_T0)}', f's_add_u32 {s(S_MBD2)}, {s(S_MBD0)}, {s(S_T0)}',
               f's_xor_b32 {s(S_T0)}, {s(S_T0)}, 65536', f's_add_u32 {s(S_MBR2)}, {s(S_MBL2)}, {s(S_T0)}',
               f's_add_u32 {s(S_MBN)}, {s(S_MBL)}, {s(S_MSL)}']
        sc2 = kxi[6:] + [(lambda x=x: e(x)) for x in sc2]
        for p in range(5):
            ac = OACC[p % noa]
            mo = []
            for t in range(2):
                for tau in range(2):
                    def f(t=t, tau=tau):
                        if p == 0 and tau == 0:
                            e.wait_lg(f'of{t}')
                        smf(ac + 4 * tau, OF + 4 * t, (('o', t, p), tau))
                    mo.append(f)
            side = finish(p - 1) if p >= 1 else sc2
            run(mo[:1], [], 0)
            run(mo[1:], side, 3 if p else 4)
        for f in finish(4):
            f()
        stamp()
        tl(3)
        pool.free(OF, 8)
        pool.free(SM, 8)
        assert not lds_pending
        claim(ACC, 24)
        for b in PRE:
            claim(b, 8)
        RB, RA, TM = ACC, VACC, VACC + 4

        def pb_loads():
            for i in range(4):
                e(f'buffer_load_dwordx4 {v(RB + 4 * i, 4)}, {v(V_LANE16)}, {s(S_WS, 4)}, {s(S_PBLD)} offen offset:{1024 * i} sc1', tag=('pb', i))
        if early_poll:
            e(f's_cmp_ge_u32 {s(S_UNIT)}, {early_poll}')
            e(f's_cbranch_scc1 {L}_nep')
            pb_loads()
            pre_load()
            for p in range(5):
                e(f's_xor_b32 {s(S_PBST + p)}, {s(S_PBST + p)}, {PB_STRIDE}')
            e(f's_branch {L}_pk1')
            e.label(f'{L}_nep')
        pre_load()
        for p in range(5):
            e(f's_xor_b32 {s(S_PBST + p)}, {s(S_PBST + p)}, {PB_STRIDE}')
        e(f's_cmp_ge_u32 {s(S_UNIT)}, 80')
        e(f's_cbranch_scc1 {L}_nored')
        if kdel:
            e.nop(kdel)
        e.label(f'{L}_pollK')
        e.hist = []
        wd()
        if stamps:
            e('s_add_u32 s27, s27, 1')
        pb_loads()
        e.label(f'{L}_pk1')
        e.hist = []
        for i in range(4):
            e(f's_waitcnt vmcnt({3 - i})')
            e(f'v_mfma_f32_16x16x32_bf16 {v(RA, 4)}, {v(V_SEL, 4)}, {v(RB + 4 * i, 4)}, {"0" if i == 0 else v(RA, 4)}')
            if i == 2:
                e(f'v_max3_u32 {v(TM)}, {v(RB)}, {v(RB + 4)}, {v(RB + 8)}')
        e(f'v_max_u32 {v(TM)}, {v(TM)}, {v(RB + 12)}')
        e(f'v_mov_b32_dpp {v(TM + 1)}, {v(TM)} quad_perm:[0,0,0,0] row_mask:0xf bank_mask:0xf')
        e(f'v_cmp_eq_u32 vcc, -1, {v(TM + 1)}')
        e('s_mov_b64 exec, vcc')
        e(f's_cbranch_execnz {L}_pollK')
        e('s_mov_b64 exec, -1')
        e.vm = []
        e(f'v_permlane32_swap_b32 {v(RA)}, {v(RA + 2)}')
        e(f'v_permlane32_swap_b32 {v(RA + 1)}, {v(RA + 3)}')
        e(f'v_add_f32_dpp {v(RA)}, {v(RA + 2)}, {v(RA)} row_ror:8 row_mask:0xf bank_mask:0xf')
        e(f'v_add_f32_dpp {v(RA + 1)}, {v(RA + 3)}, {v(RA + 1)} row_ror:8 row_mask:0xf bank_mask:0xf')
        e(f'v_cvt_pk_bf16_f32 {v(V_EX)}, {v(RA)}, {v(RA + 1)}')
        e(f'buffer_store_dword {v(V_EX)}, {v(V_MBST)}, {s(S_WS, 4)}, {s(S_MBN)} offen {sc}')
        e(f'buffer_store_dword {v(V_EX)}, {v(V_MBST)}, {s(S_WS, 4)}, {s(S_MBN2)} offen sc1')
        stamp()
        tl(2)
        e(f'buffer_store_dword {v(V_M1)}, {v(V_MBST)}, {s(S_WS, 4)}, {s(S_MBC)} offen {sc}')
        e(f'buffer_store_dword {v(V_M1)}, {v(V_L64)}, {s(S_WS, 4)}, {s(S_PBLD)} offen {sc}')
        e(f's_xor_b32 {s(S_PBLD)}, {s(S_PBLD)}, {PB_STRIDE}')
        e(f's_mov_b32 {s(S_MBC)}, {s(S_MBN)}')
        e(f's_branch {L}_end')
        e.label(f'{L}_nored')
        if stamps and call_i[0] - 1 in stsel:
            e(f's_memtime {s(S_STAMP + 2 * (stamp_i[0] - 1), 2)}')
        if gdel:
            e(f's_sleep {gdel}')
        e.label(f'{L}_end')
        e.hist = []
        tl_out(0, RB)
        e('s_waitcnt lgkmcnt(0)')
        if stamps:
            stamp()
            stamp_acc(stamp_i[0])
        e(f's_cmp_lg_u32 {s(S_STEP)}, {nsteps - 1}')
        e(f's_cbranch_scc1 {L}')
        e(f's_branch {name}_fin')
        if 'nov' in dbg:
            return
        e.label(f'{L}_fixv')
        wd()
        if stamps:
            e('s_add_u32 s26, s26, 63')
        e(f'buffer_load_dwordx4 {v(ZVF, 4)}, {v(V_LANE16)}, {s(S_WS, 4)}, {s(S_VB)} offen sc1')
        e('s_waitcnt vmcnt(0)')
        e(f'v_cmp_eq_u32 vcc, -1, {v(ZVF)}')
        e(f's_cbranch_vccnz {L}_fixv')
        e(f's_branch {L}_pv2')

    body('', f'{name}_fast')
    if slow:
        body('sc1', f'{name}_slow')
    e.label(f'{name}_fin')
    e.flush_hazards(4)
    e(f'buffer_store_dword {v(V_EX)}, {v(V_MBST)}, {s(S_WS, 4)}, {s(S_MBD2)} offen sc1')
    if stamps:
        stamp_out()
    if 'rt' in dbg or 'tot' in dbg:
        e(f's_cmp_lg_u32 {s(S_W)}, 1')
        e(f's_cbranch_scc1 {name}_exit')
    if 'rt' in dbg:
        e('s_memrealtime s[100:101]')
        e('s_waitcnt lgkmcnt(0)')
        e('v_mov_b32 v40, s96')
        e('v_mov_b32 v41, s98')
        e('v_mov_b32 v42, s100')
        e('v_mov_b32 v43, s94')
        e('v_mov_b32 v44, 0')
        e(f's_lshl_b32 {s(S_T0)}, {s(S_H)}, 6')
        e(f's_add_u32 {s(S_T0)}, {s(S_T0)}, 0x0F800000')
        e(f'buffer_store_dwordx4 v[40:43], v44, {s(S_WS, 4)}, {s(S_T0)} offen')
    if 'tot' in dbg:
        e('s_memtime s[98:99]')
        e('s_waitcnt lgkmcnt(0)')
        e('s_sub_u32 s98, s98, s96')
        e('v_mov_b32 v40, s98')
        e('v_mov_b32 v42, 0')
        e(f's_lshl_b32 {s(S_T0)}, {s(S_H)}, 6')
        e(f's_add_u32 {s(S_T0)}, {s(S_T0)}, 0x0F800000')
        e(f'buffer_store_dword v40, v42, {s(S_WS, 4)}, {s(S_T0)} offen')
    e.label(f'{name}_exit')
    e('s_endpgm')
    print(f'; chain12: n_reg={n_reg} n_lds={n_lds} pool peak={pool.peak} of {pool_end - NPERS}')

    H = f'{name}_helper'
    e.label(H)
    e.hist, e.vm, e.lg = [], [], []
    hunits = [('v', t) for t in range(10)] + [('k', t) for t in range(10)]
    hplace = {}
    r = 128
    for un in hunits:
        for tau in range(2):
            hplace[(un, tau)] = ('reg', r)
            r += 8
    M4 = 24
    for j in range(4):
        e(f'v_mov_b32 {v(M4 + j)}, -1')

    def helper_init():
        e(f's_cmp_lg_u32 {s(S_W)}, 0')
        e(f's_cbranch_scc1 {H}_nocal')
        e(f's_lshl_b32 {s(S_T0)}, {s(S_H)}, 7')
        e(f's_add_u32 {s(S_T0)}, {s(S_T0)}, {s(S_NR)}')
        e(f's_add_u32 s82, {s(S_T0)}, {NR_CAL}')
        e(f's_add_u32 s83, {s(S_T0)}, {NR_CAL + 8192}')
        e('s_mov_b32 s80, -1')
        e('s_mov_b32 s81, -1')
        e(f's_mov_b32 {s(S_T0)}, {ncal}')
        e.label(f'{H}_cal')
        for hf in range(2):
            e('s_memtime s[76:77]')
            e('s_waitcnt lgkmcnt(0)')
            e(f'buffer_store_dword {v(V_M1)}, {v(V_MBST)}, {s(S_WS, 4)}, {s(82 + hf)} offen sc1')
            e('s_waitcnt vmcnt(0)')
            e('s_memtime s[78:79]')
            e('s_waitcnt lgkmcnt(0)')
            e('s_sub_u32 s78, s78, s76')
            e(f's_min_u32 {s(80 + hf)}, {s(80 + hf)}, s78')
        e(f's_sub_u32 {s(S_T0)}, {s(S_T0)}, 1')
        e(f's_cmp_lg_u32 {s(S_T0)}, 0')
        e(f's_cbranch_scc1 {H}_cal')
        e('s_cmp_lt_u32 s81, s80')
        e('s_cselect_b32 s80, 0x10001, 1')
        e.label(f'{H}_nocal')
        e('s_barrier')
        for sl_ in range(4):
            for hf in range(2):
                e(f's_add_u32 {s(S_T0)}, {s(S_VB0)}, {sl_ * 262144 + hf * 8192}')
                e(f's_add_u32 {s(S_T0)}, {s(S_T0)}, {s(S_NR)}')
                e(f'buffer_store_dwordx4 {v(M4, 4)}, {v(V_LANE16)}, {s(S_WS, 4)}, {s(S_T0)} offen sc1')
        init_done(f'{H}_noib', 's80')
    load_weights(hunits, hplace, VT_QKV, 0, helper_init, pre=True)
    e('s_barrier')
    init_wait(f'{H}_ibw', 32)
    if 'nohelp' in dbg:
        e('s_endpgm')
    S_PA, S_PB_, S_PC = 50, 51, 52
    GA, GB, GC, V_KR = V_OR, V_KXG, V_OW, V_QKR
    e(f's_lshl_b32 {s(S_PA)}, {s(S_W)}, 10')
    e(f's_and_b32 {s(S_T0)}, {s(S_W)}, {NH1 - 4 - 1}')
    e(f's_lshl_b32 {s(S_T0)}, {s(S_T0)}, 10')
    e(f's_add_u32 {s(S_PB_)}, {s(S_T0)}, 4096')
    e(f's_and_b32 {s(S_T0)}, {s(S_W)}, {nvl - 1}')
    e(f's_lshl_b32 {s(S_T0)}, {s(S_T0)}, 10')
    e(f's_add_u32 {s(S_PC)}, {s(S_T0)}, {NH1 * 1024}')
    e(f'v_add_u32 {v(GA)}, {s(S_PA)}, {v(V_LANE16)}')
    e(f'v_add_u32 {v(GB)}, {s(S_PB_)}, {v(V_LANE16)}')
    e(f'v_add_u32 {v(GC)}, {s(S_PC)}, {v(V_LANE16)}')
    e(f's_cmp_ge_u32 {s(S_PC)}, 8192')
    e(f's_cselect_b32 {s(S_T0)}, 8192, 0')
    e(f's_add_u32 {s(S_PC)}, {s(S_PC)}, {s(S_T0)}')
    for x in (S_PA, S_PB_, S_PC):
        e(f's_add_u32 {s(x)}, {s(x)}, {s(S_NR)}')
    for i, x in enumerate((S_PA, S_PB_, S_PC)):
        e(f's_mov_b32 {s(S_MBP + i)}, {s(x)}')
    e(f's_lshl_b32 {s(S_T0)}, {s(S_W)}, 9')
    e(f's_add_u32 {s(S_T0)}, {s(S_T0)}, {L_MQ}')
    e(f'v_add_u32 {v(V_KR)}, {s(S_T0)}, {v(V_L8)}')
    e(f's_mov_b32 {s(S_MBR2)}, 0x40000000')
    if segsig is not None:
        e(f's_cmp_eq_u32 {s(S_W)}, 3')
        e(f's_mov_b32 {s(S_SIG)}, {segsig}')
        e(f's_cselect_b32 {s(S_SIG)}, {s(S_SIG)}, 0x40000000')
    G0, GM, ZH, VA, KA, AFH = 32, 40, 44, 48, 56, 64
    if hstamps:
        stamp_init()
    hs = [0]

    def hstamp():
        if hstamps:
            e(f's_memtime {s(S_STAMP + 2 * hs[0], 2)}')
            hs[0] += 1

    def haf(k):
        e(f'ds_read_b64_tr_b16 {v(AFH + 4 * k, 2)}, {v(V_AF)} offset:{1024 * k}', tag=('af', k))
        e(f'ds_read_b64_tr_b16 {v(AFH + 4 * k + 2, 2)}, {v(V_AF)} offset:{1024 * k + 512}', tag=('af', k))

    def hsm(m, t):
        for tau in range(2):
            e(f'v_smfmac_f32_16x16x64_bf16 {v((VA if m == "v" else KA) + 4 * tau, 4)}, {v(AFH + 4 * t, 4)}, {u(hplace[((m, t), tau)][1], 8)}, {v(V_IDX)}')
    L = f'{H}_loop'
    e.label(L)
    e.hist, e.vm, e.lg = [], [], []
    hstamp()
    for j in range(0, 16, 2):
        e(f'v_mov_b64 {v(VA + j, 2)}, 0')
    e.label(f'{L}_poll')
    wd()
    if hstamps:
        e('s_add_u32 s27, s27, 1')
    for i in range(2):
        e(f'buffer_load_dwordx4 {v(G0 + 4 * i, 4)}, {v(V_LANE16)}, {s(S_WS, 4)}, {s(S_MBP + i)} offen sc1')
    e('s_waitcnt vmcnt(0)')
    e(f'v_max_u32 {v(GM)}, {v(G0)}, {v(G0 + 4)}')
    e(f'v_cmp_eq_u32 vcc, -1, {v(GM)}')
    e('s_mov_b64 exec, vcc')
    e(f's_cbranch_execnz {L}_poll')
    e('s_mov_b64 exec, -1')
    e(f'ds_write_b128 {v(GA)}, {v(G0, 4)}')
    e(f'ds_write_b128 {v(GB)}, {v(G0 + 4, 4)}')
    e('s_waitcnt lgkmcnt(0)')
    e('s_barrier')
    e.vm, e.lg = [], []
    hstamp()
    tl(0)
    for k in range(min(NH1, 7)):
        haf(k)
    for t in range(NH1):
        e.wait_lg(('af', t))
        hsm('v', t)
        if t + 7 < NH1:
            haf(t + 7)
    hsm('k', 0)
    e(f'v_pk_add_f32 {v(ZH, 2)}, {v(VA, 2)}, {v(VA + 2, 2)}')
    e(f'v_pk_add_f32 {v(ZH + 2, 2)}, {v(VA + 4, 2)}, {v(VA + 6, 2)}')
    e(f'buffer_store_dwordx4 {v(ZH, 4)}, {v(V_LANE16)}, {s(S_WS, 4)}, {s(S_VB)} offen sc1')
    hstamp()
    tl(1)
    e(f'buffer_store_dwordx4 {v(M4, 4)}, {v(V_LANE16)}, {s(S_WS, 4)}, {s(S_MBR2)} offen sc1')
    e(f's_mov_b32 {s(S_MBR2)}, {s(S_VB)}')
    for t in range(1, NH1):
        hsm('k', t)
    e.label(f'{L}_poll2')
    wd()
    e(f'buffer_load_dwordx4 {v(G0, 4)}, {v(V_LANE16)}, {s(S_WS, 4)}, {s(S_MBP + 2)} offen sc1')
    e('s_waitcnt vmcnt(0)')
    e(f'v_cmp_eq_u32 vcc, -1, {v(G0)}')
    e('s_mov_b64 exec, vcc')
    e(f's_cbranch_execnz {L}_poll2')
    e('s_mov_b64 exec, -1')
    e(f'ds_write_b128 {v(GC)}, {v(G0, 4)}')
    e('s_waitcnt lgkmcnt(0)')
    e('s_barrier')
    e.vm, e.lg = [], []
    tl(2)
    for k in range(NH1, 10):
        haf(k)
    for t in range(NH1, 10):
        e.wait_lg(('af', t))
        hsm('k', t)
    for t in range(NH1, 10):
        hsm('v', t)
    for f in fold(KA, ZH) + fold(KA + 4, ZH + 1):
        f()
    e(f'ds_write2st64_b32 {v(V_QKW)}, {v(ZH)}, {v(ZH + 1)} offset0:0 offset1:1', tag='kw')
    for f in fold(VA, ZH + 2) + fold(VA + 4, ZH + 3):
        f()
    e(f'buffer_store_dwordx2 {v(ZH + 2, 2)}, {v(V_L8)}, {s(S_WS, 4)}, {s(S_VMO)} offen offset:2048 sc1')
    e.wait_lg('kw')
    e('s_barrier')
    e(f'ds_read_b64 {v(ZH, 2)}, {v(V_KR)}')
    e(f's_add_u32 {s(S_STEP)}, {s(S_STEP)}, 1')
    e(f's_add_u32 {s(S_MSL)}, {s(S_MSL)}, {MB_STRIDE}')
    e(f's_and_b32 {s(S_MSL)}, {s(S_MSL)}, {3 * MB_STRIDE}')
    e(f's_lshl_b32 {s(S_T0)}, {s(S_MSL)}, 1')
    for i, x in enumerate((S_PA, S_PB_, S_PC)):
        e(f's_add_u32 {s(S_MBP + i)}, {s(x)}, {s(S_T0)}')
    e(f's_lshl_b32 {s(S_T0)}, {s(S_MSL)}, 4')
    e(f's_add_u32 {s(S_VB)}, {s(S_VB0)}, {s(S_T0)}')
    e('s_waitcnt lgkmcnt(0)')
    e(f'buffer_store_dwordx2 {v(ZH, 2)}, {v(V_L8)}, {s(S_WS, 4)}, {s(S_VMO)} offen sc1')
    e(f's_add_u32 {s(S_VMO)}, {s(S_VMO)}, {32 * 4096}')
    e('s_waitcnt vmcnt(0)')
    e('s_barrier')
    if segsig is not None:
        seg_signal()
    tl(3)
    tl_out(1, G0)
    if hstamps:
        hstamp()
        stamp_acc(hs[0])
    e(f's_cmp_lt_u32 {s(S_STEP)}, {nsteps}')
    e(f's_cbranch_scc1 {L}')
    if hstamps:
        stamp_out()
    e('s_endpgm')


if __name__ == '__main__':
    import argparse
    ap = argparse.ArgumentParser()
    ap.add_argument('--out', default='chain_test.s')
    ap.add_argument('--stamps', action='store_true')
    ap.add_argument('--kw', default='')
    args = ap.parse_args()
    em = Em()
    kw = eval('dict(' + args.kw + ')')
    gen_chain(em, stamps=args.stamps, **kw)
    hdr = '; @launch kernel=chain_kernel grid=(256,1,1) block=(256,1,1) lds=163840\n'
    hdr += '.amdgcn_target "amdgcn-amd-amdhsa--gfx950"\n.text\n.globl chain_kernel\n'
    open(args.out, 'w').write(hdr + em.text() + kd('chain_kernel', 512, 256))
```

```python
from emit import *
from layout import *
from gen_chain import f32bits, kd
from gen_gemm import Gemm
import gen_all
from gen_all import start, load_srds, end, lane_wave, silu_inplace, wave_sum, rnd2, LOG2E, KA, SIZES
import gen_chain13 as gen_chainX
from gen_chain13 import far_jump

LOG = False
SLEEP = 8
SLEEPN = 1
DSLEEP = 24
WS_LOG = 0x0F400000
POOLS = [('wk_att', 11), ('wk_wo', 40), ('wk_ln2', 8), ('wk_up', 27), ('wk_dn', 10)]
GSZ = sum(c for _, c in POOLS)
NATT = 22
WS_CT2 = 0x00040000
K_CH, K_ATT, K_WO, K_LN2, K_UP = 0, 64, 128, 192, 256
NCH = 32
NMODA, NLN, NMODB = 40, 128, 80
NPRE = NMODA + NLN + NMODB
NTASK = NPRE + 768
D_TASK, D_MOD, D_MODB = 64, 128, 140
D_POST, D_TQ = 60, 72
N0 = 14
S_RANK, S_PB = 60, 30
SW = 29
S_W1, S_W3, S_W2, S_X, S_OUT, S_SEL = 64, 68, 72, 76, 80, 84
VL = 1
_bj = [0]
KNAME = ['']


def back_jump(e, label, sp=44):
    _bj[0] += 1
    here = f'Lbj{_bj[0]}'
    e(f's_getpc_b64 {s(sp, 2)}')
    e.label(here)
    e.raw(f'    s_add_u32 {s(sp)}, {s(sp)}, {label}-{here}')
    e.raw(f'    s_addc_u32 {s(sp + 1)}, {s(sp + 1)}, -1')
    e(f's_setpc_b64 {s(sp, 2)}')


def reset(e):
    e.hist = []
    e.vm = []
    e.lg = []


def dep_wait(e, lab, deps, sb):
    e(f's_cmp_lg_u32 {s(SW)}, 0')
    e(f's_cbranch_scc1 {lab}_dw')
    e(f's_lshl_b32 s38, {s(sb)}, 7')
    e('v_mov_b32 v2, 0')
    for i, (c, tgt) in enumerate(deps):
        e(f's_add_u32 s39, s38, {WS_CTR + c * 128}')
        e.label(f'{lab}_sp{i}')
        e('buffer_load_dword v3, v2, s[4:7], s39 offen sc1')
        e('s_waitcnt vmcnt(0)')
        e('v_readfirstlane_b32 s37, v3')
        e(f's_cmp_ge_u32 s37, {tgt}')
        e(f's_cbranch_scc1 {lab}_ok{i}')
        for _ in range(SLEEPN):
            e(f's_sleep {SLEEP}')
        e(f's_branch {lab}_sp{i}')
        e.label(f'{lab}_ok{i}')
    e.label(f'{lab}_dw')
    e('s_barrier')
    if LOG:
        e('s_memrealtime s[100:101]')
        e('s_waitcnt lgkmcnt(0)')
        e('s_mov_b32 s63, s100')
    reset(e)


def dbg_wait(e, lab, off_sgpr_or_int, tgt):
    e(f's_cmp_lg_u32 {s(SW)}, 0')
    e(f's_cbranch_scc1 {lab}_dw')
    e(f'v_mov_b32 v2, {off_sgpr_or_int}')
    e.label(f'{lab}_sp')
    e('buffer_load_dword v3, v2, s[8:11], 0 offen sc1')
    e('s_waitcnt vmcnt(0)')
    e('v_readfirstlane_b32 s37, v3')
    e(f's_cmp_ge_u32 s37, {tgt}')
    e(f's_cbranch_scc1 {lab}_dw')
    e(f's_sleep {DSLEEP}')
    e(f's_branch {lab}_sp')
    e.label(f'{lab}_dw')
    e('s_barrier')
    if LOG:
        e('s_memrealtime s[100:101]')
        e('s_waitcnt lgkmcnt(0)')
        e('s_mov_b32 s63, s100')
    reset(e)


def signal(e, lab, c, sb, loop, dbg_off=None):
    e('s_waitcnt vmcnt(0) lgkmcnt(0)')
    e('s_barrier')
    if LOG:
        e('s_memrealtime s[100:101]')
        e('s_waitcnt lgkmcnt(0)')
        e('v_mov_b32 v4, s63')
        e('v_mov_b32 v5, s100')
        e('v_mov_b32 v6, s61')
        e('v_mov_b32 v7, s28')
        e('v_mov_b32 v2, 0')
        e('s_lshl_b32 s38, s62, 4')
        e(f's_add_u32 s38, s38, {WS_LOG}')
        e('buffer_store_dwordx4 v[4:7], v2, s[4:7], s38 offen')
    if dbg_off is not None:
        e(f's_cmp_lg_u32 {s(SW)}, 0')
        e(f's_cbranch_scc1 {lab}_sg')
        e(f'v_mov_b32 v2, {dbg_off}')
        e('v_mov_b32 v3, 1')
        e('s_mov_b64 exec, 1')
        e('buffer_atomic_add v3, v2, s[8:11], 0 offen')
        e('s_mov_b64 exec, -1')
        e.label(f'{lab}_sg')
    elif c is not None:
        e(f's_cmp_lg_u32 {s(SW)}, 0')
        e(f's_cbranch_scc1 {lab}_sg')
        if isinstance(c, int):
            e(f's_lshl_b32 s38, {s(sb)}, 7')
            e(f's_add_u32 s38, s38, {WS_CTR + c * 128}')
        else:
            e(f's_add_u32 s38, {s(sb)}, {c}')
            e('s_lshl_b32 s38, s38, 7')
            e(f's_add_u32 s38, s38, {WS_CTR}')
        e('v_mov_b32 v2, 0')
        e('v_mov_b32 v3, 1')
        e('s_mov_b64 exec, 1')
        e('buffer_atomic_add v3, v2, s[4:7], s38 offen')
        e('s_mov_b64 exec, -1')
        e.label(f'{lab}_sg')
    back_jump(e, loop)


def mid(e):
    if LOG:
        e('s_memrealtime s[100:101]')
        e('s_waitcnt lgkmcnt(0)')
        e('s_mov_b32 s61, s100')


def h_qkv(e, loop):
    name = 'wk_qkv'
    e.label(name)
    reset(e)
    e('s_cmp_eq_u32 s23, 1')
    e(f's_cselect_b32 {s(S_SEL)}, s16, s12')
    e(f's_cselect_b32 {s(S_SEL + 1)}, s17, s13')
    e('s_cmp_eq_u32 s23, 2')
    e(f's_cselect_b32 {s(S_SEL)}, s20, {s(S_SEL)}')
    e(f's_cselect_b32 {s(S_SEL + 1)}, s21, {s(S_SEL + 1)}') if False else None
    return


def gen_workers(e, loop='wk_loop'):
    B, P1, P2 = 52, 53, 54
    e.label('wk_entry')
    reset(e)
    e(f'v_mov_b32 {v(VL)}, v16')
    load_srds(e, [('w1', S_W1), ('w3', S_W3), ('w2', S_W2), ('x', S_X), ('out', S_OUT)], tmp=88)
    e(f's_mov_b32 {s(S_SEL + 2)}, 5242880')
    e(f's_mov_b32 {s(S_SEL + 3)}, 0x20000')
    e('s_bfe_u32 s3, s2, 0x10003')
    e(f's_lshr_b32 {s(S_RANK)}, s2, 4')
    e(f's_mul_i32 {s(S_RANK)}, {s(S_RANK)}, 6')
    e('s_and_b32 s48, s2, 7')
    e(f's_add_u32 {s(S_RANK)}, {s(S_RANK)}, s48')
    e(f's_sub_u32 {s(S_RANK)}, {s(S_RANK)}, 2')

    def logstart(sidx, base):
        if LOG:
            e(f's_add_u32 s62, {s(sidx)}, {base}')
            e('s_memrealtime s[100:101]')
            e('s_waitcnt lgkmcnt(0)')
            e('s_mov_b32 s63, s100')
            e('s_mov_b32 s28, s100')
            e('s_mov_b32 s61, s100')
    e('s_mov_b32 s48, 0')
    e('s_cmp_eq_u32 s3, 0')
    e(f's_cbranch_scc1 {loop}')
    logstart(S_RANK, 0)
    far_jump(e, 'wk_qkv', 44)
    e.label(loop)
    reset(e)
    e('s_add_u32 s48, s48, 1')
    e('s_cmp_gt_u32 s48, 3')
    e('s_cbranch_scc1 wk_rank')
    e(f's_cmp_ge_u32 {s(S_RANK)}, {NMODA}')
    e('s_cbranch_scc1 wk_nm')
    e(f's_lshl_b32 {s(P1)}, {s(S_RANK)}, 1')
    e(f's_add_u32 {s(P1)}, {s(P1)}, s48')
    e(f's_add_u32 {s(P1)}, {s(P1)}, {NMODA - 2}')
    e('s_cmp_eq_u32 s48, 1')
    e(f's_cselect_b32 {s(P1)}, {s(S_RANK)}, {s(P1)}')
    logstart(P1, 8000)
    far_jump(e, 'wk_mod', 44)
    e.label('wk_nm')
    e(f's_mul_i32 {s(P1)}, s48, {96 - NMODA}')
    e(f's_add_u32 {s(P1)}, {s(P1)}, {s(S_RANK)}')
    e(f's_sub_u32 {s(P1)}, {s(P1)}, 96')
    e(f's_cmp_ge_u32 {s(P1)}, {NLN}')
    e('s_cbranch_scc1 wk_rank')
    logstart(P1, 8200)
    far_jump(e, 'wk_ln1', 44)
    e.label('wk_rank')
    dbg_wait(e, 'wk_ma', D_MOD, NMODA)
    e.label('wk_pool')
    e(f's_mul_i32 s49, s3, {N0}')
    e(f's_add_u32 {s(B)}, s49, s3')
    if LOG:
        e('s_memrealtime s[100:101]')
        e('s_waitcnt lgkmcnt(0)')
        e('s_mov_b32 s63, s100')
        e('s_mov_b32 s28, s100')
        e('s_mov_b32 s61, s100')
    lo = 0
    for lab, cnt in POOLS:
        hi = lo + cnt
        e(f's_cmp_ge_u32 {s(S_RANK)}, {hi}')
        e(f's_cbranch_scc1 wk_n{hi}')
        e(f's_sub_u32 {s(P1)}, {s(S_RANK)}, {lo}')
        far_jump(e, lab, 44)
        e.label(f'wk_n{hi}')
        lo = hi
    e('s_endpgm')

    name = 'wk_qkv'
    e.label(name)
    reset(e)
    e(f's_mul_i32 s50, {s(S_RANK)}, 1366')
    e('s_lshr_b32 s50, s50, 16')
    assert all((x * 1366) >> 16 == x // 48 for x in range(192))
    e('s_mul_i32 s51, s50, 48')
    e(f's_sub_u32 s51, {s(S_RANK)}, s51')
    e(f's_and_b32 {s(P1)}, s51, 15')
    e(f's_lshr_b32 {s(P2)}, s51, 4')
    e(f's_cmp_eq_u32 {s(P2)}, 0')
    e(f's_cselect_b32 {s(S_SEL)}, s16, s12')
    e(f's_cselect_b32 {s(S_SEL + 1)}, s17, s13')
    e(f's_cmp_eq_u32 {s(P2)}, 1')
    e(f's_cselect_b32 {s(S_SEL)}, s20, {s(S_SEL)}')
    e(f's_cselect_b32 {s(S_SEL + 1)}, s21, {s(S_SEL + 1)}')
    panels = [(S_SEL, 8192, 128), (S_SEL, 8192, 128)]
    G = Gemm(e, 32, panels, 1, 4, 10, 128, nstage=1, vbase=104, sbase=40)
    G.setup(VL, SW, 6)
    e('s_mov_b32 s55, 0')
    e(f's_lshl_b32 s56, {s(P1)}, 9')
    e('s_add_u32 s57, s56, 256')
    G.init_offsets(55, [56, 57])
    QW = 192

    def qw(ks, ni):
        return QW + (ks * 4 + ni) * 4
    NS = 4
    assert NS * G.stage <= 163840
    for k in range(NS):
        for f in G.dma_items(None, k, ('w', k), 'w'):
            f()
    for k in range(10):
        e.wait_vm(('w', k))
        e('s_barrier')
        if k >= 1 and k - 1 + NS < 10:
            for f in G.dma_items(None, (k - 1) % NS, ('w', k - 1 + NS), 'w'):
                f()
        for ks in range(2):
            for ni in range(4):
                for m in range(2):
                    e(f'ds_read_b64_tr_b16 {u(qw(2 * k + ks, ni) + 2 * m, 2)}, {v(G.v_wa + ni)} offset:{(32 * ks + 16 * m) * 256}')
        d = G.stage if (k + 1) % NS else -(NS - 1) * G.stage
        for ni in range(4):
            if d >= 0:
                e(f'v_add_u32 {v(G.v_wa + ni)}, {d}, {v(G.v_wa + ni)}')
            else:
                e(f'v_subrev_u32 {v(G.v_wa + ni)}, {-d}, {v(G.v_wa + ni)}')
        e.wait_lg()
    mid(e)
    dbg_wait(e, name + '_a', D_MOD, NMODA)
    if LOG:
        e('s_memrealtime s[100:101]')
        e('s_waitcnt lgkmcnt(0)')
        e('v_mov_b32 v4, s63')
        e('v_mov_b32 v5, s100')
        e('v_mov_b32 v6, s61')
        e('v_mov_b32 v7, s28')
        e('v_mov_b32 v2, 0')
        e(f's_lshl_b32 s38, {s(S_RANK)}, 4')
        e(f's_add_u32 s38, s38, {WS_LOG + 8400 * 16}')
        e('buffer_store_dwordx4 v[4:7], v2, s[4:7], s38 offen')
    QA, QX, QO = 16, 48, 80
    e(f's_mul_i32 s55, s50, {32 * 1280}')
    e(f's_add_u32 s55, s55, {WS_H1}')
    e('s_mov_b32 s56, 0')
    e('s_lshl_b32 s33, s50, 5')
    e(f's_lshl_b32 s34, {s(P1)}, 1')
    e('s_add_u32 s33, s33, s34')
    e('s_lshl_b32 s33, s33, 13')
    e(f's_mov_b32 s34, {WS_QX}')
    e(f's_mov_b32 s35, {WS_CTR + C_Q * 128}')
    e(f's_cmp_lg_u32 {s(P2)}, 2')
    e(f's_cselect_b32 s34, {WS_KX}, s34')
    e(f's_cselect_b32 s35, {WS_CTR + C_KV * 128}, s35')
    e(f's_cmp_eq_u32 {s(P2)}, 1')
    e(f's_cselect_b32 s34, {WS_VXT}, s34')
    e('s_add_u32 s33, s33, s34')
    e(f's_lshl_b32 s31, {s(SW)}, 6')
    e(f's_lshl_b32 s32, {s(SW)}, 11')
    e(f's_cmp_eq_u32 {s(P2)}, 1')
    e('s_cselect_b32 s31, s32, s31')
    e('s_add_u32 s33, s33, s31')
    e(f'v_and_b32 v2, 15, {v(VL)}')
    e(f'v_lshrrev_b32 v3, 4, {v(VL)}')
    e('v_lshlrev_b32 v3, 4, v3')
    e('v_lshl_add_u32 v4, v2, 8, v3')
    e(f'v_lshlrev_b32 v5, 4, {v(VL)}')
    e('v_lshlrev_b32 v6, 7, v2')
    e('v_mov_b32 v7, -1')
    e('v_lshl_add_u32 v8, v3, 26, v6')
    e('s_mov_b32 s51, 0')
    e('s_mov_b32 s34, 0')
    e(f's_cmp_lg_u32 {s(SW)}, 0')
    e('s_cselect_b32 s35, 0x40000000, s35')

    e('s_mov_b32 s58, 0')
    e('s_mov_b32 s59, 0')

    def x_issue(lab):
        e('s_lshr_b32 s57, s58, 1')
        e('s_min_u32 s57, s57, 15')
        e('s_add_u32 s58, s58, 1')
        e('s_cmp_lt_u32 s57, s59')
        e(f's_cbranch_scc1 {lab}_ok')
        e(f's_mov_b32 s39, {WS_CTR + C_LN1 * 128}')
        e.label(lab)
        e('buffer_load_dword v3, v6, s[4:7], s39 offen sc1')
        e('s_waitcnt vmcnt(0)')
        e('v_cmp_le_u32 vcc, 8, v3')
        e('s_and_b32 s59, vcc_lo, 0xffff')
        e('s_ff0_i32_b32 s59, s59')
        e('s_cmp_lt_u32 s57, s59')
        e(f's_cbranch_scc1 {lab}_ok')
        e('s_sleep 2')
        e(f's_branch {lab}')
        e.label(lab + '_ok')
        for j, n in enumerate((4, 4, 2)):
            e(f's_mul_i32 s57, {s(SW)}, {n * 1024}')
            if j:
                e(f's_add_u32 s57, s57, {16384 * j}')
            e('s_add_u32 m0, s57, s56')
            e('s_add_u32 s57, s57, s55')
            for i in range(n):
                e(f'buffer_load_dwordx4 {v(G.v_xg + (i & 1))}, s[4:7], s57 offen offset:{1024 * i} sc1 lds')
        e(f's_add_u32 s57, s55, {64 * 1280}')
        e(f's_cmp_lt_u32 s57, {WS_H1 + 2048 * 1280}')
        e('s_cselect_b32 s55, s57, s55')
        e('s_add_u32 s56, s56, 40960')
        e('s_cmp_lt_u32 s56, 163840')
        e('s_cselect_b32 s56, s56, 0')

    def qsig(upto):
        e(f's_sub_u32 s37, {upto}, s34')
        e('s_bfm_b64 exec, s37, s34')
        e('s_or_b32 exec_lo, exec_lo, 0x10000')
        e(f's_mov_b32 s34, {upto}')
        e('buffer_atomic_sub v7, v8, s[4:7], s35 offen')
        e('s_mov_b64 exec, -1')
    x_issue(name + '_w0')
    x_issue(name + '_w1')
    e('s_waitcnt vmcnt(10)')
    e(f's_cmp_lg_u32 {s(P2)}, 1')
    e(f's_cbranch_scc1 {name}_T')
    far_jump(e, f'{name}_N', 98)

    def qtask(o):
        x_issue(f'{name}_x{o}')
        D = 4

        def rd(ks):
            for mi in range(2):
                e(f'ds_read_b128 {v(QX + 8 * (ks % D) + 4 * mi, 4)}, {v(G.v_xa + (ks & 1))} offset:{(ks >> 1) * 4096 + mi * 2048}', tag=('xf', ks))
        for ks in range(D - 1):
            rd(ks)
        for ks in range(20):
            if ks + D - 1 < 20:
                rd(ks + D - 1)
            e.wait_lg(('xf', ks))
            for mi in range(2):
                for ni in range(4):
                    ac = v(QA + (mi * 4 + ni) * 4, 4)
                    fx, fw = v(QX + 8 * (ks % D) + 4 * mi, 4), u(qw(ks, ni), 4)
                    A_, B_ = (fx, fw) if o == 'N' else (fw, fx)
                    e(f'v_mfma_f32_16x16x32_bf16 {ac}, {A_}, {B_}, {"0" if ks == 0 else ac}')
        e('s_add_u32 s51, s51, 1')
        e('s_and_b32 s57, s51, 3')
        e('s_mov_b32 s57, 40960')
        e('s_cselect_b32 s57, s57, 0xfffe2000')
        for i in range(2):
            e(f'v_add_u32 {v(G.v_xa + i)}, s57, {v(G.v_xa + i)}')
        e('s_add_u32 s36, s33, 8192')
        for k in range(4):
            t = QO + 4 * k
            if o == 'T':
                mi, p = k >> 1, k & 1
                srcs = [QA + (mi * 4 + p * 2 + hf) * 4 for hf in range(2)]
            else:
                p, a_ = k >> 1, k & 1
                srcs = [QA + (hf * 4 + p * 2 + a_) * 4 for hf in range(2)]
            for hf in range(2):
                e(f'v_cvt_pk_bf16_f32 {v(t + 2 * hf)}, {v(srcs[hf])}, {v(srcs[hf] + 1)}')
                e(f'v_cvt_pk_bf16_f32 {v(t + 2 * hf + 1)}, {v(srcs[hf] + 2)}, {v(srcs[hf] + 3)}')
            if o == 'T':
                if k == 2:
                    e('s_add_u32 s33, s33, 4096')
                    e('s_add_u32 s36, s36, 4096')
                e(f'buffer_store_dwordx4 {v(t, 4)}, v4, s[4:7], {"s36" if p else "s33"} offen sc1')
            else:
                e(f'buffer_store_dwordx4 {v(t, 4)}, v5, s[4:7], {"s36" if p else "s33"} offen offset:{1024 * a_} sc1')
        e(f's_add_u32 s33, s33, {64 * 8192 - (4096 if o == "T" else 0)}')
    for o in 'TN':
        nm = f'{name}_{o}'
        e.label(nm)
        reset(e)
        e('s_sub_u32 s36, s51, 1')
        e('s_lshr_b32 s36, s36, 1')
        e('s_cmp_eq_u32 s51, 0')
        e('s_cselect_b32 s36, 0, s36')
        e('s_cmp_lg_u32 s51, 2')
        e(f's_cbranch_scc1 {nm}_nd')
        e('s_waitcnt vmcnt(0)')
        e('s_mov_b32 s36, 1')
        if LOG:
            e('s_memrealtime s[100:101]')
            e('s_waitcnt lgkmcnt(0)')
            e('s_mov_b32 s63, s100')
        e.label(nm + '_nd')
        e('s_waitcnt vmcnt(15)')
        e('s_barrier')
        qsig('s36')
        qtask(o)
        e('s_cmp_lt_u32 s51, 32')
        e(f's_cbranch_scc1 {nm}')
        e('s_waitcnt vmcnt(0)')
        e('s_barrier')
        qsig(16)
        if o == 'T':
            far_jump(e, f'{name}_end', 98)
    e.label(f'{name}_end')
    reset(e)
    if LOG:
        e('s_memrealtime s[100:101]')
        e('s_waitcnt lgkmcnt(0)')
        e('v_mov_b32 v4, s63')
        e('v_mov_b32 v5, s100')
        e('v_mov_b32 v2, 0')
        e(f's_lshl_b32 s38, {s(S_RANK)}, 4')
        e(f's_add_u32 s38, s38, {WS_LOG}')
        e('buffer_store_dwordx2 v[4:5], v2, s[4:7], s38 offen')
    back_jump(e, 'wk_pool')

    name = 'wk_ln1'
    e.label(name)
    reset(e)
    RPW = 4
    e(f's_lshl_b32 s30, {s(P1)}, 2')
    e(f's_add_u32 s30, s30, {s(SW)}')
    e(f's_mul_i32 s30, s30, {RPW * 1280}')
    e(f'v_lshlrev_b32 v4, 2, {v(VL)}')
    e('s_add_u32 s31, s30, 2560')
    for r in range(RPW):
        for i in range(5):
            e(f'buffer_load_dword {v(16 + 5 * r + i)}, v4, {s(S_X, 4)}, {"s30" if r < 2 else "s31"} offen offset:{(r & 1) * 1280 + 256 * i}', tag=('x', r))
    e(f's_mov_b32 s32, {f32bits(1.0 / 640):#x}')
    e(f's_mov_b32 s33, {f32bits(1e-5):#x}')
    e('s_waitcnt vmcnt(0)')
    for r in range(RPW):
        X = 64 + 10 * r
        for i in range(5):
            e(f'v_lshlrev_b32 {v(X + 2 * i)}, 16, {v(16 + 5 * r + i)}')
            e(f'v_and_b32 {v(X + 2 * i + 1)}, 0xffff0000, {v(16 + 5 * r + i)}')
        e(f'v_add_f32 v8, {v(X)}, {v(X + 1)}')
        for j in range(2, 10):
            e(f'v_add_f32 v8, v8, {v(X + j)}')
        wave_sum(e, 8, 9)
        e('v_mul_f32 v8, s32, v8')
        e('v_mov_b32 v10, 0')
        for j in range(10):
            e(f'v_sub_f32 v9, {v(X + j)}, v8')
            e('v_fmac_f32 v10, v9, v9')
        wave_sum(e, 10, 9)
        e('v_mul_f32 v10, s32, v10')
        rnd2(e, 8, 10, 7)
        e('v_add_f32 v10, s33, v10')
        rnd2(e, 10, 9, 7)
        e('v_sqrt_f32 v10, v10')
        rnd2(e, 10, 9, 7)
        e('v_rcp_f32 v10, v10')
        for j in range(0, 10, 2):
            a_, b_ = X + j, X + j + 1
            e(f'v_sub_f32 {v(a_)}, {v(a_)}, v8')
            e(f'v_sub_f32 {v(b_)}, {v(b_)}, v8')
            rnd2(e, a_, b_, 7)
            e(f'v_mul_f32 {v(a_)}, {v(a_)}, v10')
            e(f'v_mul_f32 {v(b_)}, {v(b_)}, v10')
            rnd2(e, a_, b_, 7)
    e('s_cmp_lg_u32 s48, 1')
    e(f's_cbranch_scc1 {name}_m')
    dbg_wait(e, name, D_MOD, NMODA)
    e.label(f'{name}_m')
    reset(e)
    e(f'v_lshlrev_b32 v3, 3, {v(VL)}')
    e(f's_mov_b32 s34, {WS_MOD}')
    e(f's_mov_b32 s35, {WS_MOD + 2560}')
    for i in range(5):
        e(f'buffer_load_dwordx2 {v(16 + 2 * i, 2)}, v3, s[4:7], s34 offen offset:{512 * i} sc1')
        e(f'buffer_load_dwordx2 {v(26 + 2 * i, 2)}, v3, s[4:7], s35 offen offset:{512 * i} sc1')
    e(f'v_bfe_u32 v5, {v(VL)}, 1, 2')
    e(f'v_bfe_u32 v6, {v(VL)}, 3, 1')
    e(f'v_and_b32 v12, 1, {v(VL)}')
    e('v_lshl_add_u32 v12, v6, 1, v12')
    e('v_lshl_add_u32 v12, v5, 2, v12')
    e(f'v_and_b32 v5, 16, {v(VL)}')
    e('v_add_u32 v12, v12, v5')
    e('v_lshlrev_b32 v12, 2, v12')
    e(f'v_lshrrev_b32 v5, 5, {v(VL)}')
    e('v_lshl_add_u32 v12, v5, 9, v12')
    e(f's_mul_i32 s38, {s(SW)}, 5120')
    e('v_add_u32 v12, s38, v12')
    e(f'v_lshlrev_b32 v13, 4, {v(VL)}')
    e('v_add_u32 v14, s38, v13')
    e('v_and_b32 v13, 0x1f0, v13')
    e('v_lshl_add_u32 v13, v5, 12, v13')
    e('s_lshr_b32 s30, s53, 1')
    e(f's_mul_i32 s30, s30, {32 * 1280}')
    e('s_and_b32 s31, s53, 1')
    e('s_lshl_b32 s31, s31, 2')
    e(f's_add_u32 s31, s31, {s(SW)}')
    e('s_lshl_b32 s31, s31, 9')
    e('s_add_u32 s30, s30, s31')
    e(f's_add_u32 s30, s30, {WS_H1}')
    e.wait_vm()
    for j in range(10):
        e(f'v_add_f32 {v(26 + j)}, 1.0, {v(26 + j)}')
    for j in range(0, 10, 2):
        rnd2(e, 26 + j, 27 + j, 7)
    for r in range(RPW):
        X = 64 + 10 * r
        for j in range(0, 10, 2):
            a_, b_ = X + j, X + j + 1
            e(f'v_pk_mul_f32 {v(a_, 2)}, {v(a_, 2)}, {v(26 + j, 2)}')
            rnd2(e, a_, b_, 7)
            e(f'v_pk_add_f32 {v(a_, 2)}, {v(a_, 2)}, {v(16 + j, 2)}')
            e(f'v_cvt_pk_bf16_f32 {v(a_)}, {v(a_)}, {v(b_)}')
            e(f'ds_write_b32 v12, {v(a_)} offset:{r * 128 + 512 * j}')
    e.wait_lg()
    for i in range(5):
        e(f'ds_read_b128 {v(16 + 4 * i, 4)}, v14 offset:{1024 * i}')
    e.wait_lg()
    for i in range(5):
        e(f'buffer_store_dwordx4 {v(16 + 4 * i, 4)}, v13, s[4:7], s30 offen sc1')
        e('s_add_u32 s30, s30, 8192')
    e(f's_lshr_b32 {s(B)}, {s(P1)}, 3')
    signal(e, name, C_LN1, B, loop)

    SEG = B
    XS, XA2, ACC, XF, ET, WB = 20, 22, 24, 40, 72, 80

    def cwait(lab, cbase, tgt, extra=None):
        e(f's_cmp_lg_u32 {s(SW)}, 0')
        e(f's_cbranch_scc1 {lab}_dw')
        e(f's_lshl_b32 s39, {s(SEG)}, 7')
        e(f's_add_u32 s39, s39, {WS_CT2 + cbase * 128}')
        if extra is not None:
            e(f's_add_u32 s39, s39, {s(extra)}')
        e('v_mov_b32 v2, 0')
        e.label(f'{lab}_sp')
        e('buffer_load_dword v3, v2, s[4:7], s39 offen sc1')
        e('s_waitcnt vmcnt(0)')
        e('v_readfirstlane_b32 s37, v3')
        e(f's_cmp_ge_u32 s37, {tgt}')
        e(f's_cbranch_scc1 {lab}_dw')
        e(f's_sleep {SLEEP}')
        e(f's_branch {lab}_sp')
        e.label(f'{lab}_dw')
        e('s_barrier')
        if LOG:
            e('s_memrealtime s[100:101]')
            e('s_waitcnt lgkmcnt(0)')
            e('s_mov_b32 s63, s100')
        reset(e)

    def cdone(name, cbase, extra=None, nxt=None, tsk=None):
        e('s_waitcnt vmcnt(0) lgkmcnt(0)')
        e('s_barrier')
        if cbase is not None:
            e(f's_cmp_lg_u32 {s(SW)}, 0')
            e(f's_cbranch_scc1 {name}_sg')
            e(f's_lshl_b32 s38, {s(SEG)}, 7')
            e(f's_add_u32 s38, s38, {WS_CT2 + cbase * 128}')
            if extra is not None:
                e(f's_add_u32 s38, s38, {s(extra)}')
            e('v_mov_b32 v2, 0')
            e('v_mov_b32 v3, 1')
            e('s_mov_b64 exec, 1')
            e('buffer_atomic_add v3, v2, s[4:7], s38 offen')
            e('s_mov_b64 exec, -1')
            e.label(f'{name}_sg')
        if LOG:
            e('s_memrealtime s[100:101]')
            e('s_waitcnt lgkmcnt(0)')
            e('v_mov_b32 v64, s63')
            e('v_mov_b32 v65, s100')
            e('v_mov_b32 v66, s61')
            e('v_mov_b32 v67, s28')
            e('v_mov_b32 v2, 0')
            e(f's_mul_i32 s38, {s(SEG)}, {GSZ}')
            e(f's_add_u32 s38, s38, {s(S_RANK)}')
            e('s_lshl_b32 s38, s38, 4')
            e(f's_add_u32 s38, s38, {WS_LOG + 768 * 16}')
            e('buffer_store_dwordx4 v[64:67], v2, s[4:7], s38 offen')
            e.nop(2)
        if tsk:
            e(f's_mov_b32 {s(tsk)}, s50')
            e('s_add_u32 s49, s49, 11')
            e(f's_cmp_lt_u32 {s(tsk)}, 512')
        else:
            e(f's_cmp_lt_u32 {s(SEG)}, {N0}')
            e('s_cselect_b32 s38, 1, 2')
            e(f's_add_u32 {s(SEG)}, {s(SEG)}, s38')
            e(f's_cmp_lt_u32 {s(SEG)}, 64')
        e(f's_cbranch_scc1 {nxt or name + "_loop"}')
        e('s_endpgm')

    class SG:
        def __init__(self, name, panels, KT, coloffs, nacc=1):
            self.name, self.KT, self.nacc = name, KT, nacc
            G = self.G = Gemm(e, 32, panels, 2, 2, KT, 128, nstage=1, vbase=8, sbase=40)
            assert G.v_wa + G.NT <= XS
            self.NT = NT = G.NT
            assert WB + KT * 2 * NT * 4 <= 512
            G.setup(VL, SW, 2)
            e('s_mov_b32 s57, 0')
            G.init_offsets(57, coloffs)
            e(f's_and_b32 s57, {s(SW)}, 1')
            e('s_cmp_eq_u32 s57, 1')
            e('s_cselect_b64 vcc, -1, 0')
            e(f'v_cndmask_b32 {v(XS)}, {v(G.v_xg)}, {v(G.v_xg + 1)}, vcc')
            e(f'v_cndmask_b32 {v(XS + 1)}, {v(G.v_xg + 1)}, {v(G.v_xg)}, vcc')
            e(f'v_add_u32 {v(XA2)}, 0x10000, {v(G.v_xa)}')
            e(f'v_add_u32 {v(XA2 + 1)}, 0x10000, {v(G.v_xa + 1)}')
            NS = min(KT, 163840 // G.stage, 12)
            for k in range(NS):
                for f in G.dma_items(None, k, ('w', k), 'w'):
                    f()
            for k in range(KT):
                e.wait_vm(('w', k))
                e('s_barrier')
                if k >= 1 and k - 1 + NS < KT:
                    for f in G.dma_items(None, (k - 1) % NS, ('w', k - 1 + NS), 'w'):
                        f()
                for ks in range(2):
                    for ni, (pi, a_) in enumerate(G.tiles):
                        rb = panels[pi][2] * 2
                        for m in range(2):
                            e(f'ds_read_b64_tr_b16 {u(self.wr(2 * k + ks, ni) + 2 * m, 2)}, {v(G.v_wa + ni)} offset:{(32 * ks + 16 * m) * rb}')
                d = G.stage if (k + 1) % NS else -(NS - 1) * G.stage
                for ni in range(NT):
                    if d >= 0:
                        e(f'v_add_u32 {v(G.v_wa + ni)}, {d}, {v(G.v_wa + ni)}')
                    else:
                        e(f'v_subrev_u32 {v(G.v_wa + ni)}, {-d}, {v(G.v_wa + ni)}')
                e.wait_lg()
            e('s_barrier')

        def wr(self, ks, ni):
            return WB + (ks * self.NT + ni) * 4

        def acc(self, ni, par=0):
            return ACC + (par * self.NT + ni) * 4

        def main(self, sx, extra_loads=None):
            G, KT, NT = self.G, self.KT, self.NT
            P = 4 * KT
            ng = (P + 15) // 16
            for j in range(ng):
                n = min(16, P - 16 * j) // 4
                e(f's_mul_i32 s57, {s(SW)}, {n * 1024}')
                if j:
                    e(f's_add_u32 s57, s57, {16384 * j}')
                e('s_mov_b32 m0, s57')
                e(f's_add_u32 s57, s57, {s(sx)}')
                for i in range(n):
                    xr = (G.v_xg if n % 2 == 0 else XS) + (i & 1)
                    e(f'buffer_load_dwordx4 {v(xr)}, s[4:7], s57 offen offset:{1024 * i} sc1 lds', tag=('x', j))
            if extra_loads:
                extra_loads()
            nu = (2 * KT + 3) // 4

            def reads(un):
                if un % 2 == 0:
                    e.wait_vm(('x', un // 2))
                    e('s_barrier')
                for q in range(4):
                    ks = 4 * un + q
                    if ks >= 2 * KT:
                        break
                    off = (ks >> 1) * 4096
                    ar = (G.v_xa if off < 65536 else XA2) + (ks & 1)
                    e(f'ds_read_b128 {v(XF + 16 * (un & 1) + 4 * q, 4)}, {v(ar)} offset:{off & 65535}', tag=('xf', ks))
            reads(0)
            for un in range(nu):
                if un + 1 < nu:
                    reads(un + 1)
                for q in range(4):
                    ks = 4 * un + q
                    if ks >= 2 * KT:
                        break
                    e.wait_lg(('xf', ks))
                    par = ks % self.nacc
                    for ni in range(NT):
                        ac = v(self.acc(ni, par), 4)
                        e(f'v_mfma_f32_16x16x32_bf16 {ac}, {u(self.wr(ks, ni), 4)}, {v(XF + 16 * (un & 1) + 4 * q, 4)}, {"0" if ks < self.nacc else ac}')
            if self.nacc == 2:
                for ni in range(NT):
                    for j in range(0, 4, 2):
                        e(f'v_pk_add_f32 {v(self.acc(ni) + j, 2)}, {v(self.acc(ni) + j, 2)}, {v(self.acc(ni, 1) + j, 2)}')

    name = 'wk_att'
    e.label(name)
    reset(e)
    e('s_lshl_b32 s49, s49, 3')
    e(f's_add_u32 s49, s49, {s(P1)}')

    def gtask(dst, adv):
        e(f's_add_u32 {s(dst)}, s49, {adv}')
        e(f's_and_b32 s37, {s(dst)}, 0xfff8')
        e(f's_max_u32 s37, s37, {8 * N0}')
        e(f's_sub_u32 s37, s37, {8 * N0}')
        e(f's_add_u32 {s(dst)}, {s(dst)}, s37')
        e('s_lshl_b32 s37, s3, 3')
        e(f's_add_u32 {s(dst)}, {s(dst)}, s37')
    gtask(54, 0)
    e('s_mov_b32 s50, s54')
    e(f'v_and_b32 v2, 15, {v(VL)}')
    e(f'v_lshrrev_b32 v3, 4, {v(VL)}')
    e('v_lshlrev_b32 v4, 4, v3')
    e('v_lshl_add_u32 v4, v2, 8, v4')
    e(f'v_lshlrev_b32 v5, 4, {v(VL)}')
    e(f'v_lshlrev_b32 v6, 3, {v(VL)}')
    e(f'v_bfe_u32 v10, {v(VL)}, 2, 2')
    e('v_lshl_add_u32 v10, v3, 2, v10')
    e(f'v_and_b32 v11, 1, {v(VL)}')
    e('v_lshlrev_b32 v11, 3, v11')
    e('v_lshl_add_u32 v10, v10, 4, v11')
    e(f's_lshl_b32 s38, {s(SW)}, 11')
    e('v_add_u32 v10, s38, v10')
    MK = 88
    e('v_lshlrev_b32 v7, 2, v3')
    for j in range(4):
        e(f'v_add_u32 v8, {j}, v7')
        e(f'v_cmp_le_u32 {s(MK + 2 * j, 2)}, v8, v2')
    e('s_mov_b32 s96, -1')
    e('s_mov_b32 s97, 0')
    cc = f32bits((128 ** -0.5) * LOG2E)
    e(f's_mov_b32 s98, {cc:#x}')
    e(f's_mov_b32 s99, {cc:#x}')
    KM_, VM_, ONES, NEG, DO = 16, 32, 40, 44, 72
    S0, S1, M, P, PM, OA = 144, 156, 204, 208, 212, 168
    for j in range(4):
        e(f'v_mov_b32 {v(ONES + j)}, 0x3f803f80')
    e(f'v_mov_b32 {v(NEG)}, 0xf149f2ca')
    e(f'v_mov_b32 {v(PM + 1)}, 0')
    e(f'v_mov_b32 {v(PM + 2)}, 0')
    e('v_lshlrev_b32 v9, 4, v3')
    e('v_lshl_add_u32 v9, v2, 7, v9')
    e('s_mov_b32 s56, -1')

    def att_loads(lab, st, adv):
        Q, KX_, VX_ = 256 + 96 * st, 288 + 96 * st, 320 + 96 * st
        e('s_mov_b32 s55, s50')
        e('s_cmp_ge_u32 s55, 512')
        e(f's_cbranch_scc1 {lab}_nl')
        e('s_lshr_b32 s59, s55, 5')
        e('s_cmp_eq_u32 s59, s56')
        e(f's_cbranch_scc1 {lab}_rdy')
        dep_wait(e, lab, [(C_KV, 64), (C_Q, 32)], 59)
        e('s_mov_b32 s56, s59')
        e.label(f'{lab}_rdy')
        e('s_lshl_b32 s31, s55, 2')
        e(f's_add_u32 s31, s31, {s(SW)}')
        e('s_lshl_b32 s32, s31, 13')
        e(f's_add_u32 s33, s32, {WS_QX}')
        e('s_add_u32 s34, s33, 4096')
        e(f's_add_u32 s35, s32, {WS_KX}')
        e('s_add_u32 s36, s35, 4096')
        for uu in range(4):
            e(f'buffer_load_dwordx4 {u(Q + 4 * uu, 4)}, v4, s[4:7], s33 offen offset:{64 * uu} sc1')
            e(f'buffer_load_dwordx4 {u(KX_ + 4 * uu, 4)}, v4, s[4:7], s35 offen offset:{64 * uu} sc1')
        for uu in range(4):
            e(f'buffer_load_dwordx4 {u(Q + 16 + 4 * uu, 4)}, v4, s[4:7], s34 offen offset:{64 * uu} sc1')
            e(f'buffer_load_dwordx4 {u(KX_ + 16 + 4 * uu, 4)}, v4, s[4:7], s36 offen offset:{64 * uu} sc1')
        e(f's_add_u32 s39, s32, {WS_VXT}')
        e('s_add_u32 s40, s39, 4096')
        for et in range(8):
            e(f'buffer_load_dwordx4 {u(VX_ + 4 * et, 4)}, v5, s[4:7], {"s39" if et < 4 else "s40"} offen offset:{1024 * (et & 3)} sc1')
        e.label(f'{lab}_nl')
        reset(e)
    att_loads(name + '_p', 0, 0)
    e('s_waitcnt vmcnt(0)')
    for st in range(2):
        nm = f'{name}{st}'
        Q, KX_, VX_ = 256 + 96 * st, 288 + 96 * st, 320 + 96 * st
        e.label(nm + '_top')
        reset(e)
        for uu in range(4):
            c0 = (lambda r: '0' if uu == 0 else v(r, 4))
            e(f'v_mfma_f32_16x16x32_bf16 {v(S0, 4)}, {u(KX_ + 4 * uu, 4)}, {u(Q + 4 * uu, 4)}, {c0(S0)}')
            e(f'v_mfma_f32_16x16x32_bf16 {v(S1, 4)}, {u(KX_ + 4 * uu, 4)}, {u(Q + 16 + 4 * uu, 4)}, {c0(S1)}')
            e(f'v_mfma_f32_16x16x32_bf16 {v(S1 + 4, 4)}, {u(KX_ + 16 + 4 * uu, 4)}, {u(Q + 16 + 4 * uu, 4)}, {c0(S1 + 4)}')
        e(f'v_mov_b32 {v(P + 2)}, 0')
        e(f'v_mov_b32 {v(P + 3)}, 0')
        for dg in (S0, S1 + 4):
            for j in range(4):
                e(f'v_cndmask_b32 {v(dg + j)}, {v(NEG)}, {v(dg + j)}, {s(MK + 2 * j, 2)}')
        e(f's_lshr_b32 {s(SEG)}, s54, 3')
        e('s_and_b32 s58, s54, 7')
        if LOG:
            e(f's_mov_b32 {s(S_RANK)}, s58')
        e('s_lshl_b32 s58, s58, 4')
        gtask(50, 11)
        e('s_min_u32 s55, s50, 511')
        e('s_lshr_b32 s59, s55, 5')
        e('s_cmp_eq_u32 s59, s56')
        e(f's_cbranch_scc1 {nm}_r2')
        dep_wait(e, nm + '_c', [(C_KV, 64), (C_Q, 32)], 59)
        e('s_mov_b32 s56, s59')
        e.label(f'{nm}_r2')
        e('s_lshl_b32 s31, s54, 2')
        e(f's_add_u32 s31, s31, {s(SW)}')
        e('s_lshl_b32 s43, s31, 12')
        e(f's_add_u32 s43, s43, {WS_KM}')
        e('s_lshl_b32 s41, s31, 13')
        e(f's_add_u32 s41, s41, {WS_O}')
        e('s_add_u32 s42, s41, 4096')
        cwait(nm + '2', K_CH, NCH)
        e(f's_lshl_b32 m0, {s(SW)}, 11')
        e('buffer_load_dwordx4 v5, s[4:7], s43 offen sc1 lds', tag='k')
        e('buffer_load_dwordx4 v5, s[4:7], s43 offen offset:1024 sc1 lds', tag='k')
        for w in range(4):
            e(f'buffer_load_dwordx2 {v(VM_ + 2 * w, 2)}, v6, s[4:7], s43 offen offset:{2048 + 512 * w} sc1', tag='v')
        e.wait_vm('k')
        for uu in range(4):
            for m_ in range(2):
                e(f'ds_read_b64_tr_b16 {v(KM_ + 4 * uu + 2 * m_, 2)}, v10 offset:{uu * 512 + m_ * 256}')
        e('s_waitcnt vmcnt(0)')
        att_loads(nm + '_n', 1 - st, NATT)
        e('s_waitcnt lgkmcnt(0)')
        for uu in range(4):
            for tq, S in enumerate((S0, S1)):
                e(f'v_mfma_f32_16x16x32_bf16 {v(S + 8, 4)}, {v(KM_ + 4 * uu, 4)}, {u(Q + 16 * tq + 4 * uu, 4)}, {"0" if uu == 0 else v(S + 8, 4)}')
        for tq, S in enumerate((S0, S1)):
            C0 = S + 8
            e(f'v_cndmask_b32 {v(C0)}, {v(C0 + 2)}, {v(C0)}, s[96:97]')
            e(f'v_cndmask_b32 {v(C0 + 1)}, {v(C0 + 3)}, {v(C0 + 1)}, s[96:97]')
            vals = [S + j for j in range(4 * (tq + 1))] + [C0, C0 + 1]
            e(f'v_max3_f32 {v(M)}, {v(vals[0])}, {v(vals[1])}, {v(vals[2])}')
            i = 3
            while i + 1 < len(vals):
                e(f'v_max3_f32 {v(M)}, {v(M)}, {v(vals[i])}, {v(vals[i + 1])}')
                i += 2
            if i < len(vals):
                e(f'v_max_f32 {v(M)}, {v(M)}, {v(vals[i])}')
            for sw_ in ('v_permlane32_swap_b32', 'v_permlane16_swap_b32'):
                e(f'v_mov_b32 {v(M + 1)}, {v(M)}')
                e(f'{sw_} {v(M)}, {v(M + 1)}')
                e(f'v_max_f32 {v(M)}, {v(M)}, {v(M + 1)}')
            e(f'v_mul_f32 {v(M)}, s98, {v(M)}')
            for x in vals[::2]:
                e(f'v_pk_fma_f32 {v(x, 2)}, {v(x, 2)}, s[98:99], {v(M, 2)} op_sel_hi:[1,1,0] neg_lo:[0,0,1] neg_hi:[0,0,1]')
            for x in vals:
                e(f'v_exp_f32 {v(x)}, {v(x)}')
            for j in range(2 * (tq + 1)):
                e(f'v_cvt_pk_bf16_f32 {v(P + j)}, {v(S + 2 * j)}, {v(S + 2 * j + 1)}')
            e(f'v_cvt_pk_bf16_f32 {v(PM)}, {v(C0)}, {v(C0 + 1)}')
            e(f'v_cvt_pk_bf16_f32 {v(PM + 3)}, {v(C0)}, {v(C0 + 1)}')
            e.wait_vm('v')
            if tq == 0:
                mid(e)
            Lr = OA + 32
            e(f'v_mfma_f32_16x16x32_bf16 {v(Lr, 4)}, {v(ONES, 4)}, {v(P, 4)}, 0')
            for et in range(8):
                e(f'v_mfma_f32_16x16x32_bf16 {v(OA + 4 * et, 4)}, {u(VX_ + 4 * et, 4)}, {v(P, 4)}, 0')
            e(f'v_mfma_f32_16x16x16_bf16 {v(Lr, 4)}, {v(ONES, 2)}, {v(PM, 2)}, {v(Lr, 4)}')
            for et in range(8):
                e(f'v_mfma_f32_16x16x16_bf16 {v(OA + 4 * et, 4)}, {v(VM_ + 2 * (et >> 1), 2)}, {v(PM + 2 * (et & 1), 2)}, {v(OA + 4 * et, 4)}')
            e(f'v_rcp_f32 {v(M)}, {v(Lr)}')
            for ub in range(4):
                o = OA + 8 * ub
                d = DO + 16 * tq + 4 * ub
                for j in range(0, 8, 2):
                    e(f'v_pk_mul_f32 {v(o + j, 2)}, {v(o + j, 2)}, {v(M, 2)} op_sel_hi:[1,0]')
                for j in range(4):
                    e(f'v_cvt_pk_bf16_f32 {v(d + j)}, {v(o + 2 * j)}, {v(o + 2 * j + 1)}')
                e(f'buffer_store_dwordx4 {v(d, 4)}, v9, s[4:7], {"s41" if ub < 2 else "s42"} offen offset:{2048 * tq + 64 * (ub & 1)} sc1')
        cdone(nm, K_ATT, 58, nxt=f'{name}{1 - st}_top', tsk=54)

    name = 'wk_wo'
    e.label(name)
    reset(e)
    e(f's_lshr_b32 s55, {s(P1)}, 3')
    e(f's_and_b32 s56, {s(P1)}, 7')
    e(f's_mul_i32 s58, s56, {512 * 1280}')
    e('s_lshl_b32 s59, s55, 8')
    e('s_add_u32 s58, s58, s59')
    S = SG(name, [(24, 1280, 128)], 8, [58])
    e('s_lshl_b32 s58, s56, 4')
    e(f'v_and_b32 v4, 15, {v(VL)}')
    e(f'v_lshrrev_b32 v5, 4, {v(VL)}')
    e('v_lshlrev_b32 v5, 4, v5')
    e('v_lshl_add_u32 v4, v4, 6, v5')
    e(f's_and_b32 s32, {s(SW)}, 1')
    e('s_lshl_b32 s33, s55, 1')
    e('s_add_u32 s33, s33, s32')
    e('s_lshl_b32 s33, s33, 13')
    e(f's_lshr_b32 s31, {s(SW)}, 1')
    e('s_lshl_b32 s31, s31, 10')
    e('s_add_u32 s33, s33, s31')
    e(f's_mul_i32 s31, s56, {32 * 2560}')
    e('s_add_u32 s33, s33, s31')
    e(f's_add_u32 s59, s33, {WS_PW}')
    e('s_lshl_b32 s56, s56, 15')
    e(f's_add_u32 s56, s56, {WS_O}')
    e.label(name + '_loop')
    reset(e)
    e(f's_lshl_b32 s55, {s(SEG)}, 18')
    e('s_add_u32 s55, s55, s56')
    e(f's_mul_i32 s33, {s(SEG)}, {8 * 32 * 2560}')
    e('s_add_u32 s33, s33, s59')
    e('s_add_u32 s34, s33, 4096')
    cwait(name, K_ATT, 1, 58)
    S.main(55)
    mid(e)
    for ni in range(4):
        e(f'buffer_store_dwordx4 {v(S.acc(ni), 4)}, v4, s[4:7], {"s33" if ni < 2 else "s34"} offen offset:{2048 * (ni & 1)} sc1')
    cdone(name, K_WO)

    name = 'wk_ln2'
    e.label(name)
    reset(e)
    GT, SH, SC, RS_, PP = 16, 28, 40, 52, 64
    dbg_wait(e, name + '_mb', D_MODB, NMODB)
    e(f'v_lshlrev_b32 v10, 4, {v(VL)}')
    e('v_and_b32 v11, 0x1f0, v10')
    e(f'v_lshrrev_b32 v12, 1, v10')
    e(f'v_lshrrev_b32 v13, 1, v11')
    for base, idx in ((GT, 2), (SH, 3), (SC, 4)):
        e(f's_mov_b32 s32, {WS_MOD + idx * 2560}')
        for i in range(3):
            e(f'buffer_load_dwordx4 {v(base + 4 * i, 4)}, {"v10" if i < 2 else "v11"}, s[4:7], s32 offen offset:{1024 * i} sc1')
    e(f's_lshl_b32 s30, {s(P1)}, 2')
    e(f's_add_u32 s30, s30, {s(SW)}')
    e(f'v_lshrrev_b32 v4, 2, {v(VL)}')
    e(f'v_and_b32 v5, 3, {v(VL)}')
    e('v_lshlrev_b32 v5, 4, v5')
    e('v_lshl_add_u32 v14, v4, 11, v5')
    e('v_and_b32 v4, 7, v4')
    e('v_lshl_add_u32 v15, v4, 11, v5')
    e(f'v_lshrrev_b32 v4, 5, {v(VL)}')
    e(f'v_mul_u32_u24 v4, {32 * 2560}, v4')
    e('v_add_u32 v15, v15, v4')
    e(f'v_lshrrev_b32 v4, 4, {v(VL)}')
    e('v_lshl_add_u32 v8, v4, 12, v5')
    e(f'v_bfe_u32 v4, {v(VL)}, 3, 1')
    e('v_lshl_add_u32 v8, v4, 6, v8')
    e(f'v_bfe_u32 v4, {v(VL)}, 2, 1')
    e('v_lshl_add_u32 v8, v4, 3, v8')
    e('v_and_b32 v9, 0x1fff, v8')
    e('s_lshr_b32 s56, s30, 4')
    e('s_lshl_b32 s56, s56, 10')
    e('s_and_b32 s57, s30, 15')
    e('s_lshl_b32 s57, s57, 6')
    e('s_add_u32 s56, s56, s57')
    e(f's_add_u32 s56, s56, {WS_PW}')
    e('s_lshl_b32 s57, s30, 7')
    e(f's_add_u32 s57, s57, {WS_H2}')
    e('s_mul_i32 s58, s30, 1280')
    e('s_waitcnt vmcnt(0)')
    for j in range(12):
        e(f'v_add_f32 {v(SC + j)}, 1.0, {v(SC + j)}')
    for j in range(0, 12, 2):
        rnd2(e, SC + j, SC + j + 1, 7)
    e('s_mov_b32 s96, -1')
    e('s_mov_b32 s97, 0')
    e(f's_mov_b32 s98, {f32bits(1.0 / 640):#x}')
    e(f's_mov_b32 s99, {f32bits(1e-5):#x}')
    e.label(name + '_loop')
    reset(e)
    e(f's_mul_i32 s31, {s(SEG)}, {32 * 1280}')
    e('s_add_u32 s41, s31, s57')
    e('s_add_u32 s31, s31, s58')
    e(f's_add_u32 s40, s31, {WS_X1}')
    e(f's_mul_i32 s36, {s(SEG)}, {8 * 32 * 2560}')
    e('s_add_u32 s36, s36, s56')
    cwait(name, K_WO, 40)
    for k in range(8):
        e(f's_add_u32 s33, s36, {k * 32 * 2560}')
        e(f's_add_u32 s34, s36, {k * 32 * 2560 + 32768}')
        e(f'buffer_load_dwordx4 {v(PP + 12 * k, 4)}, v14, s[4:7], s33 offen sc1', tag=('p', k))
        e(f'buffer_load_dwordx4 {v(PP + 12 * k + 4, 4)}, v14, s[4:7], s34 offen sc1', tag=('p', k))
        if k % 2 == 0:
            e(f's_add_u32 s35, s36, {k * 32 * 2560 + 65536}')
            e(f'buffer_load_dwordx4 {v(PP + 12 * k + 8, 4)}, v15, s[4:7], s35 offen sc1', tag=('p', k))
    for i in range(3):
        e(f'buffer_load_dwordx2 {v(RS_ + 2 * i, 2)}, {"v12" if i < 2 else "v13"}, {s(S_X, 4)}, s31 offen offset:{512 * i}', tag='r')
    X = PP
    e('s_add_u32 s42, s41, 16384')
    e('s_add_u32 s43, s41, 32768')
    for k in range(1, 8):
        e.wait_vm(('p', k))
        for j in range(0, 12 if k % 2 == 0 else 8, 2):
            e(f'v_pk_add_f32 {v(X + j, 2)}, {v(X + j, 2)}, {v(X + k * 12 + j, 2)}')
    for j in range(8, 12):
        e(f'v_mov_b32 {v(X + 12 + j)}, {v(X + j)}')
    for j in range(8, 12):
        e(f'v_permlane32_swap_b32 {v(X + j)}, {v(X + 12 + j)}')
    for j in range(8, 12, 2):
        e(f'v_pk_add_f32 {v(X + j, 2)}, {v(X + j, 2)}, {v(X + 12 + j, 2)}')
    mid(e)
    e.wait_vm('r')
    for j in range(0, 12, 2):
        a_, b_ = X + j, X + j + 1
        rr = RS_ + j // 2
        rnd2(e, a_, b_, 7)
        e(f'v_pk_mul_f32 {v(a_, 2)}, {v(a_, 2)}, {v(GT + j, 2)}')
        rnd2(e, a_, b_, 7)
        e(f'v_lshlrev_b32 v4, 16, {v(rr)}')
        e(f'v_and_b32 v5, 0xffff0000, {v(rr)}')
        e(f'v_pk_add_f32 {v(a_, 2)}, {v(a_, 2)}, v[4:5]')
        e(f'v_cvt_pk_bf16_f32 {v(rr)}, {v(a_)}, {v(b_)}')
        e(f'v_lshlrev_b32 {v(a_)}, 16, {v(rr)}')
        e(f'v_and_b32 {v(b_)}, 0xffff0000, {v(rr)}')
        if j % 4 == 2:
            i = j // 4
            e(f'buffer_store_dwordx2 {v(RS_ + 2 * i, 2)}, {"v12" if i < 2 else "v13"}, s[4:7], s40 offen offset:{512 * i} sc1')
    e(f'v_pk_add_f32 v[4:5], {v(X + 8, 2)}, {v(X + 10, 2)}')
    e('v_add_f32 v4, v4, v5')
    e('v_cndmask_b32 v6, 0, v4, s[96:97]')
    e(f'v_pk_add_f32 v[4:5], {v(X, 2)}, {v(X + 2, 2)}')
    e(f'v_pk_add_f32 v[4:5], v[4:5], {v(X + 4, 2)}')
    e(f'v_pk_add_f32 v[4:5], v[4:5], {v(X + 6, 2)}')
    e('v_add_f32 v4, v4, v5')
    e('v_add_f32 v6, v6, v4')
    wave_sum(e, 6, 5)
    e('v_mul_f32 v6, s98, v6')
    e('v_mov_b32 v2, 0')
    for j in range(8, 12):
        e(f'v_sub_f32 v5, {v(X + j)}, v6')
        e('v_fmac_f32 v2, v5, v5')
    e('v_cndmask_b32 v2, 0, v2, s[96:97]')
    for j in range(8):
        e(f'v_sub_f32 v5, {v(X + j)}, v6')
        e('v_fmac_f32 v2, v5, v5')
    wave_sum(e, 2, 5)
    e('v_mul_f32 v2, s98, v2')
    rnd2(e, 6, 2, 7)
    e('v_add_f32 v2, s99, v2')
    rnd2(e, 2, 5, 7)
    e('v_sqrt_f32 v2, v2')
    rnd2(e, 2, 5, 7)
    e('v_rcp_f32 v2, v2')
    for j in range(0, 12, 2):
        a_, b_ = X + j, X + j + 1
        e(f'v_sub_f32 {v(a_)}, {v(a_)}, v6')
        e(f'v_sub_f32 {v(b_)}, {v(b_)}, v6')
        rnd2(e, a_, b_, 7)
        e(f'v_mul_f32 {v(a_)}, {v(a_)}, v2')
        e(f'v_mul_f32 {v(b_)}, {v(b_)}, v2')
        rnd2(e, a_, b_, 7)
        e(f'v_pk_mul_f32 {v(a_, 2)}, {v(a_, 2)}, {v(SC + j, 2)}')
        rnd2(e, a_, b_, 7)
        e(f'v_pk_add_f32 {v(a_, 2)}, {v(a_, 2)}, {v(SH + j, 2)}')
        e(f'v_cvt_pk_bf16_f32 {v(X + 12 + j // 2)}, {v(a_)}, {v(b_)}')
        if j % 4 == 2:
            i = j // 4
            e(f'buffer_store_dwordx2 {v(X + 12 + 2 * i, 2)}, {"v8" if i < 2 else "v9"}, s[4:7], {s(41 + i)} offen sc1')
    cdone(name, K_LN2)

    name = 'wk_up'
    e.label(name)
    reset(e)
    e(f's_lshl_b32 s58, {s(P1)}, 7')
    e('s_mov_b32 s59, s58')
    S = SG(name, [(S_W1, 3456, 64), (S_W3, 3456, 64)], 10, [58, 59])
    e(f'v_and_b32 v4, 15, {v(VL)}')
    e(f'v_lshrrev_b32 v5, 4, {v(VL)}')
    e('v_lshlrev_b32 v5, 4, v5')
    e('v_lshl_add_u32 v4, v4, 7, v5')
    e(f's_lshr_b32 s31, {s(SW)}, 1')
    e('s_lshl_b32 s31, s31, 11')
    e(f's_and_b32 s32, {s(SW)}, 1')
    e('s_lshl_b32 s32, s32, 6')
    e('s_add_u32 s31, s31, s32')
    e(f's_lshl_b32 s59, {s(P1)}, 12')
    e('s_add_u32 s59, s59, s31')
    e(f's_add_u32 s59, s59, {WS_HM}')
    e(f's_mov_b32 s36, {f32bits(-LOG2E):#x}')
    e.label(name + '_loop')
    reset(e)
    e(f's_mul_i32 s55, {s(SEG)}, {32 * 1280}')
    e(f's_add_u32 s55, s55, {WS_H2}')
    e(f's_mul_i32 s33, {s(SEG)}, {32 * 3456}')
    e('s_add_u32 s33, s33, s59')
    cwait(name, K_LN2, 8)
    S.main(55)
    mid(e)
    for a_ in range(2):
        gv = S.acc(a_)
        uv = S.acc(2 + a_)
        for h in range(2):
            g0, g1, u0, u1 = gv + 2 * h, gv + 2 * h + 1, uv + 2 * h, uv + 2 * h + 1
            rnd2(e, g0, g1, 6)
            rnd2(e, u0, u1, 6)
            silu_inplace(e, g0, 6, 36)
            silu_inplace(e, g1, 7, 36)
            rnd2(e, g0, g1, 6)
            e(f'v_mul_f32 {v(g0)}, {v(g0)}, {v(u0)}')
            e(f'v_mul_f32 {v(g1)}, {v(g1)}, {v(u1)}')
            e(f'v_cvt_pk_bf16_f32 {v(ET + 2 * a_ + h)}, {v(g0)}, {v(g1)}')
    e(f'buffer_store_dwordx4 {v(ET, 4)}, v4, s[4:7], s33 offen sc1')
    cdone(name, K_UP)

    name = 'wk_dn'
    e.label(name)
    reset(e)
    e(f's_lshl_b32 s58, {s(P1)}, 7')
    S = SG(name, [(S_W2, 1280, 64)], 27, [58], nacc=2)
    dbg_wait(e, name + '_mb', D_MODB, NMODB)
    GBV = 8
    G = S.G
    assert (G.v_xg, G.v_xa) == (8, 12)
    e(f'v_and_b32 v4, 15, {v(VL)}')
    e(f'v_lshrrev_b32 v5, 4, {v(VL)}')
    e('v_mul_u32_u24 v4, 1280, v4')
    e('v_lshl_add_u32 v4, v5, 3, v4')
    e('v_lshlrev_b32 v5, 4, v5')
    e(f's_and_b32 s32, {s(SW)}, 1')
    e('s_lshl_b32 s32, s32, 6')
    e('s_add_u32 s58, s58, s32')
    e('s_lshl_b32 s33, s58, 1')
    e(f's_add_u32 s33, s33, {WS_MOD + 5 * 2560}')
    e(f'buffer_load_dwordx4 {v(ET, 4)}, v5, s[4:7], s33 offen sc1')
    e(f'buffer_load_dwordx4 {v(ET + 4, 4)}, v5, s[4:7], s33 offen offset:64 sc1')
    e(f's_lshr_b32 s31, {s(SW)}, 1')
    e(f's_mul_i32 s31, s31, {16 * 1280}')
    e('s_add_u32 s59, s58, s31')
    e('s_waitcnt vmcnt(0)')
    e.label(name + '_loop')
    reset(e)
    e(f's_mul_i32 s55, {s(SEG)}, {32 * 3456}')
    e(f's_add_u32 s55, s55, {WS_HM}')
    e(f's_mul_i32 s33, {s(SEG)}, {32 * 1280}')
    e('s_add_u32 s33, s33, s59')
    e(f's_add_u32 s34, s33, {WS_X1}')
    cwait(name, K_UP, 27)

    def x1_loads():
        e('buffer_load_dwordx2 v[16:17], v4, s[4:7], s34 offen sc1', tag='r')
        e('buffer_load_dwordx2 v[18:19], v4, s[4:7], s34 offen offset:32 sc1', tag='r')
    S.main(55, x1_loads)
    mid(e)
    e.wait_vm('r')
    for ni in range(2):
        for h in range(2):
            a_ = S.acc(ni) + 2 * h
            rr = 16 + 2 * ni + h
            rnd2(e, a_, a_ + 1, 7)
            e(f'v_pk_mul_f32 {v(a_, 2)}, {v(a_, 2)}, {v(ET + 4 * ni + 2 * h, 2)}')
            rnd2(e, a_, a_ + 1, 7)
            e(f'v_lshlrev_b32 v6, 16, {v(rr)}')
            e(f'v_and_b32 v7, 0xffff0000, {v(rr)}')
            e(f'v_pk_add_f32 {v(a_, 2)}, {v(a_, 2)}, v[6:7]')
            e(f'v_cvt_pk_bf16_f32 {v(rr)}, {v(a_)}, {v(a_ + 1)}')
        e(f'buffer_store_dwordx2 {v(16 + 2 * ni, 2)}, v4, {s(S_OUT, 4)}, s33 offen offset:{32 * ni}')
    cdone(name, None)

    name = 'wk_mod'
    e.label(name)
    reset(e)
    load_srds(e, [('c', 88), ('wmod', 92)], tmp=96)
    e(f's_lshl_b32 s30, {s(SW)}, 6')
    e(f'v_add_u32 v0, s30, {v(VL)}')
    e(f's_cmp_ge_u32 {s(P1)}, {NMODA}')
    e(f's_cbranch_scc1 {name}_nz')
    e('v_mov_b32 v4, 0')
    e('v_lshlrev_b32 v2, 2, v0')
    e(f's_lshl_b32 s31, {s(P1)}, 10')
    e(f's_add_u32 s31, s31, {WS_CT2}')
    e('buffer_store_dword v4, v2, s[4:7], s31 offen sc1')
    e(f's_cmp_lg_u32 {s(P1)}, 0')
    e(f's_cbranch_scc1 {name}_nz')
    for j in range(4):
        e(f'v_mov_b32 {v(4 + j)}, 0')
    e('v_lshlrev_b32 v2, 4, v0')
    e(f's_mov_b32 s31, {WS_CTR}')
    for i in range(5):
        e('buffer_store_dwordx4 v[4:7], v2, s[4:7], s31 offen sc1')
        e('s_add_u32 s31, s31, 4096')
    e.label(f'{name}_nz')
    reset(e)
    e.nop(2)
    e('v_lshlrev_b32 v14, 1, v0')
    e('v_lshlrev_b32 v2, 2, v0')
    e(f's_mov_b32 s30, {f32bits(-LOG2E):#x}')
    for i in range(3):
        e(f'buffer_load_ushort {v(4 + i)}, v14, s[88:91], 0 offen offset:{512 * i}', tag='c')
    e('v_and_b32 v8, 3, v0')
    e('v_lshrrev_b32 v9, 2, v0')
    e('v_mul_u32_u24 v10, 7680, v9')
    e('v_lshl_add_u32 v10, v8, 4, v10')
    e(f's_lshl_b32 s31, {s(P1)}, 6')
    for i in range(10):
        if i:
            e(f's_add_u32 s31, s31, {64 * 7680}')
        e(f'buffer_load_dwordx4 {v(32 + 4 * i, 4)}, v10, s[92:95], s31 offen', tag=('w', i))
    e.wait_vm('c')
    for i in range(3):
        e(f'v_lshlrev_b32 {v(4 + i)}, 16, {v(4 + i)}')
        silu_inplace(e, 4 + i, 7, 30)
        e(f'v_cvt_pk_bf16_f32 {v(4 + i)}, {v(4 + i)}, {v(4 + i)}')
        e(f'v_lshlrev_b32 {v(4 + i)}, 16, {v(4 + i)}')
        e(f'ds_write_b32 v2, {v(4 + i)} offset:{1024 * i}')
    e.wait_lg()
    e('s_barrier')
    e('v_lshlrev_b32 v11, 2, v9')
    for i in range(10):
        e(f'ds_read_b32 {v(112 + i)}, v11 offset:{256 * i}')
    for j in range(8):
        e(f'v_mov_b32 {v(16 + j)}, 0')
    e.wait_lg()
    for i in range(10):
        e.wait_vm(('w', i))
        for d in range(4):
            w = 32 + 4 * i + d
            e(f'v_lshlrev_b32 v12, 16, {v(w)}')
            e(f'v_and_b32 v13, 0xffff0000, {v(w)}')
            e(f'v_fmac_f32 {v(16 + 2 * d)}, v12, {v(112 + i)}')
            e(f'v_fmac_f32 {v(17 + 2 * d)}, v13, {v(112 + i)}')
    e('v_lshlrev_b32 v12, 7, v9')
    e('v_lshl_add_u32 v12, v8, 5, v12')
    e('ds_write_b128 v12, v[16:19] offset:4096')
    e('ds_write_b128 v12, v[20:23] offset:4112')
    e.wait_lg()
    e('s_barrier')
    e(f's_cmp_lg_u32 {s(SW)}, 0')
    e(f's_cbranch_scc1 {name}_done')
    e(f'v_and_b32 v12, 31, {v(VL)}')
    e(f'v_lshrrev_b32 v13, 5, {v(VL)}')
    e('v_lshlrev_b32 v12, 2, v12')
    e('v_lshl_add_u32 v13, v13, 12, v12')
    for i in range(32):
        e(f'ds_read_b32 {v(32 + i)}, v13 offset:{4096 + 128 * i}')
    e.wait_lg()
    for i in range(1, 32):
        e(f'v_add_f32 v32, v32, {v(32 + i)}')
    e('v_mov_b32 v33, v32')
    e('v_permlane32_swap_b32 v32, v33')
    e('v_add_f32 v32, v32, v33')
    e('v_cvt_pk_bf16_f32 v32, v32, v32')
    e('v_lshlrev_b32 v32, 16, v32')
    e(f's_lshl_b32 s31, {s(P1)}, 7')
    e(f's_add_u32 s31, s31, {WS_MOD}')
    e('buffer_store_dword v32, v12, s[4:7], s31 offen sc1')
    e.label(f'{name}_done')
    e(f's_mov_b32 s36, {D_MODB}')
    e(f's_cmp_lt_u32 {s(P1)}, {NMODA}')
    e(f's_cselect_b32 s36, {D_MOD}, s36')
    signal(e, name, None, B, loop, dbg_off='s36')


NAME = 'adaLN_cond__memory_aug_recurrent_mem_tr__glu_gated_swiglu__prompt_kernel'
if __name__ == '__main__':
    import argparse
    ap = argparse.ArgumentParser()
    ap.add_argument('--out', default='mega.s')
    ap.add_argument('--kw', default='')
    ap.add_argument('--log', action='store_true')
    ap.add_argument('--sleep', type=int, default=6)
    ap.add_argument('--list', action='store_true')
    ap.add_argument('--dsleep', type=int, default=24)
    args = ap.parse_args()
    LOG = args.log
    SLEEP = args.sleep
    DSLEEP = args.dsleep
    e = Em()
    nm = 'mega_kernel' if args.list else NAME
    e.raw(f'.globl {nm}')
    KNAME[0] = nm
    reset(e)
    kw = eval('dict(' + args.kw + ')')
    gen_chainX.gen_chain(e, name=nm, mega='wk_entry', nmoda=NMODA, segsig=WS_CT2 + K_CH * 128, kvt=64, **kw)
    gen_workers(e)
    if args.list:
        hdr = f"; @launch kernel={nm} grid=(256,1,1) block=(256,1,1) lds=163840\n"
    else:
        hdr = "; @launch grid=(256,1,1) block=(256,1,1) lds=163840\n"
    hdr += '.amdgcn_target "amdgcn-amd-amdhsa--gfx950"\n.text\n'
    open(args.out, 'w').write(hdr + e.text() + kd(nm, 512, 256))
```

```python
from emit import *
from layout import *
from gen_chain import Pool, f32bits, kd

S_WS = 4
S_DBG = 8
S_WQ = 12
S_WK = 16
S_WV = 20
S_WO = 24
S_H = 28
S_W = 29
S_STEP = 30
S_T0, S_T1, S_T2, S_T3 = 31, 32, 33, 34
S_MODE = 35
S_UNIT = 36
S_XCC = 37
S_C1 = 38
S_MASKLO = 40
S_LDSW = 42
S_SH13 = 43
S_MBP = 44
S_MSL = 48
S_M9D = 49
S_PBST = 50
S_MBL = 55
S_MBC = 56
S_MBN = 57
S_KXW = 58
S_KXM = 59
S_PBLD = 60
S_MDST = 61
S_VMO = 62
S_NR = 63
S_VB0, S_VB, S_MBL2, S_GOF2 = 66, 67, 68, 69
S_MBE0, S_MBD0, S_MBD2 = 73, 74, 47
S_GOF = 64
S_MBR2 = 65
S_VXO = 70
S_KMO = 71
S_WRM = 72
S_MBN2 = 75
S_STAMP = 76
S_SIG = 15
S_KVOK = 16

V_LANE16, V_IDX, V_AF, V_QKR, V_LDSW, V_QKW, V_OW, V_OR = range(8)
V_PBST, V_KXG, V_MBST, V_L8, V_WA, V_WT, V_M1, V_L64 = range(8, 16)
V_SEL = 16
V_ONES = 20
V_PM = 24
V_M2 = 26
NPERS = 28

NR_PING, NR_CAL, NR_VB = 8 * 16384, 9 * 16384, 16 * 16384
D_NEAR = 144
D_INIT, D_SLOW = 132, 136

_fj = [0]


def far_jump(e, label, sp):
    _fj[0] += 1
    here = f'Lfj{_fj[0]}'
    e(f's_getpc_b64 {s(sp, 2)}')
    e.label(here)
    e.raw(f'    s_add_u32 {s(sp)}, {s(sp)}, {label}-{here}')
    e.raw(f'    s_addc_u32 {s(sp + 1)}, {s(sp + 1)}, 0')
    e(f's_setpc_b64 {s(sp, 2)}')


def gen_chain(em, name='chain_kernel', mega=None, nmoda=0, pool_end=96, nsteps=64, stamps=False, stsel=(0, 1, 2, 3, 4, 5, 6, 7, 8, 9),
              hstamps=False, la_lds=5, afl=7, nvl=2, npre=4, noa=2, v_at=1, gdel=0, kdel=0, adel=3, nkl=4, wat=2, wat2=20, defer=True,
              warm=(('a', 0), ('a2', 1)), ncal=6, segsig=None, slow=True, early_poll=0, kvt=32,
              lds_un=(0, 1, 5, -9, -6, -3), dbg='', ldfl='nt'):
    L_MMEM = 0
    L_MQ = 10240
    L_MK = L_MQ + 2048
    L_O = L_MK + 2048
    L_KX = L_O + 2048
    L_VX = L_KX + 8192
    L_WB = L_VX + 8192
    NRING = 8
    WL = NRING * 4096
    assert L_WB + 4 * WL <= 163840
    e = em
    LN = 28
    NH1 = 10 - nvl

    ounits = [('o', t, p) for p in range(5) for t in range(2)]
    uorder = [(m, t) for t in range(10 - nkl) for m in 'qk'] + [(m, t) for m in 'qk' for t in range(10 - nkl, 10)] + [('v', t) for t in range(NH1, 10)]
    NQE = 40 - 2 * nkl
    NA = 2 * len(uorder)
    uorder += ounits
    order = [(un, tau) for un in uorder for tau in range(2)]
    n_reg = (512 - pool_end) // 8
    n_lds = len(order) - n_reg
    assert n_lds % 2 == 0 and n_lds <= 16, n_lds
    lun = sorted(x % len(uorder) for x in lds_un[:n_lds // 2])
    lun = [uorder[i] for i in lun]
    units = [un for un in uorder if un not in lun] + lun
    place = {}
    r = pool_end
    for i, un in enumerate(units):
        for tau in range(2):
            if un in lun:
                place[(un, tau)] = ('lds', 2 * (i % NRING) + tau)
            else:
                place[(un, tau)] = ('reg', r)
                r += 8
    assert r == 512

    em.raw('.p2align 8')
    em.raw(f'.type {name},@function')
    em.label(name)
    e('s_cmp_lt_u32 s2, 256')
    e(f's_cbranch_scc1 {name}_go')
    e('s_endpgm')
    e.label(f'{name}_go')
    if 'rt' in dbg:
        e('s_memrealtime s[96:97]')
    e('s_load_dwordx4 s[48:51], s[0:1], 16')
    e('s_load_dwordx4 s[52:55], s[0:1], 32')
    e('s_load_dwordx4 s[56:59], s[0:1], 112')
    e(f's_getreg_b32 {s(S_XCC)}, hwreg(HW_REG_XCC_ID)')
    e(f's_and_b32 {s(S_XCC)}, {s(S_XCC)}, 15')
    e('v_lshrrev_b32 v20, 6, v0')
    e('v_and_b32 v16, 63, v0')
    e(f'v_readfirstlane_b32 {s(S_W)}, v20')
    e('s_waitcnt lgkmcnt(0)')

    def srd(d, src, size):
        e(f's_mov_b32 {s(d)}, {s(src)}')
        e(f's_and_b32 {s(d + 1)}, {s(src + 1)}, 0xffff')
        e(f's_mov_b32 {s(d + 2)}, {size}')
        e(f's_mov_b32 {s(d + 3)}, 0x20000')
    srd(S_WQ, 48, 5242880)
    srd(S_WK, 50, 5242880)
    srd(S_WV, 52, 5242880)
    srd(S_WO, 54, 5242880)
    srd(S_DBG, 56, 256)
    srd(S_WS, 58, WS_SIZE)

    e(f's_and_b32 {s(S_MODE)}, s2, 7')
    e(f's_lshr_b32 {s(S_H)}, s2, 3')
    e(f's_cmp_lt_u32 {s(S_MODE)}, 2')
    e(f's_cbranch_scc1 {name}_hasrole')
    if mega:
        far_jump(e, mega, 44)
    else:
        e('s_endpgm')
    e.label(f'{name}_hasrole')
    e(f'v_mov_b32 {v(LN)}, v16')

    g, c, rp, cp, g1, g2, sw = 16, 17, 18, 19, 20, 21, 22
    T = 23
    e(f'v_lshrrev_b32 {v(g)}, 4, {v(LN)}')
    e(f'v_and_b32 {v(c)}, 15, {v(LN)}')
    e(f'v_lshrrev_b32 {v(rp)}, 2, {v(c)}')
    e(f'v_and_b32 {v(cp)}, 3, {v(LN)}')
    e(f'v_and_b32 {v(g1)}, 1, {v(g)}')
    e(f'v_lshrrev_b32 {v(g2)}, 1, {v(g)}')
    e(f'v_lshl_add_u32 {v(sw)}, {v(g1)}, 1, {v(g2)}')
    e(f'v_lshlrev_b32 {v(V_LANE16)}, 4, {v(LN)}')
    e(f'v_lshlrev_b32 {v(V_L64)}, 6, {v(LN)}')
    e(f'v_lshlrev_b32 {v(V_WA)}, 7, {v(c)}')
    e(f'v_mov_b32 {v(V_M1)}, -1')
    e(f'v_and_b32 {v(T)}, 2, {v(LN)}')
    e(f'v_cmp_ne_u32 vcc, 0, {v(T)}')
    e(f'v_mov_b32 {v(T + 1)}, 0x4444')
    e(f'v_mov_b32 {v(T + 2)}, 0xeeee')
    e(f'v_cndmask_b32 {v(V_IDX)}, {v(T + 1)}, {v(T + 2)}, vcc')
    e(f'v_lshl_add_u32 {v(T)}, {v(g)}, 2, {v(rp)}')
    e(f'v_lshlrev_b32 {v(T + 1)}, 3, {v(cp)}')
    e(f'v_lshl_add_u32 {v(V_AF)}, {v(T)}, 5, {v(T + 1)}')
    e(f'v_and_b32 {v(T + 2)}, 1, {v(cp)}')
    e(f'v_lshlrev_b32 {v(T + 2)}, 3, {v(T + 2)}')
    e(f'v_lshl_add_u32 {v(V_QKR)}, {v(T)}, 4, {v(T + 2)}')
    e(f'v_add_u32 {v(V_QKR)}, {L_MQ}, {v(V_QKR)}')
    e(f's_lshl_b32 {s(S_T0)}, {s(S_W)}, 5')
    e(f'v_add_u32 {v(T)}, {s(S_T0)}, {v(c)}')
    e(f'v_lshlrev_b32 {v(T + 2)}, 2, {v(sw)}')
    e(f'v_lshl_add_u32 {v(V_QKW)}, {v(T)}, 4, {v(T + 2)}')
    e(f'v_add_u32 {v(V_QKW)}, {L_MQ}, {v(V_QKW)}')
    e(f's_lshl_b32 {s(S_T0)}, {s(S_W)}, 2')
    e(f'v_add_u32 {v(T)}, {s(S_T0)}, {v(g)}')
    e(f'v_and_b32 {v(T + 3)}, 7, {v(LN)}')
    e(f'v_lshl_add_u32 {v(T)}, {v(T)}, 3, {v(T + 3)}')
    e(f'v_lshlrev_b32 {v(V_OW)}, 4, {v(T)}')
    e(f'v_add_u32 {v(V_OW)}, {L_O}, {v(V_OW)}')
    e(f'v_and_b32 {v(T)}, 1, {v(rp)}')
    e(f'v_lshrrev_b32 {v(T + 2)}, 1, {v(rp)}')
    e(f'v_lshl_add_u32 {v(T)}, {v(T)}, 1, {v(T + 2)}')
    e(f'v_and_b32 {v(T + 2)}, 1, {v(LN)}')
    e(f'v_lshl_add_u32 {v(T)}, {v(T)}, 1, {v(T + 2)}')
    e(f'v_lshl_add_u32 {v(T)}, {v(g)}, 3, {v(T)}')
    e(f'v_lshrrev_b32 {v(T + 2)}, 1, {v(cp)}')
    e(f'v_lshl_add_u32 {v(T)}, {v(T + 2)}, 5, {v(T)}')
    e(f'v_lshlrev_b32 {v(V_OR)}, 4, {v(T)}')
    e(f'v_add_u32 {v(V_OR)}, {L_O}, {v(V_OR)}')
    e(f'v_lshl_add_u32 {v(T)}, {v(g1)}, 2, {v(cp)}')
    e(f'v_lshlrev_b32 {v(T)}, 4, {v(T)}')
    e(f'v_lshl_add_u32 {v(T)}, {v(g2)}, 3, {v(T)}')
    e(f'v_lshl_add_u32 {v(V_PBST)}, {v(rp)}, 12, {v(T)}')
    e(f'v_and_b32 {v(T)}, 4, {v(LN)}')
    e(f'v_lshl_add_u32 {v(T)}, {v(sw)}, 3, {v(T)}')
    e(f'v_lshl_add_u32 {v(T)}, {v(cp)}, 5, {v(T)}')
    e(f'v_lshlrev_b32 {v(T + 1)}, 27, {v(c)}')
    e(f'v_and_b32 {v(T + 1)}, 0x40000000, {v(T + 1)}')
    e(f'v_or_b32 {v(V_MBST)}, {v(T)}, {v(T + 1)}')
    e(f'v_lshlrev_b32 {v(V_L8)}, 3, {v(LN)}')
    e(f'v_lshlrev_b32 {v(T)}, 4, {v(g)}')
    e(f'v_lshl_add_u32 {v(V_KXG)}, {v(c)}, 8, {v(T)}')
    e(f's_mul_i32 {s(S_LDSW)}, {s(S_W)}, {WL}')
    e(f's_add_u32 {s(S_LDSW)}, {s(S_LDSW)}, {L_WB}')
    e(f'v_add_u32 {v(V_LDSW)}, {s(S_LDSW)}, {v(V_LANE16)}')
    VG_QKV, VG_O, VT_QKV, VT_O = 28, 29, 30, 31
    e(f'v_lshrrev_b32 {v(T + 2)}, 1, {v(rp)}')
    e(f'v_and_b32 {v(T + 3)}, 1, {v(rp)}')
    e(f'v_lshlrev_b32 {v(T + 1)}, 3, {v(cp)}')
    e(f'v_lshlrev_b32 {v(T + 4)}, 5, {v(g1)}')
    e(f'v_lshl_add_u32 {v(T + 4)}, {v(T + 2)}, 4, {v(T + 4)}')
    e(f'v_lshl_add_u32 {v(T + 4)}, {v(g2)}, 2, {v(T + 4)}')
    e(f'v_add_u32 {v(T + 4)}, {v(T + 4)}, {v(T + 3)}')
    e(f'v_lshl_add_u32 {v(VT_QKV)}, {v(T + 4)}, 6, {v(T + 1)}')
    e(f'v_add_u32 {v(VT_QKV)}, {s(S_LDSW)}, {v(VT_QKV)}')
    e(f'v_lshlrev_b32 {v(T + 4)}, 5, {v(T + 2)}')
    e(f'v_lshl_add_u32 {v(T + 4)}, {v(g1)}, 4, {v(T + 4)}')
    e(f'v_lshl_add_u32 {v(T + 4)}, {v(g2)}, 2, {v(T + 4)}')
    e(f'v_add_u32 {v(T + 4)}, {v(T + 4)}, {v(T + 3)}')
    e(f'v_lshl_add_u32 {v(VT_O)}, {v(T + 4)}, 6, {v(T + 1)}')
    e(f'v_add_u32 {v(VT_O)}, {s(S_LDSW)}, {v(VT_O)}')
    e(f'v_lshrrev_b32 {v(T)}, 2, {v(LN)}')
    e(f'v_lshlrev_b32 {v(T + 1)}, 4, {v(cp)}')
    e(f'v_mul_u32_u24 {v(VG_O)}, 1280, {v(T)}')
    e(f'v_add_u32 {v(VG_O)}, {v(VG_O)}, {v(T + 1)}')
    e(f'v_lshl_add_u32 {v(VG_QKV)}, {v(T)}, 13, {v(T + 1)}')
    e(f's_lshl_b32 {s(S_T2)}, {s(S_H)}, 8')
    e(f's_lshl_b32 {s(S_T0)}, {s(S_W)}, 6')
    e(f's_add_u32 {s(S_T2)}, {s(S_T2)}, {s(S_T0)}')
    e(f's_mul_i32 {s(S_T3)}, {s(S_H)}, {128 * 1280}')
    e(f's_add_u32 {s(S_T3)}, {s(S_T3)}, {s(S_T0)}')
    e(f's_lshl_b32 {s(S_PBST)}, {s(S_W)}, 14')
    e(f's_lshl_b32 {s(S_T0)}, {s(S_H)}, 7')
    e(f's_add_u32 {s(S_PBST)}, {s(S_PBST)}, {s(S_T0)}')
    e(f's_mov_b32 {s(S_STEP)}, 0')
    e('s_mov_b32 s3, 0')
    e(f's_mov_b32 {s(S_MSL)}, 0')
    e(f's_lshl_b32 {s(S_T1)}, {s(S_H)}, 12')
    e(f's_add_u32 {s(S_KMO)}, {s(S_T1)}, {WS_KM}')
    e(f's_lshl_b32 {s(S_T0)}, {s(S_W)}, 9')
    e(f's_add_u32 {s(S_VMO)}, {s(S_KMO)}, {s(S_T0)}')
    e(f's_add_u32 {s(S_NR)}, {s(S_WS)}, 0x5fffff')
    e(f's_and_b32 {s(S_NR)}, {s(S_NR)}, 0xffe00000')
    e(f's_sub_u32 {s(S_NR)}, {s(S_NR)}, {s(S_WS)}')
    e(f's_lshl_b32 {s(S_T0)}, {s(S_W)}, 10')
    e(f's_lshr_b32 {s(S_T1)}, {s(S_H)}, 1')
    e(f's_lshl_b32 {s(S_T1)}, {s(S_T1)}, 14')
    e(f's_add_u32 {s(S_VB0)}, {s(S_T0)}, {s(S_T1)}')
    e(f's_and_b32 {s(S_T1)}, {s(S_H)}, 1')
    e(f's_lshl_b32 {s(S_T1)}, {s(S_T1)}, 12')
    e(f's_add_u32 {s(S_VB0)}, {s(S_VB0)}, {s(S_T1)}')
    e(f's_add_u32 {s(S_VB0)}, {s(S_VB0)}, {NR_VB}')

    def load_weights(ulist, place_, vt_o, tmpbase, first, pre=False):
        def issue(i):
            un = ulist[i]
            pos = i % NRING
            for q in range(4):
                if un[0] == 'o':
                    _, t, p = un
                    e(f's_add_u32 {s(S_T0)}, {s(S_T3)}, {(64 * t + 16 * q) * 1280 + 256 * p}')
                    srdn, vg = S_WO, VG_O
                else:
                    m, t = un
                    e(f's_add_u32 {s(S_T0)}, {s(S_T2)}, {(64 * t + 16 * q) * 8192}')
                    srdn, vg = {'q': S_WQ, 'k': S_WK, 'v': S_WV}[m], VG_QKV
                e(f's_add_u32 m0, {s(S_LDSW)}, {pos * 4096 + q * 1024}')
                e(f'buffer_load_dwordx4 {v(vg)}, {s(srdn, 4)}, {s(S_T0)} offen lds', tag=('dma', i))

        def process(i):
            un = ulist[i]
            pos = i % NRING
            e.wait_vm(('dma', i))
            vt = vt_o if un[0] == 'o' else VT_QKV
            for tau in range(2):
                kind, loc = place_[(un, tau)]
                dst = loc if kind == 'reg' else tmpbase + 8 * tau
                for n in range(4):
                    off = (8 * (n >> 1) + 2 * (n & 1)) * 64 + 32 * tau
                    e(f'ds_read_b64_tr_b16 {u(dst + 2 * n, 2)}, {v(vt)} offset:{pos * 4096 + off}')
            e.wait_lg()
            if kind == 'lds':
                assert loc == 2 * pos + 1 and i + NRING >= len(ulist)
                for n in range(4):
                    e(f'ds_write_b128 {v(V_LDSW)}, {v(tmpbase + 4 * n, 4)} offset:{pos * 4096 + 1024 * n}')
        n = len(ulist)
        if pre:
            first()
        for i in range(NRING):
            issue(i)
        if not pre:
            first()
        for i in range(n):
            process(i)
            if i + NRING < n:
                issue(i + NRING)

    def init_done(lab, inc='1'):
        e('s_waitcnt vmcnt(0)')
        e('s_barrier')
        e(f's_cmp_lg_u32 {s(S_W)}, 0')
        e(f's_cbranch_scc1 {lab}')
        e(f'v_mov_b32 v44, {D_INIT}')
        e(f'v_mov_b32 v45, {inc}')
        e('s_mov_b64 exec, 1')
        e(f'buffer_atomic_add v45, v44, {s(S_DBG, 4)}, 0 offen')
        e('s_mov_b64 exec, -1')
        e.label(lab)
        e.vm = []
        e.hist = []

    def init_wait(lab, t):
        e(f'v_mov_b32 {v(t + 2)}, 128')
        e.label(lab)
        wd()
        e('s_sleep 8')
        e(f'buffer_load_dwordx2 {v(t, 2)}, {v(t + 2)}, {s(S_DBG, 4)}, 0 offen sc1')
        e('s_waitcnt vmcnt(0)')
        e(f'v_readfirstlane_b32 {s(S_T0)}, {v(t)}')
        e(f'v_readfirstlane_b32 {s(S_T1)}, {v(t + 1)}')
        e(f's_and_b32 {s(S_T0)}, {s(S_T1)}, 0xffff')
        e(f's_cmp_lt_u32 {s(S_T0)}, 64')
        e(f's_cbranch_scc1 {lab}')
        e(f's_lshr_b32 {s(S_T1)}, {s(S_T1)}, 16')
        e(f's_cmp_ge_u32 {s(S_T1)}, 16')
        e(f's_cselect_b32 {s(S_T0)}, 8192, 0')
        if 'far' in dbg:
            e(f's_xor_b32 {s(S_T0)}, {s(S_T0)}, 8192')
        e(f's_add_u32 {s(S_NR)}, {s(S_NR)}, {s(S_T0)}')
        e(f's_add_u32 {s(S_VB0)}, {s(S_VB0)}, {s(S_NR)}')
        e(f's_mov_b32 {s(S_VB)}, {s(S_VB0)}')
        if nmoda:
            e(f'v_mov_b32 {v(t + 1)}, 0')
            e.label(lab + 'm')
            e(f'buffer_load_dword {v(t)}, {v(t + 1)}, {s(S_DBG, 4)}, 0 offen sc1')
            e('s_waitcnt vmcnt(0)')
            e(f'v_readfirstlane_b32 {s(S_T0)}, {v(t)}')
            e(f's_cmp_lt_u32 {s(S_T0)}, {nmoda}')
            e(f's_cbranch_scc1 {lab}m')

    def signal_block(t0):
        e(f's_lshl_b32 {s(S_T2)}, {s(S_T2)}, 7')
        e(f's_add_u32 {s(S_T2)}, {s(S_T2)}, {WS_CTR + C_CH * 128}')
        e(f'v_mov_b32 {v(t0)}, 1')
        e('s_mov_b64 exec, 1')
        e(f'buffer_atomic_add {v(t0)}, {v(V_LANE16)}, {s(S_WS, 4)}, {s(S_T2)} offen')
        e('s_mov_b64 exec, -1')

    def seg_signal():
        e('s_mov_b64 exec, 1')
        e(f'buffer_atomic_sub {v(V_M1)}, {v(V_LANE16)}, {s(S_WS, 4)}, {s(S_SIG)} offen')
        e('s_mov_b64 exec, -1')
        e(f's_add_u32 {s(S_SIG)}, {s(S_SIG)}, 128')

    def step_signal(L):
        if segsig is not None:
            return
        e(f's_and_b32 {s(S_T2)}, {s(S_STEP)}, 3')
        e(f's_lshl_b32 {s(S_T2)}, {s(S_T2)}, 2')
        e(f's_add_u32 {s(S_T2)}, {s(S_T2)}, {s(S_W)}')
        e(f's_cmp_lg_u32 {s(S_T2)}, 3')
        e(f's_cbranch_scc1 {L}_nosig')
        e(f's_cmp_eq_u32 {s(S_STEP)}, 0')
        e(f's_cbranch_scc1 {L}_nosig')
        e.cond_begin()
        e(f's_lshr_b32 {s(S_T2)}, {s(S_STEP)}, 2')
        e(f's_sub_u32 {s(S_T2)}, {s(S_T2)}, 1')
        signal_block(V_WT)
        e.cond_end()
        e.label(f'{L}_nosig')

    def tl(i):
        if 'tl' in dbg:
            e(f's_memrealtime {s(84 + 2 * i, 2)}')

    def tl_out(role, t):
        if 'tl' in dbg:
            e('s_waitcnt lgkmcnt(0)')
            for i in range(4):
                e(f'v_mov_b32 {v(t + i)}, {s(84 + 2 * i)}')
            e(f's_lshl_b32 {s(S_T0)}, {s(S_H)}, 2')
            e(f's_add_u32 {s(S_T0)}, {s(S_T0)}, {s(S_W)}')
            e(f's_lshl_b32 {s(S_T0)}, {s(S_T0)}, 6')
            e(f's_add_u32 {s(S_T0)}, {s(S_T0)}, {s(S_STEP)}')
            e(f's_lshl_b32 {s(S_T0)}, {s(S_T0)}, 4')
            e(f's_add_u32 {s(S_T0)}, {s(S_T0)}, {0x0F100000 + role * 0x40000}')
            e('s_mov_b64 exec, 1')
            e(f'buffer_store_dwordx4 {v(t, 4)}, {v(V_LANE16)}, {s(S_WS, 4)}, {s(S_T0)} offen')
            e('s_mov_b64 exec, -1')
            e.nop(2)

    def wd():
        if 'wd' in dbg:
            e('s_add_u32 s3, s3, 1')
            e('s_cmp_gt_u32 s3, 0x40000')
            _fj[0] += 1
            e(f's_cbranch_scc0 Lwd{_fj[0]}')
            e('s_endpgm')
            e.label(f'Lwd{_fj[0]}')

    def run(mf, side, ratio=2):
        side = list(side)
        for f in mf:
            f()
            for _ in range(ratio):
                if side:
                    side.pop(0)()
        for f in side:
            f()

    def fold(acc, dst):
        return [lambda: e(f'v_pk_add_f32 {v(acc, 2)}, {v(acc, 2)}, {v(acc + 2, 2)}'),
                lambda: e(f'v_cvt_pk_bf16_f32 {v(dst)}, {v(acc)}, {v(acc + 1)}')]

    def stamp_init():
        for i in range(17, 28):
            e(f's_mov_b32 {s(i)}, 0')
        e('s_memtime s[100:101]')
        e('s_waitcnt lgkmcnt(0)')
        for i in range(10):
            e(f's_mov_b32 {s(S_STAMP + 2 * i)}, s100')

    def stamp_acc(n):
        e('s_waitcnt lgkmcnt(0)')
        e(f's_sub_u32 {s(S_T0)}, {s(S_STAMP)}, s100')
        e(f's_add_u32 s17, s17, {s(S_T0)}')
        for i in range(n - 1):
            e(f's_sub_u32 {s(S_T0)}, {s(S_STAMP + 2 * i + 2)}, {s(S_STAMP + 2 * i)}')
            e(f's_add_u32 {s(18 + i)}, {s(18 + i)}, {s(S_T0)}')
        e(f's_mov_b32 s100, {s(S_STAMP + 2 * (n - 1))}')

    def stamp_out():
        e('v_mov_b32 v40, 0')
        for i in range(11):
            e(f'v_writelane_b32 v40, {s(17 + i)}, {i}')
        e(f'v_lshrrev_b32 v41, 2, {v(V_LANE16)}')
        e(f's_lshl_b32 {s(S_T0)}, {s(S_H)}, 2')
        e(f's_add_u32 {s(S_T0)}, {s(S_T0)}, {s(S_W)}')
        e(f's_lshl_b32 {s(S_T0)}, {s(S_T0)}, 8')
        e(f's_add_u32 {s(S_T0)}, {s(S_T0)}, 0x0F000000')
        e(f'buffer_store_dword v40, v41, {s(S_WS, 4)}, {s(S_T0)} offen')

    e(f's_cmp_eq_u32 {s(S_MODE)}, 0')
    e(f's_cbranch_scc1 {name}_chain')
    far_jump(e, f'{name}_helper', 44)
    e.label(f'{name}_chain')

    pool = Pool(NPERS, pool_end)
    cc = f32bits((128 ** -0.5) * 1.4426950408889634)
    e(f's_mov_b32 {s(S_C1)}, {cc:#x}')
    e(f's_mov_b32 {s(S_C1 + 1)}, {cc:#x}')
    e(f's_mov_b32 {s(S_MASKLO)}, -1')
    e(f's_mov_b32 {s(S_MASKLO + 1)}, 0')
    e(f's_lshl_b32 {s(S_T0)}, {s(S_H)}, 1')
    e(f's_add_u32 {s(S_T0)}, {s(S_T0)}, {s(S_W)}')
    e(f's_add_u32 {s(S_UNIT)}, {s(S_T0)}, 16')
    e(f's_cmp_lt_u32 {s(S_H)}, 16')
    e(f's_cselect_b32 {s(S_T0)}, {s(S_H)}, 255')
    e(f's_cmp_eq_u32 {s(S_W)}, 2')
    e(f's_cselect_b32 {s(S_UNIT)}, {s(S_T0)}, {s(S_UNIT)}')
    e(f's_cmp_eq_u32 {s(S_W)}, 3')
    e(f's_cselect_b32 {s(S_UNIT)}, 255, {s(S_UNIT)}')
    e(f's_mul_i32 {s(S_GOF)}, {s(S_W)}, 2560')

    def chain_init():
        e('s_load_dwordx2 s[76:77], s[0:1], 8')
        for j in range(4):
            e(f'v_mov_b32 {v(40 + j)}, -1')
        e(f's_lshl_b32 {s(S_T0)}, {s(S_H)}, 2')
        e(f's_add_u32 {s(S_T0)}, {s(S_T0)}, {s(S_W)}')
        e(f's_mul_i32 {s(S_T1)}, {s(S_T0)}, 2560')
        for sl_ in range(2):
            e(f's_add_u32 s78, {s(S_T1)}, {WS_PB + sl_ * PB_STRIDE}')
            for i in range(3):
                e(f'buffer_store_dwordx4 v[40:43], {v(V_LANE16)}, {s(S_WS, 4)}, s78 offen offset:{1024 * i} sc1')
        e(f's_lshl_b32 s78, {s(S_T0)}, 10')
        e(f's_add_u32 s79, s78, {WS_MB + MB_STRIDE}')
        e(f'buffer_store_dwordx4 v[40:43], {v(V_LANE16)}, {s(S_WS, 4)}, s79 offen sc1')
        e(f's_add_u32 s79, s78, {s(S_NR)}')
        e('s_add_u32 s79, s79, 32768')
        e(f's_cmp_ge_u32 {s(S_T0)}, 96')
        e('s_cselect_b32 s79, 0x40000000, s79')
        e(f'buffer_store_dwordx4 v[40:43], {v(V_LANE16)}, {s(S_WS, 4)}, s79 offen sc1')
        e('s_waitcnt lgkmcnt(0)')
        e('s_mov_b32 s80, s76')
        e('s_and_b32 s81, s77, 0xffff')
        e('s_mov_b32 s82, 10240')
        e('s_mov_b32 s83, 0x20000')
        e(f's_cmp_ge_u32 {s(S_T0)}, 40')
        e(f's_cbranch_scc1 {name}_nom0')
        e(f's_lshl_b32 s78, {s(S_T0)}, 6')
        e(f'v_lshrrev_b32 v44, 4, {v(V_LANE16)}')
        e('v_add_u32 v44, s78, v44')
        e('v_and_b32 v45, 1, v44')
        e('v_bfe_u32 v46, v44, 1, 2')
        e('v_bfe_u32 v47, v44, 3, 4')
        e('v_lshrrev_b32 v48, 7, v44')
        e('v_lshl_add_u32 v47, v45, 4, v47')
        e('v_lshl_add_u32 v47, v48, 5, v47')
        e('v_mul_u32_u24 v46, 2560, v46')
        e('v_lshl_add_u32 v46, v47, 1, v46')
        e('buffer_load_ushort v45, v46, s[80:83], 0 offen')
        e('buffer_load_ushort v47, v46, s[80:83], 0 offen offset:1280')
        e('v_lshlrev_b32 v44, 2, v44')
        e('s_waitcnt vmcnt(0)')
        e('v_lshl_or_b32 v45, v47, 16, v45')
        e('v_min_u32 v45, 0xfffffffe, v45')
        e(f's_mov_b32 s78, {WS_MB}')
        e(f's_cmp_ge_u32 {s(S_T0)}, 32')
        e('s_cselect_b32 s79, 8192, 0')
        e(f's_add_u32 s79, s79, {s(S_NR)}')
        e('s_add_u32 s80, s79, 8192')
        e(f'buffer_store_dword v45, v44, {s(S_WS, 4)}, s78 offen sc1')
        e(f'buffer_store_dword v45, v44, {s(S_WS, 4)}, s79 offen sc1')
        e(f'buffer_store_dword v45, v44, {s(S_WS, 4)}, s80 offen sc1')
        e.label(f'{name}_nom0')
        e(f's_lshl_b32 {s(S_T0)}, 1, {s(S_XCC)}')
        e(f'v_mov_b32 v44, {D_SLOW}')
        e(f'v_mov_b32 v45, {s(S_T0)}')
        e(f's_cmp_eq_u32 {s(S_W)}, 0')
        e('s_cselect_b64 exec, 1, 0')
        e(f'buffer_atomic_or v45, v44, {s(S_DBG, 4)}, 0 offen')
        e('s_mov_b64 exec, -1')
        init_done(f'{name}_noib')

    load_weights(units, place, VT_O, 48, chain_init)
    e.wait_lg()
    e('s_barrier')

    TT = NPERS
    e(f'v_and_b32 {v(TT)}, 16, {v(V_LANE16)}')
    e(f's_mov_b32 {s(S_T0)}, 0x3f80')
    e(f'v_lshlrev_b32 {v(TT)}, {v(TT)}, {s(S_T0)}')
    e(f'v_bfe_u32 {v(TT + 1)}, {v(V_LANE16)}, 5, 2')
    for rr in range(4):
        e(f'v_cmp_eq_u32 vcc, {rr}, {v(TT + 1)}')
        e(f'v_cndmask_b32 {v(V_SEL + rr)}, 0, {v(TT)}, vcc')
        e(f'v_mov_b32 {v(V_ONES + rr)}, 0x3f803f80')
    e(f'v_mov_b32 {v(V_PM + 1)}, 0')
    e(f'v_mov_b32 {v(V_PM + 2)}, 0')
    e(f's_add_u32 {s(S_MBP)}, {s(S_GOF)}, {WS_MB}')
    e(f's_add_u32 {s(S_PBST)}, {s(S_PBST)}, {WS_PB}')
    for p in range(1, 5):
        e(f's_add_u32 {s(S_PBST + p)}, {s(S_PBST)}, {p * 65536}')
    e(f's_lshl_b32 {s(S_T0)}, {s(S_UNIT)}, 12')
    e(f's_add_u32 {s(S_PBLD)}, {s(S_T0)}, {WS_PB}')
    e(f's_lshl_b32 {s(S_MBL)}, {s(S_UNIT)}, 7')
    e(f's_add_u32 {s(S_MBL)}, {s(S_MBL)}, {WS_MB}')
    e(f's_mov_b32 {s(S_MBC)}, {s(S_MBL)}')
    e(f's_add_u32 {s(S_MBN)}, {s(S_MBL)}, {MB_STRIDE}')
    e(f's_lshl_b32 {s(S_SH13)}, {s(S_H)}, 13')
    e(f's_lshl_b32 {s(S_T0)}, {s(S_W)}, 11')
    e(f's_add_u32 {s(S_VXO)}, {s(S_T0)}, {s(S_SH13)}')
    e(f's_add_u32 {s(S_WRM)}, {s(S_VXO)}, {WS_KX + 32 * 8192}')
    e(f's_add_u32 {s(S_VXO)}, {s(S_VXO)}, {WS_VXT}')
    e(f's_add_u32 {s(S_KXM)}, {s(S_T0)}, {L_KX}')
    e(f's_lshr_b32 {s(S_T0)}, {s(S_W)}, 1')
    e(f's_lshl_b32 {s(S_T0)}, {s(S_T0)}, 12')
    e(f's_and_b32 {s(S_T1)}, {s(S_W)}, 1')
    e(f's_lshl_b32 {s(S_T1)}, {s(S_T1)}, 7')
    e(f's_add_u32 {s(S_KXW)}, {s(S_T0)}, {s(S_T1)}')
    e(f's_add_u32 {s(S_KXW)}, {s(S_KXW)}, {s(S_SH13)}')
    e(f's_add_u32 {s(S_KXW)}, {s(S_KXW)}, {WS_KX}')

    def kx_items():
        return [
            lambda: e(f's_mov_b32 m0, {s(S_KXM)}'),
            lambda: e(f's_add_u32 {s(S_T0)}, {s(S_KXW)}, 64'),
            lambda: e(f'buffer_load_dwordx4 {v(V_KXG)}, {s(S_WS, 4)}, {s(S_KXW)} offen {ldfl} lds', tag='kx'),
            lambda: e(f's_add_u32 m0, {s(S_KXM)}, 1024'),
            lambda: e(f's_add_u32 {s(S_KXW)}, {s(S_KXW)}, {32 * 8192}'),
            lambda: e(f'buffer_load_dwordx4 {v(V_KXG)}, {s(S_WS, 4)}, {s(S_T0)} offen {ldfl} lds', tag='kx'),
            lambda: e(f's_add_u32 m0, {s(S_KXM)}, 8192'),
            lambda: e(f's_nop 0'),
            lambda: e(f'buffer_load_dwordx4 {v(V_LANE16)}, {s(S_WS, 4)}, {s(S_VXO)} offen {ldfl} lds', tag='kx'),
            lambda: e(f'buffer_load_dwordx4 {v(V_LANE16)}, {s(S_WS, 4)}, {s(S_VXO)} offen offset:1024 {ldfl} lds', tag='kx'),
            lambda: e(f's_add_u32 {s(S_VXO)}, {s(S_VXO)}, {32 * 8192}'),
        ]

    def kv_wait(lab, t1):
        e(f's_cmp_ge_u32 {s(S_KVOK)}, {s(S_T2)}')
        e(f's_cbranch_scc1 {lab}_ok')
        e.cond_begin()
        e(f's_mov_b32 {s(S_T3)}, {WS_CTR + C_KV * 128}')
        e.label(f'{lab}_spin')
        e(f'buffer_load_dword {v(t1)}, {v(V_WA)}, {s(S_WS, 4)}, {s(S_T3)} offen sc1')
        e('s_waitcnt vmcnt(0)')
        e(f'v_cmp_le_u32 vcc, {kvt}, {v(t1)}')
        e(f's_and_b32 {s(S_KVOK)}, vcc_lo, 0xffff')
        e(f's_ff0_i32_b32 {s(S_KVOK)}, {s(S_KVOK)}')
        e(f's_cmp_ge_u32 {s(S_KVOK)}, {s(S_T2)}')
        e(f's_cbranch_scc0 {lab}_spin')
        e.cond_end()
        e.label(f'{lab}_ok')

    def claim(b, n):
        for i in range(n):
            assert (b + i) in pool.free_, ('claim', b, n)
            pool.free_.remove(b + i)

    ACC = pool.must(24)
    VACC = ACC + 16
    V_EX = V_L8
    if 'rt' in dbg:
        e('s_memrealtime s[94:95]')
        e('s_waitcnt lgkmcnt(0)')
    init_wait(f'{name}_ibw', ACC)
    e(f's_lshl_b32 {s(S_MBL2)}, {s(S_UNIT)}, 7')
    e(f's_cmp_ge_u32 {s(S_UNIT)}, 64')
    e(f's_cselect_b32 {s(S_T0)}, 8192, 0')
    e(f's_add_u32 {s(S_MBL2)}, {s(S_MBL2)}, {s(S_T0)}')
    e(f's_add_u32 {s(S_MBL2)}, {s(S_MBL2)}, {s(S_NR)}')
    e(f's_cmp_ge_u32 {s(S_UNIT)}, 80')
    e(f's_cselect_b32 {s(S_MBL2)}, 0x40000000, {s(S_MBL2)}')
    e(f's_cmp_lt_u32 {s(S_UNIT)}, {8 * NH1 if defer else 80}')
    e(f's_cselect_b32 {s(S_MBE0)}, {s(S_MBL2)}, 0x40000000')
    e(f's_cselect_b32 {s(S_MBD0)}, 0x40000000, {s(S_MBL2)}')
    e(f's_add_u32 {s(S_MBN2)}, {s(S_MBE0)}, 32768')
    e(f's_mov_b32 {s(S_MBD2)}, 0x40000000')
    e(f's_add_u32 {s(S_MBR2)}, {s(S_MBL2)}, 65536')
    e(f'buffer_load_dword {v(ACC)}, {v(ACC + 2)}, {s(S_DBG, 4)}, 0 offen offset:8 sc1')
    e('s_waitcnt vmcnt(0)')
    e(f'v_readfirstlane_b32 {s(S_MODE)}, {v(ACC)}')
    e(f's_sub_u32 {s(S_T0)}, {s(S_MODE)}, 1')
    e(f's_and_b32 {s(S_MODE)}, {s(S_MODE)}, {s(S_T0)}')
    if 'slow' in dbg:
        e(f's_mov_b32 {s(S_MODE)}, 1')
    if mega:
        e(f's_mov_b32 {s(S_KVOK)}, 0')
        e(f's_mov_b32 {s(S_T2)}, 1')
        kv_wait(f'{name}_kv0', ACC)
    pre_slots = [sl for sl in order if place[sl][0] == 'lds'][:npre]
    PRE = [pool.alloc(8, 8, top=True) for _ in pre_slots]

    def pre_load():
        for sl, b in zip(pre_slots, PRE):
            loc = place[sl][1] * 2048
            e(f'ds_read_b128 {v(b, 4)}, {v(V_LDSW)} offset:{loc}')
            e(f'ds_read_b128 {v(b + 4, 4)}, {v(V_LDSW)} offset:{loc + 1024}')
    pre_load()
    for it in kx_items():
        it()
    e('s_waitcnt vmcnt(0) lgkmcnt(0)')
    e.vm = []
    e.lg = []
    if 'rt' in dbg:
        e('s_memrealtime s[98:99]')
        e('s_waitcnt lgkmcnt(0)')
    if 'tot' in dbg:
        e('s_memtime s[96:97]')
        e('s_waitcnt lgkmcnt(0)')
    if stamps:
        stamp_init()
    if slow:
        e(f's_cmp_lg_u32 {s(S_MODE)}, 0')
        e(f's_cbranch_scc1 {name}_slow')

    def body(sc, L):
        stamp_i = [0]
        call_i = [0]

        def stamp():
            call_i[0] += 1
            if stamps and (call_i[0] - 1) in stsel:
                e(f's_memtime {s(S_STAMP + 2 * stamp_i[0], 2)}')
                stamp_i[0] += 1

        e.label(L)
        e.hist = []
        e.vm = []
        e.lg = []
        stamp()
        G0, GM = ACC, ACC + 12
        e(f'v_add_u32 {v(GM + 1)}, {s(S_GOF)}, {v(V_LANE16)}')
        e('s_barrier')
        if adel:
            e(f's_sleep {adel}')
        e.label(f'{L}_pollA')
        e.hist = []
        wd()
        if stamps:
            e('s_add_u32 s27, s27, 0x10000')
        for i in range(3):
            e(f'buffer_load_dwordx4 {v(G0 + 4 * i, 4)}, {v(V_LANE16)}, {s(S_WS, 4)}, {s(S_MBP)} offen offset:{(0, 1024, 1536)[i]} sc1')
        for i in range(3):
            e(f's_waitcnt vmcnt({2 - i})')
            e(f'ds_write_b128 {v(GM + 1)}, {v(G0 + 4 * i, 4)} offset:{(0, 1024, 1536)[i]}')
        e(f'v_max3_u32 {v(GM)}, {v(G0)}, {v(G0 + 4)}, {v(G0 + 8)}')
        e(f'v_cmp_eq_u32 vcc, -1, {v(GM)}')
        e('s_mov_b64 exec, vcc')
        e(f's_cbranch_execnz {L}_pollA')
        e('s_mov_b64 exec, -1')
        e('s_waitcnt lgkmcnt(0)')
        e.label(f'{L}_gd')
        e('s_barrier')
        e.vm = []
        e.lg = []
        e.hist = []
        stamp()
        tl(0)
        pool.free(VACC, 8)

        loaded = {sl: b for sl, b in zip(pre_slots, PRE)}
        lds_pending = [sl for sl in order if place[sl][0] == 'lds' and sl not in loaded]
        st = dict(reserve=8, aflim=10)

        def pump_lds(cur_idx, force=False):
            while lds_pending and order.index(lds_pending[0]) <= cur_idx + la_lds:
                need = force and order.index(lds_pending[0]) <= cur_idx
                b = pool.alloc(8, 8, top=True, reserve=0 if need else st['reserve'])
                if b is None:
                    assert not need, 'no buffer for lds slot'
                    return
                lead = order.index(lds_pending[0]) - cur_idx
                if lead < 4 and cur_idx != NA:
                    print('; WARNING short lds lead', order.index(lds_pending[0]), lead)
                sl = lds_pending.pop(0)
                loc = place[sl][1] * 2048
                e(f'ds_read_b128 {v(b, 4)}, {v(V_LDSW)} offset:{loc}', tag=('lw', sl))
                e(f'ds_read_b128 {v(b + 4, 4)}, {v(V_LDSW)} offset:{loc + 1024}', tag=('lw', sl))
                loaded[sl] = b

        def smf(acc, af, sl):
            idx = order.index(sl)
            kind, loc = place[sl]
            if kind == 'reg':
                b = loc
            else:
                if sl not in loaded:
                    pump_lds(idx, True)
                b = loaded[sl]
                e.wait_lg(('lw', sl))
            e(f'v_smfmac_f32_16x16x64_bf16 {v(acc, 4)}, {v(af, 4)}, {u(b, 8)}, {v(V_IDX)}')
            if kind != 'reg':
                pool.free(b, 8)
            pump_lds(idx + 1)

        AF = {}
        afpos = [0]
        first_use = [min(i for i, o in enumerate(order[:40]) if o[0][1] == t) for t in range(10)]

        def af_pump(i, lead=None):
            while afpos[0] < st['aflim'] and first_use[afpos[0]] - i <= (lead or afl):
                k = afpos[0]
                b = pool.alloc(4)
                if b is None:
                    assert first_use[k] - i > 1, 'AF starved'
                    return
                afpos[0] += 1
                AF[k] = b
                e(f'ds_read_b64_tr_b16 {v(b, 2)}, {v(V_AF)} offset:{1024 * k}', tag=('af', k))
                e(f'ds_read_b64_tr_b16 {v(b + 2, 2)}, {v(V_AF)} offset:{1024 * k + 512}', tag=('af', k))

        af_pump(0)
        for j in range(0, 16, 2):
            e(f'v_mov_b64 {v(ACC + j, 2)}, 0')
        accof = {'q': 0, 'k': 8, 'v': 16}
        waited = set()

        def mk(i, sl):
            (m, t), tau = sl
            last = not any(o[0][1] == t for o in order[i + 1:40])

            def f():
                if t not in waited:
                    e.wait_lg(('af', t))
                    waited.add(t)
                smf(ACC + accof[m] + 4 * tau, AF[t], sl)
                if last:
                    pool.free(AF[t], 4)
                af_pump(i + 1)
            return f
        mf = [mk(i, sl) for i, sl in enumerate(order[:40])]
        run(mf[:wat], [], 0)

        def warm_items(pos):
            it = []
            for p_, what in warm:
                if p_ != pos:
                    continue
                if what:
                    it.append(lambda: e(f's_add_u32 {s(S_T0)}, {s(S_WRM)}, {WS_VXT - WS_KX}'))
                it.append(lambda what=what: e(f'buffer_load_dword {v(V_WT)}, {v(V_WA)}, {s(S_WS, 4)}, {s(S_T0 if what else S_WRM)} offen', tag='warm'))
            return it
        cold = [lambda: e(f'buffer_store_dword {v(V_EX)}, {v(V_MBST)}, {s(S_WS, 4)}, {s(S_MBD2)} offen sc1'),
                lambda: e(f'buffer_store_dword {v(V_M1)}, {v(V_MBST)}, {s(S_WS, 4)}, {s(S_MBR2)} offen sc1')]
        if not (defer and nvl):
            cold = cold[1:]
        if mega:
            e(f's_add_u32 {s(S_T2)}, {s(S_STEP)}, 5')
            e(f's_lshr_b32 {s(S_T2)}, {s(S_T2)}, 2')
            e(f's_min_u32 {s(S_T2)}, {s(S_T2)}, 16')
            kv_wait(f'{L}_kv', V_WT)
        run(mf[wat:wat2], warm_items('a') + cold, 2)
        run(mf[wat2:NQE - 4], warm_items('a2'), 2)
        st['reserve'] = 99
        SM = pool.alloc(8, 8, top=True)
        ZQ = SM
        ZVF = SM + 4
        kxb, sbuf = {}, {}

        def kx_read(f_, rsv=0):
            def g_():
                b = pool.alloc(4, reserve=rsv)
                if b is None:
                    return
                kxb[f_] = b
                e(f'ds_read_b128 {v(b, 4)}, {v(V_LANE16)} offset:{L_KX + f_ * 1024}', tag=('kx', f_))
            return g_

        def qm_read(kind, uu):
            def g_():
                b = sbuf[(kind, uu)] = pool.must(4)
                base = 0 if kind == 'q' else 2048
                for m in range(2):
                    e(f'ds_read_b64_tr_b16 {v(b + 2 * m, 2)}, {v(V_QKR)} offset:{base + uu * 512 + m * 256}', tag=('si', kind, uu))
            return g_

        def v_load():
            tl(1)
            e(f'buffer_load_dwordx4 {v(ZVF, 4)}, {v(V_LANE16)}, {s(S_WS, 4)}, {s(S_VB)} offen sc1', tag='vm')
        run(mf[NQE - 4:NQE], [], 1)
        late = mf[NQE:40]
        qf = fold(ACC, ZQ) + fold(ACC + 4, ZQ + 1) + [
            lambda: e(f'ds_write2st64_b32 {v(V_QKW)}, {v(ZQ)}, {v(ZQ + 1)} offset0:0 offset1:1', tag='qw')]
        kf = fold(ACC + 8, ZQ + 2) + fold(ACC + 12, ZQ + 3) + [
            lambda: e(f'ds_write2st64_b32 {v(V_QKW)}, {v(ZQ + 2)}, {v(ZQ + 3)} offset0:8 offset1:9', tag='kw')]
        run(late[:1], [kx_read(0, 4), kx_read(4, 4)], 2)
        run(late[1:3], qf, 3)
        run(late[3:6], [kx_read(1, 16), kx_read(5, 16), kx_read(2, 16)], 1)
        stamp()
        e.wait_lg('qw')
        e('s_barrier')
        pool.free(ACC, 8)
        SX = ACC
        claim(SX, 8)
        todo = []
        for uu in range(4):
            todo += [('q', uu)] + [('x', f_) for f_ in (uu, uu + 4) if f_ not in kxb]

        def try4():
            b = pool.alloc(4)
            if b is None:
                return False
            pool.free(b, 4)
            return True

        def s_fill2(maxn=99):
            n = 0
            while todo and n < maxn and try4():
                kind, x = todo.pop(0)
                if kind == 'x':
                    kx_read(x)()
                else:
                    qm_read(kind, x)()
                n += 1
        s_fill2(1)
        run(late[6:], [lambda: s_fill2(2)] * 4, 1)
        stamp()

        def sx(uu, ti):
            def f():
                f_ = uu + 4 * ti
                assert ('q', uu) in sbuf and f_ in kxb, 'S starved'
                e.wait_lg(('si', 'q', uu))
                e.wait_lg(('kx', f_))
                cin = '0' if uu == 0 else v(SX + 4 * ti, 4)
                e(f'v_mfma_f32_16x16x32_bf16 {v(SX + 4 * ti, 4)}, {v(kxb[f_], 4)}, {v(sbuf[("q", uu)], 4)}, {cin}')
                pool.free(kxb[f_], 4)
                s_fill2()
            return f
        sxl = [sx(uu, ti) for uu in range(4) for ti in range(2)]
        run(sxl[:2], [], 0)
        run([], kf, 0)
        run(sxl[2:4], [], 0)
        if v_at == 0:
            v_load()
        e.wait_lg('kw')
        e('s_barrier')
        pool.free(ACC + 8, 8)
        C0 = ACC + 8
        claim(C0, 4)
        todo_m = [('m', uu) for uu in range(4)]
        todo[:] = todo_m[:1] + todo + todo_m[1:]
        s_fill2()
        run(sxl[4:], [], 0)
        if v_at == 1:
            v_load()
        M = SM
        for uu in range(4):
            s_fill2()
            e.wait_lg(('si', 'm', uu))
            cin = '0' if uu == 0 else v(C0, 4)
            e(f'v_mfma_f32_16x16x32_bf16 {v(C0, 4)}, {v(sbuf[("m", uu)], 4)}, {v(sbuf[("q", uu)], 4)}, {cin}')
            pool.free(sbuf[('m', uu)], 4)
            pool.free(sbuf[('q', uu)], 4)
        assert not todo
        VA_ = pool.must(8)
        OACC = [pool.must(8) for _ in range(noa)]
        AFV = {}
        for t in range(NH1, 10):
            b = AFV[t] = OACC[(t - NH1) >> 1] + 4 * ((t - NH1) & 1)
            e(f'ds_read_b64_tr_b16 {v(b, 2)}, {v(V_AF)} offset:{1024 * t}', tag=('afv', t))
            e(f'ds_read_b64_tr_b16 {v(b + 2, 2)}, {v(V_AF)} offset:{1024 * t + 512}', tag=('afv', t))
        for j in range(0, 8 if nvl else 0, 2):
            e(f'v_mov_b64 {v(VA_ + j, 2)}, 0')

        def mkv(t, tau):
            def f():
                if tau == 0:
                    e.wait_lg(('afv', t))
                smf(VA_ + 4 * tau, AFV[t], (('v', t), tau))
            return f
        vmf = [mkv(t, tau) for t in range(NH1, 10) for tau in range(2)]
        P = pool.must(4)
        OA = pool.must(12)
        VX = pool.must(8)
        e(f'v_add_u32 {v(VX)}, {s(S_KXM)}, {v(V_LANE16)}')
        if v_at == 2:
            v_load()
        stamp()
        sm = []

        def V(x):
            sm.append(lambda: e(x))
        V(f'v_max3_f32 {v(M)}, {v(SX)}, {v(SX + 1)}, {v(SX + 2)}')
        V(f'v_max3_f32 {v(M + 1)}, {v(SX + 3)}, {v(SX + 4)}, {v(SX + 5)}')
        V(f'v_max3_f32 {v(M)}, {v(M)}, {v(SX + 6)}, {v(SX + 7)}')
        V(f'v_cndmask_b32 {v(C0)}, {v(C0 + 2)}, {v(C0)}, {s(S_MASKLO, 2)}')
        V(f'v_cndmask_b32 {v(C0 + 1)}, {v(C0 + 3)}, {v(C0 + 1)}, {s(S_MASKLO, 2)}')
        V(f'v_max3_f32 {v(M + 1)}, {v(M + 1)}, {v(C0)}, {v(C0 + 1)}')
        V(f'v_max_f32 {v(M)}, {v(M)}, {v(M + 1)}')
        V(f'v_max_f32 {v(M + 1)}, {v(M)}, {v(M + 1)}')
        V(f'v_permlane32_swap_b32 {v(M)}, {v(M + 1)}')
        V(f'v_max_f32 {v(M + 2)}, {v(M)}, {v(M + 1)}')
        V(f'v_max_f32 {v(M + 1)}, {v(M)}, {v(M + 1)}')
        V(f'v_permlane16_swap_b32 {v(M + 2)}, {v(M + 1)}')
        V(f'v_max_f32 {v(M)}, {v(M + 2)}, {v(M + 1)}')
        V(f'v_mul_f32 {v(M)}, {s(S_C1)}, {v(M)}')
        bub = {8: 1, 9: 1, 11: 1, 12: 1}
        for i, f in enumerate(sm):
            for _ in range(bub.get(i, 0)):
                if vmf:
                    vmf.pop(0)()
            f()
        if v_at == 3:
            v_load()
        e(f'ds_read_b128 {v(VX + 4, 4)}, {v(VX)} offset:{8192 + 1024}', tag='vx')
        e(f'ds_read_b128 {v(VX, 4)}, {v(VX)} offset:8192', tag='vx')
        for j in range(0, 10, 2):
            e(f'v_pk_fma_f32 {v(SX + j, 2)}, {v(SX + j, 2)}, {s(S_C1, 2)}, {v(M, 2)} op_sel_hi:[1,1,0] neg_lo:[0,0,1] neg_hi:[0,0,1]')
            if vmf:
                vmf.pop(0)()
        while vmf:
            vmf.pop(0)()
        zl = [(lambda b=b, j=j: e(f'v_mov_b64 {v(b + j, 2)}, 0')) for b in OACC for j in range(0, 8, 2)]

        def z(n=1):
            for _ in range(n):
                if zl:
                    zl.pop(0)()
        for j in range(8):
            e(f'v_exp_f32 {v(SX + j)}, {v(SX + j)}')
        for j in range(4):
            e(f'v_cvt_pk_bf16_f32 {v(P + j)}, {v(SX + 2 * j)}, {v(SX + 2 * j + 1)}')
        e.wait_lg('vx')
        e(f'v_exp_f32 {v(C0)}, {v(C0)}')
        e(f'v_mfma_f32_16x16x32_bf16 {v(OA + 8, 4)}, {v(V_ONES, 4)}, {v(P, 4)}, 0')
        e(f'v_exp_f32 {v(C0 + 1)}, {v(C0 + 1)}')
        e(f'v_mfma_f32_16x16x32_bf16 {v(OA, 4)}, {v(VX, 4)}, {v(P, 4)}, 0')
        e(f'v_cvt_pk_bf16_f32 {v(V_PM)}, {v(C0)}, {v(C0 + 1)}')
        e(f'v_cvt_pk_bf16_f32 {v(V_PM + 3)}, {v(C0)}, {v(C0 + 1)}')
        e(f'v_mfma_f32_16x16x32_bf16 {v(OA + 4, 4)}, {v(VX + 4, 4)}, {v(P, 4)}, 0')
        if nvl:
            e(f'v_pk_add_f32 {v(VA_, 2)}, {v(VA_, 2)}, {v(VA_ + 2, 2)}')
            e(f'v_pk_add_f32 {v(VA_ + 4, 2)}, {v(VA_ + 4, 2)}, {v(VA_ + 6, 2)}')
        e(f'v_mfma_f32_16x16x16_bf16 {v(OA + 8, 4)}, {v(V_ONES, 2)}, {v(V_PM, 2)}, {v(OA + 8, 4)}')
        z(4)
        if 'nov' not in dbg:
            e.wait_vm('vm')
            e(f'v_cmp_eq_u32 vcc, -1, {v(ZVF)}')
            e(f's_cbranch_vccnz {L}_fixv')
            e.label(f'{L}_pv2')
        ZV = VA_ + 2
        if nvl:
            e(f'v_pk_add_f32 {v(ZVF, 2)}, {v(ZVF, 2)}, {v(VA_, 2)}')
            e(f'v_pk_add_f32 {v(ZVF + 2, 2)}, {v(ZVF + 2, 2)}, {v(VA_ + 4, 2)}')
        e(f'v_cvt_pk_bf16_f32 {v(ZV)}, {v(ZVF)}, {v(ZVF + 1)}')
        e(f'v_cvt_pk_bf16_f32 {v(ZV + 1)}, {v(ZVF + 2)}, {v(ZVF + 3)}')
        e(f'v_rcp_f32 {v(M)}, {v(OA + 8)}')
        z(1)
        e(f'v_mfma_f32_16x16x16_bf16 {v(OA, 4)}, {v(ZV, 2)}, {v(V_PM, 2)}, {v(OA, 4)}')
        e(f'v_mfma_f32_16x16x16_bf16 {v(OA + 4, 4)}, {v(ZV, 2)}, {v(V_PM + 2, 2)}, {v(OA + 4, 4)}')
        pool.free(SX, 8)
        pool.free(VX, 8)
        pool.free(C0, 4)
        pool.free(VA_, 8)
        OF = pool.must(8)
        z(99)
        st['reserve'] = 0
        pump_lds(NA)
        for j in range(0, 8, 2):
            e(f'v_pk_mul_f32 {v(OA + j, 2)}, {v(OA + j, 2)}, {v(M, 2)} op_sel_hi:[1,0]')
        for j in range(4):
            e(f'v_cvt_pk_bf16_f32 {v(P + j)}, {v(OA + 2 * j)}, {v(OA + 2 * j + 1)}')
        e(f'ds_write_b128 {v(V_OW)}, {v(P, 4)}', tag='ow')
        pool.free(OA, 12)
        for x in [f's_add_u32 {s(S_WRM)}, {s(S_WRM)}, {32 * 8192}',
                  f's_add_u32 {s(S_MSL)}, {s(S_MSL)}, {MB_STRIDE}', f's_and_b32 {s(S_MSL)}, {s(S_MSL)}, {3 * MB_STRIDE}',
                  f's_add_u32 {s(S_T0)}, {s(S_MSL)}, {WS_MB}',
                  f's_add_u32 {s(S_MBP)}, {s(S_T0)}, {s(S_GOF)}',
                  f's_lshl_b32 {s(S_T0)}, {s(S_MSL)}, 4', f's_add_u32 {s(S_VB)}, {s(S_VB0)}, {s(S_T0)}',
                  f's_add_u32 {s(S_STEP)}, {s(S_STEP)}, 1']:
            e(x)
        e.wait_lg('ow')
        e('s_barrier')
        pool.free(P, 4)
        e(f'ds_read_b128 {v(OF, 4)}, {v(V_OR)}', tag='of0')
        e(f'ds_read_b128 {v(OF + 4, 4)}, {v(V_OR)} offset:1024', tag='of1')
        pump_lds(NA)
        kxi = kx_items()
        for f in kxi[:6]:
            f()
        stamp()
        ZO = [SM, SM + 2, SM + 4]

        def finish(p):
            ac = OACC[p % noa]
            zz = ZO[p % 3]
            it = fold(ac, zz) + fold(ac + 4, zz + 1)
            if p + noa < 5:
                it += [(lambda j=j: e(f'v_mov_b64 {v(ac + j, 2)}, 0')) for j in range(0, 4, 2)]
            it += [lambda: e(f'v_permlane16_swap_b32 {v(zz)}, {v(zz + 1)}'),
                   lambda: e(f'buffer_store_dwordx2 {v(zz, 2)}, {v(V_PBST)}, {s(S_WS, 4)}, {s(S_PBST + p)} offen {sc}', tag='pst')]
            if p + noa < 5:
                it += [(lambda j=j: e(f'v_mov_b64 {v(ac + j, 2)}, 0')) for j in range(4, 8, 2)]
            else:
                it += [lambda: pool.free(ac, 8)]
            return it
        sc2 = [f's_lshl_b32 {s(S_T0)}, {s(S_MSL)}, 1',
               f's_add_u32 {s(S_MBN2)}, {s(S_MBE0)}, {s(S_T0)}', f's_add_u32 {s(S_MBD2)}, {s(S_MBD0)}, {s(S_T0)}',
               f's_xor_b32 {s(S_T0)}, {s(S_T0)}, 65536', f's_add_u32 {s(S_MBR2)}, {s(S_MBL2)}, {s(S_T0)}',
               f's_add_u32 {s(S_MBN)}, {s(S_MBL)}, {s(S_MSL)}']
        sc2 = kxi[6:] + [(lambda x=x: e(x)) for x in sc2]
        for p in range(5):
            ac = OACC[p % noa]
            mo = []
            for t in range(2):
                for tau in range(2):
                    def f(t=t, tau=tau):
                        if p == 0 and tau == 0:
                            e.wait_lg(f'of{t}')
                        smf(ac + 4 * tau, OF + 4 * t, (('o', t, p), tau))
                    mo.append(f)
            side = finish(p - 1) if p >= 1 else sc2
            run(mo[:1], [], 0)
            run(mo[1:], side, 3 if p else 4)
        for f in finish(4):
            f()
        stamp()
        tl(3)
        pool.free(OF, 8)
        pool.free(SM, 8)
        assert not lds_pending
        claim(ACC, 24)
        for b in PRE:
            claim(b, 8)
        RB, RA, TM = ACC, VACC, VACC + 4

        def pb_loads():
            for i in range(4):
                e(f'buffer_load_dwordx4 {v(RB + 4 * i, 4)}, {v(V_LANE16)}, {s(S_WS, 4)}, {s(S_PBLD)} offen offset:{1024 * i} sc1', tag=('pb', i))
        if early_poll:
            e(f's_cmp_ge_u32 {s(S_UNIT)}, {early_poll}')
            e(f's_cbranch_scc1 {L}_nep')
            pb_loads()
            pre_load()
            for p in range(5):
                e(f's_xor_b32 {s(S_PBST + p)}, {s(S_PBST + p)}, {PB_STRIDE}')
            e(f's_branch {L}_pk1')
            e.label(f'{L}_nep')
        pre_load()
        for p in range(5):
            e(f's_xor_b32 {s(S_PBST + p)}, {s(S_PBST + p)}, {PB_STRIDE}')
        e(f's_cmp_ge_u32 {s(S_UNIT)}, 80')
        e(f's_cbranch_scc1 {L}_nored')
        if kdel:
            e.nop(kdel)
        e.label(f'{L}_pollK')
        e.hist = []
        wd()
        if stamps:
            e('s_add_u32 s27, s27, 1')
        pb_loads()
        e.label(f'{L}_pk1')
        e.hist = []
        for i in range(4):
            e(f's_waitcnt vmcnt({3 - i})')
            e(f'v_mfma_f32_16x16x32_bf16 {v(RA, 4)}, {v(V_SEL, 4)}, {v(RB + 4 * i, 4)}, {"0" if i == 0 else v(RA, 4)}')
            if i == 2:
                e(f'v_max3_u32 {v(TM)}, {v(RB)}, {v(RB + 4)}, {v(RB + 8)}')
        e(f'v_max_u32 {v(TM)}, {v(TM)}, {v(RB + 12)}')
        e(f'v_mov_b32_dpp {v(TM + 1)}, {v(TM)} quad_perm:[0,0,0,0] row_mask:0xf bank_mask:0xf')
        e(f'v_cmp_eq_u32 vcc, -1, {v(TM + 1)}')
        e('s_mov_b64 exec, vcc')
        e(f's_cbranch_execnz {L}_pollK')
        e('s_mov_b64 exec, -1')
        e.vm = []
        e(f'v_permlane32_swap_b32 {v(RA)}, {v(RA + 2)}')
        e(f'v_permlane32_swap_b32 {v(RA + 1)}, {v(RA + 3)}')
        e(f'v_add_f32_dpp {v(RA)}, {v(RA + 2)}, {v(RA)} row_ror:8 row_mask:0xf bank_mask:0xf')
        e(f'v_add_f32_dpp {v(RA + 1)}, {v(RA + 3)}, {v(RA + 1)} row_ror:8 row_mask:0xf bank_mask:0xf')
        e(f'v_cvt_pk_bf16_f32 {v(V_EX)}, {v(RA)}, {v(RA + 1)}')
        e(f'buffer_store_dword {v(V_EX)}, {v(V_MBST)}, {s(S_WS, 4)}, {s(S_MBN)} offen {sc}')
        e(f'buffer_store_dword {v(V_EX)}, {v(V_MBST)}, {s(S_WS, 4)}, {s(S_MBN2)} offen sc1')
        stamp()
        tl(2)
        e(f'buffer_store_dword {v(V_M1)}, {v(V_MBST)}, {s(S_WS, 4)}, {s(S_MBC)} offen {sc}')
        e(f'buffer_store_dword {v(V_M1)}, {v(V_L64)}, {s(S_WS, 4)}, {s(S_PBLD)} offen {sc}')
        e(f's_xor_b32 {s(S_PBLD)}, {s(S_PBLD)}, {PB_STRIDE}')
        e(f's_mov_b32 {s(S_MBC)}, {s(S_MBN)}')
        e(f's_branch {L}_end')
        e.label(f'{L}_nored')
        if stamps and call_i[0] - 1 in stsel:
            e(f's_memtime {s(S_STAMP + 2 * (stamp_i[0] - 1), 2)}')
        if gdel:
            e(f's_sleep {gdel}')
        e.label(f'{L}_end')
        e.hist = []
        tl_out(0, RB)
        e('s_waitcnt lgkmcnt(0)')
        if stamps:
            stamp()
            stamp_acc(stamp_i[0])
        e(f's_cmp_lg_u32 {s(S_STEP)}, {nsteps - 1}')
        e(f's_cbranch_scc1 {L}')
        e(f's_branch {name}_fin')
        if 'nov' in dbg:
            return
        e.label(f'{L}_fixv')
        wd()
        if stamps:
            e('s_add_u32 s26, s26, 63')
        e(f'buffer_load_dwordx4 {v(ZVF, 4)}, {v(V_LANE16)}, {s(S_WS, 4)}, {s(S_VB)} offen sc1')
        e('s_waitcnt vmcnt(0)')
        e(f'v_cmp_eq_u32 vcc, -1, {v(ZVF)}')
        e(f's_cbranch_vccnz {L}_fixv')
        e(f's_branch {L}_pv2')

    body('', f'{name}_fast')
    if slow:
        body('sc1', f'{name}_slow')
    e.label(f'{name}_fin')
    e.flush_hazards(4)
    e(f'buffer_store_dword {v(V_EX)}, {v(V_MBST)}, {s(S_WS, 4)}, {s(S_MBD2)} offen sc1')
    if stamps:
        stamp_out()
    if 'rt' in dbg or 'tot' in dbg:
        e(f's_cmp_lg_u32 {s(S_W)}, 1')
        e(f's_cbranch_scc1 {name}_exit')
    if 'rt' in dbg:
        e('s_memrealtime s[100:101]')
        e('s_waitcnt lgkmcnt(0)')
        e('v_mov_b32 v40, s96')
        e('v_mov_b32 v41, s98')
        e('v_mov_b32 v42, s100')
        e('v_mov_b32 v43, s94')
        e('v_mov_b32 v44, 0')
        e(f's_lshl_b32 {s(S_T0)}, {s(S_H)}, 6')
        e(f's_add_u32 {s(S_T0)}, {s(S_T0)}, 0x0F800000')
        e(f'buffer_store_dwordx4 v[40:43], v44, {s(S_WS, 4)}, {s(S_T0)} offen')
    if 'tot' in dbg:
        e('s_memtime s[98:99]')
        e('s_waitcnt lgkmcnt(0)')
        e('s_sub_u32 s98, s98, s96')
        e('v_mov_b32 v40, s98')
        e('v_mov_b32 v42, 0')
        e(f's_lshl_b32 {s(S_T0)}, {s(S_H)}, 6')
        e(f's_add_u32 {s(S_T0)}, {s(S_T0)}, 0x0F800000')
        e(f'buffer_store_dword v40, v42, {s(S_WS, 4)}, {s(S_T0)} offen')
    e.label(f'{name}_exit')
    e('s_endpgm')
    print(f'; chain12: n_reg={n_reg} n_lds={n_lds} pool peak={pool.peak} of {pool_end - NPERS}')

    H = f'{name}_helper'
    e.label(H)
    e.hist, e.vm, e.lg = [], [], []
    hunits = [('v', t) for t in range(10)] + [('k', t) for t in range(10)]
    hplace = {}
    r = 128
    for un in hunits:
        for tau in range(2):
            hplace[(un, tau)] = ('reg', r)
            r += 8
    M4 = 24
    for j in range(4):
        e(f'v_mov_b32 {v(M4 + j)}, -1')

    def helper_init():
        e(f's_cmp_lg_u32 {s(S_W)}, 0')
        e(f's_cbranch_scc1 {H}_nocal')
        e(f's_lshl_b32 {s(S_T0)}, {s(S_H)}, 7')
        e(f's_add_u32 {s(S_T0)}, {s(S_T0)}, {s(S_NR)}')
        e(f's_add_u32 s82, {s(S_T0)}, {NR_CAL}')
        e(f's_add_u32 s83, {s(S_T0)}, {NR_CAL + 8192}')
        e('s_mov_b32 s80, -1')
        e('s_mov_b32 s81, -1')
        e(f's_mov_b32 {s(S_T0)}, {ncal}')
        e.label(f'{H}_cal')
        for hf in range(2):
            e('s_memtime s[76:77]')
            e('s_waitcnt lgkmcnt(0)')
            e(f'buffer_store_dword {v(V_M1)}, {v(V_MBST)}, {s(S_WS, 4)}, {s(82 + hf)} offen sc1')
            e('s_waitcnt vmcnt(0)')
            e('s_memtime s[78:79]')
            e('s_waitcnt lgkmcnt(0)')
            e('s_sub_u32 s78, s78, s76')
            e(f's_min_u32 {s(80 + hf)}, {s(80 + hf)}, s78')
        e(f's_sub_u32 {s(S_T0)}, {s(S_T0)}, 1')
        e(f's_cmp_lg_u32 {s(S_T0)}, 0')
        e(f's_cbranch_scc1 {H}_cal')
        e('s_cmp_lt_u32 s81, s80')
        e('s_cselect_b32 s80, 0x10001, 1')
        e.label(f'{H}_nocal')
        e('s_barrier')
        for sl_ in range(4):
            for hf in range(2):
                e(f's_add_u32 {s(S_T0)}, {s(S_VB0)}, {sl_ * 262144 + hf * 8192}')
                e(f's_add_u32 {s(S_T0)}, {s(S_T0)}, {s(S_NR)}')
                e(f'buffer_store_dwordx4 {v(M4, 4)}, {v(V_LANE16)}, {s(S_WS, 4)}, {s(S_T0)} offen sc1')
        init_done(f'{H}_noib', 's80')
    load_weights(hunits, hplace, VT_QKV, 0, helper_init, pre=True)
    e('s_barrier')
    init_wait(f'{H}_ibw', 32)
    if 'nohelp' in dbg:
        e('s_endpgm')
    S_PA, S_PB_, S_PC = 50, 51, 52
    GA, GB, GC, V_KR = V_OR, V_KXG, V_OW, V_QKR
    e(f's_lshl_b32 {s(S_PA)}, {s(S_W)}, 10')
    e(f's_and_b32 {s(S_T0)}, {s(S_W)}, {NH1 - 4 - 1}')
    e(f's_lshl_b32 {s(S_T0)}, {s(S_T0)}, 10')
    e(f's_add_u32 {s(S_PB_)}, {s(S_T0)}, 4096')
    e(f's_and_b32 {s(S_T0)}, {s(S_W)}, {nvl - 1}')
    e(f's_lshl_b32 {s(S_T0)}, {s(S_T0)}, 10')
    e(f's_add_u32 {s(S_PC)}, {s(S_T0)}, {NH1 * 1024}')
    e(f'v_add_u32 {v(GA)}, {s(S_PA)}, {v(V_LANE16)}')
    e(f'v_add_u32 {v(GB)}, {s(S_PB_)}, {v(V_LANE16)}')
    e(f'v_add_u32 {v(GC)}, {s(S_PC)}, {v(V_LANE16)}')
    e(f's_cmp_ge_u32 {s(S_PC)}, 8192')
    e(f's_cselect_b32 {s(S_T0)}, 8192, 0')
    e(f's_add_u32 {s(S_PC)}, {s(S_PC)}, {s(S_T0)}')
    for x in (S_PA, S_PB_, S_PC):
        e(f's_add_u32 {s(x)}, {s(x)}, {s(S_NR)}')
    for i, x in enumerate((S_PA, S_PB_, S_PC)):
        e(f's_mov_b32 {s(S_MBP + i)}, {s(x)}')
    e(f's_lshl_b32 {s(S_T0)}, {s(S_W)}, 9')
    e(f's_add_u32 {s(S_T0)}, {s(S_T0)}, {L_MQ}')
    e(f'v_add_u32 {v(V_KR)}, {s(S_T0)}, {v(V_L8)}')
    e(f's_mov_b32 {s(S_MBR2)}, 0x40000000')
    if segsig is not None:
        e(f's_cmp_eq_u32 {s(S_W)}, 3')
        e(f's_mov_b32 {s(S_SIG)}, {segsig}')
        e(f's_cselect_b32 {s(S_SIG)}, {s(S_SIG)}, 0x40000000')
    G0, GM, ZH, VA, KA, AFH = 32, 40, 44, 48, 56, 64
    if hstamps:
        stamp_init()
    hs = [0]

    def hstamp():
        if hstamps:
            e(f's_memtime {s(S_STAMP + 2 * hs[0], 2)}')
            hs[0] += 1

    def haf(k):
        e(f'ds_read_b64_tr_b16 {v(AFH + 4 * k, 2)}, {v(V_AF)} offset:{1024 * k}', tag=('af', k))
        e(f'ds_read_b64_tr_b16 {v(AFH + 4 * k + 2, 2)}, {v(V_AF)} offset:{1024 * k + 512}', tag=('af', k))

    def hsm(m, t):
        for tau in range(2):
            e(f'v_smfmac_f32_16x16x64_bf16 {v((VA if m == "v" else KA) + 4 * tau, 4)}, {v(AFH + 4 * t, 4)}, {u(hplace[((m, t), tau)][1], 8)}, {v(V_IDX)}')
    L = f'{H}_loop'
    e.label(L)
    e.hist, e.vm, e.lg = [], [], []
    hstamp()
    for j in range(0, 16, 2):
        e(f'v_mov_b64 {v(VA + j, 2)}, 0')
    e.label(f'{L}_poll')
    wd()
    if hstamps:
        e('s_add_u32 s27, s27, 1')
    for i in range(2):
        e(f'buffer_load_dwordx4 {v(G0 + 4 * i, 4)}, {v(V_LANE16)}, {s(S_WS, 4)}, {s(S_MBP + i)} offen sc1')
    e('s_waitcnt vmcnt(0)')
    e(f'v_max_u32 {v(GM)}, {v(G0)}, {v(G0 + 4)}')
    e(f'v_cmp_eq_u32 vcc, -1, {v(GM)}')
    e('s_mov_b64 exec, vcc')
    e(f's_cbranch_execnz {L}_poll')
    e('s_mov_b64 exec, -1')
    e(f'ds_write_b128 {v(GA)}, {v(G0, 4)}')
    e(f'ds_write_b128 {v(GB)}, {v(G0 + 4, 4)}')
    e('s_waitcnt lgkmcnt(0)')
    e('s_barrier')
    e.vm, e.lg = [], []
    hstamp()
    tl(0)
    for k in range(min(NH1, 7)):
        haf(k)
    for t in range(NH1):
        e.wait_lg(('af', t))
        hsm('v', t)
        if t + 7 < NH1:
            haf(t + 7)
    hsm('k', 0)
    e(f'v_pk_add_f32 {v(ZH, 2)}, {v(VA, 2)}, {v(VA + 2, 2)}')
    e(f'v_pk_add_f32 {v(ZH + 2, 2)}, {v(VA + 4, 2)}, {v(VA + 6, 2)}')
    e(f'buffer_store_dwordx4 {v(ZH, 4)}, {v(V_LANE16)}, {s(S_WS, 4)}, {s(S_VB)} offen sc1')
    hstamp()
    tl(1)
    e(f'buffer_store_dwordx4 {v(M4, 4)}, {v(V_LANE16)}, {s(S_WS, 4)}, {s(S_MBR2)} offen sc1')
    e(f's_mov_b32 {s(S_MBR2)}, {s(S_VB)}')
    for t in range(1, NH1):
        hsm('k', t)
    e.label(f'{L}_poll2')
    wd()
    e(f'buffer_load_dwordx4 {v(G0, 4)}, {v(V_LANE16)}, {s(S_WS, 4)}, {s(S_MBP + 2)} offen sc1')
    e('s_waitcnt vmcnt(0)')
    e(f'v_cmp_eq_u32 vcc, -1, {v(G0)}')
    e('s_mov_b64 exec, vcc')
    e(f's_cbranch_execnz {L}_poll2')
    e('s_mov_b64 exec, -1')
    e(f'ds_write_b128 {v(GC)}, {v(G0, 4)}')
    e('s_waitcnt lgkmcnt(0)')
    e('s_barrier')
    e.vm, e.lg = [], []
    tl(2)
    for k in range(NH1, 10):
        haf(k)
    for t in range(NH1, 10):
        e.wait_lg(('af', t))
        hsm('k', t)
    for t in range(NH1, 10):
        hsm('v', t)
    for f in fold(KA, ZH) + fold(KA + 4, ZH + 1):
        f()
    e(f'ds_write2st64_b32 {v(V_QKW)}, {v(ZH)}, {v(ZH + 1)} offset0:0 offset1:1', tag='kw')
    for f in fold(VA, ZH + 2) + fold(VA + 4, ZH + 3):
        f()
    e(f'buffer_store_dwordx2 {v(ZH + 2, 2)}, {v(V_L8)}, {s(S_WS, 4)}, {s(S_VMO)} offen offset:2048 sc1')
    e.wait_lg('kw')
    e('s_barrier')
    e(f'ds_read_b64 {v(ZH, 2)}, {v(V_KR)}')
    e(f's_add_u32 {s(S_STEP)}, {s(S_STEP)}, 1')
    e(f's_add_u32 {s(S_MSL)}, {s(S_MSL)}, {MB_STRIDE}')
    e(f's_and_b32 {s(S_MSL)}, {s(S_MSL)}, {3 * MB_STRIDE}')
    e(f's_lshl_b32 {s(S_T0)}, {s(S_MSL)}, 1')
    for i, x in enumerate((S_PA, S_PB_, S_PC)):
        e(f's_add_u32 {s(S_MBP + i)}, {s(x)}, {s(S_T0)}')
    e(f's_lshl_b32 {s(S_T0)}, {s(S_MSL)}, 4')
    e(f's_add_u32 {s(S_VB)}, {s(S_VB0)}, {s(S_T0)}')
    e('s_waitcnt lgkmcnt(0)')
    e(f'buffer_store_dwordx2 {v(ZH, 2)}, {v(V_L8)}, {s(S_WS, 4)}, {s(S_VMO)} offen sc1')
    e(f's_add_u32 {s(S_VMO)}, {s(S_VMO)}, {32 * 4096}')
    e('s_waitcnt vmcnt(0)')
    e('s_barrier')
    if segsig is not None:
        seg_signal()
    tl(3)
    tl_out(1, G0)
    if hstamps:
        hstamp()
        stamp_acc(hs[0])
    e(f's_cmp_lt_u32 {s(S_STEP)}, {nsteps}')
    e(f's_cbranch_scc1 {L}')
    if hstamps:
        stamp_out()
    e('s_endpgm')


if __name__ == '__main__':
    import argparse
    ap = argparse.ArgumentParser()
    ap.add_argument('--out', default='chain_test.s')
    ap.add_argument('--stamps', action='store_true')
    ap.add_argument('--kw', default='')
    args = ap.parse_args()
    em = Em()
    kw = eval('dict(' + args.kw + ')')
    gen_chain(em, stamps=args.stamps, **kw)
    hdr = '; @launch kernel=chain_kernel grid=(256,1,1) block=(256,1,1) lds=163840\n'
    hdr += '.amdgcn_target "amdgcn-amd-amdhsa--gfx950"\n.text\n.globl chain_kernel\n'
    open(args.out, 'w').write(hdr + em.text() + kd('chain_kernel', 512, 256))
```

```python
from emit import *
from layout import *
from gen_chain import f32bits, kd
from gen_gemm import Gemm
import gen_all
from gen_all import start, load_srds, end, lane_wave, silu_inplace, wave_sum, rnd2, LOG2E, KA, SIZES
import gen_chain13 as gen_chainX
from gen_chain13 import far_jump

LOG = False
SLEEP = 8
SLEEPN = 1
DSLEEP = 24
WS_LOG = 0x0F400000
POOLS = [('wk_att', 11), ('wk_wo', 40), ('wk_ln2', 8), ('wk_up', 27), ('wk_dn', 10)]
GSZ = sum(c for _, c in POOLS)
NATT = 22
WS_CT2 = 0x00040000
K_CH, K_ATT, K_WO, K_LN2, K_UP = 0, 64, 128, 192, 256
NCH = 32
NMODA, NLN, NMODB = 40, 128, 80
NPRE = NMODA + NLN + NMODB
NTASK = NPRE + 768
D_TASK, D_MOD, D_MODB = 64, 0, 140
D_POST, D_TQ = 60, 72
N0 = 14
S_RANK, S_PB = 60, 30
SW = 29
S_W1, S_W3, S_W2, S_X, S_OUT, S_SEL = 64, 68, 72, 76, 80, 84
VL = 1
_bj = [0]
KNAME = ['']


def back_jump(e, label, sp=44):
    _bj[0] += 1
    here = f'Lbj{_bj[0]}'
    e(f's_getpc_b64 {s(sp, 2)}')
    e.label(here)
    e.raw(f'    s_add_u32 {s(sp)}, {s(sp)}, {label}-{here}')
    e.raw(f'    s_addc_u32 {s(sp + 1)}, {s(sp + 1)}, -1')
    e(f's_setpc_b64 {s(sp, 2)}')


def reset(e):
    e.hist = []
    e.vm = []
    e.lg = []


def dep_wait(e, lab, deps, sb):
    e(f's_cmp_lg_u32 {s(SW)}, 0')
    e(f's_cbranch_scc1 {lab}_dw')
    e(f's_lshl_b32 s38, {s(sb)}, 7')
    e('v_mov_b32 v2, 0')
    for i, (c, tgt) in enumerate(deps):
        e(f's_add_u32 s39, s38, {WS_CTR + c * 128}')
        e.label(f'{lab}_sp{i}')
        e('buffer_load_dword v3, v2, s[4:7], s39 offen sc1')
        e('s_waitcnt vmcnt(0)')
        e('v_readfirstlane_b32 s37, v3')
        e(f's_cmp_ge_u32 s37, {tgt}')
        e(f's_cbranch_scc1 {lab}_ok{i}')
        for _ in range(SLEEPN):
            e(f's_sleep {SLEEP}')
        e(f's_branch {lab}_sp{i}')
        e.label(f'{lab}_ok{i}')
    e.label(f'{lab}_dw')
    e('s_barrier')
    if LOG:
        e('s_memrealtime s[100:101]')
        e('s_waitcnt lgkmcnt(0)')
        e('s_mov_b32 s63, s100')
    reset(e)


def dbg_wait(e, lab, off_sgpr_or_int, tgt):
    e(f's_cmp_lg_u32 {s(SW)}, 0')
    e(f's_cbranch_scc1 {lab}_dw')
    e(f'v_mov_b32 v2, {off_sgpr_or_int}')
    e.label(f'{lab}_sp')
    e('buffer_load_dword v3, v2, s[8:11], 0 offen sc1')
    e('s_waitcnt vmcnt(0)')
    e('v_readfirstlane_b32 s37, v3')
    e(f's_cmp_ge_u32 s37, {tgt}')
    e(f's_cbranch_scc1 {lab}_dw')
    e(f's_sleep {DSLEEP}')
    e(f's_branch {lab}_sp')
    e.label(f'{lab}_dw')
    e('s_barrier')
    if LOG:
        e('s_memrealtime s[100:101]')
        e('s_waitcnt lgkmcnt(0)')
        e('s_mov_b32 s63, s100')
    reset(e)


def signal(e, lab, c, sb, loop, dbg_off=None):
    e('s_waitcnt vmcnt(0) lgkmcnt(0)')
    e('s_barrier')
    if LOG:
        e('s_memrealtime s[100:101]')
        e('s_waitcnt lgkmcnt(0)')
        e('v_mov_b32 v4, s63')
        e('v_mov_b32 v5, s100')
        e('v_mov_b32 v6, s61')
        e('v_mov_b32 v7, s28')
        e('v_mov_b32 v2, 0')
        e('s_lshl_b32 s38, s62, 4')
        e(f's_add_u32 s38, s38, {WS_LOG}')
        e('buffer_store_dwordx4 v[4:7], v2, s[4:7], s38 offen')
    if dbg_off is not None:
        e(f's_cmp_lg_u32 {s(SW)}, 0')
        e(f's_cbranch_scc1 {lab}_sg')
        e(f'v_mov_b32 v2, {dbg_off}')
        e('v_mov_b32 v3, 1')
        e('s_mov_b64 exec, 1')
        e('buffer_atomic_add v3, v2, s[8:11], 0 offen')
        e('s_mov_b64 exec, -1')
        e.label(f'{lab}_sg')
    elif c is not None:
        e(f's_cmp_lg_u32 {s(SW)}, 0')
        e(f's_cbranch_scc1 {lab}_sg')
        if isinstance(c, int):
            e(f's_lshl_b32 s38, {s(sb)}, 7')
            e(f's_add_u32 s38, s38, {WS_CTR + c * 128}')
        else:
            e(f's_add_u32 s38, {s(sb)}, {c}')
            e('s_lshl_b32 s38, s38, 7')
            e(f's_add_u32 s38, s38, {WS_CTR}')
        e('v_mov_b32 v2, 0')
        e('v_mov_b32 v3, 1')
        e('s_mov_b64 exec, 1')
        e('buffer_atomic_add v3, v2, s[4:7], s38 offen')
        e('s_mov_b64 exec, -1')
        e.label(f'{lab}_sg')
    back_jump(e, loop)


def mid(e):
    if LOG:
        e('s_memrealtime s[100:101]')
        e('s_waitcnt lgkmcnt(0)')
        e('s_mov_b32 s61, s100')


def h_qkv(e, loop):
    name = 'wk_qkv'
    e.label(name)
    reset(e)
    e('s_cmp_eq_u32 s23, 1')
    e(f's_cselect_b32 {s(S_SEL)}, s16, s12')
    e(f's_cselect_b32 {s(S_SEL + 1)}, s17, s13')
    e('s_cmp_eq_u32 s23, 2')
    e(f's_cselect_b32 {s(S_SEL)}, s20, {s(S_SEL)}')
    e(f's_cselect_b32 {s(S_SEL + 1)}, s21, {s(S_SEL + 1)}') if False else None
    return


def gen_workers(e, loop='wk_loop'):
    B, P1, P2 = 52, 53, 54
    e.label('wk_entry')
    reset(e)
    e(f'v_mov_b32 {v(VL)}, v16')
    load_srds(e, [('w1', S_W1), ('w3', S_W3), ('w2', S_W2), ('x', S_X), ('out', S_OUT)], tmp=88)
    e(f's_mov_b32 {s(S_SEL + 2)}, 5242880')
    e(f's_mov_b32 {s(S_SEL + 3)}, 0x20000')
    e('s_bfe_u32 s3, s2, 0x10003')
    e(f's_lshr_b32 {s(S_RANK)}, s2, 4')
    e(f's_mul_i32 {s(S_RANK)}, {s(S_RANK)}, 6')
    e('s_and_b32 s48, s2, 7')
    e(f's_add_u32 {s(S_RANK)}, {s(S_RANK)}, s48')
    e(f's_sub_u32 {s(S_RANK)}, {s(S_RANK)}, 2')

    def logstart(sidx, base):
        if LOG:
            e(f's_add_u32 s62, {s(sidx)}, {base}')
            e('s_memrealtime s[100:101]')
            e('s_waitcnt lgkmcnt(0)')
            e('s_mov_b32 s63, s100')
            e('s_mov_b32 s28, s100')
            e('s_mov_b32 s61, s100')
    e('s_mov_b32 s48, 0')
    e('s_cmp_eq_u32 s3, 0')
    e(f's_cbranch_scc1 {loop}')
    logstart(S_RANK, 0)
    far_jump(e, 'wk_qkv', 44)
    e.label(loop)
    reset(e)
    e('s_add_u32 s48, s48, 1')
    e('s_cmp_gt_u32 s48, 3')
    e('s_cbranch_scc1 wk_rank')
    e(f's_cmp_ge_u32 {s(S_RANK)}, {NMODA}')
    e('s_cbranch_scc1 wk_nm')
    e(f's_lshl_b32 {s(P1)}, {s(S_RANK)}, 1')
    e(f's_add_u32 {s(P1)}, {s(P1)}, s48')
    e(f's_add_u32 {s(P1)}, {s(P1)}, {NMODA - 2}')
    e('s_cmp_eq_u32 s48, 1')
    e(f's_cselect_b32 {s(P1)}, {s(S_RANK)}, {s(P1)}')
    logstart(P1, 8000)
    far_jump(e, 'wk_mod', 44)
    e.label('wk_nm')
    e(f's_mul_i32 {s(P1)}, s48, {96 - NMODA}')
    e(f's_add_u32 {s(P1)}, {s(P1)}, {s(S_RANK)}')
    e(f's_sub_u32 {s(P1)}, {s(P1)}, 96')
    e(f's_cmp_ge_u32 {s(P1)}, {NLN}')
    e('s_cbranch_scc1 wk_rank')
    logstart(P1, 8200)
    far_jump(e, 'wk_ln1', 44)
    e.label('wk_rank')
    dbg_wait(e, 'wk_ma', D_MOD, NMODA)
    e.label('wk_pool')
    e(f's_mul_i32 s49, s3, {N0}')
    e(f's_add_u32 {s(B)}, s49, s3')
    if LOG:
        e('s_memrealtime s[100:101]')
        e('s_waitcnt lgkmcnt(0)')
        e('s_mov_b32 s63, s100')
        e('s_mov_b32 s28, s100')
        e('s_mov_b32 s61, s100')
    lo = 0
    for lab, cnt in POOLS:
        hi = lo + cnt
        e(f's_cmp_ge_u32 {s(S_RANK)}, {hi}')
        e(f's_cbranch_scc1 wk_n{hi}')
        e(f's_sub_u32 {s(P1)}, {s(S_RANK)}, {lo}')
        far_jump(e, lab, 44)
        e.label(f'wk_n{hi}')
        lo = hi
    e('s_endpgm')

    name = 'wk_qkv'
    e.label(name)
    reset(e)
    e(f's_mul_i32 s50, {s(S_RANK)}, 1366')
    e('s_lshr_b32 s50, s50, 16')
    assert all((x * 1366) >> 16 == x // 48 for x in range(192))
    e('s_mul_i32 s51, s50, 48')
    e(f's_sub_u32 s51, {s(S_RANK)}, s51')
    e(f's_and_b32 {s(P1)}, s51, 15')
    e(f's_lshr_b32 {s(P2)}, s51, 4')
    e(f's_cmp_eq_u32 {s(P2)}, 0')
    e(f's_cselect_b32 {s(S_SEL)}, s16, s12')
    e(f's_cselect_b32 {s(S_SEL + 1)}, s17, s13')
    e(f's_cmp_eq_u32 {s(P2)}, 1')
    e(f's_cselect_b32 {s(S_SEL)}, s20, {s(S_SEL)}')
    e(f's_cselect_b32 {s(S_SEL + 1)}, s21, {s(S_SEL + 1)}')
    panels = [(S_SEL, 8192, 128), (S_SEL, 8192, 128)]
    G = Gemm(e, 32, panels, 1, 4, 10, 128, nstage=1, vbase=104, sbase=40)
    G.setup(VL, SW, 6)
    e('s_mov_b32 s55, 0')
    e(f's_lshl_b32 s56, {s(P1)}, 9')
    e('s_add_u32 s57, s56, 256')
    G.init_offsets(55, [56, 57])
    QW = 192

    def qw(ks, ni):
        return QW + (ks * 4 + ni) * 4
    NS = 4
    assert NS * G.stage <= 163840
    for k in range(NS):
        for f in G.dma_items(None, k, ('w', k), 'w'):
            f()
    for k in range(10):
        e.wait_vm(('w', k))
        e('s_barrier')
        if k >= 1 and k - 1 + NS < 10:
            for f in G.dma_items(None, (k - 1) % NS, ('w', k - 1 + NS), 'w'):
                f()
        for ks in range(2):
            for ni in range(4):
                for m in range(2):
                    e(f'ds_read_b64_tr_b16 {u(qw(2 * k + ks, ni) + 2 * m, 2)}, {v(G.v_wa + ni)} offset:{(32 * ks + 16 * m) * 256}')
        d = G.stage if (k + 1) % NS else -(NS - 1) * G.stage
        for ni in range(4):
            if d >= 0:
                e(f'v_add_u32 {v(G.v_wa + ni)}, {d}, {v(G.v_wa + ni)}')
            else:
                e(f'v_subrev_u32 {v(G.v_wa + ni)}, {-d}, {v(G.v_wa + ni)}')
        e.wait_lg()
    mid(e)
    dbg_wait(e, name + '_a', D_MOD, NMODA)
    if LOG:
        e('s_memrealtime s[100:101]')
        e('s_waitcnt lgkmcnt(0)')
        e('v_mov_b32 v4, s63')
        e('v_mov_b32 v5, s100')
        e('v_mov_b32 v6, s61')
        e('v_mov_b32 v7, s28')
        e('v_mov_b32 v2, 0')
        e(f's_lshl_b32 s38, {s(S_RANK)}, 4')
        e(f's_add_u32 s38, s38, {WS_LOG + 8400 * 16}')
        e('buffer_store_dwordx4 v[4:7], v2, s[4:7], s38 offen')
    QA, QX, QO = 16, 48, 80
    e(f's_mul_i32 s55, s50, {32 * 1280}')
    e(f's_add_u32 s55, s55, {WS_H1}')
    e('s_mov_b32 s56, 0')
    e('s_lshl_b32 s33, s50, 5')
    e(f's_lshl_b32 s34, {s(P1)}, 1')
    e('s_add_u32 s33, s33, s34')
    e('s_lshl_b32 s33, s33, 13')
    e(f's_mov_b32 s34, {WS_QX}')
    e(f's_mov_b32 s35, {WS_CTR + C_Q * 128}')
    e(f's_cmp_lg_u32 {s(P2)}, 2')
    e(f's_cselect_b32 s34, {WS_KX}, s34')
    e(f's_cselect_b32 s35, {WS_CTR + C_KV * 128}, s35')
    e(f's_cmp_eq_u32 {s(P2)}, 1')
    e(f's_cselect_b32 s34, {WS_VXT}, s34')
    e('s_add_u32 s33, s33, s34')
    e(f's_lshl_b32 s31, {s(SW)}, 6')
    e(f's_lshl_b32 s32, {s(SW)}, 11')
    e(f's_cmp_eq_u32 {s(P2)}, 1')
    e('s_cselect_b32 s31, s32, s31')
    e('s_add_u32 s33, s33, s31')
    e(f'v_and_b32 v2, 15, {v(VL)}')
    e(f'v_lshrrev_b32 v3, 4, {v(VL)}')
    e('v_lshlrev_b32 v3, 4, v3')
    e('v_lshl_add_u32 v4, v2, 8, v3')
    e(f'v_lshlrev_b32 v5, 4, {v(VL)}')
    e('v_lshlrev_b32 v6, 7, v2')
    e('v_mov_b32 v7, -1')
    e('v_lshl_add_u32 v8, v3, 26, v6')
    e('s_mov_b32 s51, 0')
    e('s_mov_b32 s34, 0')
    e(f's_cmp_lg_u32 {s(SW)}, 0')
    e('s_cselect_b32 s35, 0x40000000, s35')

    e('s_mov_b32 s58, 0')
    e('s_mov_b32 s59, 0')

    def x_issue(lab):
        e('s_lshr_b32 s57, s58, 1')
        e('s_min_u32 s57, s57, 15')
        e('s_add_u32 s58, s58, 1')
        e('s_cmp_lt_u32 s57, s59')
        e(f's_cbranch_scc1 {lab}_ok')
        e(f's_mov_b32 s39, {WS_CTR + C_LN1 * 128}')
        e.label(lab)
        e('buffer_load_dword v3, v6, s[4:7], s39 offen sc1')
        e('s_waitcnt vmcnt(0)')
        e('v_cmp_le_u32 vcc, 8, v3')
        e('s_and_b32 s59, vcc_lo, 0xffff')
        e('s_ff0_i32_b32 s59, s59')
        e('s_cmp_lt_u32 s57, s59')
        e(f's_cbranch_scc1 {lab}_ok')
        e('s_sleep 2')
        e(f's_branch {lab}')
        e.label(lab + '_ok')
        for j, n in enumerate((4, 4, 2)):
            e(f's_mul_i32 s57, {s(SW)}, {n * 1024}')
            if j:
                e(f's_add_u32 s57, s57, {16384 * j}')
            e('s_add_u32 m0, s57, s56')
            e('s_add_u32 s57, s57, s55')
            for i in range(n):
                e(f'buffer_load_dwordx4 {v(G.v_xg + (i & 1))}, s[4:7], s57 offen offset:{1024 * i} sc1 lds')
        e(f's_add_u32 s57, s55, {64 * 1280}')
        e(f's_cmp_lt_u32 s57, {WS_H1 + 2048 * 1280}')
        e('s_cselect_b32 s55, s57, s55')
        e('s_add_u32 s56, s56, 40960')
        e('s_cmp_lt_u32 s56, 163840')
        e('s_cselect_b32 s56, s56, 0')

    def qsig(upto):
        e(f's_sub_u32 s37, {upto}, s34')
        e('s_bfm_b64 exec, s37, s34')
        e('s_or_b32 exec_lo, exec_lo, 0x10000')
        e(f's_mov_b32 s34, {upto}')
        e('buffer_atomic_sub v7, v8, s[4:7], s35 offen')
        e('s_mov_b64 exec, -1')
    x_issue(name + '_w0')
    x_issue(name + '_w1')
    e('s_waitcnt vmcnt(10)')
    e(f's_cmp_lg_u32 {s(P2)}, 1')
    e(f's_cbranch_scc1 {name}_T')
    far_jump(e, f'{name}_N', 98)

    def qtask(o):
        x_issue(f'{name}_x{o}')
        D = 4

        def rd(ks):
            for mi in range(2):
                e(f'ds_read_b128 {v(QX + 8 * (ks % D) + 4 * mi, 4)}, {v(G.v_xa + (ks & 1))} offset:{(ks >> 1) * 4096 + mi * 2048}', tag=('xf', ks))
        for ks in range(D - 1):
            rd(ks)
        for ks in range(20):
            if ks + D - 1 < 20:
                rd(ks + D - 1)
            e.wait_lg(('xf', ks))
            for mi in range(2):
                for ni in range(4):
                    ac = v(QA + (mi * 4 + ni) * 4, 4)
                    fx, fw = v(QX + 8 * (ks % D) + 4 * mi, 4), u(qw(ks, ni), 4)
                    A_, B_ = (fx, fw) if o == 'N' else (fw, fx)
                    e(f'v_mfma_f32_16x16x32_bf16 {ac}, {A_}, {B_}, {"0" if ks == 0 else ac}')
        e('s_add_u32 s51, s51, 1')
        e('s_and_b32 s57, s51, 3')
        e('s_mov_b32 s57, 40960')
        e('s_cselect_b32 s57, s57, 0xfffe2000')
        for i in range(2):
            e(f'v_add_u32 {v(G.v_xa + i)}, s57, {v(G.v_xa + i)}')
        e('s_add_u32 s36, s33, 8192')
        for k in range(4):
            t = QO + 4 * k
            if o == 'T':
                mi, p = k >> 1, k & 1
                srcs = [QA + (mi * 4 + p * 2 + hf) * 4 for hf in range(2)]
            else:
                p, a_ = k >> 1, k & 1
                srcs = [QA + (hf * 4 + p * 2 + a_) * 4 for hf in range(2)]
            for hf in range(2):
                e(f'v_cvt_pk_bf16_f32 {v(t + 2 * hf)}, {v(srcs[hf])}, {v(srcs[hf] + 1)}')
                e(f'v_cvt_pk_bf16_f32 {v(t + 2 * hf + 1)}, {v(srcs[hf] + 2)}, {v(srcs[hf] + 3)}')
            if o == 'T':
                if k == 2:
                    e('s_add_u32 s33, s33, 4096')
                    e('s_add_u32 s36, s36, 4096')
                e(f'buffer_store_dwordx4 {v(t, 4)}, v4, s[4:7], {"s36" if p else "s33"} offen sc1')
            else:
                e(f'buffer_store_dwordx4 {v(t, 4)}, v5, s[4:7], {"s36" if p else "s33"} offen offset:{1024 * a_} sc1')
        e(f's_add_u32 s33, s33, {64 * 8192 - (4096 if o == "T" else 0)}')
    for o in 'TN':
        nm = f'{name}_{o}'
        e.label(nm)
        reset(e)
        e('s_sub_u32 s36, s51, 1')
        e('s_lshr_b32 s36, s36, 1')
        e('s_cmp_eq_u32 s51, 0')
        e('s_cselect_b32 s36, 0, s36')
        e('s_cmp_lg_u32 s51, 2')
        e(f's_cbranch_scc1 {nm}_nd')
        e('s_waitcnt vmcnt(0)')
        e('s_mov_b32 s36, 1')
        if LOG:
            e('s_memrealtime s[100:101]')
            e('s_waitcnt lgkmcnt(0)')
            e('s_mov_b32 s63, s100')
        e.label(nm + '_nd')
        e('s_waitcnt vmcnt(15)')
        e('s_barrier')
        qsig('s36')
        qtask(o)
        e('s_cmp_lt_u32 s51, 32')
        e(f's_cbranch_scc1 {nm}')
        e('s_waitcnt vmcnt(0)')
        e('s_barrier')
        qsig(16)
        if o == 'T':
            far_jump(e, f'{name}_end', 98)
    e.label(f'{name}_end')
    reset(e)
    if LOG:
        e('s_memrealtime s[100:101]')
        e('s_waitcnt lgkmcnt(0)')
        e('v_mov_b32 v4, s63')
        e('v_mov_b32 v5, s100')
        e('v_mov_b32 v2, 0')
        e(f's_lshl_b32 s38, {s(S_RANK)}, 4')
        e(f's_add_u32 s38, s38, {WS_LOG}')
        e('buffer_store_dwordx2 v[4:5], v2, s[4:7], s38 offen')
    back_jump(e, 'wk_pool')

    name = 'wk_ln1'
    e.label(name)
    reset(e)
    RPW = 4
    e(f's_lshl_b32 s30, {s(P1)}, 2')
    e(f's_add_u32 s30, s30, {s(SW)}')
    e(f's_mul_i32 s30, s30, {RPW * 1280}')
    e(f'v_lshlrev_b32 v4, 2, {v(VL)}')
    e('s_add_u32 s31, s30, 2560')
    for r in range(RPW):
        for i in range(5):
            e(f'buffer_load_dword {v(16 + 5 * r + i)}, v4, {s(S_X, 4)}, {"s30" if r < 2 else "s31"} offen offset:{(r & 1) * 1280 + 256 * i}', tag=('x', r))
    e(f's_mov_b32 s32, {f32bits(1.0 / 640):#x}')
    e(f's_mov_b32 s33, {f32bits(1e-5):#x}')
    e('s_waitcnt vmcnt(0)')
    for r in range(RPW):
        X = 64 + 10 * r
        for i in range(5):
            e(f'v_lshlrev_b32 {v(X + 2 * i)}, 16, {v(16 + 5 * r + i)}')
            e(f'v_and_b32 {v(X + 2 * i + 1)}, 0xffff0000, {v(16 + 5 * r + i)}')
        e(f'v_add_f32 v8, {v(X)}, {v(X + 1)}')
        for j in range(2, 10):
            e(f'v_add_f32 v8, v8, {v(X + j)}')
        wave_sum(e, 8, 9)
        e('v_mul_f32 v8, s32, v8')
        e('v_mov_b32 v10, 0')
        for j in range(10):
            e(f'v_sub_f32 v9, {v(X + j)}, v8')
            e('v_fmac_f32 v10, v9, v9')
        wave_sum(e, 10, 9)
        e('v_mul_f32 v10, s32, v10')
        rnd2(e, 8, 10, 7)
        e('v_add_f32 v10, s33, v10')
        rnd2(e, 10, 9, 7)
        e('v_sqrt_f32 v10, v10')
        rnd2(e, 10, 9, 7)
        e('v_rcp_f32 v10, v10')
        for j in range(0, 10, 2):
            a_, b_ = X + j, X + j + 1
            e(f'v_sub_f32 {v(a_)}, {v(a_)}, v8')
            e(f'v_sub_f32 {v(b_)}, {v(b_)}, v8')
            rnd2(e, a_, b_, 7)
            e(f'v_mul_f32 {v(a_)}, {v(a_)}, v10')
            e(f'v_mul_f32 {v(b_)}, {v(b_)}, v10')
            rnd2(e, a_, b_, 7)
    e('s_cmp_lg_u32 s48, 1')
    e(f's_cbranch_scc1 {name}_m')
    dbg_wait(e, name, D_MOD, NMODA)
    e.label(f'{name}_m')
    reset(e)
    e(f'v_lshlrev_b32 v3, 3, {v(VL)}')
    e(f's_mov_b32 s34, {WS_MOD}')
    e(f's_mov_b32 s35, {WS_MOD + 2560}')
    for i in range(5):
        e(f'buffer_load_dwordx2 {v(16 + 2 * i, 2)}, v3, s[4:7], s34 offen offset:{512 * i} sc1')
        e(f'buffer_load_dwordx2 {v(26 + 2 * i, 2)}, v3, s[4:7], s35 offen offset:{512 * i} sc1')
    e(f'v_bfe_u32 v5, {v(VL)}, 1, 2')
    e(f'v_bfe_u32 v6, {v(VL)}, 3, 1')
    e(f'v_and_b32 v12, 1, {v(VL)}')
    e('v_lshl_add_u32 v12, v6, 1, v12')
    e('v_lshl_add_u32 v12, v5, 2, v12')
    e(f'v_and_b32 v5, 16, {v(VL)}')
    e('v_add_u32 v12, v12, v5')
    e('v_lshlrev_b32 v12, 2, v12')
    e(f'v_lshrrev_b32 v5, 5, {v(VL)}')
    e('v_lshl_add_u32 v12, v5, 9, v12')
    e(f's_mul_i32 s38, {s(SW)}, 5120')
    e('v_add_u32 v12, s38, v12')
    e(f'v_lshlrev_b32 v13, 4, {v(VL)}')
    e('v_add_u32 v14, s38, v13')
    e('v_and_b32 v13, 0x1f0, v13')
    e('v_lshl_add_u32 v13, v5, 12, v13')
    e('s_lshr_b32 s30, s53, 1')
    e(f's_mul_i32 s30, s30, {32 * 1280}')
    e('s_and_b32 s31, s53, 1')
    e('s_lshl_b32 s31, s31, 2')
    e(f's_add_u32 s31, s31, {s(SW)}')
    e('s_lshl_b32 s31, s31, 9')
    e('s_add_u32 s30, s30, s31')
    e(f's_add_u32 s30, s30, {WS_H1}')
    e.wait_vm()
    for j in range(10):
        e(f'v_add_f32 {v(26 + j)}, 1.0, {v(26 + j)}')
    for j in range(0, 10, 2):
        rnd2(e, 26 + j, 27 + j, 7)
    for r in range(RPW):
        X = 64 + 10 * r
        for j in range(0, 10, 2):
            a_, b_ = X + j, X + j + 1
            e(f'v_pk_mul_f32 {v(a_, 2)}, {v(a_, 2)}, {v(26 + j, 2)}')
            rnd2(e, a_, b_, 7)
            e(f'v_pk_add_f32 {v(a_, 2)}, {v(a_, 2)}, {v(16 + j, 2)}')
            e(f'v_cvt_pk_bf16_f32 {v(a_)}, {v(a_)}, {v(b_)}')
            e(f'ds_write_b32 v12, {v(a_)} offset:{r * 128 + 512 * j}')
    e.wait_lg()
    for i in range(5):
        e(f'ds_read_b128 {v(16 + 4 * i, 4)}, v14 offset:{1024 * i}')
    e.wait_lg()
    for i in range(5):
        e(f'buffer_store_dwordx4 {v(16 + 4 * i, 4)}, v13, s[4:7], s30 offen sc1')
        e('s_add_u32 s30, s30, 8192')
    e(f's_lshr_b32 {s(B)}, {s(P1)}, 3')
    signal(e, name, C_LN1, B, loop)

    SEG = B
    XS, XA2, ACC, XF, ET, WB = 20, 22, 24, 40, 72, 80

    def cwait(lab, cbase, tgt, extra=None):
        e(f's_cmp_lg_u32 {s(SW)}, 0')
        e(f's_cbranch_scc1 {lab}_dw')
        e(f's_lshl_b32 s39, {s(SEG)}, 7')
        e(f's_add_u32 s39, s39, {WS_CT2 + cbase * 128}')
        if extra is not None:
            e(f's_add_u32 s39, s39, {s(extra)}')
        e('v_mov_b32 v2, 0')
        e.label(f'{lab}_sp')
        e('buffer_load_dword v3, v2, s[4:7], s39 offen sc1')
        e('s_waitcnt vmcnt(0)')
        e('v_readfirstlane_b32 s37, v3')
        e(f's_cmp_ge_u32 s37, {tgt}')
        e(f's_cbranch_scc1 {lab}_dw')
        e(f's_sleep {SLEEP}')
        e(f's_branch {lab}_sp')
        e.label(f'{lab}_dw')
        e('s_barrier')
        if LOG:
            e('s_memrealtime s[100:101]')
            e('s_waitcnt lgkmcnt(0)')
            e('s_mov_b32 s63, s100')
        reset(e)

    def cdone(name, cbase, extra=None, nxt=None, tsk=None):
        e('s_waitcnt vmcnt(0) lgkmcnt(0)')
        e('s_barrier')
        if cbase is not None:
            e(f's_cmp_lg_u32 {s(SW)}, 0')
            e(f's_cbranch_scc1 {name}_sg')
            e(f's_lshl_b32 s38, {s(SEG)}, 7')
            e(f's_add_u32 s38, s38, {WS_CT2 + cbase * 128}')
            if extra is not None:
                e(f's_add_u32 s38, s38, {s(extra)}')
            e('v_mov_b32 v2, 0')
            e('v_mov_b32 v3, 1')
            e('s_mov_b64 exec, 1')
            e('buffer_atomic_add v3, v2, s[4:7], s38 offen')
            e('s_mov_b64 exec, -1')
            e.label(f'{name}_sg')
        if LOG:
            e('s_memrealtime s[100:101]')
            e('s_waitcnt lgkmcnt(0)')
            e('v_mov_b32 v64, s63')
            e('v_mov_b32 v65, s100')
            e('v_mov_b32 v66, s61')
            e('v_mov_b32 v67, s28')
            e('v_mov_b32 v2, 0')
            e(f's_mul_i32 s38, {s(SEG)}, {GSZ}')
            e(f's_add_u32 s38, s38, {s(S_RANK)}')
            e('s_lshl_b32 s38, s38, 4')
            e(f's_add_u32 s38, s38, {WS_LOG + 768 * 16}')
            e('buffer_store_dwordx4 v[64:67], v2, s[4:7], s38 offen')
            e.nop(2)
        if tsk:
            e(f's_mov_b32 {s(tsk)}, s50')
            e('s_add_u32 s49, s49, 11')
            e(f's_cmp_lt_u32 {s(tsk)}, 512')
        else:
            e(f's_cmp_lt_u32 {s(SEG)}, {N0}')
            e('s_cselect_b32 s38, 1, 2')
            e(f's_add_u32 {s(SEG)}, {s(SEG)}, s38')
            e(f's_cmp_lt_u32 {s(SEG)}, 64')
        e(f's_cbranch_scc1 {nxt or name + "_loop"}')
        e('s_endpgm')

    class SG:
        def __init__(self, name, panels, KT, coloffs, nacc=1, rows=32):
            self.name, self.KT, self.nacc, self.rows = name, KT, nacc, rows
            G = self.G = Gemm(e, rows, panels, rows // 16, 64 // rows, KT, 128, nstage=1, vbase=8, sbase=40)
            assert G.v_wa + G.NT <= XS
            self.NT = NT = G.NT
            assert WB + KT * 2 * NT * 4 <= 512
            G.setup(VL, SW, 2)
            e('s_mov_b32 s57, 0')
            G.init_offsets(57, coloffs)
            e(f's_and_b32 s57, {s(SW)}, 1')
            e('s_cmp_eq_u32 s57, 1')
            e('s_cselect_b64 vcc, -1, 0')
            e(f'v_cndmask_b32 {v(XS)}, {v(G.v_xg)}, {v(G.v_xg + 1)}, vcc')
            e(f'v_cndmask_b32 {v(XS + 1)}, {v(G.v_xg + 1)}, {v(G.v_xg)}, vcc')
            e(f'v_add_u32 {v(XA2)}, 0x10000, {v(G.v_xa)}')
            e(f'v_add_u32 {v(XA2 + 1)}, 0x10000, {v(G.v_xa + 1)}')
            NS = min(KT, 163840 // G.stage, 12)
            for k in range(NS):
                for f in G.dma_items(None, k, ('w', k), 'w'):
                    f()
            for k in range(KT):
                e.wait_vm(('w', k))
                e('s_barrier')
                if k >= 1 and k - 1 + NS < KT:
                    for f in G.dma_items(None, (k - 1) % NS, ('w', k - 1 + NS), 'w'):
                        f()
                for ks in range(2):
                    for ni, (pi, a_) in enumerate(G.tiles):
                        rb = panels[pi][2] * 2
                        for m in range(2):
                            e(f'ds_read_b64_tr_b16 {u(self.wr(2 * k + ks, ni) + 2 * m, 2)}, {v(G.v_wa + ni)} offset:{(32 * ks + 16 * m) * rb}')
                d = G.stage if (k + 1) % NS else -(NS - 1) * G.stage
                for ni in range(NT):
                    if d >= 0:
                        e(f'v_add_u32 {v(G.v_wa + ni)}, {d}, {v(G.v_wa + ni)}')
                    else:
                        e(f'v_subrev_u32 {v(G.v_wa + ni)}, {-d}, {v(G.v_wa + ni)}')
                e.wait_lg()
            e('s_barrier')

        def wr(self, ks, ni):
            return WB + (ks * self.NT + ni) * 4

        def acc(self, ni, par=0):
            return ACC + (par * self.NT + ni) * 4

        def main(self, sx, extra_loads=None):
            G, KT, NT = self.G, self.KT, self.NT
            ktb = self.rows * 128
            P = (KT * ktb // 1024 + 3) // 4 * 4
            upg = 16384 // ktb // 2
            ng = (P + 15) // 16
            for j in range(ng):
                n = min(16, P - 16 * j) // 4
                e(f's_mul_i32 s57, {s(SW)}, {n * 1024}')
                if j:
                    e(f's_add_u32 s57, s57, {16384 * j}')
                e('s_mov_b32 m0, s57')
                e(f's_add_u32 s57, s57, {s(sx)}')
                for i in range(n):
                    xr = (G.v_xg if n % 2 == 0 else XS) + (i & 1)
                    e(f'buffer_load_dwordx4 {v(xr)}, s[4:7], s57 offen offset:{1024 * i} sc1 lds', tag=('x', j))
            if extra_loads:
                extra_loads()
            nu = (2 * KT + 3) // 4

            def reads(un):
                if un % upg == 0:
                    e.wait_vm(('x', un // upg))
                    e('s_barrier')
                for q in range(4):
                    ks = 4 * un + q
                    if ks >= 2 * KT:
                        break
                    off = (ks >> 1) * ktb
                    ar = (G.v_xa if off < 65536 else XA2) + (ks & 1)
                    e(f'ds_read_b128 {v(XF + 16 * (un & 1) + 4 * q, 4)}, {v(ar)} offset:{off & 65535}', tag=('xf', ks))
            reads(0)
            for un in range(nu):
                if un + 1 < nu:
                    reads(un + 1)
                for q in range(4):
                    ks = 4 * un + q
                    if ks >= 2 * KT:
                        break
                    e.wait_lg(('xf', ks))
                    par = ks % self.nacc
                    for ni in range(NT):
                        ac = v(self.acc(ni, par), 4)
                        e(f'v_mfma_f32_16x16x32_bf16 {ac}, {u(self.wr(ks, ni), 4)}, {v(XF + 16 * (un & 1) + 4 * q, 4)}, {"0" if ks < self.nacc else ac}')
            if self.nacc == 2:
                for ni in range(NT):
                    for j in range(0, 4, 2):
                        e(f'v_pk_add_f32 {v(self.acc(ni) + j, 2)}, {v(self.acc(ni) + j, 2)}, {v(self.acc(ni, 1) + j, 2)}')

    name = 'wk_att'
    e.label(name)
    reset(e)
    e('s_lshl_b32 s49, s49, 3')
    e(f's_add_u32 s49, s49, {s(P1)}')

    def gtask(dst, adv):
        e(f's_add_u32 {s(dst)}, s49, {adv}')
        e(f's_and_b32 s37, {s(dst)}, 0xfff8')
        e(f's_max_u32 s37, s37, {8 * N0}')
        e(f's_sub_u32 s37, s37, {8 * N0}')
        e(f's_add_u32 {s(dst)}, {s(dst)}, s37')
        e('s_lshl_b32 s37, s3, 3')
        e(f's_add_u32 {s(dst)}, {s(dst)}, s37')
    gtask(54, 0)
    e('s_mov_b32 s50, s54')
    e(f'v_and_b32 v2, 15, {v(VL)}')
    e(f'v_lshrrev_b32 v3, 4, {v(VL)}')
    e('v_lshlrev_b32 v4, 4, v3')
    e('v_lshl_add_u32 v4, v2, 8, v4')
    e(f'v_lshlrev_b32 v5, 4, {v(VL)}')
    e(f'v_lshlrev_b32 v6, 3, {v(VL)}')
    e(f'v_bfe_u32 v10, {v(VL)}, 2, 2')
    e('v_lshl_add_u32 v10, v3, 2, v10')
    e(f'v_and_b32 v11, 1, {v(VL)}')
    e('v_lshlrev_b32 v11, 3, v11')
    e('v_lshl_add_u32 v10, v10, 4, v11')
    e(f's_lshl_b32 s38, {s(SW)}, 11')
    e('v_add_u32 v10, s38, v10')
    MK = 88
    e('v_lshlrev_b32 v7, 2, v3')
    for j in range(4):
        e(f'v_add_u32 v8, {j}, v7')
        e(f'v_cmp_le_u32 {s(MK + 2 * j, 2)}, v8, v2')
    e('s_mov_b32 s96, -1')
    e('s_mov_b32 s97, 0')
    cc = f32bits((128 ** -0.5) * LOG2E)
    e(f's_mov_b32 s98, {cc:#x}')
    e(f's_mov_b32 s99, {cc:#x}')
    KM_, VM_, ONES, NEG, DO = 16, 32, 40, 44, 72
    S0, S1, M, P, PM, OA = 144, 156, 204, 208, 212, 168
    for j in range(4):
        e(f'v_mov_b32 {v(ONES + j)}, 0x3f803f80')
    e(f'v_mov_b32 {v(NEG)}, 0xf149f2ca')
    e(f'v_mov_b32 {v(PM + 1)}, 0')
    e(f'v_mov_b32 {v(PM + 2)}, 0')
    e('v_lshlrev_b32 v9, 4, v3')
    e('v_lshl_add_u32 v9, v2, 7, v9')
    e('s_mov_b32 s56, -1')

    def att_loads(lab, st, adv):
        Q, KX_, VX_ = 256 + 96 * st, 288 + 96 * st, 320 + 96 * st
        e('s_mov_b32 s55, s50')
        e('s_cmp_ge_u32 s55, 512')
        e(f's_cbranch_scc1 {lab}_nl')
        e('s_lshr_b32 s59, s55, 5')
        e('s_cmp_eq_u32 s59, s56')
        e(f's_cbranch_scc1 {lab}_rdy')
        dep_wait(e, lab, [(C_KV, 64), (C_Q, 32)], 59)
        e('s_mov_b32 s56, s59')
        e.label(f'{lab}_rdy')
        e('s_lshl_b32 s31, s55, 2')
        e(f's_add_u32 s31, s31, {s(SW)}')
        e('s_lshl_b32 s32, s31, 13')
        e(f's_add_u32 s33, s32, {WS_QX}')
        e('s_add_u32 s34, s33, 4096')
        e(f's_add_u32 s35, s32, {WS_KX}')
        e('s_add_u32 s36, s35, 4096')
        for uu in range(4):
            e(f'buffer_load_dwordx4 {u(Q + 4 * uu, 4)}, v4, s[4:7], s33 offen offset:{64 * uu} sc1')
            e(f'buffer_load_dwordx4 {u(KX_ + 4 * uu, 4)}, v4, s[4:7], s35 offen offset:{64 * uu} sc1')
        for uu in range(4):
            e(f'buffer_load_dwordx4 {u(Q + 16 + 4 * uu, 4)}, v4, s[4:7], s34 offen offset:{64 * uu} sc1')
            e(f'buffer_load_dwordx4 {u(KX_ + 16 + 4 * uu, 4)}, v4, s[4:7], s36 offen offset:{64 * uu} sc1')
        e(f's_add_u32 s39, s32, {WS_VXT}')
        e('s_add_u32 s40, s39, 4096')
        for et in range(8):
            e(f'buffer_load_dwordx4 {u(VX_ + 4 * et, 4)}, v5, s[4:7], {"s39" if et < 4 else "s40"} offen offset:{1024 * (et & 3)} sc1')
        e.label(f'{lab}_nl')
        reset(e)
    att_loads(name + '_p', 0, 0)
    e('s_waitcnt vmcnt(0)')
    for st in range(2):
        nm = f'{name}{st}'
        Q, KX_, VX_ = 256 + 96 * st, 288 + 96 * st, 320 + 96 * st
        e.label(nm + '_top')
        reset(e)
        for uu in range(4):
            c0 = (lambda r: '0' if uu == 0 else v(r, 4))
            e(f'v_mfma_f32_16x16x32_bf16 {v(S0, 4)}, {u(KX_ + 4 * uu, 4)}, {u(Q + 4 * uu, 4)}, {c0(S0)}')
            e(f'v_mfma_f32_16x16x32_bf16 {v(S1, 4)}, {u(KX_ + 4 * uu, 4)}, {u(Q + 16 + 4 * uu, 4)}, {c0(S1)}')
            e(f'v_mfma_f32_16x16x32_bf16 {v(S1 + 4, 4)}, {u(KX_ + 16 + 4 * uu, 4)}, {u(Q + 16 + 4 * uu, 4)}, {c0(S1 + 4)}')
        e(f'v_mov_b32 {v(P + 2)}, 0')
        e(f'v_mov_b32 {v(P + 3)}, 0')
        for dg in (S0, S1 + 4):
            for j in range(4):
                e(f'v_cndmask_b32 {v(dg + j)}, {v(NEG)}, {v(dg + j)}, {s(MK + 2 * j, 2)}')
        e(f's_lshr_b32 {s(SEG)}, s54, 3')
        e('s_and_b32 s58, s54, 7')
        if LOG:
            e(f's_mov_b32 {s(S_RANK)}, s58')
        e('s_lshr_b32 s58, s58, 1')
        e('s_lshl_b32 s58, s58, 4')
        gtask(50, 11)
        e('s_min_u32 s55, s50, 511')
        e('s_lshr_b32 s59, s55, 5')
        e('s_cmp_eq_u32 s59, s56')
        e(f's_cbranch_scc1 {nm}_r2')
        dep_wait(e, nm + '_c', [(C_KV, 64), (C_Q, 32)], 59)
        e('s_mov_b32 s56, s59')
        e.label(f'{nm}_r2')
        e('s_lshl_b32 s31, s54, 2')
        e(f's_add_u32 s31, s31, {s(SW)}')
        e('s_lshl_b32 s43, s31, 12')
        e(f's_add_u32 s43, s43, {WS_KM}')
        e(f's_lshl_b32 s41, {s(SEG)}, 18')
        e('s_and_b32 s42, s31, 31')
        e('s_lshl_b32 s42, s42, 12')
        e('s_add_u32 s41, s41, s42')
        e(f's_add_u32 s41, s41, {WS_O}')
        e('s_add_u32 s42, s41, 131072')
        cwait(nm + '2', K_CH, NCH)
        e(f's_lshl_b32 m0, {s(SW)}, 11')
        e('buffer_load_dwordx4 v5, s[4:7], s43 offen sc1 lds', tag='k')
        e('buffer_load_dwordx4 v5, s[4:7], s43 offen offset:1024 sc1 lds', tag='k')
        for w in range(4):
            e(f'buffer_load_dwordx2 {v(VM_ + 2 * w, 2)}, v6, s[4:7], s43 offen offset:{2048 + 512 * w} sc1', tag='v')
        e.wait_vm('k')
        for uu in range(4):
            for m_ in range(2):
                e(f'ds_read_b64_tr_b16 {v(KM_ + 4 * uu + 2 * m_, 2)}, v10 offset:{uu * 512 + m_ * 256}')
        e('s_waitcnt vmcnt(0)')
        att_loads(nm + '_n', 1 - st, NATT)
        e('s_waitcnt lgkmcnt(0)')
        for uu in range(4):
            for tq, S in enumerate((S0, S1)):
                e(f'v_mfma_f32_16x16x32_bf16 {v(S + 8, 4)}, {v(KM_ + 4 * uu, 4)}, {u(Q + 16 * tq + 4 * uu, 4)}, {"0" if uu == 0 else v(S + 8, 4)}')
        for tq, S in enumerate((S0, S1)):
            C0 = S + 8
            e(f'v_cndmask_b32 {v(C0)}, {v(C0 + 2)}, {v(C0)}, s[96:97]')
            e(f'v_cndmask_b32 {v(C0 + 1)}, {v(C0 + 3)}, {v(C0 + 1)}, s[96:97]')
            vals = [S + j for j in range(4 * (tq + 1))] + [C0, C0 + 1]
            e(f'v_max3_f32 {v(M)}, {v(vals[0])}, {v(vals[1])}, {v(vals[2])}')
            i = 3
            while i + 1 < len(vals):
                e(f'v_max3_f32 {v(M)}, {v(M)}, {v(vals[i])}, {v(vals[i + 1])}')
                i += 2
            if i < len(vals):
                e(f'v_max_f32 {v(M)}, {v(M)}, {v(vals[i])}')
            for sw_ in ('v_permlane32_swap_b32', 'v_permlane16_swap_b32'):
                e(f'v_mov_b32 {v(M + 1)}, {v(M)}')
                e(f'{sw_} {v(M)}, {v(M + 1)}')
                e(f'v_max_f32 {v(M)}, {v(M)}, {v(M + 1)}')
            e(f'v_mul_f32 {v(M)}, s98, {v(M)}')
            for x in vals[::2]:
                e(f'v_pk_fma_f32 {v(x, 2)}, {v(x, 2)}, s[98:99], {v(M, 2)} op_sel_hi:[1,1,0] neg_lo:[0,0,1] neg_hi:[0,0,1]')
            for x in vals:
                e(f'v_exp_f32 {v(x)}, {v(x)}')
            for j in range(2 * (tq + 1)):
                e(f'v_cvt_pk_bf16_f32 {v(P + j)}, {v(S + 2 * j)}, {v(S + 2 * j + 1)}')
            e(f'v_cvt_pk_bf16_f32 {v(PM)}, {v(C0)}, {v(C0 + 1)}')
            e(f'v_cvt_pk_bf16_f32 {v(PM + 3)}, {v(C0)}, {v(C0 + 1)}')
            e.wait_vm('v')
            if tq == 0:
                mid(e)
            Lr = OA + 32
            e(f'v_mfma_f32_16x16x32_bf16 {v(Lr, 4)}, {v(ONES, 4)}, {v(P, 4)}, 0')
            for et in range(8):
                e(f'v_mfma_f32_16x16x32_bf16 {v(OA + 4 * et, 4)}, {u(VX_ + 4 * et, 4)}, {v(P, 4)}, 0')
            e(f'v_mfma_f32_16x16x16_bf16 {v(Lr, 4)}, {v(ONES, 2)}, {v(PM, 2)}, {v(Lr, 4)}')
            for et in range(8):
                e(f'v_mfma_f32_16x16x16_bf16 {v(OA + 4 * et, 4)}, {v(VM_ + 2 * (et >> 1), 2)}, {v(PM + 2 * (et & 1), 2)}, {v(OA + 4 * et, 4)}')
            e(f'v_rcp_f32 {v(M)}, {v(Lr)}')
            for ub in range(4):
                o = OA + 8 * ub
                d = DO + 16 * tq + 4 * ub
                for j in range(0, 8, 2):
                    e(f'v_pk_mul_f32 {v(o + j, 2)}, {v(o + j, 2)}, {v(M, 2)} op_sel_hi:[1,0]')
                for j in range(4):
                    e(f'v_cvt_pk_bf16_f32 {v(d + j)}, {v(o + 2 * j)}, {v(o + 2 * j + 1)}')
                e(f'buffer_store_dwordx4 {v(d, 4)}, v9, s[4:7], {"s42" if tq else "s41"} offen offset:{2048 * (ub >> 1) + 64 * (ub & 1)} sc1')
        cdone(nm, K_ATT, 58, nxt=f'{name}{1 - st}_top', tsk=54)

    name = 'wk_wo'
    e.label(name)
    reset(e)
    e(f's_lshr_b32 s55, {s(P1)}, 3')
    e(f's_bfe_u32 s56, {s(P1)}, 0x20001')
    e(f's_mul_i32 s58, s56, {1024 * 1280}')
    e('s_lshl_b32 s59, s55, 8')
    e('s_add_u32 s58, s58, s59')
    S = SG(name, [(24, 1280, 128)], 16, [58], nacc=2, rows=16)
    e('s_lshl_b32 s58, s56, 4')
    e(f'v_and_b32 v4, 15, {v(VL)}')
    e(f'v_lshrrev_b32 v5, 4, {v(VL)}')
    e('v_lshlrev_b32 v5, 4, v5')
    e('v_lshl_add_u32 v4, v4, 6, v5')
    e('s_lshl_b32 s33, s55, 2')
    e(f's_add_u32 s33, s33, {s(SW)}')
    e('s_lshl_b32 s33, s33, 12')
    e(f's_and_b32 s31, {s(P1)}, 1')
    e('s_lshl_b32 s32, s31, 10')
    e('s_add_u32 s33, s33, s32')
    e(f's_mul_i32 s32, s56, {32 * 2560}')
    e('s_add_u32 s33, s33, s32')
    e(f's_add_u32 s59, s33, {WS_PW}')
    e('s_lshl_b32 s56, s56, 15')
    e('s_lshl_b32 s31, s31, 17')
    e('s_add_u32 s56, s56, s31')
    e(f's_add_u32 s56, s56, {WS_O}')
    e.label(name + '_loop')
    reset(e)
    e(f's_lshl_b32 s55, {s(SEG)}, 18')
    e('s_add_u32 s55, s55, s56')
    e(f's_mul_i32 s33, {s(SEG)}, {4 * 32 * 2560}')
    e('s_add_u32 s33, s33, s59')
    cwait(name, K_ATT, 2, 58)
    S.main(55)
    mid(e)
    for ni in range(2):
        e(f'buffer_store_dwordx4 {v(S.acc(ni), 4)}, v4, s[4:7], s33 offen offset:{2048 * ni} sc1')
    cdone(name, K_WO)

    name = 'wk_ln2'
    e.label(name)
    reset(e)
    GT, SH, SC, RS_, PP = 16, 28, 40, 52, 64
    dbg_wait(e, name + '_mb', D_MODB, NMODB)
    e(f'v_lshlrev_b32 v10, 4, {v(VL)}')
    e('v_and_b32 v11, 0x1f0, v10')
    e(f'v_lshrrev_b32 v12, 1, v10')
    e(f'v_lshrrev_b32 v13, 1, v11')
    for base, idx in ((GT, 2), (SH, 3), (SC, 4)):
        e(f's_mov_b32 s32, {WS_MOD + idx * 2560}')
        for i in range(3):
            e(f'buffer_load_dwordx4 {v(base + 4 * i, 4)}, {"v10" if i < 2 else "v11"}, s[4:7], s32 offen offset:{1024 * i} sc1')
    e(f's_lshl_b32 s30, {s(P1)}, 2')
    e(f's_add_u32 s30, s30, {s(SW)}')
    e(f'v_lshrrev_b32 v4, 2, {v(VL)}')
    e(f'v_and_b32 v5, 3, {v(VL)}')
    e('v_lshlrev_b32 v5, 4, v5')
    e('v_lshl_add_u32 v14, v4, 11, v5')
    e('v_and_b32 v4, 7, v4')
    e('v_lshl_add_u32 v15, v4, 11, v5')
    e(f'v_lshrrev_b32 v4, 5, {v(VL)}')
    e(f'v_mul_u32_u24 v4, {32 * 2560}, v4')
    e('v_add_u32 v15, v15, v4')
    e(f'v_lshrrev_b32 v4, 4, {v(VL)}')
    e('v_lshl_add_u32 v8, v4, 12, v5')
    e(f'v_bfe_u32 v4, {v(VL)}, 3, 1')
    e('v_lshl_add_u32 v8, v4, 6, v8')
    e(f'v_bfe_u32 v4, {v(VL)}, 2, 1')
    e('v_lshl_add_u32 v8, v4, 3, v8')
    e('v_and_b32 v9, 0x1fff, v8')
    e('s_lshr_b32 s56, s30, 4')
    e('s_lshl_b32 s56, s56, 10')
    e('s_and_b32 s57, s30, 15')
    e('s_lshl_b32 s57, s57, 6')
    e('s_add_u32 s56, s56, s57')
    e(f's_add_u32 s56, s56, {WS_PW}')
    e('s_lshl_b32 s57, s30, 7')
    e(f's_add_u32 s57, s57, {WS_H2}')
    e('s_mul_i32 s58, s30, 1280')
    e('s_waitcnt vmcnt(0)')
    for j in range(12):
        e(f'v_add_f32 {v(SC + j)}, 1.0, {v(SC + j)}')
    for j in range(0, 12, 2):
        rnd2(e, SC + j, SC + j + 1, 7)
    e('s_mov_b32 s96, -1')
    e('s_mov_b32 s97, 0')
    e(f's_mov_b32 s98, {f32bits(1.0 / 640):#x}')
    e(f's_mov_b32 s99, {f32bits(1e-5):#x}')
    e.label(name + '_loop')
    reset(e)
    e(f's_mul_i32 s31, {s(SEG)}, {32 * 1280}')
    e('s_add_u32 s41, s31, s57')
    e('s_add_u32 s31, s31, s58')
    e(f's_add_u32 s40, s31, {WS_X1}')
    e(f's_mul_i32 s36, {s(SEG)}, {4 * 32 * 2560}')
    e('s_add_u32 s36, s36, s56')
    cwait(name, K_WO, 40)
    for k in range(4):
        e(f's_add_u32 s33, s36, {k * 32 * 2560}')
        e(f's_add_u32 s34, s36, {k * 32 * 2560 + 32768}')
        e(f'buffer_load_dwordx4 {v(PP + 12 * k, 4)}, v14, s[4:7], s33 offen sc1', tag=('p', k))
        e(f'buffer_load_dwordx4 {v(PP + 12 * k + 4, 4)}, v14, s[4:7], s34 offen sc1', tag=('p', k))
        if k % 2 == 0:
            e(f's_add_u32 s35, s36, {k * 32 * 2560 + 65536}')
            e(f'buffer_load_dwordx4 {v(PP + 12 * k + 8, 4)}, v15, s[4:7], s35 offen sc1', tag=('p', k))
    for i in range(3):
        e(f'buffer_load_dwordx2 {v(RS_ + 2 * i, 2)}, {"v12" if i < 2 else "v13"}, {s(S_X, 4)}, s31 offen offset:{512 * i}', tag='r')
    X = PP
    e('s_add_u32 s42, s41, 16384')
    e('s_add_u32 s43, s41, 32768')
    for k in range(1, 4):
        e.wait_vm(('p', k))
        for j in range(0, 12 if k % 2 == 0 else 8, 2):
            e(f'v_pk_add_f32 {v(X + j, 2)}, {v(X + j, 2)}, {v(X + k * 12 + j, 2)}')
    for j in range(8, 12):
        e(f'v_mov_b32 {v(X + 12 + j)}, {v(X + j)}')
    for j in range(8, 12):
        e(f'v_permlane32_swap_b32 {v(X + j)}, {v(X + 12 + j)}')
    for j in range(8, 12, 2):
        e(f'v_pk_add_f32 {v(X + j, 2)}, {v(X + j, 2)}, {v(X + 12 + j, 2)}')
    mid(e)
    e.wait_vm('r')
    for j in range(0, 12, 2):
        a_, b_ = X + j, X + j + 1
        rr = RS_ + j // 2
        rnd2(e, a_, b_, 7)
        e(f'v_pk_mul_f32 {v(a_, 2)}, {v(a_, 2)}, {v(GT + j, 2)}')
        rnd2(e, a_, b_, 7)
        e(f'v_lshlrev_b32 v4, 16, {v(rr)}')
        e(f'v_and_b32 v5, 0xffff0000, {v(rr)}')
        e(f'v_pk_add_f32 {v(a_, 2)}, {v(a_, 2)}, v[4:5]')
        e(f'v_cvt_pk_bf16_f32 {v(rr)}, {v(a_)}, {v(b_)}')
        e(f'v_lshlrev_b32 {v(a_)}, 16, {v(rr)}')
        e(f'v_and_b32 {v(b_)}, 0xffff0000, {v(rr)}')
        if j % 4 == 2:
            i = j // 4
            e(f'buffer_store_dwordx2 {v(RS_ + 2 * i, 2)}, {"v12" if i < 2 else "v13"}, s[4:7], s40 offen offset:{512 * i} sc1')
    e(f'v_pk_add_f32 v[4:5], {v(X + 8, 2)}, {v(X + 10, 2)}')
    e('v_add_f32 v4, v4, v5')
    e('v_cndmask_b32 v6, 0, v4, s[96:97]')
    e(f'v_pk_add_f32 v[4:5], {v(X, 2)}, {v(X + 2, 2)}')
    e(f'v_pk_add_f32 v[4:5], v[4:5], {v(X + 4, 2)}')
    e(f'v_pk_add_f32 v[4:5], v[4:5], {v(X + 6, 2)}')
    e('v_add_f32 v4, v4, v5')
    e('v_add_f32 v6, v6, v4')
    wave_sum(e, 6, 5)
    e('v_mul_f32 v6, s98, v6')
    e('v_mov_b32 v2, 0')
    for j in range(8, 12):
        e(f'v_sub_f32 v5, {v(X + j)}, v6')
        e('v_fmac_f32 v2, v5, v5')
    e('v_cndmask_b32 v2, 0, v2, s[96:97]')
    for j in range(8):
        e(f'v_sub_f32 v5, {v(X + j)}, v6')
        e('v_fmac_f32 v2, v5, v5')
    wave_sum(e, 2, 5)
    e('v_mul_f32 v2, s98, v2')
    rnd2(e, 6, 2, 7)
    e('v_add_f32 v2, s99, v2')
    rnd2(e, 2, 5, 7)
    e('v_sqrt_f32 v2, v2')
    rnd2(e, 2, 5, 7)
    e('v_rcp_f32 v2, v2')
    for j in range(0, 12, 2):
        a_, b_ = X + j, X + j + 1
        e(f'v_sub_f32 {v(a_)}, {v(a_)}, v6')
        e(f'v_sub_f32 {v(b_)}, {v(b_)}, v6')
        rnd2(e, a_, b_, 7)
        e(f'v_mul_f32 {v(a_)}, {v(a_)}, v2')
        e(f'v_mul_f32 {v(b_)}, {v(b_)}, v2')
        rnd2(e, a_, b_, 7)
        e(f'v_pk_mul_f32 {v(a_, 2)}, {v(a_, 2)}, {v(SC + j, 2)}')
        rnd2(e, a_, b_, 7)
        e(f'v_pk_add_f32 {v(a_, 2)}, {v(a_, 2)}, {v(SH + j, 2)}')
        e(f'v_cvt_pk_bf16_f32 {v(X + 12 + j // 2)}, {v(a_)}, {v(b_)}')
        if j % 4 == 2:
            i = j // 4
            e(f'buffer_store_dwordx2 {v(X + 12 + 2 * i, 2)}, {"v8" if i < 2 else "v9"}, s[4:7], {s(41 + i)} offen sc1')
    cdone(name, K_LN2)

    name = 'wk_up'
    e.label(name)
    reset(e)
    e(f's_lshl_b32 s58, {s(P1)}, 7')
    e('s_mov_b32 s59, s58')
    S = SG(name, [(S_W1, 3456, 64), (S_W3, 3456, 64)], 10, [58, 59])
    e(f'v_and_b32 v4, 15, {v(VL)}')
    e(f'v_lshrrev_b32 v5, 4, {v(VL)}')
    e('v_lshlrev_b32 v5, 4, v5')
    e('v_lshl_add_u32 v4, v4, 7, v5')
    e(f's_lshr_b32 s31, {s(SW)}, 1')
    e(f's_mul_i32 s31, s31, {16 * 3456}')
    e(f's_and_b32 s32, {s(SW)}, 1')
    e('s_lshl_b32 s32, s32, 6')
    e('s_add_u32 s31, s31, s32')
    e(f's_lshl_b32 s59, {s(P1)}, 11')
    e('s_add_u32 s59, s59, s31')
    e(f's_add_u32 s59, s59, {WS_HM}')
    e(f's_mov_b32 s36, {f32bits(-LOG2E):#x}')
    e.label(name + '_loop')
    reset(e)
    e(f's_mul_i32 s55, {s(SEG)}, {32 * 1280}')
    e(f's_add_u32 s55, s55, {WS_H2}')
    e(f's_mul_i32 s33, {s(SEG)}, {32 * 3456}')
    e('s_add_u32 s33, s33, s59')
    cwait(name, K_LN2, 8)
    S.main(55)
    mid(e)
    for a_ in range(2):
        gv = S.acc(a_)
        uv = S.acc(2 + a_)
        for h in range(2):
            g0, g1, u0, u1 = gv + 2 * h, gv + 2 * h + 1, uv + 2 * h, uv + 2 * h + 1
            rnd2(e, g0, g1, 6)
            rnd2(e, u0, u1, 6)
            silu_inplace(e, g0, 6, 36)
            silu_inplace(e, g1, 7, 36)
            rnd2(e, g0, g1, 6)
            e(f'v_mul_f32 {v(g0)}, {v(g0)}, {v(u0)}')
            e(f'v_mul_f32 {v(g1)}, {v(g1)}, {v(u1)}')
            e(f'v_cvt_pk_bf16_f32 {v(ET + 2 * a_ + h)}, {v(g0)}, {v(g1)}')
    e(f'buffer_store_dwordx4 {v(ET, 4)}, v4, s[4:7], s33 offen sc1')
    cdone(name, K_UP)

    name = 'wk_dn'
    e.label(name)
    reset(e)
    e(f's_lshr_b32 s58, {s(P1)}, 1')
    e('s_lshl_b32 s58, s58, 8')
    S = SG(name, [(S_W2, 1280, 128)], 27, [58], nacc=2, rows=16)
    dbg_wait(e, name + '_mb', D_MODB, NMODB)
    GBV = 8
    G = S.G
    assert (G.v_xg, G.v_xa) == (8, 12)
    e(f'v_and_b32 v4, 15, {v(VL)}')
    e(f'v_lshrrev_b32 v5, 4, {v(VL)}')
    e('v_mul_u32_u24 v4, 1280, v4')
    e('v_lshl_add_u32 v4, v5, 3, v4')
    e('v_lshlrev_b32 v5, 4, v5')
    e(f's_lshl_b32 s32, {s(SW)}, 6')
    e('s_add_u32 s58, s58, s32')
    e('s_lshl_b32 s33, s58, 1')
    e(f's_add_u32 s33, s33, {WS_MOD + 5 * 2560}')
    e(f'buffer_load_dwordx4 {v(ET, 4)}, v5, s[4:7], s33 offen sc1')
    e(f'buffer_load_dwordx4 {v(ET + 4, 4)}, v5, s[4:7], s33 offen offset:64 sc1')
    e(f's_and_b32 s31, {s(P1)}, 1')
    e(f's_mul_i32 s56, s31, {16 * 3456}')
    e(f's_add_u32 s56, s56, {WS_HM}')
    e(f's_mul_i32 s31, s31, {16 * 1280}')
    e('s_add_u32 s59, s58, s31')
    e('s_waitcnt vmcnt(0)')
    e.label(name + '_loop')
    reset(e)
    e(f's_mul_i32 s55, {s(SEG)}, {32 * 3456}')
    e('s_add_u32 s55, s55, s56')
    e(f's_mul_i32 s33, {s(SEG)}, {32 * 1280}')
    e('s_add_u32 s33, s33, s59')
    e(f's_add_u32 s34, s33, {WS_X1}')
    cwait(name, K_UP, 27)

    def x1_loads():
        e('buffer_load_dwordx2 v[16:17], v4, s[4:7], s34 offen sc1', tag='r')
        e('buffer_load_dwordx2 v[18:19], v4, s[4:7], s34 offen offset:32 sc1', tag='r')
    S.main(55, x1_loads)
    mid(e)
    e.wait_vm('r')
    for ni in range(2):
        for h in range(2):
            a_ = S.acc(ni) + 2 * h
            rr = 16 + 2 * ni + h
            rnd2(e, a_, a_ + 1, 7)
            e(f'v_pk_mul_f32 {v(a_, 2)}, {v(a_, 2)}, {v(ET + 4 * ni + 2 * h, 2)}')
            rnd2(e, a_, a_ + 1, 7)
            e(f'v_lshlrev_b32 v6, 16, {v(rr)}')
            e(f'v_and_b32 v7, 0xffff0000, {v(rr)}')
            e(f'v_pk_add_f32 {v(a_, 2)}, {v(a_, 2)}, v[6:7]')
            e(f'v_cvt_pk_bf16_f32 {v(rr)}, {v(a_)}, {v(a_ + 1)}')
        e(f'buffer_store_dwordx2 {v(16 + 2 * ni, 2)}, v4, {s(S_OUT, 4)}, s33 offen offset:{32 * ni}')
    cdone(name, None)

    name = 'wk_mod'
    e.label(name)
    reset(e)
    load_srds(e, [('c', 88), ('wmod', 92)], tmp=96)
    e(f's_lshl_b32 s30, {s(SW)}, 6')
    e(f'v_add_u32 v0, s30, {v(VL)}')
    e(f's_cmp_ge_u32 {s(P1)}, {NMODA}')
    e(f's_cbranch_scc1 {name}_nz')
    e('v_mov_b32 v4, 0')
    e('v_lshlrev_b32 v2, 2, v0')
    e(f's_lshl_b32 s31, {s(P1)}, 10')
    e(f's_add_u32 s31, s31, {WS_CT2}')
    e('buffer_store_dword v4, v2, s[4:7], s31 offen sc1')
    e(f's_cmp_lg_u32 {s(P1)}, 0')
    e(f's_cbranch_scc1 {name}_nz')
    for j in range(4):
        e(f'v_mov_b32 {v(4 + j)}, 0')
    e('v_lshlrev_b32 v2, 4, v0')
    e(f's_mov_b32 s31, {WS_CTR}')
    for i in range(5):
        e('buffer_store_dwordx4 v[4:7], v2, s[4:7], s31 offen sc1')
        e('s_add_u32 s31, s31, 4096')
    e.label(f'{name}_nz')
    reset(e)
    e.nop(2)
    e('v_lshlrev_b32 v14, 1, v0')
    e('v_lshlrev_b32 v2, 2, v0')
    e(f's_mov_b32 s30, {f32bits(-LOG2E):#x}')
    for i in range(3):
        e(f'buffer_load_ushort {v(4 + i)}, v14, s[88:91], 0 offen offset:{512 * i}', tag='c')
    e('v_and_b32 v8, 3, v0')
    e('v_lshrrev_b32 v9, 2, v0')
    e('v_mul_u32_u24 v10, 7680, v9')
    e('v_lshl_add_u32 v10, v8, 4, v10')
    e(f's_lshl_b32 s31, {s(P1)}, 6')
    for i in range(10):
        if i:
            e(f's_add_u32 s31, s31, {64 * 7680}')
        e(f'buffer_load_dwordx4 {v(32 + 4 * i, 4)}, v10, s[92:95], s31 offen', tag=('w', i))
    e.wait_vm('c')
    for i in range(3):
        e(f'v_lshlrev_b32 {v(4 + i)}, 16, {v(4 + i)}')
        silu_inplace(e, 4 + i, 7, 30)
        e(f'v_cvt_pk_bf16_f32 {v(4 + i)}, {v(4 + i)}, {v(4 + i)}')
        e(f'v_lshlrev_b32 {v(4 + i)}, 16, {v(4 + i)}')
        e(f'ds_write_b32 v2, {v(4 + i)} offset:{1024 * i}')
    e.wait_lg()
    e('s_barrier')
    e('v_lshlrev_b32 v11, 2, v9')
    for i in range(10):
        e(f'ds_read_b32 {v(112 + i)}, v11 offset:{256 * i}')
    for j in range(8):
        e(f'v_mov_b32 {v(16 + j)}, 0')
    e.wait_lg()
    for i in range(10):
        e.wait_vm(('w', i))
        for d in range(4):
            w = 32 + 4 * i + d
            e(f'v_lshlrev_b32 v12, 16, {v(w)}')
            e(f'v_and_b32 v13, 0xffff0000, {v(w)}')
            e(f'v_fmac_f32 {v(16 + 2 * d)}, v12, {v(112 + i)}')
            e(f'v_fmac_f32 {v(17 + 2 * d)}, v13, {v(112 + i)}')
    e('v_lshlrev_b32 v12, 7, v9')
    e('v_lshl_add_u32 v12, v8, 5, v12')
    e('ds_write_b128 v12, v[16:19] offset:4096')
    e('ds_write_b128 v12, v[20:23] offset:4112')
    e.wait_lg()
    e('s_barrier')
    e(f's_cmp_lg_u32 {s(SW)}, 0')
    e(f's_cbranch_scc1 {name}_done')
    e(f'v_and_b32 v12, 31, {v(VL)}')
    e(f'v_lshrrev_b32 v13, 5, {v(VL)}')
    e('v_lshlrev_b32 v12, 2, v12')
    e('v_lshl_add_u32 v13, v13, 12, v12')
    for i in range(32):
        e(f'ds_read_b32 {v(32 + i)}, v13 offset:{4096 + 128 * i}')
    e.wait_lg()
    for i in range(1, 32):
        e(f'v_add_f32 v32, v32, {v(32 + i)}')
    e('v_mov_b32 v33, v32')
    e('v_permlane32_swap_b32 v32, v33')
    e('v_add_f32 v32, v32, v33')
    e('v_cvt_pk_bf16_f32 v32, v32, v32')
    e('v_lshlrev_b32 v32, 16, v32')
    e(f's_lshl_b32 s31, {s(P1)}, 7')
    e(f's_add_u32 s31, s31, {WS_MOD}')
    e('buffer_store_dword v32, v12, s[4:7], s31 offen sc1')
    e.label(f'{name}_done')
    e(f's_mov_b32 s36, {D_MODB}')
    e(f's_cmp_lt_u32 {s(P1)}, {NMODA}')
    e(f's_cselect_b32 s36, {D_MOD}, s36')
    signal(e, name, None, B, loop, dbg_off='s36')


NAME = 'adaLN_cond__memory_aug_recurrent_mem_tr__glu_gated_swiglu__prompt_kernel'
if __name__ == '__main__':
    import argparse
    ap = argparse.ArgumentParser()
    ap.add_argument('--out', default='mega.s')
    ap.add_argument('--kw', default='')
    ap.add_argument('--log', action='store_true')
    ap.add_argument('--sleep', type=int, default=6)
    ap.add_argument('--list', action='store_true')
    ap.add_argument('--dsleep', type=int, default=24)
    args = ap.parse_args()
    LOG = args.log
    SLEEP = args.sleep
    DSLEEP = args.dsleep
    e = Em()
    nm = 'mega_kernel' if args.list else NAME
    e.raw(f'.globl {nm}')
    KNAME[0] = nm
    reset(e)
    kw = eval('dict(' + args.kw + ')')
    gen_chainX.gen_chain(e, name=nm, mega='wk_entry', nmoda=NMODA, segsig=WS_CT2 + K_CH * 128, kvt=64, **kw)
    gen_workers(e)
    if args.list:
        hdr = f"; @launch kernel={nm} grid=(256,1,1) block=(256,1,1) lds=163840\n"
    else:
        hdr = "; @launch grid=(256,1,1) block=(256,1,1) lds=163840\n"
    hdr += '.amdgcn_target "amdgcn-amd-amdhsa--gfx950"\n.text\n'
    open(args.out, 'w').write(hdr + e.text() + kd(nm, 512, 256))
```

```python
from emit import *
from layout import *
from gen_chain import Pool, f32bits, kd

S_WS = 4
S_DBG = 8
S_WQ = 12
S_WK = 16
S_WV = 20
S_WO = 24
S_H = 28
S_W = 29
S_STEP = 30
S_T0, S_T1, S_T2, S_T3 = 31, 32, 33, 34
S_MODE = 35
S_UNIT = 36
S_XCC = 37
S_C1 = 38
S_MASKLO = 40
S_LDSW = 42
S_SH13 = 43
S_MBP = 44
S_MSL = 48
S_M9D = 49
S_PBST = 50
S_MBL = 55
S_MBC = 56
S_MBN = 57
S_KXW = 58
S_KXM = 59
S_PBLD = 60
S_MDST = 61
S_VMO = 62
S_NR = 63
S_VB0, S_VB, S_MBL2, S_GOF2 = 66, 67, 68, 69
S_MBE0, S_MBD0, S_MBD2 = 73, 74, 47
S_GOF = 64
S_MBR2 = 65
S_VXO = 70
S_KMO = 71
S_WRM = 72
S_MBN2 = 75
S_STAMP = 76
S_SIG = 15
S_KVOK = 16

V_LANE16, V_IDX, V_AF, V_QKR, V_LDSW, V_QKW, V_OW, V_OR = range(8)
V_PBST, V_KXG, V_MBST, V_L8, V_WA, V_WT, V_M1, V_L64 = range(8, 16)
V_SEL = 16
V_ONES = 20
V_PM = 24
V_M2 = 26
NPERS = 28

NR_PING, NR_CAL, NR_VB = 8 * 16384, 9 * 16384, 16 * 16384
D_NEAR = 144
D_INIT, D_SLOW = 132, 136

_fj = [0]


def far_jump(e, label, sp):
    _fj[0] += 1
    here = f'Lfj{_fj[0]}'
    e(f's_getpc_b64 {s(sp, 2)}')
    e.label(here)
    e.raw(f'    s_add_u32 {s(sp)}, {s(sp)}, {label}-{here}')
    e.raw(f'    s_addc_u32 {s(sp + 1)}, {s(sp + 1)}, 0')
    e(f's_setpc_b64 {s(sp, 2)}')


def gen_chain(em, name='chain_kernel', mega=None, nmoda=0, pool_end=96, nsteps=64, stamps=False, stsel=(0, 1, 2, 3, 4, 5, 6, 7, 8, 9),
              hstamps=False, la_lds=5, afl=7, nvl=2, npre=4, noa=2, v_at=1, gdel=0, kdel=0, adel=3, nkl=4, wat=2, wat2=20, defer=True,
              warm=(('a', 0), ('a2', 1)), ncal=6, segsig=None, slow=True, early_poll=0, wfl='nt', kvt=32,
              lds_un=(0, 1, 5, -9, -6, -3), dbg='', ldfl='nt'):
    L_MMEM = 0
    L_MQ = 10240
    L_MK = L_MQ + 2048
    L_O = L_MK + 2048
    L_KX = L_O + 2048
    L_VX = L_KX + 8192
    L_WB = L_VX + 8192
    NRING = 8
    WL = NRING * 4096
    assert L_WB + 4 * WL <= 163840
    e = em
    LN = 28
    NH1 = 10 - nvl

    ounits = [('o', t, p) for p in range(5) for t in range(2)]
    uorder = [(m, t) for t in range(10 - nkl) for m in 'qk'] + [(m, t) for m in 'qk' for t in range(10 - nkl, 10)] + [('v', t) for t in range(NH1, 10)]
    NQE = 40 - 2 * nkl
    NA = 2 * len(uorder)
    uorder += ounits
    order = [(un, tau) for un in uorder for tau in range(2)]
    n_reg = (512 - pool_end) // 8
    n_lds = len(order) - n_reg
    assert n_lds % 2 == 0 and n_lds <= 16, n_lds
    lun = sorted(x % len(uorder) for x in lds_un[:n_lds // 2])
    lun = [uorder[i] for i in lun]
    units = [un for un in uorder if un not in lun] + lun
    place = {}
    r = pool_end
    for i, un in enumerate(units):
        for tau in range(2):
            if un in lun:
                place[(un, tau)] = ('lds', 2 * (i % NRING) + tau)
            else:
                place[(un, tau)] = ('reg', r)
                r += 8
    assert r == 512

    em.raw('.p2align 8')
    em.raw(f'.type {name},@function')
    em.label(name)
    e('s_cmp_lt_u32 s2, 256')
    e(f's_cbranch_scc1 {name}_go')
    e('s_endpgm')
    e.label(f'{name}_go')
    if 'rt' in dbg:
        e('s_memrealtime s[96:97]')
    e('s_load_dwordx4 s[48:51], s[0:1], 16')
    e('s_load_dwordx4 s[52:55], s[0:1], 32')
    e('s_load_dwordx4 s[56:59], s[0:1], 112')
    e(f's_getreg_b32 {s(S_XCC)}, hwreg(HW_REG_XCC_ID)')
    e(f's_and_b32 {s(S_XCC)}, {s(S_XCC)}, 15')
    e('v_lshrrev_b32 v20, 6, v0')
    e('v_and_b32 v16, 63, v0')
    e(f'v_readfirstlane_b32 {s(S_W)}, v20')
    e('s_waitcnt lgkmcnt(0)')

    def srd(d, src, size):
        e(f's_mov_b32 {s(d)}, {s(src)}')
        e(f's_and_b32 {s(d + 1)}, {s(src + 1)}, 0xffff')
        e(f's_mov_b32 {s(d + 2)}, {size}')
        e(f's_mov_b32 {s(d + 3)}, 0x20000')
    srd(S_WQ, 48, 5242880)
    srd(S_WK, 50, 5242880)
    srd(S_WV, 52, 5242880)
    srd(S_WO, 54, 5242880)
    srd(S_DBG, 56, 256)
    srd(S_WS, 58, WS_SIZE)

    e(f's_and_b32 {s(S_MODE)}, s2, 7')
    e(f's_lshr_b32 {s(S_H)}, s2, 3')
    e(f's_cmp_lt_u32 {s(S_MODE)}, 2')
    e(f's_cbranch_scc1 {name}_hasrole')
    if mega:
        far_jump(e, mega, 44)
    else:
        e('s_endpgm')
    e.label(f'{name}_hasrole')
    e(f'v_mov_b32 {v(LN)}, v16')

    g, c, rp, cp, g1, g2, sw = 16, 17, 18, 19, 20, 21, 22
    T = 23
    e(f'v_lshrrev_b32 {v(g)}, 4, {v(LN)}')
    e(f'v_and_b32 {v(c)}, 15, {v(LN)}')
    e(f'v_lshrrev_b32 {v(rp)}, 2, {v(c)}')
    e(f'v_and_b32 {v(cp)}, 3, {v(LN)}')
    e(f'v_and_b32 {v(g1)}, 1, {v(g)}')
    e(f'v_lshrrev_b32 {v(g2)}, 1, {v(g)}')
    e(f'v_lshl_add_u32 {v(sw)}, {v(g1)}, 1, {v(g2)}')
    e(f'v_lshlrev_b32 {v(V_LANE16)}, 4, {v(LN)}')
    e(f'v_lshlrev_b32 {v(V_L64)}, 6, {v(LN)}')
    e(f'v_lshlrev_b32 {v(V_WA)}, 7, {v(c)}')
    e(f'v_mov_b32 {v(V_M1)}, -1')
    e(f'v_and_b32 {v(T)}, 2, {v(LN)}')
    e(f'v_cmp_ne_u32 vcc, 0, {v(T)}')
    e(f'v_mov_b32 {v(T + 1)}, 0x4444')
    e(f'v_mov_b32 {v(T + 2)}, 0xeeee')
    e(f'v_cndmask_b32 {v(V_IDX)}, {v(T + 1)}, {v(T + 2)}, vcc')
    e(f'v_lshl_add_u32 {v(T)}, {v(g)}, 2, {v(rp)}')
    e(f'v_lshlrev_b32 {v(T + 1)}, 3, {v(cp)}')
    e(f'v_lshl_add_u32 {v(V_AF)}, {v(T)}, 5, {v(T + 1)}')
    e(f'v_and_b32 {v(T + 2)}, 1, {v(cp)}')
    e(f'v_lshlrev_b32 {v(T + 2)}, 3, {v(T + 2)}')
    e(f'v_lshl_add_u32 {v(V_QKR)}, {v(T)}, 4, {v(T + 2)}')
    e(f'v_add_u32 {v(V_QKR)}, {L_MQ}, {v(V_QKR)}')
    e(f's_lshl_b32 {s(S_T0)}, {s(S_W)}, 5')
    e(f'v_add_u32 {v(T)}, {s(S_T0)}, {v(c)}')
    e(f'v_lshlrev_b32 {v(T + 2)}, 2, {v(sw)}')
    e(f'v_lshl_add_u32 {v(V_QKW)}, {v(T)}, 4, {v(T + 2)}')
    e(f'v_add_u32 {v(V_QKW)}, {L_MQ}, {v(V_QKW)}')
    e(f's_lshl_b32 {s(S_T0)}, {s(S_W)}, 2')
    e(f'v_add_u32 {v(T)}, {s(S_T0)}, {v(g)}')
    e(f'v_and_b32 {v(T + 3)}, 7, {v(LN)}')
    e(f'v_lshl_add_u32 {v(T)}, {v(T)}, 3, {v(T + 3)}')
    e(f'v_lshlrev_b32 {v(V_OW)}, 4, {v(T)}')
    e(f'v_add_u32 {v(V_OW)}, {L_O}, {v(V_OW)}')
    e(f'v_and_b32 {v(T)}, 1, {v(rp)}')
    e(f'v_lshrrev_b32 {v(T + 2)}, 1, {v(rp)}')
    e(f'v_lshl_add_u32 {v(T)}, {v(T)}, 1, {v(T + 2)}')
    e(f'v_and_b32 {v(T + 2)}, 1, {v(LN)}')
    e(f'v_lshl_add_u32 {v(T)}, {v(T)}, 1, {v(T + 2)}')
    e(f'v_lshl_add_u32 {v(T)}, {v(g)}, 3, {v(T)}')
    e(f'v_lshrrev_b32 {v(T + 2)}, 1, {v(cp)}')
    e(f'v_lshl_add_u32 {v(T)}, {v(T + 2)}, 5, {v(T)}')
    e(f'v_lshlrev_b32 {v(V_OR)}, 4, {v(T)}')
    e(f'v_add_u32 {v(V_OR)}, {L_O}, {v(V_OR)}')
    e(f'v_lshl_add_u32 {v(T)}, {v(g1)}, 2, {v(cp)}')
    e(f'v_lshlrev_b32 {v(T)}, 4, {v(T)}')
    e(f'v_lshl_add_u32 {v(T)}, {v(g2)}, 3, {v(T)}')
    e(f'v_lshl_add_u32 {v(V_PBST)}, {v(rp)}, 12, {v(T)}')
    e(f'v_and_b32 {v(T)}, 4, {v(LN)}')
    e(f'v_lshl_add_u32 {v(T)}, {v(sw)}, 3, {v(T)}')
    e(f'v_lshl_add_u32 {v(T)}, {v(cp)}, 5, {v(T)}')
    e(f'v_lshlrev_b32 {v(T + 1)}, 27, {v(c)}')
    e(f'v_and_b32 {v(T + 1)}, 0x40000000, {v(T + 1)}')
    e(f'v_or_b32 {v(V_MBST)}, {v(T)}, {v(T + 1)}')
    e(f'v_lshlrev_b32 {v(V_L8)}, 3, {v(LN)}')
    e(f'v_lshlrev_b32 {v(T)}, 4, {v(g)}')
    e(f'v_lshl_add_u32 {v(V_KXG)}, {v(c)}, 8, {v(T)}')
    e(f's_mul_i32 {s(S_LDSW)}, {s(S_W)}, {WL}')
    e(f's_add_u32 {s(S_LDSW)}, {s(S_LDSW)}, {L_WB}')
    e(f'v_add_u32 {v(V_LDSW)}, {s(S_LDSW)}, {v(V_LANE16)}')
    VG_QKV, VG_O, VT_QKV, VT_O = 28, 29, 30, 31
    e(f'v_lshrrev_b32 {v(T + 2)}, 1, {v(rp)}')
    e(f'v_and_b32 {v(T + 3)}, 1, {v(rp)}')
    e(f'v_lshlrev_b32 {v(T + 1)}, 3, {v(cp)}')
    e(f'v_lshl_add_u32 {v(T + 3)}, {v(g2)}, 2, {v(T + 3)}')
    e(f'v_lshl_add_u32 {v(T + 1)}, {v(T + 3)}, 8, {v(T + 1)}')
    e(f's_lshl_b32 {s(S_T0)}, {s(S_W)}, 6')
    e(f's_add_u32 {s(S_T0)}, {s(S_T0)}, {L_WB}')
    e(f'v_add_u32 {v(T + 1)}, {s(S_T0)}, {v(T + 1)}')
    assert WL == 32768
    e(f'v_lshl_add_u32 {v(T + 4)}, {v(g1)}, 1, {v(T + 2)}')
    e(f'v_lshl_add_u32 {v(VT_QKV)}, {v(T + 4)}, 15, {v(T + 1)}')
    e(f'v_lshl_add_u32 {v(T + 4)}, {v(T + 2)}, 1, {v(g1)}')
    e(f'v_lshl_add_u32 {v(VT_O)}, {v(T + 4)}, 15, {v(T + 1)}')
    e(f'v_lshlrev_b32 {v(T + 1)}, 4, {v(c)}')
    e(f'v_mul_u32_u24 {v(VG_O)}, 1280, {v(g)}')
    e(f'v_add_u32 {v(VG_O)}, {v(VG_O)}, {v(T + 1)}')
    e(f'v_lshl_add_u32 {v(VG_QKV)}, {v(g)}, 13, {v(T + 1)}')
    e(f's_lshl_b32 {s(S_T2)}, {s(S_H)}, 8')
    e(f's_lshl_b32 {s(S_T0)}, {s(S_W)}, 17')
    e(f's_add_u32 {s(S_T2)}, {s(S_T2)}, {s(S_T0)}')
    e(f's_mul_i32 {s(S_T3)}, {s(S_H)}, {128 * 1280}')
    e(f's_mul_i32 {s(S_T0)}, {s(S_W)}, {16 * 1280}')
    e(f's_add_u32 {s(S_T3)}, {s(S_T3)}, {s(S_T0)}')
    e(f's_lshl_b32 {s(S_PBST)}, {s(S_W)}, 14')
    e(f's_lshl_b32 {s(S_T0)}, {s(S_H)}, 7')
    e(f's_add_u32 {s(S_PBST)}, {s(S_PBST)}, {s(S_T0)}')
    e(f's_mov_b32 {s(S_STEP)}, 0')
    e('s_mov_b32 s3, 0')
    e(f's_mov_b32 {s(S_MSL)}, 0')
    e(f's_lshl_b32 {s(S_T1)}, {s(S_H)}, 12')
    e(f's_add_u32 {s(S_KMO)}, {s(S_T1)}, {WS_KM}')
    e(f's_lshl_b32 {s(S_T0)}, {s(S_W)}, 9')
    e(f's_add_u32 {s(S_VMO)}, {s(S_KMO)}, {s(S_T0)}')
    e(f's_add_u32 {s(S_NR)}, {s(S_WS)}, 0x5fffff')
    e(f's_and_b32 {s(S_NR)}, {s(S_NR)}, 0xffe00000')
    e(f's_sub_u32 {s(S_NR)}, {s(S_NR)}, {s(S_WS)}')
    e(f's_lshl_b32 {s(S_T0)}, {s(S_W)}, 10')
    e(f's_lshr_b32 {s(S_T1)}, {s(S_H)}, 1')
    e(f's_lshl_b32 {s(S_T1)}, {s(S_T1)}, 14')
    e(f's_add_u32 {s(S_VB0)}, {s(S_T0)}, {s(S_T1)}')
    e(f's_and_b32 {s(S_T1)}, {s(S_H)}, 1')
    e(f's_lshl_b32 {s(S_T1)}, {s(S_T1)}, 12')
    e(f's_add_u32 {s(S_VB0)}, {s(S_VB0)}, {s(S_T1)}')
    e(f's_add_u32 {s(S_VB0)}, {s(S_VB0)}, {NR_VB}')

    def load_weights(ulist, place_, vt_o, tmpbase, first, pre=False):
        def issue(i):
            un = ulist[i]
            pos = i % NRING
            for q in range(4):
                if un[0] == 'o':
                    _, t, p = un
                    e(f's_add_u32 {s(S_T0)}, {s(S_T3)}, {(64 * t + 4 * q) * 1280 + 256 * p}')
                    srdn, vg = S_WO, VG_O
                else:
                    m, t = un
                    e(f's_add_u32 {s(S_T0)}, {s(S_T2)}, {(64 * t + 4 * q) * 8192}')
                    srdn, vg = {'q': S_WQ, 'k': S_WK, 'v': S_WV}[m], VG_QKV
                e(f's_add_u32 m0, {s(S_LDSW)}, {pos * 4096 + q * 1024}')
                e(f'buffer_load_dwordx4 {v(vg)}, {s(srdn, 4)}, {s(S_T0)} offen {wfl} lds', tag=('dma', i))

        def wback(i):
            if i >= 0 and place_[(ulist[i], 0)][0] == 'lds':
                pos = i % NRING
                assert place_[(ulist[i], 1)][1] == 2 * pos + 1 and i + NRING >= len(ulist)
                for n in range(4):
                    e(f'ds_write_b128 {v(V_LDSW)}, {v(tmpbase + 16 * (i & 1) + 4 * n, 4)} offset:{pos * 4096 + 1024 * n}')

        def process(i):
            un = ulist[i]
            pos = i % NRING
            e.wait_vm(('dma', i))
            e('s_barrier')
            if i >= 1 and i - 1 + NRING < len(ulist):
                issue(i - 1 + NRING)
            wback(i - 1)
            vt = vt_o if un[0] == 'o' else VT_QKV
            for tau in range(2):
                kind, loc = place_[(un, tau)]
                dst = loc if kind == 'reg' else tmpbase + 16 * (i & 1) + 8 * tau
                for n in range(4):
                    off = (8 * (n >> 1) + 2 * (n & 1)) * 256 + 32 * tau
                    e(f'ds_read_b64_tr_b16 {u(dst + 2 * n, 2)}, {v(vt)} offset:{pos * 4096 + off}')
            e.wait_lg()
        n = len(ulist)
        if pre:
            first()
        for i in range(NRING):
            issue(i)
        if not pre:
            first()
        for i in range(n):
            process(i)
        e('s_barrier')
        wback(n - 1)

    def init_done(lab, inc='1'):
        e('s_waitcnt vmcnt(0)')
        e('s_barrier')
        e(f's_cmp_lg_u32 {s(S_W)}, 0')
        e(f's_cbranch_scc1 {lab}')
        e(f'v_mov_b32 v44, {D_INIT}')
        e(f'v_mov_b32 v45, {inc}')
        e('s_mov_b64 exec, 1')
        e(f'buffer_atomic_add v45, v44, {s(S_DBG, 4)}, 0 offen')
        e('s_mov_b64 exec, -1')
        e.label(lab)
        e.vm = []
        e.hist = []

    def init_wait(lab, t):
        e(f'v_mov_b32 {v(t + 2)}, 128')
        e.label(lab)
        wd()
        e('s_sleep 8')
        e(f'buffer_load_dwordx2 {v(t, 2)}, {v(t + 2)}, {s(S_DBG, 4)}, 0 offen sc1')
        e('s_waitcnt vmcnt(0)')
        e(f'v_readfirstlane_b32 {s(S_T0)}, {v(t)}')
        e(f'v_readfirstlane_b32 {s(S_T1)}, {v(t + 1)}')
        e(f's_and_b32 {s(S_T0)}, {s(S_T1)}, 0xffff')
        e(f's_cmp_lt_u32 {s(S_T0)}, 64')
        e(f's_cbranch_scc1 {lab}')
        e(f's_lshr_b32 {s(S_T1)}, {s(S_T1)}, 16')
        e(f's_cmp_ge_u32 {s(S_T1)}, 16')
        e(f's_cselect_b32 {s(S_T0)}, 8192, 0')
        if 'far' in dbg:
            e(f's_xor_b32 {s(S_T0)}, {s(S_T0)}, 8192')
        e(f's_add_u32 {s(S_NR)}, {s(S_NR)}, {s(S_T0)}')
        e(f's_add_u32 {s(S_VB0)}, {s(S_VB0)}, {s(S_NR)}')
        e(f's_mov_b32 {s(S_VB)}, {s(S_VB0)}')
        if nmoda:
            e(f'v_mov_b32 {v(t + 1)}, 0')
            e.label(lab + 'm')
            e(f'buffer_load_dword {v(t)}, {v(t + 1)}, {s(S_DBG, 4)}, 0 offen sc1')
            e('s_waitcnt vmcnt(0)')
            e(f'v_readfirstlane_b32 {s(S_T0)}, {v(t)}')
            e(f's_cmp_lt_u32 {s(S_T0)}, {nmoda}')
            e(f's_cbranch_scc1 {lab}m')

    def signal_block(t0):
        e(f's_lshl_b32 {s(S_T2)}, {s(S_T2)}, 7')
        e(f's_add_u32 {s(S_T2)}, {s(S_T2)}, {WS_CTR + C_CH * 128}')
        e(f'v_mov_b32 {v(t0)}, 1')
        e('s_mov_b64 exec, 1')
        e(f'buffer_atomic_add {v(t0)}, {v(V_LANE16)}, {s(S_WS, 4)}, {s(S_T2)} offen')
        e('s_mov_b64 exec, -1')

    def seg_signal():
        e('s_mov_b64 exec, 1')
        e(f'buffer_atomic_sub {v(V_M1)}, {v(V_LANE16)}, {s(S_WS, 4)}, {s(S_SIG)} offen')
        e('s_mov_b64 exec, -1')
        e(f's_add_u32 {s(S_SIG)}, {s(S_SIG)}, 128')

    def step_signal(L):
        if segsig is not None:
            return
        e(f's_and_b32 {s(S_T2)}, {s(S_STEP)}, 3')
        e(f's_lshl_b32 {s(S_T2)}, {s(S_T2)}, 2')
        e(f's_add_u32 {s(S_T2)}, {s(S_T2)}, {s(S_W)}')
        e(f's_cmp_lg_u32 {s(S_T2)}, 3')
        e(f's_cbranch_scc1 {L}_nosig')
        e(f's_cmp_eq_u32 {s(S_STEP)}, 0')
        e(f's_cbranch_scc1 {L}_nosig')
        e.cond_begin()
        e(f's_lshr_b32 {s(S_T2)}, {s(S_STEP)}, 2')
        e(f's_sub_u32 {s(S_T2)}, {s(S_T2)}, 1')
        signal_block(V_WT)
        e.cond_end()
        e.label(f'{L}_nosig')

    def tl(i):
        if 'tl' in dbg:
            e(f's_memrealtime {s(84 + 2 * i, 2)}')

    def tl_out(role, t):
        if 'tl' in dbg:
            e('s_waitcnt lgkmcnt(0)')
            for i in range(4):
                e(f'v_mov_b32 {v(t + i)}, {s(84 + 2 * i)}')
            e(f's_lshl_b32 {s(S_T0)}, {s(S_H)}, 2')
            e(f's_add_u32 {s(S_T0)}, {s(S_T0)}, {s(S_W)}')
            e(f's_lshl_b32 {s(S_T0)}, {s(S_T0)}, 6')
            e(f's_add_u32 {s(S_T0)}, {s(S_T0)}, {s(S_STEP)}')
            e(f's_lshl_b32 {s(S_T0)}, {s(S_T0)}, 4')
            e(f's_add_u32 {s(S_T0)}, {s(S_T0)}, {0x0F100000 + role * 0x40000}')
            e('s_mov_b64 exec, 1')
            e(f'buffer_store_dwordx4 {v(t, 4)}, {v(V_LANE16)}, {s(S_WS, 4)}, {s(S_T0)} offen')
            e('s_mov_b64 exec, -1')
            e.nop(2)

    def wd():
        if 'wd' in dbg:
            e('s_add_u32 s3, s3, 1')
            e('s_cmp_gt_u32 s3, 0x40000')
            _fj[0] += 1
            e(f's_cbranch_scc0 Lwd{_fj[0]}')
            e('s_endpgm')
            e.label(f'Lwd{_fj[0]}')

    def run(mf, side, ratio=2):
        side = list(side)
        for f in mf:
            f()
            for _ in range(ratio):
                if side:
                    side.pop(0)()
        for f in side:
            f()

    def fold(acc, dst):
        return [lambda: e(f'v_pk_add_f32 {v(acc, 2)}, {v(acc, 2)}, {v(acc + 2, 2)}'),
                lambda: e(f'v_cvt_pk_bf16_f32 {v(dst)}, {v(acc)}, {v(acc + 1)}')]

    def stamp_init():
        for i in range(17, 28):
            e(f's_mov_b32 {s(i)}, 0')
        e('s_memtime s[100:101]')
        e('s_waitcnt lgkmcnt(0)')
        for i in range(10):
            e(f's_mov_b32 {s(S_STAMP + 2 * i)}, s100')

    def stamp_acc(n):
        e('s_waitcnt lgkmcnt(0)')
        e(f's_sub_u32 {s(S_T0)}, {s(S_STAMP)}, s100')
        e(f's_add_u32 s17, s17, {s(S_T0)}')
        for i in range(n - 1):
            e(f's_sub_u32 {s(S_T0)}, {s(S_STAMP + 2 * i + 2)}, {s(S_STAMP + 2 * i)}')
            e(f's_add_u32 {s(18 + i)}, {s(18 + i)}, {s(S_T0)}')
        e(f's_mov_b32 s100, {s(S_STAMP + 2 * (n - 1))}')

    def stamp_out():
        e('v_mov_b32 v40, 0')
        for i in range(11):
            e(f'v_writelane_b32 v40, {s(17 + i)}, {i}')
        e(f'v_lshrrev_b32 v41, 2, {v(V_LANE16)}')
        e(f's_lshl_b32 {s(S_T0)}, {s(S_H)}, 2')
        e(f's_add_u32 {s(S_T0)}, {s(S_T0)}, {s(S_W)}')
        e(f's_lshl_b32 {s(S_T0)}, {s(S_T0)}, 8')
        e(f's_add_u32 {s(S_T0)}, {s(S_T0)}, 0x0F000000')
        e(f'buffer_store_dword v40, v41, {s(S_WS, 4)}, {s(S_T0)} offen')

    e(f's_cmp_eq_u32 {s(S_MODE)}, 0')
    e(f's_cbranch_scc1 {name}_chain')
    far_jump(e, f'{name}_helper', 44)
    e.label(f'{name}_chain')

    pool = Pool(NPERS, pool_end)
    cc = f32bits((128 ** -0.5) * 1.4426950408889634)
    e(f's_mov_b32 {s(S_C1)}, {cc:#x}')
    e(f's_mov_b32 {s(S_C1 + 1)}, {cc:#x}')
    e(f's_mov_b32 {s(S_MASKLO)}, -1')
    e(f's_mov_b32 {s(S_MASKLO + 1)}, 0')
    e(f's_lshl_b32 {s(S_T0)}, {s(S_H)}, 1')
    e(f's_add_u32 {s(S_T0)}, {s(S_T0)}, {s(S_W)}')
    e(f's_add_u32 {s(S_UNIT)}, {s(S_T0)}, 16')
    e(f's_cmp_lt_u32 {s(S_H)}, 16')
    e(f's_cselect_b32 {s(S_T0)}, {s(S_H)}, 255')
    e(f's_cmp_eq_u32 {s(S_W)}, 2')
    e(f's_cselect_b32 {s(S_UNIT)}, {s(S_T0)}, {s(S_UNIT)}')
    e(f's_cmp_eq_u32 {s(S_W)}, 3')
    e(f's_cselect_b32 {s(S_UNIT)}, 255, {s(S_UNIT)}')
    e(f's_mul_i32 {s(S_GOF)}, {s(S_W)}, 2560')

    def chain_init():
        e('s_load_dwordx2 s[76:77], s[0:1], 8')
        for j in range(4):
            e(f'v_mov_b32 {v(40 + j)}, -1')
        e(f's_lshl_b32 {s(S_T0)}, {s(S_H)}, 2')
        e(f's_add_u32 {s(S_T0)}, {s(S_T0)}, {s(S_W)}')
        e(f's_mul_i32 {s(S_T1)}, {s(S_T0)}, 2560')
        for sl_ in range(2):
            e(f's_add_u32 s78, {s(S_T1)}, {WS_PB + sl_ * PB_STRIDE}')
            for i in range(3):
                e(f'buffer_store_dwordx4 v[40:43], {v(V_LANE16)}, {s(S_WS, 4)}, s78 offen offset:{1024 * i} sc1')
        e(f's_lshl_b32 s78, {s(S_T0)}, 10')
        e(f's_add_u32 s79, s78, {WS_MB + MB_STRIDE}')
        e(f'buffer_store_dwordx4 v[40:43], {v(V_LANE16)}, {s(S_WS, 4)}, s79 offen sc1')
        e(f's_add_u32 s79, s78, {s(S_NR)}')
        e('s_add_u32 s79, s79, 32768')
        e(f's_cmp_ge_u32 {s(S_T0)}, 96')
        e('s_cselect_b32 s79, 0x40000000, s79')
        e(f'buffer_store_dwordx4 v[40:43], {v(V_LANE16)}, {s(S_WS, 4)}, s79 offen sc1')
        e('s_waitcnt lgkmcnt(0)')
        e('s_mov_b32 s80, s76')
        e('s_and_b32 s81, s77, 0xffff')
        e('s_mov_b32 s82, 10240')
        e('s_mov_b32 s83, 0x20000')
        e(f's_cmp_ge_u32 {s(S_T0)}, 40')
        e(f's_cbranch_scc1 {name}_nom0')
        e(f's_lshl_b32 s78, {s(S_T0)}, 6')
        e(f'v_lshrrev_b32 v44, 4, {v(V_LANE16)}')
        e('v_add_u32 v44, s78, v44')
        e('v_and_b32 v45, 1, v44')
        e('v_bfe_u32 v46, v44, 1, 2')
        e('v_bfe_u32 v47, v44, 3, 4')
        e('v_lshrrev_b32 v48, 7, v44')
        e('v_lshl_add_u32 v47, v45, 4, v47')
        e('v_lshl_add_u32 v47, v48, 5, v47')
        e('v_mul_u32_u24 v46, 2560, v46')
        e('v_lshl_add_u32 v46, v47, 1, v46')
        e('buffer_load_ushort v45, v46, s[80:83], 0 offen')
        e('buffer_load_ushort v47, v46, s[80:83], 0 offen offset:1280')
        e('v_lshlrev_b32 v44, 2, v44')
        e('s_waitcnt vmcnt(0)')
        e('v_lshl_or_b32 v45, v47, 16, v45')
        e('v_min_u32 v45, 0xfffffffe, v45')
        e(f's_mov_b32 s78, {WS_MB}')
        e(f's_cmp_ge_u32 {s(S_T0)}, 32')
        e('s_cselect_b32 s79, 8192, 0')
        e(f's_add_u32 s79, s79, {s(S_NR)}')
        e('s_add_u32 s80, s79, 8192')
        e(f'buffer_store_dword v45, v44, {s(S_WS, 4)}, s78 offen sc1')
        e(f'buffer_store_dword v45, v44, {s(S_WS, 4)}, s79 offen sc1')
        e(f'buffer_store_dword v45, v44, {s(S_WS, 4)}, s80 offen sc1')
        e.label(f'{name}_nom0')
        e(f's_lshl_b32 {s(S_T0)}, 1, {s(S_XCC)}')
        e(f'v_mov_b32 v44, {D_SLOW}')
        e(f'v_mov_b32 v45, {s(S_T0)}')
        e(f's_cmp_eq_u32 {s(S_W)}, 0')
        e('s_cselect_b64 exec, 1, 0')
        e(f'buffer_atomic_or v45, v44, {s(S_DBG, 4)}, 0 offen')
        e('s_mov_b64 exec, -1')
        init_done(f'{name}_noib')

    load_weights(units, place, VT_O, 48, chain_init)
    e.wait_lg()
    e('s_barrier')

    TT = NPERS
    e(f'v_and_b32 {v(TT)}, 16, {v(V_LANE16)}')
    e(f's_mov_b32 {s(S_T0)}, 0x3f80')
    e(f'v_lshlrev_b32 {v(TT)}, {v(TT)}, {s(S_T0)}')
    e(f'v_bfe_u32 {v(TT + 1)}, {v(V_LANE16)}, 5, 2')
    for rr in range(4):
        e(f'v_cmp_eq_u32 vcc, {rr}, {v(TT + 1)}')
        e(f'v_cndmask_b32 {v(V_SEL + rr)}, 0, {v(TT)}, vcc')
        e(f'v_mov_b32 {v(V_ONES + rr)}, 0x3f803f80')
    e(f'v_mov_b32 {v(V_PM + 1)}, 0')
    e(f'v_mov_b32 {v(V_PM + 2)}, 0')
    e(f's_add_u32 {s(S_MBP)}, {s(S_GOF)}, {WS_MB}')
    e(f's_add_u32 {s(S_PBST)}, {s(S_PBST)}, {WS_PB}')
    for p in range(1, 5):
        e(f's_add_u32 {s(S_PBST + p)}, {s(S_PBST)}, {p * 65536}')
    e(f's_lshl_b32 {s(S_T0)}, {s(S_UNIT)}, 12')
    e(f's_add_u32 {s(S_PBLD)}, {s(S_T0)}, {WS_PB}')
    e(f's_lshl_b32 {s(S_MBL)}, {s(S_UNIT)}, 7')
    e(f's_add_u32 {s(S_MBL)}, {s(S_MBL)}, {WS_MB}')
    e(f's_mov_b32 {s(S_MBC)}, {s(S_MBL)}')
    e(f's_add_u32 {s(S_MBN)}, {s(S_MBL)}, {MB_STRIDE}')
    e(f's_lshl_b32 {s(S_SH13)}, {s(S_H)}, 13')
    e(f's_lshl_b32 {s(S_T0)}, {s(S_W)}, 11')
    e(f's_add_u32 {s(S_VXO)}, {s(S_T0)}, {s(S_SH13)}')
    e(f's_add_u32 {s(S_WRM)}, {s(S_VXO)}, {WS_KX + 32 * 8192}')
    e(f's_add_u32 {s(S_VXO)}, {s(S_VXO)}, {WS_VXT}')
    e(f's_add_u32 {s(S_KXM)}, {s(S_T0)}, {L_KX}')
    e(f's_lshr_b32 {s(S_T0)}, {s(S_W)}, 1')
    e(f's_lshl_b32 {s(S_T0)}, {s(S_T0)}, 12')
    e(f's_and_b32 {s(S_T1)}, {s(S_W)}, 1')
    e(f's_lshl_b32 {s(S_T1)}, {s(S_T1)}, 7')
    e(f's_add_u32 {s(S_KXW)}, {s(S_T0)}, {s(S_T1)}')
    e(f's_add_u32 {s(S_KXW)}, {s(S_KXW)}, {s(S_SH13)}')
    e(f's_add_u32 {s(S_KXW)}, {s(S_KXW)}, {WS_KX}')

    def kx_items():
        return [
            lambda: e(f's_mov_b32 m0, {s(S_KXM)}'),
            lambda: e(f's_add_u32 {s(S_T0)}, {s(S_KXW)}, 64'),
            lambda: e(f'buffer_load_dwordx4 {v(V_KXG)}, {s(S_WS, 4)}, {s(S_KXW)} offen {ldfl} lds', tag='kx'),
            lambda: e(f's_add_u32 m0, {s(S_KXM)}, 1024'),
            lambda: e(f's_add_u32 {s(S_KXW)}, {s(S_KXW)}, {32 * 8192}'),
            lambda: e(f'buffer_load_dwordx4 {v(V_KXG)}, {s(S_WS, 4)}, {s(S_T0)} offen {ldfl} lds', tag='kx'),
            lambda: e(f's_add_u32 m0, {s(S_KXM)}, 8192'),
            lambda: e(f's_nop 0'),
            lambda: e(f'buffer_load_dwordx4 {v(V_LANE16)}, {s(S_WS, 4)}, {s(S_VXO)} offen {ldfl} lds', tag='kx'),
            lambda: e(f'buffer_load_dwordx4 {v(V_LANE16)}, {s(S_WS, 4)}, {s(S_VXO)} offen offset:1024 {ldfl} lds', tag='kx'),
            lambda: e(f's_add_u32 {s(S_VXO)}, {s(S_VXO)}, {32 * 8192}'),
        ]

    def kv_wait(lab, t1):
        e(f's_cmp_ge_u32 {s(S_KVOK)}, {s(S_T2)}')
        e(f's_cbranch_scc1 {lab}_ok')
        e.cond_begin()
        e(f's_mov_b32 {s(S_T3)}, {WS_CTR + C_KV * 128}')
        e.label(f'{lab}_spin')
        e(f'buffer_load_dword {v(t1)}, {v(V_WA)}, {s(S_WS, 4)}, {s(S_T3)} offen sc1')
        e('s_waitcnt vmcnt(0)')
        e(f'v_cmp_le_u32 vcc, {kvt}, {v(t1)}')
        e(f's_and_b32 {s(S_KVOK)}, vcc_lo, 0xffff')
        e(f's_ff0_i32_b32 {s(S_KVOK)}, {s(S_KVOK)}')
        e(f's_cmp_ge_u32 {s(S_KVOK)}, {s(S_T2)}')
        e(f's_cbranch_scc0 {lab}_spin')
        e.cond_end()
        e.label(f'{lab}_ok')

    def claim(b, n):
        for i in range(n):
            assert (b + i) in pool.free_, ('claim', b, n)
            pool.free_.remove(b + i)

    ACC = pool.must(24)
    VACC = ACC + 16
    V_EX = V_L8
    if 'rt' in dbg:
        e('s_memrealtime s[94:95]')
        e('s_waitcnt lgkmcnt(0)')
    init_wait(f'{name}_ibw', ACC)
    e(f's_lshl_b32 {s(S_MBL2)}, {s(S_UNIT)}, 7')
    e(f's_cmp_ge_u32 {s(S_UNIT)}, 64')
    e(f's_cselect_b32 {s(S_T0)}, 8192, 0')
    e(f's_add_u32 {s(S_MBL2)}, {s(S_MBL2)}, {s(S_T0)}')
    e(f's_add_u32 {s(S_MBL2)}, {s(S_MBL2)}, {s(S_NR)}')
    e(f's_cmp_ge_u32 {s(S_UNIT)}, 80')
    e(f's_cselect_b32 {s(S_MBL2)}, 0x40000000, {s(S_MBL2)}')
    e(f's_cmp_lt_u32 {s(S_UNIT)}, {8 * NH1 if defer else 80}')
    e(f's_cselect_b32 {s(S_MBE0)}, {s(S_MBL2)}, 0x40000000')
    e(f's_cselect_b32 {s(S_MBD0)}, 0x40000000, {s(S_MBL2)}')
    e(f's_add_u32 {s(S_MBN2)}, {s(S_MBE0)}, 32768')
    e(f's_mov_b32 {s(S_MBD2)}, 0x40000000')
    e(f's_add_u32 {s(S_MBR2)}, {s(S_MBL2)}, 65536')
    e(f'buffer_load_dword {v(ACC)}, {v(ACC + 2)}, {s(S_DBG, 4)}, 0 offen offset:8 sc1')
    e('s_waitcnt vmcnt(0)')
    e(f'v_readfirstlane_b32 {s(S_MODE)}, {v(ACC)}')
    e(f's_sub_u32 {s(S_T0)}, {s(S_MODE)}, 1')
    e(f's_and_b32 {s(S_MODE)}, {s(S_MODE)}, {s(S_T0)}')
    if 'slow' in dbg:
        e(f's_mov_b32 {s(S_MODE)}, 1')
    if mega:
        e(f's_mov_b32 {s(S_KVOK)}, 0')
        e(f's_mov_b32 {s(S_T2)}, 1')
        kv_wait(f'{name}_kv0', ACC)
    pre_slots = [sl for sl in order if place[sl][0] == 'lds'][:npre]
    PRE = [pool.alloc(8, 8, top=True) for _ in pre_slots]

    def pre_load():
        for sl, b in zip(pre_slots, PRE):
            loc = place[sl][1] * 2048
            e(f'ds_read_b128 {v(b, 4)}, {v(V_LDSW)} offset:{loc}')
            e(f'ds_read_b128 {v(b + 4, 4)}, {v(V_LDSW)} offset:{loc + 1024}')
    pre_load()
    for it in kx_items():
        it()
    e('s_waitcnt vmcnt(0) lgkmcnt(0)')
    e.vm = []
    e.lg = []
    if 'rt' in dbg:
        e('s_memrealtime s[98:99]')
        e('s_waitcnt lgkmcnt(0)')
    if 'tot' in dbg:
        e('s_memtime s[96:97]')
        e('s_waitcnt lgkmcnt(0)')
    if stamps:
        stamp_init()
    if slow:
        e(f's_cmp_lg_u32 {s(S_MODE)}, 0')
        e(f's_cbranch_scc1 {name}_slow')

    def body(sc, L):
        stamp_i = [0]
        call_i = [0]

        def stamp():
            call_i[0] += 1
            if stamps and (call_i[0] - 1) in stsel:
                e(f's_memtime {s(S_STAMP + 2 * stamp_i[0], 2)}')
                stamp_i[0] += 1

        e.label(L)
        e.hist = []
        e.vm = []
        e.lg = []
        stamp()
        G0, GM = ACC, ACC + 12
        e(f'v_add_u32 {v(GM + 1)}, {s(S_GOF)}, {v(V_LANE16)}')
        e('s_barrier')
        if adel:
            e(f's_sleep {adel}')
        e.label(f'{L}_pollA')
        e.hist = []
        wd()
        if stamps:
            e('s_add_u32 s27, s27, 0x10000')
        for i in range(3):
            e(f'buffer_load_dwordx4 {v(G0 + 4 * i, 4)}, {v(V_LANE16)}, {s(S_WS, 4)}, {s(S_MBP)} offen offset:{(0, 1024, 1536)[i]} sc1')
        for i in range(3):
            e(f's_waitcnt vmcnt({2 - i})')
            e(f'ds_write_b128 {v(GM + 1)}, {v(G0 + 4 * i, 4)} offset:{(0, 1024, 1536)[i]}')
        e(f'v_max3_u32 {v(GM)}, {v(G0)}, {v(G0 + 4)}, {v(G0 + 8)}')
        e(f'v_cmp_eq_u32 vcc, -1, {v(GM)}')
        e('s_mov_b64 exec, vcc')
        e(f's_cbranch_execnz {L}_pollA')
        e('s_mov_b64 exec, -1')
        e('s_waitcnt lgkmcnt(0)')
        e.label(f'{L}_gd')
        e('s_barrier')
        e.vm = []
        e.lg = []
        e.hist = []
        stamp()
        tl(0)
        pool.free(VACC, 8)

        loaded = {sl: b for sl, b in zip(pre_slots, PRE)}
        lds_pending = [sl for sl in order if place[sl][0] == 'lds' and sl not in loaded]
        st = dict(reserve=8, aflim=10)

        def pump_lds(cur_idx, force=False):
            while lds_pending and order.index(lds_pending[0]) <= cur_idx + la_lds:
                need = force and order.index(lds_pending[0]) <= cur_idx
                b = pool.alloc(8, 8, top=True, reserve=0 if need else st['reserve'])
                if b is None:
                    assert not need, 'no buffer for lds slot'
                    return
                lead = order.index(lds_pending[0]) - cur_idx
                if lead < 4 and cur_idx != NA:
                    print('; WARNING short lds lead', order.index(lds_pending[0]), lead)
                sl = lds_pending.pop(0)
                loc = place[sl][1] * 2048
                e(f'ds_read_b128 {v(b, 4)}, {v(V_LDSW)} offset:{loc}', tag=('lw', sl))
                e(f'ds_read_b128 {v(b + 4, 4)}, {v(V_LDSW)} offset:{loc + 1024}', tag=('lw', sl))
                loaded[sl] = b

        def smf(acc, af, sl):
            idx = order.index(sl)
            kind, loc = place[sl]
            if kind == 'reg':
                b = loc
            else:
                if sl not in loaded:
                    pump_lds(idx, True)
                b = loaded[sl]
                e.wait_lg(('lw', sl))
            e(f'v_smfmac_f32_16x16x64_bf16 {v(acc, 4)}, {v(af, 4)}, {u(b, 8)}, {v(V_IDX)}')
            if kind != 'reg':
                pool.free(b, 8)
            pump_lds(idx + 1)

        AF = {}
        afpos = [0]
        first_use = [min(i for i, o in enumerate(order[:40]) if o[0][1] == t) for t in range(10)]

        def af_pump(i, lead=None):
            while afpos[0] < st['aflim'] and first_use[afpos[0]] - i <= (lead or afl):
                k = afpos[0]
                b = pool.alloc(4)
                if b is None:
                    assert first_use[k] - i > 1, 'AF starved'
                    return
                afpos[0] += 1
                AF[k] = b
                e(f'ds_read_b64_tr_b16 {v(b, 2)}, {v(V_AF)} offset:{1024 * k}', tag=('af', k))
                e(f'ds_read_b64_tr_b16 {v(b + 2, 2)}, {v(V_AF)} offset:{1024 * k + 512}', tag=('af', k))

        af_pump(0)
        for j in range(0, 16, 2):
            e(f'v_mov_b64 {v(ACC + j, 2)}, 0')
        accof = {'q': 0, 'k': 8, 'v': 16}
        waited = set()

        def mk(i, sl):
            (m, t), tau = sl
            last = not any(o[0][1] == t for o in order[i + 1:40])

            def f():
                if t not in waited:
                    e.wait_lg(('af', t))
                    waited.add(t)
                smf(ACC + accof[m] + 4 * tau, AF[t], sl)
                if last:
                    pool.free(AF[t], 4)
                af_pump(i + 1)
            return f
        mf = [mk(i, sl) for i, sl in enumerate(order[:40])]
        run(mf[:wat], [], 0)

        def warm_items(pos):
            it = []
            for p_, what in warm:
                if p_ != pos:
                    continue
                if what:
                    it.append(lambda: e(f's_add_u32 {s(S_T0)}, {s(S_WRM)}, {WS_VXT - WS_KX}'))
                it.append(lambda what=what: e(f'buffer_load_dword {v(V_WT)}, {v(V_WA)}, {s(S_WS, 4)}, {s(S_T0 if what else S_WRM)} offen', tag='warm'))
            return it
        cold = [lambda: e(f'buffer_store_dword {v(V_EX)}, {v(V_MBST)}, {s(S_WS, 4)}, {s(S_MBD2)} offen sc1'),
                lambda: e(f'buffer_store_dword {v(V_M1)}, {v(V_MBST)}, {s(S_WS, 4)}, {s(S_MBR2)} offen sc1')]
        if not (defer and nvl):
            cold = cold[1:]
        if mega:
            e(f's_add_u32 {s(S_T2)}, {s(S_STEP)}, 5')
            e(f's_lshr_b32 {s(S_T2)}, {s(S_T2)}, 2')
            e(f's_min_u32 {s(S_T2)}, {s(S_T2)}, 16')
            kv_wait(f'{L}_kv', V_WT)
        run(mf[wat:wat2], warm_items('a') + cold, 2)
        run(mf[wat2:NQE - 4], warm_items('a2'), 2)
        st['reserve'] = 99
        SM = pool.alloc(8, 8, top=True)
        ZQ = SM
        ZVF = SM + 4
        kxb, sbuf = {}, {}

        def kx_read(f_, rsv=0):
            def g_():
                b = pool.alloc(4, reserve=rsv)
                if b is None:
                    return
                kxb[f_] = b
                e(f'ds_read_b128 {v(b, 4)}, {v(V_LANE16)} offset:{L_KX + f_ * 1024}', tag=('kx', f_))
            return g_

        def qm_read(kind, uu):
            def g_():
                b = sbuf[(kind, uu)] = pool.must(4)
                base = 0 if kind == 'q' else 2048
                for m in range(2):
                    e(f'ds_read_b64_tr_b16 {v(b + 2 * m, 2)}, {v(V_QKR)} offset:{base + uu * 512 + m * 256}', tag=('si', kind, uu))
            return g_

        def v_load():
            tl(1)
            e(f'buffer_load_dwordx4 {v(ZVF, 4)}, {v(V_LANE16)}, {s(S_WS, 4)}, {s(S_VB)} offen sc1', tag='vm')
        run(mf[NQE - 4:NQE], [], 1)
        late = mf[NQE:40]
        qf = fold(ACC, ZQ) + fold(ACC + 4, ZQ + 1) + [
            lambda: e(f'ds_write2st64_b32 {v(V_QKW)}, {v(ZQ)}, {v(ZQ + 1)} offset0:0 offset1:1', tag='qw')]
        kf = fold(ACC + 8, ZQ + 2) + fold(ACC + 12, ZQ + 3) + [
            lambda: e(f'ds_write2st64_b32 {v(V_QKW)}, {v(ZQ + 2)}, {v(ZQ + 3)} offset0:8 offset1:9', tag='kw')]
        run(late[:1], [kx_read(0, 4), kx_read(4, 4)], 2)
        run(late[1:3], qf, 3)
        run(late[3:6], [kx_read(1, 16), kx_read(5, 16), kx_read(2, 16)], 1)
        stamp()
        e.wait_lg('qw')
        e('s_barrier')
        pool.free(ACC, 8)
        SX = ACC
        claim(SX, 8)
        todo = []
        for uu in range(4):
            todo += [('q', uu)] + [('x', f_) for f_ in (uu, uu + 4) if f_ not in kxb]

        def try4():
            b = pool.alloc(4)
            if b is None:
                return False
            pool.free(b, 4)
            return True

        def s_fill2(maxn=99):
            n = 0
            while todo and n < maxn and try4():
                kind, x = todo.pop(0)
                if kind == 'x':
                    kx_read(x)()
                else:
                    qm_read(kind, x)()
                n += 1
        s_fill2(1)
        run(late[6:], [lambda: s_fill2(2)] * 4, 1)
        stamp()

        def sx(uu, ti):
            def f():
                f_ = uu + 4 * ti
                assert ('q', uu) in sbuf and f_ in kxb, 'S starved'
                e.wait_lg(('si', 'q', uu))
                e.wait_lg(('kx', f_))
                cin = '0' if uu == 0 else v(SX + 4 * ti, 4)
                e(f'v_mfma_f32_16x16x32_bf16 {v(SX + 4 * ti, 4)}, {v(kxb[f_], 4)}, {v(sbuf[("q", uu)], 4)}, {cin}')
                pool.free(kxb[f_], 4)
                s_fill2()
            return f
        sxl = [sx(uu, ti) for uu in range(4) for ti in range(2)]
        run(sxl[:2], [], 0)
        run([], kf, 0)
        run(sxl[2:4], [], 0)
        if v_at == 0:
            v_load()
        e.wait_lg('kw')
        e('s_barrier')
        pool.free(ACC + 8, 8)
        C0 = ACC + 8
        claim(C0, 4)
        todo_m = [('m', uu) for uu in range(4)]
        todo[:] = todo_m[:1] + todo + todo_m[1:]
        s_fill2()
        run(sxl[4:], [], 0)
        if v_at == 1:
            v_load()
        M = SM
        for uu in range(4):
            s_fill2()
            e.wait_lg(('si', 'm', uu))
            cin = '0' if uu == 0 else v(C0, 4)
            e(f'v_mfma_f32_16x16x32_bf16 {v(C0, 4)}, {v(sbuf[("m", uu)], 4)}, {v(sbuf[("q", uu)], 4)}, {cin}')
            pool.free(sbuf[('m', uu)], 4)
            pool.free(sbuf[('q', uu)], 4)
        assert not todo
        VA_ = pool.must(8)
        OACC = [pool.must(8) for _ in range(noa)]
        AFV = {}
        for t in range(NH1, 10):
            b = AFV[t] = OACC[(t - NH1) >> 1] + 4 * ((t - NH1) & 1)
            e(f'ds_read_b64_tr_b16 {v(b, 2)}, {v(V_AF)} offset:{1024 * t}', tag=('afv', t))
            e(f'ds_read_b64_tr_b16 {v(b + 2, 2)}, {v(V_AF)} offset:{1024 * t + 512}', tag=('afv', t))
        for j in range(0, 8 if nvl else 0, 2):
            e(f'v_mov_b64 {v(VA_ + j, 2)}, 0')

        def mkv(t, tau):
            def f():
                if tau == 0:
                    e.wait_lg(('afv', t))
                smf(VA_ + 4 * tau, AFV[t], (('v', t), tau))
            return f
        vmf = [mkv(t, tau) for t in range(NH1, 10) for tau in range(2)]
        P = pool.must(4)
        OA = pool.must(12)
        VX = pool.must(8)
        e(f'v_add_u32 {v(VX)}, {s(S_KXM)}, {v(V_LANE16)}')
        if v_at == 2:
            v_load()
        stamp()
        sm = []

        def V(x):
            sm.append(lambda: e(x))
        V(f'v_max3_f32 {v(M)}, {v(SX)}, {v(SX + 1)}, {v(SX + 2)}')
        V(f'v_max3_f32 {v(M + 1)}, {v(SX + 3)}, {v(SX + 4)}, {v(SX + 5)}')
        V(f'v_max3_f32 {v(M)}, {v(M)}, {v(SX + 6)}, {v(SX + 7)}')
        V(f'v_cndmask_b32 {v(C0)}, {v(C0 + 2)}, {v(C0)}, {s(S_MASKLO, 2)}')
        V(f'v_cndmask_b32 {v(C0 + 1)}, {v(C0 + 3)}, {v(C0 + 1)}, {s(S_MASKLO, 2)}')
        V(f'v_max3_f32 {v(M + 1)}, {v(M + 1)}, {v(C0)}, {v(C0 + 1)}')
        V(f'v_max_f32 {v(M)}, {v(M)}, {v(M + 1)}')
        V(f'v_max_f32 {v(M + 1)}, {v(M)}, {v(M + 1)}')
        V(f'v_permlane32_swap_b32 {v(M)}, {v(M + 1)}')
        V(f'v_max_f32 {v(M + 2)}, {v(M)}, {v(M + 1)}')
        V(f'v_max_f32 {v(M + 1)}, {v(M)}, {v(M + 1)}')
        V(f'v_permlane16_swap_b32 {v(M + 2)}, {v(M + 1)}')
        V(f'v_max_f32 {v(M)}, {v(M + 2)}, {v(M + 1)}')
        V(f'v_mul_f32 {v(M)}, {s(S_C1)}, {v(M)}')
        bub = {8: 1, 9: 1, 11: 1, 12: 1}
        for i, f in enumerate(sm):
            for _ in range(bub.get(i, 0)):
                if vmf:
                    vmf.pop(0)()
            f()
        if v_at == 3:
            v_load()
        e(f'ds_read_b128 {v(VX + 4, 4)}, {v(VX)} offset:{8192 + 1024}', tag='vx')
        e(f'ds_read_b128 {v(VX, 4)}, {v(VX)} offset:8192', tag='vx')
        for j in range(0, 10, 2):
            e(f'v_pk_fma_f32 {v(SX + j, 2)}, {v(SX + j, 2)}, {s(S_C1, 2)}, {v(M, 2)} op_sel_hi:[1,1,0] neg_lo:[0,0,1] neg_hi:[0,0,1]')
            if vmf:
                vmf.pop(0)()
        while vmf:
            vmf.pop(0)()
        zl = [(lambda b=b, j=j: e(f'v_mov_b64 {v(b + j, 2)}, 0')) for b in OACC for j in range(0, 8, 2)]

        def z(n=1):
            for _ in range(n):
                if zl:
                    zl.pop(0)()
        for j in range(8):
            e(f'v_exp_f32 {v(SX + j)}, {v(SX + j)}')
        for j in range(4):
            e(f'v_cvt_pk_bf16_f32 {v(P + j)}, {v(SX + 2 * j)}, {v(SX + 2 * j + 1)}')
        e.wait_lg('vx')
        e(f'v_exp_f32 {v(C0)}, {v(C0)}')
        e(f'v_mfma_f32_16x16x32_bf16 {v(OA + 8, 4)}, {v(V_ONES, 4)}, {v(P, 4)}, 0')
        e(f'v_exp_f32 {v(C0 + 1)}, {v(C0 + 1)}')
        e(f'v_mfma_f32_16x16x32_bf16 {v(OA, 4)}, {v(VX, 4)}, {v(P, 4)}, 0')
        e(f'v_cvt_pk_bf16_f32 {v(V_PM)}, {v(C0)}, {v(C0 + 1)}')
        e(f'v_cvt_pk_bf16_f32 {v(V_PM + 3)}, {v(C0)}, {v(C0 + 1)}')
        e(f'v_mfma_f32_16x16x32_bf16 {v(OA + 4, 4)}, {v(VX + 4, 4)}, {v(P, 4)}, 0')
        if nvl:
            e(f'v_pk_add_f32 {v(VA_, 2)}, {v(VA_, 2)}, {v(VA_ + 2, 2)}')
            e(f'v_pk_add_f32 {v(VA_ + 4, 2)}, {v(VA_ + 4, 2)}, {v(VA_ + 6, 2)}')
        e(f'v_mfma_f32_16x16x16_bf16 {v(OA + 8, 4)}, {v(V_ONES, 2)}, {v(V_PM, 2)}, {v(OA + 8, 4)}')
        z(4)
        if 'nov' not in dbg:
            e.wait_vm('vm')
            e(f'v_cmp_eq_u32 vcc, -1, {v(ZVF)}')
            e(f's_cbranch_vccnz {L}_fixv')
            e.label(f'{L}_pv2')
        ZV = VA_ + 2
        if nvl:
            e(f'v_pk_add_f32 {v(ZVF, 2)}, {v(ZVF, 2)}, {v(VA_, 2)}')
            e(f'v_pk_add_f32 {v(ZVF + 2, 2)}, {v(ZVF + 2, 2)}, {v(VA_ + 4, 2)}')
        e(f'v_cvt_pk_bf16_f32 {v(ZV)}, {v(ZVF)}, {v(ZVF + 1)}')
        e(f'v_cvt_pk_bf16_f32 {v(ZV + 1)}, {v(ZVF + 2)}, {v(ZVF + 3)}')
        e(f'v_rcp_f32 {v(M)}, {v(OA + 8)}')
        z(1)
        e(f'v_mfma_f32_16x16x16_bf16 {v(OA, 4)}, {v(ZV, 2)}, {v(V_PM, 2)}, {v(OA, 4)}')
        e(f'v_mfma_f32_16x16x16_bf16 {v(OA + 4, 4)}, {v(ZV, 2)}, {v(V_PM + 2, 2)}, {v(OA + 4, 4)}')
        pool.free(SX, 8)
        pool.free(VX, 8)
        pool.free(C0, 4)
        pool.free(VA_, 8)
        OF = pool.must(8)
        z(99)
        st['reserve'] = 0
        pump_lds(NA)
        for j in range(0, 8, 2):
            e(f'v_pk_mul_f32 {v(OA + j, 2)}, {v(OA + j, 2)}, {v(M, 2)} op_sel_hi:[1,0]')
        for j in range(4):
            e(f'v_cvt_pk_bf16_f32 {v(P + j)}, {v(OA + 2 * j)}, {v(OA + 2 * j + 1)}')
        e(f'ds_write_b128 {v(V_OW)}, {v(P, 4)}', tag='ow')
        pool.free(OA, 12)
        for x in [f's_add_u32 {s(S_WRM)}, {s(S_WRM)}, {32 * 8192}',
                  f's_add_u32 {s(S_MSL)}, {s(S_MSL)}, {MB_STRIDE}', f's_and_b32 {s(S_MSL)}, {s(S_MSL)}, {3 * MB_STRIDE}',
                  f's_add_u32 {s(S_T0)}, {s(S_MSL)}, {WS_MB}',
                  f's_add_u32 {s(S_MBP)}, {s(S_T0)}, {s(S_GOF)}',
                  f's_lshl_b32 {s(S_T0)}, {s(S_MSL)}, 4', f's_add_u32 {s(S_VB)}, {s(S_VB0)}, {s(S_T0)}',
                  f's_add_u32 {s(S_STEP)}, {s(S_STEP)}, 1']:
            e(x)
        e.wait_lg('ow')
        e('s_barrier')
        pool.free(P, 4)
        e(f'ds_read_b128 {v(OF, 4)}, {v(V_OR)}', tag='of0')
        e(f'ds_read_b128 {v(OF + 4, 4)}, {v(V_OR)} offset:1024', tag='of1')
        pump_lds(NA)
        kxi = kx_items()
        for f in kxi[:6]:
            f()
        stamp()
        ZO = [SM, SM + 2, SM + 4]

        def finish(p):
            ac = OACC[p % noa]
            zz = ZO[p % 3]
            it = fold(ac, zz) + fold(ac + 4, zz + 1)
            if p + noa < 5:
                it += [(lambda j=j: e(f'v_mov_b64 {v(ac + j, 2)}, 0')) for j in range(0, 4, 2)]
            it += [lambda: e(f'v_permlane16_swap_b32 {v(zz)}, {v(zz + 1)}'),
                   lambda: e(f'buffer_store_dwordx2 {v(zz, 2)}, {v(V_PBST)}, {s(S_WS, 4)}, {s(S_PBST + p)} offen {sc}', tag='pst')]
            if p + noa < 5:
                it += [(lambda j=j: e(f'v_mov_b64 {v(ac + j, 2)}, 0')) for j in range(4, 8, 2)]
            else:
                it += [lambda: pool.free(ac, 8)]
            return it
        sc2 = [f's_lshl_b32 {s(S_T0)}, {s(S_MSL)}, 1',
               f's_add_u32 {s(S_MBN2)}, {s(S_MBE0)}, {s(S_T0)}', f's_add_u32 {s(S_MBD2)}, {s(S_MBD0)}, {s(S_T0)}',
               f's_xor_b32 {s(S_T0)}, {s(S_T0)}, 65536', f's_add_u32 {s(S_MBR2)}, {s(S_MBL2)}, {s(S_T0)}',
               f's_add_u32 {s(S_MBN)}, {s(S_MBL)}, {s(S_MSL)}']
        sc2 = kxi[6:] + [(lambda x=x: e(x)) for x in sc2]
        for p in range(5):
            ac = OACC[p % noa]
            mo = []
            for t in range(2):
                for tau in range(2):
                    def f(t=t, tau=tau):
                        if p == 0 and tau == 0:
                            e.wait_lg(f'of{t}')
                        smf(ac + 4 * tau, OF + 4 * t, (('o', t, p), tau))
                    mo.append(f)
            side = finish(p - 1) if p >= 1 else sc2
            run(mo[:1], [], 0)
            run(mo[1:], side, 3 if p else 4)
        for f in finish(4):
            f()
        stamp()
        tl(3)
        pool.free(OF, 8)
        pool.free(SM, 8)
        assert not lds_pending
        claim(ACC, 24)
        for b in PRE:
            claim(b, 8)
        RB, RA, TM = ACC, VACC, VACC + 4

        def pb_loads():
            for i in range(4):
                e(f'buffer_load_dwordx4 {v(RB + 4 * i, 4)}, {v(V_LANE16)}, {s(S_WS, 4)}, {s(S_PBLD)} offen offset:{1024 * i} sc1', tag=('pb', i))
        if early_poll:
            e(f's_cmp_ge_u32 {s(S_UNIT)}, {early_poll}')
            e(f's_cbranch_scc1 {L}_nep')
            pb_loads()
            pre_load()
            for p in range(5):
                e(f's_xor_b32 {s(S_PBST + p)}, {s(S_PBST + p)}, {PB_STRIDE}')
            e(f's_branch {L}_pk1')
            e.label(f'{L}_nep')
        pre_load()
        for p in range(5):
            e(f's_xor_b32 {s(S_PBST + p)}, {s(S_PBST + p)}, {PB_STRIDE}')
        e(f's_cmp_ge_u32 {s(S_UNIT)}, 80')
        e(f's_cbranch_scc1 {L}_nored')
        if kdel:
            e.nop(kdel)
        e.label(f'{L}_pollK')
        e.hist = []
        wd()
        if stamps:
            e('s_add_u32 s27, s27, 1')
        pb_loads()
        e.label(f'{L}_pk1')
        e.hist = []
        for i in range(4):
            e(f's_waitcnt vmcnt({3 - i})')
            e(f'v_mfma_f32_16x16x32_bf16 {v(RA, 4)}, {v(V_SEL, 4)}, {v(RB + 4 * i, 4)}, {"0" if i == 0 else v(RA, 4)}')
            if i == 2:
                e(f'v_max3_u32 {v(TM)}, {v(RB)}, {v(RB + 4)}, {v(RB + 8)}')
        e(f'v_max_u32 {v(TM)}, {v(TM)}, {v(RB + 12)}')
        e(f'v_mov_b32_dpp {v(TM + 1)}, {v(TM)} quad_perm:[0,0,0,0] row_mask:0xf bank_mask:0xf')
        e(f'v_cmp_eq_u32 vcc, -1, {v(TM + 1)}')
        e('s_mov_b64 exec, vcc')
        e(f's_cbranch_execnz {L}_pollK')
        e('s_mov_b64 exec, -1')
        e.vm = []
        e(f'v_permlane32_swap_b32 {v(RA)}, {v(RA + 2)}')
        e(f'v_permlane32_swap_b32 {v(RA + 1)}, {v(RA + 3)}')
        e(f'v_add_f32_dpp {v(RA)}, {v(RA + 2)}, {v(RA)} row_ror:8 row_mask:0xf bank_mask:0xf')
        e(f'v_add_f32_dpp {v(RA + 1)}, {v(RA + 3)}, {v(RA + 1)} row_ror:8 row_mask:0xf bank_mask:0xf')
        e(f'v_cvt_pk_bf16_f32 {v(V_EX)}, {v(RA)}, {v(RA + 1)}')
        e(f'buffer_store_dword {v(V_EX)}, {v(V_MBST)}, {s(S_WS, 4)}, {s(S_MBN)} offen {sc}')
        e(f'buffer_store_dword {v(V_EX)}, {v(V_MBST)}, {s(S_WS, 4)}, {s(S_MBN2)} offen sc1')
        stamp()
        tl(2)
        e(f'buffer_store_dword {v(V_M1)}, {v(V_MBST)}, {s(S_WS, 4)}, {s(S_MBC)} offen {sc}')
        e(f'buffer_store_dword {v(V_M1)}, {v(V_L64)}, {s(S_WS, 4)}, {s(S_PBLD)} offen {sc}')
        e(f's_xor_b32 {s(S_PBLD)}, {s(S_PBLD)}, {PB_STRIDE}')
        e(f's_mov_b32 {s(S_MBC)}, {s(S_MBN)}')
        e(f's_branch {L}_end')
        e.label(f'{L}_nored')
        if stamps and call_i[0] - 1 in stsel:
            e(f's_memtime {s(S_STAMP + 2 * (stamp_i[0] - 1), 2)}')
        if gdel:
            e(f's_sleep {gdel}')
        e.label(f'{L}_end')
        e.hist = []
        tl_out(0, RB)
        e('s_waitcnt lgkmcnt(0)')
        if stamps:
            stamp()
            stamp_acc(stamp_i[0])
        e(f's_cmp_lg_u32 {s(S_STEP)}, {nsteps - 1}')
        e(f's_cbranch_scc1 {L}')
        e(f's_branch {name}_fin')
        if 'nov' in dbg:
            return
        e.label(f'{L}_fixv')
        wd()
        if stamps:
            e('s_add_u32 s26, s26, 63')
        e(f'buffer_load_dwordx4 {v(ZVF, 4)}, {v(V_LANE16)}, {s(S_WS, 4)}, {s(S_VB)} offen sc1')
        e('s_waitcnt vmcnt(0)')
        e(f'v_cmp_eq_u32 vcc, -1, {v(ZVF)}')
        e(f's_cbranch_vccnz {L}_fixv')
        e(f's_branch {L}_pv2')

    body('', f'{name}_fast')
    if slow:
        body('sc1', f'{name}_slow')
    e.label(f'{name}_fin')
    e.flush_hazards(4)
    e(f'buffer_store_dword {v(V_EX)}, {v(V_MBST)}, {s(S_WS, 4)}, {s(S_MBD2)} offen sc1')
    if stamps:
        stamp_out()
    if 'rt' in dbg or 'tot' in dbg:
        e(f's_cmp_lg_u32 {s(S_W)}, 1')
        e(f's_cbranch_scc1 {name}_exit')
    if 'rt' in dbg:
        e('s_memrealtime s[100:101]')
        e('s_waitcnt lgkmcnt(0)')
        e('v_mov_b32 v40, s96')
        e('v_mov_b32 v41, s98')
        e('v_mov_b32 v42, s100')
        e('v_mov_b32 v43, s94')
        e('v_mov_b32 v44, 0')
        e(f's_lshl_b32 {s(S_T0)}, {s(S_H)}, 6')
        e(f's_add_u32 {s(S_T0)}, {s(S_T0)}, 0x0F800000')
        e(f'buffer_store_dwordx4 v[40:43], v44, {s(S_WS, 4)}, {s(S_T0)} offen')
    if 'tot' in dbg:
        e('s_memtime s[98:99]')
        e('s_waitcnt lgkmcnt(0)')
        e('s_sub_u32 s98, s98, s96')
        e('v_mov_b32 v40, s98')
        e('v_mov_b32 v42, 0')
        e(f's_lshl_b32 {s(S_T0)}, {s(S_H)}, 6')
        e(f's_add_u32 {s(S_T0)}, {s(S_T0)}, 0x0F800000')
        e(f'buffer_store_dword v40, v42, {s(S_WS, 4)}, {s(S_T0)} offen')
    e.label(f'{name}_exit')
    e('s_endpgm')
    print(f'; chain12: n_reg={n_reg} n_lds={n_lds} pool peak={pool.peak} of {pool_end - NPERS}')

    H = f'{name}_helper'
    e.label(H)
    e.hist, e.vm, e.lg = [], [], []
    hunits = [('v', t) for t in range(10)] + [('k', t) for t in range(10)]
    hplace = {}
    r = 128
    for un in hunits:
        for tau in range(2):
            hplace[(un, tau)] = ('reg', r)
            r += 8
    M4 = 24
    for j in range(4):
        e(f'v_mov_b32 {v(M4 + j)}, -1')

    def helper_init():
        e(f's_cmp_lg_u32 {s(S_W)}, 0')
        e(f's_cbranch_scc1 {H}_nocal')
        e(f's_lshl_b32 {s(S_T0)}, {s(S_H)}, 7')
        e(f's_add_u32 {s(S_T0)}, {s(S_T0)}, {s(S_NR)}')
        e(f's_add_u32 s82, {s(S_T0)}, {NR_CAL}')
        e(f's_add_u32 s83, {s(S_T0)}, {NR_CAL + 8192}')
        e('s_mov_b32 s80, -1')
        e('s_mov_b32 s81, -1')
        e(f's_mov_b32 {s(S_T0)}, {ncal}')
        e.label(f'{H}_cal')
        for hf in range(2):
            e('s_memtime s[76:77]')
            e('s_waitcnt lgkmcnt(0)')
            e(f'buffer_store_dword {v(V_M1)}, {v(V_MBST)}, {s(S_WS, 4)}, {s(82 + hf)} offen sc1')
            e('s_waitcnt vmcnt(0)')
            e('s_memtime s[78:79]')
            e('s_waitcnt lgkmcnt(0)')
            e('s_sub_u32 s78, s78, s76')
            e(f's_min_u32 {s(80 + hf)}, {s(80 + hf)}, s78')
        e(f's_sub_u32 {s(S_T0)}, {s(S_T0)}, 1')
        e(f's_cmp_lg_u32 {s(S_T0)}, 0')
        e(f's_cbranch_scc1 {H}_cal')
        e('s_cmp_lt_u32 s81, s80')
        e('s_cselect_b32 s80, 0x10001, 1')
        e.label(f'{H}_nocal')
        e('s_barrier')
        for sl_ in range(4):
            for hf in range(2):
                e(f's_add_u32 {s(S_T0)}, {s(S_VB0)}, {sl_ * 262144 + hf * 8192}')
                e(f's_add_u32 {s(S_T0)}, {s(S_T0)}, {s(S_NR)}')
                e(f'buffer_store_dwordx4 {v(M4, 4)}, {v(V_LANE16)}, {s(S_WS, 4)}, {s(S_T0)} offen sc1')
        init_done(f'{H}_noib', 's80')
    load_weights(hunits, hplace, VT_QKV, 0, helper_init, pre=True)
    e('s_barrier')
    init_wait(f'{H}_ibw', 32)
    if 'nohelp' in dbg:
        e('s_endpgm')
    S_PA, S_PB_, S_PC = 50, 51, 52
    GA, GB, GC, V_KR = V_OR, V_KXG, V_OW, V_QKR
    e(f's_lshl_b32 {s(S_PA)}, {s(S_W)}, 10')
    e(f's_and_b32 {s(S_T0)}, {s(S_W)}, {NH1 - 4 - 1}')
    e(f's_lshl_b32 {s(S_T0)}, {s(S_T0)}, 10')
    e(f's_add_u32 {s(S_PB_)}, {s(S_T0)}, 4096')
    e(f's_and_b32 {s(S_T0)}, {s(S_W)}, {nvl - 1}')
    e(f's_lshl_b32 {s(S_T0)}, {s(S_T0)}, 10')
    e(f's_add_u32 {s(S_PC)}, {s(S_T0)}, {NH1 * 1024}')
    e(f'v_add_u32 {v(GA)}, {s(S_PA)}, {v(V_LANE16)}')
    e(f'v_add_u32 {v(GB)}, {s(S_PB_)}, {v(V_LANE16)}')
    e(f'v_add_u32 {v(GC)}, {s(S_PC)}, {v(V_LANE16)}')
    e(f's_cmp_ge_u32 {s(S_PC)}, 8192')
    e(f's_cselect_b32 {s(S_T0)}, 8192, 0')
    e(f's_add_u32 {s(S_PC)}, {s(S_PC)}, {s(S_T0)}')
    for x in (S_PA, S_PB_, S_PC):
        e(f's_add_u32 {s(x)}, {s(x)}, {s(S_NR)}')
    for i, x in enumerate((S_PA, S_PB_, S_PC)):
        e(f's_mov_b32 {s(S_MBP + i)}, {s(x)}')
    e(f's_lshl_b32 {s(S_T0)}, {s(S_W)}, 9')
    e(f's_add_u32 {s(S_T0)}, {s(S_T0)}, {L_MQ}')
    e(f'v_add_u32 {v(V_KR)}, {s(S_T0)}, {v(V_L8)}')
    e(f's_mov_b32 {s(S_MBR2)}, 0x40000000')
    if segsig is not None:
        e(f's_cmp_eq_u32 {s(S_W)}, 3')
        e(f's_mov_b32 {s(S_SIG)}, {segsig}')
        e(f's_cselect_b32 {s(S_SIG)}, {s(S_SIG)}, 0x40000000')
    G0, GM, ZH, VA, KA, AFH = 32, 40, 44, 48, 56, 64
    if hstamps:
        stamp_init()
    hs = [0]

    def hstamp():
        if hstamps:
            e(f's_memtime {s(S_STAMP + 2 * hs[0], 2)}')
            hs[0] += 1

    def haf(k):
        e(f'ds_read_b64_tr_b16 {v(AFH + 4 * k, 2)}, {v(V_AF)} offset:{1024 * k}', tag=('af', k))
        e(f'ds_read_b64_tr_b16 {v(AFH + 4 * k + 2, 2)}, {v(V_AF)} offset:{1024 * k + 512}', tag=('af', k))

    def hsm(m, t):
        for tau in range(2):
            e(f'v_smfmac_f32_16x16x64_bf16 {v((VA if m == "v" else KA) + 4 * tau, 4)}, {v(AFH + 4 * t, 4)}, {u(hplace[((m, t), tau)][1], 8)}, {v(V_IDX)}')
    L = f'{H}_loop'
    e.label(L)
    e.hist, e.vm, e.lg = [], [], []
    hstamp()
    for j in range(0, 16, 2):
        e(f'v_mov_b64 {v(VA + j, 2)}, 0')
    e.label(f'{L}_poll')
    wd()
    if hstamps:
        e('s_add_u32 s27, s27, 1')
    for i in range(2):
        e(f'buffer_load_dwordx4 {v(G0 + 4 * i, 4)}, {v(V_LANE16)}, {s(S_WS, 4)}, {s(S_MBP + i)} offen sc1')
    e('s_waitcnt vmcnt(0)')
    e(f'v_max_u32 {v(GM)}, {v(G0)}, {v(G0 + 4)}')
    e(f'v_cmp_eq_u32 vcc, -1, {v(GM)}')
    e('s_mov_b64 exec, vcc')
    e(f's_cbranch_execnz {L}_poll')
    e('s_mov_b64 exec, -1')
    e(f'ds_write_b128 {v(GA)}, {v(G0, 4)}')
    e(f'ds_write_b128 {v(GB)}, {v(G0 + 4, 4)}')
    e('s_waitcnt lgkmcnt(0)')
    e('s_barrier')
    e.vm, e.lg = [], []
    hstamp()
    tl(0)
    for k in range(min(NH1, 7)):
        haf(k)
    for t in range(NH1):
        e.wait_lg(('af', t))
        hsm('v', t)
        if t + 7 < NH1:
            haf(t + 7)
    hsm('k', 0)
    e(f'v_pk_add_f32 {v(ZH, 2)}, {v(VA, 2)}, {v(VA + 2, 2)}')
    e(f'v_pk_add_f32 {v(ZH + 2, 2)}, {v(VA + 4, 2)}, {v(VA + 6, 2)}')
    e(f'buffer_store_dwordx4 {v(ZH, 4)}, {v(V_LANE16)}, {s(S_WS, 4)}, {s(S_VB)} offen sc1')
    hstamp()
    tl(1)
    e(f'buffer_store_dwordx4 {v(M4, 4)}, {v(V_LANE16)}, {s(S_WS, 4)}, {s(S_MBR2)} offen sc1')
    e(f's_mov_b32 {s(S_MBR2)}, {s(S_VB)}')
    for t in range(1, NH1):
        hsm('k', t)
    e.label(f'{L}_poll2')
    wd()
    e(f'buffer_load_dwordx4 {v(G0, 4)}, {v(V_LANE16)}, {s(S_WS, 4)}, {s(S_MBP + 2)} offen sc1')
    e('s_waitcnt vmcnt(0)')
    e(f'v_cmp_eq_u32 vcc, -1, {v(G0)}')
    e('s_mov_b64 exec, vcc')
    e(f's_cbranch_execnz {L}_poll2')
    e('s_mov_b64 exec, -1')
    e(f'ds_write_b128 {v(GC)}, {v(G0, 4)}')
    e('s_waitcnt lgkmcnt(0)')
    e('s_barrier')
    e.vm, e.lg = [], []
    tl(2)
    for k in range(NH1, 10):
        haf(k)
    for t in range(NH1, 10):
        e.wait_lg(('af', t))
        hsm('k', t)
    for t in range(NH1, 10):
        hsm('v', t)
    for f in fold(KA, ZH) + fold(KA + 4, ZH + 1):
        f()
    e(f'ds_write2st64_b32 {v(V_QKW)}, {v(ZH)}, {v(ZH + 1)} offset0:0 offset1:1', tag='kw')
    for f in fold(VA, ZH + 2) + fold(VA + 4, ZH + 3):
        f()
    e(f'buffer_store_dwordx2 {v(ZH + 2, 2)}, {v(V_L8)}, {s(S_WS, 4)}, {s(S_VMO)} offen offset:2048 sc1')
    e.wait_lg('kw')
    e('s_barrier')
    e(f'ds_read_b64 {v(ZH, 2)}, {v(V_KR)}')
    e(f's_add_u32 {s(S_STEP)}, {s(S_STEP)}, 1')
    e(f's_add_u32 {s(S_MSL)}, {s(S_MSL)}, {MB_STRIDE}')
    e(f's_and_b32 {s(S_MSL)}, {s(S_MSL)}, {3 * MB_STRIDE}')
    e(f's_lshl_b32 {s(S_T0)}, {s(S_MSL)}, 1')
    for i, x in enumerate((S_PA, S_PB_, S_PC)):
        e(f's_add_u32 {s(S_MBP + i)}, {s(x)}, {s(S_T0)}')
    e(f's_lshl_b32 {s(S_T0)}, {s(S_MSL)}, 4')
    e(f's_add_u32 {s(S_VB)}, {s(S_VB0)}, {s(S_T0)}')
    e('s_waitcnt lgkmcnt(0)')
    e(f'buffer_store_dwordx2 {v(ZH, 2)}, {v(V_L8)}, {s(S_WS, 4)}, {s(S_VMO)} offen sc1')
    e(f's_add_u32 {s(S_VMO)}, {s(S_VMO)}, {32 * 4096}')
    e('s_waitcnt vmcnt(0)')
    e('s_barrier')
    if segsig is not None:
        seg_signal()
    tl(3)
    tl_out(1, G0)
    if hstamps:
        hstamp()
        stamp_acc(hs[0])
    e(f's_cmp_lt_u32 {s(S_STEP)}, {nsteps}')
    e(f's_cbranch_scc1 {L}')
    if hstamps:
        stamp_out()
    e('s_endpgm')


if __name__ == '__main__':
    import argparse
    ap = argparse.ArgumentParser()
    ap.add_argument('--out', default='chain_test.s')
    ap.add_argument('--stamps', action='store_true')
    ap.add_argument('--kw', default='')
    args = ap.parse_args()
    em = Em()
    kw = eval('dict(' + args.kw + ')')
    gen_chain(em, stamps=args.stamps, **kw)
    hdr = '; @launch kernel=chain_kernel grid=(256,1,1) block=(256,1,1) lds=163840\n'
    hdr += '.amdgcn_target "amdgcn-amd-amdhsa--gfx950"\n.text\n.globl chain_kernel\n'
    open(args.out, 'w').write(hdr + em.text() + kd('chain_kernel', 512, 256))
```

```python
from emit import *
from layout import *
from gen_chain import Pool, f32bits, kd

S_WS = 4
S_DBG = 8
S_WQ = 12
S_WK = 16
S_WV = 20
S_WO = 24
S_H = 28
S_W = 29
S_STEP = 30
S_T0, S_T1, S_T2, S_T3 = 31, 32, 33, 34
S_MODE = 35
S_UNIT = 36
S_XCC = 37
S_C1 = 38
S_MASKLO = 40
S_LDSW = 42
S_SH13 = 43
S_MBP = 44
S_MSL = 48
S_M9D = 49
S_PBST = 50
S_MBL = 55
S_MBC = 56
S_MBN = 57
S_KXW = 58
S_KXM = 59
S_PBLD = 60
S_MDST = 61
S_VMO = 62
S_NR = 63
S_VB0, S_VB, S_MBL2, S_GOF2 = 66, 67, 68, 69
S_MBE0, S_MBD0, S_MBD2 = 73, 74, 47
S_GOF = 64
S_MBR2 = 65
S_VXO = 70
S_KMO = 71
S_WRM = 72
S_MBN2 = 75
S_STAMP = 76
S_SIG = 15
S_KVOK = 16

V_LANE16, V_IDX, V_AF, V_QKR, V_LDSW, V_QKW, V_OW, V_OR = range(8)
V_PBST, V_KXG, V_MBST, V_L8, V_WA, V_WT, V_M1, V_L64 = range(8, 16)
V_SEL = 16
V_ONES = 20
V_PM = 24
V_M2 = 26
NPERS = 28

NR_PING, NR_CAL, NR_VB = 8 * 16384, 9 * 16384, 16 * 16384
D_NEAR = 144
D_INIT, D_SLOW = 132, 136

_fj = [0]


def far_jump(e, label, sp):
    _fj[0] += 1
    here = f'Lfj{_fj[0]}'
    e(f's_getpc_b64 {s(sp, 2)}')
    e.label(here)
    e.raw(f'    s_add_u32 {s(sp)}, {s(sp)}, {label}-{here}')
    e.raw(f'    s_addc_u32 {s(sp + 1)}, {s(sp + 1)}, 0')
    e(f's_setpc_b64 {s(sp, 2)}')


def gen_chain(em, name='chain_kernel', mega=None, nmoda=0, pool_end=96, nsteps=64, stamps=False, stsel=(0, 1, 2, 3, 4, 5, 6, 7, 8, 9),
              hstamps=False, la_lds=5, afl=7, nvl=2, npre=4, noa=2, v_at=1, gdel=0, kdel=0, adel=3, nkl=4, wat=2, wat2=20, defer=True,
              warm=(('a', 0), ('a2', 1)), ncal=6, segsig=None, slow=True, early_poll=0, wfl='nt', kvt=32,
              lds_un=(0, 1, 5, -9, -6, -3), dbg='', ldfl='nt'):
    L_MMEM = 0
    L_MQ = 10240
    L_MK = L_MQ + 2048
    L_O = L_MK + 2048
    L_KX = L_O + 2048
    L_VX = L_KX + 8192
    L_WB = L_VX + 8192
    NRING = 8
    WL = NRING * 4096
    assert L_WB + 4 * WL <= 163840
    e = em
    LN = 28
    NH1 = 10 - nvl

    ounits = [('o', t, p) for p in range(5) for t in range(2)]
    uorder = [(m, t) for t in range(10 - nkl) for m in 'qk'] + [(m, t) for m in 'qk' for t in range(10 - nkl, 10)] + [('v', t) for t in range(NH1, 10)]
    NQE = 40 - 2 * nkl
    NA = 2 * len(uorder)
    uorder += ounits
    order = [(un, tau) for un in uorder for tau in range(2)]
    n_reg = (512 - pool_end) // 8
    n_lds = len(order) - n_reg
    assert n_lds % 2 == 0 and n_lds <= 16, n_lds
    lun = sorted(x % len(uorder) for x in lds_un[:n_lds // 2])
    lun = [uorder[i] for i in lun]
    units = [un for un in uorder if un not in lun] + lun
    place = {}
    r = pool_end
    for i, un in enumerate(units):
        for tau in range(2):
            if un in lun:
                place[(un, tau)] = ('lds', 2 * (i % NRING) + tau)
            else:
                place[(un, tau)] = ('reg', r)
                r += 8
    assert r == 512

    em.raw('.p2align 8')
    em.raw(f'.type {name},@function')
    em.label(name)
    e('s_cmp_lt_u32 s2, 256')
    e(f's_cbranch_scc1 {name}_go')
    e('s_endpgm')
    e.label(f'{name}_go')
    if 'rt' in dbg:
        e('s_memrealtime s[96:97]')
    e('s_load_dwordx4 s[48:51], s[0:1], 16')
    e('s_load_dwordx4 s[52:55], s[0:1], 32')
    e('s_load_dwordx4 s[56:59], s[0:1], 112')
    e(f's_getreg_b32 {s(S_XCC)}, hwreg(HW_REG_XCC_ID)')
    e(f's_and_b32 {s(S_XCC)}, {s(S_XCC)}, 15')
    e('v_lshrrev_b32 v20, 6, v0')
    e('v_and_b32 v16, 63, v0')
    e(f'v_readfirstlane_b32 {s(S_W)}, v20')
    e('s_waitcnt lgkmcnt(0)')

    def srd(d, src, size):
        e(f's_mov_b32 {s(d)}, {s(src)}')
        e(f's_and_b32 {s(d + 1)}, {s(src + 1)}, 0xffff')
        e(f's_mov_b32 {s(d + 2)}, {size}')
        e(f's_mov_b32 {s(d + 3)}, 0x20000')
    srd(S_WQ, 48, 5242880)
    srd(S_WK, 50, 5242880)
    srd(S_WV, 52, 5242880)
    srd(S_WO, 54, 5242880)
    srd(S_DBG, 56, 256)
    srd(S_WS, 58, WS_SIZE)

    e(f's_and_b32 {s(S_MODE)}, s2, 7')
    e(f's_lshr_b32 {s(S_H)}, s2, 3')
    e(f's_cmp_lt_u32 {s(S_MODE)}, 2')
    e(f's_cbranch_scc1 {name}_hasrole')
    if mega:
        far_jump(e, mega, 44)
    else:
        e('s_endpgm')
    e.label(f'{name}_hasrole')
    e(f'v_mov_b32 {v(LN)}, v16')

    g, c, rp, cp, g1, g2, sw = 16, 17, 18, 19, 20, 21, 22
    T = 23
    e(f'v_lshrrev_b32 {v(g)}, 4, {v(LN)}')
    e(f'v_and_b32 {v(c)}, 15, {v(LN)}')
    e(f'v_lshrrev_b32 {v(rp)}, 2, {v(c)}')
    e(f'v_and_b32 {v(cp)}, 3, {v(LN)}')
    e(f'v_and_b32 {v(g1)}, 1, {v(g)}')
    e(f'v_lshrrev_b32 {v(g2)}, 1, {v(g)}')
    e(f'v_lshl_add_u32 {v(sw)}, {v(g1)}, 1, {v(g2)}')
    e(f'v_lshlrev_b32 {v(V_LANE16)}, 4, {v(LN)}')
    e(f'v_lshlrev_b32 {v(V_L64)}, 6, {v(LN)}')
    e(f'v_lshlrev_b32 {v(V_WA)}, 7, {v(c)}')
    e(f'v_mov_b32 {v(V_M1)}, -1')
    e(f'v_and_b32 {v(T)}, 2, {v(LN)}')
    e(f'v_cmp_ne_u32 vcc, 0, {v(T)}')
    e(f'v_mov_b32 {v(T + 1)}, 0x4444')
    e(f'v_mov_b32 {v(T + 2)}, 0xeeee')
    e(f'v_cndmask_b32 {v(V_IDX)}, {v(T + 1)}, {v(T + 2)}, vcc')
    e(f'v_lshl_add_u32 {v(T)}, {v(g)}, 2, {v(rp)}')
    e(f'v_lshlrev_b32 {v(T + 1)}, 3, {v(cp)}')
    e(f'v_lshl_add_u32 {v(V_AF)}, {v(T)}, 5, {v(T + 1)}')
    e(f'v_and_b32 {v(T + 2)}, 1, {v(cp)}')
    e(f'v_lshlrev_b32 {v(T + 2)}, 3, {v(T + 2)}')
    e(f'v_lshl_add_u32 {v(V_QKR)}, {v(T)}, 4, {v(T + 2)}')
    e(f'v_add_u32 {v(V_QKR)}, {L_MQ}, {v(V_QKR)}')
    e(f's_lshl_b32 {s(S_T0)}, {s(S_W)}, 5')
    e(f'v_add_u32 {v(T)}, {s(S_T0)}, {v(c)}')
    e(f'v_lshlrev_b32 {v(T + 2)}, 2, {v(sw)}')
    e(f'v_lshl_add_u32 {v(V_QKW)}, {v(T)}, 4, {v(T + 2)}')
    e(f'v_add_u32 {v(V_QKW)}, {L_MQ}, {v(V_QKW)}')
    e(f's_lshl_b32 {s(S_T0)}, {s(S_W)}, 2')
    e(f'v_add_u32 {v(T)}, {s(S_T0)}, {v(g)}')
    e(f'v_and_b32 {v(T + 3)}, 7, {v(LN)}')
    e(f'v_lshl_add_u32 {v(T)}, {v(T)}, 3, {v(T + 3)}')
    e(f'v_lshlrev_b32 {v(V_OW)}, 4, {v(T)}')
    e(f'v_add_u32 {v(V_OW)}, {L_O}, {v(V_OW)}')
    e(f'v_and_b32 {v(T)}, 1, {v(rp)}')
    e(f'v_lshrrev_b32 {v(T + 2)}, 1, {v(rp)}')
    e(f'v_lshl_add_u32 {v(T)}, {v(T)}, 1, {v(T + 2)}')
    e(f'v_and_b32 {v(T + 2)}, 1, {v(LN)}')
    e(f'v_lshl_add_u32 {v(T)}, {v(T)}, 1, {v(T + 2)}')
    e(f'v_lshl_add_u32 {v(T)}, {v(g)}, 3, {v(T)}')
    e(f'v_lshrrev_b32 {v(T + 2)}, 1, {v(cp)}')
    e(f'v_lshl_add_u32 {v(T)}, {v(T + 2)}, 5, {v(T)}')
    e(f'v_lshlrev_b32 {v(V_OR)}, 4, {v(T)}')
    e(f'v_add_u32 {v(V_OR)}, {L_O}, {v(V_OR)}')
    e(f'v_lshl_add_u32 {v(T)}, {v(g1)}, 2, {v(cp)}')
    e(f'v_lshlrev_b32 {v(T)}, 4, {v(T)}')
    e(f'v_lshl_add_u32 {v(T)}, {v(g2)}, 3, {v(T)}')
    e(f'v_lshl_add_u32 {v(V_PBST)}, {v(rp)}, 12, {v(T)}')
    e(f'v_and_b32 {v(T)}, 4, {v(LN)}')
    e(f'v_lshl_add_u32 {v(T)}, {v(sw)}, 3, {v(T)}')
    e(f'v_lshl_add_u32 {v(T)}, {v(cp)}, 5, {v(T)}')
    e(f'v_lshlrev_b32 {v(T + 1)}, 27, {v(c)}')
    e(f'v_and_b32 {v(T + 1)}, 0x40000000, {v(T + 1)}')
    e(f'v_or_b32 {v(V_MBST)}, {v(T)}, {v(T + 1)}')
    e(f'v_lshlrev_b32 {v(V_L8)}, 3, {v(LN)}')
    e(f'v_lshlrev_b32 {v(T)}, 4, {v(g)}')
    e(f'v_lshl_add_u32 {v(V_KXG)}, {v(c)}, 8, {v(T)}')
    e(f's_mul_i32 {s(S_LDSW)}, {s(S_W)}, {WL}')
    e(f's_add_u32 {s(S_LDSW)}, {s(S_LDSW)}, {L_WB}')
    e(f'v_add_u32 {v(V_LDSW)}, {s(S_LDSW)}, {v(V_LANE16)}')
    VG_QKV, VG_O, VT_QKV, VT_O = 28, 29, 30, 31
    e(f'v_lshrrev_b32 {v(T + 2)}, 1, {v(rp)}')
    e(f'v_and_b32 {v(T + 3)}, 1, {v(rp)}')
    e(f'v_lshlrev_b32 {v(T + 1)}, 3, {v(cp)}')
    e(f'v_lshl_add_u32 {v(T + 3)}, {v(g2)}, 2, {v(T + 3)}')
    e(f'v_lshl_add_u32 {v(T + 1)}, {v(T + 3)}, 8, {v(T + 1)}')
    e(f's_lshl_b32 {s(S_T0)}, {s(S_W)}, 6')
    e(f's_add_u32 {s(S_T0)}, {s(S_T0)}, {L_WB}')
    e(f'v_add_u32 {v(T + 1)}, {s(S_T0)}, {v(T + 1)}')
    assert WL == 32768
    e(f'v_lshl_add_u32 {v(T + 4)}, {v(g1)}, 1, {v(T + 2)}')
    e(f'v_lshl_add_u32 {v(VT_QKV)}, {v(T + 4)}, 15, {v(T + 1)}')
    e(f'v_lshl_add_u32 {v(T + 4)}, {v(T + 2)}, 1, {v(g1)}')
    e(f'v_lshl_add_u32 {v(VT_O)}, {v(T + 4)}, 15, {v(T + 1)}')
    e(f'v_lshlrev_b32 {v(T + 1)}, 4, {v(c)}')
    e(f'v_mul_u32_u24 {v(VG_O)}, 1280, {v(g)}')
    e(f'v_add_u32 {v(VG_O)}, {v(VG_O)}, {v(T + 1)}')
    e(f'v_lshl_add_u32 {v(VG_QKV)}, {v(g)}, 13, {v(T + 1)}')
    e(f's_lshl_b32 {s(S_T2)}, {s(S_H)}, 8')
    e(f's_lshl_b32 {s(S_T0)}, {s(S_W)}, 17')
    e(f's_add_u32 {s(S_T2)}, {s(S_T2)}, {s(S_T0)}')
    e(f's_mul_i32 {s(S_T3)}, {s(S_H)}, {128 * 1280}')
    e(f's_mul_i32 {s(S_T0)}, {s(S_W)}, {16 * 1280}')
    e(f's_add_u32 {s(S_T3)}, {s(S_T3)}, {s(S_T0)}')
    e(f's_lshl_b32 {s(S_PBST)}, {s(S_W)}, 14')
    e(f's_lshl_b32 {s(S_T0)}, {s(S_H)}, 7')
    e(f's_add_u32 {s(S_PBST)}, {s(S_PBST)}, {s(S_T0)}')
    e(f's_mov_b32 {s(S_STEP)}, 0')
    e('s_mov_b32 s3, 0')
    e(f's_mov_b32 {s(S_MSL)}, 0')
    e(f's_lshl_b32 {s(S_T1)}, {s(S_H)}, 12')
    e(f's_add_u32 {s(S_KMO)}, {s(S_T1)}, {WS_KM}')
    e(f's_lshl_b32 {s(S_T0)}, {s(S_W)}, 9')
    e(f's_add_u32 {s(S_VMO)}, {s(S_KMO)}, {s(S_T0)}')
    e(f's_add_u32 {s(S_NR)}, {s(S_WS)}, 0x5fffff')
    e(f's_and_b32 {s(S_NR)}, {s(S_NR)}, 0xffe00000')
    e(f's_sub_u32 {s(S_NR)}, {s(S_NR)}, {s(S_WS)}')
    e(f's_lshl_b32 {s(S_T0)}, {s(S_W)}, 10')
    e(f's_lshr_b32 {s(S_T1)}, {s(S_H)}, 1')
    e(f's_lshl_b32 {s(S_T1)}, {s(S_T1)}, 14')
    e(f's_add_u32 {s(S_VB0)}, {s(S_T0)}, {s(S_T1)}')
    e(f's_and_b32 {s(S_T1)}, {s(S_H)}, 1')
    e(f's_lshl_b32 {s(S_T1)}, {s(S_T1)}, 12')
    e(f's_add_u32 {s(S_VB0)}, {s(S_VB0)}, {s(S_T1)}')
    e(f's_add_u32 {s(S_VB0)}, {s(S_VB0)}, {NR_VB}')

    def load_weights(ulist, place_, vt_o, tmpbase, first, pre=False):
        def issue(i):
            un = ulist[i]
            pos = i % NRING
            for q in range(4):
                if un[0] == 'o':
                    _, t, p = un
                    e(f's_add_u32 {s(S_T0)}, {s(S_T3)}, {(64 * t + 4 * q) * 1280 + 256 * p}')
                    srdn, vg = S_WO, VG_O
                else:
                    m, t = un
                    e(f's_add_u32 {s(S_T0)}, {s(S_T2)}, {(64 * t + 4 * q) * 8192}')
                    srdn, vg = {'q': S_WQ, 'k': S_WK, 'v': S_WV}[m], VG_QKV
                e(f's_add_u32 m0, {s(S_LDSW)}, {pos * 4096 + q * 1024}')
                e(f'buffer_load_dwordx4 {v(vg)}, {s(srdn, 4)}, {s(S_T0)} offen {wfl} lds', tag=('dma', i))

        def wback(i):
            if i >= 0 and place_[(ulist[i], 0)][0] == 'lds':
                pos = i % NRING
                assert place_[(ulist[i], 1)][1] == 2 * pos + 1 and i + NRING >= len(ulist)
                for n in range(4):
                    e(f'ds_write_b128 {v(V_LDSW)}, {v(tmpbase + 16 * (i & 1) + 4 * n, 4)} offset:{pos * 4096 + 1024 * n}')

        def process(i):
            un = ulist[i]
            pos = i % NRING
            e.wait_vm(('dma', i))
            e('s_barrier')
            if i >= 1 and i - 1 + NRING < len(ulist):
                issue(i - 1 + NRING)
            wback(i - 1)
            vt = vt_o if un[0] == 'o' else VT_QKV
            for tau in range(2):
                kind, loc = place_[(un, tau)]
                dst = loc if kind == 'reg' else tmpbase + 16 * (i & 1) + 8 * tau
                for n in range(4):
                    off = (8 * (n >> 1) + 2 * (n & 1)) * 256 + 32 * tau
                    e(f'ds_read_b64_tr_b16 {u(dst + 2 * n, 2)}, {v(vt)} offset:{pos * 4096 + off}')
            e.wait_lg()
        n = len(ulist)
        if pre:
            first()
        for i in range(NRING):
            issue(i)
        if not pre:
            first()
        for i in range(n):
            process(i)
        e('s_barrier')
        wback(n - 1)

    def init_done(lab, inc='1'):
        e('s_waitcnt vmcnt(0)')
        e('s_barrier')
        e(f's_cmp_lg_u32 {s(S_W)}, 0')
        e(f's_cbranch_scc1 {lab}')
        e(f'v_mov_b32 v44, {D_INIT}')
        e(f'v_mov_b32 v45, {inc}')
        e('s_mov_b64 exec, 1')
        e(f'buffer_atomic_add v45, v44, {s(S_DBG, 4)}, 0 offen')
        e('s_mov_b64 exec, -1')
        e.label(lab)
        e.vm = []
        e.hist = []

    def init_wait(lab, t):
        e(f'v_mov_b32 {v(t + 2)}, 128')
        e.label(lab)
        wd()
        e('s_sleep 8')
        e(f'buffer_load_dwordx2 {v(t, 2)}, {v(t + 2)}, {s(S_DBG, 4)}, 0 offen sc1')
        e('s_waitcnt vmcnt(0)')
        e(f'v_readfirstlane_b32 {s(S_T0)}, {v(t)}')
        e(f'v_readfirstlane_b32 {s(S_T1)}, {v(t + 1)}')
        e(f's_and_b32 {s(S_T0)}, {s(S_T1)}, 0xffff')
        e(f's_cmp_lt_u32 {s(S_T0)}, 64')
        e(f's_cbranch_scc1 {lab}')
        e(f's_lshr_b32 {s(S_T1)}, {s(S_T1)}, 16')
        if 'diag' in dbg:
            e(f's_and_b32 {s(S_T0)}, s2, 7')
            e(f's_lshl_b32 {s(S_T0)}, {s(S_T0)}, 3')
            e(f's_add_u32 {s(S_T0)}, {s(S_T0)}, 8')
            e(f'v_mov_b32 {v(t)}, {s(S_XCC)}')
            e(f'v_mov_b32 {v(t + 1)}, {s(S_T1)}')
            e(f'v_mov_b32 {v(t + 3)}, {s(S_T0)}')
            e(f'buffer_store_dwordx2 {v(t, 2)}, {v(t + 3)}, {s(S_DBG, 4)}, 0 offen')
            e('s_waitcnt vmcnt(0)')
        e(f's_cmp_ge_u32 {s(S_T1)}, 16')
        e(f's_cselect_b32 {s(S_T0)}, 8192, 0')
        if 'far' in dbg:
            e(f's_xor_b32 {s(S_T0)}, {s(S_T0)}, 8192')
        e(f's_add_u32 {s(S_NR)}, {s(S_NR)}, {s(S_T0)}')
        e(f's_add_u32 {s(S_VB0)}, {s(S_VB0)}, {s(S_NR)}')
        e(f's_mov_b32 {s(S_VB)}, {s(S_VB0)}')
        if nmoda:
            e(f'v_mov_b32 {v(t + 1)}, 0')
            e.label(lab + 'm')
            e(f'buffer_load_dword {v(t)}, {v(t + 1)}, {s(S_DBG, 4)}, 0 offen sc1')
            e('s_waitcnt vmcnt(0)')
            e(f'v_readfirstlane_b32 {s(S_T0)}, {v(t)}')
            e(f's_cmp_lt_u32 {s(S_T0)}, {nmoda}')
            e(f's_cbranch_scc1 {lab}m')

    def signal_block(t0):
        e(f's_lshl_b32 {s(S_T2)}, {s(S_T2)}, 7')
        e(f's_add_u32 {s(S_T2)}, {s(S_T2)}, {WS_CTR + C_CH * 128}')
        e(f'v_mov_b32 {v(t0)}, 1')
        e('s_mov_b64 exec, 1')
        e(f'buffer_atomic_add {v(t0)}, {v(V_LANE16)}, {s(S_WS, 4)}, {s(S_T2)} offen')
        e('s_mov_b64 exec, -1')

    def seg_signal():
        e('s_mov_b64 exec, 1')
        e(f'buffer_atomic_sub {v(V_M1)}, {v(V_LANE16)}, {s(S_WS, 4)}, {s(S_SIG)} offen')
        e('s_mov_b64 exec, -1')
        e(f's_add_u32 {s(S_SIG)}, {s(S_SIG)}, 128')

    def step_signal(L):
        if segsig is not None:
            return
        e(f's_and_b32 {s(S_T2)}, {s(S_STEP)}, 3')
        e(f's_lshl_b32 {s(S_T2)}, {s(S_T2)}, 2')
        e(f's_add_u32 {s(S_T2)}, {s(S_T2)}, {s(S_W)}')
        e(f's_cmp_lg_u32 {s(S_T2)}, 3')
        e(f's_cbranch_scc1 {L}_nosig')
        e(f's_cmp_eq_u32 {s(S_STEP)}, 0')
        e(f's_cbranch_scc1 {L}_nosig')
        e.cond_begin()
        e(f's_lshr_b32 {s(S_T2)}, {s(S_STEP)}, 2')
        e(f's_sub_u32 {s(S_T2)}, {s(S_T2)}, 1')
        signal_block(V_WT)
        e.cond_end()
        e.label(f'{L}_nosig')

    def tl(i):
        if 'tl' in dbg:
            e(f's_memrealtime {s(84 + 2 * i, 2)}')

    def tl_out(role, t):
        if 'tl' in dbg:
            e('s_waitcnt lgkmcnt(0)')
            for i in range(4):
                e(f'v_mov_b32 {v(t + i)}, {s(84 + 2 * i)}')
            e(f's_lshl_b32 {s(S_T0)}, {s(S_H)}, 2')
            e(f's_add_u32 {s(S_T0)}, {s(S_T0)}, {s(S_W)}')
            e(f's_lshl_b32 {s(S_T0)}, {s(S_T0)}, 6')
            e(f's_add_u32 {s(S_T0)}, {s(S_T0)}, {s(S_STEP)}')
            e(f's_lshl_b32 {s(S_T0)}, {s(S_T0)}, 4')
            e(f's_add_u32 {s(S_T0)}, {s(S_T0)}, {0x0F100000 + role * 0x40000}')
            e('s_mov_b64 exec, 1')
            e(f'buffer_store_dwordx4 {v(t, 4)}, {v(V_LANE16)}, {s(S_WS, 4)}, {s(S_T0)} offen')
            e('s_mov_b64 exec, -1')
            e.nop(2)

    def wd():
        if 'wd' in dbg:
            e('s_add_u32 s3, s3, 1')
            e('s_cmp_gt_u32 s3, 0x40000')
            _fj[0] += 1
            e(f's_cbranch_scc0 Lwd{_fj[0]}')
            e('s_endpgm')
            e.label(f'Lwd{_fj[0]}')

    def run(mf, side, ratio=2):
        side = list(side)
        for f in mf:
            f()
            for _ in range(ratio):
                if side:
                    side.pop(0)()
        for f in side:
            f()

    def fold(acc, dst):
        return [lambda: e(f'v_pk_add_f32 {v(acc, 2)}, {v(acc, 2)}, {v(acc + 2, 2)}'),
                lambda: e(f'v_cvt_pk_bf16_f32 {v(dst)}, {v(acc)}, {v(acc + 1)}')]

    def stamp_init():
        for i in range(17, 28):
            e(f's_mov_b32 {s(i)}, 0')
        e('s_memtime s[100:101]')
        e('s_waitcnt lgkmcnt(0)')
        for i in range(10):
            e(f's_mov_b32 {s(S_STAMP + 2 * i)}, s100')

    def stamp_acc(n):
        e('s_waitcnt lgkmcnt(0)')
        e(f's_sub_u32 {s(S_T0)}, {s(S_STAMP)}, s100')
        e(f's_add_u32 s17, s17, {s(S_T0)}')
        for i in range(n - 1):
            e(f's_sub_u32 {s(S_T0)}, {s(S_STAMP + 2 * i + 2)}, {s(S_STAMP + 2 * i)}')
            e(f's_add_u32 {s(18 + i)}, {s(18 + i)}, {s(S_T0)}')
        e(f's_mov_b32 s100, {s(S_STAMP + 2 * (n - 1))}')

    def stamp_out():
        e('v_mov_b32 v40, 0')
        for i in range(11):
            e(f'v_writelane_b32 v40, {s(17 + i)}, {i}')
        e(f'v_lshrrev_b32 v41, 2, {v(V_LANE16)}')
        e(f's_lshl_b32 {s(S_T0)}, {s(S_H)}, 2')
        e(f's_add_u32 {s(S_T0)}, {s(S_T0)}, {s(S_W)}')
        e(f's_lshl_b32 {s(S_T0)}, {s(S_T0)}, 8')
        e(f's_add_u32 {s(S_T0)}, {s(S_T0)}, 0x0F000000')
        e(f'buffer_store_dword v40, v41, {s(S_WS, 4)}, {s(S_T0)} offen')

    e(f's_cmp_eq_u32 {s(S_MODE)}, 0')
    e(f's_cbranch_scc1 {name}_chain')
    far_jump(e, f'{name}_helper', 44)
    e.label(f'{name}_chain')

    pool = Pool(NPERS, pool_end)
    cc = f32bits((128 ** -0.5) * 1.4426950408889634)
    e(f's_mov_b32 {s(S_C1)}, {cc:#x}')
    e(f's_mov_b32 {s(S_C1 + 1)}, {cc:#x}')
    e(f's_mov_b32 {s(S_MASKLO)}, -1')
    e(f's_mov_b32 {s(S_MASKLO + 1)}, 0')
    e(f's_lshl_b32 {s(S_T0)}, {s(S_H)}, 1')
    e(f's_add_u32 {s(S_T0)}, {s(S_T0)}, {s(S_W)}')
    e(f's_add_u32 {s(S_UNIT)}, {s(S_T0)}, 16')
    e(f's_cmp_lt_u32 {s(S_H)}, 16')
    e(f's_cselect_b32 {s(S_T0)}, {s(S_H)}, 255')
    e(f's_cmp_eq_u32 {s(S_W)}, 2')
    e(f's_cselect_b32 {s(S_UNIT)}, {s(S_T0)}, {s(S_UNIT)}')
    e(f's_cmp_eq_u32 {s(S_W)}, 3')
    e(f's_cselect_b32 {s(S_UNIT)}, 255, {s(S_UNIT)}')
    e(f's_mul_i32 {s(S_GOF)}, {s(S_W)}, 2560')

    def chain_init():
        e('s_load_dwordx2 s[76:77], s[0:1], 8')
        for j in range(4):
            e(f'v_mov_b32 {v(40 + j)}, -1')
        e(f's_lshl_b32 {s(S_T0)}, {s(S_H)}, 2')
        e(f's_add_u32 {s(S_T0)}, {s(S_T0)}, {s(S_W)}')
        e(f's_mul_i32 {s(S_T1)}, {s(S_T0)}, 2560')
        for sl_ in range(2):
            e(f's_add_u32 s78, {s(S_T1)}, {WS_PB + sl_ * PB_STRIDE}')
            for i in range(3):
                e(f'buffer_store_dwordx4 v[40:43], {v(V_LANE16)}, {s(S_WS, 4)}, s78 offen offset:{1024 * i} sc1')
        e(f's_lshl_b32 s78, {s(S_T0)}, 10')
        e(f's_add_u32 s79, s78, {WS_MB + MB_STRIDE}')
        e(f'buffer_store_dwordx4 v[40:43], {v(V_LANE16)}, {s(S_WS, 4)}, s79 offen sc1')
        e(f's_add_u32 s79, s78, {s(S_NR)}')
        e('s_add_u32 s79, s79, 32768')
        e(f's_cmp_ge_u32 {s(S_T0)}, 96')
        e('s_cselect_b32 s79, 0x40000000, s79')
        e(f'buffer_store_dwordx4 v[40:43], {v(V_LANE16)}, {s(S_WS, 4)}, s79 offen sc1')
        e('s_waitcnt lgkmcnt(0)')
        e('s_mov_b32 s80, s76')
        e('s_and_b32 s81, s77, 0xffff')
        e('s_mov_b32 s82, 10240')
        e('s_mov_b32 s83, 0x20000')
        e(f's_cmp_ge_u32 {s(S_T0)}, 40')
        e(f's_cbranch_scc1 {name}_nom0')
        e(f's_lshl_b32 s78, {s(S_T0)}, 6')
        e(f'v_lshrrev_b32 v44, 4, {v(V_LANE16)}')
        e('v_add_u32 v44, s78, v44')
        e('v_and_b32 v45, 1, v44')
        e('v_bfe_u32 v46, v44, 1, 2')
        e('v_bfe_u32 v47, v44, 3, 4')
        e('v_lshrrev_b32 v48, 7, v44')
        e('v_lshl_add_u32 v47, v45, 4, v47')
        e('v_lshl_add_u32 v47, v48, 5, v47')
        e('v_mul_u32_u24 v46, 2560, v46')
        e('v_lshl_add_u32 v46, v47, 1, v46')
        e('buffer_load_ushort v45, v46, s[80:83], 0 offen')
        e('buffer_load_ushort v47, v46, s[80:83], 0 offen offset:1280')
        e('v_lshlrev_b32 v44, 2, v44')
        e('s_waitcnt vmcnt(0)')
        e('v_lshl_or_b32 v45, v47, 16, v45')
        e('v_min_u32 v45, 0xfffffffe, v45')
        e(f's_mov_b32 s78, {WS_MB}')
        e(f's_cmp_ge_u32 {s(S_T0)}, 32')
        e('s_cselect_b32 s79, 8192, 0')
        e(f's_add_u32 s79, s79, {s(S_NR)}')
        e('s_add_u32 s80, s79, 8192')
        e(f'buffer_store_dword v45, v44, {s(S_WS, 4)}, s78 offen sc1')
        e(f'buffer_store_dword v45, v44, {s(S_WS, 4)}, s79 offen sc1')
        e(f'buffer_store_dword v45, v44, {s(S_WS, 4)}, s80 offen sc1')
        e.label(f'{name}_nom0')
        e(f's_lshl_b32 {s(S_T0)}, 1, {s(S_XCC)}')
        e(f'v_mov_b32 v44, {D_SLOW}')
        e(f'v_mov_b32 v45, {s(S_T0)}')
        e(f's_cmp_eq_u32 {s(S_W)}, 0')
        e('s_cselect_b64 exec, 1, 0')
        e(f'buffer_atomic_or v45, v44, {s(S_DBG, 4)}, 0 offen')
        e('s_mov_b64 exec, -1')
        init_done(f'{name}_noib')

    load_weights(units, place, VT_O, 48, chain_init)
    e.wait_lg()
    e('s_barrier')

    TT = NPERS
    e(f'v_and_b32 {v(TT)}, 16, {v(V_LANE16)}')
    e(f's_mov_b32 {s(S_T0)}, 0x3f80')
    e(f'v_lshlrev_b32 {v(TT)}, {v(TT)}, {s(S_T0)}')
    e(f'v_bfe_u32 {v(TT + 1)}, {v(V_LANE16)}, 5, 2')
    for rr in range(4):
        e(f'v_cmp_eq_u32 vcc, {rr}, {v(TT + 1)}')
        e(f'v_cndmask_b32 {v(V_SEL + rr)}, 0, {v(TT)}, vcc')
        e(f'v_mov_b32 {v(V_ONES + rr)}, 0x3f803f80')
    e(f'v_mov_b32 {v(V_PM + 1)}, 0')
    e(f'v_mov_b32 {v(V_PM + 2)}, 0')
    e(f's_add_u32 {s(S_MBP)}, {s(S_GOF)}, {WS_MB}')
    e(f's_add_u32 {s(S_PBST)}, {s(S_PBST)}, {WS_PB}')
    for p in range(1, 5):
        e(f's_add_u32 {s(S_PBST + p)}, {s(S_PBST)}, {p * 65536}')
    e(f's_lshl_b32 {s(S_T0)}, {s(S_UNIT)}, 12')
    e(f's_add_u32 {s(S_PBLD)}, {s(S_T0)}, {WS_PB}')
    e(f's_lshl_b32 {s(S_MBL)}, {s(S_UNIT)}, 7')
    e(f's_add_u32 {s(S_MBL)}, {s(S_MBL)}, {WS_MB}')
    e(f's_mov_b32 {s(S_MBC)}, {s(S_MBL)}')
    e(f's_add_u32 {s(S_MBN)}, {s(S_MBL)}, {MB_STRIDE}')
    e(f's_lshl_b32 {s(S_SH13)}, {s(S_H)}, 13')
    e(f's_lshl_b32 {s(S_T0)}, {s(S_W)}, 11')
    e(f's_add_u32 {s(S_VXO)}, {s(S_T0)}, {s(S_SH13)}')
    e(f's_add_u32 {s(S_WRM)}, {s(S_VXO)}, {WS_KX + 32 * 8192}')
    e(f's_add_u32 {s(S_VXO)}, {s(S_VXO)}, {WS_VXT}')
    e(f's_add_u32 {s(S_KXM)}, {s(S_T0)}, {L_KX}')
    e(f's_lshr_b32 {s(S_T0)}, {s(S_W)}, 1')
    e(f's_lshl_b32 {s(S_T0)}, {s(S_T0)}, 12')
    e(f's_and_b32 {s(S_T1)}, {s(S_W)}, 1')
    e(f's_lshl_b32 {s(S_T1)}, {s(S_T1)}, 7')
    e(f's_add_u32 {s(S_KXW)}, {s(S_T0)}, {s(S_T1)}')
    e(f's_add_u32 {s(S_KXW)}, {s(S_KXW)}, {s(S_SH13)}')
    e(f's_add_u32 {s(S_KXW)}, {s(S_KXW)}, {WS_KX}')

    def kx_items():
        return [
            lambda: e(f's_mov_b32 m0, {s(S_KXM)}'),
            lambda: e(f's_add_u32 {s(S_T0)}, {s(S_KXW)}, 64'),
            lambda: e(f'buffer_load_dwordx4 {v(V_KXG)}, {s(S_WS, 4)}, {s(S_KXW)} offen {ldfl} lds', tag='kx'),
            lambda: e(f's_add_u32 m0, {s(S_KXM)}, 1024'),
            lambda: e(f's_add_u32 {s(S_KXW)}, {s(S_KXW)}, {32 * 8192}'),
            lambda: e(f'buffer_load_dwordx4 {v(V_KXG)}, {s(S_WS, 4)}, {s(S_T0)} offen {ldfl} lds', tag='kx'),
            lambda: e(f's_add_u32 m0, {s(S_KXM)}, 8192'),
            lambda: e(f's_nop 0'),
            lambda: e(f'buffer_load_dwordx4 {v(V_LANE16)}, {s(S_WS, 4)}, {s(S_VXO)} offen {ldfl} lds', tag='kx'),
            lambda: e(f'buffer_load_dwordx4 {v(V_LANE16)}, {s(S_WS, 4)}, {s(S_VXO)} offen offset:1024 {ldfl} lds', tag='kx'),
            lambda: e(f's_add_u32 {s(S_VXO)}, {s(S_VXO)}, {32 * 8192}'),
        ]

    def kv_wait(lab, t1):
        e(f's_cmp_ge_u32 {s(S_KVOK)}, {s(S_T2)}')
        e(f's_cbranch_scc1 {lab}_ok')
        e.cond_begin()
        e(f's_mov_b32 {s(S_T3)}, {WS_CTR + C_KV * 128}')
        e.label(f'{lab}_spin')
        e(f'buffer_load_dword {v(t1)}, {v(V_WA)}, {s(S_WS, 4)}, {s(S_T3)} offen sc1')
        e('s_waitcnt vmcnt(0)')
        e(f'v_cmp_le_u32 vcc, {kvt}, {v(t1)}')
        e(f's_and_b32 {s(S_KVOK)}, vcc_lo, 0xffff')
        e(f's_ff0_i32_b32 {s(S_KVOK)}, {s(S_KVOK)}')
        e(f's_cmp_ge_u32 {s(S_KVOK)}, {s(S_T2)}')
        e(f's_cbranch_scc0 {lab}_spin')
        e.cond_end()
        e.label(f'{lab}_ok')

    def claim(b, n):
        for i in range(n):
            assert (b + i) in pool.free_, ('claim', b, n)
            pool.free_.remove(b + i)

    ACC = pool.must(24)
    VACC = ACC + 16
    V_EX = V_L8
    if 'rt' in dbg:
        e('s_memrealtime s[94:95]')
        e('s_waitcnt lgkmcnt(0)')
    init_wait(f'{name}_ibw', ACC)
    e(f's_lshl_b32 {s(S_MBL2)}, {s(S_UNIT)}, 7')
    e(f's_cmp_ge_u32 {s(S_UNIT)}, 64')
    e(f's_cselect_b32 {s(S_T0)}, 8192, 0')
    e(f's_add_u32 {s(S_MBL2)}, {s(S_MBL2)}, {s(S_T0)}')
    e(f's_add_u32 {s(S_MBL2)}, {s(S_MBL2)}, {s(S_NR)}')
    e(f's_cmp_ge_u32 {s(S_UNIT)}, 80')
    e(f's_cselect_b32 {s(S_MBL2)}, 0x40000000, {s(S_MBL2)}')
    e(f's_cmp_lt_u32 {s(S_UNIT)}, {8 * NH1 if defer else 80}')
    e(f's_cselect_b32 {s(S_MBE0)}, {s(S_MBL2)}, 0x40000000')
    e(f's_cselect_b32 {s(S_MBD0)}, 0x40000000, {s(S_MBL2)}')
    e(f's_add_u32 {s(S_MBN2)}, {s(S_MBE0)}, 32768')
    e(f's_mov_b32 {s(S_MBD2)}, 0x40000000')
    e(f's_add_u32 {s(S_MBR2)}, {s(S_MBL2)}, 65536')
    e(f'buffer_load_dword {v(ACC)}, {v(ACC + 2)}, {s(S_DBG, 4)}, 0 offen offset:8 sc1')
    e('s_waitcnt vmcnt(0)')
    e(f'v_readfirstlane_b32 {s(S_MODE)}, {v(ACC)}')
    e(f's_sub_u32 {s(S_T0)}, {s(S_MODE)}, 1')
    e(f's_and_b32 {s(S_MODE)}, {s(S_MODE)}, {s(S_T0)}')
    if 'slow' in dbg:
        e(f's_mov_b32 {s(S_MODE)}, 1')
    if mega:
        e(f's_mov_b32 {s(S_KVOK)}, 0')
        e(f's_mov_b32 {s(S_T2)}, 1')
        kv_wait(f'{name}_kv0', ACC)
    pre_slots = [sl for sl in order if place[sl][0] == 'lds'][:npre]
    PRE = [pool.alloc(8, 8, top=True) for _ in pre_slots]

    def pre_load():
        for sl, b in zip(pre_slots, PRE):
            loc = place[sl][1] * 2048
            e(f'ds_read_b128 {v(b, 4)}, {v(V_LDSW)} offset:{loc}')
            e(f'ds_read_b128 {v(b + 4, 4)}, {v(V_LDSW)} offset:{loc + 1024}')
    pre_load()
    for it in kx_items():
        it()
    e('s_waitcnt vmcnt(0) lgkmcnt(0)')
    e.vm = []
    e.lg = []
    if 'rt' in dbg:
        e('s_memrealtime s[98:99]')
        e('s_waitcnt lgkmcnt(0)')
    if 'tot' in dbg:
        e('s_memtime s[96:97]')
        e('s_waitcnt lgkmcnt(0)')
    if stamps:
        stamp_init()
    if slow:
        e(f's_cmp_lg_u32 {s(S_MODE)}, 0')
        e(f's_cbranch_scc1 {name}_slow')

    def body(sc, L):
        stamp_i = [0]
        call_i = [0]

        def stamp():
            call_i[0] += 1
            if stamps and (call_i[0] - 1) in stsel:
                e(f's_memtime {s(S_STAMP + 2 * stamp_i[0], 2)}')
                stamp_i[0] += 1

        e.label(L)
        e.hist = []
        e.vm = []
        e.lg = []
        stamp()
        G0, GM = ACC, ACC + 12
        e(f'v_add_u32 {v(GM + 1)}, {s(S_GOF)}, {v(V_LANE16)}')
        e('s_barrier')
        if adel:
            e(f's_sleep {adel}')
        e.label(f'{L}_pollA')
        e.hist = []
        wd()
        if stamps:
            e('s_add_u32 s27, s27, 0x10000')
        for i in range(3):
            e(f'buffer_load_dwordx4 {v(G0 + 4 * i, 4)}, {v(V_LANE16)}, {s(S_WS, 4)}, {s(S_MBP)} offen offset:{(0, 1024, 1536)[i]} sc1')
        for i in range(3):
            e(f's_waitcnt vmcnt({2 - i})')
            e(f'ds_write_b128 {v(GM + 1)}, {v(G0 + 4 * i, 4)} offset:{(0, 1024, 1536)[i]}')
        e(f'v_max3_u32 {v(GM)}, {v(G0)}, {v(G0 + 4)}, {v(G0 + 8)}')
        e(f'v_cmp_eq_u32 vcc, -1, {v(GM)}')
        e('s_mov_b64 exec, vcc')
        e(f's_cbranch_execnz {L}_pollA')
        e('s_mov_b64 exec, -1')
        e('s_waitcnt lgkmcnt(0)')
        e.label(f'{L}_gd')
        e('s_barrier')
        e.vm = []
        e.lg = []
        e.hist = []
        stamp()
        tl(0)
        pool.free(VACC, 8)

        loaded = {sl: b for sl, b in zip(pre_slots, PRE)}
        lds_pending = [sl for sl in order if place[sl][0] == 'lds' and sl not in loaded]
        st = dict(reserve=8, aflim=10)

        def pump_lds(cur_idx, force=False):
            while lds_pending and order.index(lds_pending[0]) <= cur_idx + la_lds:
                need = force and order.index(lds_pending[0]) <= cur_idx
                b = pool.alloc(8, 8, top=True, reserve=0 if need else st['reserve'])
                if b is None:
                    assert not need, 'no buffer for lds slot'
                    return
                lead = order.index(lds_pending[0]) - cur_idx
                if lead < 4 and cur_idx != NA:
                    print('; WARNING short lds lead', order.index(lds_pending[0]), lead)
                sl = lds_pending.pop(0)
                loc = place[sl][1] * 2048
                e(f'ds_read_b128 {v(b, 4)}, {v(V_LDSW)} offset:{loc}', tag=('lw', sl))
                e(f'ds_read_b128 {v(b + 4, 4)}, {v(V_LDSW)} offset:{loc + 1024}', tag=('lw', sl))
                loaded[sl] = b

        def smf(acc, af, sl):
            idx = order.index(sl)
            kind, loc = place[sl]
            if kind == 'reg':
                b = loc
            else:
                if sl not in loaded:
                    pump_lds(idx, True)
                b = loaded[sl]
                e.wait_lg(('lw', sl))
            e(f'v_smfmac_f32_16x16x64_bf16 {v(acc, 4)}, {v(af, 4)}, {u(b, 8)}, {v(V_IDX)}')
            if kind != 'reg':
                pool.free(b, 8)
            pump_lds(idx + 1)

        AF = {}
        afpos = [0]
        first_use = [min(i for i, o in enumerate(order[:40]) if o[0][1] == t) for t in range(10)]

        def af_pump(i, lead=None):
            while afpos[0] < st['aflim'] and first_use[afpos[0]] - i <= (lead or afl):
                k = afpos[0]
                b = pool.alloc(4)
                if b is None:
                    assert first_use[k] - i > 1, 'AF starved'
                    return
                afpos[0] += 1
                AF[k] = b
                e(f'ds_read_b64_tr_b16 {v(b, 2)}, {v(V_AF)} offset:{1024 * k}', tag=('af', k))
                e(f'ds_read_b64_tr_b16 {v(b + 2, 2)}, {v(V_AF)} offset:{1024 * k + 512}', tag=('af', k))

        af_pump(0)
        for j in range(0, 16, 2):
            e(f'v_mov_b64 {v(ACC + j, 2)}, 0')
        accof = {'q': 0, 'k': 8, 'v': 16}
        waited = set()

        def mk(i, sl):
            (m, t), tau = sl
            last = not any(o[0][1] == t for o in order[i + 1:40])

            def f():
                if t not in waited:
                    e.wait_lg(('af', t))
                    waited.add(t)
                smf(ACC + accof[m] + 4 * tau, AF[t], sl)
                if last:
                    pool.free(AF[t], 4)
                af_pump(i + 1)
            return f
        mf = [mk(i, sl) for i, sl in enumerate(order[:40])]
        run(mf[:wat], [], 0)

        def warm_items(pos):
            it = []
            for p_, what in warm:
                if p_ != pos:
                    continue
                if what:
                    it.append(lambda: e(f's_add_u32 {s(S_T0)}, {s(S_WRM)}, {WS_VXT - WS_KX}'))
                it.append(lambda what=what: e(f'buffer_load_dword {v(V_WT)}, {v(V_WA)}, {s(S_WS, 4)}, {s(S_T0 if what else S_WRM)} offen', tag='warm'))
            return it
        cold = [lambda: e(f'buffer_store_dword {v(V_EX)}, {v(V_MBST)}, {s(S_WS, 4)}, {s(S_MBD2)} offen sc1'),
                lambda: e(f'buffer_store_dword {v(V_M1)}, {v(V_MBST)}, {s(S_WS, 4)}, {s(S_MBR2)} offen sc1')]
        if not (defer and nvl):
            cold = cold[1:]
        if mega:
            e(f's_add_u32 {s(S_T2)}, {s(S_STEP)}, 5')
            e(f's_lshr_b32 {s(S_T2)}, {s(S_T2)}, 2')
            e(f's_min_u32 {s(S_T2)}, {s(S_T2)}, 16')
            kv_wait(f'{L}_kv', V_WT)
        run(mf[wat:wat2], warm_items('a') + cold, 2)
        run(mf[wat2:NQE - 4], warm_items('a2'), 2)
        st['reserve'] = 99
        SM = pool.alloc(8, 8, top=True)
        ZQ = SM
        ZVF = SM + 4
        kxb, sbuf = {}, {}

        def kx_read(f_, rsv=0):
            def g_():
                b = pool.alloc(4, reserve=rsv)
                if b is None:
                    return
                kxb[f_] = b
                e(f'ds_read_b128 {v(b, 4)}, {v(V_LANE16)} offset:{L_KX + f_ * 1024}', tag=('kx', f_))
            return g_

        def qm_read(kind, uu):
            def g_():
                b = sbuf[(kind, uu)] = pool.must(4)
                base = 0 if kind == 'q' else 2048
                for m in range(2):
                    e(f'ds_read_b64_tr_b16 {v(b + 2 * m, 2)}, {v(V_QKR)} offset:{base + uu * 512 + m * 256}', tag=('si', kind, uu))
            return g_

        def v_load():
            tl(1)
            e(f'buffer_load_dwordx4 {v(ZVF, 4)}, {v(V_LANE16)}, {s(S_WS, 4)}, {s(S_VB)} offen sc1', tag='vm')
        run(mf[NQE - 4:NQE], [], 1)
        late = mf[NQE:40]
        qf = fold(ACC, ZQ) + fold(ACC + 4, ZQ + 1) + [
            lambda: e(f'ds_write2st64_b32 {v(V_QKW)}, {v(ZQ)}, {v(ZQ + 1)} offset0:0 offset1:1', tag='qw')]
        kf = fold(ACC + 8, ZQ + 2) + fold(ACC + 12, ZQ + 3) + [
            lambda: e(f'ds_write2st64_b32 {v(V_QKW)}, {v(ZQ + 2)}, {v(ZQ + 3)} offset0:8 offset1:9', tag='kw')]
        run(late[:1], [kx_read(0, 4), kx_read(4, 4)], 2)
        run(late[1:3], qf, 3)
        run(late[3:6], [kx_read(1, 16), kx_read(5, 16), kx_read(2, 16)], 1)
        stamp()
        e.wait_lg('qw')
        e('s_barrier')
        pool.free(ACC, 8)
        SX = ACC
        claim(SX, 8)
        todo = []
        for uu in range(4):
            todo += [('q', uu)] + [('x', f_) for f_ in (uu, uu + 4) if f_ not in kxb]

        def try4():
            b = pool.alloc(4)
            if b is None:
                return False
            pool.free(b, 4)
            return True

        def s_fill2(maxn=99):
            n = 0
            while todo and n < maxn and try4():
                kind, x = todo.pop(0)
                if kind == 'x':
                    kx_read(x)()
                else:
                    qm_read(kind, x)()
                n += 1
        s_fill2(1)
        run(late[6:], [lambda: s_fill2(2)] * 4, 1)
        stamp()

        def sx(uu, ti):
            def f():
                f_ = uu + 4 * ti
                assert ('q', uu) in sbuf and f_ in kxb, 'S starved'
                e.wait_lg(('si', 'q', uu))
                e.wait_lg(('kx', f_))
                cin = '0' if uu == 0 else v(SX + 4 * ti, 4)
                e(f'v_mfma_f32_16x16x32_bf16 {v(SX + 4 * ti, 4)}, {v(kxb[f_], 4)}, {v(sbuf[("q", uu)], 4)}, {cin}')
                pool.free(kxb[f_], 4)
                s_fill2()
            return f
        sxl = [sx(uu, ti) for uu in range(4) for ti in range(2)]
        run(sxl[:2], [], 0)
        run([], kf, 0)
        run(sxl[2:4], [], 0)
        if v_at == 0:
            v_load()
        e.wait_lg('kw')
        e('s_barrier')
        pool.free(ACC + 8, 8)
        C0 = ACC + 8
        claim(C0, 4)
        todo_m = [('m', uu) for uu in range(4)]
        todo[:] = todo_m[:1] + todo + todo_m[1:]
        s_fill2()
        run(sxl[4:], [], 0)
        if v_at == 1:
            v_load()
        M = SM
        for uu in range(4):
            s_fill2()
            e.wait_lg(('si', 'm', uu))
            cin = '0' if uu == 0 else v(C0, 4)
            e(f'v_mfma_f32_16x16x32_bf16 {v(C0, 4)}, {v(sbuf[("m", uu)], 4)}, {v(sbuf[("q", uu)], 4)}, {cin}')
            pool.free(sbuf[('m', uu)], 4)
            pool.free(sbuf[('q', uu)], 4)
        assert not todo
        VA_ = pool.must(8)
        OACC = [pool.must(8) for _ in range(noa)]
        AFV = {}
        for t in range(NH1, 10):
            b = AFV[t] = OACC[(t - NH1) >> 1] + 4 * ((t - NH1) & 1)
            e(f'ds_read_b64_tr_b16 {v(b, 2)}, {v(V_AF)} offset:{1024 * t}', tag=('afv', t))
            e(f'ds_read_b64_tr_b16 {v(b + 2, 2)}, {v(V_AF)} offset:{1024 * t + 512}', tag=('afv', t))
        for j in range(0, 8 if nvl else 0, 2):
            e(f'v_mov_b64 {v(VA_ + j, 2)}, 0')

        def mkv(t, tau):
            def f():
                if tau == 0:
                    e.wait_lg(('afv', t))
                smf(VA_ + 4 * tau, AFV[t], (('v', t), tau))
            return f
        vmf = [mkv(t, tau) for t in range(NH1, 10) for tau in range(2)]
        P = pool.must(4)
        OA = pool.must(12)
        VX = pool.must(8)
        e(f'v_add_u32 {v(VX)}, {s(S_KXM)}, {v(V_LANE16)}')
        if v_at == 2:
            v_load()
        stamp()
        sm = []

        def V(x):
            sm.append(lambda: e(x))
        V(f'v_max3_f32 {v(M)}, {v(SX)}, {v(SX + 1)}, {v(SX + 2)}')
        V(f'v_max3_f32 {v(M + 1)}, {v(SX + 3)}, {v(SX + 4)}, {v(SX + 5)}')
        V(f'v_max3_f32 {v(M)}, {v(M)}, {v(SX + 6)}, {v(SX + 7)}')
        V(f'v_cndmask_b32 {v(C0)}, {v(C0 + 2)}, {v(C0)}, {s(S_MASKLO, 2)}')
        V(f'v_cndmask_b32 {v(C0 + 1)}, {v(C0 + 3)}, {v(C0 + 1)}, {s(S_MASKLO, 2)}')
        V(f'v_max3_f32 {v(M + 1)}, {v(M + 1)}, {v(C0)}, {v(C0 + 1)}')
        V(f'v_max_f32 {v(M)}, {v(M)}, {v(M + 1)}')
        V(f'v_max_f32 {v(M + 1)}, {v(M)}, {v(M + 1)}')
        V(f'v_permlane32_swap_b32 {v(M)}, {v(M + 1)}')
        V(f'v_max_f32 {v(M + 2)}, {v(M)}, {v(M + 1)}')
        V(f'v_max_f32 {v(M + 1)}, {v(M)}, {v(M + 1)}')
        V(f'v_permlane16_swap_b32 {v(M + 2)}, {v(M + 1)}')
        V(f'v_max_f32 {v(M)}, {v(M + 2)}, {v(M + 1)}')
        V(f'v_mul_f32 {v(M)}, {s(S_C1)}, {v(M)}')
        bub = {8: 1, 9: 1, 11: 1, 12: 1}
        for i, f in enumerate(sm):
            for _ in range(bub.get(i, 0)):
                if vmf:
                    vmf.pop(0)()
            f()
        if v_at == 3:
            v_load()
        e(f'ds_read_b128 {v(VX + 4, 4)}, {v(VX)} offset:{8192 + 1024}', tag='vx')
        e(f'ds_read_b128 {v(VX, 4)}, {v(VX)} offset:8192', tag='vx')
        for j in range(0, 10, 2):
            e(f'v_pk_fma_f32 {v(SX + j, 2)}, {v(SX + j, 2)}, {s(S_C1, 2)}, {v(M, 2)} op_sel_hi:[1,1,0] neg_lo:[0,0,1] neg_hi:[0,0,1]')
            if vmf:
                vmf.pop(0)()
        while vmf:
            vmf.pop(0)()
        zl = [(lambda b=b, j=j: e(f'v_mov_b64 {v(b + j, 2)}, 0')) for b in OACC for j in range(0, 8, 2)]

        def z(n=1):
            for _ in range(n):
                if zl:
                    zl.pop(0)()
        for j in range(8):
            e(f'v_exp_f32 {v(SX + j)}, {v(SX + j)}')
        for j in range(4):
            e(f'v_cvt_pk_bf16_f32 {v(P + j)}, {v(SX + 2 * j)}, {v(SX + 2 * j + 1)}')
        e.wait_lg('vx')
        e(f'v_exp_f32 {v(C0)}, {v(C0)}')
        e(f'v_mfma_f32_16x16x32_bf16 {v(OA + 8, 4)}, {v(V_ONES, 4)}, {v(P, 4)}, 0')
        e(f'v_exp_f32 {v(C0 + 1)}, {v(C0 + 1)}')
        e(f'v_mfma_f32_16x16x32_bf16 {v(OA, 4)}, {v(VX, 4)}, {v(P, 4)}, 0')
        e(f'v_cvt_pk_bf16_f32 {v(V_PM)}, {v(C0)}, {v(C0 + 1)}')
        e(f'v_cvt_pk_bf16_f32 {v(V_PM + 3)}, {v(C0)}, {v(C0 + 1)}')
        e(f'v_mfma_f32_16x16x32_bf16 {v(OA + 4, 4)}, {v(VX + 4, 4)}, {v(P, 4)}, 0')
        if nvl:
            e(f'v_pk_add_f32 {v(VA_, 2)}, {v(VA_, 2)}, {v(VA_ + 2, 2)}')
            e(f'v_pk_add_f32 {v(VA_ + 4, 2)}, {v(VA_ + 4, 2)}, {v(VA_ + 6, 2)}')
        e(f'v_mfma_f32_16x16x16_bf16 {v(OA + 8, 4)}, {v(V_ONES, 2)}, {v(V_PM, 2)}, {v(OA + 8, 4)}')
        z(4)
        if 'nov' not in dbg:
            e.wait_vm('vm')
            e(f'v_cmp_eq_u32 vcc, -1, {v(ZVF)}')
            e(f's_cbranch_vccnz {L}_fixv')
            e.label(f'{L}_pv2')
        ZV = VA_ + 2
        if nvl:
            e(f'v_pk_add_f32 {v(ZVF, 2)}, {v(ZVF, 2)}, {v(VA_, 2)}')
            e(f'v_pk_add_f32 {v(ZVF + 2, 2)}, {v(ZVF + 2, 2)}, {v(VA_ + 4, 2)}')
        e(f'v_cvt_pk_bf16_f32 {v(ZV)}, {v(ZVF)}, {v(ZVF + 1)}')
        e(f'v_cvt_pk_bf16_f32 {v(ZV + 1)}, {v(ZVF + 2)}, {v(ZVF + 3)}')
        e(f'v_rcp_f32 {v(M)}, {v(OA + 8)}')
        z(1)
        e(f'v_mfma_f32_16x16x16_bf16 {v(OA, 4)}, {v(ZV, 2)}, {v(V_PM, 2)}, {v(OA, 4)}')
        e(f'v_mfma_f32_16x16x16_bf16 {v(OA + 4, 4)}, {v(ZV, 2)}, {v(V_PM + 2, 2)}, {v(OA + 4, 4)}')
        pool.free(SX, 8)
        pool.free(VX, 8)
        pool.free(C0, 4)
        pool.free(VA_, 8)
        OF = pool.must(8)
        z(99)
        st['reserve'] = 0
        pump_lds(NA)
        for j in range(0, 8, 2):
            e(f'v_pk_mul_f32 {v(OA + j, 2)}, {v(OA + j, 2)}, {v(M, 2)} op_sel_hi:[1,0]')
        for j in range(4):
            e(f'v_cvt_pk_bf16_f32 {v(P + j)}, {v(OA + 2 * j)}, {v(OA + 2 * j + 1)}')
        e(f'ds_write_b128 {v(V_OW)}, {v(P, 4)}', tag='ow')
        pool.free(OA, 12)
        for x in [f's_add_u32 {s(S_WRM)}, {s(S_WRM)}, {32 * 8192}',
                  f's_add_u32 {s(S_MSL)}, {s(S_MSL)}, {MB_STRIDE}', f's_and_b32 {s(S_MSL)}, {s(S_MSL)}, {3 * MB_STRIDE}',
                  f's_add_u32 {s(S_T0)}, {s(S_MSL)}, {WS_MB}',
                  f's_add_u32 {s(S_MBP)}, {s(S_T0)}, {s(S_GOF)}',
                  f's_lshl_b32 {s(S_T0)}, {s(S_MSL)}, 4', f's_add_u32 {s(S_VB)}, {s(S_VB0)}, {s(S_T0)}',
                  f's_add_u32 {s(S_STEP)}, {s(S_STEP)}, 1']:
            e(x)
        e.wait_lg('ow')
        e('s_barrier')
        pool.free(P, 4)
        e(f'ds_read_b128 {v(OF, 4)}, {v(V_OR)}', tag='of0')
        e(f'ds_read_b128 {v(OF + 4, 4)}, {v(V_OR)} offset:1024', tag='of1')
        pump_lds(NA)
        kxi = kx_items()
        for f in kxi[:6]:
            f()
        stamp()
        ZO = [SM, SM + 2, SM + 4]

        def finish(p):
            ac = OACC[p % noa]
            zz = ZO[p % 3]
            it = fold(ac, zz) + fold(ac + 4, zz + 1)
            if p + noa < 5:
                it += [(lambda j=j: e(f'v_mov_b64 {v(ac + j, 2)}, 0')) for j in range(0, 4, 2)]
            it += [lambda: e(f'v_permlane16_swap_b32 {v(zz)}, {v(zz + 1)}'),
                   lambda: e(f'buffer_store_dwordx2 {v(zz, 2)}, {v(V_PBST)}, {s(S_WS, 4)}, {s(S_PBST + p)} offen {sc}', tag='pst')]
            if p + noa < 5:
                it += [(lambda j=j: e(f'v_mov_b64 {v(ac + j, 2)}, 0')) for j in range(4, 8, 2)]
            else:
                it += [lambda: pool.free(ac, 8)]
            return it
        sc2 = [f's_lshl_b32 {s(S_T0)}, {s(S_MSL)}, 1',
               f's_add_u32 {s(S_MBN2)}, {s(S_MBE0)}, {s(S_T0)}', f's_add_u32 {s(S_MBD2)}, {s(S_MBD0)}, {s(S_T0)}',
               f's_xor_b32 {s(S_T0)}, {s(S_T0)}, 65536', f's_add_u32 {s(S_MBR2)}, {s(S_MBL2)}, {s(S_T0)}',
               f's_add_u32 {s(S_MBN)}, {s(S_MBL)}, {s(S_MSL)}']
        sc2 = kxi[6:] + [(lambda x=x: e(x)) for x in sc2]
        for p in range(5):
            ac = OACC[p % noa]
            mo = []
            for t in range(2):
                for tau in range(2):
                    def f(t=t, tau=tau):
                        if p == 0 and tau == 0:
                            e.wait_lg(f'of{t}')
                        smf(ac + 4 * tau, OF + 4 * t, (('o', t, p), tau))
                    mo.append(f)
            side = finish(p - 1) if p >= 1 else sc2
            run(mo[:1], [], 0)
            run(mo[1:], side, 3 if p else 4)
        for f in finish(4):
            f()
        stamp()
        tl(3)
        pool.free(OF, 8)
        pool.free(SM, 8)
        assert not lds_pending
        claim(ACC, 24)
        for b in PRE:
            claim(b, 8)
        RB, RA, TM = ACC, VACC, VACC + 4

        def pb_loads():
            for i in range(4):
                e(f'buffer_load_dwordx4 {v(RB + 4 * i, 4)}, {v(V_LANE16)}, {s(S_WS, 4)}, {s(S_PBLD)} offen offset:{1024 * i} sc1', tag=('pb', i))
        if early_poll:
            e(f's_cmp_ge_u32 {s(S_UNIT)}, {early_poll}')
            e(f's_cbranch_scc1 {L}_nep')
            pb_loads()
            pre_load()
            for p in range(5):
                e(f's_xor_b32 {s(S_PBST + p)}, {s(S_PBST + p)}, {PB_STRIDE}')
            e(f's_branch {L}_pk1')
            e.label(f'{L}_nep')
        pre_load()
        for p in range(5):
            e(f's_xor_b32 {s(S_PBST + p)}, {s(S_PBST + p)}, {PB_STRIDE}')
        e(f's_cmp_ge_u32 {s(S_UNIT)}, 80')
        e(f's_cbranch_scc1 {L}_nored')
        if kdel:
            e.nop(kdel)
        e.label(f'{L}_pollK')
        e.hist = []
        wd()
        if stamps:
            e('s_add_u32 s27, s27, 1')
        pb_loads()
        e.label(f'{L}_pk1')
        e.hist = []
        for i in range(4):
            e(f's_waitcnt vmcnt({3 - i})')
            e(f'v_mfma_f32_16x16x32_bf16 {v(RA, 4)}, {v(V_SEL, 4)}, {v(RB + 4 * i, 4)}, {"0" if i == 0 else v(RA, 4)}')
            if i == 2:
                e(f'v_max3_u32 {v(TM)}, {v(RB)}, {v(RB + 4)}, {v(RB + 8)}')
        e(f'v_max_u32 {v(TM)}, {v(TM)}, {v(RB + 12)}')
        e(f'v_mov_b32_dpp {v(TM + 1)}, {v(TM)} quad_perm:[0,0,0,0] row_mask:0xf bank_mask:0xf')
        e(f'v_cmp_eq_u32 vcc, -1, {v(TM + 1)}')
        e('s_mov_b64 exec, vcc')
        e(f's_cbranch_execnz {L}_pollK')
        e('s_mov_b64 exec, -1')
        e.vm = []
        e(f'v_permlane32_swap_b32 {v(RA)}, {v(RA + 2)}')
        e(f'v_permlane32_swap_b32 {v(RA + 1)}, {v(RA + 3)}')
        e(f'v_add_f32_dpp {v(RA)}, {v(RA + 2)}, {v(RA)} row_ror:8 row_mask:0xf bank_mask:0xf')
        e(f'v_add_f32_dpp {v(RA + 1)}, {v(RA + 3)}, {v(RA + 1)} row_ror:8 row_mask:0xf bank_mask:0xf')
        e(f'v_cvt_pk_bf16_f32 {v(V_EX)}, {v(RA)}, {v(RA + 1)}')
        e(f'buffer_store_dword {v(V_EX)}, {v(V_MBST)}, {s(S_WS, 4)}, {s(S_MBN)} offen {sc}')
        e(f'buffer_store_dword {v(V_EX)}, {v(V_MBST)}, {s(S_WS, 4)}, {s(S_MBN2)} offen sc1')
        stamp()
        tl(2)
        e(f'buffer_store_dword {v(V_M1)}, {v(V_MBST)}, {s(S_WS, 4)}, {s(S_MBC)} offen {sc}')
        e(f'buffer_store_dword {v(V_M1)}, {v(V_L64)}, {s(S_WS, 4)}, {s(S_PBLD)} offen {sc}')
        e(f's_xor_b32 {s(S_PBLD)}, {s(S_PBLD)}, {PB_STRIDE}')
        e(f's_mov_b32 {s(S_MBC)}, {s(S_MBN)}')
        e(f's_branch {L}_end')
        e.label(f'{L}_nored')
        if stamps and call_i[0] - 1 in stsel:
            e(f's_memtime {s(S_STAMP + 2 * (stamp_i[0] - 1), 2)}')
        if gdel:
            e(f's_sleep {gdel}')
        e.label(f'{L}_end')
        e.hist = []
        tl_out(0, RB)
        e('s_waitcnt lgkmcnt(0)')
        if stamps:
            stamp()
            stamp_acc(stamp_i[0])
        e(f's_cmp_lg_u32 {s(S_STEP)}, {nsteps - 1}')
        e(f's_cbranch_scc1 {L}')
        e(f's_branch {name}_fin')
        if 'nov' in dbg:
            return
        e.label(f'{L}_fixv')
        wd()
        if stamps:
            e('s_add_u32 s26, s26, 63')
        e(f'buffer_load_dwordx4 {v(ZVF, 4)}, {v(V_LANE16)}, {s(S_WS, 4)}, {s(S_VB)} offen sc1')
        e('s_waitcnt vmcnt(0)')
        e(f'v_cmp_eq_u32 vcc, -1, {v(ZVF)}')
        e(f's_cbranch_vccnz {L}_fixv')
        e(f's_branch {L}_pv2')

    body('', f'{name}_fast')
    if slow:
        body('sc1', f'{name}_slow')
    e.label(f'{name}_fin')
    e.flush_hazards(4)
    e(f'buffer_store_dword {v(V_EX)}, {v(V_MBST)}, {s(S_WS, 4)}, {s(S_MBD2)} offen sc1')
    if stamps:
        stamp_out()
    if 'rt' in dbg or 'tot' in dbg:
        e(f's_cmp_lg_u32 {s(S_W)}, 1')
        e(f's_cbranch_scc1 {name}_exit')
    if 'rt' in dbg:
        e('s_memrealtime s[100:101]')
        e('s_waitcnt lgkmcnt(0)')
        if 'diag' in dbg:
            e('s_sub_u32 s101, s100, s98')
            e('s_sub_u32 s99, s98, s96')
            e('v_mov_b32 v40, s99')
            e('v_mov_b32 v41, s101')
            e('v_mov_b32 v44, 32')
            e(f'buffer_store_dwordx2 v[40:41], v44, {s(S_DBG, 4)}, 0 offen')
            e('s_waitcnt vmcnt(0)')
        e('v_mov_b32 v40, s96')
        e('v_mov_b32 v41, s98')
        e('v_mov_b32 v42, s100')
        e('v_mov_b32 v43, s94')
        e('v_mov_b32 v44, 0')
        e(f's_lshl_b32 {s(S_T0)}, {s(S_H)}, 6')
        e(f's_add_u32 {s(S_T0)}, {s(S_T0)}, 0x0F800000')
        e(f'buffer_store_dwordx4 v[40:43], v44, {s(S_WS, 4)}, {s(S_T0)} offen')
    if 'tot' in dbg:
        e('s_memtime s[98:99]')
        e('s_waitcnt lgkmcnt(0)')
        e('s_sub_u32 s98, s98, s96')
        e('v_mov_b32 v40, s98')
        e('v_mov_b32 v42, 0')
        e(f's_lshl_b32 {s(S_T0)}, {s(S_H)}, 6')
        e(f's_add_u32 {s(S_T0)}, {s(S_T0)}, 0x0F800000')
        e(f'buffer_store_dword v40, v42, {s(S_WS, 4)}, {s(S_T0)} offen')
    e.label(f'{name}_exit')
    e('s_endpgm')
    print(f'; chain12: n_reg={n_reg} n_lds={n_lds} pool peak={pool.peak} of {pool_end - NPERS}')

    H = f'{name}_helper'
    e.label(H)
    e.hist, e.vm, e.lg = [], [], []
    hunits = [('v', t) for t in range(10)] + [('k', t) for t in range(10)]
    hplace = {}
    r = 128
    for un in hunits:
        for tau in range(2):
            hplace[(un, tau)] = ('reg', r)
            r += 8
    M4 = 24
    for j in range(4):
        e(f'v_mov_b32 {v(M4 + j)}, -1')

    def helper_init():
        e(f's_cmp_lg_u32 {s(S_W)}, 0')
        e(f's_cbranch_scc1 {H}_nocal')
        e(f's_lshl_b32 {s(S_T0)}, {s(S_H)}, 7')
        e(f's_add_u32 {s(S_T0)}, {s(S_T0)}, {s(S_NR)}')
        e(f's_add_u32 s82, {s(S_T0)}, {NR_CAL}')
        e(f's_add_u32 s83, {s(S_T0)}, {NR_CAL + 8192}')
        e('s_mov_b32 s80, -1')
        e('s_mov_b32 s81, -1')
        e(f's_mov_b32 {s(S_T0)}, {ncal}')
        e.label(f'{H}_cal')
        for hf in range(2):
            e('s_memtime s[76:77]')
            e('s_waitcnt lgkmcnt(0)')
            e(f'buffer_store_dword {v(V_M1)}, {v(V_MBST)}, {s(S_WS, 4)}, {s(82 + hf)} offen sc1')
            e('s_waitcnt vmcnt(0)')
            e('s_memtime s[78:79]')
            e('s_waitcnt lgkmcnt(0)')
            e('s_sub_u32 s78, s78, s76')
            e(f's_min_u32 {s(80 + hf)}, {s(80 + hf)}, s78')
        e(f's_sub_u32 {s(S_T0)}, {s(S_T0)}, 1')
        e(f's_cmp_lg_u32 {s(S_T0)}, 0')
        e(f's_cbranch_scc1 {H}_cal')
        e('s_cmp_lt_u32 s81, s80')
        e('s_cselect_b32 s80, 0x10001, 1')
        e.label(f'{H}_nocal')
        e('s_barrier')
        for sl_ in range(4):
            for hf in range(2):
                e(f's_add_u32 {s(S_T0)}, {s(S_VB0)}, {sl_ * 262144 + hf * 8192}')
                e(f's_add_u32 {s(S_T0)}, {s(S_T0)}, {s(S_NR)}')
                e(f'buffer_store_dwordx4 {v(M4, 4)}, {v(V_LANE16)}, {s(S_WS, 4)}, {s(S_T0)} offen sc1')
        init_done(f'{H}_noib', 's80')
    load_weights(hunits, hplace, VT_QKV, 0, helper_init, pre=True)
    e('s_barrier')
    init_wait(f'{H}_ibw', 32)
    if 'nohelp' in dbg:
        e('s_endpgm')
    S_PA, S_PB_, S_PC = 50, 51, 52
    GA, GB, GC, V_KR = V_OR, V_KXG, V_OW, V_QKR
    e(f's_lshl_b32 {s(S_PA)}, {s(S_W)}, 10')
    e(f's_and_b32 {s(S_T0)}, {s(S_W)}, {NH1 - 4 - 1}')
    e(f's_lshl_b32 {s(S_T0)}, {s(S_T0)}, 10')
    e(f's_add_u32 {s(S_PB_)}, {s(S_T0)}, 4096')
    e(f's_and_b32 {s(S_T0)}, {s(S_W)}, {nvl - 1}')
    e(f's_lshl_b32 {s(S_T0)}, {s(S_T0)}, 10')
    e(f's_add_u32 {s(S_PC)}, {s(S_T0)}, {NH1 * 1024}')
    e(f'v_add_u32 {v(GA)}, {s(S_PA)}, {v(V_LANE16)}')
    e(f'v_add_u32 {v(GB)}, {s(S_PB_)}, {v(V_LANE16)}')
    e(f'v_add_u32 {v(GC)}, {s(S_PC)}, {v(V_LANE16)}')
    e(f's_cmp_ge_u32 {s(S_PC)}, 8192')
    e(f's_cselect_b32 {s(S_T0)}, 8192, 0')
    e(f's_add_u32 {s(S_PC)}, {s(S_PC)}, {s(S_T0)}')
    for x in (S_PA, S_PB_, S_PC):
        e(f's_add_u32 {s(x)}, {s(x)}, {s(S_NR)}')
    for i, x in enumerate((S_PA, S_PB_, S_PC)):
        e(f's_mov_b32 {s(S_MBP + i)}, {s(x)}')
    e(f's_lshl_b32 {s(S_T0)}, {s(S_W)}, 9')
    e(f's_add_u32 {s(S_T0)}, {s(S_T0)}, {L_MQ}')
    e(f'v_add_u32 {v(V_KR)}, {s(S_T0)}, {v(V_L8)}')
    e(f's_mov_b32 {s(S_MBR2)}, 0x40000000')
    if segsig is not None:
        e(f's_cmp_eq_u32 {s(S_W)}, 3')
        e(f's_mov_b32 {s(S_SIG)}, {segsig}')
        e(f's_cselect_b32 {s(S_SIG)}, {s(S_SIG)}, 0x40000000')
    G0, GM, ZH, VA, KA, AFH = 32, 40, 44, 48, 56, 64
    if hstamps:
        stamp_init()
    hs = [0]

    def hstamp():
        if hstamps:
            e(f's_memtime {s(S_STAMP + 2 * hs[0], 2)}')
            hs[0] += 1

    def haf(k):
        e(f'ds_read_b64_tr_b16 {v(AFH + 4 * k, 2)}, {v(V_AF)} offset:{1024 * k}', tag=('af', k))
        e(f'ds_read_b64_tr_b16 {v(AFH + 4 * k + 2, 2)}, {v(V_AF)} offset:{1024 * k + 512}', tag=('af', k))

    def hsm(m, t):
        for tau in range(2):
            e(f'v_smfmac_f32_16x16x64_bf16 {v((VA if m == "v" else KA) + 4 * tau, 4)}, {v(AFH + 4 * t, 4)}, {u(hplace[((m, t), tau)][1], 8)}, {v(V_IDX)}')
    L = f'{H}_loop'
    e.label(L)
    e.hist, e.vm, e.lg = [], [], []
    hstamp()
    for j in range(0, 16, 2):
        e(f'v_mov_b64 {v(VA + j, 2)}, 0')
    e.label(f'{L}_poll')
    wd()
    if hstamps:
        e('s_add_u32 s27, s27, 1')
    for i in range(2):
        e(f'buffer_load_dwordx4 {v(G0 + 4 * i, 4)}, {v(V_LANE16)}, {s(S_WS, 4)}, {s(S_MBP + i)} offen sc1')
    e('s_waitcnt vmcnt(0)')
    e(f'v_max_u32 {v(GM)}, {v(G0)}, {v(G0 + 4)}')
    e(f'v_cmp_eq_u32 vcc, -1, {v(GM)}')
    e('s_mov_b64 exec, vcc')
    e(f's_cbranch_execnz {L}_poll')
    e('s_mov_b64 exec, -1')
    e(f'ds_write_b128 {v(GA)}, {v(G0, 4)}')
    e(f'ds_write_b128 {v(GB)}, {v(G0 + 4, 4)}')
    e('s_waitcnt lgkmcnt(0)')
    e('s_barrier')
    e.vm, e.lg = [], []
    hstamp()
    tl(0)
    for k in range(min(NH1, 7)):
        haf(k)
    for t in range(NH1):
        e.wait_lg(('af', t))
        hsm('v', t)
        if t + 7 < NH1:
            haf(t + 7)
    hsm('k', 0)
    e(f'v_pk_add_f32 {v(ZH, 2)}, {v(VA, 2)}, {v(VA + 2, 2)}')
    e(f'v_pk_add_f32 {v(ZH + 2, 2)}, {v(VA + 4, 2)}, {v(VA + 6, 2)}')
    e(f'buffer_store_dwordx4 {v(ZH, 4)}, {v(V_LANE16)}, {s(S_WS, 4)}, {s(S_VB)} offen sc1')
    hstamp()
    tl(1)
    e(f'buffer_store_dwordx4 {v(M4, 4)}, {v(V_LANE16)}, {s(S_WS, 4)}, {s(S_MBR2)} offen sc1')
    e(f's_mov_b32 {s(S_MBR2)}, {s(S_VB)}')
    for t in range(1, NH1):
        hsm('k', t)
    e.label(f'{L}_poll2')
    wd()
    e(f'buffer_load_dwordx4 {v(G0, 4)}, {v(V_LANE16)}, {s(S_WS, 4)}, {s(S_MBP + 2)} offen sc1')
    e('s_waitcnt vmcnt(0)')
    e(f'v_cmp_eq_u32 vcc, -1, {v(G0)}')
    e('s_mov_b64 exec, vcc')
    e(f's_cbranch_execnz {L}_poll2')
    e('s_mov_b64 exec, -1')
    e(f'ds_write_b128 {v(GC)}, {v(G0, 4)}')
    e('s_waitcnt lgkmcnt(0)')
    e('s_barrier')
    e.vm, e.lg = [], []
    tl(2)
    for k in range(NH1, 10):
        haf(k)
    for t in range(NH1, 10):
        e.wait_lg(('af', t))
        hsm('k', t)
    for t in range(NH1, 10):
        hsm('v', t)
    for f in fold(KA, ZH) + fold(KA + 4, ZH + 1):
        f()
    e(f'ds_write2st64_b32 {v(V_QKW)}, {v(ZH)}, {v(ZH + 1)} offset0:0 offset1:1', tag='kw')
    for f in fold(VA, ZH + 2) + fold(VA + 4, ZH + 3):
        f()
    e(f'buffer_store_dwordx2 {v(ZH + 2, 2)}, {v(V_L8)}, {s(S_WS, 4)}, {s(S_VMO)} offen offset:2048 sc1')
    e.wait_lg('kw')
    e('s_barrier')
    e(f'ds_read_b64 {v(ZH, 2)}, {v(V_KR)}')
    e(f's_add_u32 {s(S_STEP)}, {s(S_STEP)}, 1')
    e(f's_add_u32 {s(S_MSL)}, {s(S_MSL)}, {MB_STRIDE}')
    e(f's_and_b32 {s(S_MSL)}, {s(S_MSL)}, {3 * MB_STRIDE}')
    e(f's_lshl_b32 {s(S_T0)}, {s(S_MSL)}, 1')
    for i, x in enumerate((S_PA, S_PB_, S_PC)):
        e(f's_add_u32 {s(S_MBP + i)}, {s(x)}, {s(S_T0)}')
    e(f's_lshl_b32 {s(S_T0)}, {s(S_MSL)}, 4')
    e(f's_add_u32 {s(S_VB)}, {s(S_VB0)}, {s(S_T0)}')
    e('s_waitcnt lgkmcnt(0)')
    e(f'buffer_store_dwordx2 {v(ZH, 2)}, {v(V_L8)}, {s(S_WS, 4)}, {s(S_VMO)} offen sc1')
    e(f's_add_u32 {s(S_VMO)}, {s(S_VMO)}, {32 * 4096}')
    e('s_waitcnt vmcnt(0)')
    e('s_barrier')
    if segsig is not None:
        seg_signal()
    tl(3)
    tl_out(1, G0)
    if hstamps:
        hstamp()
        stamp_acc(hs[0])
    e(f's_cmp_lt_u32 {s(S_STEP)}, {nsteps}')
    e(f's_cbranch_scc1 {L}')
    if hstamps:
        stamp_out()
    e('s_endpgm')


if __name__ == '__main__':
    import argparse
    ap = argparse.ArgumentParser()
    ap.add_argument('--out', default='chain_test.s')
    ap.add_argument('--stamps', action='store_true')
    ap.add_argument('--kw', default='')
    args = ap.parse_args()
    em = Em()
    kw = eval('dict(' + args.kw + ')')
    gen_chain(em, stamps=args.stamps, **kw)
    hdr = '; @launch kernel=chain_kernel grid=(256,1,1) block=(256,1,1) lds=163840\n'
    hdr += '.amdgcn_target "amdgcn-amd-amdhsa--gfx950"\n.text\n.globl chain_kernel\n'
    open(args.out, 'w').write(hdr + em.text() + kd('chain_kernel', 512, 256))
```

```python
from emit import *
from layout import *
from gen_chain import Pool, f32bits, kd

S_WS = 4
S_DBG = 8
S_WQ = 12
S_WK = 16
S_WV = 20
S_WO = 24
S_H = 28
S_W = 29
S_STEP = 30
S_T0, S_T1, S_T2, S_T3 = 31, 32, 33, 34
S_MODE = 35
S_UNIT = 36
S_XCC = 37
S_C1 = 38
S_MASKLO = 40
S_LDSW = 42
S_SH13 = 43
S_MBP = 44
S_MSL = 48
S_M9D = 49
S_PBST = 50
S_MBL = 55
S_MBC = 56
S_MBN = 57
S_KXW = 58
S_KXM = 59
S_PBLD = 60
S_MDST = 61
S_VMO = 62
S_NR = 63
S_VB0, S_VB, S_MBL2, S_GOF2 = 66, 67, 68, 69
S_MBE0, S_MBD0, S_MBD2 = 73, 74, 47
S_GOF = 64
S_MBR2 = 65
S_VXO = 70
S_KMO = 71
S_WRM = 72
S_MBN2 = 75
S_STAMP = 76
S_SIG = 15
S_KVOK = 16

V_LANE16, V_IDX, V_AF, V_QKR, V_LDSW, V_QKW, V_OW, V_OR = range(8)
V_PBST, V_KXG, V_MBST, V_L8, V_WA, V_WT, V_M1, V_L64 = range(8, 16)
V_SEL = 16
V_ONES = 20
V_PM = 24
V_M2 = 26
NPERS = 28

NR_PING, NR_CAL, NR_VB = 8 * 16384, 9 * 16384, 16 * 16384
D_NEAR = 144
D_INIT, D_SLOW, D_PAIR = 132, 136, 144

_fj = [0]


def far_jump(e, label, sp):
    _fj[0] += 1
    here = f'Lfj{_fj[0]}'
    e(f's_getpc_b64 {s(sp, 2)}')
    e.label(here)
    e.raw(f'    s_add_u32 {s(sp)}, {s(sp)}, {label}-{here}')
    e.raw(f'    s_addc_u32 {s(sp + 1)}, {s(sp + 1)}, 0')
    e(f's_setpc_b64 {s(sp, 2)}')


def gen_chain(em, name='chain_kernel', mega=None, nmoda=0, pool_end=96, nsteps=64, stamps=False, stsel=(0, 1, 2, 3, 4, 5, 6, 7, 8, 9),
              hstamps=False, la_lds=5, afl=7, nvl=2, npre=4, noa=2, v_at=1, gdel=0, kdel=0, adel=3, nkl=4, wat=2, wat2=20, defer=True,
              warm=(('a', 0), ('a2', 1)), ncal=6, segsig=None, slow=True, early_poll=0, wfl='nt', kvt=32,
              lds_un=(0, 1, 5, -9, -6, -3), dbg='', ldfl='nt'):
    L_MMEM = 0
    L_MQ = 10240
    L_MK = L_MQ + 2048
    L_O = L_MK + 2048
    L_KX = L_O + 2048
    L_VX = L_KX + 8192
    L_WB = L_VX + 8192
    NRING = 8
    WL = NRING * 4096
    assert L_WB + 4 * WL <= 163840
    e = em
    LN = 28
    NH1 = 10 - nvl

    ounits = [('o', t, p) for p in range(5) for t in range(2)]
    uorder = [(m, t) for t in range(10 - nkl) for m in 'qk'] + [(m, t) for m in 'qk' for t in range(10 - nkl, 10)] + [('v', t) for t in range(NH1, 10)]
    NQE = 40 - 2 * nkl
    NA = 2 * len(uorder)
    uorder += ounits
    order = [(un, tau) for un in uorder for tau in range(2)]
    n_reg = (512 - pool_end) // 8
    n_lds = len(order) - n_reg
    assert n_lds % 2 == 0 and n_lds <= 16, n_lds
    lun = sorted(x % len(uorder) for x in lds_un[:n_lds // 2])
    lun = [uorder[i] for i in lun]
    units = [un for un in uorder if un not in lun] + lun
    place = {}
    r = pool_end
    for i, un in enumerate(units):
        for tau in range(2):
            if un in lun:
                place[(un, tau)] = ('lds', 2 * (i % NRING) + tau)
            else:
                place[(un, tau)] = ('reg', r)
                r += 8
    assert r == 512

    em.raw('.p2align 8')
    em.raw(f'.type {name},@function')
    em.label(name)
    e('s_cmp_lt_u32 s2, 256')
    e(f's_cbranch_scc1 {name}_go')
    e('s_endpgm')
    e.label(f'{name}_go')
    if 'rt' in dbg:
        e('s_memrealtime s[96:97]')
    e('s_load_dwordx4 s[48:51], s[0:1], 16')
    e('s_load_dwordx4 s[52:55], s[0:1], 32')
    e('s_load_dwordx4 s[56:59], s[0:1], 112')
    e(f's_getreg_b32 {s(S_XCC)}, hwreg(HW_REG_XCC_ID)')
    e(f's_and_b32 {s(S_XCC)}, {s(S_XCC)}, 15')
    e('v_lshrrev_b32 v20, 6, v0')
    e('v_and_b32 v16, 63, v0')
    e(f'v_readfirstlane_b32 {s(S_W)}, v20')
    e('s_waitcnt lgkmcnt(0)')

    def srd(d, src, size):
        e(f's_mov_b32 {s(d)}, {s(src)}')
        e(f's_and_b32 {s(d + 1)}, {s(src + 1)}, 0xffff')
        e(f's_mov_b32 {s(d + 2)}, {size}')
        e(f's_mov_b32 {s(d + 3)}, 0x20000')
    srd(S_WQ, 48, 5242880)
    srd(S_WK, 50, 5242880)
    srd(S_WV, 52, 5242880)
    srd(S_WO, 54, 5242880)
    srd(S_DBG, 56, 256)
    srd(S_WS, 58, WS_SIZE)

    e(f's_and_b32 {s(S_MODE)}, s2, 7')
    e(f's_lshr_b32 {s(S_H)}, s2, 3')
    e(f's_cmp_eq_u32 {s(S_MODE)}, 0')
    e(f's_cbranch_scc1 {name}_hasrole')
    e(f's_bitcmp1_b32 0x82, {s(S_MODE)}')
    e(f's_cbranch_scc0 {name}_work')
    e(f's_and_b32 {s(S_T0)}, {s(S_XCC)}, 3')
    e(f's_cmp_lg_u32 {s(S_T0)}, 0')
    e(f's_cselect_b32 {s(S_T1)}, 1, 0')
    e(f's_cmp_eq_u32 {s(S_T0)}, 2')
    e(f's_cselect_b32 {s(S_T2)}, 1, 0')
    e(f's_cmp_eq_u32 {s(S_MODE)}, 1')
    e(f's_cselect_b32 {s(S_T1)}, {s(S_T1)}, {s(S_T2)}')
    e(f's_cmp_lg_u32 {s(S_W)}, 0')
    e(f's_cbranch_scc1 {name}_elected')
    e(f's_lshl_b32 {s(S_T0)}, 1, {s(S_H)}')
    e(f's_lshl_b32 {s(S_T2)}, {s(S_T1)}, 2')
    e(f'v_mov_b32 v20, {s(S_T0)}')
    e('v_mov_b32 v21, 0')
    e('s_mov_b64 exec, 1')
    e(f'buffer_atomic_or v20, v21, {s(S_DBG, 4)}, {s(S_T2)} offen offset:{D_PAIR} sc0')
    e.wait_vm()
    e('ds_write_b32 v21, v20')
    e('s_mov_b64 exec, -1')
    e.wait_lg()
    e.label(f'{name}_elected')
    e('s_barrier')
    e('v_mov_b32 v21, 0')
    e('ds_read_b32 v20, v21')
    e.wait_lg()
    e(f'v_readfirstlane_b32 {s(S_T0)}, v20')
    e('s_barrier')
    e(f's_lshr_b32 {s(S_T0)}, {s(S_T0)}, {s(S_H)}')
    e(f's_and_b32 {s(S_T0)}, {s(S_T0)}, 1')
    e(f's_xor_b32 {s(S_T1)}, {s(S_T1)}, {s(S_T0)}')
    e(f's_cbranch_scc1 {name}_hasrole')
    e(f's_mov_b32 {s(S_MODE)}, 7')
    e.label(f'{name}_work')
    if mega:
        far_jump(e, mega, 44)
    else:
        e('s_endpgm')
    e.label(f'{name}_hasrole')
    e(f'v_mov_b32 {v(LN)}, v16')

    g, c, rp, cp, g1, g2, sw = 16, 17, 18, 19, 20, 21, 22
    T = 23
    e(f'v_lshrrev_b32 {v(g)}, 4, {v(LN)}')
    e(f'v_and_b32 {v(c)}, 15, {v(LN)}')
    e(f'v_lshrrev_b32 {v(rp)}, 2, {v(c)}')
    e(f'v_and_b32 {v(cp)}, 3, {v(LN)}')
    e(f'v_and_b32 {v(g1)}, 1, {v(g)}')
    e(f'v_lshrrev_b32 {v(g2)}, 1, {v(g)}')
    e(f'v_lshl_add_u32 {v(sw)}, {v(g1)}, 1, {v(g2)}')
    e(f'v_lshlrev_b32 {v(V_LANE16)}, 4, {v(LN)}')
    e(f'v_lshlrev_b32 {v(V_L64)}, 6, {v(LN)}')
    e(f'v_lshlrev_b32 {v(V_WA)}, 7, {v(c)}')
    e(f'v_mov_b32 {v(V_M1)}, -1')
    e(f'v_and_b32 {v(T)}, 2, {v(LN)}')
    e(f'v_cmp_ne_u32 vcc, 0, {v(T)}')
    e(f'v_mov_b32 {v(T + 1)}, 0x4444')
    e(f'v_mov_b32 {v(T + 2)}, 0xeeee')
    e(f'v_cndmask_b32 {v(V_IDX)}, {v(T + 1)}, {v(T + 2)}, vcc')
    e(f'v_lshl_add_u32 {v(T)}, {v(g)}, 2, {v(rp)}')
    e(f'v_lshlrev_b32 {v(T + 1)}, 3, {v(cp)}')
    e(f'v_lshl_add_u32 {v(V_AF)}, {v(T)}, 5, {v(T + 1)}')
    e(f'v_and_b32 {v(T + 2)}, 1, {v(cp)}')
    e(f'v_lshlrev_b32 {v(T + 2)}, 3, {v(T + 2)}')
    e(f'v_lshl_add_u32 {v(V_QKR)}, {v(T)}, 4, {v(T + 2)}')
    e(f'v_add_u32 {v(V_QKR)}, {L_MQ}, {v(V_QKR)}')
    e(f's_lshl_b32 {s(S_T0)}, {s(S_W)}, 5')
    e(f'v_add_u32 {v(T)}, {s(S_T0)}, {v(c)}')
    e(f'v_lshlrev_b32 {v(T + 2)}, 2, {v(sw)}')
    e(f'v_lshl_add_u32 {v(V_QKW)}, {v(T)}, 4, {v(T + 2)}')
    e(f'v_add_u32 {v(V_QKW)}, {L_MQ}, {v(V_QKW)}')
    e(f's_lshl_b32 {s(S_T0)}, {s(S_W)}, 2')
    e(f'v_add_u32 {v(T)}, {s(S_T0)}, {v(g)}')
    e(f'v_and_b32 {v(T + 3)}, 7, {v(LN)}')
    e(f'v_lshl_add_u32 {v(T)}, {v(T)}, 3, {v(T + 3)}')
    e(f'v_lshlrev_b32 {v(V_OW)}, 4, {v(T)}')
    e(f'v_add_u32 {v(V_OW)}, {L_O}, {v(V_OW)}')
    e(f'v_and_b32 {v(T)}, 1, {v(rp)}')
    e(f'v_lshrrev_b32 {v(T + 2)}, 1, {v(rp)}')
    e(f'v_lshl_add_u32 {v(T)}, {v(T)}, 1, {v(T + 2)}')
    e(f'v_and_b32 {v(T + 2)}, 1, {v(LN)}')
    e(f'v_lshl_add_u32 {v(T)}, {v(T)}, 1, {v(T + 2)}')
    e(f'v_lshl_add_u32 {v(T)}, {v(g)}, 3, {v(T)}')
    e(f'v_lshrrev_b32 {v(T + 2)}, 1, {v(cp)}')
    e(f'v_lshl_add_u32 {v(T)}, {v(T + 2)}, 5, {v(T)}')
    e(f'v_lshlrev_b32 {v(V_OR)}, 4, {v(T)}')
    e(f'v_add_u32 {v(V_OR)}, {L_O}, {v(V_OR)}')
    e(f'v_lshl_add_u32 {v(T)}, {v(g1)}, 2, {v(cp)}')
    e(f'v_lshlrev_b32 {v(T)}, 4, {v(T)}')
    e(f'v_lshl_add_u32 {v(T)}, {v(g2)}, 3, {v(T)}')
    e(f'v_lshl_add_u32 {v(V_PBST)}, {v(rp)}, 12, {v(T)}')
    e(f'v_and_b32 {v(T)}, 4, {v(LN)}')
    e(f'v_lshl_add_u32 {v(T)}, {v(sw)}, 3, {v(T)}')
    e(f'v_lshl_add_u32 {v(T)}, {v(cp)}, 5, {v(T)}')
    e(f'v_lshlrev_b32 {v(T + 1)}, 27, {v(c)}')
    e(f'v_and_b32 {v(T + 1)}, 0x40000000, {v(T + 1)}')
    e(f'v_or_b32 {v(V_MBST)}, {v(T)}, {v(T + 1)}')
    e(f'v_lshlrev_b32 {v(V_L8)}, 3, {v(LN)}')
    e(f'v_lshlrev_b32 {v(T)}, 4, {v(g)}')
    e(f'v_lshl_add_u32 {v(V_KXG)}, {v(c)}, 8, {v(T)}')
    e(f's_mul_i32 {s(S_LDSW)}, {s(S_W)}, {WL}')
    e(f's_add_u32 {s(S_LDSW)}, {s(S_LDSW)}, {L_WB}')
    e(f'v_add_u32 {v(V_LDSW)}, {s(S_LDSW)}, {v(V_LANE16)}')
    VG_QKV, VG_O, VT_QKV, VT_O = 28, 29, 30, 31
    e(f'v_lshrrev_b32 {v(T + 2)}, 1, {v(rp)}')
    e(f'v_and_b32 {v(T + 3)}, 1, {v(rp)}')
    e(f'v_lshlrev_b32 {v(T + 1)}, 3, {v(cp)}')
    e(f'v_lshl_add_u32 {v(T + 3)}, {v(g2)}, 2, {v(T + 3)}')
    e(f'v_lshl_add_u32 {v(T + 1)}, {v(T + 3)}, 8, {v(T + 1)}')
    e(f's_lshl_b32 {s(S_T0)}, {s(S_W)}, 6')
    e(f's_add_u32 {s(S_T0)}, {s(S_T0)}, {L_WB}')
    e(f'v_add_u32 {v(T + 1)}, {s(S_T0)}, {v(T + 1)}')
    assert WL == 32768
    e(f'v_lshl_add_u32 {v(T + 4)}, {v(g1)}, 1, {v(T + 2)}')
    e(f'v_lshl_add_u32 {v(VT_QKV)}, {v(T + 4)}, 15, {v(T + 1)}')
    e(f'v_lshl_add_u32 {v(T + 4)}, {v(T + 2)}, 1, {v(g1)}')
    e(f'v_lshl_add_u32 {v(VT_O)}, {v(T + 4)}, 15, {v(T + 1)}')
    e(f'v_lshlrev_b32 {v(T + 1)}, 4, {v(c)}')
    e(f'v_mul_u32_u24 {v(VG_O)}, 1280, {v(g)}')
    e(f'v_add_u32 {v(VG_O)}, {v(VG_O)}, {v(T + 1)}')
    e(f'v_lshl_add_u32 {v(VG_QKV)}, {v(g)}, 13, {v(T + 1)}')
    e(f's_lshl_b32 {s(S_T2)}, {s(S_H)}, 8')
    e(f's_lshl_b32 {s(S_T0)}, {s(S_W)}, 17')
    e(f's_add_u32 {s(S_T2)}, {s(S_T2)}, {s(S_T0)}')
    e(f's_mul_i32 {s(S_T3)}, {s(S_H)}, {128 * 1280}')
    e(f's_mul_i32 {s(S_T0)}, {s(S_W)}, {16 * 1280}')
    e(f's_add_u32 {s(S_T3)}, {s(S_T3)}, {s(S_T0)}')
    e(f's_lshl_b32 {s(S_PBST)}, {s(S_W)}, 14')
    e(f's_lshl_b32 {s(S_T0)}, {s(S_H)}, 7')
    e(f's_add_u32 {s(S_PBST)}, {s(S_PBST)}, {s(S_T0)}')
    e(f's_mov_b32 {s(S_STEP)}, 0')
    e('s_mov_b32 s3, 0')
    e(f's_mov_b32 {s(S_MSL)}, 0')
    e(f's_lshl_b32 {s(S_T1)}, {s(S_H)}, 12')
    e(f's_add_u32 {s(S_KMO)}, {s(S_T1)}, {WS_KM}')
    e(f's_lshl_b32 {s(S_T0)}, {s(S_W)}, 9')
    e(f's_add_u32 {s(S_VMO)}, {s(S_KMO)}, {s(S_T0)}')
    e(f's_add_u32 {s(S_NR)}, {s(S_WS)}, 0x5fffff')
    e(f's_and_b32 {s(S_NR)}, {s(S_NR)}, 0xffe00000')
    e(f's_sub_u32 {s(S_NR)}, {s(S_NR)}, {s(S_WS)}')
    e(f's_lshl_b32 {s(S_T0)}, {s(S_W)}, 10')
    e(f's_lshr_b32 {s(S_T1)}, {s(S_H)}, 1')
    e(f's_lshl_b32 {s(S_T1)}, {s(S_T1)}, 14')
    e(f's_add_u32 {s(S_VB0)}, {s(S_T0)}, {s(S_T1)}')
    e(f's_and_b32 {s(S_T1)}, {s(S_H)}, 1')
    e(f's_lshl_b32 {s(S_T1)}, {s(S_T1)}, 12')
    e(f's_add_u32 {s(S_VB0)}, {s(S_VB0)}, {s(S_T1)}')
    e(f's_add_u32 {s(S_VB0)}, {s(S_VB0)}, {NR_VB}')

    def load_weights(ulist, place_, vt_o, tmpbase, first, pre=False):
        def issue(i):
            un = ulist[i]
            pos = i % NRING
            for q in range(4):
                if un[0] == 'o':
                    _, t, p = un
                    e(f's_add_u32 {s(S_T0)}, {s(S_T3)}, {(64 * t + 4 * q) * 1280 + 256 * p}')
                    srdn, vg = S_WO, VG_O
                else:
                    m, t = un
                    e(f's_add_u32 {s(S_T0)}, {s(S_T2)}, {(64 * t + 4 * q) * 8192}')
                    srdn, vg = {'q': S_WQ, 'k': S_WK, 'v': S_WV}[m], VG_QKV
                e(f's_add_u32 m0, {s(S_LDSW)}, {pos * 4096 + q * 1024}')
                e(f'buffer_load_dwordx4 {v(vg)}, {s(srdn, 4)}, {s(S_T0)} offen {wfl} lds', tag=('dma', i))

        def wback(i):
            if i >= 0 and place_[(ulist[i], 0)][0] == 'lds':
                pos = i % NRING
                assert place_[(ulist[i], 1)][1] == 2 * pos + 1 and i + NRING >= len(ulist)
                for n in range(4):
                    e(f'ds_write_b128 {v(V_LDSW)}, {v(tmpbase + 16 * (i & 1) + 4 * n, 4)} offset:{pos * 4096 + 1024 * n}')

        def process(i):
            un = ulist[i]
            pos = i % NRING
            e.wait_vm(('dma', i))
            e('s_barrier')
            if i >= 1 and i - 1 + NRING < len(ulist):
                issue(i - 1 + NRING)
            wback(i - 1)
            vt = vt_o if un[0] == 'o' else VT_QKV
            for tau in range(2):
                kind, loc = place_[(un, tau)]
                dst = loc if kind == 'reg' else tmpbase + 16 * (i & 1) + 8 * tau
                for n in range(4):
                    off = (8 * (n >> 1) + 2 * (n & 1)) * 256 + 32 * tau
                    e(f'ds_read_b64_tr_b16 {u(dst + 2 * n, 2)}, {v(vt)} offset:{pos * 4096 + off}')
            e.wait_lg()
        n = len(ulist)
        if pre:
            first()
        for i in range(NRING):
            issue(i)
        if not pre:
            first()
        for i in range(n):
            process(i)
        e('s_barrier')
        wback(n - 1)

    def init_done(lab, inc='1'):
        e('s_waitcnt vmcnt(0)')
        e('s_barrier')
        e(f's_cmp_lg_u32 {s(S_W)}, 0')
        e(f's_cbranch_scc1 {lab}')
        e(f'v_mov_b32 v44, {D_INIT}')
        e(f'v_mov_b32 v45, {inc}')
        e('s_mov_b64 exec, 1')
        e(f'buffer_atomic_add v45, v44, {s(S_DBG, 4)}, 0 offen')
        e('s_mov_b64 exec, -1')
        e.label(lab)
        e.vm = []
        e.hist = []

    def init_wait(lab, t):
        e(f'v_mov_b32 {v(t + 2)}, 128')
        e.label(lab)
        wd()
        e('s_sleep 8')
        e(f'buffer_load_dwordx2 {v(t, 2)}, {v(t + 2)}, {s(S_DBG, 4)}, 0 offen sc1')
        e('s_waitcnt vmcnt(0)')
        e(f'v_readfirstlane_b32 {s(S_T0)}, {v(t)}')
        e(f'v_readfirstlane_b32 {s(S_T1)}, {v(t + 1)}')
        e(f's_and_b32 {s(S_T0)}, {s(S_T1)}, 0xffff')
        e(f's_cmp_lt_u32 {s(S_T0)}, 64')
        e(f's_cbranch_scc1 {lab}')
        e(f's_lshr_b32 {s(S_T1)}, {s(S_T1)}, 16')
        if 'diag' in dbg:
            e(f's_and_b32 {s(S_T0)}, s2, 7')
            e(f's_lshl_b32 {s(S_T0)}, {s(S_T0)}, 3')
            e(f's_add_u32 {s(S_T0)}, {s(S_T0)}, 8')
            e(f'v_mov_b32 {v(t)}, {s(S_XCC)}')
            e(f'v_mov_b32 {v(t + 1)}, {s(S_T1)}')
            e(f'v_mov_b32 {v(t + 3)}, {s(S_T0)}')
            e(f'buffer_store_dwordx2 {v(t, 2)}, {v(t + 3)}, {s(S_DBG, 4)}, 0 offen')
            e('s_waitcnt vmcnt(0)')
        e(f's_cmp_ge_u32 {s(S_T1)}, 16')
        e(f's_cselect_b32 {s(S_T0)}, 8192, 0')
        if 'far' in dbg:
            e(f's_xor_b32 {s(S_T0)}, {s(S_T0)}, 8192')
        e(f's_add_u32 {s(S_NR)}, {s(S_NR)}, {s(S_T0)}')
        e(f's_add_u32 {s(S_VB0)}, {s(S_VB0)}, {s(S_NR)}')
        e(f's_mov_b32 {s(S_VB)}, {s(S_VB0)}')
        if nmoda:
            e(f'v_mov_b32 {v(t + 1)}, 0')
            e.label(lab + 'm')
            e(f'buffer_load_dword {v(t)}, {v(t + 1)}, {s(S_DBG, 4)}, 0 offen sc1')
            e('s_waitcnt vmcnt(0)')
            e(f'v_readfirstlane_b32 {s(S_T0)}, {v(t)}')
            e(f's_cmp_lt_u32 {s(S_T0)}, {nmoda}')
            e(f's_cbranch_scc1 {lab}m')

    def signal_block(t0):
        e(f's_lshl_b32 {s(S_T2)}, {s(S_T2)}, 7')
        e(f's_add_u32 {s(S_T2)}, {s(S_T2)}, {WS_CTR + C_CH * 128}')
        e(f'v_mov_b32 {v(t0)}, 1')
        e('s_mov_b64 exec, 1')
        e(f'buffer_atomic_add {v(t0)}, {v(V_LANE16)}, {s(S_WS, 4)}, {s(S_T2)} offen')
        e('s_mov_b64 exec, -1')

    def seg_signal():
        e('s_mov_b64 exec, 1')
        e(f'buffer_atomic_sub {v(V_M1)}, {v(V_LANE16)}, {s(S_WS, 4)}, {s(S_SIG)} offen')
        e('s_mov_b64 exec, -1')
        e(f's_add_u32 {s(S_SIG)}, {s(S_SIG)}, 128')

    def step_signal(L):
        if segsig is not None:
            return
        e(f's_and_b32 {s(S_T2)}, {s(S_STEP)}, 3')
        e(f's_lshl_b32 {s(S_T2)}, {s(S_T2)}, 2')
        e(f's_add_u32 {s(S_T2)}, {s(S_T2)}, {s(S_W)}')
        e(f's_cmp_lg_u32 {s(S_T2)}, 3')
        e(f's_cbranch_scc1 {L}_nosig')
        e(f's_cmp_eq_u32 {s(S_STEP)}, 0')
        e(f's_cbranch_scc1 {L}_nosig')
        e.cond_begin()
        e(f's_lshr_b32 {s(S_T2)}, {s(S_STEP)}, 2')
        e(f's_sub_u32 {s(S_T2)}, {s(S_T2)}, 1')
        signal_block(V_WT)
        e.cond_end()
        e.label(f'{L}_nosig')

    def tl(i):
        if 'tl' in dbg:
            e(f's_memrealtime {s(84 + 2 * i, 2)}')

    def tl_out(role, t):
        if 'tl' in dbg:
            e('s_waitcnt lgkmcnt(0)')
            for i in range(4):
                e(f'v_mov_b32 {v(t + i)}, {s(84 + 2 * i)}')
            e(f's_lshl_b32 {s(S_T0)}, {s(S_H)}, 2')
            e(f's_add_u32 {s(S_T0)}, {s(S_T0)}, {s(S_W)}')
            e(f's_lshl_b32 {s(S_T0)}, {s(S_T0)}, 6')
            e(f's_add_u32 {s(S_T0)}, {s(S_T0)}, {s(S_STEP)}')
            e(f's_lshl_b32 {s(S_T0)}, {s(S_T0)}, 4')
            e(f's_add_u32 {s(S_T0)}, {s(S_T0)}, {0x0F100000 + role * 0x40000}')
            e('s_mov_b64 exec, 1')
            e(f'buffer_store_dwordx4 {v(t, 4)}, {v(V_LANE16)}, {s(S_WS, 4)}, {s(S_T0)} offen')
            e('s_mov_b64 exec, -1')
            e.nop(2)

    def wd():
        if 'wd' in dbg:
            e('s_add_u32 s3, s3, 1')
            e('s_cmp_gt_u32 s3, 0x40000')
            _fj[0] += 1
            e(f's_cbranch_scc0 Lwd{_fj[0]}')
            e('s_endpgm')
            e.label(f'Lwd{_fj[0]}')

    def run(mf, side, ratio=2):
        side = list(side)
        for f in mf:
            f()
            for _ in range(ratio):
                if side:
                    side.pop(0)()
        for f in side:
            f()

    def fold(acc, dst):
        return [lambda: e(f'v_pk_add_f32 {v(acc, 2)}, {v(acc, 2)}, {v(acc + 2, 2)}'),
                lambda: e(f'v_cvt_pk_bf16_f32 {v(dst)}, {v(acc)}, {v(acc + 1)}')]

    def stamp_init():
        for i in range(17, 28):
            e(f's_mov_b32 {s(i)}, 0')
        e('s_memtime s[100:101]')
        e('s_waitcnt lgkmcnt(0)')
        for i in range(10):
            e(f's_mov_b32 {s(S_STAMP + 2 * i)}, s100')

    def stamp_acc(n):
        e('s_waitcnt lgkmcnt(0)')
        e(f's_sub_u32 {s(S_T0)}, {s(S_STAMP)}, s100')
        e(f's_add_u32 s17, s17, {s(S_T0)}')
        for i in range(n - 1):
            e(f's_sub_u32 {s(S_T0)}, {s(S_STAMP + 2 * i + 2)}, {s(S_STAMP + 2 * i)}')
            e(f's_add_u32 {s(18 + i)}, {s(18 + i)}, {s(S_T0)}')
        e(f's_mov_b32 s100, {s(S_STAMP + 2 * (n - 1))}')

    def stamp_out():
        e('v_mov_b32 v40, 0')
        for i in range(11):
            e(f'v_writelane_b32 v40, {s(17 + i)}, {i}')
        e(f'v_lshrrev_b32 v41, 2, {v(V_LANE16)}')
        e(f's_lshl_b32 {s(S_T0)}, {s(S_H)}, 2')
        e(f's_add_u32 {s(S_T0)}, {s(S_T0)}, {s(S_W)}')
        e(f's_lshl_b32 {s(S_T0)}, {s(S_T0)}, 8')
        e(f's_add_u32 {s(S_T0)}, {s(S_T0)}, 0x0F000000')
        e(f'buffer_store_dword v40, v41, {s(S_WS, 4)}, {s(S_T0)} offen')

    e(f's_cmp_eq_u32 {s(S_MODE)}, 0')
    e(f's_cbranch_scc1 {name}_chain')
    far_jump(e, f'{name}_helper', 44)
    e.label(f'{name}_chain')

    pool = Pool(NPERS, pool_end)
    cc = f32bits((128 ** -0.5) * 1.4426950408889634)
    e(f's_mov_b32 {s(S_C1)}, {cc:#x}')
    e(f's_mov_b32 {s(S_C1 + 1)}, {cc:#x}')
    e(f's_mov_b32 {s(S_MASKLO)}, -1')
    e(f's_mov_b32 {s(S_MASKLO + 1)}, 0')
    e(f's_lshl_b32 {s(S_T0)}, {s(S_H)}, 1')
    e(f's_add_u32 {s(S_T0)}, {s(S_T0)}, {s(S_W)}')
    e(f's_add_u32 {s(S_UNIT)}, {s(S_T0)}, 16')
    e(f's_cmp_lt_u32 {s(S_H)}, 16')
    e(f's_cselect_b32 {s(S_T0)}, {s(S_H)}, 255')
    e(f's_cmp_eq_u32 {s(S_W)}, 2')
    e(f's_cselect_b32 {s(S_UNIT)}, {s(S_T0)}, {s(S_UNIT)}')
    e(f's_cmp_eq_u32 {s(S_W)}, 3')
    e(f's_cselect_b32 {s(S_UNIT)}, 255, {s(S_UNIT)}')
    e(f's_mul_i32 {s(S_GOF)}, {s(S_W)}, 2560')

    def chain_init():
        e('s_load_dwordx2 s[76:77], s[0:1], 8')
        for j in range(4):
            e(f'v_mov_b32 {v(40 + j)}, -1')
        e(f's_lshl_b32 {s(S_T0)}, {s(S_H)}, 2')
        e(f's_add_u32 {s(S_T0)}, {s(S_T0)}, {s(S_W)}')
        e(f's_mul_i32 {s(S_T1)}, {s(S_T0)}, 2560')
        for sl_ in range(2):
            e(f's_add_u32 s78, {s(S_T1)}, {WS_PB + sl_ * PB_STRIDE}')
            for i in range(3):
                e(f'buffer_store_dwordx4 v[40:43], {v(V_LANE16)}, {s(S_WS, 4)}, s78 offen offset:{1024 * i} sc1')
        e(f's_lshl_b32 s78, {s(S_T0)}, 10')
        e(f's_add_u32 s79, s78, {WS_MB + MB_STRIDE}')
        e(f'buffer_store_dwordx4 v[40:43], {v(V_LANE16)}, {s(S_WS, 4)}, s79 offen sc1')
        e(f's_add_u32 s79, s78, {s(S_NR)}')
        e('s_add_u32 s79, s79, 32768')
        e(f's_cmp_ge_u32 {s(S_T0)}, 96')
        e('s_cselect_b32 s79, 0x40000000, s79')
        e(f'buffer_store_dwordx4 v[40:43], {v(V_LANE16)}, {s(S_WS, 4)}, s79 offen sc1')
        e('s_waitcnt lgkmcnt(0)')
        e('s_mov_b32 s80, s76')
        e('s_and_b32 s81, s77, 0xffff')
        e('s_mov_b32 s82, 10240')
        e('s_mov_b32 s83, 0x20000')
        e(f's_cmp_ge_u32 {s(S_T0)}, 40')
        e(f's_cbranch_scc1 {name}_nom0')
        e(f's_lshl_b32 s78, {s(S_T0)}, 6')
        e(f'v_lshrrev_b32 v44, 4, {v(V_LANE16)}')
        e('v_add_u32 v44, s78, v44')
        e('v_and_b32 v45, 1, v44')
        e('v_bfe_u32 v46, v44, 1, 2')
        e('v_bfe_u32 v47, v44, 3, 4')
        e('v_lshrrev_b32 v48, 7, v44')
        e('v_lshl_add_u32 v47, v45, 4, v47')
        e('v_lshl_add_u32 v47, v48, 5, v47')
        e('v_mul_u32_u24 v46, 2560, v46')
        e('v_lshl_add_u32 v46, v47, 1, v46')
        e('buffer_load_ushort v45, v46, s[80:83], 0 offen')
        e('buffer_load_ushort v47, v46, s[80:83], 0 offen offset:1280')
        e('v_lshlrev_b32 v44, 2, v44')
        e('s_waitcnt vmcnt(0)')
        e('v_lshl_or_b32 v45, v47, 16, v45')
        e('v_min_u32 v45, 0xfffffffe, v45')
        e(f's_mov_b32 s78, {WS_MB}')
        e(f's_cmp_ge_u32 {s(S_T0)}, 32')
        e('s_cselect_b32 s79, 8192, 0')
        e(f's_add_u32 s79, s79, {s(S_NR)}')
        e('s_add_u32 s80, s79, 8192')
        e(f'buffer_store_dword v45, v44, {s(S_WS, 4)}, s78 offen sc1')
        e(f'buffer_store_dword v45, v44, {s(S_WS, 4)}, s79 offen sc1')
        e(f'buffer_store_dword v45, v44, {s(S_WS, 4)}, s80 offen sc1')
        e.label(f'{name}_nom0')
        e(f's_lshl_b32 {s(S_T0)}, 1, {s(S_XCC)}')
        e(f'v_mov_b32 v44, {D_SLOW}')
        e(f'v_mov_b32 v45, {s(S_T0)}')
        e(f's_cmp_eq_u32 {s(S_W)}, 0')
        e('s_cselect_b64 exec, 1, 0')
        e(f'buffer_atomic_or v45, v44, {s(S_DBG, 4)}, 0 offen')
        e('s_mov_b64 exec, -1')
        init_done(f'{name}_noib')

    load_weights(units, place, VT_O, 48, chain_init)
    e.wait_lg()
    e('s_barrier')

    TT = NPERS
    e(f'v_and_b32 {v(TT)}, 16, {v(V_LANE16)}')
    e(f's_mov_b32 {s(S_T0)}, 0x3f80')
    e(f'v_lshlrev_b32 {v(TT)}, {v(TT)}, {s(S_T0)}')
    e(f'v_bfe_u32 {v(TT + 1)}, {v(V_LANE16)}, 5, 2')
    for rr in range(4):
        e(f'v_cmp_eq_u32 vcc, {rr}, {v(TT + 1)}')
        e(f'v_cndmask_b32 {v(V_SEL + rr)}, 0, {v(TT)}, vcc')
        e(f'v_mov_b32 {v(V_ONES + rr)}, 0x3f803f80')
    e(f'v_mov_b32 {v(V_PM + 1)}, 0')
    e(f'v_mov_b32 {v(V_PM + 2)}, 0')
    e(f's_add_u32 {s(S_MBP)}, {s(S_GOF)}, {WS_MB}')
    e(f's_add_u32 {s(S_PBST)}, {s(S_PBST)}, {WS_PB}')
    for p in range(1, 5):
        e(f's_add_u32 {s(S_PBST + p)}, {s(S_PBST)}, {p * 65536}')
    e(f's_lshl_b32 {s(S_T0)}, {s(S_UNIT)}, 12')
    e(f's_add_u32 {s(S_PBLD)}, {s(S_T0)}, {WS_PB}')
    e(f's_lshl_b32 {s(S_MBL)}, {s(S_UNIT)}, 7')
    e(f's_add_u32 {s(S_MBL)}, {s(S_MBL)}, {WS_MB}')
    e(f's_mov_b32 {s(S_MBC)}, {s(S_MBL)}')
    e(f's_add_u32 {s(S_MBN)}, {s(S_MBL)}, {MB_STRIDE}')
    e(f's_lshl_b32 {s(S_SH13)}, {s(S_H)}, 13')
    e(f's_lshl_b32 {s(S_T0)}, {s(S_W)}, 11')
    e(f's_add_u32 {s(S_VXO)}, {s(S_T0)}, {s(S_SH13)}')
    e(f's_add_u32 {s(S_WRM)}, {s(S_VXO)}, {WS_KX + 32 * 8192}')
    e(f's_add_u32 {s(S_VXO)}, {s(S_VXO)}, {WS_VXT}')
    e(f's_add_u32 {s(S_KXM)}, {s(S_T0)}, {L_KX}')
    e(f's_lshr_b32 {s(S_T0)}, {s(S_W)}, 1')
    e(f's_lshl_b32 {s(S_T0)}, {s(S_T0)}, 12')
    e(f's_and_b32 {s(S_T1)}, {s(S_W)}, 1')
    e(f's_lshl_b32 {s(S_T1)}, {s(S_T1)}, 7')
    e(f's_add_u32 {s(S_KXW)}, {s(S_T0)}, {s(S_T1)}')
    e(f's_add_u32 {s(S_KXW)}, {s(S_KXW)}, {s(S_SH13)}')
    e(f's_add_u32 {s(S_KXW)}, {s(S_KXW)}, {WS_KX}')

    def kx_items():
        return [
            lambda: e(f's_mov_b32 m0, {s(S_KXM)}'),
            lambda: e(f's_add_u32 {s(S_T0)}, {s(S_KXW)}, 64'),
            lambda: e(f'buffer_load_dwordx4 {v(V_KXG)}, {s(S_WS, 4)}, {s(S_KXW)} offen {ldfl} lds', tag='kx'),
            lambda: e(f's_add_u32 m0, {s(S_KXM)}, 1024'),
            lambda: e(f's_add_u32 {s(S_KXW)}, {s(S_KXW)}, {32 * 8192}'),
            lambda: e(f'buffer_load_dwordx4 {v(V_KXG)}, {s(S_WS, 4)}, {s(S_T0)} offen {ldfl} lds', tag='kx'),
            lambda: e(f's_add_u32 m0, {s(S_KXM)}, 8192'),
            lambda: e(f's_nop 0'),
            lambda: e(f'buffer_load_dwordx4 {v(V_LANE16)}, {s(S_WS, 4)}, {s(S_VXO)} offen {ldfl} lds', tag='kx'),
            lambda: e(f'buffer_load_dwordx4 {v(V_LANE16)}, {s(S_WS, 4)}, {s(S_VXO)} offen offset:1024 {ldfl} lds', tag='kx'),
            lambda: e(f's_add_u32 {s(S_VXO)}, {s(S_VXO)}, {32 * 8192}'),
        ]

    def kv_wait(lab, t1):
        e(f's_cmp_ge_u32 {s(S_KVOK)}, {s(S_T2)}')
        e(f's_cbranch_scc1 {lab}_ok')
        e.cond_begin()
        e(f's_mov_b32 {s(S_T3)}, {WS_CTR + C_KV * 128}')
        e.label(f'{lab}_spin')
        e(f'buffer_load_dword {v(t1)}, {v(V_WA)}, {s(S_WS, 4)}, {s(S_T3)} offen sc1')
        e('s_waitcnt vmcnt(0)')
        e(f'v_cmp_le_u32 vcc, {kvt}, {v(t1)}')
        e(f's_and_b32 {s(S_KVOK)}, vcc_lo, 0xffff')
        e(f's_ff0_i32_b32 {s(S_KVOK)}, {s(S_KVOK)}')
        e(f's_cmp_ge_u32 {s(S_KVOK)}, {s(S_T2)}')
        e(f's_cbranch_scc0 {lab}_spin')
        e.cond_end()
        e.label(f'{lab}_ok')

    def claim(b, n):
        for i in range(n):
            assert (b + i) in pool.free_, ('claim', b, n)
            pool.free_.remove(b + i)

    ACC = pool.must(24)
    VACC = ACC + 16
    V_EX = V_L8
    if 'rt' in dbg:
        e('s_memrealtime s[94:95]')
        e('s_waitcnt lgkmcnt(0)')
    init_wait(f'{name}_ibw', ACC)
    e(f's_lshl_b32 {s(S_MBL2)}, {s(S_UNIT)}, 7')
    e(f's_cmp_ge_u32 {s(S_UNIT)}, 64')
    e(f's_cselect_b32 {s(S_T0)}, 8192, 0')
    e(f's_add_u32 {s(S_MBL2)}, {s(S_MBL2)}, {s(S_T0)}')
    e(f's_add_u32 {s(S_MBL2)}, {s(S_MBL2)}, {s(S_NR)}')
    e(f's_cmp_ge_u32 {s(S_UNIT)}, 80')
    e(f's_cselect_b32 {s(S_MBL2)}, 0x40000000, {s(S_MBL2)}')
    e(f's_cmp_lt_u32 {s(S_UNIT)}, {8 * NH1 if defer else 80}')
    e(f's_cselect_b32 {s(S_MBE0)}, {s(S_MBL2)}, 0x40000000')
    e(f's_cselect_b32 {s(S_MBD0)}, 0x40000000, {s(S_MBL2)}')
    e(f's_add_u32 {s(S_MBN2)}, {s(S_MBE0)}, 32768')
    e(f's_mov_b32 {s(S_MBD2)}, 0x40000000')
    e(f's_add_u32 {s(S_MBR2)}, {s(S_MBL2)}, 65536')
    e(f'buffer_load_dword {v(ACC)}, {v(ACC + 2)}, {s(S_DBG, 4)}, 0 offen offset:8 sc1')
    e('s_waitcnt vmcnt(0)')
    e(f'v_readfirstlane_b32 {s(S_MODE)}, {v(ACC)}')
    e(f's_sub_u32 {s(S_T0)}, {s(S_MODE)}, 1')
    e(f's_and_b32 {s(S_MODE)}, {s(S_MODE)}, {s(S_T0)}')
    if 'slow' in dbg:
        e(f's_mov_b32 {s(S_MODE)}, 1')
    if mega:
        e(f's_mov_b32 {s(S_KVOK)}, 0')
        e(f's_mov_b32 {s(S_T2)}, 1')
        kv_wait(f'{name}_kv0', ACC)
    pre_slots = [sl for sl in order if place[sl][0] == 'lds'][:npre]
    PRE = [pool.alloc(8, 8, top=True) for _ in pre_slots]

    def pre_load():
        for sl, b in zip(pre_slots, PRE):
            loc = place[sl][1] * 2048
            e(f'ds_read_b128 {v(b, 4)}, {v(V_LDSW)} offset:{loc}')
            e(f'ds_read_b128 {v(b + 4, 4)}, {v(V_LDSW)} offset:{loc + 1024}')
    pre_load()
    for it in kx_items():
        it()
    e('s_waitcnt vmcnt(0) lgkmcnt(0)')
    e.vm = []
    e.lg = []
    if 'rt' in dbg:
        e('s_memrealtime s[98:99]')
        e('s_waitcnt lgkmcnt(0)')
    if 'tot' in dbg:
        e('s_memtime s[96:97]')
        e('s_waitcnt lgkmcnt(0)')
    if stamps:
        stamp_init()
    if slow:
        e(f's_cmp_lg_u32 {s(S_MODE)}, 0')
        e(f's_cbranch_scc1 {name}_slow')

    def body(sc, L):
        stamp_i = [0]
        call_i = [0]

        def stamp():
            call_i[0] += 1
            if stamps and (call_i[0] - 1) in stsel:
                e(f's_memtime {s(S_STAMP + 2 * stamp_i[0], 2)}')
                stamp_i[0] += 1

        e.label(L)
        e.hist = []
        e.vm = []
        e.lg = []
        stamp()
        G0, GM = ACC, ACC + 12
        e(f'v_add_u32 {v(GM + 1)}, {s(S_GOF)}, {v(V_LANE16)}')
        e('s_barrier')
        if adel:
            e(f's_sleep {adel}')
        e.label(f'{L}_pollA')
        e.hist = []
        wd()
        if stamps:
            e('s_add_u32 s27, s27, 0x10000')
        for i in range(3):
            e(f'buffer_load_dwordx4 {v(G0 + 4 * i, 4)}, {v(V_LANE16)}, {s(S_WS, 4)}, {s(S_MBP)} offen offset:{(0, 1024, 1536)[i]} sc1')
        for i in range(3):
            e(f's_waitcnt vmcnt({2 - i})')
            e(f'ds_write_b128 {v(GM + 1)}, {v(G0 + 4 * i, 4)} offset:{(0, 1024, 1536)[i]}')
        e(f'v_max3_u32 {v(GM)}, {v(G0)}, {v(G0 + 4)}, {v(G0 + 8)}')
        e(f'v_cmp_eq_u32 vcc, -1, {v(GM)}')
        e('s_mov_b64 exec, vcc')
        e(f's_cbranch_execnz {L}_pollA')
        e('s_mov_b64 exec, -1')
        e('s_waitcnt lgkmcnt(0)')
        e.label(f'{L}_gd')
        e('s_barrier')
        e.vm = []
        e.lg = []
        e.hist = []
        stamp()
        tl(0)
        pool.free(VACC, 8)

        loaded = {sl: b for sl, b in zip(pre_slots, PRE)}
        lds_pending = [sl for sl in order if place[sl][0] == 'lds' and sl not in loaded]
        st = dict(reserve=8, aflim=10)

        def pump_lds(cur_idx, force=False):
            while lds_pending and order.index(lds_pending[0]) <= cur_idx + la_lds:
                need = force and order.index(lds_pending[0]) <= cur_idx
                b = pool.alloc(8, 8, top=True, reserve=0 if need else st['reserve'])
                if b is None:
                    assert not need, 'no buffer for lds slot'
                    return
                lead = order.index(lds_pending[0]) - cur_idx
                if lead < 4 and cur_idx != NA:
                    print('; WARNING short lds lead', order.index(lds_pending[0]), lead)
                sl = lds_pending.pop(0)
                loc = place[sl][1] * 2048
                e(f'ds_read_b128 {v(b, 4)}, {v(V_LDSW)} offset:{loc}', tag=('lw', sl))
                e(f'ds_read_b128 {v(b + 4, 4)}, {v(V_LDSW)} offset:{loc + 1024}', tag=('lw', sl))
                loaded[sl] = b

        def smf(acc, af, sl):
            idx = order.index(sl)
            kind, loc = place[sl]
            if kind == 'reg':
                b = loc
            else:
                if sl not in loaded:
                    pump_lds(idx, True)
                b = loaded[sl]
                e.wait_lg(('lw', sl))
            e(f'v_smfmac_f32_16x16x64_bf16 {v(acc, 4)}, {v(af, 4)}, {u(b, 8)}, {v(V_IDX)}')
            if kind != 'reg':
                pool.free(b, 8)
            pump_lds(idx + 1)

        AF = {}
        afpos = [0]
        first_use = [min(i for i, o in enumerate(order[:40]) if o[0][1] == t) for t in range(10)]

        def af_pump(i, lead=None):
            while afpos[0] < st['aflim'] and first_use[afpos[0]] - i <= (lead or afl):
                k = afpos[0]
                b = pool.alloc(4)
                if b is None:
                    assert first_use[k] - i > 1, 'AF starved'
                    return
                afpos[0] += 1
                AF[k] = b
                e(f'ds_read_b64_tr_b16 {v(b, 2)}, {v(V_AF)} offset:{1024 * k}', tag=('af', k))
                e(f'ds_read_b64_tr_b16 {v(b + 2, 2)}, {v(V_AF)} offset:{1024 * k + 512}', tag=('af', k))

        af_pump(0)
        for j in range(0, 16, 2):
            e(f'v_mov_b64 {v(ACC + j, 2)}, 0')
        accof = {'q': 0, 'k': 8, 'v': 16}
        waited = set()

        def mk(i, sl):
            (m, t), tau = sl
            last = not any(o[0][1] == t for o in order[i + 1:40])

            def f():
                if t not in waited:
                    e.wait_lg(('af', t))
                    waited.add(t)
                smf(ACC + accof[m] + 4 * tau, AF[t], sl)
                if last:
                    pool.free(AF[t], 4)
                af_pump(i + 1)
            return f
        mf = [mk(i, sl) for i, sl in enumerate(order[:40])]
        run(mf[:wat], [], 0)

        def warm_items(pos):
            it = []
            for p_, what in warm:
                if p_ != pos:
                    continue
                if what:
                    it.append(lambda: e(f's_add_u32 {s(S_T0)}, {s(S_WRM)}, {WS_VXT - WS_KX}'))
                it.append(lambda what=what: e(f'buffer_load_dword {v(V_WT)}, {v(V_WA)}, {s(S_WS, 4)}, {s(S_T0 if what else S_WRM)} offen', tag='warm'))
            return it
        cold = [lambda: e(f'buffer_store_dword {v(V_EX)}, {v(V_MBST)}, {s(S_WS, 4)}, {s(S_MBD2)} offen sc1'),
                lambda: e(f'buffer_store_dword {v(V_M1)}, {v(V_MBST)}, {s(S_WS, 4)}, {s(S_MBR2)} offen sc1')]
        if not (defer and nvl):
            cold = cold[1:]
        if mega:
            e(f's_add_u32 {s(S_T2)}, {s(S_STEP)}, 5')
            e(f's_lshr_b32 {s(S_T2)}, {s(S_T2)}, 2')
            e(f's_min_u32 {s(S_T2)}, {s(S_T2)}, 16')
            kv_wait(f'{L}_kv', V_WT)
        run(mf[wat:wat2], warm_items('a') + cold, 2)
        run(mf[wat2:NQE - 4], warm_items('a2'), 2)
        st['reserve'] = 99
        SM = pool.alloc(8, 8, top=True)
        ZQ = SM
        ZVF = SM + 4
        kxb, sbuf = {}, {}

        def kx_read(f_, rsv=0):
            def g_():
                b = pool.alloc(4, reserve=rsv)
                if b is None:
                    return
                kxb[f_] = b
                e(f'ds_read_b128 {v(b, 4)}, {v(V_LANE16)} offset:{L_KX + f_ * 1024}', tag=('kx', f_))
            return g_

        def qm_read(kind, uu):
            def g_():
                b = sbuf[(kind, uu)] = pool.must(4)
                base = 0 if kind == 'q' else 2048
                for m in range(2):
                    e(f'ds_read_b64_tr_b16 {v(b + 2 * m, 2)}, {v(V_QKR)} offset:{base + uu * 512 + m * 256}', tag=('si', kind, uu))
            return g_

        def v_load():
            tl(1)
            e(f'buffer_load_dwordx4 {v(ZVF, 4)}, {v(V_LANE16)}, {s(S_WS, 4)}, {s(S_VB)} offen sc1', tag='vm')
        run(mf[NQE - 4:NQE], [], 1)
        late = mf[NQE:40]
        qf = fold(ACC, ZQ) + fold(ACC + 4, ZQ + 1) + [
            lambda: e(f'ds_write2st64_b32 {v(V_QKW)}, {v(ZQ)}, {v(ZQ + 1)} offset0:0 offset1:1', tag='qw')]
        kf = fold(ACC + 8, ZQ + 2) + fold(ACC + 12, ZQ + 3) + [
            lambda: e(f'ds_write2st64_b32 {v(V_QKW)}, {v(ZQ + 2)}, {v(ZQ + 3)} offset0:8 offset1:9', tag='kw')]
        run(late[:1], [kx_read(0, 4), kx_read(4, 4)], 2)
        run(late[1:3], qf, 3)
        run(late[3:6], [kx_read(1, 16), kx_read(5, 16), kx_read(2, 16)], 1)
        stamp()
        e.wait_lg('qw')
        e('s_barrier')
        pool.free(ACC, 8)
        SX = ACC
        claim(SX, 8)
        todo = []
        for uu in range(4):
            todo += [('q', uu)] + [('x', f_) for f_ in (uu, uu + 4) if f_ not in kxb]

        def try4():
            b = pool.alloc(4)
            if b is None:
                return False
            pool.free(b, 4)
            return True

        def s_fill2(maxn=99):
            n = 0
            while todo and n < maxn and try4():
                kind, x = todo.pop(0)
                if kind == 'x':
                    kx_read(x)()
                else:
                    qm_read(kind, x)()
                n += 1
        s_fill2(1)
        run(late[6:], [lambda: s_fill2(2)] * 4, 1)
        stamp()

        def sx(uu, ti):
            def f():
                f_ = uu + 4 * ti
                assert ('q', uu) in sbuf and f_ in kxb, 'S starved'
                e.wait_lg(('si', 'q', uu))
                e.wait_lg(('kx', f_))
                cin = '0' if uu == 0 else v(SX + 4 * ti, 4)
                e(f'v_mfma_f32_16x16x32_bf16 {v(SX + 4 * ti, 4)}, {v(kxb[f_], 4)}, {v(sbuf[("q", uu)], 4)}, {cin}')
                pool.free(kxb[f_], 4)
                s_fill2()
            return f
        sxl = [sx(uu, ti) for uu in range(4) for ti in range(2)]
        run(sxl[:2], [], 0)
        run([], kf, 0)
        run(sxl[2:4], [], 0)
        if v_at == 0:
            v_load()
        e.wait_lg('kw')
        e('s_barrier')
        pool.free(ACC + 8, 8)
        C0 = ACC + 8
        claim(C0, 4)
        todo_m = [('m', uu) for uu in range(4)]
        todo[:] = todo_m[:1] + todo + todo_m[1:]
        s_fill2()
        run(sxl[4:], [], 0)
        if v_at == 1:
            v_load()
        M = SM
        for uu in range(4):
            s_fill2()
            e.wait_lg(('si', 'm', uu))
            cin = '0' if uu == 0 else v(C0, 4)
            e(f'v_mfma_f32_16x16x32_bf16 {v(C0, 4)}, {v(sbuf[("m", uu)], 4)}, {v(sbuf[("q", uu)], 4)}, {cin}')
            pool.free(sbuf[('m', uu)], 4)
            pool.free(sbuf[('q', uu)], 4)
        assert not todo
        VA_ = pool.must(8)
        OACC = [pool.must(8) for _ in range(noa)]
        AFV = {}
        for t in range(NH1, 10):
            b = AFV[t] = OACC[(t - NH1) >> 1] + 4 * ((t - NH1) & 1)
            e(f'ds_read_b64_tr_b16 {v(b, 2)}, {v(V_AF)} offset:{1024 * t}', tag=('afv', t))
            e(f'ds_read_b64_tr_b16 {v(b + 2, 2)}, {v(V_AF)} offset:{1024 * t + 512}', tag=('afv', t))
        for j in range(0, 8 if nvl else 0, 2):
            e(f'v_mov_b64 {v(VA_ + j, 2)}, 0')

        def mkv(t, tau):
            def f():
                if tau == 0:
                    e.wait_lg(('afv', t))
                smf(VA_ + 4 * tau, AFV[t], (('v', t), tau))
            return f
        vmf = [mkv(t, tau) for t in range(NH1, 10) for tau in range(2)]
        P = pool.must(4)
        OA = pool.must(12)
        VX = pool.must(8)
        e(f'v_add_u32 {v(VX)}, {s(S_KXM)}, {v(V_LANE16)}')
        if v_at == 2:
            v_load()
        stamp()
        sm = []

        def V(x):
            sm.append(lambda: e(x))
        V(f'v_max3_f32 {v(M)}, {v(SX)}, {v(SX + 1)}, {v(SX + 2)}')
        V(f'v_max3_f32 {v(M + 1)}, {v(SX + 3)}, {v(SX + 4)}, {v(SX + 5)}')
        V(f'v_max3_f32 {v(M)}, {v(M)}, {v(SX + 6)}, {v(SX + 7)}')
        V(f'v_cndmask_b32 {v(C0)}, {v(C0 + 2)}, {v(C0)}, {s(S_MASKLO, 2)}')
        V(f'v_cndmask_b32 {v(C0 + 1)}, {v(C0 + 3)}, {v(C0 + 1)}, {s(S_MASKLO, 2)}')
        V(f'v_max3_f32 {v(M + 1)}, {v(M + 1)}, {v(C0)}, {v(C0 + 1)}')
        V(f'v_max_f32 {v(M)}, {v(M)}, {v(M + 1)}')
        V(f'v_max_f32 {v(M + 1)}, {v(M)}, {v(M + 1)}')
        V(f'v_permlane32_swap_b32 {v(M)}, {v(M + 1)}')
        V(f'v_max_f32 {v(M + 2)}, {v(M)}, {v(M + 1)}')
        V(f'v_max_f32 {v(M + 1)}, {v(M)}, {v(M + 1)}')
        V(f'v_permlane16_swap_b32 {v(M + 2)}, {v(M + 1)}')
        V(f'v_max_f32 {v(M)}, {v(M + 2)}, {v(M + 1)}')
        V(f'v_mul_f32 {v(M)}, {s(S_C1)}, {v(M)}')
        bub = {8: 1, 9: 1, 11: 1, 12: 1}
        for i, f in enumerate(sm):
            for _ in range(bub.get(i, 0)):
                if vmf:
                    vmf.pop(0)()
            f()
        if v_at == 3:
            v_load()
        e(f'ds_read_b128 {v(VX + 4, 4)}, {v(VX)} offset:{8192 + 1024}', tag='vx')
        e(f'ds_read_b128 {v(VX, 4)}, {v(VX)} offset:8192', tag='vx')
        for j in range(0, 10, 2):
            e(f'v_pk_fma_f32 {v(SX + j, 2)}, {v(SX + j, 2)}, {s(S_C1, 2)}, {v(M, 2)} op_sel_hi:[1,1,0] neg_lo:[0,0,1] neg_hi:[0,0,1]')
            if vmf:
                vmf.pop(0)()
        while vmf:
            vmf.pop(0)()
        zl = [(lambda b=b, j=j: e(f'v_mov_b64 {v(b + j, 2)}, 0')) for b in OACC for j in range(0, 8, 2)]

        def z(n=1):
            for _ in range(n):
                if zl:
                    zl.pop(0)()
        for j in range(8):
            e(f'v_exp_f32 {v(SX + j)}, {v(SX + j)}')
        for j in range(4):
            e(f'v_cvt_pk_bf16_f32 {v(P + j)}, {v(SX + 2 * j)}, {v(SX + 2 * j + 1)}')
        e.wait_lg('vx')
        e(f'v_exp_f32 {v(C0)}, {v(C0)}')
        e(f'v_mfma_f32_16x16x32_bf16 {v(OA + 8, 4)}, {v(V_ONES, 4)}, {v(P, 4)}, 0')
        e(f'v_exp_f32 {v(C0 + 1)}, {v(C0 + 1)}')
        e(f'v_mfma_f32_16x16x32_bf16 {v(OA, 4)}, {v(VX, 4)}, {v(P, 4)}, 0')
        e(f'v_cvt_pk_bf16_f32 {v(V_PM)}, {v(C0)}, {v(C0 + 1)}')
        e(f'v_cvt_pk_bf16_f32 {v(V_PM + 3)}, {v(C0)}, {v(C0 + 1)}')
        e(f'v_mfma_f32_16x16x32_bf16 {v(OA + 4, 4)}, {v(VX + 4, 4)}, {v(P, 4)}, 0')
        if nvl:
            e(f'v_pk_add_f32 {v(VA_, 2)}, {v(VA_, 2)}, {v(VA_ + 2, 2)}')
            e(f'v_pk_add_f32 {v(VA_ + 4, 2)}, {v(VA_ + 4, 2)}, {v(VA_ + 6, 2)}')
        e(f'v_mfma_f32_16x16x16_bf16 {v(OA + 8, 4)}, {v(V_ONES, 2)}, {v(V_PM, 2)}, {v(OA + 8, 4)}')
        z(4)
        if 'nov' not in dbg:
            e.wait_vm('vm')
            e(f'v_cmp_eq_u32 vcc, -1, {v(ZVF)}')
            e(f's_cbranch_vccnz {L}_fixv')
            e.label(f'{L}_pv2')
        ZV = VA_ + 2
        if nvl:
            e(f'v_pk_add_f32 {v(ZVF, 2)}, {v(ZVF, 2)}, {v(VA_, 2)}')
            e(f'v_pk_add_f32 {v(ZVF + 2, 2)}, {v(ZVF + 2, 2)}, {v(VA_ + 4, 2)}')
        e(f'v_cvt_pk_bf16_f32 {v(ZV)}, {v(ZVF)}, {v(ZVF + 1)}')
        e(f'v_cvt_pk_bf16_f32 {v(ZV + 1)}, {v(ZVF + 2)}, {v(ZVF + 3)}')
        e(f'v_rcp_f32 {v(M)}, {v(OA + 8)}')
        z(1)
        e(f'v_mfma_f32_16x16x16_bf16 {v(OA, 4)}, {v(ZV, 2)}, {v(V_PM, 2)}, {v(OA, 4)}')
        e(f'v_mfma_f32_16x16x16_bf16 {v(OA + 4, 4)}, {v(ZV, 2)}, {v(V_PM + 2, 2)}, {v(OA + 4, 4)}')
        pool.free(SX, 8)
        pool.free(VX, 8)
        pool.free(C0, 4)
        pool.free(VA_, 8)
        OF = pool.must(8)
        z(99)
        st['reserve'] = 0
        pump_lds(NA)
        for j in range(0, 8, 2):
            e(f'v_pk_mul_f32 {v(OA + j, 2)}, {v(OA + j, 2)}, {v(M, 2)} op_sel_hi:[1,0]')
        for j in range(4):
            e(f'v_cvt_pk_bf16_f32 {v(P + j)}, {v(OA + 2 * j)}, {v(OA + 2 * j + 1)}')
        e(f'ds_write_b128 {v(V_OW)}, {v(P, 4)}', tag='ow')
        pool.free(OA, 12)
        for x in [f's_add_u32 {s(S_WRM)}, {s(S_WRM)}, {32 * 8192}',
                  f's_add_u32 {s(S_MSL)}, {s(S_MSL)}, {MB_STRIDE}', f's_and_b32 {s(S_MSL)}, {s(S_MSL)}, {3 * MB_STRIDE}',
                  f's_add_u32 {s(S_T0)}, {s(S_MSL)}, {WS_MB}',
                  f's_add_u32 {s(S_MBP)}, {s(S_T0)}, {s(S_GOF)}',
                  f's_lshl_b32 {s(S_T0)}, {s(S_MSL)}, 4', f's_add_u32 {s(S_VB)}, {s(S_VB0)}, {s(S_T0)}',
                  f's_add_u32 {s(S_STEP)}, {s(S_STEP)}, 1']:
            e(x)
        e.wait_lg('ow')
        e('s_barrier')
        pool.free(P, 4)
        e(f'ds_read_b128 {v(OF, 4)}, {v(V_OR)}', tag='of0')
        e(f'ds_read_b128 {v(OF + 4, 4)}, {v(V_OR)} offset:1024', tag='of1')
        pump_lds(NA)
        kxi = kx_items()
        for f in kxi[:6]:
            f()
        stamp()
        ZO = [SM, SM + 2, SM + 4]

        def finish(p):
            ac = OACC[p % noa]
            zz = ZO[p % 3]
            it = fold(ac, zz) + fold(ac + 4, zz + 1)
            if p + noa < 5:
                it += [(lambda j=j: e(f'v_mov_b64 {v(ac + j, 2)}, 0')) for j in range(0, 4, 2)]
            it += [lambda: e(f'v_permlane16_swap_b32 {v(zz)}, {v(zz + 1)}'),
                   lambda: e(f'buffer_store_dwordx2 {v(zz, 2)}, {v(V_PBST)}, {s(S_WS, 4)}, {s(S_PBST + p)} offen {sc}', tag='pst')]
            if p + noa < 5:
                it += [(lambda j=j: e(f'v_mov_b64 {v(ac + j, 2)}, 0')) for j in range(4, 8, 2)]
            else:
                it += [lambda: pool.free(ac, 8)]
            return it
        sc2 = [f's_lshl_b32 {s(S_T0)}, {s(S_MSL)}, 1',
               f's_add_u32 {s(S_MBN2)}, {s(S_MBE0)}, {s(S_T0)}', f's_add_u32 {s(S_MBD2)}, {s(S_MBD0)}, {s(S_T0)}',
               f's_xor_b32 {s(S_T0)}, {s(S_T0)}, 65536', f's_add_u32 {s(S_MBR2)}, {s(S_MBL2)}, {s(S_T0)}',
               f's_add_u32 {s(S_MBN)}, {s(S_MBL)}, {s(S_MSL)}']
        sc2 = kxi[6:] + [(lambda x=x: e(x)) for x in sc2]
        for p in range(5):
            ac = OACC[p % noa]
            mo = []
            for t in range(2):
                for tau in range(2):
                    def f(t=t, tau=tau):
                        if p == 0 and tau == 0:
                            e.wait_lg(f'of{t}')
                        smf(ac + 4 * tau, OF + 4 * t, (('o', t, p), tau))
                    mo.append(f)
            side = finish(p - 1) if p >= 1 else sc2
            run(mo[:1], [], 0)
            run(mo[1:], side, 3 if p else 4)
        for f in finish(4):
            f()
        stamp()
        tl(3)
        pool.free(OF, 8)
        pool.free(SM, 8)
        assert not lds_pending
        claim(ACC, 24)
        for b in PRE:
            claim(b, 8)
        RB, RA, TM = ACC, VACC, VACC + 4

        def pb_loads():
            for i in range(4):
                e(f'buffer_load_dwordx4 {v(RB + 4 * i, 4)}, {v(V_LANE16)}, {s(S_WS, 4)}, {s(S_PBLD)} offen offset:{1024 * i} sc1', tag=('pb', i))
        if early_poll:
            e(f's_cmp_ge_u32 {s(S_UNIT)}, {early_poll}')
            e(f's_cbranch_scc1 {L}_nep')
            pb_loads()
            pre_load()
            for p in range(5):
                e(f's_xor_b32 {s(S_PBST + p)}, {s(S_PBST + p)}, {PB_STRIDE}')
            e(f's_branch {L}_pk1')
            e.label(f'{L}_nep')
        pre_load()
        for p in range(5):
            e(f's_xor_b32 {s(S_PBST + p)}, {s(S_PBST + p)}, {PB_STRIDE}')
        e(f's_cmp_ge_u32 {s(S_UNIT)}, 80')
        e(f's_cbranch_scc1 {L}_nored')
        if kdel:
            e.nop(kdel)
        e.label(f'{L}_pollK')
        e.hist = []
        wd()
        if stamps:
            e('s_add_u32 s27, s27, 1')
        pb_loads()
        e.label(f'{L}_pk1')
        e.hist = []
        for i in range(4):
            e(f's_waitcnt vmcnt({3 - i})')
            e(f'v_mfma_f32_16x16x32_bf16 {v(RA, 4)}, {v(V_SEL, 4)}, {v(RB + 4 * i, 4)}, {"0" if i == 0 else v(RA, 4)}')
            if i == 2:
                e(f'v_max3_u32 {v(TM)}, {v(RB)}, {v(RB + 4)}, {v(RB + 8)}')
        e(f'v_max_u32 {v(TM)}, {v(TM)}, {v(RB + 12)}')
        e(f'v_mov_b32_dpp {v(TM + 1)}, {v(TM)} quad_perm:[0,0,0,0] row_mask:0xf bank_mask:0xf')
        e(f'v_cmp_eq_u32 vcc, -1, {v(TM + 1)}')
        e('s_mov_b64 exec, vcc')
        e(f's_cbranch_execnz {L}_pollK')
        e('s_mov_b64 exec, -1')
        e.vm = []
        e(f'v_permlane32_swap_b32 {v(RA)}, {v(RA + 2)}')
        e(f'v_permlane32_swap_b32 {v(RA + 1)}, {v(RA + 3)}')
        e(f'v_add_f32_dpp {v(RA)}, {v(RA + 2)}, {v(RA)} row_ror:8 row_mask:0xf bank_mask:0xf')
        e(f'v_add_f32_dpp {v(RA + 1)}, {v(RA + 3)}, {v(RA + 1)} row_ror:8 row_mask:0xf bank_mask:0xf')
        e(f'v_cvt_pk_bf16_f32 {v(V_EX)}, {v(RA)}, {v(RA + 1)}')
        e(f'buffer_store_dword {v(V_EX)}, {v(V_MBST)}, {s(S_WS, 4)}, {s(S_MBN)} offen {sc}')
        e(f'buffer_store_dword {v(V_EX)}, {v(V_MBST)}, {s(S_WS, 4)}, {s(S_MBN2)} offen sc1')
        stamp()
        tl(2)
        e(f'buffer_store_dword {v(V_M1)}, {v(V_MBST)}, {s(S_WS, 4)}, {s(S_MBC)} offen {sc}')
        e(f'buffer_store_dword {v(V_M1)}, {v(V_L64)}, {s(S_WS, 4)}, {s(S_PBLD)} offen {sc}')
        e(f's_xor_b32 {s(S_PBLD)}, {s(S_PBLD)}, {PB_STRIDE}')
        e(f's_mov_b32 {s(S_MBC)}, {s(S_MBN)}')
        e(f's_branch {L}_end')
        e.label(f'{L}_nored')
        if stamps and call_i[0] - 1 in stsel:
            e(f's_memtime {s(S_STAMP + 2 * (stamp_i[0] - 1), 2)}')
        if gdel:
            e(f's_sleep {gdel}')
        e.label(f'{L}_end')
        e.hist = []
        tl_out(0, RB)
        e('s_waitcnt lgkmcnt(0)')
        if stamps:
            stamp()
            stamp_acc(stamp_i[0])
        e(f's_cmp_lg_u32 {s(S_STEP)}, {nsteps - 1}')
        e(f's_cbranch_scc1 {L}')
        e(f's_branch {name}_fin')
        if 'nov' in dbg:
            return
        e.label(f'{L}_fixv')
        wd()
        if stamps:
            e('s_add_u32 s26, s26, 63')
        e(f'buffer_load_dwordx4 {v(ZVF, 4)}, {v(V_LANE16)}, {s(S_WS, 4)}, {s(S_VB)} offen sc1')
        e('s_waitcnt vmcnt(0)')
        e(f'v_cmp_eq_u32 vcc, -1, {v(ZVF)}')
        e(f's_cbranch_vccnz {L}_fixv')
        e(f's_branch {L}_pv2')

    body('', f'{name}_fast')
    if slow:
        body('sc1', f'{name}_slow')
    e.label(f'{name}_fin')
    e.flush_hazards(4)
    e(f'buffer_store_dword {v(V_EX)}, {v(V_MBST)}, {s(S_WS, 4)}, {s(S_MBD2)} offen sc1')
    if stamps:
        stamp_out()
    if 'rt' in dbg or 'tot' in dbg:
        e(f's_cmp_lg_u32 {s(S_W)}, 1')
        e(f's_cbranch_scc1 {name}_exit')
    if 'rt' in dbg:
        e('s_memrealtime s[100:101]')
        e('s_waitcnt lgkmcnt(0)')
        if 'diag' in dbg:
            e('s_sub_u32 s101, s100, s98')
            e('s_sub_u32 s99, s98, s96')
            e('v_mov_b32 v40, s99')
            e('v_mov_b32 v41, s101')
            e('v_mov_b32 v44, 32')
            e(f'buffer_store_dwordx2 v[40:41], v44, {s(S_DBG, 4)}, 0 offen')
            e('s_waitcnt vmcnt(0)')
        e('v_mov_b32 v40, s96')
        e('v_mov_b32 v41, s98')
        e('v_mov_b32 v42, s100')
        e('v_mov_b32 v43, s94')
        e('v_mov_b32 v44, 0')
        e(f's_lshl_b32 {s(S_T0)}, {s(S_H)}, 6')
        e(f's_add_u32 {s(S_T0)}, {s(S_T0)}, 0x0F800000')
        e(f'buffer_store_dwordx4 v[40:43], v44, {s(S_WS, 4)}, {s(S_T0)} offen')
    if 'tot' in dbg:
        e('s_memtime s[98:99]')
        e('s_waitcnt lgkmcnt(0)')
        e('s_sub_u32 s98, s98, s96')
        e('v_mov_b32 v40, s98')
        e('v_mov_b32 v42, 0')
        e(f's_lshl_b32 {s(S_T0)}, {s(S_H)}, 6')
        e(f's_add_u32 {s(S_T0)}, {s(S_T0)}, 0x0F800000')
        e(f'buffer_store_dword v40, v42, {s(S_WS, 4)}, {s(S_T0)} offen')
    e.label(f'{name}_exit')
    e('s_endpgm')
    print(f'; chain12: n_reg={n_reg} n_lds={n_lds} pool peak={pool.peak} of {pool_end - NPERS}')

    H = f'{name}_helper'
    e.label(H)
    e.hist, e.vm, e.lg = [], [], []
    hunits = [('v', t) for t in range(10)] + [('k', t) for t in range(10)]
    hplace = {}
    r = 128
    for un in hunits:
        for tau in range(2):
            hplace[(un, tau)] = ('reg', r)
            r += 8
    M4 = 24
    for j in range(4):
        e(f'v_mov_b32 {v(M4 + j)}, -1')

    def helper_init():
        e(f's_cmp_lg_u32 {s(S_W)}, 0')
        e(f's_cbranch_scc1 {H}_nocal')
        e(f's_lshl_b32 {s(S_T0)}, {s(S_H)}, 7')
        e(f's_add_u32 {s(S_T0)}, {s(S_T0)}, {s(S_NR)}')
        e(f's_add_u32 s82, {s(S_T0)}, {NR_CAL}')
        e(f's_add_u32 s83, {s(S_T0)}, {NR_CAL + 8192}')
        e('s_mov_b32 s80, -1')
        e('s_mov_b32 s81, -1')
        e(f's_mov_b32 {s(S_T0)}, {ncal}')
        e.label(f'{H}_cal')
        for hf in range(2):
            e('s_memtime s[76:77]')
            e('s_waitcnt lgkmcnt(0)')
            e(f'buffer_store_dword {v(V_M1)}, {v(V_MBST)}, {s(S_WS, 4)}, {s(82 + hf)} offen sc1')
            e('s_waitcnt vmcnt(0)')
            e('s_memtime s[78:79]')
            e('s_waitcnt lgkmcnt(0)')
            e('s_sub_u32 s78, s78, s76')
            e(f's_min_u32 {s(80 + hf)}, {s(80 + hf)}, s78')
        e(f's_sub_u32 {s(S_T0)}, {s(S_T0)}, 1')
        e(f's_cmp_lg_u32 {s(S_T0)}, 0')
        e(f's_cbranch_scc1 {H}_cal')
        e('s_cmp_lt_u32 s81, s80')
        e('s_cselect_b32 s80, 0x10001, 1')
        e.label(f'{H}_nocal')
        e('s_barrier')
        for sl_ in range(4):
            for hf in range(2):
                e(f's_add_u32 {s(S_T0)}, {s(S_VB0)}, {sl_ * 262144 + hf * 8192}')
                e(f's_add_u32 {s(S_T0)}, {s(S_T0)}, {s(S_NR)}')
                e(f'buffer_store_dwordx4 {v(M4, 4)}, {v(V_LANE16)}, {s(S_WS, 4)}, {s(S_T0)} offen sc1')
        init_done(f'{H}_noib', 's80')
    load_weights(hunits, hplace, VT_QKV, 0, helper_init, pre=True)
    e('s_barrier')
    init_wait(f'{H}_ibw', 32)
    if 'nohelp' in dbg:
        e('s_endpgm')
    S_PA, S_PB_, S_PC = 50, 51, 52
    GA, GB, GC, V_KR = V_OR, V_KXG, V_OW, V_QKR
    e(f's_lshl_b32 {s(S_PA)}, {s(S_W)}, 10')
    e(f's_and_b32 {s(S_T0)}, {s(S_W)}, {NH1 - 4 - 1}')
    e(f's_lshl_b32 {s(S_T0)}, {s(S_T0)}, 10')
    e(f's_add_u32 {s(S_PB_)}, {s(S_T0)}, 4096')
    e(f's_and_b32 {s(S_T0)}, {s(S_W)}, {nvl - 1}')
    e(f's_lshl_b32 {s(S_T0)}, {s(S_T0)}, 10')
    e(f's_add_u32 {s(S_PC)}, {s(S_T0)}, {NH1 * 1024}')
    e(f'v_add_u32 {v(GA)}, {s(S_PA)}, {v(V_LANE16)}')
    e(f'v_add_u32 {v(GB)}, {s(S_PB_)}, {v(V_LANE16)}')
    e(f'v_add_u32 {v(GC)}, {s(S_PC)}, {v(V_LANE16)}')
    e(f's_cmp_ge_u32 {s(S_PC)}, 8192')
    e(f's_cselect_b32 {s(S_T0)}, 8192, 0')
    e(f's_add_u32 {s(S_PC)}, {s(S_PC)}, {s(S_T0)}')
    for x in (S_PA, S_PB_, S_PC):
        e(f's_add_u32 {s(x)}, {s(x)}, {s(S_NR)}')
    for i, x in enumerate((S_PA, S_PB_, S_PC)):
        e(f's_mov_b32 {s(S_MBP + i)}, {s(x)}')
    e(f's_lshl_b32 {s(S_T0)}, {s(S_W)}, 9')
    e(f's_add_u32 {s(S_T0)}, {s(S_T0)}, {L_MQ}')
    e(f'v_add_u32 {v(V_KR)}, {s(S_T0)}, {v(V_L8)}')
    e(f's_mov_b32 {s(S_MBR2)}, 0x40000000')
    if segsig is not None:
        e(f's_cmp_eq_u32 {s(S_W)}, 3')
        e(f's_mov_b32 {s(S_SIG)}, {segsig}')
        e(f's_cselect_b32 {s(S_SIG)}, {s(S_SIG)}, 0x40000000')
    G0, GM, ZH, VA, KA, AFH = 32, 40, 44, 48, 56, 64
    if hstamps:
        stamp_init()
    hs = [0]

    def hstamp():
        if hstamps:
            e(f's_memtime {s(S_STAMP + 2 * hs[0], 2)}')
            hs[0] += 1

    def haf(k):
        e(f'ds_read_b64_tr_b16 {v(AFH + 4 * k, 2)}, {v(V_AF)} offset:{1024 * k}', tag=('af', k))
        e(f'ds_read_b64_tr_b16 {v(AFH + 4 * k + 2, 2)}, {v(V_AF)} offset:{1024 * k + 512}', tag=('af', k))

    def hsm(m, t):
        for tau in range(2):
            e(f'v_smfmac_f32_16x16x64_bf16 {v((VA if m == "v" else KA) + 4 * tau, 4)}, {v(AFH + 4 * t, 4)}, {u(hplace[((m, t), tau)][1], 8)}, {v(V_IDX)}')
    L = f'{H}_loop'
    e.label(L)
    e.hist, e.vm, e.lg = [], [], []
    hstamp()
    for j in range(0, 16, 2):
        e(f'v_mov_b64 {v(VA + j, 2)}, 0')
    e.label(f'{L}_poll')
    wd()
    if hstamps:
        e('s_add_u32 s27, s27, 1')
    for i in range(2):
        e(f'buffer_load_dwordx4 {v(G0 + 4 * i, 4)}, {v(V_LANE16)}, {s(S_WS, 4)}, {s(S_MBP + i)} offen sc1')
    e('s_waitcnt vmcnt(0)')
    e(f'v_max_u32 {v(GM)}, {v(G0)}, {v(G0 + 4)}')
    e(f'v_cmp_eq_u32 vcc, -1, {v(GM)}')
    e('s_mov_b64 exec, vcc')
    e(f's_cbranch_execnz {L}_poll')
    e('s_mov_b64 exec, -1')
    e(f'ds_write_b128 {v(GA)}, {v(G0, 4)}')
    e(f'ds_write_b128 {v(GB)}, {v(G0 + 4, 4)}')
    e('s_waitcnt lgkmcnt(0)')
    e('s_barrier')
    e.vm, e.lg = [], []
    hstamp()
    tl(0)
    for k in range(min(NH1, 7)):
        haf(k)
    for t in range(NH1):
        e.wait_lg(('af', t))
        hsm('v', t)
        if t + 7 < NH1:
            haf(t + 7)
    hsm('k', 0)
    e(f'v_pk_add_f32 {v(ZH, 2)}, {v(VA, 2)}, {v(VA + 2, 2)}')
    e(f'v_pk_add_f32 {v(ZH + 2, 2)}, {v(VA + 4, 2)}, {v(VA + 6, 2)}')
    e(f'buffer_store_dwordx4 {v(ZH, 4)}, {v(V_LANE16)}, {s(S_WS, 4)}, {s(S_VB)} offen sc1')
    hstamp()
    tl(1)
    e(f'buffer_store_dwordx4 {v(M4, 4)}, {v(V_LANE16)}, {s(S_WS, 4)}, {s(S_MBR2)} offen sc1')
    e(f's_mov_b32 {s(S_MBR2)}, {s(S_VB)}')
    for t in range(1, NH1):
        hsm('k', t)
    e.label(f'{L}_poll2')
    wd()
    e(f'buffer_load_dwordx4 {v(G0, 4)}, {v(V_LANE16)}, {s(S_WS, 4)}, {s(S_MBP + 2)} offen sc1')
    e('s_waitcnt vmcnt(0)')
    e(f'v_cmp_eq_u32 vcc, -1, {v(G0)}')
    e('s_mov_b64 exec, vcc')
    e(f's_cbranch_execnz {L}_poll2')
    e('s_mov_b64 exec, -1')
    e(f'ds_write_b128 {v(GC)}, {v(G0, 4)}')
    e('s_waitcnt lgkmcnt(0)')
    e('s_barrier')
    e.vm, e.lg = [], []
    tl(2)
    for k in range(NH1, 10):
        haf(k)
    for t in range(NH1, 10):
        e.wait_lg(('af', t))
        hsm('k', t)
    for t in range(NH1, 10):
        hsm('v', t)
    for f in fold(KA, ZH) + fold(KA + 4, ZH + 1):
        f()
    e(f'ds_write2st64_b32 {v(V_QKW)}, {v(ZH)}, {v(ZH + 1)} offset0:0 offset1:1', tag='kw')
    for f in fold(VA, ZH + 2) + fold(VA + 4, ZH + 3):
        f()
    e(f'buffer_store_dwordx2 {v(ZH + 2, 2)}, {v(V_L8)}, {s(S_WS, 4)}, {s(S_VMO)} offen offset:2048 sc1')
    e.wait_lg('kw')
    e('s_barrier')
    e(f'ds_read_b64 {v(ZH, 2)}, {v(V_KR)}')
    e(f's_add_u32 {s(S_STEP)}, {s(S_STEP)}, 1')
    e(f's_add_u32 {s(S_MSL)}, {s(S_MSL)}, {MB_STRIDE}')
    e(f's_and_b32 {s(S_MSL)}, {s(S_MSL)}, {3 * MB_STRIDE}')
    e(f's_lshl_b32 {s(S_T0)}, {s(S_MSL)}, 1')
    for i, x in enumerate((S_PA, S_PB_, S_PC)):
        e(f's_add_u32 {s(S_MBP + i)}, {s(x)}, {s(S_T0)}')
    e(f's_lshl_b32 {s(S_T0)}, {s(S_MSL)}, 4')
    e(f's_add_u32 {s(S_VB)}, {s(S_VB0)}, {s(S_T0)}')
    e('s_waitcnt lgkmcnt(0)')
    e(f'buffer_store_dwordx2 {v(ZH, 2)}, {v(V_L8)}, {s(S_WS, 4)}, {s(S_VMO)} offen sc1')
    e(f's_add_u32 {s(S_VMO)}, {s(S_VMO)}, {32 * 4096}')
    e('s_waitcnt vmcnt(0)')
    e('s_barrier')
    if segsig is not None:
        seg_signal()
    tl(3)
    tl_out(1, G0)
    if hstamps:
        hstamp()
        stamp_acc(hs[0])
    e(f's_cmp_lt_u32 {s(S_STEP)}, {nsteps}')
    e(f's_cbranch_scc1 {L}')
    if hstamps:
        stamp_out()
    e('s_endpgm')


if __name__ == '__main__':
    import argparse
    ap = argparse.ArgumentParser()
    ap.add_argument('--out', default='chain_test.s')
    ap.add_argument('--stamps', action='store_true')
    ap.add_argument('--kw', default='')
    args = ap.parse_args()
    em = Em()
    kw = eval('dict(' + args.kw + ')')
    gen_chain(em, stamps=args.stamps, **kw)
    hdr = '; @launch kernel=chain_kernel grid=(256,1,1) block=(256,1,1) lds=163840\n'
    hdr += '.amdgcn_target "amdgcn-amd-amdhsa--gfx950"\n.text\n.globl chain_kernel\n'
    open(args.out, 'w').write(hdr + em.text() + kd('chain_kernel', 512, 256))
```

```python
from emit import *
from layout import *
from gen_chain import f32bits, kd
from gen_gemm import Gemm
import gen_all
from gen_all import start, load_srds, end, lane_wave, silu_inplace, wave_sum, rnd2, LOG2E, KA, SIZES
import gen_chain13 as gen_chainX
from gen_chain13 import far_jump

LOG = False
SLEEP = 8
SLEEPN = 1
DSLEEP = 24
WS_LOG = 0x0F400000
POOLS = [('wk_att', 11), ('wk_wo', 40), ('wk_ln2', 8), ('wk_up', 27), ('wk_dn', 10)]
GSZ = sum(c for _, c in POOLS)
NATT = 22
WS_CT2 = 0x00040000
K_CH, K_ATT, K_WO, K_LN2, K_UP = 0, 64, 128, 192, 256
NCH = 32
NMODA, NLN, NMODB = 40, 128, 80
NPRE = NMODA + NLN + NMODB
NTASK = NPRE + 768
D_TASK, D_MOD, D_MODB = 64, 0, 140
D_POST, D_TQ = 60, 72
N0 = 14
S_RANK, S_PB = 60, 30
SW = 29
S_W1, S_W3, S_W2, S_X, S_OUT, S_SEL = 64, 68, 72, 76, 80, 84
VL = 1
_bj = [0]
KNAME = ['']


def back_jump(e, label, sp=44):
    _bj[0] += 1
    here = f'Lbj{_bj[0]}'
    e(f's_getpc_b64 {s(sp, 2)}')
    e.label(here)
    e.raw(f'    s_add_u32 {s(sp)}, {s(sp)}, {label}-{here}')
    e.raw(f'    s_addc_u32 {s(sp + 1)}, {s(sp + 1)}, -1')
    e(f's_setpc_b64 {s(sp, 2)}')


def reset(e):
    e.hist = []
    e.vm = []
    e.lg = []


def dep_wait(e, lab, deps, sb):
    e(f's_cmp_lg_u32 {s(SW)}, 0')
    e(f's_cbranch_scc1 {lab}_dw')
    e(f's_lshl_b32 s38, {s(sb)}, 7')
    e('v_mov_b32 v2, 0')
    for i, (c, tgt) in enumerate(deps):
        e(f's_add_u32 s39, s38, {WS_CTR + c * 128}')
        e.label(f'{lab}_sp{i}')
        e('buffer_load_dword v3, v2, s[4:7], s39 offen sc1')
        e('s_waitcnt vmcnt(0)')
        e('v_readfirstlane_b32 s37, v3')
        e(f's_cmp_ge_u32 s37, {tgt}')
        e(f's_cbranch_scc1 {lab}_ok{i}')
        for _ in range(SLEEPN):
            e(f's_sleep {SLEEP}')
        e(f's_branch {lab}_sp{i}')
        e.label(f'{lab}_ok{i}')
    e.label(f'{lab}_dw')
    e('s_barrier')
    if LOG:
        e('s_memrealtime s[100:101]')
        e('s_waitcnt lgkmcnt(0)')
        e('s_mov_b32 s63, s100')
    reset(e)


def dbg_wait(e, lab, off_sgpr_or_int, tgt):
    e(f's_cmp_lg_u32 {s(SW)}, 0')
    e(f's_cbranch_scc1 {lab}_dw')
    e(f'v_mov_b32 v2, {off_sgpr_or_int}')
    e.label(f'{lab}_sp')
    e('buffer_load_dword v3, v2, s[8:11], 0 offen sc1')
    e('s_waitcnt vmcnt(0)')
    e('v_readfirstlane_b32 s37, v3')
    e(f's_cmp_ge_u32 s37, {tgt}')
    e(f's_cbranch_scc1 {lab}_dw')
    e(f's_sleep {DSLEEP}')
    e(f's_branch {lab}_sp')
    e.label(f'{lab}_dw')
    e('s_barrier')
    if LOG:
        e('s_memrealtime s[100:101]')
        e('s_waitcnt lgkmcnt(0)')
        e('s_mov_b32 s63, s100')
    reset(e)


def signal(e, lab, c, sb, loop, dbg_off=None):
    e('s_waitcnt vmcnt(0) lgkmcnt(0)')
    e('s_barrier')
    if LOG:
        e('s_memrealtime s[100:101]')
        e('s_waitcnt lgkmcnt(0)')
        e('v_mov_b32 v4, s63')
        e('v_mov_b32 v5, s100')
        e('v_mov_b32 v6, s61')
        e('v_mov_b32 v7, s28')
        e('v_mov_b32 v2, 0')
        e('s_lshl_b32 s38, s62, 4')
        e(f's_add_u32 s38, s38, {WS_LOG}')
        e('buffer_store_dwordx4 v[4:7], v2, s[4:7], s38 offen')
    if dbg_off is not None:
        e(f's_cmp_lg_u32 {s(SW)}, 0')
        e(f's_cbranch_scc1 {lab}_sg')
        e(f'v_mov_b32 v2, {dbg_off}')
        e('v_mov_b32 v3, 1')
        e('s_mov_b64 exec, 1')
        e('buffer_atomic_add v3, v2, s[8:11], 0 offen')
        e('s_mov_b64 exec, -1')
        e.label(f'{lab}_sg')
    elif c is not None:
        e(f's_cmp_lg_u32 {s(SW)}, 0')
        e(f's_cbranch_scc1 {lab}_sg')
        if isinstance(c, int):
            e(f's_lshl_b32 s38, {s(sb)}, 7')
            e(f's_add_u32 s38, s38, {WS_CTR + c * 128}')
        else:
            e(f's_add_u32 s38, {s(sb)}, {c}')
            e('s_lshl_b32 s38, s38, 7')
            e(f's_add_u32 s38, s38, {WS_CTR}')
        e('v_mov_b32 v2, 0')
        e('v_mov_b32 v3, 1')
        e('s_mov_b64 exec, 1')
        e('buffer_atomic_add v3, v2, s[4:7], s38 offen')
        e('s_mov_b64 exec, -1')
        e.label(f'{lab}_sg')
    back_jump(e, loop)


def mid(e):
    if LOG:
        e('s_memrealtime s[100:101]')
        e('s_waitcnt lgkmcnt(0)')
        e('s_mov_b32 s61, s100')


def h_qkv(e, loop):
    name = 'wk_qkv'
    e.label(name)
    reset(e)
    e('s_cmp_eq_u32 s23, 1')
    e(f's_cselect_b32 {s(S_SEL)}, s16, s12')
    e(f's_cselect_b32 {s(S_SEL + 1)}, s17, s13')
    e('s_cmp_eq_u32 s23, 2')
    e(f's_cselect_b32 {s(S_SEL)}, s20, {s(S_SEL)}')
    e(f's_cselect_b32 {s(S_SEL + 1)}, s21, {s(S_SEL + 1)}') if False else None
    return


def gen_workers(e, loop='wk_loop'):
    B, P1, P2 = 52, 53, 54
    e.label('wk_entry')
    reset(e)
    e(f'v_mov_b32 {v(VL)}, v16')
    load_srds(e, [('w1', S_W1), ('w3', S_W3), ('w2', S_W2), ('x', S_X), ('out', S_OUT)], tmp=88)
    e(f's_mov_b32 {s(S_SEL + 2)}, 5242880')
    e(f's_mov_b32 {s(S_SEL + 3)}, 0x20000')
    e('s_bfe_u32 s3, s2, 0x10003')
    e('s_lshr_b32 s48, s2, 4')
    e(f's_mul_i32 {s(S_RANK)}, s48, 5')
    e(f's_add_u32 {s(S_RANK)}, {s(S_RANK)}, s35')
    e(f's_sub_u32 {s(S_RANK)}, {s(S_RANK)}, 2')
    e('s_add_u32 s48, s48, 80')
    e('s_cmp_eq_u32 s35, 7')
    e(f's_cselect_b32 {s(S_RANK)}, s48, {s(S_RANK)}')

    def logstart(sidx, base):
        if LOG:
            e(f's_add_u32 s62, {s(sidx)}, {base}')
            e('s_memrealtime s[100:101]')
            e('s_waitcnt lgkmcnt(0)')
            e('s_mov_b32 s63, s100')
            e('s_mov_b32 s28, s100')
            e('s_mov_b32 s61, s100')
    e('s_mov_b32 s48, 0')
    e('s_cmp_eq_u32 s3, 0')
    e(f's_cbranch_scc1 {loop}')
    logstart(S_RANK, 0)
    far_jump(e, 'wk_qkv', 44)
    e.label(loop)
    reset(e)
    e('s_add_u32 s48, s48, 1')
    e('s_cmp_gt_u32 s48, 3')
    e('s_cbranch_scc1 wk_rank')
    e(f's_cmp_ge_u32 {s(S_RANK)}, {NMODA}')
    e('s_cbranch_scc1 wk_nm')
    e(f's_lshl_b32 {s(P1)}, {s(S_RANK)}, 1')
    e(f's_add_u32 {s(P1)}, {s(P1)}, s48')
    e(f's_add_u32 {s(P1)}, {s(P1)}, {NMODA - 2}')
    e('s_cmp_eq_u32 s48, 1')
    e(f's_cselect_b32 {s(P1)}, {s(S_RANK)}, {s(P1)}')
    logstart(P1, 8000)
    far_jump(e, 'wk_mod', 44)
    e.label('wk_nm')
    e(f's_mul_i32 {s(P1)}, s48, {96 - NMODA}')
    e(f's_add_u32 {s(P1)}, {s(P1)}, {s(S_RANK)}')
    e(f's_sub_u32 {s(P1)}, {s(P1)}, 96')
    e(f's_cmp_ge_u32 {s(P1)}, {NLN}')
    e('s_cbranch_scc1 wk_rank')
    logstart(P1, 8200)
    far_jump(e, 'wk_ln1', 44)
    e.label('wk_rank')
    dbg_wait(e, 'wk_ma', D_MOD, NMODA)
    e.label('wk_pool')
    e(f's_mul_i32 s49, s3, {N0}')
    e(f's_add_u32 {s(B)}, s49, s3')
    if LOG:
        e('s_memrealtime s[100:101]')
        e('s_waitcnt lgkmcnt(0)')
        e('s_mov_b32 s63, s100')
        e('s_mov_b32 s28, s100')
        e('s_mov_b32 s61, s100')
    lo = 0
    for lab, cnt in POOLS:
        hi = lo + cnt
        e(f's_cmp_ge_u32 {s(S_RANK)}, {hi}')
        e(f's_cbranch_scc1 wk_n{hi}')
        e(f's_sub_u32 {s(P1)}, {s(S_RANK)}, {lo}')
        far_jump(e, lab, 44)
        e.label(f'wk_n{hi}')
        lo = hi
    e('s_endpgm')

    name = 'wk_qkv'
    e.label(name)
    reset(e)
    e(f's_mul_i32 s50, {s(S_RANK)}, 1366')
    e('s_lshr_b32 s50, s50, 16')
    assert all((x * 1366) >> 16 == x // 48 for x in range(192))
    e('s_mul_i32 s51, s50, 48')
    e(f's_sub_u32 s51, {s(S_RANK)}, s51')
    e(f's_and_b32 {s(P1)}, s51, 15')
    e(f's_lshr_b32 {s(P2)}, s51, 4')
    e(f's_cmp_eq_u32 {s(P2)}, 0')
    e(f's_cselect_b32 {s(S_SEL)}, s16, s12')
    e(f's_cselect_b32 {s(S_SEL + 1)}, s17, s13')
    e(f's_cmp_eq_u32 {s(P2)}, 1')
    e(f's_cselect_b32 {s(S_SEL)}, s20, {s(S_SEL)}')
    e(f's_cselect_b32 {s(S_SEL + 1)}, s21, {s(S_SEL + 1)}')
    panels = [(S_SEL, 8192, 128), (S_SEL, 8192, 128)]
    G = Gemm(e, 32, panels, 1, 4, 10, 128, nstage=1, vbase=104, sbase=40)
    G.setup(VL, SW, 6)
    e('s_mov_b32 s55, 0')
    e(f's_lshl_b32 s56, {s(P1)}, 9')
    e('s_add_u32 s57, s56, 256')
    G.init_offsets(55, [56, 57])
    QW = 192

    def qw(ks, ni):
        return QW + (ks * 4 + ni) * 4
    NS = 4
    assert NS * G.stage <= 163840
    for k in range(NS):
        for f in G.dma_items(None, k, ('w', k), 'w'):
            f()
    for k in range(10):
        e.wait_vm(('w', k))
        e('s_barrier')
        if k >= 1 and k - 1 + NS < 10:
            for f in G.dma_items(None, (k - 1) % NS, ('w', k - 1 + NS), 'w'):
                f()
        for ks in range(2):
            for ni in range(4):
                for m in range(2):
                    e(f'ds_read_b64_tr_b16 {u(qw(2 * k + ks, ni) + 2 * m, 2)}, {v(G.v_wa + ni)} offset:{(32 * ks + 16 * m) * 256}')
        d = G.stage if (k + 1) % NS else -(NS - 1) * G.stage
        for ni in range(4):
            if d >= 0:
                e(f'v_add_u32 {v(G.v_wa + ni)}, {d}, {v(G.v_wa + ni)}')
            else:
                e(f'v_subrev_u32 {v(G.v_wa + ni)}, {-d}, {v(G.v_wa + ni)}')
        e.wait_lg()
    mid(e)
    dbg_wait(e, name + '_a', D_MOD, NMODA)
    if LOG:
        e('s_memrealtime s[100:101]')
        e('s_waitcnt lgkmcnt(0)')
        e('v_mov_b32 v4, s63')
        e('v_mov_b32 v5, s100')
        e('v_mov_b32 v6, s61')
        e('v_mov_b32 v7, s28')
        e('v_mov_b32 v2, 0')
        e(f's_lshl_b32 s38, {s(S_RANK)}, 4')
        e(f's_add_u32 s38, s38, {WS_LOG + 8400 * 16}')
        e('buffer_store_dwordx4 v[4:7], v2, s[4:7], s38 offen')
    QA, QX, QO = 16, 48, 80
    e(f's_mul_i32 s55, s50, {32 * 1280}')
    e(f's_add_u32 s55, s55, {WS_H1}')
    e('s_mov_b32 s56, 0')
    e('s_lshl_b32 s33, s50, 5')
    e(f's_lshl_b32 s34, {s(P1)}, 1')
    e('s_add_u32 s33, s33, s34')
    e('s_lshl_b32 s33, s33, 13')
    e(f's_mov_b32 s34, {WS_QX}')
    e(f's_mov_b32 s35, {WS_CTR + C_Q * 128}')
    e(f's_cmp_lg_u32 {s(P2)}, 2')
    e(f's_cselect_b32 s34, {WS_KX}, s34')
    e(f's_cselect_b32 s35, {WS_CTR + C_KV * 128}, s35')
    e(f's_cmp_eq_u32 {s(P2)}, 1')
    e(f's_cselect_b32 s34, {WS_VXT}, s34')
    e('s_add_u32 s33, s33, s34')
    e(f's_lshl_b32 s31, {s(SW)}, 6')
    e(f's_lshl_b32 s32, {s(SW)}, 11')
    e(f's_cmp_eq_u32 {s(P2)}, 1')
    e('s_cselect_b32 s31, s32, s31')
    e('s_add_u32 s33, s33, s31')
    e(f'v_and_b32 v2, 15, {v(VL)}')
    e(f'v_lshrrev_b32 v3, 4, {v(VL)}')
    e('v_lshlrev_b32 v3, 4, v3')
    e('v_lshl_add_u32 v4, v2, 8, v3')
    e(f'v_lshlrev_b32 v5, 4, {v(VL)}')
    e('v_lshlrev_b32 v6, 7, v2')
    e('v_mov_b32 v7, -1')
    e('v_lshl_add_u32 v8, v3, 26, v6')
    e('s_mov_b32 s51, 0')
    e('s_mov_b32 s34, 0')
    e(f's_cmp_lg_u32 {s(SW)}, 0')
    e('s_cselect_b32 s35, 0x40000000, s35')

    e('s_mov_b32 s58, 0')
    e('s_mov_b32 s59, 0')

    def x_issue(lab):
        e('s_lshr_b32 s57, s58, 1')
        e('s_min_u32 s57, s57, 15')
        e('s_add_u32 s58, s58, 1')
        e('s_cmp_lt_u32 s57, s59')
        e(f's_cbranch_scc1 {lab}_ok')
        e(f's_mov_b32 s39, {WS_CTR + C_LN1 * 128}')
        e.label(lab)
        e('buffer_load_dword v3, v6, s[4:7], s39 offen sc1')
        e('s_waitcnt vmcnt(0)')
        e('v_cmp_le_u32 vcc, 8, v3')
        e('s_and_b32 s59, vcc_lo, 0xffff')
        e('s_ff0_i32_b32 s59, s59')
        e('s_cmp_lt_u32 s57, s59')
        e(f's_cbranch_scc1 {lab}_ok')
        e('s_sleep 2')
        e(f's_branch {lab}')
        e.label(lab + '_ok')
        for j, n in enumerate((4, 4, 2)):
            e(f's_mul_i32 s57, {s(SW)}, {n * 1024}')
            if j:
                e(f's_add_u32 s57, s57, {16384 * j}')
            e('s_add_u32 m0, s57, s56')
            e('s_add_u32 s57, s57, s55')
            for i in range(n):
                e(f'buffer_load_dwordx4 {v(G.v_xg + (i & 1))}, s[4:7], s57 offen offset:{1024 * i} sc1 lds')
        e(f's_add_u32 s57, s55, {64 * 1280}')
        e(f's_cmp_lt_u32 s57, {WS_H1 + 2048 * 1280}')
        e('s_cselect_b32 s55, s57, s55')
        e('s_add_u32 s56, s56, 40960')
        e('s_cmp_lt_u32 s56, 163840')
        e('s_cselect_b32 s56, s56, 0')

    def qsig(upto):
        e(f's_sub_u32 s37, {upto}, s34')
        e('s_bfm_b64 exec, s37, s34')
        e('s_or_b32 exec_lo, exec_lo, 0x10000')
        e(f's_mov_b32 s34, {upto}')
        e('buffer_atomic_sub v7, v8, s[4:7], s35 offen')
        e('s_mov_b64 exec, -1')
    x_issue(name + '_w0')
    x_issue(name + '_w1')
    e('s_waitcnt vmcnt(10)')
    e(f's_cmp_lg_u32 {s(P2)}, 1')
    e(f's_cbranch_scc1 {name}_T')
    far_jump(e, f'{name}_N', 98)

    def qtask(o):
        x_issue(f'{name}_x{o}')
        D = 4

        def rd(ks):
            for mi in range(2):
                e(f'ds_read_b128 {v(QX + 8 * (ks % D) + 4 * mi, 4)}, {v(G.v_xa + (ks & 1))} offset:{(ks >> 1) * 4096 + mi * 2048}', tag=('xf', ks))
        for ks in range(D - 1):
            rd(ks)
        for ks in range(20):
            if ks + D - 1 < 20:
                rd(ks + D - 1)
            e.wait_lg(('xf', ks))
            for mi in range(2):
                for ni in range(4):
                    ac = v(QA + (mi * 4 + ni) * 4, 4)
                    fx, fw = v(QX + 8 * (ks % D) + 4 * mi, 4), u(qw(ks, ni), 4)
                    A_, B_ = (fx, fw) if o == 'N' else (fw, fx)
                    e(f'v_mfma_f32_16x16x32_bf16 {ac}, {A_}, {B_}, {"0" if ks == 0 else ac}')
        e('s_add_u32 s51, s51, 1')
        e('s_and_b32 s57, s51, 3')
        e('s_mov_b32 s57, 40960')
        e('s_cselect_b32 s57, s57, 0xfffe2000')
        for i in range(2):
            e(f'v_add_u32 {v(G.v_xa + i)}, s57, {v(G.v_xa + i)}')
        e('s_add_u32 s36, s33, 8192')
        for k in range(4):
            t = QO + 4 * k
            if o == 'T':
                mi, p = k >> 1, k & 1
                srcs = [QA + (mi * 4 + p * 2 + hf) * 4 for hf in range(2)]
            else:
                p, a_ = k >> 1, k & 1
                srcs = [QA + (hf * 4 + p * 2 + a_) * 4 for hf in range(2)]
            for hf in range(2):
                e(f'v_cvt_pk_bf16_f32 {v(t + 2 * hf)}, {v(srcs[hf])}, {v(srcs[hf] + 1)}')
                e(f'v_cvt_pk_bf16_f32 {v(t + 2 * hf + 1)}, {v(srcs[hf] + 2)}, {v(srcs[hf] + 3)}')
            if o == 'T':
                if k == 2:
                    e('s_add_u32 s33, s33, 4096')
                    e('s_add_u32 s36, s36, 4096')
                e(f'buffer_store_dwordx4 {v(t, 4)}, v4, s[4:7], {"s36" if p else "s33"} offen sc1')
            else:
                e(f'buffer_store_dwordx4 {v(t, 4)}, v5, s[4:7], {"s36" if p else "s33"} offen offset:{1024 * a_} sc1')
        e(f's_add_u32 s33, s33, {64 * 8192 - (4096 if o == "T" else 0)}')
    for o in 'TN':
        nm = f'{name}_{o}'
        e.label(nm)
        reset(e)
        e('s_sub_u32 s36, s51, 1')
        e('s_lshr_b32 s36, s36, 1')
        e('s_cmp_eq_u32 s51, 0')
        e('s_cselect_b32 s36, 0, s36')
        e('s_cmp_lg_u32 s51, 2')
        e(f's_cbranch_scc1 {nm}_nd')
        e('s_waitcnt vmcnt(0)')
        e('s_mov_b32 s36, 1')
        if LOG:
            e('s_memrealtime s[100:101]')
            e('s_waitcnt lgkmcnt(0)')
            e('s_mov_b32 s63, s100')
        e.label(nm + '_nd')
        e('s_waitcnt vmcnt(15)')
        e('s_barrier')
        qsig('s36')
        qtask(o)
        e('s_cmp_lt_u32 s51, 32')
        e(f's_cbranch_scc1 {nm}')
        e('s_waitcnt vmcnt(0)')
        e('s_barrier')
        qsig(16)
        if o == 'T':
            far_jump(e, f'{name}_end', 98)
    e.label(f'{name}_end')
    reset(e)
    if LOG:
        e('s_memrealtime s[100:101]')
        e('s_waitcnt lgkmcnt(0)')
        e('v_mov_b32 v4, s63')
        e('v_mov_b32 v5, s100')
        e('v_mov_b32 v2, 0')
        e(f's_lshl_b32 s38, {s(S_RANK)}, 4')
        e(f's_add_u32 s38, s38, {WS_LOG}')
        e('buffer_store_dwordx2 v[4:5], v2, s[4:7], s38 offen')
    back_jump(e, 'wk_pool')

    name = 'wk_ln1'
    e.label(name)
    reset(e)
    RPW = 4
    e(f's_lshl_b32 s30, {s(P1)}, 2')
    e(f's_add_u32 s30, s30, {s(SW)}')
    e(f's_mul_i32 s30, s30, {RPW * 1280}')
    e(f'v_lshlrev_b32 v4, 2, {v(VL)}')
    e('s_add_u32 s31, s30, 2560')
    for r in range(RPW):
        for i in range(5):
            e(f'buffer_load_dword {v(16 + 5 * r + i)}, v4, {s(S_X, 4)}, {"s30" if r < 2 else "s31"} offen offset:{(r & 1) * 1280 + 256 * i}', tag=('x', r))
    e(f's_mov_b32 s32, {f32bits(1.0 / 640):#x}')
    e(f's_mov_b32 s33, {f32bits(1e-5):#x}')
    e('s_waitcnt vmcnt(0)')
    for r in range(RPW):
        X = 64 + 10 * r
        for i in range(5):
            e(f'v_lshlrev_b32 {v(X + 2 * i)}, 16, {v(16 + 5 * r + i)}')
            e(f'v_and_b32 {v(X + 2 * i + 1)}, 0xffff0000, {v(16 + 5 * r + i)}')
        e(f'v_add_f32 v8, {v(X)}, {v(X + 1)}')
        for j in range(2, 10):
            e(f'v_add_f32 v8, v8, {v(X + j)}')
        wave_sum(e, 8, 9)
        e('v_mul_f32 v8, s32, v8')
        e('v_mov_b32 v10, 0')
        for j in range(10):
            e(f'v_sub_f32 v9, {v(X + j)}, v8')
            e('v_fmac_f32 v10, v9, v9')
        wave_sum(e, 10, 9)
        e('v_mul_f32 v10, s32, v10')
        rnd2(e, 8, 10, 7)
        e('v_add_f32 v10, s33, v10')
        rnd2(e, 10, 9, 7)
        e('v_sqrt_f32 v10, v10')
        rnd2(e, 10, 9, 7)
        e('v_rcp_f32 v10, v10')
        for j in range(0, 10, 2):
            a_, b_ = X + j, X + j + 1
            e(f'v_sub_f32 {v(a_)}, {v(a_)}, v8')
            e(f'v_sub_f32 {v(b_)}, {v(b_)}, v8')
            rnd2(e, a_, b_, 7)
            e(f'v_mul_f32 {v(a_)}, {v(a_)}, v10')
            e(f'v_mul_f32 {v(b_)}, {v(b_)}, v10')
            rnd2(e, a_, b_, 7)
    e('s_cmp_lg_u32 s48, 1')
    e(f's_cbranch_scc1 {name}_m')
    dbg_wait(e, name, D_MOD, NMODA)
    e.label(f'{name}_m')
    reset(e)
    e(f'v_lshlrev_b32 v3, 3, {v(VL)}')
    e(f's_mov_b32 s34, {WS_MOD}')
    e(f's_mov_b32 s35, {WS_MOD + 2560}')
    for i in range(5):
        e(f'buffer_load_dwordx2 {v(16 + 2 * i, 2)}, v3, s[4:7], s34 offen offset:{512 * i} sc1')
        e(f'buffer_load_dwordx2 {v(26 + 2 * i, 2)}, v3, s[4:7], s35 offen offset:{512 * i} sc1')
    e(f'v_bfe_u32 v5, {v(VL)}, 1, 2')
    e(f'v_bfe_u32 v6, {v(VL)}, 3, 1')
    e(f'v_and_b32 v12, 1, {v(VL)}')
    e('v_lshl_add_u32 v12, v6, 1, v12')
    e('v_lshl_add_u32 v12, v5, 2, v12')
    e(f'v_and_b32 v5, 16, {v(VL)}')
    e('v_add_u32 v12, v12, v5')
    e('v_lshlrev_b32 v12, 2, v12')
    e(f'v_lshrrev_b32 v5, 5, {v(VL)}')
    e('v_lshl_add_u32 v12, v5, 9, v12')
    e(f's_mul_i32 s38, {s(SW)}, 5120')
    e('v_add_u32 v12, s38, v12')
    e(f'v_lshlrev_b32 v13, 4, {v(VL)}')
    e('v_add_u32 v14, s38, v13')
    e('v_and_b32 v13, 0x1f0, v13')
    e('v_lshl_add_u32 v13, v5, 12, v13')
    e('s_lshr_b32 s30, s53, 1')
    e(f's_mul_i32 s30, s30, {32 * 1280}')
    e('s_and_b32 s31, s53, 1')
    e('s_lshl_b32 s31, s31, 2')
    e(f's_add_u32 s31, s31, {s(SW)}')
    e('s_lshl_b32 s31, s31, 9')
    e('s_add_u32 s30, s30, s31')
    e(f's_add_u32 s30, s30, {WS_H1}')
    e.wait_vm()
    for j in range(10):
        e(f'v_add_f32 {v(26 + j)}, 1.0, {v(26 + j)}')
    for j in range(0, 10, 2):
        rnd2(e, 26 + j, 27 + j, 7)
    for r in range(RPW):
        X = 64 + 10 * r
        for j in range(0, 10, 2):
            a_, b_ = X + j, X + j + 1
            e(f'v_pk_mul_f32 {v(a_, 2)}, {v(a_, 2)}, {v(26 + j, 2)}')
            rnd2(e, a_, b_, 7)
            e(f'v_pk_add_f32 {v(a_, 2)}, {v(a_, 2)}, {v(16 + j, 2)}')
            e(f'v_cvt_pk_bf16_f32 {v(a_)}, {v(a_)}, {v(b_)}')
            e(f'ds_write_b32 v12, {v(a_)} offset:{r * 128 + 512 * j}')
    e.wait_lg()
    for i in range(5):
        e(f'ds_read_b128 {v(16 + 4 * i, 4)}, v14 offset:{1024 * i}')
    e.wait_lg()
    for i in range(5):
        e(f'buffer_store_dwordx4 {v(16 + 4 * i, 4)}, v13, s[4:7], s30 offen sc1')
        e('s_add_u32 s30, s30, 8192')
    e(f's_lshr_b32 {s(B)}, {s(P1)}, 3')
    signal(e, name, C_LN1, B, loop)

    SEG = B
    XS, XA2, ACC, XF, ET, WB = 20, 22, 24, 40, 72, 80

    def cwait(lab, cbase, tgt, extra=None):
        e(f's_cmp_lg_u32 {s(SW)}, 0')
        e(f's_cbranch_scc1 {lab}_dw')
        e(f's_lshl_b32 s39, {s(SEG)}, 7')
        e(f's_add_u32 s39, s39, {WS_CT2 + cbase * 128}')
        if extra is not None:
            e(f's_add_u32 s39, s39, {s(extra)}')
        e('v_mov_b32 v2, 0')
        e.label(f'{lab}_sp')
        e('buffer_load_dword v3, v2, s[4:7], s39 offen sc1')
        e('s_waitcnt vmcnt(0)')
        e('v_readfirstlane_b32 s37, v3')
        e(f's_cmp_ge_u32 s37, {tgt}')
        e(f's_cbranch_scc1 {lab}_dw')
        e(f's_sleep {SLEEP}')
        e(f's_branch {lab}_sp')
        e.label(f'{lab}_dw')
        e('s_barrier')
        if LOG:
            e('s_memrealtime s[100:101]')
            e('s_waitcnt lgkmcnt(0)')
            e('s_mov_b32 s63, s100')
        reset(e)

    def cdone(name, cbase, extra=None, nxt=None, tsk=None):
        e('s_waitcnt vmcnt(0) lgkmcnt(0)')
        e('s_barrier')
        if cbase is not None:
            e(f's_cmp_lg_u32 {s(SW)}, 0')
            e(f's_cbranch_scc1 {name}_sg')
            e(f's_lshl_b32 s38, {s(SEG)}, 7')
            e(f's_add_u32 s38, s38, {WS_CT2 + cbase * 128}')
            if extra is not None:
                e(f's_add_u32 s38, s38, {s(extra)}')
            e('v_mov_b32 v2, 0')
            e('v_mov_b32 v3, 1')
            e('s_mov_b64 exec, 1')
            e('buffer_atomic_add v3, v2, s[4:7], s38 offen')
            e('s_mov_b64 exec, -1')
            e.label(f'{name}_sg')
        if LOG:
            e('s_memrealtime s[100:101]')
            e('s_waitcnt lgkmcnt(0)')
            e('v_mov_b32 v64, s63')
            e('v_mov_b32 v65, s100')
            e('v_mov_b32 v66, s61')
            e('v_mov_b32 v67, s28')
            e('v_mov_b32 v2, 0')
            e(f's_mul_i32 s38, {s(SEG)}, {GSZ}')
            e(f's_add_u32 s38, s38, {s(S_RANK)}')
            e('s_lshl_b32 s38, s38, 4')
            e(f's_add_u32 s38, s38, {WS_LOG + 768 * 16}')
            e('buffer_store_dwordx4 v[64:67], v2, s[4:7], s38 offen')
            e.nop(2)
        if tsk:
            e(f's_mov_b32 {s(tsk)}, s50')
            e('s_add_u32 s49, s49, 11')
            e(f's_cmp_lt_u32 {s(tsk)}, 512')
        else:
            e(f's_cmp_lt_u32 {s(SEG)}, {N0}')
            e('s_cselect_b32 s38, 1, 2')
            e(f's_add_u32 {s(SEG)}, {s(SEG)}, s38')
            e(f's_cmp_lt_u32 {s(SEG)}, 64')
        e(f's_cbranch_scc1 {nxt or name + "_loop"}')
        e('s_endpgm')

    class SG:
        def __init__(self, name, panels, KT, coloffs, nacc=1, rows=32):
            self.name, self.KT, self.nacc, self.rows = name, KT, nacc, rows
            G = self.G = Gemm(e, rows, panels, rows // 16, 64 // rows, KT, 128, nstage=1, vbase=8, sbase=40)
            assert G.v_wa + G.NT <= XS
            self.NT = NT = G.NT
            assert WB + KT * 2 * NT * 4 <= 512
            G.setup(VL, SW, 2)
            e('s_mov_b32 s57, 0')
            G.init_offsets(57, coloffs)
            e(f's_and_b32 s57, {s(SW)}, 1')
            e('s_cmp_eq_u32 s57, 1')
            e('s_cselect_b64 vcc, -1, 0')
            e(f'v_cndmask_b32 {v(XS)}, {v(G.v_xg)}, {v(G.v_xg + 1)}, vcc')
            e(f'v_cndmask_b32 {v(XS + 1)}, {v(G.v_xg + 1)}, {v(G.v_xg)}, vcc')
            e(f'v_add_u32 {v(XA2)}, 0x10000, {v(G.v_xa)}')
            e(f'v_add_u32 {v(XA2 + 1)}, 0x10000, {v(G.v_xa + 1)}')
            NS = min(KT, 163840 // G.stage, 12)
            for k in range(NS):
                for f in G.dma_items(None, k, ('w', k), 'w'):
                    f()
            for k in range(KT):
                e.wait_vm(('w', k))
                e('s_barrier')
                if k >= 1 and k - 1 + NS < KT:
                    for f in G.dma_items(None, (k - 1) % NS, ('w', k - 1 + NS), 'w'):
                        f()
                for ks in range(2):
                    for ni, (pi, a_) in enumerate(G.tiles):
                        rb = panels[pi][2] * 2
                        for m in range(2):
                            e(f'ds_read_b64_tr_b16 {u(self.wr(2 * k + ks, ni) + 2 * m, 2)}, {v(G.v_wa + ni)} offset:{(32 * ks + 16 * m) * rb}')
                d = G.stage if (k + 1) % NS else -(NS - 1) * G.stage
                for ni in range(NT):
                    if d >= 0:
                        e(f'v_add_u32 {v(G.v_wa + ni)}, {d}, {v(G.v_wa + ni)}')
                    else:
                        e(f'v_subrev_u32 {v(G.v_wa + ni)}, {-d}, {v(G.v_wa + ni)}')
                e.wait_lg()
            e('s_barrier')

        def wr(self, ks, ni):
            return WB + (ks * self.NT + ni) * 4

        def acc(self, ni, par=0):
            return ACC + (par * self.NT + ni) * 4

        def main(self, sx, extra_loads=None):
            G, KT, NT = self.G, self.KT, self.NT
            ktb = self.rows * 128
            P = (KT * ktb // 1024 + 3) // 4 * 4
            upg = 16384 // ktb // 2
            ng = (P + 15) // 16
            for j in range(ng):
                n = min(16, P - 16 * j) // 4
                e(f's_mul_i32 s57, {s(SW)}, {n * 1024}')
                if j:
                    e(f's_add_u32 s57, s57, {16384 * j}')
                e('s_mov_b32 m0, s57')
                e(f's_add_u32 s57, s57, {s(sx)}')
                for i in range(n):
                    xr = (G.v_xg if n % 2 == 0 else XS) + (i & 1)
                    e(f'buffer_load_dwordx4 {v(xr)}, s[4:7], s57 offen offset:{1024 * i} sc1 lds', tag=('x', j))
            if extra_loads:
                extra_loads()
            nu = (2 * KT + 3) // 4

            def reads(un):
                if un % upg == 0:
                    e.wait_vm(('x', un // upg))
                    e('s_barrier')
                for q in range(4):
                    ks = 4 * un + q
                    if ks >= 2 * KT:
                        break
                    off = (ks >> 1) * ktb
                    ar = (G.v_xa if off < 65536 else XA2) + (ks & 1)
                    e(f'ds_read_b128 {v(XF + 16 * (un & 1) + 4 * q, 4)}, {v(ar)} offset:{off & 65535}', tag=('xf', ks))
            reads(0)
            for un in range(nu):
                if un + 1 < nu:
                    reads(un + 1)
                for q in range(4):
                    ks = 4 * un + q
                    if ks >= 2 * KT:
                        break
                    e.wait_lg(('xf', ks))
                    par = ks % self.nacc
                    for ni in range(NT):
                        ac = v(self.acc(ni, par), 4)
                        e(f'v_mfma_f32_16x16x32_bf16 {ac}, {u(self.wr(ks, ni), 4)}, {v(XF + 16 * (un & 1) + 4 * q, 4)}, {"0" if ks < self.nacc else ac}')
            if self.nacc == 2:
                for ni in range(NT):
                    for j in range(0, 4, 2):
                        e(f'v_pk_add_f32 {v(self.acc(ni) + j, 2)}, {v(self.acc(ni) + j, 2)}, {v(self.acc(ni, 1) + j, 2)}')

    name = 'wk_att'
    e.label(name)
    reset(e)
    e('s_lshl_b32 s49, s49, 3')
    e(f's_add_u32 s49, s49, {s(P1)}')

    def gtask(dst, adv):
        e(f's_add_u32 {s(dst)}, s49, {adv}')
        e(f's_and_b32 s37, {s(dst)}, 0xfff8')
        e(f's_max_u32 s37, s37, {8 * N0}')
        e(f's_sub_u32 s37, s37, {8 * N0}')
        e(f's_add_u32 {s(dst)}, {s(dst)}, s37')
        e('s_lshl_b32 s37, s3, 3')
        e(f's_add_u32 {s(dst)}, {s(dst)}, s37')
    gtask(54, 0)
    e('s_mov_b32 s50, s54')
    e(f'v_and_b32 v2, 15, {v(VL)}')
    e(f'v_lshrrev_b32 v3, 4, {v(VL)}')
    e('v_lshlrev_b32 v4, 4, v3')
    e('v_lshl_add_u32 v4, v2, 8, v4')
    e(f'v_lshlrev_b32 v5, 4, {v(VL)}')
    e(f'v_lshlrev_b32 v6, 3, {v(VL)}')
    e(f'v_bfe_u32 v10, {v(VL)}, 2, 2')
    e('v_lshl_add_u32 v10, v3, 2, v10')
    e(f'v_and_b32 v11, 1, {v(VL)}')
    e('v_lshlrev_b32 v11, 3, v11')
    e('v_lshl_add_u32 v10, v10, 4, v11')
    e(f's_lshl_b32 s38, {s(SW)}, 11')
    e('v_add_u32 v10, s38, v10')
    MK = 88
    e('v_lshlrev_b32 v7, 2, v3')
    for j in range(4):
        e(f'v_add_u32 v8, {j}, v7')
        e(f'v_cmp_le_u32 {s(MK + 2 * j, 2)}, v8, v2')
    e('s_mov_b32 s96, -1')
    e('s_mov_b32 s97, 0')
    cc = f32bits((128 ** -0.5) * LOG2E)
    e(f's_mov_b32 s98, {cc:#x}')
    e(f's_mov_b32 s99, {cc:#x}')
    KM_, VM_, ONES, NEG, DO = 16, 32, 40, 44, 72
    S0, S1, M, P, PM, OA = 144, 156, 204, 208, 212, 168
    for j in range(4):
        e(f'v_mov_b32 {v(ONES + j)}, 0x3f803f80')
    e(f'v_mov_b32 {v(NEG)}, 0xf149f2ca')
    e(f'v_mov_b32 {v(PM + 1)}, 0')
    e(f'v_mov_b32 {v(PM + 2)}, 0')
    e('v_lshlrev_b32 v9, 4, v3')
    e('v_lshl_add_u32 v9, v2, 7, v9')
    e('s_mov_b32 s56, -1')

    def att_loads(lab, st, adv):
        Q, KX_, VX_ = 256 + 96 * st, 288 + 96 * st, 320 + 96 * st
        e('s_mov_b32 s55, s50')
        e('s_cmp_ge_u32 s55, 512')
        e(f's_cbranch_scc1 {lab}_nl')
        e('s_lshr_b32 s59, s55, 5')
        e('s_cmp_eq_u32 s59, s56')
        e(f's_cbranch_scc1 {lab}_rdy')
        dep_wait(e, lab, [(C_KV, 64), (C_Q, 32)], 59)
        e('s_mov_b32 s56, s59')
        e.label(f'{lab}_rdy')
        e('s_lshl_b32 s31, s55, 2')
        e(f's_add_u32 s31, s31, {s(SW)}')
        e('s_lshl_b32 s32, s31, 13')
        e(f's_add_u32 s33, s32, {WS_QX}')
        e('s_add_u32 s34, s33, 4096')
        e(f's_add_u32 s35, s32, {WS_KX}')
        e('s_add_u32 s36, s35, 4096')
        for uu in range(4):
            e(f'buffer_load_dwordx4 {u(Q + 4 * uu, 4)}, v4, s[4:7], s33 offen offset:{64 * uu} sc1')
            e(f'buffer_load_dwordx4 {u(KX_ + 4 * uu, 4)}, v4, s[4:7], s35 offen offset:{64 * uu} sc1')
        for uu in range(4):
            e(f'buffer_load_dwordx4 {u(Q + 16 + 4 * uu, 4)}, v4, s[4:7], s34 offen offset:{64 * uu} sc1')
            e(f'buffer_load_dwordx4 {u(KX_ + 16 + 4 * uu, 4)}, v4, s[4:7], s36 offen offset:{64 * uu} sc1')
        e(f's_add_u32 s39, s32, {WS_VXT}')
        e('s_add_u32 s40, s39, 4096')
        for et in range(8):
            e(f'buffer_load_dwordx4 {u(VX_ + 4 * et, 4)}, v5, s[4:7], {"s39" if et < 4 else "s40"} offen offset:{1024 * (et & 3)} sc1')
        e.label(f'{lab}_nl')
        reset(e)
    att_loads(name + '_p', 0, 0)
    e('s_waitcnt vmcnt(0)')
    for st in range(2):
        nm = f'{name}{st}'
        Q, KX_, VX_ = 256 + 96 * st, 288 + 96 * st, 320 + 96 * st
        e.label(nm + '_top')
        reset(e)
        for uu in range(4):
            c0 = (lambda r: '0' if uu == 0 else v(r, 4))
            e(f'v_mfma_f32_16x16x32_bf16 {v(S0, 4)}, {u(KX_ + 4 * uu, 4)}, {u(Q + 4 * uu, 4)}, {c0(S0)}')
            e(f'v_mfma_f32_16x16x32_bf16 {v(S1, 4)}, {u(KX_ + 4 * uu, 4)}, {u(Q + 16 + 4 * uu, 4)}, {c0(S1)}')
            e(f'v_mfma_f32_16x16x32_bf16 {v(S1 + 4, 4)}, {u(KX_ + 16 + 4 * uu, 4)}, {u(Q + 16 + 4 * uu, 4)}, {c0(S1 + 4)}')
        e(f'v_mov_b32 {v(P + 2)}, 0')
        e(f'v_mov_b32 {v(P + 3)}, 0')
        for dg in (S0, S1 + 4):
            for j in range(4):
                e(f'v_cndmask_b32 {v(dg + j)}, {v(NEG)}, {v(dg + j)}, {s(MK + 2 * j, 2)}')
        e(f's_lshr_b32 {s(SEG)}, s54, 3')
        e('s_and_b32 s58, s54, 7')
        if LOG:
            e(f's_mov_b32 {s(S_RANK)}, s58')
        e('s_lshr_b32 s58, s58, 1')
        e('s_lshl_b32 s58, s58, 4')
        gtask(50, 11)
        e('s_min_u32 s55, s50, 511')
        e('s_lshr_b32 s59, s55, 5')
        e('s_cmp_eq_u32 s59, s56')
        e(f's_cbranch_scc1 {nm}_r2')
        dep_wait(e, nm + '_c', [(C_KV, 64), (C_Q, 32)], 59)
        e('s_mov_b32 s56, s59')
        e.label(f'{nm}_r2')
        e('s_lshl_b32 s31, s54, 2')
        e(f's_add_u32 s31, s31, {s(SW)}')
        e('s_lshl_b32 s43, s31, 12')
        e(f's_add_u32 s43, s43, {WS_KM}')
        e(f's_lshl_b32 s41, {s(SEG)}, 18')
        e('s_and_b32 s42, s31, 31')
        e('s_lshl_b32 s42, s42, 12')
        e('s_add_u32 s41, s41, s42')
        e(f's_add_u32 s41, s41, {WS_O}')
        e('s_add_u32 s42, s41, 131072')
        cwait(nm + '2', K_CH, NCH)
        e(f's_lshl_b32 m0, {s(SW)}, 11')
        e('buffer_load_dwordx4 v5, s[4:7], s43 offen sc1 lds', tag='k')
        e('buffer_load_dwordx4 v5, s[4:7], s43 offen offset:1024 sc1 lds', tag='k')
        for w in range(4):
            e(f'buffer_load_dwordx2 {v(VM_ + 2 * w, 2)}, v6, s[4:7], s43 offen offset:{2048 + 512 * w} sc1', tag='v')
        e.wait_vm('k')
        for uu in range(4):
            for m_ in range(2):
                e(f'ds_read_b64_tr_b16 {v(KM_ + 4 * uu + 2 * m_, 2)}, v10 offset:{uu * 512 + m_ * 256}')
        e('s_waitcnt vmcnt(0)')
        att_loads(nm + '_n', 1 - st, NATT)
        e('s_waitcnt lgkmcnt(0)')
        for uu in range(4):
            for tq, S in enumerate((S0, S1)):
                e(f'v_mfma_f32_16x16x32_bf16 {v(S + 8, 4)}, {v(KM_ + 4 * uu, 4)}, {u(Q + 16 * tq + 4 * uu, 4)}, {"0" if uu == 0 else v(S + 8, 4)}')
        for tq, S in enumerate((S0, S1)):
            C0 = S + 8
            e(f'v_cndmask_b32 {v(C0)}, {v(C0 + 2)}, {v(C0)}, s[96:97]')
            e(f'v_cndmask_b32 {v(C0 + 1)}, {v(C0 + 3)}, {v(C0 + 1)}, s[96:97]')
            vals = [S + j for j in range(4 * (tq + 1))] + [C0, C0 + 1]
            e(f'v_max3_f32 {v(M)}, {v(vals[0])}, {v(vals[1])}, {v(vals[2])}')
            i = 3
            while i + 1 < len(vals):
                e(f'v_max3_f32 {v(M)}, {v(M)}, {v(vals[i])}, {v(vals[i + 1])}')
                i += 2
            if i < len(vals):
                e(f'v_max_f32 {v(M)}, {v(M)}, {v(vals[i])}')
            for sw_ in ('v_permlane32_swap_b32', 'v_permlane16_swap_b32'):
                e(f'v_mov_b32 {v(M + 1)}, {v(M)}')
                e(f'{sw_} {v(M)}, {v(M + 1)}')
                e(f'v_max_f32 {v(M)}, {v(M)}, {v(M + 1)}')
            e(f'v_mul_f32 {v(M)}, s98, {v(M)}')
            for x in vals[::2]:
                e(f'v_pk_fma_f32 {v(x, 2)}, {v(x, 2)}, s[98:99], {v(M, 2)} op_sel_hi:[1,1,0] neg_lo:[0,0,1] neg_hi:[0,0,1]')
            for x in vals:
                e(f'v_exp_f32 {v(x)}, {v(x)}')
            for j in range(2 * (tq + 1)):
                e(f'v_cvt_pk_bf16_f32 {v(P + j)}, {v(S + 2 * j)}, {v(S + 2 * j + 1)}')
            e(f'v_cvt_pk_bf16_f32 {v(PM)}, {v(C0)}, {v(C0 + 1)}')
            e(f'v_cvt_pk_bf16_f32 {v(PM + 3)}, {v(C0)}, {v(C0 + 1)}')
            e.wait_vm('v')
            if tq == 0:
                mid(e)
            Lr = OA + 32
            e(f'v_mfma_f32_16x16x32_bf16 {v(Lr, 4)}, {v(ONES, 4)}, {v(P, 4)}, 0')
            for et in range(8):
                e(f'v_mfma_f32_16x16x32_bf16 {v(OA + 4 * et, 4)}, {u(VX_ + 4 * et, 4)}, {v(P, 4)}, 0')
            e(f'v_mfma_f32_16x16x16_bf16 {v(Lr, 4)}, {v(ONES, 2)}, {v(PM, 2)}, {v(Lr, 4)}')
            for et in range(8):
                e(f'v_mfma_f32_16x16x16_bf16 {v(OA + 4 * et, 4)}, {v(VM_ + 2 * (et >> 1), 2)}, {v(PM + 2 * (et & 1), 2)}, {v(OA + 4 * et, 4)}')
            e(f'v_rcp_f32 {v(M)}, {v(Lr)}')
            for ub in range(4):
                o = OA + 8 * ub
                d = DO + 16 * tq + 4 * ub
                for j in range(0, 8, 2):
                    e(f'v_pk_mul_f32 {v(o + j, 2)}, {v(o + j, 2)}, {v(M, 2)} op_sel_hi:[1,0]')
                for j in range(4):
                    e(f'v_cvt_pk_bf16_f32 {v(d + j)}, {v(o + 2 * j)}, {v(o + 2 * j + 1)}')
                e(f'buffer_store_dwordx4 {v(d, 4)}, v9, s[4:7], {"s42" if tq else "s41"} offen offset:{2048 * (ub >> 1) + 64 * (ub & 1)} sc1')
        cdone(nm, K_ATT, 58, nxt=f'{name}{1 - st}_top', tsk=54)

    name = 'wk_wo'
    e.label(name)
    reset(e)
    e(f's_lshr_b32 s55, {s(P1)}, 3')
    e(f's_bfe_u32 s56, {s(P1)}, 0x20001')
    e(f's_mul_i32 s58, s56, {1024 * 1280}')
    e('s_lshl_b32 s59, s55, 8')
    e('s_add_u32 s58, s58, s59')
    S = SG(name, [(24, 1280, 128)], 16, [58], nacc=2, rows=16)
    e('s_lshl_b32 s58, s56, 4')
    e(f'v_and_b32 v4, 15, {v(VL)}')
    e(f'v_lshrrev_b32 v5, 4, {v(VL)}')
    e('v_lshlrev_b32 v5, 4, v5')
    e('v_lshl_add_u32 v4, v4, 6, v5')
    e('s_lshl_b32 s33, s55, 2')
    e(f's_add_u32 s33, s33, {s(SW)}')
    e('s_lshl_b32 s33, s33, 12')
    e(f's_and_b32 s31, {s(P1)}, 1')
    e('s_lshl_b32 s32, s31, 10')
    e('s_add_u32 s33, s33, s32')
    e(f's_mul_i32 s32, s56, {32 * 2560}')
    e('s_add_u32 s33, s33, s32')
    e(f's_add_u32 s59, s33, {WS_PW}')
    e('s_lshl_b32 s56, s56, 15')
    e('s_lshl_b32 s31, s31, 17')
    e('s_add_u32 s56, s56, s31')
    e(f's_add_u32 s56, s56, {WS_O}')
    e.label(name + '_loop')
    reset(e)
    e(f's_lshl_b32 s55, {s(SEG)}, 18')
    e('s_add_u32 s55, s55, s56')
    e(f's_mul_i32 s33, {s(SEG)}, {4 * 32 * 2560}')
    e('s_add_u32 s33, s33, s59')
    cwait(name, K_ATT, 2, 58)
    S.main(55)
    mid(e)
    for ni in range(2):
        e(f'buffer_store_dwordx4 {v(S.acc(ni), 4)}, v4, s[4:7], s33 offen offset:{2048 * ni} sc1')
    cdone(name, K_WO)

    name = 'wk_ln2'
    e.label(name)
    reset(e)
    GT, SH, SC, RS_, PP = 16, 28, 40, 52, 64
    dbg_wait(e, name + '_mb', D_MODB, NMODB)
    e(f'v_lshlrev_b32 v10, 4, {v(VL)}')
    e('v_and_b32 v11, 0x1f0, v10')
    e(f'v_lshrrev_b32 v12, 1, v10')
    e(f'v_lshrrev_b32 v13, 1, v11')
    for base, idx in ((GT, 2), (SH, 3), (SC, 4)):
        e(f's_mov_b32 s32, {WS_MOD + idx * 2560}')
        for i in range(3):
            e(f'buffer_load_dwordx4 {v(base + 4 * i, 4)}, {"v10" if i < 2 else "v11"}, s[4:7], s32 offen offset:{1024 * i} sc1')
    e(f's_lshl_b32 s30, {s(P1)}, 2')
    e(f's_add_u32 s30, s30, {s(SW)}')
    e(f'v_lshrrev_b32 v4, 2, {v(VL)}')
    e(f'v_and_b32 v5, 3, {v(VL)}')
    e('v_lshlrev_b32 v5, 4, v5')
    e('v_lshl_add_u32 v14, v4, 11, v5')
    e('v_and_b32 v4, 7, v4')
    e('v_lshl_add_u32 v15, v4, 11, v5')
    e(f'v_lshrrev_b32 v4, 5, {v(VL)}')
    e(f'v_mul_u32_u24 v4, {32 * 2560}, v4')
    e('v_add_u32 v15, v15, v4')
    e(f'v_lshrrev_b32 v4, 4, {v(VL)}')
    e('v_lshl_add_u32 v8, v4, 12, v5')
    e(f'v_bfe_u32 v4, {v(VL)}, 3, 1')
    e('v_lshl_add_u32 v8, v4, 6, v8')
    e(f'v_bfe_u32 v4, {v(VL)}, 2, 1')
    e('v_lshl_add_u32 v8, v4, 3, v8')
    e('v_and_b32 v9, 0x1fff, v8')
    e('s_lshr_b32 s56, s30, 4')
    e('s_lshl_b32 s56, s56, 10')
    e('s_and_b32 s57, s30, 15')
    e('s_lshl_b32 s57, s57, 6')
    e('s_add_u32 s56, s56, s57')
    e(f's_add_u32 s56, s56, {WS_PW}')
    e('s_lshl_b32 s57, s30, 7')
    e(f's_add_u32 s57, s57, {WS_H2}')
    e('s_mul_i32 s58, s30, 1280')
    e('s_waitcnt vmcnt(0)')
    for j in range(12):
        e(f'v_add_f32 {v(SC + j)}, 1.0, {v(SC + j)}')
    for j in range(0, 12, 2):
        rnd2(e, SC + j, SC + j + 1, 7)
    e('s_mov_b32 s96, -1')
    e('s_mov_b32 s97, 0')
    e(f's_mov_b32 s98, {f32bits(1.0 / 640):#x}')
    e(f's_mov_b32 s99, {f32bits(1e-5):#x}')
    e.label(name + '_loop')
    reset(e)
    e(f's_mul_i32 s31, {s(SEG)}, {32 * 1280}')
    e('s_add_u32 s41, s31, s57')
    e('s_add_u32 s31, s31, s58')
    e(f's_add_u32 s40, s31, {WS_X1}')
    e(f's_mul_i32 s36, {s(SEG)}, {4 * 32 * 2560}')
    e('s_add_u32 s36, s36, s56')
    cwait(name, K_WO, 40)
    for k in range(4):
        e(f's_add_u32 s33, s36, {k * 32 * 2560}')
        e(f's_add_u32 s34, s36, {k * 32 * 2560 + 32768}')
        e(f'buffer_load_dwordx4 {v(PP + 12 * k, 4)}, v14, s[4:7], s33 offen sc1', tag=('p', k))
        e(f'buffer_load_dwordx4 {v(PP + 12 * k + 4, 4)}, v14, s[4:7], s34 offen sc1', tag=('p', k))
        if k % 2 == 0:
            e(f's_add_u32 s35, s36, {k * 32 * 2560 + 65536}')
            e(f'buffer_load_dwordx4 {v(PP + 12 * k + 8, 4)}, v15, s[4:7], s35 offen sc1', tag=('p', k))
    for i in range(3):
        e(f'buffer_load_dwordx2 {v(RS_ + 2 * i, 2)}, {"v12" if i < 2 else "v13"}, {s(S_X, 4)}, s31 offen offset:{512 * i}', tag='r')
    X = PP
    e('s_add_u32 s42, s41, 16384')
    e('s_add_u32 s43, s41, 32768')
    for k in range(1, 4):
        e.wait_vm(('p', k))
        for j in range(0, 12 if k % 2 == 0 else 8, 2):
            e(f'v_pk_add_f32 {v(X + j, 2)}, {v(X + j, 2)}, {v(X + k * 12 + j, 2)}')
    for j in range(8, 12):
        e(f'v_mov_b32 {v(X + 12 + j)}, {v(X + j)}')
    for j in range(8, 12):
        e(f'v_permlane32_swap_b32 {v(X + j)}, {v(X + 12 + j)}')
    for j in range(8, 12, 2):
        e(f'v_pk_add_f32 {v(X + j, 2)}, {v(X + j, 2)}, {v(X + 12 + j, 2)}')
    mid(e)
    e.wait_vm('r')
    for j in range(0, 12, 2):
        a_, b_ = X + j, X + j + 1
        rr = RS_ + j // 2
        rnd2(e, a_, b_, 7)
        e(f'v_pk_mul_f32 {v(a_, 2)}, {v(a_, 2)}, {v(GT + j, 2)}')
        rnd2(e, a_, b_, 7)
        e(f'v_lshlrev_b32 v4, 16, {v(rr)}')
        e(f'v_and_b32 v5, 0xffff0000, {v(rr)}')
        e(f'v_pk_add_f32 {v(a_, 2)}, {v(a_, 2)}, v[4:5]')
        e(f'v_cvt_pk_bf16_f32 {v(rr)}, {v(a_)}, {v(b_)}')
        e(f'v_lshlrev_b32 {v(a_)}, 16, {v(rr)}')
        e(f'v_and_b32 {v(b_)}, 0xffff0000, {v(rr)}')
        if j % 4 == 2:
            i = j // 4
            e(f'buffer_store_dwordx2 {v(RS_ + 2 * i, 2)}, {"v12" if i < 2 else "v13"}, s[4:7], s40 offen offset:{512 * i} sc1')
    e(f'v_pk_add_f32 v[4:5], {v(X + 8, 2)}, {v(X + 10, 2)}')
    e('v_add_f32 v4, v4, v5')
    e('v_cndmask_b32 v6, 0, v4, s[96:97]')
    e(f'v_pk_add_f32 v[4:5], {v(X, 2)}, {v(X + 2, 2)}')
    e(f'v_pk_add_f32 v[4:5], v[4:5], {v(X + 4, 2)}')
    e(f'v_pk_add_f32 v[4:5], v[4:5], {v(X + 6, 2)}')
    e('v_add_f32 v4, v4, v5')
    e('v_add_f32 v6, v6, v4')
    wave_sum(e, 6, 5)
    e('v_mul_f32 v6, s98, v6')
    e('v_mov_b32 v2, 0')
    for j in range(8, 12):
        e(f'v_sub_f32 v5, {v(X + j)}, v6')
        e('v_fmac_f32 v2, v5, v5')
    e('v_cndmask_b32 v2, 0, v2, s[96:97]')
    for j in range(8):
        e(f'v_sub_f32 v5, {v(X + j)}, v6')
        e('v_fmac_f32 v2, v5, v5')
    wave_sum(e, 2, 5)
    e('v_mul_f32 v2, s98, v2')
    rnd2(e, 6, 2, 7)
    e('v_add_f32 v2, s99, v2')
    rnd2(e, 2, 5, 7)
    e('v_sqrt_f32 v2, v2')
    rnd2(e, 2, 5, 7)
    e('v_rcp_f32 v2, v2')
    for j in range(0, 12, 2):
        a_, b_ = X + j, X + j + 1
        e(f'v_sub_f32 {v(a_)}, {v(a_)}, v6')
        e(f'v_sub_f32 {v(b_)}, {v(b_)}, v6')
        rnd2(e, a_, b_, 7)
        e(f'v_mul_f32 {v(a_)}, {v(a_)}, v2')
        e(f'v_mul_f32 {v(b_)}, {v(b_)}, v2')
        rnd2(e, a_, b_, 7)
        e(f'v_pk_mul_f32 {v(a_, 2)}, {v(a_, 2)}, {v(SC + j, 2)}')
        rnd2(e, a_, b_, 7)
        e(f'v_pk_add_f32 {v(a_, 2)}, {v(a_, 2)}, {v(SH + j, 2)}')
        e(f'v_cvt_pk_bf16_f32 {v(X + 12 + j // 2)}, {v(a_)}, {v(b_)}')
        if j % 4 == 2:
            i = j // 4
            e(f'buffer_store_dwordx2 {v(X + 12 + 2 * i, 2)}, {"v8" if i < 2 else "v9"}, s[4:7], {s(41 + i)} offen sc1')
    cdone(name, K_LN2)

    name = 'wk_up'
    e.label(name)
    reset(e)
    e(f's_lshl_b32 s58, {s(P1)}, 7')
    e('s_mov_b32 s59, s58')
    S = SG(name, [(S_W1, 3456, 64), (S_W3, 3456, 64)], 10, [58, 59])
    e(f'v_and_b32 v4, 15, {v(VL)}')
    e(f'v_lshrrev_b32 v5, 4, {v(VL)}')
    e('v_lshlrev_b32 v5, 4, v5')
    e('v_lshl_add_u32 v4, v4, 7, v5')
    e(f's_lshr_b32 s31, {s(SW)}, 1')
    e(f's_mul_i32 s31, s31, {16 * 3456}')
    e(f's_and_b32 s32, {s(SW)}, 1')
    e('s_lshl_b32 s32, s32, 6')
    e('s_add_u32 s31, s31, s32')
    e(f's_lshl_b32 s59, {s(P1)}, 11')
    e('s_add_u32 s59, s59, s31')
    e(f's_add_u32 s59, s59, {WS_HM}')
    e(f's_mov_b32 s36, {f32bits(-LOG2E):#x}')
    e.label(name + '_loop')
    reset(e)
    e(f's_mul_i32 s55, {s(SEG)}, {32 * 1280}')
    e(f's_add_u32 s55, s55, {WS_H2}')
    e(f's_mul_i32 s33, {s(SEG)}, {32 * 3456}')
    e('s_add_u32 s33, s33, s59')
    cwait(name, K_LN2, 8)
    S.main(55)
    mid(e)
    for a_ in range(2):
        gv = S.acc(a_)
        uv = S.acc(2 + a_)
        for h in range(2):
            g0, g1, u0, u1 = gv + 2 * h, gv + 2 * h + 1, uv + 2 * h, uv + 2 * h + 1
            rnd2(e, g0, g1, 6)
            rnd2(e, u0, u1, 6)
            silu_inplace(e, g0, 6, 36)
            silu_inplace(e, g1, 7, 36)
            rnd2(e, g0, g1, 6)
            e(f'v_mul_f32 {v(g0)}, {v(g0)}, {v(u0)}')
            e(f'v_mul_f32 {v(g1)}, {v(g1)}, {v(u1)}')
            e(f'v_cvt_pk_bf16_f32 {v(ET + 2 * a_ + h)}, {v(g0)}, {v(g1)}')
    e(f'buffer_store_dwordx4 {v(ET, 4)}, v4, s[4:7], s33 offen sc1')
    cdone(name, K_UP)

    name = 'wk_dn'
    e.label(name)
    reset(e)
    e(f's_lshr_b32 s58, {s(P1)}, 1')
    e('s_lshl_b32 s58, s58, 8')
    S = SG(name, [(S_W2, 1280, 128)], 27, [58], nacc=2, rows=16)
    dbg_wait(e, name + '_mb', D_MODB, NMODB)
    GBV = 8
    G = S.G
    assert (G.v_xg, G.v_xa) == (8, 12)
    e(f'v_and_b32 v4, 15, {v(VL)}')
    e(f'v_lshrrev_b32 v5, 4, {v(VL)}')
    e('v_mul_u32_u24 v4, 1280, v4')
    e('v_lshl_add_u32 v4, v5, 3, v4')
    e('v_lshlrev_b32 v5, 4, v5')
    e(f's_lshl_b32 s32, {s(SW)}, 6')
    e('s_add_u32 s58, s58, s32')
    e('s_lshl_b32 s33, s58, 1')
    e(f's_add_u32 s33, s33, {WS_MOD + 5 * 2560}')
    e(f'buffer_load_dwordx4 {v(ET, 4)}, v5, s[4:7], s33 offen sc1')
    e(f'buffer_load_dwordx4 {v(ET + 4, 4)}, v5, s[4:7], s33 offen offset:64 sc1')
    e(f's_and_b32 s31, {s(P1)}, 1')
    e(f's_mul_i32 s56, s31, {16 * 3456}')
    e(f's_add_u32 s56, s56, {WS_HM}')
    e(f's_mul_i32 s31, s31, {16 * 1280}')
    e('s_add_u32 s59, s58, s31')
    e('s_waitcnt vmcnt(0)')
    e.label(name + '_loop')
    reset(e)
    e(f's_mul_i32 s55, {s(SEG)}, {32 * 3456}')
    e('s_add_u32 s55, s55, s56')
    e(f's_mul_i32 s33, {s(SEG)}, {32 * 1280}')
    e('s_add_u32 s33, s33, s59')
    e(f's_add_u32 s34, s33, {WS_X1}')
    cwait(name, K_UP, 27)

    def x1_loads():
        e('buffer_load_dwordx2 v[16:17], v4, s[4:7], s34 offen sc1', tag='r')
        e('buffer_load_dwordx2 v[18:19], v4, s[4:7], s34 offen offset:32 sc1', tag='r')
    S.main(55, x1_loads)
    mid(e)
    e.wait_vm('r')
    for ni in range(2):
        for h in range(2):
            a_ = S.acc(ni) + 2 * h
            rr = 16 + 2 * ni + h
            rnd2(e, a_, a_ + 1, 7)
            e(f'v_pk_mul_f32 {v(a_, 2)}, {v(a_, 2)}, {v(ET + 4 * ni + 2 * h, 2)}')
            rnd2(e, a_, a_ + 1, 7)
            e(f'v_lshlrev_b32 v6, 16, {v(rr)}')
            e(f'v_and_b32 v7, 0xffff0000, {v(rr)}')
            e(f'v_pk_add_f32 {v(a_, 2)}, {v(a_, 2)}, v[6:7]')
            e(f'v_cvt_pk_bf16_f32 {v(rr)}, {v(a_)}, {v(a_ + 1)}')
        e(f'buffer_store_dwordx2 {v(16 + 2 * ni, 2)}, v4, {s(S_OUT, 4)}, s33 offen offset:{32 * ni}')
    cdone(name, None)

    name = 'wk_mod'
    e.label(name)
    reset(e)
    load_srds(e, [('c', 88), ('wmod', 92)], tmp=96)
    e(f's_lshl_b32 s30, {s(SW)}, 6')
    e(f'v_add_u32 v0, s30, {v(VL)}')
    e(f's_cmp_ge_u32 {s(P1)}, {NMODA}')
    e(f's_cbranch_scc1 {name}_nz')
    e('v_mov_b32 v4, 0')
    e('v_lshlrev_b32 v2, 2, v0')
    e(f's_lshl_b32 s31, {s(P1)}, 10')
    e(f's_add_u32 s31, s31, {WS_CT2}')
    e('buffer_store_dword v4, v2, s[4:7], s31 offen sc1')
    e(f's_cmp_lg_u32 {s(P1)}, 0')
    e(f's_cbranch_scc1 {name}_nz')
    for j in range(4):
        e(f'v_mov_b32 {v(4 + j)}, 0')
    e('v_lshlrev_b32 v2, 4, v0')
    e(f's_mov_b32 s31, {WS_CTR}')
    for i in range(5):
        e('buffer_store_dwordx4 v[4:7], v2, s[4:7], s31 offen sc1')
        e('s_add_u32 s31, s31, 4096')
    e.label(f'{name}_nz')
    reset(e)
    e.nop(2)
    e('v_lshlrev_b32 v14, 1, v0')
    e('v_lshlrev_b32 v2, 2, v0')
    e(f's_mov_b32 s30, {f32bits(-LOG2E):#x}')
    for i in range(3):
        e(f'buffer_load_ushort {v(4 + i)}, v14, s[88:91], 0 offen offset:{512 * i}', tag='c')
    e('v_and_b32 v8, 3, v0')
    e('v_lshrrev_b32 v9, 2, v0')
    e('v_mul_u32_u24 v10, 7680, v9')
    e('v_lshl_add_u32 v10, v8, 4, v10')
    e(f's_lshl_b32 s31, {s(P1)}, 6')
    for i in range(10):
        if i:
            e(f's_add_u32 s31, s31, {64 * 7680}')
        e(f'buffer_load_dwordx4 {v(32 + 4 * i, 4)}, v10, s[92:95], s31 offen', tag=('w', i))
    e.wait_vm('c')
    for i in range(3):
        e(f'v_lshlrev_b32 {v(4 + i)}, 16, {v(4 + i)}')
        silu_inplace(e, 4 + i, 7, 30)
        e(f'v_cvt_pk_bf16_f32 {v(4 + i)}, {v(4 + i)}, {v(4 + i)}')
        e(f'v_lshlrev_b32 {v(4 + i)}, 16, {v(4 + i)}')
        e(f'ds_write_b32 v2, {v(4 + i)} offset:{1024 * i}')
    e.wait_lg()
    e('s_barrier')
    e('v_lshlrev_b32 v11, 2, v9')
    for i in range(10):
        e(f'ds_read_b32 {v(112 + i)}, v11 offset:{256 * i}')
    for j in range(8):
        e(f'v_mov_b32 {v(16 + j)}, 0')
    e.wait_lg()
    for i in range(10):
        e.wait_vm(('w', i))
        for d in range(4):
            w = 32 + 4 * i + d
            e(f'v_lshlrev_b32 v12, 16, {v(w)}')
            e(f'v_and_b32 v13, 0xffff0000, {v(w)}')
            e(f'v_fmac_f32 {v(16 + 2 * d)}, v12, {v(112 + i)}')
            e(f'v_fmac_f32 {v(17 + 2 * d)}, v13, {v(112 + i)}')
    e('v_lshlrev_b32 v12, 7, v9')
    e('v_lshl_add_u32 v12, v8, 5, v12')
    e('ds_write_b128 v12, v[16:19] offset:4096')
    e('ds_write_b128 v12, v[20:23] offset:4112')
    e.wait_lg()
    e('s_barrier')
    e(f's_cmp_lg_u32 {s(SW)}, 0')
    e(f's_cbranch_scc1 {name}_done')
    e(f'v_and_b32 v12, 31, {v(VL)}')
    e(f'v_lshrrev_b32 v13, 5, {v(VL)}')
    e('v_lshlrev_b32 v12, 2, v12')
    e('v_lshl_add_u32 v13, v13, 12, v12')
    for i in range(32):
        e(f'ds_read_b32 {v(32 + i)}, v13 offset:{4096 + 128 * i}')
    e.wait_lg()
    for i in range(1, 32):
        e(f'v_add_f32 v32, v32, {v(32 + i)}')
    e('v_mov_b32 v33, v32')
    e('v_permlane32_swap_b32 v32, v33')
    e('v_add_f32 v32, v32, v33')
    e('v_cvt_pk_bf16_f32 v32, v32, v32')
    e('v_lshlrev_b32 v32, 16, v32')
    e(f's_lshl_b32 s31, {s(P1)}, 7')
    e(f's_add_u32 s31, s31, {WS_MOD}')
    e('buffer_store_dword v32, v12, s[4:7], s31 offen sc1')
    e.label(f'{name}_done')
    e(f's_mov_b32 s36, {D_MODB}')
    e(f's_cmp_lt_u32 {s(P1)}, {NMODA}')
    e(f's_cselect_b32 s36, {D_MOD}, s36')
    signal(e, name, None, B, loop, dbg_off='s36')


NAME = 'adaLN_cond__memory_aug_recurrent_mem_tr__glu_gated_swiglu__prompt_kernel'
if __name__ == '__main__':
    import argparse
    ap = argparse.ArgumentParser()
    ap.add_argument('--out', default='mega.s')
    ap.add_argument('--kw', default='')
    ap.add_argument('--log', action='store_true')
    ap.add_argument('--sleep', type=int, default=6)
    ap.add_argument('--list', action='store_true')
    ap.add_argument('--dsleep', type=int, default=24)
    ap.add_argument('--n0', type=int, default=14)
    args = ap.parse_args()
    LOG = args.log
    SLEEP = args.sleep
    DSLEEP = args.dsleep
    N0 = args.n0
    e = Em()
    nm = 'mega_kernel' if args.list else NAME
    e.raw(f'.globl {nm}')
    KNAME[0] = nm
    reset(e)
    kw = eval('dict(' + args.kw + ')')
    gen_chainX.gen_chain(e, name=nm, mega='wk_entry', nmoda=NMODA, segsig=WS_CT2 + K_CH * 128, kvt=64, **kw)
    gen_workers(e)
    if args.list:
        hdr = f"; @launch kernel={nm} grid=(256,1,1) block=(256,1,1) lds=163840\n"
    else:
        hdr = "; @launch grid=(256,1,1) block=(256,1,1) lds=163840\n"
    hdr += '.amdgcn_target "amdgcn-amd-amdhsa--gfx950"\n.text\n'
    open(args.out, 'w').write(hdr + e.text() + kd(nm, 512, 256))
```

```python
from emit import *
from layout import *
from gen_chain import Pool, f32bits, kd

S_WS = 4
S_DBG = 8
S_WQ = 12
S_WK = 16
S_WV = 20
S_WO = 24
S_H = 28
S_W = 29
S_STEP = 30
S_T0, S_T1, S_T2, S_T3 = 31, 32, 33, 34
S_MODE = 35
S_UNIT = 36
S_XCC = 37
S_C1 = 38
S_MASKLO = 40
S_LDSW = 42
S_SH13 = 43
S_MBP = 44
S_MSL = 48
S_M9D = 49
S_PBST = 50
S_MBL = 55
S_MBC = 56
S_MBN = 57
S_KXW = 58
S_KXM = 59
S_PBLD = 60
S_MDST = 61
S_VMO = 62
S_NR = 63
S_VB0, S_VB, S_MBL2, S_GOF2 = 66, 67, 68, 69
S_MBE0, S_MBD0, S_MBD2 = 73, 74, 47
S_GOF = 64
S_MBR2 = 65
S_VXO = 70
S_KMO = 71
S_WRM = 72
S_MBN2 = 75
S_STAMP = 76
S_SIG = 15
S_KVOK = 16

V_LANE16, V_IDX, V_AF, V_QKR, V_LDSW, V_QKW, V_OW, V_OR = range(8)
V_PBST, V_KXG, V_MBST, V_L8, V_WA, V_WT, V_M1, V_L64 = range(8, 16)
V_SEL = 16
V_ONES = 20
V_PM = 24
V_M2 = 26
NPERS = 28

NR_PING, NR_CAL, NR_VB = 8 * 16384, 9 * 16384, 16 * 16384
D_NEAR = 144
D_INIT, D_SLOW, D_PAIR = 132, 136, 144

_fj = [0]


def far_jump(e, label, sp):
    _fj[0] += 1
    here = f'Lfj{_fj[0]}'
    e(f's_getpc_b64 {s(sp, 2)}')
    e.label(here)
    e.raw(f'    s_add_u32 {s(sp)}, {s(sp)}, {label}-{here}')
    e.raw(f'    s_addc_u32 {s(sp + 1)}, {s(sp + 1)}, 0')
    e(f's_setpc_b64 {s(sp, 2)}')


def gen_chain(em, name='chain_kernel', mega=None, nmoda=0, pool_end=96, nsteps=64, stamps=False, stsel=(0, 1, 2, 3, 4, 5, 6, 7, 8, 9),
              hstamps=False, la_lds=5, afl=7, nvl=2, npre=4, noa=2, v_at=1, gdel=0, kdel=0, adel=3, nkl=4, wat=2, wat2=20, defer=True,
              warm=(('a', 0), ('a2', 1)), ncal=6, segsig=None, slow=True, early_poll=0, wfl='nt', kvt=32, kum=False, kvseg=None,
              lds_un=(0, 1, 5, -9, -6, -3), dbg='', ldfl='nt'):
    L_MMEM = 0
    L_MQ = 10240
    L_MK = L_MQ + 2048
    L_O = L_MK + 2048
    L_KX = L_O + 2048
    L_VX = L_KX + 8192
    L_WB = L_VX + 8192
    NRING = 8
    WL = NRING * 4096
    assert L_WB + 4 * WL <= 163840
    e = em
    LN = 28
    NH1 = 10 - nvl

    ounits = [('o', t, p) for p in range(5) for t in range(2)]
    uorder = [(m, t) for t in range(10 - nkl) for m in 'qk'] + [(m, t) for m in 'qk' for t in range(10 - nkl, 10)] + [('v', t) for t in range(NH1, 10)]
    NQE = 40 - 2 * nkl
    NA = 2 * len(uorder)
    uorder += ounits
    order = [(un, tau) for un in uorder for tau in range(2)]
    n_reg = (512 - pool_end) // 8
    n_lds = len(order) - n_reg
    assert n_lds % 2 == 0 and n_lds <= 16, n_lds
    lun = sorted(x % len(uorder) for x in lds_un[:n_lds // 2])
    lun = [uorder[i] for i in lun]
    units = [un for un in uorder if un not in lun] + lun
    place = {}
    r = pool_end
    for i, un in enumerate(units):
        for tau in range(2):
            if un in lun:
                place[(un, tau)] = ('lds', 2 * (i % NRING) + tau)
            else:
                place[(un, tau)] = ('reg', r)
                r += 8
    assert r == 512

    em.raw('.p2align 8')
    em.raw(f'.type {name},@function')
    em.label(name)
    e('s_cmp_lt_u32 s2, 256')
    e(f's_cbranch_scc1 {name}_go')
    e('s_endpgm')
    e.label(f'{name}_go')
    if 'rt' in dbg:
        e('s_memrealtime s[96:97]')
    e('s_load_dwordx4 s[48:51], s[0:1], 16')
    e('s_load_dwordx4 s[52:55], s[0:1], 32')
    e('s_load_dwordx4 s[56:59], s[0:1], 112')
    e(f's_getreg_b32 {s(S_XCC)}, hwreg(HW_REG_XCC_ID)')
    e(f's_and_b32 {s(S_XCC)}, {s(S_XCC)}, 15')
    e('v_lshrrev_b32 v20, 6, v0')
    e('v_and_b32 v16, 63, v0')
    e(f'v_readfirstlane_b32 {s(S_W)}, v20')
    e('s_waitcnt lgkmcnt(0)')

    def srd(d, src, size):
        e(f's_mov_b32 {s(d)}, {s(src)}')
        e(f's_and_b32 {s(d + 1)}, {s(src + 1)}, 0xffff')
        e(f's_mov_b32 {s(d + 2)}, {size}')
        e(f's_mov_b32 {s(d + 3)}, 0x20000')
    srd(S_WQ, 48, 5242880)
    srd(S_WK, 50, 5242880)
    srd(S_WV, 52, 5242880)
    srd(S_WO, 54, 5242880)
    srd(S_DBG, 56, 256)
    srd(S_WS, 58, WS_SIZE)

    e(f's_and_b32 {s(S_MODE)}, s2, 7')
    e(f's_lshr_b32 {s(S_H)}, s2, 3')
    e(f's_cmp_eq_u32 {s(S_MODE)}, 0')
    e(f's_cbranch_scc1 {name}_hasrole')
    e(f's_bitcmp1_b32 0x82, {s(S_MODE)}')
    e(f's_cbranch_scc0 {name}_work')
    e(f's_and_b32 {s(S_T0)}, {s(S_XCC)}, 3')
    e(f's_cmp_lg_u32 {s(S_T0)}, 0')
    e(f's_cselect_b32 {s(S_T1)}, 1, 0')
    e(f's_cmp_eq_u32 {s(S_T0)}, 2')
    e(f's_cselect_b32 {s(S_T2)}, 1, 0')
    e(f's_cmp_eq_u32 {s(S_MODE)}, 1')
    e(f's_cselect_b32 {s(S_T1)}, {s(S_T1)}, {s(S_T2)}')
    e(f's_cmp_lg_u32 {s(S_W)}, 0')
    e(f's_cbranch_scc1 {name}_elected')
    e(f's_lshl_b32 {s(S_T0)}, 1, {s(S_H)}')
    e(f's_lshl_b32 {s(S_T2)}, {s(S_T1)}, 2')
    e(f'v_mov_b32 v20, {s(S_T0)}')
    e('v_mov_b32 v21, 0')
    e('s_mov_b64 exec, 1')
    e(f'buffer_atomic_or v20, v21, {s(S_DBG, 4)}, {s(S_T2)} offen offset:{D_PAIR} sc0')
    e.wait_vm()
    e('ds_write_b32 v21, v20')
    e('s_mov_b64 exec, -1')
    e.wait_lg()
    e.label(f'{name}_elected')
    e('s_barrier')
    e('v_mov_b32 v21, 0')
    e('ds_read_b32 v20, v21')
    e.wait_lg()
    e(f'v_readfirstlane_b32 {s(S_T0)}, v20')
    e('s_barrier')
    e(f's_lshr_b32 {s(S_T0)}, {s(S_T0)}, {s(S_H)}')
    e(f's_and_b32 {s(S_T0)}, {s(S_T0)}, 1')
    e(f's_xor_b32 {s(S_T1)}, {s(S_T1)}, {s(S_T0)}')
    e(f's_cbranch_scc1 {name}_hasrole')
    e(f's_mov_b32 {s(S_MODE)}, 7')
    e.label(f'{name}_work')
    if mega:
        far_jump(e, mega, 44)
    else:
        e('s_endpgm')
    e.label(f'{name}_hasrole')
    e(f'v_mov_b32 {v(LN)}, v16')

    g, c, rp, cp, g1, g2, sw = 16, 17, 18, 19, 20, 21, 22
    T = 23
    e(f'v_lshrrev_b32 {v(g)}, 4, {v(LN)}')
    e(f'v_and_b32 {v(c)}, 15, {v(LN)}')
    e(f'v_lshrrev_b32 {v(rp)}, 2, {v(c)}')
    e(f'v_and_b32 {v(cp)}, 3, {v(LN)}')
    e(f'v_and_b32 {v(g1)}, 1, {v(g)}')
    e(f'v_lshrrev_b32 {v(g2)}, 1, {v(g)}')
    e(f'v_lshl_add_u32 {v(sw)}, {v(g1)}, 1, {v(g2)}')
    e(f'v_lshlrev_b32 {v(V_LANE16)}, 4, {v(LN)}')
    e(f'v_lshlrev_b32 {v(V_L64)}, 6, {v(LN)}')
    e(f'v_lshlrev_b32 {v(V_WA)}, 7, {v(c)}')
    e(f'v_mov_b32 {v(V_M1)}, -1')
    e(f'v_and_b32 {v(T)}, 2, {v(LN)}')
    e(f'v_cmp_ne_u32 vcc, 0, {v(T)}')
    e(f'v_mov_b32 {v(T + 1)}, 0x4444')
    e(f'v_mov_b32 {v(T + 2)}, 0xeeee')
    e(f'v_cndmask_b32 {v(V_IDX)}, {v(T + 1)}, {v(T + 2)}, vcc')
    e(f'v_lshl_add_u32 {v(T)}, {v(g)}, 2, {v(rp)}')
    e(f'v_lshlrev_b32 {v(T + 1)}, 3, {v(cp)}')
    e(f'v_lshl_add_u32 {v(V_AF)}, {v(T)}, 5, {v(T + 1)}')
    e(f'v_and_b32 {v(T + 2)}, 1, {v(cp)}')
    e(f'v_lshlrev_b32 {v(T + 2)}, 3, {v(T + 2)}')
    e(f'v_lshl_add_u32 {v(V_QKR)}, {v(T)}, 4, {v(T + 2)}')
    e(f'v_add_u32 {v(V_QKR)}, {L_MQ}, {v(V_QKR)}')
    e(f's_lshl_b32 {s(S_T0)}, {s(S_W)}, 5')
    e(f'v_add_u32 {v(T)}, {s(S_T0)}, {v(c)}')
    e(f'v_lshlrev_b32 {v(T + 2)}, 2, {v(sw)}')
    e(f'v_lshl_add_u32 {v(V_QKW)}, {v(T)}, 4, {v(T + 2)}')
    e(f'v_add_u32 {v(V_QKW)}, {L_MQ}, {v(V_QKW)}')
    e(f's_lshl_b32 {s(S_T0)}, {s(S_W)}, 2')
    e(f'v_add_u32 {v(T)}, {s(S_T0)}, {v(g)}')
    e(f'v_and_b32 {v(T + 3)}, 7, {v(LN)}')
    e(f'v_lshl_add_u32 {v(T)}, {v(T)}, 3, {v(T + 3)}')
    e(f'v_lshlrev_b32 {v(V_OW)}, 4, {v(T)}')
    e(f'v_add_u32 {v(V_OW)}, {L_O}, {v(V_OW)}')
    e(f'v_and_b32 {v(T)}, 1, {v(rp)}')
    e(f'v_lshrrev_b32 {v(T + 2)}, 1, {v(rp)}')
    e(f'v_lshl_add_u32 {v(T)}, {v(T)}, 1, {v(T + 2)}')
    e(f'v_and_b32 {v(T + 2)}, 1, {v(LN)}')
    e(f'v_lshl_add_u32 {v(T)}, {v(T)}, 1, {v(T + 2)}')
    e(f'v_lshl_add_u32 {v(T)}, {v(g)}, 3, {v(T)}')
    e(f'v_lshrrev_b32 {v(T + 2)}, 1, {v(cp)}')
    e(f'v_lshl_add_u32 {v(T)}, {v(T + 2)}, 5, {v(T)}')
    e(f'v_lshlrev_b32 {v(V_OR)}, 4, {v(T)}')
    e(f'v_add_u32 {v(V_OR)}, {L_O}, {v(V_OR)}')
    e(f'v_lshl_add_u32 {v(T)}, {v(g1)}, 2, {v(cp)}')
    e(f'v_lshlrev_b32 {v(T)}, 4, {v(T)}')
    e(f'v_lshl_add_u32 {v(T)}, {v(g2)}, 3, {v(T)}')
    e(f'v_lshl_add_u32 {v(V_PBST)}, {v(rp)}, 12, {v(T)}')
    e(f'v_and_b32 {v(T)}, 4, {v(LN)}')
    e(f'v_lshl_add_u32 {v(T)}, {v(sw)}, 3, {v(T)}')
    e(f'v_lshl_add_u32 {v(T)}, {v(cp)}, 5, {v(T)}')
    e(f'v_lshlrev_b32 {v(T + 1)}, 27, {v(c)}')
    e(f'v_and_b32 {v(T + 1)}, 0x40000000, {v(T + 1)}')
    e(f'v_or_b32 {v(V_MBST)}, {v(T)}, {v(T + 1)}')
    e(f'v_lshlrev_b32 {v(V_L8)}, 3, {v(LN)}')
    e(f'v_lshlrev_b32 {v(T)}, 4, {v(g)}')
    e(f'v_lshl_add_u32 {v(V_KXG)}, {v(c)}, {6 if kum else 8}, {v(T)}')
    e(f's_mul_i32 {s(S_LDSW)}, {s(S_W)}, {WL}')
    e(f's_add_u32 {s(S_LDSW)}, {s(S_LDSW)}, {L_WB}')
    e(f'v_add_u32 {v(V_LDSW)}, {s(S_LDSW)}, {v(V_LANE16)}')
    VG_QKV, VG_O, VT_QKV, VT_O = 28, 29, 30, 31
    e(f'v_lshrrev_b32 {v(T + 2)}, 1, {v(rp)}')
    e(f'v_and_b32 {v(T + 3)}, 1, {v(rp)}')
    e(f'v_lshlrev_b32 {v(T + 1)}, 3, {v(cp)}')
    e(f'v_lshl_add_u32 {v(T + 3)}, {v(g2)}, 2, {v(T + 3)}')
    e(f'v_lshl_add_u32 {v(T + 1)}, {v(T + 3)}, 8, {v(T + 1)}')
    e(f's_lshl_b32 {s(S_T0)}, {s(S_W)}, 6')
    e(f's_add_u32 {s(S_T0)}, {s(S_T0)}, {L_WB}')
    e(f'v_add_u32 {v(T + 1)}, {s(S_T0)}, {v(T + 1)}')
    assert WL == 32768
    e(f'v_lshl_add_u32 {v(T + 4)}, {v(g1)}, 1, {v(T + 2)}')
    e(f'v_lshl_add_u32 {v(VT_QKV)}, {v(T + 4)}, 15, {v(T + 1)}')
    e(f'v_lshl_add_u32 {v(T + 4)}, {v(T + 2)}, 1, {v(g1)}')
    e(f'v_lshl_add_u32 {v(VT_O)}, {v(T + 4)}, 15, {v(T + 1)}')
    e(f'v_lshlrev_b32 {v(T + 1)}, 4, {v(c)}')
    e(f'v_mul_u32_u24 {v(VG_O)}, 1280, {v(g)}')
    e(f'v_add_u32 {v(VG_O)}, {v(VG_O)}, {v(T + 1)}')
    e(f'v_lshl_add_u32 {v(VG_QKV)}, {v(g)}, 13, {v(T + 1)}')
    e(f's_lshl_b32 {s(S_T2)}, {s(S_H)}, 8')
    e(f's_lshl_b32 {s(S_T0)}, {s(S_W)}, 17')
    e(f's_add_u32 {s(S_T2)}, {s(S_T2)}, {s(S_T0)}')
    e(f's_mul_i32 {s(S_T3)}, {s(S_H)}, {128 * 1280}')
    e(f's_mul_i32 {s(S_T0)}, {s(S_W)}, {16 * 1280}')
    e(f's_add_u32 {s(S_T3)}, {s(S_T3)}, {s(S_T0)}')
    e(f's_lshl_b32 {s(S_PBST)}, {s(S_W)}, 14')
    e(f's_lshl_b32 {s(S_T0)}, {s(S_H)}, 7')
    e(f's_add_u32 {s(S_PBST)}, {s(S_PBST)}, {s(S_T0)}')
    e(f's_mov_b32 {s(S_STEP)}, 0')
    e('s_mov_b32 s3, 0')
    e(f's_mov_b32 {s(S_MSL)}, 0')
    e(f's_lshl_b32 {s(S_T1)}, {s(S_H)}, 12')
    e(f's_add_u32 {s(S_KMO)}, {s(S_T1)}, {WS_KM}')
    e(f's_lshl_b32 {s(S_T0)}, {s(S_W)}, 9')
    e(f's_add_u32 {s(S_VMO)}, {s(S_KMO)}, {s(S_T0)}')
    e(f's_add_u32 {s(S_NR)}, {s(S_WS)}, 0x5fffff')
    e(f's_and_b32 {s(S_NR)}, {s(S_NR)}, 0xffe00000')
    e(f's_sub_u32 {s(S_NR)}, {s(S_NR)}, {s(S_WS)}')
    e(f's_lshl_b32 {s(S_T0)}, {s(S_W)}, 10')
    e(f's_lshr_b32 {s(S_T1)}, {s(S_H)}, 1')
    e(f's_lshl_b32 {s(S_T1)}, {s(S_T1)}, 14')
    e(f's_add_u32 {s(S_VB0)}, {s(S_T0)}, {s(S_T1)}')
    e(f's_and_b32 {s(S_T1)}, {s(S_H)}, 1')
    e(f's_lshl_b32 {s(S_T1)}, {s(S_T1)}, 12')
    e(f's_add_u32 {s(S_VB0)}, {s(S_VB0)}, {s(S_T1)}')
    e(f's_add_u32 {s(S_VB0)}, {s(S_VB0)}, {NR_VB}')

    def load_weights(ulist, place_, vt_o, tmpbase, first, pre=False):
        def issue(i):
            un = ulist[i]
            pos = i % NRING
            for q in range(4):
                if un[0] == 'o':
                    _, t, p = un
                    e(f's_add_u32 {s(S_T0)}, {s(S_T3)}, {(64 * t + 4 * q) * 1280 + 256 * p}')
                    srdn, vg = S_WO, VG_O
                else:
                    m, t = un
                    e(f's_add_u32 {s(S_T0)}, {s(S_T2)}, {(64 * t + 4 * q) * 8192}')
                    srdn, vg = {'q': S_WQ, 'k': S_WK, 'v': S_WV}[m], VG_QKV
                e(f's_add_u32 m0, {s(S_LDSW)}, {pos * 4096 + q * 1024}')
                e(f'buffer_load_dwordx4 {v(vg)}, {s(srdn, 4)}, {s(S_T0)} offen {wfl} lds', tag=('dma', i))

        def wback(i):
            if i >= 0 and place_[(ulist[i], 0)][0] == 'lds':
                pos = i % NRING
                assert place_[(ulist[i], 1)][1] == 2 * pos + 1 and i + NRING >= len(ulist)
                for n in range(4):
                    e(f'ds_write_b128 {v(V_LDSW)}, {v(tmpbase + 16 * (i & 1) + 4 * n, 4)} offset:{pos * 4096 + 1024 * n}')

        def process(i):
            un = ulist[i]
            pos = i % NRING
            e.wait_vm(('dma', i))
            e('s_barrier')
            if i >= 1 and i - 1 + NRING < len(ulist):
                issue(i - 1 + NRING)
            wback(i - 1)
            vt = vt_o if un[0] == 'o' else VT_QKV
            for tau in range(2):
                kind, loc = place_[(un, tau)]
                dst = loc if kind == 'reg' else tmpbase + 16 * (i & 1) + 8 * tau
                for n in range(4):
                    off = (8 * (n >> 1) + 2 * (n & 1)) * 256 + 32 * tau
                    e(f'ds_read_b64_tr_b16 {u(dst + 2 * n, 2)}, {v(vt)} offset:{pos * 4096 + off}')
            e.wait_lg()
        n = len(ulist)
        if pre:
            first()
        for i in range(NRING):
            issue(i)
        if not pre:
            first()
        for i in range(n):
            process(i)
        e('s_barrier')
        wback(n - 1)

    def init_done(lab, inc='1'):
        e('s_waitcnt vmcnt(0)')
        e('s_barrier')
        e(f's_cmp_lg_u32 {s(S_W)}, 0')
        e(f's_cbranch_scc1 {lab}')
        e(f'v_mov_b32 v44, {D_INIT}')
        e(f'v_mov_b32 v45, {inc}')
        e('s_mov_b64 exec, 1')
        e(f'buffer_atomic_add v45, v44, {s(S_DBG, 4)}, 0 offen')
        e('s_mov_b64 exec, -1')
        e.label(lab)
        e.vm = []
        e.hist = []

    def init_wait(lab, t):
        e(f'v_mov_b32 {v(t + 2)}, 128')
        e.label(lab)
        wd()
        e('s_sleep 8')
        e(f'buffer_load_dwordx2 {v(t, 2)}, {v(t + 2)}, {s(S_DBG, 4)}, 0 offen sc1')
        e('s_waitcnt vmcnt(0)')
        e(f'v_readfirstlane_b32 {s(S_T0)}, {v(t)}')
        e(f'v_readfirstlane_b32 {s(S_T1)}, {v(t + 1)}')
        e(f's_and_b32 {s(S_T0)}, {s(S_T1)}, 0xffff')
        e(f's_cmp_lt_u32 {s(S_T0)}, 64')
        e(f's_cbranch_scc1 {lab}')
        e(f's_lshr_b32 {s(S_T1)}, {s(S_T1)}, 16')
        if 'diag' in dbg:
            e(f's_and_b32 {s(S_T0)}, s2, 7')
            e(f's_lshl_b32 {s(S_T0)}, {s(S_T0)}, 3')
            e(f's_add_u32 {s(S_T0)}, {s(S_T0)}, 8')
            e(f'v_mov_b32 {v(t)}, {s(S_XCC)}')
            e(f'v_mov_b32 {v(t + 1)}, {s(S_T1)}')
            e(f'v_mov_b32 {v(t + 3)}, {s(S_T0)}')
            e(f'buffer_store_dwordx2 {v(t, 2)}, {v(t + 3)}, {s(S_DBG, 4)}, 0 offen')
            e('s_waitcnt vmcnt(0)')
        e(f's_cmp_ge_u32 {s(S_T1)}, 16')
        e(f's_cselect_b32 {s(S_T0)}, 8192, 0')
        if 'far' in dbg:
            e(f's_xor_b32 {s(S_T0)}, {s(S_T0)}, 8192')
        e(f's_add_u32 {s(S_NR)}, {s(S_NR)}, {s(S_T0)}')
        e(f's_add_u32 {s(S_VB0)}, {s(S_VB0)}, {s(S_NR)}')
        e(f's_mov_b32 {s(S_VB)}, {s(S_VB0)}')
        if nmoda:
            e(f'v_mov_b32 {v(t + 1)}, 0')
            e.label(lab + 'm')
            e(f'buffer_load_dword {v(t)}, {v(t + 1)}, {s(S_DBG, 4)}, 0 offen sc1')
            e('s_waitcnt vmcnt(0)')
            e(f'v_readfirstlane_b32 {s(S_T0)}, {v(t)}')
            e(f's_cmp_lt_u32 {s(S_T0)}, {nmoda}')
            e(f's_cbranch_scc1 {lab}m')

    def signal_block(t0):
        e(f's_lshl_b32 {s(S_T2)}, {s(S_T2)}, 7')
        e(f's_add_u32 {s(S_T2)}, {s(S_T2)}, {WS_CTR + C_CH * 128}')
        e(f'v_mov_b32 {v(t0)}, 1')
        e('s_mov_b64 exec, 1')
        e(f'buffer_atomic_add {v(t0)}, {v(V_LANE16)}, {s(S_WS, 4)}, {s(S_T2)} offen')
        e('s_mov_b64 exec, -1')

    def seg_signal():
        e('s_mov_b64 exec, 1')
        e(f'buffer_atomic_sub {v(V_M1)}, {v(V_LANE16)}, {s(S_WS, 4)}, {s(S_SIG)} offen')
        e('s_mov_b64 exec, -1')
        e(f's_add_u32 {s(S_SIG)}, {s(S_SIG)}, 128')

    def step_signal(L):
        if segsig is not None:
            return
        e(f's_and_b32 {s(S_T2)}, {s(S_STEP)}, 3')
        e(f's_lshl_b32 {s(S_T2)}, {s(S_T2)}, 2')
        e(f's_add_u32 {s(S_T2)}, {s(S_T2)}, {s(S_W)}')
        e(f's_cmp_lg_u32 {s(S_T2)}, 3')
        e(f's_cbranch_scc1 {L}_nosig')
        e(f's_cmp_eq_u32 {s(S_STEP)}, 0')
        e(f's_cbranch_scc1 {L}_nosig')
        e.cond_begin()
        e(f's_lshr_b32 {s(S_T2)}, {s(S_STEP)}, 2')
        e(f's_sub_u32 {s(S_T2)}, {s(S_T2)}, 1')
        signal_block(V_WT)
        e.cond_end()
        e.label(f'{L}_nosig')

    def tl(i):
        if 'tl' in dbg:
            e(f's_memrealtime {s(84 + 2 * i, 2)}')

    def tl_out(role, t):
        if 'tl' in dbg:
            e('s_waitcnt lgkmcnt(0)')
            for i in range(4):
                e(f'v_mov_b32 {v(t + i)}, {s(84 + 2 * i)}')
            e(f's_lshl_b32 {s(S_T0)}, {s(S_H)}, 2')
            e(f's_add_u32 {s(S_T0)}, {s(S_T0)}, {s(S_W)}')
            e(f's_lshl_b32 {s(S_T0)}, {s(S_T0)}, 6')
            e(f's_add_u32 {s(S_T0)}, {s(S_T0)}, {s(S_STEP)}')
            e(f's_lshl_b32 {s(S_T0)}, {s(S_T0)}, 4')
            e(f's_add_u32 {s(S_T0)}, {s(S_T0)}, {0x0F100000 + role * 0x40000}')
            e('s_mov_b64 exec, 1')
            e(f'buffer_store_dwordx4 {v(t, 4)}, {v(V_LANE16)}, {s(S_WS, 4)}, {s(S_T0)} offen')
            e('s_mov_b64 exec, -1')
            e.nop(2)

    def wd():
        if 'wd' in dbg:
            e('s_add_u32 s3, s3, 1')
            e('s_cmp_gt_u32 s3, 0x40000')
            _fj[0] += 1
            e(f's_cbranch_scc0 Lwd{_fj[0]}')
            e('s_endpgm')
            e.label(f'Lwd{_fj[0]}')

    def run(mf, side, ratio=2):
        side = list(side)
        for f in mf:
            f()
            for _ in range(ratio):
                if side:
                    side.pop(0)()
        for f in side:
            f()

    def fold(acc, dst):
        return [lambda: e(f'v_pk_add_f32 {v(acc, 2)}, {v(acc, 2)}, {v(acc + 2, 2)}'),
                lambda: e(f'v_cvt_pk_bf16_f32 {v(dst)}, {v(acc)}, {v(acc + 1)}')]

    def stamp_init():
        for i in range(17, 28):
            e(f's_mov_b32 {s(i)}, 0')
        e('s_memtime s[100:101]')
        e('s_waitcnt lgkmcnt(0)')
        for i in range(10):
            e(f's_mov_b32 {s(S_STAMP + 2 * i)}, s100')

    def stamp_acc(n):
        e('s_waitcnt lgkmcnt(0)')
        e(f's_sub_u32 {s(S_T0)}, {s(S_STAMP)}, s100')
        e(f's_add_u32 s17, s17, {s(S_T0)}')
        for i in range(n - 1):
            e(f's_sub_u32 {s(S_T0)}, {s(S_STAMP + 2 * i + 2)}, {s(S_STAMP + 2 * i)}')
            e(f's_add_u32 {s(18 + i)}, {s(18 + i)}, {s(S_T0)}')
        e(f's_mov_b32 s100, {s(S_STAMP + 2 * (n - 1))}')

    def stamp_out():
        e('v_mov_b32 v40, 0')
        for i in range(11):
            e(f'v_writelane_b32 v40, {s(17 + i)}, {i}')
        e(f'v_lshrrev_b32 v41, 2, {v(V_LANE16)}')
        e(f's_lshl_b32 {s(S_T0)}, {s(S_H)}, 2')
        e(f's_add_u32 {s(S_T0)}, {s(S_T0)}, {s(S_W)}')
        e(f's_lshl_b32 {s(S_T0)}, {s(S_T0)}, 8')
        e(f's_add_u32 {s(S_T0)}, {s(S_T0)}, 0x0F000000')
        e(f'buffer_store_dword v40, v41, {s(S_WS, 4)}, {s(S_T0)} offen')

    e(f's_cmp_eq_u32 {s(S_MODE)}, 0')
    e(f's_cbranch_scc1 {name}_chain')
    far_jump(e, f'{name}_helper', 44)
    e.label(f'{name}_chain')

    pool = Pool(NPERS, pool_end)
    cc = f32bits((128 ** -0.5) * 1.4426950408889634)
    e(f's_mov_b32 {s(S_C1)}, {cc:#x}')
    e(f's_mov_b32 {s(S_C1 + 1)}, {cc:#x}')
    e(f's_mov_b32 {s(S_MASKLO)}, -1')
    e(f's_mov_b32 {s(S_MASKLO + 1)}, 0')
    e(f's_lshl_b32 {s(S_T0)}, {s(S_H)}, 1')
    e(f's_add_u32 {s(S_T0)}, {s(S_T0)}, {s(S_W)}')
    e(f's_add_u32 {s(S_UNIT)}, {s(S_T0)}, 16')
    e(f's_cmp_lt_u32 {s(S_H)}, 16')
    e(f's_cselect_b32 {s(S_T0)}, {s(S_H)}, 255')
    e(f's_cmp_eq_u32 {s(S_W)}, 2')
    e(f's_cselect_b32 {s(S_UNIT)}, {s(S_T0)}, {s(S_UNIT)}')
    e(f's_cmp_eq_u32 {s(S_W)}, 3')
    e(f's_cselect_b32 {s(S_UNIT)}, 255, {s(S_UNIT)}')
    e(f's_mul_i32 {s(S_GOF)}, {s(S_W)}, 2560')

    def chain_init():
        e('s_load_dwordx2 s[76:77], s[0:1], 8')
        for j in range(4):
            e(f'v_mov_b32 {v(40 + j)}, -1')
        e(f's_lshl_b32 {s(S_T0)}, {s(S_H)}, 2')
        e(f's_add_u32 {s(S_T0)}, {s(S_T0)}, {s(S_W)}')
        e(f's_mul_i32 {s(S_T1)}, {s(S_T0)}, 2560')
        for sl_ in range(2):
            e(f's_add_u32 s78, {s(S_T1)}, {WS_PB + sl_ * PB_STRIDE}')
            for i in range(3):
                e(f'buffer_store_dwordx4 v[40:43], {v(V_LANE16)}, {s(S_WS, 4)}, s78 offen offset:{1024 * i} sc1')
        e(f's_lshl_b32 s78, {s(S_T0)}, 10')
        e(f's_add_u32 s79, s78, {WS_MB + MB_STRIDE}')
        e(f'buffer_store_dwordx4 v[40:43], {v(V_LANE16)}, {s(S_WS, 4)}, s79 offen sc1')
        e(f's_add_u32 s79, s78, {s(S_NR)}')
        e('s_add_u32 s79, s79, 32768')
        e(f's_cmp_ge_u32 {s(S_T0)}, 96')
        e('s_cselect_b32 s79, 0x40000000, s79')
        e(f'buffer_store_dwordx4 v[40:43], {v(V_LANE16)}, {s(S_WS, 4)}, s79 offen sc1')
        e('s_waitcnt lgkmcnt(0)')
        e('s_mov_b32 s80, s76')
        e('s_and_b32 s81, s77, 0xffff')
        e('s_mov_b32 s82, 10240')
        e('s_mov_b32 s83, 0x20000')
        e(f's_cmp_ge_u32 {s(S_T0)}, 40')
        e(f's_cbranch_scc1 {name}_nom0')
        e(f's_lshl_b32 s78, {s(S_T0)}, 6')
        e(f'v_lshrrev_b32 v44, 4, {v(V_LANE16)}')
        e('v_add_u32 v44, s78, v44')
        e('v_and_b32 v45, 1, v44')
        e('v_bfe_u32 v46, v44, 1, 2')
        e('v_bfe_u32 v47, v44, 3, 4')
        e('v_lshrrev_b32 v48, 7, v44')
        e('v_lshl_add_u32 v47, v45, 4, v47')
        e('v_lshl_add_u32 v47, v48, 5, v47')
        e('v_mul_u32_u24 v46, 2560, v46')
        e('v_lshl_add_u32 v46, v47, 1, v46')
        e('buffer_load_ushort v45, v46, s[80:83], 0 offen')
        e('buffer_load_ushort v47, v46, s[80:83], 0 offen offset:1280')
        e('v_lshlrev_b32 v44, 2, v44')
        e('s_waitcnt vmcnt(0)')
        e('v_lshl_or_b32 v45, v47, 16, v45')
        e('v_min_u32 v45, 0xfffffffe, v45')
        e(f's_mov_b32 s78, {WS_MB}')
        e(f's_cmp_ge_u32 {s(S_T0)}, 32')
        e('s_cselect_b32 s79, 8192, 0')
        e(f's_add_u32 s79, s79, {s(S_NR)}')
        e('s_add_u32 s80, s79, 8192')
        e(f'buffer_store_dword v45, v44, {s(S_WS, 4)}, s78 offen sc1')
        e(f'buffer_store_dword v45, v44, {s(S_WS, 4)}, s79 offen sc1')
        e(f'buffer_store_dword v45, v44, {s(S_WS, 4)}, s80 offen sc1')
        e.label(f'{name}_nom0')
        e(f's_lshl_b32 {s(S_T0)}, 1, {s(S_XCC)}')
        e(f'v_mov_b32 v44, {D_SLOW}')
        e(f'v_mov_b32 v45, {s(S_T0)}')
        e(f's_cmp_eq_u32 {s(S_W)}, 0')
        e('s_cselect_b64 exec, 1, 0')
        e(f'buffer_atomic_or v45, v44, {s(S_DBG, 4)}, 0 offen')
        e('s_mov_b64 exec, -1')
        init_done(f'{name}_noib')

    load_weights(units, place, VT_O, 48, chain_init)
    e.wait_lg()
    e('s_barrier')

    TT = NPERS
    e(f'v_and_b32 {v(TT)}, 16, {v(V_LANE16)}')
    e(f's_mov_b32 {s(S_T0)}, 0x3f80')
    e(f'v_lshlrev_b32 {v(TT)}, {v(TT)}, {s(S_T0)}')
    e(f'v_bfe_u32 {v(TT + 1)}, {v(V_LANE16)}, 5, 2')
    for rr in range(4):
        e(f'v_cmp_eq_u32 vcc, {rr}, {v(TT + 1)}')
        e(f'v_cndmask_b32 {v(V_SEL + rr)}, 0, {v(TT)}, vcc')
        e(f'v_mov_b32 {v(V_ONES + rr)}, 0x3f803f80')
    e(f'v_mov_b32 {v(V_PM + 1)}, 0')
    e(f'v_mov_b32 {v(V_PM + 2)}, 0')
    e(f's_add_u32 {s(S_MBP)}, {s(S_GOF)}, {WS_MB}')
    e(f's_add_u32 {s(S_PBST)}, {s(S_PBST)}, {WS_PB}')
    for p in range(1, 5):
        e(f's_add_u32 {s(S_PBST + p)}, {s(S_PBST)}, {p * 65536}')
    e(f's_lshl_b32 {s(S_T0)}, {s(S_UNIT)}, 12')
    e(f's_add_u32 {s(S_PBLD)}, {s(S_T0)}, {WS_PB}')
    e(f's_lshl_b32 {s(S_MBL)}, {s(S_UNIT)}, 7')
    e(f's_add_u32 {s(S_MBL)}, {s(S_MBL)}, {WS_MB}')
    e(f's_mov_b32 {s(S_MBC)}, {s(S_MBL)}')
    e(f's_add_u32 {s(S_MBN)}, {s(S_MBL)}, {MB_STRIDE}')
    e(f's_lshl_b32 {s(S_SH13)}, {s(S_H)}, 13')
    e(f's_lshl_b32 {s(S_T0)}, {s(S_W)}, 11')
    e(f's_add_u32 {s(S_VXO)}, {s(S_T0)}, {s(S_SH13)}')
    e(f's_add_u32 {s(S_WRM)}, {s(S_VXO)}, {WS_KX + 32 * 8192}')
    e(f's_add_u32 {s(S_VXO)}, {s(S_VXO)}, {WS_VXT}')
    e(f's_add_u32 {s(S_KXM)}, {s(S_T0)}, {L_KX}')
    e(f's_lshr_b32 {s(S_T0)}, {s(S_W)}, 1')
    e(f's_lshl_b32 {s(S_T0)}, {s(S_T0)}, {10 if kum else 12}')
    e(f's_and_b32 {s(S_T1)}, {s(S_W)}, 1')
    e(f's_lshl_b32 {s(S_T1)}, {s(S_T1)}, {12 if kum else 7}')
    e(f's_add_u32 {s(S_KXW)}, {s(S_T0)}, {s(S_T1)}')
    e(f's_add_u32 {s(S_KXW)}, {s(S_KXW)}, {s(S_SH13)}')
    e(f's_add_u32 {s(S_KXW)}, {s(S_KXW)}, {WS_KX}')

    def kx_items():
        return [
            lambda: e(f's_mov_b32 m0, {s(S_KXM)}'),
            lambda: e(f's_add_u32 {s(S_T0)}, {s(S_KXW)}, {2048 if kum else 64}'),
            lambda: e(f'buffer_load_dwordx4 {v(V_KXG)}, {s(S_WS, 4)}, {s(S_KXW)} offen {ldfl} lds', tag='kx'),
            lambda: e(f's_add_u32 m0, {s(S_KXM)}, 1024'),
            lambda: e(f's_add_u32 {s(S_KXW)}, {s(S_KXW)}, {32 * 8192}'),
            lambda: e(f'buffer_load_dwordx4 {v(V_KXG)}, {s(S_WS, 4)}, {s(S_T0)} offen {ldfl} lds', tag='kx'),
            lambda: e(f's_add_u32 m0, {s(S_KXM)}, 8192'),
            lambda: e(f's_nop 0'),
            lambda: e(f'buffer_load_dwordx4 {v(V_LANE16)}, {s(S_WS, 4)}, {s(S_VXO)} offen {ldfl} lds', tag='kx'),
            lambda: e(f'buffer_load_dwordx4 {v(V_LANE16)}, {s(S_WS, 4)}, {s(S_VXO)} offen offset:1024 {ldfl} lds', tag='kx'),
            lambda: e(f's_add_u32 {s(S_VXO)}, {s(S_VXO)}, {32 * 8192}'),
        ]

    def kv_wait(lab, t1):
        e(f's_cmp_ge_u32 {s(S_KVOK)}, {s(S_T2)}')
        e(f's_cbranch_scc1 {lab}_ok')
        e.cond_begin()
        if kvseg:
            e.label(f'{lab}_spin')
            e(f's_lshl_b32 {s(S_T3)}, {s(S_KVOK)}, 7')
            e(f's_add_u32 {s(S_T3)}, {s(S_T3)}, {kvseg}')
            e(f'buffer_load_dword {v(t1)}, {v(V_WA)}, {s(S_WS, 4)}, {s(S_T3)} offen sc1')
            e('s_waitcnt vmcnt(0)')
            e(f'v_cmp_le_u32 vcc, {kvt}, {v(t1)}')
            e(f's_and_b32 {s(S_T3)}, vcc_lo, 0xffff')
            e(f's_ff0_i32_b32 {s(S_T3)}, {s(S_T3)}')
            e(f's_add_u32 {s(S_KVOK)}, {s(S_KVOK)}, {s(S_T3)}')
        else:
            e(f's_mov_b32 {s(S_T3)}, {WS_CTR + C_KV * 128}')
            e.label(f'{lab}_spin')
            e(f'buffer_load_dword {v(t1)}, {v(V_WA)}, {s(S_WS, 4)}, {s(S_T3)} offen sc1')
            e('s_waitcnt vmcnt(0)')
            e(f'v_cmp_le_u32 vcc, {kvt}, {v(t1)}')
            e(f's_and_b32 {s(S_KVOK)}, vcc_lo, 0xffff')
            e(f's_ff0_i32_b32 {s(S_KVOK)}, {s(S_KVOK)}')
        e(f's_cmp_ge_u32 {s(S_KVOK)}, {s(S_T2)}')
        e(f's_cbranch_scc0 {lab}_spin')
        e.cond_end()
        e.label(f'{lab}_ok')

    def claim(b, n):
        for i in range(n):
            assert (b + i) in pool.free_, ('claim', b, n)
            pool.free_.remove(b + i)

    ACC = pool.must(24)
    VACC = ACC + 16
    V_EX = V_L8
    if 'rt' in dbg:
        e('s_memrealtime s[94:95]')
        e('s_waitcnt lgkmcnt(0)')
    init_wait(f'{name}_ibw', ACC)
    e(f's_lshl_b32 {s(S_MBL2)}, {s(S_UNIT)}, 7')
    e(f's_cmp_ge_u32 {s(S_UNIT)}, 64')
    e(f's_cselect_b32 {s(S_T0)}, 8192, 0')
    e(f's_add_u32 {s(S_MBL2)}, {s(S_MBL2)}, {s(S_T0)}')
    e(f's_add_u32 {s(S_MBL2)}, {s(S_MBL2)}, {s(S_NR)}')
    e(f's_cmp_ge_u32 {s(S_UNIT)}, 80')
    e(f's_cselect_b32 {s(S_MBL2)}, 0x40000000, {s(S_MBL2)}')
    e(f's_cmp_lt_u32 {s(S_UNIT)}, {8 * NH1 if defer else 80}')
    e(f's_cselect_b32 {s(S_MBE0)}, {s(S_MBL2)}, 0x40000000')
    e(f's_cselect_b32 {s(S_MBD0)}, 0x40000000, {s(S_MBL2)}')
    e(f's_add_u32 {s(S_MBN2)}, {s(S_MBE0)}, 32768')
    e(f's_mov_b32 {s(S_MBD2)}, 0x40000000')
    e(f's_add_u32 {s(S_MBR2)}, {s(S_MBL2)}, 65536')
    e(f'buffer_load_dword {v(ACC)}, {v(ACC + 2)}, {s(S_DBG, 4)}, 0 offen offset:8 sc1')
    e('s_waitcnt vmcnt(0)')
    e(f'v_readfirstlane_b32 {s(S_MODE)}, {v(ACC)}')
    e(f's_sub_u32 {s(S_T0)}, {s(S_MODE)}, 1')
    e(f's_and_b32 {s(S_MODE)}, {s(S_MODE)}, {s(S_T0)}')
    if 'slow' in dbg:
        e(f's_mov_b32 {s(S_MODE)}, 1')
    if mega:
        e(f's_mov_b32 {s(S_KVOK)}, 0')
        e(f's_mov_b32 {s(S_T2)}, 1')
        kv_wait(f'{name}_kv0', ACC)
    pre_slots = [sl for sl in order if place[sl][0] == 'lds'][:npre]
    PRE = [pool.alloc(8, 8, top=True) for _ in pre_slots]

    def pre_load():
        for sl, b in zip(pre_slots, PRE):
            loc = place[sl][1] * 2048
            e(f'ds_read_b128 {v(b, 4)}, {v(V_LDSW)} offset:{loc}')
            e(f'ds_read_b128 {v(b + 4, 4)}, {v(V_LDSW)} offset:{loc + 1024}')
    pre_load()
    for it in kx_items():
        it()
    e('s_waitcnt vmcnt(0) lgkmcnt(0)')
    e.vm = []
    e.lg = []
    if 'rt' in dbg:
        e('s_memrealtime s[98:99]')
        e('s_waitcnt lgkmcnt(0)')
    if 'tot' in dbg:
        e('s_memtime s[96:97]')
        e('s_waitcnt lgkmcnt(0)')
    if stamps:
        stamp_init()
    if slow:
        e(f's_cmp_lg_u32 {s(S_MODE)}, 0')
        e(f's_cbranch_scc1 {name}_slow')

    def body(sc, L):
        stamp_i = [0]
        call_i = [0]

        def stamp():
            call_i[0] += 1
            if stamps and (call_i[0] - 1) in stsel:
                e(f's_memtime {s(S_STAMP + 2 * stamp_i[0], 2)}')
                stamp_i[0] += 1

        e.label(L)
        e.hist = []
        e.vm = []
        e.lg = []
        stamp()
        G0, GM = ACC, ACC + 12
        e(f'v_add_u32 {v(GM + 1)}, {s(S_GOF)}, {v(V_LANE16)}')
        e('s_barrier')
        if adel:
            e(f's_sleep {adel}')
        e.label(f'{L}_pollA')
        e.hist = []
        wd()
        if stamps:
            e('s_add_u32 s27, s27, 0x10000')
        for i in range(3):
            e(f'buffer_load_dwordx4 {v(G0 + 4 * i, 4)}, {v(V_LANE16)}, {s(S_WS, 4)}, {s(S_MBP)} offen offset:{(0, 1024, 1536)[i]} sc1')
        for i in range(3):
            e(f's_waitcnt vmcnt({2 - i})')
            e(f'ds_write_b128 {v(GM + 1)}, {v(G0 + 4 * i, 4)} offset:{(0, 1024, 1536)[i]}')
        e(f'v_max3_u32 {v(GM)}, {v(G0)}, {v(G0 + 4)}, {v(G0 + 8)}')
        e(f'v_cmp_eq_u32 vcc, -1, {v(GM)}')
        e('s_mov_b64 exec, vcc')
        e(f's_cbranch_execnz {L}_pollA')
        e('s_mov_b64 exec, -1')
        e('s_waitcnt lgkmcnt(0)')
        e.label(f'{L}_gd')
        e('s_barrier')
        e.vm = []
        e.lg = []
        e.hist = []
        stamp()
        tl(0)
        pool.free(VACC, 8)

        loaded = {sl: b for sl, b in zip(pre_slots, PRE)}
        lds_pending = [sl for sl in order if place[sl][0] == 'lds' and sl not in loaded]
        st = dict(reserve=8, aflim=10)

        def pump_lds(cur_idx, force=False):
            while lds_pending and order.index(lds_pending[0]) <= cur_idx + la_lds:
                need = force and order.index(lds_pending[0]) <= cur_idx
                b = pool.alloc(8, 8, top=True, reserve=0 if need else st['reserve'])
                if b is None:
                    assert not need, 'no buffer for lds slot'
                    return
                lead = order.index(lds_pending[0]) - cur_idx
                if lead < 4 and cur_idx != NA:
                    print('; WARNING short lds lead', order.index(lds_pending[0]), lead)
                sl = lds_pending.pop(0)
                loc = place[sl][1] * 2048
                e(f'ds_read_b128 {v(b, 4)}, {v(V_LDSW)} offset:{loc}', tag=('lw', sl))
                e(f'ds_read_b128 {v(b + 4, 4)}, {v(V_LDSW)} offset:{loc + 1024}', tag=('lw', sl))
                loaded[sl] = b

        def smf(acc, af, sl):
            idx = order.index(sl)
            kind, loc = place[sl]
            if kind == 'reg':
                b = loc
            else:
                if sl not in loaded:
                    pump_lds(idx, True)
                b = loaded[sl]
                e.wait_lg(('lw', sl))
            e(f'v_smfmac_f32_16x16x64_bf16 {v(acc, 4)}, {v(af, 4)}, {u(b, 8)}, {v(V_IDX)}')
            if kind != 'reg':
                pool.free(b, 8)
            pump_lds(idx + 1)

        AF = {}
        afpos = [0]
        first_use = [min(i for i, o in enumerate(order[:40]) if o[0][1] == t) for t in range(10)]

        def af_pump(i, lead=None):
            while afpos[0] < st['aflim'] and first_use[afpos[0]] - i <= (lead or afl):
                k = afpos[0]
                b = pool.alloc(4)
                if b is None:
                    assert first_use[k] - i > 1, 'AF starved'
                    return
                afpos[0] += 1
                AF[k] = b
                e(f'ds_read_b64_tr_b16 {v(b, 2)}, {v(V_AF)} offset:{1024 * k}', tag=('af', k))
                e(f'ds_read_b64_tr_b16 {v(b + 2, 2)}, {v(V_AF)} offset:{1024 * k + 512}', tag=('af', k))

        af_pump(0)
        for j in range(0, 16, 2):
            e(f'v_mov_b64 {v(ACC + j, 2)}, 0')
        accof = {'q': 0, 'k': 8, 'v': 16}
        waited = set()

        def mk(i, sl):
            (m, t), tau = sl
            last = not any(o[0][1] == t for o in order[i + 1:40])

            def f():
                if t not in waited:
                    e.wait_lg(('af', t))
                    waited.add(t)
                smf(ACC + accof[m] + 4 * tau, AF[t], sl)
                if last:
                    pool.free(AF[t], 4)
                af_pump(i + 1)
            return f
        mf = [mk(i, sl) for i, sl in enumerate(order[:40])]
        run(mf[:wat], [], 0)

        def warm_items(pos):
            it = []
            for p_, what in warm:
                if p_ != pos:
                    continue
                if what:
                    it.append(lambda: e(f's_add_u32 {s(S_T0)}, {s(S_WRM)}, {WS_VXT - WS_KX}'))
                it.append(lambda what=what: e(f'buffer_load_dword {v(V_WT)}, {v(V_WA)}, {s(S_WS, 4)}, {s(S_T0 if what else S_WRM)} offen', tag='warm'))
            return it
        cold = [lambda: e(f'buffer_store_dword {v(V_EX)}, {v(V_MBST)}, {s(S_WS, 4)}, {s(S_MBD2)} offen sc1'),
                lambda: e(f'buffer_store_dword {v(V_M1)}, {v(V_MBST)}, {s(S_WS, 4)}, {s(S_MBR2)} offen sc1')]
        if not (defer and nvl):
            cold = cold[1:]
        if mega:
            if kvseg:
                e(f's_add_u32 {s(S_T2)}, {s(S_STEP)}, 2')
            else:
                e(f's_add_u32 {s(S_T2)}, {s(S_STEP)}, 5')
                e(f's_lshr_b32 {s(S_T2)}, {s(S_T2)}, 2')
                e(f's_min_u32 {s(S_T2)}, {s(S_T2)}, 16')
            kv_wait(f'{L}_kv', V_WT)
        run(mf[wat:wat2], warm_items('a') + cold, 2)
        run(mf[wat2:NQE - 4], warm_items('a2'), 2)
        st['reserve'] = 99
        SM = pool.alloc(8, 8, top=True)
        ZQ = SM
        ZVF = SM + 4
        kxb, sbuf = {}, {}

        def kx_read(f_, rsv=0):
            def g_():
                b = pool.alloc(4, reserve=rsv)
                if b is None:
                    return
                kxb[f_] = b
                e(f'ds_read_b128 {v(b, 4)}, {v(V_LANE16)} offset:{L_KX + f_ * 1024}', tag=('kx', f_))
            return g_

        def qm_read(kind, uu):
            def g_():
                b = sbuf[(kind, uu)] = pool.must(4)
                base = 0 if kind == 'q' else 2048
                for m in range(2):
                    e(f'ds_read_b64_tr_b16 {v(b + 2 * m, 2)}, {v(V_QKR)} offset:{base + uu * 512 + m * 256}', tag=('si', kind, uu))
            return g_

        def v_load():
            tl(1)
            e(f'buffer_load_dwordx4 {v(ZVF, 4)}, {v(V_LANE16)}, {s(S_WS, 4)}, {s(S_VB)} offen sc1', tag='vm')
        run(mf[NQE - 4:NQE], [], 1)
        late = mf[NQE:40]
        qf = fold(ACC, ZQ) + fold(ACC + 4, ZQ + 1) + [
            lambda: e(f'ds_write2st64_b32 {v(V_QKW)}, {v(ZQ)}, {v(ZQ + 1)} offset0:0 offset1:1', tag='qw')]
        kf = fold(ACC + 8, ZQ + 2) + fold(ACC + 12, ZQ + 3) + [
            lambda: e(f'ds_write2st64_b32 {v(V_QKW)}, {v(ZQ + 2)}, {v(ZQ + 3)} offset0:8 offset1:9', tag='kw')]
        run(late[:1], [kx_read(0, 4), kx_read(4, 4)], 2)
        run(late[1:3], qf, 3)
        run(late[3:6], [kx_read(1, 16), kx_read(5, 16), kx_read(2, 16)], 1)
        stamp()
        e.wait_lg('qw')
        e('s_barrier')
        pool.free(ACC, 8)
        SX = ACC
        claim(SX, 8)
        todo = []
        for uu in range(4):
            todo += [('q', uu)] + [('x', f_) for f_ in (uu, uu + 4) if f_ not in kxb]

        def try4():
            b = pool.alloc(4)
            if b is None:
                return False
            pool.free(b, 4)
            return True

        def s_fill2(maxn=99):
            n = 0
            while todo and n < maxn and try4():
                kind, x = todo.pop(0)
                if kind == 'x':
                    kx_read(x)()
                else:
                    qm_read(kind, x)()
                n += 1
        s_fill2(1)
        run(late[6:], [lambda: s_fill2(2)] * 4, 1)
        stamp()

        def sx(uu, ti):
            def f():
                f_ = uu + 4 * ti
                assert ('q', uu) in sbuf and f_ in kxb, 'S starved'
                e.wait_lg(('si', 'q', uu))
                e.wait_lg(('kx', f_))
                cin = '0' if uu == 0 else v(SX + 4 * ti, 4)
                e(f'v_mfma_f32_16x16x32_bf16 {v(SX + 4 * ti, 4)}, {v(kxb[f_], 4)}, {v(sbuf[("q", uu)], 4)}, {cin}')
                pool.free(kxb[f_], 4)
                s_fill2()
            return f
        sxl = [sx(uu, ti) for uu in range(4) for ti in range(2)]
        run(sxl[:2], [], 0)
        run([], kf, 0)
        run(sxl[2:4], [], 0)
        if v_at == 0:
            v_load()
        e.wait_lg('kw')
        e('s_barrier')
        pool.free(ACC + 8, 8)
        C0 = ACC + 8
        claim(C0, 4)
        todo_m = [('m', uu) for uu in range(4)]
        todo[:] = todo_m[:1] + todo + todo_m[1:]
        s_fill2()
        run(sxl[4:], [], 0)
        if v_at == 1:
            v_load()
        M = SM
        for uu in range(4):
            s_fill2()
            e.wait_lg(('si', 'm', uu))
            cin = '0' if uu == 0 else v(C0, 4)
            e(f'v_mfma_f32_16x16x32_bf16 {v(C0, 4)}, {v(sbuf[("m", uu)], 4)}, {v(sbuf[("q", uu)], 4)}, {cin}')
            pool.free(sbuf[('m', uu)], 4)
            pool.free(sbuf[('q', uu)], 4)
        assert not todo
        VA_ = pool.must(8)
        OACC = [pool.must(8) for _ in range(noa)]
        AFV = {}
        for t in range(NH1, 10):
            b = AFV[t] = OACC[(t - NH1) >> 1] + 4 * ((t - NH1) & 1)
            e(f'ds_read_b64_tr_b16 {v(b, 2)}, {v(V_AF)} offset:{1024 * t}', tag=('afv', t))
            e(f'ds_read_b64_tr_b16 {v(b + 2, 2)}, {v(V_AF)} offset:{1024 * t + 512}', tag=('afv', t))
        for j in range(0, 8 if nvl else 0, 2):
            e(f'v_mov_b64 {v(VA_ + j, 2)}, 0')

        def mkv(t, tau):
            def f():
                if tau == 0:
                    e.wait_lg(('afv', t))
                smf(VA_ + 4 * tau, AFV[t], (('v', t), tau))
            return f
        vmf = [mkv(t, tau) for t in range(NH1, 10) for tau in range(2)]
        P = pool.must(4)
        OA = pool.must(12)
        VX = pool.must(8)
        e(f'v_add_u32 {v(VX)}, {s(S_KXM)}, {v(V_LANE16)}')
        if v_at == 2:
            v_load()
        stamp()
        sm = []

        def V(x):
            sm.append(lambda: e(x))
        V(f'v_max3_f32 {v(M)}, {v(SX)}, {v(SX + 1)}, {v(SX + 2)}')
        V(f'v_max3_f32 {v(M + 1)}, {v(SX + 3)}, {v(SX + 4)}, {v(SX + 5)}')
        V(f'v_max3_f32 {v(M)}, {v(M)}, {v(SX + 6)}, {v(SX + 7)}')
        V(f'v_cndmask_b32 {v(C0)}, {v(C0 + 2)}, {v(C0)}, {s(S_MASKLO, 2)}')
        V(f'v_cndmask_b32 {v(C0 + 1)}, {v(C0 + 3)}, {v(C0 + 1)}, {s(S_MASKLO, 2)}')
        V(f'v_max3_f32 {v(M + 1)}, {v(M + 1)}, {v(C0)}, {v(C0 + 1)}')
        V(f'v_max_f32 {v(M)}, {v(M)}, {v(M + 1)}')
        V(f'v_max_f32 {v(M + 1)}, {v(M)}, {v(M + 1)}')
        V(f'v_permlane32_swap_b32 {v(M)}, {v(M + 1)}')
        V(f'v_max_f32 {v(M + 2)}, {v(M)}, {v(M + 1)}')
        V(f'v_max_f32 {v(M + 1)}, {v(M)}, {v(M + 1)}')
        V(f'v_permlane16_swap_b32 {v(M + 2)}, {v(M + 1)}')
        V(f'v_max_f32 {v(M)}, {v(M + 2)}, {v(M + 1)}')
        V(f'v_mul_f32 {v(M)}, {s(S_C1)}, {v(M)}')
        bub = {8: 1, 9: 1, 11: 1, 12: 1}
        for i, f in enumerate(sm):
            for _ in range(bub.get(i, 0)):
                if vmf:
                    vmf.pop(0)()
            f()
        if v_at == 3:
            v_load()
        e(f'ds_read_b128 {v(VX + 4, 4)}, {v(VX)} offset:{8192 + 1024}', tag='vx')
        e(f'ds_read_b128 {v(VX, 4)}, {v(VX)} offset:8192', tag='vx')
        for j in range(0, 10, 2):
            e(f'v_pk_fma_f32 {v(SX + j, 2)}, {v(SX + j, 2)}, {s(S_C1, 2)}, {v(M, 2)} op_sel_hi:[1,1,0] neg_lo:[0,0,1] neg_hi:[0,0,1]')
            if vmf:
                vmf.pop(0)()
        while vmf:
            vmf.pop(0)()
        zl = [(lambda b=b, j=j: e(f'v_mov_b64 {v(b + j, 2)}, 0')) for b in OACC for j in range(0, 8, 2)]

        def z(n=1):
            for _ in range(n):
                if zl:
                    zl.pop(0)()
        for j in range(8):
            e(f'v_exp_f32 {v(SX + j)}, {v(SX + j)}')
        for j in range(4):
            e(f'v_cvt_pk_bf16_f32 {v(P + j)}, {v(SX + 2 * j)}, {v(SX + 2 * j + 1)}')
        e.wait_lg('vx')
        e(f'v_exp_f32 {v(C0)}, {v(C0)}')
        e(f'v_mfma_f32_16x16x32_bf16 {v(OA + 8, 4)}, {v(V_ONES, 4)}, {v(P, 4)}, 0')
        e(f'v_exp_f32 {v(C0 + 1)}, {v(C0 + 1)}')
        e(f'v_mfma_f32_16x16x32_bf16 {v(OA, 4)}, {v(VX, 4)}, {v(P, 4)}, 0')
        e(f'v_cvt_pk_bf16_f32 {v(V_PM)}, {v(C0)}, {v(C0 + 1)}')
        e(f'v_cvt_pk_bf16_f32 {v(V_PM + 3)}, {v(C0)}, {v(C0 + 1)}')
        e(f'v_mfma_f32_16x16x32_bf16 {v(OA + 4, 4)}, {v(VX + 4, 4)}, {v(P, 4)}, 0')
        if nvl:
            e(f'v_pk_add_f32 {v(VA_, 2)}, {v(VA_, 2)}, {v(VA_ + 2, 2)}')
            e(f'v_pk_add_f32 {v(VA_ + 4, 2)}, {v(VA_ + 4, 2)}, {v(VA_ + 6, 2)}')
        e(f'v_mfma_f32_16x16x16_bf16 {v(OA + 8, 4)}, {v(V_ONES, 2)}, {v(V_PM, 2)}, {v(OA + 8, 4)}')
        z(4)
        if 'nov' not in dbg:
            e.wait_vm('vm')
            e(f'v_cmp_eq_u32 vcc, -1, {v(ZVF)}')
            e(f's_cbranch_vccnz {L}_fixv')
            e.label(f'{L}_pv2')
        ZV = VA_ + 2
        if nvl:
            e(f'v_pk_add_f32 {v(ZVF, 2)}, {v(ZVF, 2)}, {v(VA_, 2)}')
            e(f'v_pk_add_f32 {v(ZVF + 2, 2)}, {v(ZVF + 2, 2)}, {v(VA_ + 4, 2)}')
        e(f'v_cvt_pk_bf16_f32 {v(ZV)}, {v(ZVF)}, {v(ZVF + 1)}')
        e(f'v_cvt_pk_bf16_f32 {v(ZV + 1)}, {v(ZVF + 2)}, {v(ZVF + 3)}')
        e(f'v_rcp_f32 {v(M)}, {v(OA + 8)}')
        z(1)
        e(f'v_mfma_f32_16x16x16_bf16 {v(OA, 4)}, {v(ZV, 2)}, {v(V_PM, 2)}, {v(OA, 4)}')
        e(f'v_mfma_f32_16x16x16_bf16 {v(OA + 4, 4)}, {v(ZV, 2)}, {v(V_PM + 2, 2)}, {v(OA + 4, 4)}')
        pool.free(SX, 8)
        pool.free(VX, 8)
        pool.free(C0, 4)
        pool.free(VA_, 8)
        OF = pool.must(8)
        z(99)
        st['reserve'] = 0
        pump_lds(NA)
        for j in range(0, 8, 2):
            e(f'v_pk_mul_f32 {v(OA + j, 2)}, {v(OA + j, 2)}, {v(M, 2)} op_sel_hi:[1,0]')
        for j in range(4):
            e(f'v_cvt_pk_bf16_f32 {v(P + j)}, {v(OA + 2 * j)}, {v(OA + 2 * j + 1)}')
        e(f'ds_write_b128 {v(V_OW)}, {v(P, 4)}', tag='ow')
        pool.free(OA, 12)
        for x in [f's_add_u32 {s(S_WRM)}, {s(S_WRM)}, {32 * 8192}',
                  f's_add_u32 {s(S_MSL)}, {s(S_MSL)}, {MB_STRIDE}', f's_and_b32 {s(S_MSL)}, {s(S_MSL)}, {3 * MB_STRIDE}',
                  f's_add_u32 {s(S_T0)}, {s(S_MSL)}, {WS_MB}',
                  f's_add_u32 {s(S_MBP)}, {s(S_T0)}, {s(S_GOF)}',
                  f's_lshl_b32 {s(S_T0)}, {s(S_MSL)}, 4', f's_add_u32 {s(S_VB)}, {s(S_VB0)}, {s(S_T0)}',
                  f's_add_u32 {s(S_STEP)}, {s(S_STEP)}, 1']:
            e(x)
        e.wait_lg('ow')
        e('s_barrier')
        pool.free(P, 4)
        e(f'ds_read_b128 {v(OF, 4)}, {v(V_OR)}', tag='of0')
        e(f'ds_read_b128 {v(OF + 4, 4)}, {v(V_OR)} offset:1024', tag='of1')
        pump_lds(NA)
        kxi = kx_items()
        for f in kxi[:6]:
            f()
        stamp()
        ZO = [SM, SM + 2, SM + 4]

        def finish(p):
            ac = OACC[p % noa]
            zz = ZO[p % 3]
            it = fold(ac, zz) + fold(ac + 4, zz + 1)
            if p + noa < 5:
                it += [(lambda j=j: e(f'v_mov_b64 {v(ac + j, 2)}, 0')) for j in range(0, 4, 2)]
            it += [lambda: e(f'v_permlane16_swap_b32 {v(zz)}, {v(zz + 1)}'),
                   lambda: e(f'buffer_store_dwordx2 {v(zz, 2)}, {v(V_PBST)}, {s(S_WS, 4)}, {s(S_PBST + p)} offen {sc}', tag='pst')]
            if p + noa < 5:
                it += [(lambda j=j: e(f'v_mov_b64 {v(ac + j, 2)}, 0')) for j in range(4, 8, 2)]
            else:
                it += [lambda: pool.free(ac, 8)]
            return it
        sc2 = [f's_lshl_b32 {s(S_T0)}, {s(S_MSL)}, 1',
               f's_add_u32 {s(S_MBN2)}, {s(S_MBE0)}, {s(S_T0)}', f's_add_u32 {s(S_MBD2)}, {s(S_MBD0)}, {s(S_T0)}',
               f's_xor_b32 {s(S_T0)}, {s(S_T0)}, 65536', f's_add_u32 {s(S_MBR2)}, {s(S_MBL2)}, {s(S_T0)}',
               f's_add_u32 {s(S_MBN)}, {s(S_MBL)}, {s(S_MSL)}']
        sc2 = kxi[6:] + [(lambda x=x: e(x)) for x in sc2]
        for p in range(5):
            ac = OACC[p % noa]
            mo = []
            for t in range(2):
                for tau in range(2):
                    def f(t=t, tau=tau):
                        if p == 0 and tau == 0:
                            e.wait_lg(f'of{t}')
                        smf(ac + 4 * tau, OF + 4 * t, (('o', t, p), tau))
                    mo.append(f)
            side = finish(p - 1) if p >= 1 else sc2
            run(mo[:1], [], 0)
            run(mo[1:], side, 3 if p else 4)
        for f in finish(4):
            f()
        stamp()
        tl(3)
        pool.free(OF, 8)
        pool.free(SM, 8)
        assert not lds_pending
        claim(ACC, 24)
        for b in PRE:
            claim(b, 8)
        RB, RA, TM = ACC, VACC, VACC + 4

        def pb_loads():
            for i in range(4):
                e(f'buffer_load_dwordx4 {v(RB + 4 * i, 4)}, {v(V_LANE16)}, {s(S_WS, 4)}, {s(S_PBLD)} offen offset:{1024 * i} sc1', tag=('pb', i))
        if early_poll:
            e(f's_cmp_ge_u32 {s(S_UNIT)}, {early_poll}')
            e(f's_cbranch_scc1 {L}_nep')
            pb_loads()
            pre_load()
            for p in range(5):
                e(f's_xor_b32 {s(S_PBST + p)}, {s(S_PBST + p)}, {PB_STRIDE}')
            e(f's_branch {L}_pk1')
            e.label(f'{L}_nep')
        pre_load()
        for p in range(5):
            e(f's_xor_b32 {s(S_PBST + p)}, {s(S_PBST + p)}, {PB_STRIDE}')
        e(f's_cmp_ge_u32 {s(S_UNIT)}, 80')
        e(f's_cbranch_scc1 {L}_nored')
        if kdel:
            e.nop(kdel)
        e.label(f'{L}_pollK')
        e.hist = []
        wd()
        if stamps:
            e('s_add_u32 s27, s27, 1')
        pb_loads()
        e.label(f'{L}_pk1')
        e.hist = []
        for i in range(4):
            e(f's_waitcnt vmcnt({3 - i})')
            e(f'v_mfma_f32_16x16x32_bf16 {v(RA, 4)}, {v(V_SEL, 4)}, {v(RB + 4 * i, 4)}, {"0" if i == 0 else v(RA, 4)}')
            if i == 2:
                e(f'v_max3_u32 {v(TM)}, {v(RB)}, {v(RB + 4)}, {v(RB + 8)}')
        e(f'v_max_u32 {v(TM)}, {v(TM)}, {v(RB + 12)}')
        e(f'v_mov_b32_dpp {v(TM + 1)}, {v(TM)} quad_perm:[0,0,0,0] row_mask:0xf bank_mask:0xf')
        e(f'v_cmp_eq_u32 vcc, -1, {v(TM + 1)}')
        e('s_mov_b64 exec, vcc')
        e(f's_cbranch_execnz {L}_pollK')
        e('s_mov_b64 exec, -1')
        e.vm = []
        e(f'v_permlane32_swap_b32 {v(RA)}, {v(RA + 2)}')
        e(f'v_permlane32_swap_b32 {v(RA + 1)}, {v(RA + 3)}')
        e(f'v_add_f32_dpp {v(RA)}, {v(RA + 2)}, {v(RA)} row_ror:8 row_mask:0xf bank_mask:0xf')
        e(f'v_add_f32_dpp {v(RA + 1)}, {v(RA + 3)}, {v(RA + 1)} row_ror:8 row_mask:0xf bank_mask:0xf')
        e(f'v_cvt_pk_bf16_f32 {v(V_EX)}, {v(RA)}, {v(RA + 1)}')
        e(f'buffer_store_dword {v(V_EX)}, {v(V_MBST)}, {s(S_WS, 4)}, {s(S_MBN)} offen {sc}')
        e(f'buffer_store_dword {v(V_EX)}, {v(V_MBST)}, {s(S_WS, 4)}, {s(S_MBN2)} offen sc1')
        stamp()
        tl(2)
        e(f'buffer_store_dword {v(V_M1)}, {v(V_MBST)}, {s(S_WS, 4)}, {s(S_MBC)} offen {sc}')
        e(f'buffer_store_dword {v(V_M1)}, {v(V_L64)}, {s(S_WS, 4)}, {s(S_PBLD)} offen {sc}')
        e(f's_xor_b32 {s(S_PBLD)}, {s(S_PBLD)}, {PB_STRIDE}')
        e(f's_mov_b32 {s(S_MBC)}, {s(S_MBN)}')
        e(f's_branch {L}_end')
        e.label(f'{L}_nored')
        if stamps and call_i[0] - 1 in stsel:
            e(f's_memtime {s(S_STAMP + 2 * (stamp_i[0] - 1), 2)}')
        if gdel:
            e(f's_sleep {gdel}')
        e.label(f'{L}_end')
        e.hist = []
        tl_out(0, RB)
        e('s_waitcnt lgkmcnt(0)')
        if stamps:
            stamp()
            stamp_acc(stamp_i[0])
        e(f's_cmp_lg_u32 {s(S_STEP)}, {nsteps - 1}')
        e(f's_cbranch_scc1 {L}')
        e(f's_branch {name}_fin')
        if 'nov' in dbg:
            return
        e.label(f'{L}_fixv')
        wd()
        if stamps:
            e('s_add_u32 s26, s26, 63')
        e(f'buffer_load_dwordx4 {v(ZVF, 4)}, {v(V_LANE16)}, {s(S_WS, 4)}, {s(S_VB)} offen sc1')
        e('s_waitcnt vmcnt(0)')
        e(f'v_cmp_eq_u32 vcc, -1, {v(ZVF)}')
        e(f's_cbranch_vccnz {L}_fixv')
        e(f's_branch {L}_pv2')

    body('', f'{name}_fast')
    if slow:
        body('sc1', f'{name}_slow')
    e.label(f'{name}_fin')
    e.flush_hazards(4)
    e(f'buffer_store_dword {v(V_EX)}, {v(V_MBST)}, {s(S_WS, 4)}, {s(S_MBD2)} offen sc1')
    if stamps:
        stamp_out()
    if 'rt' in dbg or 'tot' in dbg:
        e(f's_cmp_lg_u32 {s(S_W)}, 1')
        e(f's_cbranch_scc1 {name}_exit')
    if 'rt' in dbg:
        e('s_memrealtime s[100:101]')
        e('s_waitcnt lgkmcnt(0)')
        if 'diag' in dbg:
            e('s_sub_u32 s101, s100, s98')
            e('s_sub_u32 s99, s98, s96')
            e('v_mov_b32 v40, s99')
            e('v_mov_b32 v41, s101')
            e('v_mov_b32 v44, 32')
            e(f'buffer_store_dwordx2 v[40:41], v44, {s(S_DBG, 4)}, 0 offen')
            e('s_waitcnt vmcnt(0)')
        e('v_mov_b32 v40, s96')
        e('v_mov_b32 v41, s98')
        e('v_mov_b32 v42, s100')
        e('v_mov_b32 v43, s94')
        e('v_mov_b32 v44, 0')
        e(f's_lshl_b32 {s(S_T0)}, {s(S_H)}, 6')
        e(f's_add_u32 {s(S_T0)}, {s(S_T0)}, 0x0F800000')
        e(f'buffer_store_dwordx4 v[40:43], v44, {s(S_WS, 4)}, {s(S_T0)} offen')
    if 'tot' in dbg:
        e('s_memtime s[98:99]')
        e('s_waitcnt lgkmcnt(0)')
        e('s_sub_u32 s98, s98, s96')
        e('v_mov_b32 v40, s98')
        e('v_mov_b32 v42, 0')
        e(f's_lshl_b32 {s(S_T0)}, {s(S_H)}, 6')
        e(f's_add_u32 {s(S_T0)}, {s(S_T0)}, 0x0F800000')
        e(f'buffer_store_dword v40, v42, {s(S_WS, 4)}, {s(S_T0)} offen')
    e.label(f'{name}_exit')
    e('s_endpgm')
    print(f'; chain12: n_reg={n_reg} n_lds={n_lds} pool peak={pool.peak} of {pool_end - NPERS}')

    H = f'{name}_helper'
    e.label(H)
    e.hist, e.vm, e.lg = [], [], []
    hunits = [('v', t) for t in range(10)] + [('k', t) for t in range(10)]
    hplace = {}
    r = 128
    for un in hunits:
        for tau in range(2):
            hplace[(un, tau)] = ('reg', r)
            r += 8
    M4 = 24
    for j in range(4):
        e(f'v_mov_b32 {v(M4 + j)}, -1')

    def helper_init():
        e(f's_cmp_lg_u32 {s(S_W)}, 0')
        e(f's_cbranch_scc1 {H}_nocal')
        e(f's_lshl_b32 {s(S_T0)}, {s(S_H)}, 7')
        e(f's_add_u32 {s(S_T0)}, {s(S_T0)}, {s(S_NR)}')
        e(f's_add_u32 s82, {s(S_T0)}, {NR_CAL}')
        e(f's_add_u32 s83, {s(S_T0)}, {NR_CAL + 8192}')
        e('s_mov_b32 s80, -1')
        e('s_mov_b32 s81, -1')
        e(f's_mov_b32 {s(S_T0)}, {ncal}')
        e.label(f'{H}_cal')
        for hf in range(2):
            e('s_memtime s[76:77]')
            e('s_waitcnt lgkmcnt(0)')
            e(f'buffer_store_dword {v(V_M1)}, {v(V_MBST)}, {s(S_WS, 4)}, {s(82 + hf)} offen sc1')
            e('s_waitcnt vmcnt(0)')
            e('s_memtime s[78:79]')
            e('s_waitcnt lgkmcnt(0)')
            e('s_sub_u32 s78, s78, s76')
            e(f's_min_u32 {s(80 + hf)}, {s(80 + hf)}, s78')
        e(f's_sub_u32 {s(S_T0)}, {s(S_T0)}, 1')
        e(f's_cmp_lg_u32 {s(S_T0)}, 0')
        e(f's_cbranch_scc1 {H}_cal')
        e('s_cmp_lt_u32 s81, s80')
        e('s_cselect_b32 s80, 0x10001, 1')
        e.label(f'{H}_nocal')
        e('s_barrier')
        for sl_ in range(4):
            for hf in range(2):
                e(f's_add_u32 {s(S_T0)}, {s(S_VB0)}, {sl_ * 262144 + hf * 8192}')
                e(f's_add_u32 {s(S_T0)}, {s(S_T0)}, {s(S_NR)}')
                e(f'buffer_store_dwordx4 {v(M4, 4)}, {v(V_LANE16)}, {s(S_WS, 4)}, {s(S_T0)} offen sc1')
        init_done(f'{H}_noib', 's80')
    load_weights(hunits, hplace, VT_QKV, 0, helper_init, pre=True)
    e('s_barrier')
    init_wait(f'{H}_ibw', 32)
    if 'nohelp' in dbg:
        e('s_endpgm')
    S_PA, S_PB_, S_PC = 50, 51, 52
    GA, GB, GC, V_KR = V_OR, V_KXG, V_OW, V_QKR
    e(f's_lshl_b32 {s(S_PA)}, {s(S_W)}, 10')
    e(f's_and_b32 {s(S_T0)}, {s(S_W)}, {NH1 - 4 - 1}')
    e(f's_lshl_b32 {s(S_T0)}, {s(S_T0)}, 10')
    e(f's_add_u32 {s(S_PB_)}, {s(S_T0)}, 4096')
    e(f's_and_b32 {s(S_T0)}, {s(S_W)}, {nvl - 1}')
    e(f's_lshl_b32 {s(S_T0)}, {s(S_T0)}, 10')
    e(f's_add_u32 {s(S_PC)}, {s(S_T0)}, {NH1 * 1024}')
    e(f'v_add_u32 {v(GA)}, {s(S_PA)}, {v(V_LANE16)}')
    e(f'v_add_u32 {v(GB)}, {s(S_PB_)}, {v(V_LANE16)}')
    e(f'v_add_u32 {v(GC)}, {s(S_PC)}, {v(V_LANE16)}')
    e(f's_cmp_ge_u32 {s(S_PC)}, 8192')
    e(f's_cselect_b32 {s(S_T0)}, 8192, 0')
    e(f's_add_u32 {s(S_PC)}, {s(S_PC)}, {s(S_T0)}')
    for x in (S_PA, S_PB_, S_PC):
        e(f's_add_u32 {s(x)}, {s(x)}, {s(S_NR)}')
    for i, x in enumerate((S_PA, S_PB_, S_PC)):
        e(f's_mov_b32 {s(S_MBP + i)}, {s(x)}')
    e(f's_lshl_b32 {s(S_T0)}, {s(S_W)}, 9')
    e(f's_add_u32 {s(S_T0)}, {s(S_T0)}, {L_MQ}')
    e(f'v_add_u32 {v(V_KR)}, {s(S_T0)}, {v(V_L8)}')
    e(f's_mov_b32 {s(S_MBR2)}, 0x40000000')
    if segsig is not None:
        e(f's_cmp_eq_u32 {s(S_W)}, 3')
        e(f's_mov_b32 {s(S_SIG)}, {segsig}')
        e(f's_cselect_b32 {s(S_SIG)}, {s(S_SIG)}, 0x40000000')
    G0, GM, ZH, VA, KA, AFH = 32, 40, 44, 48, 56, 64
    if hstamps:
        stamp_init()
    hs = [0]

    def hstamp():
        if hstamps:
            e(f's_memtime {s(S_STAMP + 2 * hs[0], 2)}')
            hs[0] += 1

    def haf(k):
        e(f'ds_read_b64_tr_b16 {v(AFH + 4 * k, 2)}, {v(V_AF)} offset:{1024 * k}', tag=('af', k))
        e(f'ds_read_b64_tr_b16 {v(AFH + 4 * k + 2, 2)}, {v(V_AF)} offset:{1024 * k + 512}', tag=('af', k))

    def hsm(m, t):
        for tau in range(2):
            e(f'v_smfmac_f32_16x16x64_bf16 {v((VA if m == "v" else KA) + 4 * tau, 4)}, {v(AFH + 4 * t, 4)}, {u(hplace[((m, t), tau)][1], 8)}, {v(V_IDX)}')
    L = f'{H}_loop'
    e.label(L)
    e.hist, e.vm, e.lg = [], [], []
    hstamp()
    for j in range(0, 16, 2):
        e(f'v_mov_b64 {v(VA + j, 2)}, 0')
    e.label(f'{L}_poll')
    wd()
    if hstamps:
        e('s_add_u32 s27, s27, 1')
    for i in range(2):
        e(f'buffer_load_dwordx4 {v(G0 + 4 * i, 4)}, {v(V_LANE16)}, {s(S_WS, 4)}, {s(S_MBP + i)} offen sc1')
    e('s_waitcnt vmcnt(0)')
    e(f'v_max_u32 {v(GM)}, {v(G0)}, {v(G0 + 4)}')
    e(f'v_cmp_eq_u32 vcc, -1, {v(GM)}')
    e('s_mov_b64 exec, vcc')
    e(f's_cbranch_execnz {L}_poll')
    e('s_mov_b64 exec, -1')
    e(f'ds_write_b128 {v(GA)}, {v(G0, 4)}')
    e(f'ds_write_b128 {v(GB)}, {v(G0 + 4, 4)}')
    e('s_waitcnt lgkmcnt(0)')
    e('s_barrier')
    e.vm, e.lg = [], []
    hstamp()
    tl(0)
    for k in range(min(NH1, 7)):
        haf(k)
    for t in range(NH1):
        e.wait_lg(('af', t))
        hsm('v', t)
        if t + 7 < NH1:
            haf(t + 7)
    hsm('k', 0)
    e(f'v_pk_add_f32 {v(ZH, 2)}, {v(VA, 2)}, {v(VA + 2, 2)}')
    e(f'v_pk_add_f32 {v(ZH + 2, 2)}, {v(VA + 4, 2)}, {v(VA + 6, 2)}')
    e(f'buffer_store_dwordx4 {v(ZH, 4)}, {v(V_LANE16)}, {s(S_WS, 4)}, {s(S_VB)} offen sc1')
    hstamp()
    tl(1)
    e(f'buffer_store_dwordx4 {v(M4, 4)}, {v(V_LANE16)}, {s(S_WS, 4)}, {s(S_MBR2)} offen sc1')
    e(f's_mov_b32 {s(S_MBR2)}, {s(S_VB)}')
    for t in range(1, NH1):
        hsm('k', t)
    e.label(f'{L}_poll2')
    wd()
    e(f'buffer_load_dwordx4 {v(G0, 4)}, {v(V_LANE16)}, {s(S_WS, 4)}, {s(S_MBP + 2)} offen sc1')
    e('s_waitcnt vmcnt(0)')
    e(f'v_cmp_eq_u32 vcc, -1, {v(G0)}')
    e('s_mov_b64 exec, vcc')
    e(f's_cbranch_execnz {L}_poll2')
    e('s_mov_b64 exec, -1')
    e(f'ds_write_b128 {v(GC)}, {v(G0, 4)}')
    e('s_waitcnt lgkmcnt(0)')
    e('s_barrier')
    e.vm, e.lg = [], []
    tl(2)
    for k in range(NH1, 10):
        haf(k)
    for t in range(NH1, 10):
        e.wait_lg(('af', t))
        hsm('k', t)
    for t in range(NH1, 10):
        hsm('v', t)
    for f in fold(KA, ZH) + fold(KA + 4, ZH + 1):
        f()
    e(f'ds_write2st64_b32 {v(V_QKW)}, {v(ZH)}, {v(ZH + 1)} offset0:0 offset1:1', tag='kw')
    for f in fold(VA, ZH + 2) + fold(VA + 4, ZH + 3):
        f()
    e(f'buffer_store_dwordx2 {v(ZH + 2, 2)}, {v(V_L8)}, {s(S_WS, 4)}, {s(S_VMO)} offen offset:2048 sc1')
    e.wait_lg('kw')
    e('s_barrier')
    e(f'ds_read_b64 {v(ZH, 2)}, {v(V_KR)}')
    e(f's_add_u32 {s(S_STEP)}, {s(S_STEP)}, 1')
    e(f's_add_u32 {s(S_MSL)}, {s(S_MSL)}, {MB_STRIDE}')
    e(f's_and_b32 {s(S_MSL)}, {s(S_MSL)}, {3 * MB_STRIDE}')
    e(f's_lshl_b32 {s(S_T0)}, {s(S_MSL)}, 1')
    for i, x in enumerate((S_PA, S_PB_, S_PC)):
        e(f's_add_u32 {s(S_MBP + i)}, {s(x)}, {s(S_T0)}')
    e(f's_lshl_b32 {s(S_T0)}, {s(S_MSL)}, 4')
    e(f's_add_u32 {s(S_VB)}, {s(S_VB0)}, {s(S_T0)}')
    e('s_waitcnt lgkmcnt(0)')
    e(f'buffer_store_dwordx2 {v(ZH, 2)}, {v(V_L8)}, {s(S_WS, 4)}, {s(S_VMO)} offen sc1')
    e(f's_add_u32 {s(S_VMO)}, {s(S_VMO)}, {32 * 4096}')
    e('s_waitcnt vmcnt(0)')
    e('s_barrier')
    if segsig is not None:
        seg_signal()
    tl(3)
    tl_out(1, G0)
    if hstamps:
        hstamp()
        stamp_acc(hs[0])
    e(f's_cmp_lt_u32 {s(S_STEP)}, {nsteps}')
    e(f's_cbranch_scc1 {L}')
    if hstamps:
        stamp_out()
    e('s_endpgm')


if __name__ == '__main__':
    import argparse
    ap = argparse.ArgumentParser()
    ap.add_argument('--out', default='chain_test.s')
    ap.add_argument('--stamps', action='store_true')
    ap.add_argument('--kw', default='')
    args = ap.parse_args()
    em = Em()
    kw = eval('dict(' + args.kw + ')')
    gen_chain(em, stamps=args.stamps, **kw)
    hdr = '; @launch kernel=chain_kernel grid=(256,1,1) block=(256,1,1) lds=163840\n'
    hdr += '.amdgcn_target "amdgcn-amd-amdhsa--gfx950"\n.text\n.globl chain_kernel\n'
    open(args.out, 'w').write(hdr + em.text() + kd('chain_kernel', 512, 256))
```

```python
from emit import *
from layout import *
from gen_chain import f32bits, kd
from gen_gemm import Gemm
import gen_all
from gen_all import start, load_srds, end, lane_wave, silu_inplace, wave_sum, rnd2, LOG2E, KA, SIZES
import gen_chain13 as gen_chainX
from gen_chain13 import far_jump

LOG = False
SLEEP = 8
SLEEPN = 1
DSLEEP = 24
WS_LOG = 0x0F400000
NATT = 41
POOLS = [('wk_att', NATT, 1), ('wk_wo', 40, 1), ('wk_ln2', 8, 2), ('wk_up', 27, 1), ('wk_dn', 10, 2)]
assert sum(c * g for _, c, g in POOLS) == 144
LOGOFF = dict(wk_att=0, wk_wo=11, wk_ln2=51, wk_up=59, wk_dn=86)
GSZ = 96
WS_CT2 = 0x00040000
K_CH, K_ATT, K_WO, K_LN2, K_UP, K_KV, K_Q = 0, 64, 128, 192, 256, 320, 384
NCH = 32
NMODA, NLN, NMODB = 40, 128, 80
NPRE = NMODA + NLN + NMODB
NTASK = NPRE + 768
D_TASK, D_MOD, D_MODB = 64, 0, 140
D_POST, D_TQ = 60, 72
N0 = 14
S_RANK, S_PB = 60, 30
SW = 29
S_W1, S_W3, S_W2, S_X, S_OUT, S_SEL = 64, 68, 72, 76, 80, 84
VL = 1
_bj = [0]
KNAME = ['']


def back_jump(e, label, sp=44):
    _bj[0] += 1
    here = f'Lbj{_bj[0]}'
    e(f's_getpc_b64 {s(sp, 2)}')
    e.label(here)
    e.raw(f'    s_add_u32 {s(sp)}, {s(sp)}, {label}-{here}')
    e.raw(f'    s_addc_u32 {s(sp + 1)}, {s(sp + 1)}, -1')
    e(f's_setpc_b64 {s(sp, 2)}')


def reset(e):
    e.hist = []
    e.vm = []
    e.lg = []


def dep_wait(e, lab, deps, sb):
    e(f's_cmp_lg_u32 {s(SW)}, 0')
    e(f's_cbranch_scc1 {lab}_dw')
    e(f's_lshl_b32 s38, {s(sb)}, 7')
    e('v_mov_b32 v2, 0')
    for i, (c, tgt) in enumerate(deps):
        e(f's_add_u32 s39, s38, {WS_CTR + c * 128}')
        e.label(f'{lab}_sp{i}')
        e('buffer_load_dword v3, v2, s[4:7], s39 offen sc1')
        e('s_waitcnt vmcnt(0)')
        e('v_readfirstlane_b32 s37, v3')
        e(f's_cmp_ge_u32 s37, {tgt}')
        e(f's_cbranch_scc1 {lab}_ok{i}')
        for _ in range(SLEEPN):
            e(f's_sleep {SLEEP}')
        e(f's_branch {lab}_sp{i}')
        e.label(f'{lab}_ok{i}')
    e.label(f'{lab}_dw')
    e('s_barrier')
    if LOG:
        e('s_memrealtime s[100:101]')
        e('s_waitcnt lgkmcnt(0)')
        e('s_mov_b32 s63, s100')
    reset(e)


def dbg_wait(e, lab, off_sgpr_or_int, tgt):
    e(f's_cmp_lg_u32 {s(SW)}, 0')
    e(f's_cbranch_scc1 {lab}_dw')
    e(f'v_mov_b32 v2, {off_sgpr_or_int}')
    e.label(f'{lab}_sp')
    e('buffer_load_dword v3, v2, s[8:11], 0 offen sc1')
    e('s_waitcnt vmcnt(0)')
    e('v_readfirstlane_b32 s37, v3')
    e(f's_cmp_ge_u32 s37, {tgt}')
    e(f's_cbranch_scc1 {lab}_dw')
    e(f's_sleep {DSLEEP}')
    e(f's_branch {lab}_sp')
    e.label(f'{lab}_dw')
    e('s_barrier')
    if LOG:
        e('s_memrealtime s[100:101]')
        e('s_waitcnt lgkmcnt(0)')
        e('s_mov_b32 s63, s100')
    reset(e)


def signal(e, lab, c, sb, loop, dbg_off=None):
    e('s_waitcnt vmcnt(0) lgkmcnt(0)')
    e('s_barrier')
    if LOG:
        e('s_memrealtime s[100:101]')
        e('s_waitcnt lgkmcnt(0)')
        e('v_mov_b32 v4, s63')
        e('v_mov_b32 v5, s100')
        e('v_mov_b32 v6, s61')
        e('v_mov_b32 v7, s28')
        e('v_mov_b32 v2, 0')
        e('s_lshl_b32 s38, s62, 4')
        e(f's_add_u32 s38, s38, {WS_LOG}')
        e('buffer_store_dwordx4 v[4:7], v2, s[4:7], s38 offen')
    if dbg_off is not None:
        e(f's_cmp_lg_u32 {s(SW)}, 0')
        e(f's_cbranch_scc1 {lab}_sg')
        e(f'v_mov_b32 v2, {dbg_off}')
        e('v_mov_b32 v3, 1')
        e('s_mov_b64 exec, 1')
        e('buffer_atomic_add v3, v2, s[8:11], 0 offen')
        e('s_mov_b64 exec, -1')
        e.label(f'{lab}_sg')
    elif c is not None:
        e(f's_cmp_lg_u32 {s(SW)}, 0')
        e(f's_cbranch_scc1 {lab}_sg')
        if isinstance(c, int):
            e(f's_lshl_b32 s38, {s(sb)}, 7')
            e(f's_add_u32 s38, s38, {WS_CTR + c * 128}')
        else:
            e(f's_add_u32 s38, {s(sb)}, {c}')
            e('s_lshl_b32 s38, s38, 7')
            e(f's_add_u32 s38, s38, {WS_CTR}')
        e('v_mov_b32 v2, 0')
        e('v_mov_b32 v3, 1')
        e('s_mov_b64 exec, 1')
        e('buffer_atomic_add v3, v2, s[4:7], s38 offen')
        e('s_mov_b64 exec, -1')
        e.label(f'{lab}_sg')
    back_jump(e, loop)


def mid(e):
    if LOG:
        e('s_memrealtime s[100:101]')
        e('s_waitcnt lgkmcnt(0)')
        e('s_mov_b32 s61, s100')


def h_qkv(e, loop):
    name = 'wk_qkv'
    e.label(name)
    reset(e)
    e('s_cmp_eq_u32 s23, 1')
    e(f's_cselect_b32 {s(S_SEL)}, s16, s12')
    e(f's_cselect_b32 {s(S_SEL + 1)}, s17, s13')
    e('s_cmp_eq_u32 s23, 2')
    e(f's_cselect_b32 {s(S_SEL)}, s20, {s(S_SEL)}')
    e(f's_cselect_b32 {s(S_SEL + 1)}, s21, {s(S_SEL + 1)}') if False else None
    return


def gen_workers(e, loop='wk_loop'):
    B, P1, P2 = 52, 53, 54
    e.label('wk_entry')
    reset(e)
    e(f'v_mov_b32 {v(VL)}, v16')
    load_srds(e, [('w1', S_W1), ('w3', S_W3), ('w2', S_W2), ('x', S_X), ('out', S_OUT)], tmp=88)
    e(f's_mov_b32 {s(S_SEL + 2)}, 5242880')
    e(f's_mov_b32 {s(S_SEL + 3)}, 0x20000')
    e('s_lshr_b32 s48, s2, 3')
    e(f's_mul_i32 {s(S_RANK)}, s48, 5')
    e(f's_add_u32 {s(S_RANK)}, {s(S_RANK)}, s35')
    e(f's_sub_u32 {s(S_RANK)}, {s(S_RANK)}, 2')
    e('s_add_u32 s48, s48, 160')
    e('s_cmp_eq_u32 s35, 7')
    e(f's_cselect_b32 {s(S_RANK)}, s48, {s(S_RANK)}')

    def logstart(sidx, base):
        if LOG:
            e(f's_add_u32 s62, {s(sidx)}, {base}')
            e('s_memrealtime s[100:101]')
            e('s_waitcnt lgkmcnt(0)')
            e('s_mov_b32 s63, s100')
            e('s_mov_b32 s28, s100')
            e('s_mov_b32 s61, s100')
    e('s_mov_b32 s48, 0')
    e(f's_cmp_ge_u32 {s(S_RANK)}, 48')
    e('s_cbranch_scc1 wk_pre')
    logstart(S_RANK, 0)
    far_jump(e, 'wk_qkv', 44)
    e.label('wk_pre')
    e(f's_sub_u32 {s(S_RANK)}, {s(S_RANK)}, 48')
    e.label(loop)
    reset(e)
    e('s_add_u32 s48, s48, 1')
    e('s_cmp_gt_u32 s48, 3')
    e('s_cbranch_scc1 wk_rank')
    e(f's_cmp_ge_u32 {s(S_RANK)}, {NMODA}')
    e('s_cbranch_scc1 wk_nm')
    e(f's_lshl_b32 {s(P1)}, {s(S_RANK)}, 1')
    e(f's_add_u32 {s(P1)}, {s(P1)}, s48')
    e(f's_add_u32 {s(P1)}, {s(P1)}, {NMODA - 2}')
    e('s_cmp_eq_u32 s48, 1')
    e(f's_cselect_b32 {s(P1)}, {s(S_RANK)}, {s(P1)}')
    logstart(P1, 8000)
    far_jump(e, 'wk_mod', 44)
    e.label('wk_nm')
    e(f's_mul_i32 {s(P1)}, s48, {144 - NMODA}')
    e(f's_add_u32 {s(P1)}, {s(P1)}, {s(S_RANK)}')
    e(f's_sub_u32 {s(P1)}, {s(P1)}, 144')
    e(f's_cmp_ge_u32 {s(P1)}, {NLN}')
    e('s_cbranch_scc1 wk_rank')
    logstart(P1, 8200)
    far_jump(e, 'wk_ln1', 44)
    e.label('wk_rank')
    dbg_wait(e, 'wk_ma', D_MOD, NMODA)
    e.label('wk_pool')
    if LOG:
        e('s_memrealtime s[100:101]')
        e('s_waitcnt lgkmcnt(0)')
        e('s_mov_b32 s63, s100')
        e('s_mov_b32 s28, s100')
        e('s_mov_b32 s61, s100')
    lo = 0
    for lab, cnt, ng in POOLS:
        for gi in range(ng):
            hi = lo + cnt
            e(f's_cmp_ge_u32 {s(S_RANK)}, {hi}')
            e(f's_cbranch_scc1 wk_n{hi}')
            e(f's_sub_u32 {s(P1)}, {s(S_RANK)}, {lo}')
            e(f's_mov_b32 {s(B)}, {gi}')
            e(f's_mov_b32 s3, {ng}')
            e(f's_add_u32 {s(S_RANK)}, {s(P1)}, {LOGOFF[lab]}')
            far_jump(e, lab, 44)
            e.label(f'wk_n{hi}')
            lo = hi
    e('s_endpgm')

    name = 'wk_qkv'
    e.label(name)
    reset(e)
    e(f's_mul_i32 s50, {s(S_RANK)}, 1366')
    e('s_lshr_b32 s50, s50, 16')
    assert all((x * 1366) >> 16 == x // 48 for x in range(192))
    e('s_mul_i32 s51, s50, 48')
    e(f's_sub_u32 s51, {s(S_RANK)}, s51')
    e(f's_and_b32 {s(P1)}, s51, 15')
    e(f's_lshr_b32 {s(P2)}, s51, 4')
    e(f's_cmp_eq_u32 {s(P2)}, 0')
    e(f's_cselect_b32 {s(S_SEL)}, s16, s12')
    e(f's_cselect_b32 {s(S_SEL + 1)}, s17, s13')
    e(f's_cmp_eq_u32 {s(P2)}, 1')
    e(f's_cselect_b32 {s(S_SEL)}, s20, {s(S_SEL)}')
    e(f's_cselect_b32 {s(S_SEL + 1)}, s21, {s(S_SEL + 1)}')
    panels = [(S_SEL, 8192, 128), (S_SEL, 8192, 128)]
    G = Gemm(e, 32, panels, 1, 4, 10, 128, nstage=1, vbase=104, sbase=40)
    G.setup(VL, SW, 6)
    e('s_mov_b32 s55, 0')
    e(f's_lshl_b32 s56, {s(P1)}, 9')
    e('s_add_u32 s57, s56, 256')
    G.init_offsets(55, [56, 57])
    QW = 192

    def qw(ks, ni):
        return QW + (ks * 4 + ni) * 4
    NS = 4
    assert NS * G.stage <= 163840
    for k in range(NS):
        for f in G.dma_items(None, k, ('w', k), 'w'):
            f()
    for k in range(10):
        e.wait_vm(('w', k))
        e('s_barrier')
        if k >= 1 and k - 1 + NS < 10:
            for f in G.dma_items(None, (k - 1) % NS, ('w', k - 1 + NS), 'w'):
                f()
        for ks in range(2):
            for ni in range(4):
                for m in range(2):
                    e(f'ds_read_b64_tr_b16 {u(qw(2 * k + ks, ni) + 2 * m, 2)}, {v(G.v_wa + ni)} offset:{(32 * ks + 16 * m) * 256}')
        d = G.stage if (k + 1) % NS else -(NS - 1) * G.stage
        for ni in range(4):
            if d >= 0:
                e(f'v_add_u32 {v(G.v_wa + ni)}, {d}, {v(G.v_wa + ni)}')
            else:
                e(f'v_subrev_u32 {v(G.v_wa + ni)}, {-d}, {v(G.v_wa + ni)}')
        e.wait_lg()
    mid(e)
    dbg_wait(e, name + '_a', D_MOD, NMODA)
    if LOG:
        e('s_memrealtime s[100:101]')
        e('s_waitcnt lgkmcnt(0)')
        e('v_mov_b32 v4, s63')
        e('v_mov_b32 v5, s100')
        e('v_mov_b32 v6, s61')
        e('v_mov_b32 v7, s28')
        e('v_mov_b32 v2, 0')
        e(f's_lshl_b32 s38, {s(S_RANK)}, 4')
        e(f's_add_u32 s38, s38, {WS_LOG + 8400 * 16}')
        e('buffer_store_dwordx4 v[4:7], v2, s[4:7], s38 offen')
    QA, QX, QO = 16, 48, 80
    e(f's_mul_i32 s55, s50, {32 * 1280}')
    e(f's_add_u32 s55, s55, {WS_H1}')
    e('s_mov_b32 s56, 0')
    e('s_lshl_b32 s33, s50, 5')
    e(f's_lshl_b32 s34, {s(P1)}, 1')
    e('s_add_u32 s33, s33, s34')
    e('s_lshl_b32 s33, s33, 13')
    e(f's_mov_b32 s34, {WS_QX}')
    e(f's_mov_b32 s35, {WS_CT2 + K_Q * 128}')
    e(f's_cmp_lg_u32 {s(P2)}, 2')
    e(f's_cselect_b32 s34, {WS_KX}, s34')
    e(f's_cselect_b32 s35, {WS_CT2 + K_KV * 128}, s35')
    e(f's_cmp_eq_u32 {s(P2)}, 1')
    e(f's_cselect_b32 s34, {WS_VXT}, s34')
    e('s_add_u32 s33, s33, s34')
    e(f's_lshl_b32 s31, {s(SW)}, 11')
    e('s_add_u32 s33, s33, s31')
    e(f'v_and_b32 v2, 15, {v(VL)}')
    e(f'v_lshrrev_b32 v3, 4, {v(VL)}')
    e('v_lshlrev_b32 v3, 4, v3')
    e('v_lshl_add_u32 v4, v2, 6, v3')
    e(f'v_lshlrev_b32 v5, 4, {v(VL)}')
    e('v_lshlrev_b32 v6, 7, v2')
    e('v_mov_b32 v7, -1')
    e(f'v_lshlrev_b32 v8, 7, {v(VL)}')
    e('s_mov_b32 s51, 0')
    e('s_mov_b32 s34, 0')
    e(f's_cmp_lg_u32 {s(SW)}, 0')
    e('s_cselect_b32 s35, 0x40000000, s35')

    e('s_mov_b32 s58, 0')
    e('s_mov_b32 s59, 0')

    def x_check(lab):
        e('s_lshr_b32 s57, s58, 2')
        e('s_min_u32 s57, s57, 15')
        e('s_add_u32 s58, s58, 1')
        e('s_cmp_lt_u32 s57, s59')
        e(f's_cbranch_scc1 {lab}_ok')
        e(f's_mov_b32 s39, {WS_CTR + C_LN1 * 128}')
        e.label(lab)
        e('buffer_load_dword v3, v6, s[4:7], s39 offen sc1')
        e('s_waitcnt vmcnt(0)')
        e('v_cmp_le_u32 vcc, 8, v3')
        e('s_and_b32 s59, vcc_lo, 0xffff')
        e('s_ff0_i32_b32 s59, s59')
        e('s_cmp_lt_u32 s57, s59')
        e(f's_cbranch_scc1 {lab}_ok')
        e('s_sleep 2')
        e(f's_branch {lab}')
        e.label(lab + '_ok')

    def x_items():
        it = []
        for j, n in enumerate((4, 4, 2)):
            it.append(f's_mul_i32 s57, {s(SW)}, {n * 1024}')
            if j:
                it.append(f's_add_u32 s57, s57, {16384 * j}')
            it.append('s_add_u32 m0, s57, s56')
            it.append('s_add_u32 s57, s57, s55')
            for i in range(n):
                it.append(f'buffer_load_dwordx4 {v(G.v_xg + (i & 1))}, s[4:7], s57 offen offset:{1024 * i} sc1 lds')
        it += [f's_add_u32 s57, s55, {32 * 1280}', f's_cmp_lt_u32 s57, {WS_H1 + 2048 * 1280}', 's_cselect_b32 s55, s57, s55',
               's_add_u32 s56, s56, 40960', 's_cmp_lt_u32 s56, 163840', 's_cselect_b32 s56, s56, 0']
        return it

    def qsig(upto):
        e(f's_sub_u32 s37, {upto}, s34')
        e('s_bfm_b64 exec, s37, s34')
        e('s_cmp_eq_u32 s37, 0')
        e('s_cselect_b32 s38, 0x40000000, s35')
        e('s_cselect_b64 exec, 1, exec')
        e(f's_mov_b32 s34, {upto}')
        e('buffer_atomic_sub v7, v8, s[4:7], s38 offen')
        e('s_mov_b64 exec, -1')
    for i in range(2):
        x_check(f'{name}_w{i}')
        for x in x_items():
            e(x)
    e('s_mov_b32 s32, s33')
    e('s_mov_b32 s33, 0x40000000')
    e(f's_cmp_lg_u32 {s(P2)}, 1')
    e(f's_cbranch_scc1 {name}_T')
    far_jump(e, f'{name}_N', 98)

    def q_cvt(o):
        for k in range(4):
            t = QO + 4 * k
            if o == 'T':
                p, mi = k >> 1, k & 1
                srcs = [QA + (mi * 4 + p * 2 + hf) * 4 for hf in range(2)]
            else:
                p, a_ = k >> 1, k & 1
                srcs = [QA + (hf * 4 + p * 2 + a_) * 4 for hf in range(2)]
            for hf in range(2):
                e(f'v_cvt_pk_bf16_f32 {v(t + 2 * hf)}, {v(srcs[hf])}, {v(srcs[hf] + 1)}')
                e(f'v_cvt_pk_bf16_f32 {v(t + 2 * hf + 1)}, {v(srcs[hf] + 2)}, {v(srcs[hf] + 3)}')

    def q_st(o):
        it = ['s_add_u32 s36, s33, 8192']
        for k in range(4):
            it.append(f'buffer_store_dwordx4 {v(QO + 4 * k, 4)}, {"v4" if o == "T" else "v5"}, s[4:7], {"s36" if k >> 1 else "s33"} offen offset:{1024 * (k & 1)} sc1')
        it += ['s_mov_b32 s33, s32', f's_add_u32 s32, s32, {32 * 8192}']
        return it
    for o in 'TN':
        nm = f'{name}_{o}'
        e.label(nm)
        reset(e)
        D = 4

        def rd(ks):
            for mi in range(2):
                e(f'ds_read_b128 {v(QX + 8 * (ks % D) + 4 * mi, 4)}, {v(G.v_xa + (ks & 1))} offset:{(ks >> 1) * 4096 + mi * 2048}', tag=('xf', ks))
        e('s_waitcnt vmcnt(10)')
        e('s_barrier')
        for ks in range(D - 1):
            rd(ks)
        e('s_sub_u32 s36, s51, 1')
        e('s_max_i32 s36, s36, s34')
        qsig('s36')
        e.nop(4)
        q_cvt(o)
        x_check(nm + '_x')
        for x in q_st(o):
            e(x)
        e('s_sub_u32 s37, s51, 1')
        e('s_cmp_ge_u32 s37, 2')
        e(f's_cbranch_scc1 {nm}_nd')
        e('s_waitcnt vmcnt(0)')
        e('s_barrier')
        qsig('s51')
        if LOG:
            e('s_memrealtime s[100:101]')
            e('s_waitcnt lgkmcnt(0)')
            e('s_mov_b32 s63, s100')
        e.label(nm + '_nd')
        side = x_items()
        for ks in range(20):
            if ks + D - 1 < 20:
                rd(ks + D - 1)
            e.wait_lg(('xf', ks))
            for mi in range(2):
                for ni in range(4):
                    ac = v(QA + (mi * 4 + ni) * 4, 4)
                    fx, fw = v(QX + 8 * (ks % D) + 4 * mi, 4), u(qw(ks, ni), 4)
                    A_, B_ = (fx, fw) if o == 'N' else (fw, fx)
                    e(f'v_mfma_f32_16x16x32_bf16 {ac}, {A_}, {B_}, {"0" if ks == 0 else ac}')
                    if side and ni & 1:
                        e(side.pop(0))
        assert not side
        e('s_add_u32 s51, s51, 1')
        e('s_and_b32 s57, s51, 3')
        e('s_mov_b32 s57, 40960')
        e('s_cselect_b32 s57, s57, 0xfffe2000')
        for i in range(2):
            e(f'v_add_u32 {v(G.v_xa + i)}, s57, {v(G.v_xa + i)}')
        e('s_cmp_lt_u32 s51, 64')
        e(f's_cbranch_scc1 {nm}')
        q_cvt(o)
        for x in q_st(o):
            e(x)
        e('s_waitcnt vmcnt(0)')
        e('s_barrier')
        qsig(64)
        if o == 'T':
            far_jump(e, f'{name}_end', 98)
    e.label(f'{name}_end')
    reset(e)
    if LOG:
        e('s_memrealtime s[100:101]')
        e('s_waitcnt lgkmcnt(0)')
        e('v_mov_b32 v4, s63')
        e('v_mov_b32 v5, s100')
        e('v_mov_b32 v2, 0')
        e(f's_lshl_b32 s38, {s(S_RANK)}, 4')
        e(f's_add_u32 s38, s38, {WS_LOG}')
        e('buffer_store_dwordx2 v[4:5], v2, s[4:7], s38 offen')
    e('s_endpgm')

    name = 'wk_ln1'
    e.label(name)
    reset(e)
    RPW = 4
    e(f's_lshl_b32 s30, {s(P1)}, 2')
    e(f's_add_u32 s30, s30, {s(SW)}')
    e(f's_mul_i32 s30, s30, {RPW * 1280}')
    e(f'v_lshlrev_b32 v4, 2, {v(VL)}')
    e('s_add_u32 s31, s30, 2560')
    for r in range(RPW):
        for i in range(5):
            e(f'buffer_load_dword {v(16 + 5 * r + i)}, v4, {s(S_X, 4)}, {"s30" if r < 2 else "s31"} offen offset:{(r & 1) * 1280 + 256 * i}', tag=('x', r))
    e(f's_mov_b32 s32, {f32bits(1.0 / 640):#x}')
    e(f's_mov_b32 s33, {f32bits(1e-5):#x}')
    e('s_waitcnt vmcnt(0)')
    for r in range(RPW):
        X = 64 + 10 * r
        for i in range(5):
            e(f'v_lshlrev_b32 {v(X + 2 * i)}, 16, {v(16 + 5 * r + i)}')
            e(f'v_and_b32 {v(X + 2 * i + 1)}, 0xffff0000, {v(16 + 5 * r + i)}')
        e(f'v_add_f32 v8, {v(X)}, {v(X + 1)}')
        for j in range(2, 10):
            e(f'v_add_f32 v8, v8, {v(X + j)}')
        wave_sum(e, 8, 9)
        e('v_mul_f32 v8, s32, v8')
        e('v_mov_b32 v10, 0')
        for j in range(10):
            e(f'v_sub_f32 v9, {v(X + j)}, v8')
            e('v_fmac_f32 v10, v9, v9')
        wave_sum(e, 10, 9)
        e('v_mul_f32 v10, s32, v10')
        rnd2(e, 8, 10, 7)
        e('v_add_f32 v10, s33, v10')
        rnd2(e, 10, 9, 7)
        e('v_sqrt_f32 v10, v10')
        rnd2(e, 10, 9, 7)
        e('v_rcp_f32 v10, v10')
        for j in range(0, 10, 2):
            a_, b_ = X + j, X + j + 1
            e(f'v_sub_f32 {v(a_)}, {v(a_)}, v8')
            e(f'v_sub_f32 {v(b_)}, {v(b_)}, v8')
            rnd2(e, a_, b_, 7)
            e(f'v_mul_f32 {v(a_)}, {v(a_)}, v10')
            e(f'v_mul_f32 {v(b_)}, {v(b_)}, v10')
            rnd2(e, a_, b_, 7)
    e('s_cmp_lg_u32 s48, 1')
    e(f's_cbranch_scc1 {name}_m')
    dbg_wait(e, name, D_MOD, NMODA)
    e.label(f'{name}_m')
    reset(e)
    e(f'v_lshlrev_b32 v3, 3, {v(VL)}')
    e(f's_mov_b32 s34, {WS_MOD}')
    e(f's_mov_b32 s35, {WS_MOD + 2560}')
    for i in range(5):
        e(f'buffer_load_dwordx2 {v(16 + 2 * i, 2)}, v3, s[4:7], s34 offen offset:{512 * i} sc1')
        e(f'buffer_load_dwordx2 {v(26 + 2 * i, 2)}, v3, s[4:7], s35 offen offset:{512 * i} sc1')
    e(f'v_bfe_u32 v5, {v(VL)}, 1, 2')
    e(f'v_bfe_u32 v6, {v(VL)}, 3, 1')
    e(f'v_and_b32 v12, 1, {v(VL)}')
    e('v_lshl_add_u32 v12, v6, 1, v12')
    e('v_lshl_add_u32 v12, v5, 2, v12')
    e(f'v_and_b32 v5, 16, {v(VL)}')
    e('v_add_u32 v12, v12, v5')
    e('v_lshlrev_b32 v12, 2, v12')
    e(f'v_lshrrev_b32 v5, 5, {v(VL)}')
    e('v_lshl_add_u32 v12, v5, 9, v12')
    e(f's_mul_i32 s38, {s(SW)}, 5120')
    e('v_add_u32 v12, s38, v12')
    e(f'v_lshlrev_b32 v13, 4, {v(VL)}')
    e('v_add_u32 v14, s38, v13')
    e('v_and_b32 v13, 0x1f0, v13')
    e('v_lshl_add_u32 v13, v5, 12, v13')
    e('s_lshr_b32 s30, s53, 1')
    e(f's_mul_i32 s30, s30, {32 * 1280}')
    e('s_and_b32 s31, s53, 1')
    e('s_lshl_b32 s31, s31, 2')
    e(f's_add_u32 s31, s31, {s(SW)}')
    e('s_lshl_b32 s31, s31, 9')
    e('s_add_u32 s30, s30, s31')
    e(f's_add_u32 s30, s30, {WS_H1}')
    e.wait_vm()
    for j in range(10):
        e(f'v_add_f32 {v(26 + j)}, 1.0, {v(26 + j)}')
    for j in range(0, 10, 2):
        rnd2(e, 26 + j, 27 + j, 7)
    for r in range(RPW):
        X = 64 + 10 * r
        for j in range(0, 10, 2):
            a_, b_ = X + j, X + j + 1
            e(f'v_pk_mul_f32 {v(a_, 2)}, {v(a_, 2)}, {v(26 + j, 2)}')
            rnd2(e, a_, b_, 7)
            e(f'v_pk_add_f32 {v(a_, 2)}, {v(a_, 2)}, {v(16 + j, 2)}')
            e(f'v_cvt_pk_bf16_f32 {v(a_)}, {v(a_)}, {v(b_)}')
            e(f'ds_write_b32 v12, {v(a_)} offset:{r * 128 + 512 * j}')
    e.wait_lg()
    for i in range(5):
        e(f'ds_read_b128 {v(16 + 4 * i, 4)}, v14 offset:{1024 * i}')
    e.wait_lg()
    for i in range(5):
        e(f'buffer_store_dwordx4 {v(16 + 4 * i, 4)}, v13, s[4:7], s30 offen sc1')
        e('s_add_u32 s30, s30, 8192')
    e(f's_lshr_b32 {s(B)}, {s(P1)}, 3')
    signal(e, name, C_LN1, B, loop)

    SEG = B
    XS, XA2, ACC, XF, ET, WB = 20, 22, 24, 40, 72, 80

    def cwait(lab, cbase, tgt, extra=None):
        e(f's_cmp_lg_u32 {s(SW)}, 0')
        e(f's_cbranch_scc1 {lab}_dw')
        e(f's_lshl_b32 s39, {s(SEG)}, 7')
        e(f's_add_u32 s39, s39, {WS_CT2 + cbase * 128}')
        if extra is not None:
            e(f's_add_u32 s39, s39, {s(extra)}')
        e('v_mov_b32 v2, 0')
        e.label(f'{lab}_sp')
        e('buffer_load_dword v3, v2, s[4:7], s39 offen sc1')
        e('s_waitcnt vmcnt(0)')
        e('v_readfirstlane_b32 s37, v3')
        e(f's_cmp_ge_u32 s37, {tgt}')
        e(f's_cbranch_scc1 {lab}_dw')
        e(f's_sleep {SLEEP}')
        e(f's_branch {lab}_sp')
        e.label(f'{lab}_dw')
        e('s_barrier')
        if LOG:
            e('s_memrealtime s[100:101]')
            e('s_waitcnt lgkmcnt(0)')
            e('s_mov_b32 s63, s100')
        reset(e)

    def cdone(name, cbase, extra=None, nxt=None, tsk=None):
        e('s_waitcnt vmcnt(0) lgkmcnt(0)')
        e('s_barrier')
        if cbase is not None:
            e(f's_cmp_lg_u32 {s(SW)}, 0')
            e(f's_cbranch_scc1 {name}_sg')
            e(f's_lshl_b32 s38, {s(SEG)}, 7')
            e(f's_add_u32 s38, s38, {WS_CT2 + cbase * 128}')
            if extra is not None:
                e(f's_add_u32 s38, s38, {s(extra)}')
            e('v_mov_b32 v2, 0')
            e('v_mov_b32 v3, 1')
            e('s_mov_b64 exec, 1')
            e('buffer_atomic_add v3, v2, s[4:7], s38 offen')
            e('s_mov_b64 exec, -1')
            e.label(f'{name}_sg')
        if LOG:
            e('s_memrealtime s[100:101]')
            e('s_waitcnt lgkmcnt(0)')
            e('v_mov_b32 v64, s63')
            e('v_mov_b32 v65, s100')
            e('v_mov_b32 v66, s61')
            e('v_mov_b32 v67, s28')
            e('v_mov_b32 v2, 0')
            e(f's_mul_i32 s38, {s(SEG)}, {GSZ}')
            e(f's_add_u32 s38, s38, {s(S_RANK)}')
            e('s_lshl_b32 s38, s38, 4')
            e(f's_add_u32 s38, s38, {WS_LOG + 768 * 16}')
            e('buffer_store_dwordx4 v[64:67], v2, s[4:7], s38 offen')
            e.nop(2)
        if tsk:
            e(f's_mov_b32 {s(tsk)}, s50')
            e(f's_cmp_lt_u32 {s(tsk)}, 512')
        else:
            e(f's_add_u32 {s(SEG)}, {s(SEG)}, s3')
            e(f's_cmp_lt_u32 {s(SEG)}, 64')
        e(f's_cbranch_scc1 {nxt or name + "_loop"}')
        e('s_endpgm')

    class SG:
        def __init__(self, name, panels, KT, coloffs, nacc=1, rows=32):
            self.name, self.KT, self.nacc, self.rows = name, KT, nacc, rows
            G = self.G = Gemm(e, rows, panels, rows // 16, 64 // rows, KT, 128, nstage=1, vbase=8, sbase=40)
            assert G.v_wa + G.NT <= XS
            self.NT = NT = G.NT
            assert WB + KT * 2 * NT * 4 <= 512
            G.setup(VL, SW, 2)
            e('s_mov_b32 s57, 0')
            G.init_offsets(57, coloffs)
            e(f's_and_b32 s57, {s(SW)}, 1')
            e('s_cmp_eq_u32 s57, 1')
            e('s_cselect_b64 vcc, -1, 0')
            e(f'v_cndmask_b32 {v(XS)}, {v(G.v_xg)}, {v(G.v_xg + 1)}, vcc')
            e(f'v_cndmask_b32 {v(XS + 1)}, {v(G.v_xg + 1)}, {v(G.v_xg)}, vcc')
            e(f'v_add_u32 {v(XA2)}, 0x10000, {v(G.v_xa)}')
            e(f'v_add_u32 {v(XA2 + 1)}, 0x10000, {v(G.v_xa + 1)}')
            NS = min(KT, 163840 // G.stage, 12)
            for k in range(NS):
                for f in G.dma_items(None, k, ('w', k), 'w'):
                    f()
            for k in range(KT):
                e.wait_vm(('w', k))
                e('s_barrier')
                if k >= 1 and k - 1 + NS < KT:
                    for f in G.dma_items(None, (k - 1) % NS, ('w', k - 1 + NS), 'w'):
                        f()
                for ks in range(2):
                    for ni, (pi, a_) in enumerate(G.tiles):
                        rb = panels[pi][2] * 2
                        for m in range(2):
                            e(f'ds_read_b64_tr_b16 {u(self.wr(2 * k + ks, ni) + 2 * m, 2)}, {v(G.v_wa + ni)} offset:{(32 * ks + 16 * m) * rb}')
                d = G.stage if (k + 1) % NS else -(NS - 1) * G.stage
                for ni in range(NT):
                    if d >= 0:
                        e(f'v_add_u32 {v(G.v_wa + ni)}, {d}, {v(G.v_wa + ni)}')
                    else:
                        e(f'v_subrev_u32 {v(G.v_wa + ni)}, {-d}, {v(G.v_wa + ni)}')
                e.wait_lg()
            e('s_barrier')

        def wr(self, ks, ni):
            return WB + (ks * self.NT + ni) * 4

        def acc(self, ni, par=0):
            return ACC + (par * self.NT + ni) * 4

        def main(self, sx, extra_loads=None):
            G, KT, NT = self.G, self.KT, self.NT
            ktb = self.rows * 128
            P = (KT * ktb // 1024 + 3) // 4 * 4
            upg = 16384 // ktb // 2
            ng = (P + 15) // 16
            for j in range(ng):
                n = min(16, P - 16 * j) // 4
                e(f's_mul_i32 s57, {s(SW)}, {n * 1024}')
                if j:
                    e(f's_add_u32 s57, s57, {16384 * j}')
                e('s_mov_b32 m0, s57')
                e(f's_add_u32 s57, s57, {s(sx)}')
                for i in range(n):
                    xr = (G.v_xg if n % 2 == 0 else XS) + (i & 1)
                    e(f'buffer_load_dwordx4 {v(xr)}, s[4:7], s57 offen offset:{1024 * i} sc1 lds', tag=('x', j))
            if extra_loads:
                extra_loads()
            nu = (2 * KT + 3) // 4

            def reads(un):
                if un % upg == 0:
                    e.wait_vm(('x', un // upg))
                    e('s_barrier')
                for q in range(4):
                    ks = 4 * un + q
                    if ks >= 2 * KT:
                        break
                    off = (ks >> 1) * ktb
                    ar = (G.v_xa if off < 65536 else XA2) + (ks & 1)
                    e(f'ds_read_b128 {v(XF + 16 * (un & 1) + 4 * q, 4)}, {v(ar)} offset:{off & 65535}', tag=('xf', ks))
            reads(0)
            for un in range(nu):
                if un + 1 < nu:
                    reads(un + 1)
                for q in range(4):
                    ks = 4 * un + q
                    if ks >= 2 * KT:
                        break
                    e.wait_lg(('xf', ks))
                    par = ks % self.nacc
                    for ni in range(NT):
                        ac = v(self.acc(ni, par), 4)
                        e(f'v_mfma_f32_16x16x32_bf16 {ac}, {u(self.wr(ks, ni), 4)}, {v(XF + 16 * (un & 1) + 4 * q, 4)}, {"0" if ks < self.nacc else ac}')
            if self.nacc == 2:
                for ni in range(NT):
                    for j in range(0, 4, 2):
                        e(f'v_pk_add_f32 {v(self.acc(ni) + j, 2)}, {v(self.acc(ni) + j, 2)}, {v(self.acc(ni, 1) + j, 2)}')

    name = 'wk_att'
    e.label(name)
    reset(e)
    e(f's_mov_b32 s54, {s(P1)}')
    e('s_mov_b32 s50, s54')
    e(f'v_and_b32 v2, 15, {v(VL)}')
    e(f'v_lshrrev_b32 v3, 4, {v(VL)}')
    e('v_lshlrev_b32 v4, 4, v3')
    e('v_lshl_add_u32 v4, v2, 6, v4')
    e(f'v_lshlrev_b32 v5, 4, {v(VL)}')
    e(f'v_lshlrev_b32 v6, 3, {v(VL)}')
    e(f'v_bfe_u32 v10, {v(VL)}, 2, 2')
    e('v_lshl_add_u32 v10, v3, 2, v10')
    e(f'v_and_b32 v11, 1, {v(VL)}')
    e('v_lshlrev_b32 v11, 3, v11')
    e('v_lshl_add_u32 v10, v10, 4, v11')
    e(f's_lshl_b32 s38, {s(SW)}, 11')
    e('v_add_u32 v10, s38, v10')
    MK = 88
    e('v_lshlrev_b32 v7, 2, v3')
    for j in range(4):
        e(f'v_add_u32 v8, {j}, v7')
        e(f'v_cmp_le_u32 {s(MK + 2 * j, 2)}, v8, v2')
    e('s_mov_b32 s96, -1')
    e('s_mov_b32 s97, 0')
    cc = f32bits((128 ** -0.5) * LOG2E)
    e(f's_mov_b32 s98, {cc:#x}')
    e(f's_mov_b32 s99, {cc:#x}')
    KM_, VM_, ONES, NEG, DO = 16, 32, 40, 44, 72
    S0, S1, M, P, PM, OA = 144, 156, 204, 208, 212, 168
    for j in range(4):
        e(f'v_mov_b32 {v(ONES + j)}, 0x3f803f80')
    e(f'v_mov_b32 {v(NEG)}, 0xf149f2ca')
    e(f'v_mov_b32 {v(PM + 1)}, 0')
    e(f'v_mov_b32 {v(PM + 2)}, 0')
    e('v_lshlrev_b32 v9, 4, v3')
    e('v_lshl_add_u32 v9, v2, 7, v9')
    e('s_mov_b32 s56, -1')

    def att_loads(lab, st, adv):
        Q, KX_, VX_ = 256 + 96 * st, 288 + 96 * st, 320 + 96 * st
        e('s_mov_b32 s55, s50')
        e('s_cmp_ge_u32 s55, 512')
        e(f's_cbranch_scc1 {lab}_nl')
        e('s_lshr_b32 s59, s55, 3')
        e('s_cmp_eq_u32 s59, s56')
        e(f's_cbranch_scc1 {lab}_rdy')
        dep_wait(e, lab, [(K_KV + (WS_CT2 - WS_CTR) // 128, 32), (K_Q + (WS_CT2 - WS_CTR) // 128, 16)], 59)
        e('s_mov_b32 s56, s59')
        e.label(f'{lab}_rdy')
        e('s_lshl_b32 s31, s55, 2')
        e(f's_add_u32 s31, s31, {s(SW)}')
        e('s_lshl_b32 s32, s31, 13')
        e(f's_add_u32 s33, s32, {WS_QX}')
        e('s_add_u32 s34, s33, 4096')
        e(f's_add_u32 s35, s32, {WS_KX}')
        e('s_add_u32 s36, s35, 4096')
        for uu in range(4):
            for ti in range(2):
                e(f'buffer_load_dwordx4 {u(Q + 16 * ti + 4 * uu, 4)}, v4, s[4:7], {"s33" if uu < 2 else "s34"} offen offset:{2048 * (uu & 1) + 1024 * ti} sc1')
                e(f'buffer_load_dwordx4 {u(KX_ + 16 * ti + 4 * uu, 4)}, v4, s[4:7], {"s35" if uu < 2 else "s36"} offen offset:{2048 * (uu & 1) + 1024 * ti} sc1')
        e(f's_add_u32 s39, s32, {WS_VXT}')
        e('s_add_u32 s40, s39, 4096')
        for et in range(8):
            e(f'buffer_load_dwordx4 {u(VX_ + 4 * et, 4)}, v5, s[4:7], {"s39" if et < 4 else "s40"} offen offset:{1024 * (et & 3)} sc1')
        e.label(f'{lab}_nl')
        reset(e)
    att_loads(name + '_p', 0, 0)
    e('s_waitcnt vmcnt(0)')
    for st in range(2):
        nm = f'{name}{st}'
        Q, KX_, VX_ = 256 + 96 * st, 288 + 96 * st, 320 + 96 * st
        e.label(nm + '_top')
        reset(e)
        for uu in range(4):
            c0 = (lambda r: '0' if uu == 0 else v(r, 4))
            e(f'v_mfma_f32_16x16x32_bf16 {v(S0, 4)}, {u(KX_ + 4 * uu, 4)}, {u(Q + 4 * uu, 4)}, {c0(S0)}')
            e(f'v_mfma_f32_16x16x32_bf16 {v(S1, 4)}, {u(KX_ + 4 * uu, 4)}, {u(Q + 16 + 4 * uu, 4)}, {c0(S1)}')
            e(f'v_mfma_f32_16x16x32_bf16 {v(S1 + 4, 4)}, {u(KX_ + 16 + 4 * uu, 4)}, {u(Q + 16 + 4 * uu, 4)}, {c0(S1 + 4)}')
        e(f'v_mov_b32 {v(P + 2)}, 0')
        e(f'v_mov_b32 {v(P + 3)}, 0')
        for dg in (S0, S1 + 4):
            for j in range(4):
                e(f'v_cndmask_b32 {v(dg + j)}, {v(NEG)}, {v(dg + j)}, {s(MK + 2 * j, 2)}')
        e(f's_lshr_b32 {s(SEG)}, s54, 3')
        e('s_and_b32 s58, s54, 7')
        if LOG:
            e(f's_mov_b32 {s(S_RANK)}, s58')
        e('s_lshr_b32 s58, s58, 1')
        e('s_lshl_b32 s58, s58, 4')
        e(f's_add_u32 s50, s54, {NATT}')
        e('s_min_u32 s55, s50, 511')
        e('s_lshr_b32 s59, s55, 3')
        e('s_cmp_eq_u32 s59, s56')
        e(f's_cbranch_scc1 {nm}_r2')
        dep_wait(e, nm + '_c', [(K_KV + (WS_CT2 - WS_CTR) // 128, 32), (K_Q + (WS_CT2 - WS_CTR) // 128, 16)], 59)
        e('s_mov_b32 s56, s59')
        e.label(f'{nm}_r2')
        e('s_lshl_b32 s31, s54, 2')
        e(f's_add_u32 s31, s31, {s(SW)}')
        e('s_lshl_b32 s43, s31, 12')
        e(f's_add_u32 s43, s43, {WS_KM}')
        e(f's_lshl_b32 s41, {s(SEG)}, 18')
        e('s_and_b32 s42, s31, 31')
        e('s_lshl_b32 s42, s42, 12')
        e('s_add_u32 s41, s41, s42')
        e(f's_add_u32 s41, s41, {WS_O}')
        e('s_add_u32 s42, s41, 131072')
        cwait(nm + '2', K_CH, NCH)
        e(f's_lshl_b32 m0, {s(SW)}, 11')
        e('buffer_load_dwordx4 v5, s[4:7], s43 offen sc1 lds', tag='k')
        e('buffer_load_dwordx4 v5, s[4:7], s43 offen offset:1024 sc1 lds', tag='k')
        for w in range(4):
            e(f'buffer_load_dwordx2 {v(VM_ + 2 * w, 2)}, v6, s[4:7], s43 offen offset:{2048 + 512 * w} sc1', tag='v')
        e.wait_vm('k')
        for uu in range(4):
            for m_ in range(2):
                e(f'ds_read_b64_tr_b16 {v(KM_ + 4 * uu + 2 * m_, 2)}, v10 offset:{uu * 512 + m_ * 256}')
        e('s_waitcnt vmcnt(0)')
        att_loads(nm + '_n', 1 - st, NATT)
        e('s_waitcnt lgkmcnt(0)')
        for uu in range(4):
            for tq, S in enumerate((S0, S1)):
                e(f'v_mfma_f32_16x16x32_bf16 {v(S + 8, 4)}, {v(KM_ + 4 * uu, 4)}, {u(Q + 16 * tq + 4 * uu, 4)}, {"0" if uu == 0 else v(S + 8, 4)}')
        for tq, S in enumerate((S0, S1)):
            C0 = S + 8
            e(f'v_cndmask_b32 {v(C0)}, {v(C0 + 2)}, {v(C0)}, s[96:97]')
            e(f'v_cndmask_b32 {v(C0 + 1)}, {v(C0 + 3)}, {v(C0 + 1)}, s[96:97]')
            vals = [S + j for j in range(4 * (tq + 1))] + [C0, C0 + 1]
            e(f'v_max3_f32 {v(M)}, {v(vals[0])}, {v(vals[1])}, {v(vals[2])}')
            i = 3
            while i + 1 < len(vals):
                e(f'v_max3_f32 {v(M)}, {v(M)}, {v(vals[i])}, {v(vals[i + 1])}')
                i += 2
            if i < len(vals):
                e(f'v_max_f32 {v(M)}, {v(M)}, {v(vals[i])}')
            for sw_ in ('v_permlane32_swap_b32', 'v_permlane16_swap_b32'):
                e(f'v_mov_b32 {v(M + 1)}, {v(M)}')
                e(f'{sw_} {v(M)}, {v(M + 1)}')
                e(f'v_max_f32 {v(M)}, {v(M)}, {v(M + 1)}')
            e(f'v_mul_f32 {v(M)}, s98, {v(M)}')
            for x in vals[::2]:
                e(f'v_pk_fma_f32 {v(x, 2)}, {v(x, 2)}, s[98:99], {v(M, 2)} op_sel_hi:[1,1,0] neg_lo:[0,0,1] neg_hi:[0,0,1]')
            for x in vals:
                e(f'v_exp_f32 {v(x)}, {v(x)}')
            for j in range(2 * (tq + 1)):
                e(f'v_cvt_pk_bf16_f32 {v(P + j)}, {v(S + 2 * j)}, {v(S + 2 * j + 1)}')
            e(f'v_cvt_pk_bf16_f32 {v(PM)}, {v(C0)}, {v(C0 + 1)}')
            e(f'v_cvt_pk_bf16_f32 {v(PM + 3)}, {v(C0)}, {v(C0 + 1)}')
            e.wait_vm('v')
            if tq == 0:
                mid(e)
            Lr = OA + 32
            e(f'v_mfma_f32_16x16x32_bf16 {v(Lr, 4)}, {v(ONES, 4)}, {v(P, 4)}, 0')
            for et in range(8):
                e(f'v_mfma_f32_16x16x32_bf16 {v(OA + 4 * et, 4)}, {u(VX_ + 4 * et, 4)}, {v(P, 4)}, 0')
            e(f'v_mfma_f32_16x16x16_bf16 {v(Lr, 4)}, {v(ONES, 2)}, {v(PM, 2)}, {v(Lr, 4)}')
            for et in range(8):
                e(f'v_mfma_f32_16x16x16_bf16 {v(OA + 4 * et, 4)}, {v(VM_ + 2 * (et >> 1), 2)}, {v(PM + 2 * (et & 1), 2)}, {v(OA + 4 * et, 4)}')
            e(f'v_rcp_f32 {v(M)}, {v(Lr)}')
            for ub in range(4):
                o = OA + 8 * ub
                d = DO + 16 * tq + 4 * ub
                for j in range(0, 8, 2):
                    e(f'v_pk_mul_f32 {v(o + j, 2)}, {v(o + j, 2)}, {v(M, 2)} op_sel_hi:[1,0]')
                for j in range(4):
                    e(f'v_cvt_pk_bf16_f32 {v(d + j)}, {v(o + 2 * j)}, {v(o + 2 * j + 1)}')
                e(f'buffer_store_dwordx4 {v(d, 4)}, v9, s[4:7], {"s42" if tq else "s41"} offen offset:{2048 * (ub >> 1) + 64 * (ub & 1)} sc1')
        cdone(nm, K_ATT, 58, nxt=f'{name}{1 - st}_top', tsk=54)

    name = 'wk_wo'
    e.label(name)
    reset(e)
    e(f's_lshr_b32 s55, {s(P1)}, 3')
    e(f's_bfe_u32 s56, {s(P1)}, 0x20001')
    e(f's_mul_i32 s58, s56, {1024 * 1280}')
    e('s_lshl_b32 s59, s55, 8')
    e('s_add_u32 s58, s58, s59')
    S = SG(name, [(24, 1280, 128)], 16, [58], nacc=2, rows=16)
    e('s_lshl_b32 s58, s56, 4')
    e(f'v_and_b32 v4, 15, {v(VL)}')
    e(f'v_lshrrev_b32 v5, 4, {v(VL)}')
    e('v_lshlrev_b32 v5, 4, v5')
    e('v_lshl_add_u32 v4, v4, 6, v5')
    e('s_lshl_b32 s33, s55, 2')
    e(f's_add_u32 s33, s33, {s(SW)}')
    e('s_lshl_b32 s33, s33, 12')
    e(f's_and_b32 s31, {s(P1)}, 1')
    e('s_lshl_b32 s32, s31, 10')
    e('s_add_u32 s33, s33, s32')
    e(f's_mul_i32 s32, s56, {32 * 2560}')
    e('s_add_u32 s33, s33, s32')
    e(f's_add_u32 s59, s33, {WS_PW}')
    e('s_lshl_b32 s56, s56, 15')
    e('s_lshl_b32 s31, s31, 17')
    e('s_add_u32 s56, s56, s31')
    e(f's_add_u32 s56, s56, {WS_O}')
    e.label(name + '_loop')
    reset(e)
    e(f's_lshl_b32 s55, {s(SEG)}, 18')
    e('s_add_u32 s55, s55, s56')
    e(f's_mul_i32 s33, {s(SEG)}, {4 * 32 * 2560}')
    e('s_add_u32 s33, s33, s59')
    cwait(name, K_ATT, 2, 58)
    S.main(55)
    mid(e)
    for ni in range(2):
        e(f'buffer_store_dwordx4 {v(S.acc(ni), 4)}, v4, s[4:7], s33 offen offset:{2048 * ni} sc1')
    cdone(name, K_WO)

    name = 'wk_ln2'
    e.label(name)
    reset(e)
    GT, SH, SC, RS_, PP = 16, 28, 40, 52, 64
    dbg_wait(e, name + '_mb', D_MODB, NMODB)
    e(f'v_lshlrev_b32 v10, 4, {v(VL)}')
    e('v_and_b32 v11, 0x1f0, v10')
    e(f'v_lshrrev_b32 v12, 1, v10')
    e(f'v_lshrrev_b32 v13, 1, v11')
    for base, idx in ((GT, 2), (SH, 3), (SC, 4)):
        e(f's_mov_b32 s32, {WS_MOD + idx * 2560}')
        for i in range(3):
            e(f'buffer_load_dwordx4 {v(base + 4 * i, 4)}, {"v10" if i < 2 else "v11"}, s[4:7], s32 offen offset:{1024 * i} sc1')
    e(f's_lshl_b32 s30, {s(P1)}, 2')
    e(f's_add_u32 s30, s30, {s(SW)}')
    e(f'v_lshrrev_b32 v4, 2, {v(VL)}')
    e(f'v_and_b32 v5, 3, {v(VL)}')
    e('v_lshlrev_b32 v5, 4, v5')
    e('v_lshl_add_u32 v14, v4, 11, v5')
    e('v_and_b32 v4, 7, v4')
    e('v_lshl_add_u32 v15, v4, 11, v5')
    e(f'v_lshrrev_b32 v4, 5, {v(VL)}')
    e(f'v_mul_u32_u24 v4, {32 * 2560}, v4')
    e('v_add_u32 v15, v15, v4')
    e(f'v_lshrrev_b32 v4, 4, {v(VL)}')
    e('v_lshl_add_u32 v8, v4, 12, v5')
    e(f'v_bfe_u32 v4, {v(VL)}, 3, 1')
    e('v_lshl_add_u32 v8, v4, 6, v8')
    e(f'v_bfe_u32 v4, {v(VL)}, 2, 1')
    e('v_lshl_add_u32 v8, v4, 3, v8')
    e('v_and_b32 v9, 0x1fff, v8')
    e('s_lshr_b32 s56, s30, 4')
    e('s_lshl_b32 s56, s56, 10')
    e('s_and_b32 s57, s30, 15')
    e('s_lshl_b32 s57, s57, 6')
    e('s_add_u32 s56, s56, s57')
    e(f's_add_u32 s56, s56, {WS_PW}')
    e('s_lshl_b32 s57, s30, 7')
    e(f's_add_u32 s57, s57, {WS_H2}')
    e('s_mul_i32 s58, s30, 1280')
    e('s_waitcnt vmcnt(0)')
    for j in range(12):
        e(f'v_add_f32 {v(SC + j)}, 1.0, {v(SC + j)}')
    for j in range(0, 12, 2):
        rnd2(e, SC + j, SC + j + 1, 7)
    e('s_mov_b32 s96, -1')
    e('s_mov_b32 s97, 0')
    e(f's_mov_b32 s98, {f32bits(1.0 / 640):#x}')
    e(f's_mov_b32 s99, {f32bits(1e-5):#x}')
    e.label(name + '_loop')
    reset(e)
    e(f's_mul_i32 s31, {s(SEG)}, {32 * 1280}')
    e('s_add_u32 s41, s31, s57')
    e('s_add_u32 s31, s31, s58')
    e(f's_add_u32 s40, s31, {WS_X1}')
    e(f's_mul_i32 s36, {s(SEG)}, {4 * 32 * 2560}')
    e('s_add_u32 s36, s36, s56')
    cwait(name, K_WO, 40)
    for k in range(4):
        e(f's_add_u32 s33, s36, {k * 32 * 2560}')
        e(f's_add_u32 s34, s36, {k * 32 * 2560 + 32768}')
        e(f'buffer_load_dwordx4 {v(PP + 12 * k, 4)}, v14, s[4:7], s33 offen sc1', tag=('p', k))
        e(f'buffer_load_dwordx4 {v(PP + 12 * k + 4, 4)}, v14, s[4:7], s34 offen sc1', tag=('p', k))
        if k % 2 == 0:
            e(f's_add_u32 s35, s36, {k * 32 * 2560 + 65536}')
            e(f'buffer_load_dwordx4 {v(PP + 12 * k + 8, 4)}, v15, s[4:7], s35 offen sc1', tag=('p', k))
    for i in range(3):
        e(f'buffer_load_dwordx2 {v(RS_ + 2 * i, 2)}, {"v12" if i < 2 else "v13"}, {s(S_X, 4)}, s31 offen offset:{512 * i}', tag='r')
    X = PP
    e('s_add_u32 s42, s41, 16384')
    e('s_add_u32 s43, s41, 32768')
    for k in range(1, 4):
        e.wait_vm(('p', k))
        for j in range(0, 12 if k % 2 == 0 else 8, 2):
            e(f'v_pk_add_f32 {v(X + j, 2)}, {v(X + j, 2)}, {v(X + k * 12 + j, 2)}')
    for j in range(8, 12):
        e(f'v_mov_b32 {v(X + 12 + j)}, {v(X + j)}')
    for j in range(8, 12):
        e(f'v_permlane32_swap_b32 {v(X + j)}, {v(X + 12 + j)}')
    for j in range(8, 12, 2):
        e(f'v_pk_add_f32 {v(X + j, 2)}, {v(X + j, 2)}, {v(X + 12 + j, 2)}')
    mid(e)
    e.wait_vm('r')
    for j in range(0, 12, 2):
        a_, b_ = X + j, X + j + 1
        rr = RS_ + j // 2
        rnd2(e, a_, b_, 7)
        e(f'v_pk_mul_f32 {v(a_, 2)}, {v(a_, 2)}, {v(GT + j, 2)}')
        rnd2(e, a_, b_, 7)
        e(f'v_lshlrev_b32 v4, 16, {v(rr)}')
        e(f'v_and_b32 v5, 0xffff0000, {v(rr)}')
        e(f'v_pk_add_f32 {v(a_, 2)}, {v(a_, 2)}, v[4:5]')
        e(f'v_cvt_pk_bf16_f32 {v(rr)}, {v(a_)}, {v(b_)}')
        e(f'v_lshlrev_b32 {v(a_)}, 16, {v(rr)}')
        e(f'v_and_b32 {v(b_)}, 0xffff0000, {v(rr)}')
        if j % 4 == 2:
            i = j // 4
            e(f'buffer_store_dwordx2 {v(RS_ + 2 * i, 2)}, {"v12" if i < 2 else "v13"}, s[4:7], s40 offen offset:{512 * i} sc1')
    e(f'v_pk_add_f32 v[4:5], {v(X + 8, 2)}, {v(X + 10, 2)}')
    e('v_add_f32 v4, v4, v5')
    e('v_cndmask_b32 v6, 0, v4, s[96:97]')
    e(f'v_pk_add_f32 v[4:5], {v(X, 2)}, {v(X + 2, 2)}')
    e(f'v_pk_add_f32 v[4:5], v[4:5], {v(X + 4, 2)}')
    e(f'v_pk_add_f32 v[4:5], v[4:5], {v(X + 6, 2)}')
    e('v_add_f32 v4, v4, v5')
    e('v_add_f32 v6, v6, v4')
    wave_sum(e, 6, 5)
    e('v_mul_f32 v6, s98, v6')
    e('v_mov_b32 v2, 0')
    for j in range(8, 12):
        e(f'v_sub_f32 v5, {v(X + j)}, v6')
        e('v_fmac_f32 v2, v5, v5')
    e('v_cndmask_b32 v2, 0, v2, s[96:97]')
    for j in range(8):
        e(f'v_sub_f32 v5, {v(X + j)}, v6')
        e('v_fmac_f32 v2, v5, v5')
    wave_sum(e, 2, 5)
    e('v_mul_f32 v2, s98, v2')
    rnd2(e, 6, 2, 7)
    e('v_add_f32 v2, s99, v2')
    rnd2(e, 2, 5, 7)
    e('v_sqrt_f32 v2, v2')
    rnd2(e, 2, 5, 7)
    e('v_rcp_f32 v2, v2')
    for j in range(0, 12, 2):
        a_, b_ = X + j, X + j + 1
        e(f'v_sub_f32 {v(a_)}, {v(a_)}, v6')
        e(f'v_sub_f32 {v(b_)}, {v(b_)}, v6')
        rnd2(e, a_, b_, 7)
        e(f'v_mul_f32 {v(a_)}, {v(a_)}, v2')
        e(f'v_mul_f32 {v(b_)}, {v(b_)}, v2')
        rnd2(e, a_, b_, 7)
        e(f'v_pk_mul_f32 {v(a_, 2)}, {v(a_, 2)}, {v(SC + j, 2)}')
        rnd2(e, a_, b_, 7)
        e(f'v_pk_add_f32 {v(a_, 2)}, {v(a_, 2)}, {v(SH + j, 2)}')
        e(f'v_cvt_pk_bf16_f32 {v(X + 12 + j // 2)}, {v(a_)}, {v(b_)}')
        if j % 4 == 2:
            i = j // 4
            e(f'buffer_store_dwordx2 {v(X + 12 + 2 * i, 2)}, {"v8" if i < 2 else "v9"}, s[4:7], {s(41 + i)} offen sc1')
    cdone(name, K_LN2)

    name = 'wk_up'
    e.label(name)
    reset(e)
    e(f's_lshl_b32 s58, {s(P1)}, 7')
    e('s_mov_b32 s59, s58')
    S = SG(name, [(S_W1, 3456, 64), (S_W3, 3456, 64)], 10, [58, 59])
    e(f'v_and_b32 v4, 15, {v(VL)}')
    e(f'v_lshrrev_b32 v5, 4, {v(VL)}')
    e('v_lshlrev_b32 v5, 4, v5')
    e('v_lshl_add_u32 v4, v4, 7, v5')
    e(f's_lshr_b32 s31, {s(SW)}, 1')
    e(f's_mul_i32 s31, s31, {16 * 3456}')
    e(f's_and_b32 s32, {s(SW)}, 1')
    e('s_lshl_b32 s32, s32, 6')
    e('s_add_u32 s31, s31, s32')
    e(f's_lshl_b32 s59, {s(P1)}, 11')
    e('s_add_u32 s59, s59, s31')
    e(f's_add_u32 s59, s59, {WS_HM}')
    e(f's_mov_b32 s36, {f32bits(-LOG2E):#x}')
    e.label(name + '_loop')
    reset(e)
    e(f's_mul_i32 s55, {s(SEG)}, {32 * 1280}')
    e(f's_add_u32 s55, s55, {WS_H2}')
    e(f's_mul_i32 s33, {s(SEG)}, {32 * 3456}')
    e('s_add_u32 s33, s33, s59')
    cwait(name, K_LN2, 8)
    S.main(55)
    mid(e)
    for a_ in range(2):
        gv = S.acc(a_)
        uv = S.acc(2 + a_)
        for h in range(2):
            g0, g1, u0, u1 = gv + 2 * h, gv + 2 * h + 1, uv + 2 * h, uv + 2 * h + 1
            rnd2(e, g0, g1, 6)
            rnd2(e, u0, u1, 6)
            silu_inplace(e, g0, 6, 36)
            silu_inplace(e, g1, 7, 36)
            rnd2(e, g0, g1, 6)
            e(f'v_mul_f32 {v(g0)}, {v(g0)}, {v(u0)}')
            e(f'v_mul_f32 {v(g1)}, {v(g1)}, {v(u1)}')
            e(f'v_cvt_pk_bf16_f32 {v(ET + 2 * a_ + h)}, {v(g0)}, {v(g1)}')
    e(f'buffer_store_dwordx4 {v(ET, 4)}, v4, s[4:7], s33 offen sc1')
    cdone(name, K_UP)

    name = 'wk_dn'
    e.label(name)
    reset(e)
    e(f's_lshr_b32 s58, {s(P1)}, 1')
    e('s_lshl_b32 s58, s58, 8')
    S = SG(name, [(S_W2, 1280, 128)], 27, [58], nacc=2, rows=16)
    dbg_wait(e, name + '_mb', D_MODB, NMODB)
    GBV = 8
    G = S.G
    assert (G.v_xg, G.v_xa) == (8, 12)
    e(f'v_and_b32 v4, 15, {v(VL)}')
    e(f'v_lshrrev_b32 v5, 4, {v(VL)}')
    e('v_mul_u32_u24 v4, 1280, v4')
    e('v_lshl_add_u32 v4, v5, 3, v4')
    e('v_lshlrev_b32 v5, 4, v5')
    e(f's_lshl_b32 s32, {s(SW)}, 6')
    e('s_add_u32 s58, s58, s32')
    e('s_lshl_b32 s33, s58, 1')
    e(f's_add_u32 s33, s33, {WS_MOD + 5 * 2560}')
    e(f'buffer_load_dwordx4 {v(ET, 4)}, v5, s[4:7], s33 offen sc1')
    e(f'buffer_load_dwordx4 {v(ET + 4, 4)}, v5, s[4:7], s33 offen offset:64 sc1')
    e(f's_and_b32 s31, {s(P1)}, 1')
    e(f's_mul_i32 s56, s31, {16 * 3456}')
    e(f's_add_u32 s56, s56, {WS_HM}')
    e(f's_mul_i32 s31, s31, {16 * 1280}')
    e('s_add_u32 s59, s58, s31')
    e('s_waitcnt vmcnt(0)')
    e.label(name + '_loop')
    reset(e)
    e(f's_mul_i32 s55, {s(SEG)}, {32 * 3456}')
    e('s_add_u32 s55, s55, s56')
    e(f's_mul_i32 s33, {s(SEG)}, {32 * 1280}')
    e('s_add_u32 s33, s33, s59')
    e(f's_add_u32 s34, s33, {WS_X1}')
    cwait(name, K_UP, 27)

    def x1_loads():
        e('buffer_load_dwordx2 v[16:17], v4, s[4:7], s34 offen sc1', tag='r')
        e('buffer_load_dwordx2 v[18:19], v4, s[4:7], s34 offen offset:32 sc1', tag='r')
    S.main(55, x1_loads)
    mid(e)
    e.wait_vm('r')
    for ni in range(2):
        for h in range(2):
            a_ = S.acc(ni) + 2 * h
            rr = 16 + 2 * ni + h
            rnd2(e, a_, a_ + 1, 7)
            e(f'v_pk_mul_f32 {v(a_, 2)}, {v(a_, 2)}, {v(ET + 4 * ni + 2 * h, 2)}')
            rnd2(e, a_, a_ + 1, 7)
            e(f'v_lshlrev_b32 v6, 16, {v(rr)}')
            e(f'v_and_b32 v7, 0xffff0000, {v(rr)}')
            e(f'v_pk_add_f32 {v(a_, 2)}, {v(a_, 2)}, v[6:7]')
            e(f'v_cvt_pk_bf16_f32 {v(rr)}, {v(a_)}, {v(a_ + 1)}')
        e(f'buffer_store_dwordx2 {v(16 + 2 * ni, 2)}, v4, {s(S_OUT, 4)}, s33 offen offset:{32 * ni}')
    cdone(name, None)

    name = 'wk_mod'
    e.label(name)
    reset(e)
    load_srds(e, [('c', 88), ('wmod', 92)], tmp=96)
    e(f's_lshl_b32 s30, {s(SW)}, 6')
    e(f'v_add_u32 v0, s30, {v(VL)}')
    e(f's_cmp_ge_u32 {s(P1)}, {NMODA}')
    e(f's_cbranch_scc1 {name}_nz')
    e('v_mov_b32 v4, 0')
    e('v_mov_b32 v5, 0')
    e('v_lshlrev_b32 v2, 3, v0')
    e(f's_lshl_b32 s31, {s(P1)}, 11')
    e(f's_add_u32 s31, s31, {WS_CT2}')
    e('buffer_store_dwordx2 v[4:5], v2, s[4:7], s31 offen sc1')
    e(f's_cmp_lg_u32 {s(P1)}, 0')
    e(f's_cbranch_scc1 {name}_nz')
    for j in range(4):
        e(f'v_mov_b32 {v(4 + j)}, 0')
    e('v_lshlrev_b32 v2, 4, v0')
    e(f's_mov_b32 s31, {WS_CTR}')
    for i in range(5):
        e('buffer_store_dwordx4 v[4:7], v2, s[4:7], s31 offen sc1')
        e('s_add_u32 s31, s31, 4096')
    e.label(f'{name}_nz')
    reset(e)
    e.nop(2)
    e('v_lshlrev_b32 v14, 1, v0')
    e('v_lshlrev_b32 v2, 2, v0')
    e(f's_mov_b32 s30, {f32bits(-LOG2E):#x}')
    for i in range(3):
        e(f'buffer_load_ushort {v(4 + i)}, v14, s[88:91], 0 offen offset:{512 * i}', tag='c')
    e('v_and_b32 v8, 3, v0')
    e('v_lshrrev_b32 v9, 2, v0')
    e('v_mul_u32_u24 v10, 7680, v9')
    e('v_lshl_add_u32 v10, v8, 4, v10')
    e(f's_lshl_b32 s31, {s(P1)}, 6')
    for i in range(10):
        if i:
            e(f's_add_u32 s31, s31, {64 * 7680}')
        e(f'buffer_load_dwordx4 {v(32 + 4 * i, 4)}, v10, s[92:95], s31 offen', tag=('w', i))
    e.wait_vm('c')
    for i in range(3):
        e(f'v_lshlrev_b32 {v(4 + i)}, 16, {v(4 + i)}')
        silu_inplace(e, 4 + i, 7, 30)
        e(f'v_cvt_pk_bf16_f32 {v(4 + i)}, {v(4 + i)}, {v(4 + i)}')
        e(f'v_lshlrev_b32 {v(4 + i)}, 16, {v(4 + i)}')
        e(f'ds_write_b32 v2, {v(4 + i)} offset:{1024 * i}')
    e.wait_lg()
    e('s_barrier')
    e('v_lshlrev_b32 v11, 2, v9')
    for i in range(10):
        e(f'ds_read_b32 {v(112 + i)}, v11 offset:{256 * i}')
    for j in range(8):
        e(f'v_mov_b32 {v(16 + j)}, 0')
    e.wait_lg()
    for i in range(10):
        e.wait_vm(('w', i))
        for d in range(4):
            w = 32 + 4 * i + d
            e(f'v_lshlrev_b32 v12, 16, {v(w)}')
            e(f'v_and_b32 v13, 0xffff0000, {v(w)}')
            e(f'v_fmac_f32 {v(16 + 2 * d)}, v12, {v(112 + i)}')
            e(f'v_fmac_f32 {v(17 + 2 * d)}, v13, {v(112 + i)}')
    e('v_lshlrev_b32 v12, 7, v9')
    e('v_lshl_add_u32 v12, v8, 5, v12')
    e('ds_write_b128 v12, v[16:19] offset:4096')
    e('ds_write_b128 v12, v[20:23] offset:4112')
    e.wait_lg()
    e('s_barrier')
    e(f's_cmp_lg_u32 {s(SW)}, 0')
    e(f's_cbranch_scc1 {name}_done')
    e(f'v_and_b32 v12, 31, {v(VL)}')
    e(f'v_lshrrev_b32 v13, 5, {v(VL)}')
    e('v_lshlrev_b32 v12, 2, v12')
    e('v_lshl_add_u32 v13, v13, 12, v12')
    for i in range(32):
        e(f'ds_read_b32 {v(32 + i)}, v13 offset:{4096 + 128 * i}')
    e.wait_lg()
    for i in range(1, 32):
        e(f'v_add_f32 v32, v32, {v(32 + i)}')
    e('v_mov_b32 v33, v32')
    e('v_permlane32_swap_b32 v32, v33')
    e('v_add_f32 v32, v32, v33')
    e('v_cvt_pk_bf16_f32 v32, v32, v32')
    e('v_lshlrev_b32 v32, 16, v32')
    e(f's_lshl_b32 s31, {s(P1)}, 7')
    e(f's_add_u32 s31, s31, {WS_MOD}')
    e('buffer_store_dword v32, v12, s[4:7], s31 offen sc1')
    e.label(f'{name}_done')
    e(f's_mov_b32 s36, {D_MODB}')
    e(f's_cmp_lt_u32 {s(P1)}, {NMODA}')
    e(f's_cselect_b32 s36, {D_MOD}, s36')
    signal(e, name, None, B, loop, dbg_off='s36')


NAME = 'adaLN_cond__memory_aug_recurrent_mem_tr__glu_gated_swiglu__prompt_kernel'
if __name__ == '__main__':
    import argparse
    ap = argparse.ArgumentParser()
    ap.add_argument('--out', default='mega.s')
    ap.add_argument('--kw', default='')
    ap.add_argument('--log', action='store_true')
    ap.add_argument('--sleep', type=int, default=6)
    ap.add_argument('--list', action='store_true')
    ap.add_argument('--dsleep', type=int, default=24)
    ap.add_argument('--n0', type=int, default=14)
    args = ap.parse_args()
    LOG = args.log
    SLEEP = args.sleep
    DSLEEP = args.dsleep
    N0 = args.n0
    e = Em()
    nm = 'mega_kernel' if args.list else NAME
    e.raw(f'.globl {nm}')
    KNAME[0] = nm
    reset(e)
    kw = eval('dict(' + args.kw + ')')
    gen_chainX.gen_chain(e, name=nm, mega='wk_entry', nmoda=NMODA, segsig=WS_CT2 + K_CH * 128, kvt=32, kum=True, kvseg=WS_CT2 + K_KV * 128, **kw)
    gen_workers(e)
    if args.list:
        hdr = f"; @launch kernel={nm} grid=(256,1,1) block=(256,1,1) lds=163840\n"
    else:
        hdr = "; @launch grid=(256,1,1) block=(256,1,1) lds=163840\n"
    hdr += '.amdgcn_target "amdgcn-amd-amdhsa--gfx950"\n.text\n'
    open(args.out, 'w').write(hdr + e.text() + kd(nm, 512, 256))
```

```python
from emit import *
from layout import *
from gen_chain import Pool, f32bits, kd

S_WS = 4
S_DBG = 8
S_WQ = 12
S_WK = 16
S_WV = 20
S_WO = 24
S_H = 28
S_W = 29
S_STEP = 30
S_T0, S_T1, S_T2, S_T3 = 31, 32, 33, 34
S_MODE = 35
S_UNIT = 36
S_XCC = 37
S_C1 = 38
S_MASKLO = 40
S_LDSW = 42
S_SH13 = 43
S_MBP = 44
S_MSL = 48
S_M9D = 49
S_PBST = 50
S_MBL = 55
S_MBC = 56
S_MBN = 57
S_KXW = 58
S_KXM = 59
S_PBLD = 60
S_MDST = 61
S_VMO = 62
S_NR = 63
S_VB0, S_VB, S_MBL2, S_GOF2 = 66, 67, 68, 69
S_MBE0, S_MBD0, S_MBD2 = 73, 74, 47
S_GOF = 64
S_MBR2 = 65
S_VXO = 70
S_KMO = 71
S_WRM = 72
S_MBN2 = 75
S_STAMP = 76
S_SIG = 15
S_KVOK = 16

V_LANE16, V_IDX, V_AF, V_QKR, V_LDSW, V_QKW, V_OW, V_OR = range(8)
V_PBST, V_KXG, V_MBST, V_L8, V_WA, V_WT, V_M1, V_L64 = range(8, 16)
V_SEL = 16
V_ONES = 20
V_PM = 24
V_M2 = 26
NPERS = 28

NR_PING, NR_CAL, NR_VB = 8 * 16384, 9 * 16384, 16 * 16384
D_NEAR = 144
D_INIT, D_SLOW, D_PAIR = 132, 136, 144

_fj = [0]


def far_jump(e, label, sp):
    _fj[0] += 1
    here = f'Lfj{_fj[0]}'
    e(f's_getpc_b64 {s(sp, 2)}')
    e.label(here)
    e.raw(f'    s_add_u32 {s(sp)}, {s(sp)}, {label}-{here}')
    e.raw(f'    s_addc_u32 {s(sp + 1)}, {s(sp + 1)}, 0')
    e(f's_setpc_b64 {s(sp, 2)}')


def gen_chain(em, name='chain_kernel', mega=None, nmoda=0, pool_end=96, nsteps=64, stamps=False, stsel=(0, 1, 2, 3, 4, 5, 6, 7, 8, 9),
              hstamps=False, la_lds=5, afl=7, nvl=2, npre=4, noa=2, v_at=1, gdel=0, kdel=0, adel=3, nkl=4, wat=2, wat2=20, defer=True,
              warm=(('a', 0), ('a2', 1)), ncal=6, segsig=None, slow=True, early_poll=0, wfl='nt', kvt=32, kum=False, lagsig=True, kvseg=None,
              lds_un=(0, 1, 5, -9, -6, -3), dbg='', ldfl='nt'):
    L_MMEM = 0
    L_MQ = 10240
    L_MK = L_MQ + 2048
    L_O = L_MK + 2048
    L_KX = L_O + 2048
    L_VX = L_KX + 8192
    L_WB = L_VX + 8192
    NRING = 8
    WL = NRING * 4096
    assert L_WB + 4 * WL <= 163840
    e = em
    LN = 28
    NH1 = 10 - nvl

    ounits = [('o', t, p) for p in range(5) for t in range(2)]
    uorder = [(m, t) for t in range(10 - nkl) for m in 'qk'] + [(m, t) for m in 'qk' for t in range(10 - nkl, 10)] + [('v', t) for t in range(NH1, 10)]
    NQE = 40 - 2 * nkl
    NA = 2 * len(uorder)
    uorder += ounits
    order = [(un, tau) for un in uorder for tau in range(2)]
    n_reg = (512 - pool_end) // 8
    n_lds = len(order) - n_reg
    assert n_lds % 2 == 0 and n_lds <= 16, n_lds
    lun = sorted(x % len(uorder) for x in lds_un[:n_lds // 2])
    lun = [uorder[i] for i in lun]
    units = [un for un in uorder if un not in lun] + lun
    place = {}
    r = pool_end
    for i, un in enumerate(units):
        for tau in range(2):
            if un in lun:
                place[(un, tau)] = ('lds', 2 * (i % NRING) + tau)
            else:
                place[(un, tau)] = ('reg', r)
                r += 8
    assert r == 512

    em.raw('.p2align 8')
    em.raw(f'.type {name},@function')
    em.label(name)
    e('s_cmp_lt_u32 s2, 256')
    e(f's_cbranch_scc1 {name}_go')
    e('s_endpgm')
    e.label(f'{name}_go')
    if 'rt' in dbg:
        e('s_memrealtime s[96:97]')
    e('s_load_dwordx4 s[48:51], s[0:1], 16')
    e('s_load_dwordx4 s[52:55], s[0:1], 32')
    e('s_load_dwordx4 s[56:59], s[0:1], 112')
    e(f's_getreg_b32 {s(S_XCC)}, hwreg(HW_REG_XCC_ID)')
    e(f's_and_b32 {s(S_XCC)}, {s(S_XCC)}, 15')
    e('v_lshrrev_b32 v20, 6, v0')
    e('v_and_b32 v16, 63, v0')
    e(f'v_readfirstlane_b32 {s(S_W)}, v20')
    e('s_waitcnt lgkmcnt(0)')

    def srd(d, src, size):
        e(f's_mov_b32 {s(d)}, {s(src)}')
        e(f's_and_b32 {s(d + 1)}, {s(src + 1)}, 0xffff')
        e(f's_mov_b32 {s(d + 2)}, {size}')
        e(f's_mov_b32 {s(d + 3)}, 0x20000')
    srd(S_WQ, 48, 5242880)
    srd(S_WK, 50, 5242880)
    srd(S_WV, 52, 5242880)
    srd(S_WO, 54, 5242880)
    srd(S_DBG, 56, 256)
    srd(S_WS, 58, WS_SIZE)

    e(f's_and_b32 {s(S_MODE)}, s2, 7')
    e(f's_lshr_b32 {s(S_H)}, s2, 3')
    e(f's_cmp_eq_u32 {s(S_MODE)}, 0')
    e(f's_cbranch_scc1 {name}_hasrole')
    e(f's_bitcmp1_b32 0x82, {s(S_MODE)}')
    e(f's_cbranch_scc0 {name}_work')
    e(f's_and_b32 {s(S_T0)}, {s(S_XCC)}, 3')
    e(f's_cmp_lg_u32 {s(S_T0)}, 0')
    e(f's_cselect_b32 {s(S_T1)}, 1, 0')
    e(f's_cmp_eq_u32 {s(S_T0)}, 2')
    e(f's_cselect_b32 {s(S_T2)}, 1, 0')
    e(f's_cmp_eq_u32 {s(S_MODE)}, 1')
    e(f's_cselect_b32 {s(S_T1)}, {s(S_T1)}, {s(S_T2)}')
    e(f's_cmp_lg_u32 {s(S_W)}, 0')
    e(f's_cbranch_scc1 {name}_elected')
    e(f's_lshl_b32 {s(S_T0)}, 1, {s(S_H)}')
    e(f's_lshl_b32 {s(S_T2)}, {s(S_T1)}, 2')
    e(f'v_mov_b32 v20, {s(S_T0)}')
    e('v_mov_b32 v21, 0')
    e('s_mov_b64 exec, 1')
    e(f'buffer_atomic_or v20, v21, {s(S_DBG, 4)}, {s(S_T2)} offen offset:{D_PAIR} sc0')
    e.wait_vm()
    e('ds_write_b32 v21, v20')
    e('s_mov_b64 exec, -1')
    e.wait_lg()
    e.label(f'{name}_elected')
    e('s_barrier')
    e('v_mov_b32 v21, 0')
    e('ds_read_b32 v20, v21')
    e.wait_lg()
    e(f'v_readfirstlane_b32 {s(S_T0)}, v20')
    e('s_barrier')
    e(f's_lshr_b32 {s(S_T0)}, {s(S_T0)}, {s(S_H)}')
    e(f's_and_b32 {s(S_T0)}, {s(S_T0)}, 1')
    e(f's_xor_b32 {s(S_T1)}, {s(S_T1)}, {s(S_T0)}')
    e(f's_cbranch_scc1 {name}_hasrole')
    e(f's_mov_b32 {s(S_MODE)}, 7')
    e.label(f'{name}_work')
    if mega:
        far_jump(e, mega, 44)
    else:
        e('s_endpgm')
    e.label(f'{name}_hasrole')
    e(f'v_mov_b32 {v(LN)}, v16')

    g, c, rp, cp, g1, g2, sw = 16, 17, 18, 19, 20, 21, 22
    T = 23
    e(f'v_lshrrev_b32 {v(g)}, 4, {v(LN)}')
    e(f'v_and_b32 {v(c)}, 15, {v(LN)}')
    e(f'v_lshrrev_b32 {v(rp)}, 2, {v(c)}')
    e(f'v_and_b32 {v(cp)}, 3, {v(LN)}')
    e(f'v_and_b32 {v(g1)}, 1, {v(g)}')
    e(f'v_lshrrev_b32 {v(g2)}, 1, {v(g)}')
    e(f'v_lshl_add_u32 {v(sw)}, {v(g1)}, 1, {v(g2)}')
    e(f'v_lshlrev_b32 {v(V_LANE16)}, 4, {v(LN)}')
    e(f'v_lshlrev_b32 {v(V_L64)}, 6, {v(LN)}')
    e(f'v_lshlrev_b32 {v(V_WA)}, 7, {v(c)}')
    e(f'v_mov_b32 {v(V_M1)}, -1')
    e(f'v_and_b32 {v(T)}, 2, {v(LN)}')
    e(f'v_cmp_ne_u32 vcc, 0, {v(T)}')
    e(f'v_mov_b32 {v(T + 1)}, 0x4444')
    e(f'v_mov_b32 {v(T + 2)}, 0xeeee')
    e(f'v_cndmask_b32 {v(V_IDX)}, {v(T + 1)}, {v(T + 2)}, vcc')
    e(f'v_lshl_add_u32 {v(T)}, {v(g)}, 2, {v(rp)}')
    e(f'v_lshlrev_b32 {v(T + 1)}, 3, {v(cp)}')
    e(f'v_lshl_add_u32 {v(V_AF)}, {v(T)}, 5, {v(T + 1)}')
    e(f'v_and_b32 {v(T + 2)}, 1, {v(cp)}')
    e(f'v_lshlrev_b32 {v(T + 2)}, 3, {v(T + 2)}')
    e(f'v_lshl_add_u32 {v(V_QKR)}, {v(T)}, 4, {v(T + 2)}')
    e(f'v_add_u32 {v(V_QKR)}, {L_MQ}, {v(V_QKR)}')
    e(f's_lshl_b32 {s(S_T0)}, {s(S_W)}, 5')
    e(f'v_add_u32 {v(T)}, {s(S_T0)}, {v(c)}')
    e(f'v_lshlrev_b32 {v(T + 2)}, 2, {v(sw)}')
    e(f'v_lshl_add_u32 {v(V_QKW)}, {v(T)}, 4, {v(T + 2)}')
    e(f'v_add_u32 {v(V_QKW)}, {L_MQ}, {v(V_QKW)}')
    e(f's_lshl_b32 {s(S_T0)}, {s(S_W)}, 2')
    e(f'v_add_u32 {v(T)}, {s(S_T0)}, {v(g)}')
    e(f'v_and_b32 {v(T + 3)}, 7, {v(LN)}')
    e(f'v_lshl_add_u32 {v(T)}, {v(T)}, 3, {v(T + 3)}')
    e(f'v_lshlrev_b32 {v(V_OW)}, 4, {v(T)}')
    e(f'v_add_u32 {v(V_OW)}, {L_O}, {v(V_OW)}')
    e(f'v_and_b32 {v(T)}, 1, {v(rp)}')
    e(f'v_lshrrev_b32 {v(T + 2)}, 1, {v(rp)}')
    e(f'v_lshl_add_u32 {v(T)}, {v(T)}, 1, {v(T + 2)}')
    e(f'v_and_b32 {v(T + 2)}, 1, {v(LN)}')
    e(f'v_lshl_add_u32 {v(T)}, {v(T)}, 1, {v(T + 2)}')
    e(f'v_lshl_add_u32 {v(T)}, {v(g)}, 3, {v(T)}')
    e(f'v_lshrrev_b32 {v(T + 2)}, 1, {v(cp)}')
    e(f'v_lshl_add_u32 {v(T)}, {v(T + 2)}, 5, {v(T)}')
    e(f'v_lshlrev_b32 {v(V_OR)}, 4, {v(T)}')
    e(f'v_add_u32 {v(V_OR)}, {L_O}, {v(V_OR)}')
    e(f'v_lshl_add_u32 {v(T)}, {v(g1)}, 2, {v(cp)}')
    e(f'v_lshlrev_b32 {v(T)}, 4, {v(T)}')
    e(f'v_lshl_add_u32 {v(T)}, {v(g2)}, 3, {v(T)}')
    e(f'v_lshl_add_u32 {v(V_PBST)}, {v(rp)}, 12, {v(T)}')
    e(f'v_and_b32 {v(T)}, 4, {v(LN)}')
    e(f'v_lshl_add_u32 {v(T)}, {v(sw)}, 3, {v(T)}')
    e(f'v_lshl_add_u32 {v(T)}, {v(cp)}, 5, {v(T)}')
    e(f'v_lshlrev_b32 {v(T + 1)}, 27, {v(c)}')
    e(f'v_and_b32 {v(T + 1)}, 0x40000000, {v(T + 1)}')
    e(f'v_or_b32 {v(V_MBST)}, {v(T)}, {v(T + 1)}')
    e(f'v_lshlrev_b32 {v(V_L8)}, 3, {v(LN)}')
    e(f'v_lshlrev_b32 {v(T)}, 4, {v(g)}')
    e(f'v_lshl_add_u32 {v(V_KXG)}, {v(c)}, {6 if kum else 8}, {v(T)}')
    e(f's_mul_i32 {s(S_LDSW)}, {s(S_W)}, {WL}')
    e(f's_add_u32 {s(S_LDSW)}, {s(S_LDSW)}, {L_WB}')
    e(f'v_add_u32 {v(V_LDSW)}, {s(S_LDSW)}, {v(V_LANE16)}')
    VG_QKV, VG_O, VT_QKV, VT_O = 28, 29, 30, 31
    e(f'v_lshrrev_b32 {v(T + 2)}, 1, {v(rp)}')
    e(f'v_and_b32 {v(T + 3)}, 1, {v(rp)}')
    e(f'v_lshlrev_b32 {v(T + 1)}, 3, {v(cp)}')
    e(f'v_lshl_add_u32 {v(T + 3)}, {v(g2)}, 2, {v(T + 3)}')
    e(f'v_lshl_add_u32 {v(T + 1)}, {v(T + 3)}, 8, {v(T + 1)}')
    e(f's_lshl_b32 {s(S_T0)}, {s(S_W)}, 6')
    e(f's_add_u32 {s(S_T0)}, {s(S_T0)}, {L_WB}')
    e(f'v_add_u32 {v(T + 1)}, {s(S_T0)}, {v(T + 1)}')
    assert WL == 32768
    e(f'v_lshl_add_u32 {v(T + 4)}, {v(g1)}, 1, {v(T + 2)}')
    e(f'v_lshl_add_u32 {v(VT_QKV)}, {v(T + 4)}, 15, {v(T + 1)}')
    e(f'v_lshl_add_u32 {v(T + 4)}, {v(T + 2)}, 1, {v(g1)}')
    e(f'v_lshl_add_u32 {v(VT_O)}, {v(T + 4)}, 15, {v(T + 1)}')
    e(f'v_lshlrev_b32 {v(T + 1)}, 4, {v(c)}')
    e(f'v_mul_u32_u24 {v(VG_O)}, 1280, {v(g)}')
    e(f'v_add_u32 {v(VG_O)}, {v(VG_O)}, {v(T + 1)}')
    e(f'v_lshl_add_u32 {v(VG_QKV)}, {v(g)}, 13, {v(T + 1)}')
    e(f's_lshl_b32 {s(S_T2)}, {s(S_H)}, 8')
    e(f's_lshl_b32 {s(S_T0)}, {s(S_W)}, 17')
    e(f's_add_u32 {s(S_T2)}, {s(S_T2)}, {s(S_T0)}')
    e(f's_mul_i32 {s(S_T3)}, {s(S_H)}, {128 * 1280}')
    e(f's_mul_i32 {s(S_T0)}, {s(S_W)}, {16 * 1280}')
    e(f's_add_u32 {s(S_T3)}, {s(S_T3)}, {s(S_T0)}')
    e(f's_lshl_b32 {s(S_PBST)}, {s(S_W)}, 14')
    e(f's_lshl_b32 {s(S_T0)}, {s(S_H)}, 7')
    e(f's_add_u32 {s(S_PBST)}, {s(S_PBST)}, {s(S_T0)}')
    e(f's_mov_b32 {s(S_STEP)}, 0')
    e('s_mov_b32 s3, 0')
    e(f's_mov_b32 {s(S_MSL)}, 0')
    e(f's_lshl_b32 {s(S_T1)}, {s(S_H)}, 12')
    e(f's_add_u32 {s(S_KMO)}, {s(S_T1)}, {WS_KM}')
    e(f's_lshl_b32 {s(S_T0)}, {s(S_W)}, 9')
    e(f's_add_u32 {s(S_VMO)}, {s(S_KMO)}, {s(S_T0)}')
    e(f's_add_u32 {s(S_NR)}, {s(S_WS)}, 0x5fffff')
    e(f's_and_b32 {s(S_NR)}, {s(S_NR)}, 0xffe00000')
    e(f's_sub_u32 {s(S_NR)}, {s(S_NR)}, {s(S_WS)}')
    e(f's_lshl_b32 {s(S_T0)}, {s(S_W)}, 10')
    e(f's_lshr_b32 {s(S_T1)}, {s(S_H)}, 1')
    e(f's_lshl_b32 {s(S_T1)}, {s(S_T1)}, 14')
    e(f's_add_u32 {s(S_VB0)}, {s(S_T0)}, {s(S_T1)}')
    e(f's_and_b32 {s(S_T1)}, {s(S_H)}, 1')
    e(f's_lshl_b32 {s(S_T1)}, {s(S_T1)}, 12')
    e(f's_add_u32 {s(S_VB0)}, {s(S_VB0)}, {s(S_T1)}')
    e(f's_add_u32 {s(S_VB0)}, {s(S_VB0)}, {NR_VB}')

    def load_weights(ulist, place_, vt_o, tmpbase, first, pre=False):
        def issue(i):
            un = ulist[i]
            pos = i % NRING
            for q in range(4):
                if un[0] == 'o':
                    _, t, p = un
                    e(f's_add_u32 {s(S_T0)}, {s(S_T3)}, {(64 * t + 4 * q) * 1280 + 256 * p}')
                    srdn, vg = S_WO, VG_O
                else:
                    m, t = un
                    e(f's_add_u32 {s(S_T0)}, {s(S_T2)}, {(64 * t + 4 * q) * 8192}')
                    srdn, vg = {'q': S_WQ, 'k': S_WK, 'v': S_WV}[m], VG_QKV
                e(f's_add_u32 m0, {s(S_LDSW)}, {pos * 4096 + q * 1024}')
                e(f'buffer_load_dwordx4 {v(vg)}, {s(srdn, 4)}, {s(S_T0)} offen {wfl} lds', tag=('dma', i))

        def wback(i):
            if i >= 0 and place_[(ulist[i], 0)][0] == 'lds':
                pos = i % NRING
                assert place_[(ulist[i], 1)][1] == 2 * pos + 1 and i + NRING >= len(ulist)
                for n in range(4):
                    e(f'ds_write_b128 {v(V_LDSW)}, {v(tmpbase + 16 * (i & 1) + 4 * n, 4)} offset:{pos * 4096 + 1024 * n}')

        def process(i):
            un = ulist[i]
            pos = i % NRING
            e.wait_vm(('dma', i))
            e('s_barrier')
            if i >= 1 and i - 1 + NRING < len(ulist):
                issue(i - 1 + NRING)
            wback(i - 1)
            vt = vt_o if un[0] == 'o' else VT_QKV
            for tau in range(2):
                kind, loc = place_[(un, tau)]
                dst = loc if kind == 'reg' else tmpbase + 16 * (i & 1) + 8 * tau
                for n in range(4):
                    off = (8 * (n >> 1) + 2 * (n & 1)) * 256 + 32 * tau
                    e(f'ds_read_b64_tr_b16 {u(dst + 2 * n, 2)}, {v(vt)} offset:{pos * 4096 + off}')
            e.wait_lg()
        n = len(ulist)
        if pre:
            first()
        for i in range(NRING):
            issue(i)
        if not pre:
            first()
        for i in range(n):
            process(i)
        e('s_barrier')
        wback(n - 1)

    def init_done(lab, inc='1'):
        e('s_waitcnt vmcnt(0)')
        e('s_barrier')
        e(f's_cmp_lg_u32 {s(S_W)}, 0')
        e(f's_cbranch_scc1 {lab}')
        e(f'v_mov_b32 v44, {D_INIT}')
        e(f'v_mov_b32 v45, {inc}')
        e('s_mov_b64 exec, 1')
        e(f'buffer_atomic_add v45, v44, {s(S_DBG, 4)}, 0 offen')
        e('s_mov_b64 exec, -1')
        e.label(lab)
        e.vm = []
        e.hist = []

    def init_wait(lab, t):
        e(f'v_mov_b32 {v(t + 2)}, 128')
        e.label(lab)
        wd()
        e('s_sleep 8')
        e(f'buffer_load_dwordx2 {v(t, 2)}, {v(t + 2)}, {s(S_DBG, 4)}, 0 offen sc1')
        e('s_waitcnt vmcnt(0)')
        e(f'v_readfirstlane_b32 {s(S_T0)}, {v(t)}')
        e(f'v_readfirstlane_b32 {s(S_T1)}, {v(t + 1)}')
        e(f's_and_b32 {s(S_T0)}, {s(S_T1)}, 0xffff')
        e(f's_cmp_lt_u32 {s(S_T0)}, 64')
        e(f's_cbranch_scc1 {lab}')
        e(f's_lshr_b32 {s(S_T1)}, {s(S_T1)}, 16')
        if 'diag' in dbg:
            e(f's_and_b32 {s(S_T0)}, s2, 7')
            e(f's_lshl_b32 {s(S_T0)}, {s(S_T0)}, 3')
            e(f's_add_u32 {s(S_T0)}, {s(S_T0)}, 8')
            e(f'v_mov_b32 {v(t)}, {s(S_XCC)}')
            e(f'v_mov_b32 {v(t + 1)}, {s(S_T1)}')
            e(f'v_mov_b32 {v(t + 3)}, {s(S_T0)}')
            e(f'buffer_store_dwordx2 {v(t, 2)}, {v(t + 3)}, {s(S_DBG, 4)}, 0 offen')
            e('s_waitcnt vmcnt(0)')
        e(f's_cmp_ge_u32 {s(S_T1)}, 16')
        e(f's_cselect_b32 {s(S_T0)}, 8192, 0')
        if 'far' in dbg:
            e(f's_xor_b32 {s(S_T0)}, {s(S_T0)}, 8192')
        e(f's_add_u32 {s(S_NR)}, {s(S_NR)}, {s(S_T0)}')
        e(f's_add_u32 {s(S_VB0)}, {s(S_VB0)}, {s(S_NR)}')
        e(f's_mov_b32 {s(S_VB)}, {s(S_VB0)}')
        if nmoda:
            e(f'v_mov_b32 {v(t + 1)}, 0')
            e.label(lab + 'm')
            e(f'buffer_load_dword {v(t)}, {v(t + 1)}, {s(S_DBG, 4)}, 0 offen sc1')
            e('s_waitcnt vmcnt(0)')
            e(f'v_readfirstlane_b32 {s(S_T0)}, {v(t)}')
            e(f's_cmp_lt_u32 {s(S_T0)}, {nmoda}')
            e(f's_cbranch_scc1 {lab}m')

    def signal_block(t0):
        e(f's_lshl_b32 {s(S_T2)}, {s(S_T2)}, 7')
        e(f's_add_u32 {s(S_T2)}, {s(S_T2)}, {WS_CTR + C_CH * 128}')
        e(f'v_mov_b32 {v(t0)}, 1')
        e('s_mov_b64 exec, 1')
        e(f'buffer_atomic_add {v(t0)}, {v(V_LANE16)}, {s(S_WS, 4)}, {s(S_T2)} offen')
        e('s_mov_b64 exec, -1')

    def seg_signal():
        e('s_mov_b64 exec, 1')
        e(f'buffer_atomic_sub {v(V_M1)}, {v(V_LANE16)}, {s(S_WS, 4)}, {s(S_SIG)} offen')
        e('s_mov_b64 exec, -1')
        e(f's_add_u32 {s(S_SIG)}, {s(S_SIG)}, 128')

    def step_signal(L):
        if segsig is not None:
            return
        e(f's_and_b32 {s(S_T2)}, {s(S_STEP)}, 3')
        e(f's_lshl_b32 {s(S_T2)}, {s(S_T2)}, 2')
        e(f's_add_u32 {s(S_T2)}, {s(S_T2)}, {s(S_W)}')
        e(f's_cmp_lg_u32 {s(S_T2)}, 3')
        e(f's_cbranch_scc1 {L}_nosig')
        e(f's_cmp_eq_u32 {s(S_STEP)}, 0')
        e(f's_cbranch_scc1 {L}_nosig')
        e.cond_begin()
        e(f's_lshr_b32 {s(S_T2)}, {s(S_STEP)}, 2')
        e(f's_sub_u32 {s(S_T2)}, {s(S_T2)}, 1')
        signal_block(V_WT)
        e.cond_end()
        e.label(f'{L}_nosig')

    def tl(i):
        if 'tl' in dbg:
            e(f's_memrealtime {s(84 + 2 * i, 2)}')

    def tl_out(role, t):
        if 'tl' in dbg:
            e('s_waitcnt lgkmcnt(0)')
            for i in range(4):
                e(f'v_mov_b32 {v(t + i)}, {s(84 + 2 * i)}')
            e(f's_lshl_b32 {s(S_T0)}, {s(S_H)}, 2')
            e(f's_add_u32 {s(S_T0)}, {s(S_T0)}, {s(S_W)}')
            e(f's_lshl_b32 {s(S_T0)}, {s(S_T0)}, 6')
            e(f's_add_u32 {s(S_T0)}, {s(S_T0)}, {s(S_STEP)}')
            e(f's_lshl_b32 {s(S_T0)}, {s(S_T0)}, 4')
            e(f's_add_u32 {s(S_T0)}, {s(S_T0)}, {0x0F100000 + role * 0x40000}')
            e('s_mov_b64 exec, 1')
            e(f'buffer_store_dwordx4 {v(t, 4)}, {v(V_LANE16)}, {s(S_WS, 4)}, {s(S_T0)} offen')
            e('s_mov_b64 exec, -1')
            e.nop(2)

    def wd():
        if 'wd' in dbg:
            e('s_add_u32 s3, s3, 1')
            e('s_cmp_gt_u32 s3, 0x40000')
            _fj[0] += 1
            e(f's_cbranch_scc0 Lwd{_fj[0]}')
            e('s_endpgm')
            e.label(f'Lwd{_fj[0]}')

    def run(mf, side, ratio=2):
        side = list(side)
        for f in mf:
            f()
            for _ in range(ratio):
                if side:
                    side.pop(0)()
        for f in side:
            f()

    def fold(acc, dst):
        return [lambda: e(f'v_pk_add_f32 {v(acc, 2)}, {v(acc, 2)}, {v(acc + 2, 2)}'),
                lambda: e(f'v_cvt_pk_bf16_f32 {v(dst)}, {v(acc)}, {v(acc + 1)}')]

    def stamp_init():
        for i in range(17, 28):
            e(f's_mov_b32 {s(i)}, 0')
        e('s_memtime s[100:101]')
        e('s_waitcnt lgkmcnt(0)')
        for i in range(10):
            e(f's_mov_b32 {s(S_STAMP + 2 * i)}, s100')

    def stamp_acc(n):
        e('s_waitcnt lgkmcnt(0)')
        e(f's_sub_u32 {s(S_T0)}, {s(S_STAMP)}, s100')
        e(f's_add_u32 s17, s17, {s(S_T0)}')
        for i in range(n - 1):
            e(f's_sub_u32 {s(S_T0)}, {s(S_STAMP + 2 * i + 2)}, {s(S_STAMP + 2 * i)}')
            e(f's_add_u32 {s(18 + i)}, {s(18 + i)}, {s(S_T0)}')
        e(f's_mov_b32 s100, {s(S_STAMP + 2 * (n - 1))}')

    def stamp_out():
        e('v_mov_b32 v40, 0')
        for i in range(11):
            e(f'v_writelane_b32 v40, {s(17 + i)}, {i}')
        e(f'v_lshrrev_b32 v41, 2, {v(V_LANE16)}')
        e(f's_lshl_b32 {s(S_T0)}, {s(S_H)}, 2')
        e(f's_add_u32 {s(S_T0)}, {s(S_T0)}, {s(S_W)}')
        e(f's_lshl_b32 {s(S_T0)}, {s(S_T0)}, 8')
        e(f's_add_u32 {s(S_T0)}, {s(S_T0)}, 0x0F000000')
        e(f'buffer_store_dword v40, v41, {s(S_WS, 4)}, {s(S_T0)} offen')

    e(f's_cmp_eq_u32 {s(S_MODE)}, 0')
    e(f's_cbranch_scc1 {name}_chain')
    far_jump(e, f'{name}_helper', 44)
    e.label(f'{name}_chain')

    pool = Pool(NPERS, pool_end)
    cc = f32bits((128 ** -0.5) * 1.4426950408889634)
    e(f's_mov_b32 {s(S_C1)}, {cc:#x}')
    e(f's_mov_b32 {s(S_C1 + 1)}, {cc:#x}')
    e(f's_mov_b32 {s(S_MASKLO)}, -1')
    e(f's_mov_b32 {s(S_MASKLO + 1)}, 0')
    e(f's_lshl_b32 {s(S_T0)}, {s(S_H)}, 1')
    e(f's_add_u32 {s(S_T0)}, {s(S_T0)}, {s(S_W)}')
    e(f's_add_u32 {s(S_UNIT)}, {s(S_T0)}, 16')
    e(f's_cmp_lt_u32 {s(S_H)}, 16')
    e(f's_cselect_b32 {s(S_T0)}, {s(S_H)}, 255')
    e(f's_cmp_eq_u32 {s(S_W)}, 2')
    e(f's_cselect_b32 {s(S_UNIT)}, {s(S_T0)}, {s(S_UNIT)}')
    e(f's_cmp_eq_u32 {s(S_W)}, 3')
    e(f's_cselect_b32 {s(S_UNIT)}, 255, {s(S_UNIT)}')
    e(f's_mul_i32 {s(S_GOF)}, {s(S_W)}, 2560')

    def chain_init():
        e('s_load_dwordx2 s[76:77], s[0:1], 8')
        for j in range(4):
            e(f'v_mov_b32 {v(40 + j)}, -1')
        e(f's_lshl_b32 {s(S_T0)}, {s(S_H)}, 2')
        e(f's_add_u32 {s(S_T0)}, {s(S_T0)}, {s(S_W)}')
        e(f's_mul_i32 {s(S_T1)}, {s(S_T0)}, 2560')
        for sl_ in range(2):
            e(f's_add_u32 s78, {s(S_T1)}, {WS_PB + sl_ * PB_STRIDE}')
            for i in range(3):
                e(f'buffer_store_dwordx4 v[40:43], {v(V_LANE16)}, {s(S_WS, 4)}, s78 offen offset:{1024 * i} sc1')
        e(f's_lshl_b32 s78, {s(S_T0)}, 10')
        e(f's_add_u32 s79, s78, {WS_MB + MB_STRIDE}')
        e(f'buffer_store_dwordx4 v[40:43], {v(V_LANE16)}, {s(S_WS, 4)}, s79 offen sc1')
        e(f's_add_u32 s79, s78, {s(S_NR)}')
        e('s_add_u32 s79, s79, 32768')
        e(f's_cmp_ge_u32 {s(S_T0)}, 96')
        e('s_cselect_b32 s79, 0x40000000, s79')
        e(f'buffer_store_dwordx4 v[40:43], {v(V_LANE16)}, {s(S_WS, 4)}, s79 offen sc1')
        e('s_waitcnt lgkmcnt(0)')
        e('s_mov_b32 s80, s76')
        e('s_and_b32 s81, s77, 0xffff')
        e('s_mov_b32 s82, 10240')
        e('s_mov_b32 s83, 0x20000')
        e(f's_cmp_ge_u32 {s(S_T0)}, 40')
        e(f's_cbranch_scc1 {name}_nom0')
        e(f's_lshl_b32 s78, {s(S_T0)}, 6')
        e(f'v_lshrrev_b32 v44, 4, {v(V_LANE16)}')
        e('v_add_u32 v44, s78, v44')
        e('v_and_b32 v45, 1, v44')
        e('v_bfe_u32 v46, v44, 1, 2')
        e('v_bfe_u32 v47, v44, 3, 4')
        e('v_lshrrev_b32 v48, 7, v44')
        e('v_lshl_add_u32 v47, v45, 4, v47')
        e('v_lshl_add_u32 v47, v48, 5, v47')
        e('v_mul_u32_u24 v46, 2560, v46')
        e('v_lshl_add_u32 v46, v47, 1, v46')
        e('buffer_load_ushort v45, v46, s[80:83], 0 offen')
        e('buffer_load_ushort v47, v46, s[80:83], 0 offen offset:1280')
        e('v_lshlrev_b32 v44, 2, v44')
        e('s_waitcnt vmcnt(0)')
        e('v_lshl_or_b32 v45, v47, 16, v45')
        e('v_min_u32 v45, 0xfffffffe, v45')
        e(f's_mov_b32 s78, {WS_MB}')
        e(f's_cmp_ge_u32 {s(S_T0)}, 32')
        e('s_cselect_b32 s79, 8192, 0')
        e(f's_add_u32 s79, s79, {s(S_NR)}')
        e('s_add_u32 s80, s79, 8192')
        e(f'buffer_store_dword v45, v44, {s(S_WS, 4)}, s78 offen sc1')
        e(f'buffer_store_dword v45, v44, {s(S_WS, 4)}, s79 offen sc1')
        e(f'buffer_store_dword v45, v44, {s(S_WS, 4)}, s80 offen sc1')
        e.label(f'{name}_nom0')
        e(f's_lshl_b32 {s(S_T0)}, 1, {s(S_XCC)}')
        e(f'v_mov_b32 v44, {D_SLOW}')
        e(f'v_mov_b32 v45, {s(S_T0)}')
        e(f's_cmp_eq_u32 {s(S_W)}, 0')
        e('s_cselect_b64 exec, 1, 0')
        e(f'buffer_atomic_or v45, v44, {s(S_DBG, 4)}, 0 offen')
        e('s_mov_b64 exec, -1')
        init_done(f'{name}_noib')

    load_weights(units, place, VT_O, 48, chain_init)
    e.wait_lg()
    e('s_barrier')

    TT = NPERS
    e(f'v_and_b32 {v(TT)}, 16, {v(V_LANE16)}')
    e(f's_mov_b32 {s(S_T0)}, 0x3f80')
    e(f'v_lshlrev_b32 {v(TT)}, {v(TT)}, {s(S_T0)}')
    e(f'v_bfe_u32 {v(TT + 1)}, {v(V_LANE16)}, 5, 2')
    for rr in range(4):
        e(f'v_cmp_eq_u32 vcc, {rr}, {v(TT + 1)}')
        e(f'v_cndmask_b32 {v(V_SEL + rr)}, 0, {v(TT)}, vcc')
        e(f'v_mov_b32 {v(V_ONES + rr)}, 0x3f803f80')
    e(f'v_mov_b32 {v(V_PM + 1)}, 0')
    e(f'v_mov_b32 {v(V_PM + 2)}, 0')
    e(f's_add_u32 {s(S_MBP)}, {s(S_GOF)}, {WS_MB}')
    e(f's_add_u32 {s(S_PBST)}, {s(S_PBST)}, {WS_PB}')
    for p in range(1, 5):
        e(f's_add_u32 {s(S_PBST + p)}, {s(S_PBST)}, {p * 65536}')
    e(f's_lshl_b32 {s(S_T0)}, {s(S_UNIT)}, 12')
    e(f's_add_u32 {s(S_PBLD)}, {s(S_T0)}, {WS_PB}')
    e(f's_lshl_b32 {s(S_MBL)}, {s(S_UNIT)}, 7')
    e(f's_add_u32 {s(S_MBL)}, {s(S_MBL)}, {WS_MB}')
    e(f's_mov_b32 {s(S_MBC)}, {s(S_MBL)}')
    e(f's_add_u32 {s(S_MBN)}, {s(S_MBL)}, {MB_STRIDE}')
    e(f's_lshl_b32 {s(S_SH13)}, {s(S_H)}, 13')
    e(f's_lshl_b32 {s(S_T0)}, {s(S_W)}, 11')
    e(f's_add_u32 {s(S_VXO)}, {s(S_T0)}, {s(S_SH13)}')
    e(f's_add_u32 {s(S_WRM)}, {s(S_VXO)}, {WS_KX + 32 * 8192}')
    e(f's_add_u32 {s(S_VXO)}, {s(S_VXO)}, {WS_VXT}')
    e(f's_add_u32 {s(S_KXM)}, {s(S_T0)}, {L_KX}')
    e(f's_lshr_b32 {s(S_T0)}, {s(S_W)}, 1')
    e(f's_lshl_b32 {s(S_T0)}, {s(S_T0)}, {10 if kum else 12}')
    e(f's_and_b32 {s(S_T1)}, {s(S_W)}, 1')
    e(f's_lshl_b32 {s(S_T1)}, {s(S_T1)}, {12 if kum else 7}')
    e(f's_add_u32 {s(S_KXW)}, {s(S_T0)}, {s(S_T1)}')
    e(f's_add_u32 {s(S_KXW)}, {s(S_KXW)}, {s(S_SH13)}')
    e(f's_add_u32 {s(S_KXW)}, {s(S_KXW)}, {WS_KX}')

    def kx_items():
        return [
            lambda: e(f's_mov_b32 m0, {s(S_KXM)}'),
            lambda: e(f's_add_u32 {s(S_T0)}, {s(S_KXW)}, {2048 if kum else 64}'),
            lambda: e(f'buffer_load_dwordx4 {v(V_KXG)}, {s(S_WS, 4)}, {s(S_KXW)} offen {ldfl} lds', tag='kx'),
            lambda: e(f's_add_u32 m0, {s(S_KXM)}, 1024'),
            lambda: e(f's_add_u32 {s(S_KXW)}, {s(S_KXW)}, {32 * 8192}'),
            lambda: e(f'buffer_load_dwordx4 {v(V_KXG)}, {s(S_WS, 4)}, {s(S_T0)} offen {ldfl} lds', tag='kx'),
            lambda: e(f's_add_u32 m0, {s(S_KXM)}, 8192'),
            lambda: e(f's_nop 0'),
            lambda: e(f'buffer_load_dwordx4 {v(V_LANE16)}, {s(S_WS, 4)}, {s(S_VXO)} offen {ldfl} lds', tag='kx'),
            lambda: e(f'buffer_load_dwordx4 {v(V_LANE16)}, {s(S_WS, 4)}, {s(S_VXO)} offen offset:1024 {ldfl} lds', tag='kx'),
            lambda: e(f's_add_u32 {s(S_VXO)}, {s(S_VXO)}, {32 * 8192}'),
        ]

    def kv_wait(lab, t1):
        e(f's_cmp_ge_u32 {s(S_KVOK)}, {s(S_T2)}')
        e(f's_cbranch_scc1 {lab}_ok')
        e.cond_begin()
        if kvseg:
            e.label(f'{lab}_spin')
            e(f's_lshl_b32 {s(S_T3)}, {s(S_KVOK)}, 7')
            e(f's_add_u32 {s(S_T3)}, {s(S_T3)}, {kvseg}')
            e(f'buffer_load_dword {v(t1)}, {v(V_WA)}, {s(S_WS, 4)}, {s(S_T3)} offen sc1')
            e('s_waitcnt vmcnt(0)')
            e(f'v_cmp_le_u32 vcc, {kvt}, {v(t1)}')
            e(f's_and_b32 {s(S_T3)}, vcc_lo, 0xffff')
            e(f's_ff0_i32_b32 {s(S_T3)}, {s(S_T3)}')
            e(f's_add_u32 {s(S_KVOK)}, {s(S_KVOK)}, {s(S_T3)}')
        else:
            e(f's_mov_b32 {s(S_T3)}, {WS_CTR + C_KV * 128}')
            e.label(f'{lab}_spin')
            e(f'buffer_load_dword {v(t1)}, {v(V_WA)}, {s(S_WS, 4)}, {s(S_T3)} offen sc1')
            e('s_waitcnt vmcnt(0)')
            e(f'v_cmp_le_u32 vcc, {kvt}, {v(t1)}')
            e(f's_and_b32 {s(S_KVOK)}, vcc_lo, 0xffff')
            e(f's_ff0_i32_b32 {s(S_KVOK)}, {s(S_KVOK)}')
        e(f's_cmp_ge_u32 {s(S_KVOK)}, {s(S_T2)}')
        e(f's_cbranch_scc0 {lab}_spin')
        e.cond_end()
        e.label(f'{lab}_ok')

    def claim(b, n):
        for i in range(n):
            assert (b + i) in pool.free_, ('claim', b, n)
            pool.free_.remove(b + i)

    ACC = pool.must(24)
    VACC = ACC + 16
    V_EX = V_L8
    if 'rt' in dbg:
        e('s_memrealtime s[94:95]')
        e('s_waitcnt lgkmcnt(0)')
    init_wait(f'{name}_ibw', ACC)
    e(f's_lshl_b32 {s(S_MBL2)}, {s(S_UNIT)}, 7')
    e(f's_cmp_ge_u32 {s(S_UNIT)}, 64')
    e(f's_cselect_b32 {s(S_T0)}, 8192, 0')
    e(f's_add_u32 {s(S_MBL2)}, {s(S_MBL2)}, {s(S_T0)}')
    e(f's_add_u32 {s(S_MBL2)}, {s(S_MBL2)}, {s(S_NR)}')
    e(f's_cmp_ge_u32 {s(S_UNIT)}, 80')
    e(f's_cselect_b32 {s(S_MBL2)}, 0x40000000, {s(S_MBL2)}')
    e(f's_cmp_lt_u32 {s(S_UNIT)}, {8 * NH1 if defer else 80}')
    e(f's_cselect_b32 {s(S_MBE0)}, {s(S_MBL2)}, 0x40000000')
    e(f's_cselect_b32 {s(S_MBD0)}, 0x40000000, {s(S_MBL2)}')
    e(f's_add_u32 {s(S_MBN2)}, {s(S_MBE0)}, 32768')
    e(f's_mov_b32 {s(S_MBD2)}, 0x40000000')
    e(f's_add_u32 {s(S_MBR2)}, {s(S_MBL2)}, 65536')
    e(f'buffer_load_dword {v(ACC)}, {v(ACC + 2)}, {s(S_DBG, 4)}, 0 offen offset:8 sc1')
    e('s_waitcnt vmcnt(0)')
    e(f'v_readfirstlane_b32 {s(S_MODE)}, {v(ACC)}')
    e(f's_sub_u32 {s(S_T0)}, {s(S_MODE)}, 1')
    e(f's_and_b32 {s(S_MODE)}, {s(S_MODE)}, {s(S_T0)}')
    if 'slow' in dbg:
        e(f's_mov_b32 {s(S_MODE)}, 1')
    if mega:
        e(f's_mov_b32 {s(S_KVOK)}, 0')
        e(f's_mov_b32 {s(S_T2)}, 1')
        kv_wait(f'{name}_kv0', ACC)
    pre_slots = [sl for sl in order if place[sl][0] == 'lds'][:npre]
    PRE = [pool.alloc(8, 8, top=True) for _ in pre_slots]

    def pre_load():
        for sl, b in zip(pre_slots, PRE):
            loc = place[sl][1] * 2048
            e(f'ds_read_b128 {v(b, 4)}, {v(V_LDSW)} offset:{loc}')
            e(f'ds_read_b128 {v(b + 4, 4)}, {v(V_LDSW)} offset:{loc + 1024}')
    pre_load()
    for it in kx_items():
        it()
    e('s_waitcnt vmcnt(0) lgkmcnt(0)')
    e.vm = []
    e.lg = []
    if 'rt' in dbg:
        e('s_memrealtime s[98:99]')
        e('s_waitcnt lgkmcnt(0)')
    if 'tot' in dbg:
        e('s_memtime s[96:97]')
        e('s_waitcnt lgkmcnt(0)')
    if stamps:
        stamp_init()
    if slow:
        e(f's_cmp_lg_u32 {s(S_MODE)}, 0')
        e(f's_cbranch_scc1 {name}_slow')

    def body(sc, L):
        stamp_i = [0]
        call_i = [0]

        def stamp():
            call_i[0] += 1
            if stamps and (call_i[0] - 1) in stsel:
                e(f's_memtime {s(S_STAMP + 2 * stamp_i[0], 2)}')
                stamp_i[0] += 1

        e.label(L)
        e.hist = []
        e.vm = []
        e.lg = []
        stamp()
        G0, GM = ACC, ACC + 12
        e(f'v_add_u32 {v(GM + 1)}, {s(S_GOF)}, {v(V_LANE16)}')
        e('s_barrier')
        if adel:
            e(f's_sleep {adel}')
        e.label(f'{L}_pollA')
        e.hist = []
        wd()
        if stamps:
            e('s_add_u32 s27, s27, 0x10000')
        for i in range(3):
            e(f'buffer_load_dwordx4 {v(G0 + 4 * i, 4)}, {v(V_LANE16)}, {s(S_WS, 4)}, {s(S_MBP)} offen offset:{(0, 1024, 1536)[i]} sc1')
        for i in range(3):
            e(f's_waitcnt vmcnt({2 - i})')
            e(f'ds_write_b128 {v(GM + 1)}, {v(G0 + 4 * i, 4)} offset:{(0, 1024, 1536)[i]}')
        e(f'v_max3_u32 {v(GM)}, {v(G0)}, {v(G0 + 4)}, {v(G0 + 8)}')
        e(f'v_cmp_eq_u32 vcc, -1, {v(GM)}')
        e('s_mov_b64 exec, vcc')
        e(f's_cbranch_execnz {L}_pollA')
        e('s_mov_b64 exec, -1')
        e('s_waitcnt lgkmcnt(0)')
        e.label(f'{L}_gd')
        e('s_barrier')
        e.vm = []
        e.lg = []
        e.hist = []
        stamp()
        tl(0)
        pool.free(VACC, 8)

        loaded = {sl: b for sl, b in zip(pre_slots, PRE)}
        lds_pending = [sl for sl in order if place[sl][0] == 'lds' and sl not in loaded]
        st = dict(reserve=8, aflim=10)

        def pump_lds(cur_idx, force=False):
            while lds_pending and order.index(lds_pending[0]) <= cur_idx + la_lds:
                need = force and order.index(lds_pending[0]) <= cur_idx
                b = pool.alloc(8, 8, top=True, reserve=0 if need else st['reserve'])
                if b is None:
                    assert not need, 'no buffer for lds slot'
                    return
                lead = order.index(lds_pending[0]) - cur_idx
                if lead < 4 and cur_idx != NA:
                    print('; WARNING short lds lead', order.index(lds_pending[0]), lead)
                sl = lds_pending.pop(0)
                loc = place[sl][1] * 2048
                e(f'ds_read_b128 {v(b, 4)}, {v(V_LDSW)} offset:{loc}', tag=('lw', sl))
                e(f'ds_read_b128 {v(b + 4, 4)}, {v(V_LDSW)} offset:{loc + 1024}', tag=('lw', sl))
                loaded[sl] = b

        def smf(acc, af, sl):
            idx = order.index(sl)
            kind, loc = place[sl]
            if kind == 'reg':
                b = loc
            else:
                if sl not in loaded:
                    pump_lds(idx, True)
                b = loaded[sl]
                e.wait_lg(('lw', sl))
            e(f'v_smfmac_f32_16x16x64_bf16 {v(acc, 4)}, {v(af, 4)}, {u(b, 8)}, {v(V_IDX)}')
            if kind != 'reg':
                pool.free(b, 8)
            pump_lds(idx + 1)

        AF = {}
        afpos = [0]
        first_use = [min(i for i, o in enumerate(order[:40]) if o[0][1] == t) for t in range(10)]

        def af_pump(i, lead=None):
            while afpos[0] < st['aflim'] and first_use[afpos[0]] - i <= (lead or afl):
                k = afpos[0]
                b = pool.alloc(4)
                if b is None:
                    assert first_use[k] - i > 1, 'AF starved'
                    return
                afpos[0] += 1
                AF[k] = b
                e(f'ds_read_b64_tr_b16 {v(b, 2)}, {v(V_AF)} offset:{1024 * k}', tag=('af', k))
                e(f'ds_read_b64_tr_b16 {v(b + 2, 2)}, {v(V_AF)} offset:{1024 * k + 512}', tag=('af', k))

        af_pump(0)
        for j in range(0, 16, 2):
            e(f'v_mov_b64 {v(ACC + j, 2)}, 0')
        accof = {'q': 0, 'k': 8, 'v': 16}
        waited = set()

        def mk(i, sl):
            (m, t), tau = sl
            last = not any(o[0][1] == t for o in order[i + 1:40])

            def f():
                if t not in waited:
                    e.wait_lg(('af', t))
                    waited.add(t)
                smf(ACC + accof[m] + 4 * tau, AF[t], sl)
                if last:
                    pool.free(AF[t], 4)
                af_pump(i + 1)
            return f
        mf = [mk(i, sl) for i, sl in enumerate(order[:40])]
        run(mf[:wat], [], 0)

        def warm_items(pos):
            it = []
            for p_, what in warm:
                if p_ != pos:
                    continue
                if what:
                    it.append(lambda: e(f's_add_u32 {s(S_T0)}, {s(S_WRM)}, {WS_VXT - WS_KX}'))
                it.append(lambda what=what: e(f'buffer_load_dword {v(V_WT)}, {v(V_WA)}, {s(S_WS, 4)}, {s(S_T0 if what else S_WRM)} offen', tag='warm'))
            return it
        cold = [lambda: e(f'buffer_store_dword {v(V_EX)}, {v(V_MBST)}, {s(S_WS, 4)}, {s(S_MBD2)} offen sc1'),
                lambda: e(f'buffer_store_dword {v(V_M1)}, {v(V_MBST)}, {s(S_WS, 4)}, {s(S_MBR2)} offen sc1')]
        if not (defer and nvl):
            cold = cold[1:]
        if mega:
            if kvseg:
                e(f's_add_u32 {s(S_T2)}, {s(S_STEP)}, 2')
            else:
                e(f's_add_u32 {s(S_T2)}, {s(S_STEP)}, 5')
                e(f's_lshr_b32 {s(S_T2)}, {s(S_T2)}, 2')
                e(f's_min_u32 {s(S_T2)}, {s(S_T2)}, 16')
            kv_wait(f'{L}_kv', V_WT)
        run(mf[wat:wat2], warm_items('a') + cold, 2)
        run(mf[wat2:NQE - 4], warm_items('a2'), 2)
        st['reserve'] = 99
        SM = pool.alloc(8, 8, top=True)
        ZQ = SM
        ZVF = SM + 4
        kxb, sbuf = {}, {}

        def kx_read(f_, rsv=0):
            def g_():
                b = pool.alloc(4, reserve=rsv)
                if b is None:
                    return
                kxb[f_] = b
                e(f'ds_read_b128 {v(b, 4)}, {v(V_LANE16)} offset:{L_KX + f_ * 1024}', tag=('kx', f_))
            return g_

        def qm_read(kind, uu):
            def g_():
                b = sbuf[(kind, uu)] = pool.must(4)
                base = 0 if kind == 'q' else 2048
                for m in range(2):
                    e(f'ds_read_b64_tr_b16 {v(b + 2 * m, 2)}, {v(V_QKR)} offset:{base + uu * 512 + m * 256}', tag=('si', kind, uu))
            return g_

        def v_load():
            tl(1)
            e(f'buffer_load_dwordx4 {v(ZVF, 4)}, {v(V_LANE16)}, {s(S_WS, 4)}, {s(S_VB)} offen sc1', tag='vm')
        run(mf[NQE - 4:NQE], [], 1)
        late = mf[NQE:40]
        qf = fold(ACC, ZQ) + fold(ACC + 4, ZQ + 1) + [
            lambda: e(f'ds_write2st64_b32 {v(V_QKW)}, {v(ZQ)}, {v(ZQ + 1)} offset0:0 offset1:1', tag='qw')]
        kf = fold(ACC + 8, ZQ + 2) + fold(ACC + 12, ZQ + 3) + [
            lambda: e(f'ds_write2st64_b32 {v(V_QKW)}, {v(ZQ + 2)}, {v(ZQ + 3)} offset0:8 offset1:9', tag='kw')]
        run(late[:1], [kx_read(0, 4), kx_read(4, 4)], 2)
        run(late[1:3], qf, 3)
        run(late[3:6], [kx_read(1, 16), kx_read(5, 16), kx_read(2, 16)], 1)
        stamp()
        e.wait_lg('qw')
        e('s_barrier')
        pool.free(ACC, 8)
        SX = ACC
        claim(SX, 8)
        todo = []
        for uu in range(4):
            todo += [('q', uu)] + [('x', f_) for f_ in (uu, uu + 4) if f_ not in kxb]

        def try4():
            b = pool.alloc(4)
            if b is None:
                return False
            pool.free(b, 4)
            return True

        def s_fill2(maxn=99):
            n = 0
            while todo and n < maxn and try4():
                kind, x = todo.pop(0)
                if kind == 'x':
                    kx_read(x)()
                else:
                    qm_read(kind, x)()
                n += 1
        s_fill2(1)
        run(late[6:], [lambda: s_fill2(2)] * 4, 1)
        stamp()

        def sx(uu, ti):
            def f():
                f_ = uu + 4 * ti
                assert ('q', uu) in sbuf and f_ in kxb, 'S starved'
                e.wait_lg(('si', 'q', uu))
                e.wait_lg(('kx', f_))
                cin = '0' if uu == 0 else v(SX + 4 * ti, 4)
                e(f'v_mfma_f32_16x16x32_bf16 {v(SX + 4 * ti, 4)}, {v(kxb[f_], 4)}, {v(sbuf[("q", uu)], 4)}, {cin}')
                pool.free(kxb[f_], 4)
                s_fill2()
            return f
        sxl = [sx(uu, ti) for uu in range(4) for ti in range(2)]
        run(sxl[:2], [], 0)
        run([], kf, 0)
        run(sxl[2:4], [], 0)
        if v_at == 0:
            v_load()
        e.wait_lg('kw')
        e('s_barrier')
        pool.free(ACC + 8, 8)
        C0 = ACC + 8
        claim(C0, 4)
        todo_m = [('m', uu) for uu in range(4)]
        todo[:] = todo_m[:1] + todo + todo_m[1:]
        s_fill2()
        run(sxl[4:], [], 0)
        if v_at == 1:
            v_load()
        M = SM
        for uu in range(4):
            s_fill2()
            e.wait_lg(('si', 'm', uu))
            cin = '0' if uu == 0 else v(C0, 4)
            e(f'v_mfma_f32_16x16x32_bf16 {v(C0, 4)}, {v(sbuf[("m", uu)], 4)}, {v(sbuf[("q", uu)], 4)}, {cin}')
            pool.free(sbuf[('m', uu)], 4)
            pool.free(sbuf[('q', uu)], 4)
        assert not todo
        VA_ = pool.must(8)
        OACC = [pool.must(8) for _ in range(noa)]
        AFV = {}
        for t in range(NH1, 10):
            b = AFV[t] = OACC[(t - NH1) >> 1] + 4 * ((t - NH1) & 1)
            e(f'ds_read_b64_tr_b16 {v(b, 2)}, {v(V_AF)} offset:{1024 * t}', tag=('afv', t))
            e(f'ds_read_b64_tr_b16 {v(b + 2, 2)}, {v(V_AF)} offset:{1024 * t + 512}', tag=('afv', t))
        for j in range(0, 8 if nvl else 0, 2):
            e(f'v_mov_b64 {v(VA_ + j, 2)}, 0')

        def mkv(t, tau):
            def f():
                if tau == 0:
                    e.wait_lg(('afv', t))
                smf(VA_ + 4 * tau, AFV[t], (('v', t), tau))
            return f
        vmf = [mkv(t, tau) for t in range(NH1, 10) for tau in range(2)]
        P = pool.must(4)
        OA = pool.must(12)
        VX = pool.must(8)
        e(f'v_add_u32 {v(VX)}, {s(S_KXM)}, {v(V_LANE16)}')
        if v_at == 2:
            v_load()
        stamp()
        sm = []

        def V(x):
            sm.append(lambda: e(x))
        V(f'v_max3_f32 {v(M)}, {v(SX)}, {v(SX + 1)}, {v(SX + 2)}')
        V(f'v_max3_f32 {v(M + 1)}, {v(SX + 3)}, {v(SX + 4)}, {v(SX + 5)}')
        V(f'v_max3_f32 {v(M)}, {v(M)}, {v(SX + 6)}, {v(SX + 7)}')
        V(f'v_cndmask_b32 {v(C0)}, {v(C0 + 2)}, {v(C0)}, {s(S_MASKLO, 2)}')
        V(f'v_cndmask_b32 {v(C0 + 1)}, {v(C0 + 3)}, {v(C0 + 1)}, {s(S_MASKLO, 2)}')
        V(f'v_max3_f32 {v(M + 1)}, {v(M + 1)}, {v(C0)}, {v(C0 + 1)}')
        V(f'v_max_f32 {v(M)}, {v(M)}, {v(M + 1)}')
        V(f'v_max_f32 {v(M + 1)}, {v(M)}, {v(M + 1)}')
        V(f'v_permlane32_swap_b32 {v(M)}, {v(M + 1)}')
        V(f'v_max_f32 {v(M + 2)}, {v(M)}, {v(M + 1)}')
        V(f'v_max_f32 {v(M + 1)}, {v(M)}, {v(M + 1)}')
        V(f'v_permlane16_swap_b32 {v(M + 2)}, {v(M + 1)}')
        V(f'v_max_f32 {v(M)}, {v(M + 2)}, {v(M + 1)}')
        V(f'v_mul_f32 {v(M)}, {s(S_C1)}, {v(M)}')
        bub = {8: 1, 9: 1, 11: 1, 12: 1}
        for i, f in enumerate(sm):
            for _ in range(bub.get(i, 0)):
                if vmf:
                    vmf.pop(0)()
            f()
        if v_at == 3:
            v_load()
        e(f'ds_read_b128 {v(VX + 4, 4)}, {v(VX)} offset:{8192 + 1024}', tag='vx')
        e(f'ds_read_b128 {v(VX, 4)}, {v(VX)} offset:8192', tag='vx')
        for j in range(0, 10, 2):
            e(f'v_pk_fma_f32 {v(SX + j, 2)}, {v(SX + j, 2)}, {s(S_C1, 2)}, {v(M, 2)} op_sel_hi:[1,1,0] neg_lo:[0,0,1] neg_hi:[0,0,1]')
            if vmf:
                vmf.pop(0)()
        while vmf:
            vmf.pop(0)()
        zl = [(lambda b=b, j=j: e(f'v_mov_b64 {v(b + j, 2)}, 0')) for b in OACC for j in range(0, 8, 2)]

        def z(n=1):
            for _ in range(n):
                if zl:
                    zl.pop(0)()
        for j in range(8):
            e(f'v_exp_f32 {v(SX + j)}, {v(SX + j)}')
        for j in range(4):
            e(f'v_cvt_pk_bf16_f32 {v(P + j)}, {v(SX + 2 * j)}, {v(SX + 2 * j + 1)}')
        e.wait_lg('vx')
        e(f'v_exp_f32 {v(C0)}, {v(C0)}')
        e(f'v_mfma_f32_16x16x32_bf16 {v(OA + 8, 4)}, {v(V_ONES, 4)}, {v(P, 4)}, 0')
        e(f'v_exp_f32 {v(C0 + 1)}, {v(C0 + 1)}')
        e(f'v_mfma_f32_16x16x32_bf16 {v(OA, 4)}, {v(VX, 4)}, {v(P, 4)}, 0')
        e(f'v_cvt_pk_bf16_f32 {v(V_PM)}, {v(C0)}, {v(C0 + 1)}')
        e(f'v_cvt_pk_bf16_f32 {v(V_PM + 3)}, {v(C0)}, {v(C0 + 1)}')
        e(f'v_mfma_f32_16x16x32_bf16 {v(OA + 4, 4)}, {v(VX + 4, 4)}, {v(P, 4)}, 0')
        if nvl:
            e(f'v_pk_add_f32 {v(VA_, 2)}, {v(VA_, 2)}, {v(VA_ + 2, 2)}')
            e(f'v_pk_add_f32 {v(VA_ + 4, 2)}, {v(VA_ + 4, 2)}, {v(VA_ + 6, 2)}')
        e(f'v_mfma_f32_16x16x16_bf16 {v(OA + 8, 4)}, {v(V_ONES, 2)}, {v(V_PM, 2)}, {v(OA + 8, 4)}')
        z(4)
        if 'nov' not in dbg:
            e.wait_vm('vm')
            e(f'v_cmp_eq_u32 vcc, -1, {v(ZVF)}')
            e(f's_cbranch_vccnz {L}_fixv')
            e.label(f'{L}_pv2')
        ZV = VA_ + 2
        if nvl:
            e(f'v_pk_add_f32 {v(ZVF, 2)}, {v(ZVF, 2)}, {v(VA_, 2)}')
            e(f'v_pk_add_f32 {v(ZVF + 2, 2)}, {v(ZVF + 2, 2)}, {v(VA_ + 4, 2)}')
        e(f'v_cvt_pk_bf16_f32 {v(ZV)}, {v(ZVF)}, {v(ZVF + 1)}')
        e(f'v_cvt_pk_bf16_f32 {v(ZV + 1)}, {v(ZVF + 2)}, {v(ZVF + 3)}')
        e(f'v_rcp_f32 {v(M)}, {v(OA + 8)}')
        z(1)
        e(f'v_mfma_f32_16x16x16_bf16 {v(OA, 4)}, {v(ZV, 2)}, {v(V_PM, 2)}, {v(OA, 4)}')
        e(f'v_mfma_f32_16x16x16_bf16 {v(OA + 4, 4)}, {v(ZV, 2)}, {v(V_PM + 2, 2)}, {v(OA + 4, 4)}')
        pool.free(SX, 8)
        pool.free(VX, 8)
        pool.free(C0, 4)
        pool.free(VA_, 8)
        OF = pool.must(8)
        z(99)
        st['reserve'] = 0
        pump_lds(NA)
        for j in range(0, 8, 2):
            e(f'v_pk_mul_f32 {v(OA + j, 2)}, {v(OA + j, 2)}, {v(M, 2)} op_sel_hi:[1,0]')
        for j in range(4):
            e(f'v_cvt_pk_bf16_f32 {v(P + j)}, {v(OA + 2 * j)}, {v(OA + 2 * j + 1)}')
        e(f'ds_write_b128 {v(V_OW)}, {v(P, 4)}', tag='ow')
        pool.free(OA, 12)
        for x in [f's_add_u32 {s(S_WRM)}, {s(S_WRM)}, {32 * 8192}',
                  f's_add_u32 {s(S_MSL)}, {s(S_MSL)}, {MB_STRIDE}', f's_and_b32 {s(S_MSL)}, {s(S_MSL)}, {3 * MB_STRIDE}',
                  f's_add_u32 {s(S_T0)}, {s(S_MSL)}, {WS_MB}',
                  f's_add_u32 {s(S_MBP)}, {s(S_T0)}, {s(S_GOF)}',
                  f's_lshl_b32 {s(S_T0)}, {s(S_MSL)}, 4', f's_add_u32 {s(S_VB)}, {s(S_VB0)}, {s(S_T0)}',
                  f's_add_u32 {s(S_STEP)}, {s(S_STEP)}, 1']:
            e(x)
        e.wait_lg('ow')
        e('s_barrier')
        pool.free(P, 4)
        e(f'ds_read_b128 {v(OF, 4)}, {v(V_OR)}', tag='of0')
        e(f'ds_read_b128 {v(OF + 4, 4)}, {v(V_OR)} offset:1024', tag='of1')
        pump_lds(NA)
        kxi = kx_items()
        for f in kxi[:6]:
            f()
        stamp()
        ZO = [SM, SM + 2, SM + 4]

        def finish(p):
            ac = OACC[p % noa]
            zz = ZO[p % 3]
            it = fold(ac, zz) + fold(ac + 4, zz + 1)
            if p + noa < 5:
                it += [(lambda j=j: e(f'v_mov_b64 {v(ac + j, 2)}, 0')) for j in range(0, 4, 2)]
            it += [lambda: e(f'v_permlane16_swap_b32 {v(zz)}, {v(zz + 1)}'),
                   lambda: e(f'buffer_store_dwordx2 {v(zz, 2)}, {v(V_PBST)}, {s(S_WS, 4)}, {s(S_PBST + p)} offen {sc}', tag='pst')]
            if p + noa < 5:
                it += [(lambda j=j: e(f'v_mov_b64 {v(ac + j, 2)}, 0')) for j in range(4, 8, 2)]
            else:
                it += [lambda: pool.free(ac, 8)]
            return it
        sc2 = [f's_lshl_b32 {s(S_T0)}, {s(S_MSL)}, 1',
               f's_add_u32 {s(S_MBN2)}, {s(S_MBE0)}, {s(S_T0)}', f's_add_u32 {s(S_MBD2)}, {s(S_MBD0)}, {s(S_T0)}',
               f's_xor_b32 {s(S_T0)}, {s(S_T0)}, 65536', f's_add_u32 {s(S_MBR2)}, {s(S_MBL2)}, {s(S_T0)}',
               f's_add_u32 {s(S_MBN)}, {s(S_MBL)}, {s(S_MSL)}']
        sc2 = kxi[6:] + [(lambda x=x: e(x)) for x in sc2]
        for p in range(5):
            ac = OACC[p % noa]
            mo = []
            for t in range(2):
                for tau in range(2):
                    def f(t=t, tau=tau):
                        if p == 0 and tau == 0:
                            e.wait_lg(f'of{t}')
                        smf(ac + 4 * tau, OF + 4 * t, (('o', t, p), tau))
                    mo.append(f)
            side = finish(p - 1) if p >= 1 else sc2
            run(mo[:1], [], 0)
            run(mo[1:], side, 3 if p else 4)
        for f in finish(4):
            f()
        stamp()
        tl(3)
        pool.free(OF, 8)
        pool.free(SM, 8)
        assert not lds_pending
        claim(ACC, 24)
        for b in PRE:
            claim(b, 8)
        RB, RA, TM = ACC, VACC, VACC + 4

        def pb_loads():
            for i in range(4):
                e(f'buffer_load_dwordx4 {v(RB + 4 * i, 4)}, {v(V_LANE16)}, {s(S_WS, 4)}, {s(S_PBLD)} offen offset:{1024 * i} sc1', tag=('pb', i))
        if early_poll:
            e(f's_cmp_ge_u32 {s(S_UNIT)}, {early_poll}')
            e(f's_cbranch_scc1 {L}_nep')
            pb_loads()
            pre_load()
            for p in range(5):
                e(f's_xor_b32 {s(S_PBST + p)}, {s(S_PBST + p)}, {PB_STRIDE}')
            e(f's_branch {L}_pk1')
            e.label(f'{L}_nep')
        pre_load()
        for p in range(5):
            e(f's_xor_b32 {s(S_PBST + p)}, {s(S_PBST + p)}, {PB_STRIDE}')
        e(f's_cmp_ge_u32 {s(S_UNIT)}, 80')
        e(f's_cbranch_scc1 {L}_nored')
        if kdel:
            e.nop(kdel)
        e.label(f'{L}_pollK')
        e.hist = []
        wd()
        if stamps:
            e('s_add_u32 s27, s27, 1')
        pb_loads()
        e.label(f'{L}_pk1')
        e.hist = []
        for i in range(4):
            e(f's_waitcnt vmcnt({3 - i})')
            e(f'v_mfma_f32_16x16x32_bf16 {v(RA, 4)}, {v(V_SEL, 4)}, {v(RB + 4 * i, 4)}, {"0" if i == 0 else v(RA, 4)}')
            if i == 2:
                e(f'v_max3_u32 {v(TM)}, {v(RB)}, {v(RB + 4)}, {v(RB + 8)}')
        e(f'v_max_u32 {v(TM)}, {v(TM)}, {v(RB + 12)}')
        e(f'v_mov_b32_dpp {v(TM + 1)}, {v(TM)} quad_perm:[0,0,0,0] row_mask:0xf bank_mask:0xf')
        e(f'v_cmp_eq_u32 vcc, -1, {v(TM + 1)}')
        e('s_mov_b64 exec, vcc')
        e(f's_cbranch_execnz {L}_pollK')
        e('s_mov_b64 exec, -1')
        e.vm = []
        e(f'v_permlane32_swap_b32 {v(RA)}, {v(RA + 2)}')
        e(f'v_permlane32_swap_b32 {v(RA + 1)}, {v(RA + 3)}')
        e(f'v_add_f32_dpp {v(RA)}, {v(RA + 2)}, {v(RA)} row_ror:8 row_mask:0xf bank_mask:0xf')
        e(f'v_add_f32_dpp {v(RA + 1)}, {v(RA + 3)}, {v(RA + 1)} row_ror:8 row_mask:0xf bank_mask:0xf')
        e(f'v_cvt_pk_bf16_f32 {v(V_EX)}, {v(RA)}, {v(RA + 1)}')
        e(f'buffer_store_dword {v(V_EX)}, {v(V_MBST)}, {s(S_WS, 4)}, {s(S_MBN)} offen {sc}')
        e(f'buffer_store_dword {v(V_EX)}, {v(V_MBST)}, {s(S_WS, 4)}, {s(S_MBN2)} offen sc1')
        stamp()
        tl(2)
        e(f'buffer_store_dword {v(V_M1)}, {v(V_MBST)}, {s(S_WS, 4)}, {s(S_MBC)} offen {sc}')
        e(f'buffer_store_dword {v(V_M1)}, {v(V_L64)}, {s(S_WS, 4)}, {s(S_PBLD)} offen {sc}')
        e(f's_xor_b32 {s(S_PBLD)}, {s(S_PBLD)}, {PB_STRIDE}')
        e(f's_mov_b32 {s(S_MBC)}, {s(S_MBN)}')
        e(f's_branch {L}_end')
        e.label(f'{L}_nored')
        if stamps and call_i[0] - 1 in stsel:
            e(f's_memtime {s(S_STAMP + 2 * (stamp_i[0] - 1), 2)}')
        if gdel:
            e(f's_sleep {gdel}')
        e.label(f'{L}_end')
        e.hist = []
        tl_out(0, RB)
        e('s_waitcnt lgkmcnt(0)')
        if stamps:
            stamp()
            stamp_acc(stamp_i[0])
        e(f's_cmp_lg_u32 {s(S_STEP)}, {nsteps - 1}')
        e(f's_cbranch_scc1 {L}')
        e(f's_branch {name}_fin')
        if 'nov' in dbg:
            return
        e.label(f'{L}_fixv')
        wd()
        if stamps:
            e('s_add_u32 s26, s26, 63')
        e(f'buffer_load_dwordx4 {v(ZVF, 4)}, {v(V_LANE16)}, {s(S_WS, 4)}, {s(S_VB)} offen sc1')
        e('s_waitcnt vmcnt(0)')
        e(f'v_cmp_eq_u32 vcc, -1, {v(ZVF)}')
        e(f's_cbranch_vccnz {L}_fixv')
        e(f's_branch {L}_pv2')

    body('', f'{name}_fast')
    if slow:
        body('sc1', f'{name}_slow')
    e.label(f'{name}_fin')
    e.flush_hazards(4)
    e(f'buffer_store_dword {v(V_EX)}, {v(V_MBST)}, {s(S_WS, 4)}, {s(S_MBD2)} offen sc1')
    if stamps:
        stamp_out()
    if 'rt' in dbg or 'tot' in dbg:
        e(f's_cmp_lg_u32 {s(S_W)}, 1')
        e(f's_cbranch_scc1 {name}_exit')
    if 'rt' in dbg:
        e('s_memrealtime s[100:101]')
        e('s_waitcnt lgkmcnt(0)')
        if 'diag' in dbg:
            e('s_sub_u32 s101, s100, s98')
            e('s_sub_u32 s99, s98, s96')
            e('v_mov_b32 v40, s99')
            e('v_mov_b32 v41, s101')
            e('v_mov_b32 v44, 32')
            e(f'buffer_store_dwordx2 v[40:41], v44, {s(S_DBG, 4)}, 0 offen')
            e('s_waitcnt vmcnt(0)')
        e('v_mov_b32 v40, s96')
        e('v_mov_b32 v41, s98')
        e('v_mov_b32 v42, s100')
        e('v_mov_b32 v43, s94')
        e('v_mov_b32 v44, 0')
        e(f's_lshl_b32 {s(S_T0)}, {s(S_H)}, 6')
        e(f's_add_u32 {s(S_T0)}, {s(S_T0)}, 0x0F800000')
        e(f'buffer_store_dwordx4 v[40:43], v44, {s(S_WS, 4)}, {s(S_T0)} offen')
    if 'tot' in dbg:
        e('s_memtime s[98:99]')
        e('s_waitcnt lgkmcnt(0)')
        e('s_sub_u32 s98, s98, s96')
        e('v_mov_b32 v40, s98')
        e('v_mov_b32 v42, 0')
        e(f's_lshl_b32 {s(S_T0)}, {s(S_H)}, 6')
        e(f's_add_u32 {s(S_T0)}, {s(S_T0)}, 0x0F800000')
        e(f'buffer_store_dword v40, v42, {s(S_WS, 4)}, {s(S_T0)} offen')
    e.label(f'{name}_exit')
    e('s_endpgm')
    print(f'; chain12: n_reg={n_reg} n_lds={n_lds} pool peak={pool.peak} of {pool_end - NPERS}')

    H = f'{name}_helper'
    e.label(H)
    e.hist, e.vm, e.lg = [], [], []
    hunits = [('v', t) for t in range(10)] + [('k', t) for t in range(10)]
    hplace = {}
    r = 128
    for un in hunits:
        for tau in range(2):
            hplace[(un, tau)] = ('reg', r)
            r += 8
    M4 = 24
    for j in range(4):
        e(f'v_mov_b32 {v(M4 + j)}, -1')

    def helper_init():
        e(f's_cmp_lg_u32 {s(S_W)}, 0')
        e(f's_cbranch_scc1 {H}_nocal')
        e(f's_lshl_b32 {s(S_T0)}, {s(S_H)}, 7')
        e(f's_add_u32 {s(S_T0)}, {s(S_T0)}, {s(S_NR)}')
        e(f's_add_u32 s82, {s(S_T0)}, {NR_CAL}')
        e(f's_add_u32 s83, {s(S_T0)}, {NR_CAL + 8192}')
        e('s_mov_b32 s80, -1')
        e('s_mov_b32 s81, -1')
        e(f's_mov_b32 {s(S_T0)}, {ncal}')
        e.label(f'{H}_cal')
        for hf in range(2):
            e('s_memtime s[76:77]')
            e('s_waitcnt lgkmcnt(0)')
            e(f'buffer_store_dword {v(V_M1)}, {v(V_MBST)}, {s(S_WS, 4)}, {s(82 + hf)} offen sc1')
            e('s_waitcnt vmcnt(0)')
            e('s_memtime s[78:79]')
            e('s_waitcnt lgkmcnt(0)')
            e('s_sub_u32 s78, s78, s76')
            e(f's_min_u32 {s(80 + hf)}, {s(80 + hf)}, s78')
        e(f's_sub_u32 {s(S_T0)}, {s(S_T0)}, 1')
        e(f's_cmp_lg_u32 {s(S_T0)}, 0')
        e(f's_cbranch_scc1 {H}_cal')
        e('s_cmp_lt_u32 s81, s80')
        e('s_cselect_b32 s80, 0x10001, 1')
        e.label(f'{H}_nocal')
        e('s_barrier')
        for sl_ in range(4):
            for hf in range(2):
                e(f's_add_u32 {s(S_T0)}, {s(S_VB0)}, {sl_ * 262144 + hf * 8192}')
                e(f's_add_u32 {s(S_T0)}, {s(S_T0)}, {s(S_NR)}')
                e(f'buffer_store_dwordx4 {v(M4, 4)}, {v(V_LANE16)}, {s(S_WS, 4)}, {s(S_T0)} offen sc1')
        init_done(f'{H}_noib', 's80')
    load_weights(hunits, hplace, VT_QKV, 0, helper_init, pre=True)
    e('s_barrier')
    init_wait(f'{H}_ibw', 32)
    if 'nohelp' in dbg:
        e('s_endpgm')
    S_PA, S_PB_, S_PC = 50, 51, 52
    GA, GB, GC, V_KR = V_OR, V_KXG, V_OW, V_QKR
    e(f's_lshl_b32 {s(S_PA)}, {s(S_W)}, 10')
    e(f's_and_b32 {s(S_T0)}, {s(S_W)}, {NH1 - 4 - 1}')
    e(f's_lshl_b32 {s(S_T0)}, {s(S_T0)}, 10')
    e(f's_add_u32 {s(S_PB_)}, {s(S_T0)}, 4096')
    e(f's_and_b32 {s(S_T0)}, {s(S_W)}, {nvl - 1}')
    e(f's_lshl_b32 {s(S_T0)}, {s(S_T0)}, 10')
    e(f's_add_u32 {s(S_PC)}, {s(S_T0)}, {NH1 * 1024}')
    e(f'v_add_u32 {v(GA)}, {s(S_PA)}, {v(V_LANE16)}')
    e(f'v_add_u32 {v(GB)}, {s(S_PB_)}, {v(V_LANE16)}')
    e(f'v_add_u32 {v(GC)}, {s(S_PC)}, {v(V_LANE16)}')
    e(f's_cmp_ge_u32 {s(S_PC)}, 8192')
    e(f's_cselect_b32 {s(S_T0)}, 8192, 0')
    e(f's_add_u32 {s(S_PC)}, {s(S_PC)}, {s(S_T0)}')
    for x in (S_PA, S_PB_, S_PC):
        e(f's_add_u32 {s(x)}, {s(x)}, {s(S_NR)}')
    for i, x in enumerate((S_PA, S_PB_, S_PC)):
        e(f's_mov_b32 {s(S_MBP + i)}, {s(x)}')
    e(f's_lshl_b32 {s(S_T0)}, {s(S_W)}, 9')
    e(f's_add_u32 {s(S_T0)}, {s(S_T0)}, {L_MQ}')
    e(f'v_add_u32 {v(V_KR)}, {s(S_T0)}, {v(V_L8)}')
    e(f's_mov_b32 {s(S_MBR2)}, 0x40000000')
    if segsig is not None:
        e(f's_cmp_eq_u32 {s(S_W)}, 3')
        e(f's_mov_b32 {s(S_SIG)}, {segsig}')
        e(f's_cselect_b32 {s(S_SIG)}, {s(S_SIG)}, 0x40000000')
    G0, GM, ZH, VA, KA, AFH = 32, 40, 44, 48, 56, 64
    if hstamps:
        stamp_init()
    hs = [0]

    def hstamp():
        if hstamps:
            e(f's_memtime {s(S_STAMP + 2 * hs[0], 2)}')
            hs[0] += 1

    def haf(k):
        e(f'ds_read_b64_tr_b16 {v(AFH + 4 * k, 2)}, {v(V_AF)} offset:{1024 * k}', tag=('af', k))
        e(f'ds_read_b64_tr_b16 {v(AFH + 4 * k + 2, 2)}, {v(V_AF)} offset:{1024 * k + 512}', tag=('af', k))

    def hsm(m, t):
        for tau in range(2):
            e(f'v_smfmac_f32_16x16x64_bf16 {v((VA if m == "v" else KA) + 4 * tau, 4)}, {v(AFH + 4 * t, 4)}, {u(hplace[((m, t), tau)][1], 8)}, {v(V_IDX)}')
    L = f'{H}_loop'
    e.label(L)
    e.hist, e.vm, e.lg = [], [], []
    hstamp()
    for j in range(0, 16, 2):
        e(f'v_mov_b64 {v(VA + j, 2)}, 0')
    e.label(f'{L}_poll')
    wd()
    if hstamps:
        e('s_add_u32 s27, s27, 1')
    for i in range(2):
        e(f'buffer_load_dwordx4 {v(G0 + 4 * i, 4)}, {v(V_LANE16)}, {s(S_WS, 4)}, {s(S_MBP + i)} offen sc1')
    e('s_waitcnt vmcnt(0)')
    e(f'v_max_u32 {v(GM)}, {v(G0)}, {v(G0 + 4)}')
    e(f'v_cmp_eq_u32 vcc, -1, {v(GM)}')
    e('s_mov_b64 exec, vcc')
    e(f's_cbranch_execnz {L}_poll')
    e('s_mov_b64 exec, -1')
    e(f'ds_write_b128 {v(GA)}, {v(G0, 4)}')
    e(f'ds_write_b128 {v(GB)}, {v(G0 + 4, 4)}')
    e('s_waitcnt lgkmcnt(0)')
    e('s_barrier')
    e.vm, e.lg = [], []
    hstamp()
    tl(0)
    for k in range(min(NH1, 7)):
        haf(k)
    for t in range(NH1):
        e.wait_lg(('af', t))
        hsm('v', t)
        if t + 7 < NH1:
            haf(t + 7)
    hsm('k', 0)
    e(f'v_pk_add_f32 {v(ZH, 2)}, {v(VA, 2)}, {v(VA + 2, 2)}')
    e(f'v_pk_add_f32 {v(ZH + 2, 2)}, {v(VA + 4, 2)}, {v(VA + 6, 2)}')
    e(f'buffer_store_dwordx4 {v(ZH, 4)}, {v(V_LANE16)}, {s(S_WS, 4)}, {s(S_VB)} offen sc1')
    hstamp()
    tl(1)
    e(f'buffer_store_dwordx4 {v(M4, 4)}, {v(V_LANE16)}, {s(S_WS, 4)}, {s(S_MBR2)} offen sc1')
    e(f's_mov_b32 {s(S_MBR2)}, {s(S_VB)}')
    if segsig is not None and lagsig:
        e(f's_sub_u32 {s(S_T0)}, {s(S_STEP)}, 1')
        e(f's_cmp_ge_u32 {s(S_T0)}, {nsteps - 2}')
        e(f's_cbranch_scc1 {L}_ns')
        seg_signal()
        e.label(f'{L}_ns')
    for t in range(1, NH1):
        hsm('k', t)
    e.label(f'{L}_poll2')
    wd()
    e(f'buffer_load_dwordx4 {v(G0, 4)}, {v(V_LANE16)}, {s(S_WS, 4)}, {s(S_MBP + 2)} offen sc1')
    e('s_waitcnt vmcnt(0)')
    e(f'v_cmp_eq_u32 vcc, -1, {v(G0)}')
    e('s_mov_b64 exec, vcc')
    e(f's_cbranch_execnz {L}_poll2')
    e('s_mov_b64 exec, -1')
    e(f'ds_write_b128 {v(GC)}, {v(G0, 4)}')
    e('s_waitcnt lgkmcnt(0)')
    e('s_barrier')
    e.vm, e.lg = [], []
    tl(2)
    for k in range(NH1, 10):
        haf(k)
    for t in range(NH1, 10):
        e.wait_lg(('af', t))
        hsm('k', t)
    for t in range(NH1, 10):
        hsm('v', t)
    for f in fold(KA, ZH) + fold(KA + 4, ZH + 1):
        f()
    e(f'ds_write2st64_b32 {v(V_QKW)}, {v(ZH)}, {v(ZH + 1)} offset0:0 offset1:1', tag='kw')
    for f in fold(VA, ZH + 2) + fold(VA + 4, ZH + 3):
        f()
    e(f'buffer_store_dwordx2 {v(ZH + 2, 2)}, {v(V_L8)}, {s(S_WS, 4)}, {s(S_VMO)} offen offset:2048 sc1')
    e.wait_lg('kw')
    e('s_barrier')
    e(f'ds_read_b64 {v(ZH, 2)}, {v(V_KR)}')
    e(f's_add_u32 {s(S_STEP)}, {s(S_STEP)}, 1')
    e(f's_add_u32 {s(S_MSL)}, {s(S_MSL)}, {MB_STRIDE}')
    e(f's_and_b32 {s(S_MSL)}, {s(S_MSL)}, {3 * MB_STRIDE}')
    e(f's_lshl_b32 {s(S_T0)}, {s(S_MSL)}, 1')
    for i, x in enumerate((S_PA, S_PB_, S_PC)):
        e(f's_add_u32 {s(S_MBP + i)}, {s(x)}, {s(S_T0)}')
    e(f's_lshl_b32 {s(S_T0)}, {s(S_MSL)}, 4')
    e(f's_add_u32 {s(S_VB)}, {s(S_VB0)}, {s(S_T0)}')
    e('s_waitcnt lgkmcnt(0)')
    e(f'buffer_store_dwordx2 {v(ZH, 2)}, {v(V_L8)}, {s(S_WS, 4)}, {s(S_VMO)} offen sc1')
    e(f's_add_u32 {s(S_VMO)}, {s(S_VMO)}, {32 * 4096}')
    e(f's_cmp_lt_u32 {s(S_STEP)}, {nsteps - 1 if lagsig else 0}')
    e(f's_cbranch_scc1 {L}_lag')
    e('s_waitcnt vmcnt(0)')
    e('s_barrier')
    if segsig is not None:
        seg_signal()
    e.label(f'{L}_lag')
    tl(3)
    tl_out(1, G0)
    if hstamps:
        hstamp()
        stamp_acc(hs[0])
    e(f's_cmp_lt_u32 {s(S_STEP)}, {nsteps}')
    e(f's_cbranch_scc1 {L}')
    if hstamps:
        stamp_out()
    e('s_endpgm')


if __name__ == '__main__':
    import argparse
    ap = argparse.ArgumentParser()
    ap.add_argument('--out', default='chain_test.s')
    ap.add_argument('--stamps', action='store_true')
    ap.add_argument('--kw', default='')
    args = ap.parse_args()
    em = Em()
    kw = eval('dict(' + args.kw + ')')
    gen_chain(em, stamps=args.stamps, **kw)
    hdr = '; @launch kernel=chain_kernel grid=(256,1,1) block=(256,1,1) lds=163840\n'
    hdr += '.amdgcn_target "amdgcn-amd-amdhsa--gfx950"\n.text\n.globl chain_kernel\n'
    open(args.out, 'w').write(hdr + em.text() + kd('chain_kernel', 512, 256))
```

```python
from emit import *
from layout import *
from gen_chain import f32bits, kd
from gen_gemm import Gemm
import gen_all
from gen_all import start, load_srds, end, lane_wave, silu_inplace, wave_sum, rnd2, LOG2E, KA, SIZES
import gen_chain13 as gen_chainX
from gen_chain13 import far_jump

LOG = False
SLEEP = 8
SLEEPN = 1
DSLEEP = 24
WS_LOG = 0x0F400000
POOLS = [('wk_att', 11), ('wk_wo', 40), ('wk_ln2', 8), ('wk_up', 27), ('wk_dn', 10)]
GSZ = sum(c for _, c in POOLS)
WS_CT2 = 0x00040000
K_CH, K_ATT, K_WO, K_LN2, K_UP, K_KV, K_Q = 0, 64, 128, 192, 256, 320, 384
NCH = 32
NMODA, NLN, NMODB = 40, 128, 80
NPRE = NMODA + NLN + NMODB
NTASK = NPRE + 768
D_TASK, D_MOD, D_MODB = 64, 0, 140
D_POST, D_TQ = 60, 72
N0 = 14
S_RANK, S_PB = 60, 30
SW = 29
S_W1, S_W3, S_W2, S_X, S_OUT, S_SEL = 64, 68, 72, 76, 80, 84
VL = 1
_bj = [0]
KNAME = ['']


def back_jump(e, label, sp=44):
    _bj[0] += 1
    here = f'Lbj{_bj[0]}'
    e(f's_getpc_b64 {s(sp, 2)}')
    e.label(here)
    e.raw(f'    s_add_u32 {s(sp)}, {s(sp)}, {label}-{here}')
    e.raw(f'    s_addc_u32 {s(sp + 1)}, {s(sp + 1)}, -1')
    e(f's_setpc_b64 {s(sp, 2)}')


def reset(e):
    e.hist = []
    e.vm = []
    e.lg = []


def dep_wait(e, lab, deps, sb):
    e(f's_cmp_lg_u32 {s(SW)}, 0')
    e(f's_cbranch_scc1 {lab}_dw')
    e(f's_lshl_b32 s38, {s(sb)}, 7')
    e('v_mov_b32 v2, 0')
    for i, (c, tgt) in enumerate(deps):
        e(f's_add_u32 s39, s38, {WS_CTR + c * 128}')
        e.label(f'{lab}_sp{i}')
        e('buffer_load_dword v3, v2, s[4:7], s39 offen sc1')
        e('s_waitcnt vmcnt(0)')
        e('v_readfirstlane_b32 s37, v3')
        e(f's_cmp_ge_u32 s37, {tgt}')
        e(f's_cbranch_scc1 {lab}_ok{i}')
        for _ in range(SLEEPN):
            e(f's_sleep {SLEEP}')
        e(f's_branch {lab}_sp{i}')
        e.label(f'{lab}_ok{i}')
    e.label(f'{lab}_dw')
    e('s_barrier')
    if LOG:
        e('s_memrealtime s[100:101]')
        e('s_waitcnt lgkmcnt(0)')
        e('s_mov_b32 s63, s100')
    reset(e)


def dbg_wait(e, lab, off_sgpr_or_int, tgt):
    e(f's_cmp_lg_u32 {s(SW)}, 0')
    e(f's_cbranch_scc1 {lab}_dw')
    e(f'v_mov_b32 v2, {off_sgpr_or_int}')
    e.label(f'{lab}_sp')
    e('buffer_load_dword v3, v2, s[8:11], 0 offen sc1')
    e('s_waitcnt vmcnt(0)')
    e('v_readfirstlane_b32 s37, v3')
    e(f's_cmp_ge_u32 s37, {tgt}')
    e(f's_cbranch_scc1 {lab}_dw')
    e(f's_sleep {DSLEEP}')
    e(f's_branch {lab}_sp')
    e.label(f'{lab}_dw')
    e('s_barrier')
    if LOG:
        e('s_memrealtime s[100:101]')
        e('s_waitcnt lgkmcnt(0)')
        e('s_mov_b32 s63, s100')
    reset(e)


def signal(e, lab, c, sb, loop, dbg_off=None):
    e('s_waitcnt vmcnt(0) lgkmcnt(0)')
    e('s_barrier')
    if LOG:
        e('s_memrealtime s[100:101]')
        e('s_waitcnt lgkmcnt(0)')
        e('v_mov_b32 v4, s63')
        e('v_mov_b32 v5, s100')
        e('v_mov_b32 v6, s61')
        e('v_mov_b32 v7, s28')
        e('v_mov_b32 v2, 0')
        e('s_lshl_b32 s38, s62, 4')
        e(f's_add_u32 s38, s38, {WS_LOG}')
        e('buffer_store_dwordx4 v[4:7], v2, s[4:7], s38 offen')
    if dbg_off is not None:
        e(f's_cmp_lg_u32 {s(SW)}, 0')
        e(f's_cbranch_scc1 {lab}_sg')
        e(f'v_mov_b32 v2, {dbg_off}')
        e('v_mov_b32 v3, 1')
        e('s_mov_b64 exec, 1')
        e('buffer_atomic_add v3, v2, s[8:11], 0 offen')
        e('s_mov_b64 exec, -1')
        e.label(f'{lab}_sg')
    elif c is not None:
        e(f's_cmp_lg_u32 {s(SW)}, 0')
        e(f's_cbranch_scc1 {lab}_sg')
        if isinstance(c, int):
            e(f's_lshl_b32 s38, {s(sb)}, 7')
            e(f's_add_u32 s38, s38, {WS_CTR + c * 128}')
        else:
            e(f's_add_u32 s38, {s(sb)}, {c}')
            e('s_lshl_b32 s38, s38, 7')
            e(f's_add_u32 s38, s38, {WS_CTR}')
        e('v_mov_b32 v2, 0')
        e('v_mov_b32 v3, 1')
        e('s_mov_b64 exec, 1')
        e('buffer_atomic_add v3, v2, s[4:7], s38 offen')
        e('s_mov_b64 exec, -1')
        e.label(f'{lab}_sg')
    back_jump(e, loop)


def mid(e):
    if LOG:
        e('s_memrealtime s[100:101]')
        e('s_waitcnt lgkmcnt(0)')
        e('s_mov_b32 s61, s100')


def h_qkv(e, loop):
    name = 'wk_qkv'
    e.label(name)
    reset(e)
    e('s_cmp_eq_u32 s23, 1')
    e(f's_cselect_b32 {s(S_SEL)}, s16, s12')
    e(f's_cselect_b32 {s(S_SEL + 1)}, s17, s13')
    e('s_cmp_eq_u32 s23, 2')
    e(f's_cselect_b32 {s(S_SEL)}, s20, {s(S_SEL)}')
    e(f's_cselect_b32 {s(S_SEL + 1)}, s21, {s(S_SEL + 1)}') if False else None
    return


def gen_workers(e, loop='wk_loop'):
    B, P1, P2 = 52, 53, 54
    e.label('wk_entry')
    reset(e)
    e(f'v_mov_b32 {v(VL)}, v16')
    load_srds(e, [('w1', S_W1), ('w3', S_W3), ('w2', S_W2), ('x', S_X), ('out', S_OUT)], tmp=88)
    e(f's_mov_b32 {s(S_SEL + 2)}, 5242880')
    e(f's_mov_b32 {s(S_SEL + 3)}, 0x20000')
    e('s_bfe_u32 s3, s2, 0x10003')
    e('s_lshr_b32 s48, s2, 4')
    e(f's_mul_i32 {s(S_RANK)}, s48, 5')
    e(f's_add_u32 {s(S_RANK)}, {s(S_RANK)}, s35')
    e(f's_sub_u32 {s(S_RANK)}, {s(S_RANK)}, 2')
    e('s_add_u32 s48, s48, 80')
    e('s_cmp_eq_u32 s35, 7')
    e(f's_cselect_b32 {s(S_RANK)}, s48, {s(S_RANK)}')

    def logstart(sidx, base):
        if LOG:
            e(f's_add_u32 s62, {s(sidx)}, {base}')
            e('s_memrealtime s[100:101]')
            e('s_waitcnt lgkmcnt(0)')
            e('s_mov_b32 s63, s100')
            e('s_mov_b32 s28, s100')
            e('s_mov_b32 s61, s100')
    e('s_mov_b32 s48, 0')
    e('s_cmp_eq_u32 s3, 0')
    e(f's_cbranch_scc1 {loop}')
    logstart(S_RANK, 0)
    far_jump(e, 'wk_qkv', 44)
    e.label(loop)
    reset(e)
    e('s_add_u32 s48, s48, 1')
    e('s_cmp_gt_u32 s48, 3')
    e('s_cbranch_scc1 wk_rank')
    e(f's_cmp_ge_u32 {s(S_RANK)}, {NMODA}')
    e('s_cbranch_scc1 wk_nm')
    e(f's_lshl_b32 {s(P1)}, {s(S_RANK)}, 1')
    e(f's_add_u32 {s(P1)}, {s(P1)}, s48')
    e(f's_add_u32 {s(P1)}, {s(P1)}, {NMODA - 2}')
    e('s_cmp_eq_u32 s48, 1')
    e(f's_cselect_b32 {s(P1)}, {s(S_RANK)}, {s(P1)}')
    logstart(P1, 8000)
    far_jump(e, 'wk_mod', 44)
    e.label('wk_nm')
    e(f's_mul_i32 {s(P1)}, s48, {96 - NMODA}')
    e(f's_add_u32 {s(P1)}, {s(P1)}, {s(S_RANK)}')
    e(f's_sub_u32 {s(P1)}, {s(P1)}, 96')
    e(f's_cmp_ge_u32 {s(P1)}, {NLN}')
    e('s_cbranch_scc1 wk_rank')
    logstart(P1, 8200)
    far_jump(e, 'wk_ln1', 44)
    e.label('wk_rank')
    dbg_wait(e, 'wk_ma', D_MOD, NMODA)
    e.label('wk_pool')
    e(f's_mul_i32 s49, s3, {N0}')
    e(f's_add_u32 {s(B)}, s49, s3')
    if LOG:
        e('s_memrealtime s[100:101]')
        e('s_waitcnt lgkmcnt(0)')
        e('s_mov_b32 s63, s100')
        e('s_mov_b32 s28, s100')
        e('s_mov_b32 s61, s100')
    lo = 0
    for lab, cnt in POOLS:
        hi = lo + cnt
        e(f's_cmp_ge_u32 {s(S_RANK)}, {hi}')
        e(f's_cbranch_scc1 wk_n{hi}')
        e(f's_sub_u32 {s(P1)}, {s(S_RANK)}, {lo}')
        far_jump(e, lab, 44)
        e.label(f'wk_n{hi}')
        lo = hi
    e('s_endpgm')

    name = 'wk_qkv'
    e.label(name)
    reset(e)
    e(f's_mul_i32 s50, {s(S_RANK)}, 1366')
    e('s_lshr_b32 s50, s50, 16')
    assert all((x * 1366) >> 16 == x // 48 for x in range(192))
    e('s_mul_i32 s51, s50, 48')
    e(f's_sub_u32 s51, {s(S_RANK)}, s51')
    e(f's_and_b32 {s(P1)}, s51, 15')
    e(f's_lshr_b32 {s(P2)}, s51, 4')
    e(f's_cmp_eq_u32 {s(P2)}, 0')
    e(f's_cselect_b32 {s(S_SEL)}, s16, s12')
    e(f's_cselect_b32 {s(S_SEL + 1)}, s17, s13')
    e(f's_cmp_eq_u32 {s(P2)}, 1')
    e(f's_cselect_b32 {s(S_SEL)}, s20, {s(S_SEL)}')
    e(f's_cselect_b32 {s(S_SEL + 1)}, s21, {s(S_SEL + 1)}')
    panels = [(S_SEL, 8192, 128), (S_SEL, 8192, 128)]
    G = Gemm(e, 32, panels, 1, 4, 10, 128, nstage=1, vbase=104, sbase=40)
    G.setup(VL, SW, 6)
    e('s_mov_b32 s55, 0')
    e(f's_lshl_b32 s56, {s(P1)}, 9')
    e('s_add_u32 s57, s56, 256')
    G.init_offsets(55, [56, 57])
    QW = 192

    def qw(ks, ni):
        return QW + (ks * 4 + ni) * 4
    NS = 4
    assert NS * G.stage <= 163840
    for k in range(NS):
        for f in G.dma_items(None, k, ('w', k), 'w'):
            f()
    for k in range(10):
        e.wait_vm(('w', k))
        e('s_barrier')
        if k >= 1 and k - 1 + NS < 10:
            for f in G.dma_items(None, (k - 1) % NS, ('w', k - 1 + NS), 'w'):
                f()
        for ks in range(2):
            for ni in range(4):
                for m in range(2):
                    e(f'ds_read_b64_tr_b16 {u(qw(2 * k + ks, ni) + 2 * m, 2)}, {v(G.v_wa + ni)} offset:{(32 * ks + 16 * m) * 256}')
        d = G.stage if (k + 1) % NS else -(NS - 1) * G.stage
        for ni in range(4):
            if d >= 0:
                e(f'v_add_u32 {v(G.v_wa + ni)}, {d}, {v(G.v_wa + ni)}')
            else:
                e(f'v_subrev_u32 {v(G.v_wa + ni)}, {-d}, {v(G.v_wa + ni)}')
        e.wait_lg()
    mid(e)
    dbg_wait(e, name + '_a', D_MOD, NMODA)
    if LOG:
        e('s_memrealtime s[100:101]')
        e('s_waitcnt lgkmcnt(0)')
        e('v_mov_b32 v4, s63')
        e('v_mov_b32 v5, s100')
        e('v_mov_b32 v6, s61')
        e('v_mov_b32 v7, s28')
        e('v_mov_b32 v2, 0')
        e(f's_lshl_b32 s38, {s(S_RANK)}, 4')
        e(f's_add_u32 s38, s38, {WS_LOG + 8400 * 16}')
        e('buffer_store_dwordx4 v[4:7], v2, s[4:7], s38 offen')
    QA, QX, QO = 16, 48, 80
    e(f's_mul_i32 s55, s50, {32 * 1280}')
    e(f's_add_u32 s55, s55, {WS_H1}')
    e('s_mov_b32 s56, 0')
    e('s_lshl_b32 s33, s50, 5')
    e(f's_lshl_b32 s34, {s(P1)}, 1')
    e('s_add_u32 s33, s33, s34')
    e('s_lshl_b32 s33, s33, 13')
    e(f's_mov_b32 s34, {WS_QX}')
    e(f's_mov_b32 s35, {WS_CT2 + K_Q * 128}')
    e(f's_cmp_lg_u32 {s(P2)}, 2')
    e(f's_cselect_b32 s34, {WS_KX}, s34')
    e(f's_cselect_b32 s35, {WS_CT2 + K_KV * 128}, s35')
    e(f's_cmp_eq_u32 {s(P2)}, 1')
    e(f's_cselect_b32 s34, {WS_VXT}, s34')
    e('s_add_u32 s33, s33, s34')
    e(f's_lshl_b32 s31, {s(SW)}, 11')
    e('s_add_u32 s33, s33, s31')
    e(f'v_and_b32 v2, 15, {v(VL)}')
    e(f'v_lshrrev_b32 v3, 4, {v(VL)}')
    e('v_lshlrev_b32 v3, 4, v3')
    e('v_lshl_add_u32 v4, v2, 6, v3')
    e(f'v_lshlrev_b32 v5, 4, {v(VL)}')
    e('v_lshlrev_b32 v6, 7, v2')
    e('v_mov_b32 v7, -1')
    e(f'v_lshlrev_b32 v8, 8, {v(VL)}')
    e('s_lshl_b32 s37, s50, 7')
    e('s_add_u32 s35, s35, s37')
    e('s_mov_b32 s51, 0')
    e('s_mov_b32 s34, 0')
    e(f's_cmp_lg_u32 {s(SW)}, 0')
    e('s_cselect_b32 s35, 0x40000000, s35')

    e('s_mov_b32 s58, 0')
    e('s_mov_b32 s59, 0')

    def x_check(lab):
        e('s_lshr_b32 s57, s58, 1')
        e('s_min_u32 s57, s57, 15')
        e('s_add_u32 s58, s58, 1')
        e('s_cmp_lt_u32 s57, s59')
        e(f's_cbranch_scc1 {lab}_ok')
        e(f's_mov_b32 s39, {WS_CTR + C_LN1 * 128}')
        e.label(lab)
        e('buffer_load_dword v3, v6, s[4:7], s39 offen sc1')
        e('s_waitcnt vmcnt(0)')
        e('v_cmp_le_u32 vcc, 8, v3')
        e('s_and_b32 s59, vcc_lo, 0xffff')
        e('s_ff0_i32_b32 s59, s59')
        e('s_cmp_lt_u32 s57, s59')
        e(f's_cbranch_scc1 {lab}_ok')
        e('s_sleep 2')
        e(f's_branch {lab}')
        e.label(lab + '_ok')

    def x_items():
        it = []
        for j, n in enumerate((4, 4, 2)):
            it.append(f's_mul_i32 s57, {s(SW)}, {n * 1024}')
            if j:
                it.append(f's_add_u32 s57, s57, {16384 * j}')
            it.append('s_add_u32 m0, s57, s56')
            it.append('s_add_u32 s57, s57, s55')
            for i in range(n):
                it.append(f'buffer_load_dwordx4 {v(G.v_xg + (i & 1))}, s[4:7], s57 offen offset:{1024 * i} sc1 lds')
        it += [f's_add_u32 s57, s55, {64 * 1280}', f's_cmp_lt_u32 s57, {WS_H1 + 2048 * 1280}', 's_cselect_b32 s55, s57, s55',
               's_add_u32 s56, s56, 40960', 's_cmp_lt_u32 s56, 163840', 's_cselect_b32 s56, s56, 0']
        return it

    def qsig(upto):
        e(f's_sub_u32 s37, {upto}, s34')
        e('s_bfm_b64 exec, s37, s34')
        e('s_cmp_eq_u32 s37, 0')
        e('s_cselect_b32 s38, 0x40000000, s35')
        e('s_cselect_b64 exec, 1, exec')
        e(f's_mov_b32 s34, {upto}')
        e('buffer_atomic_sub v7, v8, s[4:7], s38 offen')
        e('s_mov_b64 exec, -1')
    for i in range(2):
        x_check(f'{name}_w{i}')
        for x in x_items():
            e(x)
    e('s_mov_b32 s32, s33')
    e('s_mov_b32 s33, 0x40000000')
    e(f's_cmp_lg_u32 {s(P2)}, 1')
    e(f's_cbranch_scc1 {name}_T')
    far_jump(e, f'{name}_N', 98)

    def q_cvt(o):
        for k in range(4):
            t = QO + 4 * k
            if o == 'T':
                p, mi = k >> 1, k & 1
                srcs = [QA + (mi * 4 + p * 2 + hf) * 4 for hf in range(2)]
            else:
                p, a_ = k >> 1, k & 1
                srcs = [QA + (hf * 4 + p * 2 + a_) * 4 for hf in range(2)]
            for hf in range(2):
                e(f'v_cvt_pk_bf16_f32 {v(t + 2 * hf)}, {v(srcs[hf])}, {v(srcs[hf] + 1)}')
                e(f'v_cvt_pk_bf16_f32 {v(t + 2 * hf + 1)}, {v(srcs[hf] + 2)}, {v(srcs[hf] + 3)}')

    def q_st(o):
        it = ['s_add_u32 s36, s33, 8192']
        for k in range(4):
            it.append(f'buffer_store_dwordx4 {v(QO + 4 * k, 4)}, {"v4" if o == "T" else "v5"}, s[4:7], {"s36" if k >> 1 else "s33"} offen offset:{1024 * (k & 1)} sc1')
        it += ['s_mov_b32 s33, s32', f's_add_u32 s32, s32, {64 * 8192}']
        return it
    for o in 'TN':
        nm = f'{name}_{o}'
        e.label(nm)
        reset(e)
        D = 4

        def rd(ks):
            for mi in range(2):
                e(f'ds_read_b128 {v(QX + 8 * (ks % D) + 4 * mi, 4)}, {v(G.v_xa + (ks & 1))} offset:{(ks >> 1) * 4096 + mi * 2048}', tag=('xf', ks))
        e('s_waitcnt vmcnt(10)')
        e('s_barrier')
        for ks in range(D - 1):
            rd(ks)
        e('s_sub_u32 s36, s51, 1')
        e('s_max_i32 s36, s36, s34')
        qsig('s36')
        e.nop(4)
        q_cvt(o)
        x_check(nm + '_x')
        for x in q_st(o):
            e(x)
        e('s_cmp_lg_u32 s51, 1')
        e(f's_cbranch_scc1 {nm}_nd')
        e('s_waitcnt vmcnt(0)')
        e('s_barrier')
        qsig('s51')
        if LOG:
            e('s_memrealtime s[100:101]')
            e('s_waitcnt lgkmcnt(0)')
            e('s_mov_b32 s63, s100')
        e.label(nm + '_nd')
        side = x_items()
        for ks in range(20):
            if ks + D - 1 < 20:
                rd(ks + D - 1)
            e.wait_lg(('xf', ks))
            for mi in range(2):
                for ni in range(4):
                    ac = v(QA + (mi * 4 + ni) * 4, 4)
                    fx, fw = v(QX + 8 * (ks % D) + 4 * mi, 4), u(qw(ks, ni), 4)
                    A_, B_ = (fx, fw) if o == 'N' else (fw, fx)
                    e(f'v_mfma_f32_16x16x32_bf16 {ac}, {A_}, {B_}, {"0" if ks == 0 else ac}')
                    if side and ni & 1:
                        e(side.pop(0))
        assert not side
        e('s_add_u32 s51, s51, 1')
        e('s_and_b32 s57, s51, 3')
        e('s_mov_b32 s57, 40960')
        e('s_cselect_b32 s57, s57, 0xfffe2000')
        for i in range(2):
            e(f'v_add_u32 {v(G.v_xa + i)}, s57, {v(G.v_xa + i)}')
        e('s_cmp_lt_u32 s51, 32')
        e(f's_cbranch_scc1 {nm}')
        q_cvt(o)
        for x in q_st(o):
            e(x)
        e('s_waitcnt vmcnt(0)')
        e('s_barrier')
        qsig(32)
        if o == 'T':
            far_jump(e, f'{name}_end', 98)
    e.label(f'{name}_end')
    reset(e)
    if LOG:
        e('s_memrealtime s[100:101]')
        e('s_waitcnt lgkmcnt(0)')
        e('v_mov_b32 v4, s63')
        e('v_mov_b32 v5, s100')
        e('v_mov_b32 v2, 0')
        e(f's_lshl_b32 s38, {s(S_RANK)}, 4')
        e(f's_add_u32 s38, s38, {WS_LOG}')
        e('buffer_store_dwordx2 v[4:5], v2, s[4:7], s38 offen')
    back_jump(e, 'wk_pool')

    name = 'wk_ln1'
    e.label(name)
    reset(e)
    RPW = 4
    e(f's_lshl_b32 s30, {s(P1)}, 2')
    e(f's_add_u32 s30, s30, {s(SW)}')
    e(f's_mul_i32 s30, s30, {RPW * 1280}')
    e(f'v_lshlrev_b32 v4, 2, {v(VL)}')
    e('s_add_u32 s31, s30, 2560')
    for r in range(RPW):
        for i in range(5):
            e(f'buffer_load_dword {v(16 + 5 * r + i)}, v4, {s(S_X, 4)}, {"s30" if r < 2 else "s31"} offen offset:{(r & 1) * 1280 + 256 * i}', tag=('x', r))
    e(f's_mov_b32 s32, {f32bits(1.0 / 640):#x}')
    e(f's_mov_b32 s33, {f32bits(1e-5):#x}')
    e('s_waitcnt vmcnt(0)')
    for r in range(RPW):
        X = 64 + 10 * r
        for i in range(5):
            e(f'v_lshlrev_b32 {v(X + 2 * i)}, 16, {v(16 + 5 * r + i)}')
            e(f'v_and_b32 {v(X + 2 * i + 1)}, 0xffff0000, {v(16 + 5 * r + i)}')
        e(f'v_add_f32 v8, {v(X)}, {v(X + 1)}')
        for j in range(2, 10):
            e(f'v_add_f32 v8, v8, {v(X + j)}')
        wave_sum(e, 8, 9)
        e('v_mul_f32 v8, s32, v8')
        e('v_mov_b32 v10, 0')
        for j in range(10):
            e(f'v_sub_f32 v9, {v(X + j)}, v8')
            e('v_fmac_f32 v10, v9, v9')
        wave_sum(e, 10, 9)
        e('v_mul_f32 v10, s32, v10')
        rnd2(e, 8, 10, 7)
        e('v_add_f32 v10, s33, v10')
        rnd2(e, 10, 9, 7)
        e('v_sqrt_f32 v10, v10')
        rnd2(e, 10, 9, 7)
        e('v_rcp_f32 v10, v10')
        for j in range(0, 10, 2):
            a_, b_ = X + j, X + j + 1
            e(f'v_sub_f32 {v(a_)}, {v(a_)}, v8')
            e(f'v_sub_f32 {v(b_)}, {v(b_)}, v8')
            rnd2(e, a_, b_, 7)
            e(f'v_mul_f32 {v(a_)}, {v(a_)}, v10')
            e(f'v_mul_f32 {v(b_)}, {v(b_)}, v10')
            rnd2(e, a_, b_, 7)
    e('s_cmp_lg_u32 s48, 1')
    e(f's_cbranch_scc1 {name}_m')
    dbg_wait(e, name, D_MOD, NMODA)
    e.label(f'{name}_m')
    reset(e)
    e(f'v_lshlrev_b32 v3, 3, {v(VL)}')
    e(f's_mov_b32 s34, {WS_MOD}')
    e(f's_mov_b32 s35, {WS_MOD + 2560}')
    for i in range(5):
        e(f'buffer_load_dwordx2 {v(16 + 2 * i, 2)}, v3, s[4:7], s34 offen offset:{512 * i} sc1')
        e(f'buffer_load_dwordx2 {v(26 + 2 * i, 2)}, v3, s[4:7], s35 offen offset:{512 * i} sc1')
    e(f'v_bfe_u32 v5, {v(VL)}, 1, 2')
    e(f'v_bfe_u32 v6, {v(VL)}, 3, 1')
    e(f'v_and_b32 v12, 1, {v(VL)}')
    e('v_lshl_add_u32 v12, v6, 1, v12')
    e('v_lshl_add_u32 v12, v5, 2, v12')
    e(f'v_and_b32 v5, 16, {v(VL)}')
    e('v_add_u32 v12, v12, v5')
    e('v_lshlrev_b32 v12, 2, v12')
    e(f'v_lshrrev_b32 v5, 5, {v(VL)}')
    e('v_lshl_add_u32 v12, v5, 9, v12')
    e(f's_mul_i32 s38, {s(SW)}, 5120')
    e('v_add_u32 v12, s38, v12')
    e(f'v_lshlrev_b32 v13, 4, {v(VL)}')
    e('v_add_u32 v14, s38, v13')
    e('v_and_b32 v13, 0x1f0, v13')
    e('v_lshl_add_u32 v13, v5, 12, v13')
    e('s_lshr_b32 s30, s53, 1')
    e(f's_mul_i32 s30, s30, {32 * 1280}')
    e('s_and_b32 s31, s53, 1')
    e('s_lshl_b32 s31, s31, 2')
    e(f's_add_u32 s31, s31, {s(SW)}')
    e('s_lshl_b32 s31, s31, 9')
    e('s_add_u32 s30, s30, s31')
    e(f's_add_u32 s30, s30, {WS_H1}')
    e.wait_vm()
    for j in range(10):
        e(f'v_add_f32 {v(26 + j)}, 1.0, {v(26 + j)}')
    for j in range(0, 10, 2):
        rnd2(e, 26 + j, 27 + j, 7)
    for r in range(RPW):
        X = 64 + 10 * r
        for j in range(0, 10, 2):
            a_, b_ = X + j, X + j + 1
            e(f'v_pk_mul_f32 {v(a_, 2)}, {v(a_, 2)}, {v(26 + j, 2)}')
            rnd2(e, a_, b_, 7)
            e(f'v_pk_add_f32 {v(a_, 2)}, {v(a_, 2)}, {v(16 + j, 2)}')
            e(f'v_cvt_pk_bf16_f32 {v(a_)}, {v(a_)}, {v(b_)}')
            e(f'ds_write_b32 v12, {v(a_)} offset:{r * 128 + 512 * j}')
    e.wait_lg()
    for i in range(5):
        e(f'ds_read_b128 {v(16 + 4 * i, 4)}, v14 offset:{1024 * i}')
    e.wait_lg()
    for i in range(5):
        e(f'buffer_store_dwordx4 {v(16 + 4 * i, 4)}, v13, s[4:7], s30 offen sc1')
        e('s_add_u32 s30, s30, 8192')
    e(f's_lshr_b32 {s(B)}, {s(P1)}, 3')
    signal(e, name, C_LN1, B, loop)

    SEG = B
    XS, XA2, ACC, XF, ET, WB = 20, 22, 24, 40, 72, 80

    def cwait(lab, cbase, tgt, extra=None):
        e(f's_cmp_lg_u32 {s(SW)}, 0')
        e(f's_cbranch_scc1 {lab}_dw')
        e(f's_lshl_b32 s39, {s(SEG)}, 7')
        e(f's_add_u32 s39, s39, {WS_CT2 + cbase * 128}')
        if extra is not None:
            e(f's_add_u32 s39, s39, {s(extra)}')
        e('v_mov_b32 v2, 0')
        e.label(f'{lab}_sp')
        e('buffer_load_dword v3, v2, s[4:7], s39 offen sc1')
        e('s_waitcnt vmcnt(0)')
        e('v_readfirstlane_b32 s37, v3')
        e(f's_cmp_ge_u32 s37, {tgt}')
        e(f's_cbranch_scc1 {lab}_dw')
        e(f's_sleep {SLEEP}')
        e(f's_branch {lab}_sp')
        e.label(f'{lab}_dw')
        e('s_barrier')
        if LOG:
            e('s_memrealtime s[100:101]')
            e('s_waitcnt lgkmcnt(0)')
            e('s_mov_b32 s63, s100')
        reset(e)

    def cdone(name, cbase, extra=None, nxt=None, tsk=None):
        e('s_waitcnt vmcnt(0) lgkmcnt(0)')
        e('s_barrier')
        if cbase is not None:
            e(f's_cmp_lg_u32 {s(SW)}, 0')
            e(f's_cbranch_scc1 {name}_sg')
            e(f's_lshl_b32 s38, {s(SEG)}, 7')
            e(f's_add_u32 s38, s38, {WS_CT2 + cbase * 128}')
            if extra is not None:
                e(f's_add_u32 s38, s38, {s(extra)}')
            e('v_mov_b32 v2, 0')
            e('v_mov_b32 v3, 1')
            e('s_mov_b64 exec, 1')
            e('buffer_atomic_add v3, v2, s[4:7], s38 offen')
            e('s_mov_b64 exec, -1')
            e.label(f'{name}_sg')
        if LOG:
            e('s_memrealtime s[100:101]')
            e('s_waitcnt lgkmcnt(0)')
            e('v_mov_b32 v64, s63')
            e('v_mov_b32 v65, s100')
            e('v_mov_b32 v66, s61')
            e('v_mov_b32 v67, s28')
            e('v_mov_b32 v2, 0')
            e(f's_mul_i32 s38, {s(SEG)}, {GSZ}')
            e(f's_add_u32 s38, s38, {s(S_RANK)}')
            e('s_lshl_b32 s38, s38, 4')
            e(f's_add_u32 s38, s38, {WS_LOG + 768 * 16}')
            e('buffer_store_dwordx4 v[64:67], v2, s[4:7], s38 offen')
            e.nop(2)
        if tsk:
            e(f's_mov_b32 {s(tsk)}, s50')
            e('s_add_u32 s49, s49, 11')
            e(f's_cmp_lt_u32 {s(tsk)}, 512')
        else:
            e(f's_cmp_lt_u32 {s(SEG)}, {N0}')
            e('s_cselect_b32 s38, 1, 2')
            e(f's_add_u32 {s(SEG)}, {s(SEG)}, s38')
            e(f's_cmp_lt_u32 {s(SEG)}, 64')
        e(f's_cbranch_scc1 {nxt or name + "_loop"}')
        e('s_endpgm')

    class SG:
        def __init__(self, name, panels, KT, coloffs, nacc=1, rows=32):
            self.name, self.KT, self.nacc, self.rows = name, KT, nacc, rows
            G = self.G = Gemm(e, rows, panels, rows // 16, 64 // rows, KT, 128, nstage=1, vbase=8, sbase=40)
            assert G.v_wa + G.NT <= XS
            self.NT = NT = G.NT
            assert WB + KT * 2 * NT * 4 <= 512
            G.setup(VL, SW, 2)
            e('s_mov_b32 s57, 0')
            G.init_offsets(57, coloffs)
            e(f's_and_b32 s57, {s(SW)}, 1')
            e('s_cmp_eq_u32 s57, 1')
            e('s_cselect_b64 vcc, -1, 0')
            e(f'v_cndmask_b32 {v(XS)}, {v(G.v_xg)}, {v(G.v_xg + 1)}, vcc')
            e(f'v_cndmask_b32 {v(XS + 1)}, {v(G.v_xg + 1)}, {v(G.v_xg)}, vcc')
            e(f'v_add_u32 {v(XA2)}, 0x10000, {v(G.v_xa)}')
            e(f'v_add_u32 {v(XA2 + 1)}, 0x10000, {v(G.v_xa + 1)}')
            NS = min(KT, 163840 // G.stage, 12)
            for k in range(NS):
                for f in G.dma_items(None, k, ('w', k), 'w'):
                    f()
            for k in range(KT):
                e.wait_vm(('w', k))
                e('s_barrier')
                if k >= 1 and k - 1 + NS < KT:
                    for f in G.dma_items(None, (k - 1) % NS, ('w', k - 1 + NS), 'w'):
                        f()
                for ks in range(2):
                    for ni, (pi, a_) in enumerate(G.tiles):
                        rb = panels[pi][2] * 2
                        for m in range(2):
                            e(f'ds_read_b64_tr_b16 {u(self.wr(2 * k + ks, ni) + 2 * m, 2)}, {v(G.v_wa + ni)} offset:{(32 * ks + 16 * m) * rb}')
                d = G.stage if (k + 1) % NS else -(NS - 1) * G.stage
                for ni in range(NT):
                    if d >= 0:
                        e(f'v_add_u32 {v(G.v_wa + ni)}, {d}, {v(G.v_wa + ni)}')
                    else:
                        e(f'v_subrev_u32 {v(G.v_wa + ni)}, {-d}, {v(G.v_wa + ni)}')
                e.wait_lg()
            e('s_barrier')

        def wr(self, ks, ni):
            return WB + (ks * self.NT + ni) * 4

        def acc(self, ni, par=0):
            return ACC + (par * self.NT + ni) * 4

        def main(self, sx, extra_loads=None):
            G, KT, NT = self.G, self.KT, self.NT
            ktb = self.rows * 128
            P = (KT * ktb // 1024 + 3) // 4 * 4
            upg = 16384 // ktb // 2
            ng = (P + 15) // 16
            for j in range(ng):
                n = min(16, P - 16 * j) // 4
                e(f's_mul_i32 s57, {s(SW)}, {n * 1024}')
                if j:
                    e(f's_add_u32 s57, s57, {16384 * j}')
                e('s_mov_b32 m0, s57')
                e(f's_add_u32 s57, s57, {s(sx)}')
                for i in range(n):
                    xr = (G.v_xg if n % 2 == 0 else XS) + (i & 1)
                    e(f'buffer_load_dwordx4 {v(xr)}, s[4:7], s57 offen offset:{1024 * i} sc1 lds', tag=('x', j))
            if extra_loads:
                extra_loads()
            nu = (2 * KT + 3) // 4

            def reads(un):
                if un % upg == 0:
                    e.wait_vm(('x', un // upg))
                    e('s_barrier')
                for q in range(4):
                    ks = 4 * un + q
                    if ks >= 2 * KT:
                        break
                    off = (ks >> 1) * ktb
                    ar = (G.v_xa if off < 65536 else XA2) + (ks & 1)
                    e(f'ds_read_b128 {v(XF + 16 * (un & 1) + 4 * q, 4)}, {v(ar)} offset:{off & 65535}', tag=('xf', ks))
            reads(0)
            for un in range(nu):
                if un + 1 < nu:
                    reads(un + 1)
                for q in range(4):
                    ks = 4 * un + q
                    if ks >= 2 * KT:
                        break
                    e.wait_lg(('xf', ks))
                    par = ks % self.nacc
                    for ni in range(NT):
                        ac = v(self.acc(ni, par), 4)
                        e(f'v_mfma_f32_16x16x32_bf16 {ac}, {u(self.wr(ks, ni), 4)}, {v(XF + 16 * (un & 1) + 4 * q, 4)}, {"0" if ks < self.nacc else ac}')
            if self.nacc == 2:
                for ni in range(NT):
                    for j in range(0, 4, 2):
                        e(f'v_pk_add_f32 {v(self.acc(ni) + j, 2)}, {v(self.acc(ni) + j, 2)}, {v(self.acc(ni, 1) + j, 2)}')

    name = 'wk_att'
    e.label(name)
    reset(e)
    e('s_lshl_b32 s49, s49, 3')
    e(f's_add_u32 s49, s49, {s(P1)}')

    def gtask(dst, adv):
        e(f's_add_u32 {s(dst)}, s49, {adv}')
        e(f's_and_b32 s37, {s(dst)}, 0xfff8')
        e(f's_max_u32 s37, s37, {8 * N0}')
        e(f's_sub_u32 s37, s37, {8 * N0}')
        e(f's_add_u32 {s(dst)}, {s(dst)}, s37')
        e('s_lshl_b32 s37, s3, 3')
        e(f's_add_u32 {s(dst)}, {s(dst)}, s37')
    gtask(54, 0)
    e('s_mov_b32 s50, s54')
    e(f'v_and_b32 v2, 15, {v(VL)}')
    e(f'v_lshrrev_b32 v3, 4, {v(VL)}')
    e('v_lshlrev_b32 v4, 4, v3')
    e('v_lshl_add_u32 v4, v2, 6, v4')
    e(f'v_lshlrev_b32 v5, 4, {v(VL)}')
    e(f'v_lshlrev_b32 v6, 3, {v(VL)}')
    e(f'v_bfe_u32 v10, {v(VL)}, 2, 2')
    e('v_lshl_add_u32 v10, v3, 2, v10')
    e(f'v_and_b32 v11, 1, {v(VL)}')
    e('v_lshlrev_b32 v11, 3, v11')
    e('v_lshl_add_u32 v10, v10, 4, v11')
    e(f's_lshl_b32 s38, {s(SW)}, 11')
    e('v_add_u32 v10, s38, v10')
    MK = 88
    e('v_lshlrev_b32 v7, 2, v3')
    for j in range(4):
        e(f'v_add_u32 v8, {j}, v7')
        e(f'v_cmp_le_u32 {s(MK + 2 * j, 2)}, v8, v2')
    e('s_mov_b32 s96, -1')
    e('s_mov_b32 s97, 0')
    cc = f32bits((128 ** -0.5) * LOG2E)
    e(f's_mov_b32 s98, {cc:#x}')
    e(f's_mov_b32 s99, {cc:#x}')
    KM_, VM_, ONES, NEG, DO = 16, 32, 40, 44, 72
    S0, S1, M, P, PM, OA = 144, 156, 204, 208, 212, 168
    for j in range(4):
        e(f'v_mov_b32 {v(ONES + j)}, 0x3f803f80')
    e(f'v_mov_b32 {v(NEG)}, 0xf149f2ca')
    e(f'v_mov_b32 {v(PM + 1)}, 0')
    e(f'v_mov_b32 {v(PM + 2)}, 0')
    e('v_lshlrev_b32 v9, 4, v3')
    e('v_lshl_add_u32 v9, v2, 7, v9')
    e('s_mov_b32 s56, -1')

    def att_loads(lab, st, adv):
        Q, KX_, VX_ = 256 + 96 * st, 288 + 96 * st, 320 + 96 * st
        e('s_mov_b32 s55, s50')
        e('s_cmp_ge_u32 s55, 512')
        e(f's_cbranch_scc1 {lab}_nl')
        e('s_lshr_b32 s59, s55, 3')
        e('s_cmp_eq_u32 s59, s56')
        e(f's_cbranch_scc1 {lab}_rdy')
        dep_wait(e, lab, [(K_KV + (WS_CT2 - WS_CTR) // 128, 32), (K_Q + (WS_CT2 - WS_CTR) // 128, 16)], 59)
        e('s_mov_b32 s56, s59')
        e.label(f'{lab}_rdy')
        e('s_lshl_b32 s31, s55, 2')
        e(f's_add_u32 s31, s31, {s(SW)}')
        e('s_lshl_b32 s32, s31, 13')
        e(f's_add_u32 s33, s32, {WS_QX}')
        e('s_add_u32 s34, s33, 4096')
        e(f's_add_u32 s35, s32, {WS_KX}')
        e('s_add_u32 s36, s35, 4096')
        for uu in range(4):
            for ti in range(2):
                e(f'buffer_load_dwordx4 {u(Q + 16 * ti + 4 * uu, 4)}, v4, s[4:7], {"s33" if uu < 2 else "s34"} offen offset:{2048 * (uu & 1) + 1024 * ti} sc1')
                e(f'buffer_load_dwordx4 {u(KX_ + 16 * ti + 4 * uu, 4)}, v4, s[4:7], {"s35" if uu < 2 else "s36"} offen offset:{2048 * (uu & 1) + 1024 * ti} sc1')
        e(f's_add_u32 s39, s32, {WS_VXT}')
        e('s_add_u32 s40, s39, 4096')
        for et in range(8):
            e(f'buffer_load_dwordx4 {u(VX_ + 4 * et, 4)}, v5, s[4:7], {"s39" if et < 4 else "s40"} offen offset:{1024 * (et & 3)} sc1')
        e.label(f'{lab}_nl')
        reset(e)
    att_loads(name + '_p', 0, 0)
    e('s_waitcnt vmcnt(0)')
    for st in range(2):
        nm = f'{name}{st}'
        Q, KX_, VX_ = 256 + 96 * st, 288 + 96 * st, 320 + 96 * st
        e.label(nm + '_top')
        reset(e)
        for uu in range(4):
            c0 = (lambda r: '0' if uu == 0 else v(r, 4))
            e(f'v_mfma_f32_16x16x32_bf16 {v(S0, 4)}, {u(KX_ + 4 * uu, 4)}, {u(Q + 4 * uu, 4)}, {c0(S0)}')
            e(f'v_mfma_f32_16x16x32_bf16 {v(S1, 4)}, {u(KX_ + 4 * uu, 4)}, {u(Q + 16 + 4 * uu, 4)}, {c0(S1)}')
            e(f'v_mfma_f32_16x16x32_bf16 {v(S1 + 4, 4)}, {u(KX_ + 16 + 4 * uu, 4)}, {u(Q + 16 + 4 * uu, 4)}, {c0(S1 + 4)}')
        e(f'v_mov_b32 {v(P + 2)}, 0')
        e(f'v_mov_b32 {v(P + 3)}, 0')
        for dg in (S0, S1 + 4):
            for j in range(4):
                e(f'v_cndmask_b32 {v(dg + j)}, {v(NEG)}, {v(dg + j)}, {s(MK + 2 * j, 2)}')
        e(f's_lshr_b32 {s(SEG)}, s54, 3')
        e('s_and_b32 s58, s54, 7')
        if LOG:
            e(f's_mov_b32 {s(S_RANK)}, s58')
        e('s_lshr_b32 s58, s58, 1')
        e('s_lshl_b32 s58, s58, 4')
        gtask(50, 11)
        e('s_min_u32 s55, s50, 511')
        e('s_lshr_b32 s59, s55, 3')
        e('s_cmp_eq_u32 s59, s56')
        e(f's_cbranch_scc1 {nm}_r2')
        dep_wait(e, nm + '_c', [(K_KV + (WS_CT2 - WS_CTR) // 128, 32), (K_Q + (WS_CT2 - WS_CTR) // 128, 16)], 59)
        e('s_mov_b32 s56, s59')
        e.label(f'{nm}_r2')
        e('s_lshl_b32 s31, s54, 2')
        e(f's_add_u32 s31, s31, {s(SW)}')
        e('s_lshl_b32 s43, s31, 12')
        e(f's_add_u32 s43, s43, {WS_KM}')
        e(f's_lshl_b32 s41, {s(SEG)}, 18')
        e('s_and_b32 s42, s31, 31')
        e('s_lshl_b32 s42, s42, 12')
        e('s_add_u32 s41, s41, s42')
        e(f's_add_u32 s41, s41, {WS_O}')
        e('s_add_u32 s42, s41, 131072')
        cwait(nm + '2', K_CH, NCH)
        e(f's_lshl_b32 m0, {s(SW)}, 11')
        e('buffer_load_dwordx4 v5, s[4:7], s43 offen sc1 lds', tag='k')
        e('buffer_load_dwordx4 v5, s[4:7], s43 offen offset:1024 sc1 lds', tag='k')
        for w in range(4):
            e(f'buffer_load_dwordx2 {v(VM_ + 2 * w, 2)}, v6, s[4:7], s43 offen offset:{2048 + 512 * w} sc1', tag='v')
        e.wait_vm('k')
        for uu in range(4):
            for m_ in range(2):
                e(f'ds_read_b64_tr_b16 {v(KM_ + 4 * uu + 2 * m_, 2)}, v10 offset:{uu * 512 + m_ * 256}')
        e('s_waitcnt vmcnt(0)')
        att_loads(nm + '_n', 1 - st, 0)
        e('s_waitcnt lgkmcnt(0)')
        for uu in range(4):
            for tq, S in enumerate((S0, S1)):
                e(f'v_mfma_f32_16x16x32_bf16 {v(S + 8, 4)}, {v(KM_ + 4 * uu, 4)}, {u(Q + 16 * tq + 4 * uu, 4)}, {"0" if uu == 0 else v(S + 8, 4)}')
        for tq, S in enumerate((S0, S1)):
            C0 = S + 8
            e(f'v_cndmask_b32 {v(C0)}, {v(C0 + 2)}, {v(C0)}, s[96:97]')
            e(f'v_cndmask_b32 {v(C0 + 1)}, {v(C0 + 3)}, {v(C0 + 1)}, s[96:97]')
            vals = [S + j for j in range(4 * (tq + 1))] + [C0, C0 + 1]
            e(f'v_max3_f32 {v(M)}, {v(vals[0])}, {v(vals[1])}, {v(vals[2])}')
            i = 3
            while i + 1 < len(vals):
                e(f'v_max3_f32 {v(M)}, {v(M)}, {v(vals[i])}, {v(vals[i + 1])}')
                i += 2
            if i < len(vals):
                e(f'v_max_f32 {v(M)}, {v(M)}, {v(vals[i])}')
            for sw_ in ('v_permlane32_swap_b32', 'v_permlane16_swap_b32'):
                e(f'v_mov_b32 {v(M + 1)}, {v(M)}')
                e(f'{sw_} {v(M)}, {v(M + 1)}')
                e(f'v_max_f32 {v(M)}, {v(M)}, {v(M + 1)}')
            e(f'v_mul_f32 {v(M)}, s98, {v(M)}')
            for x in vals[::2]:
                e(f'v_pk_fma_f32 {v(x, 2)}, {v(x, 2)}, s[98:99], {v(M, 2)} op_sel_hi:[1,1,0] neg_lo:[0,0,1] neg_hi:[0,0,1]')
            for x in vals:
                e(f'v_exp_f32 {v(x)}, {v(x)}')
            for j in range(2 * (tq + 1)):
                e(f'v_cvt_pk_bf16_f32 {v(P + j)}, {v(S + 2 * j)}, {v(S + 2 * j + 1)}')
            e(f'v_cvt_pk_bf16_f32 {v(PM)}, {v(C0)}, {v(C0 + 1)}')
            e(f'v_cvt_pk_bf16_f32 {v(PM + 3)}, {v(C0)}, {v(C0 + 1)}')
            e.wait_vm('v')
            if tq == 0:
                mid(e)
            Lr = OA + 32
            e(f'v_mfma_f32_16x16x32_bf16 {v(Lr, 4)}, {v(ONES, 4)}, {v(P, 4)}, 0')
            for et in range(8):
                e(f'v_mfma_f32_16x16x32_bf16 {v(OA + 4 * et, 4)}, {u(VX_ + 4 * et, 4)}, {v(P, 4)}, 0')
            e(f'v_mfma_f32_16x16x16_bf16 {v(Lr, 4)}, {v(ONES, 2)}, {v(PM, 2)}, {v(Lr, 4)}')
            for et in range(8):
                e(f'v_mfma_f32_16x16x16_bf16 {v(OA + 4 * et, 4)}, {v(VM_ + 2 * (et >> 1), 2)}, {v(PM + 2 * (et & 1), 2)}, {v(OA + 4 * et, 4)}')
            e(f'v_rcp_f32 {v(M)}, {v(Lr)}')
            for ub in range(4):
                o = OA + 8 * ub
                d = DO + 16 * tq + 4 * ub
                for j in range(0, 8, 2):
                    e(f'v_pk_mul_f32 {v(o + j, 2)}, {v(o + j, 2)}, {v(M, 2)} op_sel_hi:[1,0]')
                for j in range(4):
                    e(f'v_cvt_pk_bf16_f32 {v(d + j)}, {v(o + 2 * j)}, {v(o + 2 * j + 1)}')
                e(f'buffer_store_dwordx4 {v(d, 4)}, v9, s[4:7], {"s42" if tq else "s41"} offen offset:{2048 * (ub >> 1) + 64 * (ub & 1)} sc1')
        cdone(nm, K_ATT, 58, nxt=f'{name}{1 - st}_top', tsk=54)

    name = 'wk_wo'
    e.label(name)
    reset(e)
    e(f's_lshr_b32 s55, {s(P1)}, 3')
    e(f's_bfe_u32 s56, {s(P1)}, 0x20001')
    e(f's_mul_i32 s58, s56, {1024 * 1280}')
    e('s_lshl_b32 s59, s55, 8')
    e('s_add_u32 s58, s58, s59')
    S = SG(name, [(24, 1280, 128)], 16, [58], nacc=2, rows=16)
    e('s_lshl_b32 s58, s56, 4')
    e(f'v_and_b32 v4, 15, {v(VL)}')
    e(f'v_lshrrev_b32 v5, 4, {v(VL)}')
    e('v_lshlrev_b32 v5, 4, v5')
    e('v_lshl_add_u32 v4, v4, 6, v5')
    e('s_lshl_b32 s33, s55, 2')
    e(f's_add_u32 s33, s33, {s(SW)}')
    e('s_lshl_b32 s33, s33, 12')
    e(f's_and_b32 s31, {s(P1)}, 1')
    e('s_lshl_b32 s32, s31, 10')
    e('s_add_u32 s33, s33, s32')
    e(f's_mul_i32 s32, s56, {32 * 2560}')
    e('s_add_u32 s33, s33, s32')
    e(f's_add_u32 s59, s33, {WS_PW}')
    e('s_lshl_b32 s56, s56, 15')
    e('s_lshl_b32 s31, s31, 17')
    e('s_add_u32 s56, s56, s31')
    e(f's_add_u32 s56, s56, {WS_O}')
    e.label(name + '_loop')
    reset(e)
    e(f's_lshl_b32 s55, {s(SEG)}, 18')
    e('s_add_u32 s55, s55, s56')
    e(f's_mul_i32 s33, {s(SEG)}, {4 * 32 * 2560}')
    e('s_add_u32 s33, s33, s59')
    cwait(name, K_ATT, 2, 58)
    S.main(55)
    mid(e)
    for ni in range(2):
        e(f'buffer_store_dwordx4 {v(S.acc(ni), 4)}, v4, s[4:7], s33 offen offset:{2048 * ni} sc1')
    cdone(name, K_WO)

    name = 'wk_ln2'
    e.label(name)
    reset(e)
    GT, SH, SC, RS_, PP = 16, 28, 40, 52, 64
    dbg_wait(e, name + '_mb', D_MODB, NMODB)
    e(f'v_lshlrev_b32 v10, 4, {v(VL)}')
    e('v_and_b32 v11, 0x1f0, v10')
    e(f'v_lshrrev_b32 v12, 1, v10')
    e(f'v_lshrrev_b32 v13, 1, v11')
    for base, idx in ((GT, 2), (SH, 3), (SC, 4)):
        e(f's_mov_b32 s32, {WS_MOD + idx * 2560}')
        for i in range(3):
            e(f'buffer_load_dwordx4 {v(base + 4 * i, 4)}, {"v10" if i < 2 else "v11"}, s[4:7], s32 offen offset:{1024 * i} sc1')
    e(f's_lshl_b32 s30, {s(P1)}, 2')
    e(f's_add_u32 s30, s30, {s(SW)}')
    e(f'v_lshrrev_b32 v4, 2, {v(VL)}')
    e(f'v_and_b32 v5, 3, {v(VL)}')
    e('v_lshlrev_b32 v5, 4, v5')
    e('v_lshl_add_u32 v14, v4, 11, v5')
    e('v_and_b32 v4, 7, v4')
    e('v_lshl_add_u32 v15, v4, 11, v5')
    e(f'v_lshrrev_b32 v4, 5, {v(VL)}')
    e(f'v_mul_u32_u24 v4, {32 * 2560}, v4')
    e('v_add_u32 v15, v15, v4')
    e(f'v_lshrrev_b32 v4, 4, {v(VL)}')
    e('v_lshl_add_u32 v8, v4, 12, v5')
    e(f'v_bfe_u32 v4, {v(VL)}, 3, 1')
    e('v_lshl_add_u32 v8, v4, 6, v8')
    e(f'v_bfe_u32 v4, {v(VL)}, 2, 1')
    e('v_lshl_add_u32 v8, v4, 3, v8')
    e('v_and_b32 v9, 0x1fff, v8')
    e('s_lshr_b32 s56, s30, 4')
    e('s_lshl_b32 s56, s56, 10')
    e('s_and_b32 s57, s30, 15')
    e('s_lshl_b32 s57, s57, 6')
    e('s_add_u32 s56, s56, s57')
    e(f's_add_u32 s56, s56, {WS_PW}')
    e('s_lshl_b32 s57, s30, 7')
    e(f's_add_u32 s57, s57, {WS_H2}')
    e('s_mul_i32 s58, s30, 1280')
    e('s_waitcnt vmcnt(0)')
    for j in range(12):
        e(f'v_add_f32 {v(SC + j)}, 1.0, {v(SC + j)}')
    for j in range(0, 12, 2):
        rnd2(e, SC + j, SC + j + 1, 7)
    e('s_mov_b32 s96, -1')
    e('s_mov_b32 s97, 0')
    e(f's_mov_b32 s98, {f32bits(1.0 / 640):#x}')
    e(f's_mov_b32 s99, {f32bits(1e-5):#x}')
    e.label(name + '_loop')
    reset(e)
    e(f's_mul_i32 s31, {s(SEG)}, {32 * 1280}')
    e('s_add_u32 s41, s31, s57')
    e('s_add_u32 s31, s31, s58')
    e(f's_add_u32 s40, s31, {WS_X1}')
    e(f's_mul_i32 s36, {s(SEG)}, {4 * 32 * 2560}')
    e('s_add_u32 s36, s36, s56')
    cwait(name, K_WO, 40)
    for k in range(4):
        e(f's_add_u32 s33, s36, {k * 32 * 2560}')
        e(f's_add_u32 s34, s36, {k * 32 * 2560 + 32768}')
        e(f'buffer_load_dwordx4 {v(PP + 12 * k, 4)}, v14, s[4:7], s33 offen sc1', tag=('p', k))
        e(f'buffer_load_dwordx4 {v(PP + 12 * k + 4, 4)}, v14, s[4:7], s34 offen sc1', tag=('p', k))
        if k % 2 == 0:
            e(f's_add_u32 s35, s36, {k * 32 * 2560 + 65536}')
            e(f'buffer_load_dwordx4 {v(PP + 12 * k + 8, 4)}, v15, s[4:7], s35 offen sc1', tag=('p', k))
    for i in range(3):
        e(f'buffer_load_dwordx2 {v(RS_ + 2 * i, 2)}, {"v12" if i < 2 else "v13"}, {s(S_X, 4)}, s31 offen offset:{512 * i}', tag='r')
    X = PP
    e('s_add_u32 s42, s41, 16384')
    e('s_add_u32 s43, s41, 32768')
    for k in range(1, 4):
        e.wait_vm(('p', k))
        for j in range(0, 12 if k % 2 == 0 else 8, 2):
            e(f'v_pk_add_f32 {v(X + j, 2)}, {v(X + j, 2)}, {v(X + k * 12 + j, 2)}')
    for j in range(8, 12):
        e(f'v_mov_b32 {v(X + 12 + j)}, {v(X + j)}')
    for j in range(8, 12):
        e(f'v_permlane32_swap_b32 {v(X + j)}, {v(X + 12 + j)}')
    for j in range(8, 12, 2):
        e(f'v_pk_add_f32 {v(X + j, 2)}, {v(X + j, 2)}, {v(X + 12 + j, 2)}')
    mid(e)
    e.wait_vm('r')
    for j in range(0, 12, 2):
        a_, b_ = X + j, X + j + 1
        rr = RS_ + j // 2
        rnd2(e, a_, b_, 7)
        e(f'v_pk_mul_f32 {v(a_, 2)}, {v(a_, 2)}, {v(GT + j, 2)}')
        rnd2(e, a_, b_, 7)
        e(f'v_lshlrev_b32 v4, 16, {v(rr)}')
        e(f'v_and_b32 v5, 0xffff0000, {v(rr)}')
        e(f'v_pk_add_f32 {v(a_, 2)}, {v(a_, 2)}, v[4:5]')
        e(f'v_cvt_pk_bf16_f32 {v(rr)}, {v(a_)}, {v(b_)}')
        e(f'v_lshlrev_b32 {v(a_)}, 16, {v(rr)}')
        e(f'v_and_b32 {v(b_)}, 0xffff0000, {v(rr)}')
        if j % 4 == 2:
            i = j // 4
            e(f'buffer_store_dwordx2 {v(RS_ + 2 * i, 2)}, {"v12" if i < 2 else "v13"}, s[4:7], s40 offen offset:{512 * i} sc1')
    e(f'v_pk_add_f32 v[4:5], {v(X + 8, 2)}, {v(X + 10, 2)}')
    e('v_add_f32 v4, v4, v5')
    e('v_cndmask_b32 v6, 0, v4, s[96:97]')
    e(f'v_pk_add_f32 v[4:5], {v(X, 2)}, {v(X + 2, 2)}')
    e(f'v_pk_add_f32 v[4:5], v[4:5], {v(X + 4, 2)}')
    e(f'v_pk_add_f32 v[4:5], v[4:5], {v(X + 6, 2)}')
    e('v_add_f32 v4, v4, v5')
    e('v_add_f32 v6, v6, v4')
    wave_sum(e, 6, 5)
    e('v_mul_f32 v6, s98, v6')
    e('v_mov_b32 v2, 0')
    for j in range(8, 12):
        e(f'v_sub_f32 v5, {v(X + j)}, v6')
        e('v_fmac_f32 v2, v5, v5')
    e('v_cndmask_b32 v2, 0, v2, s[96:97]')
    for j in range(8):
        e(f'v_sub_f32 v5, {v(X + j)}, v6')
        e('v_fmac_f32 v2, v5, v5')
    wave_sum(e, 2, 5)
    e('v_mul_f32 v2, s98, v2')
    rnd2(e, 6, 2, 7)
    e('v_add_f32 v2, s99, v2')
    rnd2(e, 2, 5, 7)
    e('v_sqrt_f32 v2, v2')
    rnd2(e, 2, 5, 7)
    e('v_rcp_f32 v2, v2')
    for j in range(0, 12, 2):
        a_, b_ = X + j, X + j + 1
        e(f'v_sub_f32 {v(a_)}, {v(a_)}, v6')
        e(f'v_sub_f32 {v(b_)}, {v(b_)}, v6')
        rnd2(e, a_, b_, 7)
        e(f'v_mul_f32 {v(a_)}, {v(a_)}, v2')
        e(f'v_mul_f32 {v(b_)}, {v(b_)}, v2')
        rnd2(e, a_, b_, 7)
        e(f'v_pk_mul_f32 {v(a_, 2)}, {v(a_, 2)}, {v(SC + j, 2)}')
        rnd2(e, a_, b_, 7)
        e(f'v_pk_add_f32 {v(a_, 2)}, {v(a_, 2)}, {v(SH + j, 2)}')
        e(f'v_cvt_pk_bf16_f32 {v(X + 12 + j // 2)}, {v(a_)}, {v(b_)}')
        if j % 4 == 2:
            i = j // 4
            e(f'buffer_store_dwordx2 {v(X + 12 + 2 * i, 2)}, {"v8" if i < 2 else "v9"}, s[4:7], {s(41 + i)} offen sc1')
    cdone(name, K_LN2)

    name = 'wk_up'
    e.label(name)
    reset(e)
    e(f's_lshl_b32 s58, {s(P1)}, 7')
    e('s_mov_b32 s59, s58')
    S = SG(name, [(S_W1, 3456, 64), (S_W3, 3456, 64)], 10, [58, 59])
    e(f'v_and_b32 v4, 15, {v(VL)}')
    e(f'v_lshrrev_b32 v5, 4, {v(VL)}')
    e('v_lshlrev_b32 v5, 4, v5')
    e('v_lshl_add_u32 v4, v4, 7, v5')
    e(f's_lshr_b32 s31, {s(SW)}, 1')
    e(f's_mul_i32 s31, s31, {16 * 3456}')
    e(f's_and_b32 s32, {s(SW)}, 1')
    e('s_lshl_b32 s32, s32, 6')
    e('s_add_u32 s31, s31, s32')
    e(f's_lshl_b32 s59, {s(P1)}, 11')
    e('s_add_u32 s59, s59, s31')
    e(f's_add_u32 s59, s59, {WS_HM}')
    e(f's_mov_b32 s36, {f32bits(-LOG2E):#x}')
    e.label(name + '_loop')
    reset(e)
    e(f's_mul_i32 s55, {s(SEG)}, {32 * 1280}')
    e(f's_add_u32 s55, s55, {WS_H2}')
    e(f's_mul_i32 s33, {s(SEG)}, {32 * 3456}')
    e('s_add_u32 s33, s33, s59')
    cwait(name, K_LN2, 8)
    S.main(55)
    mid(e)
    for a_ in range(2):
        gv = S.acc(a_)
        uv = S.acc(2 + a_)
        for h in range(2):
            g0, g1, u0, u1 = gv + 2 * h, gv + 2 * h + 1, uv + 2 * h, uv + 2 * h + 1
            rnd2(e, g0, g1, 6)
            rnd2(e, u0, u1, 6)
            silu_inplace(e, g0, 6, 36)
            silu_inplace(e, g1, 7, 36)
            rnd2(e, g0, g1, 6)
            e(f'v_mul_f32 {v(g0)}, {v(g0)}, {v(u0)}')
            e(f'v_mul_f32 {v(g1)}, {v(g1)}, {v(u1)}')
            e(f'v_cvt_pk_bf16_f32 {v(ET + 2 * a_ + h)}, {v(g0)}, {v(g1)}')
    e(f'buffer_store_dwordx4 {v(ET, 4)}, v4, s[4:7], s33 offen sc1')
    cdone(name, K_UP)

    name = 'wk_dn'
    e.label(name)
    reset(e)
    e(f's_lshr_b32 s58, {s(P1)}, 1')
    e('s_lshl_b32 s58, s58, 8')
    S = SG(name, [(S_W2, 1280, 128)], 27, [58], nacc=2, rows=16)
    dbg_wait(e, name + '_mb', D_MODB, NMODB)
    GBV = 8
    G = S.G
    assert (G.v_xg, G.v_xa) == (8, 12)
    e(f'v_and_b32 v4, 15, {v(VL)}')
    e(f'v_lshrrev_b32 v5, 4, {v(VL)}')
    e('v_mul_u32_u24 v4, 1280, v4')
    e('v_lshl_add_u32 v4, v5, 3, v4')
    e('v_lshlrev_b32 v5, 4, v5')
    e(f's_lshl_b32 s32, {s(SW)}, 6')
    e('s_add_u32 s58, s58, s32')
    e('s_lshl_b32 s33, s58, 1')
    e(f's_add_u32 s33, s33, {WS_MOD + 5 * 2560}')
    e(f'buffer_load_dwordx4 {v(ET, 4)}, v5, s[4:7], s33 offen sc1')
    e(f'buffer_load_dwordx4 {v(ET + 4, 4)}, v5, s[4:7], s33 offen offset:64 sc1')
    e(f's_and_b32 s31, {s(P1)}, 1')
    e(f's_mul_i32 s56, s31, {16 * 3456}')
    e(f's_add_u32 s56, s56, {WS_HM}')
    e(f's_mul_i32 s31, s31, {16 * 1280}')
    e('s_add_u32 s59, s58, s31')
    e('s_waitcnt vmcnt(0)')
    e.label(name + '_loop')
    reset(e)
    e(f's_mul_i32 s55, {s(SEG)}, {32 * 3456}')
    e('s_add_u32 s55, s55, s56')
    e(f's_mul_i32 s33, {s(SEG)}, {32 * 1280}')
    e('s_add_u32 s33, s33, s59')
    e(f's_add_u32 s34, s33, {WS_X1}')
    cwait(name, K_UP, 27)

    def x1_loads():
        e('buffer_load_dwordx2 v[16:17], v4, s[4:7], s34 offen sc1', tag='r')
        e('buffer_load_dwordx2 v[18:19], v4, s[4:7], s34 offen offset:32 sc1', tag='r')
    S.main(55, x1_loads)
    mid(e)
    e.wait_vm('r')
    for ni in range(2):
        for h in range(2):
            a_ = S.acc(ni) + 2 * h
            rr = 16 + 2 * ni + h
            rnd2(e, a_, a_ + 1, 7)
            e(f'v_pk_mul_f32 {v(a_, 2)}, {v(a_, 2)}, {v(ET + 4 * ni + 2 * h, 2)}')
            rnd2(e, a_, a_ + 1, 7)
            e(f'v_lshlrev_b32 v6, 16, {v(rr)}')
            e(f'v_and_b32 v7, 0xffff0000, {v(rr)}')
            e(f'v_pk_add_f32 {v(a_, 2)}, {v(a_, 2)}, v[6:7]')
            e(f'v_cvt_pk_bf16_f32 {v(rr)}, {v(a_)}, {v(a_ + 1)}')
        e(f'buffer_store_dwordx2 {v(16 + 2 * ni, 2)}, v4, {s(S_OUT, 4)}, s33 offen offset:{32 * ni}')
    cdone(name, None)

    name = 'wk_mod'
    e.label(name)
    reset(e)
    load_srds(e, [('c', 88), ('wmod', 92)], tmp=96)
    e(f's_lshl_b32 s30, {s(SW)}, 6')
    e(f'v_add_u32 v0, s30, {v(VL)}')
    e(f's_cmp_ge_u32 {s(P1)}, {NMODA}')
    e(f's_cbranch_scc1 {name}_nz')
    e('v_mov_b32 v4, 0')
    e('v_mov_b32 v5, 0')
    e('v_lshlrev_b32 v2, 3, v0')
    e(f's_lshl_b32 s31, {s(P1)}, 11')
    e(f's_add_u32 s31, s31, {WS_CT2}')
    e('buffer_store_dwordx2 v[4:5], v2, s[4:7], s31 offen sc1')
    e(f's_cmp_lg_u32 {s(P1)}, 0')
    e(f's_cbranch_scc1 {name}_nz')
    for j in range(4):
        e(f'v_mov_b32 {v(4 + j)}, 0')
    e('v_lshlrev_b32 v2, 4, v0')
    e(f's_mov_b32 s31, {WS_CTR}')
    for i in range(5):
        e('buffer_store_dwordx4 v[4:7], v2, s[4:7], s31 offen sc1')
        e('s_add_u32 s31, s31, 4096')
    e.label(f'{name}_nz')
    reset(e)
    e.nop(2)
    e('v_lshlrev_b32 v14, 1, v0')
    e('v_lshlrev_b32 v2, 2, v0')
    e(f's_mov_b32 s30, {f32bits(-LOG2E):#x}')
    for i in range(3):
        e(f'buffer_load_ushort {v(4 + i)}, v14, s[88:91], 0 offen offset:{512 * i}', tag='c')
    e('v_and_b32 v8, 3, v0')
    e('v_lshrrev_b32 v9, 2, v0')
    e('v_mul_u32_u24 v10, 7680, v9')
    e('v_lshl_add_u32 v10, v8, 4, v10')
    e(f's_lshl_b32 s31, {s(P1)}, 6')
    for i in range(10):
        if i:
            e(f's_add_u32 s31, s31, {64 * 7680}')
        e(f'buffer_load_dwordx4 {v(32 + 4 * i, 4)}, v10, s[92:95], s31 offen', tag=('w', i))
    e.wait_vm('c')
    for i in range(3):
        e(f'v_lshlrev_b32 {v(4 + i)}, 16, {v(4 + i)}')
        silu_inplace(e, 4 + i, 7, 30)
        e(f'v_cvt_pk_bf16_f32 {v(4 + i)}, {v(4 + i)}, {v(4 + i)}')
        e(f'v_lshlrev_b32 {v(4 + i)}, 16, {v(4 + i)}')
        e(f'ds_write_b32 v2, {v(4 + i)} offset:{1024 * i}')
    e.wait_lg()
    e('s_barrier')
    e('v_lshlrev_b32 v11, 2, v9')
    for i in range(10):
        e(f'ds_read_b32 {v(112 + i)}, v11 offset:{256 * i}')
    for j in range(8):
        e(f'v_mov_b32 {v(16 + j)}, 0')
    e.wait_lg()
    for i in range(10):
        e.wait_vm(('w', i))
        for d in range(4):
            w = 32 + 4 * i + d
            e(f'v_lshlrev_b32 v12, 16, {v(w)}')
            e(f'v_and_b32 v13, 0xffff0000, {v(w)}')
            e(f'v_fmac_f32 {v(16 + 2 * d)}, v12, {v(112 + i)}')
            e(f'v_fmac_f32 {v(17 + 2 * d)}, v13, {v(112 + i)}')
    e('v_lshlrev_b32 v12, 7, v9')
    e('v_lshl_add_u32 v12, v8, 5, v12')
    e('ds_write_b128 v12, v[16:19] offset:4096')
    e('ds_write_b128 v12, v[20:23] offset:4112')
    e.wait_lg()
    e('s_barrier')
    e(f's_cmp_lg_u32 {s(SW)}, 0')
    e(f's_cbranch_scc1 {name}_done')
    e(f'v_and_b32 v12, 31, {v(VL)}')
    e(f'v_lshrrev_b32 v13, 5, {v(VL)}')
    e('v_lshlrev_b32 v12, 2, v12')
    e('v_lshl_add_u32 v13, v13, 12, v12')
    for i in range(32):
        e(f'ds_read_b32 {v(32 + i)}, v13 offset:{4096 + 128 * i}')
    e.wait_lg()
    for i in range(1, 32):
        e(f'v_add_f32 v32, v32, {v(32 + i)}')
    e('v_mov_b32 v33, v32')
    e('v_permlane32_swap_b32 v32, v33')
    e('v_add_f32 v32, v32, v33')
    e('v_cvt_pk_bf16_f32 v32, v32, v32')
    e('v_lshlrev_b32 v32, 16, v32')
    e(f's_lshl_b32 s31, {s(P1)}, 7')
    e(f's_add_u32 s31, s31, {WS_MOD}')
    e('buffer_store_dword v32, v12, s[4:7], s31 offen sc1')
    e.label(f'{name}_done')
    e(f's_mov_b32 s36, {D_MODB}')
    e(f's_cmp_lt_u32 {s(P1)}, {NMODA}')
    e(f's_cselect_b32 s36, {D_MOD}, s36')
    signal(e, name, None, B, loop, dbg_off='s36')


NAME = 'adaLN_cond__memory_aug_recurrent_mem_tr__glu_gated_swiglu__prompt_kernel'
if __name__ == '__main__':
    import argparse
    ap = argparse.ArgumentParser()
    ap.add_argument('--out', default='mega.s')
    ap.add_argument('--kw', default='')
    ap.add_argument('--log', action='store_true')
    ap.add_argument('--sleep', type=int, default=6)
    ap.add_argument('--list', action='store_true')
    ap.add_argument('--dsleep', type=int, default=24)
    ap.add_argument('--n0', type=int, default=14)
    args = ap.parse_args()
    LOG = args.log
    SLEEP = args.sleep
    DSLEEP = args.dsleep
    N0 = args.n0
    e = Em()
    nm = 'mega_kernel' if args.list else NAME
    e.raw(f'.globl {nm}')
    KNAME[0] = nm
    reset(e)
    kw = eval('dict(' + args.kw + ')')
    gen_chainX.gen_chain(e, name=nm, mega='wk_entry', nmoda=NMODA, segsig=WS_CT2 + K_CH * 128, kvt=32, kum=True, kvseg=WS_CT2 + K_KV * 128, **kw)
    gen_workers(e)
    if args.list:
        hdr = f"; @launch kernel={nm} grid=(256,1,1) block=(256,1,1) lds=163840\n"
    else:
        hdr = "; @launch grid=(256,1,1) block=(256,1,1) lds=163840\n"
    hdr += '.amdgcn_target "amdgcn-amd-amdhsa--gfx950"\n.text\n'
    open(args.out, 'w').write(hdr + e.text() + kd(nm, 512, 256))
```
